```python
import torch

def _softmax(x, axis=-1):
    return torch.softmax(x, dim=axis)

def _gelu(x):
    return torch.nn.functional.gelu(x, approximate='tanh')

def _silu(x):
    return torch.nn.functional.silu(x)

def _sigmoid(x):
    return torch.sigmoid(x)

def _layernorm(x, axis=-1, eps=1e-05):
    m = x.mean(dim=axis, keepdim=True)
    v = x.var(dim=axis, keepdim=True, unbiased=False)
    return (x - m) / torch.sqrt(v + eps)

def _scatter_add(tgt, idx, src, axis=0):
    return tgt.clone().index_add_(axis, idx, src)

def _segment_sum(src, seg, n):
    out = torch.zeros((n,) + src.shape[1:], dtype=src.dtype)
    return out.index_add_(0, seg, src)

def _pad(x, pw):
    flat = tuple((v for pair in reversed(pw) for v in pair))
    return torch.nn.functional.pad(x, flat)
kernel_name = 'adaLN_cond__spectral_gfnet__moe_arch_mod__prompt'

def setup_inputs():

    _w = lambda a: (lambda t: t.to(torch.bfloat16) if t.is_floating_point() else t)(torch.as_tensor(a))

    def _A_setup():
        B, S, D = (1, 2048, 640)
        Df = D // 2 + 1
        return {'x': _w((lambda *s: torch.randn(*s, dtype=torch.bfloat16) * 0.05)(B, S, D)), 'w_r': _w((lambda *s: torch.randn(*s, dtype=torch.bfloat16) * 3.2)(S, Df) * 0.02), 'w_i': _w((lambda *s: torch.randn(*s, dtype=torch.bfloat16) * 3.2)(S, Df) * 0.02)}
    _A_in = _A_setup()

    def _B_setup():
        B, S, D, F, C = (1, 2048, 640, 1536, 1)
        return {'x': _w((lambda *s: torch.randn(*s, dtype=torch.bfloat16) * 0.05)(B, S, D)), 'w_r': _w((lambda *s: torch.randn(*s, dtype=torch.bfloat16) * 0.05)(D)), 'w_gate': _w((lambda *s: torch.randn(*s, dtype=torch.bfloat16) * 0.05)(D, F)), 'w_up': _w((lambda *s: torch.randn(*s, dtype=torch.bfloat16) * 0.05)(D, F)), 'w_down': _w((lambda *s: torch.randn(*s, dtype=torch.bfloat16) * 0.05)(F, D))}
    _B_in = _B_setup()
    return {'A_x': _A_in['x'], 'A_w_r': _A_in['w_r'], 'A_w_i': _A_in['w_i'], 'B_x': _B_in['x'], 'B_w_r': _B_in['w_r'], 'B_w_gate': _B_in['w_gate'], 'B_w_up': _B_in['w_up'], 'B_w_down': _B_in['w_down'], 'c': _w((lambda *s: torch.randn(*s, dtype=torch.bfloat16) * 0.1)(1, 640) * 8.0), 'w_mod': _w((lambda *s: torch.randn(*s, dtype=torch.bfloat16) * 0.1)(640, 6 * 640) * 640 ** (-0.5) * 8.0)}

def reference(A_x, A_w_r, A_w_i, B_x, B_w_r, B_w_gate, B_w_up, B_w_down, c, w_mod):

    def _A_ref(x, w_r, w_i):
        B, S, D = x.shape
        X = (lambda x, axes=(-2, -1): torch.fft.rfft2(x.float(), dim=axes))(x, axes=(-2, -1))
        W = w_r + 1j * w_i
        X = X * W
        y = (lambda x, s, axes=(-2, -1): torch.fft.irfft2(x, s=s, dim=axes).to(torch.bfloat16))(X, (S, D), axes=(-2, -1))
        return y

    def _B_ref(x, w_r, w_gate, w_up, w_down):
        B, S, D = x.shape
        C = 1
        r = x @ w_r
        idx = torch.argsort(-r, axis=-1)[:, :C]
        idx_e = (lambda x, n, axis: torch.repeat_interleave(x, n, dim=axis))(idx.reshape(B, C, 1), D, axis=2)
        x_sel = (lambda x, i, axis: torch.take_along_dim(x, i, dim=axis))(x, idx_e, axis=1)
        g = _silu(x_sel @ w_gate)
        u = x_sel @ w_up
        y = g * u @ w_down
        r_sel = _sigmoid((lambda x, i, axis: torch.take_along_dim(x, i, dim=axis))(r, idx, axis=1))
        y = y * r_sel.reshape(B, C, 1)
        b_off = (torch.arange(B) * S).reshape(B, 1)
        flat_idx = (idx + b_off).reshape(B * C)
        zero = (x * 0.0).reshape(B * S, D)
        upd = _scatter_add(zero, flat_idx, y.reshape(B * C, D), axis=0)
        return x + upd.reshape(B, S, D)
    x = A_x
    mod = (_silu(c) @ w_mod).reshape(c.shape[0], 6, 1, -1)
    sa, ca, ga, sb, cb, gb = (mod[:, 0].clone(), mod[:, 1].clone(), mod[:, 2].clone(), mod[:, 3].clone(), mod[:, 4].clone(), mod[:, 5].clone())
    h = _layernorm(x, axis=-1) * (1 + ca) + sa
    x = x + ga * _A_ref(h, A_w_r, A_w_i)
    h = _layernorm(x, axis=-1) * (1 + cb) + sb
    x = x + gb * _B_ref(h, B_w_r, B_w_gate, B_w_up, B_w_down)
    return x
```

```python
import re

TRANS = ('v_exp_f32', 'v_log_f32', 'v_rcp_f32', 'v_rsq_f32', 'v_sqrt_f32', 'v_sin_f32', 'v_cos_f32')


def regs_of(tok):
    tok = tok.strip()
    tok = re.sub(r'^-', '', tok)
    m = re.match(r'^abs\((.*)\)$', tok)
    if m:
        tok = m.group(1)
    tok = tok.strip('|')
    m = re.match(r'^([vs])(\d+)$', tok)
    if m:
        return {(m.group(1), int(m.group(2)))}
    m = re.match(r'^([vs])\[(\d+):(\d+)\]$', tok)
    if m:
        return {(m.group(1), i) for i in range(int(m.group(2)), int(m.group(3)) + 1)}
    if tok in ('vcc', 'vcc_lo', 'vcc_hi'):
        return {('vcc', 0)}
    if tok in ('exec', 'exec_lo', 'exec_hi'):
        return {('exec', 0)}
    if tok == 'm0':
        return {('m0', 0)}
    return set()


def split_ops(s):
    out, depth, cur = [], 0, ''
    for ch in s:
        if ch in '[(':
            depth += 1
        if ch in '])':
            depth -= 1
        if ch == ',' and depth == 0:
            out.append(cur)
            cur = ''
        else:
            cur += ch
    if cur.strip():
        out.append(cur)
    return [o.strip() for o in out]


class Ins:
    def __init__(self, text):
        self.text = text
        t = text.split(';')[0].strip()
        self.label = t.endswith(':')
        self.directive = t.startswith('.') and not self.label
        self.op = ''
        self.defs, self.uses = set(), set()
        self.kind = 'other'
        self.srcC = set()
        self.srcAB = set()
        self.data = set()
        if self.label or self.directive or not t:
            self.kind = 'none'
            return
        parts = t.split(None, 1)
        op = self.op = parts[0]
        rest = parts[1] if len(parts) > 1 else ''
        ops = split_ops(rest)
        mods = ''
        if ops:
            last = ops[-1].split(None, 1)
            ops[-1] = last[0]
            mods = last[1] if len(last) > 1 else ''
        self.mods = mods
        R = [regs_of(o) for o in ops]
        allr = set().union(*R) if R else set()
        self.dpp = ('_dpp' in op) or ('row_' in mods) or ('quad_perm' in mods)
        if op.startswith('v_mfma'):
            self.kind = 'mfma'
            self.passes = 8 if '32x32' in op else 4
            self.defs = R[0]
            self.srcAB = R[1] | R[2]
            self.srcC = R[3]
            self.uses = self.srcAB | self.srcC
        elif op.startswith('v_'):
            self.kind = 'valu'
            base = op.replace('_e32', '').replace('_e64', '').replace('_dpp', '').replace('_sdwa', '')
            self.base = base
            self.trans = base in TRANS
            if base.startswith('v_cmpx'):
                self.defs = R[0] | {('exec', 0)}
                self.uses = set().union(*R[1:])
            elif base.startswith('v_permlane') and 'swap' in base or base == 'v_swap_b32':
                self.defs = allr
                self.uses = allr
            elif base in ('v_add_co_u32', 'v_sub_co_u32', 'v_addc_co_u32', 'v_subb_co_u32'):
                self.defs = R[0] | R[1]
                self.uses = set().union(*R[2:])
            else:
                self.defs = R[0]
                self.uses = set().union(*R[1:]) if len(R) > 1 else set()
                if base in ('v_fmac_f32', 'v_dot2c_f32_bf16', 'v_writelane_b32') or self.dpp:
                    self.uses |= R[0]
                if base == 'v_cndmask_b32' and len(ops) == 3:
                    self.uses |= {('vcc', 0)}
        elif op.startswith('ds_'):
            self.kind = 'ds'
            if op.startswith('ds_read') or '_rtn' in op or 'permute' in op or 'swizzle' in op:
                self.defs = R[0]
                self.uses = set().union(*R[1:])
                if 'd16' in op:
                    self.uses |= R[0]
            else:
                self.uses = allr
        elif op.startswith('global_') or op.startswith('buffer_'):
            self.kind = 'vmem'
            self.lds_dma = '_lds_' in op or re.search(r'\blds\b', mods) is not None
            if 'load' in op and not self.lds_dma:
                self.defs = R[0]
                self.uses = set().union(*R[1:])
                if 'd16' in op:
                    self.uses |= R[0]
            elif 'atomic' in op and 'sc0' in mods:
                self.defs = R[0]
                self.uses = set().union(*R[1:])
            else:
                self.uses = allr
                if 'store' in op and ('x3' in op or 'x4' in op):
                    self.data = R[1] if op.startswith('global_') else R[0]
        elif op.startswith('s_'):
            self.kind = 'salu'
            if op == 's_nop':
                self.kind = 'nop'
                self.n = int(ops[0], 0) + 1
            elif op.startswith(('s_cmp', 's_cbranch', 's_branch', 's_waitcnt', 's_barrier', 's_endpgm', 's_sleep',
                                's_setprio', 's_bitcmp')):
                self.uses = allr
            else:
                self.defs = R[0] if R else set()
                self.uses = set().union(*R[1:]) if len(R) > 1 else set()
                if 'saveexec' in op:
                    self.defs = self.defs | {('exec', 0)}

    def states(self):
        if self.kind == 'none':
            return 0
        if self.kind == 'nop':
            return self.n
        return 1


def vset(s):
    return {r for r in s if r[0] == 'v'}


def sset(s):
    return {r for r in s if r[0] in ('s', 'vcc')}


def required(p, c):
    need = 0
    EX = ('exec', 0)
    if p.kind == 'valu':
        pv, ps = vset(p.defs), sset(p.defs)
        if c.kind == 'mfma' and pv & c.uses:
            need = max(need, 2)
        if c.kind == 'valu':
            if c.dpp and pv & c.uses:
                need = max(need, 2)
            if c.base.startswith('v_permlane') and pv & c.uses:
                need = max(need, 2)
            if c.base in ('v_readlane_b32', 'v_readfirstlane_b32') and pv & c.uses:
                need = max(need, 1)
            if p.trans and pv & c.uses:
                need = max(need, 1)
            if ps & c.uses:
                need = max(need, 4 if c.base in ('v_readlane_b32', 'v_writelane_b32') else 2)
            if EX in p.defs:
                if c.dpp:
                    need = max(need, 5)
                if c.base in ('v_readlane_b32', 'v_readfirstlane_b32', 'v_writelane_b32') or c.base.startswith('v_permlane'):
                    need = max(need, 4)
                if EX in c.uses:
                    need = max(need, 2)
            if ('op_sel' in p.mods and not p.base.startswith('v_pk_')) or 'dst_sel' in p.mods:
                if pv & (c.uses | c.defs):
                    need = max(need, 1)
        if p.base.startswith('v_dot') and c.kind != 'salu' and pv & (c.uses | c.defs):
            if not (c.kind == 'valu' and c.base == p.base and p.defs == c.defs):
                need = max(need, 3)
        if p.trans and c.kind in ('vmem', 'ds') and pv & c.uses:
            need = max(need, 1)
        if c.kind == 'vmem' and ps & c.uses:
            need = max(need, 5)
        if c.kind == 'mfma' and EX in p.defs:
            need = max(need, 4)
        if c.kind == 'salu' and ps & c.uses:
            need = max(need, 1)
    if p.kind == 'mfma':
        lat = 8 if p.passes == 4 else 12
        if c.kind == 'mfma':
            if p.defs & c.srcAB:
                need = max(need, lat)
            if p.defs & c.srcC:
                if not (p.defs == c.srcC and p.passes == c.passes and p.op == c.op):
                    need = max(need, lat - 2)
            elif p.defs & c.defs:
                need = max(need, lat)
        elif c.kind in ('valu', 'vmem', 'ds'):
            if p.defs & (c.uses | c.defs):
                need = max(need, lat)
            if c.kind == 'valu' and vset(p.srcC) & c.defs:
                need = max(need, 3 if p.passes == 4 else 7)
    if p.kind == 'vmem' and p.data:
        if c.kind in ('valu', 'mfma') and p.data & c.defs:
            need = max(need, 2)
        elif p.data & c.defs:
            need = max(need, 1)
    if p.kind == 'salu' and ('m0', 0) in p.defs:
        if c.kind == 'vmem' and c.lds_dma:
            need = max(need, 1)
    return need


class Asm:
    def __init__(self):
        self.lines = []

    def __call__(self, text):
        for ln in text.split('\n'):
            ln = ln.strip()
            if ln:
                self.lines.append(ln)

    def label(self, name):
        self.lines.append(name + ':')

    def finish(self):
        ins = [Ins(t) for t in self.lines]
        out = []
        nnops = 0
        pend = {}
        hist = [[]]

        def need_for(h, c):
            dist = 0
            worst = 0
            for p in reversed(h):
                if dist >= 20:
                    break
                r = required(p, c)
                if r > dist:
                    worst = max(worst, r - dist)
                dist += p.states()
            return worst

        for c in ins:
            if c.label:
                name = c.text.split(':')[0].strip()
                hist = hist + pend.pop(name, [])
                out.append(c)
                continue
            if c.kind == 'none':
                out.append(c)
                continue
            w = max((need_for(h, c) for h in hist), default=0)
            while w > 0:
                k = min(w, 16)
                nop = Ins('s_nop %d' % (k - 1))
                out.append(nop)
                for h in hist:
                    h.append(nop)
                nnops += 1
                w -= k
            out.append(c)
            for h in hist:
                h.append(c)
            hist = [h[-24:] for h in hist]
            uniq = []
            for h in hist:
                if not any(len(h) == len(u) and all(a is b for a, b in zip(h, u)) for u in uniq):
                    uniq.append(h)
            hist = uniq
            if c.op.startswith(('s_cbranch', 's_branch')):
                tgt = c.text.split(';')[0].split()[1]
                pend.setdefault(tgt, []).extend([list(h) for h in hist])
                if c.op == 's_branch':
                    hist = [[]]
            if c.op == 's_endpgm':
                hist = [[]]
        self.nnops = nnops
        res = []
        for c in out:
            res.append(c.text if (c.label or c.directive) else '    ' + c.text)
        return '\n'.join(res) + '\n'
```

```python
import sys, struct
import numpy as np
from asmdsl import Asm

NAME = 'adaLN_cond__spectral_gfnet__moe_arch_mod__prompt'
DIAG = '--diag' in sys.argv
OUT = [a for a in sys.argv[1:] if not a.startswith('--')]
OUT = OUT[0] if OUT else f'cdna_kernels/{NAME}.s'
SPIN = 60000

MODA_G = 0
FLAG_G = 10240
MODB_G = 11264
PY_G = 32768
PY_STRIDE = 2688
REC_G = 0x80000
REC_STRIDE = 6272
REC_H2 = 128
REC_BASE = 128 + 2560
T1_G = 0x400000
T2_G = 0x800000
DIAG_G = 0xC00000

NTAB = 25
TAB = 0
XB2 = TAB + NTAB * 1024
XB1 = XB2 + 12288
XB3 = XB1
RED = XB1 + 18560
KEYL = RED + 1024
MODA_L = KEYL + 64
MODB_L = MODA_L + 5120
WR_L = MODB_L + 10240
WST = WR_L + 2048
EW = WST + 16384
FW = EW + 40960
LDS_BYTES = FW + 20480
assert LDS_BYTES <= 163840, LDS_BYTES
assert MODA_L + 5120 < 65536

T_F20C, T_F20S, T_TW1, T_F32, T_F16, T_TW2, T_TW3, T_F20I = 0, 1, 2, 6, 14, 16, 18, 22


def f2u(x):
    return struct.unpack('<I', struct.pack('<f', float(x)))[0]


def bf(x):
    u = f2u(x)
    return ((u + 0x7FFF + ((u >> 16) & 1)) >> 16) & 0xFFFF


def pk(lo, hi):
    return bf(lo) | (bf(hi) << 16)


def cs(num, den):
    a = 2 * np.pi * (num % den) / den
    c, s = np.cos(a), np.sin(a)
    if abs(c) < 1e-12: c = 0.0
    if abs(s) < 1e-12: s = 0.0
    return c, s


def tables():
    T = np.zeros((NTAB, 64, 4), np.uint32)
    for l in range(64):
        i, g = l & 15, l >> 4
        c8, s8 = [0.0] * 8, [0.0] * 8
        for j in range(5):
            if i <= 10:
                c, s = cs((4 * j + g) * i, 20)
                c8[j], s8[j] = c, -s
        for d in range(4):
            T[T_F20C, l, d] = pk(c8[2 * d], c8[2 * d + 1])
            T[T_F20S, l, d] = pk(s8[2 * d], s8[2 * d + 1])
        for t in range(2):
            for r in range(4):
                c, s = cs((8 * g + 2 * r + t) * i, 640)
                T[T_TW1 + 2 * t, l, r] = f2u(c)
                T[T_TW1 + 2 * t + 1, l, r] = f2u(s)
                c, s = cs((2 * i + t) * (4 * g + r), 640)
                T[T_TW3 + 2 * t, l, r] = f2u(c)
                T[T_TW3 + 2 * t + 1, l, r] = f2u(s)
        for tile in range(2):
            for ks in range(2):
                for r in range(4):
                    c, s = cs((2 * i + tile) * (8 * g + 2 * r + ks), 32)
                    T[T_F32 + tile * 4 + 0 + ks, l, r] = pk(c, s)
                    T[T_F32 + tile * 4 + 2 + ks, l, r] = pk(-s, c)
        for r in range(4):
            c, s = cs(i * (4 * g + r), 16)
            T[T_F16, l, r] = pk(c, s)
            T[T_F16 + 1, l, r] = pk(-s, c)
            c, s = cs(i * (4 * g + r), 256)
            T[T_TW2, l, r] = f2u(c)
            T[T_TW2 + 1, l, r] = f2u(s)
            ka = 4 * g + r
            if ka <= 10:
                a1 = 4 * (i & 3) + (i >> 2)
                c, s = cs(a1 * ka, 20)
                T[T_F20I, l, r] = pk(c, -s)
                c, s = cs((16 + (i >> 2)) * ka, 20)
                if (i & 3) == 0:
                    T[T_F20I + 1, l, r] = pk(c, -s)
                if (i & 3) == 1:
                    T[T_F20I + 2, l, r] = pk(c, -s)
    return T


def vr(a, n=1):
    return f'v{a}' if n == 1 else f'v[{a}:{a + n - 1}]'


def sr(a, n=2):
    return f's{a}' if n == 1 else f's[{a}:{a + n - 1}]'


sW, sX, sIdx, sMe, sT = 3, 4, 5, 6, 7
A_X, W_R, W_I, B_WR, W_G, W_U, W_D = 8, 10, 12, 16, 18, 20, 22
C_, W_MOD, OUTP, DBG, WS = 24, 26, 28, 30, 32
sBa, sBb, sBc = 34, 36, 38
sCnt = 40
sM1B = 41
sU0, sU1, sU2, sU3 = 42, 43, 46, 47
sM7 = 44
sRow = 48
sKey = 49
sV1, sV2 = 50, 51
sHI = 52
sCand = 53
sGU = 56
sXrow = 72
sTS = 74

vL, vL16, vL4, vP48, vPoll = 1, 2, 3, 4, 5
vM8F, vM8I = 6, 8
vXS = 10
Ra, Rb, RD, Rc = 20, 28, 36, 52
vF32 = 60
vTW = 92
vF20 = 108
vVec = 120
vE0 = 160

a = Asm()
nstamp = [0]


def stamp(name):
    if not DIAG:
        return
    k = nstamp[0]
    nstamp[0] += 1
    assert sTS + 2 * k + 1 <= 101
    a(f's_memrealtime {sr(sTS + 2 * k)}')
    a('s_waitcnt lgkmcnt(0)')


def base_add(dst, src, off_s=None, imm=0):
    if off_s is not None:
        if imm:
            a(f's_add_u32 s{sT}, s{off_s}, {imm}')
            off_s = sT
        a(f's_add_u32 s{dst}, s{src}, s{off_s}')
    else:
        a(f's_add_u32 s{dst}, s{src}, {imm}')
    a(f's_addc_u32 s{dst + 1}, s{src + 1}, 0')


lblc = [0]


def newlabel(p):
    lblc[0] += 1
    return f'L_{p}_{lblc[0]}'


def poll(loads, regs, tmp, mask=None, zero_is_empty=False):
    L, D = newlabel('poll'), newlabel('polld')
    if mask is not None:
        a(f's_mov_b64 exec, {mask}')
    a(f's_mov_b32 s{sCnt}, {SPIN}')
    a.label(L)
    for ld in loads:
        a(ld)
    a('s_waitcnt vmcnt(0)')
    if len(regs) == 1:
        t = regs[0]
    else:
        rem = list(regs)
        outs = []
        k = 0
        while len(rem) >= 3 and k < len(tmp):
            a(f'v_max3_u32 v{tmp[k]}, v{rem[0]}, v{rem[1]}, v{rem[2]}')
            outs.append(tmp[k])
            rem = rem[3:]
            k += 1
        rem = outs[1:] + rem
        t = outs[0] if outs else None
        if t is None:
            t = tmp[0]
            a(f'v_max_u32 v{t}, v{rem[0]}, v{rem[1]}')
            rem = rem[2:]
        while rem:
            if len(rem) >= 2:
                a(f'v_max3_u32 v{t}, v{t}, v{rem[0]}, v{rem[1]}')
                rem = rem[2:]
            else:
                a(f'v_max_u32 v{t}, v{t}, v{rem[0]}')
                rem = rem[1:]
    a(f'v_cmpx_eq_u32 vcc, {0 if zero_is_empty else -1}, v{t}')
    a(f's_cbranch_execz {D}')
    a(f's_sub_u32 s{sCnt}, s{sCnt}, 1')
    a(f's_cbranch_scc0 {L}')
    a.label(D)
    a('s_mov_b64 exec, -1')


def dpp(op, r, ctrl, rm='0xf'):
    a(f'{op}_dpp v{r}, v{r}, v{r} {ctrl} row_mask:{rm} bank_mask:0xf')


def wave_sum(regs, dst_s, op='v_add_f32'):
    for c in ('row_ror:8', 'row_ror:4', 'row_ror:2', 'row_ror:1'):
        for r in regs:
            dpp(op, r, c)
    for r in regs:
        dpp(op, r, 'row_bcast:15', '0xa')
    for r in regs:
        dpp(op, r, 'row_bcast:31', '0xc')
    for r, s in zip(regs, dst_s):
        a(f'v_readlane_b32 s{s}, v{r}, 63')


def rbf(dst, src):
    a(f'v_cvt_pk_bf16_f32 v{dst}, {src}, {src}')
    a(f'v_and_b32 v{dst}, s{sHI}, v{dst}')


def unpack(dlo, dhi, src):
    a(f'v_lshlrev_b32 v{dlo}, 16, v{src}')
    a(f'v_and_b32 v{dhi}, s{sHI}, v{src}')


def mfma32(d, x, y, c=None):
    a(f'v_mfma_f32_16x16x32_bf16 {vr(d, 4)}, {vr(x, 4)}, {vr(y, 4)}, {vr(c, 4) if c is not None else 0}')


def mfma16(d, x, y):
    a(f'v_mfma_f32_16x16x16_bf16 {vr(d, 4)}, {vr(x, 2)}, {vr(y, 2)}, 0')


def cmul(tr, ti, re, im, c, s, sign):
    nr = 'neg_lo:[1,0,0] neg_hi:[1,0,0]'
    for h in (0, 2):
        a(f'v_pk_mul_f32 {vr(tr + h, 2)}, {vr(re + h, 2)}, {vr(c + h, 2)}')
    for h in (0, 2):
        a(f'v_pk_mul_f32 {vr(ti + h, 2)}, {vr(im + h, 2)}, {vr(c + h, 2)}')
    for h in (0, 2):
        a(f'v_pk_fma_f32 {vr(tr + h, 2)}, {vr(im + h, 2)}, {vr(s + h, 2)}, {vr(tr + h, 2)} {nr if sign > 0 else ""}')
    for h in (0, 2):
        a(f'v_pk_fma_f32 {vr(ti + h, 2)}, {vr(re + h, 2)}, {vr(s + h, 2)}, {vr(ti + h, 2)} {nr if sign < 0 else ""}')


def pack4(d, lo, hi, step=1):
    for r in range(4):
        a(f'v_cvt_pk_bf16_f32 v{d + r * step}, v{lo + r}, v{hi + r}')


def tab_read(dst, q):
    a(f'ds_read_b128 {vr(dst, 4)}, v{vL16} offset:{TAB + q * 1024}')


def tm(j, t):
    return 4 * t + j if j < 4 else 8 + t


def read_tmajor(dst, vaddr, off):
    o = off // 256
    assert off % 256 == 0 and o + 6 < 256
    for t in range(2):
        a(f'ds_read2st64_b32 {vr(dst + 4 * t, 2)}, v{vaddr + t} offset0:{o} offset1:{o + 2}')
        a(f'ds_read2st64_b32 {vr(dst + 4 * t + 2, 2)}, v{vaddr + t} offset0:{o + 4} offset1:{o + 6}')
    a(f'ds_read_b64 {vr(dst + 8, 2)}, v{vaddr} offset:{off + 2048}')


def silu(dst, src, tmp):
    for d, s, t in zip(dst, src, tmp):
        a(f'v_mul_f32 v{t}, 0xbfb8aa3b, v{s}')
    for t in tmp:
        a(f'v_exp_f32 v{t}, v{t}')
    for t in tmp:
        a(f'v_add_f32 v{t}, 1.0, v{t}')
    for t in tmp:
        a(f'v_rcp_f32 v{t}, v{t}')
    for d, s, t in zip(dst, src, tmp):
        a(f'v_mul_f32 v{d}, v{s}, v{t}')


def swap_reduce8(acc):
    for k in range(4):
        a(f'v_permlane32_swap_b32 v{acc + k}, v{acc + k + 4}')
    a(f'v_pk_add_f32 {vr(acc, 2)}, {vr(acc, 2)}, {vr(acc + 4, 2)}')
    a(f'v_pk_add_f32 {vr(acc + 2, 2)}, {vr(acc + 2, 2)}, {vr(acc + 6, 2)}')
    for k in range(2):
        a(f'v_permlane16_swap_b32 v{acc + k}, v{acc + k + 2}')
    a(f'v_pk_add_f32 {vr(acc, 2)}, {vr(acc, 2)}, {vr(acc + 2, 2)}')


BC0 = 'op_sel:[0,0,0] op_sel_hi:[1,0,1]'
BC1 = 'op_sel:[0,1,0] op_sel_hi:[1,1,1]'


def prologue():
    a(f'''
    s_cmp_ge_u32 s2, 256
    s_cbranch_scc1 L_end
    s_load_dwordx16 s[8:23], s[0:1], 0
    s_load_dwordx8 s[24:31], s[0:1], 64
    s_load_dwordx2 s[32:33], s[0:1], 96
    v_lshrrev_b32 v{vL}, 6, v0
    s_and_b32 s{sX}, s2, 7
    v_readfirstlane_b32 s{sW}, v{vL}
    v_and_b32 v{vL}, 63, v0
    s_lshr_b32 s{sIdx}, s2, 3
    s_lshl_b32 s{sMe}, s{sX}, 5
    s_add_u32 s{sMe}, s{sMe}, s{sIdx}
    v_lshlrev_b32 v{vL16}, 4, v{vL}
    s_mov_b32 s{sHI}, 0xffff0000
    s_cmp_eq_u32 s{sW}, 9
    s_cbranch_scc1 L_h1
    s_cmp_eq_u32 s{sW}, 8
    s_cbranch_scc1 L_h0
    ''')


def xloads():
    for j in range(5):
        a(f'global_load_dword v{vE0 + j}, v{vL4}, {sr(sXrow)} offset:{256 * j}')


def gemv_mod(role):
    nj = 3 if role == 'A' else 5
    vw, vc, acc, tmp, vo, voc = 20, 40, 48, 60, 56, 57
    if role == 'A':
        a(f'''
        s_mul_i32 s{sU2}, s{sX}, 10
        s_add_u32 s{sU2}, s{sU2}, s{sIdx}          ; blk
        s_lshr_b32 s{sU0}, s{sU2}, 1
        s_and_b32 s{sU1}, s{sU2}, 1
        s_mul_i32 s{sU1}, s{sU1}, 320
        s_mul_i32 s{sT}, s{sW}, 40
        s_add_u32 s{sU1}, s{sU1}, s{sT}
        s_lshl_b32 s{sU2}, s{sU2}, 7
        ''')
        for k in range(4):
            a(f'v_mov_b32 v{vw + 8 + k}, 0')
        a(f'v_mov_b32 v{vc + 2}, 0')
    else:
        a(f'''
        s_mul_i32 s{sU2}, s{sX}, 10
        s_add_u32 s{sU2}, s{sU2}, s{sIdx}
        s_add_u32 s{sU0}, s{sU2}, 30               ; 40 + 10x + idx - 10
        s_mul_i32 s{sU1}, s{sW}, 80
        s_lshl_b32 s{sU2}, s{sU2}, 7
        s_add_u32 s{sU2}, s{sU2}, {MODB_G - 1280}
        ''')
    a(f'''
    v_lshrrev_b32 v{voc}, 2, v{vL}
    v_and_b32 v{vo}, 48, v{vL16}
    v_mul_u32_u24 v{tmp}, 7680, v{voc}
    v_lshlrev_b32 v{voc}, 1, v{voc}
    v_add_u32 v{vo}, v{vo}, v{tmp}
    s_mul_i32 s{sU3}, s{sU1}, 7680
    s_lshl_b32 s{sT}, s{sU0}, 6
    s_add_u32 s{sU3}, s{sU3}, s{sT}
    s_lshl_b32 s{sU1}, s{sU1}, 1
    s_waitcnt lgkmcnt(0)
    ''')
    base_add(sBa, C_, sU1)
    base_add(sBb, W_MOD, sU3)
    base_add(sXrow, A_X, sRow)
    if role == 'B':
        xloads()
    for j in range(nj):
        if role == 'A' and j == 2:
            a('s_mov_b32 exec_hi, 0')
        a(f'global_load_ushort v{vc + j}, v{voc}, {sr(sBa)} offset:{32 * j}')
    a('s_mov_b64 exec, -1')
    for j in range(nj):
        if role == 'A' and j == 2:
            a('s_mov_b32 exec_hi, 0')
        a(f'global_load_dwordx4 {vr(vw + 4 * j, 4)}, v{vo}, {sr(sBb)}')
        if j + 1 < nj:
            a(f'v_add_u32 v{vo}, {16 * 7680}, v{vo}')
    a('s_mov_b64 exec, -1')
    if role == 'A':
        xloads()
        after = 5
    else:
        after = 0
    a(f's_waitcnt vmcnt({nj + after})')
    cs_ = [vc + j for j in range(nj)]
    for c in cs_:
        a(f'v_lshlrev_b32 v{c}, 16, v{c}')
    silu(cs_, cs_, [tmp + j for j in range(nj)])
    sc = [70 + 2 * j for j in range(nj)]
    for c, s in zip(cs_, sc):
        a(f'v_cvt_pk_bf16_f32 v{s}, v{c}, v{c}')
    for s in sc:
        a(f'v_and_b32 v{s}, s{sHI}, v{s}')
    for j in range(nj):
        a(f's_waitcnt vmcnt({nj - 1 - j + after})')
        for k in range(4):
            unpack(tmp + 2 * k, tmp + 2 * k + 1, vw + 4 * j + k)
        for k in range(4):
            if j == 0:
                a(f'v_pk_mul_f32 {vr(acc + 2 * k, 2)}, {vr(tmp + 2 * k, 2)}, {vr(sc[j], 2)} op_sel:[0,0] op_sel_hi:[1,0]')
            else:
                a(f'v_pk_fma_f32 {vr(acc + 2 * k, 2)}, {vr(tmp + 2 * k, 2)}, {vr(sc[j], 2)}, {vr(acc + 2 * k, 2)} {BC0}')
    a(f'''
    v_and_b32 v{vo}, 3, v{vL}
    v_lshlrev_b32 v{vo}, 8, v{vo}
    v_and_b32 v{voc}, 48, v{vL}
    v_lshl_add_u32 v{vo}, v{voc}, 2, v{vo}
    s_lshl_b32 s{sT}, s{sW}, 2
    s_add_u32 s{sT}, s{sT}, {RED}
    v_add_u32 v{vo}, s{sT}, v{vo}
    ''')
    swap_reduce8(acc)
    for c in ('row_ror:8', 'row_ror:4'):
        dpp('v_add_f32', acc, c)
        dpp('v_add_f32', acc + 1, c)
    a(f'''
    s_mov_b32 exec_lo, 0x000f000f
    s_mov_b32 exec_hi, 0x000f000f
    ds_write2_b32 v{vo}, v{acc}, v{acc + 1} offset0:0 offset1:8
    s_mov_b64 exec, -1
    s_waitcnt lgkmcnt(0)
    s_barrier                                   ; B1
    s_cmp_lg_u32 s{sW}, 0
    s_cbranch_scc1 L_after_gemv
    s_mov_b32 exec_hi, 0
    v_lshlrev_b32 v{vo}, 5, v{vL}
    ds_read_b128 {vr(20, 4)}, v{vo} offset:{RED}
    ds_read_b128 {vr(24, 4)}, v{vo} offset:{RED + 16}
    ''')
    base_add(sBa, WS, sU2)
    if role == 'B':
        a(f'''
        s_sub_u32 s{sT}, s{sU0}, 80
        s_cmp_lt_u32 s{sT}, 20
        s_cselect_b32 s{sU3}, 1.0, 0
        ''')
    a(f'''
    s_waitcnt lgkmcnt(0)
    v_pk_add_f32 v[20:21], v[20:21], v[22:23]
    v_pk_add_f32 v[24:25], v[24:25], v[26:27]
    v_pk_add_f32 v[20:21], v[20:21], v[24:25]
    v_add_f32 v20, v20, v21
    ''')
    if role == 'B':
        rbf(20, 'v20')
        a(f'v_add_f32 v20, s{sU3}, v20')
        rbf(20, 'v20')
    a(f'''
    global_store_dword v{vL4}, v20, {sr(sBa)} sc1
    s_mov_b64 exec, -1
    s_branch L_after_gemv
    ''')


def role_e_start():
    a(f'''
    s_mul_i32 s{sU0}, s{sX}, 12
    s_add_u32 s{sU0}, s{sU0}, s{sIdx}
    s_sub_u32 s{sU0}, s{sU0}, 20
    s_lshl_b32 s{sU0}, s{sU0}, 5
    s_and_b32 s{sT}, s{sW}, 3
    s_mul_i32 s{sT}, s{sT}, {32 * 3072}
    s_add_u32 s{sU0}, s{sU0}, s{sT}
    v_lshrrev_b32 v20, 1, v{vL}
    v_mul_u32_u24 v20, 3072, v20
    v_and_b32 v21, 16, v{vL16}
    v_add_u32 v20, v20, v21
    s_mul_i32 s{sU1}, s{sW}, 5120
    s_add_u32 s{sU1}, s{sU1}, {EW}
    s_cmp_lt_u32 s{sW}, 4
    s_waitcnt lgkmcnt(0)
    s_cselect_b32 s{sBb}, s{W_G}, s{W_U}
    s_cselect_b32 s{sBb + 1}, s{W_G + 1}, s{W_U + 1}
    ''')
    base_add(sXrow, A_X, sRow)
    base_add(sBb, sBb, sU0)
    xloads()
    for j in range(5):
        a(f's_mov_b32 m0, s{sU1}')
        a(f'global_load_lds_dwordx4 v20, {sr(sBb)}')
        if j < 4:
            a(f'v_add_u32 v20, {128 * 3072}, v20')
            a(f's_add_u32 s{sU1}, s{sU1}, 1024')
    a('s_barrier                                   ; B1')
    a('s_waitcnt vmcnt(5)')
    a('s_branch L_ln1')


def m8(dst, inverse):
    t0, t1, t2, t3 = 20, 21, 22, 23
    a(f'v_lshrrev_b32 v{t0}, 4, v{vL}           ; g')
    if not inverse:
        a(f'''
        v_bfe_u32 v{t1}, v{vL}, 2, 2
        v_bfe_u32 v{t2}, v{vL}, 1, 1
        v_lshl_add_u32 v{t1}, v{t2}, 2, v{t1}
        v_lshlrev_b32 v{t0}, 9, v{t0}
        v_add_u32 v{t0}, s{sMe}, v{t0}
        v_mul_u32_u24 v{t2}, v{t0}, v{t1}
        v_lshl_add_u32 v{t3}, v{t1}, 8, v{t2}
        ''')
    else:
        a(f'''
        v_bfe_u32 v{t1}, v{vL}, 1, 3
        v_lshlrev_b32 v{t1}, 8, v{t1}
        v_add_u32 v{t1}, s{sMe}, v{t1}
        v_mul_u32_u24 v{t2}, v{t0}, v{t1}
        v_lshl_add_u32 v{t3}, v{t1}, 2, v{t2}
        v_sub_u32 v{t2}, 0, v{t2}
        v_sub_u32 v{t3}, 0, v{t3}
        ''')
    a(f'''
    v_and_b32 v{t0}, 1, v{vL}
    v_lshl_add_u32 v{t2}, v{t0}, 9, v{t2}
    v_lshl_add_u32 v{t3}, v{t0}, 9, v{t3}
    v_and_b32 v{t2}, 0x7ff, v{t2}
    v_and_b32 v{t3}, 0x7ff, v{t3}
    v_cvt_f32_u32 v{t2}, v{t2}
    v_cvt_f32_u32 v{t3}, v{t3}
    v_mul_f32 v{t2}, 0x3a000000, v{t2}
    v_mul_f32 v{t3}, 0x3a000000, v{t3}
    v_cos_f32 v{t0}, v{t2}
    v_sin_f32 v{t2}, v{t2}
    v_cos_f32 v{t1}, v{t3}
    v_sin_f32 v{t3}, v{t3}
    v_cvt_pk_bf16_f32 v{dst}, v{t0}, v{t2}
    v_cvt_pk_bf16_f32 v{dst + 1}, v{t1}, v{t3}
    ''')


INV640 = hex(f2u(1.0 / 640))
EPS = hex(f2u(1e-5))


def rstd_chain(var, out):
    rbf(out, f'v{var}')
    a(f'v_add_f32 v{out}, {EPS}, v{out}')
    rbf(out, f'v{out}')
    a(f'v_sqrt_f32 v{out}, v{out}')
    rbf(out, f'v{out}')
    a(f'v_rcp_f32 v{out}, v{out}')


def sum10(dst2, x):
    a(f'v_pk_add_f32 {vr(dst2, 2)}, {vr(x, 2)}, {vr(x + 2, 2)}')
    for h in (4, 6, 8):
        a(f'v_pk_add_f32 {vr(dst2, 2)}, {vr(dst2, 2)}, {vr(x + h, 2)}')
    a(f'v_add_f32 v{dst2}, v{dst2}, v{dst2 + 1}')


def dot10(dst2, x, y):
    a(f'v_pk_mul_f32 {vr(dst2, 2)}, {vr(x, 2)}, {vr(y, 2)}')
    for h in (2, 4, 6, 8):
        a(f'v_pk_fma_f32 {vr(dst2, 2)}, {vr(x + h, 2)}, {vr(y + h, 2)}, {vr(dst2, 2)}')
    a(f'v_add_f32 v{dst2}, v{dst2}, v{dst2 + 1}')


def main_path():
    vZ, vSA, vCA = vVec, vVec + 10, vVec + 20
    a(f'''
    v_lshlrev_b32 v{vL4}, 2, v{vL}
    s_lshl_b32 s{sRow}, s{sW}, 8
    s_add_u32 s{sKey}, s{sRow}, s{sMe}
    s_mul_i32 s{sRow}, s{sKey}, 1280
    s_cmp_ge_u32 s{sIdx}, 20
    s_cbranch_scc1 L_role_e
    s_cmp_ge_u32 s{sIdx}, 10
    s_cbranch_scc1 L_role_b
    ''')
    gemv_mod('A')
    a.label('L_role_b')
    gemv_mod('B')
    a.label('L_role_e')
    role_e_start()
    a.label('L_after_gemv')
    a('s_waitcnt vmcnt(1)')
    a(f's_cmp_eq_u32 s{sW}, 0')
    a('s_cbranch_scc1 L_ln1')
    a('s_waitcnt vmcnt(0)')
    a.label('L_ln1')
    stamp('B1 done')
    tab_read(vF20, T_F20C)
    tab_read(vF20 + 4, T_F20S)
    for q in range(4):
        tab_read(vTW + 4 * q, T_TW1 + q)
    for q in range(8):
        tab_read(vF32 + 4 * q, T_F32 + q)
    for j in range(5):
        unpack(vXS + tm(j, 0), vXS + tm(j, 1), vE0 + j)
    sum10(24, vXS)
    wave_sum([24], [sU0])
    a(f'v_mov_b32 v24, {INV640}')
    a(f'v_mul_f32 v26, s{sU0}, v24                ; mean')
    rbf(28, 'v26')
    a(f'v_readfirstlane_b32 s{sM1B}, v28')
    for h in range(0, 10, 2):
        a(f'v_pk_add_f32 {vr(vXS + h, 2)}, {vr(vXS + h, 2)}, v[28:29] op_sel:[0,0] op_sel_hi:[1,0] neg_lo:[0,1] neg_hi:[0,1]')
    dot10(30, vXS, vXS)
    wave_sum([30], [sU0])
    a(f'''
    v_sub_f32 v26, v26, v28
    v_mul_f32 v26, v26, v26
    v_fma_f32 v26, s{sU0}, v24, -v26
    ''')
    rstd_chain(26, 27)
    for j in range(5):
        for t in range(2):
            a(f'v_mul_f32 v{vZ + 2 * j + t}, v27, v{vXS + tm(j, t)}')
    m8(vM8F, False)
    m8(vM8I, True)
    a(f'''
    v_lshrrev_b32 v20, 2, v{vL}
    v_and_b32 v21, 48, v{vL16}
    v_mul_u32_u24 v{vP48}, 48, v20
    v_mul_u32_u24 v{vPoll}, 12288, v20
    v_add_u32 v{vP48}, v{vP48}, v21
    v_add_u32 v{vPoll}, v{vPoll}, v21
    s_mov_b32 s{sM7}, 0x77777777
    s_mov_b32 s{sM7 + 1}, 0x77777777
    v_lshlrev_b32 v{vE0}, 3, v{vL}                ; 8*lane
    v_mov_b32 v23, 0
    v_mov_b32 v27, 0
    ''')
    a(f'''
    v_and_b32 v20, 15, v{vL}
    v_mul_u32_u24 v20, 264, v20
    v_and_b32 v21, 48, v{vL}
    v_lshl_add_u32 v{vE0 + 1}, v21, 2, v20
    s_lshr_b32 s{sU0}, s{sW}, 1
    s_mul_i32 s{sU0}, s{sU0}, 4224
    s_and_b32 s{sT}, s{sW}, 1
    s_lshl_b32 s{sT}, s{sT}, 2
    s_add_u32 s{sU0}, s{sU0}, s{sT}
    s_add_u32 s{sU0}, s{sU0}, {XB1}
    v_add_u32 v{vE0 + 1}, s{sU0}, v{vE0 + 1}
    ''')
    a(f'''
    v_lshrrev_b32 v20, 4, v{vL}
    v_mul_u32_u24 v20, 4224, v20
    v_and_b32 v21, 3, v{vL}
    v_mul_u32_u24 v21, 1056, v21
    v_and_b32 v22, 12, v{vL}
    v_lshl_add_u32 v20, v22, 1, v20
    s_lshl_b32 s{sU0}, s{sW}, 5
    s_add_u32 s{sU0}, s{sU0}, {XB1}
    v_add3_u32 v{vE0 + 2}, v20, v21, s{sU0}
    ''')
    a(f'''
    s_sub_u32 s{sT}, s{sW}, 1
    s_cmp_lt_u32 s{sT}, 5
    s_cbranch_scc0 L_not_modpoll
    v_subrev_u32 v28, 64, v0                      ; u
    v_lshrrev_b32 v29, 3, v28
    v_lshlrev_b32 v29, 8, v29
    v_and_b32 v30, 0x70, v{vL16}
    v_add_u32 v29, v29, v30
    v_cmp_le_u32 vcc, 160, v28
    v_cndmask_b32 v30, 0, 1.0, vcc
    v_lshlrev_b32 v28, 4, v28
    ''')
    poll([f'global_load_dwordx4 v[36:39], v29, {sr(WS)} sc1', f'global_load_dwordx4 v[40:43], v29, {sr(WS)} offset:128 sc1'],
         list(range(36, 44)), [44, 45])
    a(f'''
    v_pk_add_f32 v[36:37], v[36:37], v[40:41]
    v_pk_add_f32 v[38:39], v[38:39], v[42:43]
    v_cvt_pk_bf16_f32 v40, v36, v37
    v_cvt_pk_bf16_f32 v41, v38, v39
    ''')
    unpack(36, 37, 40)
    unpack(38, 39, 41)
    a(f'''
    v_pk_add_f32 v[36:37], v[36:37], v[30:31] op_sel:[0,0] op_sel_hi:[1,0]
    v_pk_add_f32 v[38:39], v[38:39], v[30:31] op_sel:[0,0] op_sel_hi:[1,0]
    v_cvt_pk_bf16_f32 v40, v36, v37
    v_cvt_pk_bf16_f32 v41, v38, v39
    ''')
    unpack(36, 37, 40)
    unpack(38, 39, 41)
    a(f'ds_write_b128 v28, v[36:39] offset:{MODA_L}')
    a('s_branch L_b2')
    a.label('L_not_modpoll')
    a(f'''
    s_cmp_eq_u32 s{sW}, 6
    s_cbranch_scc0 L_b2
    v_add_u32 v29, {FLAG_G}, v{vL16}
    ''')
    poll([f'global_load_dwordx4 v[36:39], v29, {sr(WS)} sc1'], list(range(36, 40)), [44])
    a.label('L_b2')
    a('s_waitcnt lgkmcnt(0)')
    a('s_barrier                                   ; B2')
    stamp('B2 done (mod ready)')
    o = MODA_L // 512
    assert MODA_L % 8 == 0
    a(f'v_add_u32 v28, {MODA_L}, v{vE0}')
    a(f'ds_read2st64_b64 {vr(vSA, 4)}, v28 offset0:0 offset1:1')
    a(f'ds_read2st64_b64 {vr(vCA, 4)}, v28 offset0:5 offset1:6')
    a(f'ds_read2st64_b64 {vr(vSA + 4, 4)}, v28 offset0:2 offset1:3')
    a(f'ds_read2st64_b64 {vr(vCA + 4, 4)}, v28 offset0:7 offset1:8')
    a(f'ds_read_b64 {vr(vSA + 8, 2)}, v28 offset:2048')
    a(f'ds_read_b64 {vr(vCA + 8, 2)}, v28 offset:{2560 + 2048}')
    for j in range(5):
        if j in (0, 2, 4):
            a(f's_waitcnt lgkmcnt({4 - j})')
        a(f'v_pk_fma_f32 {vr(vZ + 2 * j, 2)}, {vr(vZ + 2 * j, 2)}, {vr(vCA + 2 * j, 2)}, {vr(vSA + 2 * j, 2)}')
    for t in range(2):
        a(f'v_cvt_pk_bf16_f32 v{Ra + 4 * t}, v{vZ + t}, v{vZ + 2 + t}')
        a(f'v_cvt_pk_bf16_f32 v{Ra + 4 * t + 1}, v{vZ + 4 + t}, v{vZ + 6 + t}')
        a(f'v_cvt_pk_bf16_f32 v{Ra + 4 * t + 2}, v{vZ + 8 + t}, 0')
    for t in range(2):
        mfma32(RD + 8 * t, Ra + 4 * t, vF20)
        mfma32(RD + 8 * t + 4, Ra + 4 * t, vF20 + 4)
    for t, tmp in ((0, Rb), (1, Rc)):
        cmul(tmp, tmp + 4, RD + 8 * t, RD + 8 * t + 4, vTW + 8 * t, vTW + 8 * t + 4, -1)
        pack4(Ra + 4 * t, tmp, tmp + 4)
    for ks in range(2):
        for u in range(2):
            for e in range(2):
                d = RD + 8 * u + 4 * e
                mfma32(d, vF32 + 16 * u + 8 * e + 4 * ks, Ra + 4 * ks, d if ks else None)
    for u in range(2):
        pack4(Rb + u, RD + 8 * u, RD + 8 * u + 4, step=2)
    for r in range(4):
        a(f'ds_write2_b32 v{vE0 + 1}, v{Rb + 2 * r}, v{Rb + 2 * r + 1} offset0:{4 * r} offset1:{4 * r + 2}')
    a(f'''
    s_mul_i32 s{sU0}, s{sMe}, 12288
    s_mul_i32 s{sU1}, s{sW}, 1536
    s_add_u32 s{sU0}, s{sU0}, s{sU1}
    ''')
    base_add(sBa, WS, sU0, T1_G)
    a('s_waitcnt lgkmcnt(0)')
    a('s_barrier                                   ; B3')
    for n in range(4):
        a(f'ds_read_b64 {vr(Ra + 2 * n, 2)}, v{vE0 + 2} offset:{264 * n}')
    for n in range(4):
        a(f's_waitcnt lgkmcnt({3 - n})')
        mfma16(RD + 4 * n, vM8F, Ra + 2 * n)
    for j in range(2):
        for n in range(4):
            a(f'v_cvt_pk_bf16_f32 v{Rb + 4 * j + n}, v{RD + 4 * n + 2 * j}, v{RD + 4 * n + 2 * j + 1}')
    a(f's_mov_b64 exec, {sr(sM7)}')
    a(f'global_store_dwordx4 v{vP48}, {vr(Rb, 4)}, {sr(sBa)} sc1')
    a(f'global_store_dwordx4 v{vP48}, {vr(Rb + 4, 4)}, {sr(sBa)} offset:768 sc1')
    a('s_mov_b64 exec, -1')
    stamp('T1 stored')
    vWr = vVec
    for q in range(2):
        tab_read(vTW + 4 * q, T_F16 + q)
        tab_read(vTW + 8 + 4 * q, T_TW2 + q)
    for k in range(16):
        a(f'v_mov_b32 v{vWr + k}, 0')
    SC = 2.0 / (2048 * 640)
    a(f'''
    v_and_b32 v20, 15, v{vL}
    v_and_b32 v21, 48, v{vL}
    v_lshl_add_u32 v20, v21, 2, v20               ; 64g + i
    v_mul_u32_u24 v{vE0 + 3}, 48, v20
    s_lshl_b32 s{sT}, s{sW}, 3
    s_add_u32 s{sT}, s{sT}, {XB2}
    v_add_u32 v{vE0 + 3}, s{sT}, v{vE0 + 3}
    v_lshlrev_b32 v20, 5, v20
    s_and_b32 s{sU1}, s{sIdx}, 3
    s_lshl_b32 s{sT}, s{sX}, 2
    s_add_u32 s{sU1}, s{sU1}, s{sT}               ; kb
    s_bfe_u32 s{sU2}, s{sIdx}, 0x10002            ; q & 1
    ''')
    for s in range(2):
        ka, pos, gam = sBc, sBc + 1, sU3
        a(f'''
        s_lshl_b32 s{ka}, s{sW}, 1
        s_add_u32 s{ka}, s{ka}, {s}
        s_min_u32 s{pos}, s{ka}, 10
        s_sub_u32 s{sT}, 10, s{pos}
        s_cmp_ge_u32 s{sX}, 4
        s_cselect_b32 s{pos}, s{sT}, s{pos}
        s_add_u32 s{pos}, s{pos}, s{sU2}
        s_lshl_b32 s{sT}, s{pos}, 1
        s_cmp_ge_u32 s{pos}, 6
        s_cselect_b32 s{pos}, 4, 0
        s_add_u32 s{pos}, s{pos}, s{sT}
        s_add_u32 s{pos}, s{pos}, {WST}
        v_add_u32 v{21 + s}, s{pos}, v20
        s_mov_b32 s{gam}, {hex(f2u(SC))}
        ''')
        if s == 0:
            a(f'''
            s_and_b32 s{sT}, s{sU1}, 15
            s_or_b32 s{sT}, s{sT}, s{ka}
            s_cmp_eq_u32 s{sT}, 0
            s_cselect_b32 s{gam}, {hex(f2u(SC / 2))}, s{gam}
            s_cmp_gt_u32 s{sU1}, 16
            s_cselect_b32 s{sT}, s{ka}, 1
            s_cmp_eq_u32 s{sT}, 0
            s_cselect_b32 s{gam}, 0, s{gam}
            s_cmp_ge_u32 s{sU1}, 16
            s_cselect_b32 s{sT}, s{ka}, 1
            s_cmp_eq_u32 s{sT}, 10
            s_cselect_b32 s{gam}, 0, s{gam}
            ''')
        else:
            a(f'''
            s_cmp_ge_u32 s{ka}, 11
            s_cselect_b32 s{gam}, 0, s{gam}
            ''')
        for arr in range(2):
            for r in range(4):
                a(f'ds_read_u16_d16_hi v{vWr + 8 * s + 4 * arr + r}, v{21 + s} offset:{arr * 8192 + r * 512}')
        a(f'''
        s_xor_b32 s{sT}, s{gam}, 0x80000000
        s_cmp_ge_u32 s{sX}, 4
        s_cselect_b32 s{sT}, s{sT}, s{gam}
        s_waitcnt lgkmcnt(0)
        ''')
        for r in range(4):
            a(f'v_mul_f32 v{vWr + 8 * s + r}, s{gam}, v{vWr + 8 * s + r}')
        for r in range(4):
            a(f'v_mul_f32 v{vWr + 8 * s + 4 + r}, s{sT}, v{vWr + 8 * s + 4 + r}')
    a(f'''
    s_mul_i32 s{sU1}, s{sMe}, 48
    s_mul_i32 s{sT}, s{sW}, {32 * 12288}
    s_add_u32 s{sU1}, s{sU1}, s{sT}
    s_mul_i32 s{sT}, s{sW}, 1536
    s_add_u32 s{sT}, s{sT}, {XB2}
    v_add_u32 v{vE0 + 4}, s{sT}, v{vP48}
    ''')
    base_add(sBa, WS, sU1, T1_G)
    base_add(sBb, WS, sU1, T1_G + 16 * 12288)
    a('s_waitcnt vmcnt(0)')
    poll([f'global_load_dwordx4 {vr(Ra, 4)}, v{vPoll}, {sr(sBa)} sc1', f'global_load_dwordx4 {vr(Ra + 4, 4)}, v{vPoll}, {sr(sBb)} sc1'],
         list(range(Ra, Ra + 8)), [Rb, Rb + 1], mask=sr(sM7))
    a(f's_mov_b64 exec, {sr(sM7)}')
    a(f'ds_write_b128 v{vE0 + 4}, {vr(Ra, 4)}')
    a(f'ds_write_b128 v{vE0 + 4}, {vr(Ra + 4, 4)} offset:768')
    a('s_mov_b64 exec, -1')
    base_add(sBa, WS, sU0, T2_G)
    a('s_waitcnt lgkmcnt(0)')
    a('s_barrier                                   ; B4')
    stamp('B4 done (T1 in)')
    a(f's_cmp_ge_u32 s{sW}, 6')
    a('s_cbranch_scc1 L_b5')
    Fre, Fim, Tc, Ts = vTW, vTW + 4, vTW + 8, vTW + 12
    for j in range(4):
        a(f'ds_read_b64 {vr(Rb + 2 * j, 2)}, v{vE0 + 3} offset:{768 * j}')
    for h in range(2):
        a(f's_waitcnt lgkmcnt({2 - 2 * h})')
        for s in range(2):
            a(f'v_pk_mov_b32 {vr(Ra + 4 * s + 2 * h, 2)}, {vr(Rb + 4 * h, 2)}, {vr(Rb + 4 * h + 2, 2)} op_sel:[{s},{s}]')
    tmps = (Rb, Rc)
    for s in range(2):
        mfma32(RD + 8 * s, Ra + 4 * s, Fre)
        mfma32(RD + 8 * s + 4, Ra + 4 * s, Fim)
    for s in range(2):
        cmul(tmps[s], tmps[s] + 4, RD + 8 * s, RD + 8 * s + 4, Tc, Ts, -1)
        pack4(Ra + 4 * s, tmps[s], tmps[s] + 4)
        mfma32(RD + 8 * s, Fre, Ra + 4 * s)
        mfma32(RD + 8 * s + 4, Fim, Ra + 4 * s)
    for s in range(2):
        cmul(tmps[s], tmps[s] + 4, RD + 8 * s, RD + 8 * s + 4, vWr + 8 * s, vWr + 8 * s + 4, +1)
        pack4(Ra + 4 * s, tmps[s] + 4, tmps[s])
        mfma32(RD + 8 * s, Ra + 4 * s, Fim)
        mfma32(RD + 8 * s + 4, Ra + 4 * s, Fre)
    for s in range(2):
        cmul(tmps[s], tmps[s] + 4, RD + 8 * s, RD + 8 * s + 4, Tc, Ts, +1)
        pack4(Ra + 4 * s, tmps[s] + 4, tmps[s])
        mfma32(RD + 8 * s, Fim, Ra + 4 * s)
        mfma32(RD + 8 * s + 4, Fre, Ra + 4 * s)
    for s in range(2):
        pack4(Rb + s, RD + 8 * s, RD + 8 * s + 4, step=2)
    for r in range(4):
        a(f'ds_write_b64 v{vE0 + 3}, {vr(Rb + 2 * r, 2)} offset:{768 * r}')
    a('s_waitcnt lgkmcnt(0)')
    a.label('L_b5')
    a('s_barrier                                   ; B5')
    a(f's_mov_b64 exec, {sr(sM7)}')
    a(f'ds_read_b128 {vr(Rb, 4)}, v{vE0 + 4}')
    a(f'ds_read_b128 {vr(Rb + 4, 4)}, v{vE0 + 4} offset:768')
    a('s_waitcnt lgkmcnt(1)')
    a(f'global_store_dwordx4 v{vP48}, {vr(Rb, 4)}, {sr(sBa)} sc1')
    a('s_waitcnt lgkmcnt(0)')
    a(f'global_store_dwordx4 v{vP48}, {vr(Rb + 4, 4)}, {sr(sBa)} offset:768 sc1')
    a('s_mov_b64 exec, -1')
    stamp('T2 stored')
    vGA, vVV, vGC, vGS = vVec, vVec + 10, vVec + 20, vVec + 30
    a(f'''
    v_add_u32 v{vE0 + 5}, {MODB_L}, v{vE0}
    v_add_u32 v{vE0 + 6}, {MODB_L + 4}, v{vE0}
    v_add_u32 v{vE0 + 7}, {WR_L}, v{vL4}
    ''')
    read_tmajor(vGA, vE0 + 5, 0)
    read_tmajor(vGS, vE0 + 5, 2560)
    a('s_waitcnt lgkmcnt(0)')
    read_tmajor(vGC, vE0 + 5, 5120)
    read_tmajor(RD, vE0 + 5, 7680)
    a(f'ds_read2st64_b32 {vr(Rc, 2)}, v{vE0 + 7} offset0:0 offset1:1')
    a(f'ds_read2st64_b32 {vr(Rc + 2, 2)}, v{vE0 + 7} offset0:2 offset1:3')
    a(f'ds_read_b32 v{Rc + 4}, v{vE0 + 7} offset:1024')
    a('s_waitcnt lgkmcnt(0)')
    for q in range(4):
        tab_read(vTW + 4 * q, T_TW3 + q)
    for q in range(3):
        tab_read(vF20 + 4 * q, T_F20I + q)
    for j in range(5):
        unpack(vVV + tm(j, 0), vVV + tm(j, 1), Rc + j)
    dot10(RD + 10, vVV, vGS)
    for h in range(0, 10, 2):
        a(f'v_pk_mul_f32 {vr(vVV + h, 2)}, {vr(vVV + h, 2)}, {vr(vGC + h, 2)}')
    sum10(RD + 12, vVV)
    a(f'v_mov_b32 v{RD + 14}, s{sM1B}')
    for h in range(0, 10, 2):
        a(f'v_pk_mul_f32 {vr(vGC + h, 2)}, {vr(vGC + h, 2)}, {vr(RD + h, 2)}')
        a(f'v_pk_fma_f32 {vr(vGS + h, 2)}, {vr(vGS + h, 2)}, {vr(RD + h, 2)}, {vr(RD + 14, 2)} op_sel:[0,0,0] op_sel_hi:[1,1,0]')
    wave_sum([RD + 12, RD + 10], [sV1, sV2])
    for k in range(8):
        a(f'v_mov_b32 v{Ra + k}, 0')
    a(f'''
    v_lshrrev_b32 v36, 4, v{vL}
    v_mul_u32_u24 v36, 4640, v36
    v_and_b32 v37, 3, v{vL}
    v_mul_u32_u24 v37, 576, v37
    v_and_b32 v38, 4, v{vL}
    v_lshl_add_u32 v36, v38, 2, v36
    v_bfe_u32 v38, v{vL}, 3, 1
    v_lshl_add_u32 v37, v38, 2, v37
    s_lshr_b32 s{sU2}, s{sW}, 1
    s_lshl_b32 s{sU2}, s{sU2}, 5
    s_and_b32 s{sT}, s{sW}, 1
    s_lshl_b32 s{sT}, s{sT}, 3
    s_add_u32 s{sU2}, s{sU2}, s{sT}
    s_add_u32 s{sU2}, s{sU2}, {XB3}
    v_add3_u32 v{vE0 + 1}, v36, v37, s{sU2}
    v_add_u32 v{vE0 + 2}, 2320, v{vE0 + 1}
    v_and_b32 v36, 15, v{vL}
    v_mul_u32_u24 v36, 144, v36
    v_and_b32 v37, 48, v{vL}
    v_lshl_add_u32 v36, v37, 1, v36
    s_mul_i32 s{sU2}, s{sW}, 2320
    s_add_u32 s{sU2}, s{sU2}, {XB3}
    v_add_u32 v{vE0 + 3}, s{sU2}, v36
    ''')
    base_add(sBa, WS, sU1, T2_G)
    base_add(sBb, WS, sU1, T2_G + 16 * 12288)
    base_add(sXrow, OUTP, sRow)
    a('s_waitcnt vmcnt(0) lgkmcnt(0)')
    poll([f'global_load_dwordx4 {vr(Ra, 4)}, v{vPoll}, {sr(sBa)} sc1', f'global_load_dwordx4 {vr(Ra + 4, 4)}, v{vPoll}, {sr(sBb)} sc1'],
         list(range(Ra, Ra + 8)), [Rb, Rb + 1], mask=sr(sM7))
    stamp('T2 in')
    for n in range(4):
        a(f'v_pk_mov_b32 {vr(Rb + 2 * n, 2)}, {vr(Ra + (n & 2), 2)}, {vr(Ra + 4 + (n & 2), 2)} op_sel:[{n & 1},{n & 1}]')
    for n in range(4):
        mfma16(RD + 4 * n, vM8I, Rb + 2 * n)
    for jj in range(2):
        for n in range(4):
            a(f'v_cvt_pk_bf16_f32 v{Ra + 4 * jj + n}, v{RD + 4 * n + 2 * jj + 1}, v{RD + 4 * n + 2 * jj}')
        for n in (0, 2):
            a(f'ds_write2_b32 v{vE0 + 1 + jj}, v{Ra + 4 * jj + n}, v{Ra + 4 * jj + n + 1} offset0:{36 * n} offset1:{36 * n + 36}')
    a('s_waitcnt lgkmcnt(0)')
    a('s_barrier                                   ; B6')
    a(f'ds_read_b128 {vr(Rb, 4)}, v{vE0 + 3}')
    a(f'ds_read_b128 {vr(Rb + 4, 4)}, v{vE0 + 3} offset:16')
    for ks in range(2):
        a(f's_waitcnt lgkmcnt({1 - ks})')
        for t in range(2):
            for e in range(2):
                d = RD + 8 * t + 4 * e
                mfma32(d, Rb + 4 * ks, vF32 + 16 * t + 8 * (1 - e) + 4 * ks, d if ks else None)
    for t, tmp in ((0, Ra), (1, Rc)):
        cmul(tmp, tmp + 4, RD + 8 * t, RD + 8 * t + 4, vTW + 8 * t, vTW + 8 * t + 4, +1)
        pack4(Rb + 4 * t, tmp, tmp + 4)
    Y = RD
    mfma32(Y, vF20, Rb)
    mfma32(Y + 8, vF20 + 4, Rb)
    mfma32(Y + 4, vF20, Rb + 4)
    mfma32(Y + 8, vF20 + 8, Rb + 4, Y + 8)
    for h in range(0, 10, 2):
        a(f'v_pk_fma_f32 {vr(Y + h, 2)}, {vr(Y + h, 2)}, {vr(vGA + h, 2)}, {vr(vXS + h, 2)}')
    s1, s2, s3 = Ra, Ra + 2, Ra + 4
    a(f'v_pk_add_f32 {vr(s1, 2)}, {vr(Y, 2)}, {vr(Y + 2, 2)}')
    a(f'v_pk_mul_f32 {vr(s2, 2)}, {vr(Y, 2)}, {vr(Y, 2)}')
    a(f'v_pk_mul_f32 {vr(s3, 2)}, {vr(Y, 2)}, {vr(vVV, 2)}')
    for h in (2, 4, 6, 8):
        if h > 2:
            a(f'v_pk_add_f32 {vr(s1, 2)}, {vr(s1, 2)}, {vr(Y + h, 2)}')
        a(f'v_pk_fma_f32 {vr(s2, 2)}, {vr(Y + h, 2)}, {vr(Y + h, 2)}, {vr(s2, 2)}')
        a(f'v_pk_fma_f32 {vr(s3, 2)}, {vr(Y + h, 2)}, {vr(vVV + h, 2)}, {vr(s3, 2)}')
    for s in (s1, s2, s3):
        a(f'v_add_f32 v{s}, v{s}, v{s + 1}')
    wave_sum([s1, s2, s3], [sU0, sU2, sU3])
    k0 = Rc
    a(f'''
    v_mov_b32 v{Ra}, {INV640}
    v_mul_f32 v{Ra + 1}, s{sU0}, v{Ra}            ; mu
    v_mul_f32 v{Ra + 2}, v{Ra + 1}, v{Ra + 1}
    v_add_f32 v{Ra + 3}, s{sM1B}, v{Ra + 1}
    v_fma_f32 v{Ra + 2}, s{sU2}, v{Ra}, -v{Ra + 2} ; var
    ''')
    rbf(Ra + 3, f'v{Ra + 3}')
    rstd_chain(Ra + 2, k0)
    a(f'''
    v_sub_f32 v{Ra + 3}, s{sM1B}, v{Ra + 3}       ; -delta
    v_mov_b32 v{Ra + 4}, s{sU3}
    v_fma_f32 v{Ra + 4}, v{Ra + 3}, s{sV1}, v{Ra + 4}
    v_fma_f32 v{Ra + 4}, v{Ra + 4}, v{k0}, s{sV2} ; r
    v_mul_f32 v{k0 + 1}, v{Ra + 3}, v{k0}
    v_ashrrev_i32 v{Ra + 5}, 31, v{Ra + 4}
    v_or_b32 v{Ra + 5}, 0x80000000, v{Ra + 5}
    v_xor_b32 v{Ra + 4}, v{Ra + 4}, v{Ra + 5}
    v_and_b32 v{Ra + 4}, 0xfffff800, v{Ra + 4}
    v_or_b32 v{Ra + 4}, s{sKey}, v{Ra + 4}
    v_mov_b32 v{Ra + 5}, {KEYL}
    s_mov_b64 exec, 1
    ds_max_u32 v{Ra + 5}, v{Ra + 4}
    s_mov_b64 exec, -1
    v_readfirstlane_b32 s{sKey}, v{Ra + 4}
    ''')
    ZN = vGA
    for h in range(0, 10, 2):
        a(f'v_pk_fma_f32 {vr(ZN + h, 2)}, {vr(Y + h, 2)}, {vr(k0, 2)}, {vr(k0, 2)} op_sel:[0,0,1] op_sel_hi:[1,0,1]')
        a(f'v_pk_add_f32 {vr(Y + h, 2)}, {vr(Y + h, 2)}, {vr(vGS + h, 2)}')
    for h in range(0, 10, 2):
        a(f'v_pk_fma_f32 {vr(Y + h, 2)}, {vr(ZN + h, 2)}, {vr(vGC + h, 2)}, {vr(Y + h, 2)}')
    vO = vXS
    for j in range(5):
        a(f'v_cvt_pk_bf16_f32 v{vO + j}, v{Y + tm(j, 0)}, v{Y + tm(j, 1)}')
    a(f's_mul_i32 s{sU0}, s{sMe}, {REC_STRIDE}')
    base_add(sBa, WS, sU0, REC_G)
    a('s_waitcnt lgkmcnt(0)')
    a('s_barrier                                   ; B7')
    a(f'''
    ds_read_b32 v{Ra + 6}, v{Ra + 5}
    s_waitcnt lgkmcnt(0)
    v_readfirstlane_b32 s{sU0}, v{Ra + 6}
    s_cmp_eq_u32 s{sU0}, s{sKey}
    s_cselect_b32 s{sCand}, 1, 0
    s_cbranch_scc1 L_cand
    ''')
    for j in range(5):
        a(f'global_store_dword v{vL4}, v{vO + j}, {sr(sXrow)} offset:{256 * j}')
    a('s_branch L_keys')
    a.label('L_cand')
    a(f'''
    s_mov_b64 exec, 1
    global_store_dword v{vL4}, v{Ra + 4}, {sr(sBa)} sc1
    s_mov_b64 exec, -1
    ''')
    read_tmajor(vVV, vE0 + 5, 2560)
    read_tmajor(vGC, vE0 + 5, 5120)
    a(f'v_add_u32 v{Ra}, {REC_BASE}, v{vL16}')
    a(f'v_add_u32 v{Ra + 1}, {REC_BASE}, v{vE0}')
    a('s_waitcnt lgkmcnt(0)')
    H = vGS + 2
    H = vGS
    for h in range(0, 10, 2):
        a(f'v_pk_fma_f32 {vr(H + h, 2)}, {vr(ZN + h, 2)}, {vr(vGC + h, 2)}, {vr(vVV + h, 2)}')
    a(f'''
    global_store_dwordx4 v{vL16}, {vr(H, 4)}, {sr(sBa)} offset:{REC_H2} sc1
    global_store_dwordx4 v{vL16}, {vr(H + 4, 4)}, {sr(sBa)} offset:{REC_H2 + 1024} sc1
    global_store_dwordx2 v{vE0}, {vr(H + 8, 2)}, {sr(sBa)} offset:{REC_H2 + 2048} sc1
    global_store_dwordx4 v{Ra}, {vr(Y, 4)}, {sr(sBa)} sc1
    global_store_dwordx4 v{Ra}, {vr(Y + 4, 4)}, {sr(sBa)} offset:1024 sc1
    global_store_dwordx2 v{Ra + 1}, {vr(Y + 8, 2)}, {sr(sBa)} offset:2048 sc1
    ''')
    a.label('L_keys')
    stamp('key out')
    vEW, vFW = 60, 100
    a(f'''
    s_cmp_lt_u32 s{sIdx}, 20
    s_cbranch_scc1 L_no_ew
    s_mul_i32 s{sT}, s{sW}, 5120
    s_add_u32 s{sT}, s{sT}, {EW}
    v_add_u32 v{Rb}, s{sT}, v{vL16}
    s_lshl_b32 s{sT}, s{sW}, 8
    s_add_u32 s{sT}, s{sT}, {FW}
    v_add_u32 v{Rb + 1}, s{sT}, v{vL4}
    ''')
    st = 132
    for j in range(5):
        a(f'ds_read_b128 {vr(st + 4 * j, 4)}, v{Rb} offset:{1024 * j}')
    a('s_waitcnt lgkmcnt(0)')
    for k in range(20):
        unpack(vEW + 2 * k, vEW + 2 * k + 1, st + k)
    a(f's_cmp_ge_u32 s{sW}, 5')
    a('s_cbranch_scc1 L_no_ew')
    for u in range(0, 16, 2):
        a(f'ds_read2st64_b32 {vr(st + u, 2)}, v{Rb + 1} offset0:{5 * u} offset1:{5 * u + 5}')
    a('s_waitcnt lgkmcnt(0)')
    for k in range(16):
        unpack(vFW + 2 * k, vFW + 2 * k + 1, st + k)
    a.label('L_no_ew')
    a(f'''
    v_mov_b32 v{Rb + 2}, {KEYL + 4}
    s_cmp_ge_u32 s{sW}, 4
    s_cbranch_scc1 L_b8
    v_mul_u32_u24 v{Rb}, {REC_STRIDE}, v0
    v_add_u32 v{Rb}, {REC_G}, v{Rb}
    ''')
    poll([f'global_load_dword v{Rb + 1}, v{Rb}, {sr(WS)} sc1'], [Rb + 1], [])
    for c in ('row_ror:8', 'row_ror:4', 'row_ror:2', 'row_ror:1'):
        dpp('v_max_u32', Rb + 1, c)
    a(f'''
    s_mov_b32 exec_lo, 0x00010001
    s_mov_b32 exec_hi, 0x00010001
    ds_max_u32 v{Rb + 2}, v{Rb + 1}
    s_mov_b64 exec, -1
    s_waitcnt lgkmcnt(0)
    ''')
    a.label('L_b8')
    a('s_barrier                                   ; B8')
    a(f'''
    ds_read_b32 v{Rb + 3}, v{Rb + 2}
    s_waitcnt lgkmcnt(0)
    v_readfirstlane_b32 s{sU0}, v{Rb + 3}
    s_and_b32 s{sU1}, s{sU0}, 255
    s_mul_i32 s{sU1}, s{sU1}, {REC_STRIDE}
    ''')
    base_add(sBa, WS, sU1, REC_G)
    stamp('B8 done (winner)')
    a(f'''
    s_cmp_ge_u32 s{sIdx}, 20
    s_cbranch_scc1 L_do_e
    ''')
    def deferred(lbl):
        a(f'''
        s_cmp_eq_u32 s{sCand}, 0
        s_cbranch_scc1 {lbl}
        s_cmp_eq_u32 s{sU0}, s{sKey}
        s_cbranch_scc1 {lbl}
        ''')
        for j in range(5):
            a(f'global_store_dword v{vL4}, v{vO + j}, {sr(sXrow)} offset:{256 * j}')
        a.label(lbl)
    deferred('L_def1')
    a(f'''
    s_cmp_ge_u32 s{sIdx}, 10
    s_cbranch_scc1 L_fin
    s_cmp_lg_u32 s{sW}, 0
    s_cbranch_scc1 L_fin
    s_mul_i32 s{sU2}, s{sX}, 10
    s_add_u32 s{sU2}, s{sU2}, s{sIdx}              ; f
    ''')
    a(f'''
    v_and_b32 v20, 1, v{vL}
    v_lshrrev_b32 v21, 4, v{vL}
    v_lshl_add_u32 v20, v20, 2, v21
    s_lshl_b32 s{sT}, s{sU2}, 3
    v_add_u32 v20, s{sT}, v20                      ; d
    v_lshlrev_b32 v21, 2, v20
    v_add_u32 v21, {MODB_L + 7680}, v21
    ds_read_b32 v22, v21                           ; gb[d]
    v_lshrrev_b32 v23, 7, v20                      ; j
    v_bfe_u32 v24, v20, 1, 6                       ; lane'
    v_and_b32 v25, 1, v20                          ; t
    v_lshlrev_b32 v26, 10, v25
    v_lshl_add_u32 v26, v24, 4, v26
    v_lshl_add_u32 v26, v23, 2, v26                ; j<4: t*1024 + lane'*16 + j*4
    v_lshlrev_b32 v27, 2, v25
    v_lshl_add_u32 v27, v24, 3, v27
    v_add_u32 v27, 2048, v27                       ; j==4
    v_cmp_eq_u32 vcc, 4, v23
    v_cndmask_b32 v26, v26, v27, vcc
    v_add_u32 v26, {REC_BASE}, v26
    ''')
    poll([f'global_load_dword v27, v26, {sr(sBa)} sc1'], [27], [])
    a(f'''
    s_and_b32 s{sU1}, s{sU0}, 0xfffff800
    s_or_b32 s{sU1}, s{sU1}, 0x400
    s_xor_b32 s{sU3}, s{sU1}, 0x80000000
    s_not_b32 s{sT}, s{sU1}
    s_cmp_lt_i32 s{sU1}, 0
    s_cselect_b32 s{sU1}, s{sU3}, s{sT}
    v_mov_b32 v28, s{sU1}
    ''')
    rbf(28, 'v28')
    a(f'''
    v_mul_f32 v28, 0xbfb8aa3b, v28
    v_exp_f32 v28, v28
    v_add_f32 v28, 1.0, v28
    v_rcp_f32 v28, v28
    ''')
    rbf(28, 'v28')
    a(f'''
    s_and_b32 s{sU1}, s{sU0}, 0x7ff
    s_mul_i32 s{sU1}, s{sU1}, 1280
    v_lshlrev_b32 v20, 1, v20
    v_lshrrev_b32 v29, 1, v{vL}
    v_mul_u32_u24 v29, {PY_STRIDE}, v29
    v_and_b32 v30, 16, v{vL16}
    v_add_u32 v29, v29, v30
    v_add_u32 v30, {32 * PY_STRIDE}, v29
    v_add_u32 v31, {64 * PY_STRIDE}, v29
    s_lshl_b32 s{sU2}, s{sU2}, 5
    ''')
    base_add(sXrow, OUTP, sU1)
    base_add(sBb, WS, sU2, PY_G)
    a('s_waitcnt lgkmcnt(0)')
    poll([f'global_load_dwordx4 {vr(36 + 4 * n, 4)}, v{29 + n}, {sr(sBb)} sc1' for n in range(3)],
         list(range(36, 48)), [48, 49, 50, 51])
    a(f'''
    v_pk_add_f32 v[36:37], v[36:37], v[40:41]
    v_pk_add_f32 v[38:39], v[38:39], v[42:43]
    v_pk_add_f32 v[36:37], v[36:37], v[44:45]
    v_pk_add_f32 v[38:39], v[38:39], v[46:47]
    v_permlane32_swap_b32 v36, v38
    v_permlane32_swap_b32 v37, v39
    v_pk_add_f32 v[36:37], v[36:37], v[38:39]
    v_permlane16_swap_b32 v36, v37
    v_add_f32 v36, v36, v37
    ''')
    for c in ('row_ror:8', 'row_ror:4', 'row_ror:2'):
        dpp('v_add_f32', 36, c)
    rbf(36, 'v36')
    a(f'''
    v_mul_f32 v36, v36, v28
    v_fma_f32 v36, v36, v22, v27
    v_cvt_pk_bf16_f32 v36, v36, v36
    s_mov_b32 exec_lo, 0x00030003
    s_mov_b32 exec_hi, 0x00030003
    global_store_short v20, v36, {sr(sXrow)} sc1
    s_mov_b64 exec, -1
    s_branch L_fin
    ''')
    a.label('L_do_e')
    a(f'''
    v_bfe_u32 v30, v0, 2, 6                        ; lane' = (t'>>1)>>1
    v_bfe_u32 v31, v0, 1, 1                        ; t
    v_lshlrev_b32 v28, 4, v30
    v_lshl_add_u32 v28, v31, 10, v28
    v_lshlrev_b32 v29, 3, v30
    v_lshl_add_u32 v29, v31, 2, v29
    ''')
    poll([f'global_load_dwordx4 v[20:23], v28, {sr(sBa)} offset:{REC_H2} sc1',
          f'global_load_dword v24, v29, {sr(sBa)} offset:{REC_H2 + 2048} sc1'], list(range(20, 25)), [26])
    acc = 36
    for j in range(5):
        for k in range(4):
            w_ = vr(vEW + 8 * j + 2 * k, 2)
            x_ = vr(20 + (j & ~1), 2)
            if j == 0:
                a(f'v_pk_mul_f32 {vr(acc + 2 * k, 2)}, {w_}, {x_} op_sel:[0,0] op_sel_hi:[1,0]')
            else:
                a(f'v_pk_fma_f32 {vr(acc + 2 * k, 2)}, {w_}, {x_}, {vr(acc + 2 * k, 2)} {BC1 if j & 1 else BC0}')
    a(f'''
    v_and_b32 v28, 1, v{vL}
    v_lshlrev_b32 v28, 7, v28
    v_and_b32 v29, 48, v{vL}
    v_lshl_add_u32 v28, v29, 1, v28
    s_lshr_b32 s{sU1}, s{sW}, 2
    s_lshl_b32 s{sU1}, s{sU1}, 8
    s_and_b32 s{sT}, s{sW}, 3
    s_lshl_b32 s{sT}, s{sT}, 2
    s_add_u32 s{sU1}, s{sU1}, s{sT}
    s_add_u32 s{sU1}, s{sU1}, {RED}
    v_add_u32 v28, s{sU1}, v28
    v_and_b32 v29, 0xf0, v{vL16}
    ''')
    swap_reduce8(acc)
    for c in ('row_ror:8', 'row_ror:4', 'row_ror:2'):
        dpp('v_add_f32', acc, c)
        dpp('v_add_f32', acc + 1, c)
    a(f'''
    s_mov_b32 exec_lo, 0x00030003
    s_mov_b32 exec_hi, 0x00030003
    ds_write2_b32 v28, v{acc}, v{acc + 1} offset0:0 offset1:4
    s_mov_b64 exec, -1
    s_mul_i32 s{sU1}, s{sX}, 12
    s_add_u32 s{sU1}, s{sU1}, s{sIdx}
    s_mul_i32 s{sU1}, s{sU1}, {PY_STRIDE}
    s_lshl_b32 s{sT}, s{sW}, 9
    s_add_u32 s{sU1}, s{sU1}, s{sT}
    ''')
    base_add(sBb, WS, sU1, (PY_G - 20 * PY_STRIDE) & 0xffffffff)
    a(f'''
    s_waitcnt lgkmcnt(0)
    s_barrier                                   ; B9
    s_cmp_ge_u32 s{sW}, 5
    s_cbranch_scc1 L_e_done
    ds_read_b128 v[20:23], v29 offset:{RED}
    ds_read_b128 v[24:27], v29 offset:{RED + 256}
    s_waitcnt lgkmcnt(0)
    v_pk_add_f32 v[20:21], v[20:21], v[22:23]
    v_pk_add_f32 v[24:25], v[24:25], v[26:27]
    v_add_f32 v20, v20, v21
    v_add_f32 v24, v24, v25
    v_cvt_pk_bf16_f32 v24, v20, v24
    ''')
    unpack(20, 24, 24)
    silu([20], [20], [21])
    rbf(20, 'v20')
    a('v_mul_f32 v20, v20, v24')
    rbf(20, 'v20')
    for u in range(16):
        a(f'v_readlane_b32 s{sGU + u}, v20, {u}')
    for u in range(16):
        w_ = vr(vFW + 2 * u, 2)
        g_ = sr(sGU + (u & ~1))
        d_ = vr(36 + 2 * (u & 1), 2)
        if u < 2:
            a(f'v_pk_mul_f32 {d_}, {w_}, {g_} op_sel:[0,{u & 1}] op_sel_hi:[1,{u & 1}]')
        else:
            a(f'v_pk_fma_f32 {d_}, {w_}, {g_}, {d_} {BC1 if u & 1 else BC0}')
    a('v_pk_add_f32 v[36:37], v[36:37], v[38:39]')
    a(f'global_store_dwordx2 v{vE0}, v[36:37], {sr(sBb)} sc1')
    a.label('L_e_done')
    deferred('L_def2')
    a.label('L_fin')
    stamp('end')
    if DIAG:
        a(f'''
        s_cmp_lg_u32 s{sW}, 0
        s_cbranch_scc1 L_end
        s_lshl_b32 s{sU0}, s2, 8
        ''')
        base_add(sBa, WS, sU0, DIAG_G)
        a('v_mov_b32 v20, 0')
        a('s_mov_b64 exec, 1')
        for k in range(nstamp[0]):
            a(f'v_mov_b32 v22, s{sTS + 2 * k}')
            a(f'v_mov_b32 v23, s{sTS + 2 * k + 1}')
            a(f'global_store_dwordx2 v20, v[22:23], {sr(sBa)} offset:{8 * k}')
            a('s_nop 1')
        a('s_getreg_b32 s42, hwreg(HW_REG_XCC_ID)')
        a('s_getreg_b32 s43, hwreg(HW_REG_HW_ID)')
        a('v_mov_b32 v22, s42')
        a('v_mov_b32 v23, s43')
        a(f'global_store_dwordx2 v20, v[22:23], {sr(sBa)} offset:248')
    a.label('L_end')
    a('s_endpgm')


def fill(base, n_full, voff=vL16, tmp=24):
    cur = voff
    for n in range(n_full):
        if n and n % 4 == 0:
            a(f'v_add_u32 v{tmp}, {1024 * n}, v{voff}')
            cur = tmp
        a(f'global_store_dwordx4 v{cur}, v[20:23], {sr(base)} offset:{1024 * (n % 4)} sc1')


def helper0():
    a.label('L_h0')
    for k in range(4):
        a(f'v_mov_b32 v{20 + k}, -1')
    a(f'''
    v_mov_b32 v26, 0
    v_mov_b32 v27, 0
    v_mov_b32 v28, {KEYL}
    ds_write_b64 v28, v[26:27]
    s_mul_i32 s{sU0}, s{sMe}, 12288
    s_cmp_lg_u32 s2, 0
    s_waitcnt lgkmcnt(0)
    s_cbranch_scc1 L_h0_a
    ''')
    fill(WS, 11)
    a.label('L_h0_a')
    base_add(sBa, WS, sU0, T1_G)
    fill(sBa, 12)
    a(f'''
    s_cmp_lg_u32 s2, 0
    s_cbranch_scc1 L_h0_b
    s_waitcnt vmcnt(12)
    s_mov_b64 exec, 1
    global_store_dword v26, v20, {sr(DBG)} sc1
    s_mov_b64 exec, -1
    ''')
    a.label('L_h0_b')
    a(f'''
    s_sub_u32 s{sT}, s{sIdx}, 10
    s_cmp_lt_u32 s{sT}, 10
    s_cbranch_scc0 L_h0_c
    s_mul_i32 s{sU1}, s{sX}, 10
    s_add_u32 s{sU1}, s{sU1}, s{sT}
    s_lshl_b32 s{sU1}, s{sU1}, 7
    ''')
    base_add(sBb, WS, sU1, MODB_G)
    a(f'''
    s_mov_b64 exec, 0xff
    global_store_dwordx4 v{vL16}, v[20:23], {sr(sBb)} sc1
    s_mov_b64 exec, -1
    ''')
    a.label('L_h0_c')
    poll([f'global_load_dword v25, v26, {sr(DBG)} sc1'], [25], [], mask='1', zero_is_empty=True)
    a(f'''
    s_lshl_b32 s{sU1}, s{sMe}, 2
    s_add_u32 s{sU1}, s{sU1}, {FLAG_G}
    v_mov_b32 v25, s{sU1}
    s_mov_b64 exec, 1
    global_store_dword v25, v26, {sr(WS)} sc1
    s_mov_b64 exec, -1
    s_barrier                                   ; B1
    ''')
    base_add(sBa, WS, sU0, T2_G)
    fill(sBa, 12)
    a(f's_mul_i32 s{sU1}, s{sMe}, {REC_STRIDE}')
    base_add(sBa, WS, sU1, REC_G)
    fill(sBa, 6)
    a(f'''
    s_cmp_lt_u32 s{sIdx}, 20
    s_cbranch_scc1 L_h0_d
    s_mul_i32 s{sU1}, s{sX}, 12
    s_add_u32 s{sU1}, s{sU1}, s{sIdx}
    s_mul_i32 s{sU1}, s{sU1}, {PY_STRIDE}
    ''')
    base_add(sBa, WS, sU1, (PY_G - 20 * PY_STRIDE) & 0xffffffff)
    fill(sBa, 2)
    a(f'''
    s_mov_b32 exec_hi, 0
    global_store_dwordx4 v{vL16}, v[20:23], {sr(sBa)} offset:2048 sc1
    s_mov_b64 exec, -1
    ''')
    a.label('L_h0_d')
    a(f'''
    s_barrier                                   ; B2
    s_waitcnt vmcnt(0)
    s_barrier                                   ; B3
    v_add_u32 v24, {MODB_G}, v{vL16}
    v_add_u32 v25, {MODB_G + 4096}, v{vL16}
    v_add_u32 v26, {MODB_G + 8192}, v{vL16}
    v_add_u32 v27, {MODB_L}, v{vL16}
    ''')
    poll([f'global_load_dwordx4 {vr(40 + 4 * n, 4)}, v{24 + n // 4}, {sr(WS)} offset:{1024 * (n % 4)} sc1' for n in range(10)],
         list(range(40, 80)), list(range(28, 40)))
    for n in range(10):
        a(f'ds_write_b128 v27, {vr(40 + 4 * n, 4)} offset:{1024 * n}')
    a('s_waitcnt lgkmcnt(0)')
    a('s_endpgm')


def helper1():
    a.label('L_h1')
    a(f'''
    s_getpc_b64 {sr(sBa)}
    L_pc:
    s_add_u32 s{sBb}, s{sBa}, L_tables-L_pc
    s_addc_u32 s{sBb + 1}, s{sBa + 1}, 0
    s_sub_u32 s{sBa}, s{sBa}, L_pc-{NAME}_kernel
    s_subb_u32 s{sBa + 1}, s{sBa + 1}, 0
    v_lshlrev_b32 v20, 7, v{vL}
    global_load_dword v21, v20, {sr(sBa)}
    v_add_u32 v20, 8192, v20
    global_load_dword v22, v20, {sr(sBa)}
    v_mov_b32 v20, v{vL16}
    ''')
    for q in range(NTAB):
        if q % 4 == 0:
            a(f's_mov_b32 m0, {TAB + q * 1024}')
            if q:
                a(f'v_add_u32 v20, 4096, v20')
        a(f'global_load_lds_dwordx4 v20, {sr(sBb)} offset:{1024 * (q % 4)}')
    a(f'''
    s_and_b32 s{sU1}, s{sIdx}, 3
    s_lshl_b32 s{sT}, s{sX}, 2
    s_add_u32 s{sU1}, s{sU1}, s{sT}
    s_mul_i32 s{sU1}, s{sU1}, 40
    s_sub_u32 s{sT}, 1260, s{sU1}
    s_cmp_ge_u32 s{sX}, 4
    s_cselect_b32 s{sU1}, s{sT}, s{sU1}             ; 2*C0
    s_cselect_b32 s{sU2}, -1, 1                     ; direction
    s_lshr_b32 s{sU0}, s{sIdx}, 2                   ; q
    v_lshrrev_b32 v23, 1, v{vL}
    v_lshl_add_u32 v23, v23, 3, s{sU0}              ; q + 8*kappa (n = 0)
    v_mul_lo_u32 v23, v23, s{sU2}
    s_lshl_b32 s{sU2}, s{sU2}, 8
    v_and_b32 v24, 1, v{vL}
    v_mul_u32_u24 v24, 12, v24
    s_movk_i32 s{sU3}, 642
    s_waitcnt lgkmcnt(0)
    ''')
    for n in range(8):
        a(f'''
        v_and_b32 v25, 0x7ff, v23
        v_mov_b32 v26, s{sU1}
        v_mad_u32_u24 v25, v25, s{sU3}, v26
        v_and_b32 v25, -4, v25
        v_add_u32 v25, v25, v24
        s_mov_b32 m0, {WST + n * 1024}
        v_add_u32 v23, s{sU2}, v23
        global_load_lds_dwordx3 v25, {sr(W_R)}
        s_mov_b32 m0, {WST + 8192 + n * 1024}
        s_nop 0
        global_load_lds_dwordx3 v25, {sr(W_I)}
        ''')
    a(f'''
    s_mov_b32 m0, {WR_L}
    s_nop 0
    global_load_lds_dwordx4 v{vL16}, {sr(B_WR)}
    s_mov_b64 exec, 0xffff
    global_load_lds_dwordx4 v{vL16}, {sr(B_WR)} offset:1024
    s_mov_b64 exec, -1
    s_waitcnt vmcnt({NTAB - 14 + 16 + 2})
    s_barrier                                   ; B1
    s_barrier                                   ; B2
    s_waitcnt vmcnt(0)
    s_cmp_lt_u32 s{sIdx}, 20
    s_cbranch_scc1 L_h1_end
    s_barrier                                   ; B3
    s_barrier                                   ; B4
    s_mul_i32 s{sU1}, s{sX}, 12
    s_add_u32 s{sU1}, s{sU1}, s{sIdx}
    s_sub_u32 s{sU1}, s{sU1}, 20
    s_mul_i32 s{sU1}, s{sU1}, 20480
    v_mov_b32 v20, v{vL16}
    ''')
    base_add(sBa, W_D, sU1)
    for n in range(20):
        if n % 4 == 0:
            a(f's_mov_b32 m0, {FW + n * 1024}')
            if n:
                a(f'v_add_u32 v20, 4096, v20')
        a(f'global_load_lds_dwordx4 v20, {sr(sBa)} offset:{1024 * (n % 4)}')
    a(f'''
    s_barrier                                   ; B5
    s_waitcnt vmcnt(0)
    ''')
    a.label('L_h1_end')
    a('s_endpgm')


prologue()
stamp('start')
main_path()
helper0()
helper1()
body = a.finish()

hdr = open(f'cdna_kernels/{NAME}.s.ref').read().split('; Override launch')[0]
T = tables()
tab = []
flat = T.reshape(-1)
for k in range(0, flat.size, 8):
    tab.append('.long ' + ','.join('0x%08x' % v for v in flat[k:k + 8]))

src = hdr + f'''; @launch grid=(256,1,1) block=(640,1,1) lds={LDS_BYTES}
.amdgcn_target "amdgcn-amd-amdhsa--gfx950"
.text
.globl {NAME}_kernel
.p2align 8
.type {NAME}_kernel,@function
{NAME}_kernel:
{body}
.p2align 8
.type L_tables,@object
L_tables:
''' + '\n'.join(tab) + f'''
.size L_tables, {NTAB * 1024}
.section .rodata,"a"
.p2align 6
.amdhsa_kernel {NAME}_kernel
  .amdhsa_next_free_vgpr 168
  .amdhsa_next_free_sgpr 102
  .amdhsa_accum_offset 168
  .amdhsa_group_segment_fixed_size 0
  .amdhsa_kernarg_size 104
  .amdhsa_user_sgpr_count 2
  .amdhsa_user_sgpr_kernarg_segment_ptr 1
  .amdhsa_system_sgpr_workgroup_id_x 1
.end_amdhsa_kernel
'''
open(OUT, 'w').write(src)
print('wrote', OUT, 'lds', LDS_BYTES, 'lines', len(a.lines), 'nops', a.nnops)
```

```python
import sys, struct
import numpy as np
from asmdsl import Asm

NAME = 'adaLN_cond__spectral_gfnet__moe_arch_mod__prompt'
DIAG = '--diag' in sys.argv or '--dbgdiag' in sys.argv
DBGDIAG = '--dbgdiag' in sys.argv
OUT = [a for a in sys.argv[1:] if not a.startswith('--')]
OUT = OUT[0] if OUT else f'cdna_kernels/{NAME}.s'
SPIN = 60000

MODA_G = 0
FLAG_G = 10240
MODB_G = 11264
PY_G = 32768
PY_STRIDE = 2688
REC_G = 0x80000
REC_STRIDE = 6272
REC_H2 = 128
REC_BASE = 128 + 2560
T1_G = 0x400000
T2_G = 0x800000
DIAG_G = 0xC00000

NTAB = 25
TAB = 0
XB2 = TAB + NTAB * 1024
XB1 = XB2 + 12288
XB3 = XB1
RED = XB1 + 18560
KEYL = RED + 1024
MODA_L = KEYL + 64
MODB_L = MODA_L + 5120
WR_L = MODB_L + 10240
WST = WR_L + 2048
EW = WST + 16384
FW = EW + 40960
LDS_BYTES = FW + 20480
assert LDS_BYTES <= 163840, LDS_BYTES
assert MODA_L + 5120 < 65536

T_F20C, T_F20S, T_TW1, T_F32, T_F16, T_TW2, T_TW3, T_F20I = 0, 1, 2, 6, 14, 16, 18, 22


def f2u(x):
    return struct.unpack('<I', struct.pack('<f', float(x)))[0]


def bf(x):
    u = f2u(x)
    return ((u + 0x7FFF + ((u >> 16) & 1)) >> 16) & 0xFFFF


def pk(lo, hi):
    return bf(lo) | (bf(hi) << 16)


def cs(num, den):
    a = 2 * np.pi * (num % den) / den
    c, s = np.cos(a), np.sin(a)
    if abs(c) < 1e-12: c = 0.0
    if abs(s) < 1e-12: s = 0.0
    return c, s


def tables():
    T = np.zeros((NTAB, 64, 4), np.uint32)
    for l in range(64):
        i, g = l & 15, l >> 4
        c8, s8 = [0.0] * 8, [0.0] * 8
        for j in range(5):
            if i <= 10:
                c, s = cs((4 * j + g) * i, 20)
                c8[j], s8[j] = c, -s
        for d in range(4):
            T[T_F20C, l, d] = pk(c8[2 * d], c8[2 * d + 1])
            T[T_F20S, l, d] = pk(s8[2 * d], s8[2 * d + 1])
        for t in range(2):
            for r in range(4):
                c, s = cs((8 * g + 2 * r + t) * i, 640)
                T[T_TW1 + 2 * t, l, r] = f2u(c)
                T[T_TW1 + 2 * t + 1, l, r] = f2u(s)
                c, s = cs((2 * i + t) * (4 * g + r), 640)
                T[T_TW3 + 2 * t, l, r] = f2u(c)
                T[T_TW3 + 2 * t + 1, l, r] = f2u(s)
        for tile in range(2):
            for ks in range(2):
                for r in range(4):
                    c, s = cs((2 * i + tile) * (8 * g + 2 * r + ks), 32)
                    T[T_F32 + tile * 4 + 0 + ks, l, r] = pk(c, s)
                    T[T_F32 + tile * 4 + 2 + ks, l, r] = pk(-s, c)
        for r in range(4):
            c, s = cs(i * (4 * g + r), 16)
            T[T_F16, l, r] = pk(c, s)
            T[T_F16 + 1, l, r] = pk(-s, c)
            c, s = cs(i * (4 * g + r), 256)
            T[T_TW2, l, r] = f2u(c)
            T[T_TW2 + 1, l, r] = f2u(s)
            ka = 4 * g + r
            if ka <= 10:
                a1 = 4 * (i & 3) + (i >> 2)
                c, s = cs(a1 * ka, 20)
                T[T_F20I, l, r] = pk(c, -s)
                c, s = cs((16 + (i >> 2)) * ka, 20)
                if (i & 3) == 0:
                    T[T_F20I + 1, l, r] = pk(c, -s)
                if (i & 3) == 1:
                    T[T_F20I + 2, l, r] = pk(c, -s)
    return T


def vr(a, n=1):
    return f'v{a}' if n == 1 else f'v[{a}:{a + n - 1}]'


def sr(a, n=2):
    return f's{a}' if n == 1 else f's[{a}:{a + n - 1}]'


sW, sX, sIdx, sMe, sT = 3, 4, 5, 6, 7
A_X, W_R, W_I, B_WR, W_G, W_U, W_D = 8, 10, 12, 16, 18, 20, 22
C_, W_MOD, OUTP, DBG, WS = 24, 26, 28, 30, 32
sBa, sBb, sBc = 34, 36, 38
sCnt = 40
sM1B = 41
sU0, sU1, sU2, sU3 = 42, 43, 46, 47
sM7 = 44
sRow = 48
sKey = 49
sV1, sV2 = 50, 51
sHI = 52
sCand = 53
sGU = 56
sXrow = 72
sTS = 74

vL, vL16, vL4, vP48, vPoll = 1, 2, 3, 4, 5
vM8F, vM8I = 6, 8
vXS = 10
Ra, Rb, RD, Rc = 20, 28, 36, 52
vF32 = 60
vTW = 92
vF20 = 108
vVec = 120
vE0 = 160

a = Asm()
stamps = {}
NST = 24


def stamp(name, path='M', wait=True):
    if not DIAG:
        return
    lst = stamps.setdefault(path, [])
    if name not in lst:
        lst.append(name)
    k = lst.index(name)
    assert k < NST
    a(f's_memrealtime s[100:101]')
    a('s_waitcnt lgkmcnt(0)')
    a(f's_mov_b32 s{sTS + k}, s100')


def dump_stamps(path='M'):
    if not DIAG:
        return
    if DBGDIAG:
        if path != 'M':
            return
        a('v_mov_b32 v20, 0')
        a('s_mov_b64 exec, 1')
        a(f's_not_b32 s{sU0}, s{sTS}')
        a(f'v_mov_b32 v22, s{sU0}')
        a(f'global_atomic_umax v20, v22, {sr(DBG)} offset:4 sc1')
        ks = [0] + list(range(2, len(stamps['M'])))
        for n, k in enumerate(ks[:14]):
            a(f'v_mov_b32 v{23 + n}, s{sTS + k}')
            a(f'global_atomic_umax v20, v{23 + n}, {sr(DBG)} offset:{8 + 4 * n} sc1')
        print('dbg slots:', [(2 + n, stamps['M'][k]) for n, k in enumerate(ks[:14])])
        return
    a(f'''
    s_lshl_b32 s{sU0}, s2, 11
    s_lshl_b32 s{sU1}, s{sW}, 7
    s_add_u32 s{sU0}, s{sU0}, s{sU1}
    s_memtime s[100:101]
    ''')
    base_add(sBa, WS, sU0, DIAG_G)
    a('v_mov_b32 v20, 0')
    a('s_mov_b64 exec, 1')
    for k in range(0, NST, 2):
        a(f'v_mov_b32 v22, s{sTS + k}')
        a(f'v_mov_b32 v23, s{sTS + k + 1}')
        a(f'global_store_dwordx2 v20, v[22:23], {sr(sBa)} offset:{4 * k}')
        a('s_nop 1')
    a('s_waitcnt lgkmcnt(0)')
    a('s_sub_u32 s100, s100, s98')
    a('v_mov_b32 v22, s100')
    a(f'global_store_dword v20, v22, {sr(sBa)} offset:112')
    a('s_getreg_b32 s42, hwreg(HW_REG_XCC_ID)')
    a('s_getreg_b32 s43, hwreg(HW_REG_HW_ID)')
    a('v_mov_b32 v22, s42')
    a('v_mov_b32 v23, s43')
    a(f'global_store_dwordx2 v20, v[22:23], {sr(sBa)} offset:120')


def base_add(dst, src, off_s=None, imm=0):
    if off_s is not None:
        if imm:
            a(f's_add_u32 s{sT}, s{off_s}, {imm}')
            off_s = sT
        a(f's_add_u32 s{dst}, s{src}, s{off_s}')
    else:
        a(f's_add_u32 s{dst}, s{src}, {imm}')
    a(f's_addc_u32 s{dst + 1}, s{src + 1}, 0')


lblc = [0]


def newlabel(p):
    lblc[0] += 1
    return f'L_{p}_{lblc[0]}'


def poll(loads, regs, tmp, mask=None, zero_is_empty=False):
    L, D = newlabel('poll'), newlabel('polld')
    if mask is not None:
        a(f's_mov_b64 exec, {mask}')
    a(f's_mov_b32 s{sCnt}, {SPIN}')
    a.label(L)
    for ld in loads:
        a(ld)
    a('s_waitcnt vmcnt(0)')
    if len(regs) == 1:
        t = regs[0]
    else:
        rem = list(regs)
        outs = []
        k = 0
        while len(rem) >= 3 and k < len(tmp):
            a(f'v_max3_u32 v{tmp[k]}, v{rem[0]}, v{rem[1]}, v{rem[2]}')
            outs.append(tmp[k])
            rem = rem[3:]
            k += 1
        rem = outs[1:] + rem
        t = outs[0] if outs else None
        if t is None:
            t = tmp[0]
            a(f'v_max_u32 v{t}, v{rem[0]}, v{rem[1]}')
            rem = rem[2:]
        while rem:
            if len(rem) >= 2:
                a(f'v_max3_u32 v{t}, v{t}, v{rem[0]}, v{rem[1]}')
                rem = rem[2:]
            else:
                a(f'v_max_u32 v{t}, v{t}, v{rem[0]}')
                rem = rem[1:]
    a(f'v_cmpx_eq_u32 vcc, {0 if zero_is_empty else -1}, v{t}')
    a(f's_cbranch_execz {D}')
    a(f's_sub_u32 s{sCnt}, s{sCnt}, 1')
    a(f's_cbranch_scc0 {L}')
    a.label(D)
    a('s_mov_b64 exec, -1')


def dpp(op, r, ctrl, rm='0xf'):
    a(f'{op}_dpp v{r}, v{r}, v{r} {ctrl} row_mask:{rm} bank_mask:0xf')


def wave_sum(regs, dst_s, op='v_add_f32'):
    for c in ('row_ror:8', 'row_ror:4', 'row_ror:2', 'row_ror:1'):
        for r in regs:
            dpp(op, r, c)
    for r in regs:
        dpp(op, r, 'row_bcast:15', '0xa')
    for r in regs:
        dpp(op, r, 'row_bcast:31', '0xc')
    for r, s in zip(regs, dst_s):
        a(f'v_readlane_b32 s{s}, v{r}, 63')


def rbf(dst, src):
    a(f'v_cvt_pk_bf16_f32 v{dst}, {src}, {src}')
    a(f'v_and_b32 v{dst}, s{sHI}, v{dst}')


def unpack(dlo, dhi, src):
    a(f'v_lshlrev_b32 v{dlo}, 16, v{src}')
    a(f'v_and_b32 v{dhi}, s{sHI}, v{src}')


def mfma32(d, x, y, c=None):
    a(f'v_mfma_f32_16x16x32_bf16 {vr(d, 4)}, {vr(x, 4)}, {vr(y, 4)}, {vr(c, 4) if c is not None else 0}')


def mfma16(d, x, y):
    a(f'v_mfma_f32_16x16x16_bf16 {vr(d, 4)}, {vr(x, 2)}, {vr(y, 2)}, 0')


def cmul(tr, ti, re, im, c, s, sign):
    nr = 'neg_lo:[1,0,0] neg_hi:[1,0,0]'
    for h in (0, 2):
        a(f'v_pk_mul_f32 {vr(tr + h, 2)}, {vr(re + h, 2)}, {vr(c + h, 2)}')
    for h in (0, 2):
        a(f'v_pk_mul_f32 {vr(ti + h, 2)}, {vr(im + h, 2)}, {vr(c + h, 2)}')
    for h in (0, 2):
        a(f'v_pk_fma_f32 {vr(tr + h, 2)}, {vr(im + h, 2)}, {vr(s + h, 2)}, {vr(tr + h, 2)} {nr if sign > 0 else ""}')
    for h in (0, 2):
        a(f'v_pk_fma_f32 {vr(ti + h, 2)}, {vr(re + h, 2)}, {vr(s + h, 2)}, {vr(ti + h, 2)} {nr if sign < 0 else ""}')


def pack4(d, lo, hi, step=1):
    for r in range(4):
        a(f'v_cvt_pk_bf16_f32 v{d + r * step}, v{lo + r}, v{hi + r}')


def tab_read(dst, q):
    a(f'ds_read_b128 {vr(dst, 4)}, v{vL16} offset:{TAB + q * 1024}')


def tm(j, t):
    return 4 * t + j if j < 4 else 8 + t


def read_tmajor(dst, vaddr, off):
    o = off // 256
    assert off % 256 == 0 and o + 6 < 256
    for t in range(2):
        a(f'ds_read2st64_b32 {vr(dst + 4 * t, 2)}, v{vaddr + t} offset0:{o} offset1:{o + 2}')
        a(f'ds_read2st64_b32 {vr(dst + 4 * t + 2, 2)}, v{vaddr + t} offset0:{o + 4} offset1:{o + 6}')
    a(f'ds_read_b64 {vr(dst + 8, 2)}, v{vaddr} offset:{off + 2048}')


def silu(dst, src, tmp):
    for d, s, t in zip(dst, src, tmp):
        a(f'v_mul_f32 v{t}, 0xbfb8aa3b, v{s}')
    for t in tmp:
        a(f'v_exp_f32 v{t}, v{t}')
    for t in tmp:
        a(f'v_add_f32 v{t}, 1.0, v{t}')
    for t in tmp:
        a(f'v_rcp_f32 v{t}, v{t}')
    for d, s, t in zip(dst, src, tmp):
        a(f'v_mul_f32 v{d}, v{s}, v{t}')


def swap_reduce8(acc):
    for k in range(4):
        a(f'v_permlane32_swap_b32 v{acc + k}, v{acc + k + 4}')
    a(f'v_pk_add_f32 {vr(acc, 2)}, {vr(acc, 2)}, {vr(acc + 4, 2)}')
    a(f'v_pk_add_f32 {vr(acc + 2, 2)}, {vr(acc + 2, 2)}, {vr(acc + 6, 2)}')
    for k in range(2):
        a(f'v_permlane16_swap_b32 v{acc + k}, v{acc + k + 2}')
    a(f'v_pk_add_f32 {vr(acc, 2)}, {vr(acc, 2)}, {vr(acc + 2, 2)}')


BC0 = 'op_sel:[0,0,0] op_sel_hi:[1,0,1]'
BC1 = 'op_sel:[0,1,0] op_sel_hi:[1,1,1]'


def prologue():
    a(f'''
    s_cmp_ge_u32 s2, 256
    s_cbranch_scc1 L_end
    ''')
    if DIAG:
        for k in range(NST):
            a(f's_mov_b32 s{sTS + k}, 0')
        a('s_memtime s[98:99]')
        for p in ('M', 'H0', 'H1'):
            stamps[p] = ['start']
        stamp('start')
    a(f'''
    s_load_dwordx16 s[8:23], s[0:1], 0
    s_load_dwordx8 s[24:31], s[0:1], 64
    s_load_dwordx2 s[32:33], s[0:1], 96
    v_lshrrev_b32 v{vL}, 6, v0
    s_and_b32 s{sX}, s2, 7
    v_readfirstlane_b32 s{sW}, v{vL}
    v_and_b32 v{vL}, 63, v0
    s_lshr_b32 s{sIdx}, s2, 3
    s_lshl_b32 s{sMe}, s{sX}, 5
    s_add_u32 s{sMe}, s{sMe}, s{sIdx}
    v_lshlrev_b32 v{vL16}, 4, v{vL}
    s_mov_b32 s{sHI}, 0xffff0000
    s_cmp_eq_u32 s{sW}, 9
    s_cbranch_scc1 L_h1
    s_cmp_eq_u32 s{sW}, 8
    s_cbranch_scc1 L_h0
    ''')


def xloads():
    for j in range(5):
        a(f'global_load_dword v{vE0 + j}, v{vL4}, {sr(sXrow)} offset:{256 * j}')


def gemv_mod(role):
    nj = 3 if role == 'A' else 5
    vw, vc, acc, tmp, vo, voc = 20, 40, 48, 60, 56, 57
    if role == 'A':
        a(f'''
        s_mul_i32 s{sU2}, s{sX}, 10
        s_add_u32 s{sU2}, s{sU2}, s{sIdx}          ; blk
        s_lshr_b32 s{sU0}, s{sU2}, 1
        s_and_b32 s{sU1}, s{sU2}, 1
        s_mul_i32 s{sU1}, s{sU1}, 320
        s_mul_i32 s{sT}, s{sW}, 40
        s_add_u32 s{sU1}, s{sU1}, s{sT}
        s_lshl_b32 s{sU2}, s{sU2}, 7
        ''')
        for k in range(4):
            a(f'v_mov_b32 v{vw + 8 + k}, 0')
        a(f'v_mov_b32 v{vc + 2}, 0')
    else:
        a(f'''
        s_mul_i32 s{sU2}, s{sX}, 10
        s_add_u32 s{sU2}, s{sU2}, s{sIdx}
        s_add_u32 s{sU0}, s{sU2}, 30               ; 40 + 10x + idx - 10
        s_mul_i32 s{sU1}, s{sW}, 80
        s_lshl_b32 s{sU2}, s{sU2}, 7
        s_add_u32 s{sU2}, s{sU2}, {MODB_G - 1280}
        ''')
    a(f'''
    v_lshrrev_b32 v{voc}, 2, v{vL}
    v_and_b32 v{vo}, 48, v{vL16}
    v_mul_u32_u24 v{tmp}, 7680, v{voc}
    v_lshlrev_b32 v{voc}, 1, v{voc}
    v_add_u32 v{vo}, v{vo}, v{tmp}
    s_mul_i32 s{sU3}, s{sU1}, 7680
    s_lshl_b32 s{sT}, s{sU0}, 6
    s_add_u32 s{sU3}, s{sU3}, s{sT}
    s_lshl_b32 s{sU1}, s{sU1}, 1
    s_waitcnt lgkmcnt(0)
    ''')
    stamp('kernarg')
    base_add(sBa, C_, sU1)
    base_add(sBb, W_MOD, sU3)
    base_add(sXrow, A_X, sRow)
    if role == 'B':
        xloads()
    for j in range(nj):
        if role == 'A' and j == 2:
            a('s_mov_b32 exec_hi, 0')
        a(f'global_load_ushort v{vc + j}, v{voc}, {sr(sBa)} offset:{32 * j}')
    a('s_mov_b64 exec, -1')
    for j in range(nj):
        if role == 'A' and j == 2:
            a('s_mov_b32 exec_hi, 0')
        a(f'global_load_dwordx4 {vr(vw + 4 * j, 4)}, v{vo}, {sr(sBb)}')
        if j + 1 < nj:
            a(f'v_add_u32 v{vo}, {16 * 7680}, v{vo}')
    a('s_mov_b64 exec, -1')
    if role == 'A':
        xloads()
        after = 5
    else:
        after = 0
    a(f's_waitcnt vmcnt({nj + after})')
    stamp('c in')
    cs_ = [vc + j for j in range(nj)]
    for c in cs_:
        a(f'v_lshlrev_b32 v{c}, 16, v{c}')
    silu(cs_, cs_, [tmp + j for j in range(nj)])
    sc = [70 + 2 * j for j in range(nj)]
    for c, s in zip(cs_, sc):
        a(f'v_cvt_pk_bf16_f32 v{s}, v{c}, v{c}')
    for s in sc:
        a(f'v_and_b32 v{s}, s{sHI}, v{s}')
    for j in range(nj):
        a(f's_waitcnt vmcnt({nj - 1 - j + after})')
        for k in range(4):
            unpack(tmp + 2 * k, tmp + 2 * k + 1, vw + 4 * j + k)
        for k in range(4):
            if j == 0:
                a(f'v_pk_mul_f32 {vr(acc + 2 * k, 2)}, {vr(tmp + 2 * k, 2)}, {vr(sc[j], 2)} op_sel:[0,0] op_sel_hi:[1,0]')
            else:
                a(f'v_pk_fma_f32 {vr(acc + 2 * k, 2)}, {vr(tmp + 2 * k, 2)}, {vr(sc[j], 2)}, {vr(acc + 2 * k, 2)} {BC0}')
    stamp('w in')
    a(f'''
    v_and_b32 v{vo}, 3, v{vL}
    v_lshlrev_b32 v{vo}, 8, v{vo}
    v_and_b32 v{voc}, 48, v{vL}
    v_lshl_add_u32 v{vo}, v{voc}, 2, v{vo}
    s_lshl_b32 s{sT}, s{sW}, 2
    s_add_u32 s{sT}, s{sT}, {RED}
    v_add_u32 v{vo}, s{sT}, v{vo}
    ''')
    swap_reduce8(acc)
    for c in ('row_ror:8', 'row_ror:4'):
        dpp('v_add_f32', acc, c)
        dpp('v_add_f32', acc + 1, c)
    a(f'''
    s_mov_b32 exec_lo, 0x000f000f
    s_mov_b32 exec_hi, 0x000f000f
    ds_write2_b32 v{vo}, v{acc}, v{acc + 1} offset0:0 offset1:8
    s_mov_b64 exec, -1
    s_waitcnt lgkmcnt(0)
    s_barrier                                   ; B1
    s_cmp_lg_u32 s{sW}, 0
    s_cbranch_scc1 L_after_gemv
    s_mov_b32 exec_hi, 0
    v_lshlrev_b32 v{vo}, 5, v{vL}
    ds_read_b128 {vr(20, 4)}, v{vo} offset:{RED}
    ds_read_b128 {vr(24, 4)}, v{vo} offset:{RED + 16}
    ''')
    base_add(sBa, WS, sU2)
    if role == 'B':
        a(f'''
        s_sub_u32 s{sT}, s{sU0}, 80
        s_cmp_lt_u32 s{sT}, 20
        s_cselect_b32 s{sU3}, 1.0, 0
        ''')
    a(f'''
    s_waitcnt lgkmcnt(0)
    v_pk_add_f32 v[20:21], v[20:21], v[22:23]
    v_pk_add_f32 v[24:25], v[24:25], v[26:27]
    v_pk_add_f32 v[20:21], v[20:21], v[24:25]
    v_add_f32 v20, v20, v21
    ''')
    if role == 'B':
        rbf(20, 'v20')
        a(f'v_add_f32 v20, s{sU3}, v20')
        rbf(20, 'v20')
    a(f'''
    global_store_dword v{vL4}, v20, {sr(sBa)} sc1
    s_mov_b64 exec, -1
    s_branch L_after_gemv
    ''')


def role_e_start():
    a(f'''
    s_mul_i32 s{sU0}, s{sX}, 12
    s_add_u32 s{sU0}, s{sU0}, s{sIdx}
    s_sub_u32 s{sU0}, s{sU0}, 20
    s_lshl_b32 s{sU0}, s{sU0}, 5
    s_and_b32 s{sT}, s{sW}, 3
    s_mul_i32 s{sT}, s{sT}, {32 * 3072}
    s_add_u32 s{sU0}, s{sU0}, s{sT}
    v_lshrrev_b32 v20, 1, v{vL}
    v_mul_u32_u24 v20, 3072, v20
    v_and_b32 v21, 16, v{vL16}
    v_add_u32 v20, v20, v21
    s_mul_i32 s{sU1}, s{sW}, 5120
    s_add_u32 s{sU1}, s{sU1}, {EW}
    s_cmp_lt_u32 s{sW}, 4
    s_waitcnt lgkmcnt(0)
    s_cselect_b32 s{sBb}, s{W_G}, s{W_U}
    s_cselect_b32 s{sBb + 1}, s{W_G + 1}, s{W_U + 1}
    ''')
    base_add(sXrow, A_X, sRow)
    base_add(sBb, sBb, sU0)
    xloads()
    for j in range(5):
        a(f's_mov_b32 m0, s{sU1}')
        a(f'global_load_lds_dwordx4 v20, {sr(sBb)}')
        if j < 4:
            a(f'v_add_u32 v20, {128 * 3072}, v20')
            a(f's_add_u32 s{sU1}, s{sU1}, 1024')
    a('s_barrier                                   ; B1')
    a('s_waitcnt vmcnt(5)')
    a('s_branch L_ln1')


def m8(dst, inverse):
    t0, t1, t2, t3 = 20, 21, 22, 23
    a(f'v_lshrrev_b32 v{t0}, 4, v{vL}           ; g')
    if not inverse:
        a(f'''
        v_bfe_u32 v{t1}, v{vL}, 2, 2
        v_bfe_u32 v{t2}, v{vL}, 1, 1
        v_lshl_add_u32 v{t1}, v{t2}, 2, v{t1}
        v_lshlrev_b32 v{t0}, 9, v{t0}
        v_add_u32 v{t0}, s{sMe}, v{t0}
        v_mul_u32_u24 v{t2}, v{t0}, v{t1}
        v_lshl_add_u32 v{t3}, v{t1}, 8, v{t2}
        ''')
    else:
        a(f'''
        v_bfe_u32 v{t1}, v{vL}, 1, 3
        v_lshlrev_b32 v{t1}, 8, v{t1}
        v_add_u32 v{t1}, s{sMe}, v{t1}
        v_mul_u32_u24 v{t2}, v{t0}, v{t1}
        v_lshl_add_u32 v{t3}, v{t1}, 2, v{t2}
        v_sub_u32 v{t2}, 0, v{t2}
        v_sub_u32 v{t3}, 0, v{t3}
        ''')
    a(f'''
    v_and_b32 v{t0}, 1, v{vL}
    v_lshl_add_u32 v{t2}, v{t0}, 9, v{t2}
    v_lshl_add_u32 v{t3}, v{t0}, 9, v{t3}
    v_and_b32 v{t2}, 0x7ff, v{t2}
    v_and_b32 v{t3}, 0x7ff, v{t3}
    v_cvt_f32_u32 v{t2}, v{t2}
    v_cvt_f32_u32 v{t3}, v{t3}
    v_mul_f32 v{t2}, 0x3a000000, v{t2}
    v_mul_f32 v{t3}, 0x3a000000, v{t3}
    v_cos_f32 v{t0}, v{t2}
    v_sin_f32 v{t2}, v{t2}
    v_cos_f32 v{t1}, v{t3}
    v_sin_f32 v{t3}, v{t3}
    v_cvt_pk_bf16_f32 v{dst}, v{t0}, v{t2}
    v_cvt_pk_bf16_f32 v{dst + 1}, v{t1}, v{t3}
    ''')


INV640 = hex(f2u(1.0 / 640))
EPS = hex(f2u(1e-5))


def rstd_chain(var, out):
    rbf(out, f'v{var}')
    a(f'v_add_f32 v{out}, {EPS}, v{out}')
    rbf(out, f'v{out}')
    a(f'v_sqrt_f32 v{out}, v{out}')
    rbf(out, f'v{out}')
    a(f'v_rcp_f32 v{out}, v{out}')


def sum10(dst2, x):
    a(f'v_pk_add_f32 {vr(dst2, 2)}, {vr(x, 2)}, {vr(x + 2, 2)}')
    for h in (4, 6, 8):
        a(f'v_pk_add_f32 {vr(dst2, 2)}, {vr(dst2, 2)}, {vr(x + h, 2)}')
    a(f'v_add_f32 v{dst2}, v{dst2}, v{dst2 + 1}')


def dot10(dst2, x, y):
    a(f'v_pk_mul_f32 {vr(dst2, 2)}, {vr(x, 2)}, {vr(y, 2)}')
    for h in (2, 4, 6, 8):
        a(f'v_pk_fma_f32 {vr(dst2, 2)}, {vr(x + h, 2)}, {vr(y + h, 2)}, {vr(dst2, 2)}')
    a(f'v_add_f32 v{dst2}, v{dst2}, v{dst2 + 1}')


def main_path():
    vZ, vSA, vCA = vVec, vVec + 10, vVec + 20
    a(f'''
    v_lshlrev_b32 v{vL4}, 2, v{vL}
    s_lshl_b32 s{sRow}, s{sW}, 8
    s_add_u32 s{sKey}, s{sRow}, s{sMe}
    s_mul_i32 s{sRow}, s{sKey}, 1280
    s_cmp_ge_u32 s{sIdx}, 20
    s_cbranch_scc1 L_role_e
    s_cmp_ge_u32 s{sIdx}, 10
    s_cbranch_scc1 L_role_b
    ''')
    gemv_mod('A')
    a.label('L_role_b')
    gemv_mod('B')
    a.label('L_role_e')
    role_e_start()
    a.label('L_after_gemv')
    a('s_waitcnt vmcnt(1)')
    a(f's_cmp_eq_u32 s{sW}, 0')
    a('s_cbranch_scc1 L_ln1')
    a('s_waitcnt vmcnt(0)')
    a.label('L_ln1')
    stamp('B1 done')
    tab_read(vF20, T_F20C)
    tab_read(vF20 + 4, T_F20S)
    for q in range(4):
        tab_read(vTW + 4 * q, T_TW1 + q)
    for q in range(8):
        tab_read(vF32 + 4 * q, T_F32 + q)
    for j in range(5):
        unpack(vXS + tm(j, 0), vXS + tm(j, 1), vE0 + j)
    sum10(24, vXS)
    wave_sum([24], [sU0])
    a(f'v_mov_b32 v24, {INV640}')
    a(f'v_mul_f32 v26, s{sU0}, v24                ; mean')
    rbf(28, 'v26')
    a(f'v_readfirstlane_b32 s{sM1B}, v28')
    for h in range(0, 10, 2):
        a(f'v_pk_add_f32 {vr(vXS + h, 2)}, {vr(vXS + h, 2)}, v[28:29] op_sel:[0,0] op_sel_hi:[1,0] neg_lo:[0,1] neg_hi:[0,1]')
    dot10(30, vXS, vXS)
    wave_sum([30], [sU0])
    a(f'''
    v_sub_f32 v26, v26, v28
    v_mul_f32 v26, v26, v26
    v_fma_f32 v26, s{sU0}, v24, -v26
    ''')
    rstd_chain(26, 27)
    for j in range(5):
        for t in range(2):
            a(f'v_mul_f32 v{vZ + 2 * j + t}, v27, v{vXS + tm(j, t)}')
    m8(vM8F, False)
    m8(vM8I, True)
    a(f'''
    v_lshrrev_b32 v20, 2, v{vL}
    v_and_b32 v21, 48, v{vL16}
    v_mul_u32_u24 v{vP48}, 48, v20
    v_mul_u32_u24 v{vPoll}, 12288, v20
    v_add_u32 v{vP48}, v{vP48}, v21
    v_add_u32 v{vPoll}, v{vPoll}, v21
    s_mov_b32 s{sM7}, 0x77777777
    s_mov_b32 s{sM7 + 1}, 0x77777777
    v_lshlrev_b32 v{vE0}, 3, v{vL}                ; 8*lane
    v_mov_b32 v23, 0
    v_mov_b32 v27, 0
    ''')
    a(f'''
    v_and_b32 v20, 15, v{vL}
    v_mul_u32_u24 v20, 264, v20
    v_and_b32 v21, 48, v{vL}
    v_lshl_add_u32 v{vE0 + 1}, v21, 2, v20
    s_lshr_b32 s{sU0}, s{sW}, 1
    s_mul_i32 s{sU0}, s{sU0}, 4224
    s_and_b32 s{sT}, s{sW}, 1
    s_lshl_b32 s{sT}, s{sT}, 2
    s_add_u32 s{sU0}, s{sU0}, s{sT}
    s_add_u32 s{sU0}, s{sU0}, {XB1}
    v_add_u32 v{vE0 + 1}, s{sU0}, v{vE0 + 1}
    ''')
    a(f'''
    v_lshrrev_b32 v20, 4, v{vL}
    v_mul_u32_u24 v20, 4224, v20
    v_and_b32 v21, 3, v{vL}
    v_mul_u32_u24 v21, 1056, v21
    v_and_b32 v22, 12, v{vL}
    v_lshl_add_u32 v20, v22, 1, v20
    s_lshl_b32 s{sU0}, s{sW}, 5
    s_add_u32 s{sU0}, s{sU0}, {XB1}
    v_add3_u32 v{vE0 + 2}, v20, v21, s{sU0}
    ''')
    stamp('poll start')
    a(f'''
    s_sub_u32 s{sT}, s{sW}, 1
    s_cmp_lt_u32 s{sT}, 5
    s_cbranch_scc0 L_not_modpoll
    v_subrev_u32 v28, 64, v0                      ; u
    v_lshrrev_b32 v29, 3, v28
    v_lshlrev_b32 v29, 8, v29
    v_and_b32 v30, 0x70, v{vL16}
    v_add_u32 v29, v29, v30
    v_cmp_le_u32 vcc, 160, v28
    v_cndmask_b32 v30, 0, 1.0, vcc
    v_lshlrev_b32 v28, 4, v28
    ''')
    poll([f'global_load_dwordx4 v[36:39], v29, {sr(WS)} sc1', f'global_load_dwordx4 v[40:43], v29, {sr(WS)} offset:128 sc1'],
         list(range(36, 44)), [44, 45])
    a(f'''
    v_pk_add_f32 v[36:37], v[36:37], v[40:41]
    v_pk_add_f32 v[38:39], v[38:39], v[42:43]
    v_cvt_pk_bf16_f32 v40, v36, v37
    v_cvt_pk_bf16_f32 v41, v38, v39
    ''')
    unpack(36, 37, 40)
    unpack(38, 39, 41)
    a(f'''
    v_pk_add_f32 v[36:37], v[36:37], v[30:31] op_sel:[0,0] op_sel_hi:[1,0]
    v_pk_add_f32 v[38:39], v[38:39], v[30:31] op_sel:[0,0] op_sel_hi:[1,0]
    v_cvt_pk_bf16_f32 v40, v36, v37
    v_cvt_pk_bf16_f32 v41, v38, v39
    ''')
    unpack(36, 37, 40)
    unpack(38, 39, 41)
    a(f'ds_write_b128 v28, v[36:39] offset:{MODA_L}')
    a('s_branch L_b2')
    a.label('L_not_modpoll')
    a(f'''
    s_cmp_eq_u32 s{sW}, 6
    s_cbranch_scc0 L_b2
    v_add_u32 v29, {FLAG_G}, v{vL16}
    ''')
    poll([f'global_load_dwordx4 v[36:39], v29, {sr(WS)} sc1'], list(range(36, 40)), [44])
    a.label('L_b2')
    stamp('poll end')
    a('s_waitcnt lgkmcnt(0)')
    a('s_barrier                                   ; B2')
    stamp('B2 done (mod ready)')
    o = MODA_L // 512
    assert MODA_L % 8 == 0
    a(f'v_add_u32 v28, {MODA_L}, v{vE0}')
    a(f'ds_read2st64_b64 {vr(vSA, 4)}, v28 offset0:0 offset1:1')
    a(f'ds_read2st64_b64 {vr(vCA, 4)}, v28 offset0:5 offset1:6')
    a(f'ds_read2st64_b64 {vr(vSA + 4, 4)}, v28 offset0:2 offset1:3')
    a(f'ds_read2st64_b64 {vr(vCA + 4, 4)}, v28 offset0:7 offset1:8')
    a(f'ds_read_b64 {vr(vSA + 8, 2)}, v28 offset:2048')
    a(f'ds_read_b64 {vr(vCA + 8, 2)}, v28 offset:{2560 + 2048}')
    for j in range(5):
        if j in (0, 2, 4):
            a(f's_waitcnt lgkmcnt({4 - j})')
        a(f'v_pk_fma_f32 {vr(vZ + 2 * j, 2)}, {vr(vZ + 2 * j, 2)}, {vr(vCA + 2 * j, 2)}, {vr(vSA + 2 * j, 2)}')
    for t in range(2):
        a(f'v_cvt_pk_bf16_f32 v{Ra + 4 * t}, v{vZ + t}, v{vZ + 2 + t}')
        a(f'v_cvt_pk_bf16_f32 v{Ra + 4 * t + 1}, v{vZ + 4 + t}, v{vZ + 6 + t}')
        a(f'v_cvt_pk_bf16_f32 v{Ra + 4 * t + 2}, v{vZ + 8 + t}, 0')
    for t in range(2):
        mfma32(RD + 8 * t, Ra + 4 * t, vF20)
        mfma32(RD + 8 * t + 4, Ra + 4 * t, vF20 + 4)
    for t, tmp in ((0, Rb), (1, Rc)):
        cmul(tmp, tmp + 4, RD + 8 * t, RD + 8 * t + 4, vTW + 8 * t, vTW + 8 * t + 4, -1)
        pack4(Ra + 4 * t, tmp, tmp + 4)
    for ks in range(2):
        for u in range(2):
            for e in range(2):
                d = RD + 8 * u + 4 * e
                mfma32(d, vF32 + 16 * u + 8 * e + 4 * ks, Ra + 4 * ks, d if ks else None)
    for u in range(2):
        pack4(Rb + u, RD + 8 * u, RD + 8 * u + 4, step=2)
    for r in range(4):
        a(f'ds_write2_b32 v{vE0 + 1}, v{Rb + 2 * r}, v{Rb + 2 * r + 1} offset0:{4 * r} offset1:{4 * r + 2}')
    a(f'''
    s_mul_i32 s{sU0}, s{sMe}, 12288
    s_mul_i32 s{sU1}, s{sW}, 1536
    s_add_u32 s{sU0}, s{sU0}, s{sU1}
    ''')
    base_add(sBa, WS, sU0, T1_G)
    a('s_waitcnt lgkmcnt(0)')
    a('s_barrier                                   ; B3')
    for n in range(4):
        a(f'ds_read_b64 {vr(Ra + 2 * n, 2)}, v{vE0 + 2} offset:{264 * n}')
    for n in range(4):
        a(f's_waitcnt lgkmcnt({3 - n})')
        mfma16(RD + 4 * n, vM8F, Ra + 2 * n)
    for j in range(2):
        for n in range(4):
            a(f'v_cvt_pk_bf16_f32 v{Rb + 4 * j + n}, v{RD + 4 * n + 2 * j}, v{RD + 4 * n + 2 * j + 1}')
    a(f's_mov_b64 exec, {sr(sM7)}')
    a(f'global_store_dwordx4 v{vP48}, {vr(Rb, 4)}, {sr(sBa)} sc1')
    a(f'global_store_dwordx4 v{vP48}, {vr(Rb + 4, 4)}, {sr(sBa)} offset:768 sc1')
    a('s_mov_b64 exec, -1')
    stamp('T1 stored')
    vWr = vVec
    for q in range(2):
        tab_read(vTW + 4 * q, T_F16 + q)
        tab_read(vTW + 8 + 4 * q, T_TW2 + q)
    for k in range(16):
        a(f'v_mov_b32 v{vWr + k}, 0')
    SC = 2.0 / (2048 * 640)
    a(f'''
    v_and_b32 v20, 15, v{vL}
    v_and_b32 v21, 48, v{vL}
    v_lshl_add_u32 v20, v21, 2, v20               ; 64g + i
    v_mul_u32_u24 v{vE0 + 3}, 48, v20
    s_lshl_b32 s{sT}, s{sW}, 3
    s_add_u32 s{sT}, s{sT}, {XB2}
    v_add_u32 v{vE0 + 3}, s{sT}, v{vE0 + 3}
    v_lshlrev_b32 v20, 5, v20
    s_and_b32 s{sU1}, s{sIdx}, 3
    s_lshl_b32 s{sT}, s{sX}, 2
    s_add_u32 s{sU1}, s{sU1}, s{sT}               ; kb
    s_bfe_u32 s{sU2}, s{sIdx}, 0x10002            ; q & 1
    ''')
    for s in range(2):
        ka, pos, gam = sBc, sBc + 1, sU3
        a(f'''
        s_lshl_b32 s{ka}, s{sW}, 1
        s_add_u32 s{ka}, s{ka}, {s}
        s_min_u32 s{pos}, s{ka}, 10
        s_sub_u32 s{sT}, 10, s{pos}
        s_cmp_ge_u32 s{sX}, 4
        s_cselect_b32 s{pos}, s{sT}, s{pos}
        s_add_u32 s{pos}, s{pos}, s{sU2}
        s_lshl_b32 s{sT}, s{pos}, 1
        s_cmp_ge_u32 s{pos}, 6
        s_cselect_b32 s{pos}, 4, 0
        s_add_u32 s{pos}, s{pos}, s{sT}
        s_add_u32 s{pos}, s{pos}, {WST}
        v_add_u32 v{21 + s}, s{pos}, v20
        s_mov_b32 s{gam}, {hex(f2u(SC))}
        ''')
        if s == 0:
            a(f'''
            s_and_b32 s{sT}, s{sU1}, 15
            s_or_b32 s{sT}, s{sT}, s{ka}
            s_cmp_eq_u32 s{sT}, 0
            s_cselect_b32 s{gam}, {hex(f2u(SC / 2))}, s{gam}
            s_cmp_gt_u32 s{sU1}, 16
            s_cselect_b32 s{sT}, s{ka}, 1
            s_cmp_eq_u32 s{sT}, 0
            s_cselect_b32 s{gam}, 0, s{gam}
            s_cmp_ge_u32 s{sU1}, 16
            s_cselect_b32 s{sT}, s{ka}, 1
            s_cmp_eq_u32 s{sT}, 10
            s_cselect_b32 s{gam}, 0, s{gam}
            ''')
        else:
            a(f'''
            s_cmp_ge_u32 s{ka}, 11
            s_cselect_b32 s{gam}, 0, s{gam}
            ''')
        for arr in range(2):
            for r in range(4):
                a(f'ds_read_u16_d16_hi v{vWr + 8 * s + 4 * arr + r}, v{21 + s} offset:{arr * 8192 + r * 512}')
        a(f'''
        s_xor_b32 s{sT}, s{gam}, 0x80000000
        s_cmp_ge_u32 s{sX}, 4
        s_cselect_b32 s{sT}, s{sT}, s{gam}
        s_waitcnt lgkmcnt(0)
        ''')
        for r in range(4):
            a(f'v_mul_f32 v{vWr + 8 * s + r}, s{gam}, v{vWr + 8 * s + r}')
        for r in range(4):
            a(f'v_mul_f32 v{vWr + 8 * s + 4 + r}, s{sT}, v{vWr + 8 * s + 4 + r}')
    a(f'''
    s_mul_i32 s{sU1}, s{sMe}, 48
    s_mul_i32 s{sT}, s{sW}, {32 * 12288}
    s_add_u32 s{sU1}, s{sU1}, s{sT}
    s_mul_i32 s{sT}, s{sW}, 1536
    s_add_u32 s{sT}, s{sT}, {XB2}
    v_add_u32 v{vE0 + 4}, s{sT}, v{vP48}
    ''')
    base_add(sBa, WS, sU1, T1_G)
    base_add(sBb, WS, sU1, T1_G + 16 * 12288)
    a('s_waitcnt vmcnt(0)')
    poll([f'global_load_dwordx4 {vr(Ra, 4)}, v{vPoll}, {sr(sBa)} sc1', f'global_load_dwordx4 {vr(Ra + 4, 4)}, v{vPoll}, {sr(sBb)} sc1'],
         list(range(Ra, Ra + 8)), [Rb, Rb + 1], mask=sr(sM7))
    a(f's_mov_b64 exec, {sr(sM7)}')
    a(f'ds_write_b128 v{vE0 + 4}, {vr(Ra, 4)}')
    a(f'ds_write_b128 v{vE0 + 4}, {vr(Ra + 4, 4)} offset:768')
    a('s_mov_b64 exec, -1')
    base_add(sBa, WS, sU0, T2_G)
    a('s_waitcnt lgkmcnt(0)')
    a('s_barrier                                   ; B4')
    stamp('B4 done (T1 in)')
    a(f's_cmp_ge_u32 s{sW}, 6')
    a('s_cbranch_scc1 L_b5')
    Fre, Fim, Tc, Ts = vTW, vTW + 4, vTW + 8, vTW + 12
    for j in range(4):
        a(f'ds_read_b64 {vr(Rb + 2 * j, 2)}, v{vE0 + 3} offset:{768 * j}')
    for h in range(2):
        a(f's_waitcnt lgkmcnt({2 - 2 * h})')
        for s in range(2):
            a(f'v_pk_mov_b32 {vr(Ra + 4 * s + 2 * h, 2)}, {vr(Rb + 4 * h, 2)}, {vr(Rb + 4 * h + 2, 2)} op_sel:[{s},{s}]')
    tmps = (Rb, Rc)
    for s in range(2):
        mfma32(RD + 8 * s, Ra + 4 * s, Fre)
        mfma32(RD + 8 * s + 4, Ra + 4 * s, Fim)
    for s in range(2):
        cmul(tmps[s], tmps[s] + 4, RD + 8 * s, RD + 8 * s + 4, Tc, Ts, -1)
        pack4(Ra + 4 * s, tmps[s], tmps[s] + 4)
        mfma32(RD + 8 * s, Fre, Ra + 4 * s)
        mfma32(RD + 8 * s + 4, Fim, Ra + 4 * s)
    for s in range(2):
        cmul(tmps[s], tmps[s] + 4, RD + 8 * s, RD + 8 * s + 4, vWr + 8 * s, vWr + 8 * s + 4, +1)
        pack4(Ra + 4 * s, tmps[s] + 4, tmps[s])
        mfma32(RD + 8 * s, Ra + 4 * s, Fim)
        mfma32(RD + 8 * s + 4, Ra + 4 * s, Fre)
    for s in range(2):
        cmul(tmps[s], tmps[s] + 4, RD + 8 * s, RD + 8 * s + 4, Tc, Ts, +1)
        pack4(Ra + 4 * s, tmps[s] + 4, tmps[s])
        mfma32(RD + 8 * s, Fim, Ra + 4 * s)
        mfma32(RD + 8 * s + 4, Fre, Ra + 4 * s)
    for s in range(2):
        pack4(Rb + s, RD + 8 * s, RD + 8 * s + 4, step=2)
    for r in range(4):
        a(f'ds_write_b64 v{vE0 + 3}, {vr(Rb + 2 * r, 2)} offset:{768 * r}')
    a('s_waitcnt lgkmcnt(0)')
    a.label('L_b5')
    a('s_barrier                                   ; B5')
    a(f's_mov_b64 exec, {sr(sM7)}')
    a(f'ds_read_b128 {vr(Rb, 4)}, v{vE0 + 4}')
    a(f'ds_read_b128 {vr(Rb + 4, 4)}, v{vE0 + 4} offset:768')
    a('s_waitcnt lgkmcnt(1)')
    a(f'global_store_dwordx4 v{vP48}, {vr(Rb, 4)}, {sr(sBa)} sc1')
    a('s_waitcnt lgkmcnt(0)')
    a(f'global_store_dwordx4 v{vP48}, {vr(Rb + 4, 4)}, {sr(sBa)} offset:768 sc1')
    a('s_mov_b64 exec, -1')
    stamp('T2 stored')
    vGA, vVV, vGC, vGS = vVec, vVec + 10, vVec + 20, vVec + 30
    a(f'''
    v_add_u32 v{vE0 + 5}, {MODB_L}, v{vE0}
    v_add_u32 v{vE0 + 6}, {MODB_L + 4}, v{vE0}
    v_add_u32 v{vE0 + 7}, {WR_L}, v{vL4}
    ''')
    read_tmajor(vGA, vE0 + 5, 0)
    read_tmajor(vGS, vE0 + 5, 2560)
    a('s_waitcnt lgkmcnt(0)')
    read_tmajor(vGC, vE0 + 5, 5120)
    read_tmajor(RD, vE0 + 5, 7680)
    a(f'ds_read2st64_b32 {vr(Rc, 2)}, v{vE0 + 7} offset0:0 offset1:1')
    a(f'ds_read2st64_b32 {vr(Rc + 2, 2)}, v{vE0 + 7} offset0:2 offset1:3')
    a(f'ds_read_b32 v{Rc + 4}, v{vE0 + 7} offset:1024')
    a('s_waitcnt lgkmcnt(0)')
    for q in range(4):
        tab_read(vTW + 4 * q, T_TW3 + q)
    for q in range(3):
        tab_read(vF20 + 4 * q, T_F20I + q)
    for j in range(5):
        unpack(vVV + tm(j, 0), vVV + tm(j, 1), Rc + j)
    dot10(RD + 10, vVV, vGS)
    for h in range(0, 10, 2):
        a(f'v_pk_mul_f32 {vr(vVV + h, 2)}, {vr(vVV + h, 2)}, {vr(vGC + h, 2)}')
    sum10(RD + 12, vVV)
    a(f'v_mov_b32 v{RD + 14}, s{sM1B}')
    for h in range(0, 10, 2):
        a(f'v_pk_mul_f32 {vr(vGC + h, 2)}, {vr(vGC + h, 2)}, {vr(RD + h, 2)}')
        a(f'v_pk_fma_f32 {vr(vGS + h, 2)}, {vr(vGS + h, 2)}, {vr(RD + h, 2)}, {vr(RD + 14, 2)} op_sel:[0,0,0] op_sel_hi:[1,1,0]')
    wave_sum([RD + 12, RD + 10], [sV1, sV2])
    for k in range(8):
        a(f'v_mov_b32 v{Ra + k}, 0')
    a(f'''
    v_lshrrev_b32 v36, 4, v{vL}
    v_mul_u32_u24 v36, 4640, v36
    v_and_b32 v37, 3, v{vL}
    v_mul_u32_u24 v37, 576, v37
    v_and_b32 v38, 4, v{vL}
    v_lshl_add_u32 v36, v38, 2, v36
    v_bfe_u32 v38, v{vL}, 3, 1
    v_lshl_add_u32 v37, v38, 2, v37
    s_lshr_b32 s{sU2}, s{sW}, 1
    s_lshl_b32 s{sU2}, s{sU2}, 5
    s_and_b32 s{sT}, s{sW}, 1
    s_lshl_b32 s{sT}, s{sT}, 3
    s_add_u32 s{sU2}, s{sU2}, s{sT}
    s_add_u32 s{sU2}, s{sU2}, {XB3}
    v_add3_u32 v{vE0 + 1}, v36, v37, s{sU2}
    v_add_u32 v{vE0 + 2}, 2320, v{vE0 + 1}
    v_and_b32 v36, 15, v{vL}
    v_mul_u32_u24 v36, 144, v36
    v_and_b32 v37, 48, v{vL}
    v_lshl_add_u32 v36, v37, 1, v36
    s_mul_i32 s{sU2}, s{sW}, 2320
    s_add_u32 s{sU2}, s{sU2}, {XB3}
    v_add_u32 v{vE0 + 3}, s{sU2}, v36
    ''')
    base_add(sBa, WS, sU1, T2_G)
    base_add(sBb, WS, sU1, T2_G + 16 * 12288)
    base_add(sXrow, OUTP, sRow)
    a('s_waitcnt vmcnt(0) lgkmcnt(0)')
    poll([f'global_load_dwordx4 {vr(Ra, 4)}, v{vPoll}, {sr(sBa)} sc1', f'global_load_dwordx4 {vr(Ra + 4, 4)}, v{vPoll}, {sr(sBb)} sc1'],
         list(range(Ra, Ra + 8)), [Rb, Rb + 1], mask=sr(sM7))
    stamp('T2 in')
    for n in range(4):
        a(f'v_pk_mov_b32 {vr(Rb + 2 * n, 2)}, {vr(Ra + (n & 2), 2)}, {vr(Ra + 4 + (n & 2), 2)} op_sel:[{n & 1},{n & 1}]')
    for n in range(4):
        mfma16(RD + 4 * n, vM8I, Rb + 2 * n)
    for jj in range(2):
        for n in range(4):
            a(f'v_cvt_pk_bf16_f32 v{Ra + 4 * jj + n}, v{RD + 4 * n + 2 * jj + 1}, v{RD + 4 * n + 2 * jj}')
        for n in (0, 2):
            a(f'ds_write2_b32 v{vE0 + 1 + jj}, v{Ra + 4 * jj + n}, v{Ra + 4 * jj + n + 1} offset0:{36 * n} offset1:{36 * n + 36}')
    a('s_waitcnt lgkmcnt(0)')
    a('s_barrier                                   ; B6')
    a(f'ds_read_b128 {vr(Rb, 4)}, v{vE0 + 3}')
    a(f'ds_read_b128 {vr(Rb + 4, 4)}, v{vE0 + 3} offset:16')
    for ks in range(2):
        a(f's_waitcnt lgkmcnt({1 - ks})')
        for t in range(2):
            for e in range(2):
                d = RD + 8 * t + 4 * e
                mfma32(d, Rb + 4 * ks, vF32 + 16 * t + 8 * (1 - e) + 4 * ks, d if ks else None)
    for t, tmp in ((0, Ra), (1, Rc)):
        cmul(tmp, tmp + 4, RD + 8 * t, RD + 8 * t + 4, vTW + 8 * t, vTW + 8 * t + 4, +1)
        pack4(Rb + 4 * t, tmp, tmp + 4)
    Y = RD
    mfma32(Y, vF20, Rb)
    mfma32(Y + 8, vF20 + 4, Rb)
    mfma32(Y + 4, vF20, Rb + 4)
    mfma32(Y + 8, vF20 + 8, Rb + 4, Y + 8)
    for h in range(0, 10, 2):
        a(f'v_pk_fma_f32 {vr(Y + h, 2)}, {vr(Y + h, 2)}, {vr(vGA + h, 2)}, {vr(vXS + h, 2)}')
    s1, s2, s3 = Ra, Ra + 2, Ra + 4
    a(f'v_pk_add_f32 {vr(s1, 2)}, {vr(Y, 2)}, {vr(Y + 2, 2)}')
    a(f'v_pk_mul_f32 {vr(s2, 2)}, {vr(Y, 2)}, {vr(Y, 2)}')
    a(f'v_pk_mul_f32 {vr(s3, 2)}, {vr(Y, 2)}, {vr(vVV, 2)}')
    for h in (2, 4, 6, 8):
        if h > 2:
            a(f'v_pk_add_f32 {vr(s1, 2)}, {vr(s1, 2)}, {vr(Y + h, 2)}')
        a(f'v_pk_fma_f32 {vr(s2, 2)}, {vr(Y + h, 2)}, {vr(Y + h, 2)}, {vr(s2, 2)}')
        a(f'v_pk_fma_f32 {vr(s3, 2)}, {vr(Y + h, 2)}, {vr(vVV + h, 2)}, {vr(s3, 2)}')
    for s in (s1, s2, s3):
        a(f'v_add_f32 v{s}, v{s}, v{s + 1}')
    wave_sum([s1, s2, s3], [sU0, sU2, sU3])
    k0 = Rc
    a(f'''
    v_mov_b32 v{Ra}, {INV640}
    v_mul_f32 v{Ra + 1}, s{sU0}, v{Ra}            ; mu
    v_mul_f32 v{Ra + 2}, v{Ra + 1}, v{Ra + 1}
    v_add_f32 v{Ra + 3}, s{sM1B}, v{Ra + 1}
    v_fma_f32 v{Ra + 2}, s{sU2}, v{Ra}, -v{Ra + 2} ; var
    ''')
    rbf(Ra + 3, f'v{Ra + 3}')
    rstd_chain(Ra + 2, k0)
    a(f'''
    v_sub_f32 v{Ra + 3}, s{sM1B}, v{Ra + 3}       ; -delta
    v_mov_b32 v{Ra + 4}, s{sU3}
    v_fma_f32 v{Ra + 4}, v{Ra + 3}, s{sV1}, v{Ra + 4}
    v_fma_f32 v{Ra + 4}, v{Ra + 4}, v{k0}, s{sV2} ; r
    v_mul_f32 v{k0 + 1}, v{Ra + 3}, v{k0}
    v_ashrrev_i32 v{Ra + 5}, 31, v{Ra + 4}
    v_or_b32 v{Ra + 5}, 0x80000000, v{Ra + 5}
    v_xor_b32 v{Ra + 4}, v{Ra + 4}, v{Ra + 5}
    v_and_b32 v{Ra + 4}, 0xfffff800, v{Ra + 4}
    v_or_b32 v{Ra + 4}, s{sKey}, v{Ra + 4}
    v_mov_b32 v{Ra + 5}, {KEYL}
    s_mov_b64 exec, 1
    ds_max_u32 v{Ra + 5}, v{Ra + 4}
    s_mov_b64 exec, -1
    v_readfirstlane_b32 s{sKey}, v{Ra + 4}
    ''')
    ZN = vGA
    for h in range(0, 10, 2):
        a(f'v_pk_fma_f32 {vr(ZN + h, 2)}, {vr(Y + h, 2)}, {vr(k0, 2)}, {vr(k0, 2)} op_sel:[0,0,1] op_sel_hi:[1,0,1]')
        a(f'v_pk_add_f32 {vr(Y + h, 2)}, {vr(Y + h, 2)}, {vr(vGS + h, 2)}')
    for h in range(0, 10, 2):
        a(f'v_pk_fma_f32 {vr(Y + h, 2)}, {vr(ZN + h, 2)}, {vr(vGC + h, 2)}, {vr(Y + h, 2)}')
    vO = vXS
    for j in range(5):
        a(f'v_cvt_pk_bf16_f32 v{vO + j}, v{Y + tm(j, 0)}, v{Y + tm(j, 1)}')
    a(f's_mul_i32 s{sU0}, s{sMe}, {REC_STRIDE}')
    base_add(sBa, WS, sU0, REC_G)
    a('s_waitcnt lgkmcnt(0)')
    a('s_barrier                                   ; B7')
    a(f'''
    ds_read_b32 v{Ra + 6}, v{Ra + 5}
    s_waitcnt lgkmcnt(0)
    v_readfirstlane_b32 s{sU0}, v{Ra + 6}
    s_cmp_eq_u32 s{sU0}, s{sKey}
    s_cselect_b32 s{sCand}, 1, 0
    s_cbranch_scc1 L_cand
    ''')
    for j in range(5):
        a(f'global_store_dword v{vL4}, v{vO + j}, {sr(sXrow)} offset:{256 * j}')
    a('s_branch L_keys')
    a.label('L_cand')
    a(f'''
    s_mov_b64 exec, 1
    global_store_dword v{vL4}, v{Ra + 4}, {sr(sBa)} sc1
    s_mov_b64 exec, -1
    ''')
    read_tmajor(vVV, vE0 + 5, 2560)
    read_tmajor(vGC, vE0 + 5, 5120)
    a(f'v_add_u32 v{Ra}, {REC_BASE}, v{vL16}')
    a(f'v_add_u32 v{Ra + 1}, {REC_BASE}, v{vE0}')
    a('s_waitcnt lgkmcnt(0)')
    H = vGS + 2
    H = vGS
    for h in range(0, 10, 2):
        a(f'v_pk_fma_f32 {vr(H + h, 2)}, {vr(ZN + h, 2)}, {vr(vGC + h, 2)}, {vr(vVV + h, 2)}')
    a(f'''
    global_store_dwordx4 v{vL16}, {vr(H, 4)}, {sr(sBa)} offset:{REC_H2} sc1
    global_store_dwordx4 v{vL16}, {vr(H + 4, 4)}, {sr(sBa)} offset:{REC_H2 + 1024} sc1
    global_store_dwordx2 v{vE0}, {vr(H + 8, 2)}, {sr(sBa)} offset:{REC_H2 + 2048} sc1
    global_store_dwordx4 v{Ra}, {vr(Y, 4)}, {sr(sBa)} sc1
    global_store_dwordx4 v{Ra}, {vr(Y + 4, 4)}, {sr(sBa)} offset:1024 sc1
    global_store_dwordx2 v{Ra + 1}, {vr(Y + 8, 2)}, {sr(sBa)} offset:2048 sc1
    ''')
    a.label('L_keys')
    stamp('key out')
    vEW, vFW = 60, 100
    a(f'''
    s_cmp_lt_u32 s{sIdx}, 20
    s_cbranch_scc1 L_no_ew
    s_mul_i32 s{sT}, s{sW}, 5120
    s_add_u32 s{sT}, s{sT}, {EW}
    v_add_u32 v{Rb}, s{sT}, v{vL16}
    s_lshl_b32 s{sT}, s{sW}, 8
    s_add_u32 s{sT}, s{sT}, {FW}
    v_add_u32 v{Rb + 1}, s{sT}, v{vL4}
    ''')
    st = 132
    for j in range(5):
        a(f'ds_read_b128 {vr(st + 4 * j, 4)}, v{Rb} offset:{1024 * j}')
    a('s_waitcnt lgkmcnt(0)')
    for k in range(20):
        unpack(vEW + 2 * k, vEW + 2 * k + 1, st + k)
    a(f's_cmp_ge_u32 s{sW}, 5')
    a('s_cbranch_scc1 L_no_ew')
    for u in range(0, 16, 2):
        a(f'ds_read2st64_b32 {vr(st + u, 2)}, v{Rb + 1} offset0:{5 * u} offset1:{5 * u + 5}')
    a('s_waitcnt lgkmcnt(0)')
    for k in range(16):
        unpack(vFW + 2 * k, vFW + 2 * k + 1, st + k)
    a.label('L_no_ew')
    a(f'''
    v_mov_b32 v{Rb + 2}, {KEYL + 4}
    s_cmp_ge_u32 s{sW}, 4
    s_cbranch_scc1 L_b8
    v_mul_u32_u24 v{Rb}, {REC_STRIDE}, v0
    v_add_u32 v{Rb}, {REC_G}, v{Rb}
    ''')
    poll([f'global_load_dword v{Rb + 1}, v{Rb}, {sr(WS)} sc1'], [Rb + 1], [])
    for c in ('row_ror:8', 'row_ror:4', 'row_ror:2', 'row_ror:1'):
        dpp('v_max_u32', Rb + 1, c)
    a(f'''
    s_mov_b32 exec_lo, 0x00010001
    s_mov_b32 exec_hi, 0x00010001
    ds_max_u32 v{Rb + 2}, v{Rb + 1}
    s_mov_b64 exec, -1
    s_waitcnt lgkmcnt(0)
    ''')
    a.label('L_b8')
    a('s_barrier                                   ; B8')
    a(f'''
    ds_read_b32 v{Rb + 3}, v{Rb + 2}
    s_waitcnt lgkmcnt(0)
    v_readfirstlane_b32 s{sU0}, v{Rb + 3}
    s_and_b32 s{sU1}, s{sU0}, 255
    s_mul_i32 s{sU1}, s{sU1}, {REC_STRIDE}
    ''')
    base_add(sBa, WS, sU1, REC_G)
    stamp('B8 done (winner)')
    a(f'''
    s_cmp_ge_u32 s{sIdx}, 20
    s_cbranch_scc1 L_do_e
    ''')
    def deferred(lbl):
        a(f'''
        s_cmp_eq_u32 s{sCand}, 0
        s_cbranch_scc1 {lbl}
        s_cmp_eq_u32 s{sU0}, s{sKey}
        s_cbranch_scc1 {lbl}
        ''')
        for j in range(5):
            a(f'global_store_dword v{vL4}, v{vO + j}, {sr(sXrow)} offset:{256 * j}')
        a.label(lbl)
    deferred('L_def1')
    a(f'''
    s_cmp_ge_u32 s{sIdx}, 10
    s_cbranch_scc1 L_fin
    s_cmp_lg_u32 s{sW}, 0
    s_cbranch_scc1 L_fin
    s_mul_i32 s{sU2}, s{sX}, 10
    s_add_u32 s{sU2}, s{sU2}, s{sIdx}              ; f
    ''')
    a(f'''
    v_and_b32 v20, 1, v{vL}
    v_lshrrev_b32 v21, 4, v{vL}
    v_lshl_add_u32 v20, v20, 2, v21
    s_lshl_b32 s{sT}, s{sU2}, 3
    v_add_u32 v20, s{sT}, v20                      ; d
    v_lshlrev_b32 v21, 2, v20
    v_add_u32 v21, {MODB_L + 7680}, v21
    ds_read_b32 v22, v21                           ; gb[d]
    v_lshrrev_b32 v23, 7, v20                      ; j
    v_bfe_u32 v24, v20, 1, 6                       ; lane'
    v_and_b32 v25, 1, v20                          ; t
    v_lshlrev_b32 v26, 10, v25
    v_lshl_add_u32 v26, v24, 4, v26
    v_lshl_add_u32 v26, v23, 2, v26                ; j<4: t*1024 + lane'*16 + j*4
    v_lshlrev_b32 v27, 2, v25
    v_lshl_add_u32 v27, v24, 3, v27
    v_add_u32 v27, 2048, v27                       ; j==4
    v_cmp_eq_u32 vcc, 4, v23
    v_cndmask_b32 v26, v26, v27, vcc
    v_add_u32 v26, {REC_BASE}, v26
    ''')
    poll([f'global_load_dword v27, v26, {sr(sBa)} sc1'], [27], [])
    a(f'''
    s_and_b32 s{sU1}, s{sU0}, 0xfffff800
    s_or_b32 s{sU1}, s{sU1}, 0x400
    s_xor_b32 s{sU3}, s{sU1}, 0x80000000
    s_not_b32 s{sT}, s{sU1}
    s_cmp_lt_i32 s{sU1}, 0
    s_cselect_b32 s{sU1}, s{sU3}, s{sT}
    v_mov_b32 v28, s{sU1}
    ''')
    rbf(28, 'v28')
    a(f'''
    v_mul_f32 v28, 0xbfb8aa3b, v28
    v_exp_f32 v28, v28
    v_add_f32 v28, 1.0, v28
    v_rcp_f32 v28, v28
    ''')
    rbf(28, 'v28')
    a(f'''
    s_and_b32 s{sU1}, s{sU0}, 0x7ff
    s_mul_i32 s{sU1}, s{sU1}, 1280
    v_lshlrev_b32 v20, 1, v20
    v_lshrrev_b32 v29, 1, v{vL}
    v_mul_u32_u24 v29, {PY_STRIDE}, v29
    v_and_b32 v30, 16, v{vL16}
    v_add_u32 v29, v29, v30
    v_add_u32 v30, {32 * PY_STRIDE}, v29
    v_add_u32 v31, {64 * PY_STRIDE}, v29
    s_lshl_b32 s{sU2}, s{sU2}, 5
    ''')
    base_add(sXrow, OUTP, sU1)
    base_add(sBb, WS, sU2, PY_G)
    a('s_waitcnt lgkmcnt(0)')
    poll([f'global_load_dwordx4 {vr(36 + 4 * n, 4)}, v{29 + n}, {sr(sBb)} sc1' for n in range(3)],
         list(range(36, 48)), [48, 49, 50, 51])
    a(f'''
    v_pk_add_f32 v[36:37], v[36:37], v[40:41]
    v_pk_add_f32 v[38:39], v[38:39], v[42:43]
    v_pk_add_f32 v[36:37], v[36:37], v[44:45]
    v_pk_add_f32 v[38:39], v[38:39], v[46:47]
    v_permlane32_swap_b32 v36, v38
    v_permlane32_swap_b32 v37, v39
    v_pk_add_f32 v[36:37], v[36:37], v[38:39]
    v_permlane16_swap_b32 v36, v37
    v_add_f32 v36, v36, v37
    ''')
    for c in ('row_ror:8', 'row_ror:4', 'row_ror:2'):
        dpp('v_add_f32', 36, c)
    rbf(36, 'v36')
    a(f'''
    v_mul_f32 v36, v36, v28
    v_fma_f32 v36, v36, v22, v27
    v_cvt_pk_bf16_f32 v36, v36, v36
    s_mov_b32 exec_lo, 0x00030003
    s_mov_b32 exec_hi, 0x00030003
    global_store_short v20, v36, {sr(sXrow)} sc1
    s_mov_b64 exec, -1
    s_branch L_fin
    ''')
    a.label('L_do_e')
    a(f'''
    v_bfe_u32 v30, v0, 2, 6                        ; lane' = (t'>>1)>>1
    v_bfe_u32 v31, v0, 1, 1                        ; t
    v_lshlrev_b32 v28, 4, v30
    v_lshl_add_u32 v28, v31, 10, v28
    v_lshlrev_b32 v29, 3, v30
    v_lshl_add_u32 v29, v31, 2, v29
    ''')
    poll([f'global_load_dwordx4 v[20:23], v28, {sr(sBa)} offset:{REC_H2} sc1',
          f'global_load_dword v24, v29, {sr(sBa)} offset:{REC_H2 + 2048} sc1'], list(range(20, 25)), [26])
    acc = 36
    for j in range(5):
        for k in range(4):
            w_ = vr(vEW + 8 * j + 2 * k, 2)
            x_ = vr(20 + (j & ~1), 2)
            if j == 0:
                a(f'v_pk_mul_f32 {vr(acc + 2 * k, 2)}, {w_}, {x_} op_sel:[0,0] op_sel_hi:[1,0]')
            else:
                a(f'v_pk_fma_f32 {vr(acc + 2 * k, 2)}, {w_}, {x_}, {vr(acc + 2 * k, 2)} {BC1 if j & 1 else BC0}')
    a(f'''
    v_and_b32 v28, 1, v{vL}
    v_lshlrev_b32 v28, 7, v28
    v_and_b32 v29, 48, v{vL}
    v_lshl_add_u32 v28, v29, 1, v28
    s_lshr_b32 s{sU1}, s{sW}, 2
    s_lshl_b32 s{sU1}, s{sU1}, 8
    s_and_b32 s{sT}, s{sW}, 3
    s_lshl_b32 s{sT}, s{sT}, 2
    s_add_u32 s{sU1}, s{sU1}, s{sT}
    s_add_u32 s{sU1}, s{sU1}, {RED}
    v_add_u32 v28, s{sU1}, v28
    v_and_b32 v29, 0xf0, v{vL16}
    ''')
    swap_reduce8(acc)
    for c in ('row_ror:8', 'row_ror:4', 'row_ror:2'):
        dpp('v_add_f32', acc, c)
        dpp('v_add_f32', acc + 1, c)
    a(f'''
    s_mov_b32 exec_lo, 0x00030003
    s_mov_b32 exec_hi, 0x00030003
    ds_write2_b32 v28, v{acc}, v{acc + 1} offset0:0 offset1:4
    s_mov_b64 exec, -1
    s_mul_i32 s{sU1}, s{sX}, 12
    s_add_u32 s{sU1}, s{sU1}, s{sIdx}
    s_mul_i32 s{sU1}, s{sU1}, {PY_STRIDE}
    s_lshl_b32 s{sT}, s{sW}, 9
    s_add_u32 s{sU1}, s{sU1}, s{sT}
    ''')
    base_add(sBb, WS, sU1, (PY_G - 20 * PY_STRIDE) & 0xffffffff)
    a(f'''
    s_waitcnt lgkmcnt(0)
    s_barrier                                   ; B9
    s_cmp_ge_u32 s{sW}, 5
    s_cbranch_scc1 L_e_done
    ds_read_b128 v[20:23], v29 offset:{RED}
    ds_read_b128 v[24:27], v29 offset:{RED + 256}
    s_waitcnt lgkmcnt(0)
    v_pk_add_f32 v[20:21], v[20:21], v[22:23]
    v_pk_add_f32 v[24:25], v[24:25], v[26:27]
    v_add_f32 v20, v20, v21
    v_add_f32 v24, v24, v25
    v_cvt_pk_bf16_f32 v24, v20, v24
    ''')
    unpack(20, 24, 24)
    silu([20], [20], [21])
    rbf(20, 'v20')
    a('v_mul_f32 v20, v20, v24')
    rbf(20, 'v20')
    for u in range(16):
        a(f'v_readlane_b32 s{sGU + u}, v20, {u}')
    for u in range(16):
        w_ = vr(vFW + 2 * u, 2)
        g_ = sr(sGU + (u & ~1))
        d_ = vr(36 + 2 * (u & 1), 2)
        if u < 2:
            a(f'v_pk_mul_f32 {d_}, {w_}, {g_} op_sel:[0,{u & 1}] op_sel_hi:[1,{u & 1}]')
        else:
            a(f'v_pk_fma_f32 {d_}, {w_}, {g_}, {d_} {BC1 if u & 1 else BC0}')
    a('v_pk_add_f32 v[36:37], v[36:37], v[38:39]')
    a(f'global_store_dwordx2 v{vE0}, v[36:37], {sr(sBb)} sc1')
    a.label('L_e_done')
    deferred('L_def2')
    a.label('L_fin')
    stamp('end')
    dump_stamps()
    a.label('L_end')
    a('s_endpgm')


def fill(base, n_full, voff=vL16, tmp=24):
    cur = voff
    for n in range(n_full):
        if n and n % 4 == 0:
            a(f'v_add_u32 v{tmp}, {1024 * n}, v{voff}')
            cur = tmp
        a(f'global_store_dwordx4 v{cur}, v[20:23], {sr(base)} offset:{1024 * (n % 4)} sc1')


def helper0():
    a.label('L_h0')
    for k in range(4):
        a(f'v_mov_b32 v{20 + k}, -1')
    a(f'''
    v_mov_b32 v26, 0
    v_mov_b32 v27, 0
    v_mov_b32 v28, {KEYL}
    ds_write_b64 v28, v[26:27]
    s_mul_i32 s{sU0}, s{sMe}, 12288
    s_cmp_lg_u32 s2, 0
    s_waitcnt lgkmcnt(0)
    s_cbranch_scc1 L_h0_a
    ''')
    fill(WS, 11)
    a.label('L_h0_a')
    stamp('kernarg', 'H0')
    base_add(sBa, WS, sU0, T1_G)
    fill(sBa, 12)
    a(f'''
    s_cmp_lg_u32 s2, 0
    s_cbranch_scc1 L_h0_b
    s_waitcnt vmcnt(12)
    s_mov_b64 exec, 1
    global_store_dword v26, v20, {sr(DBG)} sc1
    s_mov_b64 exec, -1
    ''')
    a.label('L_h0_b')
    a(f'''
    s_sub_u32 s{sT}, s{sIdx}, 10
    s_cmp_lt_u32 s{sT}, 10
    s_cbranch_scc0 L_h0_c
    s_mul_i32 s{sU1}, s{sX}, 10
    s_add_u32 s{sU1}, s{sU1}, s{sT}
    s_lshl_b32 s{sU1}, s{sU1}, 7
    ''')
    base_add(sBb, WS, sU1, MODB_G)
    a(f'''
    s_mov_b64 exec, 0xff
    global_store_dwordx4 v{vL16}, v[20:23], {sr(sBb)} sc1
    s_mov_b64 exec, -1
    ''')
    a.label('L_h0_c')
    stamp('fill issued', 'H0')
    if DIAG:
        a('s_waitcnt vmcnt(0)')
    stamp('fill drained', 'H0')
    poll([f'global_load_dword v25, v26, {sr(DBG)} sc1'], [25], [], mask='1', zero_is_empty=True)
    stamp('boot seen', 'H0')
    a(f'''
    s_lshl_b32 s{sU1}, s{sMe}, 2
    s_add_u32 s{sU1}, s{sU1}, {FLAG_G}
    v_mov_b32 v25, s{sU1}
    s_mov_b64 exec, 1
    global_store_dword v25, v26, {sr(WS)} sc1
    s_mov_b64 exec, -1
    s_barrier                                   ; B1
    ''')
    base_add(sBa, WS, sU0, T2_G)
    fill(sBa, 12)
    a(f's_mul_i32 s{sU1}, s{sMe}, {REC_STRIDE}')
    base_add(sBa, WS, sU1, REC_G)
    fill(sBa, 6)
    a(f'''
    s_cmp_lt_u32 s{sIdx}, 20
    s_cbranch_scc1 L_h0_d
    s_mul_i32 s{sU1}, s{sX}, 12
    s_add_u32 s{sU1}, s{sU1}, s{sIdx}
    s_mul_i32 s{sU1}, s{sU1}, {PY_STRIDE}
    ''')
    base_add(sBa, WS, sU1, (PY_G - 20 * PY_STRIDE) & 0xffffffff)
    fill(sBa, 2)
    a(f'''
    s_mov_b32 exec_hi, 0
    global_store_dwordx4 v{vL16}, v[20:23], {sr(sBa)} offset:2048 sc1
    s_mov_b64 exec, -1
    ''')
    a.label('L_h0_d')
    a(f'''
    s_barrier                                   ; B2
    s_waitcnt vmcnt(0)
    ''')
    stamp('fill2 drained', 'H0')
    a(f'''
    s_barrier                                   ; B3
    v_add_u32 v24, {MODB_G}, v{vL16}
    v_add_u32 v25, {MODB_G + 4096}, v{vL16}
    v_add_u32 v26, {MODB_G + 8192}, v{vL16}
    v_add_u32 v27, {MODB_L}, v{vL16}
    ''')
    poll([f'global_load_dwordx4 {vr(40 + 4 * n, 4)}, v{24 + n // 4}, {sr(WS)} offset:{1024 * (n % 4)} sc1' for n in range(10)],
         list(range(40, 80)), list(range(28, 40)))
    for n in range(10):
        a(f'ds_write_b128 v27, {vr(40 + 4 * n, 4)} offset:{1024 * n}')
    a('s_waitcnt lgkmcnt(0)')
    stamp('modb in', 'H0')
    dump_stamps('H0')
    a('s_endpgm')


def helper1():
    a.label('L_h1')
    a(f'''
    s_getpc_b64 {sr(sBa)}
    L_pc:
    s_add_u32 s{sBb}, s{sBa}, L_tables-L_pc
    s_addc_u32 s{sBb + 1}, s{sBa + 1}, 0
    s_sub_u32 s{sBa}, s{sBa}, L_pc-{NAME}_kernel
    s_subb_u32 s{sBa + 1}, s{sBa + 1}, 0
    v_lshlrev_b32 v20, 7, v{vL}
    global_load_dword v21, v20, {sr(sBa)}
    v_add_u32 v20, 8192, v20
    global_load_dword v22, v20, {sr(sBa)}
    v_mov_b32 v20, v{vL16}
    ''')
    for q in range(NTAB):
        if q % 4 == 0:
            a(f's_mov_b32 m0, {TAB + q * 1024}')
            if q:
                a(f'v_add_u32 v20, 4096, v20')
        a(f'global_load_lds_dwordx4 v20, {sr(sBb)} offset:{1024 * (q % 4)}')
    a(f'''
    s_and_b32 s{sU1}, s{sIdx}, 3
    s_lshl_b32 s{sT}, s{sX}, 2
    s_add_u32 s{sU1}, s{sU1}, s{sT}
    s_mul_i32 s{sU1}, s{sU1}, 40
    s_sub_u32 s{sT}, 1260, s{sU1}
    s_cmp_ge_u32 s{sX}, 4
    s_cselect_b32 s{sU1}, s{sT}, s{sU1}             ; 2*C0
    s_cselect_b32 s{sU2}, -1, 1                     ; direction
    s_lshr_b32 s{sU0}, s{sIdx}, 2                   ; q
    v_lshrrev_b32 v23, 1, v{vL}
    v_lshl_add_u32 v23, v23, 3, s{sU0}              ; q + 8*kappa (n = 0)
    v_mul_lo_u32 v23, v23, s{sU2}
    s_lshl_b32 s{sU2}, s{sU2}, 8
    v_and_b32 v24, 1, v{vL}
    v_mul_u32_u24 v24, 12, v24
    s_movk_i32 s{sU3}, 642
    s_waitcnt lgkmcnt(0)
    ''')
    for n in range(8):
        a(f'''
        v_and_b32 v25, 0x7ff, v23
        v_mov_b32 v26, s{sU1}
        v_mad_u32_u24 v25, v25, s{sU3}, v26
        v_and_b32 v25, -4, v25
        v_add_u32 v25, v25, v24
        s_mov_b32 m0, {WST + n * 1024}
        v_add_u32 v23, s{sU2}, v23
        global_load_lds_dwordx3 v25, {sr(W_R)}
        s_mov_b32 m0, {WST + 8192 + n * 1024}
        s_nop 0
        global_load_lds_dwordx3 v25, {sr(W_I)}
        ''')
    a(f'''
    s_mov_b32 m0, {WR_L}
    s_nop 0
    global_load_lds_dwordx4 v{vL16}, {sr(B_WR)}
    s_mov_b64 exec, 0xffff
    global_load_lds_dwordx4 v{vL16}, {sr(B_WR)} offset:1024
    s_mov_b64 exec, -1
    ''')
    stamp('issued', 'H1')
    if DIAG:
        a(f's_waitcnt vmcnt({NTAB + 16 + 2})')
    stamp('code in', 'H1')
    a(f's_waitcnt vmcnt({NTAB - 14 + 16 + 2})')
    stamp('tab in', 'H1')
    a('s_barrier                                   ; B1')
    if DIAG:
        a('s_waitcnt vmcnt(0)')
    stamp('W in', 'H1')
    a(f'''
    s_barrier                                   ; B2
    s_waitcnt vmcnt(0)
    s_cmp_lt_u32 s{sIdx}, 20
    s_cbranch_scc1 L_h1_end
    s_barrier                                   ; B3
    s_barrier                                   ; B4
    s_mul_i32 s{sU1}, s{sX}, 12
    s_add_u32 s{sU1}, s{sU1}, s{sIdx}
    s_sub_u32 s{sU1}, s{sU1}, 20
    s_mul_i32 s{sU1}, s{sU1}, 20480
    v_mov_b32 v20, v{vL16}
    ''')
    base_add(sBa, W_D, sU1)
    for n in range(20):
        if n % 4 == 0:
            a(f's_mov_b32 m0, {FW + n * 1024}')
            if n:
                a(f'v_add_u32 v20, 4096, v20')
        a(f'global_load_lds_dwordx4 v20, {sr(sBa)} offset:{1024 * (n % 4)}')
    a(f'''
    s_barrier                                   ; B5
    s_waitcnt vmcnt(0)
    ''')
    a.label('L_h1_end')
    stamp('end', 'H1')
    dump_stamps('H1')
    a('s_endpgm')


prologue()
main_path()
helper0()
helper1()
body = a.finish()

hdr = open(f'cdna_kernels/{NAME}.s.ref').read().split('; Override launch')[0]
T = tables()
tab = []
flat = T.reshape(-1)
for k in range(0, flat.size, 8):
    tab.append('.long ' + ','.join('0x%08x' % v for v in flat[k:k + 8]))

src = hdr + f'''; @launch grid=(256,1,1) block=(640,1,1) lds={LDS_BYTES}
.amdgcn_target "amdgcn-amd-amdhsa--gfx950"
.text
.globl {NAME}_kernel
.p2align 8
.type {NAME}_kernel,@function
{NAME}_kernel:
{body}
.p2align 8
.type L_tables,@object
L_tables:
''' + '\n'.join(tab) + f'''
.size L_tables, {NTAB * 1024}
.section .rodata,"a"
.p2align 6
.amdhsa_kernel {NAME}_kernel
  .amdhsa_next_free_vgpr 168
  .amdhsa_next_free_sgpr 102
  .amdhsa_accum_offset 168
  .amdhsa_group_segment_fixed_size 0
  .amdhsa_kernarg_size 104
  .amdhsa_user_sgpr_count 2
  .amdhsa_user_sgpr_kernarg_segment_ptr 1
  .amdhsa_system_sgpr_workgroup_id_x 1
.end_amdhsa_kernel
'''
open(OUT, 'w').write(src)
print('wrote', OUT, 'lds', LDS_BYTES, 'lines', len(a.lines), 'nops', a.nnops)
```

```python
import sys, struct
import numpy as np
from asmdsl import Asm

NAME = 'adaLN_cond__spectral_gfnet__moe_arch_mod__prompt'
DIAG = '--diag' in sys.argv or '--dbgdiag' in sys.argv
DBGDIAG = '--dbgdiag' in sys.argv
OUT = [a for a in sys.argv[1:] if not a.startswith('--')]
OUT = OUT[0] if OUT else f'cdna_kernels/{NAME}.s'
SPIN = 60000


def opt(name, default):
    for x in sys.argv:
        if x.startswith(f'--{name}='):
            return x.split('=', 1)[1]
    return default


WARMPOL = opt('warm', 'both')
S_BLOAD = int(opt('bload', 0))
S_FILL1 = int(opt('fill1', -1))
S_FILL2 = int(opt('fill2', -1))
S_WWARM = int(opt('wwarm', 1))
S_GUW = int(opt('guw', 1))
S_WD = int(opt('wd', 1))
S_EG = int(opt('eg', 3))
S_TAB2 = int(opt('tab2', 1))

MODA_G = 0
MODB_G = 20480
EPOCH_G = 40960
PY_G = 65536
PY_STRIDE = 2688
REC_G = 0x80000
REC_STRIDE = 8320
REC_H2 = 128
REC_BASE = 128 + 4096
T1_G = 0x400000
T2_G = 0x800000
DIAG_G = 0xC00000

NTAB = 25
TAB = 0
RED = TAB + NTAB * 1024
KEYL = RED + 2048
XB2 = KEYL + 64
XB1 = XB2 + 20480
XB3 = XB1
MODA_L = XB1 + 18560
MODB_L = MODA_L + 5120
WR_L = MODB_L + 5120
WST = WR_L + 2048
EW = WST + 16384
FW = EW + 40960
STL = FW + 20480
LDS_BYTES = STL + 256
assert LDS_BYTES <= 163840, LDS_BYTES

T_F20C, T_F20S, T_TW1, T_F32, T_F16, T_TW2, T_TW3, T_F20I = 0, 1, 2, 6, 14, 16, 18, 22


def f2u(x):
    return struct.unpack('<I', struct.pack('<f', float(x)))[0]


def bf(x):
    u = f2u(x)
    return ((u + 0x7FFF + ((u >> 16) & 1)) >> 16) & 0xFFFF


def pk(lo, hi):
    return bf(lo) | (bf(hi) << 16)


def cs(num, den):
    a = 2 * np.pi * (num % den) / den
    c, s = np.cos(a), np.sin(a)
    if abs(c) < 1e-12: c = 0.0
    if abs(s) < 1e-12: s = 0.0
    return c, s


def kaof(x):
    ka = 3 * (x >> 2) + (x & 3)
    return ka if (x & 3) < 3 and ka <= 10 else None


def tables():
    T = np.zeros((NTAB, 64, 4), np.uint32)
    for l in range(64):
        i, g = l & 15, l >> 4
        c8, s8 = [0.0] * 8, [0.0] * 8
        for j in range(5):
            if kaof(i) is not None:
                c, s = cs((4 * j + g) * kaof(i), 20)
                c8[j], s8[j] = c, -s
        for d in range(4):
            T[T_F20C, l, d] = pk(c8[2 * d], c8[2 * d + 1])
            T[T_F20S, l, d] = pk(s8[2 * d], s8[2 * d + 1])
        for t in range(2):
            for r in range(4):
                c, s = cs((8 * g + 2 * r + t) * (kaof(i) or 0), 640)
                T[T_TW1 + 2 * t, l, r] = f2u(c)
                T[T_TW1 + 2 * t + 1, l, r] = f2u(s)
                c, s = cs((2 * i + t) * (kaof(4 * g + r) or 0), 640)
                T[T_TW3 + 2 * t, l, r] = f2u(c)
                T[T_TW3 + 2 * t + 1, l, r] = f2u(s)
        for tile in range(2):
            for ks in range(2):
                for r in range(4):
                    c, s = cs((2 * i + tile) * (8 * g + 2 * r + ks), 32)
                    T[T_F32 + tile * 4 + 0 + ks, l, r] = pk(c, s)
                    T[T_F32 + tile * 4 + 2 + ks, l, r] = pk(-s, c)
        for r in range(4):
            c, s = cs(i * (4 * g + r), 16)
            T[T_F16, l, r] = pk(c, s)
            T[T_F16 + 1, l, r] = pk(-s, c)
            c, s = cs(i * (4 * g + r), 256)
            T[T_TW2, l, r] = f2u(c)
            T[T_TW2 + 1, l, r] = f2u(s)
            ka = kaof(4 * g + r)
            if ka is not None:
                a1 = 4 * (i & 3) + (i >> 2)
                c, s = cs(a1 * ka, 20)
                T[T_F20I, l, r] = pk(c, -s)
                c, s = cs((16 + (i >> 2)) * ka, 20)
                if (i & 3) == 0:
                    T[T_F20I + 1, l, r] = pk(c, -s)
                if (i & 3) == 1:
                    T[T_F20I + 2, l, r] = pk(c, -s)
    return T


def vr(a, n=1):
    return f'v{a}' if n == 1 else f'v[{a}:{a + n - 1}]'


def sr(a, n=2):
    return f's{a}' if n == 1 else f's[{a}:{a + n - 1}]'


sW, sX, sIdx, sMe, sT = 3, 4, 5, 6, 7
A_X, W_R, W_I, B_WR, W_G, W_U, W_D = 8, 10, 12, 16, 18, 20, 22
C_, W_MOD, OUTP, DBG, WS = 24, 26, 28, 30, 32
sBa, sBb, sBc = 34, 36, 38
sCnt = 40
sM1B = 41
sU0, sU1, sU2, sU3 = 42, 43, 46, 47
sM7 = 44
sRow = 48
sKey = 49
sV1, sV2 = 50, 51
sHI = 52
sCand = 53
sTag = 55
sRi = 54
sGU = 56
sXrow = 72
sTS = 74

vL, vL16, vL4, vS, vPoll = 1, 2, 3, 4, 5
vM8F, vM8I = 6, 8
vXS = 10
Ra, Rb, RD, Rc = 20, 28, 36, 52
vF32 = 60
vTW = 92
vF20 = 108
vVec = 120
vE0 = 160


a = Asm()
stamps = {}
NST = 24


def stamp(name, path='M', wait=True):
    if not DIAG:
        return
    lst = stamps.setdefault(path, [])
    if name not in lst:
        lst.append(name)
    k = lst.index(name)
    assert k < NST
    a(f's_memrealtime s[100:101]')
    a('s_waitcnt lgkmcnt(0)')
    a(f's_mov_b32 s{sTS + k}, s100')


def dump_stamps(path='M'):
    if not DIAG:
        return
    if DBGDIAG:
        if path != 'M':
            return
        a('v_mov_b32 v20, 0')
        a('s_mov_b64 exec, 1')
        a(f's_not_b32 s{sU0}, s{sTS}')
        a(f'v_mov_b32 v22, s{sU0}')
        a(f'global_atomic_umax v20, v22, {sr(DBG)} offset:4 sc1')
        ks = [0] + list(range(2, len(stamps['M'])))
        for n, k in enumerate(ks[:14]):
            a(f'v_mov_b32 v{23 + n}, s{sTS + k}')
            a(f'global_atomic_umax v20, v{23 + n}, {sr(DBG)} offset:{8 + 4 * n} sc1')
        print('dbg slots:', [(2 + n, stamps['M'][k]) for n, k in enumerate(ks[:14])])
        return
    if path != 'M':
        for k in range(NST):
            a(f'v_writelane_b32 v20, s{sTS + k}, {k}')
        a(f'v_lshlrev_b32 v21, 2, v{vL}')
        a(f'v_add_u32 v21, {STL + (128 if path == "H1" else 0)}, v21')
        a('s_mov_b32 exec_hi, 0')
        a('ds_write_b32 v21, v20')
        a('s_waitcnt lgkmcnt(0)')
        return
    a(f'''
    s_lshl_b32 s{sU0}, s2, 11
    v_add_u32 v21, {STL}, v{vL4}
    ds_read_b32 v22, v21
    ''')
    base_add(sBa, WS, sU0, DIAG_G + 1024)
    a('s_waitcnt lgkmcnt(0)')
    a(f'global_store_dword v{vL4}, v22, {sr(sBa)}')
    a(f'''
    s_lshl_b32 s{sU0}, s2, 11
    s_lshl_b32 s{sU1}, s{sW}, 7
    s_add_u32 s{sU0}, s{sU0}, s{sU1}
    s_memtime s[100:101]
    ''')
    base_add(sBa, WS, sU0, DIAG_G)
    a('v_mov_b32 v20, 0')
    a('s_mov_b64 exec, 1')
    for k in range(0, NST, 2):
        a(f'v_mov_b32 v22, s{sTS + k}')
        a(f'v_mov_b32 v23, s{sTS + k + 1}')
        a(f'global_store_dwordx2 v20, v[22:23], {sr(sBa)} offset:{4 * k}')
        a('s_nop 1')
    a('s_waitcnt lgkmcnt(0)')
    a('s_sub_u32 s100, s100, s98')
    a('v_mov_b32 v22, s100')
    a(f'global_store_dword v20, v22, {sr(sBa)} offset:112')
    a('s_getreg_b32 s42, hwreg(HW_REG_XCC_ID)')
    a('s_getreg_b32 s43, hwreg(HW_REG_HW_ID)')
    a('v_mov_b32 v22, s42')
    a('v_mov_b32 v23, s43')
    a(f'global_store_dwordx2 v20, v[22:23], {sr(sBa)} offset:120')


def base_add(dst, src, off_s=None, imm=0):
    if off_s is not None:
        if imm:
            a(f's_add_u32 s{sT}, s{off_s}, {imm}')
            off_s = sT
        a(f's_add_u32 s{dst}, s{src}, s{off_s}')
    else:
        a(f's_add_u32 s{dst}, s{src}, {imm}')
    a(f's_addc_u32 s{dst + 1}, s{src + 1}, 0')


lblc = [0]


def newlabel(p):
    lblc[0] += 1
    return f'L_{p}_{lblc[0]}'


def poll(loads, regs, tmp, mask=None, empty='eq -1', between=None, younger=0, issued=False):
    L, D = newlabel('poll'), newlabel('polld')
    split = between is not None or issued
    if split:
        Cc = newlabel('pollc')
        if not issued:
            if mask is not None:
                a(f's_mov_b64 exec, {mask}')
            for ld in loads:
                a(ld)
            if mask is not None:
                a('s_mov_b64 exec, -1')
            between()
        if mask is not None:
            a(f's_mov_b64 exec, {mask}')
        a(f's_mov_b32 s{sCnt}, {SPIN}')
        a(f's_waitcnt vmcnt({younger})')
        a(f's_branch {Cc}')
    else:
        if mask is not None:
            a(f's_mov_b64 exec, {mask}')
        a(f's_mov_b32 s{sCnt}, {SPIN}')
    a.label(L)
    for ld in loads:
        a(ld)
    a('s_waitcnt vmcnt(0)')
    if split:
        a.label(Cc)
    if empty == 'tag':
        for n, r in enumerate(regs):
            a(f'v_xor_b32 v{r}, s{sTB + (n & 3)}, v{r}')
        rem = list(regs)
        for c in tmp:
            a(f'v_or3_b32 v{c}, v{rem[0]}, v{rem[1]}, v{rem[2]}')
            rem = rem[3:]
        n = 0
        while len(rem) >= 2:
            c = tmp[n % len(tmp)]
            a(f'v_or3_b32 v{c}, v{c}, v{rem[0]}, v{rem[1]}')
            rem = rem[2:]
            n += 1
        t = tmp[0]
        rem = rem + list(tmp[1:])
        while rem:
            if len(rem) >= 2:
                a(f'v_or3_b32 v{t}, v{t}, v{rem[0]}, v{rem[1]}')
                rem = rem[2:]
            else:
                a(f'v_or_b32 v{t}, v{t}, v{rem[0]}')
                rem = rem[1:]
        a(f'v_and_b32 v{t}, 0xff, v{t}')
        empty = 'ne 0'
    elif empty == 'word':
        if len(regs) == 1:
            t = regs[0]
            empty = f'ne s{sTag}'
        else:
            assert len(regs) == 2
            t = tmp[0]
            a(f'v_xor_b32 v{t}, v{regs[0]}, v{regs[1]}')
            a(f'v_xor_b32 v{tmp[1]}, s{sTag}, v{regs[0]}')
            a(f'v_or_b32 v{t}, v{t}, v{tmp[1]}')
            empty = 'ne 0'
    elif empty == 'never':
        empty = 'ne 0'
    elif len(regs) == 1:
        t = regs[0]
    else:
        rem = list(regs)
        outs = []
        k = 0
        while len(rem) >= 3 and k < len(tmp):
            a(f'v_max3_u32 v{tmp[k]}, v{rem[0]}, v{rem[1]}, v{rem[2]}')
            outs.append(tmp[k])
            rem = rem[3:]
            k += 1
        rem = outs[1:] + rem
        t = outs[0] if outs else None
        if t is None:
            t = tmp[0]
            a(f'v_max_u32 v{t}, v{rem[0]}, v{rem[1]}')
            rem = rem[2:]
        while rem:
            if len(rem) >= 2:
                a(f'v_max3_u32 v{t}, v{t}, v{rem[0]}, v{rem[1]}')
                rem = rem[2:]
            else:
                a(f'v_max_u32 v{t}, v{t}, v{rem[0]}')
                rem = rem[1:]
    a(f'v_cmpx_{empty.split()[0]}_u32 vcc, {empty.split()[1]}, v{t}')
    a(f's_cbranch_execz {D}')
    a(f's_sub_u32 s{sCnt}, s{sCnt}, 1')
    a(f's_cbranch_scc0 {L}')
    a.label(D)
    a('s_mov_b64 exec, -1')


def epoch_load():
    a(f's_load_dword s{sTag}, {sr(WS)}, {EPOCH_G}')


def epoch_tag():
    a(f'''
    s_and_b32 s{sTag}, s{sTag}, 0x7f7f7f7f
    s_add_u32 s{sTag}, s{sTag}, 0x01010101
    s_or_b32 s{sTag}, s{sTag}, 0x80808080
    ''')


sTB = 68


def tag_bytes():
    for k in range(4):
        a(f's_bfe_u32 s{sTB + k}, s{sTag}, {hex(0x80000 | (8 * k))}')


def dpp(op, r, ctrl, rm='0xf'):
    a(f'{op}_dpp v{r}, v{r}, v{r} {ctrl} row_mask:{rm} bank_mask:0xf')


def wave_sum(regs, dst_s, op='v_add_f32'):
    for c in ('row_ror:8', 'row_ror:4', 'row_ror:2', 'row_ror:1'):
        for r in regs:
            dpp(op, r, c)
    for r in regs:
        dpp(op, r, 'row_bcast:15', '0xa')
    for r in regs:
        dpp(op, r, 'row_bcast:31', '0xc')
    for r, s in zip(regs, dst_s):
        a(f'v_readlane_b32 s{s}, v{r}, 63')


def rbf(dst, src):
    a(f'v_cvt_pk_bf16_f32 v{dst}, {src}, {src}')
    a(f'v_and_b32 v{dst}, s{sHI}, v{dst}')


def unpack(dlo, dhi, src):
    a(f'v_lshlrev_b32 v{dlo}, 16, v{src}')
    a(f'v_and_b32 v{dhi}, s{sHI}, v{src}')


def mfma32(d, x, y, c=None):
    a(f'v_mfma_f32_16x16x32_bf16 {vr(d, 4)}, {vr(x, 4)}, {vr(y, 4)}, {vr(c, 4) if c is not None else 0}')


def mfma16(d, x, y):
    a(f'v_mfma_f32_16x16x16_bf16 {vr(d, 4)}, {vr(x, 2)}, {vr(y, 2)}, 0')


def cmul(tr, ti, re, im, c, s, sign):
    nr = 'neg_lo:[1,0,0] neg_hi:[1,0,0]'
    for h in (0, 2):
        a(f'v_pk_mul_f32 {vr(tr + h, 2)}, {vr(re + h, 2)}, {vr(c + h, 2)}')
    for h in (0, 2):
        a(f'v_pk_mul_f32 {vr(ti + h, 2)}, {vr(im + h, 2)}, {vr(c + h, 2)}')
    for h in (0, 2):
        a(f'v_pk_fma_f32 {vr(tr + h, 2)}, {vr(im + h, 2)}, {vr(s + h, 2)}, {vr(tr + h, 2)} {nr if sign > 0 else ""}')
    for h in (0, 2):
        a(f'v_pk_fma_f32 {vr(ti + h, 2)}, {vr(re + h, 2)}, {vr(s + h, 2)}, {vr(ti + h, 2)} {nr if sign < 0 else ""}')


def pack4(d, lo, hi, step=1, n=4):
    for r in range(n):
        a(f'v_cvt_pk_bf16_f32 v{d + r * step}, v{lo + r}, v{hi + r}')


def tab_read(dst, q):
    a(f'ds_read_b128 {vr(dst, 4)}, v{vL16} offset:{TAB + q * 1024}')


def tm(j, t):
    return 4 * t + j if j < 4 else 8 + t


def read_tmajor(dst, vaddr, off):
    o = off // 256
    assert off % 256 == 0 and o + 6 < 256
    for t in range(2):
        a(f'ds_read2st64_b32 {vr(dst + 4 * t, 2)}, v{vaddr + t} offset0:{o} offset1:{o + 2}')
        a(f'ds_read2st64_b32 {vr(dst + 4 * t + 2, 2)}, v{vaddr + t} offset0:{o + 4} offset1:{o + 6}')
    a(f'ds_read_b64 {vr(dst + 8, 2)}, v{vaddr} offset:{off + 2048}')


def silu(dst, src, tmp):
    for d, s, t in zip(dst, src, tmp):
        a(f'v_mul_f32 v{t}, 0xbfb8aa3b, v{s}')
    for t in tmp:
        a(f'v_exp_f32 v{t}, v{t}')
    for t in tmp:
        a(f'v_add_f32 v{t}, 1.0, v{t}')
    for t in tmp:
        a(f'v_rcp_f32 v{t}, v{t}')
    for d, s, t in zip(dst, src, tmp):
        a(f'v_mul_f32 v{d}, v{s}, v{t}')


def swap_reduce8(acc):
    for k in range(4):
        a(f'v_permlane32_swap_b32 v{acc + k}, v{acc + k + 4}')
    a(f'v_pk_add_f32 {vr(acc, 2)}, {vr(acc, 2)}, {vr(acc + 4, 2)}')
    a(f'v_pk_add_f32 {vr(acc + 2, 2)}, {vr(acc + 2, 2)}, {vr(acc + 6, 2)}')
    for k in range(2):
        a(f'v_permlane16_swap_b32 v{acc + k}, v{acc + k + 2}')
    a(f'v_pk_add_f32 {vr(acc, 2)}, {vr(acc, 2)}, {vr(acc + 2, 2)}')


BC0 = 'op_sel:[0,0,0] op_sel_hi:[1,0,1]'
BC1 = 'op_sel:[0,1,0] op_sel_hi:[1,1,1]'


def prologue():
    a(f'''
    s_cmp_ge_u32 s2, 256
    s_cbranch_scc1 L_end
    ''')
    if DIAG:
        for k in range(NST):
            a(f's_mov_b32 s{sTS + k}, 0')
        a('s_memtime s[98:99]')
        for p in ('M', 'H0', 'H1'):
            stamps[p] = ['start']
        stamp('start')
    a(f'''
    s_load_dwordx16 s[8:23], s[0:1], 0
    s_load_dwordx8 s[24:31], s[0:1], 64
    s_load_dwordx2 s[32:33], s[0:1], 96
    v_lshrrev_b32 v{vL}, 6, v0
    s_and_b32 s{sX}, s2, 7
    v_readfirstlane_b32 s{sW}, v{vL}
    v_and_b32 v{vL}, 63, v0
    s_lshr_b32 s{sIdx}, s2, 3
    s_lshl_b32 s{sMe}, s{sX}, 5
    s_add_u32 s{sMe}, s{sMe}, s{sIdx}
    s_add_u32 s{sRi}, s{sIdx}, 31
    s_and_b32 s{sRi}, s{sRi}, 31
    v_lshlrev_b32 v{vL16}, 4, v{vL}
    s_mov_b32 s{sHI}, 0xffff0000
    s_cmp_lg_u32 s{sRi}, 30
    s_cbranch_scc1 L_nopf
    s_cmp_ge_u32 s{sW}, (L_tables_end-{NAME}_kernel)/8192
    s_cbranch_scc1 L_nopf
    s_getpc_b64 {sr(sBa)}
    L_pc0:
    s_sub_u32 s{sBa}, s{sBa}, L_pc0-{NAME}_kernel
    s_subb_u32 s{sBa + 1}, s{sBa + 1}, 0
    v_lshlrev_b32 v20, 7, v0
    global_load_dword v21, v20, {sr(sBa)}
    L_nopf:
    v_lshlrev_b32 v{vL4}, 2, v{vL}
    s_cmp_eq_u32 s{sW}, 9
    s_cbranch_scc1 L_h1
    s_cmp_eq_u32 s{sW}, 8
    s_cbranch_scc1 L_h0
    s_lshl_b32 s{sRow}, s{sW}, 8
    s_add_u32 s{sKey}, s{sRow}, s{sMe}
    s_mul_i32 s{sRow}, s{sKey}, 1280
    s_cmp_ge_u32 s{sRi}, {20 if S_BLOAD == 0 else 10}
    s_cbranch_scc1 L_role_e
    s_cmp_ge_u32 s{sRi}, 10
    s_cbranch_scc1 L_role_b
    ''')


def xloads():
    for j in range(5):
        a(f'global_load_dword v{vE0 + j}, v{vL4}, {sr(sXrow)} offset:{256 * j} nt')


def gemv_regs(role):
    nj = 3 if role == 'A' else 5
    return (nj,) + ((20, 40, 48, 60, 56, 57) if role == 'A' else (80, 100, 48, 60, 56, 57))


def gemv_issue(role):
    nj, vw, vc, acc, tmp, vo, voc = gemv_regs(role)
    if role == 'A':
        a(f'''
        s_mul_i32 s{sU2}, s{sX}, 10
        s_add_u32 s{sU2}, s{sU2}, s{sRi}          ; blk
        s_lshr_b32 s{sU0}, s{sU2}, 2
        s_and_b32 s{sU1}, s{sU2}, 3
        s_mul_i32 s{sU1}, s{sU1}, 160
        s_mul_i32 s{sT}, s{sW}, 20
        s_add_u32 s{sU1}, s{sU1}, s{sT}
        ''')
        for k in range(4):
            a(f'v_mov_b32 v{vw + 8 + k}, 0')
        a(f'v_mov_b32 v{vc + 2}, 0')
    else:
        a(f'''
        s_mul_i32 s{sU2}, s{sX}, 10
        s_add_u32 s{sU2}, s{sU2}, s{sRi}          ; blk + 10
        s_lshr_b32 s{sU0}, s{sU2}, 1
        s_add_u32 s{sU0}, s{sU0}, 15
        s_and_b32 s{sU1}, s{sU2}, 1
        s_mul_i32 s{sU1}, s{sU1}, 320
        s_mul_i32 s{sT}, s{sW}, 40
        s_add_u32 s{sU1}, s{sU1}, s{sT}
        ''')
    a(f'''
    v_lshrrev_b32 v{voc}, 3, v{vL}
    v_and_b32 v{vo}, 0x70, v{vL16}
    v_mul_u32_u24 v{tmp}, 7680, v{voc}
    v_lshlrev_b32 v{voc}, 1, v{voc}
    v_add_u32 v{vo}, v{vo}, v{tmp}
    s_mul_i32 s{sU3}, s{sU1}, 7680
    s_lshl_b32 s{sT}, s{sU0}, 7
    s_add_u32 s{sU3}, s{sU3}, s{sT}
    s_lshl_b32 s{sU1}, s{sU1}, 1
    s_waitcnt lgkmcnt(0)
    ''')
    stamp('kernarg')
    if role == 'A' or S_BLOAD == 0:
        epoch_load()
    base_add(sBa, C_, sU1)
    base_add(sBb, W_MOD, sU3)
    if role == 'A' or S_BLOAD == 0:
        base_add(sXrow, A_X, sRow)
    if role == 'B' and S_BLOAD == 0:
        xloads()
    for j in range(nj):
        if role == 'A' and j == 2:
            a('s_mov_b32 exec_hi, 0')
        a(f'global_load_ushort v{vc + j}, v{voc}, {sr(sBa)} offset:{16 * j}')
    a('s_mov_b64 exec, -1')
    for j in range(nj):
        if role == 'A' and j == 2:
            a('s_mov_b32 exec_hi, 0')
        a(f'global_load_dwordx4 {vr(vw + 4 * j, 4)}, v{vo}, {sr(sBb)} nt')
        if j + 1 < nj:
            a(f'v_add_u32 v{vo}, {8 * 7680}, v{vo}')
    a('s_mov_b64 exec, -1')
    if role == 'A':
        xloads()


def gemv_compute(role):
    nj, vw, vc, acc, tmp, vo, voc = gemv_regs(role)
    after = 5 if role == 'A' else 0
    a(f's_waitcnt vmcnt({nj + after})')
    stamp('c in')
    cs_ = [vc + j for j in range(nj)]
    for c in cs_:
        a(f'v_lshlrev_b32 v{c}, 16, v{c}')
    silu(cs_, cs_, [tmp + j for j in range(nj)])
    sc = [70 + 2 * j for j in range(nj)]
    for c, s in zip(cs_, sc):
        a(f'v_cvt_pk_bf16_f32 v{s}, v{c}, v{c}')
    for s in sc:
        a(f'v_and_b32 v{s}, s{sHI}, v{s}')
    for j in range(nj):
        a(f's_waitcnt vmcnt({nj - 1 - j + after})')
        for k in range(4):
            unpack(tmp + 2 * k, tmp + 2 * k + 1, vw + 4 * j + k)
        for k in range(4):
            if j == 0:
                a(f'v_pk_mul_f32 {vr(acc + 2 * k, 2)}, {vr(tmp + 2 * k, 2)}, {vr(sc[j], 2)} op_sel:[0,0] op_sel_hi:[1,0]')
            else:
                a(f'v_pk_fma_f32 {vr(acc + 2 * k, 2)}, {vr(tmp + 2 * k, 2)}, {vr(sc[j], 2)}, {vr(acc + 2 * k, 2)} {BC0}')
    stamp('w in')
    a(f'''
    v_and_b32 v{vo}, 7, v{vL}
    v_lshlrev_b32 v{vo}, 8, v{vo}
    v_and_b32 v{voc}, 48, v{vL}
    v_lshl_add_u32 v{vo}, v{voc}, 2, v{vo}
    s_lshl_b32 s{sT}, s{sW}, 2
    s_add_u32 s{sT}, s{sT}, {RED}
    v_add_u32 v{vo}, s{sT}, v{vo}
    ''')
    swap_reduce8(acc)
    for c in ('row_ror:8',):
        dpp('v_add_f32', acc, c)
        dpp('v_add_f32', acc + 1, c)
    a(f'''
    s_mov_b32 exec_lo, 0x00ff00ff
    s_mov_b32 exec_hi, 0x00ff00ff
    ds_write2_b32 v{vo}, v{acc}, v{acc + 1} offset0:0 offset1:8
    s_mov_b64 exec, -1
    s_waitcnt lgkmcnt(0)
    ''')


def role_e_start():
    a('s_waitcnt lgkmcnt(0)')
    epoch_load()
    base_add(sXrow, A_X, sRow)
    xloads()
    a('s_waitcnt vmcnt(0)')
    a('s_branch L_ln1')


def m8(dst, inverse):
    t0, t1, t2, t3 = 20, 21, 22, 23
    a(f'v_lshrrev_b32 v{t0}, 4, v{vL}           ; g')
    a(f's_cmp_lt_u32 s{sW}, 4')
    a(f's_cselect_b32 s{sT}, 1, 7')
    if not inverse:
        a(f'''
        v_bfe_u32 v{t1}, v{vL}, 2, 2
        v_bfe_u32 v{t2}, v{vL}, 1, 1
        v_lshl_add_u32 v{t1}, v{t2}, 2, v{t1}
        v_mul_u32_u24 v{t1}, s{sT}, v{t1}
        v_and_b32 v{t1}, 7, v{t1}
        v_lshlrev_b32 v{t0}, 9, v{t0}
        v_add_u32 v{t0}, s{sMe}, v{t0}
        v_mul_u32_u24 v{t2}, v{t0}, v{t1}
        v_lshl_add_u32 v{t3}, v{t1}, 8, v{t2}
        ''')
    else:
        a(f'''
        v_bfe_u32 v{t1}, v{vL}, 1, 3
        v_lshlrev_b32 v{t1}, 8, v{t1}
        v_add_u32 v{t1}, s{sMe}, v{t1}
        v_mul_u32_u24 v{t0}, s{sT}, v{t0}
        v_and_b32 v{t0}, 7, v{t0}
        v_mul_u32_u24 v{t2}, v{t0}, v{t1}
        v_xor_b32 v{t0}, 4, v{t0}
        v_mul_u32_u24 v{t3}, v{t0}, v{t1}
        v_sub_u32 v{t2}, 0, v{t2}
        v_sub_u32 v{t3}, 0, v{t3}
        ''')
    a(f'''
    v_and_b32 v{t0}, 1, v{vL}
    v_lshl_add_u32 v{t2}, v{t0}, 9, v{t2}
    v_lshl_add_u32 v{t3}, v{t0}, 9, v{t3}
    v_and_b32 v{t2}, 0x7ff, v{t2}
    v_and_b32 v{t3}, 0x7ff, v{t3}
    v_cvt_f32_u32 v{t2}, v{t2}
    v_cvt_f32_u32 v{t3}, v{t3}
    v_mul_f32 v{t2}, 0x3a000000, v{t2}
    v_mul_f32 v{t3}, 0x3a000000, v{t3}
    v_cos_f32 v{t0}, v{t2}
    v_sin_f32 v{t2}, v{t2}
    v_cos_f32 v{t1}, v{t3}
    v_sin_f32 v{t3}, v{t3}
    v_cvt_pk_bf16_f32 v{dst}, v{t0}, v{t2}
    v_cvt_pk_bf16_f32 v{dst + 1}, v{t1}, v{t3}
    ''')


INV640 = hex(f2u(1.0 / 640))
EPS = hex(f2u(1e-5))


def rstd_chain(var, out):
    rbf(out, f'v{var}')
    a(f'v_add_f32 v{out}, {EPS}, v{out}')
    rbf(out, f'v{out}')
    a(f'v_sqrt_f32 v{out}, v{out}')
    rbf(out, f'v{out}')
    a(f'v_rcp_f32 v{out}, v{out}')


def sum10(dst2, x):
    a(f'v_pk_add_f32 {vr(dst2, 2)}, {vr(x, 2)}, {vr(x + 2, 2)}')
    for h in (4, 6, 8):
        a(f'v_pk_add_f32 {vr(dst2, 2)}, {vr(dst2, 2)}, {vr(x + h, 2)}')
    a(f'v_add_f32 v{dst2}, v{dst2}, v{dst2 + 1}')


def dot10(dst2, x, y):
    a(f'v_pk_mul_f32 {vr(dst2, 2)}, {vr(x, 2)}, {vr(y, 2)}')
    for h in (2, 4, 6, 8):
        a(f'v_pk_fma_f32 {vr(dst2, 2)}, {vr(x + h, 2)}, {vr(y + h, 2)}, {vr(dst2, 2)}')
    a(f'v_add_f32 v{dst2}, v{dst2}, v{dst2 + 1}')


late = []


def bar(n):
    a(f's_barrier                                   ; {n}')


def main_path():
    vZ, vSA, vCA = vVec, vVec + 10, vVec + 20
    gemv_issue('A')
    gemv_compute('A')
    a('s_barrier                                   ; B1')
    a('s_waitcnt vmcnt(0)')
    a('s_branch L_ln1')
    a.label('L_role_e')
    role_e_start()
    a.label('L_role_b')
    if S_BLOAD == 0:
        gemv_issue('B')
        a('s_waitcnt vmcnt(10)')
    a.label('L_ln1')
    stamp('x in')
    for j in range(5):
        unpack(vXS + tm(j, 0), vXS + tm(j, 1), vE0 + j)
    sum10(24, vXS)
    wave_sum([24], [sU0])
    a(f'v_mov_b32 v24, {INV640}')
    a(f'v_mul_f32 v26, s{sU0}, v24                ; mean')
    rbf(28, 'v26')
    a(f'v_readfirstlane_b32 s{sM1B}, v28')
    for h in range(0, 10, 2):
        a(f'v_pk_add_f32 {vr(vXS + h, 2)}, {vr(vXS + h, 2)}, v[28:29] op_sel:[0,0] op_sel_hi:[1,0] neg_lo:[0,1] neg_hi:[0,1]')
    dot10(30, vXS, vXS)
    wave_sum([30], [sU0])
    a(f'''
    v_sub_f32 v26, v26, v28
    v_mul_f32 v26, v26, v26
    v_fma_f32 v26, s{sU0}, v24, -v26
    ''')
    rstd_chain(26, 27)
    for j in range(5):
        for t in range(2):
            a(f'v_mul_f32 v{vZ + 2 * j + t}, v27, v{vXS + tm(j, t)}')
    a('s_waitcnt lgkmcnt(0)')
    epoch_tag()
    tag_bytes()
    m8(vM8F, False)
    m8(vM8I, True)
    a(f'''
    v_bfe_u32 v20, v{vL}, 2, 2
    v_and_b32 v21, 48, v{vL16}                    ; part*16
    v_and_b32 v22, 48, v{vL}
    v_lshl_add_u32 v20, v22, 1, v20               ; 32g + kbs
    v_lshl_add_u32 v{vS}, v20, 6, v21
    v_lshl_add_u32 v{vPoll}, v20, 14, v21
    v_mul_u32_u24 v20, 80, v20
    s_mul_i32 s{sT}, s{sW}, 320
    s_add_u32 s{sT}, s{sT}, {XB2}
    v_add3_u32 v{vE0 + 4}, v20, v21, s{sT}        ; staging address
    v_lshlrev_b32 v{vE0}, 3, v{vL}                ; 8*lane
    v_mov_b32 v23, 0
    v_mov_b32 v27, 0
    ''')
    a(f'''
    v_and_b32 v20, 15, v{vL}
    v_mul_u32_u24 v20, 264, v20
    v_and_b32 v21, 48, v{vL}
    v_lshl_add_u32 v{vE0 + 1}, v21, 2, v20
    s_lshr_b32 s{sU0}, s{sW}, 1
    s_mul_i32 s{sU0}, s{sU0}, 4224
    s_and_b32 s{sT}, s{sW}, 1
    s_lshl_b32 s{sT}, s{sT}, 2
    s_add_u32 s{sU0}, s{sU0}, s{sT}
    s_add_u32 s{sU0}, s{sU0}, {XB1}
    v_add_u32 v{vE0 + 1}, s{sU0}, v{vE0 + 1}
    ''')
    a(f'''
    v_lshrrev_b32 v20, 4, v{vL}
    v_mul_u32_u24 v20, 4224, v20
    v_and_b32 v21, 3, v{vL}
    v_mul_u32_u24 v21, 1056, v21
    v_and_b32 v22, 12, v{vL}
    v_lshl_add_u32 v20, v22, 1, v20
    s_lshl_b32 s{sU0}, s{sW}, 5
    s_add_u32 s{sU0}, s{sU0}, {XB1}
    v_add3_u32 v{vE0 + 2}, v20, v21, s{sU0}
    ''')
    a(f'''
    s_cmp_lt_u32 s{sRi}, 10
    s_cbranch_scc1 L_tabs
    s_barrier                                   ; B1
    s_cmp_lt_u32 s{sRi}, 20
    s_cbranch_scc0 L_tabs
    ''')
    if S_BLOAD:
        gemv_issue('B')
    gemv_compute('B')
    a.label('L_tabs')
    a('s_barrier                                   ; BT')
    stamp('poll start')
    tab_read(vF20, T_F20C)
    tab_read(vF20 + 4, T_F20S)
    for q in range(4):
        tab_read(vTW + 4 * q, T_TW1 + q)
    for q in range(8):
        tab_read(vF32 + 4 * q, T_F32 + q)
    a(f'''
    s_sub_u32 s{sT}, s{sW}, 1
    s_cmp_lt_u32 s{sT}, 5
    s_cbranch_scc0 L_b2
    v_subrev_u32 v28, 64, v0                      ; u
    v_lshrrev_b32 v29, 4, v28
    v_lshlrev_b32 v29, 10, v29
    v_and_b32 v30, 0xf0, v{vL16}
    v_add_u32 v29, v29, v30
    v_cmp_le_u32 vcc, 160, v28
    v_cndmask_b32 v30, 0, 1.0, vcc
    v_lshlrev_b32 v28, 4, v28
    v_add_u32 v28, {MODA_L}, v28
    ''')
    poll([f'global_load_dwordx4 {vr(36 + 4 * p, 4)}, v29, {sr(WS)} offset:{256 * p} sc1' for p in range(4)],
         list(range(36, 52)), [52, 53, 54], empty='tag')
    a(f'''
    v_pk_add_f32 v[36:37], v[36:37], v[40:41]
    v_pk_add_f32 v[38:39], v[38:39], v[42:43]
    v_pk_add_f32 v[44:45], v[44:45], v[48:49]
    v_pk_add_f32 v[46:47], v[46:47], v[50:51]
    v_pk_add_f32 v[36:37], v[36:37], v[44:45]
    v_pk_add_f32 v[38:39], v[38:39], v[46:47]
    v_cvt_pk_bf16_f32 v40, v36, v37
    v_cvt_pk_bf16_f32 v41, v38, v39
    ''')
    unpack(36, 37, 40)
    unpack(38, 39, 41)
    a(f'''
    v_pk_add_f32 v[36:37], v[36:37], v[30:31] op_sel:[0,0] op_sel_hi:[1,0]
    v_pk_add_f32 v[38:39], v[38:39], v[30:31] op_sel:[0,0] op_sel_hi:[1,0]
    v_cvt_pk_bf16_f32 v40, v36, v37
    v_cvt_pk_bf16_f32 v41, v38, v39
    ''')
    unpack(36, 37, 40)
    unpack(38, 39, 41)
    a(f'ds_write_b128 v28, v[36:39]')
    a.label('L_b2')
    stamp('poll end')
    a('s_waitcnt lgkmcnt(0)')
    a('s_barrier                                   ; B2')
    stamp('B2 done (mod ready)')
    o = MODA_L // 512
    assert MODA_L % 8 == 0
    a(f'v_add_u32 v28, {MODA_L}, v{vE0}')
    a(f'ds_read2st64_b64 {vr(vSA, 4)}, v28 offset0:0 offset1:1')
    a(f'ds_read2st64_b64 {vr(vCA, 4)}, v28 offset0:5 offset1:6')
    a(f'ds_read2st64_b64 {vr(vSA + 4, 4)}, v28 offset0:2 offset1:3')
    a(f'ds_read2st64_b64 {vr(vCA + 4, 4)}, v28 offset0:7 offset1:8')
    a(f'ds_read_b64 {vr(vSA + 8, 2)}, v28 offset:2048')
    a(f'ds_read_b64 {vr(vCA + 8, 2)}, v28 offset:{2560 + 2048}')
    for j in range(5):
        if j in (0, 2, 4):
            a(f's_waitcnt lgkmcnt({4 - j})')
        a(f'v_pk_fma_f32 {vr(vZ + 2 * j, 2)}, {vr(vZ + 2 * j, 2)}, {vr(vCA + 2 * j, 2)}, {vr(vSA + 2 * j, 2)}')
    for t in range(2):
        a(f'v_cvt_pk_bf16_f32 v{Ra + 4 * t}, v{vZ + t}, v{vZ + 2 + t}')
        a(f'v_cvt_pk_bf16_f32 v{Ra + 4 * t + 1}, v{vZ + 4 + t}, v{vZ + 6 + t}')
        a(f'v_cvt_pk_bf16_f32 v{Ra + 4 * t + 2}, v{vZ + 8 + t}, 0')
    for t in range(2):
        mfma32(RD + 8 * t, Ra + 4 * t, vF20)
        mfma32(RD + 8 * t + 4, Ra + 4 * t, vF20 + 4)
    for t, tmp in ((0, Rb), (1, Rc)):
        cmul(tmp, tmp + 4, RD + 8 * t, RD + 8 * t + 4, vTW + 8 * t, vTW + 8 * t + 4, -1)
        pack4(Ra + 4 * t, tmp, tmp + 4)
    for ks in range(2):
        for u in range(2):
            for e in range(2):
                d = RD + 8 * u + 4 * e
                mfma32(d, vF32 + 16 * u + 8 * e + 4 * ks, Ra + 4 * ks, d if ks else None)
    for u in range(2):
        pack4(Rb + u, RD + 8 * u, RD + 8 * u + 4, step=2)
    for r in range(4):
        a(f'ds_write2_b32 v{vE0 + 1}, v{Rb + 2 * r}, v{Rb + 2 * r + 1} offset0:{4 * r} offset1:{4 * r + 2}')
    a(f'''
    s_lshl_b32 s{sU0}, s{sMe}, 14
    s_lshl_b32 s{sU1}, s{sW}, 8
    s_add_u32 s{sU0}, s{sU0}, s{sU1}
    v_mov_b32 v{Rc + 3}, s{sTag}
    v_mov_b32 v{Rc + 7}, s{sTag}
    ''')
    base_add(sBa, WS, sU0, T1_G)
    base_add(sBb, WS, sU0, T1_G + 8192)
    a('s_waitcnt lgkmcnt(0)')
    bar('B3')
    for n in range(3):
        a(f'ds_read_b64 {vr(Ra + 2 * n, 2)}, v{vE0 + 2} offset:{264 * n}')
    for n in range(3):
        a(f's_waitcnt lgkmcnt({2 - n})')
        mfma16(RD + 4 * n, vM8F, Ra + 2 * n)
    for j in range(2):
        for n in range(3):
            a(f'v_cvt_pk_bf16_f32 v{Rc + 4 * j + n}, v{RD + 4 * n + 2 * j}, v{RD + 4 * n + 2 * j + 1}')
        a(f'global_store_dwordx4 v{vS}, {vr(Rc + 4 * j, 4)}, {sr(sBb if j else sBa)} sc1')
    stamp('T1 stored')
    vWr = vVec
    for k in range(16):
        a(f'v_mov_b32 v{vWr + k}, 0')
    SC = 2.0 / (2048 * 640)
    sKa = sM7
    a(f'''
    v_and_b32 v36, 15, v{vL}
    v_and_b32 v37, 48, v{vL}
    v_lshl_add_u32 v36, v37, 2, v36               ; 64g + i
    v_mul_u32_u24 v{vE0 + 3}, 80, v36
    s_and_b32 s{sU1}, s{sW}, 3
    s_lshr_b32 s{sU2}, s{sW}, 2
    s_lshl_b32 s{sU2}, s{sU2}, 1
    s_mul_i32 s{sKa}, s{sU1}, 3
    s_add_u32 s{sKa}, s{sKa}, s{sU2}
    s_lshl_b32 s{sU1}, s{sU1}, 2
    s_add_u32 s{sU1}, s{sU1}, s{sU2}
    s_lshl_b32 s{sU1}, s{sU1}, 2
    s_add_u32 s{sU1}, s{sU1}, {XB2}
    v_add_u32 v{vE0 + 3}, s{sU1}, v{vE0 + 3}
    v_lshlrev_b32 v36, 5, v36
    s_lshl_b32 s{sU1}, s{sMe}, 6
    s_lshl_b32 s{sT}, s{sW}, 16
    s_add_u32 s{sU1}, s{sU1}, s{sT}
    ''')
    base_add(sBa, WS, sU1, T1_G)
    base_add(sBb, WS, sU1, T1_G + 128 * 16384)

    def w_setup():
        for q in range(2):
            tab_read(vTW + 4 * q, T_F16 + q)
            tab_read(vTW + 8 + 4 * q, T_TW2 + q)
        a(f's_and_b32 s{sU2}, s{sX}, 1                    ; q & 1')
        for s in range(2):
            ka, pos, gam = sBc, sBc + 1, sU3
            if s == 1:
                a(f's_cmp_ge_u32 s{sW}, 4')
                a('s_cbranch_scc1 L_wdone')
            a(f'''
            s_add_u32 s{ka}, s{sKa}, {s}
            s_min_u32 s{pos}, s{ka}, 10
            s_sub_u32 s{sT}, 10, s{pos}
            s_cmp_ge_u32 s{sIdx}, 16
            s_cselect_b32 s{pos}, s{sT}, s{pos}
            s_add_u32 s{pos}, s{pos}, s{sU2}
            s_lshl_b32 s{sT}, s{pos}, 1
            s_cmp_ge_u32 s{pos}, 6
            s_cselect_b32 s{pos}, 4, 0
            s_add_u32 s{pos}, s{pos}, s{sT}
            s_add_u32 s{pos}, s{pos}, {WST}
            v_add_u32 v37, s{pos}, v36
            ''')
            for arr in range(2):
                for r in range(4):
                    a(f'ds_read_u16_d16_hi v{vWr + 8 * s + 4 * arr + r}, v37 offset:{arr * 8192 + r * 512}')
            a(f's_mov_b32 s{gam}, {hex(f2u(SC))}')
            if s == 0:
                a(f'''
                s_and_b32 s{sT}, s{sIdx}, 15
                s_or_b32 s{sT}, s{sT}, s{ka}
                s_cmp_eq_u32 s{sT}, 0
                s_cselect_b32 s{gam}, {hex(f2u(SC / 2))}, s{gam}
                s_cmp_gt_u32 s{sIdx}, 16
                s_cselect_b32 s{sT}, s{ka}, 1
                s_cmp_eq_u32 s{sT}, 0
                s_cselect_b32 s{gam}, 0, s{gam}
                ''')
            else:
                a(f'''
                s_cmp_ge_u32 s{sIdx}, 16
                s_cselect_b32 s{sT}, s{ka}, 1
                s_cmp_eq_u32 s{sT}, 10
                s_cselect_b32 s{gam}, 0, s{gam}
                ''')
            a(f'''
            s_xor_b32 s{sT}, s{gam}, 0x80000000
            s_cmp_ge_u32 s{sIdx}, 16
            s_cselect_b32 s{sT}, s{sT}, s{gam}
            s_waitcnt lgkmcnt(0)
            ''')
            for r in range(4):
                a(f'v_mul_f32 v{vWr + 8 * s + r}, s{gam}, v{vWr + 8 * s + r}')
            for r in range(4):
                a(f'v_mul_f32 v{vWr + 8 * s + 4 + r}, s{sT}, v{vWr + 8 * s + 4 + r}')
        a.label('L_wdone')

    tpoll = [f'global_load_dwordx4 {vr(Ra, 4)}, v{vPoll}, {sr(sBa)} sc1', f'global_load_dwordx4 {vr(Ra + 4, 4)}, v{vPoll}, {sr(sBb)} sc1']
    a('s_waitcnt vmcnt(0)')
    bar('B3b')
    stamp('B3b done')
    poll(tpoll, [Ra + 3, Ra + 7], [Rb, Rb + 1], empty='word', between=w_setup)
    a(f'ds_write_b128 v{vE0 + 4}, {vr(Ra, 4)}')
    a(f'ds_write_b128 v{vE0 + 4}, {vr(Ra + 4, 4)} offset:10240')
    base_add(sBa, WS, sU0, T2_G)
    base_add(sBb, WS, sU0, T2_G + 8192)
    a(f's_cmp_ge_u32 s{sW}, 4')
    a('s_waitcnt lgkmcnt(0)')
    bar('B4')
    stamp('B4 done (T1 in)')
    a('s_cbranch_scc1 L_p2_one')
    Fre, Fim, Tc, Ts = vTW, vTW + 4, vTW + 8, vTW + 12
    tmps = (Rb, Rc)

    def p2(ns):
        if ns == 2:
            for j in range(4):
                a(f'ds_read_b64 {vr(Rb + 2 * j, 2)}, v{vE0 + 3} offset:{1280 * j}')
            for h in range(2):
                a(f's_waitcnt lgkmcnt({2 - 2 * h})')
                for s in range(2):
                    a(f'v_pk_mov_b32 {vr(Ra + 4 * s + 2 * h, 2)}, {vr(Rb + 4 * h, 2)}, {vr(Rb + 4 * h + 2, 2)} op_sel:[{s},{s}]')
        else:
            a(f'ds_read2st64_b32 {vr(Ra, 2)}, v{vE0 + 3} offset0:0 offset1:5')
            a(f'ds_read2st64_b32 {vr(Ra + 2, 2)}, v{vE0 + 3} offset0:10 offset1:15')
            a('s_waitcnt lgkmcnt(0)')
        for s in range(ns):
            mfma32(RD + 8 * s, Ra + 4 * s, Fre)
            mfma32(RD + 8 * s + 4, Ra + 4 * s, Fim)
        for s in range(ns):
            cmul(tmps[s], tmps[s] + 4, RD + 8 * s, RD + 8 * s + 4, Tc, Ts, -1)
            pack4(Ra + 4 * s, tmps[s], tmps[s] + 4)
            mfma32(RD + 8 * s, Fre, Ra + 4 * s)
            mfma32(RD + 8 * s + 4, Fim, Ra + 4 * s)
        for s in range(ns):
            cmul(tmps[s], tmps[s] + 4, RD + 8 * s, RD + 8 * s + 4, vWr + 8 * s, vWr + 8 * s + 4, +1)
            pack4(Ra + 4 * s, tmps[s] + 4, tmps[s])
            mfma32(RD + 8 * s, Ra + 4 * s, Fim)
            mfma32(RD + 8 * s + 4, Ra + 4 * s, Fre)
        for s in range(ns):
            cmul(tmps[s], tmps[s] + 4, RD + 8 * s, RD + 8 * s + 4, Tc, Ts, +1)
            pack4(Ra + 4 * s, tmps[s] + 4, tmps[s])
            mfma32(RD + 8 * s, Fim, Ra + 4 * s)
            mfma32(RD + 8 * s + 4, Fre, Ra + 4 * s)
        for s in range(ns):
            pack4(Rb + s, RD + 8 * s, RD + 8 * s + 4, step=ns)
        if ns == 2:
            for r in range(4):
                a(f'ds_write_b64 v{vE0 + 3}, {vr(Rb + 2 * r, 2)} offset:{1280 * r}')
        else:
            a(f'ds_write2st64_b32 v{vE0 + 3}, v{Rb}, v{Rb + 1} offset0:0 offset1:5')
            a(f'ds_write2st64_b32 v{vE0 + 3}, v{Rb + 2}, v{Rb + 3} offset0:10 offset1:15')
        a('s_waitcnt lgkmcnt(0)')
    p2(2)
    a.label('L_b5')
    bar('B5')
    a(f'ds_read_b128 {vr(Rb, 4)}, v{vE0 + 4}')
    a(f'ds_read_b128 {vr(Rb + 4, 4)}, v{vE0 + 4} offset:10240')
    a('s_waitcnt lgkmcnt(1)')
    a(f'global_store_dwordx4 v{vS}, {vr(Rb, 4)}, {sr(sBa)} sc1')
    a('s_waitcnt lgkmcnt(0)')
    a(f'global_store_dwordx4 v{vS}, {vr(Rb + 4, 4)}, {sr(sBb)} sc1')
    stamp('T2 stored')
    late.append(lambda: (a.label('L_p2_one'), a(f's_cmp_eq_u32 s{sW}, 7'), a('s_cbranch_scc1 L_b5'), p2(1), a('s_branch L_b5')))
    vGA, vVV, vGC, vGS = vVec, vVec + 10, vVec + 20, vVec + 30
    for q in range(4):
        tab_read(vTW + 4 * q, T_TW3 + q)
    for q in range(3):
        tab_read(vF20 + 4 * q, T_F20I + q)
    a(f'''
    v_add_u32 v{vE0 + 5}, {MODB_L}, v{vL4}
    v_lshrrev_b32 v36, 4, v{vL}
    v_mul_u32_u24 v36, 4640, v36
    v_and_b32 v37, 3, v{vL}
    v_mul_u32_u24 v37, 576, v37
    v_and_b32 v38, 4, v{vL}
    v_lshl_add_u32 v36, v38, 2, v36
    v_bfe_u32 v38, v{vL}, 3, 1
    v_lshl_add_u32 v37, v38, 2, v37
    s_lshr_b32 s{sU2}, s{sW}, 1
    s_lshl_b32 s{sU2}, s{sU2}, 5
    s_and_b32 s{sT}, s{sW}, 1
    s_lshl_b32 s{sT}, s{sT}, 3
    s_add_u32 s{sU2}, s{sU2}, s{sT}
    s_add_u32 s{sU2}, s{sU2}, {XB3}
    v_add3_u32 v{vE0 + 1}, v36, v37, s{sU2}
    v_add_u32 v{vE0 + 2}, 2320, v{vE0 + 1}
    v_and_b32 v36, 15, v{vL}
    v_mul_u32_u24 v36, 144, v36
    v_and_b32 v37, 48, v{vL}
    v_lshl_add_u32 v36, v37, 1, v36
    s_mul_i32 s{sU2}, s{sW}, 2320
    s_add_u32 s{sU2}, s{sU2}, {XB3}
    v_add_u32 v{vE0 + 3}, s{sU2}, v36
    ''')
    base_add(sBa, WS, sU1, T2_G)
    base_add(sBb, WS, sU1, T2_G + 128 * 16384)
    base_add(sXrow, OUTP, sRow)

    def p3_setup():
        raw = Rb
        for k in range(0, 24, 2):
            a(f'ds_read2st64_b32 {vr(raw + k, 2)}, v{vE0 + 5} offset0:{k} offset1:{k + 1}')
        a(f'ds_read_b32 v{raw + 24}, v{vE0 + 5} offset:{24 * 256}')
        a('s_waitcnt lgkmcnt(0)')
        for vec, dst in ((0, vGA), (1, vGS), (2, vGC), (4, vVV)):
            for j in range(5):
                unpack(dst + tm(j, 0), dst + tm(j, 1), raw + 5 * vec + j)
        GB = Rb
        for j in range(5):
            unpack(GB + tm(j, 0), GB + tm(j, 1), raw + 15 + j)
        t0, t1, t2 = Rc + 2, Rc + 4, Rc + 6
        dot10(t0, vVV, vGS)
        for h in range(0, 10, 2):
            a(f'v_pk_mul_f32 {vr(vVV + h, 2)}, {vr(vVV + h, 2)}, {vr(vGC + h, 2)}')
        sum10(t1, vVV)
        a(f'v_mov_b32 v{t2}, s{sM1B}')
        for h in range(0, 10, 2):
            a(f'v_pk_mul_f32 {vr(vGC + h, 2)}, {vr(vGC + h, 2)}, {vr(GB + h, 2)}')
            a(f'v_pk_fma_f32 {vr(vGS + h, 2)}, {vr(vGS + h, 2)}, {vr(GB + h, 2)}, {vr(t2, 2)} op_sel:[0,0,0] op_sel_hi:[1,1,0]')
        wave_sum([t1, t0], [sV1, sV2])

    a('s_waitcnt vmcnt(0) lgkmcnt(0)')
    bar('B5b')
    stamp('B5b done')
    poll(tpoll, [Ra + 3, Ra + 7], [Rb, Rb + 1], empty='word', between=p3_setup)
    stamp('T2 in')
    for n in range(3):
        a(f'v_pk_mov_b32 {vr(Rb + 2 * n, 2)}, {vr(Ra + (n & 2), 2)}, {vr(Ra + 4 + (n & 2), 2)} op_sel:[{n & 1},{n & 1}]')
    for n in range(3):
        mfma16(RD + 4 * n, vM8I, Rb + 2 * n)
    for jj in range(2):
        for n in range(3):
            a(f'v_cvt_pk_bf16_f32 v{Ra + 4 * jj + n}, v{RD + 4 * n + 2 * jj + 1}, v{RD + 4 * n + 2 * jj}')
        a(f'ds_write2_b32 v{vE0 + 1 + jj}, v{Ra + 4 * jj}, v{Ra + 4 * jj + 1} offset0:0 offset1:36')
        a(f'ds_write_b32 v{vE0 + 1 + jj}, v{Ra + 4 * jj + 2} offset:288')
    a('s_waitcnt lgkmcnt(0)')
    a('s_barrier                                   ; B6')
    a(f'ds_read_b128 {vr(Rb, 4)}, v{vE0 + 3}')
    a(f'ds_read_b128 {vr(Rb + 4, 4)}, v{vE0 + 3} offset:16')
    for ks in range(2):
        a(f's_waitcnt lgkmcnt({1 - ks})')
        for t in range(2):
            for e in range(2):
                d = RD + 8 * t + 4 * e
                mfma32(d, Rb + 4 * ks, vF32 + 16 * t + 8 * (1 - e) + 4 * ks, d if ks else None)
    for t, tmp in ((0, Ra), (1, Rc)):
        cmul(tmp, tmp + 4, RD + 8 * t, RD + 8 * t + 4, vTW + 8 * t, vTW + 8 * t + 4, +1)
        pack4(Rb + 4 * t, tmp, tmp + 4, n=3)
        a(f'v_mov_b32 v{Rb + 4 * t + 3}, 0')
    Y = RD
    mfma32(Y, vF20, Rb)
    mfma32(Y + 8, vF20 + 4, Rb)
    mfma32(Y + 4, vF20, Rb + 4)
    mfma32(Y + 8, vF20 + 8, Rb + 4, Y + 8)
    for h in range(0, 10, 2):
        a(f'v_pk_fma_f32 {vr(Y + h, 2)}, {vr(Y + h, 2)}, {vr(vGA + h, 2)}, {vr(vXS + h, 2)}')
    s1, s2, s3 = Ra, Ra + 2, Ra + 4
    a(f'v_pk_add_f32 {vr(s1, 2)}, {vr(Y, 2)}, {vr(Y + 2, 2)}')
    a(f'v_pk_mul_f32 {vr(s2, 2)}, {vr(Y, 2)}, {vr(Y, 2)}')
    a(f'v_pk_mul_f32 {vr(s3, 2)}, {vr(Y, 2)}, {vr(vVV, 2)}')
    for h in (2, 4, 6, 8):
        if h > 2:
            a(f'v_pk_add_f32 {vr(s1, 2)}, {vr(s1, 2)}, {vr(Y + h, 2)}')
        a(f'v_pk_fma_f32 {vr(s2, 2)}, {vr(Y + h, 2)}, {vr(Y + h, 2)}, {vr(s2, 2)}')
        a(f'v_pk_fma_f32 {vr(s3, 2)}, {vr(Y + h, 2)}, {vr(vVV + h, 2)}, {vr(s3, 2)}')
    for s in (s1, s2, s3):
        a(f'v_add_f32 v{s}, v{s}, v{s + 1}')
    wave_sum([s1, s2, s3], [sU0, sU2, sU3])
    k0 = Rc
    a(f'''
    v_mov_b32 v{Ra}, {INV640}
    v_mul_f32 v{Ra + 1}, s{sU0}, v{Ra}            ; mu
    v_mul_f32 v{Ra + 2}, v{Ra + 1}, v{Ra + 1}
    v_add_f32 v{Ra + 3}, s{sM1B}, v{Ra + 1}
    v_fma_f32 v{Ra + 2}, s{sU2}, v{Ra}, -v{Ra + 2} ; var
    ''')
    rbf(Ra + 3, f'v{Ra + 3}')
    rstd_chain(Ra + 2, k0)
    a(f'''
    v_sub_f32 v{Ra + 3}, s{sM1B}, v{Ra + 3}       ; -delta
    v_mov_b32 v{Ra + 4}, s{sU3}
    v_fma_f32 v{Ra + 4}, v{Ra + 3}, s{sV1}, v{Ra + 4}
    v_fma_f32 v{Ra + 4}, v{Ra + 4}, v{k0}, s{sV2} ; r
    v_mul_f32 v{k0 + 1}, v{Ra + 3}, v{k0}
    v_ashrrev_i32 v{Ra + 5}, 31, v{Ra + 4}
    v_or_b32 v{Ra + 5}, 0x80000000, v{Ra + 5}
    v_xor_b32 v{Ra + 4}, v{Ra + 4}, v{Ra + 5}
    v_and_b32 v{Ra + 4}, 0xfffff800, v{Ra + 4}
    v_or_b32 v{Ra + 4}, s{sKey}, v{Ra + 4}
    v_mov_b32 v{Ra + 7}, {KEYL}
    v_mov_b32 v{Ra + 5}, s{sTag}
    s_mov_b64 exec, 1
    ds_max_u32 v{Ra + 7}, v{Ra + 4}
    s_mov_b64 exec, -1
    v_readfirstlane_b32 s{sKey}, v{Ra + 4}
    ''')
    ZN = vGA
    for h in range(0, 10, 2):
        a(f'v_pk_fma_f32 {vr(ZN + h, 2)}, {vr(Y + h, 2)}, {vr(k0, 2)}, {vr(k0, 2)} op_sel:[0,0,1] op_sel_hi:[1,0,1]')
        a(f'v_pk_add_f32 {vr(Y + h, 2)}, {vr(Y + h, 2)}, {vr(vGS + h, 2)}')
    for h in range(0, 10, 2):
        a(f'v_pk_fma_f32 {vr(Y + h, 2)}, {vr(ZN + h, 2)}, {vr(vGC + h, 2)}, {vr(Y + h, 2)}')
    vO = vXS
    for j in range(5):
        a(f'v_cvt_pk_bf16_f32 v{vO + j}, v{Y + tm(j, 0)}, v{Y + tm(j, 1)}')
    a(f's_mul_i32 s{sU0}, s{sMe}, {REC_STRIDE}')
    base_add(sBa, WS, sU0, REC_G)
    a('s_waitcnt lgkmcnt(0)')
    a('s_barrier                                   ; B7')
    a(f'''
    ds_read_b32 v{Ra + 6}, v{Ra + 7}
    s_waitcnt lgkmcnt(0)
    v_readfirstlane_b32 s{sU0}, v{Ra + 6}
    s_cmp_eq_u32 s{sU0}, s{sKey}
    s_cselect_b32 s{sCand}, 1, 0
    s_cbranch_scc1 L_cand
    ''')
    for j in range(5):
        a(f'global_store_dword v{vL4}, v{vO + j}, {sr(sXrow)} offset:{256 * j}')
    a('s_branch L_keys')
    a.label('L_cand')
    a(f'''
    s_mov_b64 exec, 1
    global_store_dwordx2 v{vL4}, {vr(Ra + 4, 2)}, {sr(sBa)} sc1
    s_mov_b64 exec, -1
    ''')
    raw, SB, CB, H, Bq = 60, 70, 80, 92, 108
    for k in range(0, 10, 2):
        a(f'ds_read2st64_b32 {vr(raw + k, 2)}, v{vE0 + 5} offset0:{5 + k} offset1:{6 + k}')
    a(f'v_add_u32 v{Ra}, {REC_BASE}, v{vL16}')
    for qd in range(4):
        a(f'v_mov_b32 v{H + 4 * qd + 3}, s{sTag}')
    a('s_waitcnt lgkmcnt(0)')
    for j in range(5):
        unpack(SB + tm(j, 0), SB + tm(j, 1), raw + j)
        unpack(CB + tm(j, 0), CB + tm(j, 1), raw + 5 + j)
    for t in range(2):
        for j in range(5):
            k = tm(j, t)
            a(f'v_fma_f32 v{H + 8 * t + j + (j >= 3)}, v{ZN + k}, v{CB + k}, v{SB + k}')
        for qd in range(2):
            a(f'global_store_dwordx4 v{vL16}, {vr(H + 8 * t + 4 * qd, 4)}, {sr(sBa)} offset:{REC_H2 + 2048 * t + 1024 * qd} sc1')
    Bq = 60
    for t in range(2):
        for j in range(5):
            a(f'v_mov_b32 v{Bq + 8 * t + j + (j >= 3)}, v{Y + tm(j, t)}')
        for qd in range(2):
            a(f'v_mov_b32 v{Bq + 8 * t + 4 * qd + 3}, s{sTag}')
            a(f'global_store_dwordx4 v{Ra}, {vr(Bq + 8 * t + 4 * qd, 4)}, {sr(sBa)} offset:{2048 * t + 1024 * qd} sc1')
    a.label('L_keys')
    stamp('key out')
    vEW, vFW = 60, 100
    a(f'''
    s_cmp_lt_u32 s{sRi}, 20
    s_cbranch_scc1 L_no_ew
    s_barrier
    s_mul_i32 s{sT}, s{sW}, 5120
    s_add_u32 s{sT}, s{sT}, {EW}
    v_add_u32 v{Rb}, s{sT}, v{vL16}
    s_lshl_b32 s{sT}, s{sW}, 8
    s_add_u32 s{sT}, s{sT}, {FW}
    v_add_u32 v{Rb + 1}, s{sT}, v{vL4}
    ''')
    st = 132
    for j in range(5):
        a(f'ds_read_b128 {vr(st + 4 * j, 4)}, v{Rb} offset:{1024 * j}')
    a('s_waitcnt lgkmcnt(0)')
    for k in range(20):
        unpack(vEW + 2 * k, vEW + 2 * k + 1, st + k)
    a(f's_cmp_ge_u32 s{sW}, 5')
    a('s_cbranch_scc1 L_no_ew')
    for u in range(0, 16, 2):
        a(f'ds_read2st64_b32 {vr(st + u, 2)}, v{Rb + 1} offset0:{5 * u} offset1:{5 * u + 5}')
    a('s_waitcnt lgkmcnt(0)')
    for k in range(16):
        unpack(vFW + 2 * k, vFW + 2 * k + 1, st + k)
    a.label('L_no_ew')
    a(f'''
    v_mov_b32 v{Rb + 2}, {KEYL + 4}
    s_cmp_ge_u32 s{sW}, 4
    s_cbranch_scc1 L_b8
    v_mul_u32_u24 v{Rb}, {REC_STRIDE}, v0
    v_add_u32 v{Rb}, {REC_G}, v{Rb}
    ''')
    poll([f'global_load_dwordx2 {vr(Rb + 4, 2)}, v{Rb}, {sr(WS)} sc1'], [Rb + 5], [], empty='word')
    for c in ('row_ror:8', 'row_ror:4', 'row_ror:2', 'row_ror:1'):
        dpp('v_max_u32', Rb + 4, c)
    a(f'''
    s_mov_b32 exec_lo, 0x00010001
    s_mov_b32 exec_hi, 0x00010001
    ds_max_u32 v{Rb + 2}, v{Rb + 4}
    s_mov_b64 exec, -1
    s_waitcnt lgkmcnt(0)
    ''')
    a.label('L_b8')
    a('s_barrier                                   ; B8')
    a(f'''
    ds_read_b32 v{Rb + 3}, v{Rb + 2}
    s_waitcnt lgkmcnt(0)
    v_readfirstlane_b32 s{sU0}, v{Rb + 3}
    s_and_b32 s{sU1}, s{sU0}, 255
    s_mul_i32 s{sU1}, s{sU1}, {REC_STRIDE}
    ''')
    base_add(sBa, WS, sU1, REC_G)
    stamp('B8 done (winner)')
    a(f'''
    s_cmp_ge_u32 s{sRi}, 20
    s_cbranch_scc1 L_do_e
    ''')
    def deferred(lbl):
        a(f'''
        s_cmp_eq_u32 s{sCand}, 0
        s_cbranch_scc1 {lbl}
        s_cmp_eq_u32 s{sU0}, s{sKey}
        s_cbranch_scc1 {lbl}
        ''')
        for j in range(5):
            a(f'global_store_dword v{vL4}, v{vO + j}, {sr(sXrow)} offset:{256 * j}')
        a.label(lbl)
    deferred('L_def1')
    a(f'''
    s_cmp_ge_u32 s{sRi}, 10
    s_cbranch_scc1 L_fin
    s_cmp_lg_u32 s{sW}, 0
    s_cbranch_scc1 L_fin
    s_mul_i32 s{sU2}, s{sX}, 10
    s_add_u32 s{sU2}, s{sU2}, s{sRi}              ; f
    ''')
    a(f'''
    v_and_b32 v20, 1, v{vL}
    v_lshrrev_b32 v21, 4, v{vL}
    v_lshl_add_u32 v20, v20, 2, v21
    s_lshl_b32 s{sT}, s{sU2}, 3
    v_add_u32 v20, s{sT}, v20                      ; d
    v_lshlrev_b32 v21, 1, v20
    v_add_u32 v21, {MODB_L + 3840}, v21
    v_mov_b32 v22, 0
    ds_read_u16_d16_hi v22, v21                    ; gb[d]
    s_lshr_b32 s{sU3}, s{sU2}, 4                   ; j
    s_cmp_ge_u32 s{sU3}, 3
    s_cselect_b32 s{sT}, 3, 0
    s_sub_u32 s{sU3}, s{sU3}, s{sT}
    s_mul_i32 s{sT}, s{sT}, 342
    s_and_b32 s{sT}, s{sT}, 1024
    s_add_u32 s{sT}, s{sT}, {REC_BASE}
    v_bfe_u32 v24, v20, 1, 6                       ; lane'
    v_and_b32 v25, 1, v20                          ; t
    v_lshlrev_b32 v26, 11, v25
    v_lshl_add_u32 v26, v24, 4, v26
    v_add_u32 v26, s{sT}, v26
    ''')
    poll([f'global_load_dwordx4 v[32:35], v26, {sr(sBa)} sc1'], [35], [], empty='word')
    a(f'''
    s_cmp_eq_u32 s{sU3}, 1
    s_cselect_b64 vcc, -1, 0
    v_cndmask_b32 v27, v32, v33, vcc
    s_cmp_eq_u32 s{sU3}, 2
    s_cselect_b64 vcc, -1, 0
    v_cndmask_b32 v27, v27, v34, vcc
    ''')
    a(f'''
    s_and_b32 s{sU1}, s{sU0}, 0xfffff800
    s_or_b32 s{sU1}, s{sU1}, 0x400
    s_xor_b32 s{sU3}, s{sU1}, 0x80000000
    s_not_b32 s{sT}, s{sU1}
    s_cmp_lt_i32 s{sU1}, 0
    s_cselect_b32 s{sU1}, s{sU3}, s{sT}
    v_mov_b32 v28, s{sU1}
    ''')
    rbf(28, 'v28')
    a(f'''
    v_mul_f32 v28, 0xbfb8aa3b, v28
    v_exp_f32 v28, v28
    v_add_f32 v28, 1.0, v28
    v_rcp_f32 v28, v28
    ''')
    rbf(28, 'v28')
    a(f'''
    s_and_b32 s{sU1}, s{sU0}, 0x7ff
    s_mul_i32 s{sU1}, s{sU1}, 1280
    v_lshlrev_b32 v20, 1, v20
    v_lshrrev_b32 v29, 1, v{vL}
    v_mul_u32_u24 v29, {PY_STRIDE}, v29
    v_and_b32 v30, 16, v{vL16}
    v_add_u32 v29, v29, v30
    v_add_u32 v30, {32 * PY_STRIDE}, v29
    v_add_u32 v31, {64 * PY_STRIDE}, v29
    s_lshl_b32 s{sU2}, s{sU2}, 5
    ''')
    base_add(sXrow, OUTP, sU1)
    base_add(sBb, WS, sU2, PY_G)
    a('s_waitcnt lgkmcnt(0)')
    poll([f'global_load_dwordx4 {vr(36 + 4 * n, 4)}, v{29 + n}, {sr(sBb)} sc1' for n in range(3)],
         list(range(36, 48)), [48, 49], empty='tag')
    a(f'''
    v_pk_add_f32 v[36:37], v[36:37], v[40:41]
    v_pk_add_f32 v[38:39], v[38:39], v[42:43]
    v_pk_add_f32 v[36:37], v[36:37], v[44:45]
    v_pk_add_f32 v[38:39], v[38:39], v[46:47]
    v_permlane32_swap_b32 v36, v38
    v_permlane32_swap_b32 v37, v39
    v_pk_add_f32 v[36:37], v[36:37], v[38:39]
    v_permlane16_swap_b32 v36, v37
    v_add_f32 v36, v36, v37
    ''')
    for c in ('row_ror:8', 'row_ror:4', 'row_ror:2'):
        dpp('v_add_f32', 36, c)
    rbf(36, 'v36')
    a(f'''
    v_mul_f32 v36, v36, v28
    v_fma_f32 v36, v36, v22, v27
    v_cvt_pk_bf16_f32 v36, v36, v36
    s_mov_b32 exec_lo, 0x00030003
    s_mov_b32 exec_hi, 0x00030003
    global_store_short v20, v36, {sr(sXrow)} sc1
    s_mov_b64 exec, -1
    s_branch L_fin
    ''')
    a.label('L_do_e')
    a(f'''
    v_bfe_u32 v30, v0, 2, 6                        ; lane' = (t'>>1)>>1
    v_bfe_u32 v31, v0, 1, 1                        ; t
    v_lshlrev_b32 v28, 4, v30
    v_lshl_add_u32 v28, v31, 11, v28
    ''')
    poll([f'global_load_dwordx4 v[20:23], v28, {sr(sBa)} offset:{REC_H2} sc1',
          f'global_load_dwordx4 v[24:27], v28, {sr(sBa)} offset:{REC_H2 + 1024} sc1'], [23, 27], [30, 31], empty='word')
    acc = 36
    for j in range(5):
        for k in range(4):
            w_ = vr(vEW + 8 * j + 2 * k, 2)
            xr = 20 + j + (j >= 3)
            x_ = vr(xr & ~1, 2)
            if j == 0:
                a(f'v_pk_mul_f32 {vr(acc + 2 * k, 2)}, {w_}, {x_} op_sel:[0,0] op_sel_hi:[1,0]')
            else:
                a(f'v_pk_fma_f32 {vr(acc + 2 * k, 2)}, {w_}, {x_}, {vr(acc + 2 * k, 2)} {BC1 if xr & 1 else BC0}')
    a(f'''
    v_and_b32 v28, 1, v{vL}
    v_lshlrev_b32 v28, 7, v28
    v_and_b32 v29, 48, v{vL}
    v_lshl_add_u32 v28, v29, 1, v28
    s_lshr_b32 s{sU1}, s{sW}, 2
    s_lshl_b32 s{sU1}, s{sU1}, 8
    s_and_b32 s{sT}, s{sW}, 3
    s_lshl_b32 s{sT}, s{sT}, 2
    s_add_u32 s{sU1}, s{sU1}, s{sT}
    s_add_u32 s{sU1}, s{sU1}, {RED}
    v_add_u32 v28, s{sU1}, v28
    v_and_b32 v29, 0xf0, v{vL16}
    v_and_b32 v30, 16, v{vL16}
    v_lshrrev_b32 v30, v30, s{sTag}
    v_bfe_u32 v31, v30, 8, 8
    v_and_b32 v30, 0xff, v30
    v_mov_b32 v32, 0xffffff00
    ''')
    swap_reduce8(acc)
    for c in ('row_ror:8', 'row_ror:4', 'row_ror:2'):
        dpp('v_add_f32', acc, c)
        dpp('v_add_f32', acc + 1, c)
    a(f'''
    s_mov_b32 exec_lo, 0x00030003
    s_mov_b32 exec_hi, 0x00030003
    ds_write2_b32 v28, v{acc}, v{acc + 1} offset0:0 offset1:4
    s_mov_b64 exec, -1
    s_mul_i32 s{sU1}, s{sX}, 12
    s_add_u32 s{sU1}, s{sU1}, s{sRi}
    s_mul_i32 s{sU1}, s{sU1}, {PY_STRIDE}
    s_lshl_b32 s{sT}, s{sW}, 9
    s_add_u32 s{sU1}, s{sU1}, s{sT}
    ''')
    base_add(sBb, WS, sU1, PY_G - 20 * PY_STRIDE)
    a(f'''
    s_waitcnt lgkmcnt(0)
    s_barrier                                   ; B9
    s_cmp_ge_u32 s{sW}, 5
    s_cbranch_scc1 L_e_done
    ds_read_b128 v[20:23], v29 offset:{RED}
    ds_read_b128 v[24:27], v29 offset:{RED + 256}
    s_waitcnt lgkmcnt(0)
    v_pk_add_f32 v[20:21], v[20:21], v[22:23]
    v_pk_add_f32 v[24:25], v[24:25], v[26:27]
    v_add_f32 v20, v20, v21
    v_add_f32 v24, v24, v25
    v_cvt_pk_bf16_f32 v24, v20, v24
    ''')
    unpack(20, 24, 24)
    silu([20], [20], [21])
    rbf(20, 'v20')
    a('v_mul_f32 v20, v20, v24')
    rbf(20, 'v20')
    for u in range(16):
        a(f'v_readlane_b32 s{sGU + u}, v20, {u}')
    for u in range(16):
        w_ = vr(vFW + 2 * u, 2)
        g_ = sr(sGU + (u & ~1))
        d_ = vr(36 + 2 * (u & 1), 2)
        if u < 2:
            a(f'v_pk_mul_f32 {d_}, {w_}, {g_} op_sel:[0,{u & 1}] op_sel_hi:[1,{u & 1}]')
        else:
            a(f'v_pk_fma_f32 {d_}, {w_}, {g_}, {d_} {BC1 if u & 1 else BC0}')
    a('v_pk_add_f32 v[36:37], v[36:37], v[38:39]')
    a('v_and_or_b32 v36, v36, v32, v30')
    a('v_and_or_b32 v37, v37, v32, v31')
    a(f'global_store_dwordx2 v{vE0}, v[36:37], {sr(sBb)} sc1')
    a.label('L_e_done')
    deferred('L_def2')
    a.label('L_fin')
    stamp('end')
    dump_stamps()
    a.label('L_end')
    a('s_endpgm')
    for f in late:
        f()


def fill(base, n_full, voff=vL16, tmp=24):
    cur = voff
    for n in range(n_full):
        if n and n % 4 == 0:
            a(f'v_add_u32 v{tmp}, {1024 * n}, v{voff}')
            cur = tmp
        a(f'global_store_dwordx4 v{cur}, v[20:23], {sr(base)} offset:{1024 * (n % 4)} sc1')


def warm_loads(specs):
    for d, vo, b, imm in specs:
        a(f'global_load_dword v{d}, v{vo}, {sr(b)} offset:{imm} {"" if WARMPOL == "plain" else "nt"}')
    return len(specs)


def retouch(specs):
    if WARMPOL == 'both':
        a('s_waitcnt vmcnt(0)')
        for d, vo, b, imm in specs:
            a(f'global_load_dword v{d}, v{vo}, {sr(b)} offset:{imm} sc1')


sF1, sF2, sF3, sF4, sPb, sGw = 56, 58, 60, 62, 64, 66


WW = [(156, 150, W_R, 0), (157, 150, W_I, 0), (158, 151, W_R, 0), (159, 151, W_I, 0)]
GU = [(156 + n, 152, sGw, 128 * n) for n in range(3)]


def act_wd():
    for n in range(20):
        if n % 4 == 0:
            a(f's_mov_b32 m0, {FW + n * 1024}')
            a(f'v_add_u32 v153, {1024 * n}, v{vL16}')
        a(f'global_load_lds_dwordx4 v153, {sr(sGw)} offset:{1024 * (n % 4)} nt')
    return 20


def slot_loads(role, slot):
    n, rt = 0, []
    if role == 'E' and S_WWARM == slot:
        n += warm_loads(WW)
        rt += WW
    if role != 'E' and S_GUW == slot:
        n += warm_loads(GU)
        rt += GU
    if role == 'E' and S_WD == slot:
        n += act_wd()
    return n, rt


def slot_fills(role, slot):
    n = 0
    if S_FILL1 == slot:
        fill(sF1, 16)
        n += 16
    if S_FILL2 == slot:
        fill(sF2, 16)
        n += 16
    return n


def publish():
    a(f'''
    ds_read_b128 v[40:43], v28 offset:{RED}
    ds_read_b128 v[44:47], v28 offset:{RED + 16}
    s_waitcnt lgkmcnt(0)
    v_pk_add_f32 v[40:41], v[40:41], v[42:43]
    v_pk_add_f32 v[44:45], v[44:45], v[46:47]
    v_pk_add_f32 v[40:41], v[40:41], v[44:45]
    v_add_f32 v40, v40, v41
    v_and_or_b32 v40, v40, v33, v34
    global_store_dword v{vL4}, v40, {sr(sPb)} sc1
    ''')
    stamp('published', 'H0')


def helper0():
    a.label('L_h0')
    for k in range(4):
        a(f'v_mov_b32 v{20 + k}, 0')
    a(f'''
    v_mov_b32 v28, {KEYL}
    ds_write_b64 v28, v[20:21]
    s_lshl_b32 s{sU0}, s{sMe}, 14
    s_mul_i32 s{sU2}, s{sX}, 10
    s_add_u32 s{sU2}, s{sU2}, s{sRi}
    s_lshl_b32 s{sU2}, s{sU2}, 8
    s_cmp_lt_u32 s{sRi}, 10
    s_cselect_b32 s{sU1}, 0, {MODB_G - 2560}
    s_add_u32 s{sU2}, s{sU2}, s{sU1}
    s_waitcnt lgkmcnt(0)
    ''')
    stamp('kernarg', 'H0')
    epoch_load()
    base_add(sF1, WS, sU0, T1_G)
    base_add(sF2, WS, sU0, T2_G)
    base_add(sPb, WS, sU2)
    a(f'''
    v_lshrrev_b32 v24, 4, v{vL}
    v_lshlrev_b32 v24, 9, v24
    v_and_b32 v25, 0xf0, v{vL16}
    v_add_u32 v24, v24, v25
    v_add_u32 v120, {MODB_G}, v24
    v_add_u32 v121, {MODB_G + 4096}, v24
    v_add_u32 v122, {MODB_G + 8192}, v24
    v_add_u32 v123, {MODB_G + 12288}, v24
    v_add_u32 v124, {MODB_G + 16384}, v24
    v_lshlrev_b32 v28, 5, v{vL}
    v_mul_u32_u24 v152, 3072, v{vL}
    s_cmp_lt_u32 s{sRi}, 20
    s_cbranch_scc0 L_h0_E
    s_cmp_lt_u32 s{sRi}, 10
    s_cselect_b32 s{sGw}, s{W_G}, s{W_U}
    s_cselect_b32 s{sGw + 1}, s{W_G + 1}, s{W_U + 1}
    s_cselect_b32 s{sU1}, 0, 10
    s_sub_u32 s{sU1}, s{sRi}, s{sU1}
    s_mul_i32 s{sU1}, s{sU1}, {64 * 3072}
    s_mul_i32 s{sU2}, s{sX}, 384
    s_add_u32 s{sU1}, s{sU1}, s{sU2}
    ''')
    base_add(sGw, sGw, sU1)
    a(f's_cmp_lt_u32 s{sRi}, 10')
    a('s_cbranch_scc0 L_h0_B')
    modb = [f'global_load_dwordx4 {vr(40 + 8 * n + 4 * h, 4)}, v{120 + n // 2}, {sr(WS)} offset:{2048 * (n % 2) + 256 * h} sc1'
            for n in range(10) for h in range(2)]
    for role in 'ABE':
        if role != 'A':
            a.label(f'L_h0_{role}')
        if role == 'E':
            a(f'''
            s_mul_i32 s{sU1}, s{sX}, 12
            s_add_u32 s{sU1}, s{sU1}, s{sRi}
            s_sub_u32 s{sU1}, s{sU1}, 20
            s_mul_i32 s{sU1}, s{sU1}, 20480
            ''')
            base_add(sGw, W_D, sU1)
            a(f'''
            s_sub_u32 s{sU3}, s{sRi}, 20
            s_lshl_b32 s{sU3}, s{sU3}, 7
            s_mul_i32 s{sU1}, s{sX}, 642
            s_movk_i32 s{sU2}, 0x2aab
            s_movk_i32 s{sT}, 5136
            ''')
            for n in range(2):
                a(f'''
                v_add_u32 v40, s{sU3}, v{vL}
                v_add_u32 v40, {64 * n}, v40
                v_mul_u32_u24 v41, s{sU2}, v40
                v_lshrrev_b32 v41, 16, v41
                v_mul_u32_u24 v42, 6, v41
                v_sub_u32 v42, v40, v42
                v_lshlrev_b32 v42, 7, v42
                v_min_u32 v42, 638, v42
                v_add_u32 v42, s{sU1}, v42
                v_mad_u32_u24 v42, v41, s{sT}, v42
                v_and_b32 v{150 + n}, -4, v42
                ''')
        rts = []
        if role != 'A':
            rts = slot_loads(role, 0)[1]
            slot_fills(role, 0)
        a('s_waitcnt lgkmcnt(0)')
        epoch_tag()
        tag_bytes()
        a(f'''
        v_mov_b32 v27, s{sTag}
        v_lshlrev_b32 v34, 3, v{vL}
        v_and_b32 v34, 24, v34
        v_bfe_u32 v34, v27, v34, 8
        v_mov_b32 v33, 0xffffff00
        ''')
        bar('B1')
        if role == 'A':
            publish()
            rts += slot_loads(role, 0)[1]
            slot_fills(role, 0)
        rts += slot_loads(role, 1)[1]
        slot_fills(role, 1)
        bar('BT')
        if role == 'B':
            publish()
        if rts:
            retouch(rts)
        stamp('w0 done', 'H0')
        bar('B2')
        a('s_waitcnt vmcnt(0)')
        slot_fills(role, 2)
        rts = slot_loads(role, 2)[1]
        assert S_FILL1 < 2
        bar('B3')
        if rts:
            retouch(rts)
        bar('B3b')
        bar('B4')
        a('s_waitcnt vmcnt(0)')
        for ld in modb:
            a(ld)
        k, rts = slot_loads(role, 3)
        bar('B5')
        a(f's_waitcnt vmcnt({k})')
        if role != 'E':
            a('s_branch L_h0_f')
    a.label('L_h0_f')
    a(f'v_lshlrev_b32 v28, 3, v{vL}')
    a(f'v_add_u32 v28, {MODB_L}, v28')
    poll(modb, list(range(40, 120)), [126, 127, 128], empty='tag', issued=True, younger=63)
    a(f'''
    v_mov_b32 v31, 1.0
    v_cmp_gt_u32 vcc, 32, v{vL}
    v_cndmask_b32 v32, 0, 1.0, vcc
    ''')
    for n in range(10):
        b = 40 + 8 * n
        a(f'v_pk_add_f32 {vr(b, 2)}, {vr(b, 2)}, {vr(b + 4, 2)}')
        a(f'v_pk_add_f32 {vr(b + 2, 2)}, {vr(b + 2, 2)}, {vr(b + 6, 2)}')
        a(f'v_cvt_pk_bf16_f32 v{b + 4}, v{b}, v{b + 1}')
        a(f'v_cvt_pk_bf16_f32 v{b + 5}, v{b + 2}, v{b + 3}')
        if n in (5, 6, 7):
            unpack(b, b + 1, b + 4)
            unpack(b + 2, b + 3, b + 5)
            one = 'v[32:33] op_sel:[0,0] op_sel_hi:[1,0]' if n == 7 else 'v[30:31] op_sel:[0,1] op_sel_hi:[1,1]'
            a(f'v_pk_add_f32 {vr(b, 2)}, {vr(b, 2)}, {one}')
            a(f'v_pk_add_f32 {vr(b + 2, 2)}, {vr(b + 2, 2)}, {one}')
            a(f'v_cvt_pk_bf16_f32 v{b + 4}, v{b}, v{b + 1}')
            a(f'v_cvt_pk_bf16_f32 v{b + 5}, v{b + 2}, v{b + 3}')
        a(f'ds_write_b64 v28, {vr(b + 4, 2)} offset:{512 * n}')
    a('s_waitcnt lgkmcnt(0)')
    stamp('modb in', 'H0')
    if WARMPOL == 'both' and S_GUW == 3:
        a(f's_cmp_lt_u32 s{sRi}, 20')
        a('s_cbranch_scc0 L_h0_g')
        retouch(GU)
        a.label('L_h0_g')
    bar('B5b')
    bar('B6')
    a(f'''
    s_cmp_lg_u32 s2, 0
    s_cbranch_scc1 L_h0_ne
    v_mov_b32 v26, {EPOCH_G}
    s_mov_b64 exec, 1
    global_store_dword v26, v27, {sr(WS)} sc1
    s_mov_b64 exec, -1
    ''')
    a.label('L_h0_ne')
    a('s_waitcnt vmcnt(0)')
    dump_stamps('H0')
    a('s_endpgm')


def helper1():
    a.label('L_h1')
    a(f'''
    s_getpc_b64 {sr(sBa)}
    L_pc:
    s_add_u32 s{sBb}, s{sBa}, L_tables-L_pc
    s_addc_u32 s{sBb + 1}, s{sBa + 1}, 0
    ''')

    def tabs(q0, q1):
        for q in range(q0, q1):
            if q % 4 == 0 or q == q0:
                a(f's_mov_b32 m0, {TAB + (q & ~3) * 1024}')
                a(f'v_add_u32 v20, {(q & ~3) * 1024}, v{vL16}')
            a(f'global_load_lds_dwordx4 v20, {sr(sBb)} offset:{1024 * (q % 4)}')

    def tab2():
        tabs(14, NTAB)
        a(f'''
        s_mov_b32 m0, {WR_L}
        s_nop 0
        global_load_lds_dwordx4 v{vL16}, {sr(B_WR)}
        s_mov_b64 exec, 0xffff
        global_load_lds_dwordx4 v{vL16}, {sr(B_WR)} offset:1024
        s_mov_b64 exec, -1
        ''')
        return NTAB - 14 + 2

    def egather():
        for n in range(20):
            j_, wq = n // 4, n % 4
            a(f'''
            s_mov_b32 m0, {EW + wq * 5120 + j_ * 1024}
            s_nop 0
            global_load_lds_dwordx4 v40, {sr(sF1)}
            s_mov_b32 m0, {EW + (wq + 4) * 5120 + j_ * 1024}
            s_nop 0
            global_load_lds_dwordx4 v40, {sr(sF2)}
            ''')
            if n < 19:
                a(f'v_add_u32 v40, {32 * 3072}, v40')
        stamp('EG issued', 'H1')

    a(f'''
    s_mul_i32 s{sU1}, s{sIdx}, 40
    s_sub_u32 s{sT}, 1260, s{sU1}
    s_sub_u32 s{sU0}, 0, s{sX}
    s_and_b32 s{sU0}, s{sU0}, 7
    s_cmp_ge_u32 s{sIdx}, 16
    s_cselect_b32 s{sU1}, s{sT}, s{sU1}             ; 2*C0
    s_cselect_b32 s{sU2}, -1, 1                     ; direction
    s_cselect_b32 s{sU0}, s{sU0}, s{sX}             ; q
    v_lshrrev_b32 v23, 1, v{vL}
    v_lshl_add_u32 v23, v23, 3, s{sU0}              ; q + 8*kappa (n = 0)
    v_mul_lo_u32 v23, v23, s{sU2}
    s_lshl_b32 s{sU2}, s{sU2}, 8
    v_and_b32 v24, 1, v{vL}
    v_mul_u32_u24 v24, 12, v24
    s_movk_i32 s{sU3}, 642
    v_mov_b32 v26, s{sU1}
    ''')
    for n in range(8):
        a(f'''
        v_and_b32 v25, 0x7ff, v23
        v_mad_u32_u24 v25, v25, s{sU3}, v26
        v_and_b32 v25, -4, v25
        v_add_u32 v{30 + n}, v25, v24
        v_add_u32 v23, s{sU2}, v23
        ''')
    a(f'''
    s_max_u32 s{sU1}, s{sRi}, 20
    s_mul_i32 s{sU0}, s{sX}, 12
    s_add_u32 s{sU0}, s{sU0}, s{sU1}
    s_sub_u32 s{sU0}, s{sU0}, 20
    s_lshl_b32 s{sU0}, s{sU0}, 5
    v_lshrrev_b32 v40, 1, v{vL}
    v_mul_u32_u24 v40, 3072, v40
    v_and_b32 v41, 16, v{vL16}
    v_add_u32 v40, v40, v41
    s_waitcnt lgkmcnt(0)
    ''')
    base_add(sF1, W_G, sU0)
    base_add(sF2, W_U, sU0)
    a(f's_cmp_lt_u32 s{sRi}, 10')
    a('s_cbranch_scc0 L_h1_t')
    bar('B1')
    a.label('L_h1_t')
    tabs(0, 14)
    n = tab2() if S_TAB2 == 1 else 0
    a(f's_waitcnt vmcnt({n})')
    stamp('tab in', 'H1')
    a(f's_cmp_lt_u32 s{sRi}, 10')
    a('s_cbranch_scc1 L_h1_u')
    bar('B1')
    a.label('L_h1_u')
    bar('BT')
    bar('B2')
    for n in range(8):
        a(f'''
        s_mov_b32 m0, {WST + n * 1024}
        s_nop 0
        global_load_lds_dwordx3 v{30 + n}, {sr(W_R)}
        s_mov_b32 m0, {WST + 8192 + n * 1024}
        s_nop 0
        global_load_lds_dwordx3 v{30 + n}, {sr(W_I)}
        ''')
    if S_TAB2 == 2:
        tab2()
    stamp('W issued', 'H1')
    bar('B3')
    a('s_waitcnt vmcnt(0)')
    stamp('W in', 'H1')
    a(f'''
    s_cmp_lt_u32 s{sRi}, 20
    s_cbranch_scc1 L_h1_end
    ''')
    bar('B3b')
    bar('B4')
    if S_EG == 3:
        egather()
    bar('B5')
    if S_EG == 3 and DIAG:
        a('s_waitcnt vmcnt(0)')
        stamp('EG in', 'H1')
    bar('B5b')
    bar('B6')
    if S_EG == 4:
        egather()
    bar('B7')
    a('s_waitcnt vmcnt(0)')
    a.label('L_h1_end')
    stamp('end', 'H1')
    dump_stamps('H1')
    a('s_endpgm')


prologue()
main_path()
helper0()
helper1()
body = a.finish()

hdr = open(f'cdna_kernels/{NAME}.s.ref').read().split('; Override launch')[0]
T = tables()
tab = []
flat = T.reshape(-1)
for k in range(0, flat.size, 8):
    tab.append('.long ' + ','.join('0x%08x' % v for v in flat[k:k + 8]))

src = hdr + f'''; @launch grid=(256,1,1) block=(640,1,1) lds={LDS_BYTES}
.amdgcn_target "amdgcn-amd-amdhsa--gfx950"
.text
.globl {NAME}_kernel
.p2align 8
.type {NAME}_kernel,@function
{NAME}_kernel:
{body}
.p2align 8
.type L_tables,@object
L_tables:
''' + '\n'.join(tab) + f'''
.size L_tables, {NTAB * 1024}
.fill (8192 - ((. - {NAME}_kernel) & 8191)) & 8191, 1, 0
L_tables_end:
.section .rodata,"a"
.p2align 6
.amdhsa_kernel {NAME}_kernel
  .amdhsa_next_free_vgpr 168
  .amdhsa_next_free_sgpr 102
  .amdhsa_accum_offset 168
  .amdhsa_group_segment_fixed_size 0
  .amdhsa_kernarg_size 104
  .amdhsa_user_sgpr_count 2
  .amdhsa_user_sgpr_kernarg_segment_ptr 1
  .amdhsa_system_sgpr_workgroup_id_x 1
.end_amdhsa_kernel
'''
open(OUT, 'w').write(src)
print('wrote', OUT, 'lds', LDS_BYTES, 'lines', len(a.lines), 'nops', a.nnops)
```

```python
import sys, struct
import numpy as np
from asmdsl import Asm

NAME = 'adaLN_cond__spectral_gfnet__moe_arch_mod__prompt'
DIAG = '--diag' in sys.argv or '--dbgdiag' in sys.argv
DBGDIAG = '--dbgdiag' in sys.argv
OUT = [a for a in sys.argv[1:] if not a.startswith('--')]
OUT = OUT[0] if OUT else f'cdna_kernels/{NAME}.s'
SPIN = 60000


def opt(name, default):
    for x in sys.argv:
        if x.startswith(f'--{name}='):
            return x.split('=', 1)[1]
    return default


PROBE = opt('probe', None)
PROBEWG = int(opt('probewg', 8))
if PROBE:
    DIAG = True
WARMPOL = opt('warm', 'both')
S_BLOAD = int(opt('bload', 0))
S_FILL1 = int(opt('fill1', -1))
S_FILL2 = int(opt('fill2', -1))
S_WWARM = int(opt('wwarm', 1))
S_GUW = int(opt('guw', 1))
S_WD = int(opt('wd', 1))
S_EG = int(opt('eg', 3))
S_TAB2 = int(opt('tab2', 1))

MODA_G = 0
MODB_G = 20480
EPOCH_G = 40960
PY_G = 65536
PY_STRIDE = 2688
REC_G = 0x80000
REC_STRIDE = 8320
REC_H2 = 128
REC_BASE = 128 + 4096
T1_G = 0x400000
T2_G = 0x800000
DIAG_G = 0xC00000

NTAB = 25
TAB = 0
RED = TAB + NTAB * 1024
KEYL = RED + 2048
XB2 = KEYL + 64
XB1 = XB2 + 20480
XB3 = XB1
MODA_L = XB1 + 18560
MODB_L = MODA_L + 5120
WR_L = MODB_L + 5120
WST = WR_L + 2048
EW = WST + 16384
FW = EW + 40960
STL = FW + 20480
LDS_BYTES = STL + 256
assert LDS_BYTES <= 163840, LDS_BYTES

T_F20C, T_F20S, T_TW1, T_F32, T_F16, T_TW2, T_TW3, T_F20I = 0, 1, 2, 6, 14, 16, 18, 22


def f2u(x):
    return struct.unpack('<I', struct.pack('<f', float(x)))[0]


def bf(x):
    u = f2u(x)
    return ((u + 0x7FFF + ((u >> 16) & 1)) >> 16) & 0xFFFF


def pk(lo, hi):
    return bf(lo) | (bf(hi) << 16)


def cs(num, den):
    a = 2 * np.pi * (num % den) / den
    c, s = np.cos(a), np.sin(a)
    if abs(c) < 1e-12: c = 0.0
    if abs(s) < 1e-12: s = 0.0
    return c, s


def kaof(x):
    ka = 3 * (x >> 2) + (x & 3)
    return ka if (x & 3) < 3 and ka <= 10 else None


def tables():
    T = np.zeros((NTAB, 64, 4), np.uint32)
    for l in range(64):
        i, g = l & 15, l >> 4
        c8, s8 = [0.0] * 8, [0.0] * 8
        for j in range(5):
            if kaof(i) is not None:
                c, s = cs((4 * j + g) * kaof(i), 20)
                c8[j], s8[j] = c, -s
        for d in range(4):
            T[T_F20C, l, d] = pk(c8[2 * d], c8[2 * d + 1])
            T[T_F20S, l, d] = pk(s8[2 * d], s8[2 * d + 1])
        for t in range(2):
            for r in range(4):
                c, s = cs((8 * g + 2 * r + t) * (kaof(i) or 0), 640)
                T[T_TW1 + 2 * t, l, r] = f2u(c)
                T[T_TW1 + 2 * t + 1, l, r] = f2u(s)
                c, s = cs((2 * i + t) * (kaof(4 * g + r) or 0), 640)
                T[T_TW3 + 2 * t, l, r] = f2u(c)
                T[T_TW3 + 2 * t + 1, l, r] = f2u(s)
        for tile in range(2):
            for ks in range(2):
                for r in range(4):
                    c, s = cs((2 * i + tile) * (8 * g + 2 * r + ks), 32)
                    T[T_F32 + tile * 4 + 0 + ks, l, r] = pk(c, s)
                    T[T_F32 + tile * 4 + 2 + ks, l, r] = pk(-s, c)
        for r in range(4):
            c, s = cs(i * (4 * g + r), 16)
            T[T_F16, l, r] = pk(c, s)
            T[T_F16 + 1, l, r] = pk(-s, c)
            c, s = cs(i * (4 * g + r), 256)
            T[T_TW2, l, r] = f2u(c)
            T[T_TW2 + 1, l, r] = f2u(s)
            ka = kaof(4 * g + r)
            if ka is not None:
                a1 = 4 * (i & 3) + (i >> 2)
                c, s = cs(a1 * ka, 20)
                T[T_F20I, l, r] = pk(c, -s)
                c, s = cs((16 + (i >> 2)) * ka, 20)
                if (i & 3) == 0:
                    T[T_F20I + 1, l, r] = pk(c, -s)
                if (i & 3) == 1:
                    T[T_F20I + 2, l, r] = pk(c, -s)
    return T


def vr(a, n=1):
    return f'v{a}' if n == 1 else f'v[{a}:{a + n - 1}]'


def sr(a, n=2):
    return f's{a}' if n == 1 else f's[{a}:{a + n - 1}]'


sW, sX, sIdx, sMe, sT = 3, 4, 5, 6, 7
A_X, W_R, W_I, B_WR, W_G, W_U, W_D = 8, 10, 12, 16, 18, 20, 22
C_, W_MOD, OUTP, DBG, WS = 24, 26, 28, 30, 32
sBa, sBb, sBc = 34, 36, 38
sCnt = 40
sM1B = 41
sU0, sU1, sU2, sU3 = 42, 43, 46, 47
sM7 = 44
sRow = 48
sKey = 49
sV1, sV2 = 50, 51
sHI = 52
sCand = 53
sTag = 55
sRi = 54
sGU = 56
sXrow = 72
sTS = 74

vL, vL16, vL4, vS, vPoll = 1, 2, 3, 4, 5
vM8F, vM8I = 6, 8
vXS = 10
Ra, Rb, RD, Rc = 20, 28, 36, 52
vF32 = 60
vTW = 92
vF20 = 108
vVec = 120
vE0 = 160


a = Asm()
stamps = {}
NST = 24


def stamp(name, path='M', wait=True):
    if not DIAG:
        return
    if PROBE and (path != 'M' or not (name == 'start' or name.startswith(PROBE))):
        return
    lst = stamps.setdefault(path, [])
    if name not in lst:
        lst.append(name)
    k = lst.index(name)
    assert k < NST
    a(f's_memrealtime s[100:101]')
    a('s_waitcnt lgkmcnt(0)')
    a(f's_mov_b32 s{sTS + k}, s100')


def dump_stamps(path='M'):
    if not DIAG:
        return
    if PROBE:
        if path != 'M':
            return
        a(f'''
        s_cmp_lg_u32 s2, {PROBEWG}
        s_cbranch_scc1 L_end
        s_cmp_lg_u32 s{sW}, 0
        s_cbranch_scc1 L_end
        ''')
        if PROBE == 'fix':
            a(f's_movk_i32 s{sU0}, 6000')
        else:
            a(f's_sub_u32 s{sU0}, s{sTS + 1}, s{sTS}')
            a(f's_lshl_b32 s{sU0}, s{sU0}, 4')
            a(f's_add_u32 s{sU0}, s{sU0}, 6000')
            a(f's_min_u32 s{sU0}, s{sU0}, 100000')
        a(f'''
        L_probe:
        s_memrealtime s[100:101]
        s_waitcnt lgkmcnt(0)
        s_sub_u32 s{sU1}, s100, s{sTS}
        s_cmp_lt_u32 s{sU1}, s{sU0}
        s_cbranch_scc1 L_probe
        ''')
        return
    if DBGDIAG:
        if path != 'M':
            return
        a('v_mov_b32 v20, 0')
        a('s_mov_b64 exec, 1')
        a(f's_not_b32 s{sU0}, s{sTS}')
        a(f'v_mov_b32 v22, s{sU0}')
        a(f'global_atomic_umax v20, v22, {sr(DBG)} offset:4 sc1')
        ks = [0] + list(range(2, len(stamps['M'])))
        for n, k in enumerate(ks[:14]):
            a(f'v_mov_b32 v{23 + n}, s{sTS + k}')
            a(f'global_atomic_umax v20, v{23 + n}, {sr(DBG)} offset:{8 + 4 * n} sc1')
        print('dbg slots:', [(2 + n, stamps['M'][k]) for n, k in enumerate(ks[:14])])
        return
    if path != 'M':
        for k in range(NST):
            a(f'v_writelane_b32 v20, s{sTS + k}, {k}')
        a(f'v_lshlrev_b32 v21, 2, v{vL}')
        a(f'v_add_u32 v21, {STL + (128 if path == "H1" else 0)}, v21')
        a('s_mov_b32 exec_hi, 0')
        a('ds_write_b32 v21, v20')
        a('s_waitcnt lgkmcnt(0)')
        return
    a(f'''
    s_lshl_b32 s{sU0}, s2, 11
    v_add_u32 v21, {STL}, v{vL4}
    ds_read_b32 v22, v21
    ''')
    base_add(sBa, WS, sU0, DIAG_G + 1024)
    a('s_waitcnt lgkmcnt(0)')
    a(f'global_store_dword v{vL4}, v22, {sr(sBa)}')
    a(f'''
    s_lshl_b32 s{sU0}, s2, 11
    s_lshl_b32 s{sU1}, s{sW}, 7
    s_add_u32 s{sU0}, s{sU0}, s{sU1}
    s_memtime s[100:101]
    ''')
    base_add(sBa, WS, sU0, DIAG_G)
    a('v_mov_b32 v20, 0')
    a('s_mov_b64 exec, 1')
    for k in range(0, NST, 2):
        a(f'v_mov_b32 v22, s{sTS + k}')
        a(f'v_mov_b32 v23, s{sTS + k + 1}')
        a(f'global_store_dwordx2 v20, v[22:23], {sr(sBa)} offset:{4 * k}')
        a('s_nop 1')
    a('s_waitcnt lgkmcnt(0)')
    a('s_sub_u32 s100, s100, s98')
    a('v_mov_b32 v22, s100')
    a(f'global_store_dword v20, v22, {sr(sBa)} offset:112')
    a('s_getreg_b32 s42, hwreg(HW_REG_XCC_ID)')
    a('s_getreg_b32 s43, hwreg(HW_REG_HW_ID)')
    a('v_mov_b32 v22, s42')
    a('v_mov_b32 v23, s43')
    a(f'global_store_dwordx2 v20, v[22:23], {sr(sBa)} offset:120')


def base_add(dst, src, off_s=None, imm=0):
    if off_s is not None:
        if imm:
            a(f's_add_u32 s{sT}, s{off_s}, {imm}')
            off_s = sT
        a(f's_add_u32 s{dst}, s{src}, s{off_s}')
    else:
        a(f's_add_u32 s{dst}, s{src}, {imm}')
    a(f's_addc_u32 s{dst + 1}, s{src + 1}, 0')


lblc = [0]


def newlabel(p):
    lblc[0] += 1
    return f'L_{p}_{lblc[0]}'


def poll(loads, regs, tmp, mask=None, empty='eq -1', between=None, younger=0, issued=False):
    L, D = newlabel('poll'), newlabel('polld')
    split = between is not None or issued
    if split:
        Cc = newlabel('pollc')
        if not issued:
            if mask is not None:
                a(f's_mov_b64 exec, {mask}')
            for ld in loads:
                a(ld)
            if mask is not None:
                a('s_mov_b64 exec, -1')
            between()
        if mask is not None:
            a(f's_mov_b64 exec, {mask}')
        a(f's_mov_b32 s{sCnt}, {SPIN}')
        a(f's_waitcnt vmcnt({younger})')
        a(f's_branch {Cc}')
    else:
        if mask is not None:
            a(f's_mov_b64 exec, {mask}')
        a(f's_mov_b32 s{sCnt}, {SPIN}')
    a.label(L)
    for ld in loads:
        a(ld)
    a('s_waitcnt vmcnt(0)')
    if split:
        a.label(Cc)
    if empty == 'tag':
        for n, r in enumerate(regs):
            a(f'v_xor_b32 v{r}, s{sTB + (n & 3)}, v{r}')
        rem = list(regs)
        for c in tmp:
            a(f'v_or3_b32 v{c}, v{rem[0]}, v{rem[1]}, v{rem[2]}')
            rem = rem[3:]
        n = 0
        while len(rem) >= 2:
            c = tmp[n % len(tmp)]
            a(f'v_or3_b32 v{c}, v{c}, v{rem[0]}, v{rem[1]}')
            rem = rem[2:]
            n += 1
        t = tmp[0]
        rem = rem + list(tmp[1:])
        while rem:
            if len(rem) >= 2:
                a(f'v_or3_b32 v{t}, v{t}, v{rem[0]}, v{rem[1]}')
                rem = rem[2:]
            else:
                a(f'v_or_b32 v{t}, v{t}, v{rem[0]}')
                rem = rem[1:]
        a(f'v_and_b32 v{t}, 0xff, v{t}')
        empty = 'ne 0'
    elif empty == 'word':
        if len(regs) == 1:
            t = regs[0]
            empty = f'ne s{sTag}'
        else:
            assert len(regs) == 2
            t = tmp[0]
            a(f'v_xor_b32 v{t}, v{regs[0]}, v{regs[1]}')
            a(f'v_xor_b32 v{tmp[1]}, s{sTag}, v{regs[0]}')
            a(f'v_or_b32 v{t}, v{t}, v{tmp[1]}')
            empty = 'ne 0'
    elif empty == 'never':
        empty = 'ne 0'
    elif len(regs) == 1:
        t = regs[0]
    else:
        rem = list(regs)
        outs = []
        k = 0
        while len(rem) >= 3 and k < len(tmp):
            a(f'v_max3_u32 v{tmp[k]}, v{rem[0]}, v{rem[1]}, v{rem[2]}')
            outs.append(tmp[k])
            rem = rem[3:]
            k += 1
        rem = outs[1:] + rem
        t = outs[0] if outs else None
        if t is None:
            t = tmp[0]
            a(f'v_max_u32 v{t}, v{rem[0]}, v{rem[1]}')
            rem = rem[2:]
        while rem:
            if len(rem) >= 2:
                a(f'v_max3_u32 v{t}, v{t}, v{rem[0]}, v{rem[1]}')
                rem = rem[2:]
            else:
                a(f'v_max_u32 v{t}, v{t}, v{rem[0]}')
                rem = rem[1:]
    a(f'v_cmpx_{empty.split()[0]}_u32 vcc, {empty.split()[1]}, v{t}')
    a(f's_cbranch_execz {D}')
    a(f's_sub_u32 s{sCnt}, s{sCnt}, 1')
    a(f's_cbranch_scc0 {L}')
    a.label(D)
    a('s_mov_b64 exec, -1')


def epoch_load():
    a(f's_load_dword s{sTag}, {sr(WS)}, {EPOCH_G}')


def epoch_tag():
    a(f'''
    s_and_b32 s{sTag}, s{sTag}, 0x7f7f7f7f
    s_add_u32 s{sTag}, s{sTag}, 0x01010101
    s_or_b32 s{sTag}, s{sTag}, 0x80808080
    ''')


sTB = 68


def tag_bytes():
    for k in range(4):
        a(f's_bfe_u32 s{sTB + k}, s{sTag}, {hex(0x80000 | (8 * k))}')


def dpp(op, r, ctrl, rm='0xf'):
    a(f'{op}_dpp v{r}, v{r}, v{r} {ctrl} row_mask:{rm} bank_mask:0xf')


def wave_sum(regs, dst_s, op='v_add_f32'):
    for c in ('row_ror:8', 'row_ror:4', 'row_ror:2', 'row_ror:1'):
        for r in regs:
            dpp(op, r, c)
    for r in regs:
        dpp(op, r, 'row_bcast:15', '0xa')
    for r in regs:
        dpp(op, r, 'row_bcast:31', '0xc')
    for r, s in zip(regs, dst_s):
        a(f'v_readlane_b32 s{s}, v{r}, 63')


def rbf(dst, src):
    a(f'v_cvt_pk_bf16_f32 v{dst}, {src}, {src}')
    a(f'v_and_b32 v{dst}, s{sHI}, v{dst}')


def unpack(dlo, dhi, src):
    a(f'v_lshlrev_b32 v{dlo}, 16, v{src}')
    a(f'v_and_b32 v{dhi}, s{sHI}, v{src}')


def mfma32(d, x, y, c=None):
    a(f'v_mfma_f32_16x16x32_bf16 {vr(d, 4)}, {vr(x, 4)}, {vr(y, 4)}, {vr(c, 4) if c is not None else 0}')


def mfma16(d, x, y):
    a(f'v_mfma_f32_16x16x16_bf16 {vr(d, 4)}, {vr(x, 2)}, {vr(y, 2)}, 0')


def cmul(tr, ti, re, im, c, s, sign):
    nr = 'neg_lo:[1,0,0] neg_hi:[1,0,0]'
    for h in (0, 2):
        a(f'v_pk_mul_f32 {vr(tr + h, 2)}, {vr(re + h, 2)}, {vr(c + h, 2)}')
    for h in (0, 2):
        a(f'v_pk_mul_f32 {vr(ti + h, 2)}, {vr(im + h, 2)}, {vr(c + h, 2)}')
    for h in (0, 2):
        a(f'v_pk_fma_f32 {vr(tr + h, 2)}, {vr(im + h, 2)}, {vr(s + h, 2)}, {vr(tr + h, 2)} {nr if sign > 0 else ""}')
    for h in (0, 2):
        a(f'v_pk_fma_f32 {vr(ti + h, 2)}, {vr(re + h, 2)}, {vr(s + h, 2)}, {vr(ti + h, 2)} {nr if sign < 0 else ""}')


def pack4(d, lo, hi, step=1, n=4):
    for r in range(n):
        a(f'v_cvt_pk_bf16_f32 v{d + r * step}, v{lo + r}, v{hi + r}')


def tab_read(dst, q):
    a(f'ds_read_b128 {vr(dst, 4)}, v{vL16} offset:{TAB + q * 1024}')


def tm(j, t):
    return 4 * t + j if j < 4 else 8 + t


def read_tmajor(dst, vaddr, off):
    o = off // 256
    assert off % 256 == 0 and o + 6 < 256
    for t in range(2):
        a(f'ds_read2st64_b32 {vr(dst + 4 * t, 2)}, v{vaddr + t} offset0:{o} offset1:{o + 2}')
        a(f'ds_read2st64_b32 {vr(dst + 4 * t + 2, 2)}, v{vaddr + t} offset0:{o + 4} offset1:{o + 6}')
    a(f'ds_read_b64 {vr(dst + 8, 2)}, v{vaddr} offset:{off + 2048}')


def silu(dst, src, tmp):
    for d, s, t in zip(dst, src, tmp):
        a(f'v_mul_f32 v{t}, 0xbfb8aa3b, v{s}')
    for t in tmp:
        a(f'v_exp_f32 v{t}, v{t}')
    for t in tmp:
        a(f'v_add_f32 v{t}, 1.0, v{t}')
    for t in tmp:
        a(f'v_rcp_f32 v{t}, v{t}')
    for d, s, t in zip(dst, src, tmp):
        a(f'v_mul_f32 v{d}, v{s}, v{t}')


def swap_reduce8(acc):
    for k in range(4):
        a(f'v_permlane32_swap_b32 v{acc + k}, v{acc + k + 4}')
    a(f'v_pk_add_f32 {vr(acc, 2)}, {vr(acc, 2)}, {vr(acc + 4, 2)}')
    a(f'v_pk_add_f32 {vr(acc + 2, 2)}, {vr(acc + 2, 2)}, {vr(acc + 6, 2)}')
    for k in range(2):
        a(f'v_permlane16_swap_b32 v{acc + k}, v{acc + k + 2}')
    a(f'v_pk_add_f32 {vr(acc, 2)}, {vr(acc, 2)}, {vr(acc + 2, 2)}')


BC0 = 'op_sel:[0,0,0] op_sel_hi:[1,0,1]'
BC1 = 'op_sel:[0,1,0] op_sel_hi:[1,1,1]'


def prologue():
    a(f'''
    s_cmp_ge_u32 s2, 256
    s_cbranch_scc1 L_end
    ''')
    if DIAG:
        for k in range(NST):
            a(f's_mov_b32 s{sTS + k}, 0')
        a('s_memtime s[98:99]')
        for p in ('M', 'H0', 'H1'):
            stamps[p] = ['start']
        stamp('start')
    a(f'''
    s_load_dwordx16 s[8:23], s[0:1], 0
    s_load_dwordx8 s[24:31], s[0:1], 64
    s_load_dwordx2 s[32:33], s[0:1], 96
    v_lshrrev_b32 v{vL}, 6, v0
    s_and_b32 s{sX}, s2, 7
    v_readfirstlane_b32 s{sW}, v{vL}
    v_and_b32 v{vL}, 63, v0
    s_lshr_b32 s{sIdx}, s2, 3
    s_lshl_b32 s{sMe}, s{sX}, 5
    s_add_u32 s{sMe}, s{sMe}, s{sIdx}
    s_add_u32 s{sRi}, s{sIdx}, 31
    s_and_b32 s{sRi}, s{sRi}, 31
    v_lshlrev_b32 v{vL16}, 4, v{vL}
    s_mov_b32 s{sHI}, 0xffff0000
    s_cmp_lg_u32 s{sRi}, 30
    s_cbranch_scc1 L_nopf
    s_cmp_ge_u32 s{sW}, (L_tables_end-{NAME}_kernel)/8192
    s_cbranch_scc1 L_nopf
    s_getpc_b64 {sr(sBa)}
    L_pc0:
    s_sub_u32 s{sBa}, s{sBa}, L_pc0-{NAME}_kernel
    s_subb_u32 s{sBa + 1}, s{sBa + 1}, 0
    v_lshlrev_b32 v20, 7, v0
    global_load_dword v21, v20, {sr(sBa)}
    L_nopf:
    v_lshlrev_b32 v{vL4}, 2, v{vL}
    s_cmp_eq_u32 s{sW}, 9
    s_cbranch_scc1 L_h1
    s_cmp_eq_u32 s{sW}, 8
    s_cbranch_scc1 L_h0
    s_lshl_b32 s{sRow}, s{sW}, 8
    s_add_u32 s{sKey}, s{sRow}, s{sMe}
    s_mul_i32 s{sRow}, s{sKey}, 1280
    s_cmp_ge_u32 s{sRi}, {20 if S_BLOAD == 0 else 10}
    s_cbranch_scc1 L_role_e
    s_cmp_ge_u32 s{sRi}, 10
    s_cbranch_scc1 L_role_b
    ''')


def xloads():
    for j in range(5):
        a(f'global_load_dword v{vE0 + j}, v{vL4}, {sr(sXrow)} offset:{256 * j} nt')


def gemv_regs(role):
    nj = 3 if role == 'A' else 5
    return (nj,) + ((20, 40, 48, 60, 56, 57) if role == 'A' else (80, 100, 48, 60, 56, 57))


def gemv_issue(role):
    nj, vw, vc, acc, tmp, vo, voc = gemv_regs(role)
    if role == 'A':
        a(f'''
        s_mul_i32 s{sU2}, s{sX}, 10
        s_add_u32 s{sU2}, s{sU2}, s{sRi}          ; blk
        s_lshr_b32 s{sU0}, s{sU2}, 2
        s_and_b32 s{sU1}, s{sU2}, 3
        s_mul_i32 s{sU1}, s{sU1}, 160
        s_mul_i32 s{sT}, s{sW}, 20
        s_add_u32 s{sU1}, s{sU1}, s{sT}
        ''')
        for k in range(4):
            a(f'v_mov_b32 v{vw + 8 + k}, 0')
        a(f'v_mov_b32 v{vc + 2}, 0')
    else:
        a(f'''
        s_mul_i32 s{sU2}, s{sX}, 10
        s_add_u32 s{sU2}, s{sU2}, s{sRi}          ; blk + 10
        s_lshr_b32 s{sU0}, s{sU2}, 1
        s_add_u32 s{sU0}, s{sU0}, 15
        s_and_b32 s{sU1}, s{sU2}, 1
        s_mul_i32 s{sU1}, s{sU1}, 320
        s_mul_i32 s{sT}, s{sW}, 40
        s_add_u32 s{sU1}, s{sU1}, s{sT}
        ''')
    a(f'''
    v_lshrrev_b32 v{voc}, 3, v{vL}
    v_and_b32 v{vo}, 0x70, v{vL16}
    v_mul_u32_u24 v{tmp}, 7680, v{voc}
    v_lshlrev_b32 v{voc}, 1, v{voc}
    v_add_u32 v{vo}, v{vo}, v{tmp}
    s_mul_i32 s{sU3}, s{sU1}, 7680
    s_lshl_b32 s{sT}, s{sU0}, 7
    s_add_u32 s{sU3}, s{sU3}, s{sT}
    s_lshl_b32 s{sU1}, s{sU1}, 1
    s_waitcnt lgkmcnt(0)
    ''')
    stamp('kernarg')
    if role == 'A' or S_BLOAD == 0:
        epoch_load()
    base_add(sBa, C_, sU1)
    base_add(sBb, W_MOD, sU3)
    if role == 'A' or S_BLOAD == 0:
        base_add(sXrow, A_X, sRow)
    if role == 'B' and S_BLOAD == 0:
        xloads()
    for j in range(nj):
        if role == 'A' and j == 2:
            a('s_mov_b32 exec_hi, 0')
        a(f'global_load_ushort v{vc + j}, v{voc}, {sr(sBa)} offset:{16 * j}')
    a('s_mov_b64 exec, -1')
    for j in range(nj):
        if role == 'A' and j == 2:
            a('s_mov_b32 exec_hi, 0')
        a(f'global_load_dwordx4 {vr(vw + 4 * j, 4)}, v{vo}, {sr(sBb)} nt')
        if j + 1 < nj:
            a(f'v_add_u32 v{vo}, {8 * 7680}, v{vo}')
    a('s_mov_b64 exec, -1')
    if role == 'A':
        xloads()


def gemv_compute(role):
    nj, vw, vc, acc, tmp, vo, voc = gemv_regs(role)
    after = 5 if role == 'A' else 0
    a(f's_waitcnt vmcnt({nj + after})')
    stamp('c in')
    cs_ = [vc + j for j in range(nj)]
    for c in cs_:
        a(f'v_lshlrev_b32 v{c}, 16, v{c}')
    silu(cs_, cs_, [tmp + j for j in range(nj)])
    sc = [70 + 2 * j for j in range(nj)]
    for c, s in zip(cs_, sc):
        a(f'v_cvt_pk_bf16_f32 v{s}, v{c}, v{c}')
    for s in sc:
        a(f'v_and_b32 v{s}, s{sHI}, v{s}')
    for j in range(nj):
        a(f's_waitcnt vmcnt({nj - 1 - j + after})')
        for k in range(4):
            unpack(tmp + 2 * k, tmp + 2 * k + 1, vw + 4 * j + k)
        for k in range(4):
            if j == 0:
                a(f'v_pk_mul_f32 {vr(acc + 2 * k, 2)}, {vr(tmp + 2 * k, 2)}, {vr(sc[j], 2)} op_sel:[0,0] op_sel_hi:[1,0]')
            else:
                a(f'v_pk_fma_f32 {vr(acc + 2 * k, 2)}, {vr(tmp + 2 * k, 2)}, {vr(sc[j], 2)}, {vr(acc + 2 * k, 2)} {BC0}')
    stamp('w in')
    a(f'''
    v_and_b32 v{vo}, 7, v{vL}
    v_lshlrev_b32 v{vo}, 8, v{vo}
    v_and_b32 v{voc}, 48, v{vL}
    v_lshl_add_u32 v{vo}, v{voc}, 2, v{vo}
    s_lshl_b32 s{sT}, s{sW}, 2
    s_add_u32 s{sT}, s{sT}, {RED}
    v_add_u32 v{vo}, s{sT}, v{vo}
    ''')
    swap_reduce8(acc)
    for c in ('row_ror:8',):
        dpp('v_add_f32', acc, c)
        dpp('v_add_f32', acc + 1, c)
    a(f'''
    s_mov_b32 exec_lo, 0x00ff00ff
    s_mov_b32 exec_hi, 0x00ff00ff
    ds_write2_b32 v{vo}, v{acc}, v{acc + 1} offset0:0 offset1:8
    s_mov_b64 exec, -1
    s_waitcnt lgkmcnt(0)
    ''')


def role_e_start():
    a('s_waitcnt lgkmcnt(0)')
    epoch_load()
    base_add(sXrow, A_X, sRow)
    xloads()
    a('s_waitcnt vmcnt(0)')
    a('s_branch L_ln1')


def m8(dst, inverse):
    t0, t1, t2, t3 = 20, 21, 22, 23
    a(f'v_lshrrev_b32 v{t0}, 4, v{vL}           ; g')
    a(f's_cmp_lt_u32 s{sW}, 4')
    a(f's_cselect_b32 s{sT}, 1, 7')
    if not inverse:
        a(f'''
        v_bfe_u32 v{t1}, v{vL}, 2, 2
        v_bfe_u32 v{t2}, v{vL}, 1, 1
        v_lshl_add_u32 v{t1}, v{t2}, 2, v{t1}
        v_mul_u32_u24 v{t1}, s{sT}, v{t1}
        v_and_b32 v{t1}, 7, v{t1}
        v_lshlrev_b32 v{t0}, 9, v{t0}
        v_add_u32 v{t0}, s{sMe}, v{t0}
        v_mul_u32_u24 v{t2}, v{t0}, v{t1}
        v_lshl_add_u32 v{t3}, v{t1}, 8, v{t2}
        ''')
    else:
        a(f'''
        v_bfe_u32 v{t1}, v{vL}, 1, 3
        v_lshlrev_b32 v{t1}, 8, v{t1}
        v_add_u32 v{t1}, s{sMe}, v{t1}
        v_mul_u32_u24 v{t0}, s{sT}, v{t0}
        v_and_b32 v{t0}, 7, v{t0}
        v_mul_u32_u24 v{t2}, v{t0}, v{t1}
        v_xor_b32 v{t0}, 4, v{t0}
        v_mul_u32_u24 v{t3}, v{t0}, v{t1}
        v_sub_u32 v{t2}, 0, v{t2}
        v_sub_u32 v{t3}, 0, v{t3}
        ''')
    a(f'''
    v_and_b32 v{t0}, 1, v{vL}
    v_lshl_add_u32 v{t2}, v{t0}, 9, v{t2}
    v_lshl_add_u32 v{t3}, v{t0}, 9, v{t3}
    v_and_b32 v{t2}, 0x7ff, v{t2}
    v_and_b32 v{t3}, 0x7ff, v{t3}
    v_cvt_f32_u32 v{t2}, v{t2}
    v_cvt_f32_u32 v{t3}, v{t3}
    v_mul_f32 v{t2}, 0x3a000000, v{t2}
    v_mul_f32 v{t3}, 0x3a000000, v{t3}
    v_cos_f32 v{t0}, v{t2}
    v_sin_f32 v{t2}, v{t2}
    v_cos_f32 v{t1}, v{t3}
    v_sin_f32 v{t3}, v{t3}
    v_cvt_pk_bf16_f32 v{dst}, v{t0}, v{t2}
    v_cvt_pk_bf16_f32 v{dst + 1}, v{t1}, v{t3}
    ''')


INV640 = hex(f2u(1.0 / 640))
EPS = hex(f2u(1e-5))


def rstd_chain(var, out):
    rbf(out, f'v{var}')
    a(f'v_add_f32 v{out}, {EPS}, v{out}')
    rbf(out, f'v{out}')
    a(f'v_sqrt_f32 v{out}, v{out}')
    rbf(out, f'v{out}')
    a(f'v_rcp_f32 v{out}, v{out}')


def sum10(dst2, x):
    a(f'v_pk_add_f32 {vr(dst2, 2)}, {vr(x, 2)}, {vr(x + 2, 2)}')
    for h in (4, 6, 8):
        a(f'v_pk_add_f32 {vr(dst2, 2)}, {vr(dst2, 2)}, {vr(x + h, 2)}')
    a(f'v_add_f32 v{dst2}, v{dst2}, v{dst2 + 1}')


def dot10(dst2, x, y):
    a(f'v_pk_mul_f32 {vr(dst2, 2)}, {vr(x, 2)}, {vr(y, 2)}')
    for h in (2, 4, 6, 8):
        a(f'v_pk_fma_f32 {vr(dst2, 2)}, {vr(x + h, 2)}, {vr(y + h, 2)}, {vr(dst2, 2)}')
    a(f'v_add_f32 v{dst2}, v{dst2}, v{dst2 + 1}')


late = []


def bar(n):
    a(f's_barrier                                   ; {n}')


def main_path():
    vZ, vSA, vCA = vVec, vVec + 10, vVec + 20
    gemv_issue('A')
    gemv_compute('A')
    a('s_barrier                                   ; B1')
    a('s_waitcnt vmcnt(0)')
    a('s_branch L_ln1')
    a.label('L_role_e')
    role_e_start()
    a.label('L_role_b')
    if S_BLOAD == 0:
        gemv_issue('B')
        a('s_waitcnt vmcnt(10)')
    a.label('L_ln1')
    stamp('x in')
    for j in range(5):
        unpack(vXS + tm(j, 0), vXS + tm(j, 1), vE0 + j)
    sum10(24, vXS)
    wave_sum([24], [sU0])
    a(f'v_mov_b32 v24, {INV640}')
    a(f'v_mul_f32 v26, s{sU0}, v24                ; mean')
    rbf(28, 'v26')
    a(f'v_readfirstlane_b32 s{sM1B}, v28')
    for h in range(0, 10, 2):
        a(f'v_pk_add_f32 {vr(vXS + h, 2)}, {vr(vXS + h, 2)}, v[28:29] op_sel:[0,0] op_sel_hi:[1,0] neg_lo:[0,1] neg_hi:[0,1]')
    dot10(30, vXS, vXS)
    wave_sum([30], [sU0])
    a(f'''
    v_sub_f32 v26, v26, v28
    v_mul_f32 v26, v26, v26
    v_fma_f32 v26, s{sU0}, v24, -v26
    ''')
    rstd_chain(26, 27)
    for j in range(5):
        for t in range(2):
            a(f'v_mul_f32 v{vZ + 2 * j + t}, v27, v{vXS + tm(j, t)}')
    a('s_waitcnt lgkmcnt(0)')
    epoch_tag()
    tag_bytes()
    m8(vM8F, False)
    m8(vM8I, True)
    a(f'''
    v_bfe_u32 v20, v{vL}, 2, 2
    v_and_b32 v21, 48, v{vL16}                    ; part*16
    v_and_b32 v22, 48, v{vL}
    v_lshl_add_u32 v20, v22, 1, v20               ; 32g + kbs
    v_lshl_add_u32 v{vS}, v20, 6, v21
    v_lshl_add_u32 v{vPoll}, v20, 14, v21
    v_mul_u32_u24 v20, 80, v20
    s_mul_i32 s{sT}, s{sW}, 320
    s_add_u32 s{sT}, s{sT}, {XB2}
    v_add3_u32 v{vE0 + 4}, v20, v21, s{sT}        ; staging address
    v_lshlrev_b32 v{vE0}, 3, v{vL}                ; 8*lane
    v_mov_b32 v23, 0
    v_mov_b32 v27, 0
    ''')
    a(f'''
    v_and_b32 v20, 15, v{vL}
    v_mul_u32_u24 v20, 264, v20
    v_and_b32 v21, 48, v{vL}
    v_lshl_add_u32 v{vE0 + 1}, v21, 2, v20
    s_lshr_b32 s{sU0}, s{sW}, 1
    s_mul_i32 s{sU0}, s{sU0}, 4224
    s_and_b32 s{sT}, s{sW}, 1
    s_lshl_b32 s{sT}, s{sT}, 2
    s_add_u32 s{sU0}, s{sU0}, s{sT}
    s_add_u32 s{sU0}, s{sU0}, {XB1}
    v_add_u32 v{vE0 + 1}, s{sU0}, v{vE0 + 1}
    ''')
    a(f'''
    v_lshrrev_b32 v20, 4, v{vL}
    v_mul_u32_u24 v20, 4224, v20
    v_and_b32 v21, 3, v{vL}
    v_mul_u32_u24 v21, 1056, v21
    v_and_b32 v22, 12, v{vL}
    v_lshl_add_u32 v20, v22, 1, v20
    s_lshl_b32 s{sU0}, s{sW}, 5
    s_add_u32 s{sU0}, s{sU0}, {XB1}
    v_add3_u32 v{vE0 + 2}, v20, v21, s{sU0}
    ''')
    a(f'''
    s_cmp_lt_u32 s{sRi}, 10
    s_cbranch_scc1 L_tabs
    s_barrier                                   ; B1
    s_cmp_lt_u32 s{sRi}, 20
    s_cbranch_scc0 L_tabs
    ''')
    if S_BLOAD:
        gemv_issue('B')
    gemv_compute('B')
    a.label('L_tabs')
    a('s_barrier                                   ; BT')
    stamp('poll start')
    tab_read(vF20, T_F20C)
    tab_read(vF20 + 4, T_F20S)
    for q in range(4):
        tab_read(vTW + 4 * q, T_TW1 + q)
    for q in range(8):
        tab_read(vF32 + 4 * q, T_F32 + q)
    a(f'''
    s_sub_u32 s{sT}, s{sW}, 1
    s_cmp_lt_u32 s{sT}, 5
    s_cbranch_scc0 L_b2
    v_subrev_u32 v28, 64, v0                      ; u
    v_lshrrev_b32 v29, 4, v28
    v_lshlrev_b32 v29, 10, v29
    v_and_b32 v30, 0xf0, v{vL16}
    v_add_u32 v29, v29, v30
    v_cmp_le_u32 vcc, 160, v28
    v_cndmask_b32 v30, 0, 1.0, vcc
    v_lshlrev_b32 v28, 4, v28
    v_add_u32 v28, {MODA_L}, v28
    ''')
    poll([f'global_load_dwordx4 {vr(36 + 4 * p, 4)}, v29, {sr(WS)} offset:{256 * p} sc1' for p in range(4)],
         list(range(36, 52)), [52, 53, 54], empty='tag')
    a(f'''
    v_pk_add_f32 v[36:37], v[36:37], v[40:41]
    v_pk_add_f32 v[38:39], v[38:39], v[42:43]
    v_pk_add_f32 v[44:45], v[44:45], v[48:49]
    v_pk_add_f32 v[46:47], v[46:47], v[50:51]
    v_pk_add_f32 v[36:37], v[36:37], v[44:45]
    v_pk_add_f32 v[38:39], v[38:39], v[46:47]
    v_cvt_pk_bf16_f32 v40, v36, v37
    v_cvt_pk_bf16_f32 v41, v38, v39
    ''')
    unpack(36, 37, 40)
    unpack(38, 39, 41)
    a(f'''
    v_pk_add_f32 v[36:37], v[36:37], v[30:31] op_sel:[0,0] op_sel_hi:[1,0]
    v_pk_add_f32 v[38:39], v[38:39], v[30:31] op_sel:[0,0] op_sel_hi:[1,0]
    v_cvt_pk_bf16_f32 v40, v36, v37
    v_cvt_pk_bf16_f32 v41, v38, v39
    ''')
    unpack(36, 37, 40)
    unpack(38, 39, 41)
    a(f'ds_write_b128 v28, v[36:39]')
    a.label('L_b2')
    stamp('poll end')
    a('s_waitcnt lgkmcnt(0)')
    a('s_barrier                                   ; B2')
    stamp('B2 done (mod ready)')
    o = MODA_L // 512
    assert MODA_L % 8 == 0
    a(f'v_add_u32 v28, {MODA_L}, v{vE0}')
    a(f'ds_read2st64_b64 {vr(vSA, 4)}, v28 offset0:0 offset1:1')
    a(f'ds_read2st64_b64 {vr(vCA, 4)}, v28 offset0:5 offset1:6')
    a(f'ds_read2st64_b64 {vr(vSA + 4, 4)}, v28 offset0:2 offset1:3')
    a(f'ds_read2st64_b64 {vr(vCA + 4, 4)}, v28 offset0:7 offset1:8')
    a(f'ds_read_b64 {vr(vSA + 8, 2)}, v28 offset:2048')
    a(f'ds_read_b64 {vr(vCA + 8, 2)}, v28 offset:{2560 + 2048}')
    for j in range(5):
        if j in (0, 2, 4):
            a(f's_waitcnt lgkmcnt({4 - j})')
        a(f'v_pk_fma_f32 {vr(vZ + 2 * j, 2)}, {vr(vZ + 2 * j, 2)}, {vr(vCA + 2 * j, 2)}, {vr(vSA + 2 * j, 2)}')
    for t in range(2):
        a(f'v_cvt_pk_bf16_f32 v{Ra + 4 * t}, v{vZ + t}, v{vZ + 2 + t}')
        a(f'v_cvt_pk_bf16_f32 v{Ra + 4 * t + 1}, v{vZ + 4 + t}, v{vZ + 6 + t}')
        a(f'v_cvt_pk_bf16_f32 v{Ra + 4 * t + 2}, v{vZ + 8 + t}, 0')
    for t in range(2):
        mfma32(RD + 8 * t, Ra + 4 * t, vF20)
        mfma32(RD + 8 * t + 4, Ra + 4 * t, vF20 + 4)
    for t, tmp in ((0, Rb), (1, Rc)):
        cmul(tmp, tmp + 4, RD + 8 * t, RD + 8 * t + 4, vTW + 8 * t, vTW + 8 * t + 4, -1)
        pack4(Ra + 4 * t, tmp, tmp + 4)
    for ks in range(2):
        for u in range(2):
            for e in range(2):
                d = RD + 8 * u + 4 * e
                mfma32(d, vF32 + 16 * u + 8 * e + 4 * ks, Ra + 4 * ks, d if ks else None)
    for u in range(2):
        pack4(Rb + u, RD + 8 * u, RD + 8 * u + 4, step=2)
    for r in range(4):
        a(f'ds_write2_b32 v{vE0 + 1}, v{Rb + 2 * r}, v{Rb + 2 * r + 1} offset0:{4 * r} offset1:{4 * r + 2}')
    a(f'''
    s_lshl_b32 s{sU0}, s{sMe}, 14
    s_lshl_b32 s{sU1}, s{sW}, 8
    s_add_u32 s{sU0}, s{sU0}, s{sU1}
    v_mov_b32 v{Rc + 3}, s{sTag}
    v_mov_b32 v{Rc + 7}, s{sTag}
    ''')
    base_add(sBa, WS, sU0, T1_G)
    base_add(sBb, WS, sU0, T1_G + 8192)
    a('s_waitcnt lgkmcnt(0)')
    bar('B3')
    for n in range(3):
        a(f'ds_read_b64 {vr(Ra + 2 * n, 2)}, v{vE0 + 2} offset:{264 * n}')
    for n in range(3):
        a(f's_waitcnt lgkmcnt({2 - n})')
        mfma16(RD + 4 * n, vM8F, Ra + 2 * n)
    for j in range(2):
        for n in range(3):
            a(f'v_cvt_pk_bf16_f32 v{Rc + 4 * j + n}, v{RD + 4 * n + 2 * j}, v{RD + 4 * n + 2 * j + 1}')
        a(f'global_store_dwordx4 v{vS}, {vr(Rc + 4 * j, 4)}, {sr(sBb if j else sBa)} sc1')
    stamp('T1 stored')
    vWr = vVec
    for k in range(16):
        a(f'v_mov_b32 v{vWr + k}, 0')
    SC = 2.0 / (2048 * 640)
    sKa = sM7
    a(f'''
    v_and_b32 v36, 15, v{vL}
    v_and_b32 v37, 48, v{vL}
    v_lshl_add_u32 v36, v37, 2, v36               ; 64g + i
    v_mul_u32_u24 v{vE0 + 3}, 80, v36
    s_and_b32 s{sU1}, s{sW}, 3
    s_lshr_b32 s{sU2}, s{sW}, 2
    s_lshl_b32 s{sU2}, s{sU2}, 1
    s_mul_i32 s{sKa}, s{sU1}, 3
    s_add_u32 s{sKa}, s{sKa}, s{sU2}
    s_lshl_b32 s{sU1}, s{sU1}, 2
    s_add_u32 s{sU1}, s{sU1}, s{sU2}
    s_lshl_b32 s{sU1}, s{sU1}, 2
    s_add_u32 s{sU1}, s{sU1}, {XB2}
    v_add_u32 v{vE0 + 3}, s{sU1}, v{vE0 + 3}
    v_lshlrev_b32 v36, 5, v36
    s_lshl_b32 s{sU1}, s{sMe}, 6
    s_lshl_b32 s{sT}, s{sW}, 16
    s_add_u32 s{sU1}, s{sU1}, s{sT}
    ''')
    base_add(sBa, WS, sU1, T1_G)
    base_add(sBb, WS, sU1, T1_G + 128 * 16384)

    def w_setup():
        for q in range(2):
            tab_read(vTW + 4 * q, T_F16 + q)
            tab_read(vTW + 8 + 4 * q, T_TW2 + q)
        a(f's_and_b32 s{sU2}, s{sX}, 1                    ; q & 1')
        for s in range(2):
            ka, pos, gam = sBc, sBc + 1, sU3
            if s == 1:
                a(f's_cmp_ge_u32 s{sW}, 4')
                a('s_cbranch_scc1 L_wdone')
            a(f'''
            s_add_u32 s{ka}, s{sKa}, {s}
            s_min_u32 s{pos}, s{ka}, 10
            s_sub_u32 s{sT}, 10, s{pos}
            s_cmp_ge_u32 s{sIdx}, 16
            s_cselect_b32 s{pos}, s{sT}, s{pos}
            s_add_u32 s{pos}, s{pos}, s{sU2}
            s_lshl_b32 s{sT}, s{pos}, 1
            s_cmp_ge_u32 s{pos}, 6
            s_cselect_b32 s{pos}, 4, 0
            s_add_u32 s{pos}, s{pos}, s{sT}
            s_add_u32 s{pos}, s{pos}, {WST}
            v_add_u32 v37, s{pos}, v36
            ''')
            for arr in range(2):
                for r in range(4):
                    a(f'ds_read_u16_d16_hi v{vWr + 8 * s + 4 * arr + r}, v37 offset:{arr * 8192 + r * 512}')
            a(f's_mov_b32 s{gam}, {hex(f2u(SC))}')
            if s == 0:
                a(f'''
                s_and_b32 s{sT}, s{sIdx}, 15
                s_or_b32 s{sT}, s{sT}, s{ka}
                s_cmp_eq_u32 s{sT}, 0
                s_cselect_b32 s{gam}, {hex(f2u(SC / 2))}, s{gam}
                s_cmp_gt_u32 s{sIdx}, 16
                s_cselect_b32 s{sT}, s{ka}, 1
                s_cmp_eq_u32 s{sT}, 0
                s_cselect_b32 s{gam}, 0, s{gam}
                ''')
            else:
                a(f'''
                s_cmp_ge_u32 s{sIdx}, 16
                s_cselect_b32 s{sT}, s{ka}, 1
                s_cmp_eq_u32 s{sT}, 10
                s_cselect_b32 s{gam}, 0, s{gam}
                ''')
            a(f'''
            s_xor_b32 s{sT}, s{gam}, 0x80000000
            s_cmp_ge_u32 s{sIdx}, 16
            s_cselect_b32 s{sT}, s{sT}, s{gam}
            s_waitcnt lgkmcnt(0)
            ''')
            for r in range(4):
                a(f'v_mul_f32 v{vWr + 8 * s + r}, s{gam}, v{vWr + 8 * s + r}')
            for r in range(4):
                a(f'v_mul_f32 v{vWr + 8 * s + 4 + r}, s{sT}, v{vWr + 8 * s + 4 + r}')
        a.label('L_wdone')

    tpoll = [f'global_load_dwordx4 {vr(Ra, 4)}, v{vPoll}, {sr(sBa)} sc1', f'global_load_dwordx4 {vr(Ra + 4, 4)}, v{vPoll}, {sr(sBb)} sc1']
    a('s_waitcnt vmcnt(0)')
    bar('B3b')
    stamp('B3b done')
    poll(tpoll, [Ra + 3, Ra + 7], [Rb, Rb + 1], empty='word', between=w_setup)
    a(f'ds_write_b128 v{vE0 + 4}, {vr(Ra, 4)}')
    a(f'ds_write_b128 v{vE0 + 4}, {vr(Ra + 4, 4)} offset:10240')
    base_add(sBa, WS, sU0, T2_G)
    base_add(sBb, WS, sU0, T2_G + 8192)
    a(f's_cmp_ge_u32 s{sW}, 4')
    a('s_waitcnt lgkmcnt(0)')
    bar('B4')
    stamp('B4 done (T1 in)')
    a('s_cbranch_scc1 L_p2_one')
    Fre, Fim, Tc, Ts = vTW, vTW + 4, vTW + 8, vTW + 12
    tmps = (Rb, Rc)

    def p2(ns):
        if ns == 2:
            for j in range(4):
                a(f'ds_read_b64 {vr(Rb + 2 * j, 2)}, v{vE0 + 3} offset:{1280 * j}')
            for h in range(2):
                a(f's_waitcnt lgkmcnt({2 - 2 * h})')
                for s in range(2):
                    a(f'v_pk_mov_b32 {vr(Ra + 4 * s + 2 * h, 2)}, {vr(Rb + 4 * h, 2)}, {vr(Rb + 4 * h + 2, 2)} op_sel:[{s},{s}]')
        else:
            a(f'ds_read2st64_b32 {vr(Ra, 2)}, v{vE0 + 3} offset0:0 offset1:5')
            a(f'ds_read2st64_b32 {vr(Ra + 2, 2)}, v{vE0 + 3} offset0:10 offset1:15')
            a('s_waitcnt lgkmcnt(0)')
        for s in range(ns):
            mfma32(RD + 8 * s, Ra + 4 * s, Fre)
            mfma32(RD + 8 * s + 4, Ra + 4 * s, Fim)
        for s in range(ns):
            cmul(tmps[s], tmps[s] + 4, RD + 8 * s, RD + 8 * s + 4, Tc, Ts, -1)
            pack4(Ra + 4 * s, tmps[s], tmps[s] + 4)
            mfma32(RD + 8 * s, Fre, Ra + 4 * s)
            mfma32(RD + 8 * s + 4, Fim, Ra + 4 * s)
        for s in range(ns):
            cmul(tmps[s], tmps[s] + 4, RD + 8 * s, RD + 8 * s + 4, vWr + 8 * s, vWr + 8 * s + 4, +1)
            pack4(Ra + 4 * s, tmps[s] + 4, tmps[s])
            mfma32(RD + 8 * s, Ra + 4 * s, Fim)
            mfma32(RD + 8 * s + 4, Ra + 4 * s, Fre)
        for s in range(ns):
            cmul(tmps[s], tmps[s] + 4, RD + 8 * s, RD + 8 * s + 4, Tc, Ts, +1)
            pack4(Ra + 4 * s, tmps[s] + 4, tmps[s])
            mfma32(RD + 8 * s, Fim, Ra + 4 * s)
            mfma32(RD + 8 * s + 4, Fre, Ra + 4 * s)
        for s in range(ns):
            pack4(Rb + s, RD + 8 * s, RD + 8 * s + 4, step=ns)
        if ns == 2:
            for r in range(4):
                a(f'ds_write_b64 v{vE0 + 3}, {vr(Rb + 2 * r, 2)} offset:{1280 * r}')
        else:
            a(f'ds_write2st64_b32 v{vE0 + 3}, v{Rb}, v{Rb + 1} offset0:0 offset1:5')
            a(f'ds_write2st64_b32 v{vE0 + 3}, v{Rb + 2}, v{Rb + 3} offset0:10 offset1:15')
        a('s_waitcnt lgkmcnt(0)')
    p2(2)
    a.label('L_b5')
    bar('B5')
    a(f'ds_read_b128 {vr(Rb, 4)}, v{vE0 + 4}')
    a(f'ds_read_b128 {vr(Rb + 4, 4)}, v{vE0 + 4} offset:10240')
    a('s_waitcnt lgkmcnt(1)')
    a(f'global_store_dwordx4 v{vS}, {vr(Rb, 4)}, {sr(sBa)} sc1')
    a('s_waitcnt lgkmcnt(0)')
    a(f'global_store_dwordx4 v{vS}, {vr(Rb + 4, 4)}, {sr(sBb)} sc1')
    stamp('T2 stored')
    late.append(lambda: (a.label('L_p2_one'), a(f's_cmp_eq_u32 s{sW}, 7'), a('s_cbranch_scc1 L_b5'), p2(1), a('s_branch L_b5')))
    vGA, vVV, vGC, vGS = vVec, vVec + 10, vVec + 20, vVec + 30
    for q in range(4):
        tab_read(vTW + 4 * q, T_TW3 + q)
    for q in range(3):
        tab_read(vF20 + 4 * q, T_F20I + q)
    a(f'''
    v_add_u32 v{vE0 + 5}, {MODB_L}, v{vL4}
    v_lshrrev_b32 v36, 4, v{vL}
    v_mul_u32_u24 v36, 4640, v36
    v_and_b32 v37, 3, v{vL}
    v_mul_u32_u24 v37, 576, v37
    v_and_b32 v38, 4, v{vL}
    v_lshl_add_u32 v36, v38, 2, v36
    v_bfe_u32 v38, v{vL}, 3, 1
    v_lshl_add_u32 v37, v38, 2, v37
    s_lshr_b32 s{sU2}, s{sW}, 1
    s_lshl_b32 s{sU2}, s{sU2}, 5
    s_and_b32 s{sT}, s{sW}, 1
    s_lshl_b32 s{sT}, s{sT}, 3
    s_add_u32 s{sU2}, s{sU2}, s{sT}
    s_add_u32 s{sU2}, s{sU2}, {XB3}
    v_add3_u32 v{vE0 + 1}, v36, v37, s{sU2}
    v_add_u32 v{vE0 + 2}, 2320, v{vE0 + 1}
    v_and_b32 v36, 15, v{vL}
    v_mul_u32_u24 v36, 144, v36
    v_and_b32 v37, 48, v{vL}
    v_lshl_add_u32 v36, v37, 1, v36
    s_mul_i32 s{sU2}, s{sW}, 2320
    s_add_u32 s{sU2}, s{sU2}, {XB3}
    v_add_u32 v{vE0 + 3}, s{sU2}, v36
    ''')
    base_add(sBa, WS, sU1, T2_G)
    base_add(sBb, WS, sU1, T2_G + 128 * 16384)
    base_add(sXrow, OUTP, sRow)

    def p3_setup():
        raw = Rb
        for k in range(0, 24, 2):
            a(f'ds_read2st64_b32 {vr(raw + k, 2)}, v{vE0 + 5} offset0:{k} offset1:{k + 1}')
        a(f'ds_read_b32 v{raw + 24}, v{vE0 + 5} offset:{24 * 256}')
        a('s_waitcnt lgkmcnt(0)')
        for vec, dst in ((0, vGA), (1, vGS), (2, vGC), (4, vVV)):
            for j in range(5):
                unpack(dst + tm(j, 0), dst + tm(j, 1), raw + 5 * vec + j)
        GB = Rb
        for j in range(5):
            unpack(GB + tm(j, 0), GB + tm(j, 1), raw + 15 + j)
        t0, t1, t2 = Rc + 2, Rc + 4, Rc + 6
        dot10(t0, vVV, vGS)
        for h in range(0, 10, 2):
            a(f'v_pk_mul_f32 {vr(vVV + h, 2)}, {vr(vVV + h, 2)}, {vr(vGC + h, 2)}')
        sum10(t1, vVV)
        a(f'v_mov_b32 v{t2}, s{sM1B}')
        for h in range(0, 10, 2):
            a(f'v_pk_mul_f32 {vr(vGC + h, 2)}, {vr(vGC + h, 2)}, {vr(GB + h, 2)}')
            a(f'v_pk_fma_f32 {vr(vGS + h, 2)}, {vr(vGS + h, 2)}, {vr(GB + h, 2)}, {vr(t2, 2)} op_sel:[0,0,0] op_sel_hi:[1,1,0]')
        wave_sum([t1, t0], [sV1, sV2])

    a('s_waitcnt vmcnt(0) lgkmcnt(0)')
    bar('B5b')
    stamp('B5b done')
    poll(tpoll, [Ra + 3, Ra + 7], [Rb, Rb + 1], empty='word', between=p3_setup)
    stamp('T2 in')
    for n in range(3):
        a(f'v_pk_mov_b32 {vr(Rb + 2 * n, 2)}, {vr(Ra + (n & 2), 2)}, {vr(Ra + 4 + (n & 2), 2)} op_sel:[{n & 1},{n & 1}]')
    for n in range(3):
        mfma16(RD + 4 * n, vM8I, Rb + 2 * n)
    for jj in range(2):
        for n in range(3):
            a(f'v_cvt_pk_bf16_f32 v{Ra + 4 * jj + n}, v{RD + 4 * n + 2 * jj + 1}, v{RD + 4 * n + 2 * jj}')
        a(f'ds_write2_b32 v{vE0 + 1 + jj}, v{Ra + 4 * jj}, v{Ra + 4 * jj + 1} offset0:0 offset1:36')
        a(f'ds_write_b32 v{vE0 + 1 + jj}, v{Ra + 4 * jj + 2} offset:288')
    a('s_waitcnt lgkmcnt(0)')
    a('s_barrier                                   ; B6')
    a(f'ds_read_b128 {vr(Rb, 4)}, v{vE0 + 3}')
    a(f'ds_read_b128 {vr(Rb + 4, 4)}, v{vE0 + 3} offset:16')
    for ks in range(2):
        a(f's_waitcnt lgkmcnt({1 - ks})')
        for t in range(2):
            for e in range(2):
                d = RD + 8 * t + 4 * e
                mfma32(d, Rb + 4 * ks, vF32 + 16 * t + 8 * (1 - e) + 4 * ks, d if ks else None)
    for t, tmp in ((0, Ra), (1, Rc)):
        cmul(tmp, tmp + 4, RD + 8 * t, RD + 8 * t + 4, vTW + 8 * t, vTW + 8 * t + 4, +1)
        pack4(Rb + 4 * t, tmp, tmp + 4, n=3)
        a(f'v_mov_b32 v{Rb + 4 * t + 3}, 0')
    Y = RD
    mfma32(Y, vF20, Rb)
    mfma32(Y + 8, vF20 + 4, Rb)
    mfma32(Y + 4, vF20, Rb + 4)
    mfma32(Y + 8, vF20 + 8, Rb + 4, Y + 8)
    for h in range(0, 10, 2):
        a(f'v_pk_fma_f32 {vr(Y + h, 2)}, {vr(Y + h, 2)}, {vr(vGA + h, 2)}, {vr(vXS + h, 2)}')
    s1, s2, s3 = Ra, Ra + 2, Ra + 4
    a(f'v_pk_add_f32 {vr(s1, 2)}, {vr(Y, 2)}, {vr(Y + 2, 2)}')
    a(f'v_pk_mul_f32 {vr(s2, 2)}, {vr(Y, 2)}, {vr(Y, 2)}')
    a(f'v_pk_mul_f32 {vr(s3, 2)}, {vr(Y, 2)}, {vr(vVV, 2)}')
    for h in (2, 4, 6, 8):
        if h > 2:
            a(f'v_pk_add_f32 {vr(s1, 2)}, {vr(s1, 2)}, {vr(Y + h, 2)}')
        a(f'v_pk_fma_f32 {vr(s2, 2)}, {vr(Y + h, 2)}, {vr(Y + h, 2)}, {vr(s2, 2)}')
        a(f'v_pk_fma_f32 {vr(s3, 2)}, {vr(Y + h, 2)}, {vr(vVV + h, 2)}, {vr(s3, 2)}')
    for s in (s1, s2, s3):
        a(f'v_add_f32 v{s}, v{s}, v{s + 1}')
    wave_sum([s1, s2, s3], [sU0, sU2, sU3])
    k0 = Rc
    a(f'''
    v_mov_b32 v{Ra}, {INV640}
    v_mul_f32 v{Ra + 1}, s{sU0}, v{Ra}            ; mu
    v_mul_f32 v{Ra + 2}, v{Ra + 1}, v{Ra + 1}
    v_add_f32 v{Ra + 3}, s{sM1B}, v{Ra + 1}
    v_fma_f32 v{Ra + 2}, s{sU2}, v{Ra}, -v{Ra + 2} ; var
    ''')
    rbf(Ra + 3, f'v{Ra + 3}')
    rstd_chain(Ra + 2, k0)
    a(f'''
    v_sub_f32 v{Ra + 3}, s{sM1B}, v{Ra + 3}       ; -delta
    v_mov_b32 v{Ra + 4}, s{sU3}
    v_fma_f32 v{Ra + 4}, v{Ra + 3}, s{sV1}, v{Ra + 4}
    v_fma_f32 v{Ra + 4}, v{Ra + 4}, v{k0}, s{sV2} ; r
    v_mul_f32 v{k0 + 1}, v{Ra + 3}, v{k0}
    v_ashrrev_i32 v{Ra + 5}, 31, v{Ra + 4}
    v_or_b32 v{Ra + 5}, 0x80000000, v{Ra + 5}
    v_xor_b32 v{Ra + 4}, v{Ra + 4}, v{Ra + 5}
    v_and_b32 v{Ra + 4}, 0xfffff800, v{Ra + 4}
    v_or_b32 v{Ra + 4}, s{sKey}, v{Ra + 4}
    v_mov_b32 v{Ra + 7}, {KEYL}
    v_mov_b32 v{Ra + 5}, s{sTag}
    s_mov_b64 exec, 1
    ds_max_u32 v{Ra + 7}, v{Ra + 4}
    s_mov_b64 exec, -1
    v_readfirstlane_b32 s{sKey}, v{Ra + 4}
    ''')
    ZN = vGA
    for h in range(0, 10, 2):
        a(f'v_pk_fma_f32 {vr(ZN + h, 2)}, {vr(Y + h, 2)}, {vr(k0, 2)}, {vr(k0, 2)} op_sel:[0,0,1] op_sel_hi:[1,0,1]')
        a(f'v_pk_add_f32 {vr(Y + h, 2)}, {vr(Y + h, 2)}, {vr(vGS + h, 2)}')
    for h in range(0, 10, 2):
        a(f'v_pk_fma_f32 {vr(Y + h, 2)}, {vr(ZN + h, 2)}, {vr(vGC + h, 2)}, {vr(Y + h, 2)}')
    vO = vXS
    for j in range(5):
        a(f'v_cvt_pk_bf16_f32 v{vO + j}, v{Y + tm(j, 0)}, v{Y + tm(j, 1)}')
    a(f's_mul_i32 s{sU0}, s{sMe}, {REC_STRIDE}')
    base_add(sBa, WS, sU0, REC_G)
    a('s_waitcnt lgkmcnt(0)')
    a('s_barrier                                   ; B7')
    a(f'''
    ds_read_b32 v{Ra + 6}, v{Ra + 7}
    s_waitcnt lgkmcnt(0)
    v_readfirstlane_b32 s{sU0}, v{Ra + 6}
    s_cmp_eq_u32 s{sU0}, s{sKey}
    s_cselect_b32 s{sCand}, 1, 0
    s_cbranch_scc1 L_cand
    ''')
    for j in range(5):
        a(f'global_store_dword v{vL4}, v{vO + j}, {sr(sXrow)} offset:{256 * j}')
    a('s_branch L_keys')
    a.label('L_cand')
    a(f'''
    s_mov_b64 exec, 1
    global_store_dwordx2 v{vL4}, {vr(Ra + 4, 2)}, {sr(sBa)} sc1
    s_mov_b64 exec, -1
    ''')
    raw, SB, CB, H, Bq = 60, 70, 80, 92, 108
    for k in range(0, 10, 2):
        a(f'ds_read2st64_b32 {vr(raw + k, 2)}, v{vE0 + 5} offset0:{5 + k} offset1:{6 + k}')
    a(f'v_add_u32 v{Ra}, {REC_BASE}, v{vL16}')
    for qd in range(4):
        a(f'v_mov_b32 v{H + 4 * qd + 3}, s{sTag}')
    a('s_waitcnt lgkmcnt(0)')
    for j in range(5):
        unpack(SB + tm(j, 0), SB + tm(j, 1), raw + j)
        unpack(CB + tm(j, 0), CB + tm(j, 1), raw + 5 + j)
    for t in range(2):
        for j in range(5):
            k = tm(j, t)
            a(f'v_fma_f32 v{H + 8 * t + j + (j >= 3)}, v{ZN + k}, v{CB + k}, v{SB + k}')
        for qd in range(2):
            a(f'global_store_dwordx4 v{vL16}, {vr(H + 8 * t + 4 * qd, 4)}, {sr(sBa)} offset:{REC_H2 + 2048 * t + 1024 * qd} sc1')
    Bq = 60
    for t in range(2):
        for j in range(5):
            a(f'v_mov_b32 v{Bq + 8 * t + j + (j >= 3)}, v{Y + tm(j, t)}')
        for qd in range(2):
            a(f'v_mov_b32 v{Bq + 8 * t + 4 * qd + 3}, s{sTag}')
            a(f'global_store_dwordx4 v{Ra}, {vr(Bq + 8 * t + 4 * qd, 4)}, {sr(sBa)} offset:{2048 * t + 1024 * qd} sc1')
    a.label('L_keys')
    stamp('key out')
    vEW, vFW = 60, 100
    a(f'''
    s_cmp_lt_u32 s{sRi}, 20
    s_cbranch_scc1 L_no_ew
    s_barrier
    s_mul_i32 s{sT}, s{sW}, 5120
    s_add_u32 s{sT}, s{sT}, {EW}
    v_add_u32 v{Rb}, s{sT}, v{vL16}
    s_lshl_b32 s{sT}, s{sW}, 8
    s_add_u32 s{sT}, s{sT}, {FW}
    v_add_u32 v{Rb + 1}, s{sT}, v{vL4}
    ''')
    st = 132
    for j in range(5):
        a(f'ds_read_b128 {vr(st + 4 * j, 4)}, v{Rb} offset:{1024 * j}')
    a('s_waitcnt lgkmcnt(0)')
    for k in range(20):
        unpack(vEW + 2 * k, vEW + 2 * k + 1, st + k)
    a(f's_cmp_ge_u32 s{sW}, 5')
    a('s_cbranch_scc1 L_no_ew')
    for u in range(0, 16, 2):
        a(f'ds_read2st64_b32 {vr(st + u, 2)}, v{Rb + 1} offset0:{5 * u} offset1:{5 * u + 5}')
    a('s_waitcnt lgkmcnt(0)')
    for k in range(16):
        unpack(vFW + 2 * k, vFW + 2 * k + 1, st + k)
    a.label('L_no_ew')
    a(f'''
    v_mov_b32 v{Rb + 2}, {KEYL + 4}
    s_cmp_ge_u32 s{sW}, 4
    s_cbranch_scc1 L_b8
    v_mul_u32_u24 v{Rb}, {REC_STRIDE}, v0
    v_add_u32 v{Rb}, {REC_G}, v{Rb}
    ''')
    poll([f'global_load_dwordx2 {vr(Rb + 4, 2)}, v{Rb}, {sr(WS)} sc1'], [Rb + 5], [], empty='word')
    for c in ('row_ror:8', 'row_ror:4', 'row_ror:2', 'row_ror:1'):
        dpp('v_max_u32', Rb + 4, c)
    a(f'''
    s_mov_b32 exec_lo, 0x00010001
    s_mov_b32 exec_hi, 0x00010001
    ds_max_u32 v{Rb + 2}, v{Rb + 4}
    s_mov_b64 exec, -1
    s_waitcnt lgkmcnt(0)
    ''')
    a.label('L_b8')
    a('s_barrier                                   ; B8')
    a(f'''
    ds_read_b32 v{Rb + 3}, v{Rb + 2}
    s_waitcnt lgkmcnt(0)
    v_readfirstlane_b32 s{sU0}, v{Rb + 3}
    s_and_b32 s{sU1}, s{sU0}, 255
    s_mul_i32 s{sU1}, s{sU1}, {REC_STRIDE}
    ''')
    base_add(sBa, WS, sU1, REC_G)
    stamp('B8 done (winner)')
    a(f'''
    s_cmp_ge_u32 s{sRi}, 20
    s_cbranch_scc1 L_do_e
    ''')
    def deferred(lbl):
        a(f'''
        s_cmp_eq_u32 s{sCand}, 0
        s_cbranch_scc1 {lbl}
        s_cmp_eq_u32 s{sU0}, s{sKey}
        s_cbranch_scc1 {lbl}
        ''')
        for j in range(5):
            a(f'global_store_dword v{vL4}, v{vO + j}, {sr(sXrow)} offset:{256 * j}')
        a.label(lbl)
    deferred('L_def1')
    a(f'''
    s_cmp_ge_u32 s{sRi}, 10
    s_cbranch_scc1 L_fin
    s_cmp_lg_u32 s{sW}, 0
    s_cbranch_scc1 L_fin
    s_mul_i32 s{sU2}, s{sX}, 10
    s_add_u32 s{sU2}, s{sU2}, s{sRi}              ; f
    ''')
    a(f'''
    v_and_b32 v20, 1, v{vL}
    v_lshrrev_b32 v21, 4, v{vL}
    v_lshl_add_u32 v20, v20, 2, v21
    s_lshl_b32 s{sT}, s{sU2}, 3
    v_add_u32 v20, s{sT}, v20                      ; d
    v_lshlrev_b32 v21, 1, v20
    v_add_u32 v21, {MODB_L + 3840}, v21
    v_mov_b32 v22, 0
    ds_read_u16_d16_hi v22, v21                    ; gb[d]
    s_lshr_b32 s{sU3}, s{sU2}, 4                   ; j
    s_cmp_ge_u32 s{sU3}, 3
    s_cselect_b32 s{sT}, 3, 0
    s_sub_u32 s{sU3}, s{sU3}, s{sT}
    s_mul_i32 s{sT}, s{sT}, 342
    s_and_b32 s{sT}, s{sT}, 1024
    s_add_u32 s{sT}, s{sT}, {REC_BASE}
    v_bfe_u32 v24, v20, 1, 6                       ; lane'
    v_and_b32 v25, 1, v20                          ; t
    v_lshlrev_b32 v26, 11, v25
    v_lshl_add_u32 v26, v24, 4, v26
    v_add_u32 v26, s{sT}, v26
    ''')
    poll([f'global_load_dwordx4 v[32:35], v26, {sr(sBa)} sc1'], [35], [], empty='word')
    a(f'''
    s_cmp_eq_u32 s{sU3}, 1
    s_cselect_b64 vcc, -1, 0
    v_cndmask_b32 v27, v32, v33, vcc
    s_cmp_eq_u32 s{sU3}, 2
    s_cselect_b64 vcc, -1, 0
    v_cndmask_b32 v27, v27, v34, vcc
    ''')
    a(f'''
    s_and_b32 s{sU1}, s{sU0}, 0xfffff800
    s_or_b32 s{sU1}, s{sU1}, 0x400
    s_xor_b32 s{sU3}, s{sU1}, 0x80000000
    s_not_b32 s{sT}, s{sU1}
    s_cmp_lt_i32 s{sU1}, 0
    s_cselect_b32 s{sU1}, s{sU3}, s{sT}
    v_mov_b32 v28, s{sU1}
    ''')
    rbf(28, 'v28')
    a(f'''
    v_mul_f32 v28, 0xbfb8aa3b, v28
    v_exp_f32 v28, v28
    v_add_f32 v28, 1.0, v28
    v_rcp_f32 v28, v28
    ''')
    rbf(28, 'v28')
    a(f'''
    s_and_b32 s{sU1}, s{sU0}, 0x7ff
    s_mul_i32 s{sU1}, s{sU1}, 1280
    v_lshlrev_b32 v20, 1, v20
    v_lshrrev_b32 v29, 1, v{vL}
    v_mul_u32_u24 v29, {PY_STRIDE}, v29
    v_and_b32 v30, 16, v{vL16}
    v_add_u32 v29, v29, v30
    v_add_u32 v30, {32 * PY_STRIDE}, v29
    v_add_u32 v31, {64 * PY_STRIDE}, v29
    s_lshl_b32 s{sU2}, s{sU2}, 5
    ''')
    base_add(sXrow, OUTP, sU1)
    base_add(sBb, WS, sU2, PY_G)
    a('s_waitcnt lgkmcnt(0)')
    poll([f'global_load_dwordx4 {vr(36 + 4 * n, 4)}, v{29 + n}, {sr(sBb)} sc1' for n in range(3)],
         list(range(36, 48)), [48, 49], empty='tag')
    a(f'''
    v_pk_add_f32 v[36:37], v[36:37], v[40:41]
    v_pk_add_f32 v[38:39], v[38:39], v[42:43]
    v_pk_add_f32 v[36:37], v[36:37], v[44:45]
    v_pk_add_f32 v[38:39], v[38:39], v[46:47]
    v_permlane32_swap_b32 v36, v38
    v_permlane32_swap_b32 v37, v39
    v_pk_add_f32 v[36:37], v[36:37], v[38:39]
    v_permlane16_swap_b32 v36, v37
    v_add_f32 v36, v36, v37
    ''')
    for c in ('row_ror:8', 'row_ror:4', 'row_ror:2'):
        dpp('v_add_f32', 36, c)
    rbf(36, 'v36')
    a(f'''
    v_mul_f32 v36, v36, v28
    v_fma_f32 v36, v36, v22, v27
    v_cvt_pk_bf16_f32 v36, v36, v36
    s_mov_b32 exec_lo, 0x00030003
    s_mov_b32 exec_hi, 0x00030003
    global_store_short v20, v36, {sr(sXrow)} sc1
    s_mov_b64 exec, -1
    s_branch L_fin
    ''')
    a.label('L_do_e')
    a(f'''
    v_bfe_u32 v30, v0, 2, 6                        ; lane' = (t'>>1)>>1
    v_bfe_u32 v31, v0, 1, 1                        ; t
    v_lshlrev_b32 v28, 4, v30
    v_lshl_add_u32 v28, v31, 11, v28
    ''')
    poll([f'global_load_dwordx4 v[20:23], v28, {sr(sBa)} offset:{REC_H2} sc1',
          f'global_load_dwordx4 v[24:27], v28, {sr(sBa)} offset:{REC_H2 + 1024} sc1'], [23, 27], [30, 31], empty='word')
    acc = 36
    for j in range(5):
        for k in range(4):
            w_ = vr(vEW + 8 * j + 2 * k, 2)
            xr = 20 + j + (j >= 3)
            x_ = vr(xr & ~1, 2)
            if j == 0:
                a(f'v_pk_mul_f32 {vr(acc + 2 * k, 2)}, {w_}, {x_} op_sel:[0,0] op_sel_hi:[1,0]')
            else:
                a(f'v_pk_fma_f32 {vr(acc + 2 * k, 2)}, {w_}, {x_}, {vr(acc + 2 * k, 2)} {BC1 if xr & 1 else BC0}')
    a(f'''
    v_and_b32 v28, 1, v{vL}
    v_lshlrev_b32 v28, 7, v28
    v_and_b32 v29, 48, v{vL}
    v_lshl_add_u32 v28, v29, 1, v28
    s_lshr_b32 s{sU1}, s{sW}, 2
    s_lshl_b32 s{sU1}, s{sU1}, 8
    s_and_b32 s{sT}, s{sW}, 3
    s_lshl_b32 s{sT}, s{sT}, 2
    s_add_u32 s{sU1}, s{sU1}, s{sT}
    s_add_u32 s{sU1}, s{sU1}, {RED}
    v_add_u32 v28, s{sU1}, v28
    v_and_b32 v29, 0xf0, v{vL16}
    v_and_b32 v30, 16, v{vL16}
    v_lshrrev_b32 v30, v30, s{sTag}
    v_bfe_u32 v31, v30, 8, 8
    v_and_b32 v30, 0xff, v30
    v_mov_b32 v32, 0xffffff00
    ''')
    swap_reduce8(acc)
    for c in ('row_ror:8', 'row_ror:4', 'row_ror:2'):
        dpp('v_add_f32', acc, c)
        dpp('v_add_f32', acc + 1, c)
    a(f'''
    s_mov_b32 exec_lo, 0x00030003
    s_mov_b32 exec_hi, 0x00030003
    ds_write2_b32 v28, v{acc}, v{acc + 1} offset0:0 offset1:4
    s_mov_b64 exec, -1
    s_mul_i32 s{sU1}, s{sX}, 12
    s_add_u32 s{sU1}, s{sU1}, s{sRi}
    s_mul_i32 s{sU1}, s{sU1}, {PY_STRIDE}
    s_lshl_b32 s{sT}, s{sW}, 9
    s_add_u32 s{sU1}, s{sU1}, s{sT}
    ''')
    base_add(sBb, WS, sU1, PY_G - 20 * PY_STRIDE)
    a(f'''
    s_waitcnt lgkmcnt(0)
    s_barrier                                   ; B9
    s_cmp_ge_u32 s{sW}, 5
    s_cbranch_scc1 L_e_done
    ds_read_b128 v[20:23], v29 offset:{RED}
    ds_read_b128 v[24:27], v29 offset:{RED + 256}
    s_waitcnt lgkmcnt(0)
    v_pk_add_f32 v[20:21], v[20:21], v[22:23]
    v_pk_add_f32 v[24:25], v[24:25], v[26:27]
    v_add_f32 v20, v20, v21
    v_add_f32 v24, v24, v25
    v_cvt_pk_bf16_f32 v24, v20, v24
    ''')
    unpack(20, 24, 24)
    silu([20], [20], [21])
    rbf(20, 'v20')
    a('v_mul_f32 v20, v20, v24')
    rbf(20, 'v20')
    for u in range(16):
        a(f'v_readlane_b32 s{sGU + u}, v20, {u}')
    for u in range(16):
        w_ = vr(vFW + 2 * u, 2)
        g_ = sr(sGU + (u & ~1))
        d_ = vr(36 + 2 * (u & 1), 2)
        if u < 2:
            a(f'v_pk_mul_f32 {d_}, {w_}, {g_} op_sel:[0,{u & 1}] op_sel_hi:[1,{u & 1}]')
        else:
            a(f'v_pk_fma_f32 {d_}, {w_}, {g_}, {d_} {BC1 if u & 1 else BC0}')
    a('v_pk_add_f32 v[36:37], v[36:37], v[38:39]')
    a('v_and_or_b32 v36, v36, v32, v30')
    a('v_and_or_b32 v37, v37, v32, v31')
    a(f'global_store_dwordx2 v{vE0}, v[36:37], {sr(sBb)} sc1')
    a.label('L_e_done')
    deferred('L_def2')
    a.label('L_fin')
    stamp('end')
    dump_stamps()
    a.label('L_end')
    a('s_endpgm')
    for f in late:
        f()


def fill(base, n_full, voff=vL16, tmp=24):
    cur = voff
    for n in range(n_full):
        if n and n % 4 == 0:
            a(f'v_add_u32 v{tmp}, {1024 * n}, v{voff}')
            cur = tmp
        a(f'global_store_dwordx4 v{cur}, v[20:23], {sr(base)} offset:{1024 * (n % 4)} sc1')


def warm_loads(specs):
    for d, vo, b, imm in specs:
        a(f'global_load_dword v{d}, v{vo}, {sr(b)} offset:{imm} {"" if WARMPOL == "plain" else "nt"}')
    return len(specs)


def retouch(specs):
    if WARMPOL == 'both':
        a('s_waitcnt vmcnt(0)')
        for d, vo, b, imm in specs:
            a(f'global_load_dword v{d}, v{vo}, {sr(b)} offset:{imm} sc1')


sF1, sF2, sF3, sF4, sPb, sGw = 56, 58, 60, 62, 64, 66


WW = [(156, 150, W_R, 0), (157, 150, W_I, 0), (158, 151, W_R, 0), (159, 151, W_I, 0)]
GU = [(156 + n, 152, sGw, 128 * n) for n in range(3)]


def act_wd():
    for n in range(20):
        if n % 4 == 0:
            a(f's_mov_b32 m0, {FW + n * 1024}')
            a(f'v_add_u32 v153, {1024 * n}, v{vL16}')
        a(f'global_load_lds_dwordx4 v153, {sr(sGw)} offset:{1024 * (n % 4)} nt')
    return 20


def slot_loads(role, slot):
    n, rt = 0, []
    if role == 'E' and S_WWARM == slot:
        n += warm_loads(WW)
        rt += WW
    if role != 'E' and S_GUW == slot:
        n += warm_loads(GU)
        rt += GU
    if role == 'E' and S_WD == slot:
        n += act_wd()
    return n, rt


def slot_fills(role, slot):
    n = 0
    if S_FILL1 == slot:
        fill(sF1, 16)
        n += 16
    if S_FILL2 == slot:
        fill(sF2, 16)
        n += 16
    return n


def publish():
    a(f'''
    ds_read_b128 v[40:43], v28 offset:{RED}
    ds_read_b128 v[44:47], v28 offset:{RED + 16}
    s_waitcnt lgkmcnt(0)
    v_pk_add_f32 v[40:41], v[40:41], v[42:43]
    v_pk_add_f32 v[44:45], v[44:45], v[46:47]
    v_pk_add_f32 v[40:41], v[40:41], v[44:45]
    v_add_f32 v40, v40, v41
    v_and_or_b32 v40, v40, v33, v34
    global_store_dword v{vL4}, v40, {sr(sPb)} sc1
    ''')
    stamp('published', 'H0')


def helper0():
    a.label('L_h0')
    for k in range(4):
        a(f'v_mov_b32 v{20 + k}, 0')
    a(f'''
    v_mov_b32 v28, {KEYL}
    ds_write_b64 v28, v[20:21]
    s_lshl_b32 s{sU0}, s{sMe}, 14
    s_mul_i32 s{sU2}, s{sX}, 10
    s_add_u32 s{sU2}, s{sU2}, s{sRi}
    s_lshl_b32 s{sU2}, s{sU2}, 8
    s_cmp_lt_u32 s{sRi}, 10
    s_cselect_b32 s{sU1}, 0, {MODB_G - 2560}
    s_add_u32 s{sU2}, s{sU2}, s{sU1}
    s_waitcnt lgkmcnt(0)
    ''')
    stamp('kernarg', 'H0')
    epoch_load()
    base_add(sF1, WS, sU0, T1_G)
    base_add(sF2, WS, sU0, T2_G)
    base_add(sPb, WS, sU2)
    a(f'''
    v_lshrrev_b32 v24, 4, v{vL}
    v_lshlrev_b32 v24, 9, v24
    v_and_b32 v25, 0xf0, v{vL16}
    v_add_u32 v24, v24, v25
    v_add_u32 v120, {MODB_G}, v24
    v_add_u32 v121, {MODB_G + 4096}, v24
    v_add_u32 v122, {MODB_G + 8192}, v24
    v_add_u32 v123, {MODB_G + 12288}, v24
    v_add_u32 v124, {MODB_G + 16384}, v24
    v_lshlrev_b32 v28, 5, v{vL}
    v_mul_u32_u24 v152, 3072, v{vL}
    s_cmp_lt_u32 s{sRi}, 20
    s_cbranch_scc0 L_h0_E
    s_cmp_lt_u32 s{sRi}, 10
    s_cselect_b32 s{sGw}, s{W_G}, s{W_U}
    s_cselect_b32 s{sGw + 1}, s{W_G + 1}, s{W_U + 1}
    s_cselect_b32 s{sU1}, 0, 10
    s_sub_u32 s{sU1}, s{sRi}, s{sU1}
    s_mul_i32 s{sU1}, s{sU1}, {64 * 3072}
    s_mul_i32 s{sU2}, s{sX}, 384
    s_add_u32 s{sU1}, s{sU1}, s{sU2}
    ''')
    base_add(sGw, sGw, sU1)
    a(f's_cmp_lt_u32 s{sRi}, 10')
    a('s_cbranch_scc0 L_h0_B')
    modb = [f'global_load_dwordx4 {vr(40 + 8 * n + 4 * h, 4)}, v{120 + n // 2}, {sr(WS)} offset:{2048 * (n % 2) + 256 * h} sc1'
            for n in range(10) for h in range(2)]
    for role in 'ABE':
        if role != 'A':
            a.label(f'L_h0_{role}')
        if role == 'E':
            a(f'''
            s_mul_i32 s{sU1}, s{sX}, 12
            s_add_u32 s{sU1}, s{sU1}, s{sRi}
            s_sub_u32 s{sU1}, s{sU1}, 20
            s_mul_i32 s{sU1}, s{sU1}, 20480
            ''')
            base_add(sGw, W_D, sU1)
            a(f'''
            s_sub_u32 s{sU3}, s{sRi}, 20
            s_lshl_b32 s{sU3}, s{sU3}, 7
            s_mul_i32 s{sU1}, s{sX}, 642
            s_movk_i32 s{sU2}, 0x2aab
            s_movk_i32 s{sT}, 5136
            ''')
            for n in range(2):
                a(f'''
                v_add_u32 v40, s{sU3}, v{vL}
                v_add_u32 v40, {64 * n}, v40
                v_mul_u32_u24 v41, s{sU2}, v40
                v_lshrrev_b32 v41, 16, v41
                v_mul_u32_u24 v42, 6, v41
                v_sub_u32 v42, v40, v42
                v_lshlrev_b32 v42, 7, v42
                v_min_u32 v42, 638, v42
                v_add_u32 v42, s{sU1}, v42
                v_mad_u32_u24 v42, v41, s{sT}, v42
                v_and_b32 v{150 + n}, -4, v42
                ''')
        rts = []
        if role != 'A':
            rts = slot_loads(role, 0)[1]
            slot_fills(role, 0)
        a('s_waitcnt lgkmcnt(0)')
        epoch_tag()
        tag_bytes()
        a(f'''
        v_mov_b32 v27, s{sTag}
        v_lshlrev_b32 v34, 3, v{vL}
        v_and_b32 v34, 24, v34
        v_bfe_u32 v34, v27, v34, 8
        v_mov_b32 v33, 0xffffff00
        ''')
        bar('B1')
        if role == 'A':
            publish()
            rts += slot_loads(role, 0)[1]
            slot_fills(role, 0)
        rts += slot_loads(role, 1)[1]
        slot_fills(role, 1)
        bar('BT')
        if role == 'B':
            publish()
        if rts:
            retouch(rts)
        stamp('w0 done', 'H0')
        bar('B2')
        a('s_waitcnt vmcnt(0)')
        slot_fills(role, 2)
        rts = slot_loads(role, 2)[1]
        assert S_FILL1 < 2
        bar('B3')
        if rts:
            retouch(rts)
        bar('B3b')
        bar('B4')
        a('s_waitcnt vmcnt(0)')
        for ld in modb:
            a(ld)
        k, rts = slot_loads(role, 3)
        bar('B5')
        a(f's_waitcnt vmcnt({k})')
        if role != 'E':
            a('s_branch L_h0_f')
    a.label('L_h0_f')
    a(f'v_lshlrev_b32 v28, 3, v{vL}')
    a(f'v_add_u32 v28, {MODB_L}, v28')
    poll(modb, list(range(40, 120)), [126, 127, 128], empty='tag', issued=True, younger=63)
    a(f'''
    v_mov_b32 v31, 1.0
    v_cmp_gt_u32 vcc, 32, v{vL}
    v_cndmask_b32 v32, 0, 1.0, vcc
    ''')
    for n in range(10):
        b = 40 + 8 * n
        a(f'v_pk_add_f32 {vr(b, 2)}, {vr(b, 2)}, {vr(b + 4, 2)}')
        a(f'v_pk_add_f32 {vr(b + 2, 2)}, {vr(b + 2, 2)}, {vr(b + 6, 2)}')
        a(f'v_cvt_pk_bf16_f32 v{b + 4}, v{b}, v{b + 1}')
        a(f'v_cvt_pk_bf16_f32 v{b + 5}, v{b + 2}, v{b + 3}')
        if n in (5, 6, 7):
            unpack(b, b + 1, b + 4)
            unpack(b + 2, b + 3, b + 5)
            one = 'v[32:33] op_sel:[0,0] op_sel_hi:[1,0]' if n == 7 else 'v[30:31] op_sel:[0,1] op_sel_hi:[1,1]'
            a(f'v_pk_add_f32 {vr(b, 2)}, {vr(b, 2)}, {one}')
            a(f'v_pk_add_f32 {vr(b + 2, 2)}, {vr(b + 2, 2)}, {one}')
            a(f'v_cvt_pk_bf16_f32 v{b + 4}, v{b}, v{b + 1}')
            a(f'v_cvt_pk_bf16_f32 v{b + 5}, v{b + 2}, v{b + 3}')
        a(f'ds_write_b64 v28, {vr(b + 4, 2)} offset:{512 * n}')
    a('s_waitcnt lgkmcnt(0)')
    stamp('modb in', 'H0')
    if WARMPOL == 'both' and S_GUW == 3:
        a(f's_cmp_lt_u32 s{sRi}, 20')
        a('s_cbranch_scc0 L_h0_g')
        retouch(GU)
        a.label('L_h0_g')
    bar('B5b')
    bar('B6')
    a(f'''
    s_cmp_lg_u32 s2, 0
    s_cbranch_scc1 L_h0_ne
    v_mov_b32 v26, {EPOCH_G}
    s_mov_b64 exec, 1
    global_store_dword v26, v27, {sr(WS)} sc1
    s_mov_b64 exec, -1
    ''')
    a.label('L_h0_ne')
    a('s_waitcnt vmcnt(0)')
    dump_stamps('H0')
    a('s_endpgm')


def helper1():
    a.label('L_h1')
    a(f'''
    s_getpc_b64 {sr(sBa)}
    L_pc:
    s_add_u32 s{sBb}, s{sBa}, L_tables-L_pc
    s_addc_u32 s{sBb + 1}, s{sBa + 1}, 0
    ''')

    def tabs(q0, q1):
        for q in range(q0, q1):
            if q % 4 == 0 or q == q0:
                a(f's_mov_b32 m0, {TAB + (q & ~3) * 1024}')
                a(f'v_add_u32 v20, {(q & ~3) * 1024}, v{vL16}')
            a(f'global_load_lds_dwordx4 v20, {sr(sBb)} offset:{1024 * (q % 4)}')

    def tab2():
        tabs(14, NTAB)
        a(f'''
        s_mov_b32 m0, {WR_L}
        s_nop 0
        global_load_lds_dwordx4 v{vL16}, {sr(B_WR)}
        s_mov_b64 exec, 0xffff
        global_load_lds_dwordx4 v{vL16}, {sr(B_WR)} offset:1024
        s_mov_b64 exec, -1
        ''')
        return NTAB - 14 + 2

    def egather():
        for n in range(20):
            j_, wq = n // 4, n % 4
            a(f'''
            s_mov_b32 m0, {EW + wq * 5120 + j_ * 1024}
            s_nop 0
            global_load_lds_dwordx4 v40, {sr(sF1)}
            s_mov_b32 m0, {EW + (wq + 4) * 5120 + j_ * 1024}
            s_nop 0
            global_load_lds_dwordx4 v40, {sr(sF2)}
            ''')
            if n < 19:
                a(f'v_add_u32 v40, {32 * 3072}, v40')
        stamp('EG issued', 'H1')

    a(f'''
    s_mul_i32 s{sU1}, s{sIdx}, 40
    s_sub_u32 s{sT}, 1260, s{sU1}
    s_sub_u32 s{sU0}, 0, s{sX}
    s_and_b32 s{sU0}, s{sU0}, 7
    s_cmp_ge_u32 s{sIdx}, 16
    s_cselect_b32 s{sU1}, s{sT}, s{sU1}             ; 2*C0
    s_cselect_b32 s{sU2}, -1, 1                     ; direction
    s_cselect_b32 s{sU0}, s{sU0}, s{sX}             ; q
    v_lshrrev_b32 v23, 1, v{vL}
    v_lshl_add_u32 v23, v23, 3, s{sU0}              ; q + 8*kappa (n = 0)
    v_mul_lo_u32 v23, v23, s{sU2}
    s_lshl_b32 s{sU2}, s{sU2}, 8
    v_and_b32 v24, 1, v{vL}
    v_mul_u32_u24 v24, 12, v24
    s_movk_i32 s{sU3}, 642
    v_mov_b32 v26, s{sU1}
    ''')
    for n in range(8):
        a(f'''
        v_and_b32 v25, 0x7ff, v23
        v_mad_u32_u24 v25, v25, s{sU3}, v26
        v_and_b32 v25, -4, v25
        v_add_u32 v{30 + n}, v25, v24
        v_add_u32 v23, s{sU2}, v23
        ''')
    a(f'''
    s_max_u32 s{sU1}, s{sRi}, 20
    s_mul_i32 s{sU0}, s{sX}, 12
    s_add_u32 s{sU0}, s{sU0}, s{sU1}
    s_sub_u32 s{sU0}, s{sU0}, 20
    s_lshl_b32 s{sU0}, s{sU0}, 5
    v_lshrrev_b32 v40, 1, v{vL}
    v_mul_u32_u24 v40, 3072, v40
    v_and_b32 v41, 16, v{vL16}
    v_add_u32 v40, v40, v41
    s_waitcnt lgkmcnt(0)
    ''')
    base_add(sF1, W_G, sU0)
    base_add(sF2, W_U, sU0)
    a(f's_cmp_lt_u32 s{sRi}, 10')
    a('s_cbranch_scc0 L_h1_t')
    bar('B1')
    a.label('L_h1_t')
    tabs(0, 14)
    n = tab2() if S_TAB2 == 1 else 0
    a(f's_waitcnt vmcnt({n})')
    stamp('tab in', 'H1')
    a(f's_cmp_lt_u32 s{sRi}, 10')
    a('s_cbranch_scc1 L_h1_u')
    bar('B1')
    a.label('L_h1_u')
    bar('BT')
    bar('B2')
    for n in range(8):
        a(f'''
        s_mov_b32 m0, {WST + n * 1024}
        s_nop 0
        global_load_lds_dwordx3 v{30 + n}, {sr(W_R)}
        s_mov_b32 m0, {WST + 8192 + n * 1024}
        s_nop 0
        global_load_lds_dwordx3 v{30 + n}, {sr(W_I)}
        ''')
    if S_TAB2 == 2:
        tab2()
    stamp('W issued', 'H1')
    bar('B3')
    a('s_waitcnt vmcnt(0)')
    stamp('W in', 'H1')
    a(f'''
    s_cmp_lt_u32 s{sRi}, 20
    s_cbranch_scc1 L_h1_end
    ''')
    bar('B3b')
    bar('B4')
    if S_EG == 3:
        egather()
    bar('B5')
    if S_EG == 3 and DIAG and not PROBE:
        a('s_waitcnt vmcnt(0)')
        stamp('EG in', 'H1')
    bar('B5b')
    bar('B6')
    if S_EG == 4:
        egather()
    bar('B7')
    a('s_waitcnt vmcnt(0)')
    a.label('L_h1_end')
    stamp('end', 'H1')
    dump_stamps('H1')
    a('s_endpgm')


prologue()
main_path()
helper0()
helper1()
body = a.finish()

hdr = open(f'cdna_kernels/{NAME}.s.ref').read().split('; Override launch')[0]
T = tables()
tab = []
flat = T.reshape(-1)
for k in range(0, flat.size, 8):
    tab.append('.long ' + ','.join('0x%08x' % v for v in flat[k:k + 8]))

src = hdr + f'''; @launch grid=(256,1,1) block=(640,1,1) lds={LDS_BYTES}
.amdgcn_target "amdgcn-amd-amdhsa--gfx950"
.text
.globl {NAME}_kernel
.p2align 8
.type {NAME}_kernel,@function
{NAME}_kernel:
{body}
.p2align 8
.type L_tables,@object
L_tables:
''' + '\n'.join(tab) + f'''
.size L_tables, {NTAB * 1024}
.fill (8192 - ((. - {NAME}_kernel) & 8191)) & 8191, 1, 0
L_tables_end:
.section .rodata,"a"
.p2align 6
.amdhsa_kernel {NAME}_kernel
  .amdhsa_next_free_vgpr 168
  .amdhsa_next_free_sgpr 102
  .amdhsa_accum_offset 168
  .amdhsa_group_segment_fixed_size 0
  .amdhsa_kernarg_size 104
  .amdhsa_user_sgpr_count 2
  .amdhsa_user_sgpr_kernarg_segment_ptr 1
  .amdhsa_system_sgpr_workgroup_id_x 1
.end_amdhsa_kernel
'''
open(OUT, 'w').write(src)
print('wrote', OUT, 'lds', LDS_BYTES, 'lines', len(a.lines), 'nops', a.nnops)
```

```python
import sys, struct
import numpy as np
from asmdsl import Asm

NAME = 'adaLN_cond__spectral_gfnet__moe_arch_mod__prompt'
DIAG = '--diag' in sys.argv or '--dbgdiag' in sys.argv
DBGDIAG = '--dbgdiag' in sys.argv
OUT = [a for a in sys.argv[1:] if not a.startswith('--')]
OUT = OUT[0] if OUT else f'cdna_kernels/{NAME}.s'
SPIN = 60000


def opt(name, default):
    for x in sys.argv:
        if x.startswith(f'--{name}='):
            return x.split('=', 1)[1]
    return default


PROBE = opt('probe', None)
PROBEWG = int(opt('probewg', 8))
if PROBE:
    DIAG = True
OUTPOL = opt('outpol', '')
PRE = opt('pre', None)
WARMPOL = opt('warm', 'both')
S_BLOAD = int(opt('bload', 0))
S_FILL1 = int(opt('fill1', -1))
S_FILL2 = int(opt('fill2', -1))
S_WWARM = int(opt('wwarm', 1))
S_GUW = int(opt('guw', 1))
S_WD = int(opt('wd', 1))
S_EG = int(opt('eg', 3))
S_TAB2 = int(opt('tab2', 1))

MODA_G = 0
MODB_G = 20480
EPOCH_G = 40960
PY_G = 65536
PY_STRIDE = 2688
REC_G = 0x80000
REC_STRIDE = 8320
REC_H2 = 128
REC_BASE = 128 + 4096
T1_G = 0x400000
T2_G = 0x800000
DIAG_G = 0xC00000

NTAB = 25
TAB = 0
RED = TAB + NTAB * 1024
KEYL = RED + 2048
XB2 = KEYL + 64
XB1 = XB2 + 20480
XB3 = XB1
MODA_L = XB1 + 18560
MODB_L = MODA_L + 5120
WR_L = MODB_L + 5120
WST = WR_L + 2048
EW = WST + 16384
FW = EW + 40960
STL = FW + 20480
LDS_BYTES = STL + 256
assert LDS_BYTES <= 163840, LDS_BYTES

T_F20C, T_F20S, T_TW1, T_F32, T_F16, T_TW2, T_TW3, T_F20I = 0, 1, 2, 6, 14, 16, 18, 22


def f2u(x):
    return struct.unpack('<I', struct.pack('<f', float(x)))[0]


def bf(x):
    u = f2u(x)
    return ((u + 0x7FFF + ((u >> 16) & 1)) >> 16) & 0xFFFF


def pk(lo, hi):
    return bf(lo) | (bf(hi) << 16)


def cs(num, den):
    a = 2 * np.pi * (num % den) / den
    c, s = np.cos(a), np.sin(a)
    if abs(c) < 1e-12: c = 0.0
    if abs(s) < 1e-12: s = 0.0
    return c, s


def kaof(x):
    ka = 3 * (x >> 2) + (x & 3)
    return ka if (x & 3) < 3 and ka <= 10 else None


def tables():
    T = np.zeros((NTAB, 64, 4), np.uint32)
    for l in range(64):
        i, g = l & 15, l >> 4
        c8, s8 = [0.0] * 8, [0.0] * 8
        for j in range(5):
            if kaof(i) is not None:
                c, s = cs((4 * j + g) * kaof(i), 20)
                c8[j], s8[j] = c, -s
        for d in range(4):
            T[T_F20C, l, d] = pk(c8[2 * d], c8[2 * d + 1])
            T[T_F20S, l, d] = pk(s8[2 * d], s8[2 * d + 1])
        for t in range(2):
            for r in range(4):
                c, s = cs((8 * g + 2 * r + t) * (kaof(i) or 0), 640)
                T[T_TW1 + 2 * t, l, r] = f2u(c)
                T[T_TW1 + 2 * t + 1, l, r] = f2u(s)
                c, s = cs((2 * i + t) * (kaof(4 * g + r) or 0), 640)
                T[T_TW3 + 2 * t, l, r] = f2u(c)
                T[T_TW3 + 2 * t + 1, l, r] = f2u(s)
        for tile in range(2):
            for ks in range(2):
                for r in range(4):
                    c, s = cs((2 * i + tile) * (8 * g + 2 * r + ks), 32)
                    T[T_F32 + tile * 4 + 0 + ks, l, r] = pk(c, s)
                    T[T_F32 + tile * 4 + 2 + ks, l, r] = pk(-s, c)
        for r in range(4):
            c, s = cs(i * (4 * g + r), 16)
            T[T_F16, l, r] = pk(c, s)
            T[T_F16 + 1, l, r] = pk(-s, c)
            c, s = cs(i * (4 * g + r), 256)
            T[T_TW2, l, r] = f2u(c)
            T[T_TW2 + 1, l, r] = f2u(s)
            ka = kaof(4 * g + r)
            if ka is not None:
                a1 = 4 * (i & 3) + (i >> 2)
                c, s = cs(a1 * ka, 20)
                T[T_F20I, l, r] = pk(c, -s)
                c, s = cs((16 + (i >> 2)) * ka, 20)
                if (i & 3) == 0:
                    T[T_F20I + 1, l, r] = pk(c, -s)
                if (i & 3) == 1:
                    T[T_F20I + 2, l, r] = pk(c, -s)
    return T


def vr(a, n=1):
    return f'v{a}' if n == 1 else f'v[{a}:{a + n - 1}]'


def sr(a, n=2):
    return f's{a}' if n == 1 else f's[{a}:{a + n - 1}]'


sW, sX, sIdx, sMe, sT = 3, 4, 5, 6, 7
A_X, W_R, W_I, B_WR, W_G, W_U, W_D = 8, 10, 12, 16, 18, 20, 22
C_, W_MOD, OUTP, DBG, WS = 24, 26, 28, 30, 32
sBa, sBb, sBc = 34, 36, 38
sCnt = 40
sM1B = 41
sU0, sU1, sU2, sU3 = 42, 43, 46, 47
sM7 = 44
sRow = 48
sKey = 49
sV1, sV2 = 50, 51
sHI = 52
sCand = 53
sTag = 55
sRi = 54
sGU = 56
sXrow = 72
sTS = 74

vL, vL16, vL4, vS, vPoll = 1, 2, 3, 4, 5
vM8F, vM8I = 6, 8
vXS = 10
Ra, Rb, RD, Rc = 20, 28, 36, 52
vF32 = 60
vTW = 92
vF20 = 108
vVec = 120
vE0 = 160


a = Asm()
stamps = {}
NST = 24


def stamp(name, path='M', wait=True):
    if not DIAG:
        return
    if PROBE and (path != 'M' or not (name == 'start' or name.startswith(PROBE))):
        return
    lst = stamps.setdefault(path, [])
    if name not in lst:
        lst.append(name)
    k = lst.index(name)
    assert k < NST
    a(f's_memrealtime s[100:101]')
    a('s_waitcnt lgkmcnt(0)')
    a(f's_mov_b32 s{sTS + k}, s100')


def dump_stamps(path='M'):
    if not DIAG:
        return
    if PROBE:
        if path != 'M':
            return
        a(f'''
        s_cmp_lg_u32 s2, {PROBEWG}
        s_cbranch_scc1 L_end
        s_cmp_lg_u32 s{sW}, 0
        s_cbranch_scc1 L_end
        ''')
        if PROBE == 'fix':
            a(f's_movk_i32 s{sU0}, 6000')
        else:
            a(f's_sub_u32 s{sU0}, s{sTS + 1}, s{sTS}')
            a(f's_lshl_b32 s{sU0}, s{sU0}, 4')
            a(f's_add_u32 s{sU0}, s{sU0}, 6000')
            a(f's_min_u32 s{sU0}, s{sU0}, 100000')
        a(f'''
        L_probe:
        s_memrealtime s[100:101]
        s_waitcnt lgkmcnt(0)
        s_sub_u32 s{sU1}, s100, s{sTS}
        s_cmp_lt_u32 s{sU1}, s{sU0}
        s_cbranch_scc1 L_probe
        ''')
        return
    if DBGDIAG:
        if path != 'M':
            return
        a('v_mov_b32 v20, 0')
        a('s_mov_b64 exec, 1')
        a(f's_not_b32 s{sU0}, s{sTS}')
        a(f'v_mov_b32 v22, s{sU0}')
        a(f'global_atomic_umax v20, v22, {sr(DBG)} offset:4 sc1')
        ks = [0] + list(range(2, len(stamps['M'])))
        for n, k in enumerate(ks[:14]):
            a(f'v_mov_b32 v{23 + n}, s{sTS + k}')
            a(f'global_atomic_umax v20, v{23 + n}, {sr(DBG)} offset:{8 + 4 * n} sc1')
        print('dbg slots:', [(2 + n, stamps['M'][k]) for n, k in enumerate(ks[:14])])
        return
    if path != 'M':
        for k in range(NST):
            a(f'v_writelane_b32 v20, s{sTS + k}, {k}')
        a(f'v_lshlrev_b32 v21, 2, v{vL}')
        a(f'v_add_u32 v21, {STL + (128 if path == "H1" else 0)}, v21')
        a('s_mov_b32 exec_hi, 0')
        a('ds_write_b32 v21, v20')
        a('s_waitcnt lgkmcnt(0)')
        return
    a(f'''
    s_lshl_b32 s{sU0}, s2, 11
    v_add_u32 v21, {STL}, v{vL4}
    ds_read_b32 v22, v21
    ''')
    base_add(sBa, WS, sU0, DIAG_G + 1024)
    a('s_waitcnt lgkmcnt(0)')
    a(f'global_store_dword v{vL4}, v22, {sr(sBa)}')
    a(f'''
    s_lshl_b32 s{sU0}, s2, 11
    s_lshl_b32 s{sU1}, s{sW}, 7
    s_add_u32 s{sU0}, s{sU0}, s{sU1}
    s_memtime s[100:101]
    ''')
    base_add(sBa, WS, sU0, DIAG_G)
    a('v_mov_b32 v20, 0')
    a('s_mov_b64 exec, 1')
    for k in range(0, NST, 2):
        a(f'v_mov_b32 v22, s{sTS + k}')
        a(f'v_mov_b32 v23, s{sTS + k + 1}')
        a(f'global_store_dwordx2 v20, v[22:23], {sr(sBa)} offset:{4 * k}')
        a('s_nop 1')
    a('s_waitcnt lgkmcnt(0)')
    a('s_sub_u32 s100, s100, s98')
    a('v_mov_b32 v22, s100')
    a(f'global_store_dword v20, v22, {sr(sBa)} offset:112')
    a('s_getreg_b32 s42, hwreg(HW_REG_XCC_ID)')
    a('s_getreg_b32 s43, hwreg(HW_REG_HW_ID)')
    a('v_mov_b32 v22, s42')
    a('v_mov_b32 v23, s43')
    a(f'global_store_dwordx2 v20, v[22:23], {sr(sBa)} offset:120')


def base_add(dst, src, off_s=None, imm=0):
    if off_s is not None:
        if imm:
            a(f's_add_u32 s{sT}, s{off_s}, {imm}')
            off_s = sT
        a(f's_add_u32 s{dst}, s{src}, s{off_s}')
    else:
        a(f's_add_u32 s{dst}, s{src}, {imm}')
    a(f's_addc_u32 s{dst + 1}, s{src + 1}, 0')


lblc = [0]


def newlabel(p):
    lblc[0] += 1
    return f'L_{p}_{lblc[0]}'


def poll(loads, regs, tmp, mask=None, empty='eq -1', between=None, younger=0, issued=False):
    L, D = newlabel('poll'), newlabel('polld')
    split = between is not None or issued
    if split:
        Cc = newlabel('pollc')
        if not issued:
            if mask is not None:
                a(f's_mov_b64 exec, {mask}')
            for ld in loads:
                a(ld)
            if mask is not None:
                a('s_mov_b64 exec, -1')
            between()
        if mask is not None:
            a(f's_mov_b64 exec, {mask}')
        a(f's_mov_b32 s{sCnt}, {SPIN}')
        a(f's_waitcnt vmcnt({younger})')
        a(f's_branch {Cc}')
    else:
        if mask is not None:
            a(f's_mov_b64 exec, {mask}')
        a(f's_mov_b32 s{sCnt}, {SPIN}')
    a.label(L)
    for ld in loads:
        a(ld)
    a('s_waitcnt vmcnt(0)')
    if split:
        a.label(Cc)
    if empty == 'tag':
        for n, r in enumerate(regs):
            a(f'v_xor_b32 v{r}, s{sTB + (n & 3)}, v{r}')
        rem = list(regs)
        for c in tmp:
            a(f'v_or3_b32 v{c}, v{rem[0]}, v{rem[1]}, v{rem[2]}')
            rem = rem[3:]
        n = 0
        while len(rem) >= 2:
            c = tmp[n % len(tmp)]
            a(f'v_or3_b32 v{c}, v{c}, v{rem[0]}, v{rem[1]}')
            rem = rem[2:]
            n += 1
        t = tmp[0]
        rem = rem + list(tmp[1:])
        while rem:
            if len(rem) >= 2:
                a(f'v_or3_b32 v{t}, v{t}, v{rem[0]}, v{rem[1]}')
                rem = rem[2:]
            else:
                a(f'v_or_b32 v{t}, v{t}, v{rem[0]}')
                rem = rem[1:]
        a(f'v_and_b32 v{t}, 0xff, v{t}')
        empty = 'ne 0'
    elif empty == 'word':
        if len(regs) == 1:
            t = regs[0]
            empty = f'ne s{sTag}'
        else:
            assert len(regs) == 2
            t = tmp[0]
            a(f'v_xor_b32 v{t}, v{regs[0]}, v{regs[1]}')
            a(f'v_xor_b32 v{tmp[1]}, s{sTag}, v{regs[0]}')
            a(f'v_or_b32 v{t}, v{t}, v{tmp[1]}')
            empty = 'ne 0'
    elif empty == 'never':
        empty = 'ne 0'
    elif len(regs) == 1:
        t = regs[0]
    else:
        rem = list(regs)
        outs = []
        k = 0
        while len(rem) >= 3 and k < len(tmp):
            a(f'v_max3_u32 v{tmp[k]}, v{rem[0]}, v{rem[1]}, v{rem[2]}')
            outs.append(tmp[k])
            rem = rem[3:]
            k += 1
        rem = outs[1:] + rem
        t = outs[0] if outs else None
        if t is None:
            t = tmp[0]
            a(f'v_max_u32 v{t}, v{rem[0]}, v{rem[1]}')
            rem = rem[2:]
        while rem:
            if len(rem) >= 2:
                a(f'v_max3_u32 v{t}, v{t}, v{rem[0]}, v{rem[1]}')
                rem = rem[2:]
            else:
                a(f'v_max_u32 v{t}, v{t}, v{rem[0]}')
                rem = rem[1:]
    a(f'v_cmpx_{empty.split()[0]}_u32 vcc, {empty.split()[1]}, v{t}')
    a(f's_cbranch_execz {D}')
    a(f's_sub_u32 s{sCnt}, s{sCnt}, 1')
    a(f's_cbranch_scc0 {L}')
    a.label(D)
    a('s_mov_b64 exec, -1')


def epoch_load():
    a(f's_load_dword s{sTag}, {sr(WS)}, {EPOCH_G}')


def epoch_tag():
    a(f'''
    s_and_b32 s{sTag}, s{sTag}, 0x7f7f7f7f
    s_add_u32 s{sTag}, s{sTag}, 0x01010101
    s_or_b32 s{sTag}, s{sTag}, 0x80808080
    ''')


sTB = 68


def tag_bytes():
    for k in range(4):
        a(f's_bfe_u32 s{sTB + k}, s{sTag}, {hex(0x80000 | (8 * k))}')


def dpp(op, r, ctrl, rm='0xf'):
    a(f'{op}_dpp v{r}, v{r}, v{r} {ctrl} row_mask:{rm} bank_mask:0xf')


def wave_sum(regs, dst_s, op='v_add_f32'):
    for c in ('row_ror:8', 'row_ror:4', 'row_ror:2', 'row_ror:1'):
        for r in regs:
            dpp(op, r, c)
    for r in regs:
        dpp(op, r, 'row_bcast:15', '0xa')
    for r in regs:
        dpp(op, r, 'row_bcast:31', '0xc')
    for r, s in zip(regs, dst_s):
        a(f'v_readlane_b32 s{s}, v{r}, 63')


def rbf(dst, src):
    a(f'v_cvt_pk_bf16_f32 v{dst}, {src}, {src}')
    a(f'v_and_b32 v{dst}, s{sHI}, v{dst}')


def unpack(dlo, dhi, src):
    a(f'v_lshlrev_b32 v{dlo}, 16, v{src}')
    a(f'v_and_b32 v{dhi}, s{sHI}, v{src}')


def mfma32(d, x, y, c=None):
    a(f'v_mfma_f32_16x16x32_bf16 {vr(d, 4)}, {vr(x, 4)}, {vr(y, 4)}, {vr(c, 4) if c is not None else 0}')


def mfma16(d, x, y):
    a(f'v_mfma_f32_16x16x16_bf16 {vr(d, 4)}, {vr(x, 2)}, {vr(y, 2)}, 0')


def cmul(tr, ti, re, im, c, s, sign):
    nr = 'neg_lo:[1,0,0] neg_hi:[1,0,0]'
    for h in (0, 2):
        a(f'v_pk_mul_f32 {vr(tr + h, 2)}, {vr(re + h, 2)}, {vr(c + h, 2)}')
    for h in (0, 2):
        a(f'v_pk_mul_f32 {vr(ti + h, 2)}, {vr(im + h, 2)}, {vr(c + h, 2)}')
    for h in (0, 2):
        a(f'v_pk_fma_f32 {vr(tr + h, 2)}, {vr(im + h, 2)}, {vr(s + h, 2)}, {vr(tr + h, 2)} {nr if sign > 0 else ""}')
    for h in (0, 2):
        a(f'v_pk_fma_f32 {vr(ti + h, 2)}, {vr(re + h, 2)}, {vr(s + h, 2)}, {vr(ti + h, 2)} {nr if sign < 0 else ""}')


def pack4(d, lo, hi, step=1, n=4):
    for r in range(n):
        a(f'v_cvt_pk_bf16_f32 v{d + r * step}, v{lo + r}, v{hi + r}')


def tab_read(dst, q):
    a(f'ds_read_b128 {vr(dst, 4)}, v{vL16} offset:{TAB + q * 1024}')


def tm(j, t):
    return 4 * t + j if j < 4 else 8 + t


def read_tmajor(dst, vaddr, off):
    o = off // 256
    assert off % 256 == 0 and o + 6 < 256
    for t in range(2):
        a(f'ds_read2st64_b32 {vr(dst + 4 * t, 2)}, v{vaddr + t} offset0:{o} offset1:{o + 2}')
        a(f'ds_read2st64_b32 {vr(dst + 4 * t + 2, 2)}, v{vaddr + t} offset0:{o + 4} offset1:{o + 6}')
    a(f'ds_read_b64 {vr(dst + 8, 2)}, v{vaddr} offset:{off + 2048}')


def silu(dst, src, tmp):
    for d, s, t in zip(dst, src, tmp):
        a(f'v_mul_f32 v{t}, 0xbfb8aa3b, v{s}')
    for t in tmp:
        a(f'v_exp_f32 v{t}, v{t}')
    for t in tmp:
        a(f'v_add_f32 v{t}, 1.0, v{t}')
    for t in tmp:
        a(f'v_rcp_f32 v{t}, v{t}')
    for d, s, t in zip(dst, src, tmp):
        a(f'v_mul_f32 v{d}, v{s}, v{t}')


def swap_reduce8(acc):
    for k in range(4):
        a(f'v_permlane32_swap_b32 v{acc + k}, v{acc + k + 4}')
    a(f'v_pk_add_f32 {vr(acc, 2)}, {vr(acc, 2)}, {vr(acc + 4, 2)}')
    a(f'v_pk_add_f32 {vr(acc + 2, 2)}, {vr(acc + 2, 2)}, {vr(acc + 6, 2)}')
    for k in range(2):
        a(f'v_permlane16_swap_b32 v{acc + k}, v{acc + k + 2}')
    a(f'v_pk_add_f32 {vr(acc, 2)}, {vr(acc, 2)}, {vr(acc + 2, 2)}')


BC0 = 'op_sel:[0,0,0] op_sel_hi:[1,0,1]'
BC1 = 'op_sel:[0,1,0] op_sel_hi:[1,1,1]'


def prologue():
    a(f'''
    s_cmp_ge_u32 s2, 256
    s_cbranch_scc1 L_end
    ''')
    if DIAG:
        for k in range(NST):
            a(f's_mov_b32 s{sTS + k}, 0')
        a('s_memtime s[98:99]')
        for p in ('M', 'H0', 'H1'):
            stamps[p] = ['start']
        stamp('start')
    a(f'''
    s_load_dwordx16 s[8:23], s[0:1], 0
    s_load_dwordx8 s[24:31], s[0:1], 64
    s_load_dwordx2 s[32:33], s[0:1], 96
    v_lshrrev_b32 v{vL}, 6, v0
    s_and_b32 s{sX}, s2, 7
    v_readfirstlane_b32 s{sW}, v{vL}
    v_and_b32 v{vL}, 63, v0
    s_lshr_b32 s{sIdx}, s2, 3
    s_lshl_b32 s{sMe}, s{sX}, 5
    s_add_u32 s{sMe}, s{sMe}, s{sIdx}
    s_add_u32 s{sRi}, s{sIdx}, 31
    s_and_b32 s{sRi}, s{sRi}, 31
    v_lshlrev_b32 v{vL16}, 4, v{vL}
    s_mov_b32 s{sHI}, 0xffff0000
    s_cmp_lg_u32 s{sRi}, 30
    s_cbranch_scc1 L_nopf
    s_cmp_ge_u32 s{sW}, (L_tables_end-{NAME}_kernel)/8192
    s_cbranch_scc1 L_nopf
    s_getpc_b64 {sr(sBa)}
    L_pc0:
    s_sub_u32 s{sBa}, s{sBa}, L_pc0-{NAME}_kernel
    s_subb_u32 s{sBa + 1}, s{sBa + 1}, 0
    v_lshlrev_b32 v20, 7, v0
    global_load_dword v21, v20, {sr(sBa)}
    L_nopf:
    v_lshlrev_b32 v{vL4}, 2, v{vL}
    s_cmp_eq_u32 s{sW}, 9
    s_cbranch_scc1 L_h1
    s_cmp_eq_u32 s{sW}, 8
    s_cbranch_scc1 L_h0
    s_lshl_b32 s{sRow}, s{sW}, 8
    s_add_u32 s{sKey}, s{sRow}, s{sMe}
    s_mul_i32 s{sRow}, s{sKey}, 1280
    s_cmp_ge_u32 s{sRi}, {20 if S_BLOAD == 0 else 10}
    s_cbranch_scc1 L_role_e
    s_cmp_ge_u32 s{sRi}, 10
    s_cbranch_scc1 L_role_b
    ''')


def xloads():
    for j in range(5):
        a(f'global_load_dword v{vE0 + j}, v{vL4}, {sr(sXrow)} offset:{256 * j} nt')


def gemv_regs(role):
    nj = 3 if role == 'A' else 5
    return (nj,) + ((20, 40, 48, 60, 56, 57) if role == 'A' else (80, 100, 48, 60, 56, 57))


def gemv_issue(role):
    nj, vw, vc, acc, tmp, vo, voc = gemv_regs(role)
    if role == 'A':
        a(f'''
        s_mul_i32 s{sU2}, s{sX}, 10
        s_add_u32 s{sU2}, s{sU2}, s{sRi}          ; blk
        s_lshr_b32 s{sU0}, s{sU2}, 2
        s_and_b32 s{sU1}, s{sU2}, 3
        s_mul_i32 s{sU1}, s{sU1}, 160
        s_mul_i32 s{sT}, s{sW}, 20
        s_add_u32 s{sU1}, s{sU1}, s{sT}
        ''')
        for k in range(4):
            a(f'v_mov_b32 v{vw + 8 + k}, 0')
        a(f'v_mov_b32 v{vc + 2}, 0')
    else:
        a(f'''
        s_mul_i32 s{sU2}, s{sX}, 10
        s_add_u32 s{sU2}, s{sU2}, s{sRi}          ; blk + 10
        s_lshr_b32 s{sU0}, s{sU2}, 1
        s_add_u32 s{sU0}, s{sU0}, 15
        s_and_b32 s{sU1}, s{sU2}, 1
        s_mul_i32 s{sU1}, s{sU1}, 320
        s_mul_i32 s{sT}, s{sW}, 40
        s_add_u32 s{sU1}, s{sU1}, s{sT}
        ''')
    a(f'''
    v_lshrrev_b32 v{voc}, 3, v{vL}
    v_and_b32 v{vo}, 0x70, v{vL16}
    v_mul_u32_u24 v{tmp}, 7680, v{voc}
    v_lshlrev_b32 v{voc}, 1, v{voc}
    v_add_u32 v{vo}, v{vo}, v{tmp}
    s_mul_i32 s{sU3}, s{sU1}, 7680
    s_lshl_b32 s{sT}, s{sU0}, 7
    s_add_u32 s{sU3}, s{sU3}, s{sT}
    s_lshl_b32 s{sU1}, s{sU1}, 1
    s_waitcnt lgkmcnt(0)
    ''')
    stamp('kernarg')
    if role == 'A' or S_BLOAD == 0:
        epoch_load()
    base_add(sBa, C_, sU1)
    base_add(sBb, W_MOD, sU3)
    if role == 'A' or S_BLOAD == 0:
        base_add(sXrow, A_X, sRow)
    if role == 'B' and S_BLOAD == 0:
        xloads()
    for j in range(nj):
        if role == 'A' and j == 2:
            a('s_mov_b32 exec_hi, 0')
        a(f'global_load_ushort v{vc + j}, v{voc}, {sr(sBa)} offset:{16 * j}')
    a('s_mov_b64 exec, -1')
    for j in range(nj):
        if role == 'A' and j == 2:
            a('s_mov_b32 exec_hi, 0')
        a(f'global_load_dwordx4 {vr(vw + 4 * j, 4)}, v{vo}, {sr(sBb)} nt')
        if j + 1 < nj:
            a(f'v_add_u32 v{vo}, {8 * 7680}, v{vo}')
    a('s_mov_b64 exec, -1')
    if role == 'A':
        xloads()


def gemv_compute(role):
    nj, vw, vc, acc, tmp, vo, voc = gemv_regs(role)
    after = 5 if role == 'A' else 0
    a(f's_waitcnt vmcnt({nj + after})')
    stamp('c in')
    cs_ = [vc + j for j in range(nj)]
    for c in cs_:
        a(f'v_lshlrev_b32 v{c}, 16, v{c}')
    silu(cs_, cs_, [tmp + j for j in range(nj)])
    sc = [70 + 2 * j for j in range(nj)]
    for c, s in zip(cs_, sc):
        a(f'v_cvt_pk_bf16_f32 v{s}, v{c}, v{c}')
    for s in sc:
        a(f'v_and_b32 v{s}, s{sHI}, v{s}')
    for j in range(nj):
        a(f's_waitcnt vmcnt({nj - 1 - j + after})')
        for k in range(4):
            unpack(tmp + 2 * k, tmp + 2 * k + 1, vw + 4 * j + k)
        for k in range(4):
            if j == 0:
                a(f'v_pk_mul_f32 {vr(acc + 2 * k, 2)}, {vr(tmp + 2 * k, 2)}, {vr(sc[j], 2)} op_sel:[0,0] op_sel_hi:[1,0]')
            else:
                a(f'v_pk_fma_f32 {vr(acc + 2 * k, 2)}, {vr(tmp + 2 * k, 2)}, {vr(sc[j], 2)}, {vr(acc + 2 * k, 2)} {BC0}')
    stamp('w in')
    a(f'''
    v_and_b32 v{vo}, 7, v{vL}
    v_lshlrev_b32 v{vo}, 8, v{vo}
    v_and_b32 v{voc}, 48, v{vL}
    v_lshl_add_u32 v{vo}, v{voc}, 2, v{vo}
    s_lshl_b32 s{sT}, s{sW}, 2
    s_add_u32 s{sT}, s{sT}, {RED}
    v_add_u32 v{vo}, s{sT}, v{vo}
    ''')
    swap_reduce8(acc)
    for c in ('row_ror:8',):
        dpp('v_add_f32', acc, c)
        dpp('v_add_f32', acc + 1, c)
    a(f'''
    s_mov_b32 exec_lo, 0x00ff00ff
    s_mov_b32 exec_hi, 0x00ff00ff
    ds_write2_b32 v{vo}, v{acc}, v{acc + 1} offset0:0 offset1:8
    s_mov_b64 exec, -1
    s_waitcnt lgkmcnt(0)
    ''')


def role_e_start():
    a('s_waitcnt lgkmcnt(0)')
    epoch_load()
    base_add(sXrow, A_X, sRow)
    xloads()
    a('s_waitcnt vmcnt(0)')
    a('s_branch L_ln1')


def m8(dst, inverse):
    t0, t1, t2, t3 = 20, 21, 22, 23
    a(f'v_lshrrev_b32 v{t0}, 4, v{vL}           ; g')
    a(f's_cmp_lt_u32 s{sW}, 4')
    a(f's_cselect_b32 s{sT}, 1, 7')
    if not inverse:
        a(f'''
        v_bfe_u32 v{t1}, v{vL}, 2, 2
        v_bfe_u32 v{t2}, v{vL}, 1, 1
        v_lshl_add_u32 v{t1}, v{t2}, 2, v{t1}
        v_mul_u32_u24 v{t1}, s{sT}, v{t1}
        v_and_b32 v{t1}, 7, v{t1}
        v_lshlrev_b32 v{t0}, 9, v{t0}
        v_add_u32 v{t0}, s{sMe}, v{t0}
        v_mul_u32_u24 v{t2}, v{t0}, v{t1}
        v_lshl_add_u32 v{t3}, v{t1}, 8, v{t2}
        ''')
    else:
        a(f'''
        v_bfe_u32 v{t1}, v{vL}, 1, 3
        v_lshlrev_b32 v{t1}, 8, v{t1}
        v_add_u32 v{t1}, s{sMe}, v{t1}
        v_mul_u32_u24 v{t0}, s{sT}, v{t0}
        v_and_b32 v{t0}, 7, v{t0}
        v_mul_u32_u24 v{t2}, v{t0}, v{t1}
        v_xor_b32 v{t0}, 4, v{t0}
        v_mul_u32_u24 v{t3}, v{t0}, v{t1}
        v_sub_u32 v{t2}, 0, v{t2}
        v_sub_u32 v{t3}, 0, v{t3}
        ''')
    a(f'''
    v_and_b32 v{t0}, 1, v{vL}
    v_lshl_add_u32 v{t2}, v{t0}, 9, v{t2}
    v_lshl_add_u32 v{t3}, v{t0}, 9, v{t3}
    v_and_b32 v{t2}, 0x7ff, v{t2}
    v_and_b32 v{t3}, 0x7ff, v{t3}
    v_cvt_f32_u32 v{t2}, v{t2}
    v_cvt_f32_u32 v{t3}, v{t3}
    v_mul_f32 v{t2}, 0x3a000000, v{t2}
    v_mul_f32 v{t3}, 0x3a000000, v{t3}
    v_cos_f32 v{t0}, v{t2}
    v_sin_f32 v{t2}, v{t2}
    v_cos_f32 v{t1}, v{t3}
    v_sin_f32 v{t3}, v{t3}
    v_cvt_pk_bf16_f32 v{dst}, v{t0}, v{t2}
    v_cvt_pk_bf16_f32 v{dst + 1}, v{t1}, v{t3}
    ''')


INV640 = hex(f2u(1.0 / 640))
EPS = hex(f2u(1e-5))


def rstd_chain(var, out):
    rbf(out, f'v{var}')
    a(f'v_add_f32 v{out}, {EPS}, v{out}')
    rbf(out, f'v{out}')
    a(f'v_sqrt_f32 v{out}, v{out}')
    rbf(out, f'v{out}')
    a(f'v_rcp_f32 v{out}, v{out}')


def sum10(dst2, x):
    a(f'v_pk_add_f32 {vr(dst2, 2)}, {vr(x, 2)}, {vr(x + 2, 2)}')
    for h in (4, 6, 8):
        a(f'v_pk_add_f32 {vr(dst2, 2)}, {vr(dst2, 2)}, {vr(x + h, 2)}')
    a(f'v_add_f32 v{dst2}, v{dst2}, v{dst2 + 1}')


def dot10(dst2, x, y):
    a(f'v_pk_mul_f32 {vr(dst2, 2)}, {vr(x, 2)}, {vr(y, 2)}')
    for h in (2, 4, 6, 8):
        a(f'v_pk_fma_f32 {vr(dst2, 2)}, {vr(x + h, 2)}, {vr(y + h, 2)}, {vr(dst2, 2)}')
    a(f'v_add_f32 v{dst2}, v{dst2}, v{dst2 + 1}')


late = []


def bar(n):
    a(f's_barrier                                   ; {n}')


def main_path():
    vZ, vSA, vCA = vVec, vVec + 10, vVec + 20
    gemv_issue('A')
    gemv_compute('A')
    a('s_barrier                                   ; B1')
    a('s_waitcnt vmcnt(0)')
    a('s_branch L_ln1')
    a.label('L_role_e')
    role_e_start()
    a.label('L_role_b')
    if S_BLOAD == 0:
        gemv_issue('B')
        a('s_waitcnt vmcnt(10)')
    a.label('L_ln1')
    stamp('x in')
    for j in range(5):
        unpack(vXS + tm(j, 0), vXS + tm(j, 1), vE0 + j)
    sum10(24, vXS)
    wave_sum([24], [sU0])
    a(f'v_mov_b32 v24, {INV640}')
    a(f'v_mul_f32 v26, s{sU0}, v24                ; mean')
    rbf(28, 'v26')
    a(f'v_readfirstlane_b32 s{sM1B}, v28')
    for h in range(0, 10, 2):
        a(f'v_pk_add_f32 {vr(vXS + h, 2)}, {vr(vXS + h, 2)}, v[28:29] op_sel:[0,0] op_sel_hi:[1,0] neg_lo:[0,1] neg_hi:[0,1]')
    dot10(30, vXS, vXS)
    wave_sum([30], [sU0])
    a(f'''
    v_sub_f32 v26, v26, v28
    v_mul_f32 v26, v26, v26
    v_fma_f32 v26, s{sU0}, v24, -v26
    ''')
    rstd_chain(26, 27)
    for j in range(5):
        for t in range(2):
            a(f'v_mul_f32 v{vZ + 2 * j + t}, v27, v{vXS + tm(j, t)}')
    a('s_waitcnt lgkmcnt(0)')
    epoch_tag()
    tag_bytes()
    m8(vM8F, False)
    m8(vM8I, True)
    a(f'''
    v_bfe_u32 v20, v{vL}, 2, 2
    v_and_b32 v21, 48, v{vL16}                    ; part*16
    v_and_b32 v22, 48, v{vL}
    v_lshl_add_u32 v20, v22, 1, v20               ; 32g + kbs
    v_lshl_add_u32 v{vS}, v20, 6, v21
    v_lshl_add_u32 v{vPoll}, v20, 14, v21
    v_mul_u32_u24 v20, 80, v20
    s_mul_i32 s{sT}, s{sW}, 320
    s_add_u32 s{sT}, s{sT}, {XB2}
    v_add3_u32 v{vE0 + 4}, v20, v21, s{sT}        ; staging address
    v_lshlrev_b32 v{vE0}, 3, v{vL}                ; 8*lane
    v_mov_b32 v23, 0
    v_mov_b32 v27, 0
    ''')
    a(f'''
    v_and_b32 v20, 15, v{vL}
    v_mul_u32_u24 v20, 264, v20
    v_and_b32 v21, 48, v{vL}
    v_lshl_add_u32 v{vE0 + 1}, v21, 2, v20
    s_lshr_b32 s{sU0}, s{sW}, 1
    s_mul_i32 s{sU0}, s{sU0}, 4224
    s_and_b32 s{sT}, s{sW}, 1
    s_lshl_b32 s{sT}, s{sT}, 2
    s_add_u32 s{sU0}, s{sU0}, s{sT}
    s_add_u32 s{sU0}, s{sU0}, {XB1}
    v_add_u32 v{vE0 + 1}, s{sU0}, v{vE0 + 1}
    ''')
    a(f'''
    v_lshrrev_b32 v20, 4, v{vL}
    v_mul_u32_u24 v20, 4224, v20
    v_and_b32 v21, 3, v{vL}
    v_mul_u32_u24 v21, 1056, v21
    v_and_b32 v22, 12, v{vL}
    v_lshl_add_u32 v20, v22, 1, v20
    s_lshl_b32 s{sU0}, s{sW}, 5
    s_add_u32 s{sU0}, s{sU0}, {XB1}
    v_add3_u32 v{vE0 + 2}, v20, v21, s{sU0}
    ''')
    a(f'''
    s_cmp_lt_u32 s{sRi}, 10
    s_cbranch_scc1 L_tabs
    s_barrier                                   ; B1
    s_cmp_lt_u32 s{sRi}, 20
    s_cbranch_scc0 L_tabs
    ''')
    if S_BLOAD:
        gemv_issue('B')
    gemv_compute('B')
    a.label('L_tabs')
    a('s_barrier                                   ; BT')
    stamp('poll start')
    tab_read(vF20, T_F20C)
    tab_read(vF20 + 4, T_F20S)
    for q in range(4):
        tab_read(vTW + 4 * q, T_TW1 + q)
    for q in range(8):
        tab_read(vF32 + 4 * q, T_F32 + q)
    a(f'''
    s_sub_u32 s{sT}, s{sW}, 1
    s_cmp_lt_u32 s{sT}, 5
    s_cbranch_scc0 L_b2
    v_subrev_u32 v28, 64, v0                      ; u
    v_lshrrev_b32 v29, 4, v28
    v_lshlrev_b32 v29, 10, v29
    v_and_b32 v30, 0xf0, v{vL16}
    v_add_u32 v29, v29, v30
    v_cmp_le_u32 vcc, 160, v28
    v_cndmask_b32 v30, 0, 1.0, vcc
    v_lshlrev_b32 v28, 4, v28
    v_add_u32 v28, {MODA_L}, v28
    ''')
    poll([f'global_load_dwordx4 {vr(36 + 4 * p, 4)}, v29, {sr(WS)} offset:{256 * p} sc1' for p in range(4)],
         list(range(36, 52)), [52, 53, 54], empty='tag')
    a(f'''
    v_pk_add_f32 v[36:37], v[36:37], v[40:41]
    v_pk_add_f32 v[38:39], v[38:39], v[42:43]
    v_pk_add_f32 v[44:45], v[44:45], v[48:49]
    v_pk_add_f32 v[46:47], v[46:47], v[50:51]
    v_pk_add_f32 v[36:37], v[36:37], v[44:45]
    v_pk_add_f32 v[38:39], v[38:39], v[46:47]
    v_cvt_pk_bf16_f32 v40, v36, v37
    v_cvt_pk_bf16_f32 v41, v38, v39
    ''')
    unpack(36, 37, 40)
    unpack(38, 39, 41)
    a(f'''
    v_pk_add_f32 v[36:37], v[36:37], v[30:31] op_sel:[0,0] op_sel_hi:[1,0]
    v_pk_add_f32 v[38:39], v[38:39], v[30:31] op_sel:[0,0] op_sel_hi:[1,0]
    v_cvt_pk_bf16_f32 v40, v36, v37
    v_cvt_pk_bf16_f32 v41, v38, v39
    ''')
    unpack(36, 37, 40)
    unpack(38, 39, 41)
    a(f'ds_write_b128 v28, v[36:39]')
    a.label('L_b2')
    stamp('poll end')
    a('s_waitcnt lgkmcnt(0)')
    a('s_barrier                                   ; B2')
    stamp('B2 done (mod ready)')
    o = MODA_L // 512
    assert MODA_L % 8 == 0
    a(f'v_add_u32 v28, {MODA_L}, v{vE0}')
    a(f'ds_read2st64_b64 {vr(vSA, 4)}, v28 offset0:0 offset1:1')
    a(f'ds_read2st64_b64 {vr(vCA, 4)}, v28 offset0:5 offset1:6')
    a(f'ds_read2st64_b64 {vr(vSA + 4, 4)}, v28 offset0:2 offset1:3')
    a(f'ds_read2st64_b64 {vr(vCA + 4, 4)}, v28 offset0:7 offset1:8')
    a(f'ds_read_b64 {vr(vSA + 8, 2)}, v28 offset:2048')
    a(f'ds_read_b64 {vr(vCA + 8, 2)}, v28 offset:{2560 + 2048}')
    for j in range(5):
        if j in (0, 2, 4):
            a(f's_waitcnt lgkmcnt({4 - j})')
        a(f'v_pk_fma_f32 {vr(vZ + 2 * j, 2)}, {vr(vZ + 2 * j, 2)}, {vr(vCA + 2 * j, 2)}, {vr(vSA + 2 * j, 2)}')
    for t in range(2):
        a(f'v_cvt_pk_bf16_f32 v{Ra + 4 * t}, v{vZ + t}, v{vZ + 2 + t}')
        a(f'v_cvt_pk_bf16_f32 v{Ra + 4 * t + 1}, v{vZ + 4 + t}, v{vZ + 6 + t}')
        a(f'v_cvt_pk_bf16_f32 v{Ra + 4 * t + 2}, v{vZ + 8 + t}, 0')
    for t in range(2):
        mfma32(RD + 8 * t, Ra + 4 * t, vF20)
        mfma32(RD + 8 * t + 4, Ra + 4 * t, vF20 + 4)
    for t, tmp in ((0, Rb), (1, Rc)):
        cmul(tmp, tmp + 4, RD + 8 * t, RD + 8 * t + 4, vTW + 8 * t, vTW + 8 * t + 4, -1)
        pack4(Ra + 4 * t, tmp, tmp + 4)
    for ks in range(2):
        for u in range(2):
            for e in range(2):
                d = RD + 8 * u + 4 * e
                mfma32(d, vF32 + 16 * u + 8 * e + 4 * ks, Ra + 4 * ks, d if ks else None)
    for u in range(2):
        pack4(Rb + u, RD + 8 * u, RD + 8 * u + 4, step=2)
    for r in range(4):
        a(f'ds_write2_b32 v{vE0 + 1}, v{Rb + 2 * r}, v{Rb + 2 * r + 1} offset0:{4 * r} offset1:{4 * r + 2}')
    a(f'''
    s_lshl_b32 s{sU0}, s{sMe}, 14
    s_lshl_b32 s{sU1}, s{sW}, 8
    s_add_u32 s{sU0}, s{sU0}, s{sU1}
    v_mov_b32 v{Rc + 3}, s{sTag}
    v_mov_b32 v{Rc + 7}, s{sTag}
    ''')
    base_add(sBa, WS, sU0, T1_G)
    base_add(sBb, WS, sU0, T1_G + 8192)
    a('s_waitcnt lgkmcnt(0)')
    bar('B3')
    for n in range(3):
        a(f'ds_read_b64 {vr(Ra + 2 * n, 2)}, v{vE0 + 2} offset:{264 * n}')
    for n in range(3):
        a(f's_waitcnt lgkmcnt({2 - n})')
        mfma16(RD + 4 * n, vM8F, Ra + 2 * n)
    for j in range(2):
        for n in range(3):
            a(f'v_cvt_pk_bf16_f32 v{Rc + 4 * j + n}, v{RD + 4 * n + 2 * j}, v{RD + 4 * n + 2 * j + 1}')
        a(f'global_store_dwordx4 v{vS}, {vr(Rc + 4 * j, 4)}, {sr(sBb if j else sBa)} sc1')
    stamp('T1 stored')
    vWr = vVec
    for k in range(16):
        a(f'v_mov_b32 v{vWr + k}, 0')
    SC = 2.0 / (2048 * 640)
    sKa = sM7
    a(f'''
    v_and_b32 v36, 15, v{vL}
    v_and_b32 v37, 48, v{vL}
    v_lshl_add_u32 v36, v37, 2, v36               ; 64g + i
    v_mul_u32_u24 v{vE0 + 3}, 80, v36
    s_and_b32 s{sU1}, s{sW}, 3
    s_lshr_b32 s{sU2}, s{sW}, 2
    s_lshl_b32 s{sU2}, s{sU2}, 1
    s_mul_i32 s{sKa}, s{sU1}, 3
    s_add_u32 s{sKa}, s{sKa}, s{sU2}
    s_lshl_b32 s{sU1}, s{sU1}, 2
    s_add_u32 s{sU1}, s{sU1}, s{sU2}
    s_lshl_b32 s{sU1}, s{sU1}, 2
    s_add_u32 s{sU1}, s{sU1}, {XB2}
    v_add_u32 v{vE0 + 3}, s{sU1}, v{vE0 + 3}
    v_lshlrev_b32 v36, 5, v36
    s_lshl_b32 s{sU1}, s{sMe}, 6
    s_lshl_b32 s{sT}, s{sW}, 16
    s_add_u32 s{sU1}, s{sU1}, s{sT}
    ''')
    base_add(sBa, WS, sU1, T1_G)
    base_add(sBb, WS, sU1, T1_G + 128 * 16384)

    def w_setup():
        for q in range(2):
            tab_read(vTW + 4 * q, T_F16 + q)
            tab_read(vTW + 8 + 4 * q, T_TW2 + q)
        a(f's_and_b32 s{sU2}, s{sX}, 1                    ; q & 1')
        for s in range(2):
            ka, pos, gam = sBc, sBc + 1, sU3
            if s == 1:
                a(f's_cmp_ge_u32 s{sW}, 4')
                a('s_cbranch_scc1 L_wdone')
            a(f'''
            s_add_u32 s{ka}, s{sKa}, {s}
            s_min_u32 s{pos}, s{ka}, 10
            s_sub_u32 s{sT}, 10, s{pos}
            s_cmp_ge_u32 s{sIdx}, 16
            s_cselect_b32 s{pos}, s{sT}, s{pos}
            s_add_u32 s{pos}, s{pos}, s{sU2}
            s_lshl_b32 s{sT}, s{pos}, 1
            s_cmp_ge_u32 s{pos}, 6
            s_cselect_b32 s{pos}, 4, 0
            s_add_u32 s{pos}, s{pos}, s{sT}
            s_add_u32 s{pos}, s{pos}, {WST}
            v_add_u32 v37, s{pos}, v36
            ''')
            for arr in range(2):
                for r in range(4):
                    a(f'ds_read_u16_d16_hi v{vWr + 8 * s + 4 * arr + r}, v37 offset:{arr * 8192 + r * 512}')
            a(f's_mov_b32 s{gam}, {hex(f2u(SC))}')
            if s == 0:
                a(f'''
                s_and_b32 s{sT}, s{sIdx}, 15
                s_or_b32 s{sT}, s{sT}, s{ka}
                s_cmp_eq_u32 s{sT}, 0
                s_cselect_b32 s{gam}, {hex(f2u(SC / 2))}, s{gam}
                s_cmp_gt_u32 s{sIdx}, 16
                s_cselect_b32 s{sT}, s{ka}, 1
                s_cmp_eq_u32 s{sT}, 0
                s_cselect_b32 s{gam}, 0, s{gam}
                ''')
            else:
                a(f'''
                s_cmp_ge_u32 s{sIdx}, 16
                s_cselect_b32 s{sT}, s{ka}, 1
                s_cmp_eq_u32 s{sT}, 10
                s_cselect_b32 s{gam}, 0, s{gam}
                ''')
            a(f'''
            s_xor_b32 s{sT}, s{gam}, 0x80000000
            s_cmp_ge_u32 s{sIdx}, 16
            s_cselect_b32 s{sT}, s{sT}, s{gam}
            s_waitcnt lgkmcnt(0)
            ''')
            for r in range(4):
                a(f'v_mul_f32 v{vWr + 8 * s + r}, s{gam}, v{vWr + 8 * s + r}')
            for r in range(4):
                a(f'v_mul_f32 v{vWr + 8 * s + 4 + r}, s{sT}, v{vWr + 8 * s + 4 + r}')
        a.label('L_wdone')

    tpoll = [f'global_load_dwordx4 {vr(Ra, 4)}, v{vPoll}, {sr(sBa)} sc1', f'global_load_dwordx4 {vr(Ra + 4, 4)}, v{vPoll}, {sr(sBb)} sc1']
    a('s_waitcnt vmcnt(0)')
    bar('B3b')
    stamp('B3b done')
    poll(tpoll, [Ra + 3, Ra + 7], [Rb, Rb + 1], empty='word', between=w_setup)
    a(f'ds_write_b128 v{vE0 + 4}, {vr(Ra, 4)}')
    a(f'ds_write_b128 v{vE0 + 4}, {vr(Ra + 4, 4)} offset:10240')
    base_add(sBa, WS, sU0, T2_G)
    base_add(sBb, WS, sU0, T2_G + 8192)
    a(f's_cmp_ge_u32 s{sW}, 4')
    a('s_waitcnt lgkmcnt(0)')
    bar('B4')
    stamp('B4 done (T1 in)')
    a('s_cbranch_scc1 L_p2_one')
    Fre, Fim, Tc, Ts = vTW, vTW + 4, vTW + 8, vTW + 12
    tmps = (Rb, Rc)

    def p2(ns):
        if ns == 2:
            for j in range(4):
                a(f'ds_read_b64 {vr(Rb + 2 * j, 2)}, v{vE0 + 3} offset:{1280 * j}')
            for h in range(2):
                a(f's_waitcnt lgkmcnt({2 - 2 * h})')
                for s in range(2):
                    a(f'v_pk_mov_b32 {vr(Ra + 4 * s + 2 * h, 2)}, {vr(Rb + 4 * h, 2)}, {vr(Rb + 4 * h + 2, 2)} op_sel:[{s},{s}]')
        else:
            a(f'ds_read2st64_b32 {vr(Ra, 2)}, v{vE0 + 3} offset0:0 offset1:5')
            a(f'ds_read2st64_b32 {vr(Ra + 2, 2)}, v{vE0 + 3} offset0:10 offset1:15')
            a('s_waitcnt lgkmcnt(0)')
        for s in range(ns):
            mfma32(RD + 8 * s, Ra + 4 * s, Fre)
            mfma32(RD + 8 * s + 4, Ra + 4 * s, Fim)
        for s in range(ns):
            cmul(tmps[s], tmps[s] + 4, RD + 8 * s, RD + 8 * s + 4, Tc, Ts, -1)
            pack4(Ra + 4 * s, tmps[s], tmps[s] + 4)
            mfma32(RD + 8 * s, Fre, Ra + 4 * s)
            mfma32(RD + 8 * s + 4, Fim, Ra + 4 * s)
        for s in range(ns):
            cmul(tmps[s], tmps[s] + 4, RD + 8 * s, RD + 8 * s + 4, vWr + 8 * s, vWr + 8 * s + 4, +1)
            pack4(Ra + 4 * s, tmps[s] + 4, tmps[s])
            mfma32(RD + 8 * s, Ra + 4 * s, Fim)
            mfma32(RD + 8 * s + 4, Ra + 4 * s, Fre)
        for s in range(ns):
            cmul(tmps[s], tmps[s] + 4, RD + 8 * s, RD + 8 * s + 4, Tc, Ts, +1)
            pack4(Ra + 4 * s, tmps[s] + 4, tmps[s])
            mfma32(RD + 8 * s, Fim, Ra + 4 * s)
            mfma32(RD + 8 * s + 4, Fre, Ra + 4 * s)
        for s in range(ns):
            pack4(Rb + s, RD + 8 * s, RD + 8 * s + 4, step=ns)
        if ns == 2:
            for r in range(4):
                a(f'ds_write_b64 v{vE0 + 3}, {vr(Rb + 2 * r, 2)} offset:{1280 * r}')
        else:
            a(f'ds_write2st64_b32 v{vE0 + 3}, v{Rb}, v{Rb + 1} offset0:0 offset1:5')
            a(f'ds_write2st64_b32 v{vE0 + 3}, v{Rb + 2}, v{Rb + 3} offset0:10 offset1:15')
        a('s_waitcnt lgkmcnt(0)')
    p2(2)
    a.label('L_b5')
    bar('B5')
    a(f'ds_read_b128 {vr(Rb, 4)}, v{vE0 + 4}')
    a(f'ds_read_b128 {vr(Rb + 4, 4)}, v{vE0 + 4} offset:10240')
    a('s_waitcnt lgkmcnt(1)')
    a(f'global_store_dwordx4 v{vS}, {vr(Rb, 4)}, {sr(sBa)} sc1')
    a('s_waitcnt lgkmcnt(0)')
    a(f'global_store_dwordx4 v{vS}, {vr(Rb + 4, 4)}, {sr(sBb)} sc1')
    stamp('T2 stored')
    late.append(lambda: (a.label('L_p2_one'), a(f's_cmp_eq_u32 s{sW}, 7'), a('s_cbranch_scc1 L_b5'), p2(1), a('s_branch L_b5')))
    vGA, vVV, vGC, vGS = vVec, vVec + 10, vVec + 20, vVec + 30
    for q in range(4):
        tab_read(vTW + 4 * q, T_TW3 + q)
    for q in range(3):
        tab_read(vF20 + 4 * q, T_F20I + q)
    a(f'''
    v_add_u32 v{vE0 + 5}, {MODB_L}, v{vL4}
    v_lshrrev_b32 v36, 4, v{vL}
    v_mul_u32_u24 v36, 4640, v36
    v_and_b32 v37, 3, v{vL}
    v_mul_u32_u24 v37, 576, v37
    v_and_b32 v38, 4, v{vL}
    v_lshl_add_u32 v36, v38, 2, v36
    v_bfe_u32 v38, v{vL}, 3, 1
    v_lshl_add_u32 v37, v38, 2, v37
    s_lshr_b32 s{sU2}, s{sW}, 1
    s_lshl_b32 s{sU2}, s{sU2}, 5
    s_and_b32 s{sT}, s{sW}, 1
    s_lshl_b32 s{sT}, s{sT}, 3
    s_add_u32 s{sU2}, s{sU2}, s{sT}
    s_add_u32 s{sU2}, s{sU2}, {XB3}
    v_add3_u32 v{vE0 + 1}, v36, v37, s{sU2}
    v_add_u32 v{vE0 + 2}, 2320, v{vE0 + 1}
    v_and_b32 v36, 15, v{vL}
    v_mul_u32_u24 v36, 144, v36
    v_and_b32 v37, 48, v{vL}
    v_lshl_add_u32 v36, v37, 1, v36
    s_mul_i32 s{sU2}, s{sW}, 2320
    s_add_u32 s{sU2}, s{sU2}, {XB3}
    v_add_u32 v{vE0 + 3}, s{sU2}, v36
    ''')
    base_add(sBa, WS, sU1, T2_G)
    base_add(sBb, WS, sU1, T2_G + 128 * 16384)
    base_add(sXrow, OUTP, sRow)

    def p3_setup():
        raw = Rb
        for k in range(0, 24, 2):
            a(f'ds_read2st64_b32 {vr(raw + k, 2)}, v{vE0 + 5} offset0:{k} offset1:{k + 1}')
        a(f'ds_read_b32 v{raw + 24}, v{vE0 + 5} offset:{24 * 256}')
        a('s_waitcnt lgkmcnt(0)')
        for vec, dst in ((0, vGA), (1, vGS), (2, vGC), (4, vVV)):
            for j in range(5):
                unpack(dst + tm(j, 0), dst + tm(j, 1), raw + 5 * vec + j)
        GB = Rb
        for j in range(5):
            unpack(GB + tm(j, 0), GB + tm(j, 1), raw + 15 + j)
        t0, t1, t2 = Rc + 2, Rc + 4, Rc + 6
        dot10(t0, vVV, vGS)
        for h in range(0, 10, 2):
            a(f'v_pk_mul_f32 {vr(vVV + h, 2)}, {vr(vVV + h, 2)}, {vr(vGC + h, 2)}')
        sum10(t1, vVV)
        a(f'v_mov_b32 v{t2}, s{sM1B}')
        for h in range(0, 10, 2):
            a(f'v_pk_mul_f32 {vr(vGC + h, 2)}, {vr(vGC + h, 2)}, {vr(GB + h, 2)}')
            a(f'v_pk_fma_f32 {vr(vGS + h, 2)}, {vr(vGS + h, 2)}, {vr(GB + h, 2)}, {vr(t2, 2)} op_sel:[0,0,0] op_sel_hi:[1,1,0]')
        wave_sum([t1, t0], [sV1, sV2])

    a('s_waitcnt vmcnt(0) lgkmcnt(0)')
    bar('B5b')
    stamp('B5b done')
    poll(tpoll, [Ra + 3, Ra + 7], [Rb, Rb + 1], empty='word', between=p3_setup)
    stamp('T2 in')
    for n in range(3):
        a(f'v_pk_mov_b32 {vr(Rb + 2 * n, 2)}, {vr(Ra + (n & 2), 2)}, {vr(Ra + 4 + (n & 2), 2)} op_sel:[{n & 1},{n & 1}]')
    for n in range(3):
        mfma16(RD + 4 * n, vM8I, Rb + 2 * n)
    for jj in range(2):
        for n in range(3):
            a(f'v_cvt_pk_bf16_f32 v{Ra + 4 * jj + n}, v{RD + 4 * n + 2 * jj + 1}, v{RD + 4 * n + 2 * jj}')
        a(f'ds_write2_b32 v{vE0 + 1 + jj}, v{Ra + 4 * jj}, v{Ra + 4 * jj + 1} offset0:0 offset1:36')
        a(f'ds_write_b32 v{vE0 + 1 + jj}, v{Ra + 4 * jj + 2} offset:288')
    a('s_waitcnt lgkmcnt(0)')
    a('s_barrier                                   ; B6')
    a(f'ds_read_b128 {vr(Rb, 4)}, v{vE0 + 3}')
    a(f'ds_read_b128 {vr(Rb + 4, 4)}, v{vE0 + 3} offset:16')
    for ks in range(2):
        a(f's_waitcnt lgkmcnt({1 - ks})')
        for t in range(2):
            for e in range(2):
                d = RD + 8 * t + 4 * e
                mfma32(d, Rb + 4 * ks, vF32 + 16 * t + 8 * (1 - e) + 4 * ks, d if ks else None)
    for t, tmp in ((0, Ra), (1, Rc)):
        cmul(tmp, tmp + 4, RD + 8 * t, RD + 8 * t + 4, vTW + 8 * t, vTW + 8 * t + 4, +1)
        pack4(Rb + 4 * t, tmp, tmp + 4, n=3)
        a(f'v_mov_b32 v{Rb + 4 * t + 3}, 0')
    Y = RD
    mfma32(Y, vF20, Rb)
    mfma32(Y + 8, vF20 + 4, Rb)
    mfma32(Y + 4, vF20, Rb + 4)
    mfma32(Y + 8, vF20 + 8, Rb + 4, Y + 8)
    for h in range(0, 10, 2):
        a(f'v_pk_fma_f32 {vr(Y + h, 2)}, {vr(Y + h, 2)}, {vr(vGA + h, 2)}, {vr(vXS + h, 2)}')
    s1, s2, s3 = Ra, Ra + 2, Ra + 4
    a(f'v_pk_add_f32 {vr(s1, 2)}, {vr(Y, 2)}, {vr(Y + 2, 2)}')
    a(f'v_pk_mul_f32 {vr(s2, 2)}, {vr(Y, 2)}, {vr(Y, 2)}')
    a(f'v_pk_mul_f32 {vr(s3, 2)}, {vr(Y, 2)}, {vr(vVV, 2)}')
    for h in (2, 4, 6, 8):
        if h > 2:
            a(f'v_pk_add_f32 {vr(s1, 2)}, {vr(s1, 2)}, {vr(Y + h, 2)}')
        a(f'v_pk_fma_f32 {vr(s2, 2)}, {vr(Y + h, 2)}, {vr(Y + h, 2)}, {vr(s2, 2)}')
        a(f'v_pk_fma_f32 {vr(s3, 2)}, {vr(Y + h, 2)}, {vr(vVV + h, 2)}, {vr(s3, 2)}')
    for s in (s1, s2, s3):
        a(f'v_add_f32 v{s}, v{s}, v{s + 1}')
    wave_sum([s1, s2, s3], [sU0, sU2, sU3])
    k0 = Rc
    a(f'''
    v_mov_b32 v{Ra}, {INV640}
    v_mul_f32 v{Ra + 1}, s{sU0}, v{Ra}            ; mu
    v_mul_f32 v{Ra + 2}, v{Ra + 1}, v{Ra + 1}
    v_add_f32 v{Ra + 3}, s{sM1B}, v{Ra + 1}
    v_fma_f32 v{Ra + 2}, s{sU2}, v{Ra}, -v{Ra + 2} ; var
    ''')
    rbf(Ra + 3, f'v{Ra + 3}')
    rstd_chain(Ra + 2, k0)
    a(f'''
    v_sub_f32 v{Ra + 3}, s{sM1B}, v{Ra + 3}       ; -delta
    v_mov_b32 v{Ra + 4}, s{sU3}
    v_fma_f32 v{Ra + 4}, v{Ra + 3}, s{sV1}, v{Ra + 4}
    v_fma_f32 v{Ra + 4}, v{Ra + 4}, v{k0}, s{sV2} ; r
    v_mul_f32 v{k0 + 1}, v{Ra + 3}, v{k0}
    v_ashrrev_i32 v{Ra + 5}, 31, v{Ra + 4}
    v_or_b32 v{Ra + 5}, 0x80000000, v{Ra + 5}
    v_xor_b32 v{Ra + 4}, v{Ra + 4}, v{Ra + 5}
    v_and_b32 v{Ra + 4}, 0xfffff800, v{Ra + 4}
    v_or_b32 v{Ra + 4}, s{sKey}, v{Ra + 4}
    v_mov_b32 v{Ra + 7}, {KEYL}
    v_mov_b32 v{Ra + 5}, s{sTag}
    s_mov_b64 exec, 1
    ds_max_u32 v{Ra + 7}, v{Ra + 4}
    s_mov_b64 exec, -1
    v_readfirstlane_b32 s{sKey}, v{Ra + 4}
    ''')
    ZN = vGA
    for h in range(0, 10, 2):
        a(f'v_pk_fma_f32 {vr(ZN + h, 2)}, {vr(Y + h, 2)}, {vr(k0, 2)}, {vr(k0, 2)} op_sel:[0,0,1] op_sel_hi:[1,0,1]')
        a(f'v_pk_add_f32 {vr(Y + h, 2)}, {vr(Y + h, 2)}, {vr(vGS + h, 2)}')
    for h in range(0, 10, 2):
        a(f'v_pk_fma_f32 {vr(Y + h, 2)}, {vr(ZN + h, 2)}, {vr(vGC + h, 2)}, {vr(Y + h, 2)}')
    vO = vXS
    for j in range(5):
        a(f'v_cvt_pk_bf16_f32 v{vO + j}, v{Y + tm(j, 0)}, v{Y + tm(j, 1)}')
    a(f's_mul_i32 s{sU0}, s{sMe}, {REC_STRIDE}')
    base_add(sBa, WS, sU0, REC_G)
    a('s_waitcnt lgkmcnt(0)')
    a('s_barrier                                   ; B7')
    a(f'''
    ds_read_b32 v{Ra + 6}, v{Ra + 7}
    s_waitcnt lgkmcnt(0)
    v_readfirstlane_b32 s{sU0}, v{Ra + 6}
    s_cmp_eq_u32 s{sU0}, s{sKey}
    s_cselect_b32 s{sCand}, 1, 0
    s_cbranch_scc1 L_cand
    ''')
    for j in range(5):
        a(f'global_store_dword v{vL4}, v{vO + j}, {sr(sXrow)} offset:{256 * j} {OUTPOL}')
    a('s_branch L_keys')
    a.label('L_cand')
    a(f'''
    s_mov_b64 exec, 1
    global_store_dwordx2 v{vL4}, {vr(Ra + 4, 2)}, {sr(sBa)} sc1
    s_mov_b64 exec, -1
    ''')
    raw, SB, CB, H, Bq = 60, 70, 80, 92, 108
    for k in range(0, 10, 2):
        a(f'ds_read2st64_b32 {vr(raw + k, 2)}, v{vE0 + 5} offset0:{5 + k} offset1:{6 + k}')
    a(f'v_add_u32 v{Ra}, {REC_BASE}, v{vL16}')
    for qd in range(4):
        a(f'v_mov_b32 v{H + 4 * qd + 3}, s{sTag}')
    a('s_waitcnt lgkmcnt(0)')
    for j in range(5):
        unpack(SB + tm(j, 0), SB + tm(j, 1), raw + j)
        unpack(CB + tm(j, 0), CB + tm(j, 1), raw + 5 + j)
    for t in range(2):
        for j in range(5):
            k = tm(j, t)
            a(f'v_fma_f32 v{H + 8 * t + j + (j >= 3)}, v{ZN + k}, v{CB + k}, v{SB + k}')
        for qd in range(2):
            a(f'global_store_dwordx4 v{vL16}, {vr(H + 8 * t + 4 * qd, 4)}, {sr(sBa)} offset:{REC_H2 + 2048 * t + 1024 * qd} sc1')
    Bq = 60
    for t in range(2):
        for j in range(5):
            a(f'v_mov_b32 v{Bq + 8 * t + j + (j >= 3)}, v{Y + tm(j, t)}')
        for qd in range(2):
            a(f'v_mov_b32 v{Bq + 8 * t + 4 * qd + 3}, s{sTag}')
            a(f'global_store_dwordx4 v{Ra}, {vr(Bq + 8 * t + 4 * qd, 4)}, {sr(sBa)} offset:{2048 * t + 1024 * qd} sc1')
    a.label('L_keys')
    stamp('key out')
    vEW, vFW = 60, 100
    a(f'''
    s_cmp_lt_u32 s{sRi}, 20
    s_cbranch_scc1 L_no_ew
    s_barrier
    s_mul_i32 s{sT}, s{sW}, 5120
    s_add_u32 s{sT}, s{sT}, {EW}
    v_add_u32 v{Rb}, s{sT}, v{vL16}
    s_lshl_b32 s{sT}, s{sW}, 8
    s_add_u32 s{sT}, s{sT}, {FW}
    v_add_u32 v{Rb + 1}, s{sT}, v{vL4}
    ''')
    st = 132
    for j in range(5):
        a(f'ds_read_b128 {vr(st + 4 * j, 4)}, v{Rb} offset:{1024 * j}')
    a('s_waitcnt lgkmcnt(0)')
    for k in range(20):
        unpack(vEW + 2 * k, vEW + 2 * k + 1, st + k)
    a(f's_cmp_ge_u32 s{sW}, 5')
    a('s_cbranch_scc1 L_no_ew')
    for u in range(0, 16, 2):
        a(f'ds_read2st64_b32 {vr(st + u, 2)}, v{Rb + 1} offset0:{5 * u} offset1:{5 * u + 5}')
    a('s_waitcnt lgkmcnt(0)')
    for k in range(16):
        unpack(vFW + 2 * k, vFW + 2 * k + 1, st + k)
    a.label('L_no_ew')
    a(f'''
    v_mov_b32 v{Rb + 2}, {KEYL + 4}
    s_cmp_ge_u32 s{sW}, 4
    s_cbranch_scc1 L_b8
    v_mul_u32_u24 v{Rb}, {REC_STRIDE}, v0
    v_add_u32 v{Rb}, {REC_G}, v{Rb}
    ''')
    poll([f'global_load_dwordx2 {vr(Rb + 4, 2)}, v{Rb}, {sr(WS)} sc1'], [Rb + 5], [], empty='word')
    for c in ('row_ror:8', 'row_ror:4', 'row_ror:2', 'row_ror:1'):
        dpp('v_max_u32', Rb + 4, c)
    a(f'''
    s_mov_b32 exec_lo, 0x00010001
    s_mov_b32 exec_hi, 0x00010001
    ds_max_u32 v{Rb + 2}, v{Rb + 4}
    s_mov_b64 exec, -1
    s_waitcnt lgkmcnt(0)
    ''')
    a.label('L_b8')
    a('s_barrier                                   ; B8')
    a(f'''
    ds_read_b32 v{Rb + 3}, v{Rb + 2}
    s_waitcnt lgkmcnt(0)
    v_readfirstlane_b32 s{sU0}, v{Rb + 3}
    s_and_b32 s{sU1}, s{sU0}, 255
    s_mul_i32 s{sU1}, s{sU1}, {REC_STRIDE}
    ''')
    base_add(sBa, WS, sU1, REC_G)
    stamp('B8 done (winner)')
    a(f'''
    s_cmp_ge_u32 s{sRi}, 20
    s_cbranch_scc1 L_do_e
    ''')
    def deferred(lbl):
        a(f'''
        s_cmp_eq_u32 s{sCand}, 0
        s_cbranch_scc1 {lbl}
        s_cmp_eq_u32 s{sU0}, s{sKey}
        s_cbranch_scc1 {lbl}
        ''')
        for j in range(5):
            a(f'global_store_dword v{vL4}, v{vO + j}, {sr(sXrow)} offset:{256 * j} {OUTPOL}')
        a.label(lbl)
    deferred('L_def1')
    a(f'''
    s_cmp_ge_u32 s{sRi}, 10
    s_cbranch_scc1 L_fin
    s_cmp_lg_u32 s{sW}, 0
    s_cbranch_scc1 L_fin
    s_mul_i32 s{sU2}, s{sX}, 10
    s_add_u32 s{sU2}, s{sU2}, s{sRi}              ; f
    ''')
    a(f'''
    v_and_b32 v20, 1, v{vL}
    v_lshrrev_b32 v21, 4, v{vL}
    v_lshl_add_u32 v20, v20, 2, v21
    s_lshl_b32 s{sT}, s{sU2}, 3
    v_add_u32 v20, s{sT}, v20                      ; d
    v_lshlrev_b32 v21, 1, v20
    v_add_u32 v21, {MODB_L + 3840}, v21
    v_mov_b32 v22, 0
    ds_read_u16_d16_hi v22, v21                    ; gb[d]
    s_lshr_b32 s{sU3}, s{sU2}, 4                   ; j
    s_cmp_ge_u32 s{sU3}, 3
    s_cselect_b32 s{sT}, 3, 0
    s_sub_u32 s{sU3}, s{sU3}, s{sT}
    s_mul_i32 s{sT}, s{sT}, 342
    s_and_b32 s{sT}, s{sT}, 1024
    s_add_u32 s{sT}, s{sT}, {REC_BASE}
    v_bfe_u32 v24, v20, 1, 6                       ; lane'
    v_and_b32 v25, 1, v20                          ; t
    v_lshlrev_b32 v26, 11, v25
    v_lshl_add_u32 v26, v24, 4, v26
    v_add_u32 v26, s{sT}, v26
    ''')
    poll([f'global_load_dwordx4 v[32:35], v26, {sr(sBa)} sc1'], [35], [], empty='word')
    a(f'''
    s_cmp_eq_u32 s{sU3}, 1
    s_cselect_b64 vcc, -1, 0
    v_cndmask_b32 v27, v32, v33, vcc
    s_cmp_eq_u32 s{sU3}, 2
    s_cselect_b64 vcc, -1, 0
    v_cndmask_b32 v27, v27, v34, vcc
    ''')
    a(f'''
    s_and_b32 s{sU1}, s{sU0}, 0xfffff800
    s_or_b32 s{sU1}, s{sU1}, 0x400
    s_xor_b32 s{sU3}, s{sU1}, 0x80000000
    s_not_b32 s{sT}, s{sU1}
    s_cmp_lt_i32 s{sU1}, 0
    s_cselect_b32 s{sU1}, s{sU3}, s{sT}
    v_mov_b32 v28, s{sU1}
    ''')
    rbf(28, 'v28')
    a(f'''
    v_mul_f32 v28, 0xbfb8aa3b, v28
    v_exp_f32 v28, v28
    v_add_f32 v28, 1.0, v28
    v_rcp_f32 v28, v28
    ''')
    rbf(28, 'v28')
    a(f'''
    s_and_b32 s{sU1}, s{sU0}, 0x7ff
    s_mul_i32 s{sU1}, s{sU1}, 1280
    v_lshlrev_b32 v20, 1, v20
    v_lshrrev_b32 v29, 1, v{vL}
    v_mul_u32_u24 v29, {PY_STRIDE}, v29
    v_and_b32 v30, 16, v{vL16}
    v_add_u32 v29, v29, v30
    v_add_u32 v30, {32 * PY_STRIDE}, v29
    v_add_u32 v31, {64 * PY_STRIDE}, v29
    s_lshl_b32 s{sU2}, s{sU2}, 5
    ''')
    base_add(sXrow, OUTP, sU1)
    base_add(sBb, WS, sU2, PY_G)
    a('s_waitcnt lgkmcnt(0)')
    poll([f'global_load_dwordx4 {vr(36 + 4 * n, 4)}, v{29 + n}, {sr(sBb)} sc1' for n in range(3)],
         list(range(36, 48)), [48, 49], empty='tag')
    a(f'''
    v_pk_add_f32 v[36:37], v[36:37], v[40:41]
    v_pk_add_f32 v[38:39], v[38:39], v[42:43]
    v_pk_add_f32 v[36:37], v[36:37], v[44:45]
    v_pk_add_f32 v[38:39], v[38:39], v[46:47]
    v_permlane32_swap_b32 v36, v38
    v_permlane32_swap_b32 v37, v39
    v_pk_add_f32 v[36:37], v[36:37], v[38:39]
    v_permlane16_swap_b32 v36, v37
    v_add_f32 v36, v36, v37
    ''')
    for c in ('row_ror:8', 'row_ror:4', 'row_ror:2'):
        dpp('v_add_f32', 36, c)
    rbf(36, 'v36')
    a(f'''
    v_mul_f32 v36, v36, v28
    v_fma_f32 v36, v36, v22, v27
    v_cvt_pk_bf16_f32 v36, v36, v36
    s_mov_b32 exec_lo, 0x00030003
    s_mov_b32 exec_hi, 0x00030003
    global_store_short v20, v36, {sr(sXrow)} sc1
    s_mov_b64 exec, -1
    s_branch L_fin
    ''')
    a.label('L_do_e')
    a(f'''
    v_bfe_u32 v30, v0, 2, 6                        ; lane' = (t'>>1)>>1
    v_bfe_u32 v31, v0, 1, 1                        ; t
    v_lshlrev_b32 v28, 4, v30
    v_lshl_add_u32 v28, v31, 11, v28
    ''')
    poll([f'global_load_dwordx4 v[20:23], v28, {sr(sBa)} offset:{REC_H2} sc1',
          f'global_load_dwordx4 v[24:27], v28, {sr(sBa)} offset:{REC_H2 + 1024} sc1'], [23, 27], [30, 31], empty='word')
    acc = 36
    for j in range(5):
        for k in range(4):
            w_ = vr(vEW + 8 * j + 2 * k, 2)
            xr = 20 + j + (j >= 3)
            x_ = vr(xr & ~1, 2)
            if j == 0:
                a(f'v_pk_mul_f32 {vr(acc + 2 * k, 2)}, {w_}, {x_} op_sel:[0,0] op_sel_hi:[1,0]')
            else:
                a(f'v_pk_fma_f32 {vr(acc + 2 * k, 2)}, {w_}, {x_}, {vr(acc + 2 * k, 2)} {BC1 if xr & 1 else BC0}')
    a(f'''
    v_and_b32 v28, 1, v{vL}
    v_lshlrev_b32 v28, 7, v28
    v_and_b32 v29, 48, v{vL}
    v_lshl_add_u32 v28, v29, 1, v28
    s_lshr_b32 s{sU1}, s{sW}, 2
    s_lshl_b32 s{sU1}, s{sU1}, 8
    s_and_b32 s{sT}, s{sW}, 3
    s_lshl_b32 s{sT}, s{sT}, 2
    s_add_u32 s{sU1}, s{sU1}, s{sT}
    s_add_u32 s{sU1}, s{sU1}, {RED}
    v_add_u32 v28, s{sU1}, v28
    v_and_b32 v29, 0xf0, v{vL16}
    v_and_b32 v30, 16, v{vL16}
    v_lshrrev_b32 v30, v30, s{sTag}
    v_bfe_u32 v31, v30, 8, 8
    v_and_b32 v30, 0xff, v30
    v_mov_b32 v32, 0xffffff00
    ''')
    swap_reduce8(acc)
    for c in ('row_ror:8', 'row_ror:4', 'row_ror:2'):
        dpp('v_add_f32', acc, c)
        dpp('v_add_f32', acc + 1, c)
    a(f'''
    s_mov_b32 exec_lo, 0x00030003
    s_mov_b32 exec_hi, 0x00030003
    ds_write2_b32 v28, v{acc}, v{acc + 1} offset0:0 offset1:4
    s_mov_b64 exec, -1
    s_mul_i32 s{sU1}, s{sX}, 12
    s_add_u32 s{sU1}, s{sU1}, s{sRi}
    s_mul_i32 s{sU1}, s{sU1}, {PY_STRIDE}
    s_lshl_b32 s{sT}, s{sW}, 9
    s_add_u32 s{sU1}, s{sU1}, s{sT}
    ''')
    base_add(sBb, WS, sU1, PY_G - 20 * PY_STRIDE)
    a(f'''
    s_waitcnt lgkmcnt(0)
    s_barrier                                   ; B9
    s_cmp_ge_u32 s{sW}, 5
    s_cbranch_scc1 L_e_done
    ds_read_b128 v[20:23], v29 offset:{RED}
    ds_read_b128 v[24:27], v29 offset:{RED + 256}
    s_waitcnt lgkmcnt(0)
    v_pk_add_f32 v[20:21], v[20:21], v[22:23]
    v_pk_add_f32 v[24:25], v[24:25], v[26:27]
    v_add_f32 v20, v20, v21
    v_add_f32 v24, v24, v25
    v_cvt_pk_bf16_f32 v24, v20, v24
    ''')
    unpack(20, 24, 24)
    silu([20], [20], [21])
    rbf(20, 'v20')
    a('v_mul_f32 v20, v20, v24')
    rbf(20, 'v20')
    for u in range(16):
        a(f'v_readlane_b32 s{sGU + u}, v20, {u}')
    for u in range(16):
        w_ = vr(vFW + 2 * u, 2)
        g_ = sr(sGU + (u & ~1))
        d_ = vr(36 + 2 * (u & 1), 2)
        if u < 2:
            a(f'v_pk_mul_f32 {d_}, {w_}, {g_} op_sel:[0,{u & 1}] op_sel_hi:[1,{u & 1}]')
        else:
            a(f'v_pk_fma_f32 {d_}, {w_}, {g_}, {d_} {BC1 if u & 1 else BC0}')
    a('v_pk_add_f32 v[36:37], v[36:37], v[38:39]')
    a('v_and_or_b32 v36, v36, v32, v30')
    a('v_and_or_b32 v37, v37, v32, v31')
    a(f'global_store_dwordx2 v{vE0}, v[36:37], {sr(sBb)} sc1')
    a.label('L_e_done')
    deferred('L_def2')
    a.label('L_fin')
    stamp('end')
    dump_stamps()
    a.label('L_end')
    a('s_endpgm')
    for f in late:
        f()


def fill(base, n_full, voff=vL16, tmp=24):
    cur = voff
    for n in range(n_full):
        if n and n % 4 == 0:
            a(f'v_add_u32 v{tmp}, {1024 * n}, v{voff}')
            cur = tmp
        a(f'global_store_dwordx4 v{cur}, v[20:23], {sr(base)} offset:{1024 * (n % 4)} sc1')


def warm_loads(specs):
    for d, vo, b, imm in specs:
        a(f'global_load_dword v{d}, v{vo}, {sr(b)} offset:{imm} {"" if WARMPOL == "plain" else "nt"}')
    return len(specs)


def retouch(specs):
    if WARMPOL == 'both':
        a('s_waitcnt vmcnt(0)')
        for d, vo, b, imm in specs:
            a(f'global_load_dword v{d}, v{vo}, {sr(b)} offset:{imm} sc1')


sF1, sF2, sF3, sF4, sPb, sGw = 56, 58, 60, 62, 64, 66


WW = [(156, 150, W_R, 0), (157, 150, W_I, 0), (158, 151, W_R, 0), (159, 151, W_I, 0)]
GU = [(156 + n, 152, sGw, 128 * n) for n in range(3)]


def act_wd():
    for n in range(20):
        if n % 4 == 0:
            a(f's_mov_b32 m0, {FW + n * 1024}')
            a(f'v_add_u32 v153, {1024 * n}, v{vL16}')
        a(f'global_load_lds_dwordx4 v153, {sr(sGw)} offset:{1024 * (n % 4)} nt')
    return 20


def slot_loads(role, slot):
    n, rt = 0, []
    if role == 'E' and S_WWARM == slot:
        n += warm_loads(WW)
        rt += WW
    if role != 'E' and S_GUW == slot:
        n += warm_loads(GU)
        rt += GU
    if role == 'E' and S_WD == slot:
        n += act_wd()
    return n, rt


def slot_fills(role, slot):
    n = 0
    if S_FILL1 == slot:
        fill(sF1, 16)
        n += 16
    if S_FILL2 == slot:
        fill(sF2, 16)
        n += 16
    return n


def publish():
    a(f'''
    ds_read_b128 v[40:43], v28 offset:{RED}
    ds_read_b128 v[44:47], v28 offset:{RED + 16}
    s_waitcnt lgkmcnt(0)
    v_pk_add_f32 v[40:41], v[40:41], v[42:43]
    v_pk_add_f32 v[44:45], v[44:45], v[46:47]
    v_pk_add_f32 v[40:41], v[40:41], v[44:45]
    v_add_f32 v40, v40, v41
    v_and_or_b32 v40, v40, v33, v34
    global_store_dword v{vL4}, v40, {sr(sPb)} sc1
    ''')
    stamp('published', 'H0')


def helper0():
    a.label('L_h0')
    for k in range(4):
        a(f'v_mov_b32 v{20 + k}, 0')
    a(f'''
    v_mov_b32 v28, {KEYL}
    ds_write_b64 v28, v[20:21]
    s_lshl_b32 s{sU0}, s{sMe}, 14
    s_mul_i32 s{sU2}, s{sX}, 10
    s_add_u32 s{sU2}, s{sU2}, s{sRi}
    s_lshl_b32 s{sU2}, s{sU2}, 8
    s_cmp_lt_u32 s{sRi}, 10
    s_cselect_b32 s{sU1}, 0, {MODB_G - 2560}
    s_add_u32 s{sU2}, s{sU2}, s{sU1}
    s_waitcnt lgkmcnt(0)
    ''')
    stamp('kernarg', 'H0')
    epoch_load()
    base_add(sF1, WS, sU0, T1_G)
    base_add(sF2, WS, sU0, T2_G)
    base_add(sPb, WS, sU2)
    a(f'''
    v_lshrrev_b32 v24, 4, v{vL}
    v_lshlrev_b32 v24, 9, v24
    v_and_b32 v25, 0xf0, v{vL16}
    v_add_u32 v24, v24, v25
    v_add_u32 v120, {MODB_G}, v24
    v_add_u32 v121, {MODB_G + 4096}, v24
    v_add_u32 v122, {MODB_G + 8192}, v24
    v_add_u32 v123, {MODB_G + 12288}, v24
    v_add_u32 v124, {MODB_G + 16384}, v24
    v_lshlrev_b32 v28, 5, v{vL}
    v_mul_u32_u24 v152, 3072, v{vL}
    s_cmp_lt_u32 s{sRi}, 20
    s_cbranch_scc0 L_h0_E
    s_cmp_lt_u32 s{sRi}, 10
    s_cselect_b32 s{sGw}, s{W_G}, s{W_U}
    s_cselect_b32 s{sGw + 1}, s{W_G + 1}, s{W_U + 1}
    s_cselect_b32 s{sU1}, 0, 10
    s_sub_u32 s{sU1}, s{sRi}, s{sU1}
    s_mul_i32 s{sU1}, s{sU1}, {64 * 3072}
    s_mul_i32 s{sU2}, s{sX}, 384
    s_add_u32 s{sU1}, s{sU1}, s{sU2}
    ''')
    base_add(sGw, sGw, sU1)
    a(f's_cmp_lt_u32 s{sRi}, 10')
    a('s_cbranch_scc0 L_h0_B')
    modb = [f'global_load_dwordx4 {vr(40 + 8 * n + 4 * h, 4)}, v{120 + n // 2}, {sr(WS)} offset:{2048 * (n % 2) + 256 * h} sc1'
            for n in range(10) for h in range(2)]
    for role in 'ABE':
        if role != 'A':
            a.label(f'L_h0_{role}')
        if role == 'E':
            a(f'''
            s_mul_i32 s{sU1}, s{sX}, 12
            s_add_u32 s{sU1}, s{sU1}, s{sRi}
            s_sub_u32 s{sU1}, s{sU1}, 20
            s_mul_i32 s{sU1}, s{sU1}, 20480
            ''')
            base_add(sGw, W_D, sU1)
            a(f'''
            s_sub_u32 s{sU3}, s{sRi}, 20
            s_lshl_b32 s{sU3}, s{sU3}, 7
            s_mul_i32 s{sU1}, s{sX}, 642
            s_movk_i32 s{sU2}, 0x2aab
            s_movk_i32 s{sT}, 5136
            ''')
            for n in range(2):
                a(f'''
                v_add_u32 v40, s{sU3}, v{vL}
                v_add_u32 v40, {64 * n}, v40
                v_mul_u32_u24 v41, s{sU2}, v40
                v_lshrrev_b32 v41, 16, v41
                v_mul_u32_u24 v42, 6, v41
                v_sub_u32 v42, v40, v42
                v_lshlrev_b32 v42, 7, v42
                v_min_u32 v42, 638, v42
                v_add_u32 v42, s{sU1}, v42
                v_mad_u32_u24 v42, v41, s{sT}, v42
                v_and_b32 v{150 + n}, -4, v42
                ''')
        rts = []
        if role != 'A':
            rts = slot_loads(role, 0)[1]
            slot_fills(role, 0)
        a('s_waitcnt lgkmcnt(0)')
        epoch_tag()
        tag_bytes()
        a(f'''
        v_mov_b32 v27, s{sTag}
        v_lshlrev_b32 v34, 3, v{vL}
        v_and_b32 v34, 24, v34
        v_bfe_u32 v34, v27, v34, 8
        v_mov_b32 v33, 0xffffff00
        ''')
        bar('B1')
        if role == 'A':
            publish()
            rts += slot_loads(role, 0)[1]
            slot_fills(role, 0)
        rts += slot_loads(role, 1)[1]
        slot_fills(role, 1)
        bar('BT')
        if role == 'B':
            publish()
        if rts:
            retouch(rts)
        stamp('w0 done', 'H0')
        bar('B2')
        a('s_waitcnt vmcnt(0)')
        slot_fills(role, 2)
        rts = slot_loads(role, 2)[1]
        assert S_FILL1 < 2
        bar('B3')
        if rts:
            retouch(rts)
        bar('B3b')
        bar('B4')
        a('s_waitcnt vmcnt(0)')
        for ld in modb:
            a(ld)
        k, rts = slot_loads(role, 3)
        bar('B5')
        a(f's_waitcnt vmcnt({k})')
        if role != 'E':
            a('s_branch L_h0_f')
    a.label('L_h0_f')
    a(f'v_lshlrev_b32 v28, 3, v{vL}')
    a(f'v_add_u32 v28, {MODB_L}, v28')
    poll(modb, list(range(40, 120)), [126, 127, 128], empty='tag', issued=True, younger=63)
    a(f'''
    v_mov_b32 v31, 1.0
    v_cmp_gt_u32 vcc, 32, v{vL}
    v_cndmask_b32 v32, 0, 1.0, vcc
    ''')
    for n in range(10):
        b = 40 + 8 * n
        a(f'v_pk_add_f32 {vr(b, 2)}, {vr(b, 2)}, {vr(b + 4, 2)}')
        a(f'v_pk_add_f32 {vr(b + 2, 2)}, {vr(b + 2, 2)}, {vr(b + 6, 2)}')
        a(f'v_cvt_pk_bf16_f32 v{b + 4}, v{b}, v{b + 1}')
        a(f'v_cvt_pk_bf16_f32 v{b + 5}, v{b + 2}, v{b + 3}')
        if n in (5, 6, 7):
            unpack(b, b + 1, b + 4)
            unpack(b + 2, b + 3, b + 5)
            one = 'v[32:33] op_sel:[0,0] op_sel_hi:[1,0]' if n == 7 else 'v[30:31] op_sel:[0,1] op_sel_hi:[1,1]'
            a(f'v_pk_add_f32 {vr(b, 2)}, {vr(b, 2)}, {one}')
            a(f'v_pk_add_f32 {vr(b + 2, 2)}, {vr(b + 2, 2)}, {one}')
            a(f'v_cvt_pk_bf16_f32 v{b + 4}, v{b}, v{b + 1}')
            a(f'v_cvt_pk_bf16_f32 v{b + 5}, v{b + 2}, v{b + 3}')
        a(f'ds_write_b64 v28, {vr(b + 4, 2)} offset:{512 * n}')
    a('s_waitcnt lgkmcnt(0)')
    stamp('modb in', 'H0')
    if WARMPOL == 'both' and S_GUW == 3:
        a(f's_cmp_lt_u32 s{sRi}, 20')
        a('s_cbranch_scc0 L_h0_g')
        retouch(GU)
        a.label('L_h0_g')
    bar('B5b')
    bar('B6')
    a(f'''
    s_cmp_lg_u32 s2, 0
    s_cbranch_scc1 L_h0_ne
    v_mov_b32 v26, {EPOCH_G}
    s_mov_b64 exec, 1
    global_store_dword v26, v27, {sr(WS)} sc1
    s_mov_b64 exec, -1
    ''')
    a.label('L_h0_ne')
    a('s_waitcnt vmcnt(0)')
    dump_stamps('H0')
    a('s_endpgm')


def helper1():
    a.label('L_h1')
    a(f'''
    s_getpc_b64 {sr(sBa)}
    L_pc:
    s_add_u32 s{sBb}, s{sBa}, L_tables-L_pc
    s_addc_u32 s{sBb + 1}, s{sBa + 1}, 0
    ''')

    def tabs(q0, q1):
        for q in range(q0, q1):
            if q % 4 == 0 or q == q0:
                a(f's_mov_b32 m0, {TAB + (q & ~3) * 1024}')
                a(f'v_add_u32 v20, {(q & ~3) * 1024}, v{vL16}')
            a(f'global_load_lds_dwordx4 v20, {sr(sBb)} offset:{1024 * (q % 4)}')

    def tab2():
        tabs(14, NTAB)
        a(f'''
        s_mov_b32 m0, {WR_L}
        s_nop 0
        global_load_lds_dwordx4 v{vL16}, {sr(B_WR)}
        s_mov_b64 exec, 0xffff
        global_load_lds_dwordx4 v{vL16}, {sr(B_WR)} offset:1024
        s_mov_b64 exec, -1
        ''')
        return NTAB - 14 + 2

    def egather():
        for n in range(20):
            j_, wq = n // 4, n % 4
            a(f'''
            s_mov_b32 m0, {EW + wq * 5120 + j_ * 1024}
            s_nop 0
            global_load_lds_dwordx4 v40, {sr(sF1)}
            s_mov_b32 m0, {EW + (wq + 4) * 5120 + j_ * 1024}
            s_nop 0
            global_load_lds_dwordx4 v40, {sr(sF2)}
            ''')
            if n < 19:
                a(f'v_add_u32 v40, {32 * 3072}, v40')
        stamp('EG issued', 'H1')

    a(f'''
    s_mul_i32 s{sU1}, s{sIdx}, 40
    s_sub_u32 s{sT}, 1260, s{sU1}
    s_sub_u32 s{sU0}, 0, s{sX}
    s_and_b32 s{sU0}, s{sU0}, 7
    s_cmp_ge_u32 s{sIdx}, 16
    s_cselect_b32 s{sU1}, s{sT}, s{sU1}             ; 2*C0
    s_cselect_b32 s{sU2}, -1, 1                     ; direction
    s_cselect_b32 s{sU0}, s{sU0}, s{sX}             ; q
    v_lshrrev_b32 v23, 1, v{vL}
    v_lshl_add_u32 v23, v23, 3, s{sU0}              ; q + 8*kappa (n = 0)
    v_mul_lo_u32 v23, v23, s{sU2}
    s_lshl_b32 s{sU2}, s{sU2}, 8
    v_and_b32 v24, 1, v{vL}
    v_mul_u32_u24 v24, 12, v24
    s_movk_i32 s{sU3}, 642
    v_mov_b32 v26, s{sU1}
    ''')
    for n in range(8):
        a(f'''
        v_and_b32 v25, 0x7ff, v23
        v_mad_u32_u24 v25, v25, s{sU3}, v26
        v_and_b32 v25, -4, v25
        v_add_u32 v{30 + n}, v25, v24
        v_add_u32 v23, s{sU2}, v23
        ''')
    a(f'''
    s_max_u32 s{sU1}, s{sRi}, 20
    s_mul_i32 s{sU0}, s{sX}, 12
    s_add_u32 s{sU0}, s{sU0}, s{sU1}
    s_sub_u32 s{sU0}, s{sU0}, 20
    s_lshl_b32 s{sU0}, s{sU0}, 5
    v_lshrrev_b32 v40, 1, v{vL}
    v_mul_u32_u24 v40, 3072, v40
    v_and_b32 v41, 16, v{vL16}
    v_add_u32 v40, v40, v41
    s_waitcnt lgkmcnt(0)
    ''')
    base_add(sF1, W_G, sU0)
    base_add(sF2, W_U, sU0)
    a(f's_cmp_lt_u32 s{sRi}, 10')
    a('s_cbranch_scc0 L_h1_t')
    bar('B1')
    a.label('L_h1_t')
    tabs(0, 14)
    n = tab2() if S_TAB2 == 1 else 0
    a(f's_waitcnt vmcnt({n})')
    stamp('tab in', 'H1')
    a(f's_cmp_lt_u32 s{sRi}, 10')
    a('s_cbranch_scc1 L_h1_u')
    bar('B1')
    a.label('L_h1_u')
    bar('BT')
    bar('B2')
    for n in range(8):
        a(f'''
        s_mov_b32 m0, {WST + n * 1024}
        s_nop 0
        global_load_lds_dwordx3 v{30 + n}, {sr(W_R)}
        s_mov_b32 m0, {WST + 8192 + n * 1024}
        s_nop 0
        global_load_lds_dwordx3 v{30 + n}, {sr(W_I)}
        ''')
    if S_TAB2 == 2:
        tab2()
    stamp('W issued', 'H1')
    bar('B3')
    a('s_waitcnt vmcnt(0)')
    stamp('W in', 'H1')
    a(f'''
    s_cmp_lt_u32 s{sRi}, 20
    s_cbranch_scc1 L_h1_end
    ''')
    bar('B3b')
    bar('B4')
    if S_EG == 3:
        egather()
    bar('B5')
    if S_EG == 3 and DIAG and not PROBE:
        a('s_waitcnt vmcnt(0)')
        stamp('EG in', 'H1')
    bar('B5b')
    bar('B6')
    if S_EG == 4:
        egather()
    bar('B7')
    a('s_waitcnt vmcnt(0)')
    a.label('L_h1_end')
    stamp('end', 'H1')
    dump_stamps('H1')
    a('s_endpgm')


prologue()
main_path()
helper0()
helper1()
body = a.finish()

hdr = open(f'cdna_kernels/{NAME}.s.ref').read().split('; Override launch')[0]
T = tables()
tab = []
flat = T.reshape(-1)
for k in range(0, flat.size, 8):
    tab.append('.long ' + ','.join('0x%08x' % v for v in flat[k:k + 8]))

launch = f'; @launch grid=(256,1,1) block=(640,1,1) lds={LDS_BYTES}'
pre_code = pre_kd = ''
if PRE:
    launch = f'; @launch kernel=pre_kernel grid=({PRE},1,1) block=(64,1,1) lds=0\n; @launch kernel={NAME}_kernel grid=(256,1,1) block=(640,1,1) lds={LDS_BYTES}'
    pre_code = '.globl pre_kernel\n.p2align 8\n.type pre_kernel,@function\npre_kernel:\n    s_endpgm\n'
    pre_kd = '''.p2align 6
.amdhsa_kernel pre_kernel
  .amdhsa_next_free_vgpr 8
  .amdhsa_next_free_sgpr 16
  .amdhsa_accum_offset 8
  .amdhsa_group_segment_fixed_size 0
  .amdhsa_kernarg_size 104
  .amdhsa_user_sgpr_count 2
  .amdhsa_user_sgpr_kernarg_segment_ptr 1
  .amdhsa_system_sgpr_workgroup_id_x 1
.end_amdhsa_kernel
'''
src = hdr + f'''{launch}
.amdgcn_target "amdgcn-amd-amdhsa--gfx950"
.text
{pre_code}.globl {NAME}_kernel
.p2align 8
.type {NAME}_kernel,@function
{NAME}_kernel:
{body}
.p2align 8
.type L_tables,@object
L_tables:
''' + '\n'.join(tab) + f'''
.size L_tables, {NTAB * 1024}
.fill (8192 - ((. - {NAME}_kernel) & 8191)) & 8191, 1, 0
L_tables_end:
.section .rodata,"a"
.p2align 6
.amdhsa_kernel {NAME}_kernel
  .amdhsa_next_free_vgpr 168
  .amdhsa_next_free_sgpr 102
  .amdhsa_accum_offset 168
  .amdhsa_group_segment_fixed_size 0
  .amdhsa_kernarg_size 104
  .amdhsa_user_sgpr_count 2
  .amdhsa_user_sgpr_kernarg_segment_ptr 1
  .amdhsa_system_sgpr_workgroup_id_x 1
.end_amdhsa_kernel
{pre_kd}'''
open(OUT, 'w').write(src)
print('wrote', OUT, 'lds', LDS_BYTES, 'lines', len(a.lines), 'nops', a.nnops)
```

```python
import sys, struct
import numpy as np
from asmdsl import Asm

NAME = 'adaLN_cond__spectral_gfnet__moe_arch_mod__prompt'
DIAG = '--diag' in sys.argv or '--dbgdiag' in sys.argv
DBGDIAG = '--dbgdiag' in sys.argv
OUT = [a for a in sys.argv[1:] if not a.startswith('--')]
OUT = OUT[0] if OUT else f'cdna_kernels/{NAME}.s'
SPIN = 60000


def opt(name, default):
    for x in sys.argv:
        if x.startswith(f'--{name}='):
            return x.split('=', 1)[1]
    return default


PROBE = opt('probe', None)
PROBEWG = int(opt('probewg', 8))
if PROBE:
    DIAG = True
OUTPOL = opt('outpol', '')
PRE = opt('pre', None)
WARMPOL = opt('warm', 'both')
S_BLOAD = int(opt('bload', 0))
S_FILL1 = int(opt('fill1', -1))
S_FILL2 = int(opt('fill2', -1))
S_WWARM = int(opt('wwarm', 1))
S_GUW = int(opt('guw', 1))
S_WD = int(opt('wd', 1))
S_EG = int(opt('eg', 3))
S_TAB2 = int(opt('tab2', 1))

MODA_G = 0
MODB_G = 20480
EPOCH_G = 40960
PY_G = 65536
PY_STRIDE = 2688
REC_G = 0x80000
REC_STRIDE = 8320
REC_H2 = 128
REC_BASE = 128 + 4096
T1_G = 0x400000
T2_G = 0x800000
DIAG_G = 0xC00000

NTAB = 25
TAB = 0
RED = TAB + NTAB * 1024
KEYL = RED + 2048
XB2 = KEYL + 64
XB1 = XB2 + 20480
XB3 = XB1
MODA_L = XB1 + 18560
MODB_L = MODA_L + 5120
WR_L = MODB_L + 5120
WST = WR_L + 2048
EW = WST + 16384
FW = EW + 40960
STL = FW + 20480
LDS_BYTES = STL + 256
assert LDS_BYTES <= 163840, LDS_BYTES

T_F20C, T_F20S, T_TW1, T_F32, T_F16, T_TW2, T_TW3, T_F20I = 0, 1, 2, 6, 14, 16, 18, 22


def f2u(x):
    return struct.unpack('<I', struct.pack('<f', float(x)))[0]


def bf(x):
    u = f2u(x)
    return ((u + 0x7FFF + ((u >> 16) & 1)) >> 16) & 0xFFFF


def pk(lo, hi):
    return bf(lo) | (bf(hi) << 16)


def cs(num, den):
    a = 2 * np.pi * (num % den) / den
    c, s = np.cos(a), np.sin(a)
    if abs(c) < 1e-12: c = 0.0
    if abs(s) < 1e-12: s = 0.0
    return c, s


def kaof(x):
    ka = 3 * (x >> 2) + (x & 3)
    return ka if (x & 3) < 3 and ka <= 10 else None


def tables():
    T = np.zeros((NTAB, 64, 4), np.uint32)
    for l in range(64):
        i, g = l & 15, l >> 4
        c8, s8 = [0.0] * 8, [0.0] * 8
        for j in range(5):
            if kaof(i) is not None:
                c, s = cs((4 * j + g) * kaof(i), 20)
                c8[j], s8[j] = c, -s
        for d in range(4):
            T[T_F20C, l, d] = pk(c8[2 * d], c8[2 * d + 1])
            T[T_F20S, l, d] = pk(s8[2 * d], s8[2 * d + 1])
        for t in range(2):
            for r in range(4):
                c, s = cs((8 * g + 2 * r + t) * (kaof(i) or 0), 640)
                T[T_TW1 + 2 * t, l, r] = f2u(c)
                T[T_TW1 + 2 * t + 1, l, r] = f2u(s)
                c, s = cs((2 * i + t) * (kaof(4 * g + r) or 0), 640)
                T[T_TW3 + 2 * t, l, r] = f2u(c)
                T[T_TW3 + 2 * t + 1, l, r] = f2u(s)
        for tile in range(2):
            for ks in range(2):
                for r in range(4):
                    c, s = cs((2 * i + tile) * (8 * g + 2 * r + ks), 32)
                    T[T_F32 + tile * 4 + 0 + ks, l, r] = pk(c, s)
                    T[T_F32 + tile * 4 + 2 + ks, l, r] = pk(-s, c)
        for r in range(4):
            c, s = cs(i * (4 * g + r), 16)
            T[T_F16, l, r] = pk(c, s)
            T[T_F16 + 1, l, r] = pk(-s, c)
            c, s = cs(i * (4 * g + r), 256)
            T[T_TW2, l, r] = f2u(c)
            T[T_TW2 + 1, l, r] = f2u(s)
            ka = kaof(4 * g + r)
            if ka is not None:
                a1 = 4 * (i & 3) + (i >> 2)
                c, s = cs(a1 * ka, 20)
                T[T_F20I, l, r] = pk(c, -s)
                c, s = cs((16 + (i >> 2)) * ka, 20)
                if (i & 3) == 0:
                    T[T_F20I + 1, l, r] = pk(c, -s)
                if (i & 3) == 1:
                    T[T_F20I + 2, l, r] = pk(c, -s)
    return T


def vr(a, n=1):
    return f'v{a}' if n == 1 else f'v[{a}:{a + n - 1}]'


def sr(a, n=2):
    return f's{a}' if n == 1 else f's[{a}:{a + n - 1}]'


sW, sX, sIdx, sMe, sT = 3, 4, 5, 6, 7
A_X, W_R, W_I, B_WR, W_G, W_U, W_D = 8, 10, 12, 16, 18, 20, 22
C_, W_MOD, OUTP, DBG, WS = 24, 26, 28, 30, 32
sBa, sBb, sBc = 34, 36, 38
sCnt = 40
sM1B = 41
sU0, sU1, sU2, sU3 = 42, 43, 46, 47
sM7 = 44
sRow = 48
sKey = 49
sV1, sV2 = 50, 51
sHI = 52
sCand = 53
sTag = 55
sRi = 54
sGU = 56
sXrow = 72
sTS = 74

vL, vL16, vL4, vS, vPoll = 1, 2, 3, 4, 5
vM8F, vM8I = 6, 8
vXS = 10
Ra, Rb, RD, Rc = 20, 28, 36, 52
vF32 = 60
vTW = 92
vF20 = 108
vVec = 120
vE0 = 160


a = Asm()
stamps = {}
NST = 24


def stamp(name, path='M', wait=True):
    if not DIAG:
        return
    if PROBE and (path != 'M' or not (name == 'start' or name.startswith(PROBE))):
        return
    lst = stamps.setdefault(path, [])
    if name not in lst:
        lst.append(name)
    k = lst.index(name)
    assert k < NST
    a(f's_memrealtime s[100:101]')
    a('s_waitcnt lgkmcnt(0)')
    a(f's_mov_b32 s{sTS + k}, s100')


def dump_stamps(path='M'):
    if not DIAG:
        return
    if PROBE:
        if path != 'M':
            return
        a(f'''
        s_cmp_lg_u32 s2, {PROBEWG}
        s_cbranch_scc1 L_end
        s_cmp_lg_u32 s{sW}, 0
        s_cbranch_scc1 L_end
        ''')
        if PROBE == 'fix':
            a(f's_movk_i32 s{sU0}, 6000')
        elif PROBE == 'xcc':
            a(f's_getreg_b32 s{sU0}, hwreg(HW_REG_XCC_ID)')
            a(f's_and_b32 s{sU0}, s{sU0}, 15')
            a(f's_mul_i32 s{sU0}, s{sU0}, 1000')
            a(f's_add_u32 s{sU0}, s{sU0}, 6000')
        else:
            a(f's_sub_u32 s{sU0}, s{sTS + 1}, s{sTS}')
            a(f's_lshl_b32 s{sU0}, s{sU0}, 4')
            a(f's_add_u32 s{sU0}, s{sU0}, 6000')
            a(f's_min_u32 s{sU0}, s{sU0}, 100000')
        a(f'''
        L_probe:
        s_memrealtime s[100:101]
        s_waitcnt lgkmcnt(0)
        s_sub_u32 s{sU1}, s100, s{sTS}
        s_cmp_lt_u32 s{sU1}, s{sU0}
        s_cbranch_scc1 L_probe
        ''')
        return
    if DBGDIAG:
        if path != 'M':
            return
        a('v_mov_b32 v20, 0')
        a('s_mov_b64 exec, 1')
        a(f's_not_b32 s{sU0}, s{sTS}')
        a(f'v_mov_b32 v22, s{sU0}')
        a(f'global_atomic_umax v20, v22, {sr(DBG)} offset:4 sc1')
        ks = [0] + list(range(2, len(stamps['M'])))
        for n, k in enumerate(ks[:14]):
            a(f'v_mov_b32 v{23 + n}, s{sTS + k}')
            a(f'global_atomic_umax v20, v{23 + n}, {sr(DBG)} offset:{8 + 4 * n} sc1')
        print('dbg slots:', [(2 + n, stamps['M'][k]) for n, k in enumerate(ks[:14])])
        return
    if path != 'M':
        for k in range(NST):
            a(f'v_writelane_b32 v20, s{sTS + k}, {k}')
        a(f'v_lshlrev_b32 v21, 2, v{vL}')
        a(f'v_add_u32 v21, {STL + (128 if path == "H1" else 0)}, v21')
        a('s_mov_b32 exec_hi, 0')
        a('ds_write_b32 v21, v20')
        a('s_waitcnt lgkmcnt(0)')
        return
    a(f'''
    s_lshl_b32 s{sU0}, s2, 11
    v_add_u32 v21, {STL}, v{vL4}
    ds_read_b32 v22, v21
    ''')
    base_add(sBa, WS, sU0, DIAG_G + 1024)
    a('s_waitcnt lgkmcnt(0)')
    a(f'global_store_dword v{vL4}, v22, {sr(sBa)}')
    a(f'''
    s_lshl_b32 s{sU0}, s2, 11
    s_lshl_b32 s{sU1}, s{sW}, 7
    s_add_u32 s{sU0}, s{sU0}, s{sU1}
    s_memtime s[100:101]
    ''')
    base_add(sBa, WS, sU0, DIAG_G)
    a('v_mov_b32 v20, 0')
    a('s_mov_b64 exec, 1')
    for k in range(0, NST, 2):
        a(f'v_mov_b32 v22, s{sTS + k}')
        a(f'v_mov_b32 v23, s{sTS + k + 1}')
        a(f'global_store_dwordx2 v20, v[22:23], {sr(sBa)} offset:{4 * k}')
        a('s_nop 1')
    a('s_waitcnt lgkmcnt(0)')
    a('s_sub_u32 s100, s100, s98')
    a('v_mov_b32 v22, s100')
    a(f'global_store_dword v20, v22, {sr(sBa)} offset:112')
    a('s_getreg_b32 s42, hwreg(HW_REG_XCC_ID)')
    a('s_getreg_b32 s43, hwreg(HW_REG_HW_ID)')
    a('v_mov_b32 v22, s42')
    a('v_mov_b32 v23, s43')
    a(f'global_store_dwordx2 v20, v[22:23], {sr(sBa)} offset:120')


def base_add(dst, src, off_s=None, imm=0):
    if off_s is not None:
        if imm:
            a(f's_add_u32 s{sT}, s{off_s}, {imm}')
            off_s = sT
        a(f's_add_u32 s{dst}, s{src}, s{off_s}')
    else:
        a(f's_add_u32 s{dst}, s{src}, {imm}')
    a(f's_addc_u32 s{dst + 1}, s{src + 1}, 0')


lblc = [0]


def newlabel(p):
    lblc[0] += 1
    return f'L_{p}_{lblc[0]}'


def poll(loads, regs, tmp, mask=None, empty='eq -1', between=None, younger=0, issued=False):
    L, D = newlabel('poll'), newlabel('polld')
    split = between is not None or issued
    if split:
        Cc = newlabel('pollc')
        if not issued:
            if mask is not None:
                a(f's_mov_b64 exec, {mask}')
            for ld in loads:
                a(ld)
            if mask is not None:
                a('s_mov_b64 exec, -1')
            between()
        if mask is not None:
            a(f's_mov_b64 exec, {mask}')
        a(f's_mov_b32 s{sCnt}, {SPIN}')
        a(f's_waitcnt vmcnt({younger})')
        a(f's_branch {Cc}')
    else:
        if mask is not None:
            a(f's_mov_b64 exec, {mask}')
        a(f's_mov_b32 s{sCnt}, {SPIN}')
    a.label(L)
    for ld in loads:
        a(ld)
    a('s_waitcnt vmcnt(0)')
    if split:
        a.label(Cc)
    if empty == 'tag':
        for n, r in enumerate(regs):
            a(f'v_xor_b32 v{r}, s{sTB + (n & 3)}, v{r}')
        rem = list(regs)
        for c in tmp:
            a(f'v_or3_b32 v{c}, v{rem[0]}, v{rem[1]}, v{rem[2]}')
            rem = rem[3:]
        n = 0
        while len(rem) >= 2:
            c = tmp[n % len(tmp)]
            a(f'v_or3_b32 v{c}, v{c}, v{rem[0]}, v{rem[1]}')
            rem = rem[2:]
            n += 1
        t = tmp[0]
        rem = rem + list(tmp[1:])
        while rem:
            if len(rem) >= 2:
                a(f'v_or3_b32 v{t}, v{t}, v{rem[0]}, v{rem[1]}')
                rem = rem[2:]
            else:
                a(f'v_or_b32 v{t}, v{t}, v{rem[0]}')
                rem = rem[1:]
        a(f'v_and_b32 v{t}, 0xff, v{t}')
        empty = 'ne 0'
    elif empty == 'word':
        if len(regs) == 1:
            t = regs[0]
            empty = f'ne s{sTag}'
        else:
            assert len(regs) == 2
            t = tmp[0]
            a(f'v_xor_b32 v{t}, v{regs[0]}, v{regs[1]}')
            a(f'v_xor_b32 v{tmp[1]}, s{sTag}, v{regs[0]}')
            a(f'v_or_b32 v{t}, v{t}, v{tmp[1]}')
            empty = 'ne 0'
    elif empty == 'never':
        empty = 'ne 0'
    elif len(regs) == 1:
        t = regs[0]
    else:
        rem = list(regs)
        outs = []
        k = 0
        while len(rem) >= 3 and k < len(tmp):
            a(f'v_max3_u32 v{tmp[k]}, v{rem[0]}, v{rem[1]}, v{rem[2]}')
            outs.append(tmp[k])
            rem = rem[3:]
            k += 1
        rem = outs[1:] + rem
        t = outs[0] if outs else None
        if t is None:
            t = tmp[0]
            a(f'v_max_u32 v{t}, v{rem[0]}, v{rem[1]}')
            rem = rem[2:]
        while rem:
            if len(rem) >= 2:
                a(f'v_max3_u32 v{t}, v{t}, v{rem[0]}, v{rem[1]}')
                rem = rem[2:]
            else:
                a(f'v_max_u32 v{t}, v{t}, v{rem[0]}')
                rem = rem[1:]
    a(f'v_cmpx_{empty.split()[0]}_u32 vcc, {empty.split()[1]}, v{t}')
    a(f's_cbranch_execz {D}')
    a(f's_sub_u32 s{sCnt}, s{sCnt}, 1')
    a(f's_cbranch_scc0 {L}')
    a.label(D)
    a('s_mov_b64 exec, -1')


def epoch_load():
    a(f's_load_dword s{sTag}, {sr(WS)}, {EPOCH_G}')


def epoch_tag():
    a(f'''
    s_and_b32 s{sTag}, s{sTag}, 0x7f7f7f7f
    s_add_u32 s{sTag}, s{sTag}, 0x01010101
    s_or_b32 s{sTag}, s{sTag}, 0x80808080
    ''')


sTB = 68


def tag_bytes():
    for k in range(4):
        a(f's_bfe_u32 s{sTB + k}, s{sTag}, {hex(0x80000 | (8 * k))}')


def dpp(op, r, ctrl, rm='0xf'):
    a(f'{op}_dpp v{r}, v{r}, v{r} {ctrl} row_mask:{rm} bank_mask:0xf')


def wave_sum(regs, dst_s, op='v_add_f32'):
    for c in ('row_ror:8', 'row_ror:4', 'row_ror:2', 'row_ror:1'):
        for r in regs:
            dpp(op, r, c)
    for r in regs:
        dpp(op, r, 'row_bcast:15', '0xa')
    for r in regs:
        dpp(op, r, 'row_bcast:31', '0xc')
    for r, s in zip(regs, dst_s):
        a(f'v_readlane_b32 s{s}, v{r}, 63')


def rbf(dst, src):
    a(f'v_cvt_pk_bf16_f32 v{dst}, {src}, {src}')
    a(f'v_and_b32 v{dst}, s{sHI}, v{dst}')


def unpack(dlo, dhi, src):
    a(f'v_lshlrev_b32 v{dlo}, 16, v{src}')
    a(f'v_and_b32 v{dhi}, s{sHI}, v{src}')


def mfma32(d, x, y, c=None):
    a(f'v_mfma_f32_16x16x32_bf16 {vr(d, 4)}, {vr(x, 4)}, {vr(y, 4)}, {vr(c, 4) if c is not None else 0}')


def mfma16(d, x, y):
    a(f'v_mfma_f32_16x16x16_bf16 {vr(d, 4)}, {vr(x, 2)}, {vr(y, 2)}, 0')


def cmul(tr, ti, re, im, c, s, sign):
    nr = 'neg_lo:[1,0,0] neg_hi:[1,0,0]'
    for h in (0, 2):
        a(f'v_pk_mul_f32 {vr(tr + h, 2)}, {vr(re + h, 2)}, {vr(c + h, 2)}')
    for h in (0, 2):
        a(f'v_pk_mul_f32 {vr(ti + h, 2)}, {vr(im + h, 2)}, {vr(c + h, 2)}')
    for h in (0, 2):
        a(f'v_pk_fma_f32 {vr(tr + h, 2)}, {vr(im + h, 2)}, {vr(s + h, 2)}, {vr(tr + h, 2)} {nr if sign > 0 else ""}')
    for h in (0, 2):
        a(f'v_pk_fma_f32 {vr(ti + h, 2)}, {vr(re + h, 2)}, {vr(s + h, 2)}, {vr(ti + h, 2)} {nr if sign < 0 else ""}')


def pack4(d, lo, hi, step=1, n=4):
    for r in range(n):
        a(f'v_cvt_pk_bf16_f32 v{d + r * step}, v{lo + r}, v{hi + r}')


def tab_read(dst, q):
    a(f'ds_read_b128 {vr(dst, 4)}, v{vL16} offset:{TAB + q * 1024}')


def tm(j, t):
    return 4 * t + j if j < 4 else 8 + t


def read_tmajor(dst, vaddr, off):
    o = off // 256
    assert off % 256 == 0 and o + 6 < 256
    for t in range(2):
        a(f'ds_read2st64_b32 {vr(dst + 4 * t, 2)}, v{vaddr + t} offset0:{o} offset1:{o + 2}')
        a(f'ds_read2st64_b32 {vr(dst + 4 * t + 2, 2)}, v{vaddr + t} offset0:{o + 4} offset1:{o + 6}')
    a(f'ds_read_b64 {vr(dst + 8, 2)}, v{vaddr} offset:{off + 2048}')


def silu(dst, src, tmp):
    for d, s, t in zip(dst, src, tmp):
        a(f'v_mul_f32 v{t}, 0xbfb8aa3b, v{s}')
    for t in tmp:
        a(f'v_exp_f32 v{t}, v{t}')
    for t in tmp:
        a(f'v_add_f32 v{t}, 1.0, v{t}')
    for t in tmp:
        a(f'v_rcp_f32 v{t}, v{t}')
    for d, s, t in zip(dst, src, tmp):
        a(f'v_mul_f32 v{d}, v{s}, v{t}')


def swap_reduce8(acc):
    for k in range(4):
        a(f'v_permlane32_swap_b32 v{acc + k}, v{acc + k + 4}')
    a(f'v_pk_add_f32 {vr(acc, 2)}, {vr(acc, 2)}, {vr(acc + 4, 2)}')
    a(f'v_pk_add_f32 {vr(acc + 2, 2)}, {vr(acc + 2, 2)}, {vr(acc + 6, 2)}')
    for k in range(2):
        a(f'v_permlane16_swap_b32 v{acc + k}, v{acc + k + 2}')
    a(f'v_pk_add_f32 {vr(acc, 2)}, {vr(acc, 2)}, {vr(acc + 2, 2)}')


BC0 = 'op_sel:[0,0,0] op_sel_hi:[1,0,1]'
BC1 = 'op_sel:[0,1,0] op_sel_hi:[1,1,1]'


def prologue():
    a(f'''
    s_cmp_ge_u32 s2, 256
    s_cbranch_scc1 L_end
    ''')
    if DIAG:
        for k in range(NST):
            a(f's_mov_b32 s{sTS + k}, 0')
        a('s_memtime s[98:99]')
        for p in ('M', 'H0', 'H1'):
            stamps[p] = ['start']
        stamp('start')
    a(f'''
    s_load_dwordx16 s[8:23], s[0:1], 0
    s_load_dwordx8 s[24:31], s[0:1], 64
    s_load_dwordx2 s[32:33], s[0:1], 96
    v_lshrrev_b32 v{vL}, 6, v0
    s_and_b32 s{sX}, s2, 7
    v_readfirstlane_b32 s{sW}, v{vL}
    v_and_b32 v{vL}, 63, v0
    s_lshr_b32 s{sIdx}, s2, 3
    s_lshl_b32 s{sMe}, s{sX}, 5
    s_add_u32 s{sMe}, s{sMe}, s{sIdx}
    s_add_u32 s{sRi}, s{sIdx}, 31
    s_and_b32 s{sRi}, s{sRi}, 31
    v_lshlrev_b32 v{vL16}, 4, v{vL}
    s_mov_b32 s{sHI}, 0xffff0000
    s_cmp_lg_u32 s{sRi}, 30
    s_cbranch_scc1 L_nopf
    s_cmp_ge_u32 s{sW}, (L_tables_end-{NAME}_kernel)/8192
    s_cbranch_scc1 L_nopf
    s_getpc_b64 {sr(sBa)}
    L_pc0:
    s_sub_u32 s{sBa}, s{sBa}, L_pc0-{NAME}_kernel
    s_subb_u32 s{sBa + 1}, s{sBa + 1}, 0
    v_lshlrev_b32 v20, 7, v0
    global_load_dword v21, v20, {sr(sBa)}
    L_nopf:
    v_lshlrev_b32 v{vL4}, 2, v{vL}
    s_cmp_eq_u32 s{sW}, 9
    s_cbranch_scc1 L_h1
    s_cmp_eq_u32 s{sW}, 8
    s_cbranch_scc1 L_h0
    s_lshl_b32 s{sRow}, s{sW}, 8
    s_add_u32 s{sKey}, s{sRow}, s{sMe}
    s_mul_i32 s{sRow}, s{sKey}, 1280
    s_cmp_ge_u32 s{sRi}, {20 if S_BLOAD == 0 else 10}
    s_cbranch_scc1 L_role_e
    s_cmp_ge_u32 s{sRi}, 10
    s_cbranch_scc1 L_role_b
    ''')


def xloads():
    for j in range(5):
        a(f'global_load_dword v{vE0 + j}, v{vL4}, {sr(sXrow)} offset:{256 * j} nt')


def gemv_regs(role):
    nj = 3 if role == 'A' else 5
    return (nj,) + ((20, 40, 48, 60, 56, 57) if role == 'A' else (80, 100, 48, 60, 56, 57))


def gemv_issue(role):
    nj, vw, vc, acc, tmp, vo, voc = gemv_regs(role)
    if role == 'A':
        a(f'''
        s_mul_i32 s{sU2}, s{sX}, 10
        s_add_u32 s{sU2}, s{sU2}, s{sRi}          ; blk
        s_lshr_b32 s{sU0}, s{sU2}, 2
        s_and_b32 s{sU1}, s{sU2}, 3
        s_mul_i32 s{sU1}, s{sU1}, 160
        s_mul_i32 s{sT}, s{sW}, 20
        s_add_u32 s{sU1}, s{sU1}, s{sT}
        ''')
        for k in range(4):
            a(f'v_mov_b32 v{vw + 8 + k}, 0')
        a(f'v_mov_b32 v{vc + 2}, 0')
    else:
        a(f'''
        s_mul_i32 s{sU2}, s{sX}, 10
        s_add_u32 s{sU2}, s{sU2}, s{sRi}          ; blk + 10
        s_lshr_b32 s{sU0}, s{sU2}, 1
        s_add_u32 s{sU0}, s{sU0}, 15
        s_and_b32 s{sU1}, s{sU2}, 1
        s_mul_i32 s{sU1}, s{sU1}, 320
        s_mul_i32 s{sT}, s{sW}, 40
        s_add_u32 s{sU1}, s{sU1}, s{sT}
        ''')
    a(f'''
    v_lshrrev_b32 v{voc}, 3, v{vL}
    v_and_b32 v{vo}, 0x70, v{vL16}
    v_mul_u32_u24 v{tmp}, 7680, v{voc}
    v_lshlrev_b32 v{voc}, 1, v{voc}
    v_add_u32 v{vo}, v{vo}, v{tmp}
    s_mul_i32 s{sU3}, s{sU1}, 7680
    s_lshl_b32 s{sT}, s{sU0}, 7
    s_add_u32 s{sU3}, s{sU3}, s{sT}
    s_lshl_b32 s{sU1}, s{sU1}, 1
    s_waitcnt lgkmcnt(0)
    ''')
    stamp('kernarg')
    if role == 'A' or S_BLOAD == 0:
        epoch_load()
    base_add(sBa, C_, sU1)
    base_add(sBb, W_MOD, sU3)
    if role == 'A' or S_BLOAD == 0:
        base_add(sXrow, A_X, sRow)
    if role == 'B' and S_BLOAD == 0:
        xloads()
    for j in range(nj):
        if role == 'A' and j == 2:
            a('s_mov_b32 exec_hi, 0')
        a(f'global_load_ushort v{vc + j}, v{voc}, {sr(sBa)} offset:{16 * j}')
    a('s_mov_b64 exec, -1')
    for j in range(nj):
        if role == 'A' and j == 2:
            a('s_mov_b32 exec_hi, 0')
        a(f'global_load_dwordx4 {vr(vw + 4 * j, 4)}, v{vo}, {sr(sBb)} nt')
        if j + 1 < nj:
            a(f'v_add_u32 v{vo}, {8 * 7680}, v{vo}')
    a('s_mov_b64 exec, -1')
    if role == 'A':
        xloads()


def gemv_compute(role):
    nj, vw, vc, acc, tmp, vo, voc = gemv_regs(role)
    after = 5 if role == 'A' else 0
    a(f's_waitcnt vmcnt({nj + after})')
    stamp('c in')
    cs_ = [vc + j for j in range(nj)]
    for c in cs_:
        a(f'v_lshlrev_b32 v{c}, 16, v{c}')
    silu(cs_, cs_, [tmp + j for j in range(nj)])
    sc = [70 + 2 * j for j in range(nj)]
    for c, s in zip(cs_, sc):
        a(f'v_cvt_pk_bf16_f32 v{s}, v{c}, v{c}')
    for s in sc:
        a(f'v_and_b32 v{s}, s{sHI}, v{s}')
    for j in range(nj):
        a(f's_waitcnt vmcnt({nj - 1 - j + after})')
        for k in range(4):
            unpack(tmp + 2 * k, tmp + 2 * k + 1, vw + 4 * j + k)
        for k in range(4):
            if j == 0:
                a(f'v_pk_mul_f32 {vr(acc + 2 * k, 2)}, {vr(tmp + 2 * k, 2)}, {vr(sc[j], 2)} op_sel:[0,0] op_sel_hi:[1,0]')
            else:
                a(f'v_pk_fma_f32 {vr(acc + 2 * k, 2)}, {vr(tmp + 2 * k, 2)}, {vr(sc[j], 2)}, {vr(acc + 2 * k, 2)} {BC0}')
    stamp('w in')
    a(f'''
    v_and_b32 v{vo}, 7, v{vL}
    v_lshlrev_b32 v{vo}, 8, v{vo}
    v_and_b32 v{voc}, 48, v{vL}
    v_lshl_add_u32 v{vo}, v{voc}, 2, v{vo}
    s_lshl_b32 s{sT}, s{sW}, 2
    s_add_u32 s{sT}, s{sT}, {RED}
    v_add_u32 v{vo}, s{sT}, v{vo}
    ''')
    swap_reduce8(acc)
    for c in ('row_ror:8',):
        dpp('v_add_f32', acc, c)
        dpp('v_add_f32', acc + 1, c)
    a(f'''
    s_mov_b32 exec_lo, 0x00ff00ff
    s_mov_b32 exec_hi, 0x00ff00ff
    ds_write2_b32 v{vo}, v{acc}, v{acc + 1} offset0:0 offset1:8
    s_mov_b64 exec, -1
    s_waitcnt lgkmcnt(0)
    ''')


def role_e_start():
    a('s_waitcnt lgkmcnt(0)')
    epoch_load()
    base_add(sXrow, A_X, sRow)
    xloads()
    a('s_waitcnt vmcnt(0)')
    a('s_branch L_ln1')


def m8(dst, inverse):
    t0, t1, t2, t3 = 20, 21, 22, 23
    a(f'v_lshrrev_b32 v{t0}, 4, v{vL}           ; g')
    a(f's_cmp_lt_u32 s{sW}, 4')
    a(f's_cselect_b32 s{sT}, 1, 7')
    if not inverse:
        a(f'''
        v_bfe_u32 v{t1}, v{vL}, 2, 2
        v_bfe_u32 v{t2}, v{vL}, 1, 1
        v_lshl_add_u32 v{t1}, v{t2}, 2, v{t1}
        v_mul_u32_u24 v{t1}, s{sT}, v{t1}
        v_and_b32 v{t1}, 7, v{t1}
        v_lshlrev_b32 v{t0}, 9, v{t0}
        v_add_u32 v{t0}, s{sMe}, v{t0}
        v_mul_u32_u24 v{t2}, v{t0}, v{t1}
        v_lshl_add_u32 v{t3}, v{t1}, 8, v{t2}
        ''')
    else:
        a(f'''
        v_bfe_u32 v{t1}, v{vL}, 1, 3
        v_lshlrev_b32 v{t1}, 8, v{t1}
        v_add_u32 v{t1}, s{sMe}, v{t1}
        v_mul_u32_u24 v{t0}, s{sT}, v{t0}
        v_and_b32 v{t0}, 7, v{t0}
        v_mul_u32_u24 v{t2}, v{t0}, v{t1}
        v_xor_b32 v{t0}, 4, v{t0}
        v_mul_u32_u24 v{t3}, v{t0}, v{t1}
        v_sub_u32 v{t2}, 0, v{t2}
        v_sub_u32 v{t3}, 0, v{t3}
        ''')
    a(f'''
    v_and_b32 v{t0}, 1, v{vL}
    v_lshl_add_u32 v{t2}, v{t0}, 9, v{t2}
    v_lshl_add_u32 v{t3}, v{t0}, 9, v{t3}
    v_and_b32 v{t2}, 0x7ff, v{t2}
    v_and_b32 v{t3}, 0x7ff, v{t3}
    v_cvt_f32_u32 v{t2}, v{t2}
    v_cvt_f32_u32 v{t3}, v{t3}
    v_mul_f32 v{t2}, 0x3a000000, v{t2}
    v_mul_f32 v{t3}, 0x3a000000, v{t3}
    v_cos_f32 v{t0}, v{t2}
    v_sin_f32 v{t2}, v{t2}
    v_cos_f32 v{t1}, v{t3}
    v_sin_f32 v{t3}, v{t3}
    v_cvt_pk_bf16_f32 v{dst}, v{t0}, v{t2}
    v_cvt_pk_bf16_f32 v{dst + 1}, v{t1}, v{t3}
    ''')


INV640 = hex(f2u(1.0 / 640))
EPS = hex(f2u(1e-5))


def rstd_chain(var, out):
    rbf(out, f'v{var}')
    a(f'v_add_f32 v{out}, {EPS}, v{out}')
    rbf(out, f'v{out}')
    a(f'v_sqrt_f32 v{out}, v{out}')
    rbf(out, f'v{out}')
    a(f'v_rcp_f32 v{out}, v{out}')


def sum10(dst2, x):
    a(f'v_pk_add_f32 {vr(dst2, 2)}, {vr(x, 2)}, {vr(x + 2, 2)}')
    for h in (4, 6, 8):
        a(f'v_pk_add_f32 {vr(dst2, 2)}, {vr(dst2, 2)}, {vr(x + h, 2)}')
    a(f'v_add_f32 v{dst2}, v{dst2}, v{dst2 + 1}')


def dot10(dst2, x, y):
    a(f'v_pk_mul_f32 {vr(dst2, 2)}, {vr(x, 2)}, {vr(y, 2)}')
    for h in (2, 4, 6, 8):
        a(f'v_pk_fma_f32 {vr(dst2, 2)}, {vr(x + h, 2)}, {vr(y + h, 2)}, {vr(dst2, 2)}')
    a(f'v_add_f32 v{dst2}, v{dst2}, v{dst2 + 1}')


late = []


def bar(n):
    a(f's_barrier                                   ; {n}')


def main_path():
    vZ, vSA, vCA = vVec, vVec + 10, vVec + 20
    gemv_issue('A')
    gemv_compute('A')
    a('s_barrier                                   ; B1')
    a('s_waitcnt vmcnt(0)')
    a('s_branch L_ln1')
    a.label('L_role_e')
    role_e_start()
    a.label('L_role_b')
    if S_BLOAD == 0:
        gemv_issue('B')
        a('s_waitcnt vmcnt(10)')
    a.label('L_ln1')
    stamp('x in')
    for j in range(5):
        unpack(vXS + tm(j, 0), vXS + tm(j, 1), vE0 + j)
    sum10(24, vXS)
    wave_sum([24], [sU0])
    a(f'v_mov_b32 v24, {INV640}')
    a(f'v_mul_f32 v26, s{sU0}, v24                ; mean')
    rbf(28, 'v26')
    a(f'v_readfirstlane_b32 s{sM1B}, v28')
    for h in range(0, 10, 2):
        a(f'v_pk_add_f32 {vr(vXS + h, 2)}, {vr(vXS + h, 2)}, v[28:29] op_sel:[0,0] op_sel_hi:[1,0] neg_lo:[0,1] neg_hi:[0,1]')
    dot10(30, vXS, vXS)
    wave_sum([30], [sU0])
    a(f'''
    v_sub_f32 v26, v26, v28
    v_mul_f32 v26, v26, v26
    v_fma_f32 v26, s{sU0}, v24, -v26
    ''')
    rstd_chain(26, 27)
    for j in range(5):
        for t in range(2):
            a(f'v_mul_f32 v{vZ + 2 * j + t}, v27, v{vXS + tm(j, t)}')
    a('s_waitcnt lgkmcnt(0)')
    epoch_tag()
    tag_bytes()
    m8(vM8F, False)
    m8(vM8I, True)
    a(f'''
    v_bfe_u32 v20, v{vL}, 2, 2
    v_and_b32 v21, 48, v{vL16}                    ; part*16
    v_and_b32 v22, 48, v{vL}
    v_lshl_add_u32 v20, v22, 1, v20               ; 32g + kbs
    v_lshl_add_u32 v{vS}, v20, 6, v21
    v_lshl_add_u32 v{vPoll}, v20, 14, v21
    v_mul_u32_u24 v20, 80, v20
    s_mul_i32 s{sT}, s{sW}, 320
    s_add_u32 s{sT}, s{sT}, {XB2}
    v_add3_u32 v{vE0 + 4}, v20, v21, s{sT}        ; staging address
    v_lshlrev_b32 v{vE0}, 3, v{vL}                ; 8*lane
    v_mov_b32 v23, 0
    v_mov_b32 v27, 0
    ''')
    a(f'''
    v_and_b32 v20, 15, v{vL}
    v_mul_u32_u24 v20, 264, v20
    v_and_b32 v21, 48, v{vL}
    v_lshl_add_u32 v{vE0 + 1}, v21, 2, v20
    s_lshr_b32 s{sU0}, s{sW}, 1
    s_mul_i32 s{sU0}, s{sU0}, 4224
    s_and_b32 s{sT}, s{sW}, 1
    s_lshl_b32 s{sT}, s{sT}, 2
    s_add_u32 s{sU0}, s{sU0}, s{sT}
    s_add_u32 s{sU0}, s{sU0}, {XB1}
    v_add_u32 v{vE0 + 1}, s{sU0}, v{vE0 + 1}
    ''')
    a(f'''
    v_lshrrev_b32 v20, 4, v{vL}
    v_mul_u32_u24 v20, 4224, v20
    v_and_b32 v21, 3, v{vL}
    v_mul_u32_u24 v21, 1056, v21
    v_and_b32 v22, 12, v{vL}
    v_lshl_add_u32 v20, v22, 1, v20
    s_lshl_b32 s{sU0}, s{sW}, 5
    s_add_u32 s{sU0}, s{sU0}, {XB1}
    v_add3_u32 v{vE0 + 2}, v20, v21, s{sU0}
    ''')
    a(f'''
    s_cmp_lt_u32 s{sRi}, 10
    s_cbranch_scc1 L_tabs
    s_barrier                                   ; B1
    s_cmp_lt_u32 s{sRi}, 20
    s_cbranch_scc0 L_tabs
    ''')
    if S_BLOAD:
        gemv_issue('B')
    gemv_compute('B')
    a.label('L_tabs')
    a('s_barrier                                   ; BT')
    stamp('poll start')
    tab_read(vF20, T_F20C)
    tab_read(vF20 + 4, T_F20S)
    for q in range(4):
        tab_read(vTW + 4 * q, T_TW1 + q)
    for q in range(8):
        tab_read(vF32 + 4 * q, T_F32 + q)
    a(f'''
    s_sub_u32 s{sT}, s{sW}, 1
    s_cmp_lt_u32 s{sT}, 5
    s_cbranch_scc0 L_b2
    v_subrev_u32 v28, 64, v0                      ; u
    v_lshrrev_b32 v29, 4, v28
    v_lshlrev_b32 v29, 10, v29
    v_and_b32 v30, 0xf0, v{vL16}
    v_add_u32 v29, v29, v30
    v_cmp_le_u32 vcc, 160, v28
    v_cndmask_b32 v30, 0, 1.0, vcc
    v_lshlrev_b32 v28, 4, v28
    v_add_u32 v28, {MODA_L}, v28
    ''')
    poll([f'global_load_dwordx4 {vr(36 + 4 * p, 4)}, v29, {sr(WS)} offset:{256 * p} sc1' for p in range(4)],
         list(range(36, 52)), [52, 53, 54], empty='tag')
    a(f'''
    v_pk_add_f32 v[36:37], v[36:37], v[40:41]
    v_pk_add_f32 v[38:39], v[38:39], v[42:43]
    v_pk_add_f32 v[44:45], v[44:45], v[48:49]
    v_pk_add_f32 v[46:47], v[46:47], v[50:51]
    v_pk_add_f32 v[36:37], v[36:37], v[44:45]
    v_pk_add_f32 v[38:39], v[38:39], v[46:47]
    v_cvt_pk_bf16_f32 v40, v36, v37
    v_cvt_pk_bf16_f32 v41, v38, v39
    ''')
    unpack(36, 37, 40)
    unpack(38, 39, 41)
    a(f'''
    v_pk_add_f32 v[36:37], v[36:37], v[30:31] op_sel:[0,0] op_sel_hi:[1,0]
    v_pk_add_f32 v[38:39], v[38:39], v[30:31] op_sel:[0,0] op_sel_hi:[1,0]
    v_cvt_pk_bf16_f32 v40, v36, v37
    v_cvt_pk_bf16_f32 v41, v38, v39
    ''')
    unpack(36, 37, 40)
    unpack(38, 39, 41)
    a(f'ds_write_b128 v28, v[36:39]')
    a.label('L_b2')
    stamp('poll end')
    a('s_waitcnt lgkmcnt(0)')
    a('s_barrier                                   ; B2')
    stamp('B2 done (mod ready)')
    o = MODA_L // 512
    assert MODA_L % 8 == 0
    a(f'v_add_u32 v28, {MODA_L}, v{vE0}')
    a(f'ds_read2st64_b64 {vr(vSA, 4)}, v28 offset0:0 offset1:1')
    a(f'ds_read2st64_b64 {vr(vCA, 4)}, v28 offset0:5 offset1:6')
    a(f'ds_read2st64_b64 {vr(vSA + 4, 4)}, v28 offset0:2 offset1:3')
    a(f'ds_read2st64_b64 {vr(vCA + 4, 4)}, v28 offset0:7 offset1:8')
    a(f'ds_read_b64 {vr(vSA + 8, 2)}, v28 offset:2048')
    a(f'ds_read_b64 {vr(vCA + 8, 2)}, v28 offset:{2560 + 2048}')
    for j in range(5):
        if j in (0, 2, 4):
            a(f's_waitcnt lgkmcnt({4 - j})')
        a(f'v_pk_fma_f32 {vr(vZ + 2 * j, 2)}, {vr(vZ + 2 * j, 2)}, {vr(vCA + 2 * j, 2)}, {vr(vSA + 2 * j, 2)}')
    for t in range(2):
        a(f'v_cvt_pk_bf16_f32 v{Ra + 4 * t}, v{vZ + t}, v{vZ + 2 + t}')
        a(f'v_cvt_pk_bf16_f32 v{Ra + 4 * t + 1}, v{vZ + 4 + t}, v{vZ + 6 + t}')
        a(f'v_cvt_pk_bf16_f32 v{Ra + 4 * t + 2}, v{vZ + 8 + t}, 0')
    for t in range(2):
        mfma32(RD + 8 * t, Ra + 4 * t, vF20)
        mfma32(RD + 8 * t + 4, Ra + 4 * t, vF20 + 4)
    for t, tmp in ((0, Rb), (1, Rc)):
        cmul(tmp, tmp + 4, RD + 8 * t, RD + 8 * t + 4, vTW + 8 * t, vTW + 8 * t + 4, -1)
        pack4(Ra + 4 * t, tmp, tmp + 4)
    for ks in range(2):
        for u in range(2):
            for e in range(2):
                d = RD + 8 * u + 4 * e
                mfma32(d, vF32 + 16 * u + 8 * e + 4 * ks, Ra + 4 * ks, d if ks else None)
    for u in range(2):
        pack4(Rb + u, RD + 8 * u, RD + 8 * u + 4, step=2)
    for r in range(4):
        a(f'ds_write2_b32 v{vE0 + 1}, v{Rb + 2 * r}, v{Rb + 2 * r + 1} offset0:{4 * r} offset1:{4 * r + 2}')
    a(f'''
    s_lshl_b32 s{sU0}, s{sMe}, 14
    s_lshl_b32 s{sU1}, s{sW}, 8
    s_add_u32 s{sU0}, s{sU0}, s{sU1}
    v_mov_b32 v{Rc + 3}, s{sTag}
    v_mov_b32 v{Rc + 7}, s{sTag}
    ''')
    base_add(sBa, WS, sU0, T1_G)
    base_add(sBb, WS, sU0, T1_G + 8192)
    a('s_waitcnt lgkmcnt(0)')
    bar('B3')
    for n in range(3):
        a(f'ds_read_b64 {vr(Ra + 2 * n, 2)}, v{vE0 + 2} offset:{264 * n}')
    for n in range(3):
        a(f's_waitcnt lgkmcnt({2 - n})')
        mfma16(RD + 4 * n, vM8F, Ra + 2 * n)
    for j in range(2):
        for n in range(3):
            a(f'v_cvt_pk_bf16_f32 v{Rc + 4 * j + n}, v{RD + 4 * n + 2 * j}, v{RD + 4 * n + 2 * j + 1}')
        a(f'global_store_dwordx4 v{vS}, {vr(Rc + 4 * j, 4)}, {sr(sBb if j else sBa)} sc1')
    stamp('T1 stored')
    vWr = vVec
    for k in range(16):
        a(f'v_mov_b32 v{vWr + k}, 0')
    SC = 2.0 / (2048 * 640)
    sKa = sM7
    a(f'''
    v_and_b32 v36, 15, v{vL}
    v_and_b32 v37, 48, v{vL}
    v_lshl_add_u32 v36, v37, 2, v36               ; 64g + i
    v_mul_u32_u24 v{vE0 + 3}, 80, v36
    s_and_b32 s{sU1}, s{sW}, 3
    s_lshr_b32 s{sU2}, s{sW}, 2
    s_lshl_b32 s{sU2}, s{sU2}, 1
    s_mul_i32 s{sKa}, s{sU1}, 3
    s_add_u32 s{sKa}, s{sKa}, s{sU2}
    s_lshl_b32 s{sU1}, s{sU1}, 2
    s_add_u32 s{sU1}, s{sU1}, s{sU2}
    s_lshl_b32 s{sU1}, s{sU1}, 2
    s_add_u32 s{sU1}, s{sU1}, {XB2}
    v_add_u32 v{vE0 + 3}, s{sU1}, v{vE0 + 3}
    v_lshlrev_b32 v36, 5, v36
    s_lshl_b32 s{sU1}, s{sMe}, 6
    s_lshl_b32 s{sT}, s{sW}, 16
    s_add_u32 s{sU1}, s{sU1}, s{sT}
    ''')
    base_add(sBa, WS, sU1, T1_G)
    base_add(sBb, WS, sU1, T1_G + 128 * 16384)

    def w_setup():
        for q in range(2):
            tab_read(vTW + 4 * q, T_F16 + q)
            tab_read(vTW + 8 + 4 * q, T_TW2 + q)
        a(f's_and_b32 s{sU2}, s{sX}, 1                    ; q & 1')
        for s in range(2):
            ka, pos, gam = sBc, sBc + 1, sU3
            if s == 1:
                a(f's_cmp_ge_u32 s{sW}, 4')
                a('s_cbranch_scc1 L_wdone')
            a(f'''
            s_add_u32 s{ka}, s{sKa}, {s}
            s_min_u32 s{pos}, s{ka}, 10
            s_sub_u32 s{sT}, 10, s{pos}
            s_cmp_ge_u32 s{sIdx}, 16
            s_cselect_b32 s{pos}, s{sT}, s{pos}
            s_add_u32 s{pos}, s{pos}, s{sU2}
            s_lshl_b32 s{sT}, s{pos}, 1
            s_cmp_ge_u32 s{pos}, 6
            s_cselect_b32 s{pos}, 4, 0
            s_add_u32 s{pos}, s{pos}, s{sT}
            s_add_u32 s{pos}, s{pos}, {WST}
            v_add_u32 v37, s{pos}, v36
            ''')
            for arr in range(2):
                for r in range(4):
                    a(f'ds_read_u16_d16_hi v{vWr + 8 * s + 4 * arr + r}, v37 offset:{arr * 8192 + r * 512}')
            a(f's_mov_b32 s{gam}, {hex(f2u(SC))}')
            if s == 0:
                a(f'''
                s_and_b32 s{sT}, s{sIdx}, 15
                s_or_b32 s{sT}, s{sT}, s{ka}
                s_cmp_eq_u32 s{sT}, 0
                s_cselect_b32 s{gam}, {hex(f2u(SC / 2))}, s{gam}
                s_cmp_gt_u32 s{sIdx}, 16
                s_cselect_b32 s{sT}, s{ka}, 1
                s_cmp_eq_u32 s{sT}, 0
                s_cselect_b32 s{gam}, 0, s{gam}
                ''')
            else:
                a(f'''
                s_cmp_ge_u32 s{sIdx}, 16
                s_cselect_b32 s{sT}, s{ka}, 1
                s_cmp_eq_u32 s{sT}, 10
                s_cselect_b32 s{gam}, 0, s{gam}
                ''')
            a(f'''
            s_xor_b32 s{sT}, s{gam}, 0x80000000
            s_cmp_ge_u32 s{sIdx}, 16
            s_cselect_b32 s{sT}, s{sT}, s{gam}
            s_waitcnt lgkmcnt(0)
            ''')
            for r in range(4):
                a(f'v_mul_f32 v{vWr + 8 * s + r}, s{gam}, v{vWr + 8 * s + r}')
            for r in range(4):
                a(f'v_mul_f32 v{vWr + 8 * s + 4 + r}, s{sT}, v{vWr + 8 * s + 4 + r}')
        a.label('L_wdone')

    tpoll = [f'global_load_dwordx4 {vr(Ra, 4)}, v{vPoll}, {sr(sBa)} sc1', f'global_load_dwordx4 {vr(Ra + 4, 4)}, v{vPoll}, {sr(sBb)} sc1']
    a('s_waitcnt vmcnt(0)')
    bar('B3b')
    stamp('B3b done')
    poll(tpoll, [Ra + 3, Ra + 7], [Rb, Rb + 1], empty='word', between=w_setup)
    a(f'ds_write_b128 v{vE0 + 4}, {vr(Ra, 4)}')
    a(f'ds_write_b128 v{vE0 + 4}, {vr(Ra + 4, 4)} offset:10240')
    base_add(sBa, WS, sU0, T2_G)
    base_add(sBb, WS, sU0, T2_G + 8192)
    a(f's_cmp_ge_u32 s{sW}, 4')
    a('s_waitcnt lgkmcnt(0)')
    bar('B4')
    stamp('B4 done (T1 in)')
    a('s_cbranch_scc1 L_p2_one')
    Fre, Fim, Tc, Ts = vTW, vTW + 4, vTW + 8, vTW + 12
    tmps = (Rb, Rc)

    def p2(ns):
        if ns == 2:
            for j in range(4):
                a(f'ds_read_b64 {vr(Rb + 2 * j, 2)}, v{vE0 + 3} offset:{1280 * j}')
            for h in range(2):
                a(f's_waitcnt lgkmcnt({2 - 2 * h})')
                for s in range(2):
                    a(f'v_pk_mov_b32 {vr(Ra + 4 * s + 2 * h, 2)}, {vr(Rb + 4 * h, 2)}, {vr(Rb + 4 * h + 2, 2)} op_sel:[{s},{s}]')
        else:
            a(f'ds_read2st64_b32 {vr(Ra, 2)}, v{vE0 + 3} offset0:0 offset1:5')
            a(f'ds_read2st64_b32 {vr(Ra + 2, 2)}, v{vE0 + 3} offset0:10 offset1:15')
            a('s_waitcnt lgkmcnt(0)')
        for s in range(ns):
            mfma32(RD + 8 * s, Ra + 4 * s, Fre)
            mfma32(RD + 8 * s + 4, Ra + 4 * s, Fim)
        for s in range(ns):
            cmul(tmps[s], tmps[s] + 4, RD + 8 * s, RD + 8 * s + 4, Tc, Ts, -1)
            pack4(Ra + 4 * s, tmps[s], tmps[s] + 4)
            mfma32(RD + 8 * s, Fre, Ra + 4 * s)
            mfma32(RD + 8 * s + 4, Fim, Ra + 4 * s)
        for s in range(ns):
            cmul(tmps[s], tmps[s] + 4, RD + 8 * s, RD + 8 * s + 4, vWr + 8 * s, vWr + 8 * s + 4, +1)
            pack4(Ra + 4 * s, tmps[s] + 4, tmps[s])
            mfma32(RD + 8 * s, Ra + 4 * s, Fim)
            mfma32(RD + 8 * s + 4, Ra + 4 * s, Fre)
        for s in range(ns):
            cmul(tmps[s], tmps[s] + 4, RD + 8 * s, RD + 8 * s + 4, Tc, Ts, +1)
            pack4(Ra + 4 * s, tmps[s] + 4, tmps[s])
            mfma32(RD + 8 * s, Fim, Ra + 4 * s)
            mfma32(RD + 8 * s + 4, Fre, Ra + 4 * s)
        for s in range(ns):
            pack4(Rb + s, RD + 8 * s, RD + 8 * s + 4, step=ns)
        if ns == 2:
            for r in range(4):
                a(f'ds_write_b64 v{vE0 + 3}, {vr(Rb + 2 * r, 2)} offset:{1280 * r}')
        else:
            a(f'ds_write2st64_b32 v{vE0 + 3}, v{Rb}, v{Rb + 1} offset0:0 offset1:5')
            a(f'ds_write2st64_b32 v{vE0 + 3}, v{Rb + 2}, v{Rb + 3} offset0:10 offset1:15')
        a('s_waitcnt lgkmcnt(0)')
    p2(2)
    a.label('L_b5')
    bar('B5')
    a(f'ds_read_b128 {vr(Rb, 4)}, v{vE0 + 4}')
    a(f'ds_read_b128 {vr(Rb + 4, 4)}, v{vE0 + 4} offset:10240')
    a('s_waitcnt lgkmcnt(1)')
    a(f'global_store_dwordx4 v{vS}, {vr(Rb, 4)}, {sr(sBa)} sc1')
    a('s_waitcnt lgkmcnt(0)')
    a(f'global_store_dwordx4 v{vS}, {vr(Rb + 4, 4)}, {sr(sBb)} sc1')
    stamp('T2 stored')
    late.append(lambda: (a.label('L_p2_one'), a(f's_cmp_eq_u32 s{sW}, 7'), a('s_cbranch_scc1 L_b5'), p2(1), a('s_branch L_b5')))
    vGA, vVV, vGC, vGS = vVec, vVec + 10, vVec + 20, vVec + 30
    for q in range(4):
        tab_read(vTW + 4 * q, T_TW3 + q)
    for q in range(3):
        tab_read(vF20 + 4 * q, T_F20I + q)
    a(f'''
    v_add_u32 v{vE0 + 5}, {MODB_L}, v{vL4}
    v_lshrrev_b32 v36, 4, v{vL}
    v_mul_u32_u24 v36, 4640, v36
    v_and_b32 v37, 3, v{vL}
    v_mul_u32_u24 v37, 576, v37
    v_and_b32 v38, 4, v{vL}
    v_lshl_add_u32 v36, v38, 2, v36
    v_bfe_u32 v38, v{vL}, 3, 1
    v_lshl_add_u32 v37, v38, 2, v37
    s_lshr_b32 s{sU2}, s{sW}, 1
    s_lshl_b32 s{sU2}, s{sU2}, 5
    s_and_b32 s{sT}, s{sW}, 1
    s_lshl_b32 s{sT}, s{sT}, 3
    s_add_u32 s{sU2}, s{sU2}, s{sT}
    s_add_u32 s{sU2}, s{sU2}, {XB3}
    v_add3_u32 v{vE0 + 1}, v36, v37, s{sU2}
    v_add_u32 v{vE0 + 2}, 2320, v{vE0 + 1}
    v_and_b32 v36, 15, v{vL}
    v_mul_u32_u24 v36, 144, v36
    v_and_b32 v37, 48, v{vL}
    v_lshl_add_u32 v36, v37, 1, v36
    s_mul_i32 s{sU2}, s{sW}, 2320
    s_add_u32 s{sU2}, s{sU2}, {XB3}
    v_add_u32 v{vE0 + 3}, s{sU2}, v36
    ''')
    base_add(sBa, WS, sU1, T2_G)
    base_add(sBb, WS, sU1, T2_G + 128 * 16384)
    base_add(sXrow, OUTP, sRow)

    def p3_setup():
        raw = Rb
        for k in range(0, 24, 2):
            a(f'ds_read2st64_b32 {vr(raw + k, 2)}, v{vE0 + 5} offset0:{k} offset1:{k + 1}')
        a(f'ds_read_b32 v{raw + 24}, v{vE0 + 5} offset:{24 * 256}')
        a('s_waitcnt lgkmcnt(0)')
        for vec, dst in ((0, vGA), (1, vGS), (2, vGC), (4, vVV)):
            for j in range(5):
                unpack(dst + tm(j, 0), dst + tm(j, 1), raw + 5 * vec + j)
        GB = Rb
        for j in range(5):
            unpack(GB + tm(j, 0), GB + tm(j, 1), raw + 15 + j)
        t0, t1, t2 = Rc + 2, Rc + 4, Rc + 6
        dot10(t0, vVV, vGS)
        for h in range(0, 10, 2):
            a(f'v_pk_mul_f32 {vr(vVV + h, 2)}, {vr(vVV + h, 2)}, {vr(vGC + h, 2)}')
        sum10(t1, vVV)
        a(f'v_mov_b32 v{t2}, s{sM1B}')
        for h in range(0, 10, 2):
            a(f'v_pk_mul_f32 {vr(vGC + h, 2)}, {vr(vGC + h, 2)}, {vr(GB + h, 2)}')
            a(f'v_pk_fma_f32 {vr(vGS + h, 2)}, {vr(vGS + h, 2)}, {vr(GB + h, 2)}, {vr(t2, 2)} op_sel:[0,0,0] op_sel_hi:[1,1,0]')
        wave_sum([t1, t0], [sV1, sV2])

    a('s_waitcnt vmcnt(0) lgkmcnt(0)')
    bar('B5b')
    stamp('B5b done')
    poll(tpoll, [Ra + 3, Ra + 7], [Rb, Rb + 1], empty='word', between=p3_setup)
    stamp('T2 in')
    for n in range(3):
        a(f'v_pk_mov_b32 {vr(Rb + 2 * n, 2)}, {vr(Ra + (n & 2), 2)}, {vr(Ra + 4 + (n & 2), 2)} op_sel:[{n & 1},{n & 1}]')
    for n in range(3):
        mfma16(RD + 4 * n, vM8I, Rb + 2 * n)
    for jj in range(2):
        for n in range(3):
            a(f'v_cvt_pk_bf16_f32 v{Ra + 4 * jj + n}, v{RD + 4 * n + 2 * jj + 1}, v{RD + 4 * n + 2 * jj}')
        a(f'ds_write2_b32 v{vE0 + 1 + jj}, v{Ra + 4 * jj}, v{Ra + 4 * jj + 1} offset0:0 offset1:36')
        a(f'ds_write_b32 v{vE0 + 1 + jj}, v{Ra + 4 * jj + 2} offset:288')
    a('s_waitcnt lgkmcnt(0)')
    a('s_barrier                                   ; B6')
    a(f'ds_read_b128 {vr(Rb, 4)}, v{vE0 + 3}')
    a(f'ds_read_b128 {vr(Rb + 4, 4)}, v{vE0 + 3} offset:16')
    for ks in range(2):
        a(f's_waitcnt lgkmcnt({1 - ks})')
        for t in range(2):
            for e in range(2):
                d = RD + 8 * t + 4 * e
                mfma32(d, Rb + 4 * ks, vF32 + 16 * t + 8 * (1 - e) + 4 * ks, d if ks else None)
    for t, tmp in ((0, Ra), (1, Rc)):
        cmul(tmp, tmp + 4, RD + 8 * t, RD + 8 * t + 4, vTW + 8 * t, vTW + 8 * t + 4, +1)
        pack4(Rb + 4 * t, tmp, tmp + 4, n=3)
        a(f'v_mov_b32 v{Rb + 4 * t + 3}, 0')
    Y = RD
    mfma32(Y, vF20, Rb)
    mfma32(Y + 8, vF20 + 4, Rb)
    mfma32(Y + 4, vF20, Rb + 4)
    mfma32(Y + 8, vF20 + 8, Rb + 4, Y + 8)
    for h in range(0, 10, 2):
        a(f'v_pk_fma_f32 {vr(Y + h, 2)}, {vr(Y + h, 2)}, {vr(vGA + h, 2)}, {vr(vXS + h, 2)}')
    s1, s2, s3 = Ra, Ra + 2, Ra + 4
    a(f'v_pk_add_f32 {vr(s1, 2)}, {vr(Y, 2)}, {vr(Y + 2, 2)}')
    a(f'v_pk_mul_f32 {vr(s2, 2)}, {vr(Y, 2)}, {vr(Y, 2)}')
    a(f'v_pk_mul_f32 {vr(s3, 2)}, {vr(Y, 2)}, {vr(vVV, 2)}')
    for h in (2, 4, 6, 8):
        if h > 2:
            a(f'v_pk_add_f32 {vr(s1, 2)}, {vr(s1, 2)}, {vr(Y + h, 2)}')
        a(f'v_pk_fma_f32 {vr(s2, 2)}, {vr(Y + h, 2)}, {vr(Y + h, 2)}, {vr(s2, 2)}')
        a(f'v_pk_fma_f32 {vr(s3, 2)}, {vr(Y + h, 2)}, {vr(vVV + h, 2)}, {vr(s3, 2)}')
    for s in (s1, s2, s3):
        a(f'v_add_f32 v{s}, v{s}, v{s + 1}')
    wave_sum([s1, s2, s3], [sU0, sU2, sU3])
    k0 = Rc
    a(f'''
    v_mov_b32 v{Ra}, {INV640}
    v_mul_f32 v{Ra + 1}, s{sU0}, v{Ra}            ; mu
    v_mul_f32 v{Ra + 2}, v{Ra + 1}, v{Ra + 1}
    v_add_f32 v{Ra + 3}, s{sM1B}, v{Ra + 1}
    v_fma_f32 v{Ra + 2}, s{sU2}, v{Ra}, -v{Ra + 2} ; var
    ''')
    rbf(Ra + 3, f'v{Ra + 3}')
    rstd_chain(Ra + 2, k0)
    a(f'''
    v_sub_f32 v{Ra + 3}, s{sM1B}, v{Ra + 3}       ; -delta
    v_mov_b32 v{Ra + 4}, s{sU3}
    v_fma_f32 v{Ra + 4}, v{Ra + 3}, s{sV1}, v{Ra + 4}
    v_fma_f32 v{Ra + 4}, v{Ra + 4}, v{k0}, s{sV2} ; r
    v_mul_f32 v{k0 + 1}, v{Ra + 3}, v{k0}
    v_ashrrev_i32 v{Ra + 5}, 31, v{Ra + 4}
    v_or_b32 v{Ra + 5}, 0x80000000, v{Ra + 5}
    v_xor_b32 v{Ra + 4}, v{Ra + 4}, v{Ra + 5}
    v_and_b32 v{Ra + 4}, 0xfffff800, v{Ra + 4}
    v_or_b32 v{Ra + 4}, s{sKey}, v{Ra + 4}
    v_mov_b32 v{Ra + 7}, {KEYL}
    v_mov_b32 v{Ra + 5}, s{sTag}
    s_mov_b64 exec, 1
    ds_max_u32 v{Ra + 7}, v{Ra + 4}
    s_mov_b64 exec, -1
    v_readfirstlane_b32 s{sKey}, v{Ra + 4}
    ''')
    ZN = vGA
    for h in range(0, 10, 2):
        a(f'v_pk_fma_f32 {vr(ZN + h, 2)}, {vr(Y + h, 2)}, {vr(k0, 2)}, {vr(k0, 2)} op_sel:[0,0,1] op_sel_hi:[1,0,1]')
        a(f'v_pk_add_f32 {vr(Y + h, 2)}, {vr(Y + h, 2)}, {vr(vGS + h, 2)}')
    for h in range(0, 10, 2):
        a(f'v_pk_fma_f32 {vr(Y + h, 2)}, {vr(ZN + h, 2)}, {vr(vGC + h, 2)}, {vr(Y + h, 2)}')
    vO = vXS
    for j in range(5):
        a(f'v_cvt_pk_bf16_f32 v{vO + j}, v{Y + tm(j, 0)}, v{Y + tm(j, 1)}')
    a(f's_mul_i32 s{sU0}, s{sMe}, {REC_STRIDE}')
    base_add(sBa, WS, sU0, REC_G)
    a('s_waitcnt lgkmcnt(0)')
    a('s_barrier                                   ; B7')
    a(f'''
    ds_read_b32 v{Ra + 6}, v{Ra + 7}
    s_waitcnt lgkmcnt(0)
    v_readfirstlane_b32 s{sU0}, v{Ra + 6}
    s_cmp_eq_u32 s{sU0}, s{sKey}
    s_cselect_b32 s{sCand}, 1, 0
    s_cbranch_scc1 L_cand
    ''')
    for j in range(5):
        a(f'global_store_dword v{vL4}, v{vO + j}, {sr(sXrow)} offset:{256 * j} {OUTPOL}')
    a('s_branch L_keys')
    a.label('L_cand')
    a(f'''
    s_mov_b64 exec, 1
    global_store_dwordx2 v{vL4}, {vr(Ra + 4, 2)}, {sr(sBa)} sc1
    s_mov_b64 exec, -1
    ''')
    raw, SB, CB, H, Bq = 60, 70, 80, 92, 108
    for k in range(0, 10, 2):
        a(f'ds_read2st64_b32 {vr(raw + k, 2)}, v{vE0 + 5} offset0:{5 + k} offset1:{6 + k}')
    a(f'v_add_u32 v{Ra}, {REC_BASE}, v{vL16}')
    for qd in range(4):
        a(f'v_mov_b32 v{H + 4 * qd + 3}, s{sTag}')
    a('s_waitcnt lgkmcnt(0)')
    for j in range(5):
        unpack(SB + tm(j, 0), SB + tm(j, 1), raw + j)
        unpack(CB + tm(j, 0), CB + tm(j, 1), raw + 5 + j)
    for t in range(2):
        for j in range(5):
            k = tm(j, t)
            a(f'v_fma_f32 v{H + 8 * t + j + (j >= 3)}, v{ZN + k}, v{CB + k}, v{SB + k}')
        for qd in range(2):
            a(f'global_store_dwordx4 v{vL16}, {vr(H + 8 * t + 4 * qd, 4)}, {sr(sBa)} offset:{REC_H2 + 2048 * t + 1024 * qd} sc1')
    Bq = 60
    for t in range(2):
        for j in range(5):
            a(f'v_mov_b32 v{Bq + 8 * t + j + (j >= 3)}, v{Y + tm(j, t)}')
        for qd in range(2):
            a(f'v_mov_b32 v{Bq + 8 * t + 4 * qd + 3}, s{sTag}')
            a(f'global_store_dwordx4 v{Ra}, {vr(Bq + 8 * t + 4 * qd, 4)}, {sr(sBa)} offset:{2048 * t + 1024 * qd} sc1')
    a.label('L_keys')
    stamp('key out')
    vEW, vFW = 60, 100
    a(f'''
    s_cmp_lt_u32 s{sRi}, 20
    s_cbranch_scc1 L_no_ew
    s_barrier
    s_mul_i32 s{sT}, s{sW}, 5120
    s_add_u32 s{sT}, s{sT}, {EW}
    v_add_u32 v{Rb}, s{sT}, v{vL16}
    s_lshl_b32 s{sT}, s{sW}, 8
    s_add_u32 s{sT}, s{sT}, {FW}
    v_add_u32 v{Rb + 1}, s{sT}, v{vL4}
    ''')
    st = 132
    for j in range(5):
        a(f'ds_read_b128 {vr(st + 4 * j, 4)}, v{Rb} offset:{1024 * j}')
    a('s_waitcnt lgkmcnt(0)')
    for k in range(20):
        unpack(vEW + 2 * k, vEW + 2 * k + 1, st + k)
    a(f's_cmp_ge_u32 s{sW}, 5')
    a('s_cbranch_scc1 L_no_ew')
    for u in range(0, 16, 2):
        a(f'ds_read2st64_b32 {vr(st + u, 2)}, v{Rb + 1} offset0:{5 * u} offset1:{5 * u + 5}')
    a('s_waitcnt lgkmcnt(0)')
    for k in range(16):
        unpack(vFW + 2 * k, vFW + 2 * k + 1, st + k)
    a.label('L_no_ew')
    a(f'''
    v_mov_b32 v{Rb + 2}, {KEYL + 4}
    s_cmp_ge_u32 s{sW}, 4
    s_cbranch_scc1 L_b8
    v_mul_u32_u24 v{Rb}, {REC_STRIDE}, v0
    v_add_u32 v{Rb}, {REC_G}, v{Rb}
    ''')
    poll([f'global_load_dwordx2 {vr(Rb + 4, 2)}, v{Rb}, {sr(WS)} sc1'], [Rb + 5], [], empty='word')
    for c in ('row_ror:8', 'row_ror:4', 'row_ror:2', 'row_ror:1'):
        dpp('v_max_u32', Rb + 4, c)
    a(f'''
    s_mov_b32 exec_lo, 0x00010001
    s_mov_b32 exec_hi, 0x00010001
    ds_max_u32 v{Rb + 2}, v{Rb + 4}
    s_mov_b64 exec, -1
    s_waitcnt lgkmcnt(0)
    ''')
    a.label('L_b8')
    a('s_barrier                                   ; B8')
    a(f'''
    ds_read_b32 v{Rb + 3}, v{Rb + 2}
    s_waitcnt lgkmcnt(0)
    v_readfirstlane_b32 s{sU0}, v{Rb + 3}
    s_and_b32 s{sU1}, s{sU0}, 255
    s_mul_i32 s{sU1}, s{sU1}, {REC_STRIDE}
    ''')
    base_add(sBa, WS, sU1, REC_G)
    stamp('B8 done (winner)')
    a(f'''
    s_cmp_ge_u32 s{sRi}, 20
    s_cbranch_scc1 L_do_e
    ''')
    def deferred(lbl):
        a(f'''
        s_cmp_eq_u32 s{sCand}, 0
        s_cbranch_scc1 {lbl}
        s_cmp_eq_u32 s{sU0}, s{sKey}
        s_cbranch_scc1 {lbl}
        ''')
        for j in range(5):
            a(f'global_store_dword v{vL4}, v{vO + j}, {sr(sXrow)} offset:{256 * j} {OUTPOL}')
        a.label(lbl)
    deferred('L_def1')
    a(f'''
    s_cmp_ge_u32 s{sRi}, 10
    s_cbranch_scc1 L_fin
    s_cmp_lg_u32 s{sW}, 0
    s_cbranch_scc1 L_fin
    s_mul_i32 s{sU2}, s{sX}, 10
    s_add_u32 s{sU2}, s{sU2}, s{sRi}              ; f
    ''')
    a(f'''
    v_and_b32 v20, 1, v{vL}
    v_lshrrev_b32 v21, 4, v{vL}
    v_lshl_add_u32 v20, v20, 2, v21
    s_lshl_b32 s{sT}, s{sU2}, 3
    v_add_u32 v20, s{sT}, v20                      ; d
    v_lshlrev_b32 v21, 1, v20
    v_add_u32 v21, {MODB_L + 3840}, v21
    v_mov_b32 v22, 0
    ds_read_u16_d16_hi v22, v21                    ; gb[d]
    s_lshr_b32 s{sU3}, s{sU2}, 4                   ; j
    s_cmp_ge_u32 s{sU3}, 3
    s_cselect_b32 s{sT}, 3, 0
    s_sub_u32 s{sU3}, s{sU3}, s{sT}
    s_mul_i32 s{sT}, s{sT}, 342
    s_and_b32 s{sT}, s{sT}, 1024
    s_add_u32 s{sT}, s{sT}, {REC_BASE}
    v_bfe_u32 v24, v20, 1, 6                       ; lane'
    v_and_b32 v25, 1, v20                          ; t
    v_lshlrev_b32 v26, 11, v25
    v_lshl_add_u32 v26, v24, 4, v26
    v_add_u32 v26, s{sT}, v26
    ''')
    poll([f'global_load_dwordx4 v[32:35], v26, {sr(sBa)} sc1'], [35], [], empty='word')
    a(f'''
    s_cmp_eq_u32 s{sU3}, 1
    s_cselect_b64 vcc, -1, 0
    v_cndmask_b32 v27, v32, v33, vcc
    s_cmp_eq_u32 s{sU3}, 2
    s_cselect_b64 vcc, -1, 0
    v_cndmask_b32 v27, v27, v34, vcc
    ''')
    a(f'''
    s_and_b32 s{sU1}, s{sU0}, 0xfffff800
    s_or_b32 s{sU1}, s{sU1}, 0x400
    s_xor_b32 s{sU3}, s{sU1}, 0x80000000
    s_not_b32 s{sT}, s{sU1}
    s_cmp_lt_i32 s{sU1}, 0
    s_cselect_b32 s{sU1}, s{sU3}, s{sT}
    v_mov_b32 v28, s{sU1}
    ''')
    rbf(28, 'v28')
    a(f'''
    v_mul_f32 v28, 0xbfb8aa3b, v28
    v_exp_f32 v28, v28
    v_add_f32 v28, 1.0, v28
    v_rcp_f32 v28, v28
    ''')
    rbf(28, 'v28')
    a(f'''
    s_and_b32 s{sU1}, s{sU0}, 0x7ff
    s_mul_i32 s{sU1}, s{sU1}, 1280
    v_lshlrev_b32 v20, 1, v20
    v_lshrrev_b32 v29, 1, v{vL}
    v_mul_u32_u24 v29, {PY_STRIDE}, v29
    v_and_b32 v30, 16, v{vL16}
    v_add_u32 v29, v29, v30
    v_add_u32 v30, {32 * PY_STRIDE}, v29
    v_add_u32 v31, {64 * PY_STRIDE}, v29
    s_lshl_b32 s{sU2}, s{sU2}, 5
    ''')
    base_add(sXrow, OUTP, sU1)
    base_add(sBb, WS, sU2, PY_G)
    a('s_waitcnt lgkmcnt(0)')
    poll([f'global_load_dwordx4 {vr(36 + 4 * n, 4)}, v{29 + n}, {sr(sBb)} sc1' for n in range(3)],
         list(range(36, 48)), [48, 49], empty='tag')
    a(f'''
    v_pk_add_f32 v[36:37], v[36:37], v[40:41]
    v_pk_add_f32 v[38:39], v[38:39], v[42:43]
    v_pk_add_f32 v[36:37], v[36:37], v[44:45]
    v_pk_add_f32 v[38:39], v[38:39], v[46:47]
    v_permlane32_swap_b32 v36, v38
    v_permlane32_swap_b32 v37, v39
    v_pk_add_f32 v[36:37], v[36:37], v[38:39]
    v_permlane16_swap_b32 v36, v37
    v_add_f32 v36, v36, v37
    ''')
    for c in ('row_ror:8', 'row_ror:4', 'row_ror:2'):
        dpp('v_add_f32', 36, c)
    rbf(36, 'v36')
    a(f'''
    v_mul_f32 v36, v36, v28
    v_fma_f32 v36, v36, v22, v27
    v_cvt_pk_bf16_f32 v36, v36, v36
    s_mov_b32 exec_lo, 0x00030003
    s_mov_b32 exec_hi, 0x00030003
    global_store_short v20, v36, {sr(sXrow)} sc1
    s_mov_b64 exec, -1
    s_branch L_fin
    ''')
    a.label('L_do_e')
    a(f'''
    v_bfe_u32 v30, v0, 2, 6                        ; lane' = (t'>>1)>>1
    v_bfe_u32 v31, v0, 1, 1                        ; t
    v_lshlrev_b32 v28, 4, v30
    v_lshl_add_u32 v28, v31, 11, v28
    ''')
    poll([f'global_load_dwordx4 v[20:23], v28, {sr(sBa)} offset:{REC_H2} sc1',
          f'global_load_dwordx4 v[24:27], v28, {sr(sBa)} offset:{REC_H2 + 1024} sc1'], [23, 27], [30, 31], empty='word')
    acc = 36
    for j in range(5):
        for k in range(4):
            w_ = vr(vEW + 8 * j + 2 * k, 2)
            xr = 20 + j + (j >= 3)
            x_ = vr(xr & ~1, 2)
            if j == 0:
                a(f'v_pk_mul_f32 {vr(acc + 2 * k, 2)}, {w_}, {x_} op_sel:[0,0] op_sel_hi:[1,0]')
            else:
                a(f'v_pk_fma_f32 {vr(acc + 2 * k, 2)}, {w_}, {x_}, {vr(acc + 2 * k, 2)} {BC1 if xr & 1 else BC0}')
    a(f'''
    v_and_b32 v28, 1, v{vL}
    v_lshlrev_b32 v28, 7, v28
    v_and_b32 v29, 48, v{vL}
    v_lshl_add_u32 v28, v29, 1, v28
    s_lshr_b32 s{sU1}, s{sW}, 2
    s_lshl_b32 s{sU1}, s{sU1}, 8
    s_and_b32 s{sT}, s{sW}, 3
    s_lshl_b32 s{sT}, s{sT}, 2
    s_add_u32 s{sU1}, s{sU1}, s{sT}
    s_add_u32 s{sU1}, s{sU1}, {RED}
    v_add_u32 v28, s{sU1}, v28
    v_and_b32 v29, 0xf0, v{vL16}
    v_and_b32 v30, 16, v{vL16}
    v_lshrrev_b32 v30, v30, s{sTag}
    v_bfe_u32 v31, v30, 8, 8
    v_and_b32 v30, 0xff, v30
    v_mov_b32 v32, 0xffffff00
    ''')
    swap_reduce8(acc)
    for c in ('row_ror:8', 'row_ror:4', 'row_ror:2'):
        dpp('v_add_f32', acc, c)
        dpp('v_add_f32', acc + 1, c)
    a(f'''
    s_mov_b32 exec_lo, 0x00030003
    s_mov_b32 exec_hi, 0x00030003
    ds_write2_b32 v28, v{acc}, v{acc + 1} offset0:0 offset1:4
    s_mov_b64 exec, -1
    s_mul_i32 s{sU1}, s{sX}, 12
    s_add_u32 s{sU1}, s{sU1}, s{sRi}
    s_mul_i32 s{sU1}, s{sU1}, {PY_STRIDE}
    s_lshl_b32 s{sT}, s{sW}, 9
    s_add_u32 s{sU1}, s{sU1}, s{sT}
    ''')
    base_add(sBb, WS, sU1, PY_G - 20 * PY_STRIDE)
    a(f'''
    s_waitcnt lgkmcnt(0)
    s_barrier                                   ; B9
    s_cmp_ge_u32 s{sW}, 5
    s_cbranch_scc1 L_e_done
    ds_read_b128 v[20:23], v29 offset:{RED}
    ds_read_b128 v[24:27], v29 offset:{RED + 256}
    s_waitcnt lgkmcnt(0)
    v_pk_add_f32 v[20:21], v[20:21], v[22:23]
    v_pk_add_f32 v[24:25], v[24:25], v[26:27]
    v_add_f32 v20, v20, v21
    v_add_f32 v24, v24, v25
    v_cvt_pk_bf16_f32 v24, v20, v24
    ''')
    unpack(20, 24, 24)
    silu([20], [20], [21])
    rbf(20, 'v20')
    a('v_mul_f32 v20, v20, v24')
    rbf(20, 'v20')
    for u in range(16):
        a(f'v_readlane_b32 s{sGU + u}, v20, {u}')
    for u in range(16):
        w_ = vr(vFW + 2 * u, 2)
        g_ = sr(sGU + (u & ~1))
        d_ = vr(36 + 2 * (u & 1), 2)
        if u < 2:
            a(f'v_pk_mul_f32 {d_}, {w_}, {g_} op_sel:[0,{u & 1}] op_sel_hi:[1,{u & 1}]')
        else:
            a(f'v_pk_fma_f32 {d_}, {w_}, {g_}, {d_} {BC1 if u & 1 else BC0}')
    a('v_pk_add_f32 v[36:37], v[36:37], v[38:39]')
    a('v_and_or_b32 v36, v36, v32, v30')
    a('v_and_or_b32 v37, v37, v32, v31')
    a(f'global_store_dwordx2 v{vE0}, v[36:37], {sr(sBb)} sc1')
    a.label('L_e_done')
    deferred('L_def2')
    a.label('L_fin')
    stamp('end')
    dump_stamps()
    a.label('L_end')
    a('s_endpgm')
    for f in late:
        f()


def fill(base, n_full, voff=vL16, tmp=24):
    cur = voff
    for n in range(n_full):
        if n and n % 4 == 0:
            a(f'v_add_u32 v{tmp}, {1024 * n}, v{voff}')
            cur = tmp
        a(f'global_store_dwordx4 v{cur}, v[20:23], {sr(base)} offset:{1024 * (n % 4)} sc1')


def warm_loads(specs):
    for d, vo, b, imm in specs:
        a(f'global_load_dword v{d}, v{vo}, {sr(b)} offset:{imm} {"" if WARMPOL == "plain" else "nt"}')
    return len(specs)


def retouch(specs):
    if WARMPOL == 'both':
        a('s_waitcnt vmcnt(0)')
        for d, vo, b, imm in specs:
            a(f'global_load_dword v{d}, v{vo}, {sr(b)} offset:{imm} sc1')


sF1, sF2, sF3, sF4, sPb, sGw = 56, 58, 60, 62, 64, 66


WW = [(156, 150, W_R, 0), (157, 150, W_I, 0), (158, 151, W_R, 0), (159, 151, W_I, 0)]
GU = [(156 + n, 152, sGw, 128 * n) for n in range(3)]


def act_wd():
    for n in range(20):
        if n % 4 == 0:
            a(f's_mov_b32 m0, {FW + n * 1024}')
            a(f'v_add_u32 v153, {1024 * n}, v{vL16}')
        a(f'global_load_lds_dwordx4 v153, {sr(sGw)} offset:{1024 * (n % 4)} nt')
    return 20


def slot_loads(role, slot):
    n, rt = 0, []
    if role == 'E' and S_WWARM == slot:
        n += warm_loads(WW)
        rt += WW
    if role != 'E' and S_GUW == slot:
        n += warm_loads(GU)
        rt += GU
    if role == 'E' and S_WD == slot:
        n += act_wd()
    return n, rt


def slot_fills(role, slot):
    n = 0
    if S_FILL1 == slot:
        fill(sF1, 16)
        n += 16
    if S_FILL2 == slot:
        fill(sF2, 16)
        n += 16
    return n


def publish():
    a(f'''
    ds_read_b128 v[40:43], v28 offset:{RED}
    ds_read_b128 v[44:47], v28 offset:{RED + 16}
    s_waitcnt lgkmcnt(0)
    v_pk_add_f32 v[40:41], v[40:41], v[42:43]
    v_pk_add_f32 v[44:45], v[44:45], v[46:47]
    v_pk_add_f32 v[40:41], v[40:41], v[44:45]
    v_add_f32 v40, v40, v41
    v_and_or_b32 v40, v40, v33, v34
    global_store_dword v{vL4}, v40, {sr(sPb)} sc1
    ''')
    stamp('published', 'H0')


def helper0():
    a.label('L_h0')
    for k in range(4):
        a(f'v_mov_b32 v{20 + k}, 0')
    a(f'''
    v_mov_b32 v28, {KEYL}
    ds_write_b64 v28, v[20:21]
    s_lshl_b32 s{sU0}, s{sMe}, 14
    s_mul_i32 s{sU2}, s{sX}, 10
    s_add_u32 s{sU2}, s{sU2}, s{sRi}
    s_lshl_b32 s{sU2}, s{sU2}, 8
    s_cmp_lt_u32 s{sRi}, 10
    s_cselect_b32 s{sU1}, 0, {MODB_G - 2560}
    s_add_u32 s{sU2}, s{sU2}, s{sU1}
    s_waitcnt lgkmcnt(0)
    ''')
    stamp('kernarg', 'H0')
    epoch_load()
    base_add(sF1, WS, sU0, T1_G)
    base_add(sF2, WS, sU0, T2_G)
    base_add(sPb, WS, sU2)
    a(f'''
    v_lshrrev_b32 v24, 4, v{vL}
    v_lshlrev_b32 v24, 9, v24
    v_and_b32 v25, 0xf0, v{vL16}
    v_add_u32 v24, v24, v25
    v_add_u32 v120, {MODB_G}, v24
    v_add_u32 v121, {MODB_G + 4096}, v24
    v_add_u32 v122, {MODB_G + 8192}, v24
    v_add_u32 v123, {MODB_G + 12288}, v24
    v_add_u32 v124, {MODB_G + 16384}, v24
    v_lshlrev_b32 v28, 5, v{vL}
    v_mul_u32_u24 v152, 3072, v{vL}
    s_cmp_lt_u32 s{sRi}, 20
    s_cbranch_scc0 L_h0_E
    s_cmp_lt_u32 s{sRi}, 10
    s_cselect_b32 s{sGw}, s{W_G}, s{W_U}
    s_cselect_b32 s{sGw + 1}, s{W_G + 1}, s{W_U + 1}
    s_cselect_b32 s{sU1}, 0, 10
    s_sub_u32 s{sU1}, s{sRi}, s{sU1}
    s_mul_i32 s{sU1}, s{sU1}, {64 * 3072}
    s_mul_i32 s{sU2}, s{sX}, 384
    s_add_u32 s{sU1}, s{sU1}, s{sU2}
    ''')
    base_add(sGw, sGw, sU1)
    a(f's_cmp_lt_u32 s{sRi}, 10')
    a('s_cbranch_scc0 L_h0_B')
    modb = [f'global_load_dwordx4 {vr(40 + 8 * n + 4 * h, 4)}, v{120 + n // 2}, {sr(WS)} offset:{2048 * (n % 2) + 256 * h} sc1'
            for n in range(10) for h in range(2)]
    for role in 'ABE':
        if role != 'A':
            a.label(f'L_h0_{role}')
        if role == 'E':
            a(f'''
            s_mul_i32 s{sU1}, s{sX}, 12
            s_add_u32 s{sU1}, s{sU1}, s{sRi}
            s_sub_u32 s{sU1}, s{sU1}, 20
            s_mul_i32 s{sU1}, s{sU1}, 20480
            ''')
            base_add(sGw, W_D, sU1)
            a(f'''
            s_sub_u32 s{sU3}, s{sRi}, 20
            s_lshl_b32 s{sU3}, s{sU3}, 7
            s_mul_i32 s{sU1}, s{sX}, 642
            s_movk_i32 s{sU2}, 0x2aab
            s_movk_i32 s{sT}, 5136
            ''')
            for n in range(2):
                a(f'''
                v_add_u32 v40, s{sU3}, v{vL}
                v_add_u32 v40, {64 * n}, v40
                v_mul_u32_u24 v41, s{sU2}, v40
                v_lshrrev_b32 v41, 16, v41
                v_mul_u32_u24 v42, 6, v41
                v_sub_u32 v42, v40, v42
                v_lshlrev_b32 v42, 7, v42
                v_min_u32 v42, 638, v42
                v_add_u32 v42, s{sU1}, v42
                v_mad_u32_u24 v42, v41, s{sT}, v42
                v_and_b32 v{150 + n}, -4, v42
                ''')
        rts = []
        if role != 'A':
            rts = slot_loads(role, 0)[1]
            slot_fills(role, 0)
        a('s_waitcnt lgkmcnt(0)')
        epoch_tag()
        tag_bytes()
        a(f'''
        v_mov_b32 v27, s{sTag}
        v_lshlrev_b32 v34, 3, v{vL}
        v_and_b32 v34, 24, v34
        v_bfe_u32 v34, v27, v34, 8
        v_mov_b32 v33, 0xffffff00
        ''')
        bar('B1')
        if role == 'A':
            publish()
            rts += slot_loads(role, 0)[1]
            slot_fills(role, 0)
        rts += slot_loads(role, 1)[1]
        slot_fills(role, 1)
        bar('BT')
        if role == 'B':
            publish()
        if rts:
            retouch(rts)
        stamp('w0 done', 'H0')
        bar('B2')
        a('s_waitcnt vmcnt(0)')
        slot_fills(role, 2)
        rts = slot_loads(role, 2)[1]
        assert S_FILL1 < 2
        bar('B3')
        if rts:
            retouch(rts)
        bar('B3b')
        bar('B4')
        a('s_waitcnt vmcnt(0)')
        for ld in modb:
            a(ld)
        k, rts = slot_loads(role, 3)
        bar('B5')
        a(f's_waitcnt vmcnt({k})')
        if role != 'E':
            a('s_branch L_h0_f')
    a.label('L_h0_f')
    a(f'v_lshlrev_b32 v28, 3, v{vL}')
    a(f'v_add_u32 v28, {MODB_L}, v28')
    poll(modb, list(range(40, 120)), [126, 127, 128], empty='tag', issued=True, younger=63)
    a(f'''
    v_mov_b32 v31, 1.0
    v_cmp_gt_u32 vcc, 32, v{vL}
    v_cndmask_b32 v32, 0, 1.0, vcc
    ''')
    for n in range(10):
        b = 40 + 8 * n
        a(f'v_pk_add_f32 {vr(b, 2)}, {vr(b, 2)}, {vr(b + 4, 2)}')
        a(f'v_pk_add_f32 {vr(b + 2, 2)}, {vr(b + 2, 2)}, {vr(b + 6, 2)}')
        a(f'v_cvt_pk_bf16_f32 v{b + 4}, v{b}, v{b + 1}')
        a(f'v_cvt_pk_bf16_f32 v{b + 5}, v{b + 2}, v{b + 3}')
        if n in (5, 6, 7):
            unpack(b, b + 1, b + 4)
            unpack(b + 2, b + 3, b + 5)
            one = 'v[32:33] op_sel:[0,0] op_sel_hi:[1,0]' if n == 7 else 'v[30:31] op_sel:[0,1] op_sel_hi:[1,1]'
            a(f'v_pk_add_f32 {vr(b, 2)}, {vr(b, 2)}, {one}')
            a(f'v_pk_add_f32 {vr(b + 2, 2)}, {vr(b + 2, 2)}, {one}')
            a(f'v_cvt_pk_bf16_f32 v{b + 4}, v{b}, v{b + 1}')
            a(f'v_cvt_pk_bf16_f32 v{b + 5}, v{b + 2}, v{b + 3}')
        a(f'ds_write_b64 v28, {vr(b + 4, 2)} offset:{512 * n}')
    a('s_waitcnt lgkmcnt(0)')
    stamp('modb in', 'H0')
    if WARMPOL == 'both' and S_GUW == 3:
        a(f's_cmp_lt_u32 s{sRi}, 20')
        a('s_cbranch_scc0 L_h0_g')
        retouch(GU)
        a.label('L_h0_g')
    bar('B5b')
    bar('B6')
    a(f'''
    s_cmp_lg_u32 s2, 0
    s_cbranch_scc1 L_h0_ne
    v_mov_b32 v26, {EPOCH_G}
    s_mov_b64 exec, 1
    global_store_dword v26, v27, {sr(WS)} sc1
    s_mov_b64 exec, -1
    ''')
    a.label('L_h0_ne')
    a('s_waitcnt vmcnt(0)')
    dump_stamps('H0')
    a('s_endpgm')


def helper1():
    a.label('L_h1')
    a(f'''
    s_getpc_b64 {sr(sBa)}
    L_pc:
    s_add_u32 s{sBb}, s{sBa}, L_tables-L_pc
    s_addc_u32 s{sBb + 1}, s{sBa + 1}, 0
    ''')

    def tabs(q0, q1):
        for q in range(q0, q1):
            if q % 4 == 0 or q == q0:
                a(f's_mov_b32 m0, {TAB + (q & ~3) * 1024}')
                a(f'v_add_u32 v20, {(q & ~3) * 1024}, v{vL16}')
            a(f'global_load_lds_dwordx4 v20, {sr(sBb)} offset:{1024 * (q % 4)}')

    def tab2():
        tabs(14, NTAB)
        a(f'''
        s_mov_b32 m0, {WR_L}
        s_nop 0
        global_load_lds_dwordx4 v{vL16}, {sr(B_WR)}
        s_mov_b64 exec, 0xffff
        global_load_lds_dwordx4 v{vL16}, {sr(B_WR)} offset:1024
        s_mov_b64 exec, -1
        ''')
        return NTAB - 14 + 2

    def egather():
        for n in range(20):
            j_, wq = n // 4, n % 4
            a(f'''
            s_mov_b32 m0, {EW + wq * 5120 + j_ * 1024}
            s_nop 0
            global_load_lds_dwordx4 v40, {sr(sF1)}
            s_mov_b32 m0, {EW + (wq + 4) * 5120 + j_ * 1024}
            s_nop 0
            global_load_lds_dwordx4 v40, {sr(sF2)}
            ''')
            if n < 19:
                a(f'v_add_u32 v40, {32 * 3072}, v40')
        stamp('EG issued', 'H1')

    a(f'''
    s_mul_i32 s{sU1}, s{sIdx}, 40
    s_sub_u32 s{sT}, 1260, s{sU1}
    s_sub_u32 s{sU0}, 0, s{sX}
    s_and_b32 s{sU0}, s{sU0}, 7
    s_cmp_ge_u32 s{sIdx}, 16
    s_cselect_b32 s{sU1}, s{sT}, s{sU1}             ; 2*C0
    s_cselect_b32 s{sU2}, -1, 1                     ; direction
    s_cselect_b32 s{sU0}, s{sU0}, s{sX}             ; q
    v_lshrrev_b32 v23, 1, v{vL}
    v_lshl_add_u32 v23, v23, 3, s{sU0}              ; q + 8*kappa (n = 0)
    v_mul_lo_u32 v23, v23, s{sU2}
    s_lshl_b32 s{sU2}, s{sU2}, 8
    v_and_b32 v24, 1, v{vL}
    v_mul_u32_u24 v24, 12, v24
    s_movk_i32 s{sU3}, 642
    v_mov_b32 v26, s{sU1}
    ''')
    for n in range(8):
        a(f'''
        v_and_b32 v25, 0x7ff, v23
        v_mad_u32_u24 v25, v25, s{sU3}, v26
        v_and_b32 v25, -4, v25
        v_add_u32 v{30 + n}, v25, v24
        v_add_u32 v23, s{sU2}, v23
        ''')
    a(f'''
    s_max_u32 s{sU1}, s{sRi}, 20
    s_mul_i32 s{sU0}, s{sX}, 12
    s_add_u32 s{sU0}, s{sU0}, s{sU1}
    s_sub_u32 s{sU0}, s{sU0}, 20
    s_lshl_b32 s{sU0}, s{sU0}, 5
    v_lshrrev_b32 v40, 1, v{vL}
    v_mul_u32_u24 v40, 3072, v40
    v_and_b32 v41, 16, v{vL16}
    v_add_u32 v40, v40, v41
    s_waitcnt lgkmcnt(0)
    ''')
    base_add(sF1, W_G, sU0)
    base_add(sF2, W_U, sU0)
    a(f's_cmp_lt_u32 s{sRi}, 10')
    a('s_cbranch_scc0 L_h1_t')
    bar('B1')
    a.label('L_h1_t')
    tabs(0, 14)
    n = tab2() if S_TAB2 == 1 else 0
    a(f's_waitcnt vmcnt({n})')
    stamp('tab in', 'H1')
    a(f's_cmp_lt_u32 s{sRi}, 10')
    a('s_cbranch_scc1 L_h1_u')
    bar('B1')
    a.label('L_h1_u')
    bar('BT')
    bar('B2')
    for n in range(8):
        a(f'''
        s_mov_b32 m0, {WST + n * 1024}
        s_nop 0
        global_load_lds_dwordx3 v{30 + n}, {sr(W_R)}
        s_mov_b32 m0, {WST + 8192 + n * 1024}
        s_nop 0
        global_load_lds_dwordx3 v{30 + n}, {sr(W_I)}
        ''')
    if S_TAB2 == 2:
        tab2()
    stamp('W issued', 'H1')
    bar('B3')
    a('s_waitcnt vmcnt(0)')
    stamp('W in', 'H1')
    a(f'''
    s_cmp_lt_u32 s{sRi}, 20
    s_cbranch_scc1 L_h1_end
    ''')
    bar('B3b')
    bar('B4')
    if S_EG == 3:
        egather()
    bar('B5')
    if S_EG == 3 and DIAG and not PROBE:
        a('s_waitcnt vmcnt(0)')
        stamp('EG in', 'H1')
    bar('B5b')
    bar('B6')
    if S_EG == 4:
        egather()
    bar('B7')
    a('s_waitcnt vmcnt(0)')
    a.label('L_h1_end')
    stamp('end', 'H1')
    dump_stamps('H1')
    a('s_endpgm')


prologue()
main_path()
helper0()
helper1()
body = a.finish()

hdr = open(f'cdna_kernels/{NAME}.s.ref').read().split('; Override launch')[0]
T = tables()
tab = []
flat = T.reshape(-1)
for k in range(0, flat.size, 8):
    tab.append('.long ' + ','.join('0x%08x' % v for v in flat[k:k + 8]))

launch = f'; @launch grid=(256,1,1) block=(640,1,1) lds={LDS_BYTES}'
pre_code = pre_kd = ''
if PRE:
    launch = f'; @launch kernel=pre_kernel grid=({PRE},1,1) block=(64,1,1) lds=0\n; @launch kernel={NAME}_kernel grid=(256,1,1) block=(640,1,1) lds={LDS_BYTES}'
    pre_code = '.globl pre_kernel\n.p2align 8\n.type pre_kernel,@function\npre_kernel:\n    s_endpgm\n'
    pre_kd = '''.p2align 6
.amdhsa_kernel pre_kernel
  .amdhsa_next_free_vgpr 8
  .amdhsa_next_free_sgpr 16
  .amdhsa_accum_offset 8
  .amdhsa_group_segment_fixed_size 0
  .amdhsa_kernarg_size 104
  .amdhsa_user_sgpr_count 2
  .amdhsa_user_sgpr_kernarg_segment_ptr 1
  .amdhsa_system_sgpr_workgroup_id_x 1
.end_amdhsa_kernel
'''
src = hdr + f'''{launch}
.amdgcn_target "amdgcn-amd-amdhsa--gfx950"
.text
{pre_code}.globl {NAME}_kernel
.p2align 8
.type {NAME}_kernel,@function
{NAME}_kernel:
{body}
.p2align 8
.type L_tables,@object
L_tables:
''' + '\n'.join(tab) + f'''
.size L_tables, {NTAB * 1024}
.fill (8192 - ((. - {NAME}_kernel) & 8191)) & 8191, 1, 0
L_tables_end:
.section .rodata,"a"
.p2align 6
.amdhsa_kernel {NAME}_kernel
  .amdhsa_next_free_vgpr 168
  .amdhsa_next_free_sgpr 102
  .amdhsa_accum_offset 168
  .amdhsa_group_segment_fixed_size 0
  .amdhsa_kernarg_size 104
  .amdhsa_user_sgpr_count 2
  .amdhsa_user_sgpr_kernarg_segment_ptr 1
  .amdhsa_system_sgpr_workgroup_id_x 1
.end_amdhsa_kernel
{pre_kd}'''
open(OUT, 'w').write(src)
print('wrote', OUT, 'lds', LDS_BYTES, 'lines', len(a.lines), 'nops', a.nnops)
```

```python
import sys, struct
import numpy as np
from asmdsl import Asm

NAME = 'adaLN_cond__spectral_gfnet__moe_arch_mod__prompt'
DIAG = '--diag' in sys.argv or '--dbgdiag' in sys.argv
DBGDIAG = '--dbgdiag' in sys.argv
OUT = [a for a in sys.argv[1:] if not a.startswith('--')]
OUT = OUT[0] if OUT else f'cdna_kernels/{NAME}.s'
SPIN = 60000


def opt(name, default):
    for x in sys.argv:
        if x.startswith(f'--{name}='):
            return x.split('=', 1)[1]
    return default


PROBE = opt('probe', None)
PROBEWG = int(opt('probewg', 8))
if PROBE:
    DIAG = True
OUTPOL = opt('outpol', '')
PRE = opt('pre', None)
WARMPOL = opt('warm', 'both')
S_BLOAD = int(opt('bload', 0))
S_FILL1 = int(opt('fill1', -1))
S_FILL2 = int(opt('fill2', -1))
S_WWARM = int(opt('wwarm', 1))
S_WD = int(opt('wd', 3))
WWHO = opt('wwho', 'AB')
GUPOL = opt('gupol', 'nt')
S_TAB2 = int(opt('tab2', 1))

MODA_G = 0
MODB_G = 20480
EPOCH_G = 40960
PY_G = 65536
PY_STRIDE = 2688
REC_G = 0x80000
REC_STRIDE = 8320
REC_H2 = 128
REC_BASE = 128 + 4096
T1_G = 0x400000
T2_G = 0x800000
DIAG_G = 0xC00000

NTAB = 25
TAB = 0
RED = TAB + NTAB * 1024
KEYL = RED + 2048
XB2 = KEYL + 64
XB1 = XB2 + 20480
XB3 = XB1
MODA_L = XB1 + 18560
MODB_L = MODA_L + 5120
WR_L = MODB_L + 5120
WST = WR_L + 2048
EW = WST + 16384
FW = EW + 40960
STL = FW + 20480
LDS_BYTES = STL + 256
assert LDS_BYTES <= 163840, LDS_BYTES

T_F20C, T_F20S, T_TW1, T_F32, T_F16, T_TW2, T_TW3, T_F20I = 0, 1, 2, 6, 14, 16, 18, 22


def f2u(x):
    return struct.unpack('<I', struct.pack('<f', float(x)))[0]


def bf(x):
    u = f2u(x)
    return ((u + 0x7FFF + ((u >> 16) & 1)) >> 16) & 0xFFFF


def pk(lo, hi):
    return bf(lo) | (bf(hi) << 16)


def cs(num, den):
    a = 2 * np.pi * (num % den) / den
    c, s = np.cos(a), np.sin(a)
    if abs(c) < 1e-12: c = 0.0
    if abs(s) < 1e-12: s = 0.0
    return c, s


def kaof(x):
    ka = 3 * (x >> 2) + (x & 3)
    return ka if (x & 3) < 3 and ka <= 10 else None


def tables():
    T = np.zeros((NTAB, 64, 4), np.uint32)
    for l in range(64):
        i, g = l & 15, l >> 4
        c8, s8 = [0.0] * 8, [0.0] * 8
        for j in range(5):
            if kaof(i) is not None:
                c, s = cs((4 * j + g) * kaof(i), 20)
                c8[j], s8[j] = c, -s
        for d in range(4):
            T[T_F20C, l, d] = pk(c8[2 * d], c8[2 * d + 1])
            T[T_F20S, l, d] = pk(s8[2 * d], s8[2 * d + 1])
        for t in range(2):
            for r in range(4):
                c, s = cs((8 * g + 2 * r + t) * (kaof(i) or 0), 640)
                T[T_TW1 + 2 * t, l, r] = f2u(c)
                T[T_TW1 + 2 * t + 1, l, r] = f2u(s)
                c, s = cs((2 * i + t) * (kaof(4 * g + r) or 0), 640)
                T[T_TW3 + 2 * t, l, r] = f2u(c)
                T[T_TW3 + 2 * t + 1, l, r] = f2u(s)
        for tile in range(2):
            for ks in range(2):
                for r in range(4):
                    c, s = cs((2 * i + tile) * (8 * g + 2 * r + ks), 32)
                    T[T_F32 + tile * 4 + 0 + ks, l, r] = pk(c, s)
                    T[T_F32 + tile * 4 + 2 + ks, l, r] = pk(-s, c)
        for r in range(4):
            c, s = cs(i * (4 * g + r), 16)
            T[T_F16, l, r] = pk(c, s)
            T[T_F16 + 1, l, r] = pk(-s, c)
            c, s = cs(i * (4 * g + r), 256)
            T[T_TW2, l, r] = f2u(c)
            T[T_TW2 + 1, l, r] = f2u(s)
            ka = kaof(4 * g + r)
            if ka is not None:
                a1 = 4 * (i & 3) + (i >> 2)
                c, s = cs(a1 * ka, 20)
                T[T_F20I, l, r] = pk(c, -s)
                c, s = cs((16 + (i >> 2)) * ka, 20)
                if (i & 3) == 0:
                    T[T_F20I + 1, l, r] = pk(c, -s)
                if (i & 3) == 1:
                    T[T_F20I + 2, l, r] = pk(c, -s)
    return T


def vr(a, n=1):
    return f'v{a}' if n == 1 else f'v[{a}:{a + n - 1}]'


def sr(a, n=2):
    return f's{a}' if n == 1 else f's[{a}:{a + n - 1}]'


sW, sX, sIdx, sMe, sT = 3, 4, 5, 6, 7
A_X, W_R, W_I, B_WR, W_G, W_U, W_D = 8, 10, 12, 16, 18, 20, 22
C_, W_MOD, OUTP, DBG, WS = 24, 26, 28, 30, 32
sBa, sBb, sBc = 34, 36, 38
sCnt = 40
sM1B = 41
sU0, sU1, sU2, sU3 = 42, 43, 46, 47
sM7 = 44
sRow = 48
sKey = 49
sV1, sV2 = 50, 51
sHI = 52
sCand = 53
sTag = 55
sRi = 54
sGU = 56
sXrow = 72
sTS = 74

vL, vL16, vL4, vS, vPoll = 1, 2, 3, 4, 5
vM8F, vM8I = 6, 8
vXS = 10
Ra, Rb, RD, Rc = 20, 28, 36, 52
vF32 = 60
vTW = 92
vF20 = 108
vVec = 120
vE0 = 160


a = Asm()
stamps = {}
NST = 24


def stamp(name, path='M', wait=True):
    if not DIAG:
        return
    if PROBE and (path != 'M' or not (name == 'start' or name.startswith(PROBE))):
        return
    lst = stamps.setdefault(path, [])
    if name not in lst:
        lst.append(name)
    k = lst.index(name)
    assert k < NST
    a(f's_memrealtime s[100:101]')
    a('s_waitcnt lgkmcnt(0)')
    a(f's_mov_b32 s{sTS + k}, s100')


def dump_stamps(path='M'):
    if not DIAG:
        return
    if PROBE:
        if path != 'M':
            return
        a(f'''
        s_cmp_lg_u32 s2, {PROBEWG}
        s_cbranch_scc1 L_end
        s_cmp_lg_u32 s{sW}, 0
        s_cbranch_scc1 L_end
        ''')
        if PROBE == 'fix':
            a(f's_movk_i32 s{sU0}, 6000')
        elif PROBE == 'xcc':
            a(f's_getreg_b32 s{sU0}, hwreg(HW_REG_XCC_ID)')
            a(f's_and_b32 s{sU0}, s{sU0}, 15')
            a(f's_mul_i32 s{sU0}, s{sU0}, 1000')
            a(f's_add_u32 s{sU0}, s{sU0}, 6000')
        else:
            a(f's_sub_u32 s{sU0}, s{sTS + 1}, s{sTS}')
            a(f's_lshl_b32 s{sU0}, s{sU0}, 4')
            a(f's_add_u32 s{sU0}, s{sU0}, 6000')
            a(f's_min_u32 s{sU0}, s{sU0}, 100000')
        a(f'''
        L_probe:
        s_memrealtime s[100:101]
        s_waitcnt lgkmcnt(0)
        s_sub_u32 s{sU1}, s100, s{sTS}
        s_cmp_lt_u32 s{sU1}, s{sU0}
        s_cbranch_scc1 L_probe
        ''')
        return
    if DBGDIAG:
        if path != 'M':
            return
        a('v_mov_b32 v20, 0')
        a('s_mov_b64 exec, 1')
        a(f's_not_b32 s{sU0}, s{sTS}')
        a(f'v_mov_b32 v22, s{sU0}')
        a(f'global_atomic_umax v20, v22, {sr(DBG)} offset:4 sc1')
        ks = [0] + list(range(2, len(stamps['M'])))
        for n, k in enumerate(ks[:14]):
            a(f'v_mov_b32 v{23 + n}, s{sTS + k}')
            a(f'global_atomic_umax v20, v{23 + n}, {sr(DBG)} offset:{8 + 4 * n} sc1')
        print('dbg slots:', [(2 + n, stamps['M'][k]) for n, k in enumerate(ks[:14])])
        return
    if path != 'M':
        for k in range(NST):
            a(f'v_writelane_b32 v20, s{sTS + k}, {k}')
        a(f'v_lshlrev_b32 v21, 2, v{vL}')
        a(f'v_add_u32 v21, {STL + (128 if path == "H1" else 0)}, v21')
        a('s_mov_b32 exec_hi, 0')
        a('ds_write_b32 v21, v20')
        a('s_waitcnt lgkmcnt(0)')
        return
    a(f'''
    s_lshl_b32 s{sU0}, s2, 11
    v_add_u32 v21, {STL}, v{vL4}
    ds_read_b32 v22, v21
    ''')
    base_add(sBa, WS, sU0, DIAG_G + 1024)
    a('s_waitcnt lgkmcnt(0)')
    a(f'global_store_dword v{vL4}, v22, {sr(sBa)}')
    a(f'''
    s_lshl_b32 s{sU0}, s2, 11
    s_lshl_b32 s{sU1}, s{sW}, 7
    s_add_u32 s{sU0}, s{sU0}, s{sU1}
    s_memtime s[100:101]
    ''')
    base_add(sBa, WS, sU0, DIAG_G)
    a('v_mov_b32 v20, 0')
    a('s_mov_b64 exec, 1')
    for k in range(0, NST, 2):
        a(f'v_mov_b32 v22, s{sTS + k}')
        a(f'v_mov_b32 v23, s{sTS + k + 1}')
        a(f'global_store_dwordx2 v20, v[22:23], {sr(sBa)} offset:{4 * k}')
        a('s_nop 1')
    a('s_waitcnt lgkmcnt(0)')
    a('s_sub_u32 s100, s100, s98')
    a('v_mov_b32 v22, s100')
    a(f'global_store_dword v20, v22, {sr(sBa)} offset:112')
    a('s_getreg_b32 s42, hwreg(HW_REG_XCC_ID)')
    a('s_getreg_b32 s43, hwreg(HW_REG_HW_ID)')
    a('v_mov_b32 v22, s42')
    a('v_mov_b32 v23, s43')
    a(f'global_store_dwordx2 v20, v[22:23], {sr(sBa)} offset:120')


def base_add(dst, src, off_s=None, imm=0):
    if off_s is not None:
        if imm:
            a(f's_add_u32 s{sT}, s{off_s}, {imm}')
            off_s = sT
        a(f's_add_u32 s{dst}, s{src}, s{off_s}')
    else:
        a(f's_add_u32 s{dst}, s{src}, {imm}')
    a(f's_addc_u32 s{dst + 1}, s{src + 1}, 0')


lblc = [0]


def newlabel(p):
    lblc[0] += 1
    return f'L_{p}_{lblc[0]}'


def poll(loads, regs, tmp, mask=None, empty='eq -1', between=None, younger=0, issued=False):
    L, D = newlabel('poll'), newlabel('polld')
    split = between is not None or issued
    if split:
        Cc = newlabel('pollc')
        if not issued:
            if mask is not None:
                a(f's_mov_b64 exec, {mask}')
            for ld in loads:
                a(ld)
            if mask is not None:
                a('s_mov_b64 exec, -1')
            between()
        if mask is not None:
            a(f's_mov_b64 exec, {mask}')
        a(f's_mov_b32 s{sCnt}, {SPIN}')
        a(f's_waitcnt vmcnt({younger})')
        a(f's_branch {Cc}')
    else:
        if mask is not None:
            a(f's_mov_b64 exec, {mask}')
        a(f's_mov_b32 s{sCnt}, {SPIN}')
    a.label(L)
    for ld in loads:
        a(ld)
    a('s_waitcnt vmcnt(0)')
    if split:
        a.label(Cc)
    if empty == 'tag':
        for n, r in enumerate(regs):
            a(f'v_xor_b32 v{r}, s{sTB + (n & 3)}, v{r}')
        rem = list(regs)
        for c in tmp:
            a(f'v_or3_b32 v{c}, v{rem[0]}, v{rem[1]}, v{rem[2]}')
            rem = rem[3:]
        n = 0
        while len(rem) >= 2:
            c = tmp[n % len(tmp)]
            a(f'v_or3_b32 v{c}, v{c}, v{rem[0]}, v{rem[1]}')
            rem = rem[2:]
            n += 1
        t = tmp[0]
        rem = rem + list(tmp[1:])
        while rem:
            if len(rem) >= 2:
                a(f'v_or3_b32 v{t}, v{t}, v{rem[0]}, v{rem[1]}')
                rem = rem[2:]
            else:
                a(f'v_or_b32 v{t}, v{t}, v{rem[0]}')
                rem = rem[1:]
        a(f'v_and_b32 v{t}, 0xff, v{t}')
        empty = 'ne 0'
    elif empty == 'word':
        if len(regs) == 1:
            t = regs[0]
            empty = f'ne s{sTag}'
        else:
            assert len(regs) == 2
            t = tmp[0]
            a(f'v_xor_b32 v{t}, v{regs[0]}, v{regs[1]}')
            a(f'v_xor_b32 v{tmp[1]}, s{sTag}, v{regs[0]}')
            a(f'v_or_b32 v{t}, v{t}, v{tmp[1]}')
            empty = 'ne 0'
    elif empty == 'never':
        empty = 'ne 0'
    elif len(regs) == 1:
        t = regs[0]
    else:
        rem = list(regs)
        outs = []
        k = 0
        while len(rem) >= 3 and k < len(tmp):
            a(f'v_max3_u32 v{tmp[k]}, v{rem[0]}, v{rem[1]}, v{rem[2]}')
            outs.append(tmp[k])
            rem = rem[3:]
            k += 1
        rem = outs[1:] + rem
        t = outs[0] if outs else None
        if t is None:
            t = tmp[0]
            a(f'v_max_u32 v{t}, v{rem[0]}, v{rem[1]}')
            rem = rem[2:]
        while rem:
            if len(rem) >= 2:
                a(f'v_max3_u32 v{t}, v{t}, v{rem[0]}, v{rem[1]}')
                rem = rem[2:]
            else:
                a(f'v_max_u32 v{t}, v{t}, v{rem[0]}')
                rem = rem[1:]
    a(f'v_cmpx_{empty.split()[0]}_u32 vcc, {empty.split()[1]}, v{t}')
    a(f's_cbranch_execz {D}')
    a(f's_sub_u32 s{sCnt}, s{sCnt}, 1')
    a(f's_cbranch_scc0 {L}')
    a.label(D)
    a('s_mov_b64 exec, -1')


def epoch_load():
    a(f's_load_dword s{sTag}, {sr(WS)}, {EPOCH_G}')


def epoch_tag():
    a(f'''
    s_and_b32 s{sTag}, s{sTag}, 0x7f7f7f7f
    s_add_u32 s{sTag}, s{sTag}, 0x01010101
    s_or_b32 s{sTag}, s{sTag}, 0x80808080
    ''')


sTB = 68


def tag_bytes():
    for k in range(4):
        a(f's_bfe_u32 s{sTB + k}, s{sTag}, {hex(0x80000 | (8 * k))}')


def dpp(op, r, ctrl, rm='0xf'):
    a(f'{op}_dpp v{r}, v{r}, v{r} {ctrl} row_mask:{rm} bank_mask:0xf')


def wave_sum(regs, dst_s, op='v_add_f32'):
    for c in ('row_ror:8', 'row_ror:4', 'row_ror:2', 'row_ror:1'):
        for r in regs:
            dpp(op, r, c)
    for r in regs:
        dpp(op, r, 'row_bcast:15', '0xa')
    for r in regs:
        dpp(op, r, 'row_bcast:31', '0xc')
    for r, s in zip(regs, dst_s):
        a(f'v_readlane_b32 s{s}, v{r}, 63')


def rbf(dst, src):
    a(f'v_cvt_pk_bf16_f32 v{dst}, {src}, {src}')
    a(f'v_and_b32 v{dst}, s{sHI}, v{dst}')


def unpack(dlo, dhi, src):
    a(f'v_lshlrev_b32 v{dlo}, 16, v{src}')
    a(f'v_and_b32 v{dhi}, s{sHI}, v{src}')


def mfma32(d, x, y, c=None):
    a(f'v_mfma_f32_16x16x32_bf16 {vr(d, 4)}, {vr(x, 4)}, {vr(y, 4)}, {vr(c, 4) if c is not None else 0}')


def mfma16(d, x, y):
    a(f'v_mfma_f32_16x16x16_bf16 {vr(d, 4)}, {vr(x, 2)}, {vr(y, 2)}, 0')


def cmul(tr, ti, re, im, c, s, sign):
    nr = 'neg_lo:[1,0,0] neg_hi:[1,0,0]'
    for h in (0, 2):
        a(f'v_pk_mul_f32 {vr(tr + h, 2)}, {vr(re + h, 2)}, {vr(c + h, 2)}')
    for h in (0, 2):
        a(f'v_pk_mul_f32 {vr(ti + h, 2)}, {vr(im + h, 2)}, {vr(c + h, 2)}')
    for h in (0, 2):
        a(f'v_pk_fma_f32 {vr(tr + h, 2)}, {vr(im + h, 2)}, {vr(s + h, 2)}, {vr(tr + h, 2)} {nr if sign > 0 else ""}')
    for h in (0, 2):
        a(f'v_pk_fma_f32 {vr(ti + h, 2)}, {vr(re + h, 2)}, {vr(s + h, 2)}, {vr(ti + h, 2)} {nr if sign < 0 else ""}')


def pack4(d, lo, hi, step=1, n=4):
    for r in range(n):
        a(f'v_cvt_pk_bf16_f32 v{d + r * step}, v{lo + r}, v{hi + r}')


def tab_read(dst, q):
    a(f'ds_read_b128 {vr(dst, 4)}, v{vL16} offset:{TAB + q * 1024}')


def tm(j, t):
    return 4 * t + j if j < 4 else 8 + t


def read_tmajor(dst, vaddr, off):
    o = off // 256
    assert off % 256 == 0 and o + 6 < 256
    for t in range(2):
        a(f'ds_read2st64_b32 {vr(dst + 4 * t, 2)}, v{vaddr + t} offset0:{o} offset1:{o + 2}')
        a(f'ds_read2st64_b32 {vr(dst + 4 * t + 2, 2)}, v{vaddr + t} offset0:{o + 4} offset1:{o + 6}')
    a(f'ds_read_b64 {vr(dst + 8, 2)}, v{vaddr} offset:{off + 2048}')


def silu(dst, src, tmp):
    for d, s, t in zip(dst, src, tmp):
        a(f'v_mul_f32 v{t}, 0xbfb8aa3b, v{s}')
    for t in tmp:
        a(f'v_exp_f32 v{t}, v{t}')
    for t in tmp:
        a(f'v_add_f32 v{t}, 1.0, v{t}')
    for t in tmp:
        a(f'v_rcp_f32 v{t}, v{t}')
    for d, s, t in zip(dst, src, tmp):
        a(f'v_mul_f32 v{d}, v{s}, v{t}')


def swap_reduce8(acc):
    for k in range(4):
        a(f'v_permlane32_swap_b32 v{acc + k}, v{acc + k + 4}')
    a(f'v_pk_add_f32 {vr(acc, 2)}, {vr(acc, 2)}, {vr(acc + 4, 2)}')
    a(f'v_pk_add_f32 {vr(acc + 2, 2)}, {vr(acc + 2, 2)}, {vr(acc + 6, 2)}')
    for k in range(2):
        a(f'v_permlane16_swap_b32 v{acc + k}, v{acc + k + 2}')
    a(f'v_pk_add_f32 {vr(acc, 2)}, {vr(acc, 2)}, {vr(acc + 2, 2)}')


BC0 = 'op_sel:[0,0,0] op_sel_hi:[1,0,1]'
BC1 = 'op_sel:[0,1,0] op_sel_hi:[1,1,1]'


def prologue():
    a(f'''
    s_cmp_ge_u32 s2, 256
    s_cbranch_scc1 L_end
    ''')
    if DIAG:
        for k in range(NST):
            a(f's_mov_b32 s{sTS + k}, 0')
        a('s_memtime s[98:99]')
        for p in ('M', 'H0', 'H1'):
            stamps[p] = ['start']
        stamp('start')
    a(f'''
    s_load_dwordx16 s[8:23], s[0:1], 0
    s_load_dwordx8 s[24:31], s[0:1], 64
    s_load_dwordx2 s[32:33], s[0:1], 96
    v_lshrrev_b32 v{vL}, 6, v0
    s_and_b32 s{sX}, s2, 7
    v_readfirstlane_b32 s{sW}, v{vL}
    v_and_b32 v{vL}, 63, v0
    s_lshr_b32 s{sIdx}, s2, 3
    s_lshl_b32 s{sMe}, s{sX}, 5
    s_add_u32 s{sMe}, s{sMe}, s{sIdx}
    s_add_u32 s{sRi}, s{sIdx}, 31
    s_and_b32 s{sRi}, s{sRi}, 31
    v_lshlrev_b32 v{vL16}, 4, v{vL}
    s_mov_b32 s{sHI}, 0xffff0000
    s_cmp_lg_u32 s{sRi}, 30
    s_cbranch_scc1 L_nopf
    s_cmp_ge_u32 s{sW}, (L_tables_end-{NAME}_kernel)/8192
    s_cbranch_scc1 L_nopf
    s_getpc_b64 {sr(sBa)}
    L_pc0:
    s_sub_u32 s{sBa}, s{sBa}, L_pc0-{NAME}_kernel
    s_subb_u32 s{sBa + 1}, s{sBa + 1}, 0
    v_lshlrev_b32 v20, 7, v0
    global_load_dword v21, v20, {sr(sBa)}
    L_nopf:
    v_lshlrev_b32 v{vL4}, 2, v{vL}
    s_cmp_eq_u32 s{sW}, 9
    s_cbranch_scc1 L_h1
    s_cmp_eq_u32 s{sW}, 8
    s_cbranch_scc1 L_h0
    s_lshl_b32 s{sRow}, s{sW}, 8
    s_add_u32 s{sKey}, s{sRow}, s{sMe}
    s_mul_i32 s{sRow}, s{sKey}, 1280
    s_cmp_ge_u32 s{sRi}, {20 if S_BLOAD == 0 else 10}
    s_cbranch_scc1 L_role_e
    s_cmp_ge_u32 s{sRi}, 10
    s_cbranch_scc1 L_role_b
    ''')


def xloads():
    for j in range(5):
        a(f'global_load_dword v{vE0 + j}, v{vL4}, {sr(sXrow)} offset:{256 * j} nt')


def gemv_regs(role):
    nj = 3 if role == 'A' else 5
    return (nj,) + ((20, 40, 48, 60, 56, 57) if role == 'A' else (80, 100, 48, 60, 56, 57))


def gemv_issue(role):
    nj, vw, vc, acc, tmp, vo, voc = gemv_regs(role)
    if role == 'A':
        a(f'''
        s_mul_i32 s{sU2}, s{sX}, 10
        s_add_u32 s{sU2}, s{sU2}, s{sRi}          ; blk
        s_lshr_b32 s{sU0}, s{sU2}, 2
        s_and_b32 s{sU1}, s{sU2}, 3
        s_mul_i32 s{sU1}, s{sU1}, 160
        s_mul_i32 s{sT}, s{sW}, 20
        s_add_u32 s{sU1}, s{sU1}, s{sT}
        ''')
        for k in range(4):
            a(f'v_mov_b32 v{vw + 8 + k}, 0')
        a(f'v_mov_b32 v{vc + 2}, 0')
    else:
        a(f'''
        s_mul_i32 s{sU2}, s{sX}, 10
        s_add_u32 s{sU2}, s{sU2}, s{sRi}          ; blk + 10
        s_lshr_b32 s{sU0}, s{sU2}, 1
        s_add_u32 s{sU0}, s{sU0}, 15
        s_and_b32 s{sU1}, s{sU2}, 1
        s_mul_i32 s{sU1}, s{sU1}, 320
        s_mul_i32 s{sT}, s{sW}, 40
        s_add_u32 s{sU1}, s{sU1}, s{sT}
        ''')
    a(f'''
    v_lshrrev_b32 v{voc}, 3, v{vL}
    v_and_b32 v{vo}, 0x70, v{vL16}
    v_mul_u32_u24 v{tmp}, 7680, v{voc}
    v_lshlrev_b32 v{voc}, 1, v{voc}
    v_add_u32 v{vo}, v{vo}, v{tmp}
    s_mul_i32 s{sU3}, s{sU1}, 7680
    s_lshl_b32 s{sT}, s{sU0}, 7
    s_add_u32 s{sU3}, s{sU3}, s{sT}
    s_lshl_b32 s{sU1}, s{sU1}, 1
    s_waitcnt lgkmcnt(0)
    ''')
    stamp('kernarg')
    if role == 'A' or S_BLOAD == 0:
        epoch_load()
    base_add(sBa, C_, sU1)
    base_add(sBb, W_MOD, sU3)
    if role == 'A' or S_BLOAD == 0:
        base_add(sXrow, A_X, sRow)
    if role == 'B' and S_BLOAD == 0:
        xloads()
    for j in range(nj):
        if role == 'A' and j == 2:
            a('s_mov_b32 exec_hi, 0')
        a(f'global_load_ushort v{vc + j}, v{voc}, {sr(sBa)} offset:{16 * j}')
    a('s_mov_b64 exec, -1')
    for j in range(nj):
        if role == 'A' and j == 2:
            a('s_mov_b32 exec_hi, 0')
        a(f'global_load_dwordx4 {vr(vw + 4 * j, 4)}, v{vo}, {sr(sBb)} nt')
        if j + 1 < nj:
            a(f'v_add_u32 v{vo}, {8 * 7680}, v{vo}')
    a('s_mov_b64 exec, -1')
    if role == 'A':
        xloads()


def gemv_compute(role):
    nj, vw, vc, acc, tmp, vo, voc = gemv_regs(role)
    after = 5 if role == 'A' else 0
    a(f's_waitcnt vmcnt({nj + after})')
    stamp('c in')
    cs_ = [vc + j for j in range(nj)]
    for c in cs_:
        a(f'v_lshlrev_b32 v{c}, 16, v{c}')
    silu(cs_, cs_, [tmp + j for j in range(nj)])
    sc = [70 + 2 * j for j in range(nj)]
    for c, s in zip(cs_, sc):
        a(f'v_cvt_pk_bf16_f32 v{s}, v{c}, v{c}')
    for s in sc:
        a(f'v_and_b32 v{s}, s{sHI}, v{s}')
    for j in range(nj):
        a(f's_waitcnt vmcnt({nj - 1 - j + after})')
        for k in range(4):
            unpack(tmp + 2 * k, tmp + 2 * k + 1, vw + 4 * j + k)
        for k in range(4):
            if j == 0:
                a(f'v_pk_mul_f32 {vr(acc + 2 * k, 2)}, {vr(tmp + 2 * k, 2)}, {vr(sc[j], 2)} op_sel:[0,0] op_sel_hi:[1,0]')
            else:
                a(f'v_pk_fma_f32 {vr(acc + 2 * k, 2)}, {vr(tmp + 2 * k, 2)}, {vr(sc[j], 2)}, {vr(acc + 2 * k, 2)} {BC0}')
    stamp('w in')
    a(f'''
    v_and_b32 v{vo}, 7, v{vL}
    v_lshlrev_b32 v{vo}, 8, v{vo}
    v_and_b32 v{voc}, 48, v{vL}
    v_lshl_add_u32 v{vo}, v{voc}, 2, v{vo}
    s_lshl_b32 s{sT}, s{sW}, 2
    s_add_u32 s{sT}, s{sT}, {RED}
    v_add_u32 v{vo}, s{sT}, v{vo}
    ''')
    swap_reduce8(acc)
    for c in ('row_ror:8',):
        dpp('v_add_f32', acc, c)
        dpp('v_add_f32', acc + 1, c)
    a(f'''
    s_mov_b32 exec_lo, 0x00ff00ff
    s_mov_b32 exec_hi, 0x00ff00ff
    ds_write2_b32 v{vo}, v{acc}, v{acc + 1} offset0:0 offset1:8
    s_mov_b64 exec, -1
    s_waitcnt lgkmcnt(0)
    ''')


def role_e_start():
    a('s_waitcnt lgkmcnt(0)')
    epoch_load()
    base_add(sXrow, A_X, sRow)
    xloads()
    a('s_waitcnt vmcnt(0)')
    a('s_branch L_ln1')


def m8(dst, inverse):
    t0, t1, t2, t3 = 20, 21, 22, 23
    a(f'v_lshrrev_b32 v{t0}, 4, v{vL}           ; g')
    a(f's_cmp_lt_u32 s{sW}, 4')
    a(f's_cselect_b32 s{sT}, 1, 7')
    if not inverse:
        a(f'''
        v_bfe_u32 v{t1}, v{vL}, 2, 2
        v_bfe_u32 v{t2}, v{vL}, 1, 1
        v_lshl_add_u32 v{t1}, v{t2}, 2, v{t1}
        v_mul_u32_u24 v{t1}, s{sT}, v{t1}
        v_and_b32 v{t1}, 7, v{t1}
        v_lshlrev_b32 v{t0}, 9, v{t0}
        v_add_u32 v{t0}, s{sMe}, v{t0}
        v_mul_u32_u24 v{t2}, v{t0}, v{t1}
        v_lshl_add_u32 v{t3}, v{t1}, 8, v{t2}
        ''')
    else:
        a(f'''
        v_bfe_u32 v{t1}, v{vL}, 1, 3
        v_lshlrev_b32 v{t1}, 8, v{t1}
        v_add_u32 v{t1}, s{sMe}, v{t1}
        v_mul_u32_u24 v{t0}, s{sT}, v{t0}
        v_and_b32 v{t0}, 7, v{t0}
        v_mul_u32_u24 v{t2}, v{t0}, v{t1}
        v_xor_b32 v{t0}, 4, v{t0}
        v_mul_u32_u24 v{t3}, v{t0}, v{t1}
        v_sub_u32 v{t2}, 0, v{t2}
        v_sub_u32 v{t3}, 0, v{t3}
        ''')
    a(f'''
    v_and_b32 v{t0}, 1, v{vL}
    v_lshl_add_u32 v{t2}, v{t0}, 9, v{t2}
    v_lshl_add_u32 v{t3}, v{t0}, 9, v{t3}
    v_and_b32 v{t2}, 0x7ff, v{t2}
    v_and_b32 v{t3}, 0x7ff, v{t3}
    v_cvt_f32_u32 v{t2}, v{t2}
    v_cvt_f32_u32 v{t3}, v{t3}
    v_mul_f32 v{t2}, 0x3a000000, v{t2}
    v_mul_f32 v{t3}, 0x3a000000, v{t3}
    v_cos_f32 v{t0}, v{t2}
    v_sin_f32 v{t2}, v{t2}
    v_cos_f32 v{t1}, v{t3}
    v_sin_f32 v{t3}, v{t3}
    v_cvt_pk_bf16_f32 v{dst}, v{t0}, v{t2}
    v_cvt_pk_bf16_f32 v{dst + 1}, v{t1}, v{t3}
    ''')


INV640 = hex(f2u(1.0 / 640))
EPS = hex(f2u(1e-5))


def rstd_chain(var, out):
    rbf(out, f'v{var}')
    a(f'v_add_f32 v{out}, {EPS}, v{out}')
    rbf(out, f'v{out}')
    a(f'v_sqrt_f32 v{out}, v{out}')
    rbf(out, f'v{out}')
    a(f'v_rcp_f32 v{out}, v{out}')


def sum10(dst2, x):
    a(f'v_pk_add_f32 {vr(dst2, 2)}, {vr(x, 2)}, {vr(x + 2, 2)}')
    for h in (4, 6, 8):
        a(f'v_pk_add_f32 {vr(dst2, 2)}, {vr(dst2, 2)}, {vr(x + h, 2)}')
    a(f'v_add_f32 v{dst2}, v{dst2}, v{dst2 + 1}')


def dot10(dst2, x, y):
    a(f'v_pk_mul_f32 {vr(dst2, 2)}, {vr(x, 2)}, {vr(y, 2)}')
    for h in (2, 4, 6, 8):
        a(f'v_pk_fma_f32 {vr(dst2, 2)}, {vr(x + h, 2)}, {vr(y + h, 2)}, {vr(dst2, 2)}')
    a(f'v_add_f32 v{dst2}, v{dst2}, v{dst2 + 1}')


late = []


def bar(n):
    a(f's_barrier                                   ; {n}')


def main_path():
    vZ, vSA, vCA = vVec, vVec + 10, vVec + 20
    gemv_issue('A')
    gemv_compute('A')
    a('s_barrier                                   ; B1')
    a('s_waitcnt vmcnt(0)')
    a('s_branch L_ln1')
    a.label('L_role_e')
    role_e_start()
    a.label('L_role_b')
    if S_BLOAD == 0:
        gemv_issue('B')
        a('s_waitcnt vmcnt(10)')
    a.label('L_ln1')
    stamp('x in')
    for j in range(5):
        unpack(vXS + tm(j, 0), vXS + tm(j, 1), vE0 + j)
    sum10(24, vXS)
    wave_sum([24], [sU0])
    a(f'v_mov_b32 v24, {INV640}')
    a(f'v_mul_f32 v26, s{sU0}, v24                ; mean')
    rbf(28, 'v26')
    a(f'v_readfirstlane_b32 s{sM1B}, v28')
    for h in range(0, 10, 2):
        a(f'v_pk_add_f32 {vr(vXS + h, 2)}, {vr(vXS + h, 2)}, v[28:29] op_sel:[0,0] op_sel_hi:[1,0] neg_lo:[0,1] neg_hi:[0,1]')
    dot10(30, vXS, vXS)
    wave_sum([30], [sU0])
    a(f'''
    v_sub_f32 v26, v26, v28
    v_mul_f32 v26, v26, v26
    v_fma_f32 v26, s{sU0}, v24, -v26
    ''')
    rstd_chain(26, 27)
    for j in range(5):
        for t in range(2):
            a(f'v_mul_f32 v{vZ + 2 * j + t}, v27, v{vXS + tm(j, t)}')
    a('s_waitcnt lgkmcnt(0)')
    epoch_tag()
    tag_bytes()
    m8(vM8F, False)
    m8(vM8I, True)
    a(f'''
    v_bfe_u32 v20, v{vL}, 2, 2
    v_and_b32 v21, 48, v{vL16}                    ; part*16
    v_and_b32 v22, 48, v{vL}
    v_lshl_add_u32 v20, v22, 1, v20               ; 32g + kbs
    v_lshl_add_u32 v{vS}, v20, 6, v21
    v_lshl_add_u32 v{vPoll}, v20, 14, v21
    v_mul_u32_u24 v20, 80, v20
    s_mul_i32 s{sT}, s{sW}, 320
    s_add_u32 s{sT}, s{sT}, {XB2}
    v_add3_u32 v{vE0 + 4}, v20, v21, s{sT}        ; staging address
    v_lshlrev_b32 v{vE0}, 3, v{vL}                ; 8*lane
    v_mov_b32 v23, 0
    v_mov_b32 v27, 0
    ''')
    a(f'''
    v_and_b32 v20, 15, v{vL}
    v_mul_u32_u24 v20, 264, v20
    v_and_b32 v21, 48, v{vL}
    v_lshl_add_u32 v{vE0 + 1}, v21, 2, v20
    s_lshr_b32 s{sU0}, s{sW}, 1
    s_mul_i32 s{sU0}, s{sU0}, 4224
    s_and_b32 s{sT}, s{sW}, 1
    s_lshl_b32 s{sT}, s{sT}, 2
    s_add_u32 s{sU0}, s{sU0}, s{sT}
    s_add_u32 s{sU0}, s{sU0}, {XB1}
    v_add_u32 v{vE0 + 1}, s{sU0}, v{vE0 + 1}
    ''')
    a(f'''
    v_lshrrev_b32 v20, 4, v{vL}
    v_mul_u32_u24 v20, 4224, v20
    v_and_b32 v21, 3, v{vL}
    v_mul_u32_u24 v21, 1056, v21
    v_and_b32 v22, 12, v{vL}
    v_lshl_add_u32 v20, v22, 1, v20
    s_lshl_b32 s{sU0}, s{sW}, 5
    s_add_u32 s{sU0}, s{sU0}, {XB1}
    v_add3_u32 v{vE0 + 2}, v20, v21, s{sU0}
    ''')
    a(f'''
    s_cmp_lt_u32 s{sRi}, 10
    s_cbranch_scc1 L_tabs
    s_cmp_lt_u32 s{sRi}, 20
    s_cbranch_scc0 L_b1
    ''')
    if S_BLOAD:
        gemv_issue('B')
    gemv_compute('B')
    a.label('L_b1')
    bar('B1')
    a.label('L_tabs')
    a('s_barrier                                   ; BT')
    stamp('poll start')
    tab_read(vF20, T_F20C)
    tab_read(vF20 + 4, T_F20S)
    for q in range(4):
        tab_read(vTW + 4 * q, T_TW1 + q)
    for q in range(8):
        tab_read(vF32 + 4 * q, T_F32 + q)
    a(f'''
    s_sub_u32 s{sT}, s{sW}, 1
    s_cmp_lt_u32 s{sT}, 5
    s_cbranch_scc0 L_b2
    v_subrev_u32 v28, 64, v0                      ; u
    v_lshrrev_b32 v29, 4, v28
    v_lshlrev_b32 v29, 10, v29
    v_and_b32 v30, 0xf0, v{vL16}
    v_add_u32 v29, v29, v30
    v_cmp_le_u32 vcc, 160, v28
    v_cndmask_b32 v30, 0, 1.0, vcc
    v_lshlrev_b32 v28, 4, v28
    v_add_u32 v28, {MODA_L}, v28
    ''')
    poll([f'global_load_dwordx4 {vr(36 + 4 * p, 4)}, v29, {sr(WS)} offset:{256 * p} sc1' for p in range(4)],
         list(range(36, 52)), [52, 53, 54], empty='tag')
    a(f'''
    v_pk_add_f32 v[36:37], v[36:37], v[40:41]
    v_pk_add_f32 v[38:39], v[38:39], v[42:43]
    v_pk_add_f32 v[44:45], v[44:45], v[48:49]
    v_pk_add_f32 v[46:47], v[46:47], v[50:51]
    v_pk_add_f32 v[36:37], v[36:37], v[44:45]
    v_pk_add_f32 v[38:39], v[38:39], v[46:47]
    v_cvt_pk_bf16_f32 v40, v36, v37
    v_cvt_pk_bf16_f32 v41, v38, v39
    ''')
    unpack(36, 37, 40)
    unpack(38, 39, 41)
    a(f'''
    v_pk_add_f32 v[36:37], v[36:37], v[30:31] op_sel:[0,0] op_sel_hi:[1,0]
    v_pk_add_f32 v[38:39], v[38:39], v[30:31] op_sel:[0,0] op_sel_hi:[1,0]
    v_cvt_pk_bf16_f32 v40, v36, v37
    v_cvt_pk_bf16_f32 v41, v38, v39
    ''')
    unpack(36, 37, 40)
    unpack(38, 39, 41)
    a(f'ds_write_b128 v28, v[36:39]')
    a.label('L_b2')
    stamp('poll end')
    a('s_waitcnt lgkmcnt(0)')
    a('s_barrier                                   ; B2')
    stamp('B2 done (mod ready)')
    o = MODA_L // 512
    assert MODA_L % 8 == 0
    a(f'v_add_u32 v28, {MODA_L}, v{vE0}')
    a(f'ds_read2st64_b64 {vr(vSA, 4)}, v28 offset0:0 offset1:1')
    a(f'ds_read2st64_b64 {vr(vCA, 4)}, v28 offset0:5 offset1:6')
    a(f'ds_read2st64_b64 {vr(vSA + 4, 4)}, v28 offset0:2 offset1:3')
    a(f'ds_read2st64_b64 {vr(vCA + 4, 4)}, v28 offset0:7 offset1:8')
    a(f'ds_read_b64 {vr(vSA + 8, 2)}, v28 offset:2048')
    a(f'ds_read_b64 {vr(vCA + 8, 2)}, v28 offset:{2560 + 2048}')
    for j in range(5):
        if j in (0, 2, 4):
            a(f's_waitcnt lgkmcnt({4 - j})')
        a(f'v_pk_fma_f32 {vr(vZ + 2 * j, 2)}, {vr(vZ + 2 * j, 2)}, {vr(vCA + 2 * j, 2)}, {vr(vSA + 2 * j, 2)}')
    for t in range(2):
        a(f'v_cvt_pk_bf16_f32 v{Ra + 4 * t}, v{vZ + t}, v{vZ + 2 + t}')
        a(f'v_cvt_pk_bf16_f32 v{Ra + 4 * t + 1}, v{vZ + 4 + t}, v{vZ + 6 + t}')
        a(f'v_cvt_pk_bf16_f32 v{Ra + 4 * t + 2}, v{vZ + 8 + t}, 0')
    for t in range(2):
        mfma32(RD + 8 * t, Ra + 4 * t, vF20)
        mfma32(RD + 8 * t + 4, Ra + 4 * t, vF20 + 4)
    for t, tmp in ((0, Rb), (1, Rc)):
        cmul(tmp, tmp + 4, RD + 8 * t, RD + 8 * t + 4, vTW + 8 * t, vTW + 8 * t + 4, -1)
        pack4(Ra + 4 * t, tmp, tmp + 4)
    for ks in range(2):
        for u in range(2):
            for e in range(2):
                d = RD + 8 * u + 4 * e
                mfma32(d, vF32 + 16 * u + 8 * e + 4 * ks, Ra + 4 * ks, d if ks else None)
    for u in range(2):
        pack4(Rb + u, RD + 8 * u, RD + 8 * u + 4, step=2)
    for r in range(4):
        a(f'ds_write2_b32 v{vE0 + 1}, v{Rb + 2 * r}, v{Rb + 2 * r + 1} offset0:{4 * r} offset1:{4 * r + 2}')
    a(f'''
    s_lshl_b32 s{sU0}, s{sMe}, 14
    s_lshl_b32 s{sU1}, s{sW}, 8
    s_add_u32 s{sU0}, s{sU0}, s{sU1}
    v_mov_b32 v{Rc + 3}, s{sTag}
    v_mov_b32 v{Rc + 7}, s{sTag}
    ''')
    base_add(sBa, WS, sU0, T1_G)
    base_add(sBb, WS, sU0, T1_G + 8192)
    a('s_waitcnt lgkmcnt(0)')
    bar('B3')
    for n in range(3):
        a(f'ds_read_b64 {vr(Ra + 2 * n, 2)}, v{vE0 + 2} offset:{264 * n}')
    for n in range(3):
        a(f's_waitcnt lgkmcnt({2 - n})')
        mfma16(RD + 4 * n, vM8F, Ra + 2 * n)
    for j in range(2):
        for n in range(3):
            a(f'v_cvt_pk_bf16_f32 v{Rc + 4 * j + n}, v{RD + 4 * n + 2 * j}, v{RD + 4 * n + 2 * j + 1}')
        a(f'global_store_dwordx4 v{vS}, {vr(Rc + 4 * j, 4)}, {sr(sBb if j else sBa)} sc1')
    stamp('T1 stored')
    vWr = vVec
    for k in range(16):
        a(f'v_mov_b32 v{vWr + k}, 0')
    SC = 2.0 / (2048 * 640)
    sKa = sM7
    a(f'''
    v_and_b32 v36, 15, v{vL}
    v_and_b32 v37, 48, v{vL}
    v_lshl_add_u32 v36, v37, 2, v36               ; 64g + i
    v_mul_u32_u24 v{vE0 + 3}, 80, v36
    s_and_b32 s{sU1}, s{sW}, 3
    s_lshr_b32 s{sU2}, s{sW}, 2
    s_lshl_b32 s{sU2}, s{sU2}, 1
    s_mul_i32 s{sKa}, s{sU1}, 3
    s_add_u32 s{sKa}, s{sKa}, s{sU2}
    s_lshl_b32 s{sU1}, s{sU1}, 2
    s_add_u32 s{sU1}, s{sU1}, s{sU2}
    s_lshl_b32 s{sU1}, s{sU1}, 2
    s_add_u32 s{sU1}, s{sU1}, {XB2}
    v_add_u32 v{vE0 + 3}, s{sU1}, v{vE0 + 3}
    v_lshlrev_b32 v36, 5, v36
    s_lshl_b32 s{sU1}, s{sMe}, 6
    s_lshl_b32 s{sT}, s{sW}, 16
    s_add_u32 s{sU1}, s{sU1}, s{sT}
    ''')
    base_add(sBa, WS, sU1, T1_G)
    base_add(sBb, WS, sU1, T1_G + 128 * 16384)

    def w_setup():
        for q in range(2):
            tab_read(vTW + 4 * q, T_F16 + q)
            tab_read(vTW + 8 + 4 * q, T_TW2 + q)
        a(f's_and_b32 s{sU2}, s{sX}, 1                    ; q & 1')
        for s in range(2):
            ka, pos, gam = sBc, sBc + 1, sU3
            if s == 1:
                a(f's_cmp_ge_u32 s{sW}, 4')
                a('s_cbranch_scc1 L_wdone')
            a(f'''
            s_add_u32 s{ka}, s{sKa}, {s}
            s_min_u32 s{pos}, s{ka}, 10
            s_sub_u32 s{sT}, 10, s{pos}
            s_cmp_ge_u32 s{sIdx}, 16
            s_cselect_b32 s{pos}, s{sT}, s{pos}
            s_add_u32 s{pos}, s{pos}, s{sU2}
            s_lshl_b32 s{sT}, s{pos}, 1
            s_cmp_ge_u32 s{pos}, 6
            s_cselect_b32 s{pos}, 4, 0
            s_add_u32 s{pos}, s{pos}, s{sT}
            s_add_u32 s{pos}, s{pos}, {WST}
            v_add_u32 v37, s{pos}, v36
            ''')
            for arr in range(2):
                for r in range(4):
                    a(f'ds_read_u16_d16_hi v{vWr + 8 * s + 4 * arr + r}, v37 offset:{arr * 8192 + r * 512}')
            a(f's_mov_b32 s{gam}, {hex(f2u(SC))}')
            if s == 0:
                a(f'''
                s_and_b32 s{sT}, s{sIdx}, 15
                s_or_b32 s{sT}, s{sT}, s{ka}
                s_cmp_eq_u32 s{sT}, 0
                s_cselect_b32 s{gam}, {hex(f2u(SC / 2))}, s{gam}
                s_cmp_gt_u32 s{sIdx}, 16
                s_cselect_b32 s{sT}, s{ka}, 1
                s_cmp_eq_u32 s{sT}, 0
                s_cselect_b32 s{gam}, 0, s{gam}
                ''')
            else:
                a(f'''
                s_cmp_ge_u32 s{sIdx}, 16
                s_cselect_b32 s{sT}, s{ka}, 1
                s_cmp_eq_u32 s{sT}, 10
                s_cselect_b32 s{gam}, 0, s{gam}
                ''')
            a(f'''
            s_xor_b32 s{sT}, s{gam}, 0x80000000
            s_cmp_ge_u32 s{sIdx}, 16
            s_cselect_b32 s{sT}, s{sT}, s{gam}
            s_waitcnt lgkmcnt(0)
            ''')
            for r in range(4):
                a(f'v_mul_f32 v{vWr + 8 * s + r}, s{gam}, v{vWr + 8 * s + r}')
            for r in range(4):
                a(f'v_mul_f32 v{vWr + 8 * s + 4 + r}, s{sT}, v{vWr + 8 * s + 4 + r}')
        a.label('L_wdone')

    tpoll = [f'global_load_dwordx4 {vr(Ra, 4)}, v{vPoll}, {sr(sBa)} sc1', f'global_load_dwordx4 {vr(Ra + 4, 4)}, v{vPoll}, {sr(sBb)} sc1']
    a('s_waitcnt vmcnt(0)')
    bar('B3b')
    stamp('B3b done')
    poll(tpoll, [Ra + 3, Ra + 7], [Rb, Rb + 1], empty='word', between=w_setup)
    a(f'ds_write_b128 v{vE0 + 4}, {vr(Ra, 4)}')
    a(f'ds_write_b128 v{vE0 + 4}, {vr(Ra + 4, 4)} offset:10240')
    base_add(sBa, WS, sU0, T2_G)
    base_add(sBb, WS, sU0, T2_G + 8192)
    a(f's_cmp_ge_u32 s{sW}, 4')
    a('s_waitcnt lgkmcnt(0)')
    bar('B4')
    stamp('B4 done (T1 in)')
    a('s_cbranch_scc1 L_p2_one')
    Fre, Fim, Tc, Ts = vTW, vTW + 4, vTW + 8, vTW + 12
    tmps = (Rb, Rc)

    def p2(ns):
        if ns == 2:
            for j in range(4):
                a(f'ds_read_b64 {vr(Rb + 2 * j, 2)}, v{vE0 + 3} offset:{1280 * j}')
            for h in range(2):
                a(f's_waitcnt lgkmcnt({2 - 2 * h})')
                for s in range(2):
                    a(f'v_pk_mov_b32 {vr(Ra + 4 * s + 2 * h, 2)}, {vr(Rb + 4 * h, 2)}, {vr(Rb + 4 * h + 2, 2)} op_sel:[{s},{s}]')
        else:
            a(f'ds_read2st64_b32 {vr(Ra, 2)}, v{vE0 + 3} offset0:0 offset1:5')
            a(f'ds_read2st64_b32 {vr(Ra + 2, 2)}, v{vE0 + 3} offset0:10 offset1:15')
            a('s_waitcnt lgkmcnt(0)')
        for s in range(ns):
            mfma32(RD + 8 * s, Ra + 4 * s, Fre)
            mfma32(RD + 8 * s + 4, Ra + 4 * s, Fim)
        for s in range(ns):
            cmul(tmps[s], tmps[s] + 4, RD + 8 * s, RD + 8 * s + 4, Tc, Ts, -1)
            pack4(Ra + 4 * s, tmps[s], tmps[s] + 4)
            mfma32(RD + 8 * s, Fre, Ra + 4 * s)
            mfma32(RD + 8 * s + 4, Fim, Ra + 4 * s)
        for s in range(ns):
            cmul(tmps[s], tmps[s] + 4, RD + 8 * s, RD + 8 * s + 4, vWr + 8 * s, vWr + 8 * s + 4, +1)
            pack4(Ra + 4 * s, tmps[s] + 4, tmps[s])
            mfma32(RD + 8 * s, Ra + 4 * s, Fim)
            mfma32(RD + 8 * s + 4, Ra + 4 * s, Fre)
        for s in range(ns):
            cmul(tmps[s], tmps[s] + 4, RD + 8 * s, RD + 8 * s + 4, Tc, Ts, +1)
            pack4(Ra + 4 * s, tmps[s] + 4, tmps[s])
            mfma32(RD + 8 * s, Fim, Ra + 4 * s)
            mfma32(RD + 8 * s + 4, Fre, Ra + 4 * s)
        for s in range(ns):
            pack4(Rb + s, RD + 8 * s, RD + 8 * s + 4, step=ns)
        if ns == 2:
            for r in range(4):
                a(f'ds_write_b64 v{vE0 + 3}, {vr(Rb + 2 * r, 2)} offset:{1280 * r}')
        else:
            a(f'ds_write2st64_b32 v{vE0 + 3}, v{Rb}, v{Rb + 1} offset0:0 offset1:5')
            a(f'ds_write2st64_b32 v{vE0 + 3}, v{Rb + 2}, v{Rb + 3} offset0:10 offset1:15')
        a('s_waitcnt lgkmcnt(0)')
    p2(2)
    a.label('L_b5')
    bar('B5')
    a(f'ds_read_b128 {vr(Rb, 4)}, v{vE0 + 4}')
    a(f'ds_read_b128 {vr(Rb + 4, 4)}, v{vE0 + 4} offset:10240')
    a('s_waitcnt lgkmcnt(1)')
    a(f'global_store_dwordx4 v{vS}, {vr(Rb, 4)}, {sr(sBa)} sc1')
    a('s_waitcnt lgkmcnt(0)')
    a(f'global_store_dwordx4 v{vS}, {vr(Rb + 4, 4)}, {sr(sBb)} sc1')
    stamp('T2 stored')
    late.append(lambda: (a.label('L_p2_one'), a(f's_cmp_eq_u32 s{sW}, 7'), a('s_cbranch_scc1 L_b5'), p2(1), a('s_branch L_b5')))
    vGA, vVV, vGC, vGS = vVec, vVec + 10, vVec + 20, vVec + 30
    for q in range(4):
        tab_read(vTW + 4 * q, T_TW3 + q)
    for q in range(3):
        tab_read(vF20 + 4 * q, T_F20I + q)
    a(f'''
    v_add_u32 v{vE0 + 5}, {MODB_L}, v{vL4}
    v_lshrrev_b32 v36, 4, v{vL}
    v_mul_u32_u24 v36, 4640, v36
    v_and_b32 v37, 3, v{vL}
    v_mul_u32_u24 v37, 576, v37
    v_and_b32 v38, 4, v{vL}
    v_lshl_add_u32 v36, v38, 2, v36
    v_bfe_u32 v38, v{vL}, 3, 1
    v_lshl_add_u32 v37, v38, 2, v37
    s_lshr_b32 s{sU2}, s{sW}, 1
    s_lshl_b32 s{sU2}, s{sU2}, 5
    s_and_b32 s{sT}, s{sW}, 1
    s_lshl_b32 s{sT}, s{sT}, 3
    s_add_u32 s{sU2}, s{sU2}, s{sT}
    s_add_u32 s{sU2}, s{sU2}, {XB3}
    v_add3_u32 v{vE0 + 1}, v36, v37, s{sU2}
    v_add_u32 v{vE0 + 2}, 2320, v{vE0 + 1}
    v_and_b32 v36, 15, v{vL}
    v_mul_u32_u24 v36, 144, v36
    v_and_b32 v37, 48, v{vL}
    v_lshl_add_u32 v36, v37, 1, v36
    s_mul_i32 s{sU2}, s{sW}, 2320
    s_add_u32 s{sU2}, s{sU2}, {XB3}
    v_add_u32 v{vE0 + 3}, s{sU2}, v36
    ''')
    base_add(sBa, WS, sU1, T2_G)
    base_add(sBb, WS, sU1, T2_G + 128 * 16384)
    base_add(sXrow, OUTP, sRow)

    def p3_setup():
        raw = Rb
        for k in range(0, 24, 2):
            a(f'ds_read2st64_b32 {vr(raw + k, 2)}, v{vE0 + 5} offset0:{k} offset1:{k + 1}')
        a(f'ds_read_b32 v{raw + 24}, v{vE0 + 5} offset:{24 * 256}')
        a('s_waitcnt lgkmcnt(0)')
        for vec, dst in ((0, vGA), (1, vGS), (2, vGC), (4, vVV)):
            for j in range(5):
                unpack(dst + tm(j, 0), dst + tm(j, 1), raw + 5 * vec + j)
        GB = Rb
        for j in range(5):
            unpack(GB + tm(j, 0), GB + tm(j, 1), raw + 15 + j)
        t0, t1, t2 = Rc + 2, Rc + 4, Rc + 6
        dot10(t0, vVV, vGS)
        for h in range(0, 10, 2):
            a(f'v_pk_mul_f32 {vr(vVV + h, 2)}, {vr(vVV + h, 2)}, {vr(vGC + h, 2)}')
        sum10(t1, vVV)
        a(f'v_mov_b32 v{t2}, s{sM1B}')
        for h in range(0, 10, 2):
            a(f'v_pk_mul_f32 {vr(vGC + h, 2)}, {vr(vGC + h, 2)}, {vr(GB + h, 2)}')
            a(f'v_pk_fma_f32 {vr(vGS + h, 2)}, {vr(vGS + h, 2)}, {vr(GB + h, 2)}, {vr(t2, 2)} op_sel:[0,0,0] op_sel_hi:[1,1,0]')
        wave_sum([t1, t0], [sV1, sV2])

    a('s_waitcnt vmcnt(0) lgkmcnt(0)')
    bar('B5b')
    stamp('B5b done')
    poll(tpoll, [Ra + 3, Ra + 7], [Rb, Rb + 1], empty='word', between=p3_setup)
    stamp('T2 in')
    for n in range(3):
        a(f'v_pk_mov_b32 {vr(Rb + 2 * n, 2)}, {vr(Ra + (n & 2), 2)}, {vr(Ra + 4 + (n & 2), 2)} op_sel:[{n & 1},{n & 1}]')
    for n in range(3):
        mfma16(RD + 4 * n, vM8I, Rb + 2 * n)
    for jj in range(2):
        for n in range(3):
            a(f'v_cvt_pk_bf16_f32 v{Ra + 4 * jj + n}, v{RD + 4 * n + 2 * jj + 1}, v{RD + 4 * n + 2 * jj}')
        a(f'ds_write2_b32 v{vE0 + 1 + jj}, v{Ra + 4 * jj}, v{Ra + 4 * jj + 1} offset0:0 offset1:36')
        a(f'ds_write_b32 v{vE0 + 1 + jj}, v{Ra + 4 * jj + 2} offset:288')
    a('s_waitcnt lgkmcnt(0)')
    a('s_barrier                                   ; B6')
    a(f'ds_read_b128 {vr(Rb, 4)}, v{vE0 + 3}')
    a(f'ds_read_b128 {vr(Rb + 4, 4)}, v{vE0 + 3} offset:16')
    for ks in range(2):
        a(f's_waitcnt lgkmcnt({1 - ks})')
        for t in range(2):
            for e in range(2):
                d = RD + 8 * t + 4 * e
                mfma32(d, Rb + 4 * ks, vF32 + 16 * t + 8 * (1 - e) + 4 * ks, d if ks else None)
    for t, tmp in ((0, Ra), (1, Rc)):
        cmul(tmp, tmp + 4, RD + 8 * t, RD + 8 * t + 4, vTW + 8 * t, vTW + 8 * t + 4, +1)
        pack4(Rb + 4 * t, tmp, tmp + 4, n=3)
        a(f'v_mov_b32 v{Rb + 4 * t + 3}, 0')
    Y = RD
    mfma32(Y, vF20, Rb)
    mfma32(Y + 8, vF20 + 4, Rb)
    mfma32(Y + 4, vF20, Rb + 4)
    mfma32(Y + 8, vF20 + 8, Rb + 4, Y + 8)
    for h in range(0, 10, 2):
        a(f'v_pk_fma_f32 {vr(Y + h, 2)}, {vr(Y + h, 2)}, {vr(vGA + h, 2)}, {vr(vXS + h, 2)}')
    s1, s2, s3 = Ra, Ra + 2, Ra + 4
    a(f'v_pk_add_f32 {vr(s1, 2)}, {vr(Y, 2)}, {vr(Y + 2, 2)}')
    a(f'v_pk_mul_f32 {vr(s2, 2)}, {vr(Y, 2)}, {vr(Y, 2)}')
    a(f'v_pk_mul_f32 {vr(s3, 2)}, {vr(Y, 2)}, {vr(vVV, 2)}')
    for h in (2, 4, 6, 8):
        if h > 2:
            a(f'v_pk_add_f32 {vr(s1, 2)}, {vr(s1, 2)}, {vr(Y + h, 2)}')
        a(f'v_pk_fma_f32 {vr(s2, 2)}, {vr(Y + h, 2)}, {vr(Y + h, 2)}, {vr(s2, 2)}')
        a(f'v_pk_fma_f32 {vr(s3, 2)}, {vr(Y + h, 2)}, {vr(vVV + h, 2)}, {vr(s3, 2)}')
    for s in (s1, s2, s3):
        a(f'v_add_f32 v{s}, v{s}, v{s + 1}')
    wave_sum([s1, s2, s3], [sU0, sU2, sU3])
    k0 = Rc
    a(f'''
    v_mov_b32 v{Ra}, {INV640}
    v_mul_f32 v{Ra + 1}, s{sU0}, v{Ra}            ; mu
    v_mul_f32 v{Ra + 2}, v{Ra + 1}, v{Ra + 1}
    v_add_f32 v{Ra + 3}, s{sM1B}, v{Ra + 1}
    v_fma_f32 v{Ra + 2}, s{sU2}, v{Ra}, -v{Ra + 2} ; var
    ''')
    rbf(Ra + 3, f'v{Ra + 3}')
    rstd_chain(Ra + 2, k0)
    a(f'''
    v_sub_f32 v{Ra + 3}, s{sM1B}, v{Ra + 3}       ; -delta
    v_mov_b32 v{Ra + 4}, s{sU3}
    v_fma_f32 v{Ra + 4}, v{Ra + 3}, s{sV1}, v{Ra + 4}
    v_fma_f32 v{Ra + 4}, v{Ra + 4}, v{k0}, s{sV2} ; r
    v_mul_f32 v{k0 + 1}, v{Ra + 3}, v{k0}
    v_ashrrev_i32 v{Ra + 5}, 31, v{Ra + 4}
    v_or_b32 v{Ra + 5}, 0x80000000, v{Ra + 5}
    v_xor_b32 v{Ra + 4}, v{Ra + 4}, v{Ra + 5}
    v_and_b32 v{Ra + 4}, 0xfffff800, v{Ra + 4}
    v_or_b32 v{Ra + 4}, s{sKey}, v{Ra + 4}
    v_mov_b32 v{Ra + 7}, {KEYL}
    v_mov_b32 v{Ra + 5}, s{sTag}
    s_mov_b64 exec, 1
    ds_max_u32 v{Ra + 7}, v{Ra + 4}
    s_mov_b64 exec, -1
    v_readfirstlane_b32 s{sKey}, v{Ra + 4}
    ''')
    ZN = vGA
    for h in range(0, 10, 2):
        a(f'v_pk_fma_f32 {vr(ZN + h, 2)}, {vr(Y + h, 2)}, {vr(k0, 2)}, {vr(k0, 2)} op_sel:[0,0,1] op_sel_hi:[1,0,1]')
        a(f'v_pk_add_f32 {vr(Y + h, 2)}, {vr(Y + h, 2)}, {vr(vGS + h, 2)}')
    for h in range(0, 10, 2):
        a(f'v_pk_fma_f32 {vr(Y + h, 2)}, {vr(ZN + h, 2)}, {vr(vGC + h, 2)}, {vr(Y + h, 2)}')
    vO = vXS
    for j in range(5):
        a(f'v_cvt_pk_bf16_f32 v{vO + j}, v{Y + tm(j, 0)}, v{Y + tm(j, 1)}')
    a(f's_mul_i32 s{sU0}, s{sMe}, {REC_STRIDE}')
    base_add(sBa, WS, sU0, REC_G)
    a('s_waitcnt lgkmcnt(0)')
    a('s_barrier                                   ; B7')
    a(f'''
    ds_read_b32 v{Ra + 6}, v{Ra + 7}
    s_waitcnt lgkmcnt(0)
    v_readfirstlane_b32 s{sU0}, v{Ra + 6}
    s_cmp_eq_u32 s{sU0}, s{sKey}
    s_cselect_b32 s{sCand}, 1, 0
    s_cbranch_scc1 L_cand
    ''')
    for j in range(5):
        a(f'global_store_dword v{vL4}, v{vO + j}, {sr(sXrow)} offset:{256 * j} {OUTPOL}')
    a('s_branch L_keys')
    a.label('L_cand')
    a(f'''
    s_mov_b64 exec, 1
    global_store_dwordx2 v{vL4}, {vr(Ra + 4, 2)}, {sr(sBa)} sc1
    s_mov_b64 exec, -1
    ''')
    raw, SB, CB, H, Bq = 60, 70, 80, 92, 108
    for k in range(0, 10, 2):
        a(f'ds_read2st64_b32 {vr(raw + k, 2)}, v{vE0 + 5} offset0:{5 + k} offset1:{6 + k}')
    a(f'v_add_u32 v{Ra}, {REC_BASE}, v{vL16}')
    for qd in range(4):
        a(f'v_mov_b32 v{H + 4 * qd + 3}, s{sTag}')
    a('s_waitcnt lgkmcnt(0)')
    for j in range(5):
        unpack(SB + tm(j, 0), SB + tm(j, 1), raw + j)
        unpack(CB + tm(j, 0), CB + tm(j, 1), raw + 5 + j)
    for t in range(2):
        for j in range(5):
            k = tm(j, t)
            a(f'v_fma_f32 v{H + 8 * t + j + (j >= 3)}, v{ZN + k}, v{CB + k}, v{SB + k}')
        for qd in range(2):
            a(f'global_store_dwordx4 v{vL16}, {vr(H + 8 * t + 4 * qd, 4)}, {sr(sBa)} offset:{REC_H2 + 2048 * t + 1024 * qd} sc1')
    Bq = 60
    for t in range(2):
        for j in range(5):
            a(f'v_mov_b32 v{Bq + 8 * t + j + (j >= 3)}, v{Y + tm(j, t)}')
        for qd in range(2):
            a(f'v_mov_b32 v{Bq + 8 * t + 4 * qd + 3}, s{sTag}')
            a(f'global_store_dwordx4 v{Ra}, {vr(Bq + 8 * t + 4 * qd, 4)}, {sr(sBa)} offset:{2048 * t + 1024 * qd} sc1')
    a.label('L_keys')
    stamp('key out')
    vEW, vFW = 60, 100
    a(f'''
    s_cmp_lt_u32 s{sRi}, 20
    s_cbranch_scc1 L_no_ew
    s_mul_i32 s{sT}, s{sW}, 5120
    s_add_u32 s{sT}, s{sT}, {EW}
    v_add_u32 v{Rb}, s{sT}, v{vL16}
    s_lshl_b32 s{sT}, s{sW}, 8
    s_add_u32 s{sT}, s{sT}, {FW}
    v_add_u32 v{Rb + 1}, s{sT}, v{vL4}
    ''')
    st = 132
    for j in range(5):
        a(f'ds_read_b128 {vr(st + 4 * j, 4)}, v{Rb} offset:{1024 * j}')
    a('s_waitcnt lgkmcnt(0)')
    for k in range(20):
        unpack(vEW + 2 * k, vEW + 2 * k + 1, st + k)
    a(f's_cmp_ge_u32 s{sW}, 5')
    a('s_cbranch_scc1 L_no_ew')
    for u in range(0, 16, 2):
        a(f'ds_read2st64_b32 {vr(st + u, 2)}, v{Rb + 1} offset0:{5 * u} offset1:{5 * u + 5}')
    a('s_waitcnt lgkmcnt(0)')
    for k in range(16):
        unpack(vFW + 2 * k, vFW + 2 * k + 1, st + k)
    a.label('L_no_ew')
    a(f'''
    v_mov_b32 v{Rb + 2}, {KEYL + 4}
    s_cmp_ge_u32 s{sW}, 4
    s_cbranch_scc1 L_b8
    v_mul_u32_u24 v{Rb}, {REC_STRIDE}, v0
    v_add_u32 v{Rb}, {REC_G}, v{Rb}
    ''')
    poll([f'global_load_dwordx2 {vr(Rb + 4, 2)}, v{Rb}, {sr(WS)} sc1'], [Rb + 5], [], empty='word')
    for c in ('row_ror:8', 'row_ror:4', 'row_ror:2', 'row_ror:1'):
        dpp('v_max_u32', Rb + 4, c)
    a(f'''
    s_mov_b32 exec_lo, 0x00010001
    s_mov_b32 exec_hi, 0x00010001
    ds_max_u32 v{Rb + 2}, v{Rb + 4}
    s_mov_b64 exec, -1
    s_waitcnt lgkmcnt(0)
    ''')
    a.label('L_b8')
    a('s_barrier                                   ; B8')
    a(f'''
    ds_read_b32 v{Rb + 3}, v{Rb + 2}
    s_waitcnt lgkmcnt(0)
    v_readfirstlane_b32 s{sU0}, v{Rb + 3}
    s_and_b32 s{sU1}, s{sU0}, 255
    s_mul_i32 s{sU1}, s{sU1}, {REC_STRIDE}
    ''')
    base_add(sBa, WS, sU1, REC_G)
    stamp('B8 done (winner)')
    a(f'''
    s_cmp_ge_u32 s{sRi}, 20
    s_cbranch_scc1 L_do_e
    ''')
    def deferred(lbl):
        a(f'''
        s_cmp_eq_u32 s{sCand}, 0
        s_cbranch_scc1 {lbl}
        s_cmp_eq_u32 s{sU0}, s{sKey}
        s_cbranch_scc1 {lbl}
        ''')
        for j in range(5):
            a(f'global_store_dword v{vL4}, v{vO + j}, {sr(sXrow)} offset:{256 * j} {OUTPOL}')
        a.label(lbl)
    deferred('L_def1')
    a(f'''
    s_cmp_ge_u32 s{sRi}, 10
    s_cbranch_scc1 L_fin
    s_cmp_lg_u32 s{sW}, 0
    s_cbranch_scc1 L_fin
    s_mul_i32 s{sU2}, s{sX}, 10
    s_add_u32 s{sU2}, s{sU2}, s{sRi}              ; f
    ''')
    a(f'''
    v_and_b32 v20, 1, v{vL}
    v_lshrrev_b32 v21, 4, v{vL}
    v_lshl_add_u32 v20, v20, 2, v21
    s_lshl_b32 s{sT}, s{sU2}, 3
    v_add_u32 v20, s{sT}, v20                      ; d
    v_lshlrev_b32 v21, 1, v20
    v_add_u32 v21, {MODB_L + 3840}, v21
    v_mov_b32 v22, 0
    ds_read_u16_d16_hi v22, v21                    ; gb[d]
    s_lshr_b32 s{sU3}, s{sU2}, 4                   ; j
    s_cmp_ge_u32 s{sU3}, 3
    s_cselect_b32 s{sT}, 3, 0
    s_sub_u32 s{sU3}, s{sU3}, s{sT}
    s_mul_i32 s{sT}, s{sT}, 342
    s_and_b32 s{sT}, s{sT}, 1024
    s_add_u32 s{sT}, s{sT}, {REC_BASE}
    v_bfe_u32 v24, v20, 1, 6                       ; lane'
    v_and_b32 v25, 1, v20                          ; t
    v_lshlrev_b32 v26, 11, v25
    v_lshl_add_u32 v26, v24, 4, v26
    v_add_u32 v26, s{sT}, v26
    ''')
    poll([f'global_load_dwordx4 v[32:35], v26, {sr(sBa)} sc1'], [35], [], empty='word')
    a(f'''
    s_cmp_eq_u32 s{sU3}, 1
    s_cselect_b64 vcc, -1, 0
    v_cndmask_b32 v27, v32, v33, vcc
    s_cmp_eq_u32 s{sU3}, 2
    s_cselect_b64 vcc, -1, 0
    v_cndmask_b32 v27, v27, v34, vcc
    ''')
    a(f'''
    s_and_b32 s{sU1}, s{sU0}, 0xfffff800
    s_or_b32 s{sU1}, s{sU1}, 0x400
    s_xor_b32 s{sU3}, s{sU1}, 0x80000000
    s_not_b32 s{sT}, s{sU1}
    s_cmp_lt_i32 s{sU1}, 0
    s_cselect_b32 s{sU1}, s{sU3}, s{sT}
    v_mov_b32 v28, s{sU1}
    ''')
    rbf(28, 'v28')
    a(f'''
    v_mul_f32 v28, 0xbfb8aa3b, v28
    v_exp_f32 v28, v28
    v_add_f32 v28, 1.0, v28
    v_rcp_f32 v28, v28
    ''')
    rbf(28, 'v28')
    a(f'''
    s_and_b32 s{sU1}, s{sU0}, 0x7ff
    s_mul_i32 s{sU1}, s{sU1}, 1280
    v_lshlrev_b32 v20, 1, v20
    v_lshrrev_b32 v29, 1, v{vL}
    v_mul_u32_u24 v29, {PY_STRIDE}, v29
    v_and_b32 v30, 16, v{vL16}
    v_add_u32 v29, v29, v30
    v_add_u32 v30, {32 * PY_STRIDE}, v29
    v_add_u32 v31, {64 * PY_STRIDE}, v29
    s_lshl_b32 s{sU2}, s{sU2}, 5
    ''')
    base_add(sXrow, OUTP, sU1)
    base_add(sBb, WS, sU2, PY_G)
    a('s_waitcnt lgkmcnt(0)')
    poll([f'global_load_dwordx4 {vr(36 + 4 * n, 4)}, v{29 + n}, {sr(sBb)} sc1' for n in range(3)],
         list(range(36, 48)), [48, 49], empty='tag')
    a(f'''
    v_pk_add_f32 v[36:37], v[36:37], v[40:41]
    v_pk_add_f32 v[38:39], v[38:39], v[42:43]
    v_pk_add_f32 v[36:37], v[36:37], v[44:45]
    v_pk_add_f32 v[38:39], v[38:39], v[46:47]
    v_permlane32_swap_b32 v36, v38
    v_permlane32_swap_b32 v37, v39
    v_pk_add_f32 v[36:37], v[36:37], v[38:39]
    v_permlane16_swap_b32 v36, v37
    v_add_f32 v36, v36, v37
    ''')
    for c in ('row_ror:8', 'row_ror:4', 'row_ror:2'):
        dpp('v_add_f32', 36, c)
    rbf(36, 'v36')
    a(f'''
    v_mul_f32 v36, v36, v28
    v_fma_f32 v36, v36, v22, v27
    v_cvt_pk_bf16_f32 v36, v36, v36
    s_mov_b32 exec_lo, 0x00030003
    s_mov_b32 exec_hi, 0x00030003
    global_store_short v20, v36, {sr(sXrow)} sc1
    s_mov_b64 exec, -1
    s_branch L_fin
    ''')
    a.label('L_do_e')
    a(f'''
    v_bfe_u32 v30, v0, 2, 6                        ; lane' = (t'>>1)>>1
    v_bfe_u32 v31, v0, 1, 1                        ; t
    v_lshlrev_b32 v28, 4, v30
    v_lshl_add_u32 v28, v31, 11, v28
    ''')
    poll([f'global_load_dwordx4 v[20:23], v28, {sr(sBa)} offset:{REC_H2} sc1',
          f'global_load_dwordx4 v[24:27], v28, {sr(sBa)} offset:{REC_H2 + 1024} sc1'], [23, 27], [30, 31], empty='word')
    acc = 36
    for j in range(5):
        for k in range(4):
            w_ = vr(vEW + 8 * j + 2 * k, 2)
            xr = 20 + j + (j >= 3)
            x_ = vr(xr & ~1, 2)
            if j == 0:
                a(f'v_pk_mul_f32 {vr(acc + 2 * k, 2)}, {w_}, {x_} op_sel:[0,0] op_sel_hi:[1,0]')
            else:
                a(f'v_pk_fma_f32 {vr(acc + 2 * k, 2)}, {w_}, {x_}, {vr(acc + 2 * k, 2)} {BC1 if xr & 1 else BC0}')
    a(f'''
    v_and_b32 v28, 1, v{vL}
    v_lshlrev_b32 v28, 7, v28
    v_and_b32 v29, 48, v{vL}
    v_lshl_add_u32 v28, v29, 1, v28
    s_lshr_b32 s{sU1}, s{sW}, 2
    s_lshl_b32 s{sU1}, s{sU1}, 8
    s_and_b32 s{sT}, s{sW}, 3
    s_lshl_b32 s{sT}, s{sT}, 2
    s_add_u32 s{sU1}, s{sU1}, s{sT}
    s_add_u32 s{sU1}, s{sU1}, {RED}
    v_add_u32 v28, s{sU1}, v28
    v_and_b32 v29, 0xf0, v{vL16}
    v_and_b32 v30, 16, v{vL16}
    v_lshrrev_b32 v30, v30, s{sTag}
    v_bfe_u32 v31, v30, 8, 8
    v_and_b32 v30, 0xff, v30
    v_mov_b32 v32, 0xffffff00
    ''')
    swap_reduce8(acc)
    for c in ('row_ror:8', 'row_ror:4', 'row_ror:2'):
        dpp('v_add_f32', acc, c)
        dpp('v_add_f32', acc + 1, c)
    a(f'''
    s_mov_b32 exec_lo, 0x00030003
    s_mov_b32 exec_hi, 0x00030003
    ds_write2_b32 v28, v{acc}, v{acc + 1} offset0:0 offset1:4
    s_mov_b64 exec, -1
    s_mul_i32 s{sU1}, s{sX}, 12
    s_add_u32 s{sU1}, s{sU1}, s{sRi}
    s_mul_i32 s{sU1}, s{sU1}, {PY_STRIDE}
    s_lshl_b32 s{sT}, s{sW}, 9
    s_add_u32 s{sU1}, s{sU1}, s{sT}
    ''')
    base_add(sBb, WS, sU1, PY_G - 20 * PY_STRIDE)
    a(f'''
    s_waitcnt lgkmcnt(0)
    s_barrier                                   ; B9
    s_cmp_ge_u32 s{sW}, 5
    s_cbranch_scc1 L_e_done
    ds_read_b128 v[20:23], v29 offset:{RED}
    ds_read_b128 v[24:27], v29 offset:{RED + 256}
    s_waitcnt lgkmcnt(0)
    v_pk_add_f32 v[20:21], v[20:21], v[22:23]
    v_pk_add_f32 v[24:25], v[24:25], v[26:27]
    v_add_f32 v20, v20, v21
    v_add_f32 v24, v24, v25
    v_cvt_pk_bf16_f32 v24, v20, v24
    ''')
    unpack(20, 24, 24)
    silu([20], [20], [21])
    rbf(20, 'v20')
    a('v_mul_f32 v20, v20, v24')
    rbf(20, 'v20')
    for u in range(16):
        a(f'v_readlane_b32 s{sGU + u}, v20, {u}')
    for u in range(16):
        w_ = vr(vFW + 2 * u, 2)
        g_ = sr(sGU + (u & ~1))
        d_ = vr(36 + 2 * (u & 1), 2)
        if u < 2:
            a(f'v_pk_mul_f32 {d_}, {w_}, {g_} op_sel:[0,{u & 1}] op_sel_hi:[1,{u & 1}]')
        else:
            a(f'v_pk_fma_f32 {d_}, {w_}, {g_}, {d_} {BC1 if u & 1 else BC0}')
    a('v_pk_add_f32 v[36:37], v[36:37], v[38:39]')
    a('v_and_or_b32 v36, v36, v32, v30')
    a('v_and_or_b32 v37, v37, v32, v31')
    a(f'global_store_dwordx2 v{vE0}, v[36:37], {sr(sBb)} sc1')
    a.label('L_e_done')
    deferred('L_def2')
    a.label('L_fin')
    stamp('end')
    dump_stamps()
    a.label('L_end')
    a('s_endpgm')
    for f in late:
        f()


def fill(base, n_full, voff=vL16, tmp=24):
    cur = voff
    for n in range(n_full):
        if n and n % 4 == 0:
            a(f'v_add_u32 v{tmp}, {1024 * n}, v{voff}')
            cur = tmp
        a(f'global_store_dwordx4 v{cur}, v[20:23], {sr(base)} offset:{1024 * (n % 4)} sc1')


def warm_loads(specs):
    for d, vo, b, imm in specs:
        a(f'global_load_dword v{d}, v{vo}, {sr(b)} offset:{imm} {"" if WARMPOL == "plain" else "nt"}')
    return len(specs)


def retouch(specs):
    if WARMPOL == 'both':
        a('s_waitcnt vmcnt(0)')
        for d, vo, b, imm in specs:
            a(f'global_load_dword v{d}, v{vo}, {sr(b)} offset:{imm} sc1')


sF1, sF2, sF3, sF4, sPb, sGw = 56, 58, 60, 62, 64, 66


NWW = 3 if WWHO == 'AB' else 5
WW = [(160 + n, 150 + n, sGw, 0) for n in range(NWW)]


def act_wd():
    for n in range(20):
        if n % 4 == 0:
            a(f's_mov_b32 m0, {FW + n * 1024}')
            a(f'v_add_u32 v149, {1024 * n}, v{vL16}')
        a(f'global_load_lds_dwordx4 v149, {sr(sGw)} offset:{1024 * (n % 4)} nt')
    return 20


def slot_loads(role, slot):
    n, rt = 0, []
    if role in WWHO and S_WWARM == slot:
        n += warm_loads(WW)
        rt += WW
    if role == 'E' and S_WD == slot:
        n += act_wd()
    return n, rt


def slot_fills(role, slot):
    n = 0
    if S_FILL1 == slot:
        fill(sF1, 16)
        n += 16
    if S_FILL2 == slot:
        fill(sF2, 16)
        n += 16
    return n


def publish():
    a(f'''
    ds_read_b128 v[40:43], v28 offset:{RED}
    ds_read_b128 v[44:47], v28 offset:{RED + 16}
    s_waitcnt lgkmcnt(0)
    v_pk_add_f32 v[40:41], v[40:41], v[42:43]
    v_pk_add_f32 v[44:45], v[44:45], v[46:47]
    v_pk_add_f32 v[40:41], v[40:41], v[44:45]
    v_add_f32 v40, v40, v41
    v_and_or_b32 v40, v40, v33, v34
    global_store_dword v{vL4}, v40, {sr(sPb)} sc1
    ''')
    stamp('published', 'H0')


def helper0():
    a.label('L_h0')
    for k in range(4):
        a(f'v_mov_b32 v{20 + k}, 0')
    a(f'''
    v_mov_b32 v28, {KEYL}
    ds_write_b64 v28, v[20:21]
    s_lshl_b32 s{sU0}, s{sMe}, 14
    s_mul_i32 s{sU2}, s{sX}, 10
    s_add_u32 s{sU2}, s{sU2}, s{sRi}
    s_lshl_b32 s{sU2}, s{sU2}, 8
    s_cmp_lt_u32 s{sRi}, 10
    s_cselect_b32 s{sU1}, 0, {MODB_G - 2560}
    s_add_u32 s{sU2}, s{sU2}, s{sU1}
    s_waitcnt lgkmcnt(0)
    ''')
    stamp('kernarg', 'H0')
    epoch_load()
    base_add(sF1, WS, sU0, T1_G)
    base_add(sF2, WS, sU0, T2_G)
    base_add(sPb, WS, sU2)
    a(f'''
    v_lshrrev_b32 v24, 4, v{vL}
    v_lshlrev_b32 v24, 9, v24
    v_and_b32 v25, 0xf0, v{vL16}
    v_add_u32 v24, v24, v25
    v_add_u32 v120, {MODB_G}, v24
    v_add_u32 v121, {MODB_G + 4096}, v24
    v_add_u32 v122, {MODB_G + 8192}, v24
    v_add_u32 v123, {MODB_G + 12288}, v24
    v_add_u32 v124, {MODB_G + 16384}, v24
    v_lshlrev_b32 v28, 5, v{vL}
    s_cmp_lt_u32 s{sRi}, 20
    s_cbranch_scc0 L_h0_E
    ''')
    per = 10 if WWHO == 'AB' else 5
    a(f'''
    s_cmp_lt_u32 s{sRi}, {per}
    s_cselect_b32 s{sGw}, s{W_R}, s{W_I}
    s_cselect_b32 s{sGw + 1}, s{W_R + 1}, s{W_I + 1}
    s_cselect_b32 s{sU1}, 0, {per}
    s_sub_u32 s{sU3}, s{sRi}, s{sU1}
    s_mul_i32 s{sU3}, s{sU3}, {154 if per == 10 else 308}
    s_add_u32 s{sBa}, s{sU3}, {153 if per == 10 else 307}
    s_min_u32 s{sBa}, s{sBa}, 1535
    s_mul_i32 s{sU1}, s{sX}, 642
    s_movk_i32 s{sU2}, 0x2aab
    s_movk_i32 s{sT}, 5136
    ''')
    for n in range(NWW):
        a(f'''
        v_add_u32 v40, s{sU3}, v{vL}
        v_add_u32 v40, {64 * n}, v40
        v_min_u32 v40, s{sBa}, v40
        v_mul_u32_u24 v41, s{sU2}, v40
        v_lshrrev_b32 v41, 16, v41
        v_mul_u32_u24 v42, 6, v41
        v_sub_u32 v42, v40, v42
        v_lshlrev_b32 v42, 7, v42
        v_min_u32 v42, 638, v42
        v_add_u32 v42, s{sU1}, v42
        v_mad_u32_u24 v42, v41, s{sT}, v42
        v_and_b32 v{150 + n}, -4, v42
        ''')
    a(f's_cmp_lt_u32 s{sRi}, 10')
    a('s_cbranch_scc0 L_h0_B')
    modb = [f'global_load_dwordx4 {vr(40 + 8 * n + 4 * h, 4)}, v{120 + n // 2}, {sr(WS)} offset:{2048 * (n % 2) + 256 * h} sc1'
            for n in range(10) for h in range(2)]
    for role in 'ABE':
        if role != 'A':
            a.label(f'L_h0_{role}')
        if role == 'E':
            a(f'''
            s_mul_i32 s{sU1}, s{sX}, 12
            s_add_u32 s{sU1}, s{sU1}, s{sRi}
            s_sub_u32 s{sU1}, s{sU1}, 20
            s_mul_i32 s{sU1}, s{sU1}, 20480
            ''')
            base_add(sGw, W_D, sU1)
        rts = []
        if role != 'A':
            rts = slot_loads(role, 0)[1]
            slot_fills(role, 0)
        a('s_waitcnt lgkmcnt(0)')
        epoch_tag()
        tag_bytes()
        a(f'''
        v_mov_b32 v27, s{sTag}
        v_lshlrev_b32 v34, 3, v{vL}
        v_and_b32 v34, 24, v34
        v_bfe_u32 v34, v27, v34, 8
        v_mov_b32 v33, 0xffffff00
        ''')
        bar('B1')
        if role == 'A':
            publish()
            rts += slot_loads(role, 0)[1]
            slot_fills(role, 0)
        rts += slot_loads(role, 1)[1]
        slot_fills(role, 1)
        bar('BT')
        if role == 'B':
            publish()
        if rts:
            retouch(rts)
        stamp('w0 done', 'H0')
        bar('B2')
        a('s_waitcnt vmcnt(0)')
        slot_fills(role, 2)
        rts = slot_loads(role, 2)[1]
        assert S_FILL1 < 2
        bar('B3')
        if rts:
            retouch(rts)
        bar('B3b')
        bar('B4')
        a('s_waitcnt vmcnt(0)')
        for ld in modb:
            a(ld)
        k, rts = slot_loads(role, 3)
        bar('B5')
        a(f's_waitcnt vmcnt({k})')
        if role != 'E':
            a('s_branch L_h0_f')
    a.label('L_h0_f')
    a(f'v_lshlrev_b32 v28, 3, v{vL}')
    a(f'v_add_u32 v28, {MODB_L}, v28')
    poll(modb, list(range(40, 120)), [126, 127, 128], empty='tag', issued=True, younger=63)
    a(f'''
    v_mov_b32 v31, 1.0
    v_cmp_gt_u32 vcc, 32, v{vL}
    v_cndmask_b32 v32, 0, 1.0, vcc
    ''')
    for n in range(10):
        b = 40 + 8 * n
        a(f'v_pk_add_f32 {vr(b, 2)}, {vr(b, 2)}, {vr(b + 4, 2)}')
        a(f'v_pk_add_f32 {vr(b + 2, 2)}, {vr(b + 2, 2)}, {vr(b + 6, 2)}')
        a(f'v_cvt_pk_bf16_f32 v{b + 4}, v{b}, v{b + 1}')
        a(f'v_cvt_pk_bf16_f32 v{b + 5}, v{b + 2}, v{b + 3}')
        if n in (5, 6, 7):
            unpack(b, b + 1, b + 4)
            unpack(b + 2, b + 3, b + 5)
            one = 'v[32:33] op_sel:[0,0] op_sel_hi:[1,0]' if n == 7 else 'v[30:31] op_sel:[0,1] op_sel_hi:[1,1]'
            a(f'v_pk_add_f32 {vr(b, 2)}, {vr(b, 2)}, {one}')
            a(f'v_pk_add_f32 {vr(b + 2, 2)}, {vr(b + 2, 2)}, {one}')
            a(f'v_cvt_pk_bf16_f32 v{b + 4}, v{b}, v{b + 1}')
            a(f'v_cvt_pk_bf16_f32 v{b + 5}, v{b + 2}, v{b + 3}')
        a(f'ds_write_b64 v28, {vr(b + 4, 2)} offset:{512 * n}')
    a('s_waitcnt lgkmcnt(0)')
    stamp('modb in', 'H0')
    bar('B5b')
    bar('B6')
    a(f'''
    s_cmp_lg_u32 s2, 0
    s_cbranch_scc1 L_h0_ne
    v_mov_b32 v26, {EPOCH_G}
    s_mov_b64 exec, 1
    global_store_dword v26, v27, {sr(WS)} sc1
    s_mov_b64 exec, -1
    ''')
    a.label('L_h0_ne')
    a('s_waitcnt vmcnt(0)')
    dump_stamps('H0')
    a('s_endpgm')


def helper1():
    a.label('L_h1')
    a(f'''
    s_getpc_b64 {sr(sBa)}
    L_pc:
    s_add_u32 s{sBb}, s{sBa}, L_tables-L_pc
    s_addc_u32 s{sBb + 1}, s{sBa + 1}, 0
    ''')

    def tabs(q0, q1):
        for q in range(q0, q1):
            if q % 4 == 0 or q == q0:
                a(f's_mov_b32 m0, {TAB + (q & ~3) * 1024}')
                a(f'v_add_u32 v20, {(q & ~3) * 1024}, v{vL16}')
            a(f'global_load_lds_dwordx4 v20, {sr(sBb)} offset:{1024 * (q % 4)}')

    def tab2():
        tabs(14, NTAB)
        a(f'''
        s_mov_b32 m0, {WR_L}
        s_nop 0
        global_load_lds_dwordx4 v{vL16}, {sr(B_WR)}
        s_mov_b64 exec, 0xffff
        global_load_lds_dwordx4 v{vL16}, {sr(B_WR)} offset:1024
        s_mov_b64 exec, -1
        ''')
        return NTAB - 14 + 2

    def egather():
        for n in range(20):
            j_, wq = n // 4, n % 4
            a(f'''
            s_mov_b32 m0, {EW + wq * 5120 + j_ * 1024}
            s_nop 0
            global_load_lds_dwordx4 v40, {sr(sF1)}
            s_mov_b32 m0, {EW + (wq + 4) * 5120 + j_ * 1024}
            s_nop 0
            global_load_lds_dwordx4 v40, {sr(sF2)}
            ''')
            if n < 19:
                a(f'v_add_u32 v40, {32 * 3072}, v40')
        stamp('EG issued', 'H1')

    a(f'''
    s_mul_i32 s{sU1}, s{sIdx}, 40
    s_sub_u32 s{sT}, 1260, s{sU1}
    s_sub_u32 s{sU0}, 0, s{sX}
    s_and_b32 s{sU0}, s{sU0}, 7
    s_cmp_ge_u32 s{sIdx}, 16
    s_cselect_b32 s{sU1}, s{sT}, s{sU1}             ; 2*C0
    s_cselect_b32 s{sU2}, -1, 1                     ; direction
    s_cselect_b32 s{sU0}, s{sU0}, s{sX}             ; q
    v_lshrrev_b32 v23, 1, v{vL}
    v_lshl_add_u32 v23, v23, 3, s{sU0}              ; q + 8*kappa (n = 0)
    v_mul_lo_u32 v23, v23, s{sU2}
    s_lshl_b32 s{sU2}, s{sU2}, 8
    v_and_b32 v24, 1, v{vL}
    v_mul_u32_u24 v24, 12, v24
    s_movk_i32 s{sU3}, 642
    v_mov_b32 v26, s{sU1}
    ''')
    for n in range(8):
        a(f'''
        v_and_b32 v25, 0x7ff, v23
        v_mad_u32_u24 v25, v25, s{sU3}, v26
        v_and_b32 v25, -4, v25
        v_add_u32 v{30 + n}, v25, v24
        v_add_u32 v23, s{sU2}, v23
        ''')
    a(f'''
    s_max_u32 s{sU1}, s{sRi}, 20
    s_mul_i32 s{sU0}, s{sX}, 12
    s_add_u32 s{sU0}, s{sU0}, s{sU1}
    s_sub_u32 s{sU0}, s{sU0}, 20
    s_lshl_b32 s{sU0}, s{sU0}, 5
    v_lshrrev_b32 v40, 1, v{vL}
    v_mul_u32_u24 v40, 3072, v40
    v_and_b32 v41, 16, v{vL16}
    v_add_u32 v40, v40, v41
    s_waitcnt lgkmcnt(0)
    ''')
    base_add(sF1, W_G, sU0)
    base_add(sF2, W_U, sU0)
    a(f's_cmp_lt_u32 s{sRi}, 20')
    a('s_cbranch_scc1 L_h1_ab')
    a(f'''
    s_sub_u32 s{sU3}, s{sRi}, 20
    s_cmp_lt_u32 s{sU3}, 6
    s_cselect_b32 s{sGw}, s{W_G}, s{W_U}
    s_cselect_b32 s{sGw + 1}, s{W_G + 1}, s{W_U + 1}
    s_cselect_b32 s{sU1}, 0, 6
    s_sub_u32 s{sU3}, s{sU3}, s{sU1}
    s_mul_i32 s{sU3}, s{sU3}, 320
    s_mul_i32 s{sU1}, s{sX}, 384
    s_movk_i32 s{sU2}, 0x5556
    s_movk_i32 s{sT}, {3072 - 384}
    ''')
    for n in range(5):
        a(f'''
        v_add_u32 v42, s{sU3}, v{vL}
        v_add_u32 v42, {64 * n}, v42
        v_mul_u32_u24 v43, s{sU2}, v42
        v_lshrrev_b32 v43, 16, v43
        v_lshl_add_u32 v42, v42, 7, s{sU1}
        v_mad_u32_u24 v42, v43, s{sT}, v42
        global_load_dword v{44 + n}, v42, {sr(sGw)} {GUPOL}
        ''')
    tabs(0, 14)
    n = tab2() if S_TAB2 == 1 else 0
    a(f's_waitcnt vmcnt({n})')
    stamp('tab in', 'H1')
    bar('B1')
    egather()
    a('s_branch L_h1_u')
    a.label('L_h1_ab')
    a(f's_cmp_lt_u32 s{sRi}, 10')
    a('s_cbranch_scc0 L_h1_t')
    bar('B1')
    a.label('L_h1_t')
    tabs(0, 14)
    n = tab2() if S_TAB2 == 1 else 0
    a(f's_waitcnt vmcnt({n})')
    stamp('tab in', 'H1')
    a(f's_cmp_lt_u32 s{sRi}, 10')
    a('s_cbranch_scc1 L_h1_u')
    bar('B1')
    a.label('L_h1_u')
    bar('BT')
    bar('B2')
    a('s_waitcnt vmcnt(0)')
    for n in range(8):
        a(f'''
        s_mov_b32 m0, {WST + n * 1024}
        s_nop 0
        global_load_lds_dwordx3 v{30 + n}, {sr(W_R)}
        s_mov_b32 m0, {WST + 8192 + n * 1024}
        s_nop 0
        global_load_lds_dwordx3 v{30 + n}, {sr(W_I)}
        ''')
    if S_TAB2 == 2:
        tab2()
    stamp('W issued', 'H1')
    bar('B3')
    a('s_waitcnt vmcnt(0)')
    stamp('W in', 'H1')
    stamp('end', 'H1')
    dump_stamps('H1')
    a('s_endpgm')


prologue()
main_path()
helper0()
helper1()
body = a.finish()

hdr = open(f'cdna_kernels/{NAME}.s.ref').read().split('; Override launch')[0]
T = tables()
tab = []
flat = T.reshape(-1)
for k in range(0, flat.size, 8):
    tab.append('.long ' + ','.join('0x%08x' % v for v in flat[k:k + 8]))

launch = f'; @launch grid=(256,1,1) block=(640,1,1) lds={LDS_BYTES}'
pre_code = pre_kd = ''
if PRE:
    launch = f'; @launch kernel=pre_kernel grid=({PRE},1,1) block=(64,1,1) lds=0\n; @launch kernel={NAME}_kernel grid=(256,1,1) block=(640,1,1) lds={LDS_BYTES}'
    pre_code = '.globl pre_kernel\n.p2align 8\n.type pre_kernel,@function\npre_kernel:\n    s_endpgm\n'
    pre_kd = '''.p2align 6
.amdhsa_kernel pre_kernel
  .amdhsa_next_free_vgpr 8
  .amdhsa_next_free_sgpr 16
  .amdhsa_accum_offset 8
  .amdhsa_group_segment_fixed_size 0
  .amdhsa_kernarg_size 104
  .amdhsa_user_sgpr_count 2
  .amdhsa_user_sgpr_kernarg_segment_ptr 1
  .amdhsa_system_sgpr_workgroup_id_x 1
.end_amdhsa_kernel
'''
src = hdr + f'''{launch}
.amdgcn_target "amdgcn-amd-amdhsa--gfx950"
.text
{pre_code}.globl {NAME}_kernel
.p2align 8
.type {NAME}_kernel,@function
{NAME}_kernel:
{body}
.p2align 8
.type L_tables,@object
L_tables:
''' + '\n'.join(tab) + f'''
.size L_tables, {NTAB * 1024}
.fill (8192 - ((. - {NAME}_kernel) & 8191)) & 8191, 1, 0
L_tables_end:
.section .rodata,"a"
.p2align 6
.amdhsa_kernel {NAME}_kernel
  .amdhsa_next_free_vgpr 168
  .amdhsa_next_free_sgpr 102
  .amdhsa_accum_offset 168
  .amdhsa_group_segment_fixed_size 0
  .amdhsa_kernarg_size 104
  .amdhsa_user_sgpr_count 2
  .amdhsa_user_sgpr_kernarg_segment_ptr 1
  .amdhsa_system_sgpr_workgroup_id_x 1
.end_amdhsa_kernel
{pre_kd}'''
open(OUT, 'w').write(src)
print('wrote', OUT, 'lds', LDS_BYTES, 'lines', len(a.lines), 'nops', a.nnops)
```

```python
import sys, struct
import numpy as np
from asmdsl import Asm

NAME = 'adaLN_cond__spectral_gfnet__moe_arch_mod__prompt'
DIAG = '--diag' in sys.argv or '--dbgdiag' in sys.argv
DBGDIAG = '--dbgdiag' in sys.argv
OUT = [a for a in sys.argv[1:] if not a.startswith('--')]
OUT = OUT[0] if OUT else f'cdna_kernels/{NAME}.s'
SPIN = 60000


def opt(name, default):
    for x in sys.argv:
        if x.startswith(f'--{name}='):
            return x.split('=', 1)[1]
    return default


PROBE = opt('probe', None)
PROBEWG = int(opt('probewg', 8))
if PROBE:
    DIAG = True
OUTPOL = opt('outpol', 'sc1')
PRE = opt('pre', None)
INPOL = opt('inpol', 'nt')
S_BLOAD = int(opt('bload', 0))
S_WWARM = int(opt('wwarm', 0))
S_GUW = int(opt('guw', 0))
EG3 = int(opt('eg3', 10))
S_WD = int(opt('wd', 4))
S_TAB2 = int(opt('tab2', 2))
PACE1 = int(opt('pace1', 12))
PACE2 = int(opt('pace2', 0))
P3FIRST = int(opt('p3first', 1))

MODA_G = 0
MODF_G = 61440
EPOCH_G = 73728
PY_G = 0x20000
PY_STRIDE = 2688
REC_G = 0x80000
REC_STRIDE = 8320
REC_H2 = 128
REC_BASE = 128 + 4096
T1_G = 0x400000
T2_G = 0x800000
DIAG_G = 0xC00000

NTAB = 25
TAB = 0
RED = TAB + NTAB * 1024
KEYL = RED + 2048
XB2 = KEYL + 64
XB1 = XB2 + 20480
XB3 = XB1
MODA_L = XB1 + 18560
MODB_L = MODA_L + 5120
WR_L = MODB_L + 5120
WST = WR_L + 2048
EW = WST + 16384
FW = EW + 40960
STL = FW + 20480
LDS_BYTES = STL + 256
assert LDS_BYTES <= 163840, LDS_BYTES

T_F20C, T_F20S, T_TW1, T_F32, T_F16, T_TW2, T_TW3, T_F20I = 0, 1, 2, 6, 14, 16, 18, 22


def f2u(x):
    return struct.unpack('<I', struct.pack('<f', float(x)))[0]


def bf(x):
    u = f2u(x)
    return ((u + 0x7FFF + ((u >> 16) & 1)) >> 16) & 0xFFFF


def pk(lo, hi):
    return bf(lo) | (bf(hi) << 16)


def cs(num, den):
    a = 2 * np.pi * (num % den) / den
    c, s = np.cos(a), np.sin(a)
    if abs(c) < 1e-12: c = 0.0
    if abs(s) < 1e-12: s = 0.0
    return c, s


def kaof(x):
    ka = 3 * (x >> 2) + (x & 3)
    return ka if (x & 3) < 3 and ka <= 10 else None


def tables():
    T = np.zeros((NTAB, 64, 4), np.uint32)
    for l in range(64):
        i, g = l & 15, l >> 4
        c8, s8 = [0.0] * 8, [0.0] * 8
        for j in range(5):
            if kaof(i) is not None:
                c, s = cs((4 * j + g) * kaof(i), 20)
                c8[j], s8[j] = c, -s
        for d in range(4):
            T[T_F20C, l, d] = pk(c8[2 * d], c8[2 * d + 1])
            T[T_F20S, l, d] = pk(s8[2 * d], s8[2 * d + 1])
        for t in range(2):
            for r in range(4):
                c, s = cs((8 * g + 2 * r + t) * (kaof(i) or 0), 640)
                T[T_TW1 + 2 * t, l, r] = f2u(c)
                T[T_TW1 + 2 * t + 1, l, r] = f2u(s)
                c, s = cs((2 * i + t) * (kaof(4 * g + r) or 0), 640)
                T[T_TW3 + 2 * t, l, r] = f2u(c)
                T[T_TW3 + 2 * t + 1, l, r] = f2u(s)
        for tile in range(2):
            for ks in range(2):
                for r in range(4):
                    c, s = cs((2 * i + tile) * (8 * g + 2 * r + ks), 32)
                    T[T_F32 + tile * 4 + 0 + ks, l, r] = pk(c, s)
                    T[T_F32 + tile * 4 + 2 + ks, l, r] = pk(-s, c)
        for r in range(4):
            c, s = cs(i * (4 * g + r), 16)
            T[T_F16, l, r] = pk(c, s)
            T[T_F16 + 1, l, r] = pk(-s, c)
            c, s = cs(i * (4 * g + r), 256)
            T[T_TW2, l, r] = f2u(c)
            T[T_TW2 + 1, l, r] = f2u(s)
            ka = kaof(4 * g + r)
            if ka is not None:
                a1 = 4 * (i & 3) + (i >> 2)
                c, s = cs(a1 * ka, 20)
                T[T_F20I, l, r] = pk(c, -s)
                c, s = cs((16 + (i >> 2)) * ka, 20)
                if (i & 3) == 0:
                    T[T_F20I + 1, l, r] = pk(c, -s)
                if (i & 3) == 1:
                    T[T_F20I + 2, l, r] = pk(c, -s)
    return T


def vr(a, n=1):
    return f'v{a}' if n == 1 else f'v[{a}:{a + n - 1}]'


def sr(a, n=2):
    return f's{a}' if n == 1 else f's[{a}:{a + n - 1}]'


sW, sX, sIdx, sMe, sT = 3, 4, 5, 6, 7
A_X, W_R, W_I, B_WR, W_G, W_U, W_D = 8, 10, 12, 16, 18, 20, 22
C_, W_MOD, OUTP, DBG, WS = 24, 26, 28, 30, 32
sBa, sBb, sBc = 34, 36, 38
sCnt = 40
sM1B = 41
sU0, sU1, sU2, sU3 = 42, 43, 46, 47
sM7 = 44
sRow = 48
sKey = 49
sV1, sV2 = 50, 51
sHI = 52
sCand = 53
sTag = 55
sRi = 54
sGU = 56
sXrow = 72
sTS = 74

vL, vL16, vL4, vS, vPoll = 1, 2, 3, 4, 5
vM8F, vM8I = 6, 8
vXS = 10
Ra, Rb, RD, Rc = 20, 28, 36, 52
vF32 = 60
vTW = 92
vF20 = 108
vVec = 120
vE0 = 160
vXR = 150


a = Asm()
stamps = {}
NST = 24


def stamp(name, path='M', wait=True):
    if not DIAG:
        return
    if PROBE and (path != 'M' or not (name == 'start' or name.startswith(PROBE))):
        return
    lst = stamps.setdefault(path, [])
    if name not in lst:
        lst.append(name)
    k = lst.index(name)
    assert k < NST
    a(f's_memrealtime s[100:101]')
    a('s_waitcnt lgkmcnt(0)')
    a(f's_mov_b32 s{sTS + k}, s100')


def dump_stamps(path='M'):
    if not DIAG:
        return
    if PROBE:
        if path != 'M':
            return
        a(f'''
        s_cmp_lg_u32 s2, {PROBEWG}
        s_cbranch_scc1 L_end
        s_cmp_lg_u32 s{sW}, 0
        s_cbranch_scc1 L_end
        ''')
        if PROBE == 'fix':
            a(f's_movk_i32 s{sU0}, 6000')
        elif PROBE == 'xcc':
            a(f's_getreg_b32 s{sU0}, hwreg(HW_REG_XCC_ID)')
            a(f's_and_b32 s{sU0}, s{sU0}, 15')
            a(f's_mul_i32 s{sU0}, s{sU0}, 1000')
            a(f's_add_u32 s{sU0}, s{sU0}, 6000')
        else:
            a(f's_sub_u32 s{sU0}, s{sTS + 1}, s{sTS}')
            a(f's_lshl_b32 s{sU0}, s{sU0}, 4')
            a(f's_add_u32 s{sU0}, s{sU0}, 6000')
            a(f's_min_u32 s{sU0}, s{sU0}, 100000')
        a(f'''
        L_probe:
        s_memrealtime s[100:101]
        s_waitcnt lgkmcnt(0)
        s_sub_u32 s{sU1}, s100, s{sTS}
        s_cmp_lt_u32 s{sU1}, s{sU0}
        s_cbranch_scc1 L_probe
        ''')
        return
    if DBGDIAG:
        if path != 'M':
            return
        a('v_mov_b32 v20, 0')
        a('s_mov_b64 exec, 1')
        a(f's_not_b32 s{sU0}, s{sTS}')
        a(f'v_mov_b32 v22, s{sU0}')
        a(f'global_atomic_umax v20, v22, {sr(DBG)} offset:4 sc1')
        ks = [0] + list(range(2, len(stamps['M'])))
        for n, k in enumerate(ks[:14]):
            a(f'v_mov_b32 v{23 + n}, s{sTS + k}')
            a(f'global_atomic_umax v20, v{23 + n}, {sr(DBG)} offset:{8 + 4 * n} sc1')
        print('dbg slots:', [(2 + n, stamps['M'][k]) for n, k in enumerate(ks[:14])])
        return
    if path != 'M':
        for k in range(NST):
            a(f'v_writelane_b32 v20, s{sTS + k}, {k}')
        a(f'v_lshlrev_b32 v21, 2, v{vL}')
        a(f'v_add_u32 v21, {STL + (128 if path == "H1" else 0)}, v21')
        a('s_mov_b32 exec_hi, 0')
        a('ds_write_b32 v21, v20')
        a('s_waitcnt lgkmcnt(0)')
        return
    a(f'''
    s_lshl_b32 s{sU0}, s2, 11
    v_add_u32 v21, {STL}, v{vL4}
    ds_read_b32 v22, v21
    ''')
    base_add(sBa, WS, sU0, DIAG_G + 1024)
    a('s_waitcnt lgkmcnt(0)')
    a(f'global_store_dword v{vL4}, v22, {sr(sBa)}')
    a(f'''
    s_lshl_b32 s{sU0}, s2, 11
    s_lshl_b32 s{sU1}, s{sW}, 7
    s_add_u32 s{sU0}, s{sU0}, s{sU1}
    s_memtime s[100:101]
    ''')
    base_add(sBa, WS, sU0, DIAG_G)
    a('v_mov_b32 v20, 0')
    a('s_mov_b64 exec, 1')
    for k in range(0, NST, 2):
        a(f'v_mov_b32 v22, s{sTS + k}')
        a(f'v_mov_b32 v23, s{sTS + k + 1}')
        a(f'global_store_dwordx2 v20, v[22:23], {sr(sBa)} offset:{4 * k}')
        a('s_nop 1')
    a('s_waitcnt lgkmcnt(0)')
    a('s_sub_u32 s100, s100, s98')
    a('v_mov_b32 v22, s100')
    a(f'global_store_dword v20, v22, {sr(sBa)} offset:112')
    a('s_getreg_b32 s42, hwreg(HW_REG_XCC_ID)')
    a('s_getreg_b32 s43, hwreg(HW_REG_HW_ID)')
    a('v_mov_b32 v22, s42')
    a('v_mov_b32 v23, s43')
    a(f'global_store_dwordx2 v20, v[22:23], {sr(sBa)} offset:120')


def base_add(dst, src, off_s=None, imm=0):
    if off_s is not None:
        if imm:
            a(f's_add_u32 s{sT}, s{off_s}, {imm}')
            off_s = sT
        a(f's_add_u32 s{dst}, s{src}, s{off_s}')
    else:
        a(f's_add_u32 s{dst}, s{src}, {imm}')
    a(f's_addc_u32 s{dst + 1}, s{src + 1}, 0')


lblc = [0]


def newlabel(p):
    lblc[0] += 1
    return f'L_{p}_{lblc[0]}'


def poll(loads, regs, tmp, mask=None, empty='eq -1', between=None, younger=0, issued=False):
    L, D = newlabel('poll'), newlabel('polld')
    split = between is not None or issued
    if split:
        Cc = newlabel('pollc')
        if not issued:
            if mask is not None:
                a(f's_mov_b64 exec, {mask}')
            for ld in loads:
                a(ld)
            if mask is not None:
                a('s_mov_b64 exec, -1')
            between()
        if mask is not None:
            a(f's_mov_b64 exec, {mask}')
        a(f's_mov_b32 s{sCnt}, {SPIN}')
        a(f's_waitcnt vmcnt({younger})')
        a(f's_branch {Cc}')
    else:
        if mask is not None:
            a(f's_mov_b64 exec, {mask}')
        a(f's_mov_b32 s{sCnt}, {SPIN}')
    a.label(L)
    for ld in loads:
        a(ld)
    a('s_waitcnt vmcnt(0)')
    if split:
        a.label(Cc)
    if empty == 'tag':
        for n, r in enumerate(regs):
            a(f'v_xor_b32 v{r}, s{sTB + (n & 3)}, v{r}')
        rem = list(regs)
        for c in tmp:
            a(f'v_or3_b32 v{c}, v{rem[0]}, v{rem[1]}, v{rem[2]}')
            rem = rem[3:]
        n = 0
        while len(rem) >= 2:
            c = tmp[n % len(tmp)]
            a(f'v_or3_b32 v{c}, v{c}, v{rem[0]}, v{rem[1]}')
            rem = rem[2:]
            n += 1
        t = tmp[0]
        rem = rem + list(tmp[1:])
        while rem:
            if len(rem) >= 2:
                a(f'v_or3_b32 v{t}, v{t}, v{rem[0]}, v{rem[1]}')
                rem = rem[2:]
            else:
                a(f'v_or_b32 v{t}, v{t}, v{rem[0]}')
                rem = rem[1:]
        a(f'v_and_b32 v{t}, 0xff, v{t}')
        empty = 'ne 0'
    elif empty == 'word':
        if len(regs) == 1:
            t = regs[0]
            empty = f'ne s{sTag}'
        else:
            assert len(regs) == 2
            t = tmp[0]
            a(f'v_xor_b32 v{t}, v{regs[0]}, v{regs[1]}')
            a(f'v_xor_b32 v{tmp[1]}, s{sTag}, v{regs[0]}')
            a(f'v_or_b32 v{t}, v{t}, v{tmp[1]}')
            empty = 'ne 0'
    elif empty == 'words':
        for n, r in enumerate(regs):
            a(f'v_xor_b32 v{tmp[n]}, s{sTag}, v{r}')
        t = tmp[0]
        rem = list(tmp[1:len(regs)])
        while rem:
            if len(rem) >= 2:
                a(f'v_or3_b32 v{t}, v{t}, v{rem[0]}, v{rem[1]}')
                rem = rem[2:]
            else:
                a(f'v_or_b32 v{t}, v{t}, v{rem[0]}')
                rem = rem[1:]
        empty = 'ne 0'
    elif len(regs) == 1:
        t = regs[0]
    else:
        rem = list(regs)
        outs = []
        k = 0
        while len(rem) >= 3 and k < len(tmp):
            a(f'v_max3_u32 v{tmp[k]}, v{rem[0]}, v{rem[1]}, v{rem[2]}')
            outs.append(tmp[k])
            rem = rem[3:]
            k += 1
        rem = outs[1:] + rem
        t = outs[0] if outs else None
        if t is None:
            t = tmp[0]
            a(f'v_max_u32 v{t}, v{rem[0]}, v{rem[1]}')
            rem = rem[2:]
        while rem:
            if len(rem) >= 2:
                a(f'v_max3_u32 v{t}, v{t}, v{rem[0]}, v{rem[1]}')
                rem = rem[2:]
            else:
                a(f'v_max_u32 v{t}, v{t}, v{rem[0]}')
                rem = rem[1:]
    a(f'v_cmpx_{empty.split()[0]}_u32 vcc, {empty.split()[1]}, v{t}')
    a(f's_cbranch_execz {D}')
    a(f's_sub_u32 s{sCnt}, s{sCnt}, 1')
    a(f's_cbranch_scc0 {L}')
    a.label(D)
    a('s_mov_b64 exec, -1')


def epoch_load():
    a(f's_load_dword s{sTag}, {sr(WS)}, {EPOCH_G}')


def epoch_tag():
    a(f'''
    s_and_b32 s{sTag}, s{sTag}, 0x7f7f7f7f
    s_add_u32 s{sTag}, s{sTag}, 0x01010101
    s_or_b32 s{sTag}, s{sTag}, 0x80808080
    ''')


sTB = 68


def tag_bytes():
    for k in range(4):
        a(f's_bfe_u32 s{sTB + k}, s{sTag}, {hex(0x80000 | (8 * k))}')


def dpp(op, r, ctrl, rm='0xf'):
    a(f'{op}_dpp v{r}, v{r}, v{r} {ctrl} row_mask:{rm} bank_mask:0xf')


def wave_sum(regs, dst_s, op='v_add_f32'):
    for c in ('row_ror:8', 'row_ror:4', 'row_ror:2', 'row_ror:1'):
        for r in regs:
            dpp(op, r, c)
    for r in regs:
        dpp(op, r, 'row_bcast:15', '0xa')
    for r in regs:
        dpp(op, r, 'row_bcast:31', '0xc')
    for r, s in zip(regs, dst_s):
        a(f'v_readlane_b32 s{s}, v{r}, 63')


def rbf(dst, src):
    a(f'v_cvt_pk_bf16_f32 v{dst}, {src}, {src}')
    a(f'v_and_b32 v{dst}, s{sHI}, v{dst}')


def unpack(dlo, dhi, src):
    a(f'v_lshlrev_b32 v{dlo}, 16, v{src}')
    a(f'v_and_b32 v{dhi}, s{sHI}, v{src}')


def mfma32(d, x, y, c=None):
    a(f'v_mfma_f32_16x16x32_bf16 {vr(d, 4)}, {vr(x, 4)}, {vr(y, 4)}, {vr(c, 4) if c is not None else 0}')


def mfma16(d, x, y):
    a(f'v_mfma_f32_16x16x16_bf16 {vr(d, 4)}, {vr(x, 2)}, {vr(y, 2)}, 0')


def cmul(tr, ti, re, im, c, s, sign):
    nr = 'neg_lo:[1,0,0] neg_hi:[1,0,0]'
    for h in (0, 2):
        a(f'v_pk_mul_f32 {vr(tr + h, 2)}, {vr(re + h, 2)}, {vr(c + h, 2)}')
    for h in (0, 2):
        a(f'v_pk_mul_f32 {vr(ti + h, 2)}, {vr(im + h, 2)}, {vr(c + h, 2)}')
    for h in (0, 2):
        a(f'v_pk_fma_f32 {vr(tr + h, 2)}, {vr(im + h, 2)}, {vr(s + h, 2)}, {vr(tr + h, 2)} {nr if sign > 0 else ""}')
    for h in (0, 2):
        a(f'v_pk_fma_f32 {vr(ti + h, 2)}, {vr(re + h, 2)}, {vr(s + h, 2)}, {vr(ti + h, 2)} {nr if sign < 0 else ""}')


def pack4(d, lo, hi, step=1, n=4):
    for r in range(n):
        a(f'v_cvt_pk_bf16_f32 v{d + r * step}, v{lo + r}, v{hi + r}')


def tab_read(dst, q):
    a(f'ds_read_b128 {vr(dst, 4)}, v{vL16} offset:{TAB + q * 1024}')


def tm(j, t):
    return 4 * t + j if j < 4 else 8 + t


def read_tmajor(dst, vaddr, off):
    o = off // 256
    assert off % 256 == 0 and o + 6 < 256
    for t in range(2):
        a(f'ds_read2st64_b32 {vr(dst + 4 * t, 2)}, v{vaddr + t} offset0:{o} offset1:{o + 2}')
        a(f'ds_read2st64_b32 {vr(dst + 4 * t + 2, 2)}, v{vaddr + t} offset0:{o + 4} offset1:{o + 6}')
    a(f'ds_read_b64 {vr(dst + 8, 2)}, v{vaddr} offset:{off + 2048}')


def silu(dst, src, tmp):
    for d, s, t in zip(dst, src, tmp):
        a(f'v_mul_f32 v{t}, 0xbfb8aa3b, v{s}')
    for t in tmp:
        a(f'v_exp_f32 v{t}, v{t}')
    for t in tmp:
        a(f'v_add_f32 v{t}, 1.0, v{t}')
    for t in tmp:
        a(f'v_rcp_f32 v{t}, v{t}')
    for d, s, t in zip(dst, src, tmp):
        a(f'v_mul_f32 v{d}, v{s}, v{t}')


def swap_reduce8(acc):
    for k in range(4):
        a(f'v_permlane32_swap_b32 v{acc + k}, v{acc + k + 4}')
    a(f'v_pk_add_f32 {vr(acc, 2)}, {vr(acc, 2)}, {vr(acc + 4, 2)}')
    a(f'v_pk_add_f32 {vr(acc + 2, 2)}, {vr(acc + 2, 2)}, {vr(acc + 6, 2)}')
    for k in range(2):
        a(f'v_permlane16_swap_b32 v{acc + k}, v{acc + k + 2}')
    a(f'v_pk_add_f32 {vr(acc, 2)}, {vr(acc, 2)}, {vr(acc + 2, 2)}')


BC0 = 'op_sel:[0,0,0] op_sel_hi:[1,0,1]'
BC1 = 'op_sel:[0,1,0] op_sel_hi:[1,1,1]'


def prologue():
    a(f'''
    s_cmp_ge_u32 s2, 256
    s_cbranch_scc1 L_end
    ''')
    if DIAG:
        for k in range(NST):
            a(f's_mov_b32 s{sTS + k}, 0')
        a('s_memtime s[98:99]')
        for p in ('M', 'H0', 'H1'):
            stamps[p] = ['start']
        stamp('start')
    a(f'''
    s_load_dwordx16 s[8:23], s[0:1], 0
    s_load_dwordx8 s[24:31], s[0:1], 64
    s_load_dwordx2 s[32:33], s[0:1], 96
    v_lshrrev_b32 v{vL}, 6, v0
    s_and_b32 s{sX}, s2, 7
    v_readfirstlane_b32 s{sW}, v{vL}
    v_and_b32 v{vL}, 63, v0
    s_lshr_b32 s{sIdx}, s2, 3
    s_lshl_b32 s{sMe}, s{sX}, 5
    s_add_u32 s{sMe}, s{sMe}, s{sIdx}
    s_add_u32 s{sRi}, s{sIdx}, 31
    s_and_b32 s{sRi}, s{sRi}, 31
    v_lshlrev_b32 v{vL16}, 4, v{vL}
    s_mov_b32 s{sHI}, 0xffff0000
    s_cmp_lg_u32 s{sRi}, 30
    s_cbranch_scc1 L_nopf
    s_cmp_ge_u32 s{sW}, (L_tables_end-{NAME}_kernel)/8192
    s_cbranch_scc1 L_nopf
    s_getpc_b64 {sr(sBa)}
    L_pc0:
    s_sub_u32 s{sBa}, s{sBa}, L_pc0-{NAME}_kernel
    s_subb_u32 s{sBa + 1}, s{sBa + 1}, 0
    v_lshlrev_b32 v20, 7, v0
    global_load_dword v159, v20, {sr(sBa)}
    L_nopf:
    v_lshlrev_b32 v{vL4}, 2, v{vL}
    s_cmp_eq_u32 s{sW}, 9
    s_cbranch_scc1 L_h1
    s_cmp_eq_u32 s{sW}, 8
    s_cbranch_scc1 L_h0
    s_lshl_b32 s{sRow}, s{sW}, 8
    s_add_u32 s{sKey}, s{sRow}, s{sMe}
    s_mul_i32 s{sRow}, s{sKey}, 1280
    ''')


def xloads():
    for j in range(5):
        a(f'global_load_dword v{vXR + j}, v{vL4}, {sr(sXrow)} offset:{256 * j} {INPOL}')


def blk_id(dst):
    a(f'''
    s_cmp_lt_u32 s{sRi}, 10
    s_cselect_b32 s{dst}, 10, 20
    s_cselect_b32 s{sT}, 0, 70
    s_mul_i32 s{dst}, s{dst}, s{sX}
    s_add_u32 s{dst}, s{dst}, s{sT}
    s_add_u32 s{dst}, s{dst}, s{sRi}
    ''')


GV = (80, 100, 48, 60, 56, 57)


def gemv_addr():
    vw, vc, acc, tmp, vo, voc = GV
    blk_id(sU2)
    a(f'''
    s_lshr_b32 s{sU0}, s{sU2}, 2
    s_and_b32 s{sU1}, s{sU2}, 3
    s_mul_i32 s{sU1}, s{sU1}, 160
    s_mul_i32 s{sT}, s{sW}, 20
    s_add_u32 s{sU1}, s{sU1}, s{sT}
    v_lshrrev_b32 v{voc}, 3, v{vL}
    v_and_b32 v{vo}, 0x70, v{vL16}
    v_mul_u32_u24 v{tmp}, 7680, v{voc}
    v_lshlrev_b32 v{voc}, 1, v{voc}
    v_add_u32 v{vo}, v{vo}, v{tmp}
    s_mul_i32 s{sU3}, s{sU1}, 7680
    s_lshl_b32 s{sT}, s{sU0}, 7
    s_add_u32 s{sU3}, s{sU3}, s{sT}
    s_lshl_b32 s{sU1}, s{sU1}, 1
    ''')
    for k in range(4):
        a(f'v_mov_b32 v{vw + 8 + k}, 0')
    a(f'v_mov_b32 v{vc + 2}, 0')
    a('s_waitcnt lgkmcnt(0)')
    stamp('kernarg')
    epoch_load()
    base_add(sBa, C_, sU1)
    base_add(sBb, W_MOD, sU3)
    base_add(sXrow, A_X, sRow)


def gemv_issue():
    vw, vc, acc, tmp, vo, voc = GV
    for j in range(3):
        if j == 2:
            a('s_mov_b32 exec_hi, 0')
        a(f'global_load_ushort v{vc + j}, v{voc}, {sr(sBa)} offset:{16 * j}')
    a('s_mov_b64 exec, -1')
    for j in range(3):
        if j == 2:
            a('s_mov_b32 exec_hi, 0')
        a(f'global_load_dwordx4 {vr(vw + 4 * j, 4)}, v{vo}, {sr(sBb)} {INPOL}')
        if j < 2:
            a(f'v_add_u32 v{vo}, {8 * 7680}, v{vo}')
    a('s_mov_b64 exec, -1')


def gemv_compute(role):
    nj = 3
    vw, vc, acc, tmp, vo, voc = GV
    after = 5 if role == 'A' else 0
    a(f's_waitcnt vmcnt({nj + after})')
    stamp('c in')
    cs_ = [vc + j for j in range(nj)]
    for c in cs_:
        a(f'v_lshlrev_b32 v{c}, 16, v{c}')
    silu(cs_, cs_, [tmp + j for j in range(nj)])
    sc = [70 + 2 * j for j in range(nj)]
    for c, s in zip(cs_, sc):
        a(f'v_cvt_pk_bf16_f32 v{s}, v{c}, v{c}')
    for s in sc:
        a(f'v_and_b32 v{s}, s{sHI}, v{s}')
    for j in range(nj):
        a(f's_waitcnt vmcnt({nj - 1 - j + after})')
        for k in range(4):
            unpack(tmp + 2 * k, tmp + 2 * k + 1, vw + 4 * j + k)
        for k in range(4):
            if j == 0:
                a(f'v_pk_mul_f32 {vr(acc + 2 * k, 2)}, {vr(tmp + 2 * k, 2)}, {vr(sc[j], 2)} op_sel:[0,0] op_sel_hi:[1,0]')
            else:
                a(f'v_pk_fma_f32 {vr(acc + 2 * k, 2)}, {vr(tmp + 2 * k, 2)}, {vr(sc[j], 2)}, {vr(acc + 2 * k, 2)} {BC0}')
    stamp('w in')
    a(f'''
    v_and_b32 v{vo}, 7, v{vL}
    v_lshlrev_b32 v{vo}, 8, v{vo}
    v_and_b32 v{voc}, 48, v{vL}
    v_lshl_add_u32 v{vo}, v{voc}, 2, v{vo}
    s_lshl_b32 s{sT}, s{sW}, 2
    s_add_u32 s{sT}, s{sT}, {RED}
    v_add_u32 v{vo}, s{sT}, v{vo}
    ''')
    swap_reduce8(acc)
    for c in ('row_ror:8',):
        dpp('v_add_f32', acc, c)
        dpp('v_add_f32', acc + 1, c)
    a(f'''
    s_mov_b32 exec_lo, 0x00ff00ff
    s_mov_b32 exec_hi, 0x00ff00ff
    ds_write2_b32 v{vo}, v{acc}, v{acc + 1} offset0:0 offset1:8
    s_mov_b64 exec, -1
    s_waitcnt lgkmcnt(0)
    ''')


def m8(dst, inverse):
    t0, t1, t2, t3 = 20, 21, 22, 23
    a(f'v_lshrrev_b32 v{t0}, 4, v{vL}           ; g')
    a(f's_cmp_lt_u32 s{sW}, 4')
    a(f's_cselect_b32 s{sT}, 1, 7')
    if not inverse:
        a(f'''
        v_bfe_u32 v{t1}, v{vL}, 2, 2
        v_bfe_u32 v{t2}, v{vL}, 1, 1
        v_lshl_add_u32 v{t1}, v{t2}, 2, v{t1}
        v_mul_u32_u24 v{t1}, s{sT}, v{t1}
        v_and_b32 v{t1}, 7, v{t1}
        v_lshlrev_b32 v{t0}, 9, v{t0}
        v_add_u32 v{t0}, s{sMe}, v{t0}
        v_mul_u32_u24 v{t2}, v{t0}, v{t1}
        v_lshl_add_u32 v{t3}, v{t1}, 8, v{t2}
        ''')
    else:
        a(f'''
        v_bfe_u32 v{t1}, v{vL}, 1, 3
        v_lshlrev_b32 v{t1}, 8, v{t1}
        v_add_u32 v{t1}, s{sMe}, v{t1}
        v_mul_u32_u24 v{t0}, s{sT}, v{t0}
        v_and_b32 v{t0}, 7, v{t0}
        v_mul_u32_u24 v{t2}, v{t0}, v{t1}
        v_xor_b32 v{t0}, 4, v{t0}
        v_mul_u32_u24 v{t3}, v{t0}, v{t1}
        v_sub_u32 v{t2}, 0, v{t2}
        v_sub_u32 v{t3}, 0, v{t3}
        ''')
    a(f'''
    v_and_b32 v{t0}, 1, v{vL}
    v_lshl_add_u32 v{t2}, v{t0}, 9, v{t2}
    v_lshl_add_u32 v{t3}, v{t0}, 9, v{t3}
    v_and_b32 v{t2}, 0x7ff, v{t2}
    v_and_b32 v{t3}, 0x7ff, v{t3}
    v_cvt_f32_u32 v{t2}, v{t2}
    v_cvt_f32_u32 v{t3}, v{t3}
    v_mul_f32 v{t2}, 0x3a000000, v{t2}
    v_mul_f32 v{t3}, 0x3a000000, v{t3}
    v_cos_f32 v{t0}, v{t2}
    v_sin_f32 v{t2}, v{t2}
    v_cos_f32 v{t1}, v{t3}
    v_sin_f32 v{t3}, v{t3}
    v_cvt_pk_bf16_f32 v{dst}, v{t0}, v{t2}
    v_cvt_pk_bf16_f32 v{dst + 1}, v{t1}, v{t3}
    ''')


INV640 = hex(f2u(1.0 / 640))
EPS = hex(f2u(1e-5))


def rstd_chain(var, out):
    rbf(out, f'v{var}')
    a(f'v_add_f32 v{out}, {EPS}, v{out}')
    rbf(out, f'v{out}')
    a(f'v_sqrt_f32 v{out}, v{out}')
    rbf(out, f'v{out}')
    a(f'v_rcp_f32 v{out}, v{out}')


def sum10(dst2, x):
    a(f'v_pk_add_f32 {vr(dst2, 2)}, {vr(x, 2)}, {vr(x + 2, 2)}')
    for h in (4, 6, 8):
        a(f'v_pk_add_f32 {vr(dst2, 2)}, {vr(dst2, 2)}, {vr(x + h, 2)}')
    a(f'v_add_f32 v{dst2}, v{dst2}, v{dst2 + 1}')


def dot10(dst2, x, y):
    a(f'v_pk_mul_f32 {vr(dst2, 2)}, {vr(x, 2)}, {vr(y, 2)}')
    for h in (2, 4, 6, 8):
        a(f'v_pk_fma_f32 {vr(dst2, 2)}, {vr(x + h, 2)}, {vr(y + h, 2)}, {vr(dst2, 2)}')
    a(f'v_add_f32 v{dst2}, v{dst2}, v{dst2 + 1}')


late = []


def bar(n):
    a(f's_barrier                                   ; {n}')


def main_path():
    vZ, vSA, vCA = vVec, vVec + 10, vVec + 20
    gemv_addr()
    a(f's_cmp_lt_u32 s{sRi}, 10')
    a('s_cbranch_scc0 L_x')
    gemv_issue()
    a.label('L_x')
    xloads()
    if S_BLOAD == 0:
        a(f's_sub_u32 s{sT}, s{sRi}, 10')
        a(f's_cmp_lt_u32 s{sT}, 20')
        a('s_cbranch_scc0 L_setup')
        gemv_issue()
        a.label('L_setup')
    m8(vM8F, False)
    m8(vM8I, True)
    a(f'''
    v_bfe_u32 v20, v{vL}, 2, 2
    v_and_b32 v21, 48, v{vL16}                    ; part*16
    v_and_b32 v22, 48, v{vL}
    v_lshl_add_u32 v20, v22, 1, v20               ; 32g + kbs
    v_lshl_add_u32 v{vS}, v20, 6, v21
    v_lshl_add_u32 v{vPoll}, v20, 14, v21
    v_mul_u32_u24 v20, 80, v20
    s_mul_i32 s{sT}, s{sW}, 320
    s_add_u32 s{sT}, s{sT}, {XB2}
    v_add3_u32 v{vE0 + 4}, v20, v21, s{sT}        ; staging address
    v_lshlrev_b32 v{vE0}, 3, v{vL}                ; 8*lane
    ''')
    a(f'''
    v_and_b32 v20, 15, v{vL}
    v_mul_u32_u24 v20, 264, v20
    v_and_b32 v21, 48, v{vL}
    v_lshl_add_u32 v{vE0 + 1}, v21, 2, v20
    s_lshr_b32 s{sU0}, s{sW}, 1
    s_mul_i32 s{sU0}, s{sU0}, 4224
    s_and_b32 s{sT}, s{sW}, 1
    s_lshl_b32 s{sT}, s{sT}, 2
    s_add_u32 s{sU0}, s{sU0}, s{sT}
    s_add_u32 s{sU0}, s{sU0}, {XB1}
    v_add_u32 v{vE0 + 1}, s{sU0}, v{vE0 + 1}
    ''')
    a(f'''
    v_lshrrev_b32 v20, 4, v{vL}
    v_mul_u32_u24 v20, 4224, v20
    v_and_b32 v21, 3, v{vL}
    v_mul_u32_u24 v21, 1056, v21
    v_and_b32 v22, 12, v{vL}
    v_lshl_add_u32 v20, v22, 1, v20
    s_lshl_b32 s{sU0}, s{sW}, 5
    s_add_u32 s{sU0}, s{sU0}, {XB1}
    v_add3_u32 v{vE0 + 2}, v20, v21, s{sU0}
    ''')
    a(f's_cmp_lt_u32 s{sRi}, 10')
    a('s_cbranch_scc0 L_na')
    gemv_compute('A')
    bar('B1')
    a('s_waitcnt vmcnt(0)')
    a('s_branch L_ln1')
    a.label('L_na')
    a(f's_cmp_lt_u32 s{sRi}, 30')
    if S_BLOAD == 0:
        a('s_waitcnt vmcnt(6)')
        a('s_cbranch_scc1 L_ln1')
        a('s_waitcnt vmcnt(0)')
    else:
        a('s_waitcnt vmcnt(0)')
        a('s_cbranch_scc0 L_ln1')
        gemv_issue()
    a.label('L_ln1')
    stamp('x in')
    for j in range(5):
        unpack(vXS + tm(j, 0), vXS + tm(j, 1), vXR + j)
    sum10(24, vXS)
    wave_sum([24], [sU0])
    a(f'v_mov_b32 v24, {INV640}')
    a(f'v_mul_f32 v26, s{sU0}, v24                ; mean')
    rbf(28, 'v26')
    a(f'v_readfirstlane_b32 s{sM1B}, v28')
    for h in range(0, 10, 2):
        a(f'v_pk_add_f32 {vr(vXS + h, 2)}, {vr(vXS + h, 2)}, v[28:29] op_sel:[0,0] op_sel_hi:[1,0] neg_lo:[0,1] neg_hi:[0,1]')
    dot10(30, vXS, vXS)
    wave_sum([30], [sU0])
    a(f'''
    v_sub_f32 v26, v26, v28
    v_mul_f32 v26, v26, v26
    v_fma_f32 v26, s{sU0}, v24, -v26
    ''')
    rstd_chain(26, 27)
    for j in range(5):
        for t in range(2):
            a(f'v_mul_f32 v{vZ + 2 * j + t}, v27, v{vXS + tm(j, t)}')
    a(f'''
    v_mov_b32 v23, 0
    v_mov_b32 v27, 0
    s_waitcnt lgkmcnt(0)
    ''')
    epoch_tag()
    tag_bytes()
    a(f'''
    s_cmp_lt_u32 s{sRi}, 10
    s_cbranch_scc1 L_tabs
    s_cmp_lt_u32 s{sRi}, 30
    s_cbranch_scc0 L_b1
    ''')
    gemv_compute('B')
    a.label('L_b1')
    bar('B1')
    a.label('L_tabs')
    a('s_barrier                                   ; BT')
    stamp('poll start')
    tab_read(vF20, T_F20C)
    tab_read(vF20 + 4, T_F20S)
    for q in range(4):
        tab_read(vTW + 4 * q, T_TW1 + q)
    for q in range(8):
        tab_read(vF32 + 4 * q, T_F32 + q)
    a(f'''
    s_sub_u32 s{sT}, s{sW}, 1
    s_cmp_lt_u32 s{sT}, 5
    s_cbranch_scc0 L_b2
    v_subrev_u32 v28, 64, v0                      ; u
    v_lshrrev_b32 v29, 4, v28
    v_lshlrev_b32 v29, 10, v29
    v_and_b32 v30, 0xf0, v{vL16}
    v_add_u32 v29, v29, v30
    v_cmp_le_u32 vcc, 160, v28
    v_cndmask_b32 v30, 0, 1.0, vcc
    v_lshlrev_b32 v28, 4, v28
    v_add_u32 v28, {MODA_L}, v28
    ''')
    poll([f'global_load_dwordx4 {vr(36 + 4 * p, 4)}, v29, {sr(WS)} offset:{256 * p} sc1' for p in range(4)],
         list(range(36, 52)), [52, 53, 54], empty='tag')
    a(f'''
    v_pk_add_f32 v[36:37], v[36:37], v[40:41]
    v_pk_add_f32 v[38:39], v[38:39], v[42:43]
    v_pk_add_f32 v[44:45], v[44:45], v[48:49]
    v_pk_add_f32 v[46:47], v[46:47], v[50:51]
    v_pk_add_f32 v[36:37], v[36:37], v[44:45]
    v_pk_add_f32 v[38:39], v[38:39], v[46:47]
    v_cvt_pk_bf16_f32 v40, v36, v37
    v_cvt_pk_bf16_f32 v41, v38, v39
    ''')
    unpack(36, 37, 40)
    unpack(38, 39, 41)
    a(f'''
    v_pk_add_f32 v[36:37], v[36:37], v[30:31] op_sel:[0,0] op_sel_hi:[1,0]
    v_pk_add_f32 v[38:39], v[38:39], v[30:31] op_sel:[0,0] op_sel_hi:[1,0]
    v_cvt_pk_bf16_f32 v40, v36, v37
    v_cvt_pk_bf16_f32 v41, v38, v39
    ''')
    unpack(36, 37, 40)
    unpack(38, 39, 41)
    a(f'ds_write_b128 v28, v[36:39]')
    a.label('L_b2')
    stamp('poll end')
    a('s_waitcnt lgkmcnt(0)')
    a('s_barrier                                   ; B2')
    stamp('B2 done (mod ready)')
    o = MODA_L // 512
    assert MODA_L % 8 == 0
    a(f'v_add_u32 v28, {MODA_L}, v{vE0}')
    a(f'ds_read2st64_b64 {vr(vSA, 4)}, v28 offset0:0 offset1:1')
    a(f'ds_read2st64_b64 {vr(vCA, 4)}, v28 offset0:5 offset1:6')
    a(f'ds_read2st64_b64 {vr(vSA + 4, 4)}, v28 offset0:2 offset1:3')
    a(f'ds_read2st64_b64 {vr(vCA + 4, 4)}, v28 offset0:7 offset1:8')
    a(f'ds_read_b64 {vr(vSA + 8, 2)}, v28 offset:2048')
    a(f'ds_read_b64 {vr(vCA + 8, 2)}, v28 offset:{2560 + 2048}')
    for j in range(5):
        if j in (0, 2, 4):
            a(f's_waitcnt lgkmcnt({4 - j})')
        a(f'v_pk_fma_f32 {vr(vZ + 2 * j, 2)}, {vr(vZ + 2 * j, 2)}, {vr(vCA + 2 * j, 2)}, {vr(vSA + 2 * j, 2)}')
    for t in range(2):
        a(f'v_cvt_pk_bf16_f32 v{Ra + 4 * t}, v{vZ + t}, v{vZ + 2 + t}')
        a(f'v_cvt_pk_bf16_f32 v{Ra + 4 * t + 1}, v{vZ + 4 + t}, v{vZ + 6 + t}')
        a(f'v_cvt_pk_bf16_f32 v{Ra + 4 * t + 2}, v{vZ + 8 + t}, 0')
    for t in range(2):
        mfma32(RD + 8 * t, Ra + 4 * t, vF20)
        mfma32(RD + 8 * t + 4, Ra + 4 * t, vF20 + 4)
    for t, tmp in ((0, Rb), (1, Rc)):
        cmul(tmp, tmp + 4, RD + 8 * t, RD + 8 * t + 4, vTW + 8 * t, vTW + 8 * t + 4, -1)
        pack4(Ra + 4 * t, tmp, tmp + 4)
    for ks in range(2):
        for u in range(2):
            for e in range(2):
                d = RD + 8 * u + 4 * e
                mfma32(d, vF32 + 16 * u + 8 * e + 4 * ks, Ra + 4 * ks, d if ks else None)
    for u in range(2):
        pack4(Rb + u, RD + 8 * u, RD + 8 * u + 4, step=2)
    for r in range(4):
        a(f'ds_write2_b32 v{vE0 + 1}, v{Rb + 2 * r}, v{Rb + 2 * r + 1} offset0:{4 * r} offset1:{4 * r + 2}')
    a(f'''
    s_lshl_b32 s{sU0}, s{sMe}, 14
    s_lshl_b32 s{sU1}, s{sW}, 8
    s_add_u32 s{sU0}, s{sU0}, s{sU1}
    v_mov_b32 v{Rc + 3}, s{sTag}
    v_mov_b32 v{Rc + 7}, s{sTag}
    ''')
    base_add(sBa, WS, sU0, T1_G)
    base_add(sBb, WS, sU0, T1_G + 8192)
    a('s_waitcnt lgkmcnt(0)')
    bar('B3')
    for n in range(3):
        a(f'ds_read_b64 {vr(Ra + 2 * n, 2)}, v{vE0 + 2} offset:{264 * n}')
    for n in range(3):
        a(f's_waitcnt lgkmcnt({2 - n})')
        mfma16(RD + 4 * n, vM8F, Ra + 2 * n)
    for j in range(2):
        for n in range(3):
            a(f'v_cvt_pk_bf16_f32 v{Rc + 4 * j + n}, v{RD + 4 * n + 2 * j}, v{RD + 4 * n + 2 * j + 1}')
        a(f'global_store_dwordx4 v{vS}, {vr(Rc + 4 * j, 4)}, {sr(sBb if j else sBa)} sc1')
    stamp('T1 stored')
    vWr = vVec
    for k in range(16):
        a(f'v_mov_b32 v{vWr + k}, 0')
    SC = 2.0 / (2048 * 640)
    sKa = sM7
    a(f'''
    v_and_b32 v36, 15, v{vL}
    v_and_b32 v37, 48, v{vL}
    v_lshl_add_u32 v36, v37, 2, v36               ; 64g + i
    v_mul_u32_u24 v{vE0 + 3}, 80, v36
    s_and_b32 s{sU1}, s{sW}, 3
    s_lshr_b32 s{sU2}, s{sW}, 2
    s_lshl_b32 s{sU2}, s{sU2}, 1
    s_mul_i32 s{sKa}, s{sU1}, 3
    s_add_u32 s{sKa}, s{sKa}, s{sU2}
    s_lshl_b32 s{sU1}, s{sU1}, 2
    s_add_u32 s{sU1}, s{sU1}, s{sU2}
    s_lshl_b32 s{sU1}, s{sU1}, 2
    s_add_u32 s{sU1}, s{sU1}, {XB2}
    v_add_u32 v{vE0 + 3}, s{sU1}, v{vE0 + 3}
    v_lshlrev_b32 v36, 5, v36
    v_add_u32 v36, {WST}, v36
    v_and_b32 v38, 4, v{vL}
    v_sub_u32 v39, 8, v38
    s_cmp_ge_u32 s{sIdx}, 16
    s_cselect_b64 vcc, -1, 0
    v_cndmask_b32 v38, v38, v39, vcc
    v_and_b32 v39, 8, v{vL}
    v_lshlrev_b32 v39, 1, v39
    s_lshl_b32 s{sU1}, s{sMe}, 6
    s_lshl_b32 s{sT}, s{sW}, 16
    s_add_u32 s{sU1}, s{sU1}, s{sT}
    ''')
    base_add(sBa, WS, sU1, T1_G)
    base_add(sBb, WS, sU1, T1_G + 128 * 16384)

    def w_setup():
        for q in range(2):
            tab_read(vTW + 4 * q, T_F16 + q)
            tab_read(vTW + 8 + 4 * q, T_TW2 + q)
        a(f's_and_b32 s{sU2}, s{sX}, 1                    ; q & 1')
        for s in range(2):
            ka, pos, gam = sBc, sBc + 1, sU3
            if s == 1:
                a(f's_cmp_ge_u32 s{sW}, 4')
                a('s_cbranch_scc1 L_wdone')
            a(f'''
            s_add_u32 s{ka}, s{sKa}, {s}
            s_min_u32 s{pos}, s{ka}, 10
            s_sub_u32 s{sT}, 10, s{pos}
            s_cmp_ge_u32 s{sIdx}, 16
            s_cselect_b32 s{pos}, s{sT}, s{pos}
            s_add_u32 s{pos}, s{pos}, s{sU2}
            s_lshl_b32 s{pos}, s{pos}, 1
            v_add_u32 v37, s{pos}, v38
            v_xor_b32 v37, v37, v39
            v_add_u32 v37, v37, v36
            ''')
            for arr in range(2):
                for r in range(4):
                    a(f'ds_read_u16_d16_hi v{vWr + 8 * s + 4 * arr + r}, v37 offset:{arr * 8192 + r * 512}')
            a(f's_mov_b32 s{gam}, {hex(f2u(SC))}')
            if s == 0:
                a(f'''
                s_and_b32 s{sT}, s{sIdx}, 15
                s_or_b32 s{sT}, s{sT}, s{ka}
                s_cmp_eq_u32 s{sT}, 0
                s_cselect_b32 s{gam}, {hex(f2u(SC / 2))}, s{gam}
                s_cmp_gt_u32 s{sIdx}, 16
                s_cselect_b32 s{sT}, s{ka}, 1
                s_cmp_eq_u32 s{sT}, 0
                s_cselect_b32 s{gam}, 0, s{gam}
                ''')
            else:
                a(f'''
                s_cmp_ge_u32 s{sIdx}, 16
                s_cselect_b32 s{sT}, s{ka}, 1
                s_cmp_eq_u32 s{sT}, 10
                s_cselect_b32 s{gam}, 0, s{gam}
                ''')
            a(f'''
            s_xor_b32 s{sT}, s{gam}, 0x80000000
            s_cmp_ge_u32 s{sIdx}, 16
            s_cselect_b32 s{sT}, s{sT}, s{gam}
            s_waitcnt lgkmcnt(0)
            ''')
            for r in range(4):
                a(f'v_mul_f32 v{vWr + 8 * s + r}, s{gam}, v{vWr + 8 * s + r}')
            for r in range(4):
                a(f'v_mul_f32 v{vWr + 8 * s + 4 + r}, s{sT}, v{vWr + 8 * s + 4 + r}')
        a.label('L_wdone')

    tpoll = [f'global_load_dwordx4 {vr(Ra, 4)}, v{vPoll}, {sr(sBa)} sc1', f'global_load_dwordx4 {vr(Ra + 4, 4)}, v{vPoll}, {sr(sBb)} sc1']
    bar('B3b')
    if PACE1:
        a(f's_sleep {PACE1}')
    stamp('B3b done')
    poll(tpoll, [Ra + 3, Ra + 7], [Rb, Rb + 1], empty='word', between=w_setup)
    a(f'ds_write_b128 v{vE0 + 4}, {vr(Ra, 4)}')
    a(f'ds_write_b128 v{vE0 + 4}, {vr(Ra + 4, 4)} offset:10240')
    base_add(sBa, WS, sU0, T2_G)
    base_add(sBb, WS, sU0, T2_G + 8192)
    a(f's_cmp_ge_u32 s{sW}, 4')
    a('s_waitcnt lgkmcnt(0)')
    bar('B4')
    stamp('B4 done (T1 in)')
    a('s_cbranch_scc1 L_p2_one')
    Fre, Fim, Tc, Ts = vTW, vTW + 4, vTW + 8, vTW + 12
    tmps = (Rb, Rc)

    def p2(ns):
        if ns == 2:
            for j in range(4):
                a(f'ds_read_b64 {vr(Rb + 2 * j, 2)}, v{vE0 + 3} offset:{1280 * j}')
            for h in range(2):
                a(f's_waitcnt lgkmcnt({2 - 2 * h})')
                for s in range(2):
                    a(f'v_pk_mov_b32 {vr(Ra + 4 * s + 2 * h, 2)}, {vr(Rb + 4 * h, 2)}, {vr(Rb + 4 * h + 2, 2)} op_sel:[{s},{s}]')
        else:
            a(f'ds_read2st64_b32 {vr(Ra, 2)}, v{vE0 + 3} offset0:0 offset1:5')
            a(f'ds_read2st64_b32 {vr(Ra + 2, 2)}, v{vE0 + 3} offset0:10 offset1:15')
            a('s_waitcnt lgkmcnt(0)')
        for s in range(ns):
            mfma32(RD + 8 * s, Ra + 4 * s, Fre)
            mfma32(RD + 8 * s + 4, Ra + 4 * s, Fim)
        for s in range(ns):
            cmul(tmps[s], tmps[s] + 4, RD + 8 * s, RD + 8 * s + 4, Tc, Ts, -1)
            pack4(Ra + 4 * s, tmps[s], tmps[s] + 4)
            mfma32(RD + 8 * s, Fre, Ra + 4 * s)
            mfma32(RD + 8 * s + 4, Fim, Ra + 4 * s)
        for s in range(ns):
            cmul(tmps[s], tmps[s] + 4, RD + 8 * s, RD + 8 * s + 4, vWr + 8 * s, vWr + 8 * s + 4, +1)
            pack4(Ra + 4 * s, tmps[s] + 4, tmps[s])
            mfma32(RD + 8 * s, Ra + 4 * s, Fim)
            mfma32(RD + 8 * s + 4, Ra + 4 * s, Fre)
        for s in range(ns):
            cmul(tmps[s], tmps[s] + 4, RD + 8 * s, RD + 8 * s + 4, Tc, Ts, +1)
            pack4(Ra + 4 * s, tmps[s] + 4, tmps[s])
            mfma32(RD + 8 * s, Fim, Ra + 4 * s)
            mfma32(RD + 8 * s + 4, Fre, Ra + 4 * s)
        for s in range(ns):
            pack4(Rb + s, RD + 8 * s, RD + 8 * s + 4, step=ns)
        if ns == 2:
            for r in range(4):
                a(f'ds_write_b64 v{vE0 + 3}, {vr(Rb + 2 * r, 2)} offset:{1280 * r}')
        else:
            a(f'ds_write2st64_b32 v{vE0 + 3}, v{Rb}, v{Rb + 1} offset0:0 offset1:5')
            a(f'ds_write2st64_b32 v{vE0 + 3}, v{Rb + 2}, v{Rb + 3} offset0:10 offset1:15')
        a('s_waitcnt lgkmcnt(0)')
    p2(2)
    a.label('L_b5')
    bar('B5')
    a(f'ds_read_b128 {vr(Rb, 4)}, v{vE0 + 4}')
    a(f'ds_read_b128 {vr(Rb + 4, 4)}, v{vE0 + 4} offset:10240')
    a('s_waitcnt lgkmcnt(1)')
    a(f'global_store_dwordx4 v{vS}, {vr(Rb, 4)}, {sr(sBa)} sc1')
    a('s_waitcnt lgkmcnt(0)')
    a(f'global_store_dwordx4 v{vS}, {vr(Rb + 4, 4)}, {sr(sBb)} sc1')
    stamp('T2 stored')
    late.append(lambda: (a.label('L_p2_one'), a(f's_cmp_eq_u32 s{sW}, 7'), a('s_cbranch_scc1 L_b5'), p2(1), a('s_branch L_b5')))
    vGA, vVV, vGC, vGS = vVec, vVec + 10, vVec + 20, vVec + 30
    for q in range(4):
        tab_read(vTW + 4 * q, T_TW3 + q)
    for q in range(3):
        tab_read(vF20 + 4 * q, T_F20I + q)
    a(f'''
    v_add_u32 v{vE0 + 5}, {MODB_L}, v{vL4}
    v_lshrrev_b32 v36, 4, v{vL}
    v_mul_u32_u24 v36, 4640, v36
    v_and_b32 v37, 3, v{vL}
    v_mul_u32_u24 v37, 576, v37
    v_and_b32 v38, 4, v{vL}
    v_lshl_add_u32 v36, v38, 2, v36
    v_bfe_u32 v38, v{vL}, 3, 1
    v_lshl_add_u32 v37, v38, 2, v37
    s_lshr_b32 s{sU2}, s{sW}, 1
    s_lshl_b32 s{sU2}, s{sU2}, 5
    s_and_b32 s{sT}, s{sW}, 1
    s_lshl_b32 s{sT}, s{sT}, 3
    s_add_u32 s{sU2}, s{sU2}, s{sT}
    s_add_u32 s{sU2}, s{sU2}, {XB3}
    v_add3_u32 v{vE0 + 1}, v36, v37, s{sU2}
    v_add_u32 v{vE0 + 2}, 2320, v{vE0 + 1}
    v_and_b32 v36, 15, v{vL}
    v_mul_u32_u24 v36, 144, v36
    v_and_b32 v37, 48, v{vL}
    v_lshl_add_u32 v36, v37, 1, v36
    s_mul_i32 s{sU2}, s{sW}, 2320
    s_add_u32 s{sU2}, s{sU2}, {XB3}
    v_add_u32 v{vE0 + 3}, s{sU2}, v36
    ''')
    base_add(sBa, WS, sU1, T2_G)
    base_add(sBb, WS, sU1, T2_G + 128 * 16384)
    base_add(sXrow, OUTP, sRow)

    def p3_setup():
        raw = Rb
        for k in range(0, 24, 2):
            a(f'ds_read2st64_b32 {vr(raw + k, 2)}, v{vE0 + 5} offset0:{k} offset1:{k + 1}')
        a(f'ds_read_b32 v{raw + 24}, v{vE0 + 5} offset:{24 * 256}')
        a('s_waitcnt lgkmcnt(0)')
        for vec, dst in ((0, vGA), (1, vGS), (2, vGC), (4, vVV)):
            for j in range(5):
                unpack(dst + tm(j, 0), dst + tm(j, 1), raw + 5 * vec + j)
        GB = Rb
        for j in range(5):
            unpack(GB + tm(j, 0), GB + tm(j, 1), raw + 15 + j)
        t0, t1, t2 = Rc + 2, Rc + 4, Rc + 6
        dot10(t0, vVV, vGS)
        for h in range(0, 10, 2):
            a(f'v_pk_mul_f32 {vr(vVV + h, 2)}, {vr(vVV + h, 2)}, {vr(vGC + h, 2)}')
        sum10(t1, vVV)
        a(f'v_mov_b32 v{t2}, s{sM1B}')
        for h in range(0, 10, 2):
            a(f'v_pk_mul_f32 {vr(vGC + h, 2)}, {vr(vGC + h, 2)}, {vr(GB + h, 2)}')
            a(f'v_pk_fma_f32 {vr(vGS + h, 2)}, {vr(vGS + h, 2)}, {vr(GB + h, 2)}, {vr(t2, 2)} op_sel:[0,0,0] op_sel_hi:[1,1,0]')
        wave_sum([t1, t0], [sV1, sV2])

    a('s_waitcnt lgkmcnt(0)')
    bar('B5b')
    stamp('B5b done')
    if P3FIRST:
        p3_setup()
    if PACE2:
        a(f's_sleep {PACE2}')
    stamp('T2 poll')
    poll(tpoll, [Ra + 3, Ra + 7], [Rb, Rb + 1], empty='word', between=None if P3FIRST else p3_setup)
    stamp('T2 in')
    for n in range(3):
        a(f'v_pk_mov_b32 {vr(Rb + 2 * n, 2)}, {vr(Ra + (n & 2), 2)}, {vr(Ra + 4 + (n & 2), 2)} op_sel:[{n & 1},{n & 1}]')
    for n in range(3):
        mfma16(RD + 4 * n, vM8I, Rb + 2 * n)
    for jj in range(2):
        for n in range(3):
            a(f'v_cvt_pk_bf16_f32 v{Ra + 4 * jj + n}, v{RD + 4 * n + 2 * jj + 1}, v{RD + 4 * n + 2 * jj}')
        a(f'ds_write2_b32 v{vE0 + 1 + jj}, v{Ra + 4 * jj}, v{Ra + 4 * jj + 1} offset0:0 offset1:36')
        a(f'ds_write_b32 v{vE0 + 1 + jj}, v{Ra + 4 * jj + 2} offset:288')
    a('s_waitcnt lgkmcnt(0)')
    a('s_barrier                                   ; B6')
    a(f'ds_read_b128 {vr(Rb, 4)}, v{vE0 + 3}')
    a(f'ds_read_b128 {vr(Rb + 4, 4)}, v{vE0 + 3} offset:16')
    for ks in range(2):
        a(f's_waitcnt lgkmcnt({1 - ks})')
        for t in range(2):
            for e in range(2):
                d = RD + 8 * t + 4 * e
                mfma32(d, Rb + 4 * ks, vF32 + 16 * t + 8 * (1 - e) + 4 * ks, d if ks else None)
    for t, tmp in ((0, Ra), (1, Rc)):
        cmul(tmp, tmp + 4, RD + 8 * t, RD + 8 * t + 4, vTW + 8 * t, vTW + 8 * t + 4, +1)
        pack4(Rb + 4 * t, tmp, tmp + 4, n=3)
        a(f'v_mov_b32 v{Rb + 4 * t + 3}, 0')
    Y = RD
    mfma32(Y, vF20, Rb)
    mfma32(Y + 8, vF20 + 4, Rb)
    mfma32(Y + 4, vF20, Rb + 4)
    mfma32(Y + 8, vF20 + 8, Rb + 4, Y + 8)
    for h in range(0, 10, 2):
        a(f'v_pk_fma_f32 {vr(Y + h, 2)}, {vr(Y + h, 2)}, {vr(vGA + h, 2)}, {vr(vXS + h, 2)}')
    s1, s2, s3 = Ra, Ra + 2, Ra + 4
    a(f'v_pk_add_f32 {vr(s1, 2)}, {vr(Y, 2)}, {vr(Y + 2, 2)}')
    a(f'v_pk_mul_f32 {vr(s2, 2)}, {vr(Y, 2)}, {vr(Y, 2)}')
    a(f'v_pk_mul_f32 {vr(s3, 2)}, {vr(Y, 2)}, {vr(vVV, 2)}')
    for h in (2, 4, 6, 8):
        if h > 2:
            a(f'v_pk_add_f32 {vr(s1, 2)}, {vr(s1, 2)}, {vr(Y + h, 2)}')
        a(f'v_pk_fma_f32 {vr(s2, 2)}, {vr(Y + h, 2)}, {vr(Y + h, 2)}, {vr(s2, 2)}')
        a(f'v_pk_fma_f32 {vr(s3, 2)}, {vr(Y + h, 2)}, {vr(vVV + h, 2)}, {vr(s3, 2)}')
    for s in (s1, s2, s3):
        a(f'v_add_f32 v{s}, v{s}, v{s + 1}')
    wave_sum([s1, s2, s3], [sU0, sU2, sU3])
    k0 = Rc
    a(f'''
    v_mov_b32 v{Ra}, {INV640}
    v_mul_f32 v{Ra + 1}, s{sU0}, v{Ra}            ; mu
    v_mul_f32 v{Ra + 2}, v{Ra + 1}, v{Ra + 1}
    v_add_f32 v{Ra + 3}, s{sM1B}, v{Ra + 1}
    v_fma_f32 v{Ra + 2}, s{sU2}, v{Ra}, -v{Ra + 2} ; var
    ''')
    rbf(Ra + 3, f'v{Ra + 3}')
    rstd_chain(Ra + 2, k0)
    a(f'''
    v_sub_f32 v{Ra + 3}, s{sM1B}, v{Ra + 3}       ; -delta
    v_mov_b32 v{Ra + 4}, s{sU3}
    v_fma_f32 v{Ra + 4}, v{Ra + 3}, s{sV1}, v{Ra + 4}
    v_fma_f32 v{Ra + 4}, v{Ra + 4}, v{k0}, s{sV2} ; r
    v_mul_f32 v{k0 + 1}, v{Ra + 3}, v{k0}
    v_ashrrev_i32 v{Ra + 5}, 31, v{Ra + 4}
    v_or_b32 v{Ra + 5}, 0x80000000, v{Ra + 5}
    v_xor_b32 v{Ra + 4}, v{Ra + 4}, v{Ra + 5}
    v_and_b32 v{Ra + 4}, 0xfffff800, v{Ra + 4}
    v_or_b32 v{Ra + 4}, s{sKey}, v{Ra + 4}
    v_mov_b32 v{Ra + 7}, {KEYL}
    v_mov_b32 v{Ra + 5}, s{sTag}
    s_mov_b64 exec, 1
    ds_max_u32 v{Ra + 7}, v{Ra + 4}
    s_mov_b64 exec, -1
    v_readfirstlane_b32 s{sKey}, v{Ra + 4}
    ''')
    ZN = vGA
    for h in range(0, 10, 2):
        a(f'v_pk_fma_f32 {vr(ZN + h, 2)}, {vr(Y + h, 2)}, {vr(k0, 2)}, {vr(k0, 2)} op_sel:[0,0,1] op_sel_hi:[1,0,1]')
        a(f'v_pk_add_f32 {vr(Y + h, 2)}, {vr(Y + h, 2)}, {vr(vGS + h, 2)}')
    for h in range(0, 10, 2):
        a(f'v_pk_fma_f32 {vr(Y + h, 2)}, {vr(ZN + h, 2)}, {vr(vGC + h, 2)}, {vr(Y + h, 2)}')
    vO = vXS
    for j in range(5):
        a(f'v_cvt_pk_bf16_f32 v{vO + j}, v{Y + tm(j, 0)}, v{Y + tm(j, 1)}')
    a(f's_mul_i32 s{sU0}, s{sMe}, {REC_STRIDE}')
    base_add(sBa, WS, sU0, REC_G)
    a('s_waitcnt lgkmcnt(0)')
    a('s_barrier                                   ; B7')
    a(f'''
    ds_read_b32 v{Ra + 6}, v{Ra + 7}
    s_waitcnt lgkmcnt(0)
    v_readfirstlane_b32 s{sU0}, v{Ra + 6}
    s_cmp_eq_u32 s{sU0}, s{sKey}
    s_cselect_b32 s{sCand}, 1, 0
    s_cbranch_scc0 L_keys
    s_mov_b64 exec, 1
    global_store_dwordx2 v{vL4}, {vr(Ra + 4, 2)}, {sr(sBa)} sc1
    s_mov_b64 exec, -1
    ''')
    raw, SB, CB, H, Bq = 60, 70, 80, 92, 108
    for k in range(0, 10, 2):
        a(f'ds_read2st64_b32 {vr(raw + k, 2)}, v{vE0 + 5} offset0:{5 + k} offset1:{6 + k}')
    a(f'v_add_u32 v{Ra}, {REC_BASE}, v{vL16}')
    for qd in range(4):
        a(f'v_mov_b32 v{H + 4 * qd + 3}, s{sTag}')
    a('s_waitcnt lgkmcnt(0)')
    for j in range(5):
        unpack(SB + tm(j, 0), SB + tm(j, 1), raw + j)
        unpack(CB + tm(j, 0), CB + tm(j, 1), raw + 5 + j)
    for t in range(2):
        for j in range(5):
            k = tm(j, t)
            a(f'v_fma_f32 v{H + 8 * t + j + (j >= 3)}, v{ZN + k}, v{CB + k}, v{SB + k}')
        for qd in range(2):
            a(f'global_store_dwordx4 v{vL16}, {vr(H + 8 * t + 4 * qd, 4)}, {sr(sBa)} offset:{REC_H2 + 2048 * t + 1024 * qd} sc1')
    def out_row():
        for j in range(5):
            a(f'global_store_dword v{vL4}, v{vO + j}, {sr(sXrow)} offset:{256 * j} sc1')
    out_row()
    a.label('L_keys')
    stamp('key out')
    bar('B7b (candidate stores are out, the helpers have ended)')
    a(f'''
    s_cmp_ge_u32 s{sRi}, 20
    s_cselect_b32 s{sT}, 1, s{sCand}
    s_cmp_lg_u32 s{sT}, 0
    s_cbranch_scc1 L_noout
    ''')
    out_row()
    a('s_branch L_fin')
    a.label('L_noout')
    vEW, vFW = 60, 100
    a(f'''
    s_cmp_lt_u32 s{sRi}, 20
    s_cbranch_scc1 L_no_ew
    s_mul_i32 s{sT}, s{sW}, 5120
    s_add_u32 s{sT}, s{sT}, {EW}
    v_add_u32 v{Rb}, s{sT}, v{vL16}
    s_lshl_b32 s{sT}, s{sW}, 8
    s_add_u32 s{sT}, s{sT}, {FW}
    v_add_u32 v{Rb + 1}, s{sT}, v{vL4}
    ''')
    st = 132
    for j in range(5):
        a(f'ds_read_b128 {vr(st + 4 * j, 4)}, v{Rb} offset:{1024 * j}')
    a('s_waitcnt lgkmcnt(0)')
    for k in range(20):
        unpack(vEW + 2 * k, vEW + 2 * k + 1, st + k)
    a(f's_cmp_ge_u32 s{sW}, 5')
    a('s_cbranch_scc1 L_no_ew')
    for u in range(0, 16, 2):
        a(f'ds_read2st64_b32 {vr(st + u, 2)}, v{Rb + 1} offset0:{5 * u} offset1:{5 * u + 5}')
    a('s_waitcnt lgkmcnt(0)')
    for k in range(16):
        unpack(vFW + 2 * k, vFW + 2 * k + 1, st + k)
    a.label('L_no_ew')
    a(f's_cmp_eq_u32 s{sCand}, 0')
    a('s_cbranch_scc1 L_nobase')
    Bq = 132
    for t in range(2):
        for j in range(5):
            a(f'v_mov_b32 v{Bq + 8 * t + j + (j >= 3)}, v{Y + tm(j, t)}')
        for qd in range(2):
            a(f'v_mov_b32 v{Bq + 8 * t + 4 * qd + 3}, s{sTag}')
    a('s_waitcnt vmcnt(0)')
    for t in range(2):
        for qd in range(2):
            a(f'global_store_dwordx4 v{Ra}, {vr(Bq + 8 * t + 4 * qd, 4)}, {sr(sBa)} offset:{2048 * t + 1024 * qd} sc1')
    a.label('L_nobase')
    a(f'''
    s_cmp_lt_u32 s{sRi}, 20
    s_cbranch_scc1 L_fin
    v_mov_b32 v{Rb + 2}, {KEYL + 4}
    s_cmp_lt_u32 s{sW}, 4
    s_cbranch_scc1 L_b8
    v_mul_u32_u24 v{Rb}, {REC_STRIDE}, v0
    v_add_u32 v{Rb}, {REC_G - 256 * REC_STRIDE}, v{Rb}
    ''')
    stamp('key poll')
    poll([f'global_load_dwordx2 {vr(Rb + 4, 2)}, v{Rb}, {sr(WS)} sc1'], [Rb + 5], [], empty='word')
    for c in ('row_ror:8', 'row_ror:4', 'row_ror:2', 'row_ror:1'):
        dpp('v_max_u32', Rb + 4, c)
    a(f'''
    s_mov_b32 exec_lo, 0x00010001
    s_mov_b32 exec_hi, 0x00010001
    ds_max_u32 v{Rb + 2}, v{Rb + 4}
    s_mov_b64 exec, -1
    s_waitcnt lgkmcnt(0)
    ''')
    a.label('L_b8')
    a('s_barrier                                   ; B8')
    a(f'''
    ds_read_b32 v{Rb + 3}, v{Rb + 2}
    s_waitcnt lgkmcnt(0)
    v_readfirstlane_b32 s{sU0}, v{Rb + 3}
    s_and_b32 s{sU1}, s{sU0}, 255
    s_mul_i32 s{sU1}, s{sU1}, {REC_STRIDE}
    ''')
    base_add(sBa, WS, sU1, REC_G)
    stamp('B8 done (winner)')
    a(f'''
    v_bfe_u32 v30, v0, 2, 6                        ; lane' = (t'>>1)>>1
    v_bfe_u32 v31, v0, 1, 1                        ; t
    v_lshlrev_b32 v28, 4, v30
    v_lshl_add_u32 v28, v31, 11, v28
    ''')
    poll([f'global_load_dwordx4 v[20:23], v28, {sr(sBa)} offset:{REC_H2} sc1',
          f'global_load_dwordx4 v[24:27], v28, {sr(sBa)} offset:{REC_H2 + 1024} sc1'], [23, 27], [30, 31], empty='word')
    stamp('row in')
    a(f's_cmp_lg_u32 s{sCand}, 0')
    a('s_cbranch_scc1 L_noout2')
    out_row()
    a.label('L_noout2')
    acc = 36
    for j in range(5):
        for k in range(4):
            w_ = vr(vEW + 8 * j + 2 * k, 2)
            xr = 20 + j + (j >= 3)
            x_ = vr(xr & ~1, 2)
            if j == 0:
                a(f'v_pk_mul_f32 {vr(acc + 2 * k, 2)}, {w_}, {x_} op_sel:[0,0] op_sel_hi:[1,0]')
            else:
                a(f'v_pk_fma_f32 {vr(acc + 2 * k, 2)}, {w_}, {x_}, {vr(acc + 2 * k, 2)} {BC1 if xr & 1 else BC0}')
    a(f'''
    v_and_b32 v28, 1, v{vL}
    v_lshlrev_b32 v28, 7, v28
    v_and_b32 v29, 48, v{vL}
    v_lshl_add_u32 v28, v29, 1, v28
    s_lshr_b32 s{sU1}, s{sW}, 2
    s_lshl_b32 s{sU1}, s{sU1}, 8
    s_and_b32 s{sT}, s{sW}, 3
    s_lshl_b32 s{sT}, s{sT}, 2
    s_add_u32 s{sU1}, s{sU1}, s{sT}
    s_add_u32 s{sU1}, s{sU1}, {RED}
    v_add_u32 v28, s{sU1}, v28
    v_and_b32 v29, 0xf0, v{vL16}
    v_and_b32 v30, 16, v{vL16}
    v_lshrrev_b32 v30, v30, s{sTag}
    v_bfe_u32 v31, v30, 8, 8
    v_and_b32 v30, 0xff, v30
    v_mov_b32 v32, 0xffffff00
    ''')
    swap_reduce8(acc)
    for c in ('row_ror:8', 'row_ror:4', 'row_ror:2'):
        dpp('v_add_f32', acc, c)
        dpp('v_add_f32', acc + 1, c)
    a(f'''
    s_mov_b32 exec_lo, 0x00030003
    s_mov_b32 exec_hi, 0x00030003
    ds_write2_b32 v28, v{acc}, v{acc + 1} offset0:0 offset1:4
    s_mov_b64 exec, -1
    s_mul_i32 s{sU1}, s{sX}, 12
    s_add_u32 s{sU1}, s{sU1}, s{sRi}
    s_mul_i32 s{sU1}, s{sU1}, {PY_STRIDE}
    s_lshl_b32 s{sT}, s{sW}, 9
    s_add_u32 s{sU1}, s{sU1}, s{sT}
    ''')
    base_add(sBb, WS, sU1, PY_G - 20 * PY_STRIDE)
    a(f'''
    s_waitcnt lgkmcnt(0)
    s_barrier                                   ; B9
    s_cmp_ge_u32 s{sW}, 5
    s_cbranch_scc1 L_e_done
    ds_read_b128 v[20:23], v29 offset:{RED}
    ds_read_b128 v[24:27], v29 offset:{RED + 256}
    s_waitcnt lgkmcnt(0)
    v_pk_add_f32 v[20:21], v[20:21], v[22:23]
    v_pk_add_f32 v[24:25], v[24:25], v[26:27]
    v_add_f32 v20, v20, v21
    v_add_f32 v24, v24, v25
    v_cvt_pk_bf16_f32 v24, v20, v24
    ''')
    unpack(20, 24, 24)
    silu([20], [20], [21])
    rbf(20, 'v20')
    a('v_mul_f32 v20, v20, v24')
    rbf(20, 'v20')
    for u in range(16):
        a(f'v_readlane_b32 s{sGU + u}, v20, {u}')
    for u in range(16):
        w_ = vr(vFW + 2 * u, 2)
        g_ = sr(sGU + (u & ~1))
        d_ = vr(36 + 2 * (u & 1), 2)
        if u < 2:
            a(f'v_pk_mul_f32 {d_}, {w_}, {g_} op_sel:[0,{u & 1}] op_sel_hi:[1,{u & 1}]')
        else:
            a(f'v_pk_fma_f32 {d_}, {w_}, {g_}, {d_} {BC1 if u & 1 else BC0}')
    a('v_pk_add_f32 v[36:37], v[36:37], v[38:39]')
    a('v_and_or_b32 v36, v36, v32, v30')
    a('v_and_or_b32 v37, v37, v32, v31')
    a(f'global_store_dwordx2 v{vE0}, v[36:37], {sr(sBb)} sc1')
    stamp('PY out')
    a('s_waitcnt vmcnt(0)')
    a.label('L_e_skip')
    bar('B10')
    a('s_branch L_fin')
    a.label('L_e_done')
    a(f'''
    s_mul_i32 s{sU2}, s{sX}, 10
    s_add_u32 s{sU2}, s{sU2}, s{sRi}
    s_sub_u32 s{sU2}, s{sU2}, 20                   ; f
    s_cmp_lg_u32 s{sW}, 5
    s_cbranch_scc1 L_e_skip
    s_cmp_ge_u32 s{sRi}, 30
    s_cbranch_scc1 L_e_skip
    ''')
    a(f'''
    v_and_b32 v20, 1, v{vL}
    v_lshrrev_b32 v21, 4, v{vL}
    v_lshl_add_u32 v20, v20, 2, v21
    s_lshl_b32 s{sT}, s{sU2}, 3
    v_add_u32 v20, s{sT}, v20                      ; d
    v_lshlrev_b32 v21, 1, v20
    v_add_u32 v21, {MODB_L + 3840}, v21
    v_mov_b32 v22, 0
    ds_read_u16_d16_hi v22, v21                    ; gb[d]
    s_lshr_b32 s{sU3}, s{sU2}, 4                   ; j
    s_cmp_ge_u32 s{sU3}, 3
    s_cselect_b32 s{sT}, 3, 0
    s_sub_u32 s{sU3}, s{sU3}, s{sT}
    s_mul_i32 s{sT}, s{sT}, 342
    s_and_b32 s{sT}, s{sT}, 1024
    s_add_u32 s{sT}, s{sT}, {REC_BASE}
    v_bfe_u32 v24, v20, 1, 6                       ; lane'
    v_and_b32 v25, 1, v20                          ; t
    v_lshlrev_b32 v26, 11, v25
    v_lshl_add_u32 v26, v24, 4, v26
    v_add_u32 v26, s{sT}, v26
    ''')
    poll([f'global_load_dwordx4 v[32:35], v26, {sr(sBa)} sc1'], [35], [], empty='word')
    a(f'''
    s_cmp_eq_u32 s{sU3}, 1
    s_cselect_b64 vcc, -1, 0
    v_cndmask_b32 v27, v32, v33, vcc
    s_cmp_eq_u32 s{sU3}, 2
    s_cselect_b64 vcc, -1, 0
    v_cndmask_b32 v27, v27, v34, vcc
    ''')
    a(f'''
    s_and_b32 s{sU1}, s{sU0}, 0xfffff800
    s_or_b32 s{sU1}, s{sU1}, 0x400
    s_xor_b32 s{sU3}, s{sU1}, 0x80000000
    s_not_b32 s{sT}, s{sU1}
    s_cmp_lt_i32 s{sU1}, 0
    s_cselect_b32 s{sU1}, s{sU3}, s{sT}
    v_mov_b32 v28, s{sU1}
    ''')
    rbf(28, 'v28')
    a(f'''
    v_mul_f32 v28, 0xbfb8aa3b, v28
    v_exp_f32 v28, v28
    v_add_f32 v28, 1.0, v28
    v_rcp_f32 v28, v28
    ''')
    rbf(28, 'v28')
    a(f'''
    s_and_b32 s{sU1}, s{sU0}, 0x7ff
    s_mul_i32 s{sU1}, s{sU1}, 1280
    v_lshlrev_b32 v20, 1, v20
    v_lshrrev_b32 v29, 1, v{vL}
    v_mul_u32_u24 v29, {PY_STRIDE}, v29
    v_and_b32 v30, 16, v{vL16}
    v_add_u32 v29, v29, v30
    v_add_u32 v30, {32 * PY_STRIDE}, v29
    v_add_u32 v31, {64 * PY_STRIDE}, v29
    s_lshl_b32 s{sU2}, s{sU2}, 5
    ''')
    base_add(sXrow, OUTP, sU1)
    base_add(sBb, WS, sU2, PY_G)
    a('s_waitcnt lgkmcnt(0)')
    bar('B10')
    stamp('PY poll')
    poll([f'global_load_dwordx4 {vr(36 + 4 * n, 4)}, v{29 + n}, {sr(sBb)} sc1' for n in range(3)],
         list(range(36, 48)), [48, 49], empty='tag')
    a(f'''
    v_pk_add_f32 v[36:37], v[36:37], v[40:41]
    v_pk_add_f32 v[38:39], v[38:39], v[42:43]
    v_pk_add_f32 v[36:37], v[36:37], v[44:45]
    v_pk_add_f32 v[38:39], v[38:39], v[46:47]
    v_permlane32_swap_b32 v36, v38
    v_permlane32_swap_b32 v37, v39
    v_pk_add_f32 v[36:37], v[36:37], v[38:39]
    v_permlane16_swap_b32 v36, v37
    v_add_f32 v36, v36, v37
    ''')
    for c in ('row_ror:8', 'row_ror:4', 'row_ror:2'):
        dpp('v_add_f32', 36, c)
    rbf(36, 'v36')
    a(f'''
    v_mul_f32 v36, v36, v28
    v_fma_f32 v36, v36, v22, v27
    v_cvt_pk_bf16_f32 v36, v36, v36
    s_mov_b32 exec_lo, 0x00030003
    s_mov_b32 exec_hi, 0x00030003
    global_store_short v20, v36, {sr(sXrow)} sc1
    s_mov_b64 exec, -1
    ''')
    a.label('L_fin')
    stamp('end')
    dump_stamps()
    a.label('L_end')
    a('s_endpgm')
    for f in late:
        f()


sF1, sF2, sPb, sGw, sWb = 56, 58, 60, 62, 64


def publish():
    a(f'''
    ds_read_b128 v[40:43], v28 offset:{RED}
    ds_read_b128 v[44:47], v28 offset:{RED + 16}
    s_waitcnt lgkmcnt(0)
    v_pk_add_f32 v[40:41], v[40:41], v[42:43]
    v_pk_add_f32 v[44:45], v[44:45], v[46:47]
    v_pk_add_f32 v[40:41], v[40:41], v[44:45]
    v_add_f32 v40, v40, v41
    v_and_or_b32 v40, v40, v33, v34
    global_store_dword v{vL4}, v40, {sr(sPb)} sc1
    ''')
    stamp('published', 'H0')


def w_addr():
    a(f'''
    s_mul_i32 s{sU1}, s{sIdx}, 40
    s_sub_u32 s{sT}, 1260, s{sU1}
    s_sub_u32 s{sU0}, 0, s{sX}
    s_and_b32 s{sU0}, s{sU0}, 7
    s_cmp_ge_u32 s{sIdx}, 16
    s_cselect_b32 s{sU1}, s{sT}, s{sU1}             ; 2*C0
    s_cselect_b32 s{sU2}, -1, 1                     ; direction
    s_cselect_b32 s{sU0}, s{sU0}, s{sX}             ; q
    s_and_b32 s{sT}, s{sX}, 1
    s_lshl_b32 s{sT}, s{sT}, 1
    s_sub_u32 s{sU1}, s{sU1}, s{sT}                 ; rows of odd index start 2 bytes early (4-byte alignment)
    s_movk_i32 s{sU3}, 0x2aab
    ''')
    a(f'''
    v_lshrrev_b32 v90, 1, v{vL}
    v_lshl_add_u32 v93, v90, 3, s{sU0}
    v_mul_lo_u32 v93, v93, s{sU2}
    v_and_b32 v91, 4, v90
    v_sub_u32 v92, 8, v91
    s_cmp_ge_u32 s{sIdx}, 16
    s_cselect_b64 vcc, -1, 0
    v_cndmask_b32 v91, v91, v92, vcc
    v_sub_u32 v96, s{sU1}, v91
    v_xor_b32 v92, v{vL16}, v{vL}
    v_and_b32 v92, 16, v92
    v_add_u32 v96, v96, v92
    ''')
    a(f'''
    s_mul_i32 s{sT}, s{sIdx}, 48
    v_add_u32 v90, s{sT}, v{vL}
    v_min_u32 v90, 1535, v90
    v_mul_u32_u24 v91, s{sU3}, v90
    v_lshrrev_b32 v91, 16, v91
    v_mul_u32_u24 v92, 6, v91
    v_sub_u32 v92, v90, v92
    v_lshlrev_b32 v92, 7, v92
    v_min_u32 v92, 638, v92
    s_mul_i32 s{sT}, s{sX}, 642
    v_add_u32 v92, s{sT}, v92
    s_movk_i32 s{sT}, 5136
    v_mad_u32_u24 v92, v91, s{sT}, v92
    v_and_b32 v124, -4, v92
    s_lshl_b32 s{sU2}, s{sU2}, 8
    s_movk_i32 s{sU3}, 642
    ''')
    for n in range(8):
        a(f'v_and_b32 v90, 0x7ff, v93')
        a(f'v_mad_u32_u24 v{100 + n}, v90, s{sU3}, v96')
        if n < 7:
            a(f'v_add_u32 v93, s{sU2}, v93')


def w_warm(arr):
    a('s_mov_b32 exec_hi, 0xffff')
    a(f'global_load_dword v125, v124, {sr(arr)}')
    a('s_mov_b64 exec, -1')


def w_gather(arr, lds):
    for n in range(8):
        a(f's_mov_b32 m0, {lds + 1024 * n}')
        a(f'global_load_lds_dwordx4 v{100 + n}, {sr(arr)}')


def gu_addr(h):
    a(f'''
    s_mul_i32 s{sU3}, s{sIdx}, 60
    s_mul_i32 s{sU1}, s{sX}, 384
    s_movk_i32 s{sU2}, 0x5556
    s_movk_i32 s{sT}, {3072 - 384}
    v_add_u32 v90, s{sU3}, v{vL}
    v_min_u32 v90, 1919, v90
    v_mul_u32_u24 v91, s{sU2}, v90
    v_lshrrev_b32 v91, 16, v91
    v_lshl_add_u32 v90, v90, 7, s{sU1}
    v_mad_u32_u24 v126, v91, s{sT}, v90
    s_mul_i32 s{sU1}, s{sMe}, 7680
    s_add_u32 s{sU1}, s{sU1}, {3840 * h}
    v_lshl_add_u32 v129, v{vL}, 7, s{sU1}
    ''')


def gu_warm(mat):
    a('s_mov_b32 exec_hi, 0x0fffffff')
    a(f'global_load_dword v127, v126, {sr(mat)}')
    a('s_mov_b64 exec, 0x3fffffff')
    a(f'global_load_dword v130, v129, {sr(W_D)}')
    a('s_mov_b64 exec, -1')


def e_addr(mat):
    a(f'''
    s_max_u32 s{sU1}, s{sRi}, 20
    s_mul_i32 s{sU0}, s{sX}, 12
    s_add_u32 s{sU0}, s{sU0}, s{sU1}
    s_sub_u32 s{sU0}, s{sU0}, 20
    s_mul_i32 s{sU1}, s{sU0}, 20480
    s_lshl_b32 s{sU0}, s{sU0}, 5
    v_lshrrev_b32 v128, 1, v{vL}
    v_mul_u32_u24 v128, 3072, v128
    v_and_b32 v90, 16, v{vL16}
    v_add_u32 v128, v128, v90
    ''')
    base_add(sF1, mat, sU0)
    base_add(sGw, W_D, sU1, 10240 if mat == W_U else 0)


def if_e(f):
    L = newlabel('ne')
    a(f's_cmp_lt_u32 s{sRi}, 20')
    a(f's_cbranch_scc1 {L}')
    f()
    a.label(L)


def e_gather(half, n0, n1):
    for n in range(n0, n1):
        a(f's_mov_b32 m0, {EW + (n % 4 + 4 * half) * 5120 + (n // 4) * 1024}')
        a(f'global_load_lds_dwordx4 v128, {sr(sF1)}')
        if n < 19:
            a(f'v_add_u32 v128, {32 * 3072}, v128')


def wd_load(half):
    for n in range(10):
        if n % 4 == 0:
            a(f's_mov_b32 m0, {FW + half * 10240 + n * 1024}')
            a(f'v_add_u32 v90, {1024 * n}, v{vL16}')
        a(f'global_load_lds_dwordx4 v90, {sr(sGw)} offset:{1024 * (n % 4)}')


def background(h, slot):
    if S_WWARM == slot:
        w_warm(W_R if h else W_I)
    if S_GUW == slot:
        gu_warm(W_G if h else W_U)
    if S_WD == slot:
        if_e(lambda: wd_load(1 - h))
    if slot == 3 and EG3:
        if_e(lambda: e_gather(1 - h, 0, EG3))
    if slot == 4 and EG3 < 20:
        if_e(lambda: e_gather(1 - h, EG3, 20))


def nbg(slot):
    return (S_WWARM == slot) + 2 * (S_GUW == slot)


def helper_tail(h, P, in_w1, in_w2):
    bar('BT')
    background(h, 1)
    bar('B2')
    in_w1(0)
    if S_WWARM < 2:
        w_gather(W_R if h else W_I, WST + (0 if h else 8192))
    in_w1(1)
    background(h, 2)
    in_w1(2)
    bar('B3')
    if S_WWARM == 2:
        a('s_waitcnt vmcnt(0)')
        stamp('W warm', P)
        w_gather(W_R if h else W_I, WST + (0 if h else 8192))
        a('s_waitcnt vmcnt(0)')
    else:
        a(f's_waitcnt vmcnt({nbg(2)})')
    stamp('W in', P)
    bar('B3b')
    bar('B4')
    in_w2(0)
    background(h, 3)
    bar('B5')
    in_w2(1)
    bar('B5b')
    if DIAG and not PROBE:
        a('s_waitcnt vmcnt(0)')
        stamp('w2 done', P)
    bar('B6')
    background(h, 4)
    if h == 0:
        a(f'''
        s_cmp_lg_u32 s2, 8
        s_cbranch_scc1 L_h0_ne
        v_mov_b32 v26, {EPOCH_G}
        s_mov_b64 exec, 1
        global_store_dword v26, v27, {sr(WS)} sc1
        s_mov_b64 exec, -1
        ''')
        a.label('L_h0_ne')
    bar('B7')
    a('s_waitcnt vmcnt(0)')
    stamp('end', P)
    dump_stamps(P)
    a('s_endpgm')


def helper0():
    a.label('L_h0')
    a(f'''
    v_mov_b32 v20, 0
    v_mov_b32 v21, 0
    v_mov_b32 v28, {KEYL}
    ds_write_b64 v28, v[20:21]
    ''')
    blk_id(sCand)
    a(f'''
    s_lshl_b32 s{sU2}, s{sCand}, 8
    v_lshlrev_b32 v28, 5, v{vL}
    s_waitcnt lgkmcnt(0)
    ''')
    stamp('kernarg', 'H0')
    epoch_load()
    base_add(sPb, WS, sU2)
    e_addr(W_U)
    a('s_waitcnt lgkmcnt(0)')
    epoch_tag()
    tag_bytes()
    a(f'''
    v_mov_b32 v27, s{sTag}
    v_lshlrev_b32 v34, 3, v{vL}
    v_add_u32 v29, {MODB_L}, v34
    v_and_b32 v34, 24, v34
    v_bfe_u32 v34, v27, v34, 8
    v_mov_b32 v33, 0xffffff00
    v_add_u32 v30, {MODF_G}, v{vL16}
    v_add_u32 v31, {MODF_G + 4096}, v{vL16}
    v_add_u32 v32, {MODF_G + 8192}, v{vL16}
    ''')
    w_addr()
    gu_addr(0)
    if nbg(0):
        a(f's_cmp_lt_u32 s{sRi}, 10')
        a('s_cbranch_scc1 L_h0_s0')
        background(0, 0)
        a.label('L_h0_s0')
    a(f's_cmp_lt_u32 s{sRi}, 30')
    bar('B1')
    a('s_cbranch_scc0 L_h0_np')
    publish()
    a.label('L_h0_np')
    if nbg(0):
        a(f's_cmp_lt_u32 s{sRi}, 10')
        a('s_cbranch_scc0 L_h0_s1')
        background(0, 0)
        a.label('L_h0_s1')
    red = [f'global_load_dwordx4 v[40:43], v{vL16}, {sr(sPb)} sc1']
    modf = [f'global_load_dwordx4 {vr(40 + 4 * n, 4)}, v{30 + n // 4}, {sr(WS)} offset:{1024 * (n % 4)} sc1' for n in range(10)]

    def in_w1(k):
        if k == 1:
            return
        L = newlabel('nr')
        a(f'''
        s_sub_u32 s{sT}, s{sRi}, 10
        s_cmp_lt_u32 s{sT}, 20
        s_cbranch_scc0 {L}
        s_and_b32 s{sT}, s{sCand}, 3
        s_cbranch_scc1 {L}
        ''')
        if k == 0:
            a(red[0])
            a.label(L)
            return
        poll(red, [40, 41, 42, 43], [44], empty='tag', issued=True, younger=nbg(2) + (8 if S_WWARM < 2 else 0))
        a(f'''
        v_mov_b32 v44, v40
        v_mov_b32 v45, v41
        v_mov_b32 v46, v42
        v_mov_b32 v47, v43
        s_lshr_b32 s{sU0}, s{sCand}, 2
        s_sub_u32 s{sT}, s{sU0}, 40
        s_cmp_lt_u32 s{sT}, 10
        s_cselect_b32 s{sU1}, 1.0, 0
        s_lshl_b32 s{sU0}, s{sU0}, 8
        s_add_u32 s{sU0}, s{sU0}, {MODF_G - 20 * 256}
        ''')
        for sw in ('32', '16'):
            for r in range(4):
                a(f'v_permlane{sw}_swap_b32 v{40 + r}, v{44 + r}')
            a('v_pk_add_f32 v[40:41], v[40:41], v[44:45]')
            a('v_pk_add_f32 v[42:43], v[42:43], v[46:47]')
            if sw == '32':
                for r in range(4):
                    a(f'v_mov_b32 v{44 + r}, v{40 + r}')
        a('v_cvt_pk_bf16_f32 v44, v40, v41')
        a('v_cvt_pk_bf16_f32 v45, v42, v43')
        unpack(40, 41, 44)
        unpack(42, 43, 45)
        for r in range(4):
            a(f'v_add_f32 v{40 + r}, s{sU1}, v{40 + r}')
        a(f'''
        v_cvt_pk_bf16_f32 v44, v40, v41
        v_cvt_pk_bf16_f32 v45, v42, v43
        v_mov_b32 v47, s{sTag}
        v_add_u32 v48, s{sU0}, v{vL16}
        s_mov_b64 exec, 0xffff
        global_store_dwordx4 v48, v[44:47], {sr(WS)} sc1
        s_mov_b64 exec, -1
        ''')
        stamp('reduced', 'H0')
        a.label(L)

    def in_w2(k):
        if k == 0:
            for ld in modf:
                a(ld)
            return
        if EG3 or S_WD == 3:
            a(f's_cmp_lt_u32 s{sRi}, 20')
            a(f's_waitcnt vmcnt({nbg(3) + EG3 + 10 * (S_WD == 3)})')
            a('s_cbranch_scc0 L_h0_m')
        a(f's_waitcnt vmcnt({nbg(3)})')
        a.label('L_h0_m')
        poll(modf, [43 + 4 * n for n in range(10)], list(range(80, 90)), empty='words', issued=True, younger=63)
        for n in range(10):
            a(f'ds_write_b64 v29, {vr(40 + 4 * n, 2)} offset:{512 * n}')
        a('s_waitcnt lgkmcnt(0)')
        stamp('modb in', 'H0')
    helper_tail(0, 'H0', in_w1, in_w2)


def helper1():
    a.label('L_h1')
    a(f'''
    s_getpc_b64 {sr(sBa)}
    L_pc:
    s_add_u32 s{sBb}, s{sBa}, L_tables-L_pc
    s_addc_u32 s{sBb + 1}, s{sBa + 1}, 0
    ''')

    def tabs(q0, q1):
        for q in range(q0, q1):
            if q % 4 == 0 or q == q0:
                a(f's_mov_b32 m0, {TAB + (q & ~3) * 1024}')
                a(f'v_add_u32 v20, {(q & ~3) * 1024}, v{vL16}')
            a(f'global_load_lds_dwordx4 v20, {sr(sBb)} offset:{1024 * (q % 4)}')

    def tab2():
        tabs(14, NTAB)
        a(f'''
        s_mov_b32 m0, {WR_L}
        global_load_lds_dwordx4 v{vL16}, {sr(B_WR)}
        s_mov_b64 exec, 0xffff
        global_load_lds_dwordx4 v{vL16}, {sr(B_WR)} offset:1024
        s_mov_b64 exec, -1
        ''')
        return NTAB - 14 + 2

    w_addr()
    gu_addr(1)
    a('s_waitcnt lgkmcnt(0)')
    e_addr(W_G)
    a(f's_cmp_lt_u32 s{sRi}, 10')
    a('s_cbranch_scc0 L_h1_t')
    bar('B1')
    a.label('L_h1_t')
    tabs(0, 14)
    n = tab2() if S_TAB2 == 1 else 0
    background(1, 0)
    n += nbg(0)
    a(f's_cmp_lt_u32 s{sRi}, 10')
    a('s_cbranch_scc1 L_h1_u')
    bar('B1')
    a.label('L_h1_u')
    a(f's_waitcnt vmcnt({n})')
    stamp('tab in', 'H1')
    helper_tail(1, 'H1', lambda k: tab2() if (S_TAB2 == 2 and k == 1) else None, lambda k: None)


prologue()
main_path()
helper0()
helper1()
body = a.finish()

hdr = open(f'cdna_kernels/{NAME}.s.ref').read().split('; Override launch')[0]
T = tables()
tab = []
flat = T.reshape(-1)
for k in range(0, flat.size, 8):
    tab.append('.long ' + ','.join('0x%08x' % v for v in flat[k:k + 8]))

launch = f'; @launch grid=(256,1,1) block=(640,1,1) lds={LDS_BYTES}'
pre_code = pre_kd = ''
if PRE:
    launch = f'; @launch kernel=pre_kernel grid=({PRE},1,1) block=(64,1,1) lds=0\n; @launch kernel={NAME}_kernel grid=(256,1,1) block=(640,1,1) lds={LDS_BYTES}'
    pre_code = '.globl pre_kernel\n.p2align 8\n.type pre_kernel,@function\npre_kernel:\n    s_endpgm\n'
    pre_kd = '''.p2align 6
.amdhsa_kernel pre_kernel
  .amdhsa_next_free_vgpr 8
  .amdhsa_next_free_sgpr 16
  .amdhsa_accum_offset 8
  .amdhsa_group_segment_fixed_size 0
  .amdhsa_kernarg_size 104
  .amdhsa_user_sgpr_count 2
  .amdhsa_user_sgpr_kernarg_segment_ptr 1
  .amdhsa_system_sgpr_workgroup_id_x 1
.end_amdhsa_kernel
'''
src = hdr + f'''{launch}
.amdgcn_target "amdgcn-amd-amdhsa--gfx950"
.text
{pre_code}.globl {NAME}_kernel
.p2align 8
.type {NAME}_kernel,@function
{NAME}_kernel:
{body}
.p2align 8
.type L_tables,@object
L_tables:
''' + '\n'.join(tab) + f'''
.size L_tables, {NTAB * 1024}
.fill (8192 - ((. - {NAME}_kernel) & 8191)) & 8191, 1, 0
L_tables_end:
.section .rodata,"a"
.p2align 6
.amdhsa_kernel {NAME}_kernel
  .amdhsa_next_free_vgpr 168
  .amdhsa_next_free_sgpr 102
  .amdhsa_accum_offset 168
  .amdhsa_group_segment_fixed_size 0
  .amdhsa_kernarg_size 104
  .amdhsa_user_sgpr_count 2
  .amdhsa_user_sgpr_kernarg_segment_ptr 1
  .amdhsa_system_sgpr_workgroup_id_x 1
.end_amdhsa_kernel
{pre_kd}'''
open(OUT, 'w').write(src)
print('wrote', OUT, 'lds', LDS_BYTES, 'lines', len(a.lines), 'nops', a.nnops)
```

```python
import sys, struct
import numpy as np
from asmdsl import Asm

NAME = 'adaLN_cond__spectral_gfnet__moe_arch_mod__prompt'
DIAG = '--diag' in sys.argv or '--dbgdiag' in sys.argv
DBGDIAG = '--dbgdiag' in sys.argv
OUT = [a for a in sys.argv[1:] if not a.startswith('--')]
OUT = OUT[0] if OUT else f'cdna_kernels/{NAME}.s'
SPIN = 60000


def opt(name, default):
    for x in sys.argv:
        if x.startswith(f'--{name}='):
            return x.split('=', 1)[1]
    return default


PROBE = opt('probe', None)
PROBEWG = int(opt('probewg', 8))
FINE = opt('fine', None)
if PROBE or FINE:
    DIAG = True
OUTPOL = opt('outpol', 'sc1')
PRE = opt('pre', None)
INPOL = opt('inpol', 'nt')
S_BLOAD = int(opt('bload', 0))
S_WWARM = int(opt('wwarm', 0))
S_W = [int(x) for x in opt('sw', '000')]
EG3 = [int(x) for x in opt('eg3', '10,10').split(',')]
S_WD = int(opt('wd', 4))
S_TAB2 = int(opt('tab2', 1))
PACE1 = int(opt('pace1', 20))
PACE2 = int(opt('pace2', 6))
PK = opt('pk', '120')
P2PRIO = int(opt('p2prio', 0))
P3FIRST = int(opt('p3first', 1))
WFIRST = int(opt('wfirst', 0))
DR1 = int(opt('dr1', 0))
DR2 = int(opt('dr2', 0))
PACE0 = int(opt('pace0', 0))
PACE3 = int(opt('pace3', 0))
BGWAIT = int(opt('bgwait', 2))
LATE = int(opt('late', 0))

MODA_G = 0
MODF_G = 61440
EPOCH_G = 73728
PY_G = 0x20000
PY_STRIDE = 2688
REC_G = 0x80000
REC_STRIDE = 8320
REC_H2 = 128
REC_BASE = 128 + 4096
T1_G = 0x400000
T2_G = 0x800000
DIAG_G = 0xC00000

NTAB = 25
TAB = 0
RED = TAB + NTAB * 1024
KEYL = RED + 2048
XB2 = KEYL + 64
XB1 = XB2 + 20480
XB3 = XB1
MODA_L = XB1 + 18560
MODB_L = MODA_L + 5120
WR_L = MODB_L + 5120
WST = WR_L + 2048
EW = WST + 16384
FW = EW + 40960
STL = FW + 20480
LDS_BYTES = STL + 256
assert LDS_BYTES <= 163840, LDS_BYTES

T_F20C, T_F20S, T_TW1, T_F32, T_F16, T_TW2, T_TW3, T_F20I = 0, 1, 2, 6, 14, 16, 18, 22


def f2u(x):
    return struct.unpack('<I', struct.pack('<f', float(x)))[0]


def bf(x):
    u = f2u(x)
    return ((u + 0x7FFF + ((u >> 16) & 1)) >> 16) & 0xFFFF


def pk(lo, hi):
    return bf(lo) | (bf(hi) << 16)


def cs(num, den):
    a = 2 * np.pi * (num % den) / den
    c, s = np.cos(a), np.sin(a)
    if abs(c) < 1e-12: c = 0.0
    if abs(s) < 1e-12: s = 0.0
    return c, s


def kaof(x):
    ka = 3 * (x >> 2) + (x & 3)
    return ka if (x & 3) < 3 and ka <= 10 else None


def tables():
    T = np.zeros((NTAB, 64, 4), np.uint32)
    for l in range(64):
        i, g = l & 15, l >> 4
        c8, s8 = [0.0] * 8, [0.0] * 8
        for j in range(5):
            if kaof(i) is not None:
                c, s = cs((4 * j + g) * kaof(i), 20)
                c8[j], s8[j] = c, -s
        for d in range(4):
            T[T_F20C, l, d] = pk(c8[2 * d], c8[2 * d + 1])
            T[T_F20S, l, d] = pk(s8[2 * d], s8[2 * d + 1])
        for t in range(2):
            for r in range(4):
                c, s = cs((8 * g + 2 * r + t) * (kaof(i) or 0), 640)
                T[T_TW1 + 2 * t, l, r] = f2u(c)
                T[T_TW1 + 2 * t + 1, l, r] = f2u(s)
                c, s = cs((2 * i + t) * (kaof(4 * g + r) or 0), 640)
                T[T_TW3 + 2 * t, l, r] = f2u(c)
                T[T_TW3 + 2 * t + 1, l, r] = f2u(s)
        for tile in range(2):
            for ks in range(2):
                for r in range(4):
                    c, s = cs((2 * i + tile) * (8 * g + 2 * r + ks), 32)
                    T[T_F32 + tile * 4 + 0 + ks, l, r] = pk(c, s)
                    T[T_F32 + tile * 4 + 2 + ks, l, r] = pk(-s, c)
        for r in range(4):
            c, s = cs(i * (4 * g + r), 16)
            T[T_F16, l, r] = pk(c, s)
            T[T_F16 + 1, l, r] = pk(-s, c)
            c, s = cs(i * (4 * g + r), 256)
            T[T_TW2, l, r] = f2u(c)
            T[T_TW2 + 1, l, r] = f2u(s)
            ka = kaof(4 * g + r)
            if ka is not None:
                a1 = 4 * (i & 3) + (i >> 2)
                c, s = cs(a1 * ka, 20)
                T[T_F20I, l, r] = pk(c, -s)
                c, s = cs((16 + (i >> 2)) * ka, 20)
                if (i & 3) == 0:
                    T[T_F20I + 1, l, r] = pk(c, -s)
                if (i & 3) == 1:
                    T[T_F20I + 2, l, r] = pk(c, -s)
    return T


def vr(a, n=1):
    return f'v{a}' if n == 1 else f'v[{a}:{a + n - 1}]'


def sr(a, n=2):
    return f's{a}' if n == 1 else f's[{a}:{a + n - 1}]'


sW, sX, sIdx, sMe, sT = 3, 4, 5, 6, 7
A_X, W_R, W_I, B_WR, W_G, W_U, W_D = 8, 10, 12, 16, 18, 20, 22
C_, W_MOD, OUTP, DBG, WS = 24, 26, 28, 30, 32
sBa, sBb, sBc = 34, 36, 38
sCnt = 40
sM1B = 41
sU0, sU1, sU2, sU3 = 42, 43, 46, 47
sM7 = 44
sRow = 48
sKey = 49
sV1, sV2 = 50, 51
sHI = 52
sCand = 53
sRec = 56
sTag = 55
sRi = 54
sGU = 56
sXrow = 72
sTS = 74

vL, vL16, vL4, vS, vPoll = 1, 2, 3, 4, 5
vM8F, vM8I = 6, 8
vXS = 10
Ra, Rb, RD, Rc = 20, 28, 36, 52
vF32 = 60
vTW = 92
vF20 = 108
vVec = 120
vE0 = 160
vXR = 150


a = Asm()
stamps = {}
NST = 24


def stamp(name, path='M', wait=True):
    if not DIAG or FINE:
        return
    if PROBE and (path != 'M' or not (name == 'start' or name.startswith(PROBE))):
        return
    lst = stamps.setdefault(path, [])
    if name not in lst:
        lst.append(name)
    k = lst.index(name)
    assert k < NST
    a(f's_memrealtime s[100:101]')
    a('s_waitcnt lgkmcnt(0)')
    a(f's_mov_b32 s{sTS + k}, s100')


fines = []


def fine(group, name):
    if FINE != group:
        return
    if name not in fines:
        fines.append(name)
    k = fines.index(name)
    assert k < 12
    a(f's_memtime {sr(sTS + 2 * k)}')


def dump_stamps(path='M'):
    if not DIAG:
        return
    if PROBE:
        if path != 'M':
            return
        a(f'''
        s_cmp_lg_u32 s2, {PROBEWG}
        s_cbranch_scc1 L_end
        s_cmp_lg_u32 s{sW}, 0
        s_cbranch_scc1 L_end
        ''')
        if PROBE == 'fix':
            a(f's_movk_i32 s{sU0}, 6000')
        elif PROBE == 'xcc':
            a(f's_getreg_b32 s{sU0}, hwreg(HW_REG_XCC_ID)')
            a(f's_and_b32 s{sU0}, s{sU0}, 15')
            a(f's_mul_i32 s{sU0}, s{sU0}, 1000')
            a(f's_add_u32 s{sU0}, s{sU0}, 6000')
        else:
            a(f's_sub_u32 s{sU0}, s{sTS + 1}, s{sTS}')
            a(f's_lshl_b32 s{sU0}, s{sU0}, 4')
            a(f's_add_u32 s{sU0}, s{sU0}, 6000')
            a(f's_min_u32 s{sU0}, s{sU0}, 100000')
        a(f'''
        L_probe:
        s_memrealtime s[100:101]
        s_waitcnt lgkmcnt(0)
        s_sub_u32 s{sU1}, s100, s{sTS}
        s_cmp_lt_u32 s{sU1}, s{sU0}
        s_cbranch_scc1 L_probe
        ''')
        return
    if DBGDIAG:
        if path != 'M':
            return
        a('v_mov_b32 v20, 0')
        a('s_mov_b64 exec, 1')
        a(f's_not_b32 s{sU0}, s{sTS}')
        a(f'v_mov_b32 v22, s{sU0}')
        a(f'global_atomic_umax v20, v22, {sr(DBG)} offset:4 sc1')
        ks = [0] + list(range(2, len(stamps['M'])))
        for n, k in enumerate(ks[:14]):
            a(f'v_mov_b32 v{23 + n}, s{sTS + k}')
            a(f'global_atomic_umax v20, v{23 + n}, {sr(DBG)} offset:{8 + 4 * n} sc1')
        print('dbg slots:', [(2 + n, stamps['M'][k]) for n, k in enumerate(ks[:14])])
        return
    if path != 'M':
        for k in range(NST):
            a(f'v_writelane_b32 v20, s{sTS + k}, {k}')
        a(f'v_lshlrev_b32 v21, 2, v{vL}')
        a(f'v_add_u32 v21, {STL + (128 if path == "H1" else 0)}, v21')
        a('s_mov_b32 exec_hi, 0')
        a('ds_write_b32 v21, v20')
        a('s_waitcnt lgkmcnt(0)')
        return
    a(f'''
    s_lshl_b32 s{sU0}, s2, 11
    v_add_u32 v21, {STL}, v{vL4}
    ds_read_b32 v22, v21
    ''')
    base_add(sBa, WS, sU0, DIAG_G + 1024)
    a('s_waitcnt lgkmcnt(0)')
    a(f'global_store_dword v{vL4}, v22, {sr(sBa)}')
    a(f'''
    s_lshl_b32 s{sU0}, s2, 11
    s_lshl_b32 s{sU1}, s{sW}, 7
    s_add_u32 s{sU0}, s{sU0}, s{sU1}
    s_memtime s[100:101]
    ''')
    base_add(sBa, WS, sU0, DIAG_G)
    a('v_mov_b32 v20, 0')
    a('s_mov_b64 exec, 1')
    for k in range(0, NST, 2):
        a(f'v_mov_b32 v22, s{sTS + k}')
        a(f'v_mov_b32 v23, s{sTS + k + 1}')
        a(f'global_store_dwordx2 v20, v[22:23], {sr(sBa)} offset:{4 * k}')
        a('s_nop 1')
    a('s_waitcnt lgkmcnt(0)')
    a('s_sub_u32 s100, s100, s98')
    a('v_mov_b32 v22, s100')
    a(f'global_store_dword v20, v22, {sr(sBa)} offset:112')
    a('s_getreg_b32 s42, hwreg(HW_REG_XCC_ID)')
    a('s_getreg_b32 s43, hwreg(HW_REG_HW_ID)')
    a('v_mov_b32 v22, s42')
    a('v_mov_b32 v23, s43')
    a(f'global_store_dwordx2 v20, v[22:23], {sr(sBa)} offset:120')


def base_add(dst, src, off_s=None, imm=0):
    if off_s is not None:
        if imm:
            a(f's_add_u32 s{sT}, s{off_s}, {imm}')
            off_s = sT
        a(f's_add_u32 s{dst}, s{src}, s{off_s}')
    else:
        a(f's_add_u32 s{dst}, s{src}, {imm}')
    a(f's_addc_u32 s{dst + 1}, s{src + 1}, 0')


lblc = [0]
late = []


def flush_late():
    for f in late:
        f()
    late.clear()


def newlabel(p):
    lblc[0] += 1
    return f'L_{p}_{lblc[0]}'


def poll(loads, regs, tmp, mask=None, empty='eq -1', between=None, younger=0, issued=False):
    L, D, Cc = newlabel('poll'), newlabel('polld'), newlabel('pollc')
    assert mask is None
    if not issued:
        for ld in loads:
            a(ld)
    a(f's_mov_b32 s{sCnt}, {SPIN}')
    if between is not None:
        between()
    if younger < 63:
        a(f's_waitcnt vmcnt({younger})')
    a.label(Cc)

    def retry():
        a.label(L)
        a(f's_sub_u32 s{sCnt}, s{sCnt}, 1')
        a(f's_cbranch_scc1 {D}')
        for ld in loads:
            a(ld)
        a('s_waitcnt vmcnt(0)')
        a(f's_branch {Cc}')
    late.append(retry)
    if empty == 'tag':
        for n, r in enumerate(regs):
            a(f'v_xor_b32 v{r}, s{sTB + (n & 3)}, v{r}')
        rem = list(regs)
        for c in tmp:
            a(f'v_or3_b32 v{c}, v{rem[0]}, v{rem[1]}, v{rem[2]}')
            rem = rem[3:]
        n = 0
        while len(rem) >= 2:
            c = tmp[n % len(tmp)]
            a(f'v_or3_b32 v{c}, v{c}, v{rem[0]}, v{rem[1]}')
            rem = rem[2:]
            n += 1
        t = tmp[0]
        rem = rem + list(tmp[1:])
        while rem:
            if len(rem) >= 2:
                a(f'v_or3_b32 v{t}, v{t}, v{rem[0]}, v{rem[1]}')
                rem = rem[2:]
            else:
                a(f'v_or_b32 v{t}, v{t}, v{rem[0]}')
                rem = rem[1:]
        a(f'v_and_b32 v{t}, 0xff, v{t}')
        empty = 'ne 0'
    elif empty == 'word':
        if len(regs) == 1:
            t = regs[0]
            empty = f'ne s{sTag}'
        else:
            assert len(regs) == 2
            t = tmp[0]
            a(f'v_xor_b32 v{t}, v{regs[0]}, v{regs[1]}')
            a(f'v_xor_b32 v{tmp[1]}, s{sTag}, v{regs[0]}')
            a(f'v_or_b32 v{t}, v{t}, v{tmp[1]}')
            empty = 'ne 0'
    elif empty == 'words':
        for n, r in enumerate(regs):
            a(f'v_xor_b32 v{tmp[n]}, s{sTag}, v{r}')
        t = tmp[0]
        rem = list(tmp[1:len(regs)])
        while rem:
            if len(rem) >= 2:
                a(f'v_or3_b32 v{t}, v{t}, v{rem[0]}, v{rem[1]}')
                rem = rem[2:]
            else:
                a(f'v_or_b32 v{t}, v{t}, v{rem[0]}')
                rem = rem[1:]
        empty = 'ne 0'
    elif len(regs) == 1:
        t = regs[0]
    else:
        rem = list(regs)
        outs = []
        k = 0
        while len(rem) >= 3 and k < len(tmp):
            a(f'v_max3_u32 v{tmp[k]}, v{rem[0]}, v{rem[1]}, v{rem[2]}')
            outs.append(tmp[k])
            rem = rem[3:]
            k += 1
        rem = outs[1:] + rem
        t = outs[0] if outs else None
        if t is None:
            t = tmp[0]
            a(f'v_max_u32 v{t}, v{rem[0]}, v{rem[1]}')
            rem = rem[2:]
        while rem:
            if len(rem) >= 2:
                a(f'v_max3_u32 v{t}, v{t}, v{rem[0]}, v{rem[1]}')
                rem = rem[2:]
            else:
                a(f'v_max_u32 v{t}, v{t}, v{rem[0]}')
                rem = rem[1:]
    a(f'v_cmpx_{empty.split()[0]}_u32 vcc, {empty.split()[1]}, v{t}')
    a(f's_cbranch_execnz {L}')
    a.label(D)
    a('s_mov_b64 exec, -1')


def epoch_load():
    a(f's_load_dword s{sTag}, {sr(WS)}, {EPOCH_G}')


def epoch_tag():
    a(f'''
    s_and_b32 s{sTag}, s{sTag}, 0x7f7f7f7f
    s_add_u32 s{sTag}, s{sTag}, 0x01010101
    s_or_b32 s{sTag}, s{sTag}, 0x80808080
    ''')


sTB = 68


def tag_bytes():
    for k in range(4):
        a(f's_bfe_u32 s{sTB + k}, s{sTag}, {hex(0x80000 | (8 * k))}')


def dpp(op, r, ctrl, rm='0xf'):
    a(f'{op}_dpp v{r}, v{r}, v{r} {ctrl} row_mask:{rm} bank_mask:0xf')


def wave_sum(regs, dst_s, op='v_add_f32'):
    for c in ('row_ror:8', 'row_ror:4', 'row_ror:2', 'row_ror:1'):
        for r in regs:
            dpp(op, r, c)
    for r in regs:
        dpp(op, r, 'row_bcast:15', '0xa')
    for r in regs:
        dpp(op, r, 'row_bcast:31', '0xc')
    for r, s in zip(regs, dst_s):
        a(f'v_readlane_b32 s{s}, v{r}, 63')


def rbf(dst, src):
    a(f'v_cvt_pk_bf16_f32 v{dst}, {src}, {src}')
    a(f'v_and_b32 v{dst}, s{sHI}, v{dst}')


def unpack(dlo, dhi, src):
    a(f'v_lshlrev_b32 v{dlo}, 16, v{src}')
    a(f'v_and_b32 v{dhi}, s{sHI}, v{src}')


def mfma32(d, x, y, c=None):
    a(f'v_mfma_f32_16x16x32_bf16 {vr(d, 4)}, {vr(x, 4)}, {vr(y, 4)}, {vr(c, 4) if c is not None else 0}')


def mfma16(d, x, y):
    a(f'v_mfma_f32_16x16x16_bf16 {vr(d, 4)}, {vr(x, 2)}, {vr(y, 2)}, 0')


def cmul(tr, ti, re, im, c, s, sign, pk=True, n=4):
    if not pk:
        for r in range(n):
            a(f'v_mul_f32 v{tr + r}, v{re + r}, v{c + r}')
        for r in range(n):
            a(f'v_mul_f32 v{ti + r}, v{im + r}, v{c + r}')
        for r in range(n):
            if sign > 0:
                a(f'v_fma_f32 v{tr + r}, -v{im + r}, v{s + r}, v{tr + r}')
                a(f'v_fmac_f32 v{ti + r}, v{re + r}, v{s + r}')
            else:
                a(f'v_fmac_f32 v{tr + r}, v{im + r}, v{s + r}')
                a(f'v_fma_f32 v{ti + r}, -v{re + r}, v{s + r}, v{ti + r}')
        return
    nr = 'neg_lo:[1,0,0] neg_hi:[1,0,0]'
    for h in (0, 2):
        a(f'v_pk_mul_f32 {vr(tr + h, 2)}, {vr(re + h, 2)}, {vr(c + h, 2)}')
    for h in (0, 2):
        a(f'v_pk_mul_f32 {vr(ti + h, 2)}, {vr(im + h, 2)}, {vr(c + h, 2)}')
    for h in (0, 2):
        a(f'v_pk_fma_f32 {vr(tr + h, 2)}, {vr(im + h, 2)}, {vr(s + h, 2)}, {vr(tr + h, 2)} {nr if sign > 0 else ""}')
    for h in (0, 2):
        a(f'v_pk_fma_f32 {vr(ti + h, 2)}, {vr(re + h, 2)}, {vr(s + h, 2)}, {vr(ti + h, 2)} {nr if sign < 0 else ""}')


def pack4(d, lo, hi, step=1, n=4):
    for r in range(n):
        a(f'v_cvt_pk_bf16_f32 v{d + r * step}, v{lo + r}, v{hi + r}')


def tab_read(dst, q):
    a(f'ds_read_b128 {vr(dst, 4)}, v{vL16} offset:{TAB + q * 1024}')


def tm(j, t):
    return 4 * t + j if j < 4 else 8 + t


def read_tmajor(dst, vaddr, off):
    o = off // 256
    assert off % 256 == 0 and o + 6 < 256
    for t in range(2):
        a(f'ds_read2st64_b32 {vr(dst + 4 * t, 2)}, v{vaddr + t} offset0:{o} offset1:{o + 2}')
        a(f'ds_read2st64_b32 {vr(dst + 4 * t + 2, 2)}, v{vaddr + t} offset0:{o + 4} offset1:{o + 6}')
    a(f'ds_read_b64 {vr(dst + 8, 2)}, v{vaddr} offset:{off + 2048}')


def silu(dst, src, tmp):
    for d, s, t in zip(dst, src, tmp):
        a(f'v_mul_f32 v{t}, 0xbfb8aa3b, v{s}')
    for t in tmp:
        a(f'v_exp_f32 v{t}, v{t}')
    for t in tmp:
        a(f'v_add_f32 v{t}, 1.0, v{t}')
    for t in tmp:
        a(f'v_rcp_f32 v{t}, v{t}')
    for d, s, t in zip(dst, src, tmp):
        a(f'v_mul_f32 v{d}, v{s}, v{t}')


def swap_reduce8(acc):
    for k in range(4):
        a(f'v_permlane32_swap_b32 v{acc + k}, v{acc + k + 4}')
    a(f'v_pk_add_f32 {vr(acc, 2)}, {vr(acc, 2)}, {vr(acc + 4, 2)}')
    a(f'v_pk_add_f32 {vr(acc + 2, 2)}, {vr(acc + 2, 2)}, {vr(acc + 6, 2)}')
    for k in range(2):
        a(f'v_permlane16_swap_b32 v{acc + k}, v{acc + k + 2}')
    a(f'v_pk_add_f32 {vr(acc, 2)}, {vr(acc, 2)}, {vr(acc + 2, 2)}')


BC0 = 'op_sel:[0,0,0] op_sel_hi:[1,0,1]'
BC1 = 'op_sel:[0,1,0] op_sel_hi:[1,1,1]'


def prologue():
    a(f'''
    s_cmp_ge_u32 s2, 256
    s_cbranch_scc1 L_end
    ''')
    if DIAG:
        for k in range(NST):
            a(f's_mov_b32 s{sTS + k}, 0')
        a('s_memtime s[98:99]')
        for p in ('M', 'H0', 'H1'):
            stamps[p] = ['start']
        stamp('start')
    a(f'''
    s_load_dwordx16 s[8:23], s[0:1], 0
    s_load_dwordx8 s[24:31], s[0:1], 64
    s_load_dwordx2 s[32:33], s[0:1], 96
    v_lshrrev_b32 v{vL}, 6, v0
    s_and_b32 s{sX}, s2, 7
    v_readfirstlane_b32 s{sW}, v{vL}
    v_and_b32 v{vL}, 63, v0
    s_lshr_b32 s{sIdx}, s2, 3
    s_lshl_b32 s{sMe}, s{sX}, 5
    s_add_u32 s{sMe}, s{sMe}, s{sIdx}
    s_add_u32 s{sRi}, s{sIdx}, 31
    s_and_b32 s{sRi}, s{sRi}, 31
    v_lshlrev_b32 v{vL16}, 4, v{vL}
    s_mov_b32 s{sHI}, 0xffff0000
    s_cmp_lg_u32 s{sRi}, 30
    s_cbranch_scc1 L_nopf
    s_cmp_ge_u32 s{sW}, (L_tables_end-{NAME}_kernel)/8192
    s_cbranch_scc1 L_nopf
    s_getpc_b64 {sr(sBa)}
    L_pc0:
    s_sub_u32 s{sBa}, s{sBa}, L_pc0-{NAME}_kernel
    s_subb_u32 s{sBa + 1}, s{sBa + 1}, 0
    v_lshlrev_b32 v20, 7, v0
    global_load_dword v159, v20, {sr(sBa)}
    L_nopf:
    v_lshlrev_b32 v{vL4}, 2, v{vL}
    s_cmp_eq_u32 s{sW}, 9
    s_cbranch_scc1 L_h1
    s_cmp_eq_u32 s{sW}, 8
    s_cbranch_scc1 L_h0
    s_lshl_b32 s{sRow}, s{sW}, 8
    s_add_u32 s{sKey}, s{sRow}, s{sMe}
    s_mul_i32 s{sRow}, s{sKey}, 1280
    ''')


def xloads():
    for j in range(5):
        a(f'global_load_dword v{vXR + j}, v{vL4}, {sr(sXrow)} offset:{256 * j} {INPOL}')


def blk_id(dst):
    a(f'''
    s_cmp_lt_u32 s{sRi}, 10
    s_cselect_b32 s{dst}, 10, 20
    s_cselect_b32 s{sT}, 0, 70
    s_mul_i32 s{dst}, s{dst}, s{sX}
    s_add_u32 s{dst}, s{dst}, s{sT}
    s_add_u32 s{dst}, s{dst}, s{sRi}
    ''')


GV = (80, 100, 48, 60, 56, 57)


def gemv_addr():
    vw, vc, acc, tmp, vo, voc = GV
    blk_id(sU2)
    a(f'''
    s_lshr_b32 s{sU0}, s{sU2}, 2
    s_and_b32 s{sU1}, s{sU2}, 3
    s_mul_i32 s{sU1}, s{sU1}, 160
    s_mul_i32 s{sT}, s{sW}, 20
    s_add_u32 s{sU1}, s{sU1}, s{sT}
    v_lshrrev_b32 v{voc}, 3, v{vL}
    v_and_b32 v{vo}, 0x70, v{vL16}
    v_mul_u32_u24 v{tmp}, 7680, v{voc}
    v_lshlrev_b32 v{voc}, 1, v{voc}
    v_add_u32 v{vo}, v{vo}, v{tmp}
    s_mul_i32 s{sU3}, s{sU1}, 7680
    s_lshl_b32 s{sT}, s{sU0}, 7
    s_add_u32 s{sU3}, s{sU3}, s{sT}
    s_lshl_b32 s{sU1}, s{sU1}, 1
    ''')
    for k in range(4):
        a(f'v_mov_b32 v{vw + 8 + k}, 0')
    a(f'v_mov_b32 v{vc + 2}, 0')
    a('s_waitcnt lgkmcnt(0)')
    stamp('kernarg')
    epoch_load()
    base_add(sBa, C_, sU1)
    base_add(sBb, W_MOD, sU3)
    base_add(sXrow, A_X, sRow)


def gemv_issue():
    vw, vc, acc, tmp, vo, voc = GV
    for j in range(3):
        if j == 2:
            a('s_mov_b32 exec_hi, 0')
        a(f'global_load_ushort v{vc + j}, v{voc}, {sr(sBa)} offset:{16 * j}')
    a('s_mov_b64 exec, -1')
    for j in range(3):
        if j == 2:
            a('s_mov_b32 exec_hi, 0')
        a(f'global_load_dwordx4 {vr(vw + 4 * j, 4)}, v{vo}, {sr(sBb)} {INPOL}')
        if j < 2:
            a(f'v_add_u32 v{vo}, {8 * 7680}, v{vo}')
    a('s_mov_b64 exec, -1')


def gemv_compute(role):
    nj = 3
    vw, vc, acc, tmp, vo, voc = GV
    after = 5 if role == 'A' else 0
    a(f's_waitcnt vmcnt({nj + after})')
    stamp('c in')
    cs_ = [vc + j for j in range(nj)]
    for c in cs_:
        a(f'v_lshlrev_b32 v{c}, 16, v{c}')
    silu(cs_, cs_, [tmp + j for j in range(nj)])
    sc = [70 + 2 * j for j in range(nj)]
    for c, s in zip(cs_, sc):
        a(f'v_cvt_pk_bf16_f32 v{s}, v{c}, v{c}')
    for s in sc:
        a(f'v_and_b32 v{s}, s{sHI}, v{s}')
    for j in range(nj):
        a(f's_waitcnt vmcnt({nj - 1 - j + after})')
        for k in range(4):
            unpack(tmp + 2 * k, tmp + 2 * k + 1, vw + 4 * j + k)
        for k in range(4):
            if j == 0:
                a(f'v_pk_mul_f32 {vr(acc + 2 * k, 2)}, {vr(tmp + 2 * k, 2)}, {vr(sc[j], 2)} op_sel:[0,0] op_sel_hi:[1,0]')
            else:
                a(f'v_pk_fma_f32 {vr(acc + 2 * k, 2)}, {vr(tmp + 2 * k, 2)}, {vr(sc[j], 2)}, {vr(acc + 2 * k, 2)} {BC0}')
    stamp('w in')
    a(f'''
    v_and_b32 v{vo}, 7, v{vL}
    v_lshlrev_b32 v{vo}, 8, v{vo}
    v_and_b32 v{voc}, 48, v{vL}
    v_lshl_add_u32 v{vo}, v{voc}, 2, v{vo}
    s_lshl_b32 s{sT}, s{sW}, 2
    s_add_u32 s{sT}, s{sT}, {RED}
    v_add_u32 v{vo}, s{sT}, v{vo}
    ''')
    swap_reduce8(acc)
    for c in ('row_ror:8',):
        dpp('v_add_f32', acc, c)
        dpp('v_add_f32', acc + 1, c)
    a(f'''
    s_mov_b32 exec_lo, 0x00ff00ff
    s_mov_b32 exec_hi, 0x00ff00ff
    ds_write2_b32 v{vo}, v{acc}, v{acc + 1} offset0:0 offset1:8
    s_mov_b64 exec, -1
    s_waitcnt lgkmcnt(0)
    ''')


def m8(dst, inverse):
    t0, t1, t2, t3 = 20, 21, 22, 23
    a(f'v_lshrrev_b32 v{t0}, 4, v{vL}           ; g')
    a(f's_cmp_lt_u32 s{sW}, 4')
    a(f's_cselect_b32 s{sT}, 1, 7')
    if not inverse:
        a(f'''
        v_bfe_u32 v{t1}, v{vL}, 2, 2
        v_bfe_u32 v{t2}, v{vL}, 1, 1
        v_lshl_add_u32 v{t1}, v{t2}, 2, v{t1}
        v_mul_u32_u24 v{t1}, s{sT}, v{t1}
        v_and_b32 v{t1}, 7, v{t1}
        v_lshlrev_b32 v{t0}, 9, v{t0}
        v_add_u32 v{t0}, s{sMe}, v{t0}
        v_mul_u32_u24 v{t2}, v{t0}, v{t1}
        v_lshl_add_u32 v{t3}, v{t1}, 8, v{t2}
        ''')
    else:
        a(f'''
        v_bfe_u32 v{t1}, v{vL}, 1, 3
        v_lshlrev_b32 v{t1}, 8, v{t1}
        v_add_u32 v{t1}, s{sMe}, v{t1}
        v_mul_u32_u24 v{t0}, s{sT}, v{t0}
        v_and_b32 v{t0}, 7, v{t0}
        v_mul_u32_u24 v{t2}, v{t0}, v{t1}
        v_xor_b32 v{t0}, 4, v{t0}
        v_mul_u32_u24 v{t3}, v{t0}, v{t1}
        v_sub_u32 v{t2}, 0, v{t2}
        v_sub_u32 v{t3}, 0, v{t3}
        ''')
    a(f'''
    v_and_b32 v{t0}, 1, v{vL}
    v_lshl_add_u32 v{t2}, v{t0}, 9, v{t2}
    v_lshl_add_u32 v{t3}, v{t0}, 9, v{t3}
    v_and_b32 v{t2}, 0x7ff, v{t2}
    v_and_b32 v{t3}, 0x7ff, v{t3}
    v_cvt_f32_u32 v{t2}, v{t2}
    v_cvt_f32_u32 v{t3}, v{t3}
    v_mul_f32 v{t2}, 0x3a000000, v{t2}
    v_mul_f32 v{t3}, 0x3a000000, v{t3}
    v_cos_f32 v{t0}, v{t2}
    v_sin_f32 v{t2}, v{t2}
    v_cos_f32 v{t1}, v{t3}
    v_sin_f32 v{t3}, v{t3}
    v_cvt_pk_bf16_f32 v{dst}, v{t0}, v{t2}
    v_cvt_pk_bf16_f32 v{dst + 1}, v{t1}, v{t3}
    ''')


INV640 = hex(f2u(1.0 / 640))
EPS = hex(f2u(1e-5))


def rstd_chain(var, out):
    rbf(out, f'v{var}')
    a(f'v_add_f32 v{out}, {EPS}, v{out}')
    rbf(out, f'v{out}')
    a(f'v_sqrt_f32 v{out}, v{out}')
    rbf(out, f'v{out}')
    a(f'v_rcp_f32 v{out}, v{out}')


def sum10(dst2, x):
    a(f'v_pk_add_f32 {vr(dst2, 2)}, {vr(x, 2)}, {vr(x + 2, 2)}')
    for h in (4, 6, 8):
        a(f'v_pk_add_f32 {vr(dst2, 2)}, {vr(dst2, 2)}, {vr(x + h, 2)}')
    a(f'v_add_f32 v{dst2}, v{dst2}, v{dst2 + 1}')


def dot10(dst2, x, y):
    a(f'v_pk_mul_f32 {vr(dst2, 2)}, {vr(x, 2)}, {vr(y, 2)}')
    for h in (2, 4, 6, 8):
        a(f'v_pk_fma_f32 {vr(dst2, 2)}, {vr(x + h, 2)}, {vr(y + h, 2)}, {vr(dst2, 2)}')
    a(f'v_add_f32 v{dst2}, v{dst2}, v{dst2 + 1}')


def bar(n):
    a(f's_barrier                                   ; {n}')


def main_path():
    vZ, vSA, vCA = vVec, vVec + 10, vVec + 20
    gemv_addr()
    a(f's_cmp_lt_u32 s{sRi}, 10')
    if LATE == 1:
        a('s_cbranch_scc0 L_setup')
        gemv_issue()
        xloads()
        a.label('L_setup')
    else:
        a('s_cbranch_scc0 L_x')
        gemv_issue()
        a.label('L_x')
        xloads()
        if S_BLOAD == 0 and LATE == 0:
            a(f's_sub_u32 s{sT}, s{sRi}, 10')
            a(f's_cmp_lt_u32 s{sT}, 20')
            a('s_cbranch_scc0 L_setup')
            gemv_issue()
            a.label('L_setup')
    m8(vM8F, False)
    m8(vM8I, True)
    a(f'''
    v_bfe_u32 v20, v{vL}, 2, 2
    v_and_b32 v21, 48, v{vL16}                    ; part*16
    v_and_b32 v22, 48, v{vL}
    v_lshl_add_u32 v20, v22, 1, v20               ; 32g + kbs
    v_lshl_add_u32 v{vS}, v20, 6, v21
    v_lshl_add_u32 v{vPoll}, v20, 14, v21
    v_mul_u32_u24 v20, 80, v20
    s_mul_i32 s{sT}, s{sW}, 320
    s_add_u32 s{sT}, s{sT}, {XB2}
    v_add3_u32 v{vE0 + 4}, v20, v21, s{sT}        ; staging address
    v_lshlrev_b32 v{vE0}, 3, v{vL}                ; 8*lane
    ''')
    a(f'''
    v_and_b32 v20, 15, v{vL}
    v_mul_u32_u24 v20, 264, v20
    v_and_b32 v21, 48, v{vL}
    v_lshl_add_u32 v{vE0 + 1}, v21, 2, v20
    s_lshr_b32 s{sU0}, s{sW}, 1
    s_mul_i32 s{sU0}, s{sU0}, 4224
    s_and_b32 s{sT}, s{sW}, 1
    s_lshl_b32 s{sT}, s{sT}, 2
    s_add_u32 s{sU0}, s{sU0}, s{sT}
    s_add_u32 s{sU0}, s{sU0}, {XB1}
    v_add_u32 v{vE0 + 1}, s{sU0}, v{vE0 + 1}
    ''')
    a(f'''
    v_lshrrev_b32 v20, 4, v{vL}
    v_mul_u32_u24 v20, 4224, v20
    v_and_b32 v21, 3, v{vL}
    v_mul_u32_u24 v21, 1056, v21
    v_and_b32 v22, 12, v{vL}
    v_lshl_add_u32 v20, v22, 1, v20
    s_lshl_b32 s{sU0}, s{sW}, 5
    s_add_u32 s{sU0}, s{sU0}, {XB1}
    v_add3_u32 v{vE0 + 2}, v20, v21, s{sU0}
    ''')
    a(f's_cmp_lt_u32 s{sRi}, 10')
    a('s_cbranch_scc0 L_na')
    gemv_compute('A')
    bar('B1')
    a('s_waitcnt vmcnt(0)')
    a('s_branch L_ln1')
    a.label('L_na')
    if LATE == 1:
        xloads()
    if LATE and S_BLOAD == 0:
        a(f's_cmp_lt_u32 s{sRi}, 30')
        a('s_cbranch_scc0 L_nb')
        gemv_issue()
        a.label('L_nb')
    a(f's_cmp_lt_u32 s{sRi}, 30')
    if S_BLOAD == 0:
        a('s_waitcnt vmcnt(6)')
        a('s_cbranch_scc1 L_ln1')
        a('s_waitcnt vmcnt(0)')
    else:
        a('s_waitcnt vmcnt(0)')
        a('s_cbranch_scc0 L_ln1')
        gemv_issue()
    a.label('L_ln1')
    stamp('x in')
    for j in range(5):
        unpack(vXS + tm(j, 0), vXS + tm(j, 1), vXR + j)
    sum10(24, vXS)
    wave_sum([24], [sU0])
    a(f'v_mov_b32 v24, {INV640}')
    a(f'v_mul_f32 v26, s{sU0}, v24                ; mean')
    rbf(28, 'v26')
    a(f'v_readfirstlane_b32 s{sM1B}, v28')
    for h in range(0, 10, 2):
        a(f'v_pk_add_f32 {vr(vXS + h, 2)}, {vr(vXS + h, 2)}, v[28:29] op_sel:[0,0] op_sel_hi:[1,0] neg_lo:[0,1] neg_hi:[0,1]')
    dot10(30, vXS, vXS)
    wave_sum([30], [sU0])
    a(f'''
    v_sub_f32 v26, v26, v28
    v_mul_f32 v26, v26, v26
    v_fma_f32 v26, s{sU0}, v24, -v26
    ''')
    rstd_chain(26, 27)
    for j in range(5):
        for t in range(2):
            a(f'v_mul_f32 v{vZ + 2 * j + t}, v27, v{vXS + tm(j, t)}')
    a(f'''
    v_mov_b32 v23, 0
    v_mov_b32 v27, 0
    s_waitcnt lgkmcnt(0)
    ''')
    epoch_tag()
    tag_bytes()
    a(f'''
    s_cmp_lt_u32 s{sRi}, 10
    s_cbranch_scc1 L_tabs
    s_cmp_lt_u32 s{sRi}, 30
    s_cbranch_scc0 L_b1
    ''')
    gemv_compute('B')
    a.label('L_b1')
    bar('B1')
    a.label('L_tabs')
    a(f'''
    s_lshl_b32 s{sU0}, s{sMe}, 14
    s_lshl_b32 s{sU1}, s{sW}, 8
    s_add_u32 s{sU0}, s{sU0}, s{sU1}
    ''')
    base_add(sBa, WS, sU0, T1_G)
    base_add(sBb, WS, sU0, T1_G + 8192)
    a(f'''
    v_subrev_u32 v28, 64, v0                      ; u
    v_lshrrev_b32 v29, 4, v28
    v_lshlrev_b32 v29, 10, v29
    v_and_b32 v30, 0xf0, v{vL16}
    v_add_u32 v29, v29, v30
    v_cmp_le_u32 vcc, 160, v28
    v_cndmask_b32 v30, 0, 1.0, vcc
    v_mov_b32 v31, {8 - 160 * 32}
    v_cndmask_b32 v31, 0, v31, vcc
    s_mov_b32 s{sU2}, {MODA_L}
    v_lshlrev_b32 v28, 5, v28
    v_add3_u32 v28, v28, v31, s{sU2}
    v_add_u32 v{vE0 + 3}, s{sU2}, v{vL16}
    s_sub_u32 s{sT}, s{sW}, 1
    s_cmp_lt_u32 s{sT}, 5
    ''')
    bar('BT')
    stamp('poll start')
    def p1_tabs():
        bar('BP')
        tab_read(vF20, T_F20C)
        tab_read(vF20 + 4, T_F20S)
        for q in range(4):
            tab_read(vTW + 4 * q, T_TW1 + q)
        for q in range(8):
            tab_read(vF32 + 4 * q, T_F32 + q)
    a('s_cbranch_scc1 L_mpoll')
    p1_tabs()
    a('s_branch L_b2')
    a.label('L_mpoll')
    if PACE0:
        a(f's_sleep {PACE0}')
    poll([f'global_load_dwordx4 {vr(36 + 4 * p, 4)}, v29, {sr(WS)} offset:{256 * p} sc1' for p in range(4)],
         list(range(36, 52)), [52, 53, 54], empty='tag', between=p1_tabs)
    a(f'''
    v_pk_add_f32 v[36:37], v[36:37], v[40:41]
    v_pk_add_f32 v[38:39], v[38:39], v[42:43]
    v_pk_add_f32 v[44:45], v[44:45], v[48:49]
    v_pk_add_f32 v[46:47], v[46:47], v[50:51]
    v_pk_add_f32 v[36:37], v[36:37], v[44:45]
    v_pk_add_f32 v[38:39], v[38:39], v[46:47]
    v_cvt_pk_bf16_f32 v40, v36, v37
    v_cvt_pk_bf16_f32 v41, v38, v39
    ''')
    unpack(36, 37, 40)
    unpack(38, 39, 41)
    a(f'''
    v_pk_add_f32 v[36:37], v[36:37], v[30:31] op_sel:[0,0] op_sel_hi:[1,0]
    v_pk_add_f32 v[38:39], v[38:39], v[30:31] op_sel:[0,0] op_sel_hi:[1,0]
    v_cvt_pk_bf16_f32 v40, v36, v37
    v_cvt_pk_bf16_f32 v41, v38, v39
    ''')
    unpack(36, 37, 40)
    unpack(38, 39, 41)
    a(f'ds_write2_b64 v28, v[36:37], v[38:39] offset0:0 offset1:2')
    a.label('L_b2')
    stamp('poll end')
    fine('p1', 'pre-B2')
    a('s_waitcnt lgkmcnt(0)')
    a('s_barrier                                   ; B2')
    stamp('B2 done (mod ready)')
    fine('p1', 'B2')
    assert MODA_L % 16 == 0
    for j in range(5):
        a(f'ds_read_b128 {vr(vSA + 4 * j, 4)}, v{vE0 + 3} offset:{1024 * j}')
    for j in range(5):
        a(f's_waitcnt lgkmcnt({4 - j})')
        for t in range(2):
            a(f'v_fmac_f32 v{vSA + 4 * j + t}, v{vZ + 2 * j + t}, v{vSA + 4 * j + 2 + t}')
        if j in (1, 3):
            for t in range(2):
                a(f'v_cvt_pk_bf16_f32 v{Ra + 4 * t + j // 2}, v{vSA + 4 * j - 4 + t}, v{vSA + 4 * j + t}')
    for t in range(2):
        a(f'v_cvt_pk_bf16_f32 v{Ra + 4 * t + 2}, v{vSA + 16 + t}, 0')
    fine('p1', 'h packed')
    for t in range(2):
        mfma32(RD + 8 * t, Ra + 4 * t, vF20)
        mfma32(RD + 8 * t + 4, Ra + 4 * t, vF20 + 4)
    fine('p1', 'mfma1 issued')
    for t, tmp in ((0, Rb), (1, Rc)):
        cmul(tmp, tmp + 4, RD + 8 * t, RD + 8 * t + 4, vTW + 8 * t, vTW + 8 * t + 4, -1, pk=PK[0] == '1')
        pack4(Ra + 4 * t, tmp, tmp + 4)
    fine('p1', 'twiddled')
    for ks in range(2):
        for u in range(2):
            for e in range(2):
                d = RD + 8 * u + 4 * e
                mfma32(d, vF32 + 16 * u + 8 * e + 4 * ks, Ra + 4 * ks, d if ks else None)
    fine('p1', 'mfma2 issued')
    for u in range(2):
        pack4(Rb + u, RD + 8 * u, RD + 8 * u + 4, step=2)
    for r in range(4):
        a(f'ds_write2_b32 v{vE0 + 1}, v{Rb + 2 * r}, v{Rb + 2 * r + 1} offset0:{4 * r} offset1:{4 * r + 2}')
    a(f'v_mov_b32 v{Rc + 3}, s{sTag}')
    a(f'v_mov_b32 v{Rc + 7}, s{sTag}')
    fine('p1', 'lds written')
    a('s_waitcnt lgkmcnt(0)')
    fine('p1', 'pre-B3')
    bar('B3')
    fine('p1', 'B3')
    for n in range(3):
        a(f'ds_read_b64 {vr(Ra + 2 * n, 2)}, v{vE0 + 2} offset:{264 * n}')
    for n in range(3):
        a(f's_waitcnt lgkmcnt({2 - n})')
        mfma16(RD + 4 * n, vM8F, Ra + 2 * n)
    fine('p1', 'r8 issued')
    for j in range(2):
        for n in range(3):
            a(f'v_cvt_pk_bf16_f32 v{Rc + 4 * j + n}, v{RD + 4 * n + 2 * j}, v{RD + 4 * n + 2 * j + 1}')
        a(f'global_store_dwordx4 v{vS}, {vr(Rc + 4 * j, 4)}, {sr(sBb if j else sBa)} sc1')
    stamp('T1 stored')
    fine('p1', 'stored')
    vWr = vVec
    for k in range(16):
        a(f'v_mov_b32 v{vWr + k}, 0')
    SC = 2.0 / (2048 * 640)
    sKa = sM7
    a(f'''
    v_and_b32 v36, 15, v{vL}
    v_and_b32 v37, 48, v{vL}
    v_lshl_add_u32 v36, v37, 2, v36               ; 64g + i
    v_mul_u32_u24 v{vE0 + 3}, 80, v36
    s_and_b32 s{sU1}, s{sW}, 3
    s_lshr_b32 s{sU2}, s{sW}, 2
    s_lshl_b32 s{sU2}, s{sU2}, 1
    s_mul_i32 s{sKa}, s{sU1}, 3
    s_add_u32 s{sKa}, s{sKa}, s{sU2}
    s_lshl_b32 s{sU1}, s{sU1}, 2
    s_add_u32 s{sU1}, s{sU1}, s{sU2}
    s_lshl_b32 s{sU1}, s{sU1}, 2
    s_add_u32 s{sU1}, s{sU1}, {XB2}
    v_add_u32 v{vE0 + 3}, s{sU1}, v{vE0 + 3}
    v_lshlrev_b32 v36, 5, v36
    v_add_u32 v36, {WST}, v36
    v_and_b32 v38, 4, v{vL}
    v_sub_u32 v39, 8, v38
    s_cmp_ge_u32 s{sIdx}, 16
    s_cselect_b64 vcc, -1, 0
    v_cndmask_b32 v38, v38, v39, vcc
    v_and_b32 v39, 8, v{vL}
    v_lshlrev_b32 v39, 1, v39
    s_lshl_b32 s{sU1}, s{sMe}, 6
    s_lshl_b32 s{sT}, s{sW}, 16
    s_add_u32 s{sU1}, s{sU1}, s{sT}
    ''')
    base_add(sBa, WS, sU1, T1_G)
    base_add(sBb, WS, sU1, T1_G + 128 * 16384)
    base_add(58, WS, sU0, T2_G)
    base_add(60, WS, sU0, T2_G + 8192)

    def w_setup():
        for q in range(2):
            tab_read(vTW + 4 * q, T_F16 + q)
            tab_read(vTW + 8 + 4 * q, T_TW2 + q)
        a(f's_and_b32 s{sU2}, s{sX}, 1                    ; q & 1')
        for s in range(2):
            ka, pos, gam = sBc, sBc + 1, sU3
            if s == 1:
                a(f's_cmp_ge_u32 s{sW}, 4')
                a('s_cbranch_scc1 L_wdone')
            a(f'''
            s_add_u32 s{ka}, s{sKa}, {s}
            s_min_u32 s{pos}, s{ka}, 10
            s_sub_u32 s{sT}, 10, s{pos}
            s_cmp_ge_u32 s{sIdx}, 16
            s_cselect_b32 s{pos}, s{sT}, s{pos}
            s_add_u32 s{pos}, s{pos}, s{sU2}
            s_lshl_b32 s{pos}, s{pos}, 1
            v_add_u32 v37, s{pos}, v38
            v_xor_b32 v37, v37, v39
            v_add_u32 v37, v37, v36
            ''')
            for arr in range(2):
                for r in range(4):
                    a(f'ds_read_u16_d16_hi v{vWr + 8 * s + 4 * arr + r}, v37 offset:{arr * 8192 + r * 512}')
            a(f's_mov_b32 s{gam}, {hex(f2u(SC))}')
            if s == 0:
                a(f'''
                s_and_b32 s{sT}, s{sIdx}, 15
                s_or_b32 s{sT}, s{sT}, s{ka}
                s_cmp_eq_u32 s{sT}, 0
                s_cselect_b32 s{gam}, {hex(f2u(SC / 2))}, s{gam}
                s_cmp_gt_u32 s{sIdx}, 16
                s_cselect_b32 s{sT}, s{ka}, 1
                s_cmp_eq_u32 s{sT}, 0
                s_cselect_b32 s{gam}, 0, s{gam}
                ''')
            else:
                a(f'''
                s_cmp_ge_u32 s{sIdx}, 16
                s_cselect_b32 s{sT}, s{ka}, 1
                s_cmp_eq_u32 s{sT}, 10
                s_cselect_b32 s{gam}, 0, s{gam}
                ''')
            a(f'''
            s_xor_b32 s{sT}, s{gam}, 0x80000000
            s_cmp_ge_u32 s{sIdx}, 16
            s_cselect_b32 s{sT}, s{sT}, s{gam}
            s_waitcnt lgkmcnt(0)
            ''')
            for r in range(4):
                a(f'v_mul_f32 v{vWr + 8 * s + r}, s{gam}, v{vWr + 8 * s + r}')
            for r in range(4):
                a(f'v_mul_f32 v{vWr + 8 * s + 4 + r}, s{sT}, v{vWr + 8 * s + 4 + r}')
        a.label('L_wdone')

    tpoll = [f'global_load_dwordx4 {vr(Ra, 4)}, v{vPoll}, {sr(sBa)} sc1', f'global_load_dwordx4 {vr(Ra + 4, 4)}, v{vPoll}, {sr(sBb)} sc1']
    bar('B3b')
    if WFIRST:
        w_setup()
    if DR1:
        a('s_waitcnt vmcnt(0)')
    if PACE1:
        a(f's_sleep {PACE1}')
    stamp('B3b done')
    poll(tpoll, [Ra + 3, Ra + 7], [Rb, Rb + 1], empty='word', between=None if WFIRST else w_setup)
    fine('p2', 'T1 in')
    a(f'ds_write_b128 v{vE0 + 4}, {vr(Ra, 4)}')
    a(f'ds_write_b128 v{vE0 + 4}, {vr(Ra + 4, 4)} offset:10240')
    a(f's_cmp_ge_u32 s{sW}, 4')
    a('s_waitcnt lgkmcnt(0)')
    bar('B4')
    stamp('B4 done (T1 in)')
    fine('p2', 'B4')
    a('s_cbranch_scc1 L_p2_one')
    Fre, Fim, Tc, Ts = vTW, vTW + 4, vTW + 8, vTW + 12
    tmps = (Rb, Rc)

    def p2(ns):
        p2pk = PK[1] == '1' or (PK[1] == '2' and ns == 2)
        if ns == 2:
            for j in range(4):
                a(f'ds_read_b64 {vr(Rb + 2 * j, 2)}, v{vE0 + 3} offset:{1280 * j}')
            for h in range(2):
                a(f's_waitcnt lgkmcnt({2 - 2 * h})')
                for s in range(2):
                    a(f'v_pk_mov_b32 {vr(Ra + 4 * s + 2 * h, 2)}, {vr(Rb + 4 * h, 2)}, {vr(Rb + 4 * h + 2, 2)} op_sel:[{s},{s}]')
        else:
            a(f'ds_read2st64_b32 {vr(Ra, 2)}, v{vE0 + 3} offset0:0 offset1:5')
            a(f'ds_read2st64_b32 {vr(Ra + 2, 2)}, v{vE0 + 3} offset0:10 offset1:15')
            a('s_waitcnt lgkmcnt(0)')
        fine('p2', 'read')
        for s in range(ns):
            mfma32(RD + 8 * s, Ra + 4 * s, Fre)
            mfma32(RD + 8 * s + 4, Ra + 4 * s, Fim)
        fine('p2', 's1')
        for s in range(ns):
            cmul(tmps[s], tmps[s] + 4, RD + 8 * s, RD + 8 * s + 4, Tc, Ts, -1, pk=p2pk)
            pack4(Ra + 4 * s, tmps[s], tmps[s] + 4)
            mfma32(RD + 8 * s, Fre, Ra + 4 * s)
            mfma32(RD + 8 * s + 4, Fim, Ra + 4 * s)
        fine('p2', 's2')
        for s in range(ns):
            cmul(tmps[s], tmps[s] + 4, RD + 8 * s, RD + 8 * s + 4, vWr + 8 * s, vWr + 8 * s + 4, +1, pk=p2pk)
            pack4(Ra + 4 * s, tmps[s] + 4, tmps[s])
            mfma32(RD + 8 * s, Ra + 4 * s, Fim)
            mfma32(RD + 8 * s + 4, Ra + 4 * s, Fre)
        fine('p2', 's3')
        for s in range(ns):
            cmul(tmps[s], tmps[s] + 4, RD + 8 * s, RD + 8 * s + 4, Tc, Ts, +1, pk=p2pk)
            pack4(Ra + 4 * s, tmps[s] + 4, tmps[s])
            mfma32(RD + 8 * s, Fim, Ra + 4 * s)
            mfma32(RD + 8 * s + 4, Fre, Ra + 4 * s)
        fine('p2', 's4')
        for s in range(ns):
            pack4(Rb + s, RD + 8 * s, RD + 8 * s + 4, step=ns)
        if ns == 2:
            for r in range(4):
                a(f'ds_write_b64 v{vE0 + 3}, {vr(Rb + 2 * r, 2)} offset:{1280 * r}')
        else:
            a(f'ds_write2st64_b32 v{vE0 + 3}, v{Rb}, v{Rb + 1} offset0:0 offset1:5')
            a(f'ds_write2st64_b32 v{vE0 + 3}, v{Rb + 2}, v{Rb + 3} offset0:10 offset1:15')
        a('s_waitcnt lgkmcnt(0)')
    p2(2)
    a.label('L_b5')
    fine('p2', 'pre-B5')
    bar('B5')
    fine('p2', 'B5')
    a(f'ds_read_b128 {vr(Rb, 4)}, v{vE0 + 4}')
    a(f'ds_read_b128 {vr(Rb + 4, 4)}, v{vE0 + 4} offset:10240')
    a('s_waitcnt lgkmcnt(1)')
    a(f'global_store_dwordx4 v{vS}, {vr(Rb, 4)}, {sr(58)} sc1')
    a('s_waitcnt lgkmcnt(0)')
    a(f'global_store_dwordx4 v{vS}, {vr(Rb + 4, 4)}, {sr(60)} sc1')
    stamp('T2 stored')
    fine('p2', 'stored')
    late.append(lambda: (a.label('L_p2_one'), a(f's_cmp_eq_u32 s{sW}, 7'), a('s_cbranch_scc1 L_b5'), a('s_setprio 1' if P2PRIO else ''), p2(1),
                         a('s_setprio 0' if P2PRIO else ''), a('s_branch L_b5')))
    vGA, vVV, vGC, vGS = vVec, vVec + 10, vVec + 20, vVec + 30
    for q in range(4):
        tab_read(vTW + 4 * q, T_TW3 + q)
    for q in range(3):
        tab_read(vF20 + 4 * q, T_F20I + q)
    a(f'''
    v_add_u32 v{vE0 + 5}, {MODB_L}, v{vL4}
    v_lshrrev_b32 v36, 4, v{vL}
    v_mul_u32_u24 v36, 4640, v36
    v_and_b32 v37, 3, v{vL}
    v_mul_u32_u24 v37, 576, v37
    v_and_b32 v38, 4, v{vL}
    v_lshl_add_u32 v36, v38, 2, v36
    v_bfe_u32 v38, v{vL}, 3, 1
    v_lshl_add_u32 v37, v38, 2, v37
    s_lshr_b32 s{sU2}, s{sW}, 1
    s_lshl_b32 s{sU2}, s{sU2}, 5
    s_and_b32 s{sT}, s{sW}, 1
    s_lshl_b32 s{sT}, s{sT}, 3
    s_add_u32 s{sU2}, s{sU2}, s{sT}
    s_add_u32 s{sU2}, s{sU2}, {XB3}
    v_add3_u32 v{vE0 + 1}, v36, v37, s{sU2}
    v_add_u32 v{vE0 + 2}, 2320, v{vE0 + 1}
    v_and_b32 v36, 15, v{vL}
    v_mul_u32_u24 v36, 144, v36
    v_and_b32 v37, 48, v{vL}
    v_lshl_add_u32 v36, v37, 1, v36
    s_mul_i32 s{sU2}, s{sW}, 2320
    s_add_u32 s{sU2}, s{sU2}, {XB3}
    v_add_u32 v{vE0 + 3}, s{sU2}, v36
    ''')
    base_add(sBa, WS, sU1, T2_G)
    base_add(sBb, WS, sU1, T2_G + 128 * 16384)
    base_add(sXrow, OUTP, sRow)
    a(f's_mul_i32 s{sU0}, s{sMe}, {REC_STRIDE}')
    base_add(sRec, WS, sU0, REC_G)
    a(f'''
    v_mov_b32 v{vE0 + 6}, {INV640}
    v_mov_b32 v{vE0 + 7}, {KEYL}
    v_mov_b32 v{vE0 + 4}, 1
    ''')

    def p3_setup():
        raw = Rb
        for k in range(0, 24, 2):
            a(f'ds_read2st64_b32 {vr(raw + k, 2)}, v{vE0 + 5} offset0:{k} offset1:{k + 1}')
        a(f'ds_read_b32 v{raw + 24}, v{vE0 + 5} offset:{24 * 256}')
        a('s_waitcnt lgkmcnt(0)')
        for vec, dst in ((0, vGA), (1, vGS), (2, vGC), (4, vVV)):
            for j in range(5):
                unpack(dst + tm(j, 0), dst + tm(j, 1), raw + 5 * vec + j)
        GB = Rb
        for j in range(5):
            unpack(GB + tm(j, 0), GB + tm(j, 1), raw + 15 + j)
        t0, t1, t2 = Rc + 2, Rc + 4, Rc + 6
        dot10(t0, vVV, vGS)
        for h in range(0, 10, 2):
            a(f'v_pk_mul_f32 {vr(vVV + h, 2)}, {vr(vVV + h, 2)}, {vr(vGC + h, 2)}')
        sum10(t1, vVV)
        a(f'v_mov_b32 v{t2}, s{sM1B}')
        for h in range(0, 10, 2):
            a(f'v_pk_mul_f32 {vr(vGC + h, 2)}, {vr(vGC + h, 2)}, {vr(GB + h, 2)}')
            a(f'v_pk_fma_f32 {vr(vGS + h, 2)}, {vr(vGS + h, 2)}, {vr(GB + h, 2)}, {vr(t2, 2)} op_sel:[0,0,0] op_sel_hi:[1,1,0]')
        wave_sum([t1, t0], [sV1, sV2])

    a('s_waitcnt lgkmcnt(0)')
    bar('B5b')
    stamp('B5b done')
    fine('p2', 'B5b')
    if P3FIRST:
        p3_setup()
    if DR2:
        a('s_waitcnt vmcnt(0)')
    if PACE2:
        a(f's_sleep {PACE2}')
    stamp('T2 poll')
    fine('p2', 'T2 poll')
    poll(tpoll, [Ra + 3, Ra + 7], [Rb, Rb + 1], empty='word', between=None if P3FIRST else p3_setup)
    stamp('T2 in')
    fine('p3', 'T2 in')
    a(f'''
    v_mov_b32 v{Ra + 3}, v{Ra + 6}
    v_swap_b32 v{Ra + 1}, v{Ra + 4}
    ''')
    for n, r in ((2, Ra + 2), (0, Ra), (1, Ra + 4)):
        mfma16(RD + 4 * n, vM8I, r)
    for jj in range(2):
        for n in range(3):
            a(f'v_cvt_pk_bf16_f32 v{Ra + 4 * jj + n}, v{RD + 4 * n + 2 * jj + 1}, v{RD + 4 * n + 2 * jj}')
        a(f'ds_write2_b32 v{vE0 + 1 + jj}, v{Ra + 4 * jj}, v{Ra + 4 * jj + 1} offset0:0 offset1:36')
        a(f'ds_write_b32 v{vE0 + 1 + jj}, v{Ra + 4 * jj + 2} offset:288')
    a('s_waitcnt lgkmcnt(0)')
    fine('p3', 'pre-B6')
    bar('B6')
    fine('p3', 'B6')
    a(f'ds_read_b128 {vr(Rb, 4)}, v{vE0 + 3}')
    a(f'ds_read_b128 {vr(Rb + 4, 4)}, v{vE0 + 3} offset:16')
    for ks in range(2):
        a(f's_waitcnt lgkmcnt({1 - ks})')
        for t in range(2):
            for e in range(2):
                d = RD + 8 * t + 4 * e
                mfma32(d, Rb + 4 * ks, vF32 + 16 * t + 8 * (1 - e) + 4 * ks, d if ks else None)
    fine('p3', 'mfma1 issued')
    for t, tmp in ((0, Ra), (1, Rc)):
        cmul(tmp, tmp + 4, RD + 8 * t, RD + 8 * t + 4, vTW + 8 * t, vTW + 8 * t + 4, +1, pk=PK[2] == '1', n=3)
        pack4(Rb + 4 * t, tmp, tmp + 4, n=3)
        a(f'v_mov_b32 v{Rb + 4 * t + 3}, 0')
    Y = RD
    mfma32(Y, vF20, Rb)
    mfma32(Y + 8, vF20 + 4, Rb)
    mfma32(Y + 4, vF20, Rb + 4)
    mfma32(Y + 8, vF20 + 8, Rb + 4, Y + 8)
    fine('p3', 'mfma2 issued')
    X1 = vXS
    s1, s2, s3, s4 = Ra, Ra + 1, Ra + 2, Ra + 3
    for k in range(10):
        a(f'v_fmac_f32 v{X1 + k}, v{Y + k}, v{vGA + k}')
        if k == 1:
            a(f'v_mul_f32 v{s2}, v{X1}, v{X1}')
            a(f'v_mul_f32 v{s3}, v{X1}, v{vVV}')
        if k >= 2:
            a(f'v_add_f32 v{s1}, v{X1 + k - 1}, v{X1 if k == 2 else s1}')
            a(f'v_fmac_f32 v{s2}, v{X1 + k - 1}, v{X1 + k - 1}')
            a(f'v_fmac_f32 v{s3}, v{X1 + k - 1}, v{vVV + k - 1}')
    a(f'v_fmac_f32 v{s3}, v{X1 + 9}, v{vVV + 9}')
    a(f'v_add_f32 v{s1}, v{X1 + 9}, v{s1}')
    a(f'v_fmac_f32 v{s2}, v{X1 + 9}, v{X1 + 9}')
    fine('p3', 'partials')
    a(f'''
    v_permlane32_swap_b32 v{s3}, v{s4}
    v_permlane32_swap_b32 v{s1}, v{s2}
    v_add_f32 v{s3}, v{s3}, v{s4}
    v_add_f32 v{s1}, v{s1}, v{s2}
    v_permlane16_swap_b32 v{s1}, v{s3}
    v_add_f32 v{s1}, v{s1}, v{s3}
    ''')
    for c in ('row_ror:8', 'row_ror:4', 'row_ror:2', 'row_ror:1'):
        dpp('v_add_f32', s1, c)
    a(f'''
    v_readlane_b32 s{sU0}, v{s1}, 0
    v_readlane_b32 s{sU2}, v{s1}, 32
    v_readlane_b32 s{sU3}, v{s1}, 16
    ''')
    fine('p3', 'reduced')
    k0 = Rc
    cI, cK, cT, cO = vE0 + 6, vE0 + 7, Ra + 7, vE0 + 4
    m = Ra + 1
    a(f'''
    v_mul_f32 v{m}, s{sU0}, v{cI}                 ; mu
    v_mul_f32 v{m + 1}, v{m}, v{m}
    v_add_f32 v{m + 2}, s{sM1B}, v{m}
    v_fma_f32 v{m + 1}, s{sU2}, v{cI}, -v{m + 1}  ; var
    v_cvt_pk_bf16_f32 v{m + 2}, v{m + 1}, v{m + 2}
    v_lshlrev_b32 v{k0}, 16, v{m + 2}
    v_and_b32 v{m + 2}, s{sHI}, v{m + 2}
    v_add_f32 v{k0}, {EPS}, v{k0}
    v_sub_f32 v{m + 2}, s{sM1B}, v{m + 2}         ; -delta
    v_cvt_pk_bf16_f32 v{k0}, v{k0}, v{k0}
    v_mov_b32 v{m + 3}, s{sU3}
    v_and_b32 v{k0}, s{sHI}, v{k0}
    v_fmac_f32 v{m + 3}, s{sV1}, v{m + 2}
    v_sqrt_f32 v{k0}, v{k0}
    v_mov_b32 v{cT}, s{sTag}
    v_cvt_pk_bf16_f32 v{k0}, v{k0}, v{k0}
    v_and_b32 v{k0}, s{sHI}, v{k0}
    v_rcp_f32 v{k0}, v{k0}
    s_mov_b64 exec, 1
    v_fma_f32 v{m + 3}, v{m + 3}, v{k0}, s{sV2}   ; r
    v_ashrrev_i32 v{m + 4}, 31, v{m + 3}
    v_or_b32 v{m + 4}, 0x80000000, v{m + 4}
    v_xor_b32 v{m + 3}, v{m + 3}, v{m + 4}
    v_and_b32 v{m + 3}, 0xfffff800, v{m + 3}
    v_or_b32 v{m + 3}, s{sKey}, v{m + 3}
    ds_max_u32 v{cK}, v{m + 3}
    ds_add_rtn_u32 v{m + 4}, v{cK}, v{cO} offset:8
    ds_read_b32 v{Ra + 6}, v{cK}
    v_readfirstlane_b32 s{sKey}, v{m + 3}
    s_waitcnt lgkmcnt(0)
    v_cmpx_eq_u32 vcc, 7, v{m + 4}
    s_cbranch_execz L_notlast
    global_store_dwordx2 v{vL4}, {vr(Ra + 6, 2)}, {sr(sRec)} sc1
    L_notlast:
    s_mov_b64 exec, -1
    ''')
    fine('p3', 'key')
    bar('B7')
    fine('p3', 'B7')
    a(f'''
    ds_read_b32 v{Ra + 6}, v{cK}
    v_mul_f32 v{k0 + 1}, v{m + 2}, v{k0}
    ''')
    ZN = vGA
    for h in range(0, 10, 2):
        a(f'v_pk_fma_f32 {vr(ZN + h, 2)}, {vr(X1 + h, 2)}, {vr(k0, 2)}, {vr(k0, 2)} op_sel:[0,0,1] op_sel_hi:[1,0,1]')
    vO = vXS

    def out_math():
        for h in range(0, 10, 2):
            a(f'v_pk_add_f32 {vr(Y + h, 2)}, {vr(X1 + h, 2)}, {vr(vGS + h, 2)}')
        for h in range(0, 10, 2):
            a(f'v_pk_fma_f32 {vr(Y + h, 2)}, {vr(ZN + h, 2)}, {vr(vGC + h, 2)}, {vr(Y + h, 2)}')
        for j in range(5):
            a(f'v_cvt_pk_bf16_f32 v{vO + j}, v{Y + tm(j, 0)}, v{Y + tm(j, 1)}')
    a(f'''
    s_waitcnt lgkmcnt(0)
    v_readfirstlane_b32 s{sU0}, v{Ra + 6}
    s_cmp_eq_u32 s{sU0}, s{sKey}
    s_cselect_b32 s{sCand}, 1, 0
    s_cbranch_scc1 L_cand
    ''')
    out_math()
    a('s_branch L_keys')
    a.label('L_cand')
    raw, SB, CB, H, Bq = 60, 70, 80, 92, 108
    for k in range(0, 10, 2):
        a(f'ds_read2st64_b32 {vr(raw + k, 2)}, v{vE0 + 5} offset0:{5 + k} offset1:{6 + k}')
    for qd in range(4):
        a(f'v_mov_b32 v{H + 4 * qd + 3}, s{sTag}')
    a('s_waitcnt lgkmcnt(0)')
    for j in range(5):
        unpack(SB + tm(j, 0), SB + tm(j, 1), raw + j)
        unpack(CB + tm(j, 0), CB + tm(j, 1), raw + 5 + j)
    for t in range(2):
        for j in range(5):
            k = tm(j, t)
            a(f'v_fma_f32 v{H + 8 * t + j + (j >= 3)}, v{ZN + k}, v{CB + k}, v{SB + k}')
        for qd in range(2):
            a(f'global_store_dwordx4 v{vL16}, {vr(H + 8 * t + 4 * qd, 4)}, {sr(sRec)} offset:{REC_H2 + 2048 * t + 1024 * qd} sc1')
    out_math()

    def out_row():
        for j in range(5):
            a(f'global_store_dword v{vL4}, v{vO + j}, {sr(sXrow)} offset:{256 * j} sc1')
    out_row()
    a.label('L_keys')
    stamp('key out')
    fine('p3', 'key out')
    bar('B7b (candidate stores are out, the helpers have ended)')
    a(f'''
    s_cmp_ge_u32 s{sRi}, 20
    s_cselect_b32 s{sT}, 1, s{sCand}
    s_cmp_lg_u32 s{sT}, 0
    s_cbranch_scc1 L_noout
    ''')
    out_row()
    a('s_branch L_fin')
    a.label('L_noout')
    vEW, vFW = 48, 88
    vRed, vRd, vRow = 15, 16, 17
    a(f'''
    s_cmp_lt_u32 s{sRi}, 20
    s_cbranch_scc1 L_no_ew
    s_mul_i32 s{sT}, s{sW}, 5120
    s_add_u32 s{sT}, s{sT}, {EW}
    v_add_u32 v{Rb}, s{sT}, v{vL16}
    s_mul_i32 s{sT}, s{sW}, 320
    s_add_u32 s{sT}, s{sT}, {FW}
    v_min_u32 v{Rb + 1}, {39 * 8}, v{vE0}
    v_add_u32 v{Rb + 1}, s{sT}, v{Rb + 1}
    ''')
    for j in range(5):
        a(f'ds_read_b128 {vr(vEW + 20 + 4 * j, 4)}, v{Rb} offset:{1024 * j}')
    a(f'''
    v_and_b32 v{vRed}, 1, v{vL}
    v_lshlrev_b32 v{vRed}, 7, v{vRed}
    v_and_b32 v{vRd}, 48, v{vL}
    v_lshl_add_u32 v{vRed}, v{vRd}, 1, v{vRed}
    s_lshr_b32 s{sU1}, s{sW}, 2
    s_lshl_b32 s{sU1}, s{sU1}, 8
    s_and_b32 s{sT}, s{sW}, 3
    s_lshl_b32 s{sT}, s{sT}, 2
    s_add_u32 s{sU1}, s{sU1}, s{sT}
    s_add_u32 s{sU1}, s{sU1}, {RED}
    v_add_u32 v{vRed}, s{sU1}, v{vRed}
    v_and_b32 v{vRd}, 0xf0, v{vL16}
    v_bfe_u32 v{vRow}, v0, 2, 6                    ; lane' = (t'>>1)>>1
    v_bfe_u32 v18, v0, 1, 1                        ; t
    v_lshlrev_b32 v{vRow}, 4, v{vRow}
    v_lshl_add_u32 v{vRow}, v18, 11, v{vRow}
    v_add_u32 v{vRow}, {REC_G + REC_H2}, v{vRow}
    v_mov_b32 v18, 0xffffff00
    s_mul_i32 s{sU1}, s{sX}, 12
    s_add_u32 s{sU1}, s{sU1}, s{sRi}
    s_mul_i32 s{sU1}, s{sU1}, {PY_STRIDE}
    s_mul_i32 s{sT}, s{sW}, 640
    s_add_u32 s{sU1}, s{sU1}, s{sT}
    ''')
    base_add(sBb, WS, sU1, PY_G - 20 * PY_STRIDE)
    a('s_waitcnt lgkmcnt(0)')
    for k in range(20):
        unpack(vEW + 2 * k, vEW + 2 * k + 1, vEW + 20 + k)
    a(f's_cmp_ge_u32 s{sW}, 4')
    a('s_cbranch_scc1 L_no_ew')
    for u in range(16):
        if u == 8:
            a('s_waitcnt lgkmcnt(0)')
        a(f'ds_read_b64 {vr(vFW + 32 + 2 * u, 2)}, v{Rb + 1} offset:{1280 * u}')
    a('s_waitcnt lgkmcnt(0)')
    for k in range(32):
        unpack(vFW + 2 * k, vFW + 2 * k + 1, vFW + 32 + k)
    a.label('L_no_ew')
    a(f's_cmp_eq_u32 s{sCand}, 0')
    a('s_cbranch_scc1 L_nobase')
    Bq = 20
    a(f'v_add_u32 v19, {REC_BASE}, v{vL16}')
    for t in range(2):
        for j in range(5):
            a(f'v_mov_b32 v{Bq + 8 * t + j + (j >= 3)}, v{Y + tm(j, t)}')
        for qd in range(2):
            a(f'v_mov_b32 v{Bq + 8 * t + 4 * qd + 3}, s{sTag}')
    a('s_waitcnt vmcnt(0)')
    for t in range(2):
        for qd in range(2):
            a(f'global_store_dwordx4 v19, {vr(Bq + 8 * t + 4 * qd, 4)}, {sr(sRec)} offset:{2048 * t + 1024 * qd} sc1')
    a.label('L_nobase')
    a(f'''
    s_cmp_lt_u32 s{sRi}, 20
    s_cbranch_scc1 L_fin
    v_mov_b32 v{Rb + 2}, {KEYL + 4}
    s_cmp_lt_u32 s{sW}, 4
    s_cbranch_scc1 L_b8
    v_mul_u32_u24 v{Rb}, {REC_STRIDE}, v0
    v_add_u32 v{Rb}, {REC_G - 256 * REC_STRIDE}, v{Rb}
    ''')
    if PACE3:
        a(f's_sleep {PACE3}')
    stamp('key poll')
    fine('e', 'key poll')
    poll([f'global_load_dwordx2 {vr(Rb + 4, 2)}, v{Rb}, {sr(WS)} sc1'], [Rb + 5], [], empty='word')
    for c in ('row_ror:8', 'row_ror:4', 'row_ror:2', 'row_ror:1'):
        dpp('v_max_u32', Rb + 4, c)
    a(f'''
    s_mov_b32 exec_lo, 0x00010001
    s_mov_b32 exec_hi, 0x00010001
    ds_max_u32 v{Rb + 2}, v{Rb + 4}
    s_mov_b64 exec, -1
    s_waitcnt lgkmcnt(0)
    ''')
    a.label('L_b8')
    fine('e', 'pre-B8')
    a('s_barrier                                   ; B8')
    a(f'''
    ds_read_b32 v{Rb + 3}, v{Rb + 2}
    s_movk_i32 s{sT}, {REC_STRIDE}
    s_waitcnt lgkmcnt(0)
    v_and_b32 v{Rb + 4}, 255, v{Rb + 3}
    v_mad_u32_u24 v{vRow}, v{Rb + 4}, s{sT}, v{vRow}
    ''')
    stamp('B8 done (winner)')
    fine('e', 'B8+')

    def late_out():
        a(f'v_readfirstlane_b32 s{sU0}, v{Rb + 3}')
        a(f's_cmp_lg_u32 s{sCand}, 0')
        a('s_cbranch_scc1 L_noout2')
        out_row()
        a('s_waitcnt vmcnt(5)')
        a.label('L_noout3')
        late.append(lambda: (a.label('L_noout2'), a('s_waitcnt vmcnt(0)'), a('s_branch L_noout3')))
    poll([f'global_load_dwordx4 v[20:23], v{vRow}, {sr(WS)} sc1',
          f'global_load_dwordx4 v[24:27], v{vRow}, {sr(WS)} offset:1024 sc1'], [23, 27], [30, 32], empty='word',
         between=late_out, younger=63)
    stamp('row in')
    fine('e', 'row in')
    acc = 36
    for j in range(5):
        for k in range(4):
            w_ = vr(vEW + 8 * j + 2 * k, 2)
            xr = 20 + j + (j >= 3)
            x_ = vr(xr & ~1, 2)
            if j == 0:
                a(f'v_pk_mul_f32 {vr(acc + 2 * k, 2)}, {w_}, {x_} op_sel:[0,0] op_sel_hi:[1,0]')
            else:
                a(f'v_pk_fma_f32 {vr(acc + 2 * k, 2)}, {w_}, {x_}, {vr(acc + 2 * k, 2)} {BC1 if xr & 1 else BC0}')
    swap_reduce8(acc)
    for c in ('row_ror:8', 'row_ror:4', 'row_ror:2'):
        dpp('v_add_f32', acc, c)
        dpp('v_add_f32', acc + 1, c)
    a(f'''
    s_mov_b32 exec_lo, 0x00030003
    s_mov_b32 exec_hi, 0x00030003
    ds_write2_b32 v{vRed}, v{acc}, v{acc + 1} offset0:0 offset1:4
    s_mov_b64 exec, -1
    s_cmp_ge_u32 s{sW}, 4
    s_waitcnt lgkmcnt(0)
    ''')
    fine('e', 'pre-B9')
    bar('B9')
    fine('e', 'B9')
    a(f'''
    s_cbranch_scc1 L_e_done
    ds_read_b128 v[20:23], v{vRd} offset:{RED}
    ds_read_b128 v[24:27], v{vRd} offset:{RED + 256}
    s_waitcnt lgkmcnt(0)
    v_pk_add_f32 v[20:21], v[20:21], v[22:23]
    v_pk_add_f32 v[24:25], v[24:25], v[26:27]
    v_add_f32 v20, v20, v21
    v_add_f32 v24, v24, v25
    v_cvt_pk_bf16_f32 v24, v20, v24
    ''')
    unpack(20, 24, 24)
    silu([20], [20], [21])
    rbf(20, 'v20')
    a('v_mul_f32 v20, v20, v24')
    rbf(20, 'v20')
    fine('e', 'gu')
    sG = 8
    for u in range(16):
        a(f'v_readlane_b32 s{sG + u}, v20, {u}')
    for u in range(16):
        for hh in range(2):
            w_ = vr(vFW + 4 * u + 2 * hh, 2)
            g_ = sr(sG + (u & ~1))
            d_ = vr(36 + 2 * hh, 2)
            if u == 0:
                a(f'v_pk_mul_f32 {d_}, {w_}, {g_} op_sel:[0,0] op_sel_hi:[1,0]')
            else:
                a(f'v_pk_fma_f32 {d_}, {w_}, {g_}, {d_} {BC1 if u & 1 else BC0}')
    for k in range(4):
        a(f'v_and_or_b32 v{36 + k}, v{36 + k}, v18, s{sTB + k}')
    a('s_mov_b32 exec_hi, 0xff')
    a(f'global_store_dwordx4 v{vL16}, v[36:39], {sr(sBb)} sc1')
    a('s_mov_b64 exec, -1')
    stamp('PY out')
    fine('e', 'PY out')
    a('s_waitcnt vmcnt(0)')
    a.label('L_e_skip')
    bar('B10')
    a('s_branch L_fin')
    a.label('L_e_done')
    a(f'''
    s_mul_i32 s{sU2}, s{sX}, 10
    s_add_u32 s{sU2}, s{sU2}, s{sRi}
    s_sub_u32 s{sU2}, s{sU2}, 20                   ; f
    s_cmp_lg_u32 s{sW}, 5
    s_cbranch_scc1 L_e_skip
    s_cmp_ge_u32 s{sRi}, 30
    s_cbranch_scc1 L_e_skip
    s_and_b32 s{sU1}, s{sU0}, 255
    s_mul_i32 s{sU1}, s{sU1}, {REC_STRIDE}
    ''')
    base_add(sBa, WS, sU1, REC_G)
    a(f'''
    v_and_b32 v20, 1, v{vL}
    v_lshrrev_b32 v21, 4, v{vL}
    v_lshl_add_u32 v20, v20, 2, v21
    s_lshl_b32 s{sT}, s{sU2}, 3
    v_add_u32 v20, s{sT}, v20                      ; d
    v_lshlrev_b32 v21, 1, v20
    v_add_u32 v21, {MODB_L + 3840}, v21
    v_mov_b32 v22, 0
    ds_read_u16_d16_hi v22, v21                    ; gb[d]
    s_lshr_b32 s{sU3}, s{sU2}, 4                   ; j
    s_cmp_ge_u32 s{sU3}, 3
    s_cselect_b32 s{sT}, 3, 0
    s_sub_u32 s{sU3}, s{sU3}, s{sT}
    s_mul_i32 s{sT}, s{sT}, 342
    s_and_b32 s{sT}, s{sT}, 1024
    s_add_u32 s{sT}, s{sT}, {REC_BASE}
    v_bfe_u32 v24, v20, 1, 6                       ; lane'
    v_and_b32 v25, 1, v20                          ; t
    v_lshlrev_b32 v26, 11, v25
    v_lshl_add_u32 v26, v24, 4, v26
    v_add_u32 v26, s{sT}, v26
    ''')
    poll([f'global_load_dwordx4 v[32:35], v26, {sr(sBa)} sc1'], [35], [], empty='word')
    a(f'''
    s_cmp_eq_u32 s{sU3}, 1
    s_cselect_b64 vcc, -1, 0
    v_cndmask_b32 v27, v32, v33, vcc
    s_cmp_eq_u32 s{sU3}, 2
    s_cselect_b64 vcc, -1, 0
    v_cndmask_b32 v27, v27, v34, vcc
    ''')
    a(f'''
    s_and_b32 s{sU1}, s{sU0}, 0xfffff800
    s_or_b32 s{sU1}, s{sU1}, 0x400
    s_xor_b32 s{sU3}, s{sU1}, 0x80000000
    s_not_b32 s{sT}, s{sU1}
    s_cmp_lt_i32 s{sU1}, 0
    s_cselect_b32 s{sU1}, s{sU3}, s{sT}
    v_mov_b32 v28, s{sU1}
    ''')
    rbf(28, 'v28')
    a(f'''
    v_mul_f32 v28, 0xbfb8aa3b, v28
    v_exp_f32 v28, v28
    v_add_f32 v28, 1.0, v28
    v_rcp_f32 v28, v28
    ''')
    rbf(28, 'v28')
    a(f'''
    s_and_b32 s{sU1}, s{sU0}, 0x7ff
    s_mul_i32 s{sU1}, s{sU1}, 1280
    v_lshlrev_b32 v20, 1, v20
    v_lshrrev_b32 v29, 1, v{vL}
    v_mul_u32_u24 v29, {PY_STRIDE}, v29
    v_and_b32 v30, 16, v{vL16}
    v_add_u32 v29, v29, v30
    v_add_u32 v30, {32 * PY_STRIDE}, v29
    v_add_u32 v31, {64 * PY_STRIDE}, v29
    s_lshl_b32 s{sU2}, s{sU2}, 5
    ''')
    base_add(sXrow, OUTP, sU1)
    base_add(sBb, WS, sU2, PY_G)
    a('s_waitcnt lgkmcnt(0)')
    bar('B10')
    stamp('PY poll')
    fine('e', 'PY poll')
    poll([f'global_load_dwordx4 {vr(36 + 4 * n, 4)}, v{29 + n}, {sr(sBb)} sc1' for n in range(3)],
         list(range(36, 48)), [48, 49], empty='tag')
    a(f'''
    v_pk_add_f32 v[36:37], v[36:37], v[40:41]
    v_pk_add_f32 v[38:39], v[38:39], v[42:43]
    v_pk_add_f32 v[36:37], v[36:37], v[44:45]
    v_pk_add_f32 v[38:39], v[38:39], v[46:47]
    v_permlane32_swap_b32 v36, v38
    v_permlane32_swap_b32 v37, v39
    v_pk_add_f32 v[36:37], v[36:37], v[38:39]
    v_permlane16_swap_b32 v36, v37
    v_add_f32 v36, v36, v37
    ''')
    for c in ('row_ror:8', 'row_ror:4', 'row_ror:2'):
        dpp('v_add_f32', 36, c)
    rbf(36, 'v36')
    a(f'''
    v_mul_f32 v36, v36, v28
    v_fma_f32 v36, v36, v22, v27
    v_cvt_pk_bf16_f32 v36, v36, v36
    s_mov_b32 exec_lo, 0x00030003
    s_mov_b32 exec_hi, 0x00030003
    global_store_short v20, v36, {sr(sXrow)} sc1
    s_mov_b64 exec, -1
    ''')
    a.label('L_fin')
    stamp('end')
    fine('e', 'end')
    if FINE:
        a('s_waitcnt lgkmcnt(0)')
    dump_stamps()
    a.label('L_end')
    a('s_endpgm')
    flush_late()


sF1, sF2, sPb, sGw, sWb = 56, 58, 60, 62, 64


def publish():
    a(f'''
    ds_read_b128 v[40:43], v28 offset:{RED}
    ds_read_b128 v[44:47], v28 offset:{RED + 16}
    s_waitcnt lgkmcnt(0)
    v_pk_add_f32 v[40:41], v[40:41], v[42:43]
    v_pk_add_f32 v[44:45], v[44:45], v[46:47]
    v_pk_add_f32 v[40:41], v[40:41], v[44:45]
    v_add_f32 v40, v40, v41
    v_and_or_b32 v40, v40, v33, v34
    global_store_dword v{vL4}, v40, {sr(sPb)} sc1
    ''')
    stamp('published', 'H0')


def w_addr():
    a(f'''
    s_mul_i32 s{sU1}, s{sIdx}, 40
    s_sub_u32 s{sT}, 1260, s{sU1}
    s_sub_u32 s{sU0}, 0, s{sX}
    s_and_b32 s{sU0}, s{sU0}, 7
    s_cmp_ge_u32 s{sIdx}, 16
    s_cselect_b32 s{sU1}, s{sT}, s{sU1}             ; 2*C0
    s_cselect_b32 s{sU2}, -1, 1                     ; direction
    s_cselect_b32 s{sU0}, s{sU0}, s{sX}             ; q
    s_and_b32 s{sT}, s{sX}, 1
    s_lshl_b32 s{sT}, s{sT}, 1
    s_sub_u32 s{sU1}, s{sU1}, s{sT}                 ; rows of odd index start 2 bytes early (4-byte alignment)
    s_movk_i32 s{sU3}, 0x2aab
    ''')
    a(f'''
    v_lshrrev_b32 v90, 1, v{vL}
    v_lshl_add_u32 v93, v90, 3, s{sU0}
    v_mul_lo_u32 v93, v93, s{sU2}
    v_and_b32 v91, 4, v90
    v_sub_u32 v92, 8, v91
    s_cmp_ge_u32 s{sIdx}, 16
    s_cselect_b64 vcc, -1, 0
    v_cndmask_b32 v91, v91, v92, vcc
    v_sub_u32 v96, s{sU1}, v91
    v_xor_b32 v92, v{vL16}, v{vL}
    v_and_b32 v92, 16, v92
    v_add_u32 v96, v96, v92
    ''')
    a(f'''
    s_mul_i32 s{sT}, s{sIdx}, 48
    v_add_u32 v90, s{sT}, v{vL}
    v_min_u32 v90, 1535, v90
    v_mul_u32_u24 v91, s{sU3}, v90
    v_lshrrev_b32 v91, 16, v91
    v_mul_u32_u24 v92, 6, v91
    v_sub_u32 v92, v90, v92
    v_lshlrev_b32 v92, 7, v92
    v_min_u32 v92, 638, v92
    s_mul_i32 s{sT}, s{sX}, 642
    v_add_u32 v92, s{sT}, v92
    s_movk_i32 s{sT}, 5136
    v_mad_u32_u24 v92, v91, s{sT}, v92
    v_and_b32 v124, -4, v92
    s_lshl_b32 s{sU2}, s{sU2}, 8
    s_movk_i32 s{sU3}, 642
    ''')
    for n in range(8):
        a(f'v_and_b32 v90, 0x7ff, v93')
        a(f'v_mad_u32_u24 v{100 + n}, v90, s{sU3}, v96')
        if n < 7:
            a(f'v_add_u32 v93, s{sU2}, v93')


def w_warm(arr):
    a('s_mov_b32 exec_hi, 0xffff')
    a(f'global_load_dword v125, v124, {sr(arr)}')
    a('s_mov_b64 exec, -1')


def w_gather(arr, lds):
    for n in range(8):
        a(f's_mov_b32 m0, {lds + 1024 * n}')
        a(f'global_load_lds_dwordx4 v{100 + n}, {sr(arr)}')


def gu_addr(h):
    a(f'''
    s_mul_i32 s{sU3}, s{sIdx}, 60
    s_mul_i32 s{sU1}, s{sX}, 384
    s_movk_i32 s{sU2}, 0x5556
    s_movk_i32 s{sT}, {3072 - 384}
    v_add_u32 v90, s{sU3}, v{vL}
    v_min_u32 v90, 1919, v90
    v_mul_u32_u24 v91, s{sU2}, v90
    v_lshrrev_b32 v91, 16, v91
    v_lshl_add_u32 v90, v90, 7, s{sU1}
    v_mad_u32_u24 v126, v91, s{sT}, v90
    s_mul_i32 s{sU1}, s{sMe}, 7680
    s_add_u32 s{sU1}, s{sU1}, {3840 * h}
    v_lshl_add_u32 v129, v{vL}, 7, s{sU1}
    ''')


def gu_warm(mat):
    a('s_mov_b32 exec_hi, 0x0fffffff')
    a(f'global_load_dword v127, v126, {sr(mat)}')
    a('s_mov_b64 exec, -1')


def wd_warm():
    a('s_mov_b64 exec, 0x3fffffff')
    a(f'global_load_dword v130, v129, {sr(W_D)}')
    a('s_mov_b64 exec, -1')


def e_addr(mat):
    a(f'''
    s_max_u32 s{sU1}, s{sRi}, 20
    s_mul_i32 s{sU0}, s{sX}, 12
    s_add_u32 s{sU0}, s{sU0}, s{sU1}
    s_sub_u32 s{sU0}, s{sU0}, 20
    s_mul_i32 s{sU1}, s{sU0}, 20480
    s_lshl_b32 s{sU0}, s{sU0}, 5
    v_lshrrev_b32 v128, 1, v{vL}
    v_mul_u32_u24 v128, 3072, v128
    v_and_b32 v90, 16, v{vL16}
    v_add_u32 v128, v128, v90
    ''')
    base_add(sF1, mat, sU0)
    base_add(sGw, W_D, sU1, 10240 if mat == W_U else 0)


def if_e(f):
    L = newlabel('ne')
    a(f's_cmp_lt_u32 s{sRi}, 20')
    a(f's_cbranch_scc1 {L}')
    f()
    a.label(L)


def e_gather(half, n0, n1):
    for n in range(n0, n1):
        a(f's_mov_b32 m0, {EW + (n % 4 + 4 * half) * 5120 + (n // 4) * 1024}')
        a(f'global_load_lds_dwordx4 v128, {sr(sF1)}')
        if n < 19:
            a(f'v_add_u32 v128, {32 * 3072}, v128')


def wd_load(half):
    for n in range(10):
        if n % 4 == 0:
            a(f's_mov_b32 m0, {FW + half * 10240 + n * 1024}')
            a(f'v_add_u32 v90, {1024 * n}, v{vL16}')
        a(f'global_load_lds_dwordx4 v90, {sr(sGw)} offset:{1024 * (n % 4)} {INPOL if S_W[2] == 9 else str()}')


def background(h, slot):
    if S_WWARM == slot:
        w_warm(W_R if h else W_I)
    if S_W[h] == slot:
        gu_warm(W_G if h else W_U)
    if S_W[2] == slot:
        wd_warm()
    if slot == 3 and EG3[h]:
        if_e(lambda: e_gather(1 - h, 0, EG3[h]))
    if slot == 4 and EG3[h] < 20:
        if_e(lambda: e_gather(1 - h, EG3[h], 20))
    if S_WD == slot:
        if_e(lambda: wd_load(1 - h))


def nbg(slot, h=0):
    return (S_WWARM == slot) + (S_W[h] == slot) + (S_W[2] == slot)


def helper_tail(h, P, in_w1, in_w2):
    if BGWAIT and (h == 1 or BGWAIT == 1):
        a(f's_waitcnt vmcnt({BGWAIT - 1})')
    bar('BT')
    bar('BP')
    background(h, 1)
    bar('B2')
    in_w1(0)
    if S_WWARM < 2:
        w_gather(W_R if h else W_I, WST + (0 if h else 8192))
    in_w1(1)
    background(h, 2)
    in_w1(2)
    bar('B3')
    if S_WWARM == 2:
        a('s_waitcnt vmcnt(0)')
        stamp('W warm', P)
        w_gather(W_R if h else W_I, WST + (0 if h else 8192))
        a('s_waitcnt vmcnt(0)')
    else:
        a(f's_waitcnt vmcnt({nbg(2, h)})')
    stamp('W in', P)
    bar('B3b')
    bar('B4')
    in_w2(0)
    background(h, 3)
    bar('B5')
    in_w2(1)
    bar('B5b')
    if DIAG and not PROBE:
        a('s_waitcnt vmcnt(0)')
        stamp('w2 done', P)
    bar('B6')
    background(h, 4)
    if h == 0:
        a(f'''
        s_cmp_lg_u32 s2, 8
        s_cbranch_scc1 L_h0_ne
        v_mov_b32 v26, {EPOCH_G}
        s_mov_b64 exec, 1
        global_store_dword v26, v27, {sr(WS)} sc1
        s_mov_b64 exec, -1
        ''')
        a.label('L_h0_ne')
    bar('B7')
    a('s_waitcnt vmcnt(0)')
    stamp('end', P)
    dump_stamps(P)
    a('s_endpgm')
    flush_late()


def helper0():
    a.label('L_h0')
    a(f'''
    v_mov_b32 v20, 0
    v_mov_b32 v21, 0
    v_mov_b32 v22, 0
    v_mov_b32 v23, 0
    v_mov_b32 v28, {KEYL}
    ds_write_b128 v28, v[20:23]
    ''')
    blk_id(sCand)
    a(f'''
    s_lshl_b32 s{sU2}, s{sCand}, 8
    v_lshlrev_b32 v28, 5, v{vL}
    s_waitcnt lgkmcnt(0)
    ''')
    stamp('kernarg', 'H0')
    epoch_load()
    base_add(sPb, WS, sU2)
    e_addr(W_U)
    a('s_waitcnt lgkmcnt(0)')
    epoch_tag()
    tag_bytes()
    a(f'''
    v_mov_b32 v27, s{sTag}
    v_lshlrev_b32 v34, 3, v{vL}
    v_add_u32 v29, {MODB_L}, v34
    v_and_b32 v34, 24, v34
    v_bfe_u32 v34, v27, v34, 8
    v_mov_b32 v33, 0xffffff00
    v_add_u32 v30, {MODF_G}, v{vL16}
    v_add_u32 v31, {MODF_G + 4096}, v{vL16}
    v_add_u32 v32, {MODF_G + 8192}, v{vL16}
    ''')
    w_addr()
    gu_addr(0)
    if nbg(0):
        a(f's_cmp_lt_u32 s{sRi}, 10')
        a('s_cbranch_scc1 L_h0_s0')
        background(0, 0)
        a.label('L_h0_s0')
    a(f's_cmp_lt_u32 s{sRi}, 30')
    bar('B1')
    a('s_cbranch_scc0 L_h0_np')
    publish()
    a.label('L_h0_np')
    if nbg(0):
        a(f's_cmp_lt_u32 s{sRi}, 10')
        a('s_cbranch_scc0 L_h0_s1')
        background(0, 0)
        a.label('L_h0_s1')
    red = [f'global_load_dwordx4 v[40:43], v{vL16}, {sr(sPb)} sc1']
    modf = [f'global_load_dwordx4 {vr(40 + 4 * n, 4)}, v{30 + n // 4}, {sr(WS)} offset:{1024 * (n % 4)} sc1' for n in range(10)]

    def in_w1(k):
        if k == 1:
            return
        L = newlabel('nr')
        a(f'''
        s_sub_u32 s{sT}, s{sRi}, 10
        s_cmp_lt_u32 s{sT}, 20
        s_cbranch_scc0 {L}
        s_and_b32 s{sT}, s{sCand}, 3
        s_cbranch_scc1 {L}
        ''')
        if k == 0:
            a(red[0])
            a.label(L)
            return
        poll(red, [40, 41, 42, 43], [44], empty='tag', issued=True, younger=nbg(2) + (8 if S_WWARM < 2 else 0))
        a(f'''
        v_mov_b32 v44, v40
        v_mov_b32 v45, v41
        v_mov_b32 v46, v42
        v_mov_b32 v47, v43
        s_lshr_b32 s{sU0}, s{sCand}, 2
        s_sub_u32 s{sT}, s{sU0}, 40
        s_cmp_lt_u32 s{sT}, 10
        s_cselect_b32 s{sU1}, 1.0, 0
        s_lshl_b32 s{sU0}, s{sU0}, 8
        s_add_u32 s{sU0}, s{sU0}, {MODF_G - 20 * 256}
        ''')
        for sw in ('32', '16'):
            for r in range(4):
                a(f'v_permlane{sw}_swap_b32 v{40 + r}, v{44 + r}')
            a('v_pk_add_f32 v[40:41], v[40:41], v[44:45]')
            a('v_pk_add_f32 v[42:43], v[42:43], v[46:47]')
            if sw == '32':
                for r in range(4):
                    a(f'v_mov_b32 v{44 + r}, v{40 + r}')
        a('v_cvt_pk_bf16_f32 v44, v40, v41')
        a('v_cvt_pk_bf16_f32 v45, v42, v43')
        unpack(40, 41, 44)
        unpack(42, 43, 45)
        for r in range(4):
            a(f'v_add_f32 v{40 + r}, s{sU1}, v{40 + r}')
        a(f'''
        v_cvt_pk_bf16_f32 v44, v40, v41
        v_cvt_pk_bf16_f32 v45, v42, v43
        v_mov_b32 v47, s{sTag}
        v_add_u32 v48, s{sU0}, v{vL16}
        s_mov_b64 exec, 0xffff
        global_store_dwordx4 v48, v[44:47], {sr(WS)} sc1
        s_mov_b64 exec, -1
        ''')
        stamp('reduced', 'H0')
        a.label(L)

    def in_w2(k):
        if k == 0:
            for ld in modf:
                a(ld)
            return
        if EG3[0] or S_WD == 3:
            a(f's_cmp_lt_u32 s{sRi}, 20')
            a(f's_waitcnt vmcnt({nbg(3) + EG3[0] + 10 * (S_WD == 3)})')
            a('s_cbranch_scc0 L_h0_m')
        a(f's_waitcnt vmcnt({nbg(3)})')
        a.label('L_h0_m')
        poll(modf, [43 + 4 * n for n in range(10)], list(range(80, 90)), empty='words', issued=True, younger=63)
        for n in range(10):
            a(f'ds_write_b64 v29, {vr(40 + 4 * n, 2)} offset:{512 * n}')
        a('s_waitcnt lgkmcnt(0)')
        stamp('modb in', 'H0')
    helper_tail(0, 'H0', in_w1, in_w2)


def helper1():
    a.label('L_h1')
    a(f'''
    s_getpc_b64 {sr(sBa)}
    L_pc:
    s_add_u32 s{sBb}, s{sBa}, L_tables-L_pc
    s_addc_u32 s{sBb + 1}, s{sBa + 1}, 0
    ''')

    def tabs(q0, q1):
        for q in range(q0, q1):
            if q % 4 == 0 or q == q0:
                a(f's_mov_b32 m0, {TAB + (q & ~3) * 1024}')
                a(f'v_add_u32 v20, {(q & ~3) * 1024}, v{vL16}')
            a(f'global_load_lds_dwordx4 v20, {sr(sBb)} offset:{1024 * (q % 4)}')

    def tab2():
        tabs(14, NTAB)
        a(f'''
        s_mov_b32 m0, {WR_L}
        global_load_lds_dwordx4 v{vL16}, {sr(B_WR)}
        s_mov_b64 exec, 0xffff
        global_load_lds_dwordx4 v{vL16}, {sr(B_WR)} offset:1024
        s_mov_b64 exec, -1
        ''')
        return NTAB - 14 + 2

    w_addr()
    gu_addr(1)
    a('s_waitcnt lgkmcnt(0)')
    e_addr(W_G)
    a(f's_cmp_lt_u32 s{sRi}, 10')
    a('s_cbranch_scc0 L_h1_t')
    bar('B1')
    a.label('L_h1_t')
    tabs(0, 14)
    n = tab2() if S_TAB2 == 1 else 0
    background(1, 0)
    n += nbg(0, 1)
    a(f's_cmp_lt_u32 s{sRi}, 10')
    a('s_cbranch_scc1 L_h1_u')
    bar('B1')
    a.label('L_h1_u')
    a(f's_waitcnt vmcnt({n})')
    stamp('tab in', 'H1')
    helper_tail(1, 'H1', lambda k: tab2() if (S_TAB2 == 2 and k == 1) else None, lambda k: None)


prologue()
main_path()
helper0()
helper1()
body = a.finish()

hdr = open(f'cdna_kernels/{NAME}.s.ref').read().split('; Override launch')[0]
T = tables()
tab = []
flat = T.reshape(-1)
for k in range(0, flat.size, 8):
    tab.append('.long ' + ','.join('0x%08x' % v for v in flat[k:k + 8]))

launch = f'; @launch grid=(256,1,1) block=(640,1,1) lds={LDS_BYTES}'
pre_code = pre_kd = ''
if PRE:
    launch = f'; @launch kernel=pre_kernel grid=({PRE},1,1) block=(64,1,1) lds=0\n; @launch kernel={NAME}_kernel grid=(256,1,1) block=(640,1,1) lds={LDS_BYTES}'
    pre_code = '.globl pre_kernel\n.p2align 8\n.type pre_kernel,@function\npre_kernel:\n    s_endpgm\n'
    pre_kd = '''.p2align 6
.amdhsa_kernel pre_kernel
  .amdhsa_next_free_vgpr 8
  .amdhsa_next_free_sgpr 16
  .amdhsa_accum_offset 8
  .amdhsa_group_segment_fixed_size 0
  .amdhsa_kernarg_size 104
  .amdhsa_user_sgpr_count 2
  .amdhsa_user_sgpr_kernarg_segment_ptr 1
  .amdhsa_system_sgpr_workgroup_id_x 1
.end_amdhsa_kernel
'''
src = hdr + f'''{launch}
.amdgcn_target "amdgcn-amd-amdhsa--gfx950"
.text
{pre_code}.globl {NAME}_kernel
.p2align 8
.type {NAME}_kernel,@function
{NAME}_kernel:
{body}
.p2align 8
.type L_tables,@object
L_tables:
''' + '\n'.join(tab) + f'''
.size L_tables, {NTAB * 1024}
.fill (8192 - ((. - {NAME}_kernel) & 8191)) & 8191, 1, 0
L_tables_end:
.section .rodata,"a"
.p2align 6
.amdhsa_kernel {NAME}_kernel
  .amdhsa_next_free_vgpr 168
  .amdhsa_next_free_sgpr 102
  .amdhsa_accum_offset 168
  .amdhsa_group_segment_fixed_size 0
  .amdhsa_kernarg_size 104
  .amdhsa_user_sgpr_count 2
  .amdhsa_user_sgpr_kernarg_segment_ptr 1
  .amdhsa_system_sgpr_workgroup_id_x 1
.end_amdhsa_kernel
{pre_kd}'''
open(OUT, 'w').write(src)
print('wrote', OUT, 'lds', LDS_BYTES, 'lines', len(a.lines), 'nops', a.nnops)
```

```python
import sys, struct
import numpy as np
from asmdsl import Asm

NAME = 'adaLN_cond__spectral_gfnet__moe_arch_mod__prompt'
DIAG = '--diag' in sys.argv or '--dbgdiag' in sys.argv
DBGDIAG = '--dbgdiag' in sys.argv
OUT = [a for a in sys.argv[1:] if not a.startswith('--')]
OUT = OUT[0] if OUT else f'cdna_kernels/{NAME}.s'
SPIN = 60000


def opt(name, default):
    for x in reversed(sys.argv):
        if x.startswith(f'--{name}='):
            return x.split('=', 1)[1]
    return default


PROBE = opt('probe', None)
PROBEWG = int(opt('probewg', 8))
FINE = opt('fine', None)
if PROBE or FINE:
    DIAG = True
OUTPOL = opt('outpol', 'sc1')
PRE = opt('pre', None)
INPOL = opt('inpol', 'nt')
S_BLOAD = int(opt('bload', 0))
S_WWARM = int(opt('wwarm', 0))
S_W = [int(x) for x in opt('sw', '030')]
EG3 = [int(x) for x in opt('eg3', '10,10').split(',')]
S_WD = int(opt('wd', 4))
S_TAB2 = int(opt('tab2', 1))
PACE1 = int(opt('pace1', 0))
PACE2 = int(opt('pace2', 0))
PK = opt('pk', '120')
P2PRIO = int(opt('p2prio', 0))
P3FIRST = int(opt('p3first', 1))
WFIRST = int(opt('wfirst', 1))
DR1 = int(opt('dr1', 1))
DR2 = int(opt('dr2', 1))
PACE0 = int(opt('pace0', 0))
PACE3 = int(opt('pace3', 0))
BGWAIT = int(opt('bgwait', 1))
ALLW = int(opt('allw', 0))
W1LEFT = int(opt('w1left', 0))
B5C = int(opt('b5c', 0))
WG0 = int(opt('wg0', 0))
WG0W = int(opt('wg0w', 8))
CAN = int(opt('can', 0))
CANOFF = int(opt('canoff', 1))
CANLATE = int(opt('canlate', 0))
PACEA = int(opt('pacea', 0))
EGS = int(opt('egs', 3))
MOVE = int(opt('move', 0))
FINPOL = opt('finpol', '')
AWAIT = int(opt('await', 1))
TABFIRST = int(opt('tabfirst', 0))
LATE = int(opt('late', 0))

MODA_G = 0
MODF_G = 61440
EPOCH_G = 73728
CAN_G = 0x14000
PY_G = 0x20000
PY_STRIDE = 2688
REC_G = 0x80000
REC_STRIDE = 8320
REC_H2 = 128
REC_BASE = 128 + 4096
T1_G = 0x400000
T2_G = 0x800000
DIAG_G = 0xC00000

NTAB = 25
TAB = 0
RED = TAB + NTAB * 1024
KEYL = RED + 2048
XB2 = KEYL + 64
XB1 = XB2 + 20480
XB3 = XB1
MODA_L = XB1 + 18560
MODB_L = MODA_L + 5120
WR_L = MODB_L + 5120
WST = WR_L + 2048
EW = WST + 16384
FW = EW + 40960
STL = FW + 20480
LDS_BYTES = STL + 256
assert LDS_BYTES <= 163840, LDS_BYTES

T_F20C, T_F20S, T_TW1, T_F32, T_F16, T_TW2, T_TW3, T_F20I = 0, 1, 2, 6, 14, 16, 18, 22


def f2u(x):
    return struct.unpack('<I', struct.pack('<f', float(x)))[0]


def bf(x):
    u = f2u(x)
    return ((u + 0x7FFF + ((u >> 16) & 1)) >> 16) & 0xFFFF


def pk(lo, hi):
    return bf(lo) | (bf(hi) << 16)


def cs(num, den):
    a = 2 * np.pi * (num % den) / den
    c, s = np.cos(a), np.sin(a)
    if abs(c) < 1e-12: c = 0.0
    if abs(s) < 1e-12: s = 0.0
    return c, s


def kaof(x):
    ka = 3 * (x >> 2) + (x & 3)
    return ka if (x & 3) < 3 and ka <= 10 else None


def tables():
    T = np.zeros((NTAB, 64, 4), np.uint32)
    for l in range(64):
        i, g = l & 15, l >> 4
        c8, s8 = [0.0] * 8, [0.0] * 8
        for j in range(5):
            if kaof(i) is not None:
                c, s = cs((4 * j + g) * kaof(i), 20)
                c8[j], s8[j] = c, -s
        for d in range(4):
            T[T_F20C, l, d] = pk(c8[2 * d], c8[2 * d + 1])
            T[T_F20S, l, d] = pk(s8[2 * d], s8[2 * d + 1])
        for t in range(2):
            for r in range(4):
                c, s = cs((8 * g + 2 * r + t) * (kaof(i) or 0), 640)
                T[T_TW1 + 2 * t, l, r] = f2u(c)
                T[T_TW1 + 2 * t + 1, l, r] = f2u(s)
                c, s = cs((2 * i + t) * (kaof(4 * g + r) or 0), 640)
                T[T_TW3 + 2 * t, l, r] = f2u(c)
                T[T_TW3 + 2 * t + 1, l, r] = f2u(s)
        for tile in range(2):
            for ks in range(2):
                for r in range(4):
                    c, s = cs((2 * i + tile) * (8 * g + 2 * r + ks), 32)
                    T[T_F32 + tile * 4 + 0 + ks, l, r] = pk(c, s)
                    T[T_F32 + tile * 4 + 2 + ks, l, r] = pk(-s, c)
        for r in range(4):
            c, s = cs(i * (4 * g + r), 16)
            T[T_F16, l, r] = pk(c, s)
            T[T_F16 + 1, l, r] = pk(-s, c)
            c, s = cs(i * (4 * g + r), 256)
            T[T_TW2, l, r] = f2u(c)
            T[T_TW2 + 1, l, r] = f2u(s)
            ka = kaof(4 * g + r)
            if ka is not None:
                a1 = 4 * (i & 3) + (i >> 2)
                c, s = cs(a1 * ka, 20)
                T[T_F20I, l, r] = pk(c, -s)
                c, s = cs((16 + (i >> 2)) * ka, 20)
                if (i & 3) == 0:
                    T[T_F20I + 1, l, r] = pk(c, -s)
                if (i & 3) == 1:
                    T[T_F20I + 2, l, r] = pk(c, -s)
    return T


def vr(a, n=1):
    return f'v{a}' if n == 1 else f'v[{a}:{a + n - 1}]'


def sr(a, n=2):
    return f's{a}' if n == 1 else f's[{a}:{a + n - 1}]'


sW, sX, sIdx, sMe, sT = 3, 4, 5, 6, 7
A_X, W_R, W_I, B_WR, W_G, W_U, W_D = 8, 10, 12, 16, 18, 20, 22
C_, W_MOD, OUTP, DBG, WS = 24, 26, 28, 30, 32
sBa, sBb, sBc = 34, 36, 38
sCnt = 40
sM1B = 41
sU0, sU1, sU2, sU3 = 42, 43, 46, 47
sM7 = 44
sRow = 48
sKey = 49
sV1, sV2 = 50, 51
sHI = 52
sCand = 53
sRec = 56
sTag = 55
sRi = 54
sGU = 56
sXrow = 72
sTS = 74

vL, vL16, vL4, vS, vPoll = 1, 2, 3, 4, 5
vM8F, vM8I = 6, 8
vXS = 10
Ra, Rb, RD, Rc = 20, 28, 36, 52
vF32 = 60
vTW = 92
vF20 = 108
vVec = 120
vE0 = 160
vXR = 150


a = Asm()
stamps = {}
NST = 24


def stamp(name, path='M', wait=True):
    if not DIAG or FINE:
        return
    if PROBE and (path != 'M' or not (name == 'start' or name.startswith(PROBE))):
        return
    lst = stamps.setdefault(path, [])
    if name not in lst:
        lst.append(name)
    k = lst.index(name)
    assert k < NST
    a(f's_memrealtime s[100:101]')
    a('s_waitcnt lgkmcnt(0)')
    a(f's_mov_b32 s{sTS + k}, s100')


fines = []


def fine(group, name):
    if FINE != group:
        return
    if name not in fines:
        fines.append(name)
    k = fines.index(name)
    assert k < 12
    a(f's_memtime {sr(sTS + 2 * k)}')


def dump_stamps(path='M'):
    if not DIAG:
        return
    if PROBE:
        if path != 'M':
            return
        a(f'''
        s_cmp_lg_u32 s2, {PROBEWG}
        s_cbranch_scc1 L_end
        s_cmp_lg_u32 s{sW}, 0
        s_cbranch_scc1 L_end
        ''')
        if PROBE == 'fix':
            a(f's_movk_i32 s{sU0}, 6000')
        elif PROBE == 'xcc':
            a(f's_getreg_b32 s{sU0}, hwreg(HW_REG_XCC_ID)')
            a(f's_and_b32 s{sU0}, s{sU0}, 15')
            a(f's_mul_i32 s{sU0}, s{sU0}, 1000')
            a(f's_add_u32 s{sU0}, s{sU0}, 6000')
        else:
            a(f's_sub_u32 s{sU0}, s{sTS + 1}, s{sTS}')
            a(f's_lshl_b32 s{sU0}, s{sU0}, 4')
            a(f's_add_u32 s{sU0}, s{sU0}, 6000')
            a(f's_min_u32 s{sU0}, s{sU0}, 100000')
        a(f'''
        L_probe:
        s_memrealtime s[100:101]
        s_waitcnt lgkmcnt(0)
        s_sub_u32 s{sU1}, s100, s{sTS}
        s_cmp_lt_u32 s{sU1}, s{sU0}
        s_cbranch_scc1 L_probe
        ''')
        return
    if DBGDIAG:
        if path != 'M':
            return
        a('v_mov_b32 v20, 0')
        a('s_mov_b64 exec, 1')
        a(f's_not_b32 s{sU0}, s{sTS}')
        a(f'v_mov_b32 v22, s{sU0}')
        a(f'global_atomic_umax v20, v22, {sr(DBG)} offset:4 sc1')
        ks = [0] + list(range(2, len(stamps['M'])))
        for n, k in enumerate(ks[:14]):
            a(f'v_mov_b32 v{23 + n}, s{sTS + k}')
            a(f'global_atomic_umax v20, v{23 + n}, {sr(DBG)} offset:{8 + 4 * n} sc1')
        print('dbg slots:', [(2 + n, stamps['M'][k]) for n, k in enumerate(ks[:14])])
        return
    if path != 'M':
        for k in range(NST):
            a(f'v_writelane_b32 v20, s{sTS + k}, {k}')
        a(f'v_lshlrev_b32 v21, 2, v{vL}')
        a(f'v_add_u32 v21, {STL + (128 if path == "H1" else 0)}, v21')
        a('s_mov_b32 exec_hi, 0')
        a('ds_write_b32 v21, v20')
        a('s_waitcnt lgkmcnt(0)')
        return
    a(f'''
    s_lshl_b32 s{sU0}, s2, 11
    v_add_u32 v21, {STL}, v{vL4}
    ds_read_b32 v22, v21
    ''')
    base_add(sBa, WS, sU0, DIAG_G + 1024)
    a('s_waitcnt lgkmcnt(0)')
    a(f'global_store_dword v{vL4}, v22, {sr(sBa)}')
    a(f'''
    s_lshl_b32 s{sU0}, s2, 11
    s_lshl_b32 s{sU1}, s{sW}, 7
    s_add_u32 s{sU0}, s{sU0}, s{sU1}
    s_memtime s[100:101]
    ''')
    base_add(sBa, WS, sU0, DIAG_G)
    a('v_mov_b32 v20, 0')
    a('s_mov_b64 exec, 1')
    for k in range(0, NST, 2):
        a(f'v_mov_b32 v22, s{sTS + k}')
        a(f'v_mov_b32 v23, s{sTS + k + 1}')
        a(f'global_store_dwordx2 v20, v[22:23], {sr(sBa)} offset:{4 * k}')
        a('s_nop 1')
    a('s_waitcnt lgkmcnt(0)')
    a('s_sub_u32 s100, s100, s98')
    a('v_mov_b32 v22, s100')
    a(f'global_store_dword v20, v22, {sr(sBa)} offset:112')
    a('s_getreg_b32 s42, hwreg(HW_REG_XCC_ID)')
    a('s_getreg_b32 s43, hwreg(HW_REG_HW_ID)')
    a('v_mov_b32 v22, s42')
    a('v_mov_b32 v23, s43')
    a(f'global_store_dwordx2 v20, v[22:23], {sr(sBa)} offset:120')


def base_add(dst, src, off_s=None, imm=0):
    if off_s is not None:
        if imm:
            a(f's_add_u32 s{sT}, s{off_s}, {imm}')
            off_s = sT
        a(f's_add_u32 s{dst}, s{src}, s{off_s}')
    else:
        a(f's_add_u32 s{dst}, s{src}, {imm}')
    a(f's_addc_u32 s{dst + 1}, s{src + 1}, 0')


lblc = [0]
late = []


def flush_late():
    for f in late:
        f()
    late.clear()


def newlabel(p):
    lblc[0] += 1
    return f'L_{p}_{lblc[0]}'


def poll(loads, regs, tmp, mask=None, empty='eq -1', between=None, younger=0, issued=False):
    L, D, Cc = newlabel('poll'), newlabel('polld'), newlabel('pollc')
    if mask is not None:
        mask_lanes(mask)
    if not issued:
        for ld in loads:
            a(ld)
    a(f's_mov_b32 s{sCnt}, {SPIN}')
    if between is not None:
        between()
    if younger < 63:
        a(f's_waitcnt vmcnt({younger})')
    a.label(Cc)

    def retry():
        a.label(L)
        a(f's_sub_u32 s{sCnt}, s{sCnt}, 1')
        a(f's_cbranch_scc1 {D}')
        for ld in loads:
            a(ld)
        a('s_waitcnt vmcnt(0)')
        a(f's_branch {Cc}')
    late.append(retry)
    if empty == 'tag':
        for n, r in enumerate(regs):
            a(f'v_xor_b32 v{r}, s{sTB + (n & 3)}, v{r}')
        rem = list(regs)
        for c in tmp:
            a(f'v_or3_b32 v{c}, v{rem[0]}, v{rem[1]}, v{rem[2]}')
            rem = rem[3:]
        n = 0
        while len(rem) >= 2:
            c = tmp[n % len(tmp)]
            a(f'v_or3_b32 v{c}, v{c}, v{rem[0]}, v{rem[1]}')
            rem = rem[2:]
            n += 1
        t = tmp[0]
        rem = rem + list(tmp[1:])
        while rem:
            if len(rem) >= 2:
                a(f'v_or3_b32 v{t}, v{t}, v{rem[0]}, v{rem[1]}')
                rem = rem[2:]
            else:
                a(f'v_or_b32 v{t}, v{t}, v{rem[0]}')
                rem = rem[1:]
        a(f'v_and_b32 v{t}, 0xff, v{t}')
        empty = 'ne 0'
    elif empty == 'word':
        if len(regs) == 1:
            t = regs[0]
            empty = f'ne s{sTag}'
        else:
            assert len(regs) == 2
            t = tmp[0]
            a(f'v_xor_b32 v{t}, v{regs[0]}, v{regs[1]}')
            a(f'v_xor_b32 v{tmp[1]}, s{sTag}, v{regs[0]}')
            a(f'v_or_b32 v{t}, v{t}, v{tmp[1]}')
            empty = 'ne 0'
    elif empty == 'words':
        for n, r in enumerate(regs):
            a(f'v_xor_b32 v{tmp[n]}, s{sTag}, v{r}')
        t = tmp[0]
        rem = list(tmp[1:len(regs)])
        while rem:
            if len(rem) >= 2:
                a(f'v_or3_b32 v{t}, v{t}, v{rem[0]}, v{rem[1]}')
                rem = rem[2:]
            else:
                a(f'v_or_b32 v{t}, v{t}, v{rem[0]}')
                rem = rem[1:]
        empty = 'ne 0'
    elif len(regs) == 1:
        t = regs[0]
    else:
        rem = list(regs)
        outs = []
        k = 0
        while len(rem) >= 3 and k < len(tmp):
            a(f'v_max3_u32 v{tmp[k]}, v{rem[0]}, v{rem[1]}, v{rem[2]}')
            outs.append(tmp[k])
            rem = rem[3:]
            k += 1
        rem = outs[1:] + rem
        t = outs[0] if outs else None
        if t is None:
            t = tmp[0]
            a(f'v_max_u32 v{t}, v{rem[0]}, v{rem[1]}')
            rem = rem[2:]
        while rem:
            if len(rem) >= 2:
                a(f'v_max3_u32 v{t}, v{t}, v{rem[0]}, v{rem[1]}')
                rem = rem[2:]
            else:
                a(f'v_max_u32 v{t}, v{t}, v{rem[0]}')
                rem = rem[1:]
    a(f'v_cmpx_{empty.split()[0]}_u32 vcc, {empty.split()[1]}, v{t}')
    a(f's_cbranch_execnz {L}')
    a.label(D)
    a('s_mov_b64 exec, -1')


def epoch_load():
    a(f's_load_dword s{sTag}, {sr(WS)}, {EPOCH_G}')


def epoch_tag():
    a(f'''
    s_and_b32 s{sTag}, s{sTag}, 0x7f7f7f7f
    s_add_u32 s{sTag}, s{sTag}, 0x01010101
    s_or_b32 s{sTag}, s{sTag}, 0x80808080
    ''')


sTB = 68


def tag_bytes():
    for k in range(4):
        a(f's_bfe_u32 s{sTB + k}, s{sTag}, {hex(0x80000 | (8 * k))}')


def dpp(op, r, ctrl, rm='0xf'):
    a(f'{op}_dpp v{r}, v{r}, v{r} {ctrl} row_mask:{rm} bank_mask:0xf')


def wave_sum(regs, dst_s, op='v_add_f32'):
    for c in ('row_ror:8', 'row_ror:4', 'row_ror:2', 'row_ror:1'):
        for r in regs:
            dpp(op, r, c)
    for r in regs:
        dpp(op, r, 'row_bcast:15', '0xa')
    for r in regs:
        dpp(op, r, 'row_bcast:31', '0xc')
    for r, s in zip(regs, dst_s):
        a(f'v_readlane_b32 s{s}, v{r}, 63')


def rbf(dst, src):
    a(f'v_cvt_pk_bf16_f32 v{dst}, {src}, {src}')
    a(f'v_and_b32 v{dst}, s{sHI}, v{dst}')


def unpack(dlo, dhi, src):
    a(f'v_lshlrev_b32 v{dlo}, 16, v{src}')
    a(f'v_and_b32 v{dhi}, s{sHI}, v{src}')


def mfma32(d, x, y, c=None):
    a(f'v_mfma_f32_16x16x32_bf16 {vr(d, 4)}, {vr(x, 4)}, {vr(y, 4)}, {vr(c, 4) if c is not None else 0}')


def mfma16(d, x, y):
    a(f'v_mfma_f32_16x16x16_bf16 {vr(d, 4)}, {vr(x, 2)}, {vr(y, 2)}, 0')


def cmul(tr, ti, re, im, c, s, sign, pk=True, n=4):
    if not pk:
        for r in range(n):
            a(f'v_mul_f32 v{tr + r}, v{re + r}, v{c + r}')
        for r in range(n):
            a(f'v_mul_f32 v{ti + r}, v{im + r}, v{c + r}')
        for r in range(n):
            if sign > 0:
                a(f'v_fma_f32 v{tr + r}, -v{im + r}, v{s + r}, v{tr + r}')
                a(f'v_fmac_f32 v{ti + r}, v{re + r}, v{s + r}')
            else:
                a(f'v_fmac_f32 v{tr + r}, v{im + r}, v{s + r}')
                a(f'v_fma_f32 v{ti + r}, -v{re + r}, v{s + r}, v{ti + r}')
        return
    nr = 'neg_lo:[1,0,0] neg_hi:[1,0,0]'
    for h in (0, 2):
        a(f'v_pk_mul_f32 {vr(tr + h, 2)}, {vr(re + h, 2)}, {vr(c + h, 2)}')
    for h in (0, 2):
        a(f'v_pk_mul_f32 {vr(ti + h, 2)}, {vr(im + h, 2)}, {vr(c + h, 2)}')
    for h in (0, 2):
        a(f'v_pk_fma_f32 {vr(tr + h, 2)}, {vr(im + h, 2)}, {vr(s + h, 2)}, {vr(tr + h, 2)} {nr if sign > 0 else ""}')
    for h in (0, 2):
        a(f'v_pk_fma_f32 {vr(ti + h, 2)}, {vr(re + h, 2)}, {vr(s + h, 2)}, {vr(ti + h, 2)} {nr if sign < 0 else ""}')


def pack4(d, lo, hi, step=1, n=4):
    for r in range(n):
        a(f'v_cvt_pk_bf16_f32 v{d + r * step}, v{lo + r}, v{hi + r}')


def tab_read(dst, q):
    a(f'ds_read_b128 {vr(dst, 4)}, v{vL16} offset:{TAB + q * 1024}')


def tm(j, t):
    return 4 * t + j if j < 4 else 8 + t


def read_tmajor(dst, vaddr, off):
    o = off // 256
    assert off % 256 == 0 and o + 6 < 256
    for t in range(2):
        a(f'ds_read2st64_b32 {vr(dst + 4 * t, 2)}, v{vaddr + t} offset0:{o} offset1:{o + 2}')
        a(f'ds_read2st64_b32 {vr(dst + 4 * t + 2, 2)}, v{vaddr + t} offset0:{o + 4} offset1:{o + 6}')
    a(f'ds_read_b64 {vr(dst + 8, 2)}, v{vaddr} offset:{off + 2048}')


def silu(dst, src, tmp):
    for d, s, t in zip(dst, src, tmp):
        a(f'v_mul_f32 v{t}, 0xbfb8aa3b, v{s}')
    for t in tmp:
        a(f'v_exp_f32 v{t}, v{t}')
    for t in tmp:
        a(f'v_add_f32 v{t}, 1.0, v{t}')
    for t in tmp:
        a(f'v_rcp_f32 v{t}, v{t}')
    for d, s, t in zip(dst, src, tmp):
        a(f'v_mul_f32 v{d}, v{s}, v{t}')


def swap_reduce8(acc):
    for k in range(4):
        a(f'v_permlane32_swap_b32 v{acc + k}, v{acc + k + 4}')
    a(f'v_pk_add_f32 {vr(acc, 2)}, {vr(acc, 2)}, {vr(acc + 4, 2)}')
    a(f'v_pk_add_f32 {vr(acc + 2, 2)}, {vr(acc + 2, 2)}, {vr(acc + 6, 2)}')
    for k in range(2):
        a(f'v_permlane16_swap_b32 v{acc + k}, v{acc + k + 2}')
    a(f'v_pk_add_f32 {vr(acc, 2)}, {vr(acc, 2)}, {vr(acc + 2, 2)}')


BC0 = 'op_sel:[0,0,0] op_sel_hi:[1,0,1]'
BC1 = 'op_sel:[0,1,0] op_sel_hi:[1,1,1]'


def prologue():
    a(f'''
    s_cmp_ge_u32 s2, 256
    s_cbranch_scc1 L_end
    ''')
    if DIAG:
        for k in range(NST):
            a(f's_mov_b32 s{sTS + k}, 0')
        a('s_memtime s[98:99]')
        for p in ('M', 'H0', 'H1'):
            stamps[p] = ['start']
        stamp('start')
    a(f'''
    s_load_dwordx16 s[8:23], s[0:1], 0
    s_load_dwordx8 s[24:31], s[0:1], 64
    s_load_dwordx2 s[32:33], s[0:1], 96
    v_lshrrev_b32 v{vL}, 6, v0
    s_and_b32 s{sX}, s2, 7
    v_readfirstlane_b32 s{sW}, v{vL}
    v_and_b32 v{vL}, 63, v0
    s_lshr_b32 s{sIdx}, s2, 3
    s_lshl_b32 s{sMe}, s{sX}, 5
    s_add_u32 s{sMe}, s{sMe}, s{sIdx}
    s_add_u32 s{sRi}, s{sIdx}, 31
    s_and_b32 s{sRi}, s{sRi}, 31
    v_lshlrev_b32 v{vL16}, 4, v{vL}
    s_mov_b32 s{sHI}, 0xffff0000
    s_cmp_lg_u32 s{sRi}, 30
    s_cbranch_scc1 L_nopf
    s_cmp_ge_u32 s{sW}, (L_tables_end-{NAME}_kernel)/8192
    s_cbranch_scc1 L_nopf
    s_getpc_b64 {sr(sBa)}
    L_pc0:
    s_sub_u32 s{sBa}, s{sBa}, L_pc0-{NAME}_kernel
    s_subb_u32 s{sBa + 1}, s{sBa + 1}, 0
    v_lshlrev_b32 v20, 7, v0
    global_load_dword v159, v20, {sr(sBa)}
    L_nopf:
    v_lshlrev_b32 v{vL4}, 2, v{vL}
    s_cmp_eq_u32 s{sW}, 9
    s_cbranch_scc1 L_h1
    s_cmp_eq_u32 s{sW}, 8
    s_cbranch_scc1 L_h0
    s_lshl_b32 s{sRow}, s{sW}, 8
    s_add_u32 s{sKey}, s{sRow}, s{sMe}
    s_mul_i32 s{sRow}, s{sKey}, 1280
    ''')


def xloads():
    for j in range(5):
        a(f'global_load_dword v{vXR + j}, v{vL4}, {sr(sXrow)} offset:{256 * j} {INPOL}')


def blk_id(dst):
    a(f'''
    s_cmp_lt_u32 s{sRi}, 10
    s_cselect_b32 s{dst}, 10, 20
    s_cselect_b32 s{sT}, 0, 70
    s_mul_i32 s{dst}, s{dst}, s{sX}
    s_add_u32 s{dst}, s{dst}, s{sT}
    s_add_u32 s{dst}, s{dst}, s{sRi}
    ''')


GV = (80, 100, 48, 60, 56, 57)


def gemv_addr():
    vw, vc, acc, tmp, vo, voc = GV
    blk_id(sU2)
    a(f'''
    s_lshr_b32 s{sU0}, s{sU2}, 2
    s_and_b32 s{sU1}, s{sU2}, 3
    s_mul_i32 s{sU1}, s{sU1}, 160
    s_mul_i32 s{sT}, s{sW}, 20
    s_add_u32 s{sU1}, s{sU1}, s{sT}
    v_lshrrev_b32 v{voc}, 3, v{vL}
    v_and_b32 v{vo}, 0x70, v{vL16}
    v_mul_u32_u24 v{tmp}, 7680, v{voc}
    v_lshlrev_b32 v{voc}, 1, v{voc}
    v_add_u32 v{vo}, v{vo}, v{tmp}
    s_mul_i32 s{sU3}, s{sU1}, 7680
    s_lshl_b32 s{sT}, s{sU0}, 7
    s_add_u32 s{sU3}, s{sU3}, s{sT}
    s_lshl_b32 s{sU1}, s{sU1}, 1
    ''')
    for k in range(4):
        a(f'v_mov_b32 v{vw + 8 + k}, 0')
    a(f'v_mov_b32 v{vc + 2}, 0')
    a('s_waitcnt lgkmcnt(0)')
    stamp('kernarg')
    epoch_load()
    base_add(sBa, C_, sU1)
    base_add(sBb, W_MOD, sU3)
    base_add(sXrow, A_X, sRow)


def gemv_issue():
    vw, vc, acc, tmp, vo, voc = GV
    for j in range(3):
        if j == 2:
            a('s_mov_b32 exec_hi, 0')
        a(f'global_load_ushort v{vc + j}, v{voc}, {sr(sBa)} offset:{16 * j}')
    a('s_mov_b64 exec, -1')
    for j in range(3):
        if j == 2:
            a('s_mov_b32 exec_hi, 0')
        a(f'global_load_dwordx4 {vr(vw + 4 * j, 4)}, v{vo}, {sr(sBb)} {INPOL}')
        if j < 2:
            a(f'v_add_u32 v{vo}, {8 * 7680}, v{vo}')
    a('s_mov_b64 exec, -1')


def gemv_compute(role):
    nj = 3
    vw, vc, acc, tmp, vo, voc = GV
    after = 5 if role == 'A' else 0
    a(f's_waitcnt vmcnt({nj + after})')
    stamp('c in')
    cs_ = [vc + j for j in range(nj)]
    for c in cs_:
        a(f'v_lshlrev_b32 v{c}, 16, v{c}')
    silu(cs_, cs_, [tmp + j for j in range(nj)])
    sc = [70 + 2 * j for j in range(nj)]
    for c, s in zip(cs_, sc):
        a(f'v_cvt_pk_bf16_f32 v{s}, v{c}, v{c}')
    for s in sc:
        a(f'v_and_b32 v{s}, s{sHI}, v{s}')
    for j in range(nj):
        a(f's_waitcnt vmcnt({nj - 1 - j + after})')
        for k in range(4):
            unpack(tmp + 2 * k, tmp + 2 * k + 1, vw + 4 * j + k)
        for k in range(4):
            if j == 0:
                a(f'v_pk_mul_f32 {vr(acc + 2 * k, 2)}, {vr(tmp + 2 * k, 2)}, {vr(sc[j], 2)} op_sel:[0,0] op_sel_hi:[1,0]')
            else:
                a(f'v_pk_fma_f32 {vr(acc + 2 * k, 2)}, {vr(tmp + 2 * k, 2)}, {vr(sc[j], 2)}, {vr(acc + 2 * k, 2)} {BC0}')
    stamp('w in')
    a(f'''
    v_and_b32 v{vo}, 7, v{vL}
    v_lshlrev_b32 v{vo}, 8, v{vo}
    v_and_b32 v{voc}, 48, v{vL}
    v_lshl_add_u32 v{vo}, v{voc}, 2, v{vo}
    s_lshl_b32 s{sT}, s{sW}, 2
    s_add_u32 s{sT}, s{sT}, {RED}
    v_add_u32 v{vo}, s{sT}, v{vo}
    ''')
    swap_reduce8(acc)
    for c in ('row_ror:8',):
        dpp('v_add_f32', acc, c)
        dpp('v_add_f32', acc + 1, c)
    a(f'''
    s_mov_b32 exec_lo, 0x00ff00ff
    s_mov_b32 exec_hi, 0x00ff00ff
    ds_write2_b32 v{vo}, v{acc}, v{acc + 1} offset0:0 offset1:8
    s_mov_b64 exec, -1
    s_waitcnt lgkmcnt(0)
    ''')


def m8(dst, inverse):
    t0, t1, t2, t3 = 20, 21, 22, 23
    a(f'v_lshrrev_b32 v{t0}, 4, v{vL}           ; g')
    a(f's_cmp_lt_u32 s{sW}, 4')
    a(f's_cselect_b32 s{sT}, 1, 7')
    if not inverse:
        a(f'''
        v_bfe_u32 v{t1}, v{vL}, 2, 2
        v_bfe_u32 v{t2}, v{vL}, 1, 1
        v_lshl_add_u32 v{t1}, v{t2}, 2, v{t1}
        v_mul_u32_u24 v{t1}, s{sT}, v{t1}
        v_and_b32 v{t1}, 7, v{t1}
        v_lshlrev_b32 v{t0}, 9, v{t0}
        v_add_u32 v{t0}, s{sMe}, v{t0}
        v_mul_u32_u24 v{t2}, v{t0}, v{t1}
        v_lshl_add_u32 v{t3}, v{t1}, 8, v{t2}
        ''')
    else:
        a(f'''
        v_bfe_u32 v{t1}, v{vL}, 1, 3
        v_lshlrev_b32 v{t1}, 8, v{t1}
        v_add_u32 v{t1}, s{sMe}, v{t1}
        v_mul_u32_u24 v{t0}, s{sT}, v{t0}
        v_and_b32 v{t0}, 7, v{t0}
        v_mul_u32_u24 v{t2}, v{t0}, v{t1}
        v_xor_b32 v{t0}, 4, v{t0}
        v_mul_u32_u24 v{t3}, v{t0}, v{t1}
        v_sub_u32 v{t2}, 0, v{t2}
        v_sub_u32 v{t3}, 0, v{t3}
        ''')
    a(f'''
    v_and_b32 v{t0}, 1, v{vL}
    v_lshl_add_u32 v{t2}, v{t0}, 9, v{t2}
    v_lshl_add_u32 v{t3}, v{t0}, 9, v{t3}
    v_and_b32 v{t2}, 0x7ff, v{t2}
    v_and_b32 v{t3}, 0x7ff, v{t3}
    v_cvt_f32_u32 v{t2}, v{t2}
    v_cvt_f32_u32 v{t3}, v{t3}
    v_mul_f32 v{t2}, 0x3a000000, v{t2}
    v_mul_f32 v{t3}, 0x3a000000, v{t3}
    v_cos_f32 v{t0}, v{t2}
    v_sin_f32 v{t2}, v{t2}
    v_cos_f32 v{t1}, v{t3}
    v_sin_f32 v{t3}, v{t3}
    v_cvt_pk_bf16_f32 v{dst}, v{t0}, v{t2}
    v_cvt_pk_bf16_f32 v{dst + 1}, v{t1}, v{t3}
    ''')


INV640 = hex(f2u(1.0 / 640))
EPS = hex(f2u(1e-5))


def rstd_chain(var, out):
    rbf(out, f'v{var}')
    a(f'v_add_f32 v{out}, {EPS}, v{out}')
    rbf(out, f'v{out}')
    a(f'v_sqrt_f32 v{out}, v{out}')
    rbf(out, f'v{out}')
    a(f'v_rcp_f32 v{out}, v{out}')


def sum10(dst2, x):
    a(f'v_pk_add_f32 {vr(dst2, 2)}, {vr(x, 2)}, {vr(x + 2, 2)}')
    for h in (4, 6, 8):
        a(f'v_pk_add_f32 {vr(dst2, 2)}, {vr(dst2, 2)}, {vr(x + h, 2)}')
    a(f'v_add_f32 v{dst2}, v{dst2}, v{dst2 + 1}')


def dot10(dst2, x, y):
    a(f'v_pk_mul_f32 {vr(dst2, 2)}, {vr(x, 2)}, {vr(y, 2)}')
    for h in (2, 4, 6, 8):
        a(f'v_pk_fma_f32 {vr(dst2, 2)}, {vr(x + h, 2)}, {vr(y + h, 2)}, {vr(dst2, 2)}')
    a(f'v_add_f32 v{dst2}, v{dst2}, v{dst2 + 1}')


def bar(n):
    a(f's_barrier                                   ; {n}')


def p3_addr():
    a(f'''
    v_add_u32 v{vE0 + 5}, {MODB_L}, v{vL4}
    v_lshrrev_b32 v40, 4, v{vL}
    v_mul_u32_u24 v40, 4640, v40
    v_and_b32 v41, 3, v{vL}
    v_mul_u32_u24 v41, 576, v41
    v_and_b32 v42, 4, v{vL}
    v_lshl_add_u32 v40, v42, 2, v40
    v_bfe_u32 v42, v{vL}, 3, 1
    v_lshl_add_u32 v41, v42, 2, v41
    s_lshr_b32 s{sU2}, s{sW}, 1
    s_lshl_b32 s{sU2}, s{sU2}, 5
    s_and_b32 s{sT}, s{sW}, 1
    s_lshl_b32 s{sT}, s{sT}, 3
    s_add_u32 s{sU2}, s{sU2}, s{sT}
    s_add_u32 s{sU2}, s{sU2}, {XB3}
    v_add3_u32 v{vE0 + 1}, v40, v41, s{sU2}
    v_add_u32 v{vE0 + 2}, 2320, v{vE0 + 1}
    v_and_b32 v40, 15, v{vL}
    v_mul_u32_u24 v40, 144, v40
    v_and_b32 v41, 48, v{vL}
    v_lshl_add_u32 v40, v41, 1, v40
    s_mul_i32 s{sU2}, s{sW}, 2320
    s_add_u32 s{sU2}, s{sU2}, {XB3}
    v_add_u32 v{vE0 + 7}, s{sU2}, v40
    ''')


def main_path():
    vZ, vSA, vCA = vVec, vVec + 10, vVec + 20
    gemv_addr()
    a(f's_cmp_lt_u32 s{sRi}, 10')
    if LATE == 1:
        a('s_cbranch_scc0 L_setup')
        gemv_issue()
        xloads()
        a.label('L_setup')
    else:
        a('s_cbranch_scc0 L_x')
        gemv_issue()
        a.label('L_x')
        xloads()
        if S_BLOAD == 0 and LATE == 0:
            a(f's_sub_u32 s{sT}, s{sRi}, 10')
            a(f's_cmp_lt_u32 s{sT}, 20')
            a('s_cbranch_scc0 L_setup')
            gemv_issue()
            a.label('L_setup')
    m8(vM8F, False)
    if not MOVE:
        m8(vM8I, True)
    a(f'''
    v_bfe_u32 v20, v{vL}, 2, 2
    v_and_b32 v21, 48, v{vL16}                    ; part*16
    v_and_b32 v22, 48, v{vL}
    v_lshl_add_u32 v20, v22, 1, v20               ; 32g + kbs
    v_lshl_add_u32 v{vS}, v20, 6, v21
    v_lshl_add_u32 v{vPoll}, v20, 14, v21
    v_mul_u32_u24 v20, 80, v20
    s_mul_i32 s{sT}, s{sW}, 320
    s_add_u32 s{sT}, s{sT}, {XB2}
    v_add3_u32 v{vE0 + 4}, v20, v21, s{sT}        ; staging address
    v_lshlrev_b32 v{vE0}, 3, v{vL}                ; 8*lane
    ''')
    a(f'''
    v_and_b32 v20, 15, v{vL}
    v_mul_u32_u24 v20, 264, v20
    v_and_b32 v21, 48, v{vL}
    v_lshl_add_u32 v{vE0 + 1}, v21, 2, v20
    s_lshr_b32 s{sU0}, s{sW}, 1
    s_mul_i32 s{sU0}, s{sU0}, 4224
    s_and_b32 s{sT}, s{sW}, 1
    s_lshl_b32 s{sT}, s{sT}, 2
    s_add_u32 s{sU0}, s{sU0}, s{sT}
    s_add_u32 s{sU0}, s{sU0}, {XB1}
    v_add_u32 v{vE0 + 1}, s{sU0}, v{vE0 + 1}
    ''')
    a(f'''
    v_lshrrev_b32 v20, 4, v{vL}
    v_mul_u32_u24 v20, 4224, v20
    v_and_b32 v21, 3, v{vL}
    v_mul_u32_u24 v21, 1056, v21
    v_and_b32 v22, 12, v{vL}
    v_lshl_add_u32 v20, v22, 1, v20
    s_lshl_b32 s{sU0}, s{sW}, 5
    s_add_u32 s{sU0}, s{sU0}, {XB1}
    v_add3_u32 v{vE0 + 2}, v20, v21, s{sU0}
    ''')
    a(f's_cmp_lt_u32 s{sRi}, 10')
    a('s_cbranch_scc0 L_na')
    gemv_compute('A')
    bar('B1')
    a('s_waitcnt vmcnt(0)')
    a('s_branch L_ln1')
    a.label('L_na')
    if LATE == 1:
        xloads()
    if LATE and S_BLOAD == 0:
        a(f's_cmp_lt_u32 s{sRi}, 30')
        a('s_cbranch_scc0 L_nb')
        gemv_issue()
        a.label('L_nb')
    a(f's_cmp_lt_u32 s{sRi}, 30')
    if S_BLOAD == 0:
        a('s_waitcnt vmcnt(6)')
        a('s_cbranch_scc1 L_ln1')
        a('s_waitcnt vmcnt(0)')
    else:
        a('s_waitcnt vmcnt(0)')
        a('s_cbranch_scc0 L_ln1')
        gemv_issue()
    a.label('L_ln1')
    stamp('x in')
    for j in range(5):
        unpack(vXS + tm(j, 0), vXS + tm(j, 1), vXR + j)
    sum10(24, vXS)
    wave_sum([24], [sU0])
    a(f'v_mov_b32 v24, {INV640}')
    a(f'v_mul_f32 v26, s{sU0}, v24                ; mean')
    rbf(28, 'v26')
    a(f'v_readfirstlane_b32 s{sM1B}, v28')
    for h in range(0, 10, 2):
        a(f'v_pk_add_f32 {vr(vXS + h, 2)}, {vr(vXS + h, 2)}, v[28:29] op_sel:[0,0] op_sel_hi:[1,0] neg_lo:[0,1] neg_hi:[0,1]')
    dot10(30, vXS, vXS)
    wave_sum([30], [sU0])
    a(f'''
    v_sub_f32 v26, v26, v28
    v_mul_f32 v26, v26, v26
    v_fma_f32 v26, s{sU0}, v24, -v26
    ''')
    rstd_chain(26, 27)
    for j in range(5):
        for t in range(2):
            a(f'v_mul_f32 v{vZ + 2 * j + t}, v27, v{vXS + tm(j, t)}')
    a(f'''
    v_mov_b32 v23, 0
    v_mov_b32 v27, 0
    s_waitcnt lgkmcnt(0)
    ''')
    epoch_tag()
    tag_bytes()
    a(f'''
    s_cmp_lt_u32 s{sRi}, 10
    s_cbranch_scc1 L_tabs
    s_cmp_lt_u32 s{sRi}, 30
    s_cbranch_scc0 L_b1
    ''')
    gemv_compute('B')
    a.label('L_b1')
    bar('B1')
    a.label('L_tabs')
    a(f'''
    s_lshl_b32 s{sU0}, s{sMe}, 14
    s_lshl_b32 s{sU1}, s{sW}, 8
    s_add_u32 s{sU0}, s{sU0}, s{sU1}
    ''')
    base_add(sBa, WS, sU0, T1_G)
    base_add(sBb, WS, sU0, T1_G + 8192)
    a(f'''
    v_subrev_u32 v28, 64, v0                      ; u
    v_lshrrev_b32 v29, 4, v28
    v_lshlrev_b32 v29, 10, v29
    v_and_b32 v30, 0xf0, v{vL16}
    v_add_u32 v29, v29, v30
    v_cmp_le_u32 vcc, 160, v28
    v_cndmask_b32 v30, 0, 1.0, vcc
    v_mov_b32 v31, {8 - 160 * 32}
    v_cndmask_b32 v31, 0, v31, vcc
    s_mov_b32 s{sU2}, {MODA_L}
    v_lshlrev_b32 v28, 5, v28
    v_add3_u32 v28, v28, v31, s{sU2}
    v_add_u32 v{vE0 + 3}, s{sU2}, v{vL16}
    s_sub_u32 s{sT}, s{sW}, 1
    s_cmp_lt_u32 s{sT}, 5
    ''')
    bar('BT')
    stamp('poll start')
    def p1_tabs():
        bar('BP')
        tab_read(vF20, T_F20C)
        tab_read(vF20 + 4, T_F20S)
        for q in range(4):
            tab_read(vTW + 4 * q, T_TW1 + q)
        for q in range(8):
            tab_read(vF32 + 4 * q, T_F32 + q)
    a('s_cbranch_scc1 L_mpoll')
    p1_tabs()
    a('s_branch L_b2')
    a.label('L_mpoll')
    if PACE0:
        a(f's_sleep {PACE0}')
    poll([f'global_load_dwordx4 {vr(36 + 4 * p, 4)}, v29, {sr(WS)} offset:{256 * p} sc1' for p in range(4)],
         list(range(36, 52)), [52, 53, 54], empty='tag', between=p1_tabs)
    a(f'''
    v_pk_add_f32 v[36:37], v[36:37], v[40:41]
    v_pk_add_f32 v[38:39], v[38:39], v[42:43]
    v_pk_add_f32 v[44:45], v[44:45], v[48:49]
    v_pk_add_f32 v[46:47], v[46:47], v[50:51]
    v_pk_add_f32 v[36:37], v[36:37], v[44:45]
    v_pk_add_f32 v[38:39], v[38:39], v[46:47]
    v_cvt_pk_bf16_f32 v40, v36, v37
    v_cvt_pk_bf16_f32 v41, v38, v39
    ''')
    unpack(36, 37, 40)
    unpack(38, 39, 41)
    a(f'''
    v_pk_add_f32 v[36:37], v[36:37], v[30:31] op_sel:[0,0] op_sel_hi:[1,0]
    v_pk_add_f32 v[38:39], v[38:39], v[30:31] op_sel:[0,0] op_sel_hi:[1,0]
    v_cvt_pk_bf16_f32 v40, v36, v37
    v_cvt_pk_bf16_f32 v41, v38, v39
    ''')
    unpack(36, 37, 40)
    unpack(38, 39, 41)
    a(f'ds_write2_b64 v28, v[36:37], v[38:39] offset0:0 offset1:2')
    a.label('L_b2')
    stamp('poll end')
    fine('p1', 'pre-B2')
    a('s_waitcnt lgkmcnt(0)')
    a('s_barrier                                   ; B2')
    stamp('B2 done (mod ready)')
    fine('p1', 'B2')
    assert MODA_L % 16 == 0
    for j in range(5):
        a(f'ds_read_b128 {vr(vSA + 4 * j, 4)}, v{vE0 + 3} offset:{1024 * j}')
    for j in range(5):
        a(f's_waitcnt lgkmcnt({4 - j})')
        for t in range(2):
            a(f'v_fmac_f32 v{vSA + 4 * j + t}, v{vZ + 2 * j + t}, v{vSA + 4 * j + 2 + t}')
        if j in (1, 3):
            for t in range(2):
                a(f'v_cvt_pk_bf16_f32 v{Ra + 4 * t + j // 2}, v{vSA + 4 * j - 4 + t}, v{vSA + 4 * j + t}')
    for t in range(2):
        a(f'v_cvt_pk_bf16_f32 v{Ra + 4 * t + 2}, v{vSA + 16 + t}, 0')
    fine('p1', 'h packed')
    for t in range(2):
        mfma32(RD + 8 * t, Ra + 4 * t, vF20)
        mfma32(RD + 8 * t + 4, Ra + 4 * t, vF20 + 4)
    fine('p1', 'mfma1 issued')
    for t, tmp in ((0, Rb), (1, Rc)):
        cmul(tmp, tmp + 4, RD + 8 * t, RD + 8 * t + 4, vTW + 8 * t, vTW + 8 * t + 4, -1, pk=PK[0] == '1')
        pack4(Ra + 4 * t, tmp, tmp + 4)
    fine('p1', 'twiddled')
    for ks in range(2):
        for u in range(2):
            for e in range(2):
                d = RD + 8 * u + 4 * e
                mfma32(d, vF32 + 16 * u + 8 * e + 4 * ks, Ra + 4 * ks, d if ks else None)
    fine('p1', 'mfma2 issued')
    for u in range(2):
        pack4(Rb + u, RD + 8 * u, RD + 8 * u + 4, step=2)
    for r in range(4):
        a(f'ds_write2_b32 v{vE0 + 1}, v{Rb + 2 * r}, v{Rb + 2 * r + 1} offset0:{4 * r} offset1:{4 * r + 2}')
    a(f'v_mov_b32 v{Rc + 3}, s{sTag}')
    a(f'v_mov_b32 v{Rc + 7}, s{sTag}')
    fine('p1', 'lds written')
    a('s_waitcnt lgkmcnt(0)')
    fine('p1', 'pre-B3')
    bar('B3')
    fine('p1', 'B3')
    for n in range(3):
        a(f'ds_read_b64 {vr(Ra + 2 * n, 2)}, v{vE0 + 2} offset:{264 * n}')
    for n in range(3):
        a(f's_waitcnt lgkmcnt({2 - n})')
        mfma16(RD + 4 * n, vM8F, Ra + 2 * n)
    fine('p1', 'r8 issued')
    for j in range(2):
        for n in range(3):
            a(f'v_cvt_pk_bf16_f32 v{Rc + 4 * j + n}, v{RD + 4 * n + 2 * j}, v{RD + 4 * n + 2 * j + 1}')
        a(f'global_store_dwordx4 v{vS}, {vr(Rc + 4 * j, 4)}, {sr(sBb if j else sBa)} sc1')
    stamp('T1 stored')
    fine('p1', 'stored')
    vWr = vVec
    for k in range(16):
        a(f'v_mov_b32 v{vWr + k}, 0')
    SC = 2.0 / (2048 * 640)
    sKa = sM7
    a(f'''
    v_and_b32 v36, 15, v{vL}
    v_and_b32 v37, 48, v{vL}
    v_lshl_add_u32 v36, v37, 2, v36               ; 64g + i
    v_mul_u32_u24 v{vE0 + 3}, 80, v36
    s_and_b32 s{sU1}, s{sW}, 3
    s_lshr_b32 s{sU2}, s{sW}, 2
    s_lshl_b32 s{sU2}, s{sU2}, 1
    s_mul_i32 s{sKa}, s{sU1}, 3
    s_add_u32 s{sKa}, s{sKa}, s{sU2}
    s_lshl_b32 s{sU1}, s{sU1}, 2
    s_add_u32 s{sU1}, s{sU1}, s{sU2}
    s_lshl_b32 s{sU1}, s{sU1}, 2
    s_add_u32 s{sU1}, s{sU1}, {XB2}
    v_add_u32 v{vE0 + 3}, s{sU1}, v{vE0 + 3}
    v_lshlrev_b32 v36, 5, v36
    v_add_u32 v36, {WST}, v36
    v_and_b32 v38, 4, v{vL}
    v_sub_u32 v39, 8, v38
    s_cmp_ge_u32 s{sIdx}, 16
    s_cselect_b64 vcc, -1, 0
    v_cndmask_b32 v38, v38, v39, vcc
    v_and_b32 v39, 8, v{vL}
    v_lshlrev_b32 v39, 1, v39
    s_lshl_b32 s{sU1}, s{sMe}, 6
    s_lshl_b32 s{sT}, s{sW}, 16
    s_add_u32 s{sU1}, s{sU1}, s{sT}
    ''')
    base_add(sBa, WS, sU1, T1_G)
    base_add(sBb, WS, sU1, T1_G + 128 * 16384)
    base_add(58, WS, sU0, T2_G)
    base_add(60, WS, sU0, T2_G + 8192)

    def w_setup():
        for q in range(2):
            tab_read(vTW + 4 * q, T_F16 + q)
            tab_read(vTW + 8 + 4 * q, T_TW2 + q)
        a(f's_and_b32 s{sU2}, s{sX}, 1                    ; q & 1')
        for s in range(2):
            ka, pos, gam = sBc, sBc + 1, sU3
            if s == 1:
                a(f's_cmp_ge_u32 s{sW}, 4')
                a('s_cbranch_scc1 L_wdone')
            a(f'''
            s_add_u32 s{ka}, s{sKa}, {s}
            s_min_u32 s{pos}, s{ka}, 10
            s_sub_u32 s{sT}, 10, s{pos}
            s_cmp_ge_u32 s{sIdx}, 16
            s_cselect_b32 s{pos}, s{sT}, s{pos}
            s_add_u32 s{pos}, s{pos}, s{sU2}
            s_lshl_b32 s{pos}, s{pos}, 1
            v_add_u32 v37, s{pos}, v38
            v_xor_b32 v37, v37, v39
            v_add_u32 v37, v37, v36
            ''')
            for arr in range(2):
                for r in range(4):
                    a(f'ds_read_u16_d16_hi v{vWr + 8 * s + 4 * arr + r}, v37 offset:{arr * 8192 + r * 512}')
            a(f's_mov_b32 s{gam}, {hex(f2u(SC))}')
            if s == 0:
                a(f'''
                s_and_b32 s{sT}, s{sIdx}, 15
                s_or_b32 s{sT}, s{sT}, s{ka}
                s_cmp_eq_u32 s{sT}, 0
                s_cselect_b32 s{gam}, {hex(f2u(SC / 2))}, s{gam}
                s_cmp_gt_u32 s{sIdx}, 16
                s_cselect_b32 s{sT}, s{ka}, 1
                s_cmp_eq_u32 s{sT}, 0
                s_cselect_b32 s{gam}, 0, s{gam}
                ''')
            else:
                a(f'''
                s_cmp_ge_u32 s{sIdx}, 16
                s_cselect_b32 s{sT}, s{ka}, 1
                s_cmp_eq_u32 s{sT}, 10
                s_cselect_b32 s{gam}, 0, s{gam}
                ''')
            a(f'''
            s_xor_b32 s{sT}, s{gam}, 0x80000000
            s_cmp_ge_u32 s{sIdx}, 16
            s_cselect_b32 s{sT}, s{sT}, s{gam}
            s_waitcnt lgkmcnt(0)
            ''')
            for r in range(4):
                a(f'v_mul_f32 v{vWr + 8 * s + r}, s{gam}, v{vWr + 8 * s + r}')
            for r in range(4):
                a(f'v_mul_f32 v{vWr + 8 * s + 4 + r}, s{sT}, v{vWr + 8 * s + 4 + r}')
        a.label('L_wdone')

    tpoll = [f'global_load_dwordx4 {vr(Ra, 4)}, v{vPoll}, {sr(sBa)} sc1', f'global_load_dwordx4 {vr(Ra + 4, 4)}, v{vPoll}, {sr(sBb)} sc1']
    bar('B3b')
    if WFIRST:
        w_setup()
    if MOVE:
        m8(vM8I, True)
        for q in range(3):
            tab_read(vF20 + 4 * q, T_F20I + q)
        p3_addr()
    if DR1:
        a('s_waitcnt vmcnt(0)')
    if DR1 == 2:
        bar('B3c')
    if PACE1:
        a(f's_sleep {PACE1}')
    if PACEA:
        a(f's_cmp_lt_u32 s{sRi}, 10')
        a('s_cbranch_scc0 L_pa')
        a(f's_sleep {PACEA}')
        a.label('L_pa')
    stamp('B3b done')
    poll(tpoll, [Ra + 3, Ra + 7], [Rb, Rb + 1], empty='word', between=None if WFIRST else w_setup)
    fine('p2', 'T1 in')
    a(f'ds_write_b128 v{vE0 + 4}, {vr(Ra, 4)}')
    a(f'ds_write_b128 v{vE0 + 4}, {vr(Ra + 4, 4)} offset:10240')
    a(f's_cmp_ge_u32 s{sW}, 4')
    a('s_waitcnt lgkmcnt(0)')
    bar('B4')
    stamp('B4 done (T1 in)')
    fine('p2', 'B4')
    a('s_cbranch_scc1 L_p2_one')
    Fre, Fim, Tc, Ts = vTW, vTW + 4, vTW + 8, vTW + 12
    tmps = (Rb, Rc)

    def p2(ns):
        p2pk = PK[1] == '1' or (PK[1] == '2' and ns == 2)
        if ns == 2:
            for j in range(4):
                a(f'ds_read_b64 {vr(Rb + 2 * j, 2)}, v{vE0 + 3} offset:{1280 * j}')
            for h in range(2):
                a(f's_waitcnt lgkmcnt({2 - 2 * h})')
                for s in range(2):
                    a(f'v_pk_mov_b32 {vr(Ra + 4 * s + 2 * h, 2)}, {vr(Rb + 4 * h, 2)}, {vr(Rb + 4 * h + 2, 2)} op_sel:[{s},{s}]')
        else:
            a(f'ds_read2st64_b32 {vr(Ra, 2)}, v{vE0 + 3} offset0:0 offset1:5')
            a(f'ds_read2st64_b32 {vr(Ra + 2, 2)}, v{vE0 + 3} offset0:10 offset1:15')
            a('s_waitcnt lgkmcnt(0)')
        fine('p2', 'read')
        for s in range(ns):
            mfma32(RD + 8 * s, Ra + 4 * s, Fre)
            mfma32(RD + 8 * s + 4, Ra + 4 * s, Fim)
        fine('p2', 's1')
        for s in range(ns):
            cmul(tmps[s], tmps[s] + 4, RD + 8 * s, RD + 8 * s + 4, Tc, Ts, -1, pk=p2pk)
            pack4(Ra + 4 * s, tmps[s], tmps[s] + 4)
            mfma32(RD + 8 * s, Fre, Ra + 4 * s)
            mfma32(RD + 8 * s + 4, Fim, Ra + 4 * s)
        fine('p2', 's2')
        for s in range(ns):
            cmul(tmps[s], tmps[s] + 4, RD + 8 * s, RD + 8 * s + 4, vWr + 8 * s, vWr + 8 * s + 4, +1, pk=p2pk)
            pack4(Ra + 4 * s, tmps[s] + 4, tmps[s])
            mfma32(RD + 8 * s, Ra + 4 * s, Fim)
            mfma32(RD + 8 * s + 4, Ra + 4 * s, Fre)
        fine('p2', 's3')
        for s in range(ns):
            cmul(tmps[s], tmps[s] + 4, RD + 8 * s, RD + 8 * s + 4, Tc, Ts, +1, pk=p2pk)
            pack4(Ra + 4 * s, tmps[s] + 4, tmps[s])
            mfma32(RD + 8 * s, Fim, Ra + 4 * s)
            mfma32(RD + 8 * s + 4, Fre, Ra + 4 * s)
        fine('p2', 's4')
        for s in range(ns):
            pack4(Rb + s, RD + 8 * s, RD + 8 * s + 4, step=ns)
        if ns == 2:
            for r in range(4):
                a(f'ds_write_b64 v{vE0 + 3}, {vr(Rb + 2 * r, 2)} offset:{1280 * r}')
        else:
            a(f'ds_write2st64_b32 v{vE0 + 3}, v{Rb}, v{Rb + 1} offset0:0 offset1:5')
            a(f'ds_write2st64_b32 v{vE0 + 3}, v{Rb + 2}, v{Rb + 3} offset0:10 offset1:15')
        a('s_waitcnt lgkmcnt(0)')
    p2(2)
    a.label('L_b5')
    fine('p2', 'pre-B5')
    bar('B5')
    fine('p2', 'B5')
    a(f'ds_read_b128 {vr(Rb, 4)}, v{vE0 + 4}')
    a(f'ds_read_b128 {vr(Rb + 4, 4)}, v{vE0 + 4} offset:10240')
    a('s_waitcnt lgkmcnt(1)')
    a(f'global_store_dwordx4 v{vS}, {vr(Rb, 4)}, {sr(58)} sc1')
    a('s_waitcnt lgkmcnt(0)')
    a(f'global_store_dwordx4 v{vS}, {vr(Rb + 4, 4)}, {sr(60)} sc1')
    stamp('T2 stored')
    fine('p2', 'stored')
    late.append(lambda: (a.label('L_p2_one'), a(f's_cmp_eq_u32 s{sW}, 7'), a('s_cbranch_scc1 L_b5'), a('s_setprio 1' if P2PRIO else ''), p2(1),
                         a('s_setprio 0' if P2PRIO else ''), a('s_branch L_b5')))
    vGA, vVV, vGC, vGS = vVec, vVec + 10, vVec + 20, vVec + 30
    for q in range(4):
        tab_read(vTW + 4 * q, T_TW3 + q)
    if not MOVE:
        for q in range(3):
            tab_read(vF20 + 4 * q, T_F20I + q)
    if not MOVE:
        p3_addr()
    a(f'v_mov_b32 v{vE0 + 3}, v{vE0 + 7}')
    base_add(sBa, WS, sU1, T2_G)
    base_add(sBb, WS, sU1, T2_G + 128 * 16384)
    base_add(sXrow, OUTP, sRow)
    a(f's_mul_i32 s{sU0}, s{sMe}, {REC_STRIDE}')
    base_add(sRec, WS, sU0, REC_G)
    a(f'''
    v_mov_b32 v{vE0 + 6}, {INV640}
    v_mov_b32 v{vE0 + 7}, {KEYL}
    v_mov_b32 v{vE0 + 4}, 1
    ''')

    def p3_setup():
        raw = Rb
        for k in range(0, 24, 2):
            a(f'ds_read2st64_b32 {vr(raw + k, 2)}, v{vE0 + 5} offset0:{k} offset1:{k + 1}')
        a(f'ds_read_b32 v{raw + 24}, v{vE0 + 5} offset:{24 * 256}')
        a('s_waitcnt lgkmcnt(0)')
        for vec, dst in ((0, vGA), (1, vGS), (2, vGC), (4, vVV)):
            for j in range(5):
                unpack(dst + tm(j, 0), dst + tm(j, 1), raw + 5 * vec + j)
        GB = Rb
        for j in range(5):
            unpack(GB + tm(j, 0), GB + tm(j, 1), raw + 15 + j)
        t0, t1, t2 = Rc + 2, Rc + 4, Rc + 6
        dot10(t0, vVV, vGS)
        for h in range(0, 10, 2):
            a(f'v_pk_mul_f32 {vr(vVV + h, 2)}, {vr(vVV + h, 2)}, {vr(vGC + h, 2)}')
        sum10(t1, vVV)
        a(f'v_mov_b32 v{t2}, s{sM1B}')
        for h in range(0, 10, 2):
            a(f'v_pk_mul_f32 {vr(vGC + h, 2)}, {vr(vGC + h, 2)}, {vr(GB + h, 2)}')
            a(f'v_pk_fma_f32 {vr(vGS + h, 2)}, {vr(vGS + h, 2)}, {vr(GB + h, 2)}, {vr(t2, 2)} op_sel:[0,0,0] op_sel_hi:[1,1,0]')
        wave_sum([t1, t0], [sV1, sV2])

    a('s_waitcnt lgkmcnt(0)')
    bar('B5b')
    stamp('B5b done')
    fine('p2', 'B5b')
    if P3FIRST:
        p3_setup()
    if DR2:
        a('s_waitcnt vmcnt(0)')
    if B5C or DR2 == 2:
        bar('B5c')
    if PACE2:
        a(f's_sleep {PACE2}')
    stamp('T2 poll')
    fine('p2', 'T2 poll')
    poll(tpoll, [Ra + 3, Ra + 7], [Rb, Rb + 1], empty='word', between=None if P3FIRST else p3_setup)
    stamp('T2 in')
    fine('p3', 'T2 in')
    a(f'''
    v_mov_b32 v{Ra + 3}, v{Ra + 6}
    v_swap_b32 v{Ra + 1}, v{Ra + 4}
    ''')
    for n, r in ((2, Ra + 2), (0, Ra), (1, Ra + 4)):
        mfma16(RD + 4 * n, vM8I, r)
    for jj in range(2):
        for n in range(3):
            a(f'v_cvt_pk_bf16_f32 v{Ra + 4 * jj + n}, v{RD + 4 * n + 2 * jj + 1}, v{RD + 4 * n + 2 * jj}')
        a(f'ds_write2_b32 v{vE0 + 1 + jj}, v{Ra + 4 * jj}, v{Ra + 4 * jj + 1} offset0:0 offset1:36')
        a(f'ds_write_b32 v{vE0 + 1 + jj}, v{Ra + 4 * jj + 2} offset:288')
    a('s_waitcnt lgkmcnt(0)')
    fine('p3', 'pre-B6')
    bar('B6')
    fine('p3', 'B6')
    a(f'ds_read_b128 {vr(Rb, 4)}, v{vE0 + 3}')
    a(f'ds_read_b128 {vr(Rb + 4, 4)}, v{vE0 + 3} offset:16')
    for ks in range(2):
        a(f's_waitcnt lgkmcnt({1 - ks})')
        for t in range(2):
            for e in range(2):
                d = RD + 8 * t + 4 * e
                mfma32(d, Rb + 4 * ks, vF32 + 16 * t + 8 * (1 - e) + 4 * ks, d if ks else None)
    fine('p3', 'mfma1 issued')
    for t, tmp in ((0, Ra), (1, Rc)):
        cmul(tmp, tmp + 4, RD + 8 * t, RD + 8 * t + 4, vTW + 8 * t, vTW + 8 * t + 4, +1, pk=PK[2] == '1', n=3)
        pack4(Rb + 4 * t, tmp, tmp + 4, n=3)
        a(f'v_mov_b32 v{Rb + 4 * t + 3}, 0')
    Y = RD
    mfma32(Y, vF20, Rb)
    mfma32(Y + 8, vF20 + 4, Rb)
    mfma32(Y + 4, vF20, Rb + 4)
    mfma32(Y + 8, vF20 + 8, Rb + 4, Y + 8)
    fine('p3', 'mfma2 issued')
    X1 = vXS
    s1, s2, s3, s4 = Ra, Ra + 1, Ra + 2, Ra + 3
    for k in range(10):
        a(f'v_fmac_f32 v{X1 + k}, v{Y + k}, v{vGA + k}')
        if k == 1:
            a(f'v_mul_f32 v{s2}, v{X1}, v{X1}')
            a(f'v_mul_f32 v{s3}, v{X1}, v{vVV}')
        if k >= 2:
            a(f'v_add_f32 v{s1}, v{X1 + k - 1}, v{X1 if k == 2 else s1}')
            a(f'v_fmac_f32 v{s2}, v{X1 + k - 1}, v{X1 + k - 1}')
            a(f'v_fmac_f32 v{s3}, v{X1 + k - 1}, v{vVV + k - 1}')
    a(f'v_fmac_f32 v{s3}, v{X1 + 9}, v{vVV + 9}')
    a(f'v_add_f32 v{s1}, v{X1 + 9}, v{s1}')
    a(f'v_fmac_f32 v{s2}, v{X1 + 9}, v{X1 + 9}')
    fine('p3', 'partials')
    a(f'''
    v_permlane32_swap_b32 v{s3}, v{s4}
    v_permlane32_swap_b32 v{s1}, v{s2}
    v_add_f32 v{s3}, v{s3}, v{s4}
    v_add_f32 v{s1}, v{s1}, v{s2}
    v_permlane16_swap_b32 v{s1}, v{s3}
    v_add_f32 v{s1}, v{s1}, v{s3}
    ''')
    for c in ('row_ror:8', 'row_ror:4', 'row_ror:2', 'row_ror:1'):
        dpp('v_add_f32', s1, c)
    a(f'''
    v_readlane_b32 s{sU0}, v{s1}, 0
    v_readlane_b32 s{sU2}, v{s1}, 32
    v_readlane_b32 s{sU3}, v{s1}, 16
    ''')
    fine('p3', 'reduced')
    k0 = Rc
    cI, cK, cT, cO = vE0 + 6, vE0 + 7, Ra + 7, vE0 + 4
    m = Ra + 1
    a(f'''
    v_mul_f32 v{m}, s{sU0}, v{cI}                 ; mu
    v_mul_f32 v{m + 1}, v{m}, v{m}
    v_add_f32 v{m + 2}, s{sM1B}, v{m}
    v_fma_f32 v{m + 1}, s{sU2}, v{cI}, -v{m + 1}  ; var
    v_cvt_pk_bf16_f32 v{m + 2}, v{m + 1}, v{m + 2}
    v_lshlrev_b32 v{k0}, 16, v{m + 2}
    v_and_b32 v{m + 2}, s{sHI}, v{m + 2}
    v_add_f32 v{k0}, {EPS}, v{k0}
    v_sub_f32 v{m + 2}, s{sM1B}, v{m + 2}         ; -delta
    v_cvt_pk_bf16_f32 v{k0}, v{k0}, v{k0}
    v_mov_b32 v{m + 3}, s{sU3}
    v_and_b32 v{k0}, s{sHI}, v{k0}
    v_fmac_f32 v{m + 3}, s{sV1}, v{m + 2}
    v_sqrt_f32 v{k0}, v{k0}
    v_mov_b32 v{cT}, s{sTag}
    v_cvt_pk_bf16_f32 v{k0}, v{k0}, v{k0}
    v_and_b32 v{k0}, s{sHI}, v{k0}
    v_rcp_f32 v{k0}, v{k0}
    s_mov_b64 exec, 1
    v_fma_f32 v{m + 3}, v{m + 3}, v{k0}, s{sV2}   ; r
    v_ashrrev_i32 v{m + 4}, 31, v{m + 3}
    v_or_b32 v{m + 4}, 0x80000000, v{m + 4}
    v_xor_b32 v{m + 3}, v{m + 3}, v{m + 4}
    v_and_b32 v{m + 3}, 0xfffff800, v{m + 3}
    v_or_b32 v{m + 3}, s{sKey}, v{m + 3}
    ds_max_u32 v{cK}, v{m + 3}
    ds_add_rtn_u32 v{m + 4}, v{cK}, v{cO} offset:8
    ds_read_b32 v{Ra + 6}, v{cK}
    v_readfirstlane_b32 s{sKey}, v{m + 3}
    s_waitcnt lgkmcnt(0)
    v_cmpx_eq_u32 vcc, 7, v{m + 4}
    s_cbranch_execz L_notlast
    global_store_dwordx2 v{vL4}, {vr(Ra + 6, 2)}, {sr(sRec)} sc1
    L_notlast:
    s_mov_b64 exec, -1
    ''')
    fine('p3', 'key')
    bar('B7')
    fine('p3', 'B7')
    a(f'''
    ds_read_b32 v{Ra + 6}, v{cK}
    v_mul_f32 v{k0 + 1}, v{m + 2}, v{k0}
    ''')
    ZN = vGA
    for h in range(0, 10, 2):
        a(f'v_pk_fma_f32 {vr(ZN + h, 2)}, {vr(X1 + h, 2)}, {vr(k0, 2)}, {vr(k0, 2)} op_sel:[0,0,1] op_sel_hi:[1,0,1]')
    vO = vXS

    def out_math():
        for h in range(0, 10, 2):
            a(f'v_pk_add_f32 {vr(Y + h, 2)}, {vr(X1 + h, 2)}, {vr(vGS + h, 2)}')
        for h in range(0, 10, 2):
            a(f'v_pk_fma_f32 {vr(Y + h, 2)}, {vr(ZN + h, 2)}, {vr(vGC + h, 2)}, {vr(Y + h, 2)}')
        if opt('inject', None):
            if opt('injall', None):
                for k in range(10):
                    a(f'v_mul_f32 v{Y + k}, {hex(f2u(1 + float(opt("inject", 0))))}, v{Y + k}')
            else:
                a(f's_cmp_eq_u32 s{sRow}, 0')
                a('s_cselect_b64 exec, 1, 0')
                a(f'v_add_f32 v{Y}, {hex(f2u(float(opt("inject", 0))))}, v{Y}')
                a('s_mov_b64 exec, -1')
        for j in range(5):
            a(f'v_cvt_pk_bf16_f32 v{vO + j}, v{Y + tm(j, 0)}, v{Y + tm(j, 1)}')
    a(f'''
    s_waitcnt lgkmcnt(0)
    v_readfirstlane_b32 s{sU0}, v{Ra + 6}
    s_cmp_eq_u32 s{sU0}, s{sKey}
    s_cselect_b32 s{sCand}, 1, 0
    s_cbranch_scc1 L_cand
    ''')
    out_math()
    a('s_branch L_keys')
    a.label('L_cand')
    raw, SB, CB, H, Bq = 60, 70, 80, 92, 108
    for k in range(0, 10, 2):
        a(f'ds_read2st64_b32 {vr(raw + k, 2)}, v{vE0 + 5} offset0:{5 + k} offset1:{6 + k}')
    for qd in range(4):
        a(f'v_mov_b32 v{H + 4 * qd + 3}, s{sTag}')
    a('s_waitcnt lgkmcnt(0)')
    for j in range(5):
        unpack(SB + tm(j, 0), SB + tm(j, 1), raw + j)
        unpack(CB + tm(j, 0), CB + tm(j, 1), raw + 5 + j)
    for t in range(2):
        for j in range(5):
            k = tm(j, t)
            a(f'v_fma_f32 v{H + 8 * t + j + (j >= 3)}, v{ZN + k}, v{CB + k}, v{SB + k}')
        for qd in range(2):
            a(f'global_store_dwordx4 v{vL16}, {vr(H + 8 * t + 4 * qd, 4)}, {sr(sRec)} offset:{REC_H2 + 2048 * t + 1024 * qd} sc1')
    out_math()

    def out_row():
        for j in range(5):
            a(f'global_store_dword v{vL4}, v{vO + j}, {sr(sXrow)} offset:{256 * j} sc1')
    out_row()
    a.label('L_keys')
    stamp('key out')
    fine('p3', 'key out')
    bar('B7b (candidate stores are out, the helpers have ended)')
    a(f'''
    s_cmp_ge_u32 s{sRi}, 20
    s_cselect_b32 s{sT}, 1, s{sCand}
    s_cmp_lg_u32 s{sT}, 0
    s_cbranch_scc1 L_noout
    ''')
    out_row()
    a('s_branch L_fin')
    a.label('L_noout')
    vEW, vFW = 48, 88
    vRed, vRd, vRow = 15, 16, 17
    a(f'''
    s_cmp_lt_u32 s{sRi}, 20
    s_cbranch_scc1 L_no_ew
    s_mul_i32 s{sT}, s{sW}, 5120
    s_add_u32 s{sT}, s{sT}, {EW}
    v_add_u32 v{Rb}, s{sT}, v{vL16}
    s_mul_i32 s{sT}, s{sW}, 320
    s_add_u32 s{sT}, s{sT}, {FW}
    v_min_u32 v{Rb + 1}, {39 * 8}, v{vE0}
    v_add_u32 v{Rb + 1}, s{sT}, v{Rb + 1}
    ''')
    for j in range(5):
        a(f'ds_read_b128 {vr(vEW + 20 + 4 * j, 4)}, v{Rb} offset:{1024 * j}')
    a(f'''
    v_and_b32 v{vRed}, 1, v{vL}
    v_lshlrev_b32 v{vRed}, 7, v{vRed}
    v_and_b32 v{vRd}, 48, v{vL}
    v_lshl_add_u32 v{vRed}, v{vRd}, 1, v{vRed}
    s_lshr_b32 s{sU1}, s{sW}, 2
    s_lshl_b32 s{sU1}, s{sU1}, 8
    s_and_b32 s{sT}, s{sW}, 3
    s_lshl_b32 s{sT}, s{sT}, 2
    s_add_u32 s{sU1}, s{sU1}, s{sT}
    s_add_u32 s{sU1}, s{sU1}, {RED}
    v_add_u32 v{vRed}, s{sU1}, v{vRed}
    v_and_b32 v{vRd}, 0xf0, v{vL16}
    v_bfe_u32 v{vRow}, v0, 2, 6                    ; lane' = (t'>>1)>>1
    v_bfe_u32 v18, v0, 1, 1                        ; t
    v_lshlrev_b32 v{vRow}, 4, v{vRow}
    v_lshl_add_u32 v{vRow}, v18, 11, v{vRow}
    v_add_u32 v{vRow}, {REC_G + REC_H2}, v{vRow}
    v_mov_b32 v18, 0xffffff00
    s_mul_i32 s{sU1}, s{sX}, 12
    s_add_u32 s{sU1}, s{sU1}, s{sRi}
    s_mul_i32 s{sU1}, s{sU1}, {PY_STRIDE}
    s_mul_i32 s{sT}, s{sW}, 640
    s_add_u32 s{sU1}, s{sU1}, s{sT}
    ''')
    base_add(sBb, WS, sU1, PY_G - 20 * PY_STRIDE)
    a('s_waitcnt lgkmcnt(0)')
    for k in range(20):
        unpack(vEW + 2 * k, vEW + 2 * k + 1, vEW + 20 + k)
    a(f's_cmp_ge_u32 s{sW}, 4')
    a('s_cbranch_scc1 L_no_ew')
    for u in range(16):
        if u == 8:
            a('s_waitcnt lgkmcnt(0)')
        a(f'ds_read_b64 {vr(vFW + 32 + 2 * u, 2)}, v{Rb + 1} offset:{1280 * u}')
    a('s_waitcnt lgkmcnt(0)')
    for k in range(32):
        unpack(vFW + 2 * k, vFW + 2 * k + 1, vFW + 32 + k)
    a.label('L_no_ew')
    a(f's_cmp_eq_u32 s{sCand}, 0')
    a('s_cbranch_scc1 L_nobase')
    Bq = 20
    a(f'v_add_u32 v19, {REC_BASE}, v{vL16}')
    for t in range(2):
        for j in range(5):
            a(f'v_mov_b32 v{Bq + 8 * t + j + (j >= 3)}, v{Y + tm(j, t)}')
        for qd in range(2):
            a(f'v_mov_b32 v{Bq + 8 * t + 4 * qd + 3}, s{sTag}')
    a('s_waitcnt vmcnt(0)')
    for t in range(2):
        for qd in range(2):
            a(f'global_store_dwordx4 v19, {vr(Bq + 8 * t + 4 * qd, 4)}, {sr(sRec)} offset:{2048 * t + 1024 * qd} sc1')
    a.label('L_nobase')
    a(f'''
    s_cmp_lt_u32 s{sRi}, 20
    s_cbranch_scc1 L_fin
    v_mov_b32 v{Rb + 2}, {KEYL + 4}
    s_cmp_lt_u32 s{sW}, 4
    s_cbranch_scc1 L_b8
    v_mul_u32_u24 v{Rb}, {REC_STRIDE}, v0
    v_add_u32 v{Rb}, {REC_G - 256 * REC_STRIDE}, v{Rb}
    ''')
    if PACE3:
        a(f's_sleep {PACE3}')
    stamp('key poll')
    fine('e', 'key poll')
    poll([f'global_load_dwordx2 {vr(Rb + 4, 2)}, v{Rb}, {sr(WS)} sc1'], [Rb + 5], [], empty='word')
    for c in ('row_ror:8', 'row_ror:4', 'row_ror:2', 'row_ror:1'):
        dpp('v_max_u32', Rb + 4, c)
    a(f'''
    s_mov_b32 exec_lo, 0x00010001
    s_mov_b32 exec_hi, 0x00010001
    ds_max_u32 v{Rb + 2}, v{Rb + 4}
    s_mov_b64 exec, -1
    s_waitcnt lgkmcnt(0)
    ''')
    a.label('L_b8')
    fine('e', 'pre-B8')
    a('s_barrier                                   ; B8')
    a(f'''
    ds_read_b32 v{Rb + 3}, v{Rb + 2}
    s_movk_i32 s{sT}, {REC_STRIDE}
    s_waitcnt lgkmcnt(0)
    v_and_b32 v{Rb + 4}, 255, v{Rb + 3}
    v_mad_u32_u24 v{vRow}, v{Rb + 4}, s{sT}, v{vRow}
    ''')
    stamp('B8 done (winner)')
    fine('e', 'B8+')

    def late_out():
        a(f'v_readfirstlane_b32 s{sU0}, v{Rb + 3}')
        a(f's_cmp_lg_u32 s{sCand}, 0')
        a('s_cbranch_scc1 L_noout2')
        out_row()
        a('s_waitcnt vmcnt(5)')
        a.label('L_noout3')
        late.append(lambda: (a.label('L_noout2'), a('s_waitcnt vmcnt(0)'), a('s_branch L_noout3')))
    poll([f'global_load_dwordx4 v[20:23], v{vRow}, {sr(WS)} sc1',
          f'global_load_dwordx4 v[24:27], v{vRow}, {sr(WS)} offset:1024 sc1'], [23, 27], [30, 32], empty='word',
         between=late_out, younger=63)
    stamp('row in')
    fine('e', 'row in')
    acc = 36
    for j in range(5):
        for k in range(4):
            w_ = vr(vEW + 8 * j + 2 * k, 2)
            xr = 20 + j + (j >= 3)
            x_ = vr(xr & ~1, 2)
            if j == 0:
                a(f'v_pk_mul_f32 {vr(acc + 2 * k, 2)}, {w_}, {x_} op_sel:[0,0] op_sel_hi:[1,0]')
            else:
                a(f'v_pk_fma_f32 {vr(acc + 2 * k, 2)}, {w_}, {x_}, {vr(acc + 2 * k, 2)} {BC1 if xr & 1 else BC0}')
    swap_reduce8(acc)
    for c in ('row_ror:8', 'row_ror:4', 'row_ror:2'):
        dpp('v_add_f32', acc, c)
        dpp('v_add_f32', acc + 1, c)
    a(f'''
    s_mov_b32 exec_lo, 0x00030003
    s_mov_b32 exec_hi, 0x00030003
    ds_write2_b32 v{vRed}, v{acc}, v{acc + 1} offset0:0 offset1:4
    s_mov_b64 exec, -1
    s_cmp_ge_u32 s{sW}, 4
    s_waitcnt lgkmcnt(0)
    ''')
    fine('e', 'pre-B9')
    bar('B9')
    fine('e', 'B9')
    a(f'''
    s_cbranch_scc1 L_e_done
    ds_read_b128 v[20:23], v{vRd} offset:{RED}
    ds_read_b128 v[24:27], v{vRd} offset:{RED + 256}
    s_waitcnt lgkmcnt(0)
    v_pk_add_f32 v[20:21], v[20:21], v[22:23]
    v_pk_add_f32 v[24:25], v[24:25], v[26:27]
    v_add_f32 v20, v20, v21
    v_add_f32 v24, v24, v25
    v_cvt_pk_bf16_f32 v24, v20, v24
    ''')
    unpack(20, 24, 24)
    silu([20], [20], [21])
    rbf(20, 'v20')
    a('v_mul_f32 v20, v20, v24')
    rbf(20, 'v20')
    fine('e', 'gu')
    sG = 8
    for u in range(16):
        a(f'v_readlane_b32 s{sG + u}, v20, {u}')
    for u in range(16):
        for hh in range(2):
            w_ = vr(vFW + 4 * u + 2 * hh, 2)
            g_ = sr(sG + (u & ~1))
            d_ = vr(36 + 2 * hh, 2)
            if u == 0:
                a(f'v_pk_mul_f32 {d_}, {w_}, {g_} op_sel:[0,0] op_sel_hi:[1,0]')
            else:
                a(f'v_pk_fma_f32 {d_}, {w_}, {g_}, {d_} {BC1 if u & 1 else BC0}')
    for k in range(4):
        a(f'v_and_or_b32 v{36 + k}, v{36 + k}, v18, s{sTB + k}')
    a('s_mov_b32 exec_hi, 0xff')
    a(f'global_store_dwordx4 v{vL16}, v[36:39], {sr(sBb)} sc1')
    a('s_mov_b64 exec, -1')
    stamp('PY out')
    fine('e', 'PY out')
    a('s_waitcnt vmcnt(0)')
    a.label('L_e_skip')
    bar('B10')
    a('s_branch L_fin')
    a.label('L_e_done')
    a(f'''
    s_mul_i32 s{sU2}, s{sX}, 10
    s_add_u32 s{sU2}, s{sU2}, s{sRi}
    s_sub_u32 s{sU2}, s{sU2}, 20                   ; f
    s_cmp_lg_u32 s{sW}, 5
    s_cbranch_scc1 L_e_skip
    s_cmp_ge_u32 s{sRi}, 30
    s_cbranch_scc1 L_e_skip
    s_and_b32 s{sU1}, s{sU0}, 255
    s_mul_i32 s{sU1}, s{sU1}, {REC_STRIDE}
    ''')
    base_add(sBa, WS, sU1, REC_G)
    a(f'''
    v_and_b32 v20, 1, v{vL}
    v_lshrrev_b32 v21, 4, v{vL}
    v_lshl_add_u32 v20, v20, 2, v21
    s_lshl_b32 s{sT}, s{sU2}, 3
    v_add_u32 v20, s{sT}, v20                      ; d
    v_lshlrev_b32 v21, 1, v20
    v_add_u32 v21, {MODB_L + 3840}, v21
    v_mov_b32 v22, 0
    ds_read_u16_d16_hi v22, v21                    ; gb[d]
    s_lshr_b32 s{sU3}, s{sU2}, 4                   ; j
    s_cmp_ge_u32 s{sU3}, 3
    s_cselect_b32 s{sT}, 3, 0
    s_sub_u32 s{sU3}, s{sU3}, s{sT}
    s_mul_i32 s{sT}, s{sT}, 342
    s_and_b32 s{sT}, s{sT}, 1024
    s_add_u32 s{sT}, s{sT}, {REC_BASE}
    v_bfe_u32 v24, v20, 1, 6                       ; lane'
    v_and_b32 v25, 1, v20                          ; t
    v_lshlrev_b32 v26, 11, v25
    v_lshl_add_u32 v26, v24, 4, v26
    v_add_u32 v26, s{sT}, v26
    ''')
    poll([f'global_load_dwordx4 v[32:35], v26, {sr(sBa)} sc1'], [35], [], empty='word')
    a(f'''
    s_cmp_eq_u32 s{sU3}, 1
    s_cselect_b64 vcc, -1, 0
    v_cndmask_b32 v27, v32, v33, vcc
    s_cmp_eq_u32 s{sU3}, 2
    s_cselect_b64 vcc, -1, 0
    v_cndmask_b32 v27, v27, v34, vcc
    ''')
    a(f'''
    s_and_b32 s{sU1}, s{sU0}, 0xfffff800
    s_or_b32 s{sU1}, s{sU1}, 0x400
    s_xor_b32 s{sU3}, s{sU1}, 0x80000000
    s_not_b32 s{sT}, s{sU1}
    s_cmp_lt_i32 s{sU1}, 0
    s_cselect_b32 s{sU1}, s{sU3}, s{sT}
    v_mov_b32 v28, s{sU1}
    ''')
    rbf(28, 'v28')
    a(f'''
    v_mul_f32 v28, 0xbfb8aa3b, v28
    v_exp_f32 v28, v28
    v_add_f32 v28, 1.0, v28
    v_rcp_f32 v28, v28
    ''')
    rbf(28, 'v28')
    a(f'''
    s_and_b32 s{sU1}, s{sU0}, 0x7ff
    s_mul_i32 s{sU1}, s{sU1}, 1280
    v_lshlrev_b32 v20, 1, v20
    v_lshrrev_b32 v29, 1, v{vL}
    v_mul_u32_u24 v29, {PY_STRIDE}, v29
    v_and_b32 v30, 16, v{vL16}
    v_add_u32 v29, v29, v30
    v_add_u32 v30, {32 * PY_STRIDE}, v29
    v_add_u32 v31, {64 * PY_STRIDE}, v29
    s_lshl_b32 s{sU2}, s{sU2}, 5
    ''')
    base_add(sXrow, OUTP, sU1)
    base_add(sBb, WS, sU2, PY_G)
    a('s_waitcnt lgkmcnt(0)')
    bar('B10')
    stamp('PY poll')
    fine('e', 'PY poll')
    poll([f'global_load_dwordx4 {vr(36 + 4 * n, 4)}, v{29 + n}, {sr(sBb)} sc1' for n in range(3)],
         list(range(36, 48)), [48, 49], empty='tag')
    a(f'''
    v_pk_add_f32 v[36:37], v[36:37], v[40:41]
    v_pk_add_f32 v[38:39], v[38:39], v[42:43]
    v_pk_add_f32 v[36:37], v[36:37], v[44:45]
    v_pk_add_f32 v[38:39], v[38:39], v[46:47]
    v_permlane32_swap_b32 v36, v38
    v_permlane32_swap_b32 v37, v39
    v_pk_add_f32 v[36:37], v[36:37], v[38:39]
    v_permlane16_swap_b32 v36, v37
    v_add_f32 v36, v36, v37
    ''')
    for c in ('row_ror:8', 'row_ror:4', 'row_ror:2'):
        dpp('v_add_f32', 36, c)
    rbf(36, 'v36')
    a(f'''
    v_mul_f32 v36, v36, v28
    v_fma_f32 v36, v36, v22, v27
    v_cvt_pk_bf16_f32 v36, v36, v36
    s_mov_b32 exec_lo, 0x00030003
    s_mov_b32 exec_hi, 0x00030003
    global_store_short v20, v36, {sr(sXrow)} {FINPOL}
    s_mov_b64 exec, -1
    ''')
    a.label('L_fin')
    stamp('end')
    fine('e', 'end')
    if FINE:
        a('s_waitcnt lgkmcnt(0)')
    dump_stamps()
    a.label('L_end')
    a('s_endpgm')
    flush_late()


sF1, sF2, sPb, sGw, sWb = 56, 58, 60, 62, 64


def publish():
    a(f'''
    ds_read_b128 v[40:43], v28 offset:{RED}
    ds_read_b128 v[44:47], v28 offset:{RED + 16}
    s_waitcnt lgkmcnt(0)
    v_pk_add_f32 v[40:41], v[40:41], v[42:43]
    v_pk_add_f32 v[44:45], v[44:45], v[46:47]
    v_pk_add_f32 v[40:41], v[40:41], v[44:45]
    v_add_f32 v40, v40, v41
    v_and_or_b32 v40, v40, v33, v34
    global_store_dword v{vL4}, v40, {sr(sPb)} sc1
    ''')
    stamp('published', 'H0')


def w_addr():
    a(f'''
    s_mul_i32 s{sU1}, s{sIdx}, 40
    s_sub_u32 s{sT}, 1260, s{sU1}
    s_sub_u32 s{sU0}, 0, s{sX}
    s_and_b32 s{sU0}, s{sU0}, 7
    s_cmp_ge_u32 s{sIdx}, 16
    s_cselect_b32 s{sU1}, s{sT}, s{sU1}             ; 2*C0
    s_cselect_b32 s{sU2}, -1, 1                     ; direction
    s_cselect_b32 s{sU0}, s{sU0}, s{sX}             ; q
    s_and_b32 s{sT}, s{sX}, 1
    s_lshl_b32 s{sT}, s{sT}, 1
    s_sub_u32 s{sU1}, s{sU1}, s{sT}                 ; rows of odd index start 2 bytes early (4-byte alignment)
    s_movk_i32 s{sU3}, 0x2aab
    ''')
    a(f'''
    v_lshrrev_b32 v90, 1, v{vL}
    v_lshl_add_u32 v93, v90, 3, s{sU0}
    v_mul_lo_u32 v93, v93, s{sU2}
    v_and_b32 v91, 4, v90
    v_sub_u32 v92, 8, v91
    s_cmp_ge_u32 s{sIdx}, 16
    s_cselect_b64 vcc, -1, 0
    v_cndmask_b32 v91, v91, v92, vcc
    v_sub_u32 v96, s{sU1}, v91
    v_xor_b32 v92, v{vL16}, v{vL}
    v_and_b32 v92, 16, v92
    v_add_u32 v96, v96, v92
    ''')
    a(f'''
    s_lshl_b32 s{sU2}, s{sU2}, 8
    s_movk_i32 s{sU3}, 642
    ''')
    for n in range(8):
        a(f'v_and_b32 v90, 0x7ff, v93')
        a(f'v_mad_u32_u24 v{100 + n}, v90, s{sU3}, v96')
        if n < 7:
            a(f'v_add_u32 v93, s{sU2}, v93')


def w_gather(arr, lds):
    for n in range(8):
        a(f's_mov_b32 m0, {lds + 1024 * n}')
        a(f'global_load_lds_dwordx4 v{100 + n}, {sr(arr)}')


def mask_lanes(n):
    if n >= 64:
        return
    if n > 32:
        a(f's_mov_b32 exec_hi, {hex((1 << (n - 32)) - 1)}')
    else:
        a(f's_mov_b64 exec, {hex((1 << n) - 1)}')


def share(slot):
    if slot == 3:
        return (0, 20)
    return (10, 22) if (slot == 0 and not ALLW) else (0, 32)


def warm_all(h):
    f, n_ = share(0)
    nw = -(-768 // n_)
    a(f'''
    s_sub_u32 s{sU0}, s{sRi}, {f}
    s_mul_i32 s{sU3}, s{sU0}, {2 * nw}
    s_movk_i32 s{sU2}, 0x2aab
    s_mul_i32 s{sU1}, s{sX}, 642
    s_movk_i32 s{sT}, 5136
    ''')
    for n in range(2):
        a(f'''
        v_add_u32 v90, s{sU3}, v{vL}
        v_add_u32 v90, {nw * n}, v90
        v_min_u32 v90, 1535, v90
        v_mul_u32_u24 v91, s{sU2}, v90
        v_lshrrev_b32 v91, 16, v91
        v_mul_u32_u24 v92, 6, v91
        v_sub_u32 v92, v90, v92
        v_lshlrev_b32 v92, 7, v92
        v_min_u32 v92, 638, v92
        v_add_u32 v92, s{sU1}, v92
        v_mad_u32_u24 v92, v91, s{sT}, v92
        v_and_b32 v{120 + n}, -4, v92
        ''')
    a(f'''
    s_mul_i32 s{sU1}, s{sX}, 384
    s_movk_i32 s{sU2}, 0x5556
    s_movk_i32 s{sT}, {3072 - 384}
    ''')
    for n in range(3):
        f, n_ = share(S_W[n])
        half = n if n < 2 else h
        a(f'''
        s_sub_u32 s{sU0}, s{sRi}, {f}
        s_mul_i32 s{sU3}, s{sU0}, {-(-960 // n_)}
        v_add_u32 v90, s{sU3}, v{vL}
        v_min_u32 v90, 959, v90
        v_add_u32 v90, {960 * half}, v90
        ''')
        if n < 2:
            a(f'''
            v_mul_u32_u24 v91, s{sU2}, v90
            v_lshrrev_b32 v91, 16, v91
            v_lshl_add_u32 v90, v90, 7, s{sU1}
            v_mad_u32_u24 v{122 + n}, v91, s{sT}, v90
            ''')
        else:
            a(f's_mul_i32 s{sU1}, s{sX}, 245760')
            a(f'v_lshl_add_u32 v124, v90, 7, s{sU1}')


def warm_issue(h, slot=0):
    n_ = share(slot)[1]
    if slot == 0:
        mask_lanes(-(-768 // n_))
        for n in range(2):
            a(f'global_load_dword v125, v{120 + n}, {sr(W_R if h else W_I)}')
        a('s_mov_b64 exec, -1')
    if slot in S_W:
        mask_lanes(-(-960 // n_))
        for n in range(3):
            if S_W[n] == slot:
                a(f'global_load_dword v125, v{122 + n}, {sr(W_D if n == 2 else (W_G if h else W_U))}')
        a('s_mov_b64 exec, -1')


def e_addr(mat):
    a(f'''
    s_max_u32 s{sU1}, s{sRi}, 20
    s_mul_i32 s{sU0}, s{sX}, 12
    s_add_u32 s{sU0}, s{sU0}, s{sU1}
    s_sub_u32 s{sU0}, s{sU0}, 20
    s_mul_i32 s{sU1}, s{sU0}, 20480
    s_lshl_b32 s{sU0}, s{sU0}, 5
    v_lshrrev_b32 v128, 1, v{vL}
    v_mul_u32_u24 v128, 3072, v128
    v_and_b32 v90, 16, v{vL16}
    v_add_u32 v128, v128, v90
    ''')
    base_add(sF1, mat, sU0)
    base_add(sGw, W_D, sU1, 10240 if mat == W_U else 0)


def if_e(f):
    L = newlabel('ne')
    a(f's_cmp_lt_u32 s{sRi}, 20')
    a(f's_cbranch_scc1 {L}')
    f()
    a.label(L)


def e_gather(half, n0, n1):
    for n in range(n0, n1):
        a(f's_mov_b32 m0, {EW + (n % 4 + 4 * half) * 5120 + (n // 4) * 1024}')
        a(f'global_load_lds_dwordx4 v128, {sr(sF1)}')
        if n < 19:
            a(f'v_add_u32 v128, {32 * 3072}, v128')


def wd_load(half):
    for n in range(10):
        if n % 4 == 0:
            a(f's_mov_b32 m0, {FW + half * 10240 + n * 1024}')
            a(f'v_add_u32 v90, {1024 * n}, v{vL16}')
        a(f'global_load_lds_dwordx4 v90, {sr(sGw)} offset:{1024 * (n % 4)} {INPOL if S_W[2] == 9 else str()}')


def background(h, slot):
    if slot == EGS and EG3[h]:
        if_e(lambda: e_gather(1 - h, 0, EG3[h]))
    if slot == 4 and EG3[h] < 20:
        if_e(lambda: e_gather(1 - h, EG3[h], 20))
    if S_WD == slot:
        if_e(lambda: wd_load(1 - h))
    if slot == 2:
        warm_issue(h, slot)
    if slot == 3 and 3 in S_W and h == 0:
        assert S_W[2] != 3
        L = newlabel('e3')
        a(f's_cmp_lt_u32 s{sRi}, 20')
        a(f's_cbranch_scc0 {L}')
        warm_issue(0, slot)
        warm_issue(1, slot)
        a.label(L)


def nbg(slot, h=0):
    return S_W.count(slot) * (2 if slot == 3 else 1)


def can_setup():
    epoch_tag()
    sh = CAN.bit_length() - 1
    a(f'''
    v_lshlrev_b32 v110, 7, v{vL}
    v_add_u32 v110, {CAN_G}, v110
    s_lshr_b32 s{sU0}, s{sRi}, {sh}
    s_lshl_b32 s{sU0}, s{sU0}, 3
    s_add_u32 s{sU0}, s{sU0}, s{sX}
    s_lshl_b32 s{sU0}, s{sU0}, 7
    s_add_u32 s{sU0}, s{sU0}, {CAN_G}
    v_mov_b32 v111, s{sU0}
    v_mov_b32 v112, s{sTag}
    v_add_u32 v114, 8192, v110
    ''')


def can_touch():
    mask_lanes(256 // CAN)
    a(f'global_load_dword v113, v110, {sr(WS)} sc1')
    a(f'global_load_dword v113, v114, {sr(WS)} sc1')
    a('s_mov_b64 exec, -1')


def can_raise():
    L = newlabel('nc')
    a(f'''
    s_and_b32 s{sT}, s{sRi}, {CAN - 1}
    s_cmp_lg_u32 s{sT}, {CANOFF}
    s_cbranch_scc1 {L}
    ''')
    for k in range(CANLATE):
        a('v_mul_lo_u32 v113, v113, v113')
    a(f'''
    s_mov_b64 exec, 1
    global_store_dword v111, v112, {sr(WS)} sc1
    s_mov_b64 exec, -1
    ''')
    a.label(L)


def can_wait():
    poll([f'global_load_dword v113, v110, {sr(WS)} sc1'], [113], [], mask=256 // CAN, empty='word')
    a('v_add_u32 v110, 8192, v110')
    a('v_add_u32 v111, 8192, v111')


def helper_tail(h, P, in_w1, in_w2):
    if WG0 == 1:
        if h == 0:
            a('s_waitcnt vmcnt(1)')
        w_gather(W_R if h else W_I, WST + (0 if h else 8192))
        a(f's_waitcnt vmcnt({WG0W})')
    bar('BT')
    bar('BP')
    if WG0 == 2:
        w_gather(W_R if h else W_I, WST + (0 if h else 8192))
    bar('B2')
    if CAN and h == 1:
        can_raise()
    in_w1(0)
    if WG0 == 2:
        a('s_waitcnt vmcnt(1)' if h == 0 else 's_waitcnt vmcnt(0)')
    if S_WWARM < 2 and not WG0:
        w_gather(W_R if h else W_I, WST + (0 if h else 8192))
    in_w1(1)
    background(h, 2)
    bar('B3')
    if CAN and h == 1:
        can_wait()
    if S_WWARM == 2:
        a('s_waitcnt vmcnt(0)')
        stamp('W warm', P)
        w_gather(W_R if h else W_I, WST + (0 if h else 8192))
        a('s_waitcnt vmcnt(0)')
    else:
        a(f's_waitcnt vmcnt({W1LEFT})')
    stamp('W in', P)
    bar('B3b')
    if DR1 == 2:
        bar('B3c')
    in_w1(2)
    warm_issue(h, 5)
    bar('B4')
    if CAN and h == 1:
        can_raise()
    in_w2(0)
    background(h, 3)
    bar('B5')
    if CAN and h == 1:
        can_wait()
        stamp('can2', P)
    in_w2(1)
    bar('B5b')
    warm_issue(h, 6)
    background(h, 6)
    if B5C:
        a('s_waitcnt vmcnt(0)')
    if B5C or DR2 == 2:
        bar('B5c')
    if DIAG and not PROBE:
        a('s_waitcnt vmcnt(0)')
        stamp('w2 done', P)
    bar('B6')
    background(h, 4)
    if h == 0:
        a(f'''
        s_cmp_lg_u32 s2, 8
        s_cbranch_scc1 L_h0_ne
        v_mov_b32 v26, {EPOCH_G}
        s_mov_b64 exec, 1
        global_store_dword v26, v27, {sr(WS)} sc1
        s_mov_b64 exec, -1
        ''')
        a.label('L_h0_ne')
    bar('B7')
    a('s_waitcnt vmcnt(0)')
    stamp('end', P)
    dump_stamps(P)
    a('s_endpgm')
    flush_late()


def helper0():
    a.label('L_h0')
    a(f'''
    v_mov_b32 v20, 0
    v_mov_b32 v21, 0
    v_mov_b32 v22, 0
    v_mov_b32 v23, 0
    v_mov_b32 v28, {KEYL}
    ds_write_b128 v28, v[20:23]
    ''')
    blk_id(sCand)
    warm_all(0)
    a(f'''
    s_lshl_b32 s{sU2}, s{sCand}, 8
    v_lshlrev_b32 v28, 5, v{vL}
    s_cmp_lt_u32 s{sRi}, 10
    s_waitcnt lgkmcnt(0)
    ''')
    epoch_load()
    if not ALLW:
        a('s_cbranch_scc1 L_h0_s0')
    warm_issue(0)
    a.label('L_h0_s0')
    stamp('kernarg', 'H0')
    base_add(sPb, WS, sU2)
    e_addr(W_U)
    w_addr()
    a('s_waitcnt lgkmcnt(0)')
    epoch_tag()
    tag_bytes()
    a(f'''
    v_mov_b32 v27, s{sTag}
    v_lshlrev_b32 v34, 3, v{vL}
    v_add_u32 v29, {MODB_L}, v34
    v_and_b32 v34, 24, v34
    v_bfe_u32 v34, v27, v34, 8
    v_mov_b32 v33, 0xffffff00
    v_add_u32 v30, {MODF_G}, v{vL16}
    v_add_u32 v31, {MODF_G + 4096}, v{vL16}
    v_add_u32 v32, {MODF_G + 8192}, v{vL16}
    s_cmp_lt_u32 s{sRi}, 30
    ''')
    bar('B1')
    a('s_cbranch_scc0 L_h0_np')
    publish()
    if AWAIT and not ALLW:
        a(f's_cmp_lt_u32 s{sRi}, 10')
        a('s_cbranch_scc0 L_h0_np')
        for k in range(AWAIT - 1):
            a('s_waitcnt vmcnt(0)')
            a(f'global_load_dword v40, v{vL4}, {sr(sPb)} sc1')
        a('s_waitcnt vmcnt(0)')
    a.label('L_h0_np')
    red = [f'global_load_dwordx4 v[40:43], v{vL16}, {sr(sPb)} sc1']
    modf = [f'global_load_dwordx4 {vr(40 + 4 * n, 4)}, v{30 + n // 4}, {sr(WS)} offset:{1024 * (n % 4)} sc1' for n in range(10)]

    def in_w1(k):
        if k == 1:
            return
        L = newlabel('nr')
        a(f'''
        s_sub_u32 s{sT}, s{sRi}, 10
        s_cmp_lt_u32 s{sT}, 20
        s_cbranch_scc0 {L}
        s_and_b32 s{sT}, s{sCand}, 3
        s_cbranch_scc1 {L}
        ''')
        if k == 0:
            a(red[0])
            a.label(L)
            return
        poll(red, [40, 41, 42, 43], [44], empty='tag', issued=True, younger=nbg(2) + (8 if (S_WWARM < 2 and not WG0) else 0))
        a(f'''
        v_mov_b32 v44, v40
        v_mov_b32 v45, v41
        v_mov_b32 v46, v42
        v_mov_b32 v47, v43
        s_lshr_b32 s{sU0}, s{sCand}, 2
        s_sub_u32 s{sT}, s{sU0}, 40
        s_cmp_lt_u32 s{sT}, 10
        s_cselect_b32 s{sU1}, 1.0, 0
        s_lshl_b32 s{sU0}, s{sU0}, 8
        s_add_u32 s{sU0}, s{sU0}, {MODF_G - 20 * 256}
        ''')
        for sw in ('32', '16'):
            for r in range(4):
                a(f'v_permlane{sw}_swap_b32 v{40 + r}, v{44 + r}')
            a('v_pk_add_f32 v[40:41], v[40:41], v[44:45]')
            a('v_pk_add_f32 v[42:43], v[42:43], v[46:47]')
            if sw == '32':
                for r in range(4):
                    a(f'v_mov_b32 v{44 + r}, v{40 + r}')
        a('v_cvt_pk_bf16_f32 v44, v40, v41')
        a('v_cvt_pk_bf16_f32 v45, v42, v43')
        unpack(40, 41, 44)
        unpack(42, 43, 45)
        for r in range(4):
            a(f'v_add_f32 v{40 + r}, s{sU1}, v{40 + r}')
        a(f'''
        v_cvt_pk_bf16_f32 v44, v40, v41
        v_cvt_pk_bf16_f32 v45, v42, v43
        v_mov_b32 v47, s{sTag}
        v_add_u32 v48, s{sU0}, v{vL16}
        s_mov_b64 exec, 0xffff
        global_store_dwordx4 v48, v[44:47], {sr(WS)} sc1
        s_mov_b64 exec, -1
        ''')
        stamp('reduced', 'H0')
        a.label(L)

    def in_w2(k):
        if k == 0:
            for ld in modf:
                a(ld)
            return
        ne = EG3[0] * (EGS == 3) + 10 * (S_WD == 3)
        a(f's_cmp_lt_u32 s{sRi}, 20')
        a(f's_waitcnt vmcnt({max(ne, nbg(3))})')
        a(f's_cbranch_scc{0 if ne > nbg(3) else 1} L_h0_m')
        a(f's_waitcnt vmcnt({min(ne, nbg(3))})')
        a.label('L_h0_m')
        poll(modf, [43 + 4 * n for n in range(10)], list(range(80, 90)), empty='words', issued=True, younger=63)
        for n in range(10):
            a(f'ds_write_b64 v29, {vr(40 + 4 * n, 2)} offset:{512 * n}')
        a('s_waitcnt lgkmcnt(0)')
        stamp('modb in', 'H0')
    helper_tail(0, 'H0', in_w1, in_w2)


def helper1():
    a.label('L_h1')
    a(f'''
    s_getpc_b64 {sr(sBa)}
    L_pc:
    s_add_u32 s{sBb}, s{sBa}, L_tables-L_pc
    s_addc_u32 s{sBb + 1}, s{sBa + 1}, 0
    ''')

    def tabs(q0, q1):
        for q in range(q0, q1):
            if q % 4 == 0 or q == q0:
                a(f's_mov_b32 m0, {TAB + (q & ~3) * 1024}')
                a(f'v_add_u32 v20, {(q & ~3) * 1024}, v{vL16}')
            a(f'global_load_lds_dwordx4 v20, {sr(sBb)} offset:{1024 * (q % 4)}')

    def tab2():
        tabs(14, NTAB)
        a(f'''
        s_mov_b32 m0, {WR_L}
        global_load_lds_dwordx4 v{vL16}, {sr(B_WR)}
        s_mov_b64 exec, 0xffff
        global_load_lds_dwordx4 v{vL16}, {sr(B_WR)} offset:1024
        s_mov_b64 exec, -1
        ''')
        return NTAB - 14 + 2

    a(f's_cmp_lt_u32 s{sRi}, 10')
    if not ALLW:
        a('s_cbranch_scc1 L_h1_a')
    if TABFIRST:
        tabs(0, 14)
    warm_all(1)
    a('s_waitcnt lgkmcnt(0)')
    epoch_load()
    if not TABFIRST:
        tabs(0, 14)
    if S_TAB2 == 1:
        tab2()
    if CAN:
        a('s_waitcnt lgkmcnt(0)')
        can_setup()
        can_touch()
    warm_issue(1)
    e_addr(W_G)
    w_addr()
    bar('B1')
    a(f's_waitcnt vmcnt({BGWAIT})')
    if not ALLW:
        a('s_branch L_h1_u')
        a.label('L_h1_a')
        warm_all(1)
        w_addr()
        a('s_waitcnt lgkmcnt(0)')
        epoch_load()
        e_addr(W_G)
        if CAN:
            a('s_waitcnt lgkmcnt(0)')
            can_setup()
        bar('B1')
        tabs(0, 14)
        if S_TAB2 == 1:
            tab2()
        a('s_waitcnt vmcnt(0)')
        a.label('L_h1_u')
    stamp('tab in', 'H1')
    helper_tail(1, 'H1', lambda k: tab2() if (S_TAB2 == 2 and k == 1) else None, lambda k: None)


prologue()
main_path()
helper0()
helper1()
body = a.finish()

hdr = open(f'cdna_kernels/{NAME}.s.ref').read().split('; Override launch')[0]
T = tables()
tab = []
flat = T.reshape(-1)
for k in range(0, flat.size, 8):
    tab.append('.long ' + ','.join('0x%08x' % v for v in flat[k:k + 8]))

launch = f'; @launch grid=(256,1,1) block=(640,1,1) lds={LDS_BYTES}'
pre_code = pre_kd = ''
if PRE:
    launch = f'; @launch kernel=pre_kernel grid=({PRE},1,1) block=(64,1,1) lds=0\n; @launch kernel={NAME}_kernel grid=(256,1,1) block=(640,1,1) lds={LDS_BYTES}'
    pre_code = '.globl pre_kernel\n.p2align 8\n.type pre_kernel,@function\npre_kernel:\n    s_endpgm\n'
    pre_kd = '''.p2align 6
.amdhsa_kernel pre_kernel
  .amdhsa_next_free_vgpr 8
  .amdhsa_next_free_sgpr 16
  .amdhsa_accum_offset 8
  .amdhsa_group_segment_fixed_size 0
  .amdhsa_kernarg_size 104
  .amdhsa_user_sgpr_count 2
  .amdhsa_user_sgpr_kernarg_segment_ptr 1
  .amdhsa_system_sgpr_workgroup_id_x 1
.end_amdhsa_kernel
'''
src = hdr + f'''{launch}
.amdgcn_target "amdgcn-amd-amdhsa--gfx950"
.text
{pre_code}.globl {NAME}_kernel
.p2align 8
.type {NAME}_kernel,@function
{NAME}_kernel:
{body}
.p2align 8
.type L_tables,@object
L_tables:
''' + '\n'.join(tab) + f'''
.size L_tables, {NTAB * 1024}
.fill (8192 - ((. - {NAME}_kernel) & 8191)) & 8191, 1, 0
L_tables_end:
.section .rodata,"a"
.p2align 6
.amdhsa_kernel {NAME}_kernel
  .amdhsa_next_free_vgpr 168
  .amdhsa_next_free_sgpr 102
  .amdhsa_accum_offset 168
  .amdhsa_group_segment_fixed_size 0
  .amdhsa_kernarg_size 104
  .amdhsa_user_sgpr_count 2
  .amdhsa_user_sgpr_kernarg_segment_ptr 1
  .amdhsa_system_sgpr_workgroup_id_x 1
.end_amdhsa_kernel
{pre_kd}'''
open(OUT, 'w').write(src)
print('wrote', OUT, 'lds', LDS_BYTES, 'lines', len(a.lines), 'nops', a.nnops)
```

```python
import sys, struct
import numpy as np
from asmdsl import Asm

NAME = 'adaLN_cond__spectral_gfnet__moe_arch_mod__prompt'
DIAG = '--diag' in sys.argv or '--dbgdiag' in sys.argv
DBGDIAG = '--dbgdiag' in sys.argv
OUT = [a for a in sys.argv[1:] if not a.startswith('--')]
OUT = OUT[0] if OUT else f'cdna_kernels/{NAME}.s'
SPIN = 60000


def opt(name, default):
    for x in reversed(sys.argv):
        if x.startswith(f'--{name}='):
            return x.split('=', 1)[1]
    return default


PROBE = opt('probe', None)
PROBEWG = int(opt('probewg', 8))
FINE = opt('fine', None)
if PROBE or FINE:
    DIAG = True
PRE = None
INPOL = 'nt'
S_W = [int(x) for x in opt('sw', '770')]
EG3 = int(opt('eg3', 10))
PACE1 = int(opt('pace1', 0))
PACE2 = int(opt('pace2', 0))
PK = opt('pk', '110')
P3FIRST = int(opt('p3first', 1))
WFIRST = int(opt('wfirst', 1))
DR1 = int(opt('dr1', 1))
DR2 = int(opt('dr2', 1))
BGWAIT = int(opt('bgwait', 9))
EARLY = int(opt('early', 2))
MATS = int(opt('mats', 2))
IEG = int(opt('ieg', 16))
IWD = int(opt('iwd', 1))
MF = int(opt('mf', 4))
NCAN = int(opt('ncan', 2))
CANJ = int(opt('canj', 12))
NJ = 22
T1S = 8 * NJ * 64

MODA_G = 0
MODF_G = 61440
EPOCH_G = 73728
PY_G = 0x20000
PY_STRIDE = 2688
REC_G = 0x80000
REC_STRIDE = 8320
REC_H2 = 128
REC_BASE = 128 + 4096
T1_G = 0x400000
T2_G = 0x800000
DIAG_G = 0xC00000

NTAB = 26
TAB = 0
RED = TAB + NTAB * 1024
KEYL = RED + 2048
XB2 = KEYL + 64
SA = 736
XB1 = XB2 + 20480
MODA_L = XB1 + 16 * SA
MODB_L = MODA_L + 5120
WR_L = MODB_L + 5120
WST = WR_L + 2048
EW = WST + 16384
FW = EW + 40960
STL = FW + 20480
LDS_BYTES = STL + 256
assert LDS_BYTES <= 163840, LDS_BYTES

T_F20C, T_F20S, T_TW1, T_F32A, T_ADR, T_TW3, T_F20I, T_F32B, T_F16, T_TW2 = 0, 1, 2, 6, 10, 11, 15, 18, 22, 24
NT1 = 11


def f2u(x):
    return struct.unpack('<I', struct.pack('<f', float(x)))[0]


def bf(x):
    u = f2u(x)
    return ((u + 0x7FFF + ((u >> 16) & 1)) >> 16) & 0xFFFF


def pk(lo, hi):
    return bf(lo) | (bf(hi) << 16)


def cs(num, den):
    a = 2 * np.pi * (num % den) / den
    c, s = np.cos(a), np.sin(a)
    if abs(c) < 1e-12: c = 0.0
    if abs(s) < 1e-12: s = 0.0
    return c, s


def kaof(x):
    ka = 3 * (x >> 2) + (x & 3)
    return ka if (x & 3) < 3 and ka <= 10 else None


def tables():
    T = np.zeros((NTAB, 64, 4), np.uint32)
    for l in range(64):
        i, g = l & 15, l >> 4
        c8, s8 = [0.0] * 8, [0.0] * 8
        for j in range(5):
            if kaof(i) is not None:
                c, s = cs((4 * j + g) * kaof(i), 20)
                c8[j], s8[j] = c, -s
        for d in range(4):
            T[T_F20C, l, d] = pk(c8[2 * d], c8[2 * d + 1])
            T[T_F20S, l, d] = pk(s8[2 * d], s8[2 * d + 1])
        for t in range(2):
            for r in range(4):
                c, s = cs((8 * g + 2 * r + t) * (kaof(i) or 0), 640)
                T[T_TW1 + 2 * t, l, r] = f2u(c)
                T[T_TW1 + 2 * t + 1, l, r] = f2u(s)
                c, s = cs((2 * i + t) * (kaof(4 * g + r) or 0), 640)
                T[T_TW3 + 2 * t, l, r] = f2u(c)
                T[T_TW3 + 2 * t + 1, l, r] = f2u(s)
        kbof = lambda e: e if e < 16 else 47 - e
        for tile in range(2):
            for ks in range(2):
                for r in range(4):
                    c, s = cs(kbof(2 * i + tile) * (8 * g + 2 * r + ks), 32)
                    T[T_F32A + tile * 2 + ks, l, r] = pk(c, s)
                    c, s = cs((2 * i + tile) * kbof(8 * g + 2 * r + ks), 32)
                    T[T_F32B + tile * 2 + ks, l, r] = pk(c, s)
        ka_ = kaof(i)
        k0 = 0 if ka_ is None else (160 * g + ka_ if g < 2 else 160 * g - 300 - ka_)
        T[T_ADR, l, 0] = 8 * k0
        T[T_ADR, l, 1] = 0x8000 if i < 8 else 0x80000000
        T[T_ADR, l, 2] = 0 if g < 2 else 0x8000
        T[T_ADR, l, 3] = 0x8000 if g < 2 else 0
        for r in range(4):
            c, s = cs(i * (4 * g + r), 16)
            T[T_F16, l, r] = pk(c, s)
            T[T_F16 + 1, l, r] = pk(-s, c)
            c, s = cs(i * (4 * g + r), 256)
            T[T_TW2, l, r] = f2u(c)
            T[T_TW2 + 1, l, r] = f2u(s)
            ka = kaof(4 * g + r)
            if ka is not None:
                a1 = 4 * (i & 3) + (i >> 2)
                c, s = cs(a1 * ka, 20)
                T[T_F20I, l, r] = pk(c, -s)
                c, s = cs((16 + (i >> 2)) * ka, 20)
                if (i & 3) == 0:
                    T[T_F20I + 1, l, r] = pk(c, -s)
                if (i & 3) == 1:
                    T[T_F20I + 2, l, r] = pk(c, -s)
    return T


def vr(a, n=1):
    return f'v{a}' if n == 1 else f'v[{a}:{a + n - 1}]'


def sr(a, n=2):
    return f's{a}' if n == 1 else f's[{a}:{a + n - 1}]'


sW, sX, sIdx, sMe, sT = 3, 4, 5, 6, 7
A_X, W_R, W_I, B_WR, W_G, W_U, W_D = 8, 10, 12, 16, 18, 20, 22
C_, W_MOD, OUTP, DBG, WS = 24, 26, 28, 30, 32
sBa, sBb, sBc = 34, 36, 38
sCnt = 40
sM1B = 41
sU0, sU1, sU2, sU3 = 42, 43, 46, 47
sM7 = 44
sRow = 48
sKey = 49
sV1, sV2 = 50, 51
sHI = 52
sCand = 53
sRec = 56
sTag = 55
sRi = sIdx
sGU = 56
sXrow = 72
sTS = 74

vL, vL16, vL4, vS, vPoll = 1, 2, 3, 4, 5
vM8F, vM8I = 6, 8
vXS = 10
Ra, Rb, RD, Rc = 20, 28, 36, 52
vF32 = 60
vTW = 92
vF20 = 108
vVec = 120
vE0 = 160
vXR = 150


a = Asm()
stamps = {}
NST = 24


def stamp(name, path='M', wait=True):
    if not DIAG or FINE:
        return
    if opt('only', None) and not (name == 'start' or any(name.startswith(x.replace('_', ' ')) for x in opt('only', '').split(','))):
        return
    if PROBE and (path != 'M' or not (name == 'start' or name.startswith(PROBE))):
        return
    lst = stamps.setdefault(path, [])
    if name not in lst:
        lst.append(name)
    k = lst.index(name)
    assert k < NST
    a(f's_memrealtime s[100:101]')
    a('s_waitcnt lgkmcnt(0)')
    a(f's_mov_b32 s{sTS + k}, s100')


fines = []


def fine(group, name):
    if FINE != group:
        return
    if name not in fines:
        fines.append(name)
    k = fines.index(name)
    assert k < 12
    a(f's_memtime {sr(sTS + 2 * k)}')


def dump_stamps(path='M'):
    if not DIAG:
        return
    if PROBE:
        if path != 'M':
            return
        a(f'''
        s_cmp_lg_u32 s2, {PROBEWG}
        s_cbranch_scc1 L_end
        s_cmp_lg_u32 s{sW}, 0
        s_cbranch_scc1 L_end
        ''')
        if PROBE == 'fix':
            a(f's_movk_i32 s{sU0}, 6000')
        elif PROBE == 'xcc':
            a(f's_getreg_b32 s{sU0}, hwreg(HW_REG_XCC_ID)')
            a(f's_and_b32 s{sU0}, s{sU0}, 15')
            a(f's_mul_i32 s{sU0}, s{sU0}, 1000')
            a(f's_add_u32 s{sU0}, s{sU0}, 6000')
        else:
            a(f's_sub_u32 s{sU0}, s{sTS + 1}, s{sTS}')
            a(f's_lshl_b32 s{sU0}, s{sU0}, 4')
            a(f's_add_u32 s{sU0}, s{sU0}, 6000')
            a(f's_min_u32 s{sU0}, s{sU0}, 100000')
        a(f'''
        L_probe:
        s_memrealtime s[100:101]
        s_waitcnt lgkmcnt(0)
        s_sub_u32 s{sU1}, s100, s{sTS}
        s_cmp_lt_u32 s{sU1}, s{sU0}
        s_cbranch_scc1 L_probe
        ''')
        return
    if DBGDIAG:
        if path != 'M':
            return
        a('v_mov_b32 v20, 0')
        a('s_mov_b64 exec, 1')
        a(f's_not_b32 s{sU0}, s{sTS}')
        a(f'v_mov_b32 v22, s{sU0}')
        a(f'global_atomic_umax v20, v22, {sr(DBG)} offset:4 sc1')
        ks = [0] + list(range(2, len(stamps['M'])))
        for n, k in enumerate(ks[:14]):
            a(f'v_mov_b32 v{23 + n}, s{sTS + k}')
            a(f'global_atomic_umax v20, v{23 + n}, {sr(DBG)} offset:{8 + 4 * n} sc1')
        print('dbg slots:', [(2 + n, stamps['M'][k]) for n, k in enumerate(ks[:14])])
        return
    if path != 'M':
        for k in range(NST):
            a(f'v_writelane_b32 v20, s{sTS + k}, {k}')
        a(f'v_lshlrev_b32 v21, 2, v{vL}')
        a(f'v_add_u32 v21, {STL + (128 if path == "H1" else 0)}, v21')
        a('s_mov_b32 exec_hi, 0')
        a('ds_write_b32 v21, v20')
        a('s_waitcnt lgkmcnt(0)')
        return
    a(f'''
    s_lshl_b32 s{sU0}, s2, 11
    v_add_u32 v21, {STL}, v{vL4}
    ds_read_b32 v22, v21
    ''')
    base_add(sBa, WS, sU0, DIAG_G + 1024)
    a('s_waitcnt lgkmcnt(0)')
    a(f'global_store_dword v{vL4}, v22, {sr(sBa)}')
    a(f'''
    s_lshl_b32 s{sU0}, s2, 11
    s_lshl_b32 s{sU1}, s{sW}, 7
    s_add_u32 s{sU0}, s{sU0}, s{sU1}
    s_memtime s[100:101]
    ''')
    base_add(sBa, WS, sU0, DIAG_G)
    a('v_mov_b32 v20, 0')
    a('s_mov_b64 exec, 1')
    for k in range(0, NST, 2):
        a(f'v_mov_b32 v22, s{sTS + k}')
        a(f'v_mov_b32 v23, s{sTS + k + 1}')
        a(f'global_store_dwordx2 v20, v[22:23], {sr(sBa)} offset:{4 * k}')
        a('s_nop 1')
    a('s_waitcnt lgkmcnt(0)')
    a('s_sub_u32 s100, s100, s98')
    a('v_mov_b32 v22, s100')
    a(f'global_store_dword v20, v22, {sr(sBa)} offset:112')
    a('s_getreg_b32 s42, hwreg(HW_REG_XCC_ID)')
    a('s_getreg_b32 s43, hwreg(HW_REG_HW_ID)')
    a('v_mov_b32 v22, s42')
    a('v_mov_b32 v23, s43')
    a(f'global_store_dwordx2 v20, v[22:23], {sr(sBa)} offset:120')


def base_add(dst, src, off_s=None, imm=0):
    if off_s is not None:
        if imm:
            a(f's_add_u32 s{sT}, s{off_s}, {imm}')
            off_s = sT
        a(f's_add_u32 s{dst}, s{src}, s{off_s}')
    else:
        a(f's_add_u32 s{dst}, s{src}, {imm}')
    a(f's_addc_u32 s{dst + 1}, s{src + 1}, 0')


lblc = [0]
late = []


def flush_late():
    for f in late:
        f()
    late.clear()


def newlabel(p):
    lblc[0] += 1
    return f'L_{p}_{lblc[0]}'


def poll(loads, regs, tmp, mask=None, empty='eq -1', between=None, younger=0, issued=False):
    L, D, Cc = newlabel('poll'), newlabel('polld'), newlabel('pollc')
    if mask is not None:
        mask_lanes(mask)
    if not issued:
        for ld in loads:
            a(ld)
    a(f's_mov_b32 s{sCnt}, {SPIN}')
    if between is not None:
        between()
    if younger < 63:
        a(f's_waitcnt vmcnt({younger})')
    a.label(Cc)

    def retry():
        a.label(L)
        a(f's_sub_u32 s{sCnt}, s{sCnt}, 1')
        a(f's_cbranch_scc1 {D}')
        for ld in loads:
            a(ld)
        a('s_waitcnt vmcnt(0)')
        a(f's_branch {Cc}')
    late.append(retry)
    if empty == 'tag':
        for n, r in enumerate(regs):
            a(f'v_xor_b32 v{r}, s{sTB + (n & 3)}, v{r}')
        rem = list(regs)
        for c in tmp:
            a(f'v_or3_b32 v{c}, v{rem[0]}, v{rem[1]}, v{rem[2]}')
            rem = rem[3:]
        n = 0
        while len(rem) >= 2:
            c = tmp[n % len(tmp)]
            a(f'v_or3_b32 v{c}, v{c}, v{rem[0]}, v{rem[1]}')
            rem = rem[2:]
            n += 1
        t = tmp[0]
        rem = rem + list(tmp[1:])
        while rem:
            if len(rem) >= 2:
                a(f'v_or3_b32 v{t}, v{t}, v{rem[0]}, v{rem[1]}')
                rem = rem[2:]
            else:
                a(f'v_or_b32 v{t}, v{t}, v{rem[0]}')
                rem = rem[1:]
        a(f'v_and_b32 v{t}, 0xff, v{t}')
        empty = 'ne 0'
    elif empty == 'word':
        if len(regs) == 1:
            t = regs[0]
            empty = f'ne s{sTag}'
        else:
            assert len(regs) == 2
            t = tmp[0]
            a(f'v_xor_b32 v{t}, v{regs[0]}, v{regs[1]}')
            a(f'v_xor_b32 v{tmp[1]}, s{sTag}, v{regs[0]}')
            a(f'v_or_b32 v{t}, v{t}, v{tmp[1]}')
            empty = 'ne 0'
    elif empty == 'words':
        for n, r in enumerate(regs):
            a(f'v_xor_b32 v{tmp[n]}, s{sTag}, v{r}')
        t = tmp[0]
        rem = list(tmp[1:len(regs)])
        while rem:
            if len(rem) >= 2:
                a(f'v_or3_b32 v{t}, v{t}, v{rem[0]}, v{rem[1]}')
                rem = rem[2:]
            else:
                a(f'v_or_b32 v{t}, v{t}, v{rem[0]}')
                rem = rem[1:]
        empty = 'ne 0'
    elif len(regs) == 1:
        t = regs[0]
    else:
        rem = list(regs)
        outs = []
        k = 0
        while len(rem) >= 3 and k < len(tmp):
            a(f'v_max3_u32 v{tmp[k]}, v{rem[0]}, v{rem[1]}, v{rem[2]}')
            outs.append(tmp[k])
            rem = rem[3:]
            k += 1
        rem = outs[1:] + rem
        t = outs[0] if outs else None
        if t is None:
            t = tmp[0]
            a(f'v_max_u32 v{t}, v{rem[0]}, v{rem[1]}')
            rem = rem[2:]
        while rem:
            if len(rem) >= 2:
                a(f'v_max3_u32 v{t}, v{t}, v{rem[0]}, v{rem[1]}')
                rem = rem[2:]
            else:
                a(f'v_max_u32 v{t}, v{t}, v{rem[0]}')
                rem = rem[1:]
    a(f'v_cmpx_{empty.split()[0]}_u32 vcc, {empty.split()[1]}, v{t}')
    a(f's_cbranch_execnz {L}')
    a.label(D)
    a('s_mov_b64 exec, -1')


def epoch_load():
    a(f's_load_dword s{sTag}, {sr(WS)}, {EPOCH_G}')


def epoch_tag():
    a(f'''
    s_and_b32 s{sTag}, s{sTag}, 0x7f7f7f7f
    s_add_u32 s{sTag}, s{sTag}, 0x01010101
    s_or_b32 s{sTag}, s{sTag}, 0x80808080
    ''')


sTB = 68


def tag_bytes():
    for k in range(4):
        a(f's_bfe_u32 s{sTB + k}, s{sTag}, {hex(0x80000 | (8 * k))}')


def dpp(op, r, ctrl, rm='0xf'):
    a(f'{op}_dpp v{r}, v{r}, v{r} {ctrl} row_mask:{rm} bank_mask:0xf')


def wave_sum(regs, dst_s, op='v_add_f32'):
    for c in ('row_ror:8', 'row_ror:4', 'row_ror:2', 'row_ror:1'):
        for r in regs:
            dpp(op, r, c)
    for r in regs:
        dpp(op, r, 'row_bcast:15', '0xa')
    for r in regs:
        dpp(op, r, 'row_bcast:31', '0xc')
    for r, s in zip(regs, dst_s):
        a(f'v_readlane_b32 s{s}, v{r}, 63')


def rbf(dst, src):
    a(f'v_cvt_pk_bf16_f32 v{dst}, {src}, {src}')
    a(f'v_and_b32 v{dst}, s{sHI}, v{dst}')


def unpack(dlo, dhi, src):
    a(f'v_lshlrev_b32 v{dlo}, 16, v{src}')
    a(f'v_and_b32 v{dhi}, s{sHI}, v{src}')


def mfma32(d, x, y, c=None):
    a(f'v_mfma_f32_16x16x32_bf16 {vr(d, 4)}, {vr(x, 4)}, {vr(y, 4)}, {vr(c, 4) if c is not None else 0}')


def mfma16(d, x, y):
    a(f'v_mfma_f32_16x16x16_bf16 {vr(d, 4)}, {vr(x, 2)}, {vr(y, 2)}, 0')


def cmul(tr, ti, re, im, c, s, sign, pk=True, n=4):
    if not pk:
        for r in range(n):
            a(f'v_mul_f32 v{tr + r}, v{re + r}, v{c + r}')
        for r in range(n):
            a(f'v_mul_f32 v{ti + r}, v{im + r}, v{c + r}')
        for r in range(n):
            if sign > 0:
                a(f'v_fma_f32 v{tr + r}, -v{im + r}, v{s + r}, v{tr + r}')
                a(f'v_fmac_f32 v{ti + r}, v{re + r}, v{s + r}')
            else:
                a(f'v_fmac_f32 v{tr + r}, v{im + r}, v{s + r}')
                a(f'v_fma_f32 v{ti + r}, -v{re + r}, v{s + r}, v{ti + r}')
        return
    nr = 'neg_lo:[1,0,0] neg_hi:[1,0,0]'
    for h in (0, 2):
        a(f'v_pk_mul_f32 {vr(tr + h, 2)}, {vr(re + h, 2)}, {vr(c + h, 2)}')
    for h in (0, 2):
        a(f'v_pk_mul_f32 {vr(ti + h, 2)}, {vr(im + h, 2)}, {vr(c + h, 2)}')
    for h in (0, 2):
        a(f'v_pk_fma_f32 {vr(tr + h, 2)}, {vr(im + h, 2)}, {vr(s + h, 2)}, {vr(tr + h, 2)} {nr if sign > 0 else ""}')
    for h in (0, 2):
        a(f'v_pk_fma_f32 {vr(ti + h, 2)}, {vr(re + h, 2)}, {vr(s + h, 2)}, {vr(ti + h, 2)} {nr if sign < 0 else ""}')


def pack4(d, lo, hi, step=1, n=4):
    for r in range(n):
        a(f'v_cvt_pk_bf16_f32 v{d + r * step}, v{lo + r}, v{hi + r}')


def tab_read(dst, q):
    a(f'ds_read_b128 {vr(dst, 4)}, v{vL16} offset:{TAB + q * 1024}')


def tm(j, t):
    return 4 * t + j if j < 4 else 8 + t


def read_tmajor(dst, vaddr, off):
    o = off // 256
    assert off % 256 == 0 and o + 6 < 256
    for t in range(2):
        a(f'ds_read2st64_b32 {vr(dst + 4 * t, 2)}, v{vaddr + t} offset0:{o} offset1:{o + 2}')
        a(f'ds_read2st64_b32 {vr(dst + 4 * t + 2, 2)}, v{vaddr + t} offset0:{o + 4} offset1:{o + 6}')
    a(f'ds_read_b64 {vr(dst + 8, 2)}, v{vaddr} offset:{off + 2048}')


def silu(dst, src, tmp):
    for d, s, t in zip(dst, src, tmp):
        a(f'v_mul_f32 v{t}, 0xbfb8aa3b, v{s}')
    for t in tmp:
        a(f'v_exp_f32 v{t}, v{t}')
    for t in tmp:
        a(f'v_add_f32 v{t}, 1.0, v{t}')
    for t in tmp:
        a(f'v_rcp_f32 v{t}, v{t}')
    for d, s, t in zip(dst, src, tmp):
        a(f'v_mul_f32 v{d}, v{s}, v{t}')


def swap_reduce8(acc):
    for k in range(4):
        a(f'v_permlane32_swap_b32 v{acc + k}, v{acc + k + 4}')
    a(f'v_pk_add_f32 {vr(acc, 2)}, {vr(acc, 2)}, {vr(acc + 4, 2)}')
    a(f'v_pk_add_f32 {vr(acc + 2, 2)}, {vr(acc + 2, 2)}, {vr(acc + 6, 2)}')
    for k in range(2):
        a(f'v_permlane16_swap_b32 v{acc + k}, v{acc + k + 2}')
    a(f'v_pk_add_f32 {vr(acc, 2)}, {vr(acc, 2)}, {vr(acc + 2, 2)}')


BC0 = 'op_sel:[0,0,0] op_sel_hi:[1,0,1]'
BC1 = 'op_sel:[0,1,0] op_sel_hi:[1,1,1]'


def prologue():
    a(f'''
    s_cmp_ge_u32 s2, 256
    s_cbranch_scc1 L_end
    ''')
    if DIAG:
        for k in range(NST):
            a(f's_mov_b32 s{sTS + k}, 0')
        a('s_memtime s[98:99]')
        for p in ('M', 'H0', 'H1'):
            stamps[p] = ['start']
        stamp('start')
    a(f'''
    s_load_dwordx16 s[8:23], s[0:1], 0
    s_load_dwordx8 s[24:31], s[0:1], 64
    s_load_dwordx2 s[32:33], s[0:1], 96
    v_lshrrev_b32 v{vL}, 6, v0
    s_and_b32 s{sX}, s2, 7
    v_readfirstlane_b32 s{sW}, v{vL}
    v_and_b32 v{vL}, 63, v0
    s_lshr_b32 s{sIdx}, s2, 3
    s_lshl_b32 s{sMe}, s{sX}, 5
    s_add_u32 s{sMe}, s{sMe}, s{sIdx}
    v_lshlrev_b32 v{vL16}, 4, v{vL}
    s_mov_b32 s{sHI}, 0xffff0000
    s_cmp_lg_u32 s{sRi}, 30
    s_cbranch_scc1 L_nopf
    s_cmp_ge_u32 s{sW}, (L_tables_end-{NAME}_kernel)/8192
    s_cbranch_scc1 L_nopf
    s_getpc_b64 {sr(sBa)}
    L_pc0:
    s_sub_u32 s{sBa}, s{sBa}, L_pc0-{NAME}_kernel
    s_subb_u32 s{sBa + 1}, s{sBa + 1}, 0
    v_lshlrev_b32 v20, 7, v0
    global_load_dword v159, v20, {sr(sBa)}
    L_nopf:
    v_lshlrev_b32 v{vL4}, 2, v{vL}
    s_cmp_eq_u32 s{sW}, 9
    s_cbranch_scc1 L_h1
    s_cmp_eq_u32 s{sW}, 8
    s_cbranch_scc1 L_h0
    s_lshl_b32 s{sRow}, s{sW}, 8
    s_add_u32 s{sKey}, s{sRow}, s{sMe}
    s_mul_i32 s{sRow}, s{sKey}, 1280
    ''')


def xloads():
    for j in range(5):
        a(f'global_load_dword v{vXR + j}, v{vL4}, {sr(sXrow)} offset:{256 * j} {INPOL}')


def blk_id(dst):
    a(f'''
    s_cmp_lt_u32 s{sRi}, 10
    s_cselect_b32 s{dst}, 10, 20
    s_cselect_b32 s{sT}, 0, 70
    s_mul_i32 s{dst}, s{dst}, s{sX}
    s_add_u32 s{dst}, s{dst}, s{sT}
    s_add_u32 s{dst}, s{dst}, s{sRi}
    ''')


GV = (80, 100, 48, 60, 56, 57)


def gemv_addr():
    vw, vc, acc, tmp, vo, voc = GV
    blk_id(sU2)
    a(f'''
    s_lshr_b32 s{sU0}, s{sU2}, 2
    s_and_b32 s{sU1}, s{sU2}, 3
    s_mul_i32 s{sU1}, s{sU1}, 160
    s_mul_i32 s{sT}, s{sW}, 20
    s_add_u32 s{sU1}, s{sU1}, s{sT}
    v_lshrrev_b32 v{voc}, 3, v{vL}
    v_and_b32 v{vo}, 0x70, v{vL16}
    v_mul_u32_u24 v{tmp}, 7680, v{voc}
    v_lshlrev_b32 v{voc}, 1, v{voc}
    v_add_u32 v{vo}, v{vo}, v{tmp}
    s_mul_i32 s{sU3}, s{sU1}, 7680
    s_lshl_b32 s{sT}, s{sU0}, 7
    s_add_u32 s{sU3}, s{sU3}, s{sT}
    s_lshl_b32 s{sU1}, s{sU1}, 1
    ''')
    for k in range(4):
        a(f'v_mov_b32 v{vw + 8 + k}, 0')
    a(f'v_mov_b32 v{vc + 2}, 0')
    a('s_waitcnt lgkmcnt(0)')
    stamp('kernarg')
    epoch_load()
    base_add(sBa, C_, sU1)
    base_add(sBb, W_MOD, sU3)
    base_add(sXrow, A_X, sRow)


def gemv_issue():
    vw, vc, acc, tmp, vo, voc = GV
    for j in range(3):
        if j == 2:
            a('s_mov_b32 exec_hi, 0')
        a(f'global_load_ushort v{vc + j}, v{voc}, {sr(sBa)} offset:{16 * j}')
    a('s_mov_b64 exec, -1')
    for j in range(3):
        if j == 2:
            a('s_mov_b32 exec_hi, 0')
        a(f'global_load_dwordx4 {vr(vw + 4 * j, 4)}, v{vo}, {sr(sBb)} {INPOL}')
        if j < 2:
            a(f'v_add_u32 v{vo}, {8 * 7680}, v{vo}')
    a('s_mov_b64 exec, -1')


def gemv_compute(role):
    nj = 3
    vw, vc, acc, tmp, vo, voc = GV
    after = 5 if role == 'A' else 0
    a(f's_waitcnt vmcnt({nj + after})')
    stamp('c in')
    cs_ = [vc + j for j in range(nj)]
    for c in cs_:
        a(f'v_lshlrev_b32 v{c}, 16, v{c}')
    silu(cs_, cs_, [tmp + j for j in range(nj)])
    sc = [70 + 2 * j for j in range(nj)]
    for c, s in zip(cs_, sc):
        a(f'v_cvt_pk_bf16_f32 v{s}, v{c}, 0')
    for s in sc:
        a(f'v_lshlrev_b32 v{s + 1}, 16, v{s}')
    a(f'''
    v_and_b32 v{vo}, 7, v{vL}
    v_lshlrev_b32 v{vo}, 8, v{vo}
    v_and_b32 v{voc}, 48, v{vL}
    v_lshl_add_u32 v{vo}, v{voc}, 2, v{vo}
    s_lshl_b32 s{sT}, s{sW}, 2
    s_add_u32 s{sT}, s{sT}, {RED}
    v_add_u32 v{vo}, s{sT}, v{vo}
    ''')
    for k in range(8):
        a(f'v_mov_b32 v{acc + k}, 0')
    for j in range(nj):
        a(f's_waitcnt vmcnt({nj - 1 - j + after})')
        for k in (0, 4, 1, 5, 2, 6, 3, 7):
            a(f'v_dot2c_f32_bf16 v{acc + k}, v{vw + 4 * j + k // 2}, v{sc[j] + (k & 1)}')
    stamp('w in')
    swap_reduce8(acc)
    for c in ('row_ror:8',):
        dpp('v_add_f32', acc, c)
        dpp('v_add_f32', acc + 1, c)
    a(f'''
    s_mov_b32 exec_lo, 0x00ff00ff
    s_mov_b32 exec_hi, 0x00ff00ff
    ds_write2_b32 v{vo}, v{acc}, v{acc + 1} offset0:0 offset1:8
    s_mov_b64 exec, -1
    s_waitcnt lgkmcnt(0)
    ''')


def m8(dst, inverse):
    t0, t1, t2, t3 = 20, 21, 22, 23
    a(f'v_lshrrev_b32 v{t0}, 4, v{vL}           ; g')
    if not inverse:
        a(f'''
        v_bfe_u32 v{t1}, v{vL}, 2, 2
        v_bfe_u32 v{t2}, v{vL}, 1, 1
        v_lshl_add_u32 v{t1}, v{t2}, 2, v{t1}
        v_lshlrev_b32 v{t0}, 9, v{t0}
        v_add_u32 v{t0}, s{sMe}, v{t0}
        v_mul_u32_u24 v{t2}, v{t0}, v{t1}
        v_lshl_add_u32 v{t3}, v{t1}, 8, v{t2}
        ''')
    else:
        a(f'''
        v_bfe_u32 v{t1}, v{vL}, 1, 3
        v_lshlrev_b32 v{t1}, 8, v{t1}
        v_add_u32 v{t1}, s{sMe}, v{t1}
        v_mul_u32_u24 v{t2}, v{t0}, v{t1}
        v_xor_b32 v{t0}, 4, v{t0}
        v_mul_u32_u24 v{t3}, v{t0}, v{t1}
        v_sub_u32 v{t2}, 0, v{t2}
        v_sub_u32 v{t3}, 0, v{t3}
        ''')
    a(f'''
    v_and_b32 v{t0}, 1, v{vL}
    v_lshl_add_u32 v{t2}, v{t0}, 9, v{t2}
    v_lshl_add_u32 v{t3}, v{t0}, 9, v{t3}
    v_and_b32 v{t2}, 0x7ff, v{t2}
    v_and_b32 v{t3}, 0x7ff, v{t3}
    v_cvt_f32_u32 v{t2}, v{t2}
    v_cvt_f32_u32 v{t3}, v{t3}
    v_mul_f32 v{t2}, 0x3a000000, v{t2}
    v_mul_f32 v{t3}, 0x3a000000, v{t3}
    v_cos_f32 v{t0}, v{t2}
    v_sin_f32 v{t2}, v{t2}
    v_cos_f32 v{t1}, v{t3}
    v_sin_f32 v{t3}, v{t3}
    v_cvt_pk_bf16_f32 v{dst}, v{t0}, v{t2}
    v_cvt_pk_bf16_f32 v{dst + 1}, v{t1}, v{t3}
    ''')


INV640 = hex(f2u(1.0 / 640))
EPS = hex(f2u(1e-5))


def rstd_chain(var, out):
    rbf(out, f'v{var}')
    a(f'v_add_f32 v{out}, {EPS}, v{out}')
    rbf(out, f'v{out}')
    a(f'v_sqrt_f32 v{out}, v{out}')
    rbf(out, f'v{out}')
    a(f'v_rcp_f32 v{out}, v{out}')


def sum10(dst2, x):
    a(f'v_pk_add_f32 {vr(dst2, 2)}, {vr(x, 2)}, {vr(x + 2, 2)}')
    for h in (4, 6, 8):
        a(f'v_pk_add_f32 {vr(dst2, 2)}, {vr(dst2, 2)}, {vr(x + h, 2)}')
    a(f'v_add_f32 v{dst2}, v{dst2}, v{dst2 + 1}')


def dot10(dst2, x, y):
    a(f'v_pk_mul_f32 {vr(dst2, 2)}, {vr(x, 2)}, {vr(y, 2)}')
    for h in (2, 4, 6, 8):
        a(f'v_pk_fma_f32 {vr(dst2, 2)}, {vr(x + h, 2)}, {vr(y + h, 2)}, {vr(dst2, 2)}')
    a(f'v_add_f32 v{dst2}, v{dst2}, v{dst2 + 1}')


def bar(n):
    a(f's_barrier                                   ; {n}')


def tpoll(loads, lanes_s=None, between=None):
    L, D, Cc = newlabel('poll'), newlabel('polld'), newlabel('pollc')
    if lanes_s:
        a(f's_mov_b64 exec, {lanes_s}')
    for ld in loads:
        a(ld)
    if lanes_s:
        a('s_mov_b64 exec, -1')
    a(f's_mov_b32 s{sCnt}, {SPIN}')
    if between is not None:
        between()
    a('s_waitcnt vmcnt(0)')
    a.label(Cc)
    a(f'''
    v_cmp_ne_u32 vcc, s{sTag}, v{Ra + 3}
    v_cmp_ne_u32 {sr(sBc)}, s{sTag}, v{Ra + 7}
    s_or_b64 vcc, vcc, {sr(sBc)}
    s_and_b64 vcc, vcc, {sr(sM8)}
    s_cbranch_scc1 {L}
    ''')
    a.label(D)

    def retry():
        a.label(L)
        a(f'''
        s_sub_u32 s{sCnt}, s{sCnt}, 1
        s_cbranch_scc1 {D}
        s_lshr_b64 {sr(sBc)}, vcc, 1
        s_or_b64 vcc, vcc, {sr(sBc)}
        s_lshr_b64 {sr(sBc)}, vcc, 2
        s_or_b64 exec, vcc, {sr(sBc)}
        ''')
        for ld in loads:
            a(ld)
        a('s_mov_b64 exec, -1')
        a('s_waitcnt vmcnt(0)')
        a(f's_branch {Cc}')
    late.append(retry)


sM8, sLn, sM3 = 62, 64, 66
vSg0, vSg1, vPair, vPairX = vE0 + 1, vE0 + 2, vE0 + 5, vM8F + 1


def f32_expand(q0, m0, m1):
    for tile in range(2):
        for k in range(8):
            b = vF32 + 16 * tile + k
            a(f'v_alignbit_b32 v{b + 8}, v{b}, v{b}, 16')
            a(f'v_xor_b32 v{b + 8}, v{m1}, v{b + 8}')
            if m0 is not None:
                a(f'v_xor_b32 v{b}, v{m0}, v{b}')


def f32_read(q0):
    for tile in range(2):
        for ks in range(2):
            tab_read(vF32 + 16 * tile + 4 * ks, q0 + 2 * tile + ks)


def main_path():
    vZ, vSA, vCA = vVec, vVec + 10, vVec + 20
    gemv_addr()
    a(f's_cmp_lt_u32 s{sRi}, 10')
    a('s_cbranch_scc0 L_x')
    gemv_issue()
    a.label('L_x')
    xloads()
    a(f's_sub_u32 s{sT}, s{sRi}, 10')
    a(f's_cmp_lt_u32 s{sT}, 20')
    a('s_cbranch_scc0 L_setup')
    gemv_issue()
    a.label('L_setup')
    m8(vM8F, False)
    m8(vM8I, True)
    a(f'''
    v_bfe_u32 v20, v{vL}, 2, 2                    ; cs
    v_and_b32 v21, 48, v{vL16}                    ; part*16
    v_lshrrev_b32 v22, 4, v{vL}                   ; g
    v_lshl_add_u32 v23, v22, 5, v20               ; 32g + cs
    v_mul_u32_u24 v{vPoll}, {T1S}, v23
    v_add_u32 v{vPoll}, v{vPoll}, v21
    v_mul_u32_u24 v23, 80, v23
    s_mul_i32 s{sT}, s{sW}, 320
    s_add_u32 s{sT}, s{sT}, {XB2}
    v_add3_u32 v{vE0 + 4}, v23, v21, s{sT}        ; staging address
    v_mul_u32_u24 v{vS}, {NJ * 64}, v22
    v_and_b32 v23, 0xf0, v{vL16}
    v_add_u32 v{vS}, v{vS}, v23
    v_lshlrev_b32 v{vE0}, 3, v{vL}                ; 8*lane
    v_mul_u32_u24 v22, {4 * SA}, v22
    v_mul_u32_u24 v20, 120, v20
    v_lshl_add_u32 v20, v21, 1, v20
    s_min_u32 s{sT}, s{sW}, 5
    s_mul_i32 s{sT}, s{sT}, 480
    s_add_u32 s{sT}, s{sT}, {XB1}
    v_add3_u32 v{vPair}, v20, v22, s{sT}
    s_mov_b32 s{sM7}, 0x77777777
    s_mov_b32 s{sM7 + 1}, 0x77777777
    s_mov_b32 s{sM8}, 0x88888888
    s_mov_b32 s{sM8 + 1}, 0x88888888
    s_mov_b32 s{sM3}, 0x37773777
    s_mov_b32 s{sM3 + 1}, 0x37773777
    s_cmp_eq_u32 s{sW}, 5
    s_cselect_b32 s{sLn}, 0x00ff00ff, -1
    s_mov_b32 s{sLn + 1}, s{sLn}
    ''')
    a(f's_cmp_lt_u32 s{sRi}, 10')
    a('s_cbranch_scc0 L_na')
    gemv_compute('A')
    bar('B1')
    a('s_waitcnt vmcnt(0)')
    a('s_branch L_ln1')
    a.label('L_na')
    a(f's_cmp_lt_u32 s{sRi}, 30')
    a('s_waitcnt vmcnt(6)')
    a('s_cbranch_scc1 L_ln1')
    a('s_waitcnt vmcnt(0)')
    a.label('L_ln1')
    stamp('x in')
    for j in range(5):
        unpack(vXS + tm(j, 0), vXS + tm(j, 1), vXR + j)
    sum10(24, vXS)
    wave_sum([24], [sU0])
    a(f'v_mov_b32 v24, {INV640}')
    a(f'v_mul_f32 v28, s{sU0}, v24                ; mean')
    a(f'v_readfirstlane_b32 s{sM1B}, v28')
    for h in range(0, 10, 2):
        a(f'v_pk_add_f32 {vr(vXS + h, 2)}, {vr(vXS + h, 2)}, v[28:29] op_sel:[0,0] op_sel_hi:[1,0] neg_lo:[0,1] neg_hi:[0,1]')
    dot10(30, vXS, vXS)
    wave_sum([30], [sU0])
    a(f'''
    v_mov_b32 v27, {EPS}
    v_fmac_f32 v27, s{sU0}, v24
    v_rsq_f32 v27, v27
    ''')
    for j in range(5):
        for t in range(2):
            a(f'v_mul_f32 v{vZ + 2 * j + t}, v27, v{vXS + tm(j, t)}')
    a(f'''
    v_mov_b32 v23, 0
    v_mov_b32 v27, 0
    s_waitcnt lgkmcnt(0)
    ''')
    epoch_tag()
    tag_bytes()
    a(f'''
    s_cmp_lt_u32 s{sRi}, 10
    s_cbranch_scc1 L_tabs
    s_cmp_lt_u32 s{sRi}, 30
    s_cbranch_scc0 L_b1
    ''')
    gemv_compute('B')
    a.label('L_b1')
    bar('B1')
    a.label('L_tabs')
    a(f'''
    s_mul_i32 s{sU0}, s{sMe}, {T1S}
    s_lshl_b32 s{sU1}, s{sW}, 8
    s_add_u32 s{sU0}, s{sU0}, s{sU1}
    ''')
    base_add(sBa, WS, sU0, T1_G)
    base_add(sBb, WS, sU0, T1_G + 4 * NJ * 64)
    a(f'''
    v_subrev_u32 v28, 64, v0                      ; u
    v_lshrrev_b32 v29, 4, v28
    v_lshlrev_b32 v29, 10, v29
    v_and_b32 v30, 0xf0, v{vL16}
    v_add_u32 v29, v29, v30
    v_cmp_le_u32 vcc, 160, v28
    v_mov_b32 v31, {8 - 160 * 32}
    v_cndmask_b32 v31, 0, v31, vcc
    s_mov_b32 s{sU2}, {MODA_L}
    v_lshlrev_b32 v28, 5, v28
    v_add3_u32 v28, v28, v31, s{sU2}
    v_add_u32 v{vE0 + 3}, s{sU2}, v{vL16}
    s_sub_u32 s{sT}, s{sW}, 1
    s_cmp_lt_u32 s{sT}, 5
    ''')
    bar('BT')
    stamp('poll start')
    def p1_tabs():
        bar('BP')
        tab_read(vF20, T_F20C)
        tab_read(vF20 + 4, T_F20S)
        for q in range(4):
            tab_read(vTW + 4 * q, T_TW1 + q)
        f32_read(T_F32A)
        tab_read(32, T_ADR)
        a(f'''
        s_lshr_b32 s{sU1}, s{sW}, 1
        s_mul_i32 s{sU1}, s{sU1}, {4 * SA}
        s_and_b32 s{sT}, s{sW}, 1
        s_lshl_b32 s{sT}, s{sT}, 2
        s_add_u32 s{sU1}, s{sU1}, s{sT}
        s_add_u32 s{sU1}, s{sU1}, {XB1}
        s_waitcnt lgkmcnt(0)
        v_add_u32 v{vSg0}, s{sU1}, v32
        v_add_u32 v{vSg1}, 160, v{vSg0}
        ''')
        f32_expand(T_F32A, None, 33)
    a('s_cbranch_scc1 L_mpoll')
    p1_tabs()
    a('s_branch L_b2')
    a.label('L_mpoll')
    poll([f'global_load_dwordx4 {vr(36 + 4 * p, 4)}, v29, {sr(WS)} offset:{256 * p} sc1' for p in range(4)],
         list(range(36, 52)), [52, 53, 54], empty='tag', between=p1_tabs)
    a(f'''
    v_pk_add_f32 v[36:37], v[36:37], v[40:41]
    v_pk_add_f32 v[38:39], v[38:39], v[42:43]
    v_pk_add_f32 v[44:45], v[44:45], v[48:49]
    v_pk_add_f32 v[46:47], v[46:47], v[50:51]
    v_pk_add_f32 v[36:37], v[36:37], v[44:45]
    v_pk_add_f32 v[38:39], v[38:39], v[46:47]
    ''')
    a(f'ds_write2_b64 v28, v[36:37], v[38:39] offset0:0 offset1:2')
    a.label('L_b2')
    stamp('poll end')
    fine('p1', 'pre-B2')
    a('s_waitcnt lgkmcnt(0)')
    a('s_barrier                                   ; B2')
    stamp('B2 done (mod ready)')
    fine('p1', 'B2')
    assert MODA_L % 16 == 0
    for j in range(5):
        a(f'ds_read_b128 {vr(vSA + 4 * j, 4)}, v{vE0 + 3} offset:{1024 * j}')
    for j in range(5):
        a(f's_waitcnt lgkmcnt({4 - j})')
        for t in range(2):
            a(f'v_fmac_f32 v{vSA + 4 * j + t}, v{vZ + 2 * j + t}, v{vSA + 4 * j + 2 + t}')
        if j in (1, 3):
            for t in range(2):
                a(f'v_cvt_pk_bf16_f32 v{Ra + 4 * t + j // 2}, v{vSA + 4 * j - 4 + t}, v{vSA + 4 * j + t}')
    for t in range(2):
        a(f'v_cvt_pk_bf16_f32 v{Ra + 4 * t + 2}, v{vSA + 16 + t}, 0')
    fine('p1', 'h packed')
    for t in range(2):
        mfma32(RD + 8 * t, Ra + 4 * t, vF20)
        mfma32(RD + 8 * t + 4, Ra + 4 * t, vF20 + 4)
    fine('p1', 'mfma1 issued')
    for t, tmp in ((0, Rb), (1, Rc)):
        cmul(tmp, tmp + 4, RD + 8 * t, RD + 8 * t + 4, vTW + 8 * t, vTW + 8 * t + 4, -1, pk=PK[0] == '1')
        pack4(Ra + 4 * t, tmp, tmp + 4)
    fine('p1', 'twiddled')
    for u in range(2):
        for ks in range(2):
            for e in range(2):
                d = RD + 8 * u + 4 * e
                mfma32(d, vF32 + 16 * u + 8 * e + 4 * ks, Ra + 4 * ks, d if ks else None)
    fine('p1', 'mfma2 issued')
    a(f's_mov_b64 exec, {sr(sM3)}')
    for u in range(2):
        pack4(Rb + 4 * u, RD + 8 * u, RD + 8 * u + 4)
        for r in (0, 2):
            a(f'ds_write2_b32 v{vSg1 if u else vSg0}, v{Rb + 4 * u + r}, v{Rb + 4 * u + r + 1} offset0:{80 * r} offset1:{80 * r + 80}')
    a('s_mov_b64 exec, -1')
    a(f'v_mov_b32 v{Rc + 3}, s{sTag}')
    a(f'v_mov_b32 v{Rc + 7}, s{sTag}')
    a(f's_cmp_ge_u32 s{sW}, 6')
    fine('p1', 'lds written')
    a('s_waitcnt lgkmcnt(0)')
    fine('p1', 'pre-B3')
    bar('B3')
    fine('p1', 'B3')
    a('s_cbranch_scc1 L_t1done')
    for n in (3, 0, 1, 2):
        a(f'ds_read_b64 {vr(Ra + 2 * n, 2)}, v{vPair} offset:{8 * n}')
    for k, n in enumerate((3, 0, 1, 2)):
        a(f's_waitcnt lgkmcnt({3 - k})')
        mfma16(RD + 4 * n, vM8F, Ra + 2 * n)
    fine('p1', 'r8 issued')
    a(f's_mov_b64 exec, {sr(sM7)}')
    for j in range(2):
        a(f'v_cvt_pk_bf16_f32 v{Rc + 4 * j + 3}, v{RD + 12 + 2 * j}, v{RD + 12 + 2 * j + 1}')
    a(f's_mov_b64 exec, {sr(sLn)}')
    for j in range(2):
        for n in range(3):
            a(f'v_cvt_pk_bf16_f32 v{Rc + 4 * j + n}, v{RD + 4 * n + 2 * j}, v{RD + 4 * n + 2 * j + 1}')
        a(f'global_store_dwordx4 v{vS}, {vr(Rc + 4 * j, 4)}, {sr(sBb if j else sBa)} sc1')
    a('s_mov_b64 exec, -1')
    a.label('L_t1done')
    stamp('T1 stored')
    fine('p1', 'stored')

    def p3_mats():
        for q in range(3):
            tab_read(vF20 + 4 * q, T_F20I + q)
        f32_read(T_F32B)
        tab_read(40, T_ADR)
        a('s_waitcnt lgkmcnt(0)')
        f32_expand(T_F32B, 42, 43)
    a(f's_cmp_ge_u32 s{sIdx}, {NJ}')
    a('s_cbranch_scc1 L_idle')
    late.append(lambda: (a.label('L_idle'), bar('B3b'), p3_mats() if MATS else None, a('s_branch L_p3prep')))
    if MATS == 1:
        p3_mats()
    vWr = vVec
    for k in range(16):
        a(f'v_mov_b32 v{vWr + k}, 0')
    SC = 2.0 / (2048 * 640)
    a(f'''
    v_and_b32 v36, 15, v{vL}
    v_and_b32 v37, 48, v{vL}
    v_lshl_add_u32 v36, v37, 2, v36               ; 64g + i
    v_mul_u32_u24 v{vE0 + 3}, 80, v36
    s_lshl_b32 s{sU1}, s{sW}, 3
    s_add_u32 s{sU1}, s{sU1}, {XB2}
    v_add_u32 v{vE0 + 3}, s{sU1}, v{vE0 + 3}
    v_lshlrev_b32 v36, 5, v36
    v_add_u32 v36, {WST}, v36
    v_and_b32 v39, 4, v{vL}
    v_lshlrev_b32 v39, 2, v39
    v_lshlrev_b32 v{vS}, 7, v37
    v_and_b32 v37, 0xf0, v{vL16}
    v_add_u32 v{vS}, v{vS}, v37
    s_mul_i32 s{sU0}, s{sX}, {NJ}
    s_add_u32 s{sU0}, s{sU0}, s{sIdx}
    s_lshl_b32 s{sU1}, s{sU0}, 6
    s_mul_i32 s{sT}, s{sW}, {4 * T1S}
    s_add_u32 s{sU1}, s{sU1}, s{sT}
    s_lshl_b32 s{sU0}, s{sU0}, 14
    s_lshl_b32 s{sT}, s{sW}, 8
    s_add_u32 s{sU0}, s{sU0}, s{sT}
    ''')
    base_add(sBa, WS, sU1, T1_G)
    base_add(sBb, WS, sU1, T1_G + 128 * T1S)
    base_add(58, WS, sU0, T2_G)
    base_add(60, WS, sU0, T2_G + 8192)

    def w_setup():
        for q in range(2):
            tab_read(vTW + 4 * q, T_F16 + q)
            tab_read(vTW + 8 + 4 * q, T_TW2 + q)
        a(f'''
        s_mul_i32 s{sU0}, s{sIdx}, 15
        s_min_u32 s{sU1}, s{sU0}, 306
        s_add_u32 s{sU2}, s{sU1}, s{sX}
        s_and_b32 s{sU2}, s{sU2}, 1
        s_sub_u32 s{sU1}, s{sU1}, s{sU2}
        s_lshl_b32 s{sT}, s{sW}, 1
        s_add_u32 s{sU0}, s{sU0}, s{sT}
        ''')
        for s in range(2):
            gam = sU3
            a(f'''
            s_add_u32 s{sU2}, s{sU0}, {s}
            s_sub_u32 s{sT}, s{sU2}, s{sU1}
            s_min_u32 s{sT}, s{sT}, 15
            s_lshl_b32 s{sT}, s{sT}, 1
            v_xor_b32 v37, s{sT}, v39
            v_add_u32 v37, v37, v36
            ''')
            for arr in range(2):
                for r in range(4):
                    a(f'ds_read_u16_d16_hi v{vWr + 8 * s + 4 * arr + r}, v37 offset:{arr * 8192 + r * 512}')
            a(f'''
            s_mul_i32 s{sT}, s{sU2}, 0x199a
            s_lshr_b32 s{sT}, s{sT}, 16
            s_mul_i32 s{sT}, s{sT}, 10
            s_mov_b32 s{gam}, {hex(f2u(SC))}
            s_cmp_eq_u32 s{sT}, s{sU2}
            s_cselect_b32 s{gam}, {hex(f2u(SC / 2))}, s{gam}
            s_waitcnt lgkmcnt(0)
            ''')
            for r in range(8):
                a(f'v_mul_f32 v{vWr + 8 * s + r}, s{gam}, v{vWr + 8 * s + r}')

    tl = [f'global_load_dwordx4 {vr(Ra, 4)}, v{vPoll}, {sr(sBa)} sc1', f'global_load_dwordx4 {vr(Ra + 4, 4)}, v{vPoll}, {sr(sBb)} sc1']
    bar('B3b')
    if WFIRST:
        w_setup()
    if DR1:
        a('s_waitcnt vmcnt(0)')
    if PACE1:
        a(f's_sleep {PACE1}')
    stamp('B3b done')
    tpoll(tl, between=lambda: (None if WFIRST else w_setup(), p3_mats() if MATS == 2 else None))
    fine('p2', 'T1 in')
    a(f'ds_write_b128 v{vE0 + 4}, {vr(Ra, 4)}')
    a(f'ds_write_b128 v{vE0 + 4}, {vr(Ra + 4, 4)} offset:10240')
    a(f's_cmp_eq_u32 s{sW}, 7')
    a('s_waitcnt lgkmcnt(0)')
    bar('B4')
    stamp('B4 done (T1 in)')
    fine('p2', 'B4')
    a('s_cbranch_scc1 L_p2_one')
    Fre, Fim, Tc, Ts = vTW, vTW + 4, vTW + 8, vTW + 12
    tmps = (Rb, Rc)

    def p2(ns):
        p2pk = PK[1] == '1'
        if ns == 2:
            for j in range(4):
                a(f'ds_read_b64 {vr(Rb + 2 * j, 2)}, v{vE0 + 3} offset:{1280 * j}')
            for h in range(2):
                a(f's_waitcnt lgkmcnt({2 - 2 * h})')
                for s in range(2):
                    a(f'v_pk_mov_b32 {vr(Ra + 4 * s + 2 * h, 2)}, {vr(Rb + 4 * h, 2)}, {vr(Rb + 4 * h + 2, 2)} op_sel:[{s},{s}]')
        else:
            a(f'ds_read2st64_b32 {vr(Ra, 2)}, v{vE0 + 3} offset0:0 offset1:5')
            a(f'ds_read2st64_b32 {vr(Ra + 2, 2)}, v{vE0 + 3} offset0:10 offset1:15')
            a('s_waitcnt lgkmcnt(0)')
        fine('p2', 'read')
        for s in range(ns):
            mfma32(RD + 8 * s, Ra + 4 * s, Fre)
            mfma32(RD + 8 * s + 4, Ra + 4 * s, Fim)
        fine('p2', 's1')
        for s in range(ns):
            cmul(tmps[s], tmps[s] + 4, RD + 8 * s, RD + 8 * s + 4, Tc, Ts, -1, pk=p2pk)
            pack4(Ra + 4 * s, tmps[s], tmps[s] + 4)
            mfma32(RD + 8 * s, Fre, Ra + 4 * s)
            mfma32(RD + 8 * s + 4, Fim, Ra + 4 * s)
        fine('p2', 's2')
        for s in range(ns):
            cmul(tmps[s], tmps[s] + 4, RD + 8 * s, RD + 8 * s + 4, vWr + 8 * s, vWr + 8 * s + 4, +1, pk=p2pk)
            pack4(Ra + 4 * s, tmps[s] + 4, tmps[s])
            mfma32(RD + 8 * s, Ra + 4 * s, Fim)
            mfma32(RD + 8 * s + 4, Ra + 4 * s, Fre)
        fine('p2', 's3')
        for s in range(ns):
            cmul(tmps[s], tmps[s] + 4, RD + 8 * s, RD + 8 * s + 4, Tc, Ts, +1, pk=p2pk)
            pack4(Ra + 4 * s, tmps[s] + 4, tmps[s])
            mfma32(RD + 8 * s, Fim, Ra + 4 * s)
            mfma32(RD + 8 * s + 4, Fre, Ra + 4 * s)
        fine('p2', 's4')
        for s in range(ns):
            pack4(Rb + s, RD + 8 * s, RD + 8 * s + 4, step=ns)
        if ns == 2:
            for r in range(4):
                a(f'ds_write_b64 v{vE0 + 3}, {vr(Rb + 2 * r, 2)} offset:{1280 * r}')
        else:
            a(f'ds_write2st64_b32 v{vE0 + 3}, v{Rb}, v{Rb + 1} offset0:0 offset1:5')
            a(f'ds_write2st64_b32 v{vE0 + 3}, v{Rb + 2}, v{Rb + 3} offset0:10 offset1:15')
        a('s_waitcnt lgkmcnt(0)')
    p2(2)
    a.label('L_b5')
    fine('p2', 'pre-B5')
    bar('B5')
    fine('p2', 'B5')
    a(f'ds_read_b128 {vr(Rb, 4)}, v{vE0 + 4}')
    a(f'ds_read_b128 {vr(Rb + 4, 4)}, v{vE0 + 4} offset:10240')
    a('s_waitcnt lgkmcnt(1)')
    a(f'global_store_dwordx4 v{vS}, {vr(Rb, 4)}, {sr(58)} sc1')
    a('s_waitcnt lgkmcnt(0)')
    a(f'global_store_dwordx4 v{vS}, {vr(Rb + 4, 4)}, {sr(60)} sc1')
    stamp('T2 stored')
    fine('p2', 'stored')
    late.append(lambda: (a.label('L_p2_one'), p2(1), a('s_branch L_b5')))
    a.label('L_p3prep')
    vGA, vVV, vGC, vGS = vVec, vVec + 10, vVec + 20, vVec + 30
    vMB = vE0 + 6
    for q in range(4):
        tab_read(vTW + 4 * q, T_TW3 + q)
    a(f'''
    v_add_u32 v{vMB}, {MODB_L}, v{vL4}
    v_bfe_u32 v36, v{vL}, 2, 2
    v_lshrrev_b32 v37, 4, v{vL}
    v_mad_u32_u24 v36, v37, {NJ}, v36
    v_and_b32 v38, 48, v{vL16}
    v_lshl_add_u32 v{vPoll}, v36, 14, v38
    v_mul_u32_u24 v37, {4 * SA}, v37
    v_add_u32 v37, {XB1 + 8 * 361}, v37
    v_cndmask_b32 v{vPairX}, v{vPair}, v37, {sr(sM8)}
    s_and_b64 {sr(sM8)}, {sr(sM8)}, {sr(sLn)}
    s_lshl_b32 s{sU1}, s{sMe}, 6
    s_min_u32 s{sT}, s{sW}, 5
    s_lshl_b32 s{sT}, s{sT}, 16
    s_add_u32 s{sU1}, s{sU1}, s{sT}
    ''')
    base_add(sBa, WS, sU1, T2_G)
    base_add(sBb, WS, sU1, T2_G + 4 * NJ * 16384)
    base_add(sXrow, OUTP, sRow)
    a(f's_mul_i32 s{sU0}, s{sMe}, {REC_STRIDE}')
    base_add(sRec, WS, sU0, REC_G)
    a(f'''
    v_mov_b32 v{vE0 + 7}, {hex(f2u(-1.0 / 640))}
    v_mov_b32 v{vM8F}, {hex(f2u(-1e-5))}
    v_mov_b32 v{vE0 + 3}, {KEYL}
    v_mov_b32 v{vE0 + 4}, 1
    ''')

    def p3_setup():
        raw = Rb
        for k in range(0, 24, 2):
            a(f'ds_read2st64_b32 {vr(raw + k, 2)}, v{vMB} offset0:{k} offset1:{k + 1}')
        a(f'ds_read_b32 v{raw + 24}, v{vMB} offset:{24 * 256}')
        a('s_waitcnt lgkmcnt(0)')
        for vec, dst in ((0, vGA), (1, vGS), (2, vGC), (4, vVV)):
            for j in range(5):
                unpack(dst + tm(j, 0), dst + tm(j, 1), raw + 5 * vec + j)
        GB = Rb
        for j in range(5):
            unpack(GB + tm(j, 0), GB + tm(j, 1), raw + 15 + j)
        t0, t1, t2 = Rc + 2, Rc + 4, Rc + 6
        dot10(t0, vVV, vGS)
        for h in range(0, 10, 2):
            a(f'v_pk_mul_f32 {vr(vVV + h, 2)}, {vr(vVV + h, 2)}, {vr(vGC + h, 2)}')
        sum10(t1, vVV)
        a(f'v_mov_b32 v{t2}, s{sM1B}')
        for h in range(0, 10, 2):
            a(f'v_pk_mul_f32 {vr(vGC + h, 2)}, {vr(vGC + h, 2)}, {vr(GB + h, 2)}')
            a(f'v_pk_fma_f32 {vr(vGS + h, 2)}, {vr(vGS + h, 2)}, {vr(GB + h, 2)}, {vr(t2, 2)} op_sel:[0,0,0] op_sel_hi:[1,1,0]')
        wave_sum([t1, t0], [sV1, sV2])

    if MATS == 0:
        p3_mats()
    a('s_waitcnt lgkmcnt(0)')
    bar('B5b')
    stamp('B5b done')
    fine('p2', 'B5b')
    if P3FIRST:
        p3_setup()
    else:
        a(f's_cmp_ge_u32 s{sIdx}, {NJ}')
        a(f's_cselect_b32 s{sCand}, 8, s{sW}')
        a(f's_cmp_lt_u32 s{sCand}, 6')
        a('s_cbranch_scc1 L_p3later')
        p3_setup()
        a.label('L_p3later')
    if DR2:
        a('s_waitcnt vmcnt(0)')
    if PACE2:
        a(f's_sleep {PACE2}')
    a(f's_cmp_ge_u32 s{sIdx}, {NJ}')
    a('s_cbranch_scc0 L_nob5c')
    bar('B5c')
    a.label('L_nob5c')
    a(f's_cmp_ge_u32 s{sW}, 6')
    a('s_cbranch_scc1 L_b6')
    stamp('T2 poll')
    fine('p2', 'T2 poll')

    def p3_behind():
        a(f's_cmp_lt_u32 s{sCand}, 6')
        a('s_cbranch_scc0 L_p3done')
        p3_setup()
        a.label('L_p3done')
    tpoll(tl, lanes_s=sr(sLn), between=None if P3FIRST else p3_behind)
    stamp('T2 in')
    fine('p3', 'T2 in')
    a(f'''
    v_swap_b32 v{Ra + 1}, v{Ra + 4}
    v_swap_b32 v{Ra + 3}, v{Ra + 6}
    ''')
    for n, r in ((0, Ra), (1, Ra + 4), (2, Ra + 2), (3, Ra + 6)):
        mfma16(RD + 4 * n, vM8I, r)
    for n in range(4):
        for jj in range(2):
            a(f'v_cvt_pk_bf16_f32 v{Rb + 2 * n + jj}, v{RD + 4 * n + 2 * jj + 1}, v{RD + 4 * n + 2 * jj}')
        a(f'ds_write_b64 v{vPairX if n == 3 else vPair}, {vr(Rb + 2 * n, 2)} offset:{8 * n}')
    a('s_waitcnt lgkmcnt(0)')
    a.label('L_b6')
    fine('p3', 'pre-B6')
    bar('B6')
    fine('p3', 'B6')
    for u in range(2):
        for r in (0, 2):
            a(f'ds_read2_b32 {vr(Rb + 4 * u + r, 2)}, v{vSg1 if u else vSg0} offset0:{80 * r} offset1:{80 * r + 80}')
    for ks in range(2):
        a(f's_waitcnt lgkmcnt({2 - 2 * ks})')
        for t in range(2):
            for e in range(2):
                d = RD + 8 * t + 4 * e
                mfma32(d, Rb + 4 * ks, vF32 + 16 * t + 8 * (1 - e) + 4 * ks, d if ks else None)
    fine('p3', 'mfma1 issued')
    for t, tmp in ((0, Ra), (1, Rc)):
        cmul(tmp, tmp + 4, RD + 8 * t, RD + 8 * t + 4, vTW + 8 * t, vTW + 8 * t + 4, +1, pk=PK[2] == '1', n=3)
        pack4(Rb + 4 * t, tmp, tmp + 4, n=3)
        a(f'v_mov_b32 v{Rb + 4 * t + 3}, 0')
    Y = RD
    mfma32(Y, vF20, Rb)
    mfma32(Y + 8, vF20 + 4, Rb)
    mfma32(Y + 4, vF20, Rb + 4)
    mfma32(Y + 8, vF20 + 8, Rb + 4, Y + 8)
    fine('p3', 'mfma2 issued')
    X1 = vXS
    s1, s2, s3, s4 = Ra, Ra + 1, Ra + 2, Ra + 3
    for k in range(10):
        a(f'v_fmac_f32 v{X1 + k}, v{Y + k}, v{vGA + k}')
        if k == 1:
            a(f'v_mul_f32 v{s2}, v{X1}, v{X1}')
            a(f'v_mul_f32 v{s3}, v{X1}, v{vVV}')
        if k >= 2:
            a(f'v_add_f32 v{s1}, v{X1 + k - 1}, v{X1 if k == 2 else s1}')
            a(f'v_fmac_f32 v{s2}, v{X1 + k - 1}, v{X1 + k - 1}')
            a(f'v_fmac_f32 v{s3}, v{X1 + k - 1}, v{vVV + k - 1}')
    a(f'v_fmac_f32 v{s3}, v{X1 + 9}, v{vVV + 9}')
    a(f'v_add_f32 v{s1}, v{X1 + 9}, v{s1}')
    a(f'v_fmac_f32 v{s2}, v{X1 + 9}, v{X1 + 9}')
    fine('p3', 'partials')
    a(f'''
    v_permlane32_swap_b32 v{s3}, v{s4}
    v_permlane32_swap_b32 v{s1}, v{s2}
    v_add_f32 v{s3}, v{s3}, v{s4}
    v_add_f32 v{s1}, v{s1}, v{s2}
    v_permlane16_swap_b32 v{s1}, v{s3}
    v_add_f32 v{s1}, v{s1}, v{s3}
    ''')
    for c in ('row_ror:8', 'row_ror:4', 'row_ror:2', 'row_ror:1'):
        dpp('v_add_f32', s1, c)
    a(f'''
    v_readlane_b32 s{sU0}, v{s1}, 0
    v_readlane_b32 s{sU2}, v{s1}, 32
    v_readlane_b32 s{sU3}, v{s1}, 16
    ''')
    fine('p3', 'reduced')
    k0 = Rc
    cE = vM8F
    cI, cK, cT, cO = vE0 + 7, vE0 + 3, Ra + 7, vE0 + 4
    m = Ra + 1
    a(f'''
    v_mul_f32 v{m + 2}, s{sU0}, v{cI}
    v_fma_f32 v{k0}, v{m + 2}, v{m + 2}, v{cE}
    v_mov_b32 v{m + 3}, s{sU3}
    v_fmac_f32 v{k0}, s{sU2}, v{cI}
    v_fmac_f32 v{m + 3}, s{sV1}, v{m + 2}
    v_rsq_f32_e64 v{k0}, -v{k0}
    v_mov_b32 v{cT}, s{sTag}
    s_mov_b64 exec, 1
    v_fma_f32 v{m + 3}, v{m + 3}, v{k0}, s{sV2}   ; r
    v_ashrrev_i32 v{m + 4}, 31, v{m + 3}
    v_or_b32 v{m + 4}, 0x80000000, v{m + 4}
    v_xor_b32 v{m + 3}, v{m + 3}, v{m + 4}
    v_and_b32 v{m + 3}, 0xfffff800, v{m + 3}
    v_or_b32 v{m + 3}, s{sKey}, v{m + 3}
    ds_max_u32 v{cK}, v{m + 3}
    ds_add_rtn_u32 v{m + 4}, v{cK}, v{cO} offset:8
    ds_read_b32 v{Ra + 6}, v{cK}
    v_readfirstlane_b32 s{sKey}, v{m + 3}
    s_waitcnt lgkmcnt(0)
    v_cmpx_eq_u32 vcc, 7, v{m + 4}
    s_cbranch_execz L_notlast
    global_store_dwordx2 v{vL4}, {vr(Ra + 6, 2)}, {sr(sRec)} sc1
    L_notlast:
    s_mov_b64 exec, -1
    ''')
    fine('p3', 'key')
    bar('B7')
    fine('p3', 'B7')
    a(f'''
    ds_read_b32 v{Ra + 6}, v{cK}
    v_mul_f32 v{k0 + 1}, v{m + 2}, v{k0}
    ''')
    ZN = vGA
    for h in range(0, 10, 2):
        a(f'v_pk_fma_f32 {vr(ZN + h, 2)}, {vr(X1 + h, 2)}, {vr(k0, 2)}, {vr(k0, 2)} op_sel:[0,0,1] op_sel_hi:[1,0,1]')
    vO = vXS

    def out_math():
        for h in range(0, 10, 2):
            a(f'v_pk_add_f32 {vr(Y + h, 2)}, {vr(X1 + h, 2)}, {vr(vGS + h, 2)}')
        for h in range(0, 10, 2):
            a(f'v_pk_fma_f32 {vr(Y + h, 2)}, {vr(ZN + h, 2)}, {vr(vGC + h, 2)}, {vr(Y + h, 2)}')
        if opt('inject', None):
            if opt('injall', None):
                for k in range(10):
                    a(f'v_mul_f32 v{Y + k}, {hex(f2u(1 + float(opt("inject", 0))))}, v{Y + k}')
            else:
                a(f's_cmp_eq_u32 s{sRow}, 0')
                a('s_cselect_b64 exec, 1, 0')
                a(f'v_add_f32 v{Y}, {hex(f2u(float(opt("inject", 0))))}, v{Y}')
                a('s_mov_b64 exec, -1')
        for j in range(5):
            a(f'v_cvt_pk_bf16_f32 v{vO + j}, v{Y + tm(j, 0)}, v{Y + tm(j, 1)}')
    a(f'''
    s_waitcnt lgkmcnt(0)
    v_readfirstlane_b32 s{sU0}, v{Ra + 6}
    s_cmp_eq_u32 s{sU0}, s{sKey}
    s_cselect_b32 s{sCand}, 1, 0
    s_cbranch_scc1 L_cand
    ''')
    out_math()
    a('s_branch L_keys')
    a.label('L_cand')
    raw, SB, CB, H, Bq = 60, 70, 80, 92, 108
    for k in range(0, 10, 2):
        a(f'ds_read2st64_b32 {vr(raw + k, 2)}, v{vMB} offset0:{5 + k} offset1:{6 + k}')
    for qd in range(4):
        a(f'v_mov_b32 v{H + 4 * qd + 3}, s{sTag}')
    a('s_waitcnt lgkmcnt(0)')
    for j in range(5):
        unpack(SB + tm(j, 0), SB + tm(j, 1), raw + j)
        unpack(CB + tm(j, 0), CB + tm(j, 1), raw + 5 + j)
    for t in range(2):
        for j in range(5):
            k = tm(j, t)
            a(f'v_fma_f32 v{H + 8 * t + j + (j >= 3)}, v{ZN + k}, v{CB + k}, v{SB + k}')
        for qd in range(2):
            a(f'global_store_dwordx4 v{vL16}, {vr(H + 8 * t + 4 * qd, 4)}, {sr(sRec)} offset:{REC_H2 + 2048 * t + 1024 * qd} sc1')
    out_math()

    def out_row():
        for j in range(5):
            a(f'global_store_dword v{vL4}, v{vO + j}, {sr(sXrow)} offset:{256 * j} sc1')
    out_row()
    a.label('L_keys')
    stamp('key out')
    fine('p3', 'key out')
    bar('B7b (candidate stores are out, the helpers have ended)')
    a(f'''
    s_cmp_ge_u32 s{sRi}, 20
    s_cselect_b32 s{sT}, 1, s{sCand}
    s_cmp_lg_u32 s{sT}, 0
    s_cbranch_scc1 L_noout
    ''')
    out_row()
    a('s_branch L_fin')
    a.label('L_noout')
    vEW, vFW = 48, 88
    vRed, vRd, vRow = 15, 16, 17
    a(f'''
    s_cmp_lt_u32 s{sRi}, 20
    s_cbranch_scc1 L_no_ew
    s_mul_i32 s{sT}, s{sW}, 5120
    s_add_u32 s{sT}, s{sT}, {EW}
    v_add_u32 v{Rb}, s{sT}, v{vL16}
    s_mul_i32 s{sT}, s{sW}, 320
    s_add_u32 s{sT}, s{sT}, {FW}
    v_min_u32 v{Rb + 1}, {39 * 8}, v{vE0}
    v_add_u32 v{Rb + 1}, s{sT}, v{Rb + 1}
    ''')
    for j in range(5):
        a(f'ds_read_b128 {vr(vEW + 20 + 4 * j, 4)}, v{Rb} offset:{1024 * j}')
    a(f'''
    v_and_b32 v{vRed}, 1, v{vL}
    v_lshlrev_b32 v{vRed}, 7, v{vRed}
    v_and_b32 v{vRd}, 48, v{vL}
    v_lshl_add_u32 v{vRed}, v{vRd}, 1, v{vRed}
    s_lshr_b32 s{sU1}, s{sW}, 2
    s_lshl_b32 s{sU1}, s{sU1}, 8
    s_and_b32 s{sT}, s{sW}, 3
    s_lshl_b32 s{sT}, s{sT}, 2
    s_add_u32 s{sU1}, s{sU1}, s{sT}
    s_add_u32 s{sU1}, s{sU1}, {RED}
    v_add_u32 v{vRed}, s{sU1}, v{vRed}
    v_and_b32 v{vRd}, 0xf0, v{vL16}
    v_bfe_u32 v{vRow}, v0, 2, 6                    ; lane' = (t'>>1)>>1
    v_bfe_u32 v18, v0, 1, 1                        ; t
    v_lshlrev_b32 v{vRow}, 4, v{vRow}
    v_lshl_add_u32 v{vRow}, v18, 11, v{vRow}
    v_add_u32 v{vRow}, {REC_G + REC_H2}, v{vRow}
    v_mov_b32 v18, 0xffffff00
    s_mul_i32 s{sU1}, s{sX}, 12
    s_add_u32 s{sU1}, s{sU1}, s{sRi}
    s_mul_i32 s{sU1}, s{sU1}, {PY_STRIDE}
    s_mul_i32 s{sT}, s{sW}, 640
    s_add_u32 s{sU1}, s{sU1}, s{sT}
    ''')
    base_add(sBb, WS, sU1, PY_G - 20 * PY_STRIDE)
    a('s_waitcnt lgkmcnt(0)')
    for k in range(20):
        unpack(vEW + 2 * k, vEW + 2 * k + 1, vEW + 20 + k)
    a(f's_cmp_ge_u32 s{sW}, 4')
    a('s_cbranch_scc1 L_no_ew')
    for u in range(16):
        if u == 8:
            a('s_waitcnt lgkmcnt(0)')
        a(f'ds_read_b64 {vr(vFW + 32 + 2 * u, 2)}, v{Rb + 1} offset:{1280 * u}')
    a('s_waitcnt lgkmcnt(0)')
    for k in range(32):
        unpack(vFW + 2 * k, vFW + 2 * k + 1, vFW + 32 + k)
    a.label('L_no_ew')
    a(f's_cmp_eq_u32 s{sCand}, 0')
    a('s_cbranch_scc1 L_nobase')
    Bq = 20
    a(f'v_add_u32 v19, {REC_BASE}, v{vL16}')
    for t in range(2):
        for j in range(5):
            a(f'v_mov_b32 v{Bq + 8 * t + j + (j >= 3)}, v{Y + tm(j, t)}')
        for qd in range(2):
            a(f'v_mov_b32 v{Bq + 8 * t + 4 * qd + 3}, s{sTag}')
    a('s_waitcnt vmcnt(0)')
    for t in range(2):
        for qd in range(2):
            a(f'global_store_dwordx4 v19, {vr(Bq + 8 * t + 4 * qd, 4)}, {sr(sRec)} offset:{2048 * t + 1024 * qd} sc1')
    a.label('L_nobase')
    a(f'''
    s_cmp_lt_u32 s{sRi}, 20
    s_cbranch_scc1 L_fin
    v_mov_b32 v{Rb + 2}, {KEYL + 4}
    s_cmp_lt_u32 s{sW}, 4
    s_cbranch_scc1 L_b8
    v_mul_u32_u24 v{Rb}, {REC_STRIDE}, v0
    v_add_u32 v{Rb}, {REC_G - 256 * REC_STRIDE}, v{Rb}
    ''')
    stamp('key poll')
    fine('e', 'key poll')
    poll([f'global_load_dwordx2 {vr(Rb + 4, 2)}, v{Rb}, {sr(WS)} sc1'], [Rb + 5], [], empty='word')
    for c in ('row_ror:8', 'row_ror:4', 'row_ror:2', 'row_ror:1'):
        dpp('v_max_u32', Rb + 4, c)
    a(f'''
    s_mov_b32 exec_lo, 0x00010001
    s_mov_b32 exec_hi, 0x00010001
    ds_max_u32 v{Rb + 2}, v{Rb + 4}
    s_mov_b64 exec, -1
    s_waitcnt lgkmcnt(0)
    ''')
    a.label('L_b8')
    fine('e', 'pre-B8')
    a('s_barrier                                   ; B8')
    a(f'''
    ds_read_b32 v{Rb + 3}, v{Rb + 2}
    s_movk_i32 s{sT}, {REC_STRIDE}
    s_waitcnt lgkmcnt(0)
    v_and_b32 v{Rb + 4}, 255, v{Rb + 3}
    v_mad_u32_u24 v{vRow}, v{Rb + 4}, s{sT}, v{vRow}
    ''')
    stamp('B8 done (winner)')
    fine('e', 'B8+')

    def late_out():
        a(f'v_readfirstlane_b32 s{sU0}, v{Rb + 3}')
        a(f's_cmp_lg_u32 s{sCand}, 0')
        a('s_cbranch_scc1 L_noout2')
        out_row()
        a('s_waitcnt vmcnt(5)')
        a.label('L_noout3')
        late.append(lambda: (a.label('L_noout2'), a('s_waitcnt vmcnt(0)'), a('s_branch L_noout3')))
    poll([f'global_load_dwordx4 v[20:23], v{vRow}, {sr(WS)} sc1',
          f'global_load_dwordx4 v[24:27], v{vRow}, {sr(WS)} offset:1024 sc1'], [23, 27], [30, 32], empty='word',
         between=late_out, younger=63)
    stamp('row in')
    fine('e', 'row in')
    acc = 36
    for j in range(5):
        for k in range(4):
            w_ = vr(vEW + 8 * j + 2 * k, 2)
            xr = 20 + j + (j >= 3)
            x_ = vr(xr & ~1, 2)
            if j == 0:
                a(f'v_pk_mul_f32 {vr(acc + 2 * k, 2)}, {w_}, {x_} op_sel:[0,0] op_sel_hi:[1,0]')
            else:
                a(f'v_pk_fma_f32 {vr(acc + 2 * k, 2)}, {w_}, {x_}, {vr(acc + 2 * k, 2)} {BC1 if xr & 1 else BC0}')
    swap_reduce8(acc)
    for c in ('row_ror:8', 'row_ror:4', 'row_ror:2'):
        dpp('v_add_f32', acc, c)
        dpp('v_add_f32', acc + 1, c)
    a(f'''
    s_mov_b32 exec_lo, 0x00030003
    s_mov_b32 exec_hi, 0x00030003
    ds_write2_b32 v{vRed}, v{acc}, v{acc + 1} offset0:0 offset1:4
    s_mov_b64 exec, -1
    s_cmp_ge_u32 s{sW}, 4
    s_waitcnt lgkmcnt(0)
    ''')
    fine('e', 'pre-B9')
    bar('B9')
    fine('e', 'B9')
    a(f'''
    s_cbranch_scc1 L_e_done
    ds_read_b128 v[20:23], v{vRd} offset:{RED}
    ds_read_b128 v[24:27], v{vRd} offset:{RED + 256}
    s_waitcnt lgkmcnt(0)
    v_pk_add_f32 v[20:21], v[20:21], v[22:23]
    v_pk_add_f32 v[24:25], v[24:25], v[26:27]
    v_add_f32 v20, v20, v21
    v_add_f32 v24, v24, v25
    v_mul_f32 v21, 0xbfb8aa3b, v20
    v_exp_f32 v21, v21
    v_mul_f32 v20, v20, v24
    v_add_f32 v21, 1.0, v21
    v_rcp_f32 v21, v21
    v_mul_f32 v20, v20, v21
    ''')
    fine('e', 'gu')
    sG = 8
    for u in range(16):
        a(f'v_readlane_b32 s{sG + u}, v20, {u}')
    for u in range(16):
        for hh in range(2):
            w_ = vr(vFW + 4 * u + 2 * hh, 2)
            g_ = sr(sG + (u & ~1))
            d_ = vr(36 + 2 * hh, 2)
            if u == 0:
                a(f'v_pk_mul_f32 {d_}, {w_}, {g_} op_sel:[0,0] op_sel_hi:[1,0]')
            else:
                a(f'v_pk_fma_f32 {d_}, {w_}, {g_}, {d_} {BC1 if u & 1 else BC0}')
    for k in range(4):
        a(f'v_and_or_b32 v{36 + k}, v{36 + k}, v18, s{sTB + k}')
    a('s_mov_b32 exec_hi, 0xff')
    a(f'global_store_dwordx4 v{vL16}, v[36:39], {sr(sBb)} sc1')
    a('s_mov_b64 exec, -1')
    stamp('PY out')
    fine('e', 'PY out')
    a('s_waitcnt vmcnt(0)')
    a.label('L_e_skip')
    bar('B10')
    a('s_branch L_fin')
    a.label('L_e_done')
    a(f'''
    s_mul_i32 s{sU2}, s{sX}, 10
    s_add_u32 s{sU2}, s{sU2}, s{sRi}
    s_sub_u32 s{sU2}, s{sU2}, 20                   ; f
    s_cmp_lg_u32 s{sW}, 5
    s_cbranch_scc1 L_e_skip
    s_cmp_ge_u32 s{sRi}, 30
    s_cbranch_scc1 L_e_skip
    s_and_b32 s{sU1}, s{sU0}, 255
    s_mul_i32 s{sU1}, s{sU1}, {REC_STRIDE}
    ''')
    base_add(sBa, WS, sU1, REC_G)
    a(f'''
    v_and_b32 v20, 1, v{vL}
    v_lshrrev_b32 v21, 4, v{vL}
    v_lshl_add_u32 v20, v20, 2, v21
    s_lshl_b32 s{sT}, s{sU2}, 3
    v_add_u32 v20, s{sT}, v20                      ; d
    v_lshlrev_b32 v21, 1, v20
    v_add_u32 v21, {MODB_L + 3840}, v21
    v_mov_b32 v22, 0
    ds_read_u16_d16_hi v22, v21                    ; gb[d]
    s_lshr_b32 s{sU3}, s{sU2}, 4                   ; j
    s_cmp_ge_u32 s{sU3}, 3
    s_cselect_b32 s{sT}, 3, 0
    s_sub_u32 s{sU3}, s{sU3}, s{sT}
    s_mul_i32 s{sT}, s{sT}, 342
    s_and_b32 s{sT}, s{sT}, 1024
    s_add_u32 s{sT}, s{sT}, {REC_BASE}
    v_bfe_u32 v24, v20, 1, 6                       ; lane'
    v_and_b32 v25, 1, v20                          ; t
    v_lshlrev_b32 v26, 11, v25
    v_lshl_add_u32 v26, v24, 4, v26
    v_add_u32 v26, s{sT}, v26
    ''')
    poll([f'global_load_dwordx4 v[32:35], v26, {sr(sBa)} sc1'], [35], [], empty='word')
    a(f'''
    s_cmp_eq_u32 s{sU3}, 1
    s_cselect_b64 vcc, -1, 0
    v_cndmask_b32 v27, v32, v33, vcc
    s_cmp_eq_u32 s{sU3}, 2
    s_cselect_b64 vcc, -1, 0
    v_cndmask_b32 v27, v27, v34, vcc
    ''')
    a(f'''
    s_and_b32 s{sU1}, s{sU0}, 0xfffff800
    s_or_b32 s{sU1}, s{sU1}, 0x400
    s_xor_b32 s{sU3}, s{sU1}, 0x80000000
    s_not_b32 s{sT}, s{sU1}
    s_cmp_lt_i32 s{sU1}, 0
    s_cselect_b32 s{sU1}, s{sU3}, s{sT}
    v_mov_b32 v28, s{sU1}
    ''')
    a(f'''
    v_mul_f32 v28, 0xbfb8aa3b, v28
    v_exp_f32 v28, v28
    v_add_f32 v28, 1.0, v28
    v_rcp_f32 v28, v28
    ''')
    a(f'''
    s_and_b32 s{sU1}, s{sU0}, 0x7ff
    s_mul_i32 s{sU1}, s{sU1}, 1280
    v_lshlrev_b32 v20, 1, v20
    v_lshrrev_b32 v29, 1, v{vL}
    v_mul_u32_u24 v29, {PY_STRIDE}, v29
    v_and_b32 v30, 16, v{vL16}
    v_add_u32 v29, v29, v30
    v_add_u32 v30, {32 * PY_STRIDE}, v29
    v_add_u32 v31, {64 * PY_STRIDE}, v29
    s_lshl_b32 s{sU2}, s{sU2}, 5
    ''')
    base_add(sXrow, OUTP, sU1)
    base_add(sBb, WS, sU2, PY_G)
    a('s_waitcnt lgkmcnt(0)')
    a('v_mul_f32 v22, v22, v28')
    bar('B10')
    stamp('PY poll')
    fine('e', 'PY poll')
    poll([f'global_load_dwordx4 {vr(36 + 4 * n, 4)}, v{29 + n}, {sr(sBb)} sc1' for n in range(3)],
         list(range(36, 48)), [48, 49], empty='tag')
    a(f'''
    v_pk_add_f32 v[36:37], v[36:37], v[40:41]
    v_pk_add_f32 v[38:39], v[38:39], v[42:43]
    v_pk_add_f32 v[36:37], v[36:37], v[44:45]
    v_pk_add_f32 v[38:39], v[38:39], v[46:47]
    v_permlane32_swap_b32 v36, v38
    v_permlane32_swap_b32 v37, v39
    v_pk_add_f32 v[36:37], v[36:37], v[38:39]
    v_permlane16_swap_b32 v36, v37
    v_add_f32 v36, v36, v37
    ''')
    for c in ('row_ror:8', 'row_ror:4', 'row_ror:2'):
        dpp('v_add_f32', 36, c)
    a(f'''
    v_fma_f32 v36, v36, v22, v27
    v_cvt_pk_bf16_f32 v36, v36, v36
    s_mov_b32 exec_lo, 0x00030003
    s_mov_b32 exec_hi, 0x00030003
    global_store_short v20, v36, {sr(sXrow)}
    s_mov_b64 exec, -1
    ''')
    a.label('L_fin')
    stamp('end')
    fine('e', 'end')
    if FINE:
        a('s_waitcnt lgkmcnt(0)')
    dump_stamps()
    a.label('L_end')
    a('s_endpgm')
    flush_late()


sF1, sF2, sPb, sGw, sWb = 56, 58, 60, 62, 64


def publish():
    a(f'''
    ds_read_b128 v[40:43], v28 offset:{RED}
    ds_read_b128 v[44:47], v28 offset:{RED + 16}
    s_waitcnt lgkmcnt(0)
    v_pk_add_f32 v[40:41], v[40:41], v[42:43]
    v_pk_add_f32 v[44:45], v[44:45], v[46:47]
    v_add_f32 v40, v35, v40
    v_pk_add_f32 v[40:41], v[40:41], v[44:45]
    v_add_f32 v40, v40, v41
    v_and_or_b32 v40, v40, v33, v34
    global_store_dword v{vL4}, v40, {sr(sPb)} sc1
    ''')
    stamp('published', 'H0')


def w_addr():
    a(f'''
    s_mul_i32 s{sU1}, s{sIdx}, 15
    s_min_u32 s{sU1}, s{sU1}, 306
    s_add_u32 s{sT}, s{sU1}, s{sX}
    s_and_b32 s{sT}, s{sT}, 1
    s_sub_u32 s{sU1}, s{sU1}, s{sT}
    s_mul_i32 s{sU0}, s{sX}, 321
    s_add_u32 s{sU1}, s{sU1}, s{sU0}
    s_lshl_b32 s{sU1}, s{sU1}, 1
    v_lshrrev_b32 v90, 1, v{vL}
    v_mul_u32_u24 v90, 5136, v90
    v_lshlrev_b32 v91, 1, v{vL}
    v_xor_b32 v91, v{vL16}, v91
    v_and_b32 v91, 16, v91
    v_add3_u32 v100, v90, v91, s{sU1}
    ''')


def w_gather(arr, lds):
    for n in range(8):
        a(f's_mov_b32 m0, {lds + 1024 * n}')
        a(f'global_load_lds_dwordx4 v100, {sr(arr)}')
        if n < 7:
            a(f'v_add_u32 v100, {32 * 5136}, v100')


def mask_lanes(n):
    if n >= 64:
        return
    if n > 32:
        a(f's_mov_b32 exec_hi, {hex((1 << (n - 32)) - 1)}')
    else:
        a(f's_mov_b64 exec, {hex((1 << n) - 1)}')


def warm_addr_w():
    a(f'''
    s_sub_u32 s{sU0}, s{sRi}, 10
    s_mul_i32 s{sU3}, s{sU0}, 70
    s_movk_i32 s{sU2}, 0x2aab
    s_mul_i32 s{sU1}, s{sX}, 642
    s_movk_i32 s{sT}, 5136
    ''')
    for n in range(2):
        a(f'''
        v_add_u32 v90, s{sU3}, v{vL}
        v_add_u32 v90, {35 * n}, v90
        v_min_u32 v90, 1535, v90
        v_mul_u32_u24 v91, s{sU2}, v90
        v_lshrrev_b32 v91, 16, v91
        v_mul_u32_u24 v92, 6, v91
        v_sub_u32 v92, v90, v92
        v_lshlrev_b32 v92, 7, v92
        v_min_u32 v92, 638, v92
        v_add_u32 v92, s{sU1}, v92
        v_mad_u32_u24 v92, v91, s{sT}, v92
        v_and_b32 v{120 + n}, -4, v92
        ''')


def ffn_parts(slot):
    return [(n, k) for n in range(3) if S_W[n] == slot for k in range(1 if slot == 0 else 2)]


def warm_addr_f(h, slot):
    f, per, lanes = (10, 44, 44) if slot == 0 else (NJ, 96, 48)
    if not ffn_parts(slot):
        return
    a(f'''
    s_sub_u32 s{sU0}, s{sRi}, {f}
    s_mul_i32 s{sU3}, s{sU0}, {per}
    s_mul_i32 s{sU1}, s{sX}, 384
    s_movk_i32 s{sU2}, 0x5556
    s_movk_i32 s{sT}, {3072 - 384}
    s_mul_i32 s{sU0}, s{sX}, 245760
    ''')
    for n, k in ffn_parts(slot):
        d = 130 + 2 * n + k
        a(f'''
        v_add_u32 v90, s{sU3}, v{vL}
        v_add_u32 v90, {lanes * k}, v90
        v_min_u32 v90, 959, v90
        v_add_u32 v90, {960 * (n if n < 2 else h)}, v90
        ''')
        if n < 2:
            a(f'''
            v_mul_u32_u24 v91, s{sU2}, v90
            v_lshrrev_b32 v91, 16, v91
            v_lshl_add_u32 v90, v90, 7, s{sU1}
            v_mad_u32_u24 v{d}, v91, s{sT}, v90
            ''')
        else:
            a(f'v_lshl_add_u32 v{d}, v90, 7, s{sU0}')


def warm_issue(h, slot, sel=None):
    if slot == 0:
        mask_lanes(35)
        for n in range(2):
            a(f'global_load_dword v125, v{120 + n}, {sr(W_R if h else W_I)}')
    ps = ffn_parts(slot) if sel is None else sel
    if ps:
        mask_lanes(44 if slot == 0 else 48)
    for n, k in ps:
        a(f'global_load_dword v125, v{130 + 2 * n + k}, {sr(W_D if n == 2 else (W_G if h else W_U))}')
    a('s_mov_b64 exec, -1')


def e_addr(mat):
    a(f'''
    s_max_u32 s{sU1}, s{sRi}, 20
    s_mul_i32 s{sU0}, s{sX}, 12
    s_add_u32 s{sU0}, s{sU0}, s{sU1}
    s_sub_u32 s{sU0}, s{sU0}, 20
    s_mul_i32 s{sU1}, s{sU0}, 20480
    s_lshl_b32 s{sU0}, s{sU0}, 5
    v_lshrrev_b32 v128, 1, v{vL}
    v_mul_u32_u24 v128, 3072, v128
    v_and_b32 v90, 16, v{vL16}
    v_add_u32 v128, v128, v90
    ''')
    base_add(sF1, mat, sU0)
    base_add(sGw, W_D, sU1, 10240 if mat == W_U else 0)


def if_e(f):
    L = newlabel('ne')
    a(f's_cmp_lt_u32 s{sRi}, 20')
    a(f's_cbranch_scc1 {L}')
    f()
    a.label(L)


def e_gather(half, n0, n1):
    for n in range(n0, n1):
        a(f's_mov_b32 m0, {EW + (n % 4 + 4 * half) * 5120 + (n // 4) * 1024}')
        a(f'global_load_lds_dwordx4 v128, {sr(sF1)}')
        if n < 19:
            a(f'v_add_u32 v128, {32 * 3072}, v128')


def wd_load(half):
    for n in range(10):
        if n % 4 == 0:
            a(f's_mov_b32 m0, {FW + half * 10240 + n * 1024}')
            a(f'v_add_u32 v90, {1024 * n}, v{vL16}')
        a(f'global_load_lds_dwordx4 v90, {sr(sGw)} offset:{1024 * (n % 4)}')


def touch_small():
    if True:
        a(f's_mul_i32 s{sU0}, s{sMe}, {REC_STRIDE}')
        base_add(sBa, WS, sU0, REC_G)
        a(f'''
        s_mov_b64 exec, 0xff
        global_store_dwordx4 v{vL16}, v[20:23], {sr(sBa)} sc1
        s_mov_b64 exec, -1
        ''')
    if True:
        def f():
            a(f'''
            s_mul_i32 s{sU1}, s{sX}, 12
            s_add_u32 s{sU1}, s{sU1}, s{sRi}
            s_mul_i32 s{sU1}, s{sU1}, {PY_STRIDE}
            ''')
            base_add(sBa, WS, sU1, PY_G - 20 * PY_STRIDE)
            a(f'''
            global_store_dwordx4 v{vL16}, v[20:23], {sr(sBa)} sc1
            global_store_dwordx4 v{vL16}, v[20:23], {sr(sBa)} offset:1024 sc1
            s_mov_b32 exec_hi, 0
            global_store_dwordx4 v{vL16}, v[20:23], {sr(sBa)} offset:2048 sc1
            s_mov_b64 exec, -1
            ''')
        if_e(f)


def helper_tail(h, P, red_load, red_work, modf_load, modf_work):
    bar('BT')
    bar('BP')
    a(f's_cmp_ge_u32 s{sIdx}, {NJ}')
    a(f's_cbranch_scc1 L_idle{h}')
    bar('B2')
    red_load()
    w_gather(W_R if h else W_I, WST + (0 if h else 8192))
    bar('B3')
    a('s_waitcnt vmcnt(0)')
    stamp('W in', P)
    bar('B3b')
    if h == 0:
        touch_small()
    red_work()
    bar('B4')
    a('s_waitcnt vmcnt(0)')
    modf_load()
    if EG3:
        if_e(lambda: e_gather(1 - h, 0, EG3))
    bar('B5')
    if h == 0:
        a(f's_cmp_lt_u32 s{sRi}, 20')
        a(f's_waitcnt vmcnt({EG3})')
        a('s_cbranch_scc0 L_h0_m')
        a('s_waitcnt vmcnt(0)')
        a.label('L_h0_m')
    modf_work()
    bar('B5b')
    bar('B6')
    if_e(lambda: (e_gather(1 - h, EG3, 20), wd_load(1 - h)))
    if h == 0:
        a(f'''
        s_cmp_lg_u32 s2, 8
        s_cbranch_scc1 L_h0_ne
        v_mov_b32 v26, {EPOCH_G}
        s_mov_b64 exec, 1
        global_store_dword v26, v27, {sr(WS)} sc1
        s_mov_b64 exec, -1
        ''')
        a.label('L_h0_ne')
    a.label(f'L_hend{h}')
    bar('B7')
    a('s_waitcnt vmcnt(0)')
    stamp('end', P)
    dump_stamps(P)
    a('s_endpgm')
    a.label(f'L_idle{h}')
    warm_addr_f(h, 7)
    ps = ffn_parts(7)
    can = [f'global_load_dword v113, v110, {sr(WS)} sc1']
    if h == 1:
        a(f'''
        v_add_u32 v110, s{sIdx}, v{vL}
        v_and_b32 v110, 7, v110
        v_mul_u32_u24 v110, {NJ}, v110
        v_lshrrev_b32 v111, 3, v{vL}
        v_mad_u32_u24 v110, v111, 5, v110
        v_lshlrev_b32 v110, 14, v110
        s_lshl_b32 s{sU0}, s{sMe}, 6
        s_add_u32 s{sU0}, s{sU0}, {T2_G + CANJ * 16384 + 60}
        v_add_u32 v110, s{sU0}, v110
        ''')
        assert CANJ + 5 * max(NCAN // 8 - 1, 0) < NJ
    bar('B2')
    red_load()
    if h == 1:
        mask_lanes(NCAN)
        a(can[0])
        a('s_mov_b64 exec, -1')
    warm_issue(h, 7, ps[:EARLY])
    bar('B3')
    bar('B3b')
    warm_issue(h, 7, ps[EARLY:])
    if h == 0:
        a(f's_waitcnt vmcnt({len(ps)})')
        red_work()
        touch_small()
    nd = sum(1 for n, k in ps[EARLY:] if n == 2)
    a(f's_waitcnt vmcnt({nd + (4 if h == 0 else 0)})')
    stamp('warm in', P)
    e_gather(1 - h, 0, MF)
    modf_load()
    e_gather(1 - h, MF, IEG)
    if IWD == 0:
        wd_load(1 - h)
    if h == 0:
        a(f's_waitcnt vmcnt({IEG - MF + 10 * (IWD == 0)})')
    modf_work()
    bar('B5b')
    a('s_waitcnt vmcnt(0)')
    stamp('ffn in', P)
    if h == 1:
        poll(can, [113], [], mask=NCAN, empty='word')
        stamp('can', P)
    bar('B5c')
    bar('B6')
    e_gather(1 - h, IEG, 20)
    if IWD:
        wd_load(1 - h)
    a(f's_branch L_hend{h}')
    flush_late()


def helper0():
    a.label('L_h0')
    a(f'''
    v_mov_b32 v20, 0
    v_mov_b32 v21, 0
    v_mov_b32 v22, 0
    v_mov_b32 v23, 0
    v_mov_b32 v28, {KEYL}
    ds_write_b128 v28, v[20:23]
    ''')
    blk_id(sCand)
    warm_addr_w()
    warm_addr_f(0, 0)
    a(f'''
    s_lshl_b32 s{sU2}, s{sCand}, 8
    v_lshlrev_b32 v28, 5, v{vL}
    s_cmp_lt_u32 s{sRi}, 10
    s_waitcnt lgkmcnt(0)
    ''')
    epoch_load()
    a('s_cbranch_scc1 L_h0_s0')
    warm_issue(0, 0)
    a.label('L_h0_s0')
    stamp('kernarg', 'H0')
    base_add(sPb, WS, sU2)
    if True:
        a(f's_cmp_lt_u32 s{sRi}, 10')
        a('s_cbranch_scc0 L_h0_s2')
        a(f'global_store_dword v{vL4}, v20, {sr(sPb)} sc1')
        a('s_waitcnt vmcnt(0)')
        a.label('L_h0_s2')
    e_addr(W_U)
    w_addr()
    a('s_waitcnt lgkmcnt(0)')
    epoch_tag()
    tag_bytes()
    a(f'''
    v_mov_b32 v27, s{sTag}
    v_lshlrev_b32 v34, 3, v{vL}
    v_add_u32 v29, {MODB_L}, v34
    v_and_b32 v34, 24, v34
    v_bfe_u32 v34, v27, v34, 8
    v_mov_b32 v33, 0xffffff00
    s_sub_u32 s{sU0}, s{sCand}, 40
    s_sub_u32 s{sU1}, s{sCand}, 160
    s_min_u32 s{sU0}, s{sU0}, s{sU1}
    s_cmp_lt_u32 s{sU0}, 40
    s_cselect_b32 s{sU1}, 1.0, 0
    s_and_b32 s{sU0}, s{sCand}, 3
    s_cselect_b32 s{sU1}, 0, s{sU1}
    v_mov_b32 v35, s{sU1}
    v_add_u32 v30, {MODF_G}, v{vL16}
    v_add_u32 v31, {MODF_G + 4096}, v{vL16}
    v_add_u32 v32, {MODF_G + 8192}, v{vL16}
    s_cmp_lt_u32 s{sRi}, 30
    ''')
    bar('B1')
    a('s_cbranch_scc0 L_h0_np')
    publish()
    a(f's_cmp_lt_u32 s{sRi}, 10')
    a('s_cbranch_scc0 L_h0_np')
    a('s_waitcnt vmcnt(0)')
    a.label('L_h0_np')
    red = [f'global_load_dwordx4 v[40:43], v{vL16}, {sr(sPb)} sc1']
    modf = [f'global_load_dwordx4 {vr(40 + 4 * n, 4)}, v{30 + n // 4}, {sr(WS)} offset:{1024 * (n % 4)} sc1' for n in range(10)]

    def in_w1(k):
        L = newlabel('nr')
        a(f'''
        s_sub_u32 s{sT}, s{sRi}, 10
        s_cmp_lt_u32 s{sT}, 20
        s_cbranch_scc0 {L}
        s_and_b32 s{sT}, s{sCand}, 3
        s_cbranch_scc1 {L}
        ''')
        if k == 0:
            a(red[0])
            a.label(L)
            return
        poll(red, [40, 41, 42, 43], [44], empty='tag', issued=True, younger=63)
        a(f'''
        v_mov_b32 v44, v40
        v_mov_b32 v45, v41
        v_mov_b32 v46, v42
        v_mov_b32 v47, v43
        s_lshr_b32 s{sU0}, s{sCand}, 2
        s_lshl_b32 s{sU0}, s{sU0}, 8
        s_add_u32 s{sU0}, s{sU0}, {MODF_G - 20 * 256}
        ''')
        for sw in ('32', '16'):
            for r in range(4):
                a(f'v_permlane{sw}_swap_b32 v{40 + r}, v{44 + r}')
            a('v_pk_add_f32 v[40:41], v[40:41], v[44:45]')
            a('v_pk_add_f32 v[42:43], v[42:43], v[46:47]')
            if sw == '32':
                for r in range(4):
                    a(f'v_mov_b32 v{44 + r}, v{40 + r}')
        a(f'''
        v_cvt_pk_bf16_f32 v44, v40, v41
        v_cvt_pk_bf16_f32 v45, v42, v43
        v_mov_b32 v47, s{sTag}
        v_add_u32 v48, s{sU0}, v{vL16}
        s_mov_b64 exec, 0xffff
        global_store_dwordx4 v48, v[44:47], {sr(WS)} sc1
        s_mov_b64 exec, -1
        ''')
        stamp('reduced', 'H0')
        a.label(L)

    def in_w2(k):
        if k == 0:
            for ld in modf:
                a(ld)
            return
        poll(modf, [43 + 4 * n for n in range(10)], list(range(80, 90)), empty='words', issued=True, younger=63)
        for n in range(10):
            a(f'ds_write_b64 v29, {vr(40 + 4 * n, 2)} offset:{512 * n}')
        a('s_waitcnt lgkmcnt(0)')
        stamp('modb in', 'H0')
    helper_tail(0, 'H0', lambda: in_w1(0), lambda: in_w1(2), lambda: in_w2(0), lambda: in_w2(1))


def helper1():
    a.label('L_h1')
    a(f'''
    s_getpc_b64 {sr(sBa)}
    L_pc:
    s_add_u32 s{sBb}, s{sBa}, L_tables-L_pc
    s_addc_u32 s{sBb + 1}, s{sBa + 1}, 0
    ''')

    def tabs(q0, q1):
        for q in range(q0, q1):
            if q % 4 == 0 or q == q0:
                a(f's_mov_b32 m0, {TAB + (q & ~3) * 1024}')
                a(f'v_add_u32 v20, {(q & ~3) * 1024}, v{vL16}')
            a(f'global_load_lds_dwordx4 v20, {sr(sBb)} offset:{1024 * (q % 4)}')

    def tab2():
        tabs(NT1, NTAB)
        a(f'''
        s_mov_b32 m0, {WR_L}
        global_load_lds_dwordx4 v{vL16}, {sr(B_WR)}
        s_mov_b64 exec, 0xffff
        global_load_lds_dwordx4 v{vL16}, {sr(B_WR)} offset:1024
        s_mov_b64 exec, -1
        ''')
        return NTAB - 14 + 2

    a(f's_cmp_lt_u32 s{sRi}, 10')
    a('s_cbranch_scc1 L_h1_a')
    warm_addr_w()
    warm_addr_f(1, 0)
    a('s_waitcnt lgkmcnt(0)')
    epoch_load()
    tabs(0, NT1)
    tab2()
    warm_issue(1, 0)
    e_addr(W_G)
    w_addr()
    a('s_waitcnt lgkmcnt(0)')
    epoch_tag()
    bar('B1')
    a(f's_waitcnt vmcnt({min(BGWAIT, 2 + len(ffn_parts(0)))})')
    a('s_branch L_h1_u')
    a.label('L_h1_a')
    w_addr()
    a('s_waitcnt lgkmcnt(0)')
    e_addr(W_G)
    bar('B1')
    tabs(0, NT1)
    tab2()
    a('s_waitcnt vmcnt(0)')
    a.label('L_h1_u')
    stamp('tab in', 'H1')
    nop = lambda: None
    helper_tail(1, 'H1', nop, nop, nop, nop)


prologue()
main_path()
helper0()
helper1()
body = a.finish()

hdr = open(f'cdna_kernels/{NAME}.s.ref').read().split('; Override launch')[0]
T = tables()
tab = []
flat = T.reshape(-1)
for k in range(0, flat.size, 8):
    tab.append('.long ' + ','.join('0x%08x' % v for v in flat[k:k + 8]))

launch = f'; @launch grid=(256,1,1) block=(640,1,1) lds={LDS_BYTES}'
pre_code = pre_kd = ''
if PRE:
    launch = f'; @launch kernel=pre_kernel grid=({PRE},1,1) block=(64,1,1) lds=0\n; @launch kernel={NAME}_kernel grid=(256,1,1) block=(640,1,1) lds={LDS_BYTES}'
    pre_code = '.globl pre_kernel\n.p2align 8\n.type pre_kernel,@function\npre_kernel:\n    s_endpgm\n'
    pre_kd = '''.p2align 6
.amdhsa_kernel pre_kernel
  .amdhsa_next_free_vgpr 8
  .amdhsa_next_free_sgpr 16
  .amdhsa_accum_offset 8
  .amdhsa_group_segment_fixed_size 0
  .amdhsa_kernarg_size 104
  .amdhsa_user_sgpr_count 2
  .amdhsa_user_sgpr_kernarg_segment_ptr 1
  .amdhsa_system_sgpr_workgroup_id_x 1
.end_amdhsa_kernel
'''
src = hdr + f'''{launch}
.amdgcn_target "amdgcn-amd-amdhsa--gfx950"
.text
{pre_code}.globl {NAME}_kernel
.p2align 8
.type {NAME}_kernel,@function
{NAME}_kernel:
{body}
.p2align 8
.type L_tables,@object
L_tables:
''' + '\n'.join(tab) + f'''
.size L_tables, {NTAB * 1024}
.fill (8192 - ((. - {NAME}_kernel) & 8191)) & 8191, 1, 0
L_tables_end:
.section .rodata,"a"
.p2align 6
.amdhsa_kernel {NAME}_kernel
  .amdhsa_next_free_vgpr 168
  .amdhsa_next_free_sgpr 102
  .amdhsa_accum_offset 168
  .amdhsa_group_segment_fixed_size 0
  .amdhsa_kernarg_size 104
  .amdhsa_user_sgpr_count 2
  .amdhsa_user_sgpr_kernarg_segment_ptr 1
  .amdhsa_system_sgpr_workgroup_id_x 1
.end_amdhsa_kernel
{pre_kd}'''
open(OUT, 'w').write(src)
print('wrote', OUT, 'lds', LDS_BYTES, 'lines', len(a.lines), 'nops', a.nnops)
```

```python
import sys, struct
import numpy as np
from asmdsl import Asm

NAME = 'adaLN_cond__spectral_gfnet__moe_arch_mod__prompt'
DIAG = '--diag' in sys.argv or '--dbgdiag' in sys.argv
DBGDIAG = '--dbgdiag' in sys.argv
OUT = [a for a in sys.argv[1:] if not a.startswith('--')]
OUT = OUT[0] if OUT else f'cdna_kernels/{NAME}.s'
SPIN = 60000


def opt(name, default):
    for x in reversed(sys.argv):
        if x.startswith(f'--{name}='):
            return x.split('=', 1)[1]
    return default


PROBE = opt('probe', None)
PROBEWG = int(opt('probewg', 8))
FINE = opt('fine', None)
if PROBE or FINE:
    DIAG = True
PRE = None
INPOL = 'nt'
S_W = [int(x) for x in opt('sw', '770')]
EG3 = int(opt('eg3', 10))
PACE1 = int(opt('pace1', 0))
PACE2 = int(opt('pace2', 0))
PK = opt('pk', '110')
P3FIRST = int(opt('p3first', 1))
WFIRST = int(opt('wfirst', 1))
DR1 = int(opt('dr1', 1))
DR2 = int(opt('dr2', 1))
BGWAIT = int(opt('bgwait', 9))
EARLY = int(opt('early', 2))
MATS = int(opt('mats', 2))
IEG = int(opt('ieg', 16))
IWD = int(opt('iwd', 1))
MF = int(opt('mf', 10))
MR = int(opt('mr', 0))
BLOAD = int(opt('bload', 0))
P2ORD = int(opt('p2ord', 1))
GLATE = int(opt('glate', 0))
B0 = int(opt('b0', 0))
FWL = int(opt('fwl', 1))
KP = int(opt('kp', 1))
PF = int(opt('pf', 0))
XL = int(opt('xl', 0))
WC = int(opt('wc', 0))
KD = int(opt('kd', 1))
ISEQ = int(opt('iseq', 0))
RE = int(opt('re', 1))
NCAN = int(opt('ncan', 1))
CANJ = int(opt('canj', 12))
NJ = 22
T1S = 8 * NJ * 64

MODA_G = 0
MODF_G = 61440
EPOCH_G = 73728
PY_G = 0x20000
PY_STRIDE = 2688
REC_G = 0x80000
REC_STRIDE = 8320
REC_H2 = 128
REC_BASE = 128 + 4096
T1_G = 0x400000
T2_G = 0x800000
DIAG_G = 0xC00000

NTAB = 26
TAB = 0
RED = TAB + NTAB * 1024
KEYL = RED + 2048
XB2 = KEYL + 64
SA = 736
XB1 = XB2 + 20480
MODA_L = XB1 + 16 * SA
MODB_L = MODA_L + 5120
WR_L = MODB_L + 5120
WST = WR_L + 2048
EW = WST + 16384
FW = EW + 40960
STL = FW + 20480
LDS_BYTES = STL + 256
assert LDS_BYTES <= 163840, LDS_BYTES

T_F20C, T_F20S, T_TW1, T_F32A, T_ADR, T_TW3, T_F20I, T_F32B, T_F16, T_TW2 = 0, 1, 2, 6, 10, 11, 15, 18, 22, 24
NT1 = 11


def f2u(x):
    return struct.unpack('<I', struct.pack('<f', float(x)))[0]


def bf(x):
    u = f2u(x)
    return ((u + 0x7FFF + ((u >> 16) & 1)) >> 16) & 0xFFFF


def pk(lo, hi):
    return bf(lo) | (bf(hi) << 16)


ALPHA = {16: 1.1328, 20: 1.4294, 32: 1.62445}


def cs(num, den):
    a = 2 * np.pi * (num % den) / den
    c, s = np.cos(a), np.sin(a)
    if abs(c) < 1e-12: c = 0.0
    if abs(s) < 1e-12: s = 0.0
    al = ALPHA.get(den, 1.0)
    return c * al, s * al


def kaof(x):
    ka = 3 * (x >> 2) + (x & 3)
    return ka if (x & 3) < 3 and ka <= 10 else None


def tables():
    T = np.zeros((NTAB, 64, 4), np.uint32)
    for l in range(64):
        i, g = l & 15, l >> 4
        c8, s8 = [0.0] * 8, [0.0] * 8
        for j in range(5):
            if kaof(i) is not None:
                c, s = cs((4 * j + g) * kaof(i), 20)
                c8[j], s8[j] = c, -s
        for d in range(4):
            T[T_F20C, l, d] = pk(c8[2 * d], c8[2 * d + 1])
            T[T_F20S, l, d] = pk(s8[2 * d], s8[2 * d + 1])
        for t in range(2):
            for r in range(4):
                c, s = cs((8 * g + 2 * r + t) * (kaof(i) or 0), 640)
                T[T_TW1 + 2 * t, l, r] = f2u(c)
                T[T_TW1 + 2 * t + 1, l, r] = f2u(s)
                c, s = cs((2 * i + t) * (kaof(4 * g + r) or 0), 640)
                T[T_TW3 + 2 * t, l, r] = f2u(c)
                T[T_TW3 + 2 * t + 1, l, r] = f2u(s)
        kbof = lambda e: e if e < 16 else 47 - e
        for tile in range(2):
            for ks in range(2):
                for r in range(4):
                    c, s = cs(kbof(2 * i + tile) * (8 * g + 2 * r + ks), 32)
                    T[T_F32A + tile * 2 + ks, l, r] = pk(c, s)
                    c, s = cs((2 * i + tile) * kbof(8 * g + 2 * r + ks), 32)
                    T[T_F32B + tile * 2 + ks, l, r] = pk(c, s)
        ka_ = kaof(i)
        k0 = 0 if ka_ is None else (160 * g + ka_ if g < 2 else 160 * g - 300 - ka_)
        T[T_ADR, l, 0] = 8 * k0
        T[T_ADR, l, 1] = 0x8000 if i < 8 else 0x80000000
        T[T_ADR, l, 2] = 0 if g < 2 else 0x8000
        T[T_ADR, l, 3] = 0x8000 if g < 2 else 0
        for r in range(4):
            c, s = cs(i * (4 * g + r), 16)
            T[T_F16, l, r] = pk(c, s)
            T[T_F16 + 1, l, r] = pk(-s, c)
            c, s = cs(i * (4 * g + r), 256)
            T[T_TW2, l, r] = f2u(c)
            T[T_TW2 + 1, l, r] = f2u(s)
            ka = kaof(4 * g + r)
            if ka is not None:
                a1 = 4 * (i & 3) + (i >> 2)
                c, s = cs(a1 * ka, 20)
                T[T_F20I, l, r] = pk(c, -s)
                c, s = cs((16 + (i >> 2)) * ka, 20)
                if (i & 3) == 0:
                    T[T_F20I + 1, l, r] = pk(c, -s)
                if (i & 3) == 1:
                    T[T_F20I + 2, l, r] = pk(c, -s)
    return T


def vr(a, n=1):
    return f'v{a}' if n == 1 else f'v[{a}:{a + n - 1}]'


def sr(a, n=2):
    return f's{a}' if n == 1 else f's[{a}:{a + n - 1}]'


sW, sX, sIdx, sMe, sT = 3, 4, 5, 6, 7
A_X, W_R, W_I, B_WR, W_G, W_U, W_D = 8, 10, 12, 16, 18, 20, 22
C_, W_MOD, OUTP, DBG, WS = 24, 26, 28, 30, 32
sBa, sBb, sBc = 34, 36, 38
sCnt = 40
sM1B = 41
sU0, sU1, sU2, sU3 = 42, 43, 46, 47
sM7 = 44
sRow = 48
sKey = 49
sV1, sV2 = 50, 51
sHI = 52
sCand = 53
sRec = 56
sTag = 55
sRi = sIdx
sGU = 56
sXrow = 72
sTS = 74

vL, vL16, vL4, vS, vPoll = 1, 2, 3, 4, 5
vM8F, vM8I = 6, 8
vXS = 10
Ra, Rb, RD, Rc = 20, 28, 36, 52
vF32 = 60
vTW = 92
vF20 = 108
vVec = 120
vE0 = 160
vXR = 150


a = Asm()
stamps = {}
NST = 24


def stamp(name, path='M', wait=True):
    if not DIAG or FINE:
        return
    if opt('only', None) and not (name == 'start' or any(name.startswith(x.replace('_', ' ')) for x in opt('only', '').split(','))):
        return
    if PROBE and (path != 'M' or not (name == 'start' or name.startswith(PROBE))):
        return
    lst = stamps.setdefault(path, [])
    if name not in lst:
        lst.append(name)
    k = lst.index(name)
    assert k < NST
    a(f's_memrealtime s[100:101]')
    a('s_waitcnt lgkmcnt(0)')
    a(f's_mov_b32 s{sTS + k}, s100')


fines = []


def fine(group, name):
    if FINE != group:
        return
    if name not in fines:
        fines.append(name)
    k = fines.index(name)
    assert k < 12
    a(f's_memtime {sr(sTS + 2 * k)}')


def dump_stamps(path='M'):
    if not DIAG:
        return
    if PROBE:
        if path != 'M':
            return
        a(f'''
        s_cmp_lg_u32 s2, {PROBEWG}
        s_cbranch_scc1 L_end
        s_cmp_lg_u32 s{sW}, 0
        s_cbranch_scc1 L_end
        ''')
        if PROBE == 'fix':
            a(f's_movk_i32 s{sU0}, 6000')
        elif PROBE == 'xcc':
            a(f's_getreg_b32 s{sU0}, hwreg(HW_REG_XCC_ID)')
            a(f's_and_b32 s{sU0}, s{sU0}, 15')
            a(f's_mul_i32 s{sU0}, s{sU0}, 1000')
            a(f's_add_u32 s{sU0}, s{sU0}, 6000')
        else:
            a(f's_sub_u32 s{sU0}, s{sTS + 1}, s{sTS}')
            a(f's_lshl_b32 s{sU0}, s{sU0}, 4')
            a(f's_add_u32 s{sU0}, s{sU0}, 6000')
            a(f's_min_u32 s{sU0}, s{sU0}, 100000')
        a(f'''
        L_probe:
        s_memrealtime s[100:101]
        s_waitcnt lgkmcnt(0)
        s_sub_u32 s{sU1}, s100, s{sTS}
        s_cmp_lt_u32 s{sU1}, s{sU0}
        s_cbranch_scc1 L_probe
        ''')
        return
    if DBGDIAG:
        if path != 'M':
            return
        a('v_mov_b32 v20, 0')
        a('s_mov_b64 exec, 1')
        a(f's_not_b32 s{sU0}, s{sTS}')
        a(f'v_mov_b32 v22, s{sU0}')
        a(f'global_atomic_umax v20, v22, {sr(DBG)} offset:4 sc1')
        ks = [0] + list(range(2, len(stamps['M'])))
        for n, k in enumerate(ks[:14]):
            a(f'v_mov_b32 v{23 + n}, s{sTS + k}')
            a(f'global_atomic_umax v20, v{23 + n}, {sr(DBG)} offset:{8 + 4 * n} sc1')
        print('dbg slots:', [(2 + n, stamps['M'][k]) for n, k in enumerate(ks[:14])])
        return
    if path != 'M':
        for k in range(NST):
            a(f'v_writelane_b32 v20, s{sTS + k}, {k}')
        a(f'v_lshlrev_b32 v21, 2, v{vL}')
        a(f'v_add_u32 v21, {STL + (128 if path == "H1" else 0)}, v21')
        a('s_mov_b32 exec_hi, 0')
        a('ds_write_b32 v21, v20')
        a('s_waitcnt lgkmcnt(0)')
        return
    a(f'''
    s_lshl_b32 s{sU0}, s2, 11
    v_add_u32 v21, {STL}, v{vL4}
    ds_read_b32 v22, v21
    ''')
    base_add(sBa, WS, sU0, DIAG_G + 1024)
    a('s_waitcnt lgkmcnt(0)')
    a(f'global_store_dword v{vL4}, v22, {sr(sBa)}')
    a(f'''
    s_lshl_b32 s{sU0}, s2, 11
    s_lshl_b32 s{sU1}, s{sW}, 7
    s_add_u32 s{sU0}, s{sU0}, s{sU1}
    s_memtime s[100:101]
    ''')
    base_add(sBa, WS, sU0, DIAG_G)
    a('v_mov_b32 v20, 0')
    a('s_mov_b64 exec, 1')
    for k in range(0, NST, 2):
        a(f'v_mov_b32 v22, s{sTS + k}')
        a(f'v_mov_b32 v23, s{sTS + k + 1}')
        a(f'global_store_dwordx2 v20, v[22:23], {sr(sBa)} offset:{4 * k}')
        a('s_nop 1')
    a('s_waitcnt lgkmcnt(0)')
    a('s_sub_u32 s100, s100, s98')
    a('v_mov_b32 v22, s100')
    a(f'global_store_dword v20, v22, {sr(sBa)} offset:112')
    a('s_getreg_b32 s42, hwreg(HW_REG_XCC_ID)')
    a('s_getreg_b32 s43, hwreg(HW_REG_HW_ID)')
    a('v_mov_b32 v22, s42')
    a('v_mov_b32 v23, s43')
    a(f'global_store_dwordx2 v20, v[22:23], {sr(sBa)} offset:120')


def base_add(dst, src, off_s=None, imm=0):
    if off_s is not None:
        if imm:
            a(f's_add_u32 s{sT}, s{off_s}, {imm}')
            off_s = sT
        a(f's_add_u32 s{dst}, s{src}, s{off_s}')
    else:
        a(f's_add_u32 s{dst}, s{src}, {imm}')
    a(f's_addc_u32 s{dst + 1}, s{src + 1}, 0')


lblc = [0]
late = []


def flush_late():
    for f in late:
        f()
    late.clear()


def newlabel(p):
    lblc[0] += 1
    return f'L_{p}_{lblc[0]}'


def poll(loads, regs, tmp, mask=None, empty='eq -1', between=None, younger=0, issued=False):
    L, D, Cc = newlabel('poll'), newlabel('polld'), newlabel('pollc')
    if mask is not None:
        mask_lanes(mask)
    if not issued:
        for ld in loads:
            a(ld)
    a(f's_mov_b32 s{sCnt}, {SPIN}')
    if between is not None:
        between()
    if younger < 63:
        a(f's_waitcnt vmcnt({younger})')
    a.label(Cc)

    def retry():
        a.label(L)
        a(f's_sub_u32 s{sCnt}, s{sCnt}, 1')
        a(f's_cbranch_scc1 {D}')
        for ld in loads:
            a(ld)
        a('s_waitcnt vmcnt(0)')
        a(f's_branch {Cc}')
    late.append(retry)
    if empty == 'tag':
        for n, r in enumerate(regs):
            a(f'v_xor_b32 v{r}, s{sTB + (n & 3)}, v{r}')
        rem = list(regs)
        for c in tmp:
            a(f'v_or3_b32 v{c}, v{rem[0]}, v{rem[1]}, v{rem[2]}')
            rem = rem[3:]
        n = 0
        while len(rem) >= 2:
            c = tmp[n % len(tmp)]
            a(f'v_or3_b32 v{c}, v{c}, v{rem[0]}, v{rem[1]}')
            rem = rem[2:]
            n += 1
        t = tmp[0]
        rem = rem + list(tmp[1:])
        while rem:
            if len(rem) >= 2:
                a(f'v_or3_b32 v{t}, v{t}, v{rem[0]}, v{rem[1]}')
                rem = rem[2:]
            else:
                a(f'v_or_b32 v{t}, v{t}, v{rem[0]}')
                rem = rem[1:]
        a(f'v_and_b32 v{t}, 0xff, v{t}')
        empty = 'ne 0'
    elif empty == 'word':
        if len(regs) == 1:
            t = regs[0]
            empty = f'ne s{sTag}'
        else:
            assert len(regs) == 2
            t = tmp[0]
            a(f'v_xor_b32 v{t}, v{regs[0]}, v{regs[1]}')
            a(f'v_xor_b32 v{tmp[1]}, s{sTag}, v{regs[0]}')
            a(f'v_or_b32 v{t}, v{t}, v{tmp[1]}')
            empty = 'ne 0'
    elif empty == 'words':
        for n, r in enumerate(regs):
            a(f'v_xor_b32 v{tmp[n]}, s{sTag}, v{r}')
        t = tmp[0]
        rem = list(tmp[1:len(regs)])
        while rem:
            if len(rem) >= 2:
                a(f'v_or3_b32 v{t}, v{t}, v{rem[0]}, v{rem[1]}')
                rem = rem[2:]
            else:
                a(f'v_or_b32 v{t}, v{t}, v{rem[0]}')
                rem = rem[1:]
        empty = 'ne 0'
    elif len(regs) == 1:
        t = regs[0]
    else:
        rem = list(regs)
        outs = []
        k = 0
        while len(rem) >= 3 and k < len(tmp):
            a(f'v_max3_u32 v{tmp[k]}, v{rem[0]}, v{rem[1]}, v{rem[2]}')
            outs.append(tmp[k])
            rem = rem[3:]
            k += 1
        rem = outs[1:] + rem
        t = outs[0] if outs else None
        if t is None:
            t = tmp[0]
            a(f'v_max_u32 v{t}, v{rem[0]}, v{rem[1]}')
            rem = rem[2:]
        while rem:
            if len(rem) >= 2:
                a(f'v_max3_u32 v{t}, v{t}, v{rem[0]}, v{rem[1]}')
                rem = rem[2:]
            else:
                a(f'v_max_u32 v{t}, v{t}, v{rem[0]}')
                rem = rem[1:]
    a(f'v_cmpx_{empty.split()[0]}_u32 vcc, {empty.split()[1]}, v{t}')
    a(f's_cbranch_execnz {L}')
    a.label(D)
    a('s_mov_b64 exec, -1')


def epoch_load():
    a(f's_load_dword s{sTag}, {sr(WS)}, {EPOCH_G}')


def epoch_tag():
    a(f'''
    s_and_b32 s{sTag}, s{sTag}, 0x7f7f7f7f
    s_add_u32 s{sTag}, s{sTag}, 0x01010101
    s_or_b32 s{sTag}, s{sTag}, 0x80808080
    ''')


sTB = 68


def tag_bytes():
    for k in range(4):
        a(f's_bfe_u32 s{sTB + k}, s{sTag}, {hex(0x80000 | (8 * k))}')


def dpp(op, r, ctrl, rm='0xf'):
    a(f'{op}_dpp v{r}, v{r}, v{r} {ctrl} row_mask:{rm} bank_mask:0xf')


def wave_sum(regs, dst_s, op='v_add_f32'):
    for c in ('row_ror:8', 'row_ror:4', 'row_ror:2', 'row_ror:1'):
        for r in regs:
            dpp(op, r, c)
    for r in regs:
        dpp(op, r, 'row_bcast:15', '0xa')
    for r in regs:
        dpp(op, r, 'row_bcast:31', '0xc')
    for r, s in zip(regs, dst_s):
        a(f'v_readlane_b32 s{s}, v{r}, 63')


def rbf(dst, src):
    a(f'v_cvt_pk_bf16_f32 v{dst}, {src}, {src}')
    a(f'v_and_b32 v{dst}, s{sHI}, v{dst}')


def unpack(dlo, dhi, src):
    a(f'v_lshlrev_b32 v{dlo}, 16, v{src}')
    a(f'v_and_b32 v{dhi}, s{sHI}, v{src}')


def mfma32(d, x, y, c=None):
    a(f'v_mfma_f32_16x16x32_bf16 {vr(d, 4)}, {vr(x, 4)}, {vr(y, 4)}, {vr(c, 4) if c is not None else 0}')


def mfma16(d, x, y):
    a(f'v_mfma_f32_16x16x16_bf16 {vr(d, 4)}, {vr(x, 2)}, {vr(y, 2)}, 0')


def cmul(tr, ti, re, im, c, s, sign, pk=True, n=4, head=0):
    if not pk:
        for r in range(n):
            a(f'v_mul_f32 v{tr + r}, v{re + r}, v{c + r}')
        for r in range(n):
            a(f'v_mul_f32 v{ti + r}, v{im + r}, v{c + r}')
        for r in range(n):
            if sign > 0:
                a(f'v_fma_f32 v{tr + r}, -v{im + r}, v{s + r}, v{tr + r}')
                a(f'v_fmac_f32 v{ti + r}, v{re + r}, v{s + r}')
            else:
                a(f'v_fmac_f32 v{tr + r}, v{im + r}, v{s + r}')
                a(f'v_fma_f32 v{ti + r}, -v{re + r}, v{s + r}, v{ti + r}')
        return
    nr = 'neg_lo:[1,0,0] neg_hi:[1,0,0]'
    for h in (0, 2):
        if head:
            a(f'v_mul_f32 v{tr + h}, v{re + h}, v{c + h}')
            a(f'v_mul_f32 v{tr + h + 1}, v{re + h + 1}, v{c + h + 1}')
        else:
            a(f'v_pk_mul_f32 {vr(tr + h, 2)}, {vr(re + h, 2)}, {vr(c + h, 2)}')
    for h in (0, 2):
        a(f'v_pk_mul_f32 {vr(ti + h, 2)}, {vr(im + h, 2)}, {vr(c + h, 2)}')
    for h in (0, 2):
        a(f'v_pk_fma_f32 {vr(tr + h, 2)}, {vr(im + h, 2)}, {vr(s + h, 2)}, {vr(tr + h, 2)} {nr if sign > 0 else ""}')
    for h in (0, 2):
        a(f'v_pk_fma_f32 {vr(ti + h, 2)}, {vr(re + h, 2)}, {vr(s + h, 2)}, {vr(ti + h, 2)} {nr if sign < 0 else ""}')


def pack4(d, lo, hi, step=1, n=4):
    for r in range(n):
        a(f'v_cvt_pk_bf16_f32 v{d + r * step}, v{lo + r}, v{hi + r}')


def tab_read(dst, q):
    a(f'ds_read_b128 {vr(dst, 4)}, v{vL16} offset:{TAB + q * 1024}')


def tm(j, t):
    return 4 * t + j if j < 4 else 8 + t


def read_tmajor(dst, vaddr, off):
    o = off // 256
    assert off % 256 == 0 and o + 6 < 256
    for t in range(2):
        a(f'ds_read2st64_b32 {vr(dst + 4 * t, 2)}, v{vaddr + t} offset0:{o} offset1:{o + 2}')
        a(f'ds_read2st64_b32 {vr(dst + 4 * t + 2, 2)}, v{vaddr + t} offset0:{o + 4} offset1:{o + 6}')
    a(f'ds_read_b64 {vr(dst + 8, 2)}, v{vaddr} offset:{off + 2048}')


def silu(dst, src, tmp):
    for d, s, t in zip(dst, src, tmp):
        a(f'v_mul_f32 v{t}, 0xbfb8aa3b, v{s}')
    for t in tmp:
        a(f'v_exp_f32 v{t}, v{t}')
    for t in tmp:
        a(f'v_add_f32 v{t}, 1.0, v{t}')
    for t in tmp:
        a(f'v_rcp_f32 v{t}, v{t}')
    for d, s, t in zip(dst, src, tmp):
        a(f'v_mul_f32 v{d}, v{s}, v{t}')


def swap_reduce8(acc):
    for k in range(4):
        a(f'v_permlane32_swap_b32 v{acc + k}, v{acc + k + 4}')
    a(f'v_pk_add_f32 {vr(acc, 2)}, {vr(acc, 2)}, {vr(acc + 4, 2)}')
    a(f'v_pk_add_f32 {vr(acc + 2, 2)}, {vr(acc + 2, 2)}, {vr(acc + 6, 2)}')
    for k in range(2):
        a(f'v_permlane16_swap_b32 v{acc + k}, v{acc + k + 2}')
    a(f'v_pk_add_f32 {vr(acc, 2)}, {vr(acc, 2)}, {vr(acc + 2, 2)}')


BC0 = 'op_sel:[0,0,0] op_sel_hi:[1,0,1]'
BC1 = 'op_sel:[0,1,0] op_sel_hi:[1,1,1]'


def prologue():
    a(f'''
    s_cmp_ge_u32 s2, 256
    s_cbranch_scc1 L_end
    ''')
    if DIAG:
        for k in range(NST):
            a(f's_mov_b32 s{sTS + k}, 0')
        a('s_memtime s[98:99]')
        for p in ('M', 'H0', 'H1'):
            stamps[p] = ['start']
        stamp('start')
    a(f'''
    s_load_dwordx16 s[8:23], s[0:1], 0
    s_load_dwordx8 s[24:31], s[0:1], 64
    s_load_dwordx2 s[32:33], s[0:1], 96
    v_lshrrev_b32 v20, 6, v0
    s_and_b32 s{sX}, s2, 7
    s_lshr_b32 s{sIdx}, s2, 3
    v_readfirstlane_b32 s{sW}, v20
    v_and_b32 v{vL}, 63, v0
    s_lshl_b32 s{sMe}, s{sX}, 5
    s_add_u32 s{sMe}, s{sMe}, s{sIdx}
    v_lshlrev_b32 v{vL16}, 4, v{vL}
    v_lshlrev_b32 v{vL4}, 2, v{vL}
    s_cmp_eq_u32 s{sW}, 9
    s_cbranch_scc1 L_h1
    s_cmp_eq_u32 s{sW}, 8
    s_cbranch_scc1 L_h0
    s_cmp_eq_u32 s{sRi}, 30
    s_cbranch_scc0 L_nopf
    s_cmp_ge_u32 s{sW}, (L_tables_end-{NAME}_kernel)/8192
    s_cbranch_scc1 L_nopf
    s_getpc_b64 {sr(sBa)}
    L_pc0:
    s_sub_u32 s{sBa}, s{sBa}, L_pc0-{NAME}_kernel
    s_subb_u32 s{sBa + 1}, s{sBa + 1}, 0
    v_lshlrev_b32 v21, 7, v0
    global_load_dword v157, v21, {sr(sBa)}
    L_nopf:
    ''')


def xloads():
    for j in range(5):
        a(f'global_load_dword v{vXR + j}, v156, {sr(A_X)} offset:{256 * j} {INPOL}')


def blk_id(dst):
    a(f'''
    s_cmp_lt_u32 s{sRi}, 10
    s_cselect_b32 s{dst}, 10, 20
    s_cselect_b32 s{sT}, 0, 70
    s_mul_i32 s{dst}, s{dst}, s{sX}
    s_add_u32 s{dst}, s{dst}, s{sT}
    s_add_u32 s{dst}, s{dst}, s{sRi}
    ''')


GV = (130, 142, 48, 56, 158, 159)


def gemv_addr():
    vw, vc, acc, tmp, vo, voc = GV
    blk_id(sU2)
    a(f'''
    v_lshrrev_b32 v{voc}, 3, v{vL}
    v_mad_u32_u24 v{voc}, v20, 20, v{voc}
    v_and_b32 v21, 3, s{sU2}
    v_mul_u32_u24 v21, 160, v21
    v_add_u32 v{voc}, v{voc}, v21
    v_lshrrev_b32 v21, 2, s{sU2}
    v_and_b32 v{vo}, 0x70, v{vL16}
    v_lshl_add_u32 v{vo}, v21, 7, v{vo}
    v_mul_u32_u24 v21, 7680, v{voc}
    v_add_u32 v{vo}, v{vo}, v21
    v_lshlrev_b32 v{voc}, 1, v{voc}
    v_lshl_add_u32 v156, v20, 8, s{sMe}
    v_mul_u32_u24 v156, 1280, v156
    v_add_u32 v156, v156, v{vL4}
    ''')
    for k in range(4):
        a(f'v_mov_b32 v{vw + 8 + k}, 0')
    a(f'v_mov_b32 v{vc + 2}, 0')


def gemv_issue():
    vw, vc, acc, tmp, vo, voc = GV
    def cl_():
        for j in range(3):
            if j == 2:
                a('s_mov_b32 exec_hi, 0')
            a(f'global_load_ushort v{vc + j}, v{voc}, {sr(C_)} offset:{16 * j}')
        a('s_mov_b64 exec, -1')

    def wl_():
        for j in range(3):
            if j == 2:
                a('s_mov_b32 exec_hi, 0')
            a(f'global_load_dwordx4 {vr(vw + 4 * j, 4)}, v{vo}, {sr(W_MOD)} {INPOL}')
            if j < 2:
                a(f'v_add_u32 v{vo}, {8 * 7680}, v{vo}')
        a('s_mov_b64 exec, -1')
    for f in ((wl_, cl_) if WC else (cl_, wl_)):
        f()


def gemv_compute(role, after):
    nj = 3
    vw, vc, acc, tmp, vo, voc = GV
    if role == 'B':
        acc = 150
    a(f's_waitcnt vmcnt({after if WC else nj + after})')
    stamp('c in')
    cs_ = [vc + j for j in range(nj)]
    for c in cs_:
        a(f'v_lshlrev_b32 v{c}, 16, v{c}')
    silu(cs_, cs_, [tmp + j for j in range(nj)])
    sc = [(145, 146), (147, 148), (149, 59)]
    for c, s in zip(cs_, sc):
        a(f'v_cvt_pk_bf16_f32 v{s[0]}, v{c}, 0')
    for s in sc:
        a(f'v_lshlrev_b32 v{s[1]}, 16, v{s[0]}')
    a(f'''
    v_and_b32 v{vo}, 7, v{vL}
    v_lshlrev_b32 v{vo}, 8, v{vo}
    v_and_b32 v{voc}, 48, v{vL}
    v_lshl_add_u32 v{vo}, v{voc}, 2, v{vo}
    s_lshl_b32 s{sT}, s{sW}, 2
    s_add_u32 s{sT}, s{sT}, {RED}
    v_add_u32 v{vo}, s{sT}, v{vo}
    ''')
    for k in range(8):
        a(f'v_mov_b32 v{acc + k}, 0')
    for j in range(nj):
        a(f's_waitcnt vmcnt({nj - 1 - j + after})')
        for k in (0, 4, 1, 5, 2, 6, 3, 7):
            a(f'v_dot2c_f32_bf16 v{acc + k}, v{vw + 4 * j + k // 2}, v{sc[j][k & 1]}')
    stamp('w in')
    swap_reduce8(acc)
    for c in ('row_ror:8',):
        dpp('v_add_f32', acc, c)
        dpp('v_add_f32', acc + 1, c)
    a(f'''
    s_mov_b32 exec_lo, 0x00ff00ff
    s_mov_b32 exec_hi, 0x00ff00ff
    ds_write2_b32 v{vo}, v{acc}, v{acc + 1} offset0:0 offset1:8
    s_mov_b64 exec, -1
    s_waitcnt lgkmcnt(0)
    ''')


def m8(dst, inverse):
    t0, t1, t2, t3 = 20, 21, 22, 23
    a(f'v_lshrrev_b32 v{t0}, 4, v{vL}           ; g')
    if not inverse:
        a(f'''
        v_bfe_u32 v{t1}, v{vL}, 2, 2
        v_bfe_u32 v{t2}, v{vL}, 1, 1
        v_lshl_add_u32 v{t1}, v{t2}, 2, v{t1}
        v_lshlrev_b32 v{t0}, 9, v{t0}
        v_add_u32 v{t0}, s{sMe}, v{t0}
        v_mul_u32_u24 v{t2}, v{t0}, v{t1}
        v_lshl_add_u32 v{t3}, v{t1}, 8, v{t2}
        ''')
    else:
        a(f'''
        v_bfe_u32 v{t1}, v{vL}, 1, 3
        v_lshlrev_b32 v{t1}, 8, v{t1}
        v_add_u32 v{t1}, s{sMe}, v{t1}
        v_mul_u32_u24 v{t2}, v{t0}, v{t1}
        v_xor_b32 v{t0}, 4, v{t0}
        v_mul_u32_u24 v{t3}, v{t0}, v{t1}
        v_sub_u32 v{t2}, 0, v{t2}
        v_sub_u32 v{t3}, 0, v{t3}
        ''')
    a(f'''
    v_and_b32 v{t0}, 1, v{vL}
    v_lshl_add_u32 v{t2}, v{t0}, 9, v{t2}
    v_lshl_add_u32 v{t3}, v{t0}, 9, v{t3}
    v_and_b32 v{t2}, 0x7ff, v{t2}
    v_and_b32 v{t3}, 0x7ff, v{t3}
    v_cvt_f32_u32 v{t2}, v{t2}
    v_cvt_f32_u32 v{t3}, v{t3}
    v_mul_f32 v{t2}, 0x3a000000, v{t2}
    v_mul_f32 v{t3}, 0x3a000000, v{t3}
    v_cos_f32 v{t0}, v{t2}
    v_sin_f32 v{t2}, v{t2}
    v_cos_f32 v{t1}, v{t3}
    v_sin_f32 v{t3}, v{t3}
    v_cvt_pk_bf16_f32 v{dst}, v{t0}, v{t2}
    v_cvt_pk_bf16_f32 v{dst + 1}, v{t1}, v{t3}
    ''')


INV640 = hex(f2u(1.0 / 640))
EPS = hex(f2u(1e-5))


def rstd_chain(var, out):
    rbf(out, f'v{var}')
    a(f'v_add_f32 v{out}, {EPS}, v{out}')
    rbf(out, f'v{out}')
    a(f'v_sqrt_f32 v{out}, v{out}')
    rbf(out, f'v{out}')
    a(f'v_rcp_f32 v{out}, v{out}')


def sum10(dst2, x):
    a(f'v_pk_add_f32 {vr(dst2, 2)}, {vr(x, 2)}, {vr(x + 2, 2)}')
    for h in (4, 6, 8):
        a(f'v_pk_add_f32 {vr(dst2, 2)}, {vr(dst2, 2)}, {vr(x + h, 2)}')
    a(f'v_add_f32 v{dst2}, v{dst2}, v{dst2 + 1}')


def dot10(dst2, x, y):
    a(f'v_pk_mul_f32 {vr(dst2, 2)}, {vr(x, 2)}, {vr(y, 2)}')
    for h in (2, 4, 6, 8):
        a(f'v_pk_fma_f32 {vr(dst2, 2)}, {vr(x + h, 2)}, {vr(y + h, 2)}, {vr(dst2, 2)}')
    a(f'v_add_f32 v{dst2}, v{dst2}, v{dst2 + 1}')


def bar(n):
    a(f's_barrier                                   ; {n}')


def tpoll(loads, lanes_s=None, between=None):
    L, D, Cc = newlabel('poll'), newlabel('polld'), newlabel('pollc')
    if lanes_s:
        a(f's_mov_b64 exec, {lanes_s}')
    for ld in loads:
        a(ld)
    if lanes_s:
        a('s_mov_b64 exec, -1')
    a(f's_mov_b32 s{sCnt}, {SPIN}')
    if between is not None:
        between()
    a('s_waitcnt vmcnt(0)')
    a.label(Cc)
    a(f'''
    v_cmp_ne_u32 vcc, s{sTag}, v{Ra + 3}
    v_cmp_ne_u32 {sr(sBc)}, s{sTag}, v{Ra + 7}
    s_or_b64 vcc, vcc, {sr(sBc)}
    s_and_b64 vcc, vcc, {sr(sM8)}
    s_cbranch_scc1 {L}
    ''')
    a.label(D)

    def retry():
        a.label(L)
        a(f'''
        s_sub_u32 s{sCnt}, s{sCnt}, 1
        s_cbranch_scc1 {D}
        s_lshr_b64 {sr(sBc)}, vcc, 1
        s_or_b64 vcc, vcc, {sr(sBc)}
        s_lshr_b64 {sr(sBc)}, vcc, 2
        s_or_b64 exec, vcc, {sr(sBc)}
        ''')
        for ld in loads:
            a(ld)
        a('s_mov_b64 exec, -1')
        a('s_waitcnt vmcnt(0)')
        a(f's_branch {Cc}')
    late.append(retry)


sM8, sLn, sM3 = 62, 64, 66
vSg0, vSg1, vPair, vPairX = vE0 + 1, vE0 + 2, vE0 + 5, vM8F + 1


def f32_expand(q0, m0, m1):
    for tile in range(2):
        for k in range(8):
            b = vF32 + 16 * tile + k
            a(f'v_alignbit_b32 v{b + 8}, v{b}, v{b}, 16')
            a(f'v_xor_b32 v{b + 8}, v{m1}, v{b + 8}')
            if m0 is not None:
                a(f'v_xor_b32 v{b}, v{m0}, v{b}')


def f32_read(q0):
    for tile in range(2):
        for ks in range(2):
            tab_read(vF32 + 16 * tile + 4 * ks, q0 + 2 * tile + ks)


def main_path():
    vZ, vSA, vCA = vVec, vVec + 10, vVec + 20
    gemv_addr()
    a(f's_cmp_lt_u32 s{sRi}, 10')
    a('s_waitcnt lgkmcnt(0)')
    stamp('kernarg')
    a('s_cbranch_scc0 L_x')
    gemv_issue()
    if XL == 1:
        xloads()
    a.label('L_x')
    if XL == 0:
        xloads()
    if BLOAD == 0:
        a(f's_sub_u32 s{sT}, s{sRi}, 10')
        a(f's_cmp_lt_u32 s{sT}, 20')
        a('s_cbranch_scc0 L_setup')
        gemv_issue()
        a.label('L_setup')
    epoch_load()
    a(f'''
    s_mov_b32 s{sHI}, 0xffff0000
    s_lshl_b32 s{sRow}, s{sW}, 8
    s_add_u32 s{sKey}, s{sRow}, s{sMe}
    s_mul_i32 s{sRow}, s{sKey}, 1280
    ''')
    if B0 == 1:
        bar('B0')
    m8(vM8F, False)
    m8(vM8I, True)
    a(f'''
    v_bfe_u32 v20, v{vL}, 2, 2                    ; cs
    v_and_b32 v21, 48, v{vL16}                    ; part*16
    v_lshrrev_b32 v22, 4, v{vL}                   ; g
    v_lshl_add_u32 v23, v22, 5, v20               ; 32g + cs
    v_mul_u32_u24 v{vPoll}, {T1S}, v23
    v_add_u32 v{vPoll}, v{vPoll}, v21
    v_mul_u32_u24 v23, 80, v23
    s_mul_i32 s{sT}, s{sW}, 320
    s_add_u32 s{sT}, s{sT}, {XB2}
    v_add3_u32 v{vE0 + 4}, v23, v21, s{sT}        ; staging address
    v_mul_u32_u24 v{vS}, {NJ * 64}, v22
    v_and_b32 v23, 0xf0, v{vL16}
    v_add_u32 v{vS}, v{vS}, v23
    v_lshlrev_b32 v{vE0}, 3, v{vL}                ; 8*lane
    v_mul_u32_u24 v22, {4 * SA}, v22
    v_mul_u32_u24 v20, 120, v20
    v_lshl_add_u32 v20, v21, 1, v20
    s_min_u32 s{sT}, s{sW}, 5
    s_mul_i32 s{sT}, s{sT}, 480
    s_add_u32 s{sT}, s{sT}, {XB1}
    v_add3_u32 v{vPair}, v20, v22, s{sT}
    s_mov_b32 s{sM7}, 0x77777777
    s_mov_b32 s{sM7 + 1}, 0x77777777
    s_mov_b32 s{sM8}, 0x88888888
    s_mov_b32 s{sM8 + 1}, 0x88888888
    s_mov_b32 s{sM3}, 0x37773777
    s_mov_b32 s{sM3 + 1}, 0x37773777
    s_cmp_eq_u32 s{sW}, 5
    s_cselect_b32 s{sLn}, 0x00ff00ff, -1
    s_mov_b32 s{sLn + 1}, s{sLn}
    ''')
    if B0 == 2:
        bar('B0')
    a(f's_cmp_lt_u32 s{sRi}, 10')
    if XL == 2:
        xloads()
    a('s_cbranch_scc0 L_na')
    gemv_compute('A', 5)
    bar('B1')
    a('s_waitcnt vmcnt(0)')
    a('s_branch L_ln1')
    a.label('L_na')
    if XL == 1:
        xloads()
    a(f's_cmp_lt_u32 s{sRi}, 30')
    if BLOAD == 1:
        a('s_waitcnt vmcnt(0)')
        a('s_cbranch_scc0 L_ln1')
        gemv_issue()
    else:
        if BLOAD == 2:
            a('s_cbranch_scc0 L_nb')
            gemv_issue()
            a.label('L_nb')
        if B0 == 3:
            bar('B0')
        a('s_waitcnt vmcnt(6)')
        a('s_cbranch_scc1 L_ln1')
        a('s_waitcnt vmcnt(0)')
    a.label('L_ln1')
    stamp('x in')
    for j in range(5):
        unpack(vXS + tm(j, 0), vXS + tm(j, 1), vXR + j)
    sum10(24, vXS)
    wave_sum([24], [sU0])
    a(f'v_mov_b32 v24, {INV640}')
    a(f'v_mul_f32 v26, s{sU0}, v24                ; mean')
    rbf(28, 'v26')
    a(f'v_readfirstlane_b32 s{sM1B}, v28')
    for h in range(0, 10, 2):
        a(f'v_pk_add_f32 {vr(vXS + h, 2)}, {vr(vXS + h, 2)}, v[28:29] op_sel:[0,0] op_sel_hi:[1,0] neg_lo:[0,1] neg_hi:[0,1]')
    dot10(30, vXS, vXS)
    wave_sum([30], [sU0])
    a(f'''
    v_sub_f32 v26, v26, v28
    v_mul_f32 v26, v26, v26
    v_fma_f32 v26, s{sU0}, v24, -v26
    ''')
    rstd_chain(26, 27)
    for j in range(5):
        for t in range(2):
            a(f'v_mul_f32 v{vZ + 2 * j + t}, v27, v{vXS + tm(j, t)}')
    a(f'''
    v_mov_b32 v23, 0
    v_mov_b32 v27, 0
    s_waitcnt lgkmcnt(0)
    ''')
    epoch_tag()
    tag_bytes()
    def late_gemv(after):
        L1, L2 = newlabel('lg'), newlabel('lg')
        a(f'''
        s_cmp_lt_u32 s{sRi}, 10
        s_cbranch_scc1 {L2}
        s_cmp_lt_u32 s{sRi}, 30
        s_cbranch_scc0 {L1}
        ''')
        gemv_compute('B', after)
        a.label(L1)
        bar('B1')
        a.label(L2)
    if not GLATE:
        late_gemv(0)
    a(f'''
    s_mul_i32 s{sU0}, s{sMe}, {T1S}
    s_lshl_b32 s{sU1}, s{sW}, 8
    s_add_u32 s{sU0}, s{sU0}, s{sU1}
    ''')
    base_add(sBa, WS, sU0, T1_G)
    base_add(sBb, WS, sU0, T1_G + 4 * NJ * 64)
    a(f'''
    v_subrev_u32 v28, 64, v0                      ; u
    v_lshrrev_b32 v29, 4, v28
    v_lshlrev_b32 v29, 10, v29
    v_and_b32 v30, 0xf0, v{vL16}
    v_add_u32 v29, v29, v30
    v_cmp_le_u32 vcc, 160, v28
    v_mov_b32 v31, {8 - 160 * 32}
    v_cndmask_b32 v31, 0, v31, vcc
    s_mov_b32 s{sU2}, {MODA_L}
    v_lshlrev_b32 v28, 5, v28
    v_add3_u32 v28, v28, v31, s{sU2}
    v_add_u32 v{vE0 + 3}, s{sU2}, v{vL16}
    s_sub_u32 s{sT}, s{sW}, 1
    s_cmp_lt_u32 s{sT}, 5
    ''')
    bar('BT')
    stamp('poll start')
    def p1_tabs(after=4):
        bar('BP')
        tab_read(vF20, T_F20C)
        tab_read(vF20 + 4, T_F20S)
        for q in range(4):
            tab_read(vTW + 4 * q, T_TW1 + q)
        f32_read(T_F32A)
        tab_read(32, T_ADR)
        a(f'''
        s_lshr_b32 s{sU1}, s{sW}, 1
        s_mul_i32 s{sU1}, s{sU1}, {4 * SA}
        s_and_b32 s{sT}, s{sW}, 1
        s_lshl_b32 s{sT}, s{sT}, 2
        s_add_u32 s{sU1}, s{sU1}, s{sT}
        s_add_u32 s{sU1}, s{sU1}, {XB1}
        s_waitcnt lgkmcnt(0)
        v_add_u32 v{vSg0}, s{sU1}, v32
        v_add_u32 v{vSg1}, 160, v{vSg0}
        ''')
        f32_expand(T_F32A, None, 33)
        if GLATE:
            late_gemv(after)
    a('s_cbranch_scc1 L_mpoll')
    p1_tabs(0)
    a('s_branch L_b2')
    a.label('L_mpoll')
    poll([f'global_load_dwordx4 {vr(36 + 4 * p, 4)}, v29, {sr(WS)} offset:{256 * p} sc1' for p in range(4)],
         list(range(36, 52)), [52, 53, 54], empty='tag', between=p1_tabs)
    a(f'''
    v_pk_add_f32 v[36:37], v[36:37], v[40:41]
    v_pk_add_f32 v[38:39], v[38:39], v[42:43]
    v_pk_add_f32 v[44:45], v[44:45], v[48:49]
    v_pk_add_f32 v[46:47], v[46:47], v[50:51]
    v_pk_add_f32 v[36:37], v[36:37], v[44:45]
    v_pk_add_f32 v[38:39], v[38:39], v[46:47]
    ''')
    if MR:
        a('v_cvt_pk_bf16_f32 v40, v36, v37')
        a('v_cvt_pk_bf16_f32 v41, v38, v39')
        unpack(36, 37, 40)
        unpack(38, 39, 41)
    a(f'ds_write2_b64 v28, v[36:37], v[38:39] offset0:0 offset1:2')
    a.label('L_b2')
    stamp('poll end')
    fine('p1', 'pre-B2')
    a('s_waitcnt lgkmcnt(0)')
    a('s_barrier                                   ; B2')
    stamp('B2 done (mod ready)')
    fine('p1', 'B2')
    assert MODA_L % 16 == 0
    for j in range(5):
        a(f'ds_read_b128 {vr(vSA + 4 * j, 4)}, v{vE0 + 3} offset:{1024 * j}')
    for j in range(5):
        a(f's_waitcnt lgkmcnt({4 - j})')
        for t in range(2):
            a(f'v_fmac_f32 v{vSA + 4 * j + t}, v{vZ + 2 * j + t}, v{vSA + 4 * j + 2 + t}')
        if j in (1, 3):
            for t in range(2):
                a(f'v_cvt_pk_bf16_f32 v{Ra + 4 * t + j // 2}, v{vSA + 4 * j - 4 + t}, v{vSA + 4 * j + t}')
    for t in range(2):
        a(f'v_cvt_pk_bf16_f32 v{Ra + 4 * t + 2}, v{vSA + 16 + t}, 0')
    fine('p1', 'h packed')
    for t in range(2):
        mfma32(RD + 8 * t, Ra + 4 * t, vF20)
        mfma32(RD + 8 * t + 4, Ra + 4 * t, vF20 + 4)
    fine('p1', 'mfma1 issued')
    for t, tmp in ((0, Rb), (1, Rc)):
        cmul(tmp, tmp + 4, RD + 8 * t, RD + 8 * t + 4, vTW + 8 * t, vTW + 8 * t + 4, -1, pk=PK[0] == '1')
        pack4(Ra + 4 * t, tmp, tmp + 4)
    fine('p1', 'twiddled')
    for u in range(2):
        for ks in range(2):
            for e in range(2):
                d = RD + 8 * u + 4 * e
                mfma32(d, vF32 + 16 * u + 8 * e + 4 * ks, Ra + 4 * ks, d if ks else None)
    fine('p1', 'mfma2 issued')
    a(f's_mov_b64 exec, {sr(sM3)}')
    for u in range(2):
        pack4(Rb + 4 * u, RD + 8 * u, RD + 8 * u + 4)
        for r in (0, 2):
            a(f'ds_write2_b32 v{vSg1 if u else vSg0}, v{Rb + 4 * u + r}, v{Rb + 4 * u + r + 1} offset0:{80 * r} offset1:{80 * r + 80}')
    a('s_mov_b64 exec, -1')
    a(f'v_mov_b32 v{Rc + 3}, s{sTag}')
    a(f'v_mov_b32 v{Rc + 7}, s{sTag}')
    a(f's_cmp_ge_u32 s{sW}, 6')
    fine('p1', 'lds written')
    a('s_waitcnt lgkmcnt(0)')
    fine('p1', 'pre-B3')
    bar('B3')
    fine('p1', 'B3')
    a('s_cbranch_scc1 L_t1done')
    for n in (3, 0, 1, 2):
        a(f'ds_read_b64 {vr(Ra + 2 * n, 2)}, v{vPair} offset:{8 * n}')
    for k, n in enumerate((3, 0, 1, 2)):
        a(f's_waitcnt lgkmcnt({3 - k})')
        mfma16(RD + 4 * n, vM8F, Ra + 2 * n)
    fine('p1', 'r8 issued')
    a(f's_mov_b64 exec, {sr(sM7)}')
    for j in range(2):
        a(f'v_cvt_pk_bf16_f32 v{Rc + 4 * j + 3}, v{RD + 12 + 2 * j}, v{RD + 12 + 2 * j + 1}')
    a(f's_mov_b64 exec, {sr(sLn)}')
    for j in range(2):
        for n in range(3):
            a(f'v_cvt_pk_bf16_f32 v{Rc + 4 * j + n}, v{RD + 4 * n + 2 * j}, v{RD + 4 * n + 2 * j + 1}')
        a(f'global_store_dwordx4 v{vS}, {vr(Rc + 4 * j, 4)}, {sr(sBb if j else sBa)} sc1')
    a('s_mov_b64 exec, -1')
    a.label('L_t1done')
    stamp('T1 stored')
    fine('p1', 'stored')

    def p3_mats():
        for q in range(3):
            tab_read(vF20 + 4 * q, T_F20I + q)
        f32_read(T_F32B)
        tab_read(40, T_ADR)
        a('s_waitcnt lgkmcnt(0)')
        f32_expand(T_F32B, 42, 43)
    a(f's_cmp_ge_u32 s{sIdx}, {NJ}')
    a('s_cbranch_scc1 L_idle')
    late.append(lambda: (a.label('L_idle'), bar('B3b'), p3_mats() if MATS else None, a('s_branch L_p3prep')))
    if MATS == 1:
        p3_mats()
    vWr = vVec
    for k in range(16):
        a(f'v_mov_b32 v{vWr + k}, 0')
    SC = 2.0 / (2048 * 640) / (ALPHA[16] ** 4 * ALPHA[20] ** 2 * ALPHA[32] ** 2)
    a(f'''
    v_and_b32 v36, 15, v{vL}
    v_and_b32 v37, 48, v{vL}
    v_lshl_add_u32 v36, v37, 2, v36               ; 64g + i
    v_mul_u32_u24 v{vE0 + 3}, 80, v36
    s_lshl_b32 s{sU1}, s{sW}, 3
    s_add_u32 s{sU1}, s{sU1}, {XB2}
    v_add_u32 v{vE0 + 3}, s{sU1}, v{vE0 + 3}
    v_lshlrev_b32 v36, 5, v36
    v_add_u32 v36, {WST}, v36
    v_and_b32 v39, 4, v{vL}
    v_lshlrev_b32 v39, 2, v39
    v_lshlrev_b32 v{vS}, 7, v37
    v_and_b32 v37, 0xf0, v{vL16}
    v_add_u32 v{vS}, v{vS}, v37
    s_mul_i32 s{sU0}, s{sX}, {NJ}
    s_add_u32 s{sU0}, s{sU0}, s{sIdx}
    s_lshl_b32 s{sU1}, s{sU0}, 6
    s_mul_i32 s{sT}, s{sW}, {4 * T1S}
    s_add_u32 s{sU1}, s{sU1}, s{sT}
    s_lshl_b32 s{sU0}, s{sU0}, 14
    s_lshl_b32 s{sT}, s{sW}, 8
    s_add_u32 s{sU0}, s{sU0}, s{sT}
    ''')
    base_add(sBa, WS, sU1, T1_G)
    base_add(sBb, WS, sU1, T1_G + 128 * T1S)
    base_add(58, WS, sU0, T2_G)
    base_add(60, WS, sU0, T2_G + 8192)

    def w_setup(parts=(0, 1)):
      if 0 in parts:
        for q in range(2):
            tab_read(vTW + 4 * q, T_F16 + q)
            tab_read(vTW + 8 + 4 * q, T_TW2 + q)
        a(f'''
        s_mul_i32 s{sU0}, s{sIdx}, 15
        s_min_u32 s{sU1}, s{sU0}, 306
        s_add_u32 s{sU2}, s{sU1}, s{sX}
        s_and_b32 s{sU2}, s{sU2}, 1
        s_sub_u32 s{sU1}, s{sU1}, s{sU2}
        s_lshl_b32 s{sT}, s{sW}, 1
        s_add_u32 s{sU0}, s{sU0}, s{sT}
        ''')
      if True:
        for s in parts:
            gam = sU3
            a(f'''
            s_add_u32 s{sU2}, s{sU0}, {s}
            s_sub_u32 s{sT}, s{sU2}, s{sU1}
            s_min_u32 s{sT}, s{sT}, 15
            s_lshl_b32 s{sT}, s{sT}, 1
            v_xor_b32 v37, s{sT}, v39
            v_add_u32 v37, v37, v36
            ''')
            for arr in range(2):
                for r in range(4):
                    a(f'ds_read_u16_d16_hi v{vWr + 8 * s + 4 * arr + r}, v37 offset:{arr * 8192 + r * 512}')
            a(f'''
            s_mul_i32 s{sT}, s{sU2}, 0x199a
            s_lshr_b32 s{sT}, s{sT}, 16
            s_mul_i32 s{sT}, s{sT}, 10
            s_mov_b32 s{gam}, {hex(f2u(SC))}
            s_cmp_eq_u32 s{sT}, s{sU2}
            s_cselect_b32 s{gam}, {hex(f2u(SC / 2))}, s{gam}
            s_waitcnt lgkmcnt(0)
            ''')
            for r in range(8):
                a(f'v_mul_f32 v{vWr + 8 * s + r}, s{gam}, v{vWr + 8 * s + r}')

    tl = [f'global_load_dwordx4 {vr(Ra, 4)}, v{vPoll}, {sr(sBa)} sc1', f'global_load_dwordx4 {vr(Ra + 4, 4)}, v{vPoll}, {sr(sBb)} sc1']
    bar('B3b')
    if WFIRST:
        w_setup((0, 1) if WFIRST == 1 else (0,))
    if DR1:
        a('s_waitcnt vmcnt(0)')
    if PACE1:
        a(f's_sleep {PACE1}')
    stamp('B3b done')
    tpoll(tl, between=lambda: (None if WFIRST == 1 else w_setup((1,) if WFIRST else (0, 1)), p3_mats() if MATS == 2 else None))
    fine('p2', 'T1 in')
    a(f'ds_write_b128 v{vE0 + 4}, {vr(Ra, 4)}')
    a(f'ds_write_b128 v{vE0 + 4}, {vr(Ra + 4, 4)} offset:10240')
    a(f's_cmp_eq_u32 s{sW}, 7')
    a('s_waitcnt lgkmcnt(0)')
    bar('B4')
    stamp('B4 done (T1 in)')
    fine('p2', 'B4')
    a('s_cbranch_scc1 L_p2_one')
    Fre, Fim, Tc, Ts = vTW, vTW + 4, vTW + 8, vTW + 12
    tmps = (Rb, Rc)

    def p2(ns):
        p2pk = PK[1] == '1'
        if ns == 2:
            for j in range(4):
                a(f'ds_read_b64 {vr(Rb + 2 * j, 2)}, v{vE0 + 3} offset:{1280 * j}')
            for h in range(2):
                a(f's_waitcnt lgkmcnt({2 - 2 * h})')
                for s in range(2):
                    a(f'v_pk_mov_b32 {vr(Ra + 4 * s + 2 * h, 2)}, {vr(Rb + 4 * h, 2)}, {vr(Rb + 4 * h + 2, 2)} op_sel:[{s},{s}]')
        else:
            a(f'ds_read2st64_b32 {vr(Ra, 2)}, v{vE0 + 3} offset0:0 offset1:5')
            a(f'ds_read2st64_b32 {vr(Ra + 2, 2)}, v{vE0 + 3} offset0:10 offset1:15')
            a('s_waitcnt lgkmcnt(0)')
        fine('p2', 'read')
        for s in range(ns):
            mfma32(RD + 8 * s, Ra + 4 * s, Fre)
            mfma32(RD + 8 * s + 4, Ra + 4 * s, Fim)
        fine('p2', 's1')
        def stage(cq, sign, swap, mm):
            lo = lambda s: tmps[s] + (4 if swap else 0)
            hi = lambda s: tmps[s] + (0 if swap else 4)
            if ns == 1 or not P2ORD:
                for s in range(ns):
                    cmul(tmps[s], tmps[s] + 4, RD + 8 * s, RD + 8 * s + 4, *cq(s), sign, pk=p2pk)
                    pack4(Ra + 4 * s, lo(s), hi(s))
                    mm(s, 0)
                    mm(s, 1)
                return
            cmul(tmps[0], tmps[0] + 4, RD, RD + 4, *cq(0), sign, pk=p2pk, head=P2ORD - 1)
            cmul(tmps[1], tmps[1] + 4, RD + 8, RD + 12, *cq(1), sign, pk=p2pk)
            pack4(Ra, lo(0), hi(0))
            cv = lambda r: a(f'v_cvt_pk_bf16_f32 v{Ra + 4 + r}, v{lo(1) + r}, v{hi(1) + r}')
            cv(0)
            cv(1)
            mm(0, 0)
            cv(2)
            cv(3)
            mm(0, 1)
            mm(1, 0)
            mm(1, 1)
        stage(lambda s: (Tc, Ts), -1, False, lambda s, k: mfma32(RD + 8 * s + 4 * k, Fim if k else Fre, Ra + 4 * s))
        fine('p2', 's2')
        stage(lambda s: (vWr + 8 * s, vWr + 8 * s + 4), +1, True, lambda s, k: mfma32(RD + 8 * s + 4 * k, Ra + 4 * s, Fre if k else Fim))
        fine('p2', 's3')
        stage(lambda s: (Tc, Ts), +1, True, lambda s, k: mfma32(RD + 8 * s + 4 * k, Fre if k else Fim, Ra + 4 * s))
        fine('p2', 's4')
        for s in range(ns):
            pack4(Rb + s, RD + 8 * s, RD + 8 * s + 4, step=ns)
        if ns == 2:
            for r in range(4):
                a(f'ds_write_b64 v{vE0 + 3}, {vr(Rb + 2 * r, 2)} offset:{1280 * r}')
        else:
            a(f'ds_write2st64_b32 v{vE0 + 3}, v{Rb}, v{Rb + 1} offset0:0 offset1:5')
            a(f'ds_write2st64_b32 v{vE0 + 3}, v{Rb + 2}, v{Rb + 3} offset0:10 offset1:15')
        a('s_waitcnt lgkmcnt(0)')
    p2(2)
    a.label('L_b5')
    fine('p2', 'pre-B5')
    bar('B5')
    fine('p2', 'B5')
    a(f'ds_read_b128 {vr(Rb, 4)}, v{vE0 + 4}')
    a(f'ds_read_b128 {vr(Rb + 4, 4)}, v{vE0 + 4} offset:10240')
    a('s_waitcnt lgkmcnt(1)')
    a(f'global_store_dwordx4 v{vS}, {vr(Rb, 4)}, {sr(58)} sc1')
    a('s_waitcnt lgkmcnt(0)')
    a(f'global_store_dwordx4 v{vS}, {vr(Rb + 4, 4)}, {sr(60)} sc1')
    stamp('T2 stored')
    fine('p2', 'stored')
    late.append(lambda: (a.label('L_p2_one'), p2(1), a('s_branch L_b5')))
    a.label('L_p3prep')
    vGA, vVV, vGC, vGS = vVec, vVec + 10, vVec + 20, vVec + 30
    vMB = vE0 + 6
    for q in range(4):
        tab_read(vTW + 4 * q, T_TW3 + q)
    a(f'''
    v_add_u32 v{vMB}, {MODB_L}, v{vL4}
    v_bfe_u32 v36, v{vL}, 2, 2
    v_lshrrev_b32 v37, 4, v{vL}
    v_mad_u32_u24 v36, v37, {NJ}, v36
    v_and_b32 v38, 48, v{vL16}
    v_lshl_add_u32 v{vPoll}, v36, 14, v38
    v_mul_u32_u24 v37, {4 * SA}, v37
    v_add_u32 v37, {XB1 + 8 * 361}, v37
    v_cndmask_b32 v{vPairX}, v{vPair}, v37, {sr(sM8)}
    s_and_b64 {sr(sM8)}, {sr(sM8)}, {sr(sLn)}
    s_lshl_b32 s{sU1}, s{sMe}, 6
    s_min_u32 s{sT}, s{sW}, 5
    s_lshl_b32 s{sT}, s{sT}, 16
    s_add_u32 s{sU1}, s{sU1}, s{sT}
    ''')
    base_add(sBa, WS, sU1, T2_G)
    base_add(sBb, WS, sU1, T2_G + 4 * NJ * 16384)
    base_add(sXrow, OUTP, sRow)
    a(f's_mul_i32 s{sU0}, s{sMe}, {REC_STRIDE}')
    base_add(sRec, WS, sU0, REC_G)
    a(f'''
    v_mov_b32 v{vE0 + 7}, {hex(f2u(-1.0 / 640))}
    v_mov_b32 v{vM8F}, {hex(f2u(-1e-5))}
    v_mov_b32 v{vE0 + 3}, {KEYL}
    v_mov_b32 v{vE0 + 4}, 1
    ''')

    def p3_setup():
        raw = Rb
        for k in range(0, 24, 2):
            a(f'ds_read2st64_b32 {vr(raw + k, 2)}, v{vMB} offset0:{k} offset1:{k + 1}')
        a(f'ds_read_b32 v{raw + 24}, v{vMB} offset:{24 * 256}')
        a('s_waitcnt lgkmcnt(0)')
        for vec, dst in ((0, vGA), (1, vGS), (2, vGC), (4, vVV)):
            for j in range(5):
                unpack(dst + tm(j, 0), dst + tm(j, 1), raw + 5 * vec + j)
        GB = Rb
        for j in range(5):
            unpack(GB + tm(j, 0), GB + tm(j, 1), raw + 15 + j)
        t0, t1, t2 = Rc + 2, Rc + 4, Rc + 6
        dot10(t0, vVV, vGS)
        for h in range(0, 10, 2):
            a(f'v_pk_mul_f32 {vr(vVV + h, 2)}, {vr(vVV + h, 2)}, {vr(vGC + h, 2)}')
        sum10(t1, vVV)
        a(f'v_mov_b32 v{t2}, s{sM1B}')
        for h in range(0, 10, 2):
            a(f'v_pk_mul_f32 {vr(vGC + h, 2)}, {vr(vGC + h, 2)}, {vr(GB + h, 2)}')
            a(f'v_pk_fma_f32 {vr(vGS + h, 2)}, {vr(vGS + h, 2)}, {vr(GB + h, 2)}, {vr(t2, 2)} op_sel:[0,0,0] op_sel_hi:[1,1,0]')
        wave_sum([t1, t0], [sV1, sV2])

    if MATS == 0:
        p3_mats()
    a('s_waitcnt lgkmcnt(0)')
    bar('B5b')
    stamp('B5b done')
    fine('p2', 'B5b')
    if P3FIRST:
        p3_setup()
    else:
        a(f's_cmp_ge_u32 s{sIdx}, {NJ}')
        a(f's_cselect_b32 s{sCand}, 8, s{sW}')
        a(f's_cmp_lt_u32 s{sCand}, 6')
        a('s_cbranch_scc1 L_p3later')
        p3_setup()
        a.label('L_p3later')
    if DR2:
        a('s_waitcnt vmcnt(0)')
    if PACE2:
        a(f's_sleep {PACE2}')
    a(f's_cmp_ge_u32 s{sIdx}, {NJ}')
    a('s_cbranch_scc0 L_nob5c')
    bar('B5c')
    a.label('L_nob5c')
    a(f's_cmp_ge_u32 s{sW}, 6')
    a('s_cbranch_scc1 L_b6')
    stamp('T2 poll')
    fine('p2', 'T2 poll')

    def p3_behind():
        a(f's_cmp_lt_u32 s{sCand}, 6')
        a('s_cbranch_scc0 L_p3done')
        p3_setup()
        a.label('L_p3done')
    tpoll(tl, lanes_s=sr(sLn), between=None if P3FIRST else p3_behind)
    stamp('T2 in')
    fine('p3', 'T2 in')
    a(f'''
    v_swap_b32 v{Ra + 1}, v{Ra + 4}
    v_swap_b32 v{Ra + 3}, v{Ra + 6}
    ''')
    for n, r in ((0, Ra), (1, Ra + 4), (2, Ra + 2), (3, Ra + 6)):
        mfma16(RD + 4 * n, vM8I, r)
    for n in range(4):
        for jj in range(2):
            a(f'v_cvt_pk_bf16_f32 v{Rb + 2 * n + jj}, v{RD + 4 * n + 2 * jj + 1}, v{RD + 4 * n + 2 * jj}')
        a(f'ds_write_b64 v{vPairX if n == 3 else vPair}, {vr(Rb + 2 * n, 2)} offset:{8 * n}')
    a('s_waitcnt lgkmcnt(0)')
    a.label('L_b6')
    fine('p3', 'pre-B6')
    bar('B6')
    fine('p3', 'B6')
    for u in range(2):
        for r in (0, 2):
            a(f'ds_read2_b32 {vr(Rb + 4 * u + r, 2)}, v{vSg1 if u else vSg0} offset0:{80 * r} offset1:{80 * r + 80}')
    for ks in range(2):
        a(f's_waitcnt lgkmcnt({2 - 2 * ks})')
        for t in range(2):
            for e in range(2):
                d = RD + 8 * t + 4 * e
                mfma32(d, Rb + 4 * ks, vF32 + 16 * t + 8 * (1 - e) + 4 * ks, d if ks else None)
    fine('p3', 'mfma1 issued')
    for t, tmp in ((0, Ra), (1, Rc)):
        cmul(tmp, tmp + 4, RD + 8 * t, RD + 8 * t + 4, vTW + 8 * t, vTW + 8 * t + 4, +1, pk=PK[2] == '1', n=3)
        pack4(Rb + 4 * t, tmp, tmp + 4, n=3)
        a(f'v_mov_b32 v{Rb + 4 * t + 3}, 0')
    Y = RD
    mfma32(Y, vF20, Rb)
    mfma32(Y + 8, vF20 + 4, Rb)
    mfma32(Y + 4, vF20, Rb + 4)
    mfma32(Y + 8, vF20 + 8, Rb + 4, Y + 8)
    fine('p3', 'mfma2 issued')
    X1 = vXS
    s1, s2, s3, s4 = Ra, Ra + 1, Ra + 2, Ra + 3
    for k in range(10):
        a(f'v_fmac_f32 v{X1 + k}, v{Y + k}, v{vGA + k}')
        if k == 1:
            a(f'v_mul_f32 v{s2}, v{X1}, v{X1}')
            a(f'v_mul_f32 v{s3}, v{X1}, v{vVV}')
        if k >= 2:
            a(f'v_add_f32 v{s1}, v{X1 + k - 1}, v{X1 if k == 2 else s1}')
            a(f'v_fmac_f32 v{s2}, v{X1 + k - 1}, v{X1 + k - 1}')
            a(f'v_fmac_f32 v{s3}, v{X1 + k - 1}, v{vVV + k - 1}')
    a(f'v_fmac_f32 v{s3}, v{X1 + 9}, v{vVV + 9}')
    a(f'v_add_f32 v{s1}, v{X1 + 9}, v{s1}')
    a(f'v_fmac_f32 v{s2}, v{X1 + 9}, v{X1 + 9}')
    fine('p3', 'partials')
    a(f'''
    v_permlane32_swap_b32 v{s3}, v{s4}
    v_permlane32_swap_b32 v{s1}, v{s2}
    v_add_f32 v{s3}, v{s3}, v{s4}
    v_add_f32 v{s1}, v{s1}, v{s2}
    v_permlane16_swap_b32 v{s1}, v{s3}
    v_add_f32 v{s1}, v{s1}, v{s3}
    ''')
    for c in ('row_ror:8', 'row_ror:4', 'row_ror:2', 'row_ror:1'):
        dpp('v_add_f32', s1, c)
    a(f'''
    v_readlane_b32 s{sU0}, v{s1}, 0
    v_readlane_b32 s{sU2}, v{s1}, 32
    v_readlane_b32 s{sU3}, v{s1}, 16
    ''')
    fine('p3', 'reduced')
    k0 = Rc
    cE = vM8F
    cI, cK, cT, cO = vE0 + 7, vE0 + 3, Ra + 7, vE0 + 4
    m = Ra + 1
    a(f'''
    v_mul_f32 v{m + 2}, s{sU0}, v{cI}
    v_fma_f32 v{k0}, v{m + 2}, v{m + 2}, v{cE}
    v_mov_b32 v{m + 3}, s{sU3}
    v_fmac_f32 v{k0}, s{sU2}, v{cI}
    v_fmac_f32 v{m + 3}, s{sV1}, v{m + 2}
    v_sub_f32 v{m + 1}, v{cE}, v{k0}              ; var
    v_rsq_f32_e64 v{k0}, -v{k0}
    v_mov_b32 v{cT}, s{sTag}
    s_mov_b64 exec, 1
    v_fma_f32 v{m + 3}, v{m + 3}, v{k0}, s{sV2}   ; r
    v_ashrrev_i32 v{m + 4}, 31, v{m + 3}
    v_or_b32 v{m + 4}, 0x80000000, v{m + 4}
    v_xor_b32 v{m + 3}, v{m + 3}, v{m + 4}
    v_and_b32 v{m + 3}, 0xfffff800, v{m + 3}
    v_or_b32 v{m + 3}, s{sKey}, v{m + 3}
    ds_max_u32 v{cK}, v{m + 3}
    ds_add_rtn_u32 v{m + 4}, v{cK}, v{cO} offset:8
    ds_read_b32 v{Ra + 6}, v{cK}
    v_readfirstlane_b32 s{sKey}, v{m + 3}
    s_waitcnt lgkmcnt(0)
    v_cmpx_eq_u32 vcc, 7, v{m + 4}
    s_cbranch_execz L_notlast
    global_store_dwordx2 v{vL4}, {vr(Ra + 6, 2)}, {sr(sRec)} sc1
    L_notlast:
    s_mov_b64 exec, -1
    ''')
    fine('p3', 'key')
    bar('B7')
    fine('p3', 'B7')
    a(f'''
    ds_read_b32 v{Ra + 6}, v{cK}
    v_sub_f32 v{m + 2}, s{sM1B}, v{m + 2}
    ''')
    rbf(m + 2, f'v{m + 2}')
    rstd_chain(m + 1, k0)
    a(f'''
    v_sub_f32 v{m + 2}, s{sM1B}, v{m + 2}
    v_mul_f32 v{k0 + 1}, v{m + 2}, v{k0}
    ''')
    ZN = vGA
    for h in range(0, 10, 2):
        a(f'v_pk_fma_f32 {vr(ZN + h, 2)}, {vr(X1 + h, 2)}, {vr(k0, 2)}, {vr(k0, 2)} op_sel:[0,0,1] op_sel_hi:[1,0,1]')
    vO = vXS

    def out_math():
        for h in range(0, 10, 2):
            a(f'v_pk_add_f32 {vr(Y + h, 2)}, {vr(X1 + h, 2)}, {vr(vGS + h, 2)}')
        for h in range(0, 10, 2):
            a(f'v_pk_fma_f32 {vr(Y + h, 2)}, {vr(ZN + h, 2)}, {vr(vGC + h, 2)}, {vr(Y + h, 2)}')
        if opt('inject', None):
            if opt('injall', None):
                for k in range(10):
                    a(f'v_mul_f32 v{Y + k}, {hex(f2u(1 + float(opt("inject", 0))))}, v{Y + k}')
            else:
                a(f's_cmp_eq_u32 s{sRow}, 0')
                a('s_cselect_b64 exec, 1, 0')
                a(f'v_add_f32 v{Y}, {hex(f2u(float(opt("inject", 0))))}, v{Y}')
                a('s_mov_b64 exec, -1')
        for j in range(5):
            a(f'v_cvt_pk_bf16_f32 v{vO + j}, v{Y + tm(j, 0)}, v{Y + tm(j, 1)}')
    a(f'''
    s_waitcnt lgkmcnt(0)
    v_readfirstlane_b32 s{sU0}, v{Ra + 6}
    s_cmp_eq_u32 s{sU0}, s{sKey}
    s_cselect_b32 s{sCand}, 1, 0
    s_cbranch_scc1 L_cand
    ''')
    out_math()
    a('s_branch L_keys')
    a.label('L_cand')
    raw, SB, CB, H, Bq = 60, 70, 80, 92, 108
    for k in range(0, 10, 2):
        a(f'ds_read2st64_b32 {vr(raw + k, 2)}, v{vMB} offset0:{5 + k} offset1:{6 + k}')
    for qd in range(4):
        a(f'v_mov_b32 v{H + 4 * qd + 3}, s{sTag}')
    a('s_waitcnt lgkmcnt(0)')
    for j in range(5):
        unpack(SB + tm(j, 0), SB + tm(j, 1), raw + j)
        unpack(CB + tm(j, 0), CB + tm(j, 1), raw + 5 + j)
    for t in range(2):
        for j in range(5):
            k = tm(j, t)
            a(f'v_fma_f32 v{H + 8 * t + j + (j >= 3)}, v{ZN + k}, v{CB + k}, v{SB + k}')
        for qd in range(2):
            a(f'global_store_dwordx4 v{vL16}, {vr(H + 8 * t + 4 * qd, 4)}, {sr(sRec)} offset:{REC_H2 + 2048 * t + 1024 * qd} sc1')
    out_math()

    def out_row():
        for j in range(5):
            a(f'global_store_dword v{vL4}, v{vO + j}, {sr(sXrow)} offset:{256 * j} sc1')
    out_row()
    a.label('L_keys')
    stamp('key out')
    fine('p3', 'key out')
    bar('B7b (candidate stores are out, the helpers have ended)')
    a(f'''
    s_cmp_ge_u32 s{sRi}, 20
    s_cselect_b32 s{sT}, 1, s{sCand}
    s_cmp_lg_u32 s{sT}, 0
    s_cbranch_scc1 L_noout
    ''')
    out_row()
    a('s_branch L_fin')
    a.label('L_noout')
    vEW, vFW = 48, 88
    vRed, vRd, vRow = 15, 16, 17
    a(f'''
    s_cmp_lt_u32 s{sRi}, 20
    s_cbranch_scc1 L_no_ew
    s_mul_i32 s{sT}, s{sW}, 5120
    s_add_u32 s{sT}, s{sT}, {EW}
    v_add_u32 v{Rb}, s{sT}, v{vL16}
    s_mul_i32 s{sT}, s{sW}, 320
    s_add_u32 s{sT}, s{sT}, {FW}
    v_min_u32 v{vE0 + 1}, {39 * 8}, v{vE0}
    v_add_u32 v{vE0 + 1}, s{sT}, v{vE0 + 1}
    ''')
    for j in range(5):
        a(f'ds_read_b128 {vr(vEW + 20 + 4 * j, 4)}, v{Rb} offset:{1024 * j}')
    a(f'''
    v_and_b32 v{vRed}, 1, v{vL}
    v_lshlrev_b32 v{vRed}, 7, v{vRed}
    v_and_b32 v{vRd}, 48, v{vL}
    v_lshl_add_u32 v{vRed}, v{vRd}, 1, v{vRed}
    s_lshr_b32 s{sU1}, s{sW}, 2
    s_lshl_b32 s{sU1}, s{sU1}, 8
    s_and_b32 s{sT}, s{sW}, 3
    s_lshl_b32 s{sT}, s{sT}, 2
    s_add_u32 s{sU1}, s{sU1}, s{sT}
    s_add_u32 s{sU1}, s{sU1}, {RED}
    v_add_u32 v{vRed}, s{sU1}, v{vRed}
    v_and_b32 v{vRd}, 0xf0, v{vL16}
    v_bfe_u32 v{vRow}, v0, 2, 6                    ; lane' = (t'>>1)>>1
    v_bfe_u32 v18, v0, 1, 1                        ; t
    v_lshlrev_b32 v{vRow}, 4, v{vRow}
    v_lshl_add_u32 v{vRow}, v18, 11, v{vRow}
    v_add_u32 v{vRow}, {REC_G + REC_H2}, v{vRow}
    v_mov_b32 v18, 0xffffff00
    s_mul_i32 s{sU1}, s{sX}, 12
    s_add_u32 s{sU1}, s{sU1}, s{sRi}
    s_mul_i32 s{sU1}, s{sU1}, {PY_STRIDE}
    s_mul_i32 s{sT}, s{sW}, 640
    s_add_u32 s{sU1}, s{sU1}, s{sT}
    ''')
    base_add(sBb, WS, sU1, PY_G - 20 * PY_STRIDE)
    a('s_waitcnt lgkmcnt(0)')
    if KD == 1:
        bar('B7c')
    for k in range(20):
        unpack(vEW + 2 * k, vEW + 2 * k + 1, vEW + 20 + k)

    def fw_unpack():
        a(f's_cmp_ge_u32 s{sW}, 4')
        a('s_cbranch_scc1 L_no_fw')
        for u in range(16):
            if u == 8:
                a('s_waitcnt lgkmcnt(0)')
            a(f'ds_read_b64 {vr(vFW + 32 + 2 * u, 2)}, v{vE0 + 1} offset:{1280 * u}')
        a('s_waitcnt lgkmcnt(0)')
        for k in range(32):
            unpack(vFW + 2 * k, vFW + 2 * k + 1, vFW + 32 + k)
        a.label('L_no_fw')
    if not FWL:
        fw_unpack()
    a.label('L_no_ew')
    a(f's_cmp_eq_u32 s{sCand}, 0')
    a('s_cbranch_scc1 L_nobase')
    Bq = 20
    a(f'v_add_u32 v19, {REC_BASE}, v{vL16}')
    for t in range(2):
        for j in range(5):
            a(f'v_mov_b32 v{Bq + 8 * t + j + (j >= 3)}, v{Y + tm(j, t)}')
        for qd in range(2):
            a(f'v_mov_b32 v{Bq + 8 * t + 4 * qd + 3}, s{sTag}')
    a('s_waitcnt vmcnt(0)')
    for t in range(2):
        for qd in range(2):
            a(f'global_store_dwordx4 v19, {vr(Bq + 8 * t + 4 * qd, 4)}, {sr(sRec)} offset:{2048 * t + 1024 * qd} sc1')
    a.label('L_nobase')
    a(f'''
    s_cmp_lt_u32 s{sRi}, 20
    s_cbranch_scc1 L_fin
    v_mov_b32 v{Rb + 2}, {KEYL + 4}
    {'s_barrier' if KD == 2 else ''}
    ''')
    a.label('L_b8')
    fine('e', 'pre-B8')
    a('s_barrier                                   ; B8')
    a(f'''
    ds_read_b32 v{Rb + 3}, v{Rb + 2}
    s_movk_i32 s{sT}, {REC_STRIDE}
    s_waitcnt lgkmcnt(0)
    v_and_b32 v{Rb + 4}, 255, v{Rb + 3}
    v_mad_u32_u24 v{vRow}, v{Rb + 4}, s{sT}, v{vRow}
    ''')
    stamp('B8 done (winner)')
    fine('e', 'B8+')

    def late_out():
        a(f'v_readfirstlane_b32 s{sU0}, v{Rb + 3}')
        a(f's_cmp_lg_u32 s{sCand}, 0')
        a('s_cbranch_scc1 L_noout2')
        out_row()
        a.label('L_noout2')
        if FWL:
            fw_unpack()
        a(f's_cmp_lg_u32 s{sCand}, 0')
        a('s_cbranch_scc1 L_noout4')
        a('s_waitcnt vmcnt(5)')
        a.label('L_noout3')
        late.append(lambda: (a.label('L_noout4'), a('s_waitcnt vmcnt(0)'), a('s_branch L_noout3')))
    poll([f'global_load_dwordx4 v[20:23], v{vRow}, {sr(WS)} sc1',
          f'global_load_dwordx4 v[24:27], v{vRow}, {sr(WS)} offset:1024 sc1'], [23, 27], [30, 32], empty='word',
         between=late_out, younger=63)
    stamp('row in')
    fine('e', 'row in')
    acc = 36
    for j in range(5):
        for k in range(4):
            w_ = vr(vEW + 8 * j + 2 * k, 2)
            xr = 20 + j + (j >= 3)
            x_ = vr(xr & ~1, 2)
            if j == 0:
                a(f'v_pk_mul_f32 {vr(acc + 2 * k, 2)}, {w_}, {x_} op_sel:[0,0] op_sel_hi:[1,0]')
            else:
                a(f'v_pk_fma_f32 {vr(acc + 2 * k, 2)}, {w_}, {x_}, {vr(acc + 2 * k, 2)} {BC1 if xr & 1 else BC0}')
    swap_reduce8(acc)
    for c in ('row_ror:8', 'row_ror:4', 'row_ror:2'):
        dpp('v_add_f32', acc, c)
        dpp('v_add_f32', acc + 1, c)
    a(f'''
    s_mov_b32 exec_lo, 0x00030003
    s_mov_b32 exec_hi, 0x00030003
    ds_write2_b32 v{vRed}, v{acc}, v{acc + 1} offset0:0 offset1:4
    s_mov_b64 exec, -1
    s_cmp_ge_u32 s{sW}, 4
    s_waitcnt lgkmcnt(0)
    ''')
    fine('e', 'pre-B9')
    bar('B9')
    fine('e', 'B9')
    a(f'''
    s_cbranch_scc1 L_e_done
    ds_read_b128 v[20:23], v{vRd} offset:{RED}
    ds_read_b128 v[24:27], v{vRd} offset:{RED + 256}
    s_waitcnt lgkmcnt(0)
    v_pk_add_f32 v[20:21], v[20:21], v[22:23]
    v_pk_add_f32 v[24:25], v[24:25], v[26:27]
    v_add_f32 v20, v20, v21
    v_add_f32 v24, v24, v25
    v_mul_f32 v21, 0xbfb8aa3b, v20
    v_exp_f32 v21, v21
    v_mul_f32 v20, v20, v24
    v_add_f32 v21, 1.0, v21
    v_rcp_f32 v21, v21
    v_mul_f32 v20, v20, v21
    ''')
    fine('e', 'gu')
    sG = 8
    for u in range(16):
        a(f'v_readlane_b32 s{sG + u}, v20, {u}')
    for u in range(16):
        for hh in range(2):
            w_ = vr(vFW + 4 * u + 2 * hh, 2)
            g_ = sr(sG + (u & ~1))
            d_ = vr(36 + 2 * hh, 2)
            if u == 0:
                a(f'v_pk_mul_f32 {d_}, {w_}, {g_} op_sel:[0,0] op_sel_hi:[1,0]')
            else:
                a(f'v_pk_fma_f32 {d_}, {w_}, {g_}, {d_} {BC1 if u & 1 else BC0}')
    for k in range(4):
        a(f'v_and_or_b32 v{36 + k}, v{36 + k}, v18, s{sTB + k}')
    a('s_mov_b32 exec_hi, 0xff')
    a(f'global_store_dwordx4 v{vL16}, v[36:39], {sr(sBb)} sc1')
    a('s_mov_b64 exec, -1')
    stamp('PY out')
    fine('e', 'PY out')
    a('s_waitcnt vmcnt(0)')
    a.label('L_e_skip')
    bar('B10')
    a('s_branch L_fin')
    a.label('L_e_done')
    a(f'''
    s_mul_i32 s{sU2}, s{sX}, 10
    s_add_u32 s{sU2}, s{sU2}, s{sRi}
    s_sub_u32 s{sU2}, s{sU2}, 20                   ; f
    s_cmp_lg_u32 s{sW}, 5
    s_cbranch_scc1 L_e_skip
    s_cmp_ge_u32 s{sRi}, 30
    s_cbranch_scc1 L_e_skip
    s_and_b32 s{sU1}, s{sU0}, 255
    s_mul_i32 s{sU1}, s{sU1}, {REC_STRIDE}
    ''')
    base_add(sBa, WS, sU1, REC_G)
    a(f'''
    v_and_b32 v20, 1, v{vL}
    v_lshrrev_b32 v21, 4, v{vL}
    v_lshl_add_u32 v20, v20, 2, v21
    s_lshl_b32 s{sT}, s{sU2}, 3
    v_add_u32 v20, s{sT}, v20                      ; d
    v_lshlrev_b32 v21, 1, v20
    v_add_u32 v21, {MODB_L + 3840}, v21
    v_mov_b32 v22, 0
    ds_read_u16_d16_hi v22, v21                    ; gb[d]
    s_lshr_b32 s{sU3}, s{sU2}, 4                   ; j
    s_cmp_ge_u32 s{sU3}, 3
    s_cselect_b32 s{sT}, 3, 0
    s_sub_u32 s{sU3}, s{sU3}, s{sT}
    s_mul_i32 s{sT}, s{sT}, 342
    s_and_b32 s{sT}, s{sT}, 1024
    s_add_u32 s{sT}, s{sT}, {REC_BASE}
    v_bfe_u32 v24, v20, 1, 6                       ; lane'
    v_and_b32 v25, 1, v20                          ; t
    v_lshlrev_b32 v26, 11, v25
    v_lshl_add_u32 v26, v24, 4, v26
    v_add_u32 v26, s{sT}, v26
    ''')
    poll([f'global_load_dwordx4 v[32:35], v26, {sr(sBa)} sc1'], [35], [], empty='word')
    a(f'''
    s_cmp_eq_u32 s{sU3}, 1
    s_cselect_b64 vcc, -1, 0
    v_cndmask_b32 v27, v32, v33, vcc
    s_cmp_eq_u32 s{sU3}, 2
    s_cselect_b64 vcc, -1, 0
    v_cndmask_b32 v27, v27, v34, vcc
    ''')
    a(f'''
    s_and_b32 s{sU1}, s{sU0}, 0xfffff800
    s_or_b32 s{sU1}, s{sU1}, 0x400
    s_xor_b32 s{sU3}, s{sU1}, 0x80000000
    s_not_b32 s{sT}, s{sU1}
    s_cmp_lt_i32 s{sU1}, 0
    s_cselect_b32 s{sU1}, s{sU3}, s{sT}
    v_mov_b32 v28, s{sU1}
    ''')
    a(f'''
    v_mul_f32 v28, 0xbfb8aa3b, v28
    v_exp_f32 v28, v28
    v_add_f32 v28, 1.0, v28
    v_rcp_f32 v28, v28
    ''')
    a(f'''
    s_and_b32 s{sU1}, s{sU0}, 0x7ff
    s_mul_i32 s{sU1}, s{sU1}, 1280
    v_lshlrev_b32 v20, 1, v20
    v_lshrrev_b32 v29, 1, v{vL}
    v_mul_u32_u24 v29, {PY_STRIDE}, v29
    v_and_b32 v30, 16, v{vL16}
    v_add_u32 v29, v29, v30
    v_add_u32 v30, {32 * PY_STRIDE}, v29
    v_add_u32 v31, {64 * PY_STRIDE}, v29
    s_lshl_b32 s{sU2}, s{sU2}, 5
    ''')
    base_add(sXrow, OUTP, sU1)
    base_add(sBb, WS, sU2, PY_G)
    a('s_waitcnt lgkmcnt(0)')
    a('v_mul_f32 v22, v22, v28')
    bar('B10')
    stamp('PY poll')
    fine('e', 'PY poll')
    poll([f'global_load_dwordx4 {vr(36 + 4 * n, 4)}, v{29 + n}, {sr(sBb)} sc1' for n in range(3)],
         list(range(36, 48)), [48, 49], empty='tag')
    a(f'''
    v_pk_add_f32 v[36:37], v[36:37], v[40:41]
    v_pk_add_f32 v[38:39], v[38:39], v[42:43]
    v_pk_add_f32 v[36:37], v[36:37], v[44:45]
    v_pk_add_f32 v[38:39], v[38:39], v[46:47]
    v_permlane32_swap_b32 v36, v38
    v_permlane32_swap_b32 v37, v39
    v_pk_add_f32 v[36:37], v[36:37], v[38:39]
    v_permlane16_swap_b32 v36, v37
    v_add_f32 v36, v36, v37
    ''')
    for c in ('row_ror:8', 'row_ror:4', 'row_ror:2'):
        dpp('v_add_f32', 36, c)
    a(f'''
    v_fma_f32 v36, v36, v22, v27
    v_cvt_pk_bf16_f32 v36, v36, v36
    s_mov_b32 exec_lo, 0x00030003
    s_mov_b32 exec_hi, 0x00030003
    global_store_short v20, v36, {sr(sXrow)} sc1
    s_mov_b64 exec, -1
    ''')
    a.label('L_fin')
    stamp('end')
    fine('e', 'end')
    if FINE:
        a('s_waitcnt lgkmcnt(0)')
    dump_stamps()
    a.label('L_end')
    a('s_endpgm')
    flush_late()


sF1, sF2, sPb, sGw, sWb = 56, 58, 60, 62, 64


def publish():
    a(f'''
    ds_read_b128 v[40:43], v28 offset:{RED}
    ds_read_b128 v[44:47], v28 offset:{RED + 16}
    s_waitcnt lgkmcnt(0)
    v_pk_add_f32 v[40:41], v[40:41], v[42:43]
    v_pk_add_f32 v[44:45], v[44:45], v[46:47]
    v_add_f32 v40, v35, v40
    v_pk_add_f32 v[40:41], v[40:41], v[44:45]
    v_add_f32 v40, v40, v41
    v_and_or_b32 v40, v40, v33, v34
    global_store_dword v{vL4}, v40, {sr(sPb)} sc1
    ''')
    stamp('published', 'H0')


def w_addr():
    a(f'''
    s_mul_i32 s{sU1}, s{sIdx}, 15
    s_min_u32 s{sU1}, s{sU1}, 306
    s_add_u32 s{sT}, s{sU1}, s{sX}
    s_and_b32 s{sT}, s{sT}, 1
    s_sub_u32 s{sU1}, s{sU1}, s{sT}
    s_mul_i32 s{sU0}, s{sX}, 321
    s_add_u32 s{sU1}, s{sU1}, s{sU0}
    s_lshl_b32 s{sU1}, s{sU1}, 1
    v_lshrrev_b32 v90, 1, v{vL}
    v_mul_u32_u24 v90, 5136, v90
    v_lshlrev_b32 v91, 1, v{vL}
    v_xor_b32 v91, v{vL16}, v91
    v_and_b32 v91, 16, v91
    v_add3_u32 v100, v90, v91, s{sU1}
    ''')


def w_gather(arr, lds):
    for n in range(8):
        a(f's_mov_b32 m0, {lds + 1024 * n}')
        a(f'global_load_lds_dwordx4 v100, {sr(arr)}')
        if n < 7:
            a(f'v_add_u32 v100, {32 * 5136}, v100')


def mask_lanes(n):
    if n >= 64:
        return
    if n > 32:
        a(f's_mov_b32 exec_hi, {hex((1 << (n - 32)) - 1)}')
    else:
        a(f's_mov_b64 exec, {hex((1 << n) - 1)}')


def warm_addr_w():
    a(f'''
    s_sub_u32 s{sU0}, s{sRi}, 10
    s_mul_i32 s{sU3}, s{sU0}, 70
    s_movk_i32 s{sU2}, 0x2aab
    s_mul_i32 s{sU1}, s{sX}, 642
    s_movk_i32 s{sT}, 5136
    ''')
    for n in range(2):
        a(f'''
        v_add_u32 v90, s{sU3}, v{vL}
        v_add_u32 v90, {35 * n}, v90
        v_min_u32 v90, 1535, v90
        v_mul_u32_u24 v91, s{sU2}, v90
        v_lshrrev_b32 v91, 16, v91
        v_mul_u32_u24 v92, 6, v91
        v_sub_u32 v92, v90, v92
        v_lshlrev_b32 v92, 7, v92
        v_min_u32 v92, 638, v92
        v_add_u32 v92, s{sU1}, v92
        v_mad_u32_u24 v92, v91, s{sT}, v92
        v_and_b32 v{120 + n}, -4, v92
        ''')


def ffn_parts(slot):
    return [(n, k) for n in range(3) if S_W[n] == slot for k in range(1 if slot == 0 else 2)]


def warm_addr_f(h, slot):
    f, per, lanes = (10, 44, 44) if slot == 0 else (NJ, 96, 48)
    if not ffn_parts(slot):
        return
    a(f'''
    s_sub_u32 s{sU0}, s{sRi}, {f}
    s_mul_i32 s{sU3}, s{sU0}, {per}
    s_mul_i32 s{sU1}, s{sX}, 384
    s_movk_i32 s{sU2}, 0x5556
    s_movk_i32 s{sT}, {3072 - 384}
    s_mul_i32 s{sU0}, s{sX}, 245760
    ''')
    for n, k in ffn_parts(slot):
        d = 130 + 2 * n + k
        a(f'''
        v_add_u32 v90, s{sU3}, v{vL}
        v_add_u32 v90, {lanes * k}, v90
        v_min_u32 v90, 959, v90
        v_add_u32 v90, {960 * (n if n < 2 else h)}, v90
        ''')
        if n < 2:
            a(f'''
            v_mul_u32_u24 v91, s{sU2}, v90
            v_lshrrev_b32 v91, 16, v91
            v_lshl_add_u32 v90, v90, 7, s{sU1}
            v_mad_u32_u24 v{d}, v91, s{sT}, v90
            ''')
        else:
            a(f'v_lshl_add_u32 v{d}, v90, 7, s{sU0}')


def warm_issue(h, slot, sel=None):
    if slot == 0:
        mask_lanes(35)
        for n in range(2):
            a(f'global_load_dword v125, v{120 + n}, {sr(W_R if h else W_I)}')
    ps = ffn_parts(slot) if sel is None else sel
    if ps:
        mask_lanes(44 if slot == 0 else 48)
    for n, k in ps:
        a(f'global_load_dword v125, v{130 + 2 * n + k}, {sr(W_D if n == 2 else (W_G if h else W_U))}')
    a('s_mov_b64 exec, -1')


def e_addr(mat):
    a(f'''
    s_max_u32 s{sU1}, s{sRi}, 20
    s_mul_i32 s{sU0}, s{sX}, 12
    s_add_u32 s{sU0}, s{sU0}, s{sU1}
    s_sub_u32 s{sU0}, s{sU0}, 20
    s_mul_i32 s{sU1}, s{sU0}, 20480
    s_lshl_b32 s{sU0}, s{sU0}, 5
    v_lshrrev_b32 v128, 1, v{vL}
    v_mul_u32_u24 v128, 3072, v128
    v_and_b32 v90, 16, v{vL16}
    v_add_u32 v128, v128, v90
    ''')
    base_add(sF1, mat, sU0)
    base_add(sGw, W_D, sU1, 10240 if mat == W_U else 0)


def if_e(f):
    L = newlabel('ne')
    a(f's_cmp_lt_u32 s{sRi}, 20')
    a(f's_cbranch_scc1 {L}')
    f()
    a.label(L)


def e_gather(half, n0, n1):
    for n in range(n0, n1):
        a(f's_mov_b32 m0, {EW + (n % 4 + 4 * half) * 5120 + (n // 4) * 1024}')
        a(f'global_load_lds_dwordx4 v128, {sr(sF1)}')
        if n < 19:
            a(f'v_add_u32 v128, {32 * 3072}, v128')


def wd_load(half):
    for n in range(10):
        if n % 4 == 0:
            a(f's_mov_b32 m0, {FW + half * 10240 + n * 1024}')
            a(f'v_add_u32 v90, {1024 * n}, v{vL16}')
        a(f'global_load_lds_dwordx4 v90, {sr(sGw)} offset:{1024 * (n % 4)}')


def touch_small():
    if True:
        a(f's_mul_i32 s{sU0}, s{sMe}, {REC_STRIDE}')
        base_add(sBa, WS, sU0, REC_G)
        a(f'''
        s_mov_b64 exec, 0xff
        global_store_dwordx4 v{vL16}, v[20:23], {sr(sBa)} sc1
        s_mov_b64 exec, -1
        ''')
    if True:
        def f():
            a(f'''
            s_mul_i32 s{sU1}, s{sX}, 12
            s_add_u32 s{sU1}, s{sU1}, s{sRi}
            s_mul_i32 s{sU1}, s{sU1}, {PY_STRIDE}
            ''')
            base_add(sBa, WS, sU1, PY_G - 20 * PY_STRIDE)
            a(f'''
            global_store_dwordx4 v{vL16}, v[20:23], {sr(sBa)} sc1
            global_store_dwordx4 v{vL16}, v[20:23], {sr(sBa)} offset:1024 sc1
            s_mov_b32 exec_hi, 0
            global_store_dwordx4 v{vL16}, v[20:23], {sr(sBa)} offset:2048 sc1
            s_mov_b64 exec, -1
            ''')
        if_e(f)


def helper_tail(h, P, red_load, red_work, modf_load, modf_work):
    bar('BT')
    bar('BP')
    if GLATE:
        a(f's_cmp_lt_u32 s{sRi}, 10')
        a(f's_cbranch_scc1 L_gl{h}')
        bar('B1')
        if h == 0:
            a(f's_cmp_lt_u32 s{sRi}, 30')
            a(f's_cbranch_scc0 L_gl{h}')
            publish()
        a.label(f'L_gl{h}')
    a(f's_cmp_ge_u32 s{sIdx}, {NJ}')
    a(f's_cbranch_scc1 L_idle{h}')
    bar('B2')
    red_load()
    w_gather(W_R if h else W_I, WST + (0 if h else 8192))
    bar('B3')
    a('s_waitcnt vmcnt(0)')
    stamp('W in', P)
    if RE:
        red_work()
    bar('B3b')
    if h == 0:
        touch_small()
    if not RE:
        red_work()
    bar('B4')
    a('s_waitcnt vmcnt(0)')
    modf_load()
    if EG3:
        if_e(lambda: e_gather(1 - h, 0, EG3))
    bar('B5')
    if h == 0:
        a(f's_cmp_lt_u32 s{sRi}, 20')
        a(f's_waitcnt vmcnt({EG3})')
        a('s_cbranch_scc0 L_h0_m')
        a('s_waitcnt vmcnt(0)')
        a.label('L_h0_m')
    modf_work()
    bar('B5b')
    bar('B6')
    if_e(lambda: (e_gather(1 - h, EG3, 20), wd_load(1 - h)))
    if h == 0:
        a(f'''
        s_cmp_lg_u32 s2, 8
        s_cbranch_scc1 L_h0_ne
        v_mov_b32 v26, {EPOCH_G}
        s_mov_b64 exec, 1
        global_store_dword v26, v27, {sr(WS)} sc1
        s_mov_b64 exec, -1
        ''')
        a.label('L_h0_ne')
    a.label(f'L_hend{h}')
    a(f'''
    v_mul_u32_u24 v60, {REC_STRIDE}, v{vL}
    v_add_u32 v60, {REC_G + 128 * h * REC_STRIDE}, v60
    v_add_u32 v61, {64 * REC_STRIDE}, v60
    v_mov_b32 v62, {KEYL + 4}
    v_lshlrev_b32 v63, 7, v{vL}
    v_add_u32 v63, {REC_G + REC_H2}, v63
    s_movk_i32 s{sU0}, {REC_STRIDE}
    s_cmp_lt_u32 s{sRi}, 20
    ''')
    bar('B7')
    a('s_waitcnt vmcnt(0)')
    a(f's_cbranch_scc1 L_hx{h}')
    kl = [f'global_load_dwordx2 v[64:65], v60, {sr(WS)} sc1', f'global_load_dwordx2 v[66:67], v61, {sr(WS)} sc1']
    if KP == 1:
        bar('B7b')
    if KD:
        bar('B7c')
    stamp('key poll', P)
    poll(kl, [65, 67], [68, 69], empty='word', between=(lambda: bar('B7b')) if KP == 0 else None)
    a('v_max_u32 v64, v64, v66')
    for c in ('row_ror:8', 'row_ror:4', 'row_ror:2', 'row_ror:1'):
        dpp('v_max_u32', 64, c)
    a(f'''
    s_mov_b32 exec_lo, 0x00010001
    s_mov_b32 exec_hi, 0x00010001
    ds_max_u32 v62, v64
    s_mov_b64 exec, -1
    s_waitcnt lgkmcnt(0)
    ''')
    bar('B8')
    a.label(f'L_hx{h}')
    stamp('end', P)
    dump_stamps(P)
    a('s_endpgm')
    a.label(f'L_idle{h}')
    warm_addr_f(h, 7)
    ps = ffn_parts(7)
    can = [f'global_load_dword v113, v110, {sr(WS)} sc1']
    if h == 1:
        a(f'''
        v_add_u32 v110, s{sIdx}, v{vL}
        v_and_b32 v110, 7, v110
        v_mul_u32_u24 v110, {NJ}, v110
        v_lshrrev_b32 v111, 3, v{vL}
        v_mad_u32_u24 v110, v111, 5, v110
        v_lshlrev_b32 v110, 14, v110
        s_lshl_b32 s{sU0}, s{sMe}, 6
        s_add_u32 s{sU0}, s{sU0}, {T2_G + CANJ * 16384 + 60}
        v_add_u32 v110, s{sU0}, v110
        ''')
        assert CANJ + 5 * max(NCAN // 8 - 1, 0) < NJ
    bar('B2')
    red_load()
    if h == 1:
        mask_lanes(NCAN)
        a(can[0])
        a('s_mov_b64 exec, -1')
    warm_issue(h, 7, ps[:EARLY])
    bar('B3')
    if RE and h == 0:
        a(f's_waitcnt vmcnt({len(ps[:EARLY])})')
        red_work()
        red_work = lambda: None
    bar('B3b')
    ieg = IEG
    if ISEQ == 0:
        warm_issue(h, 7, ps[EARLY:])
        if h == 0:
            a(f's_waitcnt vmcnt({len(ps)})')
            red_work()
            touch_small()
        nd = sum(1 for n, k in ps[EARLY:] if n == 2)
        a(f's_waitcnt vmcnt({nd + (4 if h == 0 else 0)})')
        stamp('warm in', P)
        e_gather(1 - h, 0, MF)
        modf_load()
        e_gather(1 - h, MF, IEG)
        if IWD == 0:
            wd_load(1 - h)
        if h == 0:
            a(f's_waitcnt vmcnt({IEG - MF + 10 * (IWD == 0)})')
        modf_work()
        bar('B5b')
    else:
        assert EARLY == 2 and S_W[0] == 7
        if h == 0:
            a(f's_waitcnt vmcnt({EARLY})')
            red_work()
            touch_small()
        a(f's_waitcnt vmcnt({4 if h == 0 else 0})')
        stamp('warm in', P)
        e_gather(1 - h, 0, 10)
        if ISEQ == 2:
            a('s_waitcnt vmcnt(0)')
            warm_issue(h, 7, ps[EARLY:])
        if h == 0:
            if ISEQ == 1:
                a('s_waitcnt vmcnt(0)')
            modf_load()
            a('s_waitcnt vmcnt(0)')
        modf_work()
        bar('B5b')
        if ISEQ == 1:
            warm_issue(h, 7, ps[EARLY:])
        ieg = max(IEG, 10)
        if ieg > 10:
            a('s_waitcnt vmcnt(0)')
            e_gather(1 - h, 10, ieg)
    a('s_waitcnt vmcnt(0)')
    stamp('ffn in', P)
    if h == 1:
        poll(can, [113], [], mask=NCAN, empty='word')
        stamp('can', P)
    bar('B5c')
    bar('B6')
    e_gather(1 - h, ieg, 20)
    if IWD:
        wd_load(1 - h)
    a(f's_branch L_hend{h}')
    flush_late()


def helper0():
    a.label('L_h0')
    a(f's_mov_b32 s{sHI}, 0xffff0000')
    a(f'''
    v_mov_b32 v20, 0
    v_mov_b32 v21, 0
    v_mov_b32 v22, 0
    v_mov_b32 v23, 0
    v_mov_b32 v28, {KEYL}
    ds_write_b128 v28, v[20:23]
    ''')
    blk_id(sCand)
    warm_addr_w()
    warm_addr_f(0, 0)
    a(f'''
    s_lshl_b32 s{sU2}, s{sCand}, 8
    v_lshlrev_b32 v28, 5, v{vL}
    s_cmp_lt_u32 s{sRi}, 10
    s_waitcnt lgkmcnt(0)
    ''')
    epoch_load()
    if B0 in (1, 2):
        bar('B0')
    a('s_cbranch_scc1 L_h0_s0')
    if B0 == 3:
        bar('B0')
    warm_issue(0, 0)
    a.label('L_h0_s0')
    stamp('kernarg', 'H0')
    base_add(sPb, WS, sU2)
    if True:
        a(f's_cmp_lt_u32 s{sRi}, 10')
        a('s_cbranch_scc0 L_h0_s2')
        a(f'global_store_dword v{vL4}, v20, {sr(sPb)} sc1')
        a('s_waitcnt vmcnt(0)')
        a.label('L_h0_s2')
    e_addr(W_U)
    w_addr()
    a('s_waitcnt lgkmcnt(0)')
    epoch_tag()
    tag_bytes()
    a(f'''
    v_mov_b32 v27, s{sTag}
    v_lshlrev_b32 v34, 3, v{vL}
    v_add_u32 v29, {MODB_L}, v34
    v_and_b32 v34, 24, v34
    v_bfe_u32 v34, v27, v34, 8
    v_mov_b32 v33, 0xffffff00
    s_sub_u32 s{sU0}, s{sCand}, 40
    s_cmp_lt_u32 s{sU0}, 40
    s_cselect_b32 s{sU1}, 1.0, 0
    s_and_b32 s{sU0}, s{sCand}, 3
    s_cselect_b32 s{sU1}, 0, s{sU1}
    v_mov_b32 v35, s{sU1}
    v_add_u32 v30, {MODF_G}, v{vL16}
    v_add_u32 v31, {MODF_G + 4096}, v{vL16}
    v_add_u32 v32, {MODF_G + 8192}, v{vL16}
    s_cmp_lt_u32 s{sRi}, {10 if GLATE else 30}
    ''')
    if GLATE:
        a('s_cbranch_scc0 L_h0_np')
    bar('B1')
    a('s_cbranch_scc0 L_h0_np')
    publish()
    a(f's_cmp_lt_u32 s{sRi}, 10')
    a('s_cbranch_scc0 L_h0_np')
    a('s_waitcnt vmcnt(0)')
    a.label('L_h0_np')
    red = [f'global_load_dwordx4 v[40:43], v{vL16}, {sr(sPb)} sc1']
    modf = [f'global_load_dwordx4 {vr(40 + 4 * n, 4)}, v{30 + n // 4}, {sr(WS)} offset:{1024 * (n % 4)} sc1' for n in range(10)]

    def in_w1(k):
        L = newlabel('nr')
        a(f'''
        s_sub_u32 s{sT}, s{sRi}, 10
        s_cmp_lt_u32 s{sT}, 20
        s_cbranch_scc0 {L}
        s_and_b32 s{sT}, s{sCand}, 3
        s_cbranch_scc1 {L}
        ''')
        if k == 0:
            a(red[0])
            a.label(L)
            return
        poll(red, [40, 41, 42, 43], [44], empty='tag', issued=True, younger=63)
        a(f'''
        v_mov_b32 v44, v40
        v_mov_b32 v45, v41
        v_mov_b32 v46, v42
        v_mov_b32 v47, v43
        s_lshr_b32 s{sU0}, s{sCand}, 2
        s_sub_u32 s{sT}, s{sU0}, 40
        s_cmp_lt_u32 s{sT}, 10
        s_cselect_b32 s{sU1}, 1.0, 0
        s_lshl_b32 s{sU0}, s{sU0}, 8
        s_add_u32 s{sU0}, s{sU0}, {MODF_G - 20 * 256}
        ''')
        for sw in ('32', '16'):
            for r in range(4):
                a(f'v_permlane{sw}_swap_b32 v{40 + r}, v{44 + r}')
            a('v_pk_add_f32 v[40:41], v[40:41], v[44:45]')
            a('v_pk_add_f32 v[42:43], v[42:43], v[46:47]')
            if sw == '32':
                for r in range(4):
                    a(f'v_mov_b32 v{44 + r}, v{40 + r}')
        a('v_cvt_pk_bf16_f32 v44, v40, v41')
        a('v_cvt_pk_bf16_f32 v45, v42, v43')
        unpack(40, 41, 44)
        unpack(42, 43, 45)
        for r in range(4):
            a(f'v_add_f32 v{40 + r}, s{sU1}, v{40 + r}')
        a(f'''
        v_cvt_pk_bf16_f32 v44, v40, v41
        v_cvt_pk_bf16_f32 v45, v42, v43
        v_mov_b32 v47, s{sTag}
        v_add_u32 v48, s{sU0}, v{vL16}
        s_mov_b64 exec, 0xffff
        global_store_dwordx4 v48, v[44:47], {sr(WS)} sc1
        s_mov_b64 exec, -1
        ''')
        stamp('reduced', 'H0')
        a.label(L)

    def in_w2(k):
        if k == 0:
            for ld in modf:
                a(ld)
            return
        poll(modf, [43 + 4 * n for n in range(10)], list(range(80, 90)), empty='words', issued=True, younger=63)
        for n in range(10):
            a(f'ds_write_b64 v29, {vr(40 + 4 * n, 2)} offset:{512 * n}')
        a('s_waitcnt lgkmcnt(0)')
        stamp('modb in', 'H0')
    helper_tail(0, 'H0', lambda: in_w1(0), lambda: in_w1(2), lambda: in_w2(0), lambda: in_w2(1))


def helper1():
    a.label('L_h1')
    a(f'''
    s_getpc_b64 {sr(sBa)}
    L_pc:
    s_add_u32 s{sBb}, s{sBa}, L_tables-L_pc
    s_addc_u32 s{sBb + 1}, s{sBa + 1}, 0
    ''')

    def tabs(q0, q1):
        for q in range(q0, q1):
            if q % 4 == 0 or q == q0:
                a(f's_mov_b32 m0, {TAB + (q & ~3) * 1024}')
                a(f'v_add_u32 v20, {(q & ~3) * 1024}, v{vL16}')
            a(f'global_load_lds_dwordx4 v20, {sr(sBb)} offset:{1024 * (q % 4)}')

    def tab2():
        tabs(NT1, NTAB)
        a(f'''
        s_mov_b32 m0, {WR_L}
        global_load_lds_dwordx4 v{vL16}, {sr(B_WR)}
        s_mov_b64 exec, 0xffff
        global_load_lds_dwordx4 v{vL16}, {sr(B_WR)} offset:1024
        s_mov_b64 exec, -1
        ''')
        return NTAB - 14 + 2

    a(f's_cmp_lt_u32 s{sRi}, 10')
    a('s_cbranch_scc1 L_h1_a')
    warm_addr_w()
    warm_addr_f(1, 0)
    a('s_waitcnt lgkmcnt(0)')
    epoch_load()
    if B0:
        bar('B0')
    tabs(0, NT1)
    tab2()
    warm_issue(1, 0)
    e_addr(W_G)
    w_addr()
    a('s_waitcnt lgkmcnt(0)')
    epoch_tag()
    if not GLATE:
        bar('B1')
    a(f's_waitcnt vmcnt({min(BGWAIT, 2 + len(ffn_parts(0)))})')
    a('s_branch L_h1_u')
    a.label('L_h1_a')
    if B0 in (1, 2):
        bar('B0')
    w_addr()
    a('s_waitcnt lgkmcnt(0)')
    e_addr(W_G)
    bar('B1')
    tabs(0, NT1)
    tab2()
    a('s_waitcnt vmcnt(0)')
    a.label('L_h1_u')
    stamp('tab in', 'H1')
    nop = lambda: None
    helper_tail(1, 'H1', nop, nop, nop, nop)


prologue()
main_path()
helper0()
helper1()
body = a.finish()

hdr = open(f'cdna_kernels/{NAME}.s.ref').read().split('; Override launch')[0]
T = tables()
tab = []
flat = T.reshape(-1)
for k in range(0, flat.size, 8):
    tab.append('.long ' + ','.join('0x%08x' % v for v in flat[k:k + 8]))

launch = f'; @launch grid=(256,1,1) block=(640,1,1) lds={LDS_BYTES}'
pre_code = pre_kd = ''
if PRE:
    launch = f'; @launch kernel=pre_kernel grid=({PRE},1,1) block=(64,1,1) lds=0\n; @launch kernel={NAME}_kernel grid=(256,1,1) block=(640,1,1) lds={LDS_BYTES}'
    pre_code = '.globl pre_kernel\n.p2align 8\n.type pre_kernel,@function\npre_kernel:\n    s_endpgm\n'
    pre_kd = '''.p2align 6
.amdhsa_kernel pre_kernel
  .amdhsa_next_free_vgpr 8
  .amdhsa_next_free_sgpr 16
  .amdhsa_accum_offset 8
  .amdhsa_group_segment_fixed_size 0
  .amdhsa_kernarg_size 104
  .amdhsa_user_sgpr_count 2
  .amdhsa_user_sgpr_kernarg_segment_ptr 1
  .amdhsa_system_sgpr_workgroup_id_x 1
.end_amdhsa_kernel
'''
src = hdr + f'''{launch}
.amdgcn_target "amdgcn-amd-amdhsa--gfx950"
.text
{pre_code}.globl {NAME}_kernel
.p2align 8
.type {NAME}_kernel,@function
{NAME}_kernel:
{body}
.p2align 8
.type L_tables,@object
L_tables:
''' + '\n'.join(tab) + f'''
.size L_tables, {NTAB * 1024}
.fill (8192 - ((. - {NAME}_kernel) & 8191)) & 8191, 1, 0
L_tables_end:
.section .rodata,"a"
.p2align 6
.amdhsa_kernel {NAME}_kernel
  .amdhsa_next_free_vgpr 168
  .amdhsa_next_free_sgpr 102
  .amdhsa_accum_offset 168
  .amdhsa_group_segment_fixed_size 0
  .amdhsa_kernarg_size 104
  .amdhsa_user_sgpr_count 2
  .amdhsa_user_sgpr_kernarg_segment_ptr 1
  .amdhsa_system_sgpr_workgroup_id_x 1
.end_amdhsa_kernel
{pre_kd}'''
open(OUT, 'w').write(src)
print('wrote', OUT, 'lds', LDS_BYTES, 'lines', len(a.lines), 'nops', a.nnops)
```

```python
import sys, struct
import numpy as np
from asmdsl import Asm

NAME = 'adaLN_cond__spectral_gfnet__moe_arch_mod__prompt'
DIAG = '--diag' in sys.argv or '--dbgdiag' in sys.argv
DBGDIAG = '--dbgdiag' in sys.argv
OUT = [a for a in sys.argv[1:] if not a.startswith('--')]
OUT = OUT[0] if OUT else f'cdna_kernels/{NAME}.s'
SPIN = 60000


def opt(name, default):
    for x in reversed(sys.argv):
        if x.startswith(f'--{name}='):
            return x.split('=', 1)[1]
    return default


PROBE = opt('probe', None)
PROBEWG = int(opt('probewg', 8))
FINE = opt('fine', None)
if PROBE or FINE:
    DIAG = True
PRE = None
INPOL = 'nt'
S_W = [int(x) for x in opt('sw', '770')]
EG3 = int(opt('eg3', 10))
PACE1 = int(opt('pace1', 0))
PACE2 = int(opt('pace2', 0))
PK = opt('pk', '110')
P3FIRST = int(opt('p3first', 1))
WFIRST = int(opt('wfirst', 1))
DR1 = int(opt('dr1', 1))
DR2 = int(opt('dr2', 1))
BGWAIT = int(opt('bgwait', 9))
EARLY = int(opt('early', 2))
MATS = int(opt('mats', 2))
IEG = int(opt('ieg', 16))
IWD = int(opt('iwd', 1))
MF = int(opt('mf', 10))
MR = int(opt('mr', 0))
BLOAD = int(opt('bload', 0))
P2ORD = int(opt('p2ord', 1))
GLATE = int(opt('glate', 0))
B0 = int(opt('b0', 0))
FWL = int(opt('fwl', 1))
KP = int(opt('kp', 1))
PF = int(opt('pf', 0))
XL = int(opt('xl', 0))
WC = int(opt('wc', 0))
KD = int(opt('kd', 1))
ISEQ = int(opt('iseq', 0))
RE = int(opt('re', 1))
FINPOL = opt('finpol', '')
PYD = int(opt('pyd', 0))
TCH = opt('tch', 'mkp')
NT = ('k' in TCH) + 3 * ('p' in TCH)
PKS = int(opt('pks', 1))
P3O = int(opt('p3o', 0))
PRIO = opt('prio', '000')
NCAN = int(opt('ncan', 1))
CANJ = int(opt('canj', 12))
NJ = 22
T1S = 8 * NJ * 64

MODA_G = 0
MODF_G = 61440
EPOCH_G = 73728
PY_G = 0x20000
PY_STRIDE = 2688
REC_G = 0x80000
REC_STRIDE = 4224
REC_H2 = 128
REC_BASE = 128 + 2048
T1_G = 0x400000
T2_G = 0x800000
DIAG_G = 0xC00000

NTAB = 26
TAB = 0
RED = TAB + NTAB * 1024
KEYL = RED + 2048
XB2 = KEYL + 64
SA = 736
XB1 = XB2 + 20480
MODA_L = XB1 + 16 * SA
MODB_L = MODA_L + 5120
WR_L = MODB_L + 5120
WST = WR_L + 2048
EW = WST + 16384
FW = EW + 40960
STL = FW + 20480
LDS_BYTES = STL + 256
assert LDS_BYTES <= 163840, LDS_BYTES

T_F20C, T_F20S, T_TW1, T_F32A, T_ADR, T_TW3, T_F20I, T_F32B, T_F16, T_TW2 = 0, 1, 2, 6, 10, 11, 15, 18, 22, 24
NT1 = 11


def f2u(x):
    return struct.unpack('<I', struct.pack('<f', float(x)))[0]


def bf(x):
    u = f2u(x)
    return ((u + 0x7FFF + ((u >> 16) & 1)) >> 16) & 0xFFFF


def pk(lo, hi):
    return bf(lo) | (bf(hi) << 16)


ALPHA = {16: 1.1328, 20: 1.4294, 32: 1.62445}


def cs(num, den):
    a = 2 * np.pi * (num % den) / den
    c, s = np.cos(a), np.sin(a)
    if abs(c) < 1e-12: c = 0.0
    if abs(s) < 1e-12: s = 0.0
    al = ALPHA.get(den, 1.0)
    return c * al, s * al


def kaof(x):
    ka = 3 * (x >> 2) + (x & 3)
    return ka if (x & 3) < 3 and ka <= 10 else None


def tables():
    T = np.zeros((NTAB, 64, 4), np.uint32)
    for l in range(64):
        i, g = l & 15, l >> 4
        c8, s8 = [0.0] * 8, [0.0] * 8
        for j in range(5):
            if kaof(i) is not None:
                c, s = cs((4 * j + g) * kaof(i), 20)
                c8[j], s8[j] = c, -s
        for d in range(4):
            T[T_F20C, l, d] = pk(c8[2 * d], c8[2 * d + 1])
            T[T_F20S, l, d] = pk(s8[2 * d], s8[2 * d + 1])
        for t in range(2):
            for r in range(4):
                c, s = cs((8 * g + 2 * r + t) * (kaof(i) or 0), 640)
                T[T_TW1 + 2 * t, l, r] = f2u(c)
                T[T_TW1 + 2 * t + 1, l, r] = f2u(s)
                c, s = cs((2 * i + t) * (kaof(4 * g + r) or 0), 640)
                T[T_TW3 + 2 * t, l, r] = f2u(c)
                T[T_TW3 + 2 * t + 1, l, r] = f2u(s)
        kbof = lambda e: e if e < 16 else 47 - e
        for tile in range(2):
            for ks in range(2):
                for r in range(4):
                    c, s = cs(kbof(2 * i + tile) * (8 * g + 2 * r + ks), 32)
                    T[T_F32A + tile * 2 + ks, l, r] = pk(c, s)
                    c, s = cs((2 * i + tile) * kbof(8 * g + 2 * r + ks), 32)
                    T[T_F32B + tile * 2 + ks, l, r] = pk(c, s)
        ka_ = kaof(i)
        k0 = 0 if ka_ is None else (160 * g + ka_ if g < 2 else 160 * g - 300 - ka_)
        T[T_ADR, l, 0] = 8 * k0
        T[T_ADR, l, 1] = 0x8000 if i < 8 else 0x80000000
        T[T_ADR, l, 2] = 0 if g < 2 else 0x8000
        T[T_ADR, l, 3] = 0x8000 if g < 2 else 0
        for r in range(4):
            c, s = cs(i * (4 * g + r), 16)
            T[T_F16, l, r] = pk(c, s)
            T[T_F16 + 1, l, r] = pk(-s, c)
            c, s = cs(i * (4 * g + r), 256)
            T[T_TW2, l, r] = f2u(c)
            T[T_TW2 + 1, l, r] = f2u(s)
            ka = kaof(4 * g + r)
            if ka is not None:
                a1 = 4 * (i & 3) + (i >> 2)
                c, s = cs(a1 * ka, 20)
                T[T_F20I, l, r] = pk(c, -s)
                c, s = cs((16 + (i >> 2)) * ka, 20)
                if (i & 3) == 0:
                    T[T_F20I + 1, l, r] = pk(c, -s)
                if (i & 3) == 1:
                    T[T_F20I + 2, l, r] = pk(c, -s)
    return T


def vr(a, n=1):
    return f'v{a}' if n == 1 else f'v[{a}:{a + n - 1}]'


def sr(a, n=2):
    return f's{a}' if n == 1 else f's[{a}:{a + n - 1}]'


sW, sX, sIdx, sMe, sT = 3, 4, 5, 6, 7
A_X, W_R, W_I, B_WR, W_G, W_U, W_D = 8, 10, 12, 16, 18, 20, 22
C_, W_MOD, OUTP, DBG, WS = 24, 26, 28, 30, 32
sBa, sBb, sBc = 34, 36, 38
sCnt = 40
sM1B = 41
sU0, sU1, sU2, sU3 = 42, 43, 46, 47
sM7 = 44
sRow = 48
sKey = 49
sV1, sV2 = 50, 51
sHI = 52
sCand = 53
sRec = 56
sTag = 55
sRi = sIdx
sGU = 56
sXrow = 72
sTS = 74

vL, vL16, vL4, vS, vPoll = 1, 2, 3, 4, 5
vM8F, vM8I = 6, 8
vXS = 10
Ra, Rb, RD, Rc = 20, 28, 36, 52
vF32 = 60
vTW = 92
vF20 = 108
vVec = 120
vE0 = 160
vXR = 150


a = Asm()
stamps = {}
NST = 24


def stamp(name, path='M', wait=True):
    if not DIAG or FINE:
        return
    if opt('only', None) and not (name == 'start' or any(name.startswith(x.replace('_', ' ')) for x in opt('only', '').split(','))):
        return
    if PROBE and (path != 'M' or not (name == 'start' or name.startswith(PROBE))):
        return
    lst = stamps.setdefault(path, [])
    if name not in lst:
        lst.append(name)
    k = lst.index(name)
    assert k < NST
    a(f's_memrealtime s[100:101]')
    a('s_waitcnt lgkmcnt(0)')
    a(f's_mov_b32 s{sTS + k}, s100')


fines = []


def fine(group, name):
    if FINE != group:
        return
    if name not in fines:
        fines.append(name)
    k = fines.index(name)
    assert k < 12
    a(f's_memtime {sr(sTS + 2 * k)}')


def dump_stamps(path='M'):
    if not DIAG:
        return
    if PROBE:
        if path != 'M':
            return
        a(f'''
        s_cmp_lg_u32 s2, {PROBEWG}
        s_cbranch_scc1 L_end
        s_cmp_lg_u32 s{sW}, 0
        s_cbranch_scc1 L_end
        ''')
        if PROBE == 'fix':
            a(f's_movk_i32 s{sU0}, 6000')
        elif PROBE == 'xcc':
            a(f's_getreg_b32 s{sU0}, hwreg(HW_REG_XCC_ID)')
            a(f's_and_b32 s{sU0}, s{sU0}, 15')
            a(f's_mul_i32 s{sU0}, s{sU0}, 1000')
            a(f's_add_u32 s{sU0}, s{sU0}, 6000')
        else:
            a(f's_sub_u32 s{sU0}, s{sTS + 1}, s{sTS}')
            a(f's_lshl_b32 s{sU0}, s{sU0}, 4')
            a(f's_add_u32 s{sU0}, s{sU0}, 6000')
            a(f's_min_u32 s{sU0}, s{sU0}, 100000')
        a(f'''
        L_probe:
        s_memrealtime s[100:101]
        s_waitcnt lgkmcnt(0)
        s_sub_u32 s{sU1}, s100, s{sTS}
        s_cmp_lt_u32 s{sU1}, s{sU0}
        s_cbranch_scc1 L_probe
        ''')
        return
    if DBGDIAG:
        if path != 'M':
            return
        a('v_mov_b32 v20, 0')
        a('s_mov_b64 exec, 1')
        a(f's_not_b32 s{sU0}, s{sTS}')
        a(f'v_mov_b32 v22, s{sU0}')
        a(f'global_atomic_umax v20, v22, {sr(DBG)} offset:4 sc1')
        ks = [0] + list(range(2, len(stamps['M'])))
        for n, k in enumerate(ks[:14]):
            a(f'v_mov_b32 v{23 + n}, s{sTS + k}')
            a(f'global_atomic_umax v20, v{23 + n}, {sr(DBG)} offset:{8 + 4 * n} sc1')
        print('dbg slots:', [(2 + n, stamps['M'][k]) for n, k in enumerate(ks[:14])])
        return
    a(f'''
    s_lshl_b32 s{sU0}, s2, 11
    s_lshl_b32 s{sU1}, s{sW}, 7
    s_add_u32 s{sU0}, s{sU0}, s{sU1}
    s_memtime s[100:101]
    ''')
    base_add(sBa, WS, sU0, DIAG_G)
    a('v_mov_b32 v20, 0')
    a('s_mov_b64 exec, 1')
    for k in range(0, NST, 2):
        a(f'v_mov_b32 v22, s{sTS + k}')
        a(f'v_mov_b32 v23, s{sTS + k + 1}')
        a(f'global_store_dwordx2 v20, v[22:23], {sr(sBa)} offset:{4 * k}')
        a('s_nop 1')
    a('s_waitcnt lgkmcnt(0)')
    a('s_sub_u32 s100, s100, s98')
    a('v_mov_b32 v22, s100')
    a(f'global_store_dword v20, v22, {sr(sBa)} offset:112')
    a('s_getreg_b32 s42, hwreg(HW_REG_XCC_ID)')
    a('s_getreg_b32 s43, hwreg(HW_REG_HW_ID)')
    a('v_mov_b32 v22, s42')
    a('v_mov_b32 v23, s43')
    a(f'global_store_dwordx2 v20, v[22:23], {sr(sBa)} offset:120')


def base_add(dst, src, off_s=None, imm=0):
    if off_s is not None:
        if imm:
            a(f's_add_u32 s{sT}, s{off_s}, {imm}')
            off_s = sT
        a(f's_add_u32 s{dst}, s{src}, s{off_s}')
    else:
        a(f's_add_u32 s{dst}, s{src}, {imm}')
    a(f's_addc_u32 s{dst + 1}, s{src + 1}, 0')


lblc = [0]
late = []


def flush_late():
    for f in late:
        f()
    late.clear()


def newlabel(p):
    lblc[0] += 1
    return f'L_{p}_{lblc[0]}'


def poll(loads, regs, tmp, mask=None, empty='eq -1', between=None, younger=0, issued=False):
    L, D, Cc = newlabel('poll'), newlabel('polld'), newlabel('pollc')
    if mask is not None:
        mask_lanes(mask)
    if not issued:
        for ld in loads:
            a(ld)
    a(f's_mov_b32 s{sCnt}, {SPIN}')
    if between is not None:
        between()
    if younger < 63:
        a(f's_waitcnt vmcnt({younger})')
    a.label(Cc)

    def retry():
        a.label(L)
        a(f's_sub_u32 s{sCnt}, s{sCnt}, 1')
        a(f's_cbranch_scc1 {D}')
        for ld in loads:
            a(ld)
        a('s_waitcnt vmcnt(0)')
        a(f's_branch {Cc}')
    late.append(retry)
    if empty == 'tag':
        for n, r in enumerate(regs):
            a(f'v_xor_b32 v{r}, s{sTB + (n & 3)}, v{r}')
        rem = list(regs)
        for c in tmp:
            a(f'v_or3_b32 v{c}, v{rem[0]}, v{rem[1]}, v{rem[2]}')
            rem = rem[3:]
        n = 0
        while len(rem) >= 2:
            c = tmp[n % len(tmp)]
            a(f'v_or3_b32 v{c}, v{c}, v{rem[0]}, v{rem[1]}')
            rem = rem[2:]
            n += 1
        t = tmp[0]
        rem = rem + list(tmp[1:])
        while rem:
            if len(rem) >= 2:
                a(f'v_or3_b32 v{t}, v{t}, v{rem[0]}, v{rem[1]}')
                rem = rem[2:]
            else:
                a(f'v_or_b32 v{t}, v{t}, v{rem[0]}')
                rem = rem[1:]
        a(f'v_and_b32 v{t}, 0xff, v{t}')
        empty = 'ne 0'
    elif empty == 'word':
        if len(regs) == 1:
            t = regs[0]
            empty = f'ne s{sTag}'
        else:
            assert len(regs) == 2
            t = tmp[0]
            a(f'v_xor_b32 v{t}, v{regs[0]}, v{regs[1]}')
            a(f'v_xor_b32 v{tmp[1]}, s{sTag}, v{regs[0]}')
            a(f'v_or_b32 v{t}, v{t}, v{tmp[1]}')
            empty = 'ne 0'
    elif empty == 'words':
        for n, r in enumerate(regs):
            a(f'v_xor_b32 v{tmp[n]}, s{sTag}, v{r}')
        t = tmp[0]
        rem = list(tmp[1:len(regs)])
        while rem:
            if len(rem) >= 2:
                a(f'v_or3_b32 v{t}, v{t}, v{rem[0]}, v{rem[1]}')
                rem = rem[2:]
            else:
                a(f'v_or_b32 v{t}, v{t}, v{rem[0]}')
                rem = rem[1:]
        empty = 'ne 0'
    elif len(regs) == 1:
        t = regs[0]
    else:
        rem = list(regs)
        outs = []
        k = 0
        while len(rem) >= 3 and k < len(tmp):
            a(f'v_max3_u32 v{tmp[k]}, v{rem[0]}, v{rem[1]}, v{rem[2]}')
            outs.append(tmp[k])
            rem = rem[3:]
            k += 1
        rem = outs[1:] + rem
        t = outs[0] if outs else None
        if t is None:
            t = tmp[0]
            a(f'v_max_u32 v{t}, v{rem[0]}, v{rem[1]}')
            rem = rem[2:]
        while rem:
            if len(rem) >= 2:
                a(f'v_max3_u32 v{t}, v{t}, v{rem[0]}, v{rem[1]}')
                rem = rem[2:]
            else:
                a(f'v_max_u32 v{t}, v{t}, v{rem[0]}')
                rem = rem[1:]
    a(f'v_cmpx_{empty.split()[0]}_u32 vcc, {empty.split()[1]}, v{t}')
    a(f's_cbranch_execnz {L}')
    a.label(D)
    a('s_mov_b64 exec, -1')


def epoch_load():
    a(f's_load_dword s{sTag}, {sr(WS)}, {EPOCH_G}')


def epoch_tag():
    a(f'''
    s_and_b32 s{sTag}, s{sTag}, 0x7f7f7f7f
    s_add_u32 s{sTag}, s{sTag}, 0x01010101
    s_or_b32 s{sTag}, s{sTag}, 0x80808080
    ''')


sTB = 68


def tag_bytes():
    for k in range(4):
        a(f's_bfe_u32 s{sTB + k}, s{sTag}, {hex(0x80000 | (8 * k))}')


def dpp(op, r, ctrl, rm='0xf'):
    a(f'{op}_dpp v{r}, v{r}, v{r} {ctrl} row_mask:{rm} bank_mask:0xf')


def wave_sum(regs, dst_s, op='v_add_f32'):
    for c in ('row_ror:8', 'row_ror:4', 'row_ror:2', 'row_ror:1'):
        for r in regs:
            dpp(op, r, c)
    for r in regs:
        dpp(op, r, 'row_bcast:15', '0xa')
    for r in regs:
        dpp(op, r, 'row_bcast:31', '0xc')
    for r, s in zip(regs, dst_s):
        a(f'v_readlane_b32 s{s}, v{r}, 63')


def rbf(dst, src):
    a(f'v_cvt_pk_bf16_f32 v{dst}, {src}, {src}')
    a(f'v_and_b32 v{dst}, s{sHI}, v{dst}')


def unpack(dlo, dhi, src):
    a(f'v_lshlrev_b32 v{dlo}, 16, v{src}')
    a(f'v_and_b32 v{dhi}, s{sHI}, v{src}')


def mfma32(d, x, y, c=None):
    a(f'v_mfma_f32_16x16x32_bf16 {vr(d, 4)}, {vr(x, 4)}, {vr(y, 4)}, {vr(c, 4) if c is not None else 0}')


def mfma16(d, x, y):
    a(f'v_mfma_f32_16x16x16_bf16 {vr(d, 4)}, {vr(x, 2)}, {vr(y, 2)}, 0')


def cmul(tr, ti, re, im, c, s, sign, pk=True, n=4, head=0):
    if not pk:
        for r in range(n):
            a(f'v_mul_f32 v{tr + r}, v{re + r}, v{c + r}')
        for r in range(n):
            a(f'v_mul_f32 v{ti + r}, v{im + r}, v{c + r}')
        for r in range(n):
            if sign > 0:
                a(f'v_fma_f32 v{tr + r}, -v{im + r}, v{s + r}, v{tr + r}')
                a(f'v_fmac_f32 v{ti + r}, v{re + r}, v{s + r}')
            else:
                a(f'v_fmac_f32 v{tr + r}, v{im + r}, v{s + r}')
                a(f'v_fma_f32 v{ti + r}, -v{re + r}, v{s + r}, v{ti + r}')
        return
    nr = 'neg_lo:[1,0,0] neg_hi:[1,0,0]'
    for h in (0, 2):
        if head:
            a(f'v_mul_f32 v{tr + h}, v{re + h}, v{c + h}')
            a(f'v_mul_f32 v{tr + h + 1}, v{re + h + 1}, v{c + h + 1}')
        else:
            a(f'v_pk_mul_f32 {vr(tr + h, 2)}, {vr(re + h, 2)}, {vr(c + h, 2)}')
    for h in (0, 2):
        a(f'v_pk_mul_f32 {vr(ti + h, 2)}, {vr(im + h, 2)}, {vr(c + h, 2)}')
    for h in (0, 2):
        a(f'v_pk_fma_f32 {vr(tr + h, 2)}, {vr(im + h, 2)}, {vr(s + h, 2)}, {vr(tr + h, 2)} {nr if sign > 0 else ""}')
    for h in (0, 2):
        a(f'v_pk_fma_f32 {vr(ti + h, 2)}, {vr(re + h, 2)}, {vr(s + h, 2)}, {vr(ti + h, 2)} {nr if sign < 0 else ""}')


def pack4(d, lo, hi, step=1, n=4):
    for r in range(n):
        a(f'v_cvt_pk_bf16_f32 v{d + r * step}, v{lo + r}, v{hi + r}')


def tab_read(dst, q):
    a(f'ds_read_b128 {vr(dst, 4)}, v{vL16} offset:{TAB + q * 1024}')


def tm(j, t):
    return 4 * t + j if j < 4 else 8 + t


def read_tmajor(dst, vaddr, off):
    o = off // 256
    assert off % 256 == 0 and o + 6 < 256
    for t in range(2):
        a(f'ds_read2st64_b32 {vr(dst + 4 * t, 2)}, v{vaddr + t} offset0:{o} offset1:{o + 2}')
        a(f'ds_read2st64_b32 {vr(dst + 4 * t + 2, 2)}, v{vaddr + t} offset0:{o + 4} offset1:{o + 6}')
    a(f'ds_read_b64 {vr(dst + 8, 2)}, v{vaddr} offset:{off + 2048}')


def silu(dst, src, tmp):
    for d, s, t in zip(dst, src, tmp):
        a(f'v_mul_f32 v{t}, 0xbfb8aa3b, v{s}')
    for t in tmp:
        a(f'v_exp_f32 v{t}, v{t}')
    for t in tmp:
        a(f'v_add_f32 v{t}, 1.0, v{t}')
    for t in tmp:
        a(f'v_rcp_f32 v{t}, v{t}')
    for d, s, t in zip(dst, src, tmp):
        a(f'v_mul_f32 v{d}, v{s}, v{t}')


def swap_reduce8(acc):
    for k in range(4):
        a(f'v_permlane32_swap_b32 v{acc + k}, v{acc + k + 4}')
    a(f'v_pk_add_f32 {vr(acc, 2)}, {vr(acc, 2)}, {vr(acc + 4, 2)}')
    a(f'v_pk_add_f32 {vr(acc + 2, 2)}, {vr(acc + 2, 2)}, {vr(acc + 6, 2)}')
    for k in range(2):
        a(f'v_permlane16_swap_b32 v{acc + k}, v{acc + k + 2}')
    a(f'v_pk_add_f32 {vr(acc, 2)}, {vr(acc, 2)}, {vr(acc + 2, 2)}')


BC0 = 'op_sel:[0,0,0] op_sel_hi:[1,0,1]'
BC1 = 'op_sel:[0,1,0] op_sel_hi:[1,1,1]'


def prologue():
    a(f'''
    s_cmp_ge_u32 s2, 256
    s_cbranch_scc1 L_end
    ''')
    if DIAG:
        for k in range(NST):
            a(f's_mov_b32 s{sTS + k}, 0')
        a('s_memtime s[98:99]')
        for p in ('M', 'H0', 'H1'):
            stamps[p] = ['start']
        stamp('start')
    a(f'''
    s_load_dwordx16 s[8:23], s[0:1], 0
    s_load_dwordx8 s[24:31], s[0:1], 64
    s_load_dwordx2 s[32:33], s[0:1], 96
    v_lshrrev_b32 v20, 6, v0
    s_and_b32 s{sX}, s2, 7
    s_lshr_b32 s{sIdx}, s2, 3
    v_readfirstlane_b32 s{sW}, v20
    v_and_b32 v{vL}, 63, v0
    s_lshl_b32 s{sMe}, s{sX}, 5
    s_add_u32 s{sMe}, s{sMe}, s{sIdx}
    v_lshlrev_b32 v{vL16}, 4, v{vL}
    v_lshlrev_b32 v{vL4}, 2, v{vL}
    s_cmp_eq_u32 s{sW}, 9
    s_cbranch_scc1 L_h1
    s_cmp_eq_u32 s{sW}, 8
    s_cbranch_scc1 L_h0
    s_cmp_eq_u32 s{sRi}, 30
    s_cbranch_scc0 L_nopf
    s_cmp_ge_u32 s{sW}, (L_tables_end-{NAME}_kernel)/8192
    s_cbranch_scc1 L_nopf
    s_getpc_b64 {sr(sBa)}
    L_pc0:
    s_sub_u32 s{sBa}, s{sBa}, L_pc0-{NAME}_kernel
    s_subb_u32 s{sBa + 1}, s{sBa + 1}, 0
    v_lshlrev_b32 v21, 7, v0
    global_load_dword v157, v21, {sr(sBa)}
    L_nopf:
    ''')


def xloads():
    for j in range(5):
        a(f'global_load_dword v{vXR + j}, v156, {sr(A_X)} offset:{256 * j} {INPOL}')


def blk_id(dst):
    a(f'''
    s_cmp_lt_u32 s{sRi}, 10
    s_cselect_b32 s{dst}, 10, 20
    s_cselect_b32 s{sT}, 0, 70
    s_mul_i32 s{dst}, s{dst}, s{sX}
    s_add_u32 s{dst}, s{dst}, s{sT}
    s_add_u32 s{dst}, s{dst}, s{sRi}
    ''')


GV = (130, 142, 48, 56, 158, 159)


def gemv_addr():
    vw, vc, acc, tmp, vo, voc = GV
    blk_id(sU2)
    a(f'''
    v_lshrrev_b32 v{voc}, 3, v{vL}
    v_mad_u32_u24 v{voc}, v20, 20, v{voc}
    v_and_b32 v21, 3, s{sU2}
    v_mul_u32_u24 v21, 160, v21
    v_add_u32 v{voc}, v{voc}, v21
    v_lshrrev_b32 v21, 2, s{sU2}
    v_and_b32 v{vo}, 0x70, v{vL16}
    v_lshl_add_u32 v{vo}, v21, 7, v{vo}
    v_mul_u32_u24 v21, 7680, v{voc}
    v_add_u32 v{vo}, v{vo}, v21
    v_lshlrev_b32 v{voc}, 1, v{voc}
    v_lshl_add_u32 v156, v20, 8, s{sMe}
    v_mul_u32_u24 v156, 1280, v156
    v_add_u32 v156, v156, v{vL4}
    ''')
    for k in range(4):
        a(f'v_mov_b32 v{vw + 8 + k}, 0')
    a(f'v_mov_b32 v{vc + 2}, 0')


def gemv_issue():
    vw, vc, acc, tmp, vo, voc = GV
    def cl_():
        for j in range(3):
            if j == 2:
                a('s_mov_b32 exec_hi, 0')
            a(f'global_load_ushort v{vc + j}, v{voc}, {sr(C_)} offset:{16 * j}')
        a('s_mov_b64 exec, -1')

    def wl_():
        for j in range(3):
            if j == 2:
                a('s_mov_b32 exec_hi, 0')
            a(f'global_load_dwordx4 {vr(vw + 4 * j, 4)}, v{vo}, {sr(W_MOD)} {INPOL}')
            if j < 2:
                a(f'v_add_u32 v{vo}, {8 * 7680}, v{vo}')
        a('s_mov_b64 exec, -1')
    for f in ((wl_, cl_) if WC else (cl_, wl_)):
        f()


def gemv_compute(role, after):
    nj = 3
    vw, vc, acc, tmp, vo, voc = GV
    if role == 'B':
        acc = 150
    a(f's_waitcnt vmcnt({after if WC else nj + after})')
    stamp('c in')
    cs_ = [vc + j for j in range(nj)]
    for c in cs_:
        a(f'v_lshlrev_b32 v{c}, 16, v{c}')
    silu(cs_, cs_, [tmp + j for j in range(nj)])
    sc = [(145, 146), (147, 148), (149, 59)]
    for c, s in zip(cs_, sc):
        a(f'v_cvt_pk_bf16_f32 v{s[0]}, v{c}, 0')
    for s in sc:
        a(f'v_lshlrev_b32 v{s[1]}, 16, v{s[0]}')
    a(f'''
    v_and_b32 v{vo}, 7, v{vL}
    v_lshlrev_b32 v{vo}, 8, v{vo}
    v_and_b32 v{voc}, 48, v{vL}
    v_lshl_add_u32 v{vo}, v{voc}, 2, v{vo}
    s_lshl_b32 s{sT}, s{sW}, 2
    s_add_u32 s{sT}, s{sT}, {RED}
    v_add_u32 v{vo}, s{sT}, v{vo}
    ''')
    for k in range(8):
        a(f'v_mov_b32 v{acc + k}, 0')
    for j in range(nj):
        a(f's_waitcnt vmcnt({nj - 1 - j + after})')
        for k in (0, 4, 1, 5, 2, 6, 3, 7):
            a(f'v_dot2c_f32_bf16 v{acc + k}, v{vw + 4 * j + k // 2}, v{sc[j][k & 1]}')
    stamp('w in')
    swap_reduce8(acc)
    for c in ('row_ror:8',):
        dpp('v_add_f32', acc, c)
        dpp('v_add_f32', acc + 1, c)
    a(f'''
    s_mov_b32 exec_lo, 0x00ff00ff
    s_mov_b32 exec_hi, 0x00ff00ff
    ds_write2_b32 v{vo}, v{acc}, v{acc + 1} offset0:0 offset1:8
    s_mov_b64 exec, -1
    s_waitcnt lgkmcnt(0)
    ''')


def m8(dst, inverse):
    t0, t1, t2, t3 = 20, 21, 22, 23
    a(f'v_lshrrev_b32 v{t0}, 4, v{vL}           ; g')
    if not inverse:
        a(f'''
        v_bfe_u32 v{t1}, v{vL}, 2, 2
        v_bfe_u32 v{t2}, v{vL}, 1, 1
        v_lshl_add_u32 v{t1}, v{t2}, 2, v{t1}
        v_lshlrev_b32 v{t0}, 9, v{t0}
        v_add_u32 v{t0}, s{sMe}, v{t0}
        v_mul_u32_u24 v{t2}, v{t0}, v{t1}
        v_lshl_add_u32 v{t3}, v{t1}, 8, v{t2}
        ''')
    else:
        a(f'''
        v_bfe_u32 v{t1}, v{vL}, 1, 3
        v_lshlrev_b32 v{t1}, 8, v{t1}
        v_add_u32 v{t1}, s{sMe}, v{t1}
        v_mul_u32_u24 v{t2}, v{t0}, v{t1}
        v_xor_b32 v{t0}, 4, v{t0}
        v_mul_u32_u24 v{t3}, v{t0}, v{t1}
        v_sub_u32 v{t2}, 0, v{t2}
        v_sub_u32 v{t3}, 0, v{t3}
        ''')
    a(f'''
    v_and_b32 v{t0}, 1, v{vL}
    v_lshl_add_u32 v{t2}, v{t0}, 9, v{t2}
    v_lshl_add_u32 v{t3}, v{t0}, 9, v{t3}
    v_and_b32 v{t2}, 0x7ff, v{t2}
    v_and_b32 v{t3}, 0x7ff, v{t3}
    v_cvt_f32_u32 v{t2}, v{t2}
    v_cvt_f32_u32 v{t3}, v{t3}
    v_mul_f32 v{t2}, 0x3a000000, v{t2}
    v_mul_f32 v{t3}, 0x3a000000, v{t3}
    v_cos_f32 v{t0}, v{t2}
    v_sin_f32 v{t2}, v{t2}
    v_cos_f32 v{t1}, v{t3}
    v_sin_f32 v{t3}, v{t3}
    v_cvt_pk_bf16_f32 v{dst}, v{t0}, v{t2}
    v_cvt_pk_bf16_f32 v{dst + 1}, v{t1}, v{t3}
    ''')


INV640 = hex(f2u(1.0 / 640))
EPS = hex(f2u(1e-5))


def rstd_chain(var, out):
    rbf(out, f'v{var}')
    a(f'v_add_f32 v{out}, {EPS}, v{out}')
    rbf(out, f'v{out}')
    a(f'v_sqrt_f32 v{out}, v{out}')
    rbf(out, f'v{out}')
    a(f'v_rcp_f32 v{out}, v{out}')


def sum10(dst2, x):
    a(f'v_pk_add_f32 {vr(dst2, 2)}, {vr(x, 2)}, {vr(x + 2, 2)}')
    for h in (4, 6, 8):
        a(f'v_pk_add_f32 {vr(dst2, 2)}, {vr(dst2, 2)}, {vr(x + h, 2)}')
    a(f'v_add_f32 v{dst2}, v{dst2}, v{dst2 + 1}')


def dot10(dst2, x, y):
    a(f'v_pk_mul_f32 {vr(dst2, 2)}, {vr(x, 2)}, {vr(y, 2)}')
    for h in (2, 4, 6, 8):
        a(f'v_pk_fma_f32 {vr(dst2, 2)}, {vr(x + h, 2)}, {vr(y + h, 2)}, {vr(dst2, 2)}')
    a(f'v_add_f32 v{dst2}, v{dst2}, v{dst2 + 1}')


def prio(k, on):
    if PRIO[k] == '0':
        return
    if not on:
        a('s_setprio 0')
        return
    L = newlabel('pr')
    a(f's_cmp_lt_u32 s{sW}, 4')
    a(f's_cbranch_scc1 {L}')
    a('s_setprio 1')
    a.label(L)


def bar(n):
    a(f's_barrier                                   ; {n}')


def tpoll(loads, lanes_s=None, between=None):
    L, D, Cc = newlabel('poll'), newlabel('polld'), newlabel('pollc')
    if lanes_s:
        a(f's_mov_b64 exec, {lanes_s}')
    for ld in loads:
        a(ld)
    if lanes_s:
        a('s_mov_b64 exec, -1')
    a(f's_mov_b32 s{sCnt}, {SPIN}')
    if between is not None:
        between()
    a('s_waitcnt vmcnt(0)')
    a.label(Cc)
    a(f'''
    v_cmp_ne_u32 vcc, s{sTag}, v{Ra + 3}
    v_cmp_ne_u32 {sr(sBc)}, s{sTag}, v{Ra + 7}
    s_or_b64 vcc, vcc, {sr(sBc)}
    s_and_b64 vcc, vcc, {sr(sM8)}
    s_cbranch_scc1 {L}
    ''')
    a.label(D)

    def retry():
        a.label(L)
        a(f'''
        s_sub_u32 s{sCnt}, s{sCnt}, 1
        s_cbranch_scc1 {D}
        s_lshr_b64 {sr(sBc)}, vcc, 1
        s_or_b64 vcc, vcc, {sr(sBc)}
        s_lshr_b64 {sr(sBc)}, vcc, 2
        s_or_b64 exec, vcc, {sr(sBc)}
        ''')
        for ld in loads:
            a(ld)
        a('s_mov_b64 exec, -1')
        a('s_waitcnt vmcnt(0)')
        a(f's_branch {Cc}')
    late.append(retry)


sM8, sLn, sM3 = 62, 64, 66
vSg0, vSg1, vPair, vPairX = vE0 + 1, vE0 + 2, vE0 + 5, vM8F + 1


def f32_expand(q0, m0, m1):
    for tile in range(2):
        for k in range(8):
            b = vF32 + 16 * tile + k
            a(f'v_alignbit_b32 v{b + 8}, v{b}, v{b}, 16')
            a(f'v_xor_b32 v{b + 8}, v{m1}, v{b + 8}')
            if m0 is not None:
                a(f'v_xor_b32 v{b}, v{m0}, v{b}')


def f32_read(q0):
    for tile in range(2):
        for ks in range(2):
            tab_read(vF32 + 16 * tile + 4 * ks, q0 + 2 * tile + ks)


def main_path():
    vZ, vSA, vCA = vVec, vVec + 10, vVec + 20
    gemv_addr()
    a(f's_cmp_lt_u32 s{sRi}, 10')
    a('s_waitcnt lgkmcnt(0)')
    stamp('kernarg')
    a('s_cbranch_scc0 L_x')
    gemv_issue()
    if XL == 1:
        xloads()
    a.label('L_x')
    if XL == 0:
        xloads()
    if BLOAD == 0:
        a(f's_sub_u32 s{sT}, s{sRi}, 10')
        a(f's_cmp_lt_u32 s{sT}, 20')
        a('s_cbranch_scc0 L_setup')
        gemv_issue()
        a.label('L_setup')
    epoch_load()
    a(f'''
    s_mov_b32 s{sHI}, 0xffff0000
    s_lshl_b32 s{sRow}, s{sW}, 8
    s_add_u32 s{sKey}, s{sRow}, s{sMe}
    s_mul_i32 s{sRow}, s{sKey}, 1280
    ''')
    if B0 == 1:
        bar('B0')
    m8(vM8F, False)
    m8(vM8I, True)
    a(f'''
    v_bfe_u32 v20, v{vL}, 2, 2                    ; cs
    v_and_b32 v21, 48, v{vL16}                    ; part*16
    v_lshrrev_b32 v22, 4, v{vL}                   ; g
    v_lshl_add_u32 v23, v22, 5, v20               ; 32g + cs
    v_mul_u32_u24 v{vPoll}, {T1S}, v23
    v_add_u32 v{vPoll}, v{vPoll}, v21
    v_mul_u32_u24 v23, 80, v23
    s_mul_i32 s{sT}, s{sW}, 320
    s_add_u32 s{sT}, s{sT}, {XB2}
    v_add3_u32 v{vE0 + 4}, v23, v21, s{sT}        ; staging address
    v_mul_u32_u24 v{vS}, {NJ * 64}, v22
    v_and_b32 v23, 0xf0, v{vL16}
    v_add_u32 v{vS}, v{vS}, v23
    v_lshlrev_b32 v{vE0}, 3, v{vL}                ; 8*lane
    v_mul_u32_u24 v22, {4 * SA}, v22
    v_mul_u32_u24 v20, 120, v20
    v_lshl_add_u32 v20, v21, 1, v20
    s_min_u32 s{sT}, s{sW}, 5
    s_mul_i32 s{sT}, s{sT}, 480
    s_add_u32 s{sT}, s{sT}, {XB1}
    v_add3_u32 v{vPair}, v20, v22, s{sT}
    s_mov_b32 s{sM7}, 0x77777777
    s_mov_b32 s{sM7 + 1}, 0x77777777
    s_mov_b32 s{sM8}, 0x88888888
    s_mov_b32 s{sM8 + 1}, 0x88888888
    s_mov_b32 s{sM3}, 0x37773777
    s_mov_b32 s{sM3 + 1}, 0x37773777
    s_cmp_eq_u32 s{sW}, 5
    s_cselect_b32 s{sLn}, 0x00ff00ff, -1
    s_mov_b32 s{sLn + 1}, s{sLn}
    ''')
    if B0 == 2:
        bar('B0')
    a(f's_cmp_lt_u32 s{sRi}, 10')
    if XL == 2:
        xloads()
    a('s_cbranch_scc0 L_na')
    gemv_compute('A', 5)
    bar('B1')
    a('s_waitcnt vmcnt(0)')
    a('s_branch L_ln1')
    a.label('L_na')
    if XL == 1:
        xloads()
    a(f's_cmp_lt_u32 s{sRi}, 30')
    if BLOAD == 1:
        a('s_waitcnt vmcnt(0)')
        a('s_cbranch_scc0 L_ln1')
        gemv_issue()
    else:
        if BLOAD == 2:
            a('s_cbranch_scc0 L_nb')
            gemv_issue()
            a.label('L_nb')
        if B0 == 3:
            bar('B0')
        a('s_waitcnt vmcnt(6)')
        a('s_cbranch_scc1 L_ln1')
        a('s_waitcnt vmcnt(0)')
    a.label('L_ln1')
    stamp('x in')
    for j in range(5):
        unpack(vXS + tm(j, 0), vXS + tm(j, 1), vXR + j)
    sum10(24, vXS)
    wave_sum([24], [sU0])
    a(f'v_mov_b32 v24, {INV640}')
    a(f'v_mul_f32 v26, s{sU0}, v24                ; mean')
    rbf(28, 'v26')
    a(f'v_readfirstlane_b32 s{sM1B}, v28')
    for h in range(0, 10, 2):
        a(f'v_pk_add_f32 {vr(vXS + h, 2)}, {vr(vXS + h, 2)}, v[28:29] op_sel:[0,0] op_sel_hi:[1,0] neg_lo:[0,1] neg_hi:[0,1]')
    dot10(30, vXS, vXS)
    wave_sum([30], [sU0])
    a(f'''
    v_sub_f32 v26, v26, v28
    v_mul_f32 v26, v26, v26
    v_fma_f32 v26, s{sU0}, v24, -v26
    ''')
    rstd_chain(26, 27)
    for j in range(5):
        for t in range(2):
            a(f'v_mul_f32 v{vZ + 2 * j + t}, v27, v{vXS + tm(j, t)}')
    a(f'''
    v_mov_b32 v23, 0
    v_mov_b32 v27, 0
    s_waitcnt lgkmcnt(0)
    ''')
    epoch_tag()
    tag_bytes()
    def late_gemv(after):
        L1, L2 = newlabel('lg'), newlabel('lg')
        a(f'''
        s_cmp_lt_u32 s{sRi}, 10
        s_cbranch_scc1 {L2}
        s_cmp_lt_u32 s{sRi}, 30
        s_cbranch_scc0 {L1}
        ''')
        gemv_compute('B', after)
        a.label(L1)
        bar('B1')
        a.label(L2)
    if not GLATE:
        late_gemv(0)
    a(f'''
    s_mul_i32 s{sU0}, s{sMe}, {T1S}
    s_lshl_b32 s{sU1}, s{sW}, 8
    s_add_u32 s{sU0}, s{sU0}, s{sU1}
    ''')
    base_add(sBa, WS, sU0, T1_G)
    base_add(sBb, WS, sU0, T1_G + 4 * NJ * 64)
    a(f'''
    v_subrev_u32 v28, 64, v0                      ; u
    v_lshrrev_b32 v29, 4, v28
    v_lshlrev_b32 v29, 10, v29
    v_and_b32 v30, 0xf0, v{vL16}
    v_add_u32 v29, v29, v30
    v_cmp_le_u32 vcc, 160, v28
    v_mov_b32 v31, {8 - 160 * 32}
    v_cndmask_b32 v31, 0, v31, vcc
    s_mov_b32 s{sU2}, {MODA_L}
    v_lshlrev_b32 v28, 5, v28
    v_add3_u32 v28, v28, v31, s{sU2}
    v_add_u32 v{vE0 + 3}, s{sU2}, v{vL16}
    s_sub_u32 s{sT}, s{sW}, 1
    s_cmp_lt_u32 s{sT}, 5
    ''')
    bar('BT')
    stamp('poll start')
    def p1_tabs(after=4):
        bar('BP')
        tab_read(vF20, T_F20C)
        tab_read(vF20 + 4, T_F20S)
        for q in range(4):
            tab_read(vTW + 4 * q, T_TW1 + q)
        f32_read(T_F32A)
        tab_read(32, T_ADR)
        a(f'''
        s_lshr_b32 s{sU1}, s{sW}, 1
        s_mul_i32 s{sU1}, s{sU1}, {4 * SA}
        s_and_b32 s{sT}, s{sW}, 1
        s_lshl_b32 s{sT}, s{sT}, 2
        s_add_u32 s{sU1}, s{sU1}, s{sT}
        s_add_u32 s{sU1}, s{sU1}, {XB1}
        s_waitcnt lgkmcnt(0)
        v_add_u32 v{vSg0}, s{sU1}, v32
        v_add_u32 v{vSg1}, 160, v{vSg0}
        ''')
        f32_expand(T_F32A, None, 33)
        if GLATE:
            late_gemv(after)
    a('s_cbranch_scc1 L_mpoll')
    p1_tabs(0)
    a('s_branch L_b2')
    a.label('L_mpoll')
    poll([f'global_load_dwordx4 {vr(36 + 4 * p, 4)}, v29, {sr(WS)} offset:{256 * p} sc1' for p in range(4)],
         list(range(36, 52)), [52, 53, 54], empty='tag', between=p1_tabs)
    a(f'''
    v_pk_add_f32 v[36:37], v[36:37], v[40:41]
    v_pk_add_f32 v[38:39], v[38:39], v[42:43]
    v_pk_add_f32 v[44:45], v[44:45], v[48:49]
    v_pk_add_f32 v[46:47], v[46:47], v[50:51]
    v_pk_add_f32 v[36:37], v[36:37], v[44:45]
    v_pk_add_f32 v[38:39], v[38:39], v[46:47]
    ''')
    if MR:
        a('v_cvt_pk_bf16_f32 v40, v36, v37')
        a('v_cvt_pk_bf16_f32 v41, v38, v39')
        unpack(36, 37, 40)
        unpack(38, 39, 41)
    a(f'ds_write2_b64 v28, v[36:37], v[38:39] offset0:0 offset1:2')
    a.label('L_b2')
    stamp('poll end')
    fine('p1', 'pre-B2')
    a('s_waitcnt lgkmcnt(0)')
    a('s_barrier                                   ; B2')
    stamp('B2 done (mod ready)')
    fine('p1', 'B2')
    assert MODA_L % 16 == 0
    for j in range(5):
        a(f'ds_read_b128 {vr(vSA + 4 * j, 4)}, v{vE0 + 3} offset:{1024 * j}')
    for j in range(5):
        a(f's_waitcnt lgkmcnt({4 - j})')
        for t in range(2):
            a(f'v_fmac_f32 v{vSA + 4 * j + t}, v{vZ + 2 * j + t}, v{vSA + 4 * j + 2 + t}')
        if j in (1, 3):
            for t in range(2):
                a(f'v_cvt_pk_bf16_f32 v{Ra + 4 * t + j // 2}, v{vSA + 4 * j - 4 + t}, v{vSA + 4 * j + t}')
    for t in range(2):
        a(f'v_cvt_pk_bf16_f32 v{Ra + 4 * t + 2}, v{vSA + 16 + t}, 0')
    fine('p1', 'h packed')
    for t in range(2):
        mfma32(RD + 8 * t, Ra + 4 * t, vF20)
        mfma32(RD + 8 * t + 4, Ra + 4 * t, vF20 + 4)
    fine('p1', 'mfma1 issued')
    for t, tmp in ((0, Rb), (1, Rc)):
        cmul(tmp, tmp + 4, RD + 8 * t, RD + 8 * t + 4, vTW + 8 * t, vTW + 8 * t + 4, -1, pk=PK[0] == '1' or (PK[0] == '2' and t == 1))
        pack4(Ra + 4 * t, tmp, tmp + 4)
    fine('p1', 'twiddled')
    for u in range(2):
        for ks in range(2):
            for e in range(2):
                d = RD + 8 * u + 4 * e
                mfma32(d, vF32 + 16 * u + 8 * e + 4 * ks, Ra + 4 * ks, d if ks else None)
    fine('p1', 'mfma2 issued')
    a(f's_mov_b64 exec, {sr(sM3)}')
    for u in range(2):
        pack4(Rb + 4 * u, RD + 8 * u, RD + 8 * u + 4)
        for r in (0, 2):
            a(f'ds_write2_b32 v{vSg1 if u else vSg0}, v{Rb + 4 * u + r}, v{Rb + 4 * u + r + 1} offset0:{80 * r} offset1:{80 * r + 80}')
    a('s_mov_b64 exec, -1')
    a(f'v_mov_b32 v{Rc + 3}, s{sTag}')
    a(f'v_mov_b32 v{Rc + 7}, s{sTag}')
    a(f's_cmp_ge_u32 s{sW}, 6')
    fine('p1', 'lds written')
    a('s_waitcnt lgkmcnt(0)')
    fine('p1', 'pre-B3')
    bar('B3')
    fine('p1', 'B3')
    a('s_cbranch_scc1 L_t1done')
    for n in (3, 0, 1, 2):
        a(f'ds_read_b64 {vr(Ra + 2 * n, 2)}, v{vPair} offset:{8 * n}')
    for k, n in enumerate((3, 0, 1, 2)):
        a(f's_waitcnt lgkmcnt({3 - k})')
        mfma16(RD + 4 * n, vM8F, Ra + 2 * n)
    fine('p1', 'r8 issued')
    a(f's_mov_b64 exec, {sr(sM7)}')
    for j in range(2):
        a(f'v_cvt_pk_bf16_f32 v{Rc + 4 * j + 3}, v{RD + 12 + 2 * j}, v{RD + 12 + 2 * j + 1}')
    a(f's_mov_b64 exec, {sr(sLn)}')
    for j in range(2):
        for n in range(3):
            a(f'v_cvt_pk_bf16_f32 v{Rc + 4 * j + n}, v{RD + 4 * n + 2 * j}, v{RD + 4 * n + 2 * j + 1}')
        a(f'global_store_dwordx4 v{vS}, {vr(Rc + 4 * j, 4)}, {sr(sBb if j else sBa)} sc1')
    a('s_mov_b64 exec, -1')
    a.label('L_t1done')
    stamp('T1 stored')
    fine('p1', 'stored')

    def p3_mats():
        for q in range(3):
            tab_read(vF20 + 4 * q, T_F20I + q)
        f32_read(T_F32B)
        tab_read(40, T_ADR)
        a('s_waitcnt lgkmcnt(0)')
        f32_expand(T_F32B, 42, 43)
    a(f's_cmp_ge_u32 s{sIdx}, {NJ}')
    a('s_cbranch_scc1 L_idle')
    late.append(lambda: (a.label('L_idle'), bar('B3b'), p3_mats() if MATS else None, a('s_branch L_p3prep')))
    if MATS == 1:
        p3_mats()
    vWr = vVec
    for k in range(16):
        a(f'v_mov_b32 v{vWr + k}, 0')
    SC = 2.0 / (2048 * 640) / (ALPHA[16] ** 4 * ALPHA[20] ** 2 * ALPHA[32] ** 2)
    a(f'''
    v_and_b32 v36, 15, v{vL}
    v_and_b32 v37, 48, v{vL}
    v_lshl_add_u32 v36, v37, 2, v36               ; 64g + i
    v_mul_u32_u24 v{vE0 + 3}, 80, v36
    s_lshl_b32 s{sU1}, s{sW}, 3
    s_add_u32 s{sU1}, s{sU1}, {XB2}
    v_add_u32 v{vE0 + 3}, s{sU1}, v{vE0 + 3}
    v_lshlrev_b32 v36, 5, v36
    v_add_u32 v36, {WST}, v36
    v_and_b32 v39, 4, v{vL}
    v_lshlrev_b32 v39, 2, v39
    v_lshlrev_b32 v{vS}, 7, v37
    v_and_b32 v37, 0xf0, v{vL16}
    v_add_u32 v{vS}, v{vS}, v37
    s_mul_i32 s{sU0}, s{sX}, {NJ}
    s_add_u32 s{sU0}, s{sU0}, s{sIdx}
    s_lshl_b32 s{sU1}, s{sU0}, 6
    s_mul_i32 s{sT}, s{sW}, {4 * T1S}
    s_add_u32 s{sU1}, s{sU1}, s{sT}
    s_lshl_b32 s{sU0}, s{sU0}, 14
    s_lshl_b32 s{sT}, s{sW}, 8
    s_add_u32 s{sU0}, s{sU0}, s{sT}
    ''')
    base_add(sBa, WS, sU1, T1_G)
    base_add(sBb, WS, sU1, T1_G + 128 * T1S)
    base_add(58, WS, sU0, T2_G)
    base_add(60, WS, sU0, T2_G + 8192)

    def w_setup(parts=(0, 1)):
      if 0 in parts:
        for q in range(2):
            tab_read(vTW + 4 * q, T_F16 + q)
            tab_read(vTW + 8 + 4 * q, T_TW2 + q)
        a(f'''
        s_mul_i32 s{sU0}, s{sIdx}, 15
        s_min_u32 s{sU1}, s{sU0}, 306
        s_add_u32 s{sU2}, s{sU1}, s{sX}
        s_and_b32 s{sU2}, s{sU2}, 1
        s_sub_u32 s{sU1}, s{sU1}, s{sU2}
        s_lshl_b32 s{sT}, s{sW}, 1
        s_add_u32 s{sU0}, s{sU0}, s{sT}
        ''')
      if True:
        for s in parts:
            gam = sU3
            a(f'''
            s_add_u32 s{sU2}, s{sU0}, {s}
            s_sub_u32 s{sT}, s{sU2}, s{sU1}
            s_min_u32 s{sT}, s{sT}, 15
            s_lshl_b32 s{sT}, s{sT}, 1
            v_xor_b32 v37, s{sT}, v39
            v_add_u32 v37, v37, v36
            ''')
            for arr in range(2):
                for r in range(4):
                    a(f'ds_read_u16_d16_hi v{vWr + 8 * s + 4 * arr + r}, v37 offset:{arr * 8192 + r * 512}')
            a(f'''
            s_mul_i32 s{sT}, s{sU2}, 0x199a
            s_lshr_b32 s{sT}, s{sT}, 16
            s_mul_i32 s{sT}, s{sT}, 10
            s_mov_b32 s{gam}, {hex(f2u(SC))}
            s_cmp_eq_u32 s{sT}, s{sU2}
            s_cselect_b32 s{gam}, {hex(f2u(SC / 2))}, s{gam}
            s_waitcnt lgkmcnt(0)
            ''')
            for r in range(8):
                a(f'v_mul_f32 v{vWr + 8 * s + r}, s{gam}, v{vWr + 8 * s + r}')

    tl = [f'global_load_dwordx4 {vr(Ra, 4)}, v{vPoll}, {sr(sBa)} sc1', f'global_load_dwordx4 {vr(Ra + 4, 4)}, v{vPoll}, {sr(sBb)} sc1']
    bar('B3b')
    if WFIRST:
        w_setup((0, 1) if WFIRST == 1 else (0,))
    if DR1:
        a('s_waitcnt vmcnt(0)')
    if PACE1:
        a(f's_sleep {PACE1}')
    stamp('B3b done')
    tpoll(tl, between=lambda: (None if WFIRST == 1 else w_setup((1,) if WFIRST else (0, 1)), p3_mats() if MATS == 2 else None))
    fine('p2', 'T1 in')
    a(f'ds_write_b128 v{vE0 + 4}, {vr(Ra, 4)}')
    a(f'ds_write_b128 v{vE0 + 4}, {vr(Ra + 4, 4)} offset:10240')
    a(f's_cmp_eq_u32 s{sW}, 7')
    a('s_waitcnt lgkmcnt(0)')
    bar('B4')
    stamp('B4 done (T1 in)')
    fine('p2', 'B4')
    a('s_cbranch_scc1 L_p2_one')
    Fre, Fim, Tc, Ts = vTW, vTW + 4, vTW + 8, vTW + 12
    tmps = (Rb, Rc)

    def p2(ns):
        p2pk = PK[1] == '1'
        if ns == 2:
            for j in range(4):
                a(f'ds_read_b64 {vr(Rb + 2 * j, 2)}, v{vE0 + 3} offset:{1280 * j}')
            for h in range(2):
                a(f's_waitcnt lgkmcnt({2 - 2 * h})')
                for s in range(2):
                    a(f'v_pk_mov_b32 {vr(Ra + 4 * s + 2 * h, 2)}, {vr(Rb + 4 * h, 2)}, {vr(Rb + 4 * h + 2, 2)} op_sel:[{s},{s}]')
        else:
            a(f'ds_read2st64_b32 {vr(Ra, 2)}, v{vE0 + 3} offset0:0 offset1:5')
            a(f'ds_read2st64_b32 {vr(Ra + 2, 2)}, v{vE0 + 3} offset0:10 offset1:15')
            a('s_waitcnt lgkmcnt(0)')
        fine('p2', 'read')
        for s in range(ns):
            mfma32(RD + 8 * s, Ra + 4 * s, Fre)
            mfma32(RD + 8 * s + 4, Ra + 4 * s, Fim)
        fine('p2', 's1')
        def stage(cq, sign, swap, mm):
            lo = lambda s: tmps[s] + (4 if swap else 0)
            hi = lambda s: tmps[s] + (0 if swap else 4)
            if ns == 1 or not P2ORD:
                for s in range(ns):
                    cmul(tmps[s], tmps[s] + 4, RD + 8 * s, RD + 8 * s + 4, *cq(s), sign, pk=p2pk)
                    pack4(Ra + 4 * s, lo(s), hi(s))
                    mm(s, 0)
                    mm(s, 1)
                return
            cmul(tmps[0], tmps[0] + 4, RD, RD + 4, *cq(0), sign, pk=p2pk, head=P2ORD - 1)
            cmul(tmps[1], tmps[1] + 4, RD + 8, RD + 12, *cq(1), sign, pk=p2pk)
            pack4(Ra, lo(0), hi(0))
            cv = lambda r: a(f'v_cvt_pk_bf16_f32 v{Ra + 4 + r}, v{lo(1) + r}, v{hi(1) + r}')
            cv(0)
            cv(1)
            mm(0, 0)
            cv(2)
            cv(3)
            mm(0, 1)
            mm(1, 0)
            mm(1, 1)
        stage(lambda s: (Tc, Ts), -1, False, lambda s, k: mfma32(RD + 8 * s + 4 * k, Fim if k else Fre, Ra + 4 * s))
        fine('p2', 's2')
        stage(lambda s: (vWr + 8 * s, vWr + 8 * s + 4), +1, True, lambda s, k: mfma32(RD + 8 * s + 4 * k, Ra + 4 * s, Fre if k else Fim))
        fine('p2', 's3')
        stage(lambda s: (Tc, Ts), +1, True, lambda s, k: mfma32(RD + 8 * s + 4 * k, Fre if k else Fim, Ra + 4 * s))
        fine('p2', 's4')
        for s in range(ns):
            pack4(Rb + s, RD + 8 * s, RD + 8 * s + 4, step=ns)
        if ns == 2:
            for r in range(4):
                a(f'ds_write_b64 v{vE0 + 3}, {vr(Rb + 2 * r, 2)} offset:{1280 * r}')
        else:
            a(f'ds_write2st64_b32 v{vE0 + 3}, v{Rb}, v{Rb + 1} offset0:0 offset1:5')
            a(f'ds_write2st64_b32 v{vE0 + 3}, v{Rb + 2}, v{Rb + 3} offset0:10 offset1:15')
        a('s_waitcnt lgkmcnt(0)')
    p2(2)
    a.label('L_b5')
    fine('p2', 'pre-B5')
    bar('B5')
    fine('p2', 'B5')
    a(f'ds_read_b128 {vr(Rb, 4)}, v{vE0 + 4}')
    a(f'ds_read_b128 {vr(Rb + 4, 4)}, v{vE0 + 4} offset:10240')
    a('s_waitcnt lgkmcnt(1)')
    a(f'global_store_dwordx4 v{vS}, {vr(Rb, 4)}, {sr(58)} sc1')
    a('s_waitcnt lgkmcnt(0)')
    a(f'global_store_dwordx4 v{vS}, {vr(Rb + 4, 4)}, {sr(60)} sc1')
    stamp('T2 stored')
    fine('p2', 'stored')
    late.append(lambda: (a.label('L_p2_one'), p2(1), a('s_branch L_b5')))
    a.label('L_p3prep')
    vGA, vVV, vGC, vGS = vVec, vVec + 10, vVec + 20, vVec + 30
    vMB = vE0 + 6
    for q in range(4):
        tab_read(vTW + 4 * q, T_TW3 + q)
    a(f'''
    v_add_u32 v{vMB}, {MODB_L}, v{vL4}
    v_bfe_u32 v36, v{vL}, 2, 2
    v_lshrrev_b32 v37, 4, v{vL}
    v_mad_u32_u24 v36, v37, {NJ}, v36
    v_and_b32 v38, 48, v{vL16}
    v_lshl_add_u32 v{vPoll}, v36, 14, v38
    v_mul_u32_u24 v37, {4 * SA}, v37
    v_add_u32 v37, {XB1 + 8 * 361}, v37
    v_cndmask_b32 v{vPairX}, v{vPair}, v37, {sr(sM8)}
    s_and_b64 {sr(sM8)}, {sr(sM8)}, {sr(sLn)}
    s_lshl_b32 s{sU1}, s{sMe}, 6
    s_min_u32 s{sT}, s{sW}, 5
    s_lshl_b32 s{sT}, s{sT}, 16
    s_add_u32 s{sU1}, s{sU1}, s{sT}
    ''')
    base_add(sBa, WS, sU1, T2_G)
    base_add(sBb, WS, sU1, T2_G + 4 * NJ * 16384)
    base_add(sXrow, OUTP, sRow)
    a(f's_mul_i32 s{sU0}, s{sMe}, {REC_STRIDE}')
    base_add(sRec, WS, sU0, REC_G)
    a(f'''
    v_mov_b32 v{vE0 + 7}, {hex(f2u(-1.0 / 640))}
    v_mov_b32 v{vM8F}, {hex(f2u(-1e-5))}
    v_mov_b32 v{vE0 + 3}, {KEYL}
    v_mov_b32 v{vE0 + 4}, 1
    ''')

    def p3_setup():
        raw = Rb
        for k in range(0, 24, 2):
            a(f'ds_read2st64_b32 {vr(raw + k, 2)}, v{vMB} offset0:{k} offset1:{k + 1}')
        a(f'ds_read_b32 v{raw + 24}, v{vMB} offset:{24 * 256}')
        a('s_waitcnt lgkmcnt(0)')
        for vec, dst in ((0, vGA), (1, vGS), (2, vGC), (4, vVV)):
            for j in range(5):
                unpack(dst + tm(j, 0), dst + tm(j, 1), raw + 5 * vec + j)
        GB = Rb
        for j in range(5):
            unpack(GB + tm(j, 0), GB + tm(j, 1), raw + 15 + j)
        t0, t1, t2 = Rc + 2, Rc + 4, Rc + 6
        dot10(t0, vVV, vGS)
        for h in range(0, 10, 2):
            a(f'v_pk_mul_f32 {vr(vVV + h, 2)}, {vr(vVV + h, 2)}, {vr(vGC + h, 2)}')
        sum10(t1, vVV)
        a(f'v_mov_b32 v{t2}, s{sM1B}')
        for h in range(0, 10, 2):
            a(f'v_pk_mul_f32 {vr(vGC + h, 2)}, {vr(vGC + h, 2)}, {vr(GB + h, 2)}')
            a(f'v_pk_fma_f32 {vr(vGS + h, 2)}, {vr(vGS + h, 2)}, {vr(GB + h, 2)}, {vr(t2, 2)} op_sel:[0,0,0] op_sel_hi:[1,1,0]')
        wave_sum([t1, t0], [sV1, sV2])

    if MATS == 0:
        p3_mats()
    a('s_waitcnt lgkmcnt(0)')
    bar('B5b')
    stamp('B5b done')
    fine('p2', 'B5b')
    if P3FIRST:
        p3_setup()
    else:
        a(f's_cmp_ge_u32 s{sIdx}, {NJ}')
        a(f's_cselect_b32 s{sCand}, 8, s{sW}')
        a(f's_cmp_lt_u32 s{sCand}, 6')
        a('s_cbranch_scc1 L_p3later')
        p3_setup()
        a.label('L_p3later')
    if DR2:
        a('s_waitcnt vmcnt(0)')
    if PACE2:
        a(f's_sleep {PACE2}')
    a(f's_cmp_ge_u32 s{sIdx}, {NJ}')
    a('s_cbranch_scc0 L_nob5c')
    bar('B5c')
    a.label('L_nob5c')
    a(f's_cmp_ge_u32 s{sW}, 6')
    a('s_cbranch_scc1 L_b6')
    stamp('T2 poll')
    fine('p2', 'T2 poll')

    def p3_behind():
        a(f's_cmp_lt_u32 s{sCand}, 6')
        a('s_cbranch_scc0 L_p3done')
        p3_setup()
        a.label('L_p3done')
    tpoll(tl, lanes_s=sr(sLn), between=None if P3FIRST else p3_behind)
    stamp('T2 in')
    fine('p3', 'T2 in')
    a(f'''
    v_swap_b32 v{Ra + 1}, v{Ra + 4}
    v_swap_b32 v{Ra + 3}, v{Ra + 6}
    ''')
    for n, r in ((0, Ra), (1, Ra + 4), (2, Ra + 2), (3, Ra + 6)):
        mfma16(RD + 4 * n, vM8I, r)
    for n in range(4):
        for jj in range(2):
            a(f'v_cvt_pk_bf16_f32 v{Rb + 2 * n + jj}, v{RD + 4 * n + 2 * jj + 1}, v{RD + 4 * n + 2 * jj}')
        a(f'ds_write_b64 v{vPairX if n == 3 else vPair}, {vr(Rb + 2 * n, 2)} offset:{8 * n}')
    a('s_waitcnt lgkmcnt(0)')
    a.label('L_b6')
    prio(2, True)
    fine('p3', 'pre-B6')
    bar('B6')
    fine('p3', 'B6')
    for u in range(2):
        for r in (0, 2):
            a(f'ds_read2_b32 {vr(Rb + 4 * u + r, 2)}, v{vSg1 if u else vSg0} offset0:{80 * r} offset1:{80 * r + 80}')
    Y = RD
    if not P3O:
        for ks in range(2):
            a(f's_waitcnt lgkmcnt({2 - 2 * ks})')
            for t in range(2):
                for e in range(2):
                    d = RD + 8 * t + 4 * e
                    mfma32(d, Rb + 4 * ks, vF32 + 16 * t + 8 * (1 - e) + 4 * ks, d if ks else None)
        fine('p3', 'mfma1 issued')
        if PRIO[2] == '1':
            prio(2, False)
        for t, tmp in ((0, Ra), (1, Rc)):
            cmul(tmp, tmp + 4, RD + 8 * t, RD + 8 * t + 4, vTW + 8 * t, vTW + 8 * t + 4, +1, pk=PK[2] == '1' or (PK[2] == '2' and t == 1), n=3)
            pack4(Rb + 4 * t, tmp, tmp + 4, n=3)
            a(f'v_mov_b32 v{Rb + 4 * t + 3}, 0')
        Y = RD
        mfma32(Y, vF20, Rb)
        mfma32(Y + 8, vF20 + 4, Rb)
        mfma32(Y + 4, vF20, Rb + 4)
        mfma32(Y + 8, vF20 + 8, Rb + 4, Y + 8)
    else:
        def m1(t, ks, e):
            d = RD + 8 * t + 4 * e
            mfma32(d, Rb + 4 * ks, vF32 + 16 * t + 8 * (1 - e) + 4 * ks, d if ks else None)
        a('s_waitcnt lgkmcnt(2)')
        m1(0, 0, 0)
        m1(0, 0, 1)
        a('s_waitcnt lgkmcnt(0)')
        m1(0, 1, 0)
        m1(0, 1, 1)
        for ks in range(2):
            for e in range(2):
                m1(1, ks, e)
        fine('p3', 'mfma1 issued')
        B0_, B1_ = vF32, vF32 + 4
        cmul(Ra, Ra + 4, RD, RD + 4, vTW, vTW + 4, +1, pk=False, n=3)
        a(f'v_mov_b32 v{B0_ + 3}, 0')
        a(f'v_mov_b32 v{B1_ + 3}, 0')
        pack4(B0_, Ra, Ra + 4, n=3)
        Yx = Rb
        mfma32(Y, vF20, B0_)
        mfma32(Yx, vF20 + 4, B0_)
        cmul(Rc, Rc + 4, RD + 8, RD + 12, vTW + 8, vTW + 12, +1, pk=False, n=3)
        pack4(B1_, Rc, Rc + 4, n=3)
        mfma32(Y + 4, vF20, B1_)
        mfma32(Y + 8, vF20 + 8, B1_, Yx)
    fine('p3', 'mfma2 issued')
    if PRIO[2] == '2':
        prio(2, False)
    X1 = vXS
    s1, s2, s3, s4 = Ra, Ra + 1, Ra + 2, Ra + 3
    if not PKS:
        for k in range(10):
            a(f'v_fmac_f32 v{X1 + k}, v{Y + k}, v{vGA + k}')
            if k == 1:
                a(f'v_mul_f32 v{s2}, v{X1}, v{X1}')
                a(f'v_mul_f32 v{s3}, v{X1}, v{vVV}')
            if k >= 2:
                a(f'v_add_f32 v{s1}, v{X1 + k - 1}, v{X1 if k == 2 else s1}')
                a(f'v_fmac_f32 v{s2}, v{X1 + k - 1}, v{X1 + k - 1}')
                a(f'v_fmac_f32 v{s3}, v{X1 + k - 1}, v{vVV + k - 1}')
        a(f'v_fmac_f32 v{s3}, v{X1 + 9}, v{vVV + 9}')
        a(f'v_add_f32 v{s1}, v{X1 + 9}, v{s1}')
        a(f'v_fmac_f32 v{s2}, v{X1 + 9}, v{X1 + 9}')
    else:
        p1_, p2_, p3_ = Rc, Rc + 2, Rc + 4
        for h in range(0, 10, 2):
            a(f'v_pk_fma_f32 {vr(X1 + h, 2)}, {vr(Y + h, 2)}, {vr(vGA + h, 2)}, {vr(X1 + h, 2)}')
        a(f'v_pk_mul_f32 {vr(p3_, 2)}, {vr(X1, 2)}, {vr(vVV, 2)}')
        a(f'v_pk_add_f32 {vr(p1_, 2)}, {vr(X1, 2)}, {vr(X1 + 2, 2)}')
        a(f'v_pk_mul_f32 {vr(p2_, 2)}, {vr(X1, 2)}, {vr(X1, 2)}')
        for h in (2, 4, 6, 8):
            a(f'v_pk_fma_f32 {vr(p3_, 2)}, {vr(X1 + h, 2)}, {vr(vVV + h, 2)}, {vr(p3_, 2)}')
            if h > 2:
                a(f'v_pk_add_f32 {vr(p1_, 2)}, {vr(p1_, 2)}, {vr(X1 + h, 2)}')
            a(f'v_pk_fma_f32 {vr(p2_, 2)}, {vr(X1 + h, 2)}, {vr(X1 + h, 2)}, {vr(p2_, 2)}')
        a(f'v_add_f32 v{s3}, v{p3_}, v{p3_ + 1}')
        a(f'v_add_f32 v{s1}, v{p1_}, v{p1_ + 1}')
        a(f'v_add_f32 v{s2}, v{p2_}, v{p2_ + 1}')
    fine('p3', 'partials')
    a(f'''
    v_permlane32_swap_b32 v{s3}, v{s4}
    v_permlane32_swap_b32 v{s1}, v{s2}
    v_add_f32 v{s3}, v{s3}, v{s4}
    v_add_f32 v{s1}, v{s1}, v{s2}
    v_permlane16_swap_b32 v{s1}, v{s3}
    v_add_f32 v{s1}, v{s1}, v{s3}
    ''')
    for c in ('row_ror:8', 'row_ror:4', 'row_ror:2', 'row_ror:1'):
        dpp('v_add_f32', s1, c)
    a(f'''
    v_readlane_b32 s{sU0}, v{s1}, 0
    v_readlane_b32 s{sU2}, v{s1}, 32
    v_readlane_b32 s{sU3}, v{s1}, 16
    ''')
    fine('p3', 'reduced')
    k0 = Rc
    cE = vM8F
    cI, cK, cT, cO = vE0 + 7, vE0 + 3, Ra + 7, vE0 + 4
    m = Ra + 1
    a(f'''
    v_mul_f32 v{m + 2}, s{sU0}, v{cI}
    v_fma_f32 v{k0}, v{m + 2}, v{m + 2}, v{cE}
    v_mov_b32 v{m + 3}, s{sU3}
    v_fmac_f32 v{k0}, s{sU2}, v{cI}
    v_fmac_f32 v{m + 3}, s{sV1}, v{m + 2}
    v_sub_f32 v{m + 1}, v{cE}, v{k0}              ; var
    v_rsq_f32_e64 v{k0}, -v{k0}
    v_mov_b32 v{cT}, s{sTag}
    s_mov_b64 exec, 1
    v_fma_f32 v{m + 3}, v{m + 3}, v{k0}, s{sV2}   ; r
    v_ashrrev_i32 v{m + 4}, 31, v{m + 3}
    v_or_b32 v{m + 4}, 0x80000000, v{m + 4}
    v_xor_b32 v{m + 3}, v{m + 3}, v{m + 4}
    v_and_b32 v{m + 3}, 0xfffff800, v{m + 3}
    v_or_b32 v{m + 3}, s{sKey}, v{m + 3}
    ds_max_u32 v{cK}, v{m + 3}
    ds_add_rtn_u32 v{m + 4}, v{cK}, v{cO} offset:8
    ds_read_b32 v{Ra + 6}, v{cK}
    v_readfirstlane_b32 s{sKey}, v{m + 3}
    s_waitcnt lgkmcnt(0)
    v_cmpx_eq_u32 vcc, 7, v{m + 4}
    s_cbranch_execz L_notlast
    global_store_dwordx2 v{vL4}, {vr(Ra + 6, 2)}, {sr(sRec)} sc1
    L_notlast:
    s_mov_b64 exec, -1
    ''')
    fine('p3', 'key')
    bar('B7')
    fine('p3', 'B7')
    a(f'''
    ds_read_b32 v{Ra + 6}, v{cK}
    v_sub_f32 v{m + 2}, s{sM1B}, v{m + 2}
    ''')
    rbf(m + 2, f'v{m + 2}')
    rstd_chain(m + 1, k0)
    a(f'''
    v_sub_f32 v{m + 2}, s{sM1B}, v{m + 2}
    v_mul_f32 v{k0 + 1}, v{m + 2}, v{k0}
    ''')
    ZN = vGA
    for h in range(0, 10, 2):
        a(f'v_pk_fma_f32 {vr(ZN + h, 2)}, {vr(X1 + h, 2)}, {vr(k0, 2)}, {vr(k0, 2)} op_sel:[0,0,1] op_sel_hi:[1,0,1]')
    vO = vXS

    def out_math():
        for h in range(0, 10, 2):
            a(f'v_pk_add_f32 {vr(Y + h, 2)}, {vr(X1 + h, 2)}, {vr(vGS + h, 2)}')
        for h in range(0, 10, 2):
            a(f'v_pk_fma_f32 {vr(Y + h, 2)}, {vr(ZN + h, 2)}, {vr(vGC + h, 2)}, {vr(Y + h, 2)}')
        if opt('inject', None):
            if opt('injall', None):
                for k in range(10):
                    a(f'v_mul_f32 v{Y + k}, {hex(f2u(1 + float(opt("inject", 0))))}, v{Y + k}')
            else:
                a(f's_cmp_eq_u32 s{sRow}, 0')
                a('s_cselect_b64 exec, 1, 0')
                a(f'v_add_f32 v{Y}, {hex(f2u(float(opt("inject", 0))))}, v{Y}')
                a('s_mov_b64 exec, -1')
        for j in range(5):
            a(f'v_cvt_pk_bf16_f32 v{vO + j}, v{Y + tm(j, 0)}, v{Y + tm(j, 1)}')
    a(f'''
    s_waitcnt lgkmcnt(0)
    v_readfirstlane_b32 s{sU0}, v{Ra + 6}
    s_cmp_eq_u32 s{sU0}, s{sKey}
    s_cselect_b32 s{sCand}, 1, 0
    s_cbranch_scc1 L_cand
    ''')
    out_math()
    a('s_branch L_keys')
    a.label('L_cand')
    raw, SB, CB, H, Bq = 60, 70, 80, 92, 108
    for k in range(0, 10, 2):
        a(f'ds_read2st64_b32 {vr(raw + k, 2)}, v{vMB} offset0:{5 + k} offset1:{6 + k}')
    for qd in range(2):
        a(f'v_mov_b32 v{H + 4 * qd + 3}, s{sTag}')
    a('s_waitcnt lgkmcnt(0)')
    for j in range(5):
        unpack(SB + tm(j, 0), SB + tm(j, 1), raw + j)
        unpack(CB + tm(j, 0), CB + tm(j, 1), raw + 5 + j)
    for h in range(0, 10, 2):
        a(f'v_pk_fma_f32 {vr(SB + h, 2)}, {vr(ZN + h, 2)}, {vr(CB + h, 2)}, {vr(SB + h, 2)}')
    for j in range(5):
        a(f'v_cvt_pk_bf16_f32 v{H + j + (j >= 3)}, v{SB + tm(j, 0)}, v{SB + tm(j, 1)}')
    for qd in range(2):
        a(f'global_store_dwordx4 v{vL16}, {vr(H + 4 * qd, 4)}, {sr(sRec)} offset:{REC_H2 + 1024 * qd} sc1')
    out_math()

    def out_row():
        for j in range(5):
            a(f'global_store_dword v{vL4}, v{vO + j}, {sr(sXrow)} offset:{256 * j} sc1')
    out_row()
    a.label('L_keys')
    stamp('key out')
    fine('p3', 'key out')
    bar('B7b (candidate stores are out, the helpers have ended)')
    a(f'''
    s_cmp_ge_u32 s{sRi}, 20
    s_cselect_b32 s{sT}, 1, s{sCand}
    s_cmp_lg_u32 s{sT}, 0
    s_cbranch_scc1 L_noout
    ''')
    out_row()
    a('s_branch L_fin')
    a.label('L_noout')
    vEW, vFW = 48, 88
    vRed, vRd, vRow = 15, 16, 17
    a(f'''
    s_cmp_lt_u32 s{sRi}, 20
    s_cbranch_scc1 L_no_ew
    s_mul_i32 s{sT}, s{sW}, 5120
    s_add_u32 s{sT}, s{sT}, {EW}
    v_and_b32 v{Rb}, 0x3c0, v{vL16}
    v_and_b32 v{Rb + 1}, 24, v{vE0}
    v_add3_u32 v{Rb}, v{Rb}, v{Rb + 1}, s{sT}
    s_mul_i32 s{sT}, s{sW}, 320
    s_add_u32 s{sT}, s{sT}, {FW}
    v_min_u32 v{vE0 + 1}, {39 * 8}, v{vE0}
    v_add_u32 v{vE0 + 1}, s{sT}, v{vE0 + 1}
    ''')
    for j in range(5):
        if j in (2, 4):
            a(f'v_add_u32 v{Rb}, 2048, v{Rb}')
        a(f'ds_read2_b64 {vr(vEW + 20 + 4 * j, 4)}, v{Rb} offset0:{128 * (j & 1)} offset1:{128 * (j & 1) + 4}')
    a(f'''
    v_and_b32 v{vRed}, 3, v{vL}
    v_lshlrev_b32 v{vRed}, 6, v{vRed}
    v_and_b32 v{vRd}, 48, v{vL}
    v_add_u32 v{vRed}, v{vRd}, v{vRed}
    s_lshr_b32 s{sU1}, s{sW}, 2
    s_lshl_b32 s{sU1}, s{sU1}, 8
    s_and_b32 s{sT}, s{sW}, 3
    s_lshl_b32 s{sT}, s{sT}, 2
    s_add_u32 s{sU1}, s{sU1}, s{sT}
    s_add_u32 s{sU1}, s{sU1}, {RED}
    v_add_u32 v{vRed}, s{sU1}, v{vRed}
    v_and_b32 v{vRd}, 0xf0, v{vL16}
    v_bfe_u32 v{vRow}, v0, 2, 6                    ; lane' = (t'>>1)>>1
    v_lshlrev_b32 v{vRow}, 4, v{vRow}
    s_mov_b32 s{sU2}, 0x05040100
    s_mov_b32 s{sU3}, 0x07060302
    v_add_u32 v{vRow}, {REC_G + REC_H2}, v{vRow}
    v_mov_b32 v18, 0xffffff00
    s_mul_i32 s{sU1}, s{sX}, 12
    s_add_u32 s{sU1}, s{sU1}, s{sRi}
    s_mul_i32 s{sU1}, s{sU1}, {PY_STRIDE}
    s_mul_i32 s{sT}, s{sW}, 640
    s_add_u32 s{sU1}, s{sU1}, s{sT}
    ''')
    base_add(sBb, WS, sU1, PY_G - 20 * PY_STRIDE)
    a('s_waitcnt lgkmcnt(0)')
    if KD == 1:
        bar('B7c')
    for j in range(5):
        r0 = vEW + 20 + 4 * j
        for c in range(4):
            a(f'v_perm_b32 v{vEW + 4 * j + c}, v{r0 + 2 + c // 2}, v{r0 + c // 2}, s{sU3 if c & 1 else sU2}')
    for k in range(4):
        a(f'v_mov_b32 v{36 + k}, 0')

    def fw_unpack():
        a(f's_cmp_ge_u32 s{sW}, 4')
        a('s_cbranch_scc1 L_no_fw')
        for u in range(16):
            if u == 8:
                a('s_waitcnt lgkmcnt(0)')
            a(f'ds_read_b64 {vr(vFW + 32 + 2 * u, 2)}, v{vE0 + 1} offset:{1280 * u}')
        a('s_waitcnt lgkmcnt(0)')
        for k in range(32):
            unpack(vFW + 2 * k, vFW + 2 * k + 1, vFW + 32 + k)
        a.label('L_no_fw')
    if not FWL:
        fw_unpack()
    a.label('L_no_ew')
    a(f's_cmp_eq_u32 s{sCand}, 0')
    a('s_cbranch_scc1 L_nobase')
    a(f'''
    v_mov_b32 v20, v{vO}
    v_mov_b32 v21, v{vO + 1}
    v_mov_b32 v22, v{vO + 2}
    v_mov_b32 v23, s{sTag}
    v_mov_b32 v24, v{vO + 3}
    v_mov_b32 v25, v{vO + 4}
    v_mov_b32 v27, s{sTag}
    s_waitcnt vmcnt(0)
    global_store_dwordx4 v{vL16}, v[20:23], {sr(sRec)} offset:{REC_BASE} sc1
    global_store_dwordx4 v{vL16}, v[24:27], {sr(sRec)} offset:{REC_BASE + 1024} sc1
    ''')
    a.label('L_nobase')
    a(f'''
    s_cmp_lt_u32 s{sRi}, 20
    s_cbranch_scc1 L_fin
    v_mov_b32 v{Rb + 2}, {KEYL + 4}
    {'s_barrier' if KD == 2 else ''}
    ''')
    a.label('L_b8')
    fine('e', 'pre-B8')
    a('s_barrier                                   ; B8')
    a(f'''
    ds_read_b32 v{Rb + 3}, v{Rb + 2}
    s_movk_i32 s{sT}, {REC_STRIDE}
    s_waitcnt lgkmcnt(0)
    v_and_b32 v{Rb + 4}, 255, v{Rb + 3}
    v_mad_u32_u24 v{vRow}, v{Rb + 4}, s{sT}, v{vRow}
    ''')
    stamp('B8 done (winner)')
    fine('e', 'B8+')

    def late_out():
        a(f's_cmp_lg_u32 s{sCand}, 0')
        a('s_cbranch_scc1 L_noout2')
        out_row()
        a.label('L_noout2')
        if FWL:
            fw_unpack()
        a(f's_cmp_lg_u32 s{sCand}, 0')
        a('s_cbranch_scc1 L_noout4')
        a('s_waitcnt vmcnt(5)')
        a.label('L_noout3')
        late.append(lambda: (a.label('L_noout4'), a('s_waitcnt vmcnt(0)'), a('s_branch L_noout3')))
    poll([f'global_load_dwordx4 v[20:23], v{vRow}, {sr(WS)} sc1',
          f'global_load_dwordx4 v[24:27], v{vRow}, {sr(WS)} offset:1024 sc1'], [23, 27], [30, 32], empty='word',
         between=late_out, younger=63)
    stamp('row in')
    fine('e', 'row in')
    acc = 36
    for j in range(5):
        for c in (0, 2, 1, 3):
            a(f'v_dot2c_f32_bf16 v{acc + c}, v{vEW + 4 * j + c}, v{20 + j + (j >= 3)}')
    a(f'''
    v_permlane32_swap_b32 v36, v38
    v_permlane32_swap_b32 v37, v39
    v_pk_add_f32 v[36:37], v[36:37], v[38:39]
    v_permlane16_swap_b32 v36, v37
    v_add_f32 v36, v36, v37
    ''')
    for c in ('row_ror:8', 'row_ror:4'):
        dpp('v_add_f32', acc, c)
    a(f'''
    s_mov_b32 exec_lo, 0x000f000f
    s_mov_b32 exec_hi, 0x000f000f
    ds_write_b32 v{vRed}, v{acc}
    s_mov_b64 exec, -1
    s_cmp_ge_u32 s{sW}, 4
    s_waitcnt lgkmcnt(0)
    ''')
    fine('e', 'pre-B9')
    bar('B9')
    fine('e', 'B9')
    a(f'''
    s_cbranch_scc1 L_e_done
    ds_read_b128 v[20:23], v{vRd} offset:{RED}
    ds_read_b128 v[24:27], v{vRd} offset:{RED + 256}
    s_waitcnt lgkmcnt(0)
    v_pk_add_f32 v[20:21], v[20:21], v[22:23]
    v_pk_add_f32 v[24:25], v[24:25], v[26:27]
    v_add_f32 v20, v20, v21
    v_add_f32 v24, v24, v25
    v_mul_f32 v21, 0xbfb8aa3b, v20
    v_exp_f32 v21, v21
    v_mul_f32 v20, v20, v24
    v_add_f32 v21, 1.0, v21
    v_rcp_f32 v21, v21
    v_mul_f32 v20, v20, v21
    ''')
    fine('e', 'gu')
    sG = 8
    for u in range(16):
        a(f'v_readlane_b32 s{sG + u}, v20, {u}')
    for u in range(16):
        for hh in range(2):
            w_ = vr(vFW + 4 * u + 2 * hh, 2)
            g_ = sr(sG + (u & ~1))
            d_ = vr(36 + 2 * hh, 2)
            if u == 0:
                a(f'v_pk_mul_f32 {d_}, {w_}, {g_} op_sel:[0,0] op_sel_hi:[1,0]')
            else:
                a(f'v_pk_fma_f32 {d_}, {w_}, {g_}, {d_} {BC1 if u & 1 else BC0}')
    for k in range(4):
        a(f'v_and_or_b32 v{36 + k}, v{36 + k}, v18, s{sTB + k}')
    a('s_mov_b32 exec_hi, 0xff')
    a(f'global_store_dwordx4 v{vL16}, v[36:39], {sr(sBb)} sc1')
    a('s_mov_b64 exec, -1')
    stamp('PY out')
    fine('e', 'PY out')
    a('s_waitcnt vmcnt(0)')
    a.label('L_e_done')
    bar('B10')
    a.label('L_fin')
    stamp('end')
    fine('e', 'end')
    if FINE:
        a('s_waitcnt lgkmcnt(0)')
    dump_stamps()
    a.label('L_end')
    a('s_endpgm')
    flush_late()


sF1, sF2, sPb, sGw, sWb = 56, 58, 60, 62, 64


def publish():
    a(f'''
    ds_read_b128 v[40:43], v28 offset:{RED}
    ds_read_b128 v[44:47], v28 offset:{RED + 16}
    s_waitcnt lgkmcnt(0)
    v_pk_add_f32 v[40:41], v[40:41], v[42:43]
    v_pk_add_f32 v[44:45], v[44:45], v[46:47]
    v_add_f32 v40, v35, v40
    v_pk_add_f32 v[40:41], v[40:41], v[44:45]
    v_add_f32 v40, v40, v41
    v_and_or_b32 v40, v40, v33, v34
    global_store_dword v{vL4}, v40, {sr(sPb)} sc1
    ''')
    stamp('published', 'H0')


def w_addr():
    a(f'''
    s_mul_i32 s{sU1}, s{sIdx}, 15
    s_min_u32 s{sU1}, s{sU1}, 306
    s_add_u32 s{sT}, s{sU1}, s{sX}
    s_and_b32 s{sT}, s{sT}, 1
    s_sub_u32 s{sU1}, s{sU1}, s{sT}
    s_mul_i32 s{sU0}, s{sX}, 321
    s_add_u32 s{sU1}, s{sU1}, s{sU0}
    s_lshl_b32 s{sU1}, s{sU1}, 1
    v_lshrrev_b32 v90, 1, v{vL}
    v_mul_u32_u24 v90, 5136, v90
    v_lshlrev_b32 v91, 1, v{vL}
    v_xor_b32 v91, v{vL16}, v91
    v_and_b32 v91, 16, v91
    v_add3_u32 v100, v90, v91, s{sU1}
    ''')


def w_gather(arr, lds):
    for n in range(8):
        a(f's_mov_b32 m0, {lds + 1024 * n}')
        a(f'global_load_lds_dwordx4 v100, {sr(arr)}')
        if n < 7:
            a(f'v_add_u32 v100, {32 * 5136}, v100')


def mask_lanes(n):
    if n >= 64:
        return
    if n > 32:
        a(f's_mov_b32 exec_hi, {hex((1 << (n - 32)) - 1)}')
    else:
        a(f's_mov_b64 exec, {hex((1 << n) - 1)}')


def warm_addr_w():
    a(f'''
    s_sub_u32 s{sU0}, s{sRi}, 10
    s_mul_i32 s{sU3}, s{sU0}, 70
    s_movk_i32 s{sU2}, 0x2aab
    s_mul_i32 s{sU1}, s{sX}, 642
    s_movk_i32 s{sT}, 5136
    ''')
    for n in range(2):
        a(f'''
        v_add_u32 v90, s{sU3}, v{vL}
        v_add_u32 v90, {35 * n}, v90
        v_min_u32 v90, 1535, v90
        v_mul_u32_u24 v91, s{sU2}, v90
        v_lshrrev_b32 v91, 16, v91
        v_mul_u32_u24 v92, 6, v91
        v_sub_u32 v92, v90, v92
        v_lshlrev_b32 v92, 7, v92
        v_min_u32 v92, 638, v92
        v_add_u32 v92, s{sU1}, v92
        v_mad_u32_u24 v92, v91, s{sT}, v92
        v_and_b32 v{120 + n}, -4, v92
        ''')


def ffn_parts(slot):
    return [(n, k) for n in range(3) if S_W[n] == slot for k in range(1 if slot == 0 else 2)]


def warm_addr_f(h, slot):
    f, per, lanes = (10, 44, 44) if slot == 0 else (NJ, 96, 48)
    if not ffn_parts(slot):
        return
    a(f'''
    s_sub_u32 s{sU0}, s{sRi}, {f}
    s_mul_i32 s{sU3}, s{sU0}, {per}
    s_mul_i32 s{sU1}, s{sX}, 384
    s_movk_i32 s{sU2}, 0x5556
    s_movk_i32 s{sT}, {3072 - 384}
    s_mul_i32 s{sU0}, s{sX}, 245760
    ''')
    for n, k in ffn_parts(slot):
        d = 130 + 2 * n + k
        a(f'''
        v_add_u32 v90, s{sU3}, v{vL}
        v_add_u32 v90, {lanes * k}, v90
        v_min_u32 v90, 959, v90
        v_add_u32 v90, {960 * (n if n < 2 else h)}, v90
        ''')
        if n < 2:
            a(f'''
            v_mul_u32_u24 v91, s{sU2}, v90
            v_lshrrev_b32 v91, 16, v91
            v_lshl_add_u32 v90, v90, 7, s{sU1}
            v_mad_u32_u24 v{d}, v91, s{sT}, v90
            ''')
        else:
            a(f'v_lshl_add_u32 v{d}, v90, 7, s{sU0}')


def warm_issue(h, slot, sel=None):
    if slot == 0:
        mask_lanes(35)
        for n in range(2):
            a(f'global_load_dword v125, v{120 + n}, {sr(W_R if h else W_I)}')
    ps = ffn_parts(slot) if sel is None else sel
    if ps:
        mask_lanes(44 if slot == 0 else 48)
    for n, k in ps:
        a(f'global_load_dword v125, v{130 + 2 * n + k}, {sr(W_D if n == 2 else (W_G if h else W_U))}')
    a('s_mov_b64 exec, -1')


def e_addr(mat):
    a(f'''
    s_max_u32 s{sU1}, s{sRi}, 20
    s_mul_i32 s{sU0}, s{sX}, 12
    s_add_u32 s{sU0}, s{sU0}, s{sU1}
    s_sub_u32 s{sU0}, s{sU0}, 20
    s_mul_i32 s{sU1}, s{sU0}, 20480
    s_lshl_b32 s{sU0}, s{sU0}, 5
    v_lshrrev_b32 v128, 1, v{vL}
    v_mul_u32_u24 v128, 3072, v128
    v_and_b32 v90, 16, v{vL16}
    v_add_u32 v128, v128, v90
    ''')
    base_add(sF1, mat, sU0)
    base_add(sGw, W_D, sU1, 10240 if mat == W_U else 0)


def if_e(f):
    L = newlabel('ne')
    a(f's_cmp_lt_u32 s{sRi}, 20')
    a(f's_cbranch_scc1 {L}')
    f()
    a.label(L)


def e_gather(half, n0, n1):
    for n in range(n0, n1):
        a(f's_mov_b32 m0, {EW + (n % 4 + 4 * half) * 5120 + (n // 4) * 1024}')
        a(f'global_load_lds_dwordx4 v128, {sr(sF1)}')
        if n < 19:
            a(f'v_add_u32 v128, {32 * 3072}, v128')


def wd_load(half):
    for n in range(10):
        if n % 4 == 0:
            a(f's_mov_b32 m0, {FW + half * 10240 + n * 1024}')
            a(f'v_add_u32 v90, {1024 * n}, v{vL16}')
        a(f'global_load_lds_dwordx4 v90, {sr(sGw)} offset:{1024 * (n % 4)}')


def touch_small():
    if 'k' in TCH:
        a(f's_mul_i32 s{sU0}, s{sMe}, {REC_STRIDE}')
        base_add(sBa, WS, sU0, REC_G)
        a(f'''
        s_mov_b64 exec, 0xff
        global_store_dwordx4 v{vL16}, v[20:23], {sr(sBa)} sc1
        s_mov_b64 exec, -1
        ''')
    if 'p' in TCH:
        def f():
            a(f'''
            s_mul_i32 s{sU1}, s{sX}, 12
            s_add_u32 s{sU1}, s{sU1}, s{sRi}
            s_mul_i32 s{sU1}, s{sU1}, {PY_STRIDE}
            ''')
            base_add(sBa, WS, sU1, PY_G - 20 * PY_STRIDE)
            a(f'''
            global_store_dwordx4 v{vL16}, v[20:23], {sr(sBa)} sc1
            global_store_dwordx4 v{vL16}, v[20:23], {sr(sBa)} offset:1024 sc1
            s_mov_b32 exec_hi, 0
            global_store_dwordx4 v{vL16}, v[20:23], {sr(sBa)} offset:2048 sc1
            s_mov_b64 exec, -1
            ''')
        if_e(f)


def finalizer():
    a(f'''
    s_cmp_ge_u32 s{sRi}, 30
    s_cbranch_scc1 L_hx0
    ds_read_b32 v21, v62
    s_mul_i32 s{sU2}, s{sX}, 10
    s_add_u32 s{sU2}, s{sU2}, s{sRi}
    s_sub_u32 s{sU2}, s{sU2}, 20                   ; f
    v_mov_b32 v26, 0
    v_mov_b32 v27, 0
    s_waitcnt lgkmcnt(0)
    v_readfirstlane_b32 s{sU0}, v21
    s_and_b32 s{sU1}, s{sU0}, 255
    s_mul_i32 s{sU1}, s{sU1}, {REC_STRIDE}
    ''')
    base_add(sBa, WS, sU1, REC_G + REC_BASE)
    done = [f'global_load_dwordx4 v[32:35], v26, {sr(sBa)} sc1']
    a(f'''
    v_and_b32 v20, 1, v{vL}
    v_lshrrev_b32 v21, 4, v{vL}
    v_lshl_add_u32 v20, v20, 2, v21
    s_lshl_b32 s{sT}, s{sU2}, 3
    v_add_u32 v20, s{sT}, v20
    s_lshr_b32 s{sCand}, s{sU2}, 4                 ; j
    s_cmp_ge_u32 s{sCand}, 3
    s_cselect_b32 s{sT}, 3, 0
    s_sub_u32 s{sCand}, s{sCand}, s{sT}            ; dword inside the quad
    s_mul_i32 s{sT}, s{sT}, 342
    s_and_b32 s{sT}, s{sT}, 1024
    v_bfe_u32 v26, v20, 1, 6
    v_lshl_add_u32 v26, v26, 4, s{sT}
    {done[0]}
    v_lshlrev_b32 v20, 1, v20                      ; 2d
    v_add_u32 v21, {MODB_L + 3840}, v20
    v_mov_b32 v22, 0
    ds_read_u16_d16_hi v22, v21                    ; gb[d]
    s_and_b32 s{sU1}, s{sU0}, 0x7ff
    s_mul_i32 s{sU1}, s{sU1}, 1280
    ''')
    base_add(sXrow, OUTP, sU1)
    a(f'''
    s_and_b32 s{sU1}, s{sU0}, 0xfffff800
    s_or_b32 s{sU1}, s{sU1}, 0x400
    s_xor_b32 s{sU3}, s{sU1}, 0x80000000
    s_not_b32 s{sT}, s{sU1}
    s_cmp_lt_i32 s{sU1}, 0
    s_cselect_b32 s{sU1}, s{sU3}, s{sT}
    v_mov_b32 v28, s{sU1}
    ''')
    a(f'''
    v_mul_f32 v28, 0xbfb8aa3b, v28
    v_exp_f32 v28, v28
    v_add_f32 v28, 1.0, v28
    v_rcp_f32 v28, v28
    ''')
    a(f'''
    v_lshrrev_b32 v29, 1, v{vL}
    v_mul_u32_u24 v29, {PY_STRIDE}, v29
    v_and_b32 v30, 16, v{vL16}
    v_add_u32 v29, v29, v30
    v_add_u32 v30, {32 * PY_STRIDE}, v29
    v_add_u32 v31, {64 * PY_STRIDE}, v29
    s_lshl_b32 s{sU2}, s{sU2}, 5
    ''')
    base_add(sBb, WS, sU2, PY_G)
    a('s_waitcnt lgkmcnt(0)')
    a('v_mul_f32 v22, v22, v28')
    bar('B9')
    poll(done, [35], [], empty='word', issued=True)
    a(f'''
    s_cmp_eq_u32 s{sCand}, 1
    s_cselect_b64 vcc, -1, 0
    v_cndmask_b32 v27, v32, v33, vcc
    s_cmp_eq_u32 s{sCand}, 2
    s_cselect_b64 vcc, -1, 0
    v_cndmask_b32 v27, v27, v34, vcc
    v_and_b32 v32, 16, v{vL}
    v_lshrrev_b32 v27, v32, v27
    v_lshlrev_b32 v27, 16, v27
    ''')
    bar('B10')
    if PYD:
        a(done[0])
        a('s_waitcnt vmcnt(0)')
    stamp('PY poll', 'H0')
    poll([f'global_load_dwordx4 {vr(36 + 4 * n, 4)}, v{29 + n}, {sr(sBb)} sc1' for n in range(3)],
         list(range(36, 48)), [48, 49], empty='tag')
    a(f'''
    v_pk_add_f32 v[36:37], v[36:37], v[40:41]
    v_pk_add_f32 v[38:39], v[38:39], v[42:43]
    v_pk_add_f32 v[36:37], v[36:37], v[44:45]
    v_pk_add_f32 v[38:39], v[38:39], v[46:47]
    v_permlane32_swap_b32 v36, v38
    v_permlane32_swap_b32 v37, v39
    v_pk_add_f32 v[36:37], v[36:37], v[38:39]
    v_permlane16_swap_b32 v36, v37
    v_add_f32 v36, v36, v37
    ''')
    for c in ('row_ror:8', 'row_ror:4', 'row_ror:2'):
        dpp('v_add_f32', 36, c)
    a(f'''
    v_fma_f32 v36, v36, v22, v27
    v_cvt_pk_bf16_f32 v36, v36, v36
    s_mov_b32 exec_lo, 0x00030003
    s_mov_b32 exec_hi, 0x00030003
    global_store_short v20, v36, {sr(sXrow)} {FINPOL}
    s_mov_b64 exec, -1
    ''')


def helper_tail(h, P, red_load, red_work, modf_load, modf_work):
    bar('BT')
    bar('BP')
    if GLATE:
        a(f's_cmp_lt_u32 s{sRi}, 10')
        a(f's_cbranch_scc1 L_gl{h}')
        bar('B1')
        if h == 0:
            a(f's_cmp_lt_u32 s{sRi}, 30')
            a(f's_cbranch_scc0 L_gl{h}')
            publish()
        a.label(f'L_gl{h}')
    a(f's_cmp_ge_u32 s{sIdx}, {NJ}')
    a(f's_cbranch_scc1 L_idle{h}')
    bar('B2')
    red_load()
    w_gather(W_R if h else W_I, WST + (0 if h else 8192))
    bar('B3')
    a('s_waitcnt vmcnt(0)')
    stamp('W in', P)
    if RE:
        red_work()
    bar('B3b')
    if h == 0:
        touch_small()
    if not RE:
        red_work()
    bar('B4')
    a('s_waitcnt vmcnt(0)')
    modf_load()
    if EG3:
        if_e(lambda: e_gather(1 - h, 0, EG3))
    bar('B5')
    if h == 0:
        a(f's_cmp_lt_u32 s{sRi}, 20')
        a(f's_waitcnt vmcnt({EG3})')
        a('s_cbranch_scc0 L_h0_m')
        a('s_waitcnt vmcnt(0)')
        a.label('L_h0_m')
    modf_work()
    bar('B5b')
    bar('B6')
    if_e(lambda: (e_gather(1 - h, EG3, 20), wd_load(1 - h)))
    if h == 0:
        a(f'''
        s_cmp_lg_u32 s2, 8
        s_cbranch_scc1 L_h0_ne
        v_mov_b32 v26, {EPOCH_G}
        s_mov_b64 exec, 1
        global_store_dword v26, v27, {sr(WS)} sc1
        s_mov_b64 exec, -1
        ''')
        a.label('L_h0_ne')
    a.label(f'L_hend{h}')
    a(f'''
    v_mul_u32_u24 v60, {REC_STRIDE}, v{vL}
    v_add_u32 v60, {REC_G + 128 * h * REC_STRIDE}, v60
    v_add_u32 v61, {64 * REC_STRIDE}, v60
    v_mov_b32 v62, {KEYL + 4}
    v_lshlrev_b32 v63, 7, v{vL}
    v_add_u32 v63, {REC_G + REC_H2}, v63
    s_movk_i32 s{sU0}, {REC_STRIDE}
    s_cmp_lt_u32 s{sRi}, 20
    ''')
    bar('B7')
    a('s_waitcnt vmcnt(0)')
    a(f's_cbranch_scc1 L_hx{h}')
    kl = [f'global_load_dwordx2 v[64:65], v60, {sr(WS)} sc1', f'global_load_dwordx2 v[66:67], v61, {sr(WS)} sc1']
    if KP == 1:
        bar('B7b')
    if KD:
        bar('B7c')
    stamp('key poll', P)
    poll(kl, [65, 67], [68, 69], empty='word', between=(lambda: bar('B7b')) if KP == 0 else None)
    a('v_max_u32 v64, v64, v66')
    for c in ('row_ror:8', 'row_ror:4', 'row_ror:2', 'row_ror:1'):
        dpp('v_max_u32', 64, c)
    a(f'''
    s_mov_b32 exec_lo, 0x00010001
    s_mov_b32 exec_hi, 0x00010001
    ds_max_u32 v62, v64
    s_mov_b64 exec, -1
    s_waitcnt lgkmcnt(0)
    ''')
    bar('B8')
    if h == 0:
        finalizer()
    a.label(f'L_hx{h}')
    stamp('end', P)
    dump_stamps(P)
    a('s_endpgm')
    a.label(f'L_idle{h}')
    warm_addr_f(h, 7)
    ps = ffn_parts(7)
    can = [f'global_load_dword v113, v110, {sr(WS)} sc1']
    if h == 1:
        a(f'''
        v_add_u32 v110, s{sIdx}, v{vL}
        v_and_b32 v110, 7, v110
        v_mul_u32_u24 v110, {NJ}, v110
        v_lshrrev_b32 v111, 3, v{vL}
        v_mad_u32_u24 v110, v111, 5, v110
        v_lshlrev_b32 v110, 14, v110
        s_lshl_b32 s{sU0}, s{sMe}, 6
        s_add_u32 s{sU0}, s{sU0}, {T2_G + CANJ * 16384 + 60}
        v_add_u32 v110, s{sU0}, v110
        ''')
        assert CANJ + 5 * max(NCAN // 8 - 1, 0) < NJ
    bar('B2')
    red_load()
    if h == 1:
        mask_lanes(NCAN)
        a(can[0])
        a('s_mov_b64 exec, -1')
    warm_issue(h, 7, ps[:EARLY])
    bar('B3')
    if RE and h == 0:
        a(f's_waitcnt vmcnt({len(ps[:EARLY])})')
        red_work()
        red_work = lambda: None
    bar('B3b')
    ieg = IEG
    if ISEQ == 0:
        warm_issue(h, 7, ps[EARLY:])
        if h == 0:
            a(f's_waitcnt vmcnt({len(ps)})')
            red_work()
            touch_small()
        nd = sum(1 for n, k in ps[EARLY:] if n == 2)
        a(f's_waitcnt vmcnt({nd + (NT if h == 0 else 0)})')
        stamp('warm in', P)
        e_gather(1 - h, 0, MF)
        modf_load()
        e_gather(1 - h, MF, IEG)
        if IWD == 0:
            wd_load(1 - h)
        if h == 0:
            a(f's_waitcnt vmcnt({IEG - MF + 10 * (IWD == 0)})')
        modf_work()
        bar('B5b')
    else:
        assert EARLY == 2 and S_W[0] == 7
        if h == 0:
            a(f's_waitcnt vmcnt({EARLY})')
            red_work()
            touch_small()
        a(f's_waitcnt vmcnt({NT if h == 0 else 0})')
        stamp('warm in', P)
        e_gather(1 - h, 0, 10)
        if ISEQ == 2:
            a('s_waitcnt vmcnt(0)')
            warm_issue(h, 7, ps[EARLY:])
        if h == 0:
            if ISEQ == 1:
                a('s_waitcnt vmcnt(0)')
            modf_load()
            a('s_waitcnt vmcnt(0)')
        modf_work()
        bar('B5b')
        if ISEQ == 1:
            warm_issue(h, 7, ps[EARLY:])
        ieg = max(IEG, 10)
        if ieg > 10:
            a('s_waitcnt vmcnt(0)')
            e_gather(1 - h, 10, ieg)
    a('s_waitcnt vmcnt(0)')
    stamp('ffn in', P)
    if h == 1:
        poll(can, [113], [], mask=NCAN, empty='word')
        stamp('can', P)
    bar('B5c')
    bar('B6')
    e_gather(1 - h, ieg, 20)
    if IWD:
        wd_load(1 - h)
    a(f's_branch L_hend{h}')
    flush_late()


def helper0():
    a.label('L_h0')
    a(f's_mov_b32 s{sHI}, 0xffff0000')
    a(f'''
    v_mov_b32 v20, 0
    v_mov_b32 v21, 0
    v_mov_b32 v22, 0
    v_mov_b32 v23, 0
    v_mov_b32 v28, {KEYL}
    ds_write_b128 v28, v[20:23]
    ''')
    blk_id(sCand)
    warm_addr_w()
    warm_addr_f(0, 0)
    a(f'''
    s_lshl_b32 s{sU2}, s{sCand}, 8
    v_lshlrev_b32 v28, 5, v{vL}
    s_cmp_lt_u32 s{sRi}, 10
    s_waitcnt lgkmcnt(0)
    ''')
    epoch_load()
    if B0 in (1, 2):
        bar('B0')
    a('s_cbranch_scc1 L_h0_s0')
    if B0 == 3:
        bar('B0')
    warm_issue(0, 0)
    a.label('L_h0_s0')
    stamp('kernarg', 'H0')
    base_add(sPb, WS, sU2)
    if 'm' in TCH:
        a(f's_cmp_lt_u32 s{sRi}, 10')
        a('s_cbranch_scc0 L_h0_s2')
        a(f'global_store_dword v{vL4}, v20, {sr(sPb)} sc1')
        a('s_waitcnt vmcnt(0)')
        a.label('L_h0_s2')
    e_addr(W_U)
    w_addr()
    a('s_waitcnt lgkmcnt(0)')
    epoch_tag()
    tag_bytes()
    a(f'''
    v_mov_b32 v27, s{sTag}
    v_lshlrev_b32 v34, 3, v{vL}
    v_add_u32 v29, {MODB_L}, v34
    v_and_b32 v34, 24, v34
    v_bfe_u32 v34, v27, v34, 8
    v_mov_b32 v33, 0xffffff00
    s_sub_u32 s{sU0}, s{sCand}, 40
    s_cmp_lt_u32 s{sU0}, 40
    s_cselect_b32 s{sU1}, 1.0, 0
    s_and_b32 s{sU0}, s{sCand}, 3
    s_cselect_b32 s{sU1}, 0, s{sU1}
    v_mov_b32 v35, s{sU1}
    v_add_u32 v30, {MODF_G}, v{vL16}
    v_add_u32 v31, {MODF_G + 4096}, v{vL16}
    v_add_u32 v32, {MODF_G + 8192}, v{vL16}
    s_cmp_lt_u32 s{sRi}, {10 if GLATE else 30}
    ''')
    if GLATE:
        a('s_cbranch_scc0 L_h0_np')
    bar('B1')
    a('s_cbranch_scc0 L_h0_np')
    publish()
    a(f's_cmp_lt_u32 s{sRi}, 10')
    a('s_cbranch_scc0 L_h0_np')
    a('s_waitcnt vmcnt(0)')
    a.label('L_h0_np')
    red = [f'global_load_dwordx4 v[40:43], v{vL16}, {sr(sPb)} sc1']
    modf = [f'global_load_dwordx4 {vr(40 + 4 * n, 4)}, v{30 + n // 4}, {sr(WS)} offset:{1024 * (n % 4)} sc1' for n in range(10)]

    def in_w1(k):
        L = newlabel('nr')
        a(f'''
        s_sub_u32 s{sT}, s{sRi}, 10
        s_cmp_lt_u32 s{sT}, 20
        s_cbranch_scc0 {L}
        s_and_b32 s{sT}, s{sCand}, 3
        s_cbranch_scc1 {L}
        ''')
        if k == 0:
            a(red[0])
            a.label(L)
            return
        poll(red, [40, 41, 42, 43], [44], empty='tag', issued=True, younger=63)
        a(f'''
        v_mov_b32 v44, v40
        v_mov_b32 v45, v41
        v_mov_b32 v46, v42
        v_mov_b32 v47, v43
        s_lshr_b32 s{sU0}, s{sCand}, 2
        s_sub_u32 s{sT}, s{sU0}, 40
        s_cmp_lt_u32 s{sT}, 10
        s_cselect_b32 s{sU1}, 1.0, 0
        s_lshl_b32 s{sU0}, s{sU0}, 8
        s_add_u32 s{sU0}, s{sU0}, {MODF_G - 20 * 256}
        ''')
        for sw in ('32', '16'):
            for r in range(4):
                a(f'v_permlane{sw}_swap_b32 v{40 + r}, v{44 + r}')
            a('v_pk_add_f32 v[40:41], v[40:41], v[44:45]')
            a('v_pk_add_f32 v[42:43], v[42:43], v[46:47]')
            if sw == '32':
                for r in range(4):
                    a(f'v_mov_b32 v{44 + r}, v{40 + r}')
        a('v_cvt_pk_bf16_f32 v44, v40, v41')
        a('v_cvt_pk_bf16_f32 v45, v42, v43')
        unpack(40, 41, 44)
        unpack(42, 43, 45)
        for r in range(4):
            a(f'v_add_f32 v{40 + r}, s{sU1}, v{40 + r}')
        a(f'''
        v_cvt_pk_bf16_f32 v44, v40, v41
        v_cvt_pk_bf16_f32 v45, v42, v43
        v_mov_b32 v47, s{sTag}
        v_add_u32 v48, s{sU0}, v{vL16}
        s_mov_b64 exec, 0xffff
        global_store_dwordx4 v48, v[44:47], {sr(WS)} sc1
        s_mov_b64 exec, -1
        ''')
        stamp('reduced', 'H0')
        a.label(L)

    def in_w2(k):
        if k == 0:
            for ld in modf:
                a(ld)
            return
        poll(modf, [43 + 4 * n for n in range(10)], list(range(80, 90)), empty='words', issued=True, younger=63)
        for n in range(10):
            a(f'ds_write_b64 v29, {vr(40 + 4 * n, 2)} offset:{512 * n}')
        a('s_waitcnt lgkmcnt(0)')
        stamp('modb in', 'H0')
    helper_tail(0, 'H0', lambda: in_w1(0), lambda: in_w1(2), lambda: in_w2(0), lambda: in_w2(1))


def helper1():
    a.label('L_h1')
    a(f'''
    s_getpc_b64 {sr(sBa)}
    L_pc:
    s_add_u32 s{sBb}, s{sBa}, L_tables-L_pc
    s_addc_u32 s{sBb + 1}, s{sBa + 1}, 0
    ''')

    def tabs(q0, q1):
        for q in range(q0, q1):
            if q % 4 == 0 or q == q0:
                a(f's_mov_b32 m0, {TAB + (q & ~3) * 1024}')
                a(f'v_add_u32 v20, {(q & ~3) * 1024}, v{vL16}')
            a(f'global_load_lds_dwordx4 v20, {sr(sBb)} offset:{1024 * (q % 4)}')

    def tab2():
        tabs(NT1, NTAB)
        a(f'''
        s_mov_b32 m0, {WR_L}
        global_load_lds_dwordx4 v{vL16}, {sr(B_WR)}
        s_mov_b64 exec, 0xffff
        global_load_lds_dwordx4 v{vL16}, {sr(B_WR)} offset:1024
        s_mov_b64 exec, -1
        ''')
        return NTAB - 14 + 2

    a(f's_cmp_lt_u32 s{sRi}, 10')
    a('s_cbranch_scc1 L_h1_a')
    warm_addr_w()
    warm_addr_f(1, 0)
    a('s_waitcnt lgkmcnt(0)')
    epoch_load()
    if B0:
        bar('B0')
    tabs(0, NT1)
    tab2()
    warm_issue(1, 0)
    e_addr(W_G)
    w_addr()
    a('s_waitcnt lgkmcnt(0)')
    epoch_tag()
    if not GLATE:
        bar('B1')
    a(f's_waitcnt vmcnt({min(BGWAIT, 2 + len(ffn_parts(0)))})')
    a('s_branch L_h1_u')
    a.label('L_h1_a')
    if B0 in (1, 2):
        bar('B0')
    w_addr()
    a('s_waitcnt lgkmcnt(0)')
    e_addr(W_G)
    bar('B1')
    tabs(0, NT1)
    tab2()
    a('s_waitcnt vmcnt(0)')
    a.label('L_h1_u')
    stamp('tab in', 'H1')
    nop = lambda: None
    helper_tail(1, 'H1', nop, nop, nop, nop)


prologue()
main_path()
helper0()
helper1()
body = a.finish()

hdr = open(f'cdna_kernels/{NAME}.s.ref').read().split('; Override launch')[0]
T = tables()
tab = []
flat = T.reshape(-1)
for k in range(0, flat.size, 8):
    tab.append('.long ' + ','.join('0x%08x' % v for v in flat[k:k + 8]))

launch = f'; @launch grid=(256,1,1) block=(640,1,1) lds={LDS_BYTES}'
pre_code = pre_kd = ''
if PRE:
    launch = f'; @launch kernel=pre_kernel grid=({PRE},1,1) block=(64,1,1) lds=0\n; @launch kernel={NAME}_kernel grid=(256,1,1) block=(640,1,1) lds={LDS_BYTES}'
    pre_code = '.globl pre_kernel\n.p2align 8\n.type pre_kernel,@function\npre_kernel:\n    s_endpgm\n'
    pre_kd = '''.p2align 6
.amdhsa_kernel pre_kernel
  .amdhsa_next_free_vgpr 8
  .amdhsa_next_free_sgpr 16
  .amdhsa_accum_offset 8
  .amdhsa_group_segment_fixed_size 0
  .amdhsa_kernarg_size 104
  .amdhsa_user_sgpr_count 2
  .amdhsa_user_sgpr_kernarg_segment_ptr 1
  .amdhsa_system_sgpr_workgroup_id_x 1
.end_amdhsa_kernel
'''
src = hdr + f'''{launch}
.amdgcn_target "amdgcn-amd-amdhsa--gfx950"
.text
{pre_code}.globl {NAME}_kernel
.p2align 8
.type {NAME}_kernel,@function
{NAME}_kernel:
{body}
.p2align 8
.type L_tables,@object
L_tables:
''' + '\n'.join(tab) + f'''
.size L_tables, {NTAB * 1024}
.fill (8192 - ((. - {NAME}_kernel) & 8191)) & 8191, 1, 0
L_tables_end:
.section .rodata,"a"
.p2align 6
.amdhsa_kernel {NAME}_kernel
  .amdhsa_next_free_vgpr 168
  .amdhsa_next_free_sgpr 102
  .amdhsa_accum_offset 168
  .amdhsa_group_segment_fixed_size 0
  .amdhsa_kernarg_size 104
  .amdhsa_user_sgpr_count 2
  .amdhsa_user_sgpr_kernarg_segment_ptr 1
  .amdhsa_system_sgpr_workgroup_id_x 1
.end_amdhsa_kernel
{pre_kd}'''
open(OUT, 'w').write(src)
print('wrote', OUT, 'lds', LDS_BYTES, 'lines', len(a.lines), 'nops', a.nnops)
```

```python
import sys, struct
import numpy as np
from asmdsl import Asm

NAME = 'adaLN_cond__spectral_gfnet__moe_arch_mod__prompt'
DIAG = '--diag' in sys.argv or '--dbgdiag' in sys.argv
DBGDIAG = '--dbgdiag' in sys.argv
OUT = [a for a in sys.argv[1:] if not a.startswith('--')]
OUT = OUT[0] if OUT else f'cdna_kernels/{NAME}.s'
SPIN = 60000


def opt(name, default):
    for x in reversed(sys.argv):
        if x.startswith(f'--{name}='):
            return x.split('=', 1)[1]
    return default


PROBE = opt('probe', None)
PROBEWG = int(opt('probewg', 8))
FINE = opt('fine', None)
if PROBE or FINE:
    DIAG = True
PRE = None
INPOL = 'nt'
S_W = [int(x) for x in opt('sw', '770')]
EG3 = int(opt('eg3', 10))
PACE1 = int(opt('pace1', 0))
PACE2 = int(opt('pace2', 0))
PK = opt('pk', '110')
P3FIRST = int(opt('p3first', 1))
WFIRST = int(opt('wfirst', 1))
DR1 = int(opt('dr1', 1))
DR2 = int(opt('dr2', 1))
BGWAIT = int(opt('bgwait', 9))
EARLY = int(opt('early', 2))
MATS = int(opt('mats', 2))
IEG = int(opt('ieg', 16))
IWD = int(opt('iwd', 1))
MF = int(opt('mf', 10))
MR = int(opt('mr', 0))
BLOAD = int(opt('bload', 0))
P2ORD = int(opt('p2ord', 1))
GLATE = int(opt('glate', 0))
B0 = int(opt('b0', 0))
FWL = int(opt('fwl', 1))
KP = int(opt('kp', 1))
PF = int(opt('pf', 0))
XL = int(opt('xl', 0))
WC = int(opt('wc', 0))
KD = int(opt('kd', 1))
ISEQ = int(opt('iseq', 0))
RE = int(opt('re', 1))
FINPOL = opt('finpol', '')
PYD = int(opt('pyd', 0))
TCH = opt('tch', 'mkp')
NT = ('k' in TCH) + 3 * ('p' in TCH)
PKS = int(opt('pks', 1))
P3O = int(opt('p3o', 0))
PRIO = opt('prio', '000')
AL1 = int(opt('al1', 0))
AL2 = int(opt('al2', 0))
NCAN = int(opt('ncan', 1))
CANJ = int(opt('canj', 12))
NJ = 22
T1S = 8 * NJ * 64

MODA_G = 0
MODF_G = 61440
EPOCH_G = 73728
PY_G = 0x20000
PY_STRIDE = 2688
REC_G = 0x80000
REC_STRIDE = 4224
REC_H2 = 128
REC_BASE = 128 + 2048
T1_G = 0x400000
T2_G = 0x800000
DIAG_G = 0xC00000

NTAB = 26
TAB = 0
RED = TAB + NTAB * 1024
KEYL = RED + 2048
XB2 = KEYL + 64
SA = 736
XB1 = XB2 + 20480
MODA_L = XB1 + 16 * SA
MODB_L = MODA_L + 5120
WR_L = MODB_L + 5120
WST = WR_L + 2048
EW = WST + 16384
FW = EW + 40960
STL = FW + 20480
LDS_BYTES = STL + 256
assert LDS_BYTES <= 163840, LDS_BYTES

T_F20C, T_F20S, T_TW1, T_F32A, T_ADR, T_TW3, T_F20I, T_F32B, T_F16, T_TW2 = 0, 1, 2, 6, 10, 11, 15, 18, 22, 24
NT1 = 11


def f2u(x):
    return struct.unpack('<I', struct.pack('<f', float(x)))[0]


def bf(x):
    u = f2u(x)
    return ((u + 0x7FFF + ((u >> 16) & 1)) >> 16) & 0xFFFF


def pk(lo, hi):
    return bf(lo) | (bf(hi) << 16)


ALPHA = {16: 1.1328, 20: 1.4294, 32: 1.62445}


def cs(num, den):
    a = 2 * np.pi * (num % den) / den
    c, s = np.cos(a), np.sin(a)
    if abs(c) < 1e-12: c = 0.0
    if abs(s) < 1e-12: s = 0.0
    al = ALPHA.get(den, 1.0)
    return c * al, s * al


def kaof(x):
    ka = 3 * (x >> 2) + (x & 3)
    return ka if (x & 3) < 3 and ka <= 10 else None


def tables():
    T = np.zeros((NTAB, 64, 4), np.uint32)
    for l in range(64):
        i, g = l & 15, l >> 4
        c8, s8 = [0.0] * 8, [0.0] * 8
        for j in range(5):
            if kaof(i) is not None:
                c, s = cs((4 * j + g) * kaof(i), 20)
                c8[j], s8[j] = c, -s
        for d in range(4):
            T[T_F20C, l, d] = pk(c8[2 * d], c8[2 * d + 1])
            T[T_F20S, l, d] = pk(s8[2 * d], s8[2 * d + 1])
        for t in range(2):
            for r in range(4):
                c, s = cs((8 * g + 2 * r + t) * (kaof(i) or 0), 640)
                T[T_TW1 + 2 * t, l, r] = f2u(c)
                T[T_TW1 + 2 * t + 1, l, r] = f2u(s)
                c, s = cs((2 * i + t) * (kaof(4 * g + r) or 0), 640)
                T[T_TW3 + 2 * t, l, r] = f2u(c)
                T[T_TW3 + 2 * t + 1, l, r] = f2u(s)
        kbof = lambda e: e if e < 16 else 47 - e
        for tile in range(2):
            for ks in range(2):
                for r in range(4):
                    c, s = cs(kbof(2 * i + tile) * (8 * g + 2 * r + ks), 32)
                    T[T_F32A + tile * 2 + ks, l, r] = pk(c, s)
                    c, s = cs((2 * i + tile) * kbof(8 * g + 2 * r + ks), 32)
                    T[T_F32B + tile * 2 + ks, l, r] = pk(c, s)
        ka_ = kaof(i)
        k0 = 0 if ka_ is None else (160 * g + ka_ if g < 2 else 160 * g - 300 - ka_)
        T[T_ADR, l, 0] = 8 * k0
        T[T_ADR, l, 1] = 0x8000 if i < 8 else 0x80000000
        T[T_ADR, l, 2] = 0 if g < 2 else 0x8000
        T[T_ADR, l, 3] = 0x8000 if g < 2 else 0
        for r in range(4):
            c, s = cs(i * (4 * g + r), 16)
            T[T_F16, l, r] = pk(c, s)
            T[T_F16 + 1, l, r] = pk(-s, c)
            c, s = cs(i * (4 * g + r), 256)
            T[T_TW2, l, r] = f2u(c)
            T[T_TW2 + 1, l, r] = f2u(s)
            ka = kaof(4 * g + r)
            if ka is not None:
                a1 = 4 * (i & 3) + (i >> 2)
                c, s = cs(a1 * ka, 20)
                T[T_F20I, l, r] = pk(c, -s)
                c, s = cs((16 + (i >> 2)) * ka, 20)
                if (i & 3) == 0:
                    T[T_F20I + 1, l, r] = pk(c, -s)
                if (i & 3) == 1:
                    T[T_F20I + 2, l, r] = pk(c, -s)
    return T


def vr(a, n=1):
    return f'v{a}' if n == 1 else f'v[{a}:{a + n - 1}]'


def sr(a, n=2):
    return f's{a}' if n == 1 else f's[{a}:{a + n - 1}]'


sW, sX, sIdx, sMe, sT = 3, 4, 5, 6, 7
A_X, W_R, W_I, B_WR, W_G, W_U, W_D = 8, 10, 12, 16, 18, 20, 22
C_, W_MOD, OUTP, DBG, WS = 24, 26, 28, 30, 32
sBa, sBb, sBc = 34, 36, 38
sCnt = 40
sM1B = 41
sU0, sU1, sU2, sU3 = 42, 43, 46, 47
sM7 = 44
sRow = 48
sKey = 49
sV1, sV2 = 50, 51
sHI = 52
sCand = 53
sRec = 56
sTag = 55
sRi = sIdx
sGU = 56
sXrow = 72
sTS = 74

vL, vL16, vL4, vS, vPoll = 1, 2, 3, 4, 5
vM8F, vM8I = 6, 8
vXS = 10
Ra, Rb, RD, Rc = 20, 28, 36, 52
vF32 = 60
vTW = 92
vF20 = 108
vVec = 120
vE0 = 160
vXR = 150


a = Asm()
stamps = {}
NST = 24


def stamp(name, path='M', wait=True):
    if not DIAG or FINE:
        return
    if opt('only', None) and not (name == 'start' or any(name.startswith(x.replace('_', ' ')) for x in opt('only', '').split(','))):
        return
    if PROBE and (path != 'M' or not (name == 'start' or name.startswith(PROBE))):
        return
    lst = stamps.setdefault(path, [])
    if name not in lst:
        lst.append(name)
    k = lst.index(name)
    assert k < NST
    a(f's_memrealtime s[100:101]')
    a('s_waitcnt lgkmcnt(0)')
    a(f's_mov_b32 s{sTS + k}, s100')


fines = []


def fine(group, name):
    if FINE != group:
        return
    if name not in fines:
        fines.append(name)
    k = fines.index(name)
    assert k < 12
    a(f's_memtime {sr(sTS + 2 * k)}')


def dump_stamps(path='M'):
    if not DIAG:
        return
    if PROBE:
        if path != 'M':
            return
        a(f'''
        s_cmp_lg_u32 s2, {PROBEWG}
        s_cbranch_scc1 L_end
        s_cmp_lg_u32 s{sW}, 0
        s_cbranch_scc1 L_end
        ''')
        if PROBE == 'fix':
            a(f's_movk_i32 s{sU0}, 6000')
        elif PROBE == 'xcc':
            a(f's_getreg_b32 s{sU0}, hwreg(HW_REG_XCC_ID)')
            a(f's_and_b32 s{sU0}, s{sU0}, 15')
            a(f's_mul_i32 s{sU0}, s{sU0}, 1000')
            a(f's_add_u32 s{sU0}, s{sU0}, 6000')
        else:
            a(f's_sub_u32 s{sU0}, s{sTS + 1}, s{sTS}')
            a(f's_lshl_b32 s{sU0}, s{sU0}, 4')
            a(f's_add_u32 s{sU0}, s{sU0}, 6000')
            a(f's_min_u32 s{sU0}, s{sU0}, 100000')
        a(f'''
        L_probe:
        s_memrealtime s[100:101]
        s_waitcnt lgkmcnt(0)
        s_sub_u32 s{sU1}, s100, s{sTS}
        s_cmp_lt_u32 s{sU1}, s{sU0}
        s_cbranch_scc1 L_probe
        ''')
        return
    if DBGDIAG:
        if path != 'M':
            return
        a('v_mov_b32 v20, 0')
        a('s_mov_b64 exec, 1')
        a(f's_not_b32 s{sU0}, s{sTS}')
        a(f'v_mov_b32 v22, s{sU0}')
        a(f'global_atomic_umax v20, v22, {sr(DBG)} offset:4 sc1')
        ks = [0] + list(range(2, len(stamps['M'])))
        for n, k in enumerate(ks[:14]):
            a(f'v_mov_b32 v{23 + n}, s{sTS + k}')
            a(f'global_atomic_umax v20, v{23 + n}, {sr(DBG)} offset:{8 + 4 * n} sc1')
        print('dbg slots:', [(2 + n, stamps['M'][k]) for n, k in enumerate(ks[:14])])
        return
    a(f'''
    s_lshl_b32 s{sU0}, s2, 11
    s_lshl_b32 s{sU1}, s{sW}, 7
    s_add_u32 s{sU0}, s{sU0}, s{sU1}
    s_memtime s[100:101]
    ''')
    base_add(sBa, WS, sU0, DIAG_G)
    a('v_mov_b32 v20, 0')
    a('s_mov_b64 exec, 1')
    for k in range(0, NST, 2):
        a(f'v_mov_b32 v22, s{sTS + k}')
        a(f'v_mov_b32 v23, s{sTS + k + 1}')
        a(f'global_store_dwordx2 v20, v[22:23], {sr(sBa)} offset:{4 * k}')
        a('s_nop 1')
    a('s_waitcnt lgkmcnt(0)')
    a('s_sub_u32 s100, s100, s98')
    a('v_mov_b32 v22, s100')
    a(f'global_store_dword v20, v22, {sr(sBa)} offset:112')
    a('s_getreg_b32 s42, hwreg(HW_REG_XCC_ID)')
    a('s_getreg_b32 s43, hwreg(HW_REG_HW_ID)')
    a('v_mov_b32 v22, s42')
    a('v_mov_b32 v23, s43')
    a(f'global_store_dwordx2 v20, v[22:23], {sr(sBa)} offset:120')


def base_add(dst, src, off_s=None, imm=0):
    if off_s is not None:
        if imm:
            a(f's_add_u32 s{sT}, s{off_s}, {imm}')
            off_s = sT
        a(f's_add_u32 s{dst}, s{src}, s{off_s}')
    else:
        a(f's_add_u32 s{dst}, s{src}, {imm}')
    a(f's_addc_u32 s{dst + 1}, s{src + 1}, 0')


lblc = [0]
late = []


def flush_late():
    for f in late:
        f()
    late.clear()


def newlabel(p):
    lblc[0] += 1
    return f'L_{p}_{lblc[0]}'


def poll(loads, regs, tmp, mask=None, empty='eq -1', between=None, younger=0, issued=False):
    L, D, Cc = newlabel('poll'), newlabel('polld'), newlabel('pollc')
    if mask is not None:
        mask_lanes(mask)
    if not issued:
        for ld in loads:
            a(ld)
    a(f's_mov_b32 s{sCnt}, {SPIN}')
    if between is not None:
        between()
    if younger < 63:
        a(f's_waitcnt vmcnt({younger})')
    a.label(Cc)

    def retry():
        a.label(L)
        a(f's_sub_u32 s{sCnt}, s{sCnt}, 1')
        a(f's_cbranch_scc1 {D}')
        for ld in loads:
            a(ld)
        a('s_waitcnt vmcnt(0)')
        a(f's_branch {Cc}')
    late.append(retry)
    if empty == 'tag':
        for n, r in enumerate(regs):
            a(f'v_xor_b32 v{r}, s{sTB + (n & 3)}, v{r}')
        rem = list(regs)
        for c in tmp:
            a(f'v_or3_b32 v{c}, v{rem[0]}, v{rem[1]}, v{rem[2]}')
            rem = rem[3:]
        n = 0
        while len(rem) >= 2:
            c = tmp[n % len(tmp)]
            a(f'v_or3_b32 v{c}, v{c}, v{rem[0]}, v{rem[1]}')
            rem = rem[2:]
            n += 1
        t = tmp[0]
        rem = rem + list(tmp[1:])
        while rem:
            if len(rem) >= 2:
                a(f'v_or3_b32 v{t}, v{t}, v{rem[0]}, v{rem[1]}')
                rem = rem[2:]
            else:
                a(f'v_or_b32 v{t}, v{t}, v{rem[0]}')
                rem = rem[1:]
        a(f'v_and_b32 v{t}, 0xff, v{t}')
        empty = 'ne 0'
    elif empty == 'word':
        if len(regs) == 1:
            t = regs[0]
            empty = f'ne s{sTag}'
        else:
            assert len(regs) == 2
            t = tmp[0]
            a(f'v_xor_b32 v{t}, v{regs[0]}, v{regs[1]}')
            a(f'v_xor_b32 v{tmp[1]}, s{sTag}, v{regs[0]}')
            a(f'v_or_b32 v{t}, v{t}, v{tmp[1]}')
            empty = 'ne 0'
    elif empty == 'words':
        for n, r in enumerate(regs):
            a(f'v_xor_b32 v{tmp[n]}, s{sTag}, v{r}')
        t = tmp[0]
        rem = list(tmp[1:len(regs)])
        while rem:
            if len(rem) >= 2:
                a(f'v_or3_b32 v{t}, v{t}, v{rem[0]}, v{rem[1]}')
                rem = rem[2:]
            else:
                a(f'v_or_b32 v{t}, v{t}, v{rem[0]}')
                rem = rem[1:]
        empty = 'ne 0'
    elif len(regs) == 1:
        t = regs[0]
    else:
        rem = list(regs)
        outs = []
        k = 0
        while len(rem) >= 3 and k < len(tmp):
            a(f'v_max3_u32 v{tmp[k]}, v{rem[0]}, v{rem[1]}, v{rem[2]}')
            outs.append(tmp[k])
            rem = rem[3:]
            k += 1
        rem = outs[1:] + rem
        t = outs[0] if outs else None
        if t is None:
            t = tmp[0]
            a(f'v_max_u32 v{t}, v{rem[0]}, v{rem[1]}')
            rem = rem[2:]
        while rem:
            if len(rem) >= 2:
                a(f'v_max3_u32 v{t}, v{t}, v{rem[0]}, v{rem[1]}')
                rem = rem[2:]
            else:
                a(f'v_max_u32 v{t}, v{t}, v{rem[0]}')
                rem = rem[1:]
    a(f'v_cmpx_{empty.split()[0]}_u32 vcc, {empty.split()[1]}, v{t}')
    a(f's_cbranch_execnz {L}')
    a.label(D)
    a('s_mov_b64 exec, -1')


def epoch_load():
    a(f's_load_dword s{sTag}, {sr(WS)}, {EPOCH_G}')


def epoch_tag():
    a(f'''
    s_and_b32 s{sTag}, s{sTag}, 0x7f7f7f7f
    s_add_u32 s{sTag}, s{sTag}, 0x01010101
    s_or_b32 s{sTag}, s{sTag}, 0x80808080
    ''')


sTB = 68


def tag_bytes():
    for k in range(4):
        a(f's_bfe_u32 s{sTB + k}, s{sTag}, {hex(0x80000 | (8 * k))}')


def dpp(op, r, ctrl, rm='0xf'):
    a(f'{op}_dpp v{r}, v{r}, v{r} {ctrl} row_mask:{rm} bank_mask:0xf')


def wave_sum(regs, dst_s, op='v_add_f32'):
    for c in ('row_ror:8', 'row_ror:4', 'row_ror:2', 'row_ror:1'):
        for r in regs:
            dpp(op, r, c)
    for r in regs:
        dpp(op, r, 'row_bcast:15', '0xa')
    for r in regs:
        dpp(op, r, 'row_bcast:31', '0xc')
    for r, s in zip(regs, dst_s):
        a(f'v_readlane_b32 s{s}, v{r}, 63')


def rbf(dst, src):
    a(f'v_cvt_pk_bf16_f32 v{dst}, {src}, {src}')
    a(f'v_and_b32 v{dst}, s{sHI}, v{dst}')


def unpack(dlo, dhi, src):
    a(f'v_lshlrev_b32 v{dlo}, 16, v{src}')
    a(f'v_and_b32 v{dhi}, s{sHI}, v{src}')


def mfma32(d, x, y, c=None):
    a(f'v_mfma_f32_16x16x32_bf16 {vr(d, 4)}, {vr(x, 4)}, {vr(y, 4)}, {vr(c, 4) if c is not None else 0}')


def mfma16(d, x, y):
    a(f'v_mfma_f32_16x16x16_bf16 {vr(d, 4)}, {vr(x, 2)}, {vr(y, 2)}, 0')


def cmul(tr, ti, re, im, c, s, sign, pk=True, n=4, head=0):
    if not pk:
        for r in range(n):
            a(f'v_mul_f32 v{tr + r}, v{re + r}, v{c + r}')
        for r in range(n):
            a(f'v_mul_f32 v{ti + r}, v{im + r}, v{c + r}')
        for r in range(n):
            if sign > 0:
                a(f'v_fma_f32 v{tr + r}, -v{im + r}, v{s + r}, v{tr + r}')
                a(f'v_fmac_f32 v{ti + r}, v{re + r}, v{s + r}')
            else:
                a(f'v_fmac_f32 v{tr + r}, v{im + r}, v{s + r}')
                a(f'v_fma_f32 v{ti + r}, -v{re + r}, v{s + r}, v{ti + r}')
        return
    nr = 'neg_lo:[1,0,0] neg_hi:[1,0,0]'
    for h in (0, 2):
        if head:
            a(f'v_mul_f32 v{tr + h}, v{re + h}, v{c + h}')
            a(f'v_mul_f32 v{tr + h + 1}, v{re + h + 1}, v{c + h + 1}')
        else:
            a(f'v_pk_mul_f32 {vr(tr + h, 2)}, {vr(re + h, 2)}, {vr(c + h, 2)}')
    for h in (0, 2):
        a(f'v_pk_mul_f32 {vr(ti + h, 2)}, {vr(im + h, 2)}, {vr(c + h, 2)}')
    for h in (0, 2):
        a(f'v_pk_fma_f32 {vr(tr + h, 2)}, {vr(im + h, 2)}, {vr(s + h, 2)}, {vr(tr + h, 2)} {nr if sign > 0 else ""}')
    for h in (0, 2):
        a(f'v_pk_fma_f32 {vr(ti + h, 2)}, {vr(re + h, 2)}, {vr(s + h, 2)}, {vr(ti + h, 2)} {nr if sign < 0 else ""}')


def pack4(d, lo, hi, step=1, n=4):
    for r in range(n):
        a(f'v_cvt_pk_bf16_f32 v{d + r * step}, v{lo + r}, v{hi + r}')


def tab_read(dst, q):
    a(f'ds_read_b128 {vr(dst, 4)}, v{vL16} offset:{TAB + q * 1024}')


def tm(j, t):
    return 4 * t + j if j < 4 else 8 + t


def read_tmajor(dst, vaddr, off):
    o = off // 256
    assert off % 256 == 0 and o + 6 < 256
    for t in range(2):
        a(f'ds_read2st64_b32 {vr(dst + 4 * t, 2)}, v{vaddr + t} offset0:{o} offset1:{o + 2}')
        a(f'ds_read2st64_b32 {vr(dst + 4 * t + 2, 2)}, v{vaddr + t} offset0:{o + 4} offset1:{o + 6}')
    a(f'ds_read_b64 {vr(dst + 8, 2)}, v{vaddr} offset:{off + 2048}')


def silu(dst, src, tmp):
    for d, s, t in zip(dst, src, tmp):
        a(f'v_mul_f32 v{t}, 0xbfb8aa3b, v{s}')
    for t in tmp:
        a(f'v_exp_f32 v{t}, v{t}')
    for t in tmp:
        a(f'v_add_f32 v{t}, 1.0, v{t}')
    for t in tmp:
        a(f'v_rcp_f32 v{t}, v{t}')
    for d, s, t in zip(dst, src, tmp):
        a(f'v_mul_f32 v{d}, v{s}, v{t}')


def swap_reduce8(acc):
    for k in range(4):
        a(f'v_permlane32_swap_b32 v{acc + k}, v{acc + k + 4}')
    a(f'v_pk_add_f32 {vr(acc, 2)}, {vr(acc, 2)}, {vr(acc + 4, 2)}')
    a(f'v_pk_add_f32 {vr(acc + 2, 2)}, {vr(acc + 2, 2)}, {vr(acc + 6, 2)}')
    for k in range(2):
        a(f'v_permlane16_swap_b32 v{acc + k}, v{acc + k + 2}')
    a(f'v_pk_add_f32 {vr(acc, 2)}, {vr(acc, 2)}, {vr(acc + 2, 2)}')


BC0 = 'op_sel:[0,0,0] op_sel_hi:[1,0,1]'
BC1 = 'op_sel:[0,1,0] op_sel_hi:[1,1,1]'


def prologue():
    a(f'''
    s_cmp_ge_u32 s2, 256
    s_cbranch_scc1 L_end
    ''')
    if DIAG:
        for k in range(NST):
            a(f's_mov_b32 s{sTS + k}, 0')
        a('s_memtime s[98:99]')
        for p in ('M', 'H0', 'H1'):
            stamps[p] = ['start']
        stamp('start')
    a(f'''
    s_load_dwordx16 s[8:23], s[0:1], 0
    s_load_dwordx8 s[24:31], s[0:1], 64
    s_load_dwordx2 s[32:33], s[0:1], 96
    v_lshrrev_b32 v20, 6, v0
    s_and_b32 s{sX}, s2, 7
    s_lshr_b32 s{sIdx}, s2, 3
    v_readfirstlane_b32 s{sW}, v20
    v_and_b32 v{vL}, 63, v0
    s_lshl_b32 s{sMe}, s{sX}, 5
    s_add_u32 s{sMe}, s{sMe}, s{sIdx}
    v_lshlrev_b32 v{vL16}, 4, v{vL}
    v_lshlrev_b32 v{vL4}, 2, v{vL}
    s_cmp_eq_u32 s{sW}, 9
    s_cbranch_scc1 L_h1
    s_cmp_eq_u32 s{sW}, 8
    s_cbranch_scc1 L_h0
    s_cmp_eq_u32 s{sRi}, 30
    s_cbranch_scc0 L_nopf
    s_cmp_ge_u32 s{sW}, (L_tables_end-{NAME}_kernel)/8192
    s_cbranch_scc1 L_nopf
    s_getpc_b64 {sr(sBa)}
    L_pc0:
    s_sub_u32 s{sBa}, s{sBa}, L_pc0-{NAME}_kernel
    s_subb_u32 s{sBa + 1}, s{sBa + 1}, 0
    v_lshlrev_b32 v21, 7, v0
    global_load_dword v157, v21, {sr(sBa)}
    L_nopf:
    ''')


def xloads():
    for j in range(5):
        a(f'global_load_dword v{vXR + j}, v156, {sr(A_X)} offset:{256 * j} {INPOL}')


def blk_id(dst):
    a(f'''
    s_cmp_lt_u32 s{sRi}, 10
    s_cselect_b32 s{dst}, 10, 20
    s_cselect_b32 s{sT}, 0, 70
    s_mul_i32 s{dst}, s{dst}, s{sX}
    s_add_u32 s{dst}, s{dst}, s{sT}
    s_add_u32 s{dst}, s{dst}, s{sRi}
    ''')


GV = (130, 142, 48, 56, 158, 159)


def gemv_addr():
    vw, vc, acc, tmp, vo, voc = GV
    blk_id(sU2)
    a(f'''
    v_lshrrev_b32 v{voc}, 3, v{vL}
    v_mad_u32_u24 v{voc}, v20, 20, v{voc}
    v_and_b32 v21, 3, s{sU2}
    v_mul_u32_u24 v21, 160, v21
    v_add_u32 v{voc}, v{voc}, v21
    v_lshrrev_b32 v21, 2, s{sU2}
    v_and_b32 v{vo}, 0x70, v{vL16}
    v_lshl_add_u32 v{vo}, v21, 7, v{vo}
    v_mul_u32_u24 v21, 7680, v{voc}
    v_add_u32 v{vo}, v{vo}, v21
    v_lshlrev_b32 v{voc}, 1, v{voc}
    v_lshl_add_u32 v156, v20, 8, s{sMe}
    v_mul_u32_u24 v156, 1280, v156
    v_add_u32 v156, v156, v{vL4}
    ''')
    for k in range(4):
        a(f'v_mov_b32 v{vw + 8 + k}, 0')
    a(f'v_mov_b32 v{vc + 2}, 0')


def gemv_issue():
    vw, vc, acc, tmp, vo, voc = GV
    def cl_():
        for j in range(3):
            if j == 2:
                a('s_mov_b32 exec_hi, 0')
            a(f'global_load_ushort v{vc + j}, v{voc}, {sr(C_)} offset:{16 * j}')
        a('s_mov_b64 exec, -1')

    def wl_():
        for j in range(3):
            if j == 2:
                a('s_mov_b32 exec_hi, 0')
            a(f'global_load_dwordx4 {vr(vw + 4 * j, 4)}, v{vo}, {sr(W_MOD)} {INPOL}')
            if j < 2:
                a(f'v_add_u32 v{vo}, {8 * 7680}, v{vo}')
        a('s_mov_b64 exec, -1')
    for f in ((wl_, cl_) if WC else (cl_, wl_)):
        f()


def gemv_compute(role, after):
    nj = 3
    vw, vc, acc, tmp, vo, voc = GV
    if role == 'B':
        acc = 150
    a(f's_waitcnt vmcnt({after if WC else nj + after})')
    stamp('c in')
    cs_ = [vc + j for j in range(nj)]
    for c in cs_:
        a(f'v_lshlrev_b32 v{c}, 16, v{c}')
    silu(cs_, cs_, [tmp + j for j in range(nj)])
    sc = [(145, 146), (147, 148), (149, 59)]
    for c, s in zip(cs_, sc):
        a(f'v_cvt_pk_bf16_f32 v{s[0]}, v{c}, 0')
    for s in sc:
        a(f'v_lshlrev_b32 v{s[1]}, 16, v{s[0]}')
    a(f'''
    v_and_b32 v{vo}, 7, v{vL}
    v_lshlrev_b32 v{vo}, 8, v{vo}
    v_and_b32 v{voc}, 48, v{vL}
    v_lshl_add_u32 v{vo}, v{voc}, 2, v{vo}
    s_lshl_b32 s{sT}, s{sW}, 2
    s_add_u32 s{sT}, s{sT}, {RED}
    v_add_u32 v{vo}, s{sT}, v{vo}
    ''')
    for k in range(8):
        a(f'v_mov_b32 v{acc + k}, 0')
    for j in range(nj):
        a(f's_waitcnt vmcnt({nj - 1 - j + after})')
        for k in (0, 4, 1, 5, 2, 6, 3, 7):
            a(f'v_dot2c_f32_bf16 v{acc + k}, v{vw + 4 * j + k // 2}, v{sc[j][k & 1]}')
    stamp('w in')
    swap_reduce8(acc)
    for c in ('row_ror:8',):
        dpp('v_add_f32', acc, c)
        dpp('v_add_f32', acc + 1, c)
    a(f'''
    s_mov_b32 exec_lo, 0x00ff00ff
    s_mov_b32 exec_hi, 0x00ff00ff
    ds_write2_b32 v{vo}, v{acc}, v{acc + 1} offset0:0 offset1:8
    s_mov_b64 exec, -1
    s_waitcnt lgkmcnt(0)
    ''')


def m8(dst, inverse):
    t0, t1, t2, t3 = 20, 21, 22, 23
    a(f'v_lshrrev_b32 v{t0}, 4, v{vL}           ; g')
    if not inverse:
        a(f'''
        v_bfe_u32 v{t1}, v{vL}, 2, 2
        v_bfe_u32 v{t2}, v{vL}, 1, 1
        v_lshl_add_u32 v{t1}, v{t2}, 2, v{t1}
        v_lshlrev_b32 v{t0}, 9, v{t0}
        v_add_u32 v{t0}, s{sMe}, v{t0}
        v_mul_u32_u24 v{t2}, v{t0}, v{t1}
        v_lshl_add_u32 v{t3}, v{t1}, 8, v{t2}
        ''')
    else:
        a(f'''
        v_bfe_u32 v{t1}, v{vL}, 1, 3
        v_lshlrev_b32 v{t1}, 8, v{t1}
        v_add_u32 v{t1}, s{sMe}, v{t1}
        v_mul_u32_u24 v{t2}, v{t0}, v{t1}
        v_xor_b32 v{t0}, 4, v{t0}
        v_mul_u32_u24 v{t3}, v{t0}, v{t1}
        v_sub_u32 v{t2}, 0, v{t2}
        v_sub_u32 v{t3}, 0, v{t3}
        ''')
    a(f'''
    v_and_b32 v{t0}, 1, v{vL}
    v_lshl_add_u32 v{t2}, v{t0}, 9, v{t2}
    v_lshl_add_u32 v{t3}, v{t0}, 9, v{t3}
    v_and_b32 v{t2}, 0x7ff, v{t2}
    v_and_b32 v{t3}, 0x7ff, v{t3}
    v_cvt_f32_u32 v{t2}, v{t2}
    v_cvt_f32_u32 v{t3}, v{t3}
    v_mul_f32 v{t2}, 0x3a000000, v{t2}
    v_mul_f32 v{t3}, 0x3a000000, v{t3}
    v_cos_f32 v{t0}, v{t2}
    v_sin_f32 v{t2}, v{t2}
    v_cos_f32 v{t1}, v{t3}
    v_sin_f32 v{t3}, v{t3}
    v_cvt_pk_bf16_f32 v{dst}, v{t0}, v{t2}
    v_cvt_pk_bf16_f32 v{dst + 1}, v{t1}, v{t3}
    ''')


INV640 = hex(f2u(1.0 / 640))
EPS = hex(f2u(1e-5))


def rstd_chain(var, out):
    rbf(out, f'v{var}')
    a(f'v_add_f32 v{out}, {EPS}, v{out}')
    rbf(out, f'v{out}')
    a(f'v_sqrt_f32 v{out}, v{out}')
    rbf(out, f'v{out}')
    a(f'v_rcp_f32 v{out}, v{out}')


def sum10(dst2, x):
    a(f'v_pk_add_f32 {vr(dst2, 2)}, {vr(x, 2)}, {vr(x + 2, 2)}')
    for h in (4, 6, 8):
        a(f'v_pk_add_f32 {vr(dst2, 2)}, {vr(dst2, 2)}, {vr(x + h, 2)}')
    a(f'v_add_f32 v{dst2}, v{dst2}, v{dst2 + 1}')


def dot10(dst2, x, y):
    a(f'v_pk_mul_f32 {vr(dst2, 2)}, {vr(x, 2)}, {vr(y, 2)}')
    for h in (2, 4, 6, 8):
        a(f'v_pk_fma_f32 {vr(dst2, 2)}, {vr(x + h, 2)}, {vr(y + h, 2)}, {vr(dst2, 2)}')
    a(f'v_add_f32 v{dst2}, v{dst2}, v{dst2 + 1}')


def prio(k, on):
    if PRIO[k] == '0':
        return
    if not on:
        a('s_setprio 0')
        return
    L = newlabel('pr')
    a(f's_cmp_lt_u32 s{sW}, 4')
    a(f's_cbranch_scc1 {L}')
    a('s_setprio 1')
    a.label(L)


def bar(n):
    a(f's_barrier                                   ; {n}')


def tpoll(loads, lanes_s=None, between=None):
    L, D, Cc = newlabel('poll'), newlabel('polld'), newlabel('pollc')
    if lanes_s:
        a(f's_mov_b64 exec, {lanes_s}')
    for ld in loads:
        a(ld)
    if lanes_s:
        a('s_mov_b64 exec, -1')
    a(f's_mov_b32 s{sCnt}, {SPIN}')
    if between is not None:
        between()
    a('s_waitcnt vmcnt(0)')
    a.label(Cc)
    a(f'''
    v_cmp_ne_u32 vcc, s{sTag}, v{Ra + 3}
    v_cmp_ne_u32 {sr(sBc)}, s{sTag}, v{Ra + 7}
    s_or_b64 vcc, vcc, {sr(sBc)}
    s_and_b64 vcc, vcc, {sr(sM8)}
    s_cbranch_scc1 {L}
    ''')
    a.label(D)

    def retry():
        a.label(L)
        a(f'''
        s_sub_u32 s{sCnt}, s{sCnt}, 1
        s_cbranch_scc1 {D}
        s_lshr_b64 {sr(sBc)}, vcc, 1
        s_or_b64 vcc, vcc, {sr(sBc)}
        s_lshr_b64 {sr(sBc)}, vcc, 2
        s_or_b64 exec, vcc, {sr(sBc)}
        ''')
        for ld in loads:
            a(ld)
        a('s_mov_b64 exec, -1')
        a('s_waitcnt vmcnt(0)')
        a(f's_branch {Cc}')
    late.append(retry)


sM8, sLn, sM3 = 62, 64, 66
vSg0, vSg1, vPair, vPairX = vE0 + 1, vE0 + 2, vE0 + 5, vM8F + 1


def f32_expand(q0, m0, m1):
    for tile in range(2):
        for k in range(8):
            b = vF32 + 16 * tile + k
            a(f'v_alignbit_b32 v{b + 8}, v{b}, v{b}, 16')
            a(f'v_xor_b32 v{b + 8}, v{m1}, v{b + 8}')
            if m0 is not None:
                a(f'v_xor_b32 v{b}, v{m0}, v{b}')


def f32_read(q0):
    for tile in range(2):
        for ks in range(2):
            tab_read(vF32 + 16 * tile + 4 * ks, q0 + 2 * tile + ks)


def main_path():
    vZ, vSA, vCA = vVec, vVec + 10, vVec + 20
    gemv_addr()
    a(f's_cmp_lt_u32 s{sRi}, 10')
    a('s_waitcnt lgkmcnt(0)')
    stamp('kernarg')
    a('s_cbranch_scc0 L_x')
    gemv_issue()
    if XL == 1:
        xloads()
    a.label('L_x')
    if XL == 0:
        xloads()
    if BLOAD == 0:
        a(f's_sub_u32 s{sT}, s{sRi}, 10')
        a(f's_cmp_lt_u32 s{sT}, 20')
        a('s_cbranch_scc0 L_setup')
        gemv_issue()
        a.label('L_setup')
    epoch_load()
    a(f'''
    s_mov_b32 s{sHI}, 0xffff0000
    s_lshl_b32 s{sRow}, s{sW}, 8
    s_add_u32 s{sKey}, s{sRow}, s{sMe}
    s_mul_i32 s{sRow}, s{sKey}, 1280
    ''')
    if B0 == 1:
        bar('B0')
    m8(vM8F, False)
    m8(vM8I, True)
    a(f'''
    v_bfe_u32 v20, v{vL}, 2, 2                    ; cs
    v_and_b32 v21, 48, v{vL16}                    ; part*16
    v_lshrrev_b32 v22, 4, v{vL}                   ; g
    v_lshl_add_u32 v23, v22, 5, v20               ; 32g + cs
    v_mul_u32_u24 v{vPoll}, {T1S}, v23
    v_add_u32 v{vPoll}, v{vPoll}, v21
    v_mul_u32_u24 v23, 80, v23
    s_mul_i32 s{sT}, s{sW}, 320
    s_add_u32 s{sT}, s{sT}, {XB2}
    v_add3_u32 v{vE0 + 4}, v23, v21, s{sT}        ; staging address
    v_mul_u32_u24 v{vS}, {NJ * 64}, v22
    v_and_b32 v23, 0xf0, v{vL16}
    v_add_u32 v{vS}, v{vS}, v23
    v_lshlrev_b32 v{vE0}, 3, v{vL}                ; 8*lane
    v_mul_u32_u24 v22, {4 * SA}, v22
    v_mul_u32_u24 v20, 120, v20
    v_lshl_add_u32 v20, v21, 1, v20
    s_min_u32 s{sT}, s{sW}, 5
    s_mul_i32 s{sT}, s{sT}, 480
    s_add_u32 s{sT}, s{sT}, {XB1}
    v_add3_u32 v{vPair}, v20, v22, s{sT}
    s_mov_b32 s{sM7}, 0x77777777
    s_mov_b32 s{sM7 + 1}, 0x77777777
    s_mov_b32 s{sM8}, 0x88888888
    s_mov_b32 s{sM8 + 1}, 0x88888888
    s_mov_b32 s{sM3}, 0x37773777
    s_mov_b32 s{sM3 + 1}, 0x37773777
    s_cmp_eq_u32 s{sW}, 5
    s_cselect_b32 s{sLn}, 0x00ff00ff, -1
    s_mov_b32 s{sLn + 1}, s{sLn}
    ''')
    if B0 == 2:
        bar('B0')
    a(f's_cmp_lt_u32 s{sRi}, 10')
    if XL == 2:
        xloads()
    a('s_cbranch_scc0 L_na')
    gemv_compute('A', 5)
    bar('B1')
    a('s_waitcnt vmcnt(0)')
    a('s_branch L_ln1')
    a.label('L_na')
    if XL == 1:
        xloads()
    a(f's_cmp_lt_u32 s{sRi}, 30')
    if BLOAD == 1:
        a('s_waitcnt vmcnt(0)')
        a('s_cbranch_scc0 L_ln1')
        gemv_issue()
    else:
        if BLOAD == 2:
            a('s_cbranch_scc0 L_nb')
            gemv_issue()
            a.label('L_nb')
        if B0 == 3:
            bar('B0')
        a('s_waitcnt vmcnt(6)')
        a('s_cbranch_scc1 L_ln1')
        a('s_waitcnt vmcnt(0)')
    a.label('L_ln1')
    stamp('x in')
    for j in range(5):
        unpack(vXS + tm(j, 0), vXS + tm(j, 1), vXR + j)
    sum10(24, vXS)
    wave_sum([24], [sU0])
    a(f'v_mov_b32 v24, {INV640}')
    a(f'v_mul_f32 v26, s{sU0}, v24                ; mean')
    rbf(28, 'v26')
    a(f'v_readfirstlane_b32 s{sM1B}, v28')
    for h in range(0, 10, 2):
        a(f'v_pk_add_f32 {vr(vXS + h, 2)}, {vr(vXS + h, 2)}, v[28:29] op_sel:[0,0] op_sel_hi:[1,0] neg_lo:[0,1] neg_hi:[0,1]')
    dot10(30, vXS, vXS)
    wave_sum([30], [sU0])
    a(f'''
    v_sub_f32 v26, v26, v28
    v_mul_f32 v26, v26, v26
    v_fma_f32 v26, s{sU0}, v24, -v26
    ''')
    rstd_chain(26, 27)
    for j in range(5):
        for t in range(2):
            a(f'v_mul_f32 v{vZ + 2 * j + t}, v27, v{vXS + tm(j, t)}')
    a(f'''
    v_mov_b32 v23, 0
    v_mov_b32 v27, 0
    s_waitcnt lgkmcnt(0)
    ''')
    epoch_tag()
    tag_bytes()
    def late_gemv(after):
        L1, L2 = newlabel('lg'), newlabel('lg')
        a(f'''
        s_cmp_lt_u32 s{sRi}, 10
        s_cbranch_scc1 {L2}
        s_cmp_lt_u32 s{sRi}, 30
        s_cbranch_scc0 {L1}
        ''')
        gemv_compute('B', after)
        a.label(L1)
        bar('B1')
        a.label(L2)
    if not GLATE:
        late_gemv(0)
    a(f'''
    s_mul_i32 s{sU0}, s{sMe}, {T1S}
    s_lshl_b32 s{sU1}, s{sW}, 8
    s_add_u32 s{sU0}, s{sU0}, s{sU1}
    ''')
    base_add(sBa, WS, sU0, T1_G)
    base_add(sBb, WS, sU0, T1_G + 4 * NJ * 64)
    a(f'''
    v_subrev_u32 v28, 64, v0                      ; u
    v_lshrrev_b32 v29, 4, v28
    v_lshlrev_b32 v29, 10, v29
    v_and_b32 v30, 0xf0, v{vL16}
    v_add_u32 v29, v29, v30
    v_cmp_le_u32 vcc, 160, v28
    v_mov_b32 v31, {8 - 160 * 32}
    v_cndmask_b32 v31, 0, v31, vcc
    s_mov_b32 s{sU2}, {MODA_L}
    v_lshlrev_b32 v28, 5, v28
    v_add3_u32 v28, v28, v31, s{sU2}
    v_add_u32 v{vE0 + 3}, s{sU2}, v{vL16}
    s_sub_u32 s{sT}, s{sW}, 1
    s_cmp_lt_u32 s{sT}, 5
    ''')
    bar('BT')
    stamp('poll start')
    def p1_tabs(after=4):
        bar('BP')
        tab_read(vF20, T_F20C)
        tab_read(vF20 + 4, T_F20S)
        for q in range(4):
            tab_read(vTW + 4 * q, T_TW1 + q)
        f32_read(T_F32A)
        tab_read(32, T_ADR)
        a(f'''
        s_lshr_b32 s{sU1}, s{sW}, 1
        s_mul_i32 s{sU1}, s{sU1}, {4 * SA}
        s_and_b32 s{sT}, s{sW}, 1
        s_lshl_b32 s{sT}, s{sT}, 2
        s_add_u32 s{sU1}, s{sU1}, s{sT}
        s_add_u32 s{sU1}, s{sU1}, {XB1}
        s_waitcnt lgkmcnt(0)
        v_add_u32 v{vSg0}, s{sU1}, v32
        v_add_u32 v{vSg1}, 160, v{vSg0}
        ''')
        f32_expand(T_F32A, None, 33)
        if GLATE:
            late_gemv(after)
    a('s_cbranch_scc1 L_mpoll')
    p1_tabs(0)
    a('s_branch L_b2')
    a.label('L_mpoll')
    poll([f'global_load_dwordx4 {vr(36 + 4 * p, 4)}, v29, {sr(WS)} offset:{256 * p} sc1' for p in range(4)],
         list(range(36, 52)), [52, 53, 54], empty='tag', between=p1_tabs)
    a(f'''
    v_pk_add_f32 v[36:37], v[36:37], v[40:41]
    v_pk_add_f32 v[38:39], v[38:39], v[42:43]
    v_pk_add_f32 v[44:45], v[44:45], v[48:49]
    v_pk_add_f32 v[46:47], v[46:47], v[50:51]
    v_pk_add_f32 v[36:37], v[36:37], v[44:45]
    v_pk_add_f32 v[38:39], v[38:39], v[46:47]
    ''')
    if MR:
        a('v_cvt_pk_bf16_f32 v40, v36, v37')
        a('v_cvt_pk_bf16_f32 v41, v38, v39')
        unpack(36, 37, 40)
        unpack(38, 39, 41)
    a(f'ds_write2_b64 v28, v[36:37], v[38:39] offset0:0 offset1:2')
    a.label('L_b2')
    stamp('poll end')
    fine('p1', 'pre-B2')
    a('s_waitcnt lgkmcnt(0)')
    a('s_barrier                                   ; B2')
    stamp('B2 done (mod ready)')
    fine('p1', 'B2')
    assert MODA_L % 16 == 0
    for j in range(5):
        a(f'ds_read_b128 {vr(vSA + 4 * j, 4)}, v{vE0 + 3} offset:{1024 * j}')
    for j in range(5):
        a(f's_waitcnt lgkmcnt({4 - j})')
        for t in range(2):
            a(f'v_fmac_f32 v{vSA + 4 * j + t}, v{vZ + 2 * j + t}, v{vSA + 4 * j + 2 + t}')
        if j in (1, 3):
            for t in range(2):
                a(f'v_cvt_pk_bf16_f32 v{Ra + 4 * t + j // 2}, v{vSA + 4 * j - 4 + t}, v{vSA + 4 * j + t}')
    for t in range(2):
        a(f'v_cvt_pk_bf16_f32 v{Ra + 4 * t + 2}, v{vSA + 16 + t}, 0')
    fine('p1', 'h packed')
    for t in range(2):
        mfma32(RD + 8 * t, Ra + 4 * t, vF20)
        mfma32(RD + 8 * t + 4, Ra + 4 * t, vF20 + 4)
    fine('p1', 'mfma1 issued')
    for t, tmp in ((0, Rb), (1, Rc)):
        cmul(tmp, tmp + 4, RD + 8 * t, RD + 8 * t + 4, vTW + 8 * t, vTW + 8 * t + 4, -1, pk=PK[0] == '1' or (PK[0] == '2' and t == 1))
        pack4(Ra + 4 * t, tmp, tmp + 4)
    fine('p1', 'twiddled')
    for u in range(2):
        for ks in range(2):
            for e in range(2):
                d = RD + 8 * u + 4 * e
                mfma32(d, vF32 + 16 * u + 8 * e + 4 * ks, Ra + 4 * ks, d if ks else None)
    fine('p1', 'mfma2 issued')
    a(f's_mov_b64 exec, {sr(sM3)}')
    for u in range(2):
        pack4(Rb + 4 * u, RD + 8 * u, RD + 8 * u + 4)
        for r in (0, 2):
            a(f'ds_write2_b32 v{vSg1 if u else vSg0}, v{Rb + 4 * u + r}, v{Rb + 4 * u + r + 1} offset0:{80 * r} offset1:{80 * r + 80}')
    a('s_mov_b64 exec, -1')
    a(f'v_mov_b32 v{Rc + 3}, s{sTag}')
    a(f'v_mov_b32 v{Rc + 7}, s{sTag}')
    a(f's_cmp_ge_u32 s{sW}, 6')
    fine('p1', 'lds written')
    a('s_waitcnt lgkmcnt(0)')
    fine('p1', 'pre-B3')
    fine('x1', 'pre-B3')
    bar('B3')
    fine('p1', 'B3')
    fine('x1', 'B3')
    a('s_cbranch_scc1 L_t1done')
    for n in (3, 0, 1, 2):
        a(f'ds_read_b64 {vr(Ra + 2 * n, 2)}, v{vPair} offset:{8 * n}')
    for k, n in enumerate((3, 0, 1, 2)):
        a(f's_waitcnt lgkmcnt({3 - k})')
        mfma16(RD + 4 * n, vM8F, Ra + 2 * n)
    fine('p1', 'r8 issued')
    a(f's_mov_b64 exec, {sr(sM7)}')
    for j in range(2):
        a(f'v_cvt_pk_bf16_f32 v{Rc + 4 * j + 3}, v{RD + 12 + 2 * j}, v{RD + 12 + 2 * j + 1}')
    a(f's_mov_b64 exec, {sr(sLn)}')
    for j in range(2):
        for n in range(3):
            a(f'v_cvt_pk_bf16_f32 v{Rc + 4 * j + n}, v{RD + 4 * n + 2 * j}, v{RD + 4 * n + 2 * j + 1}')
        a(f'global_store_dwordx4 v{vS}, {vr(Rc + 4 * j, 4)}, {sr(sBb if j else sBa)} sc1')
    a('s_mov_b64 exec, -1')
    a.label('L_t1done')
    stamp('T1 stored')
    fine('p1', 'stored')
    fine('x1', 'stored')

    def p3_mats():
        for q in range(3):
            tab_read(vF20 + 4 * q, T_F20I + q)
        f32_read(T_F32B)
        tab_read(40, T_ADR)
        a('s_waitcnt lgkmcnt(0)')
        f32_expand(T_F32B, 42, 43)
    a(f's_cmp_ge_u32 s{sIdx}, {NJ}')
    a('s_cbranch_scc1 L_idle')
    late.append(lambda: (a.label('L_idle'), bar('B3b'), p3_mats() if MATS else None, a('s_branch L_p3prep')))
    if MATS == 1:
        p3_mats()
    vWr = vVec
    for k in range(16):
        a(f'v_mov_b32 v{vWr + k}, 0')
    SC = 2.0 / (2048 * 640) / (ALPHA[16] ** 4 * ALPHA[20] ** 2 * ALPHA[32] ** 2)
    a(f'''
    v_and_b32 v36, 15, v{vL}
    v_and_b32 v37, 48, v{vL}
    v_lshl_add_u32 v36, v37, 2, v36               ; 64g + i
    v_mul_u32_u24 v{vE0 + 3}, 80, v36
    s_lshl_b32 s{sU1}, s{sW}, 3
    s_add_u32 s{sU1}, s{sU1}, {XB2}
    v_add_u32 v{vE0 + 3}, s{sU1}, v{vE0 + 3}
    v_lshlrev_b32 v36, 5, v36
    v_add_u32 v36, {WST}, v36
    v_and_b32 v39, 4, v{vL}
    v_lshlrev_b32 v39, 2, v39
    v_lshlrev_b32 v{vS}, 7, v37
    v_and_b32 v37, 0xf0, v{vL16}
    v_add_u32 v{vS}, v{vS}, v37
    s_mul_i32 s{sU0}, s{sX}, {NJ}
    s_add_u32 s{sU0}, s{sU0}, s{sIdx}
    s_lshl_b32 s{sU1}, s{sU0}, 6
    s_mul_i32 s{sT}, s{sW}, {4 * T1S}
    s_add_u32 s{sU1}, s{sU1}, s{sT}
    s_lshl_b32 s{sU0}, s{sU0}, 14
    s_lshl_b32 s{sT}, s{sW}, 8
    s_add_u32 s{sU0}, s{sU0}, s{sT}
    ''')
    base_add(sBa, WS, sU1, T1_G)
    base_add(sBb, WS, sU1, T1_G + 128 * T1S)
    base_add(58, WS, sU0, T2_G)
    base_add(60, WS, sU0, T2_G + 8192)

    def w_setup(parts=(0, 1)):
      if 0 in parts:
        for q in range(2):
            tab_read(vTW + 4 * q, T_F16 + q)
            tab_read(vTW + 8 + 4 * q, T_TW2 + q)
        a(f'''
        s_mul_i32 s{sU0}, s{sIdx}, 15
        s_min_u32 s{sU1}, s{sU0}, 306
        s_add_u32 s{sU2}, s{sU1}, s{sX}
        s_and_b32 s{sU2}, s{sU2}, 1
        s_sub_u32 s{sU1}, s{sU1}, s{sU2}
        s_lshl_b32 s{sT}, s{sW}, 1
        s_add_u32 s{sU0}, s{sU0}, s{sT}
        ''')
      if True:
        for s in parts:
            gam = sU3
            a(f'''
            s_add_u32 s{sU2}, s{sU0}, {s}
            s_sub_u32 s{sT}, s{sU2}, s{sU1}
            s_min_u32 s{sT}, s{sT}, 15
            s_lshl_b32 s{sT}, s{sT}, 1
            v_xor_b32 v37, s{sT}, v39
            v_add_u32 v37, v37, v36
            ''')
            for arr in range(2):
                for r in range(4):
                    a(f'ds_read_u16_d16_hi v{vWr + 8 * s + 4 * arr + r}, v37 offset:{arr * 8192 + r * 512}')
            a(f'''
            s_mul_i32 s{sT}, s{sU2}, 0x199a
            s_lshr_b32 s{sT}, s{sT}, 16
            s_mul_i32 s{sT}, s{sT}, 10
            s_mov_b32 s{gam}, {hex(f2u(SC))}
            s_cmp_eq_u32 s{sT}, s{sU2}
            s_cselect_b32 s{gam}, {hex(f2u(SC / 2))}, s{gam}
            s_waitcnt lgkmcnt(0)
            ''')
            for r in range(8):
                a(f'v_mul_f32 v{vWr + 8 * s + r}, s{gam}, v{vWr + 8 * s + r}')

    tl = [f'global_load_dwordx4 {vr(Ra, 4)}, v{vPoll}, {sr(sBa)} sc1', f'global_load_dwordx4 {vr(Ra + 4, 4)}, v{vPoll}, {sr(sBb)} sc1']
    fine('x1', 'pre-B3b')
    bar('B3b')
    fine('x1', 'B3b')
    if WFIRST:
        w_setup((0, 1) if WFIRST == 1 else (0,))
    fine('x1', 'wsetup')
    if DR1:
        a('s_waitcnt vmcnt(0)')
    if AL1:
        bar('B3c')
    fine('x1', 'drained')
    if PACE1:
        a(f's_sleep {PACE1}')
    stamp('B3b done')
    tpoll(tl, between=lambda: (None if WFIRST == 1 else w_setup((1,) if WFIRST else (0, 1)), p3_mats() if MATS == 2 else None, fine('x1', 'behind')))
    fine('p2', 'T1 in')
    fine('x1', 'T1 in')
    a(f'ds_write_b128 v{vE0 + 4}, {vr(Ra, 4)}')
    a(f'ds_write_b128 v{vE0 + 4}, {vr(Ra + 4, 4)} offset:10240')
    a(f's_cmp_eq_u32 s{sW}, 7')
    a('s_waitcnt lgkmcnt(0)')
    bar('B4')
    stamp('B4 done (T1 in)')
    fine('p2', 'B4')
    fine('x1', 'B4')
    a('s_cbranch_scc1 L_p2_one')
    Fre, Fim, Tc, Ts = vTW, vTW + 4, vTW + 8, vTW + 12
    tmps = (Rb, Rc)

    def p2(ns):
        p2pk = PK[1] == '1'
        if ns == 2:
            for j in range(4):
                a(f'ds_read_b64 {vr(Rb + 2 * j, 2)}, v{vE0 + 3} offset:{1280 * j}')
            for h in range(2):
                a(f's_waitcnt lgkmcnt({2 - 2 * h})')
                for s in range(2):
                    a(f'v_pk_mov_b32 {vr(Ra + 4 * s + 2 * h, 2)}, {vr(Rb + 4 * h, 2)}, {vr(Rb + 4 * h + 2, 2)} op_sel:[{s},{s}]')
        else:
            a(f'ds_read2st64_b32 {vr(Ra, 2)}, v{vE0 + 3} offset0:0 offset1:5')
            a(f'ds_read2st64_b32 {vr(Ra + 2, 2)}, v{vE0 + 3} offset0:10 offset1:15')
            a('s_waitcnt lgkmcnt(0)')
        fine('p2', 'read')
        for s in range(ns):
            mfma32(RD + 8 * s, Ra + 4 * s, Fre)
            mfma32(RD + 8 * s + 4, Ra + 4 * s, Fim)
        fine('p2', 's1')
        def stage(cq, sign, swap, mm):
            lo = lambda s: tmps[s] + (4 if swap else 0)
            hi = lambda s: tmps[s] + (0 if swap else 4)
            if ns == 1 or not P2ORD:
                for s in range(ns):
                    cmul(tmps[s], tmps[s] + 4, RD + 8 * s, RD + 8 * s + 4, *cq(s), sign, pk=p2pk)
                    pack4(Ra + 4 * s, lo(s), hi(s))
                    mm(s, 0)
                    mm(s, 1)
                return
            cmul(tmps[0], tmps[0] + 4, RD, RD + 4, *cq(0), sign, pk=p2pk, head=P2ORD - 1)
            cmul(tmps[1], tmps[1] + 4, RD + 8, RD + 12, *cq(1), sign, pk=p2pk)
            pack4(Ra, lo(0), hi(0))
            cv = lambda r: a(f'v_cvt_pk_bf16_f32 v{Ra + 4 + r}, v{lo(1) + r}, v{hi(1) + r}')
            cv(0)
            cv(1)
            mm(0, 0)
            cv(2)
            cv(3)
            mm(0, 1)
            mm(1, 0)
            mm(1, 1)
        stage(lambda s: (Tc, Ts), -1, False, lambda s, k: mfma32(RD + 8 * s + 4 * k, Fim if k else Fre, Ra + 4 * s))
        fine('p2', 's2')
        stage(lambda s: (vWr + 8 * s, vWr + 8 * s + 4), +1, True, lambda s, k: mfma32(RD + 8 * s + 4 * k, Ra + 4 * s, Fre if k else Fim))
        fine('p2', 's3')
        stage(lambda s: (Tc, Ts), +1, True, lambda s, k: mfma32(RD + 8 * s + 4 * k, Fre if k else Fim, Ra + 4 * s))
        fine('p2', 's4')
        for s in range(ns):
            pack4(Rb + s, RD + 8 * s, RD + 8 * s + 4, step=ns)
        if ns == 2:
            for r in range(4):
                a(f'ds_write_b64 v{vE0 + 3}, {vr(Rb + 2 * r, 2)} offset:{1280 * r}')
        else:
            a(f'ds_write2st64_b32 v{vE0 + 3}, v{Rb}, v{Rb + 1} offset0:0 offset1:5')
            a(f'ds_write2st64_b32 v{vE0 + 3}, v{Rb + 2}, v{Rb + 3} offset0:10 offset1:15')
        a('s_waitcnt lgkmcnt(0)')
    p2(2)
    a.label('L_b5')
    fine('p2', 'pre-B5')
    fine('x2', 'pre-B5')
    bar('B5')
    fine('p2', 'B5')
    fine('x2', 'B5')
    a(f'ds_read_b128 {vr(Rb, 4)}, v{vE0 + 4}')
    a(f'ds_read_b128 {vr(Rb + 4, 4)}, v{vE0 + 4} offset:10240')
    a('s_waitcnt lgkmcnt(1)')
    a(f'global_store_dwordx4 v{vS}, {vr(Rb, 4)}, {sr(58)} sc1')
    a('s_waitcnt lgkmcnt(0)')
    a(f'global_store_dwordx4 v{vS}, {vr(Rb + 4, 4)}, {sr(60)} sc1')
    stamp('T2 stored')
    fine('p2', 'stored')
    fine('x2', 'stored')
    late.append(lambda: (a.label('L_p2_one'), p2(1), a('s_branch L_b5')))
    a.label('L_p3prep')
    vGA, vVV, vGC, vGS = vVec, vVec + 10, vVec + 20, vVec + 30
    vMB = vE0 + 6
    for q in range(4):
        tab_read(vTW + 4 * q, T_TW3 + q)
    a(f'''
    v_add_u32 v{vMB}, {MODB_L}, v{vL4}
    v_bfe_u32 v36, v{vL}, 2, 2
    v_lshrrev_b32 v37, 4, v{vL}
    v_mad_u32_u24 v36, v37, {NJ}, v36
    v_and_b32 v38, 48, v{vL16}
    v_lshl_add_u32 v{vPoll}, v36, 14, v38
    v_mul_u32_u24 v37, {4 * SA}, v37
    v_add_u32 v37, {XB1 + 8 * 361}, v37
    v_cndmask_b32 v{vPairX}, v{vPair}, v37, {sr(sM8)}
    s_and_b64 {sr(sM8)}, {sr(sM8)}, {sr(sLn)}
    s_lshl_b32 s{sU1}, s{sMe}, 6
    s_min_u32 s{sT}, s{sW}, 5
    s_lshl_b32 s{sT}, s{sT}, 16
    s_add_u32 s{sU1}, s{sU1}, s{sT}
    ''')
    base_add(sBa, WS, sU1, T2_G)
    base_add(sBb, WS, sU1, T2_G + 4 * NJ * 16384)
    base_add(sXrow, OUTP, sRow)
    a(f's_mul_i32 s{sU0}, s{sMe}, {REC_STRIDE}')
    base_add(sRec, WS, sU0, REC_G)
    a(f'''
    v_mov_b32 v{vE0 + 7}, {hex(f2u(-1.0 / 640))}
    v_mov_b32 v{vM8F}, {hex(f2u(-1e-5))}
    v_mov_b32 v{vE0 + 3}, {KEYL}
    v_mov_b32 v{vE0 + 4}, 1
    ''')

    def p3_setup(part=3):
      raw, GB = Rb, Rb
      if part & 1:
        raw = Rb
        for k in range(0, 24, 2):
            a(f'ds_read2st64_b32 {vr(raw + k, 2)}, v{vMB} offset0:{k} offset1:{k + 1}')
        a(f'ds_read_b32 v{raw + 24}, v{vMB} offset:{24 * 256}')
        a('s_waitcnt lgkmcnt(0)')
        for vec, dst in ((0, vGA), (1, vGS), (2, vGC), (4, vVV)):
            for j in range(5):
                unpack(dst + tm(j, 0), dst + tm(j, 1), raw + 5 * vec + j)
        GB = Rb
        for j in range(5):
            unpack(GB + tm(j, 0), GB + tm(j, 1), raw + 15 + j)
      if part & 2:
        t0, t1, t2 = Rc + 2, Rc + 4, Rc + 6
        dot10(t0, vVV, vGS)
        for h in range(0, 10, 2):
            a(f'v_pk_mul_f32 {vr(vVV + h, 2)}, {vr(vVV + h, 2)}, {vr(vGC + h, 2)}')
        sum10(t1, vVV)
        a(f'v_mov_b32 v{t2}, s{sM1B}')
        for h in range(0, 10, 2):
            a(f'v_pk_mul_f32 {vr(vGC + h, 2)}, {vr(vGC + h, 2)}, {vr(GB + h, 2)}')
            a(f'v_pk_fma_f32 {vr(vGS + h, 2)}, {vr(vGS + h, 2)}, {vr(GB + h, 2)}, {vr(t2, 2)} op_sel:[0,0,0] op_sel_hi:[1,1,0]')
        wave_sum([t1, t0], [sV1, sV2])

    if MATS == 0:
        p3_mats()
    a('s_waitcnt lgkmcnt(0)')
    bar('B5b')
    stamp('B5b done')
    fine('p2', 'B5b')
    fine('x2', 'B5b')
    if P3FIRST == 2:
        p3_setup(1)
    if P3FIRST == 1:
        p3_setup()
    else:
        a(f's_cmp_ge_u32 s{sIdx}, {NJ}')
        a(f's_cselect_b32 s{sCand}, 8, s{sW}')
        a(f's_cmp_lt_u32 s{sCand}, 6')
        a('s_cbranch_scc1 L_p3later')
        p3_setup(2 if P3FIRST else 3)
        a.label('L_p3later')
    fine('x2', 'p3setup')
    if DR2:
        a('s_waitcnt vmcnt(0)')
    fine('x2', 'drained')
    if PACE2:
        a(f's_sleep {PACE2}')
    if not AL2:
        a(f's_cmp_ge_u32 s{sIdx}, {NJ}')
        a('s_cbranch_scc0 L_nob5c')
    bar('B5c')
    a.label('L_nob5c')
    a(f's_cmp_ge_u32 s{sW}, 6')
    a('s_cbranch_scc1 L_b6')
    stamp('T2 poll')
    fine('p2', 'T2 poll')

    def p3_behind():
        a(f's_cmp_lt_u32 s{sCand}, 6')
        a('s_cbranch_scc0 L_p3done')
        p3_setup(2 if P3FIRST else 3)
        a.label('L_p3done')
    tpoll(tl, lanes_s=sr(sLn), between=None if P3FIRST == 1 else p3_behind)
    stamp('T2 in')
    fine('p3', 'T2 in')
    fine('x2', 'T2 in')
    a(f'''
    v_swap_b32 v{Ra + 1}, v{Ra + 4}
    v_swap_b32 v{Ra + 3}, v{Ra + 6}
    ''')
    for n, r in ((0, Ra), (1, Ra + 4), (2, Ra + 2), (3, Ra + 6)):
        mfma16(RD + 4 * n, vM8I, r)
    for n in range(4):
        for jj in range(2):
            a(f'v_cvt_pk_bf16_f32 v{Rb + 2 * n + jj}, v{RD + 4 * n + 2 * jj + 1}, v{RD + 4 * n + 2 * jj}')
        a(f'ds_write_b64 v{vPairX if n == 3 else vPair}, {vr(Rb + 2 * n, 2)} offset:{8 * n}')
    a('s_waitcnt lgkmcnt(0)')
    a.label('L_b6')
    prio(2, True)
    fine('p3', 'pre-B6')
    bar('B6')
    fine('p3', 'B6')
    fine('x2', 'B6')
    for u in range(2):
        for r in (0, 2):
            a(f'ds_read2_b32 {vr(Rb + 4 * u + r, 2)}, v{vSg1 if u else vSg0} offset0:{80 * r} offset1:{80 * r + 80}')
    Y = RD
    if not P3O:
        for ks in range(2):
            a(f's_waitcnt lgkmcnt({2 - 2 * ks})')
            for t in range(2):
                for e in range(2):
                    d = RD + 8 * t + 4 * e
                    mfma32(d, Rb + 4 * ks, vF32 + 16 * t + 8 * (1 - e) + 4 * ks, d if ks else None)
        fine('p3', 'mfma1 issued')
        if PRIO[2] == '1':
            prio(2, False)
        for t, tmp in ((0, Ra), (1, Rc)):
            cmul(tmp, tmp + 4, RD + 8 * t, RD + 8 * t + 4, vTW + 8 * t, vTW + 8 * t + 4, +1, pk=PK[2] == '1' or (PK[2] == '2' and t == 1), n=3)
            pack4(Rb + 4 * t, tmp, tmp + 4, n=3)
            a(f'v_mov_b32 v{Rb + 4 * t + 3}, 0')
        Y = RD
        mfma32(Y, vF20, Rb)
        mfma32(Y + 8, vF20 + 4, Rb)
        mfma32(Y + 4, vF20, Rb + 4)
        mfma32(Y + 8, vF20 + 8, Rb + 4, Y + 8)
    else:
        def m1(t, ks, e):
            d = RD + 8 * t + 4 * e
            mfma32(d, Rb + 4 * ks, vF32 + 16 * t + 8 * (1 - e) + 4 * ks, d if ks else None)
        a('s_waitcnt lgkmcnt(2)')
        m1(0, 0, 0)
        m1(0, 0, 1)
        a('s_waitcnt lgkmcnt(0)')
        m1(0, 1, 0)
        m1(0, 1, 1)
        for ks in range(2):
            for e in range(2):
                m1(1, ks, e)
        fine('p3', 'mfma1 issued')
        B0_, B1_ = vF32, vF32 + 4
        cmul(Ra, Ra + 4, RD, RD + 4, vTW, vTW + 4, +1, pk=False, n=3)
        a(f'v_mov_b32 v{B0_ + 3}, 0')
        a(f'v_mov_b32 v{B1_ + 3}, 0')
        pack4(B0_, Ra, Ra + 4, n=3)
        Yx = Rb
        mfma32(Y, vF20, B0_)
        mfma32(Yx, vF20 + 4, B0_)
        cmul(Rc, Rc + 4, RD + 8, RD + 12, vTW + 8, vTW + 12, +1, pk=False, n=3)
        pack4(B1_, Rc, Rc + 4, n=3)
        mfma32(Y + 4, vF20, B1_)
        mfma32(Y + 8, vF20 + 8, B1_, Yx)
    fine('p3', 'mfma2 issued')
    if PRIO[2] == '2':
        prio(2, False)
    X1 = vXS
    s1, s2, s3, s4 = Ra, Ra + 1, Ra + 2, Ra + 3
    if not PKS:
        for k in range(10):
            a(f'v_fmac_f32 v{X1 + k}, v{Y + k}, v{vGA + k}')
            if k == 1:
                a(f'v_mul_f32 v{s2}, v{X1}, v{X1}')
                a(f'v_mul_f32 v{s3}, v{X1}, v{vVV}')
            if k >= 2:
                a(f'v_add_f32 v{s1}, v{X1 + k - 1}, v{X1 if k == 2 else s1}')
                a(f'v_fmac_f32 v{s2}, v{X1 + k - 1}, v{X1 + k - 1}')
                a(f'v_fmac_f32 v{s3}, v{X1 + k - 1}, v{vVV + k - 1}')
        a(f'v_fmac_f32 v{s3}, v{X1 + 9}, v{vVV + 9}')
        a(f'v_add_f32 v{s1}, v{X1 + 9}, v{s1}')
        a(f'v_fmac_f32 v{s2}, v{X1 + 9}, v{X1 + 9}')
    else:
        p1_, p2_, p3_ = Rc, Rc + 2, Rc + 4
        for h in range(0, 10, 2):
            a(f'v_pk_fma_f32 {vr(X1 + h, 2)}, {vr(Y + h, 2)}, {vr(vGA + h, 2)}, {vr(X1 + h, 2)}')
        a(f'v_pk_mul_f32 {vr(p3_, 2)}, {vr(X1, 2)}, {vr(vVV, 2)}')
        a(f'v_pk_add_f32 {vr(p1_, 2)}, {vr(X1, 2)}, {vr(X1 + 2, 2)}')
        a(f'v_pk_mul_f32 {vr(p2_, 2)}, {vr(X1, 2)}, {vr(X1, 2)}')
        for h in (2, 4, 6, 8):
            a(f'v_pk_fma_f32 {vr(p3_, 2)}, {vr(X1 + h, 2)}, {vr(vVV + h, 2)}, {vr(p3_, 2)}')
            if h > 2:
                a(f'v_pk_add_f32 {vr(p1_, 2)}, {vr(p1_, 2)}, {vr(X1 + h, 2)}')
            a(f'v_pk_fma_f32 {vr(p2_, 2)}, {vr(X1 + h, 2)}, {vr(X1 + h, 2)}, {vr(p2_, 2)}')
        a(f'v_add_f32 v{s3}, v{p3_}, v{p3_ + 1}')
        a(f'v_add_f32 v{s1}, v{p1_}, v{p1_ + 1}')
        a(f'v_add_f32 v{s2}, v{p2_}, v{p2_ + 1}')
    fine('p3', 'partials')
    a(f'''
    v_permlane32_swap_b32 v{s3}, v{s4}
    v_permlane32_swap_b32 v{s1}, v{s2}
    v_add_f32 v{s3}, v{s3}, v{s4}
    v_add_f32 v{s1}, v{s1}, v{s2}
    v_permlane16_swap_b32 v{s1}, v{s3}
    v_add_f32 v{s1}, v{s1}, v{s3}
    ''')
    for c in ('row_ror:8', 'row_ror:4', 'row_ror:2', 'row_ror:1'):
        dpp('v_add_f32', s1, c)
    a(f'''
    v_readlane_b32 s{sU0}, v{s1}, 0
    v_readlane_b32 s{sU2}, v{s1}, 32
    v_readlane_b32 s{sU3}, v{s1}, 16
    ''')
    fine('p3', 'reduced')
    k0 = Rc
    cE = vM8F
    cI, cK, cT, cO = vE0 + 7, vE0 + 3, Ra + 7, vE0 + 4
    m = Ra + 1
    a(f'''
    v_mul_f32 v{m + 2}, s{sU0}, v{cI}
    v_fma_f32 v{k0}, v{m + 2}, v{m + 2}, v{cE}
    v_mov_b32 v{m + 3}, s{sU3}
    v_fmac_f32 v{k0}, s{sU2}, v{cI}
    v_fmac_f32 v{m + 3}, s{sV1}, v{m + 2}
    v_sub_f32 v{m + 1}, v{cE}, v{k0}              ; var
    v_rsq_f32_e64 v{k0}, -v{k0}
    v_mov_b32 v{cT}, s{sTag}
    s_mov_b64 exec, 1
    v_fma_f32 v{m + 3}, v{m + 3}, v{k0}, s{sV2}   ; r
    v_ashrrev_i32 v{m + 4}, 31, v{m + 3}
    v_or_b32 v{m + 4}, 0x80000000, v{m + 4}
    v_xor_b32 v{m + 3}, v{m + 3}, v{m + 4}
    v_and_b32 v{m + 3}, 0xfffff800, v{m + 3}
    v_or_b32 v{m + 3}, s{sKey}, v{m + 3}
    ds_max_u32 v{cK}, v{m + 3}
    ds_add_rtn_u32 v{m + 4}, v{cK}, v{cO} offset:8
    ds_read_b32 v{Ra + 6}, v{cK}
    v_readfirstlane_b32 s{sKey}, v{m + 3}
    s_waitcnt lgkmcnt(0)
    v_cmpx_eq_u32 vcc, 7, v{m + 4}
    s_cbranch_execz L_notlast
    global_store_dwordx2 v{vL4}, {vr(Ra + 6, 2)}, {sr(sRec)} sc1
    L_notlast:
    s_mov_b64 exec, -1
    ''')
    fine('p3', 'key')
    bar('B7')
    fine('p3', 'B7')
    a(f'''
    ds_read_b32 v{Ra + 6}, v{cK}
    v_sub_f32 v{m + 2}, s{sM1B}, v{m + 2}
    ''')
    rbf(m + 2, f'v{m + 2}')
    rstd_chain(m + 1, k0)
    a(f'''
    v_sub_f32 v{m + 2}, s{sM1B}, v{m + 2}
    v_mul_f32 v{k0 + 1}, v{m + 2}, v{k0}
    ''')
    ZN = vGA
    for h in range(0, 10, 2):
        a(f'v_pk_fma_f32 {vr(ZN + h, 2)}, {vr(X1 + h, 2)}, {vr(k0, 2)}, {vr(k0, 2)} op_sel:[0,0,1] op_sel_hi:[1,0,1]')
    vO = vXS

    def out_math():
        for h in range(0, 10, 2):
            a(f'v_pk_add_f32 {vr(Y + h, 2)}, {vr(X1 + h, 2)}, {vr(vGS + h, 2)}')
        for h in range(0, 10, 2):
            a(f'v_pk_fma_f32 {vr(Y + h, 2)}, {vr(ZN + h, 2)}, {vr(vGC + h, 2)}, {vr(Y + h, 2)}')
        if opt('inject', None):
            if opt('injall', None):
                for k in range(10):
                    a(f'v_mul_f32 v{Y + k}, {hex(f2u(1 + float(opt("inject", 0))))}, v{Y + k}')
            else:
                a(f's_cmp_eq_u32 s{sRow}, 0')
                a('s_cselect_b64 exec, 1, 0')
                a(f'v_add_f32 v{Y}, {hex(f2u(float(opt("inject", 0))))}, v{Y}')
                a('s_mov_b64 exec, -1')
        for j in range(5):
            a(f'v_cvt_pk_bf16_f32 v{vO + j}, v{Y + tm(j, 0)}, v{Y + tm(j, 1)}')
    a(f'''
    s_waitcnt lgkmcnt(0)
    v_readfirstlane_b32 s{sU0}, v{Ra + 6}
    s_cmp_eq_u32 s{sU0}, s{sKey}
    s_cselect_b32 s{sCand}, 1, 0
    s_cbranch_scc1 L_cand
    ''')
    out_math()
    a('s_branch L_keys')
    a.label('L_cand')
    raw, SB, CB, H, Bq = 60, 70, 80, 92, 108
    for k in range(0, 10, 2):
        a(f'ds_read2st64_b32 {vr(raw + k, 2)}, v{vMB} offset0:{5 + k} offset1:{6 + k}')
    for qd in range(2):
        a(f'v_mov_b32 v{H + 4 * qd + 3}, s{sTag}')
    a('s_waitcnt lgkmcnt(0)')
    for j in range(5):
        unpack(SB + tm(j, 0), SB + tm(j, 1), raw + j)
        unpack(CB + tm(j, 0), CB + tm(j, 1), raw + 5 + j)
    for h in range(0, 10, 2):
        a(f'v_pk_fma_f32 {vr(SB + h, 2)}, {vr(ZN + h, 2)}, {vr(CB + h, 2)}, {vr(SB + h, 2)}')
    for j in range(5):
        a(f'v_cvt_pk_bf16_f32 v{H + j + (j >= 3)}, v{SB + tm(j, 0)}, v{SB + tm(j, 1)}')
    for qd in range(2):
        a(f'global_store_dwordx4 v{vL16}, {vr(H + 4 * qd, 4)}, {sr(sRec)} offset:{REC_H2 + 1024 * qd} sc1')
    out_math()

    def out_row():
        for j in range(5):
            a(f'global_store_dword v{vL4}, v{vO + j}, {sr(sXrow)} offset:{256 * j} sc1')
    out_row()
    a.label('L_keys')
    stamp('key out')
    fine('p3', 'key out')
    bar('B7b (candidate stores are out, the helpers have ended)')
    a(f'''
    s_cmp_ge_u32 s{sRi}, 20
    s_cselect_b32 s{sT}, 1, s{sCand}
    s_cmp_lg_u32 s{sT}, 0
    s_cbranch_scc1 L_noout
    ''')
    out_row()
    a('s_branch L_fin')
    a.label('L_noout')
    vEW, vFW = 48, 88
    vRed, vRd, vRow = 15, 16, 17
    a(f'''
    s_cmp_lt_u32 s{sRi}, 20
    s_cbranch_scc1 L_no_ew
    s_mul_i32 s{sT}, s{sW}, 5120
    s_add_u32 s{sT}, s{sT}, {EW}
    v_and_b32 v{Rb}, 0x3c0, v{vL16}
    v_and_b32 v{Rb + 1}, 24, v{vE0}
    v_add3_u32 v{Rb}, v{Rb}, v{Rb + 1}, s{sT}
    s_mul_i32 s{sT}, s{sW}, 320
    s_add_u32 s{sT}, s{sT}, {FW}
    v_min_u32 v{vE0 + 1}, {39 * 8}, v{vE0}
    v_add_u32 v{vE0 + 1}, s{sT}, v{vE0 + 1}
    ''')
    for j in range(5):
        if j in (2, 4):
            a(f'v_add_u32 v{Rb}, 2048, v{Rb}')
        a(f'ds_read2_b64 {vr(vEW + 20 + 4 * j, 4)}, v{Rb} offset0:{128 * (j & 1)} offset1:{128 * (j & 1) + 4}')
    a(f'''
    v_and_b32 v{vRed}, 3, v{vL}
    v_lshlrev_b32 v{vRed}, 6, v{vRed}
    v_and_b32 v{vRd}, 48, v{vL}
    v_add_u32 v{vRed}, v{vRd}, v{vRed}
    s_lshr_b32 s{sU1}, s{sW}, 2
    s_lshl_b32 s{sU1}, s{sU1}, 8
    s_and_b32 s{sT}, s{sW}, 3
    s_lshl_b32 s{sT}, s{sT}, 2
    s_add_u32 s{sU1}, s{sU1}, s{sT}
    s_add_u32 s{sU1}, s{sU1}, {RED}
    v_add_u32 v{vRed}, s{sU1}, v{vRed}
    v_and_b32 v{vRd}, 0xf0, v{vL16}
    v_bfe_u32 v{vRow}, v0, 2, 6                    ; lane' = (t'>>1)>>1
    v_lshlrev_b32 v{vRow}, 4, v{vRow}
    s_mov_b32 s{sU2}, 0x05040100
    s_mov_b32 s{sU3}, 0x07060302
    v_add_u32 v{vRow}, {REC_G + REC_H2}, v{vRow}
    v_mov_b32 v18, 0xffffff00
    s_mul_i32 s{sU1}, s{sX}, 12
    s_add_u32 s{sU1}, s{sU1}, s{sRi}
    s_mul_i32 s{sU1}, s{sU1}, {PY_STRIDE}
    s_mul_i32 s{sT}, s{sW}, 640
    s_add_u32 s{sU1}, s{sU1}, s{sT}
    ''')
    base_add(sBb, WS, sU1, PY_G - 20 * PY_STRIDE)
    a('s_waitcnt lgkmcnt(0)')
    if KD == 1:
        bar('B7c')
    for j in range(5):
        r0 = vEW + 20 + 4 * j
        for c in range(4):
            a(f'v_perm_b32 v{vEW + 4 * j + c}, v{r0 + 2 + c // 2}, v{r0 + c // 2}, s{sU3 if c & 1 else sU2}')
    for k in range(4):
        a(f'v_mov_b32 v{36 + k}, 0')

    def fw_unpack():
        a(f's_cmp_ge_u32 s{sW}, 4')
        a('s_cbranch_scc1 L_no_fw')
        for u in range(16):
            if u == 8:
                a('s_waitcnt lgkmcnt(0)')
            a(f'ds_read_b64 {vr(vFW + 32 + 2 * u, 2)}, v{vE0 + 1} offset:{1280 * u}')
        a('s_waitcnt lgkmcnt(0)')
        for k in range(32):
            unpack(vFW + 2 * k, vFW + 2 * k + 1, vFW + 32 + k)
        a.label('L_no_fw')
    if not FWL:
        fw_unpack()
    a.label('L_no_ew')
    a(f's_cmp_eq_u32 s{sCand}, 0')
    a('s_cbranch_scc1 L_nobase')
    a(f'''
    v_mov_b32 v20, v{vO}
    v_mov_b32 v21, v{vO + 1}
    v_mov_b32 v22, v{vO + 2}
    v_mov_b32 v23, s{sTag}
    v_mov_b32 v24, v{vO + 3}
    v_mov_b32 v25, v{vO + 4}
    v_mov_b32 v27, s{sTag}
    s_waitcnt vmcnt(0)
    global_store_dwordx4 v{vL16}, v[20:23], {sr(sRec)} offset:{REC_BASE} sc1
    global_store_dwordx4 v{vL16}, v[24:27], {sr(sRec)} offset:{REC_BASE + 1024} sc1
    ''')
    a.label('L_nobase')
    a(f'''
    s_cmp_lt_u32 s{sRi}, 20
    s_cbranch_scc1 L_fin
    v_mov_b32 v{Rb + 2}, {KEYL + 4}
    {'s_barrier' if KD == 2 else ''}
    ''')
    a.label('L_b8')
    fine('e', 'pre-B8')
    a('s_barrier                                   ; B8')
    a(f'''
    ds_read_b32 v{Rb + 3}, v{Rb + 2}
    s_movk_i32 s{sT}, {REC_STRIDE}
    s_waitcnt lgkmcnt(0)
    v_and_b32 v{Rb + 4}, 255, v{Rb + 3}
    v_mad_u32_u24 v{vRow}, v{Rb + 4}, s{sT}, v{vRow}
    ''')
    stamp('B8 done (winner)')
    fine('e', 'B8+')

    def late_out():
        a(f's_cmp_lg_u32 s{sCand}, 0')
        a('s_cbranch_scc1 L_noout2')
        out_row()
        a.label('L_noout2')
        if FWL:
            fw_unpack()
        a(f's_cmp_lg_u32 s{sCand}, 0')
        a('s_cbranch_scc1 L_noout4')
        a('s_waitcnt vmcnt(5)')
        a.label('L_noout3')
        late.append(lambda: (a.label('L_noout4'), a('s_waitcnt vmcnt(0)'), a('s_branch L_noout3')))
    poll([f'global_load_dwordx4 v[20:23], v{vRow}, {sr(WS)} sc1',
          f'global_load_dwordx4 v[24:27], v{vRow}, {sr(WS)} offset:1024 sc1'], [23, 27], [30, 32], empty='word',
         between=late_out, younger=63)
    stamp('row in')
    fine('e', 'row in')
    acc = 36
    for j in range(5):
        for c in (0, 2, 1, 3):
            a(f'v_dot2c_f32_bf16 v{acc + c}, v{vEW + 4 * j + c}, v{20 + j + (j >= 3)}')
    a(f'''
    v_permlane32_swap_b32 v36, v38
    v_permlane32_swap_b32 v37, v39
    v_pk_add_f32 v[36:37], v[36:37], v[38:39]
    v_permlane16_swap_b32 v36, v37
    v_add_f32 v36, v36, v37
    ''')
    for c in ('row_ror:8', 'row_ror:4'):
        dpp('v_add_f32', acc, c)
    a(f'''
    s_mov_b32 exec_lo, 0x000f000f
    s_mov_b32 exec_hi, 0x000f000f
    ds_write_b32 v{vRed}, v{acc}
    s_mov_b64 exec, -1
    s_cmp_ge_u32 s{sW}, 4
    s_waitcnt lgkmcnt(0)
    ''')
    fine('e', 'pre-B9')
    bar('B9')
    fine('e', 'B9')
    a(f'''
    s_cbranch_scc1 L_e_done
    ds_read_b128 v[20:23], v{vRd} offset:{RED}
    ds_read_b128 v[24:27], v{vRd} offset:{RED + 256}
    s_waitcnt lgkmcnt(0)
    v_pk_add_f32 v[20:21], v[20:21], v[22:23]
    v_pk_add_f32 v[24:25], v[24:25], v[26:27]
    v_add_f32 v20, v20, v21
    v_add_f32 v24, v24, v25
    v_mul_f32 v21, 0xbfb8aa3b, v20
    v_exp_f32 v21, v21
    v_mul_f32 v20, v20, v24
    v_add_f32 v21, 1.0, v21
    v_rcp_f32 v21, v21
    v_mul_f32 v20, v20, v21
    ''')
    fine('e', 'gu')
    sG = 8
    for u in range(16):
        a(f'v_readlane_b32 s{sG + u}, v20, {u}')
    for u in range(16):
        for hh in range(2):
            w_ = vr(vFW + 4 * u + 2 * hh, 2)
            g_ = sr(sG + (u & ~1))
            d_ = vr(36 + 2 * hh, 2)
            if u == 0:
                a(f'v_pk_mul_f32 {d_}, {w_}, {g_} op_sel:[0,0] op_sel_hi:[1,0]')
            else:
                a(f'v_pk_fma_f32 {d_}, {w_}, {g_}, {d_} {BC1 if u & 1 else BC0}')
    for k in range(4):
        a(f'v_and_or_b32 v{36 + k}, v{36 + k}, v18, s{sTB + k}')
    a('s_mov_b32 exec_hi, 0xff')
    a(f'global_store_dwordx4 v{vL16}, v[36:39], {sr(sBb)} sc1')
    a('s_mov_b64 exec, -1')
    stamp('PY out')
    fine('e', 'PY out')
    a('s_waitcnt vmcnt(0)')
    a.label('L_e_done')
    bar('B10')
    a.label('L_fin')
    stamp('end')
    fine('e', 'end')
    if FINE:
        a('s_waitcnt lgkmcnt(0)')
    dump_stamps()
    a.label('L_end')
    a('s_endpgm')
    flush_late()


sF1, sF2, sPb, sGw, sWb = 56, 58, 60, 62, 64


def publish():
    a(f'''
    ds_read_b128 v[40:43], v28 offset:{RED}
    ds_read_b128 v[44:47], v28 offset:{RED + 16}
    s_waitcnt lgkmcnt(0)
    v_pk_add_f32 v[40:41], v[40:41], v[42:43]
    v_pk_add_f32 v[44:45], v[44:45], v[46:47]
    v_add_f32 v40, v35, v40
    v_pk_add_f32 v[40:41], v[40:41], v[44:45]
    v_add_f32 v40, v40, v41
    v_and_or_b32 v40, v40, v33, v34
    global_store_dword v{vL4}, v40, {sr(sPb)} sc1
    ''')
    stamp('published', 'H0')


def w_addr():
    a(f'''
    s_mul_i32 s{sU1}, s{sIdx}, 15
    s_min_u32 s{sU1}, s{sU1}, 306
    s_add_u32 s{sT}, s{sU1}, s{sX}
    s_and_b32 s{sT}, s{sT}, 1
    s_sub_u32 s{sU1}, s{sU1}, s{sT}
    s_mul_i32 s{sU0}, s{sX}, 321
    s_add_u32 s{sU1}, s{sU1}, s{sU0}
    s_lshl_b32 s{sU1}, s{sU1}, 1
    v_lshrrev_b32 v90, 1, v{vL}
    v_mul_u32_u24 v90, 5136, v90
    v_lshlrev_b32 v91, 1, v{vL}
    v_xor_b32 v91, v{vL16}, v91
    v_and_b32 v91, 16, v91
    v_add3_u32 v100, v90, v91, s{sU1}
    ''')


def w_gather(arr, lds):
    for n in range(8):
        a(f's_mov_b32 m0, {lds + 1024 * n}')
        a(f'global_load_lds_dwordx4 v100, {sr(arr)}')
        if n < 7:
            a(f'v_add_u32 v100, {32 * 5136}, v100')


def mask_lanes(n):
    if n >= 64:
        return
    if n > 32:
        a(f's_mov_b32 exec_hi, {hex((1 << (n - 32)) - 1)}')
    else:
        a(f's_mov_b64 exec, {hex((1 << n) - 1)}')


def warm_addr_w():
    a(f'''
    s_sub_u32 s{sU0}, s{sRi}, 10
    s_mul_i32 s{sU3}, s{sU0}, 70
    s_movk_i32 s{sU2}, 0x2aab
    s_mul_i32 s{sU1}, s{sX}, 642
    s_movk_i32 s{sT}, 5136
    ''')
    for n in range(2):
        a(f'''
        v_add_u32 v90, s{sU3}, v{vL}
        v_add_u32 v90, {35 * n}, v90
        v_min_u32 v90, 1535, v90
        v_mul_u32_u24 v91, s{sU2}, v90
        v_lshrrev_b32 v91, 16, v91
        v_mul_u32_u24 v92, 6, v91
        v_sub_u32 v92, v90, v92
        v_lshlrev_b32 v92, 7, v92
        v_min_u32 v92, 638, v92
        v_add_u32 v92, s{sU1}, v92
        v_mad_u32_u24 v92, v91, s{sT}, v92
        v_and_b32 v{120 + n}, -4, v92
        ''')


def ffn_parts(slot):
    return [(n, k) for n in range(3) if S_W[n] == slot for k in range(1 if slot == 0 else 2)]


def warm_addr_f(h, slot):
    f, per, lanes = (10, 44, 44) if slot == 0 else (NJ, 96, 48)
    if not ffn_parts(slot):
        return
    a(f'''
    s_sub_u32 s{sU0}, s{sRi}, {f}
    s_mul_i32 s{sU3}, s{sU0}, {per}
    s_mul_i32 s{sU1}, s{sX}, 384
    s_movk_i32 s{sU2}, 0x5556
    s_movk_i32 s{sT}, {3072 - 384}
    s_mul_i32 s{sU0}, s{sX}, 245760
    ''')
    for n, k in ffn_parts(slot):
        d = 130 + 2 * n + k
        a(f'''
        v_add_u32 v90, s{sU3}, v{vL}
        v_add_u32 v90, {lanes * k}, v90
        v_min_u32 v90, 959, v90
        v_add_u32 v90, {960 * (n if n < 2 else h)}, v90
        ''')
        if n < 2:
            a(f'''
            v_mul_u32_u24 v91, s{sU2}, v90
            v_lshrrev_b32 v91, 16, v91
            v_lshl_add_u32 v90, v90, 7, s{sU1}
            v_mad_u32_u24 v{d}, v91, s{sT}, v90
            ''')
        else:
            a(f'v_lshl_add_u32 v{d}, v90, 7, s{sU0}')


def warm_issue(h, slot, sel=None):
    if slot == 0:
        mask_lanes(35)
        for n in range(2):
            a(f'global_load_dword v125, v{120 + n}, {sr(W_R if h else W_I)}')
    ps = ffn_parts(slot) if sel is None else sel
    if ps:
        mask_lanes(44 if slot == 0 else 48)
    for n, k in ps:
        a(f'global_load_dword v125, v{130 + 2 * n + k}, {sr(W_D if n == 2 else (W_G if h else W_U))}')
    a('s_mov_b64 exec, -1')


def e_addr(mat):
    a(f'''
    s_max_u32 s{sU1}, s{sRi}, 20
    s_mul_i32 s{sU0}, s{sX}, 12
    s_add_u32 s{sU0}, s{sU0}, s{sU1}
    s_sub_u32 s{sU0}, s{sU0}, 20
    s_mul_i32 s{sU1}, s{sU0}, 20480
    s_lshl_b32 s{sU0}, s{sU0}, 5
    v_lshrrev_b32 v128, 1, v{vL}
    v_mul_u32_u24 v128, 3072, v128
    v_and_b32 v90, 16, v{vL16}
    v_add_u32 v128, v128, v90
    ''')
    base_add(sF1, mat, sU0)
    base_add(sGw, W_D, sU1, 10240 if mat == W_U else 0)


def if_e(f):
    L = newlabel('ne')
    a(f's_cmp_lt_u32 s{sRi}, 20')
    a(f's_cbranch_scc1 {L}')
    f()
    a.label(L)


def e_gather(half, n0, n1):
    for n in range(n0, n1):
        a(f's_mov_b32 m0, {EW + (n % 4 + 4 * half) * 5120 + (n // 4) * 1024}')
        a(f'global_load_lds_dwordx4 v128, {sr(sF1)}')
        if n < 19:
            a(f'v_add_u32 v128, {32 * 3072}, v128')


def wd_load(half):
    for n in range(10):
        if n % 4 == 0:
            a(f's_mov_b32 m0, {FW + half * 10240 + n * 1024}')
            a(f'v_add_u32 v90, {1024 * n}, v{vL16}')
        a(f'global_load_lds_dwordx4 v90, {sr(sGw)} offset:{1024 * (n % 4)} {INPOL if S_W[2] == 9 else str()}')


def touch_small():
    if 'k' in TCH:
        a(f's_mul_i32 s{sU0}, s{sMe}, {REC_STRIDE}')
        base_add(sBa, WS, sU0, REC_G)
        a(f'''
        s_mov_b64 exec, 0xff
        global_store_dwordx4 v{vL16}, v[20:23], {sr(sBa)} sc1
        s_mov_b64 exec, -1
        ''')
    if 'p' in TCH:
        def f():
            a(f'''
            s_mul_i32 s{sU1}, s{sX}, 12
            s_add_u32 s{sU1}, s{sU1}, s{sRi}
            s_mul_i32 s{sU1}, s{sU1}, {PY_STRIDE}
            ''')
            base_add(sBa, WS, sU1, PY_G - 20 * PY_STRIDE)
            a(f'''
            global_store_dwordx4 v{vL16}, v[20:23], {sr(sBa)} sc1
            global_store_dwordx4 v{vL16}, v[20:23], {sr(sBa)} offset:1024 sc1
            s_mov_b32 exec_hi, 0
            global_store_dwordx4 v{vL16}, v[20:23], {sr(sBa)} offset:2048 sc1
            s_mov_b64 exec, -1
            ''')
        if_e(f)


def finalizer():
    a(f'''
    s_cmp_ge_u32 s{sRi}, 30
    s_cbranch_scc1 L_hx0
    ds_read_b32 v21, v62
    s_mul_i32 s{sU2}, s{sX}, 10
    s_add_u32 s{sU2}, s{sU2}, s{sRi}
    s_sub_u32 s{sU2}, s{sU2}, 20                   ; f
    v_mov_b32 v26, 0
    v_mov_b32 v27, 0
    s_waitcnt lgkmcnt(0)
    v_readfirstlane_b32 s{sU0}, v21
    s_and_b32 s{sU1}, s{sU0}, 255
    s_mul_i32 s{sU1}, s{sU1}, {REC_STRIDE}
    ''')
    base_add(sBa, WS, sU1, REC_G + REC_BASE)
    done = [f'global_load_dwordx4 v[32:35], v26, {sr(sBa)} sc1']
    a(f'''
    v_and_b32 v20, 1, v{vL}
    v_lshrrev_b32 v21, 4, v{vL}
    v_lshl_add_u32 v20, v20, 2, v21
    s_lshl_b32 s{sT}, s{sU2}, 3
    v_add_u32 v20, s{sT}, v20
    s_lshr_b32 s{sCand}, s{sU2}, 4                 ; j
    s_cmp_ge_u32 s{sCand}, 3
    s_cselect_b32 s{sT}, 3, 0
    s_sub_u32 s{sCand}, s{sCand}, s{sT}            ; dword inside the quad
    s_mul_i32 s{sT}, s{sT}, 342
    s_and_b32 s{sT}, s{sT}, 1024
    v_bfe_u32 v26, v20, 1, 6
    v_lshl_add_u32 v26, v26, 4, s{sT}
    {done[0]}
    v_lshlrev_b32 v20, 1, v20                      ; 2d
    v_add_u32 v21, {MODB_L + 3840}, v20
    v_mov_b32 v22, 0
    ds_read_u16_d16_hi v22, v21                    ; gb[d]
    s_and_b32 s{sU1}, s{sU0}, 0x7ff
    s_mul_i32 s{sU1}, s{sU1}, 1280
    ''')
    base_add(sXrow, OUTP, sU1)
    a(f'''
    s_and_b32 s{sU1}, s{sU0}, 0xfffff800
    s_or_b32 s{sU1}, s{sU1}, 0x400
    s_xor_b32 s{sU3}, s{sU1}, 0x80000000
    s_not_b32 s{sT}, s{sU1}
    s_cmp_lt_i32 s{sU1}, 0
    s_cselect_b32 s{sU1}, s{sU3}, s{sT}
    v_mov_b32 v28, s{sU1}
    ''')
    a(f'''
    v_mul_f32 v28, 0xbfb8aa3b, v28
    v_exp_f32 v28, v28
    v_add_f32 v28, 1.0, v28
    v_rcp_f32 v28, v28
    ''')
    a(f'''
    v_lshrrev_b32 v29, 1, v{vL}
    v_mul_u32_u24 v29, {PY_STRIDE}, v29
    v_and_b32 v30, 16, v{vL16}
    v_add_u32 v29, v29, v30
    v_add_u32 v30, {32 * PY_STRIDE}, v29
    v_add_u32 v31, {64 * PY_STRIDE}, v29
    s_lshl_b32 s{sU2}, s{sU2}, 5
    ''')
    base_add(sBb, WS, sU2, PY_G)
    a('s_waitcnt lgkmcnt(0)')
    a('v_mul_f32 v22, v22, v28')
    bar('B9')
    poll(done, [35], [], empty='word', issued=True)
    a(f'''
    s_cmp_eq_u32 s{sCand}, 1
    s_cselect_b64 vcc, -1, 0
    v_cndmask_b32 v27, v32, v33, vcc
    s_cmp_eq_u32 s{sCand}, 2
    s_cselect_b64 vcc, -1, 0
    v_cndmask_b32 v27, v27, v34, vcc
    v_and_b32 v32, 16, v{vL}
    v_lshrrev_b32 v27, v32, v27
    v_lshlrev_b32 v27, 16, v27
    ''')
    bar('B10')
    if PYD:
        a(done[0])
        a('s_waitcnt vmcnt(0)')
    stamp('PY poll', 'H0')
    poll([f'global_load_dwordx4 {vr(36 + 4 * n, 4)}, v{29 + n}, {sr(sBb)} sc1' for n in range(3)],
         list(range(36, 48)), [48, 49], empty='tag')
    a(f'''
    v_pk_add_f32 v[36:37], v[36:37], v[40:41]
    v_pk_add_f32 v[38:39], v[38:39], v[42:43]
    v_pk_add_f32 v[36:37], v[36:37], v[44:45]
    v_pk_add_f32 v[38:39], v[38:39], v[46:47]
    v_permlane32_swap_b32 v36, v38
    v_permlane32_swap_b32 v37, v39
    v_pk_add_f32 v[36:37], v[36:37], v[38:39]
    v_permlane16_swap_b32 v36, v37
    v_add_f32 v36, v36, v37
    ''')
    for c in ('row_ror:8', 'row_ror:4', 'row_ror:2'):
        dpp('v_add_f32', 36, c)
    a(f'''
    v_fma_f32 v36, v36, v22, v27
    v_cvt_pk_bf16_f32 v36, v36, v36
    s_mov_b32 exec_lo, 0x00030003
    s_mov_b32 exec_hi, 0x00030003
    global_store_short v20, v36, {sr(sXrow)} {FINPOL}
    s_mov_b64 exec, -1
    ''')


def helper_tail(h, P, red_load, red_work, modf_load, modf_work):
    bar('BT')
    bar('BP')
    if GLATE:
        a(f's_cmp_lt_u32 s{sRi}, 10')
        a(f's_cbranch_scc1 L_gl{h}')
        bar('B1')
        if h == 0:
            a(f's_cmp_lt_u32 s{sRi}, 30')
            a(f's_cbranch_scc0 L_gl{h}')
            publish()
        a.label(f'L_gl{h}')
    a(f's_cmp_ge_u32 s{sIdx}, {NJ}')
    a(f's_cbranch_scc1 L_idle{h}')
    bar('B2')
    red_load()
    w_gather(W_R if h else W_I, WST + (0 if h else 8192))
    bar('B3')
    a('s_waitcnt vmcnt(0)')
    stamp('W in', P)
    if RE:
        red_work()
    bar('B3b')
    if AL1:
        bar('B3c')
    if h == 0:
        touch_small()
    if not RE:
        red_work()
    bar('B4')
    a('s_waitcnt vmcnt(0)')
    modf_load()
    if EG3:
        if_e(lambda: e_gather(1 - h, 0, EG3))
    bar('B5')
    if h == 0:
        a(f's_cmp_lt_u32 s{sRi}, 20')
        a(f's_waitcnt vmcnt({EG3})')
        a('s_cbranch_scc0 L_h0_m')
        a('s_waitcnt vmcnt(0)')
        a.label('L_h0_m')
    modf_work()
    bar('B5b')
    if AL2:
        bar('B5c')
    bar('B6')
    if_e(lambda: (e_gather(1 - h, EG3, 20), wd_load(1 - h)))
    if h == 0:
        a(f'''
        s_cmp_lg_u32 s2, 8
        s_cbranch_scc1 L_h0_ne
        v_mov_b32 v26, {EPOCH_G}
        s_mov_b64 exec, 1
        global_store_dword v26, v27, {sr(WS)} sc1
        s_mov_b64 exec, -1
        ''')
        a.label('L_h0_ne')
    a.label(f'L_hend{h}')
    a(f'''
    v_mul_u32_u24 v60, {REC_STRIDE}, v{vL}
    v_add_u32 v60, {REC_G + 128 * h * REC_STRIDE}, v60
    v_add_u32 v61, {64 * REC_STRIDE}, v60
    v_mov_b32 v62, {KEYL + 4}
    v_lshlrev_b32 v63, 7, v{vL}
    v_add_u32 v63, {REC_G + REC_H2}, v63
    s_movk_i32 s{sU0}, {REC_STRIDE}
    s_cmp_lt_u32 s{sRi}, 20
    ''')
    bar('B7')
    a('s_waitcnt vmcnt(0)')
    a(f's_cbranch_scc1 L_hx{h}')
    kl = [f'global_load_dwordx2 v[64:65], v60, {sr(WS)} sc1', f'global_load_dwordx2 v[66:67], v61, {sr(WS)} sc1']
    if KP == 1:
        bar('B7b')
    if KD:
        bar('B7c')
    stamp('key poll', P)
    poll(kl, [65, 67], [68, 69], empty='word', between=(lambda: bar('B7b')) if KP == 0 else None)
    a('v_max_u32 v64, v64, v66')
    for c in ('row_ror:8', 'row_ror:4', 'row_ror:2', 'row_ror:1'):
        dpp('v_max_u32', 64, c)
    a(f'''
    s_mov_b32 exec_lo, 0x00010001
    s_mov_b32 exec_hi, 0x00010001
    ds_max_u32 v62, v64
    s_mov_b64 exec, -1
    s_waitcnt lgkmcnt(0)
    ''')
    bar('B8')
    if h == 0:
        finalizer()
    a.label(f'L_hx{h}')
    stamp('end', P)
    dump_stamps(P)
    a('s_endpgm')
    a.label(f'L_idle{h}')
    warm_addr_f(h, 7)
    ps = ffn_parts(7)
    can = [f'global_load_dword v113, v110, {sr(WS)} sc1']
    if h == 1:
        a(f'''
        v_add_u32 v110, s{sIdx}, v{vL}
        v_and_b32 v110, 7, v110
        v_mul_u32_u24 v110, {NJ}, v110
        v_lshrrev_b32 v111, 3, v{vL}
        v_mad_u32_u24 v110, v111, 5, v110
        v_lshlrev_b32 v110, 14, v110
        s_lshl_b32 s{sU0}, s{sMe}, 6
        s_add_u32 s{sU0}, s{sU0}, {T2_G + CANJ * 16384 + 60}
        v_add_u32 v110, s{sU0}, v110
        ''')
        assert CANJ + 5 * max(NCAN // 8 - 1, 0) < NJ
    bar('B2')
    red_load()
    if h == 1:
        mask_lanes(NCAN)
        a(can[0])
        a('s_mov_b64 exec, -1')
    warm_issue(h, 7, ps[:EARLY])
    bar('B3')
    if RE and h == 0:
        a(f's_waitcnt vmcnt({len(ps[:EARLY])})')
        red_work()
        red_work = lambda: None
    bar('B3b')
    ieg = IEG
    if ISEQ == 0:
        warm_issue(h, 7, ps[EARLY:])
        if h == 0:
            a(f's_waitcnt vmcnt({len(ps)})')
            red_work()
            touch_small()
        nd = sum(1 for n, k in ps[EARLY:] if n == 2)
        a(f's_waitcnt vmcnt({nd + (NT if h == 0 else 0)})')
        stamp('warm in', P)
        e_gather(1 - h, 0, MF)
        modf_load()
        e_gather(1 - h, MF, IEG)
        if IWD == 0:
            wd_load(1 - h)
        if h == 0:
            a(f's_waitcnt vmcnt({IEG - MF + 10 * (IWD == 0)})')
        modf_work()
        bar('B5b')
    else:
        assert EARLY == 2 and S_W[0] == 7
        if h == 0:
            a(f's_waitcnt vmcnt({EARLY})')
            red_work()
            touch_small()
        a(f's_waitcnt vmcnt({NT if h == 0 else 0})')
        stamp('warm in', P)
        e_gather(1 - h, 0, 10)
        if ISEQ == 2:
            a('s_waitcnt vmcnt(0)')
            warm_issue(h, 7, ps[EARLY:])
        if h == 0:
            if ISEQ == 1:
                a('s_waitcnt vmcnt(0)')
            modf_load()
            a('s_waitcnt vmcnt(0)')
        modf_work()
        bar('B5b')
        if ISEQ == 1:
            warm_issue(h, 7, ps[EARLY:])
        ieg = max(IEG, 10)
        if ieg > 10:
            a('s_waitcnt vmcnt(0)')
            e_gather(1 - h, 10, ieg)
    a('s_waitcnt vmcnt(0)')
    stamp('ffn in', P)
    if h == 1:
        poll(can, [113], [], mask=NCAN, empty='word')
        stamp('can', P)
    bar('B5c')
    bar('B6')
    e_gather(1 - h, ieg, 20)
    if IWD:
        wd_load(1 - h)
    a(f's_branch L_hend{h}')
    flush_late()


def helper0():
    a.label('L_h0')
    a(f's_mov_b32 s{sHI}, 0xffff0000')
    a(f'''
    v_mov_b32 v20, 0
    v_mov_b32 v21, 0
    v_mov_b32 v22, 0
    v_mov_b32 v23, 0
    v_mov_b32 v28, {KEYL}
    ds_write_b128 v28, v[20:23]
    ''')
    blk_id(sCand)
    warm_addr_w()
    warm_addr_f(0, 0)
    a(f'''
    s_lshl_b32 s{sU2}, s{sCand}, 8
    v_lshlrev_b32 v28, 5, v{vL}
    s_cmp_lt_u32 s{sRi}, 10
    s_waitcnt lgkmcnt(0)
    ''')
    epoch_load()
    if B0 in (1, 2):
        bar('B0')
    a('s_cbranch_scc1 L_h0_s0')
    if B0 == 3:
        bar('B0')
    warm_issue(0, 0)
    a.label('L_h0_s0')
    stamp('kernarg', 'H0')
    base_add(sPb, WS, sU2)
    if 'm' in TCH:
        a(f's_cmp_lt_u32 s{sRi}, 10')
        a('s_cbranch_scc0 L_h0_s2')
        a(f'global_store_dword v{vL4}, v20, {sr(sPb)} sc1')
        a('s_waitcnt vmcnt(0)')
        a.label('L_h0_s2')
    e_addr(W_U)
    w_addr()
    a('s_waitcnt lgkmcnt(0)')
    epoch_tag()
    tag_bytes()
    a(f'''
    v_mov_b32 v27, s{sTag}
    v_lshlrev_b32 v34, 3, v{vL}
    v_add_u32 v29, {MODB_L}, v34
    v_and_b32 v34, 24, v34
    v_bfe_u32 v34, v27, v34, 8
    v_mov_b32 v33, 0xffffff00
    s_sub_u32 s{sU0}, s{sCand}, 40
    s_cmp_lt_u32 s{sU0}, 40
    s_cselect_b32 s{sU1}, 1.0, 0
    s_and_b32 s{sU0}, s{sCand}, 3
    s_cselect_b32 s{sU1}, 0, s{sU1}
    v_mov_b32 v35, s{sU1}
    v_add_u32 v30, {MODF_G}, v{vL16}
    v_add_u32 v31, {MODF_G + 4096}, v{vL16}
    v_add_u32 v32, {MODF_G + 8192}, v{vL16}
    s_cmp_lt_u32 s{sRi}, {10 if GLATE else 30}
    ''')
    if GLATE:
        a('s_cbranch_scc0 L_h0_np')
    bar('B1')
    a('s_cbranch_scc0 L_h0_np')
    publish()
    a(f's_cmp_lt_u32 s{sRi}, 10')
    a('s_cbranch_scc0 L_h0_np')
    a('s_waitcnt vmcnt(0)')
    a.label('L_h0_np')
    red = [f'global_load_dwordx4 v[40:43], v{vL16}, {sr(sPb)} sc1']
    modf = [f'global_load_dwordx4 {vr(40 + 4 * n, 4)}, v{30 + n // 4}, {sr(WS)} offset:{1024 * (n % 4)} sc1' for n in range(10)]

    def in_w1(k):
        L = newlabel('nr')
        a(f'''
        s_sub_u32 s{sT}, s{sRi}, 10
        s_cmp_lt_u32 s{sT}, 20
        s_cbranch_scc0 {L}
        s_and_b32 s{sT}, s{sCand}, 3
        s_cbranch_scc1 {L}
        ''')
        if k == 0:
            a(red[0])
            a.label(L)
            return
        poll(red, [40, 41, 42, 43], [44], empty='tag', issued=True, younger=63)
        a(f'''
        v_mov_b32 v44, v40
        v_mov_b32 v45, v41
        v_mov_b32 v46, v42
        v_mov_b32 v47, v43
        s_lshr_b32 s{sU0}, s{sCand}, 2
        s_sub_u32 s{sT}, s{sU0}, 40
        s_cmp_lt_u32 s{sT}, 10
        s_cselect_b32 s{sU1}, 1.0, 0
        s_lshl_b32 s{sU0}, s{sU0}, 8
        s_add_u32 s{sU0}, s{sU0}, {MODF_G - 20 * 256}
        ''')
        for sw in ('32', '16'):
            for r in range(4):
                a(f'v_permlane{sw}_swap_b32 v{40 + r}, v{44 + r}')
            a('v_pk_add_f32 v[40:41], v[40:41], v[44:45]')
            a('v_pk_add_f32 v[42:43], v[42:43], v[46:47]')
            if sw == '32':
                for r in range(4):
                    a(f'v_mov_b32 v{44 + r}, v{40 + r}')
        a('v_cvt_pk_bf16_f32 v44, v40, v41')
        a('v_cvt_pk_bf16_f32 v45, v42, v43')
        unpack(40, 41, 44)
        unpack(42, 43, 45)
        for r in range(4):
            a(f'v_add_f32 v{40 + r}, s{sU1}, v{40 + r}')
        a(f'''
        v_cvt_pk_bf16_f32 v44, v40, v41
        v_cvt_pk_bf16_f32 v45, v42, v43
        v_mov_b32 v47, s{sTag}
        v_add_u32 v48, s{sU0}, v{vL16}
        s_mov_b64 exec, 0xffff
        global_store_dwordx4 v48, v[44:47], {sr(WS)} sc1
        s_mov_b64 exec, -1
        ''')
        stamp('reduced', 'H0')
        a.label(L)

    def in_w2(k):
        if k == 0:
            for ld in modf:
                a(ld)
            return
        poll(modf, [43 + 4 * n for n in range(10)], list(range(80, 90)), empty='words', issued=True, younger=63)
        for n in range(10):
            a(f'ds_write_b64 v29, {vr(40 + 4 * n, 2)} offset:{512 * n}')
        a('s_waitcnt lgkmcnt(0)')
        stamp('modb in', 'H0')
    helper_tail(0, 'H0', lambda: in_w1(0), lambda: in_w1(2), lambda: in_w2(0), lambda: in_w2(1))


def helper1():
    a.label('L_h1')
    a(f'''
    s_getpc_b64 {sr(sBa)}
    L_pc:
    s_add_u32 s{sBb}, s{sBa}, L_tables-L_pc
    s_addc_u32 s{sBb + 1}, s{sBa + 1}, 0
    ''')

    def tabs(q0, q1):
        for q in range(q0, q1):
            if q % 4 == 0 or q == q0:
                a(f's_mov_b32 m0, {TAB + (q & ~3) * 1024}')
                a(f'v_add_u32 v20, {(q & ~3) * 1024}, v{vL16}')
            a(f'global_load_lds_dwordx4 v20, {sr(sBb)} offset:{1024 * (q % 4)}')

    def tab2():
        tabs(NT1, NTAB)
        a(f'''
        s_mov_b32 m0, {WR_L}
        global_load_lds_dwordx4 v{vL16}, {sr(B_WR)}
        s_mov_b64 exec, 0xffff
        global_load_lds_dwordx4 v{vL16}, {sr(B_WR)} offset:1024
        s_mov_b64 exec, -1
        ''')
        return NTAB - 14 + 2

    a(f's_cmp_lt_u32 s{sRi}, 10')
    a('s_cbranch_scc1 L_h1_a')
    warm_addr_w()
    warm_addr_f(1, 0)
    a('s_waitcnt lgkmcnt(0)')
    epoch_load()
    if B0:
        bar('B0')
    tabs(0, NT1)
    tab2()
    warm_issue(1, 0)
    e_addr(W_G)
    w_addr()
    a('s_waitcnt lgkmcnt(0)')
    epoch_tag()
    if not GLATE:
        bar('B1')
    a(f's_waitcnt vmcnt({min(BGWAIT, 2 + len(ffn_parts(0)))})')
    a('s_branch L_h1_u')
    a.label('L_h1_a')
    if B0 in (1, 2):
        bar('B0')
    w_addr()
    a('s_waitcnt lgkmcnt(0)')
    e_addr(W_G)
    bar('B1')
    tabs(0, NT1)
    tab2()
    a('s_waitcnt vmcnt(0)')
    a.label('L_h1_u')
    stamp('tab in', 'H1')
    nop = lambda: None
    helper_tail(1, 'H1', nop, nop, nop, nop)


prologue()
main_path()
helper0()
helper1()
body = a.finish()

hdr = open(f'cdna_kernels/{NAME}.s.ref').read().split('; Override launch')[0]
T = tables()
tab = []
flat = T.reshape(-1)
for k in range(0, flat.size, 8):
    tab.append('.long ' + ','.join('0x%08x' % v for v in flat[k:k + 8]))

launch = f'; @launch grid=(256,1,1) block=(640,1,1) lds={LDS_BYTES}'
pre_code = pre_kd = ''
if PRE:
    launch = f'; @launch kernel=pre_kernel grid=({PRE},1,1) block=(64,1,1) lds=0\n; @launch kernel={NAME}_kernel grid=(256,1,1) block=(640,1,1) lds={LDS_BYTES}'
    pre_code = '.globl pre_kernel\n.p2align 8\n.type pre_kernel,@function\npre_kernel:\n    s_endpgm\n'
    pre_kd = '''.p2align 6
.amdhsa_kernel pre_kernel
  .amdhsa_next_free_vgpr 8
  .amdhsa_next_free_sgpr 16
  .amdhsa_accum_offset 8
  .amdhsa_group_segment_fixed_size 0
  .amdhsa_kernarg_size 104
  .amdhsa_user_sgpr_count 2
  .amdhsa_user_sgpr_kernarg_segment_ptr 1
  .amdhsa_system_sgpr_workgroup_id_x 1
.end_amdhsa_kernel
'''
src = hdr + f'''{launch}
.amdgcn_target "amdgcn-amd-amdhsa--gfx950"
.text
{pre_code}.globl {NAME}_kernel
.p2align 8
.type {NAME}_kernel,@function
{NAME}_kernel:
{body}
.p2align 8
.type L_tables,@object
L_tables:
''' + '\n'.join(tab) + f'''
.size L_tables, {NTAB * 1024}
.fill (8192 - ((. - {NAME}_kernel) & 8191)) & 8191, 1, 0
L_tables_end:
.section .rodata,"a"
.p2align 6
.amdhsa_kernel {NAME}_kernel
  .amdhsa_next_free_vgpr 168
  .amdhsa_next_free_sgpr 102
  .amdhsa_accum_offset 168
  .amdhsa_group_segment_fixed_size 0
  .amdhsa_kernarg_size 104
  .amdhsa_user_sgpr_count 2
  .amdhsa_user_sgpr_kernarg_segment_ptr 1
  .amdhsa_system_sgpr_workgroup_id_x 1
.end_amdhsa_kernel
{pre_kd}'''
open(OUT, 'w').write(src)
print('wrote', OUT, 'lds', LDS_BYTES, 'lines', len(a.lines), 'nops', a.nnops)
```

```python
import sys, struct
import numpy as np
from asmdsl import Asm

NAME = 'adaLN_cond__spectral_gfnet__moe_arch_mod__prompt'
DIAG = '--diag' in sys.argv or '--dbgdiag' in sys.argv
DBGDIAG = '--dbgdiag' in sys.argv
OUT = [a for a in sys.argv[1:] if not a.startswith('--')]
OUT = OUT[0] if OUT else f'cdna_kernels/{NAME}.s'
SPIN = 60000


def opt(name, default):
    for x in reversed(sys.argv):
        if x.startswith(f'--{name}='):
            return x.split('=', 1)[1]
    return default


PROBE = opt('probe', None)
PROBEWG = int(opt('probewg', 8))
FINE = opt('fine', None)
if PROBE or FINE:
    DIAG = True
PRE = None
INPOL = 'nt'
S_W = [int(x) for x in opt('sw', '770')]
EG3 = int(opt('eg3', 10))
PACE1 = int(opt('pace1', 0))
PACE2 = int(opt('pace2', 0))
PK = opt('pk', '110')
P3FIRST = int(opt('p3first', 1))
WFIRST = int(opt('wfirst', 1))
DR1 = int(opt('dr1', 0))
DR2 = int(opt('dr2', 0))
BGWAIT = int(opt('bgwait', 2))
EARLY = int(opt('early', 2))
MATS = int(opt('mats', 2))
IEG = int(opt('ieg', 16))
IWD = int(opt('iwd', 1))
MF = int(opt('mf', 10))
MR = int(opt('mr', 0))
BLOAD = int(opt('bload', 2))
P2ORD = int(opt('p2ord', 1))
GLATE = int(opt('glate', 0))
B0 = int(opt('b0', 3))
FWL = int(opt('fwl', 0))
KP = int(opt('kp', 1))
PF = int(opt('pf', 0))
XL = int(opt('xl', 0))
WC = int(opt('wc', 0))
KD = int(opt('kd', 0))
ISEQ = int(opt('iseq', 0))
RE = int(opt('re', 1))
FINPOL = opt('finpol', '')
PYD = int(opt('pyd', 0))
TCH = opt('tch', 'mkp')
NT = ('k' in TCH) + 3 * ('p' in TCH)
PKS = int(opt('pks', 1))
P3O = int(opt('p3o', 0))
PRIO = opt('prio', '000')
AL1 = int(opt('al1', 0))
AL2 = int(opt('al2', 0))
OE = int(opt('oe', 1))
BL = int(opt('bl', 0))
PL = int(opt('pl', 1))
AW = int(opt('aw', 1))
W8 = int(opt('w8', 0))
TB2 = int(opt('tb2', 0))
NCAN = int(opt('ncan', 1))
CANJ = int(opt('canj', 12))
NJ = 22
T1S = 8 * NJ * 64 + int(opt('t1pad', 0))
T2S = 16384 + int(opt('t2pad', 256))

MODA_G = 0
MODF_G = 61440
EPOCH_G = 73728
PY_G = 0x20000
PY_STRIDE = 2688
REC_G = 0x80000
REC_STRIDE = 4224
REC_H2 = 128
REC_BASE = 128 + 2048
T1_G = 0x400000
T2_G = 0x800000
DIAG_G = 0xC00000

NTAB = 26
TAB = 0
RED = TAB + NTAB * 1024
KEYL = RED + 2048
XB2 = KEYL + 64
SA = 736
XB1 = XB2 + 20480
MODA_L = XB1 + 16 * SA
MODB_L = MODA_L + 5120
WR_L = MODB_L + 5120
WST = WR_L + 2048
EW = WST + 16384
FW = EW + 40960
STL = FW + 20480
LDS_BYTES = STL + 256
assert LDS_BYTES <= 163840, LDS_BYTES

T_F20C, T_F20S, T_TW1, T_F32A, T_ADR, T_TW3, T_F20I, T_F32B, T_F16, T_TW2 = 0, 1, 2, 6, 10, 11, 15, 18, 22, 24
NT1 = 11


def f2u(x):
    return struct.unpack('<I', struct.pack('<f', float(x)))[0]


def bf(x):
    u = f2u(x)
    return ((u + 0x7FFF + ((u >> 16) & 1)) >> 16) & 0xFFFF


def pk(lo, hi):
    return bf(lo) | (bf(hi) << 16)


ALPHA = {16: 1.1328, 20: 1.4294, 32: 1.62445}


def cs(num, den):
    a = 2 * np.pi * (num % den) / den
    c, s = np.cos(a), np.sin(a)
    if abs(c) < 1e-12: c = 0.0
    if abs(s) < 1e-12: s = 0.0
    al = ALPHA.get(den, 1.0)
    return c * al, s * al


def kaof(x):
    ka = 3 * (x >> 2) + (x & 3)
    return ka if (x & 3) < 3 and ka <= 10 else None


def tables():
    T = np.zeros((NTAB, 64, 4), np.uint32)
    for l in range(64):
        i, g = l & 15, l >> 4
        c8, s8 = [0.0] * 8, [0.0] * 8
        for j in range(5):
            if kaof(i) is not None:
                c, s = cs((4 * j + g) * kaof(i), 20)
                c8[j], s8[j] = c, -s
        for d in range(4):
            T[T_F20C, l, d] = pk(c8[2 * d], c8[2 * d + 1])
            T[T_F20S, l, d] = pk(s8[2 * d], s8[2 * d + 1])
        for t in range(2):
            for r in range(4):
                c, s = cs((8 * g + 2 * r + t) * (kaof(i) or 0), 640)
                T[T_TW1 + 2 * t, l, r] = f2u(c)
                T[T_TW1 + 2 * t + 1, l, r] = f2u(s)
                c, s = cs((2 * i + t) * (kaof(4 * g + r) or 0), 640)
                T[T_TW3 + 2 * t, l, r] = f2u(c)
                T[T_TW3 + 2 * t + 1, l, r] = f2u(s)
        kbof = lambda e: e if e < 16 else 47 - e
        for tile in range(2):
            for ks in range(2):
                for r in range(4):
                    c, s = cs(kbof(2 * i + tile) * (8 * g + 2 * r + ks), 32)
                    T[T_F32A + tile * 2 + ks, l, r] = pk(c, s)
                    c, s = cs((2 * i + tile) * kbof(8 * g + 2 * r + ks), 32)
                    T[T_F32B + tile * 2 + ks, l, r] = pk(c, s)
        ka_ = kaof(i)
        k0 = 0 if ka_ is None else (160 * g + ka_ if g < 2 else 160 * g - 300 - ka_)
        T[T_ADR, l, 0] = 8 * k0
        T[T_ADR, l, 1] = 0x8000 if i < 8 else 0x80000000
        T[T_ADR, l, 2] = 0 if g < 2 else 0x8000
        T[T_ADR, l, 3] = 0x8000 if g < 2 else 0
        for r in range(4):
            c, s = cs(i * (4 * g + r), 16)
            T[T_F16, l, r] = pk(c, s)
            T[T_F16 + 1, l, r] = pk(-s, c)
            c, s = cs(i * (4 * g + r), 256)
            T[T_TW2, l, r] = f2u(c)
            T[T_TW2 + 1, l, r] = f2u(s)
            ka = kaof(4 * g + r)
            if ka is not None:
                a1 = 4 * (i & 3) + (i >> 2)
                c, s = cs(a1 * ka, 20)
                T[T_F20I, l, r] = pk(c, -s)
                c, s = cs((16 + (i >> 2)) * ka, 20)
                if (i & 3) == 0:
                    T[T_F20I + 1, l, r] = pk(c, -s)
                if (i & 3) == 1:
                    T[T_F20I + 2, l, r] = pk(c, -s)
    return T


def vr(a, n=1):
    return f'v{a}' if n == 1 else f'v[{a}:{a + n - 1}]'


def sr(a, n=2):
    return f's{a}' if n == 1 else f's[{a}:{a + n - 1}]'


sW, sX, sIdx, sMe, sT = 3, 4, 5, 6, 7
A_X, W_R, W_I, B_WR, W_G, W_U, W_D = 8, 10, 12, 16, 18, 20, 22
C_, W_MOD, OUTP, DBG, WS = 24, 26, 28, 30, 32
sBa, sBb, sBc = 34, 36, 38
sCnt = 40
sM1B = 41
sU0, sU1, sU2, sU3 = 42, 43, 46, 47
sM7 = 44
sRow = 48
sKey = 49
sV1, sV2 = 50, 51
sHI = 52
sCand = 53
sRec = 56
sTag = 55
sRi = sIdx
sGU = 56
sXrow = 72
sTS = 74

vL, vL16, vL4, vS, vPoll = 1, 2, 3, 4, 5
vM8F, vM8I = 6, 8
vXS = 10
Ra, Rb, RD, Rc = 20, 28, 36, 52
vF32 = 60
vTW = 92
vF20 = 108
vVec = 120
vE0 = 160
vXR = 150


a = Asm()
stamps = {}
NST = 24


def stamp(name, path='M', wait=True):
    if not DIAG or FINE:
        return
    if opt('only', None) and not (name == 'start' or any(name.startswith(x.replace('_', ' ')) for x in opt('only', '').split(','))):
        return
    if PROBE and (path != 'M' or not (name == 'start' or name.startswith(PROBE))):
        return
    lst = stamps.setdefault(path, [])
    if name not in lst:
        lst.append(name)
    k = lst.index(name)
    assert k < NST
    a(f's_memrealtime s[100:101]')
    a('s_waitcnt lgkmcnt(0)')
    a(f's_mov_b32 s{sTS + k}, s100')


fines = []


def fine(group, name):
    if FINE != group:
        return
    if name not in fines:
        fines.append(name)
    k = fines.index(name)
    assert k < 12
    a(f's_memtime {sr(sTS + 2 * k)}')


def dump_stamps(path='M'):
    if not DIAG:
        return
    if PROBE:
        if path != 'M':
            return
        a(f'''
        s_cmp_lg_u32 s2, {PROBEWG}
        s_cbranch_scc1 L_end
        s_cmp_lg_u32 s{sW}, 0
        s_cbranch_scc1 L_end
        ''')
        if PROBE == 'fix':
            a(f's_movk_i32 s{sU0}, 6000')
        elif PROBE == 'xcc':
            a(f's_getreg_b32 s{sU0}, hwreg(HW_REG_XCC_ID)')
            a(f's_and_b32 s{sU0}, s{sU0}, 15')
            a(f's_mul_i32 s{sU0}, s{sU0}, 1000')
            a(f's_add_u32 s{sU0}, s{sU0}, 6000')
        else:
            a(f's_sub_u32 s{sU0}, s{sTS + 1}, s{sTS}')
            a(f's_lshl_b32 s{sU0}, s{sU0}, 4')
            a(f's_add_u32 s{sU0}, s{sU0}, 6000')
            a(f's_min_u32 s{sU0}, s{sU0}, 100000')
        a(f'''
        L_probe:
        s_memrealtime s[100:101]
        s_waitcnt lgkmcnt(0)
        s_sub_u32 s{sU1}, s100, s{sTS}
        s_cmp_lt_u32 s{sU1}, s{sU0}
        s_cbranch_scc1 L_probe
        ''')
        return
    if DBGDIAG:
        if path != 'M':
            return
        a('v_mov_b32 v20, 0')
        a('s_mov_b64 exec, 1')
        a(f's_not_b32 s{sU0}, s{sTS}')
        a(f'v_mov_b32 v22, s{sU0}')
        a(f'global_atomic_umax v20, v22, {sr(DBG)} offset:4 sc1')
        ks = [0] + list(range(2, len(stamps['M'])))
        for n, k in enumerate(ks[:14]):
            a(f'v_mov_b32 v{23 + n}, s{sTS + k}')
            a(f'global_atomic_umax v20, v{23 + n}, {sr(DBG)} offset:{8 + 4 * n} sc1')
        print('dbg slots:', [(2 + n, stamps['M'][k]) for n, k in enumerate(ks[:14])])
        return
    a(f'''
    s_lshl_b32 s{sU0}, s2, 11
    s_lshl_b32 s{sU1}, s{sW}, 7
    s_add_u32 s{sU0}, s{sU0}, s{sU1}
    s_memtime s[100:101]
    ''')
    base_add(sBa, WS, sU0, DIAG_G)
    a('v_mov_b32 v20, 0')
    a('s_mov_b64 exec, 1')
    for k in range(0, NST, 2):
        a(f'v_mov_b32 v22, s{sTS + k}')
        a(f'v_mov_b32 v23, s{sTS + k + 1}')
        a(f'global_store_dwordx2 v20, v[22:23], {sr(sBa)} offset:{4 * k}')
        a('s_nop 1')
    a('s_waitcnt lgkmcnt(0)')
    a('s_sub_u32 s100, s100, s98')
    a('v_mov_b32 v22, s100')
    a(f'global_store_dword v20, v22, {sr(sBa)} offset:112')
    a('s_getreg_b32 s42, hwreg(HW_REG_XCC_ID)')
    a('s_getreg_b32 s43, hwreg(HW_REG_HW_ID)')
    a('v_mov_b32 v22, s42')
    a('v_mov_b32 v23, s43')
    a(f'global_store_dwordx2 v20, v[22:23], {sr(sBa)} offset:120')


def base_add(dst, src, off_s=None, imm=0):
    if off_s is not None:
        if imm:
            a(f's_add_u32 s{sT}, s{off_s}, {imm}')
            off_s = sT
        a(f's_add_u32 s{dst}, s{src}, s{off_s}')
    else:
        a(f's_add_u32 s{dst}, s{src}, {imm}')
    a(f's_addc_u32 s{dst + 1}, s{src + 1}, 0')


lblc = [0]
late = []


def flush_late():
    for f in late:
        f()
    late.clear()


def newlabel(p):
    lblc[0] += 1
    return f'L_{p}_{lblc[0]}'


def poll(loads, regs, tmp, mask=None, empty='eq -1', between=None, younger=0, issued=False):
    L, D, Cc = newlabel('poll'), newlabel('polld'), newlabel('pollc')
    if mask is not None:
        mask_lanes(mask)
    if not issued:
        for ld in loads:
            a(ld)
    a(f's_mov_b32 s{sCnt}, {SPIN}')
    if between is not None:
        between()
    if younger < 63:
        a(f's_waitcnt vmcnt({younger})')
    a.label(Cc)

    def retry():
        a.label(L)
        a(f's_sub_u32 s{sCnt}, s{sCnt}, 1')
        a(f's_cbranch_scc1 {D}')
        for ld in loads:
            a(ld)
        a('s_waitcnt vmcnt(0)')
        a(f's_branch {Cc}')
    late.append(retry)
    if empty == 'tag':
        for n, r in enumerate(regs):
            a(f'v_xor_b32 v{r}, s{sTB + (n & 3)}, v{r}')
        rem = list(regs)
        for c in tmp:
            a(f'v_or3_b32 v{c}, v{rem[0]}, v{rem[1]}, v{rem[2]}')
            rem = rem[3:]
        n = 0
        while len(rem) >= 2:
            c = tmp[n % len(tmp)]
            a(f'v_or3_b32 v{c}, v{c}, v{rem[0]}, v{rem[1]}')
            rem = rem[2:]
            n += 1
        t = tmp[0]
        rem = rem + list(tmp[1:])
        while rem:
            if len(rem) >= 2:
                a(f'v_or3_b32 v{t}, v{t}, v{rem[0]}, v{rem[1]}')
                rem = rem[2:]
            else:
                a(f'v_or_b32 v{t}, v{t}, v{rem[0]}')
                rem = rem[1:]
        a(f'v_and_b32 v{t}, 0xff, v{t}')
        empty = 'ne 0'
    elif empty == 'word':
        if len(regs) == 1:
            t = regs[0]
            empty = f'ne s{sTag}'
        else:
            assert len(regs) == 2
            t = tmp[0]
            a(f'v_xor_b32 v{t}, v{regs[0]}, v{regs[1]}')
            a(f'v_xor_b32 v{tmp[1]}, s{sTag}, v{regs[0]}')
            a(f'v_or_b32 v{t}, v{t}, v{tmp[1]}')
            empty = 'ne 0'
    elif empty == 'words':
        for n, r in enumerate(regs):
            a(f'v_xor_b32 v{tmp[n]}, s{sTag}, v{r}')
        t = tmp[0]
        rem = list(tmp[1:len(regs)])
        while rem:
            if len(rem) >= 2:
                a(f'v_or3_b32 v{t}, v{t}, v{rem[0]}, v{rem[1]}')
                rem = rem[2:]
            else:
                a(f'v_or_b32 v{t}, v{t}, v{rem[0]}')
                rem = rem[1:]
        empty = 'ne 0'
    elif len(regs) == 1:
        t = regs[0]
    else:
        rem = list(regs)
        outs = []
        k = 0
        while len(rem) >= 3 and k < len(tmp):
            a(f'v_max3_u32 v{tmp[k]}, v{rem[0]}, v{rem[1]}, v{rem[2]}')
            outs.append(tmp[k])
            rem = rem[3:]
            k += 1
        rem = outs[1:] + rem
        t = outs[0] if outs else None
        if t is None:
            t = tmp[0]
            a(f'v_max_u32 v{t}, v{rem[0]}, v{rem[1]}')
            rem = rem[2:]
        while rem:
            if len(rem) >= 2:
                a(f'v_max3_u32 v{t}, v{t}, v{rem[0]}, v{rem[1]}')
                rem = rem[2:]
            else:
                a(f'v_max_u32 v{t}, v{t}, v{rem[0]}')
                rem = rem[1:]
    a(f'v_cmpx_{empty.split()[0]}_u32 vcc, {empty.split()[1]}, v{t}')
    a(f's_cbranch_execnz {L}')
    a.label(D)
    a('s_mov_b64 exec, -1')


def epoch_load():
    a(f's_load_dword s{sTag}, {sr(WS)}, {EPOCH_G}')


def epoch_tag():
    a(f'''
    s_and_b32 s{sTag}, s{sTag}, 0x7f7f7f7f
    s_add_u32 s{sTag}, s{sTag}, 0x01010101
    s_or_b32 s{sTag}, s{sTag}, 0x80808080
    ''')


sTB = 68


def tag_bytes():
    for k in range(4):
        a(f's_bfe_u32 s{sTB + k}, s{sTag}, {hex(0x80000 | (8 * k))}')


def dpp(op, r, ctrl, rm='0xf'):
    a(f'{op}_dpp v{r}, v{r}, v{r} {ctrl} row_mask:{rm} bank_mask:0xf')


def wave_sum(regs, dst_s, op='v_add_f32'):
    for c in ('row_ror:8', 'row_ror:4', 'row_ror:2', 'row_ror:1'):
        for r in regs:
            dpp(op, r, c)
    for r in regs:
        dpp(op, r, 'row_bcast:15', '0xa')
    for r in regs:
        dpp(op, r, 'row_bcast:31', '0xc')
    for r, s in zip(regs, dst_s):
        a(f'v_readlane_b32 s{s}, v{r}, 63')


def rbf(dst, src):
    a(f'v_cvt_pk_bf16_f32 v{dst}, {src}, {src}')
    a(f'v_and_b32 v{dst}, s{sHI}, v{dst}')


def unpack(dlo, dhi, src):
    a(f'v_lshlrev_b32 v{dlo}, 16, v{src}')
    a(f'v_and_b32 v{dhi}, s{sHI}, v{src}')


def mfma32(d, x, y, c=None):
    a(f'v_mfma_f32_16x16x32_bf16 {vr(d, 4)}, {vr(x, 4)}, {vr(y, 4)}, {vr(c, 4) if c is not None else 0}')


def mfma16(d, x, y):
    a(f'v_mfma_f32_16x16x16_bf16 {vr(d, 4)}, {vr(x, 2)}, {vr(y, 2)}, 0')


def cmul(tr, ti, re, im, c, s, sign, pk=True, n=4, head=0):
    if not pk:
        for r in range(n):
            a(f'v_mul_f32 v{tr + r}, v{re + r}, v{c + r}')
        for r in range(n):
            a(f'v_mul_f32 v{ti + r}, v{im + r}, v{c + r}')
        for r in range(n):
            if sign > 0:
                a(f'v_fma_f32 v{tr + r}, -v{im + r}, v{s + r}, v{tr + r}')
                a(f'v_fmac_f32 v{ti + r}, v{re + r}, v{s + r}')
            else:
                a(f'v_fmac_f32 v{tr + r}, v{im + r}, v{s + r}')
                a(f'v_fma_f32 v{ti + r}, -v{re + r}, v{s + r}, v{ti + r}')
        return
    nr = 'neg_lo:[1,0,0] neg_hi:[1,0,0]'
    for h in (0, 2):
        if head:
            a(f'v_mul_f32 v{tr + h}, v{re + h}, v{c + h}')
            a(f'v_mul_f32 v{tr + h + 1}, v{re + h + 1}, v{c + h + 1}')
        else:
            a(f'v_pk_mul_f32 {vr(tr + h, 2)}, {vr(re + h, 2)}, {vr(c + h, 2)}')
    for h in (0, 2):
        a(f'v_pk_mul_f32 {vr(ti + h, 2)}, {vr(im + h, 2)}, {vr(c + h, 2)}')
    for h in (0, 2):
        a(f'v_pk_fma_f32 {vr(tr + h, 2)}, {vr(im + h, 2)}, {vr(s + h, 2)}, {vr(tr + h, 2)} {nr if sign > 0 else ""}')
    for h in (0, 2):
        a(f'v_pk_fma_f32 {vr(ti + h, 2)}, {vr(re + h, 2)}, {vr(s + h, 2)}, {vr(ti + h, 2)} {nr if sign < 0 else ""}')


def pack4(d, lo, hi, step=1, n=4):
    for r in range(n):
        a(f'v_cvt_pk_bf16_f32 v{d + r * step}, v{lo + r}, v{hi + r}')


def tab_read(dst, q):
    a(f'ds_read_b128 {vr(dst, 4)}, v{vL16} offset:{TAB + q * 1024}')


def tm(j, t):
    return 4 * t + j if j < 4 else 8 + t


def read_tmajor(dst, vaddr, off):
    o = off // 256
    assert off % 256 == 0 and o + 6 < 256
    for t in range(2):
        a(f'ds_read2st64_b32 {vr(dst + 4 * t, 2)}, v{vaddr + t} offset0:{o} offset1:{o + 2}')
        a(f'ds_read2st64_b32 {vr(dst + 4 * t + 2, 2)}, v{vaddr + t} offset0:{o + 4} offset1:{o + 6}')
    a(f'ds_read_b64 {vr(dst + 8, 2)}, v{vaddr} offset:{off + 2048}')


def silu(dst, src, tmp):
    for d, s, t in zip(dst, src, tmp):
        a(f'v_mul_f32 v{t}, 0xbfb8aa3b, v{s}')
    for t in tmp:
        a(f'v_exp_f32 v{t}, v{t}')
    for t in tmp:
        a(f'v_add_f32 v{t}, 1.0, v{t}')
    for t in tmp:
        a(f'v_rcp_f32 v{t}, v{t}')
    for d, s, t in zip(dst, src, tmp):
        a(f'v_mul_f32 v{d}, v{s}, v{t}')


def swap_reduce8(acc):
    for k in range(4):
        a(f'v_permlane32_swap_b32 v{acc + k}, v{acc + k + 4}')
    a(f'v_pk_add_f32 {vr(acc, 2)}, {vr(acc, 2)}, {vr(acc + 4, 2)}')
    a(f'v_pk_add_f32 {vr(acc + 2, 2)}, {vr(acc + 2, 2)}, {vr(acc + 6, 2)}')
    for k in range(2):
        a(f'v_permlane16_swap_b32 v{acc + k}, v{acc + k + 2}')
    a(f'v_pk_add_f32 {vr(acc, 2)}, {vr(acc, 2)}, {vr(acc + 2, 2)}')


BC0 = 'op_sel:[0,0,0] op_sel_hi:[1,0,1]'
BC1 = 'op_sel:[0,1,0] op_sel_hi:[1,1,1]'


def prologue():
    a(f'''
    s_cmp_ge_u32 s2, 256
    s_cbranch_scc1 L_end
    ''')
    if DIAG:
        for k in range(NST):
            a(f's_mov_b32 s{sTS + k}, 0')
        a('s_memtime s[98:99]')
        for p in ('M', 'H0', 'H1'):
            stamps[p] = ['start']
        stamp('start')
    a(f'''
    s_load_dwordx16 s[8:23], s[0:1], 0
    s_load_dwordx8 s[24:31], s[0:1], 64
    s_load_dwordx2 s[32:33], s[0:1], 96
    v_lshrrev_b32 v20, 6, v0
    s_and_b32 s{sX}, s2, 7
    s_lshr_b32 s{sIdx}, s2, 3
    v_readfirstlane_b32 s{sW}, v20
    v_and_b32 v{vL}, 63, v0
    s_lshl_b32 s{sMe}, s{sX}, 5
    s_add_u32 s{sMe}, s{sMe}, s{sIdx}
    v_lshlrev_b32 v{vL16}, 4, v{vL}
    v_lshlrev_b32 v{vL4}, 2, v{vL}
    s_cmp_eq_u32 s{sW}, 9
    s_cbranch_scc1 L_h1
    s_cmp_eq_u32 s{sW}, 8
    s_cbranch_scc1 L_h0
    s_cmp_eq_u32 s{sRi}, 30
    s_cbranch_scc0 L_nopf
    s_cmp_ge_u32 s{sW}, (L_tables_end-{NAME}_kernel)/8192
    s_cbranch_scc1 L_nopf
    s_getpc_b64 {sr(sBa)}
    L_pc0:
    s_sub_u32 s{sBa}, s{sBa}, L_pc0-{NAME}_kernel
    s_subb_u32 s{sBa + 1}, s{sBa + 1}, 0
    v_lshlrev_b32 v21, 7, v0
    global_load_dword v157, v21, {sr(sBa)}
    L_nopf:
    ''')


def xloads():
    for j in range(5):
        a(f'global_load_dword v{vXR + j}, v156, {sr(A_X)} offset:{256 * j} {INPOL}')


def blk_id(dst):
    a(f'''
    s_cmp_lt_u32 s{sRi}, 10
    s_cselect_b32 s{dst}, 10, 20
    s_cselect_b32 s{sT}, 0, 70
    s_mul_i32 s{dst}, s{dst}, s{sX}
    s_add_u32 s{dst}, s{dst}, s{sT}
    s_add_u32 s{dst}, s{dst}, s{sRi}
    ''')


GV = (130, 142, 48, 56, 158, 159)


def gemv_addr():
    vw, vc, acc, tmp, vo, voc = GV
    blk_id(sU2)
    a(f'''
    v_lshrrev_b32 v{voc}, 3, v{vL}
    v_mad_u32_u24 v{voc}, v20, 20, v{voc}
    v_and_b32 v21, 3, s{sU2}
    v_mul_u32_u24 v21, 160, v21
    v_add_u32 v{voc}, v{voc}, v21
    v_lshrrev_b32 v21, 2, s{sU2}
    v_and_b32 v{vo}, 0x70, v{vL16}
    v_lshl_add_u32 v{vo}, v21, 7, v{vo}
    v_mul_u32_u24 v21, 7680, v{voc}
    v_add_u32 v{vo}, v{vo}, v21
    v_lshlrev_b32 v{voc}, 1, v{voc}
    v_lshl_add_u32 v156, v20, 8, s{sMe}
    v_mul_u32_u24 v156, 1280, v156
    v_add_u32 v156, v156, v{vL4}
    ''')
    for k in range(4):
        a(f'v_mov_b32 v{vw + 8 + k}, 0')
    a(f'v_mov_b32 v{vc + 2}, 0')


def gemv_issue():
    vw, vc, acc, tmp, vo, voc = GV
    def cl_():
        for j in range(3):
            if j == 2:
                a('s_mov_b32 exec_hi, 0')
            a(f'global_load_ushort v{vc + j}, v{voc}, {sr(C_)} offset:{16 * j}')
        a('s_mov_b64 exec, -1')

    def wl_():
        for j in range(3):
            if j == 2:
                a('s_mov_b32 exec_hi, 0')
            a(f'global_load_dwordx4 {vr(vw + 4 * j, 4)}, v{vo}, {sr(W_MOD)} {INPOL}')
            if j < 2:
                a(f'v_add_u32 v{vo}, {8 * 7680}, v{vo}')
        a('s_mov_b64 exec, -1')
    for f in ((wl_, cl_) if WC else (cl_, wl_)):
        f()


def gemv_compute(role, after):
    nj = 3
    vw, vc, acc, tmp, vo, voc = GV
    if role == 'B':
        acc = 150
    a(f's_waitcnt vmcnt({after if WC else nj + after})')
    stamp('c in')
    cs_ = [vc + j for j in range(nj)]
    for c in cs_:
        a(f'v_lshlrev_b32 v{c}, 16, v{c}')
    silu(cs_, cs_, [tmp + j for j in range(nj)])
    sc = [(145, 146), (147, 148), (149, 59)]
    for c, s in zip(cs_, sc):
        a(f'v_cvt_pk_bf16_f32 v{s[0]}, v{c}, 0')
    for s in sc:
        a(f'v_lshlrev_b32 v{s[1]}, 16, v{s[0]}')
    a(f'''
    v_and_b32 v{vo}, 7, v{vL}
    v_lshlrev_b32 v{vo}, 8, v{vo}
    v_and_b32 v{voc}, 48, v{vL}
    v_lshl_add_u32 v{vo}, v{voc}, 2, v{vo}
    s_lshl_b32 s{sT}, s{sW}, 2
    s_add_u32 s{sT}, s{sT}, {RED}
    v_add_u32 v{vo}, s{sT}, v{vo}
    ''')
    for k in range(8):
        a(f'v_mov_b32 v{acc + k}, 0')
    for j in range(nj):
        a(f's_waitcnt vmcnt({nj - 1 - j + after})')
        for k in (0, 4, 1, 5, 2, 6, 3, 7):
            a(f'v_dot2c_f32_bf16 v{acc + k}, v{vw + 4 * j + k // 2}, v{sc[j][k & 1]}')
    stamp('w in')
    swap_reduce8(acc)
    for c in ('row_ror:8',):
        dpp('v_add_f32', acc, c)
        dpp('v_add_f32', acc + 1, c)
    a(f'''
    s_mov_b32 exec_lo, 0x00ff00ff
    s_mov_b32 exec_hi, 0x00ff00ff
    ds_write2_b32 v{vo}, v{acc}, v{acc + 1} offset0:0 offset1:8
    s_mov_b64 exec, -1
    s_waitcnt lgkmcnt(0)
    ''')


def m8(dst, inverse):
    t0, t1, t2, t3 = 20, 21, 22, 23
    a(f'v_lshrrev_b32 v{t0}, 4, v{vL}           ; g')
    if not inverse:
        a(f'''
        v_bfe_u32 v{t1}, v{vL}, 2, 2
        v_bfe_u32 v{t2}, v{vL}, 1, 1
        v_lshl_add_u32 v{t1}, v{t2}, 2, v{t1}
        v_lshlrev_b32 v{t0}, 9, v{t0}
        v_add_u32 v{t0}, s{sMe}, v{t0}
        v_mul_u32_u24 v{t2}, v{t0}, v{t1}
        v_lshl_add_u32 v{t3}, v{t1}, 8, v{t2}
        ''')
    else:
        a(f'''
        v_bfe_u32 v{t1}, v{vL}, 1, 3
        v_lshlrev_b32 v{t1}, 8, v{t1}
        v_add_u32 v{t1}, s{sMe}, v{t1}
        v_mul_u32_u24 v{t2}, v{t0}, v{t1}
        v_xor_b32 v{t0}, 4, v{t0}
        v_mul_u32_u24 v{t3}, v{t0}, v{t1}
        v_sub_u32 v{t2}, 0, v{t2}
        v_sub_u32 v{t3}, 0, v{t3}
        ''')
    a(f'''
    v_and_b32 v{t0}, 1, v{vL}
    v_lshl_add_u32 v{t2}, v{t0}, 9, v{t2}
    v_lshl_add_u32 v{t3}, v{t0}, 9, v{t3}
    v_and_b32 v{t2}, 0x7ff, v{t2}
    v_and_b32 v{t3}, 0x7ff, v{t3}
    v_cvt_f32_u32 v{t2}, v{t2}
    v_cvt_f32_u32 v{t3}, v{t3}
    v_mul_f32 v{t2}, 0x3a000000, v{t2}
    v_mul_f32 v{t3}, 0x3a000000, v{t3}
    v_cos_f32 v{t0}, v{t2}
    v_sin_f32 v{t2}, v{t2}
    v_cos_f32 v{t1}, v{t3}
    v_sin_f32 v{t3}, v{t3}
    v_cvt_pk_bf16_f32 v{dst}, v{t0}, v{t2}
    v_cvt_pk_bf16_f32 v{dst + 1}, v{t1}, v{t3}
    ''')


INV640 = hex(f2u(1.0 / 640))
EPS = hex(f2u(1e-5))


def rstd_chain(var, out):
    rbf(out, f'v{var}')
    a(f'v_add_f32 v{out}, {EPS}, v{out}')
    rbf(out, f'v{out}')
    a(f'v_sqrt_f32 v{out}, v{out}')
    rbf(out, f'v{out}')
    a(f'v_rcp_f32 v{out}, v{out}')


def sum10(dst2, x):
    a(f'v_pk_add_f32 {vr(dst2, 2)}, {vr(x, 2)}, {vr(x + 2, 2)}')
    for h in (4, 6, 8):
        a(f'v_pk_add_f32 {vr(dst2, 2)}, {vr(dst2, 2)}, {vr(x + h, 2)}')
    a(f'v_add_f32 v{dst2}, v{dst2}, v{dst2 + 1}')


def dot10(dst2, x, y):
    a(f'v_pk_mul_f32 {vr(dst2, 2)}, {vr(x, 2)}, {vr(y, 2)}')
    for h in (2, 4, 6, 8):
        a(f'v_pk_fma_f32 {vr(dst2, 2)}, {vr(x + h, 2)}, {vr(y + h, 2)}, {vr(dst2, 2)}')
    a(f'v_add_f32 v{dst2}, v{dst2}, v{dst2 + 1}')


def prio(k, on):
    if PRIO[k] == '0':
        return
    if not on:
        a('s_setprio 0')
        return
    L = newlabel('pr')
    a(f's_cmp_lt_u32 s{sW}, 4')
    a(f's_cbranch_scc1 {L}')
    a('s_setprio 1')
    a.label(L)


def bar(n):
    a(f's_barrier                                   ; {n}')


def tpoll(loads, lanes_s=None, between=None):
    L, D, Cc = newlabel('poll'), newlabel('polld'), newlabel('pollc')
    if lanes_s:
        a(f's_mov_b64 exec, {lanes_s}')
    for ld in loads:
        a(ld)
    if lanes_s:
        a('s_mov_b64 exec, -1')
    a(f's_mov_b32 s{sCnt}, {SPIN}')
    if between is not None:
        between()
    a('s_waitcnt vmcnt(0)')
    a.label(Cc)
    a(f'''
    v_cmp_ne_u32 vcc, s{sTag}, v{Ra + 3}
    v_cmp_ne_u32 {sr(sBc)}, s{sTag}, v{Ra + 7}
    s_or_b64 vcc, vcc, {sr(sBc)}
    s_and_b64 vcc, vcc, {sr(sM8)}
    s_cbranch_scc1 {L}
    ''')
    a.label(D)

    def retry():
        a.label(L)
        a(f'''
        s_sub_u32 s{sCnt}, s{sCnt}, 1
        s_cbranch_scc1 {D}
        s_lshr_b64 {sr(sBc)}, vcc, 1
        s_or_b64 vcc, vcc, {sr(sBc)}
        s_lshr_b64 {sr(sBc)}, vcc, 2
        s_or_b64 exec, vcc, {sr(sBc)}
        ''')
        for ld in loads:
            a(ld)
        a('s_mov_b64 exec, -1')
        a('s_waitcnt vmcnt(0)')
        a(f's_branch {Cc}')
    late.append(retry)


sM8, sLn, sM3 = 62, 64, 66
vSg0, vSg1, vPair, vPairX = vE0 + 1, vE0 + 2, vE0 + 5, vM8F + 1


def f32_expand(q0, m0, m1):
    for tile in range(2):
        for k in range(8):
            b = vF32 + 16 * tile + k
            a(f'v_alignbit_b32 v{b + 8}, v{b}, v{b}, 16')
            a(f'v_xor_b32 v{b + 8}, v{m1}, v{b + 8}')
            if m0 is not None:
                a(f'v_xor_b32 v{b}, v{m0}, v{b}')


def f32_read(q0):
    for tile in range(2):
        for ks in range(2):
            tab_read(vF32 + 16 * tile + 4 * ks, q0 + 2 * tile + ks)


def main_path():
    vZ, vSA, vCA = vVec, vVec + 10, vVec + 20
    gemv_addr()
    a(f's_cmp_lt_u32 s{sRi}, 10')
    a('s_waitcnt lgkmcnt(0)')
    stamp('kernarg')
    a('s_cbranch_scc0 L_x')
    gemv_issue()
    if XL == 1:
        xloads()
    a.label('L_x')
    if XL == 0:
        xloads()
    if BLOAD == 0:
        a(f's_sub_u32 s{sT}, s{sRi}, 10')
        a(f's_cmp_lt_u32 s{sT}, 20')
        a('s_cbranch_scc0 L_setup')
        gemv_issue()
        a.label('L_setup')
    epoch_load()
    a(f'''
    s_mov_b32 s{sHI}, 0xffff0000
    s_lshl_b32 s{sRow}, s{sW}, 8
    s_add_u32 s{sKey}, s{sRow}, s{sMe}
    s_mul_i32 s{sRow}, s{sKey}, 1280
    ''')
    if B0 == 1:
        bar('B0')
    m8(vM8F, False)
    m8(vM8I, True)
    a(f'''
    v_bfe_u32 v20, v{vL}, 2, 2                    ; cs
    v_and_b32 v21, 48, v{vL16}                    ; part*16
    v_lshrrev_b32 v22, 4, v{vL}                   ; g
    v_lshl_add_u32 v23, v22, 5, v20               ; 32g + cs
    v_mul_u32_u24 v{vPoll}, {T1S}, v23
    v_add_u32 v{vPoll}, v{vPoll}, v21
    v_mul_u32_u24 v23, 80, v23
    s_mul_i32 s{sT}, s{sW}, 320
    s_add_u32 s{sT}, s{sT}, {XB2}
    v_add3_u32 v{vE0 + 4}, v23, v21, s{sT}        ; staging address
    v_mul_u32_u24 v{vS}, {NJ * 64}, v22
    v_and_b32 v23, 0xf0, v{vL16}
    v_add_u32 v{vS}, v{vS}, v23
    v_lshlrev_b32 v{vE0}, 3, v{vL}                ; 8*lane
    v_mul_u32_u24 v22, {4 * SA}, v22
    v_mul_u32_u24 v20, 120, v20
    v_lshl_add_u32 v20, v21, 1, v20
    s_min_u32 s{sT}, s{sW}, 5
    s_mul_i32 s{sT}, s{sT}, 480
    s_add_u32 s{sT}, s{sT}, {XB1}
    v_add3_u32 v{vPair}, v20, v22, s{sT}
    s_mov_b32 s{sM7}, 0x77777777
    s_mov_b32 s{sM7 + 1}, 0x77777777
    s_mov_b32 s{sM8}, 0x88888888
    s_mov_b32 s{sM8 + 1}, 0x88888888
    s_mov_b32 s{sM3}, 0x37773777
    s_mov_b32 s{sM3 + 1}, 0x37773777
    s_cmp_eq_u32 s{sW}, 5
    s_cselect_b32 s{sLn}, 0x00ff00ff, -1
    s_mov_b32 s{sLn + 1}, s{sLn}
    ''')
    if B0 == 2:
        bar('B0')
    a(f's_cmp_lt_u32 s{sRi}, 10')
    if XL == 2:
        xloads()
    a('s_cbranch_scc0 L_na')
    gemv_compute('A', 5)
    bar('B1')
    a('s_waitcnt vmcnt(0)')
    a('s_branch L_ln1')
    a.label('L_na')
    if XL == 1:
        xloads()
    a(f's_cmp_lt_u32 s{sRi}, 30')
    if BLOAD == 1:
        a('s_waitcnt vmcnt(0)')
        a('s_cbranch_scc0 L_ln1')
        gemv_issue()
    else:
        if BLOAD == 2:
            a('s_cbranch_scc0 L_nb')
            gemv_issue()
            a.label('L_nb')
        if B0 == 3:
            bar('B0')
        a('s_waitcnt vmcnt(6)')
        a('s_cbranch_scc1 L_ln1')
        a('s_waitcnt vmcnt(0)')
    a.label('L_ln1')
    stamp('x in')
    for j in range(5):
        unpack(vXS + tm(j, 0), vXS + tm(j, 1), vXR + j)
    sum10(24, vXS)
    wave_sum([24], [sU0])
    a(f'v_mov_b32 v24, {INV640}')
    a(f'v_mul_f32 v26, s{sU0}, v24                ; mean')
    rbf(28, 'v26')
    a(f'v_readfirstlane_b32 s{sM1B}, v28')
    for h in range(0, 10, 2):
        a(f'v_pk_add_f32 {vr(vXS + h, 2)}, {vr(vXS + h, 2)}, v[28:29] op_sel:[0,0] op_sel_hi:[1,0] neg_lo:[0,1] neg_hi:[0,1]')
    dot10(30, vXS, vXS)
    wave_sum([30], [sU0])
    a(f'''
    v_sub_f32 v26, v26, v28
    v_mul_f32 v26, v26, v26
    v_fma_f32 v26, s{sU0}, v24, -v26
    ''')
    rstd_chain(26, 27)
    for j in range(5):
        for t in range(2):
            a(f'v_mul_f32 v{vZ + 2 * j + t}, v27, v{vXS + tm(j, t)}')
    a(f'''
    v_mov_b32 v23, 0
    v_mov_b32 v27, 0
    s_waitcnt lgkmcnt(0)
    ''')
    epoch_tag()
    tag_bytes()
    def late_gemv(after):
        L1, L2 = newlabel('lg'), newlabel('lg')
        a(f'''
        s_cmp_lt_u32 s{sRi}, 10
        s_cbranch_scc1 {L2}
        s_cmp_lt_u32 s{sRi}, 30
        s_cbranch_scc0 {L1}
        ''')
        gemv_compute('B', after)
        a.label(L1)
        bar('B1')
        a.label(L2)
    if not GLATE:
        late_gemv(0)
    a(f'''
    s_mul_i32 s{sU0}, s{sMe}, {T1S}
    s_lshl_b32 s{sU1}, s{sW}, 8
    s_add_u32 s{sU0}, s{sU0}, s{sU1}
    ''')
    base_add(sBa, WS, sU0, T1_G)
    base_add(sBb, WS, sU0, T1_G + 4 * NJ * 64)
    a(f'''
    v_subrev_u32 v28, 64, v0                      ; u
    v_lshrrev_b32 v29, 4, v28
    v_lshlrev_b32 v29, 10, v29
    v_and_b32 v30, 0xf0, v{vL16}
    v_add_u32 v29, v29, v30
    v_cmp_le_u32 vcc, 160, v28
    v_mov_b32 v31, {8 - 160 * 32}
    v_cndmask_b32 v31, 0, v31, vcc
    s_mov_b32 s{sU2}, {MODA_L}
    v_lshlrev_b32 v28, 5, v28
    v_add3_u32 v28, v28, v31, s{sU2}
    v_add_u32 v{vE0 + 3}, s{sU2}, v{vL16}
    s_sub_u32 s{sT}, s{sW}, 1
    s_cmp_lt_u32 s{sT}, 5
    ''')
    bar('BT')
    stamp('poll start')
    def p1_tabs(after=4):
        bar('BP')
        tab_read(vF20, T_F20C)
        tab_read(vF20 + 4, T_F20S)
        for q in range(4):
            tab_read(vTW + 4 * q, T_TW1 + q)
        f32_read(T_F32A)
        tab_read(32, T_ADR)
        a(f'''
        s_lshr_b32 s{sU1}, s{sW}, 1
        s_mul_i32 s{sU1}, s{sU1}, {4 * SA}
        s_and_b32 s{sT}, s{sW}, 1
        s_lshl_b32 s{sT}, s{sT}, 2
        s_add_u32 s{sU1}, s{sU1}, s{sT}
        s_add_u32 s{sU1}, s{sU1}, {XB1}
        s_waitcnt lgkmcnt(0)
        v_add_u32 v{vSg0}, s{sU1}, v32
        v_add_u32 v{vSg1}, 160, v{vSg0}
        ''')
        f32_expand(T_F32A, None, 33)
        if GLATE:
            late_gemv(after)
    a('s_cbranch_scc1 L_mpoll')
    p1_tabs(0)
    a('s_branch L_b2')
    a.label('L_mpoll')
    poll([f'global_load_dwordx4 {vr(36 + 4 * p, 4)}, v29, {sr(WS)} offset:{256 * p} sc1' for p in range(4)],
         list(range(36, 52)), [52, 53, 54], empty='tag', between=p1_tabs)
    a(f'''
    v_pk_add_f32 v[36:37], v[36:37], v[40:41]
    v_pk_add_f32 v[38:39], v[38:39], v[42:43]
    v_pk_add_f32 v[44:45], v[44:45], v[48:49]
    v_pk_add_f32 v[46:47], v[46:47], v[50:51]
    v_pk_add_f32 v[36:37], v[36:37], v[44:45]
    v_pk_add_f32 v[38:39], v[38:39], v[46:47]
    ''')
    if MR:
        a('v_cvt_pk_bf16_f32 v40, v36, v37')
        a('v_cvt_pk_bf16_f32 v41, v38, v39')
        unpack(36, 37, 40)
        unpack(38, 39, 41)
    a(f'ds_write2_b64 v28, v[36:37], v[38:39] offset0:0 offset1:2')
    a.label('L_b2')
    stamp('poll end')
    fine('p1', 'pre-B2')
    a('s_waitcnt lgkmcnt(0)')
    a('s_barrier                                   ; B2')
    stamp('B2 done (mod ready)')
    fine('p1', 'B2')
    assert MODA_L % 16 == 0
    for j in range(5):
        a(f'ds_read_b128 {vr(vSA + 4 * j, 4)}, v{vE0 + 3} offset:{1024 * j}')
    for j in range(5):
        a(f's_waitcnt lgkmcnt({4 - j})')
        for t in range(2):
            a(f'v_fmac_f32 v{vSA + 4 * j + t}, v{vZ + 2 * j + t}, v{vSA + 4 * j + 2 + t}')
        if j in (1, 3):
            for t in range(2):
                a(f'v_cvt_pk_bf16_f32 v{Ra + 4 * t + j // 2}, v{vSA + 4 * j - 4 + t}, v{vSA + 4 * j + t}')
    for t in range(2):
        a(f'v_cvt_pk_bf16_f32 v{Ra + 4 * t + 2}, v{vSA + 16 + t}, 0')
    fine('p1', 'h packed')
    for t in range(2):
        mfma32(RD + 8 * t, Ra + 4 * t, vF20)
        mfma32(RD + 8 * t + 4, Ra + 4 * t, vF20 + 4)
    fine('p1', 'mfma1 issued')
    for t, tmp in ((0, Rb), (1, Rc)):
        cmul(tmp, tmp + 4, RD + 8 * t, RD + 8 * t + 4, vTW + 8 * t, vTW + 8 * t + 4, -1, pk=PK[0] == '1' or (PK[0] == '2' and t == 1))
        pack4(Ra + 4 * t, tmp, tmp + 4)
    fine('p1', 'twiddled')
    for u in range(2):
        for ks in range(2):
            for e in range(2):
                d = RD + 8 * u + 4 * e
                mfma32(d, vF32 + 16 * u + 8 * e + 4 * ks, Ra + 4 * ks, d if ks else None)
    fine('p1', 'mfma2 issued')
    a(f's_mov_b64 exec, {sr(sM3)}')
    for u in range(2):
        pack4(Rb + 4 * u, RD + 8 * u, RD + 8 * u + 4)
        for r in (0, 2):
            a(f'ds_write2_b32 v{vSg1 if u else vSg0}, v{Rb + 4 * u + r}, v{Rb + 4 * u + r + 1} offset0:{80 * r} offset1:{80 * r + 80}')
    a('s_mov_b64 exec, -1')
    a(f'v_mov_b32 v{Rc + 3}, s{sTag}')
    a(f'v_mov_b32 v{Rc + 7}, s{sTag}')
    a(f's_cmp_ge_u32 s{sW}, 6')
    fine('p1', 'lds written')
    a('s_waitcnt lgkmcnt(0)')
    fine('p1', 'pre-B3')
    fine('x1', 'pre-B3')
    bar('B3')
    fine('p1', 'B3')
    fine('x1', 'B3')
    a('s_cbranch_scc1 L_t1done')
    for n in (3, 0, 1, 2):
        a(f'ds_read_b64 {vr(Ra + 2 * n, 2)}, v{vPair} offset:{8 * n}')
    for k, n in enumerate((3, 0, 1, 2)):
        a(f's_waitcnt lgkmcnt({3 - k})')
        mfma16(RD + 4 * n, vM8F, Ra + 2 * n)
    fine('p1', 'r8 issued')
    a(f's_mov_b64 exec, {sr(sM7)}')
    for j in range(2):
        a(f'v_cvt_pk_bf16_f32 v{Rc + 4 * j + 3}, v{RD + 12 + 2 * j}, v{RD + 12 + 2 * j + 1}')
    a(f's_mov_b64 exec, {sr(sLn)}')
    for j in range(2):
        for n in range(3):
            a(f'v_cvt_pk_bf16_f32 v{Rc + 4 * j + n}, v{RD + 4 * n + 2 * j}, v{RD + 4 * n + 2 * j + 1}')
        a(f'global_store_dwordx4 v{vS}, {vr(Rc + 4 * j, 4)}, {sr(sBb if j else sBa)} sc1')
    a('s_mov_b64 exec, -1')
    a.label('L_t1done')
    stamp('T1 stored')
    fine('p1', 'stored')
    fine('x1', 'stored')

    def p3_mats():
        for q in range(3):
            tab_read(vF20 + 4 * q, T_F20I + q)
        f32_read(T_F32B)
        tab_read(40, T_ADR)
        a('s_waitcnt lgkmcnt(0)')
        f32_expand(T_F32B, 42, 43)
    a(f's_cmp_ge_u32 s{sIdx}, {NJ}')
    a('s_cbranch_scc1 L_idle')
    late.append(lambda: (a.label('L_idle'), bar('B3b'), p3_mats() if MATS else None, a('s_branch L_p3prep')))
    if MATS == 1:
        p3_mats()
    vWr = vVec
    for k in range(16):
        a(f'v_mov_b32 v{vWr + k}, 0')
    SC = 2.0 / (2048 * 640) / (ALPHA[16] ** 4 * ALPHA[20] ** 2 * ALPHA[32] ** 2)
    a(f'''
    v_and_b32 v36, 15, v{vL}
    v_and_b32 v37, 48, v{vL}
    v_lshl_add_u32 v36, v37, 2, v36               ; 64g + i
    v_mul_u32_u24 v{vE0 + 3}, 80, v36
    s_lshl_b32 s{sU1}, s{sW}, 3
    s_add_u32 s{sU1}, s{sU1}, {XB2}
    v_add_u32 v{vE0 + 3}, s{sU1}, v{vE0 + 3}
    v_lshlrev_b32 v36, 5, v36
    v_add_u32 v36, {WST}, v36
    v_and_b32 v39, 4, v{vL}
    v_lshlrev_b32 v39, 2, v39
    v_lshlrev_b32 v{vS}, 7, v37
    v_and_b32 v37, 0xf0, v{vL16}
    v_add_u32 v{vS}, v{vS}, v37
    s_mul_i32 s{sU0}, s{sX}, {NJ}
    s_add_u32 s{sU0}, s{sU0}, s{sIdx}
    s_lshl_b32 s{sU1}, s{sU0}, 6
    s_mul_i32 s{sT}, s{sW}, {4 * T1S}
    s_add_u32 s{sU1}, s{sU1}, s{sT}
    s_mul_i32 s{sU0}, s{sU0}, {T2S}
    s_lshl_b32 s{sT}, s{sW}, 8
    s_add_u32 s{sU0}, s{sU0}, s{sT}
    ''')
    base_add(sBa, WS, sU1, T1_G)
    base_add(sBb, WS, sU1, T1_G + 128 * T1S)
    base_add(58, WS, sU0, T2_G)
    base_add(60, WS, sU0, T2_G + 8192)

    def w_setup(parts=(0, 1)):
      if 0 in parts:
        for q in range(2):
            tab_read(vTW + 4 * q, T_F16 + q)
            tab_read(vTW + 8 + 4 * q, T_TW2 + q)
        a(f'''
        s_mul_i32 s{sU0}, s{sIdx}, 15
        s_min_u32 s{sU1}, s{sU0}, 306
        s_add_u32 s{sU2}, s{sU1}, s{sX}
        s_and_b32 s{sU2}, s{sU2}, 1
        s_sub_u32 s{sU1}, s{sU1}, s{sU2}
        s_lshl_b32 s{sT}, s{sW}, 1
        s_add_u32 s{sU0}, s{sU0}, s{sT}
        ''')
      if True:
        for s in parts:
            gam = sU3
            a(f'''
            s_add_u32 s{sU2}, s{sU0}, {s}
            s_sub_u32 s{sT}, s{sU2}, s{sU1}
            s_min_u32 s{sT}, s{sT}, 15
            s_lshl_b32 s{sT}, s{sT}, 1
            v_xor_b32 v37, s{sT}, v39
            v_add_u32 v37, v37, v36
            ''')
            for arr in range(2):
                for r in range(4):
                    a(f'ds_read_u16_d16_hi v{vWr + 8 * s + 4 * arr + r}, v37 offset:{arr * 8192 + r * 512}')
            a(f'''
            s_mul_i32 s{sT}, s{sU2}, 0x199a
            s_lshr_b32 s{sT}, s{sT}, 16
            s_mul_i32 s{sT}, s{sT}, 10
            s_mov_b32 s{gam}, {hex(f2u(SC))}
            s_cmp_eq_u32 s{sT}, s{sU2}
            s_cselect_b32 s{gam}, {hex(f2u(SC / 2))}, s{gam}
            s_waitcnt lgkmcnt(0)
            ''')
            for r in range(8):
                a(f'v_mul_f32 v{vWr + 8 * s + r}, s{gam}, v{vWr + 8 * s + r}')

    tl = [f'global_load_dwordx4 {vr(Ra, 4)}, v{vPoll}, {sr(sBa)} sc1', f'global_load_dwordx4 {vr(Ra + 4, 4)}, v{vPoll}, {sr(sBb)} sc1']
    fine('x1', 'pre-B3b')
    bar('B3b')
    fine('x1', 'B3b')
    if WFIRST:
        w_setup((0, 1) if WFIRST == 1 else (0,))
    fine('x1', 'wsetup')
    if DR1:
        a('s_waitcnt vmcnt(0)')
    if AL1:
        bar('B3c')
    fine('x1', 'drained')
    if PACE1:
        a(f's_sleep {PACE1}')
    stamp('B3b done')
    tpoll(tl, between=lambda: (None if WFIRST == 1 else w_setup((1,) if WFIRST else (0, 1)), p3_mats() if MATS == 2 else None, fine('x1', 'behind')))
    fine('p2', 'T1 in')
    fine('x1', 'T1 in')
    a(f'ds_write_b128 v{vE0 + 4}, {vr(Ra, 4)}')
    a(f'ds_write_b128 v{vE0 + 4}, {vr(Ra + 4, 4)} offset:10240')
    a(f's_cmp_eq_u32 s{sW}, 7')
    a('s_waitcnt lgkmcnt(0)')
    bar('B4')
    stamp('B4 done (T1 in)')
    fine('p2', 'B4')
    fine('x1', 'B4')
    a('s_cbranch_scc1 L_p2_one')
    Fre, Fim, Tc, Ts = vTW, vTW + 4, vTW + 8, vTW + 12
    tmps = (Rb, Rc)

    def p2(ns):
        p2pk = PK[1] == '1'
        if ns == 2:
            for j in range(4):
                a(f'ds_read_b64 {vr(Rb + 2 * j, 2)}, v{vE0 + 3} offset:{1280 * j}')
            for h in range(2):
                a(f's_waitcnt lgkmcnt({2 - 2 * h})')
                for s in range(2):
                    a(f'v_pk_mov_b32 {vr(Ra + 4 * s + 2 * h, 2)}, {vr(Rb + 4 * h, 2)}, {vr(Rb + 4 * h + 2, 2)} op_sel:[{s},{s}]')
        else:
            a(f'ds_read2st64_b32 {vr(Ra, 2)}, v{vE0 + 3} offset0:0 offset1:5')
            a(f'ds_read2st64_b32 {vr(Ra + 2, 2)}, v{vE0 + 3} offset0:10 offset1:15')
            a('s_waitcnt lgkmcnt(0)')
        fine('p2', 'read')
        for s in range(ns):
            mfma32(RD + 8 * s, Ra + 4 * s, Fre)
            mfma32(RD + 8 * s + 4, Ra + 4 * s, Fim)
        fine('p2', 's1')
        def stage(cq, sign, swap, mm):
            lo = lambda s: tmps[s] + (4 if swap else 0)
            hi = lambda s: tmps[s] + (0 if swap else 4)
            if ns == 1 or not P2ORD:
                for s in range(ns):
                    cmul(tmps[s], tmps[s] + 4, RD + 8 * s, RD + 8 * s + 4, *cq(s), sign, pk=p2pk)
                    pack4(Ra + 4 * s, lo(s), hi(s))
                    mm(s, 0)
                    mm(s, 1)
                return
            cmul(tmps[0], tmps[0] + 4, RD, RD + 4, *cq(0), sign, pk=p2pk, head=P2ORD - 1)
            cmul(tmps[1], tmps[1] + 4, RD + 8, RD + 12, *cq(1), sign, pk=p2pk)
            pack4(Ra, lo(0), hi(0))
            cv = lambda r: a(f'v_cvt_pk_bf16_f32 v{Ra + 4 + r}, v{lo(1) + r}, v{hi(1) + r}')
            cv(0)
            cv(1)
            mm(0, 0)
            cv(2)
            cv(3)
            mm(0, 1)
            mm(1, 0)
            mm(1, 1)
        stage(lambda s: (Tc, Ts), -1, False, lambda s, k: mfma32(RD + 8 * s + 4 * k, Fim if k else Fre, Ra + 4 * s))
        fine('p2', 's2')
        stage(lambda s: (vWr + 8 * s, vWr + 8 * s + 4), +1, True, lambda s, k: mfma32(RD + 8 * s + 4 * k, Ra + 4 * s, Fre if k else Fim))
        fine('p2', 's3')
        stage(lambda s: (Tc, Ts), +1, True, lambda s, k: mfma32(RD + 8 * s + 4 * k, Fre if k else Fim, Ra + 4 * s))
        fine('p2', 's4')
        for s in range(ns):
            pack4(Rb + s, RD + 8 * s, RD + 8 * s + 4, step=ns)
        if ns == 2:
            for r in range(4):
                a(f'ds_write_b64 v{vE0 + 3}, {vr(Rb + 2 * r, 2)} offset:{1280 * r}')
        else:
            a(f'ds_write2st64_b32 v{vE0 + 3}, v{Rb}, v{Rb + 1} offset0:0 offset1:5')
            a(f'ds_write2st64_b32 v{vE0 + 3}, v{Rb + 2}, v{Rb + 3} offset0:10 offset1:15')
        a('s_waitcnt lgkmcnt(0)')
    p2(2)
    a.label('L_b5')
    fine('p2', 'pre-B5')
    fine('x2', 'pre-B5')
    bar('B5')
    fine('p2', 'B5')
    fine('x2', 'B5')
    a(f'ds_read_b128 {vr(Rb, 4)}, v{vE0 + 4}')
    a(f'ds_read_b128 {vr(Rb + 4, 4)}, v{vE0 + 4} offset:10240')
    a('s_waitcnt lgkmcnt(1)')
    a(f'global_store_dwordx4 v{vS}, {vr(Rb, 4)}, {sr(58)} sc1')
    a('s_waitcnt lgkmcnt(0)')
    a(f'global_store_dwordx4 v{vS}, {vr(Rb + 4, 4)}, {sr(60)} sc1')
    stamp('T2 stored')
    fine('p2', 'stored')
    fine('x2', 'stored')
    late.append(lambda: (a.label('L_p2_one'), p2(1), a('s_branch L_b5')))
    a.label('L_p3prep')
    vGA, vVV, vGC, vGS = vVec, vVec + 10, vVec + 20, vVec + 30
    vMB = vE0 + 6
    for q in range(4):
        tab_read(vTW + 4 * q, T_TW3 + q)
    a(f'''
    v_add_u32 v{vMB}, {MODB_L}, v{vL4}
    v_bfe_u32 v36, v{vL}, 2, 2
    v_lshrrev_b32 v37, 4, v{vL}
    v_mad_u32_u24 v36, v37, {NJ}, v36
    v_and_b32 v38, 48, v{vL16}
    v_mul_u32_u24 v36, {T2S}, v36
    v_add_u32 v{vPoll}, v36, v38
    v_mul_u32_u24 v37, {4 * SA}, v37
    v_add_u32 v37, {XB1 + 8 * 361}, v37
    v_cndmask_b32 v{vPairX}, v{vPair}, v37, {sr(sM8)}
    s_and_b64 {sr(sM8)}, {sr(sM8)}, {sr(sLn)}
    s_lshl_b32 s{sU1}, s{sMe}, 6
    s_min_u32 s{sT}, s{sW}, 5
    s_mul_i32 s{sT}, s{sT}, {4 * T2S}
    s_add_u32 s{sU1}, s{sU1}, s{sT}
    ''')
    base_add(sBa, WS, sU1, T2_G)
    base_add(sBb, WS, sU1, T2_G + 4 * NJ * T2S)
    base_add(sXrow, OUTP, sRow)
    a(f's_mul_i32 s{sU0}, s{sMe}, {REC_STRIDE}')
    base_add(sRec, WS, sU0, REC_G)
    a(f'''
    v_mov_b32 v{vE0 + 7}, {hex(f2u(-1.0 / 640))}
    v_mov_b32 v{vM8F}, {hex(f2u(-1e-5))}
    v_mov_b32 v{vE0 + 3}, {KEYL}
    v_mov_b32 v{vE0 + 4}, 1
    ''')

    def p3_setup(part=3):
      raw, GB = Rb, Rb
      if part & 1:
        raw = Rb
        for k in range(0, 24, 2):
            a(f'ds_read2st64_b32 {vr(raw + k, 2)}, v{vMB} offset0:{k} offset1:{k + 1}')
        a(f'ds_read_b32 v{raw + 24}, v{vMB} offset:{24 * 256}')
        a('s_waitcnt lgkmcnt(0)')
        for vec, dst in ((0, vGA), (1, vGS), (2, vGC), (4, vVV)):
            for j in range(5):
                unpack(dst + tm(j, 0), dst + tm(j, 1), raw + 5 * vec + j)
        GB = Rb
        for j in range(5):
            unpack(GB + tm(j, 0), GB + tm(j, 1), raw + 15 + j)
      if part & 2:
        t0, t1, t2 = Rc + 2, Rc + 4, Rc + 6
        dot10(t0, vVV, vGS)
        for h in range(0, 10, 2):
            a(f'v_pk_mul_f32 {vr(vVV + h, 2)}, {vr(vVV + h, 2)}, {vr(vGC + h, 2)}')
        sum10(t1, vVV)
        a(f'v_mov_b32 v{t2}, s{sM1B}')
        for h in range(0, 10, 2):
            a(f'v_pk_mul_f32 {vr(vGC + h, 2)}, {vr(vGC + h, 2)}, {vr(GB + h, 2)}')
            a(f'v_pk_fma_f32 {vr(vGS + h, 2)}, {vr(vGS + h, 2)}, {vr(GB + h, 2)}, {vr(t2, 2)} op_sel:[0,0,0] op_sel_hi:[1,1,0]')
        wave_sum([t1, t0], [sV1, sV2])

    if MATS == 0:
        p3_mats()
    a('s_waitcnt lgkmcnt(0)')
    bar('B5b')
    stamp('B5b done')
    fine('p2', 'B5b')
    fine('x2', 'B5b')
    if P3FIRST == 2:
        p3_setup(1)
    if P3FIRST == 1:
        p3_setup()
    else:
        a(f's_cmp_ge_u32 s{sIdx}, {NJ}')
        a(f's_cselect_b32 s{sCand}, 8, s{sW}')
        a(f's_cmp_lt_u32 s{sCand}, 6')
        a('s_cbranch_scc1 L_p3later')
        p3_setup(2 if P3FIRST else 3)
        a.label('L_p3later')
    fine('x2', 'p3setup')
    if DR2:
        a('s_waitcnt vmcnt(0)')
    fine('x2', 'drained')
    if PACE2:
        a(f's_sleep {PACE2}')
    if not AL2:
        a(f's_cmp_ge_u32 s{sIdx}, {NJ}')
        a('s_cbranch_scc0 L_nob5c')
    bar('B5c')
    a.label('L_nob5c')
    a(f's_cmp_ge_u32 s{sW}, 6')
    a('s_cbranch_scc1 L_b6')
    stamp('T2 poll')
    fine('p2', 'T2 poll')

    def p3_behind():
        a(f's_cmp_lt_u32 s{sCand}, 6')
        a('s_cbranch_scc0 L_p3done')
        p3_setup(2 if P3FIRST else 3)
        a.label('L_p3done')
    tpoll(tl, lanes_s=sr(sLn), between=None if P3FIRST == 1 else p3_behind)
    stamp('T2 in')
    fine('p3', 'T2 in')
    fine('x2', 'T2 in')
    a(f'''
    v_swap_b32 v{Ra + 1}, v{Ra + 4}
    v_swap_b32 v{Ra + 3}, v{Ra + 6}
    ''')
    for n, r in ((0, Ra), (1, Ra + 4), (2, Ra + 2), (3, Ra + 6)):
        mfma16(RD + 4 * n, vM8I, r)
    for n in range(4):
        for jj in range(2):
            a(f'v_cvt_pk_bf16_f32 v{Rb + 2 * n + jj}, v{RD + 4 * n + 2 * jj + 1}, v{RD + 4 * n + 2 * jj}')
        a(f'ds_write_b64 v{vPairX if n == 3 else vPair}, {vr(Rb + 2 * n, 2)} offset:{8 * n}')
    a('s_waitcnt lgkmcnt(0)')
    a.label('L_b6')
    prio(2, True)
    fine('p3', 'pre-B6')
    bar('B6')
    fine('p3', 'B6')
    fine('x2', 'B6')
    for u in range(2):
        for r in (0, 2):
            a(f'ds_read2_b32 {vr(Rb + 4 * u + r, 2)}, v{vSg1 if u else vSg0} offset0:{80 * r} offset1:{80 * r + 80}')
    Y = RD
    if not P3O:
        for ks in range(2):
            a(f's_waitcnt lgkmcnt({2 - 2 * ks})')
            for t in range(2):
                for e in range(2):
                    d = RD + 8 * t + 4 * e
                    mfma32(d, Rb + 4 * ks, vF32 + 16 * t + 8 * (1 - e) + 4 * ks, d if ks else None)
        fine('p3', 'mfma1 issued')
        if PRIO[2] == '1':
            prio(2, False)
        for t, tmp in ((0, Ra), (1, Rc)):
            cmul(tmp, tmp + 4, RD + 8 * t, RD + 8 * t + 4, vTW + 8 * t, vTW + 8 * t + 4, +1, pk=PK[2] == '1' or (PK[2] == '2' and t == 1), n=3)
            pack4(Rb + 4 * t, tmp, tmp + 4, n=3)
            a(f'v_mov_b32 v{Rb + 4 * t + 3}, 0')
        Y = RD
        mfma32(Y, vF20, Rb)
        mfma32(Y + 8, vF20 + 4, Rb)
        mfma32(Y + 4, vF20, Rb + 4)
        mfma32(Y + 8, vF20 + 8, Rb + 4, Y + 8)
    else:
        def m1(t, ks, e):
            d = RD + 8 * t + 4 * e
            mfma32(d, Rb + 4 * ks, vF32 + 16 * t + 8 * (1 - e) + 4 * ks, d if ks else None)
        a('s_waitcnt lgkmcnt(2)')
        m1(0, 0, 0)
        m1(0, 0, 1)
        a('s_waitcnt lgkmcnt(0)')
        m1(0, 1, 0)
        m1(0, 1, 1)
        for ks in range(2):
            for e in range(2):
                m1(1, ks, e)
        fine('p3', 'mfma1 issued')
        B0_, B1_ = vF32, vF32 + 4
        cmul(Ra, Ra + 4, RD, RD + 4, vTW, vTW + 4, +1, pk=False, n=3)
        a(f'v_mov_b32 v{B0_ + 3}, 0')
        a(f'v_mov_b32 v{B1_ + 3}, 0')
        pack4(B0_, Ra, Ra + 4, n=3)
        Yx = Rb
        mfma32(Y, vF20, B0_)
        mfma32(Yx, vF20 + 4, B0_)
        cmul(Rc, Rc + 4, RD + 8, RD + 12, vTW + 8, vTW + 12, +1, pk=False, n=3)
        pack4(B1_, Rc, Rc + 4, n=3)
        mfma32(Y + 4, vF20, B1_)
        mfma32(Y + 8, vF20 + 8, B1_, Yx)
    fine('p3', 'mfma2 issued')
    if PRIO[2] == '2':
        prio(2, False)
    X1 = vXS
    s1, s2, s3, s4 = Ra, Ra + 1, Ra + 2, Ra + 3
    if not PKS:
        for k in range(10):
            a(f'v_fmac_f32 v{X1 + k}, v{Y + k}, v{vGA + k}')
            if k == 1:
                a(f'v_mul_f32 v{s2}, v{X1}, v{X1}')
                a(f'v_mul_f32 v{s3}, v{X1}, v{vVV}')
            if k >= 2:
                a(f'v_add_f32 v{s1}, v{X1 + k - 1}, v{X1 if k == 2 else s1}')
                a(f'v_fmac_f32 v{s2}, v{X1 + k - 1}, v{X1 + k - 1}')
                a(f'v_fmac_f32 v{s3}, v{X1 + k - 1}, v{vVV + k - 1}')
        a(f'v_fmac_f32 v{s3}, v{X1 + 9}, v{vVV + 9}')
        a(f'v_add_f32 v{s1}, v{X1 + 9}, v{s1}')
        a(f'v_fmac_f32 v{s2}, v{X1 + 9}, v{X1 + 9}')
    else:
        p1_, p2_, p3_ = Rc, Rc + 2, Rc + 4
        for h in range(0, 10, 2):
            a(f'v_pk_fma_f32 {vr(X1 + h, 2)}, {vr(Y + h, 2)}, {vr(vGA + h, 2)}, {vr(X1 + h, 2)}')
        a(f'v_pk_mul_f32 {vr(p3_, 2)}, {vr(X1, 2)}, {vr(vVV, 2)}')
        a(f'v_pk_add_f32 {vr(p1_, 2)}, {vr(X1, 2)}, {vr(X1 + 2, 2)}')
        a(f'v_pk_mul_f32 {vr(p2_, 2)}, {vr(X1, 2)}, {vr(X1, 2)}')
        for h in (2, 4, 6, 8):
            a(f'v_pk_fma_f32 {vr(p3_, 2)}, {vr(X1 + h, 2)}, {vr(vVV + h, 2)}, {vr(p3_, 2)}')
            if h > 2:
                a(f'v_pk_add_f32 {vr(p1_, 2)}, {vr(p1_, 2)}, {vr(X1 + h, 2)}')
            a(f'v_pk_fma_f32 {vr(p2_, 2)}, {vr(X1 + h, 2)}, {vr(X1 + h, 2)}, {vr(p2_, 2)}')
        a(f'v_add_f32 v{s3}, v{p3_}, v{p3_ + 1}')
        a(f'v_add_f32 v{s1}, v{p1_}, v{p1_ + 1}')
        a(f'v_add_f32 v{s2}, v{p2_}, v{p2_ + 1}')
    fine('p3', 'partials')
    a(f'''
    v_permlane32_swap_b32 v{s3}, v{s4}
    v_permlane32_swap_b32 v{s1}, v{s2}
    v_add_f32 v{s3}, v{s3}, v{s4}
    v_add_f32 v{s1}, v{s1}, v{s2}
    v_permlane16_swap_b32 v{s1}, v{s3}
    v_add_f32 v{s1}, v{s1}, v{s3}
    ''')
    for c in ('row_ror:8', 'row_ror:4', 'row_ror:2', 'row_ror:1'):
        dpp('v_add_f32', s1, c)
    a(f'''
    v_readlane_b32 s{sU0}, v{s1}, 0
    v_readlane_b32 s{sU2}, v{s1}, 32
    v_readlane_b32 s{sU3}, v{s1}, 16
    ''')
    fine('p3', 'reduced')
    k0 = Rc
    cE = vM8F
    cI, cK, cT, cO = vE0 + 7, vE0 + 3, Ra + 7, vE0 + 4
    m = Ra + 1
    a(f'''
    v_mul_f32 v{m + 2}, s{sU0}, v{cI}
    v_fma_f32 v{k0}, v{m + 2}, v{m + 2}, v{cE}
    v_mov_b32 v{m + 3}, s{sU3}
    v_fmac_f32 v{k0}, s{sU2}, v{cI}
    v_fmac_f32 v{m + 3}, s{sV1}, v{m + 2}
    v_sub_f32 v{m + 1}, v{cE}, v{k0}              ; var
    v_rsq_f32_e64 v{k0}, -v{k0}
    v_mov_b32 v{cT}, s{sTag}
    s_mov_b64 exec, 1
    v_fma_f32 v{m + 3}, v{m + 3}, v{k0}, s{sV2}   ; r
    v_ashrrev_i32 v{m + 4}, 31, v{m + 3}
    v_or_b32 v{m + 4}, 0x80000000, v{m + 4}
    v_xor_b32 v{m + 3}, v{m + 3}, v{m + 4}
    v_and_b32 v{m + 3}, 0xfffff800, v{m + 3}
    v_or_b32 v{m + 3}, s{sKey}, v{m + 3}
    ds_max_u32 v{cK}, v{m + 3}
    ds_add_rtn_u32 v{m + 4}, v{cK}, v{cO} offset:8
    ds_read_b32 v{Ra + 6}, v{cK}
    v_readfirstlane_b32 s{sKey}, v{m + 3}
    s_waitcnt lgkmcnt(0)
    v_cmpx_eq_u32 vcc, 7, v{m + 4}
    s_cbranch_execz L_notlast
    global_store_dwordx2 v{vL4}, {vr(Ra + 6, 2)}, {sr(sRec)} sc1
    L_notlast:
    s_mov_b64 exec, -1
    ''')
    fine('p3', 'key')
    bar('B7')
    fine('p3', 'B7')
    fine('e', 'key poll')
    a(f'''
    ds_read_b32 v{Ra + 6}, v{cK}
    v_sub_f32 v{m + 2}, s{sM1B}, v{m + 2}
    ''')
    rbf(m + 2, f'v{m + 2}')
    rstd_chain(m + 1, k0)
    a(f'''
    v_sub_f32 v{m + 2}, s{sM1B}, v{m + 2}
    v_mul_f32 v{k0 + 1}, v{m + 2}, v{k0}
    ''')
    ZN = vGA
    for h in range(0, 10, 2):
        a(f'v_pk_fma_f32 {vr(ZN + h, 2)}, {vr(X1 + h, 2)}, {vr(k0, 2)}, {vr(k0, 2)} op_sel:[0,0,1] op_sel_hi:[1,0,1]')
    vO = vXS

    def out_math():
        for h in range(0, 10, 2):
            a(f'v_pk_add_f32 {vr(Y + h, 2)}, {vr(X1 + h, 2)}, {vr(vGS + h, 2)}')
        for h in range(0, 10, 2):
            a(f'v_pk_fma_f32 {vr(Y + h, 2)}, {vr(ZN + h, 2)}, {vr(vGC + h, 2)}, {vr(Y + h, 2)}')
        if opt('inject', None):
            if opt('injall', None):
                for k in range(10):
                    a(f'v_mul_f32 v{Y + k}, {hex(f2u(1 + float(opt("inject", 0))))}, v{Y + k}')
            else:
                a(f's_cmp_eq_u32 s{sRow}, 0')
                a('s_cselect_b64 exec, 1, 0')
                a(f'v_add_f32 v{Y}, {hex(f2u(float(opt("inject", 0))))}, v{Y}')
                a('s_mov_b64 exec, -1')
        for j in range(5):
            a(f'v_cvt_pk_bf16_f32 v{vO + j}, v{Y + tm(j, 0)}, v{Y + tm(j, 1)}')
    a(f'''
    s_waitcnt lgkmcnt(0)
    v_readfirstlane_b32 s{sU0}, v{Ra + 6}
    s_cmp_eq_u32 s{sU0}, s{sKey}
    s_cselect_b32 s{sCand}, 1, 0
    s_cbranch_scc1 L_cand
    ''')
    out_math()
    a('s_branch L_keys')
    a.label('L_cand')
    raw, SB, CB, H, Bq = 60, 70, 80, 92, 108
    for k in range(0, 10, 2):
        a(f'ds_read2st64_b32 {vr(raw + k, 2)}, v{vMB} offset0:{5 + k} offset1:{6 + k}')
    for qd in range(2):
        a(f'v_mov_b32 v{H + 4 * qd + 3}, s{sTag}')
    a('s_waitcnt lgkmcnt(0)')
    for j in range(5):
        unpack(SB + tm(j, 0), SB + tm(j, 1), raw + j)
        unpack(CB + tm(j, 0), CB + tm(j, 1), raw + 5 + j)
    for h in range(0, 10, 2):
        a(f'v_pk_fma_f32 {vr(SB + h, 2)}, {vr(ZN + h, 2)}, {vr(CB + h, 2)}, {vr(SB + h, 2)}')
    for j in range(5):
        a(f'v_cvt_pk_bf16_f32 v{H + j + (j >= 3)}, v{SB + tm(j, 0)}, v{SB + tm(j, 1)}')
    for qd in range(2):
        a(f'global_store_dwordx4 v{vL16}, {vr(H + 4 * qd, 4)}, {sr(sRec)} offset:{REC_H2 + 1024 * qd} sc1')
    out_math()

    def out_row():
        for j in range(5):
            a(f'global_store_dword v{vL4}, v{vO + j}, {sr(sXrow)} offset:{256 * j} sc1')
    if OE != 1:
        out_row()
    a.label('L_keys')
    if OE == 1:
        out_row()
    stamp('key out')
    fine('p3', 'key out')
    bar('B7b (candidate stores are out, the helpers have ended)')
    if OE == 0:
        a(f'''
        s_cmp_ge_u32 s{sRi}, 20
        s_cselect_b32 s{sT}, 1, s{sCand}
        s_cmp_lg_u32 s{sT}, 0
        s_cbranch_scc1 L_noout
        ''')
        out_row()
        a('s_branch L_fin')
        a.label('L_noout')
    if OE == 2:
        a(f's_cmp_lg_u32 s{sCand}, 0')
        a('s_cbranch_scc1 L_noout')
        out_row()
        a.label('L_noout')
    vEW, vFW = 48, 88
    vRed, vRd, vRow = 15, 16, 17
    a(f'''
    s_cmp_lt_u32 s{sRi}, 20
    s_cbranch_scc1 L_no_ew
    s_mul_i32 s{sT}, s{sW}, 5120
    s_add_u32 s{sT}, s{sT}, {EW}
    v_and_b32 v{Rb}, 0x3c0, v{vL16}
    v_and_b32 v{Rb + 1}, 24, v{vE0}
    v_add3_u32 v{Rb}, v{Rb}, v{Rb + 1}, s{sT}
    s_mul_i32 s{sT}, s{sW}, 320
    s_add_u32 s{sT}, s{sT}, {FW}
    v_min_u32 v{vE0 + 1}, {39 * 8}, v{vE0}
    v_add_u32 v{vE0 + 1}, s{sT}, v{vE0 + 1}
    ''')
    for j in range(5):
        if j in (2, 4):
            a(f'v_add_u32 v{Rb}, 2048, v{Rb}')
        a(f'ds_read2_b64 {vr(vEW + 20 + 4 * j, 4)}, v{Rb} offset0:{128 * (j & 1)} offset1:{128 * (j & 1) + 4}')
    a(f'''
    v_and_b32 v{vRed}, 3, v{vL}
    v_lshlrev_b32 v{vRed}, 6, v{vRed}
    v_and_b32 v{vRd}, 48, v{vL}
    v_add_u32 v{vRed}, v{vRd}, v{vRed}
    s_lshr_b32 s{sU1}, s{sW}, 2
    s_lshl_b32 s{sU1}, s{sU1}, 8
    s_and_b32 s{sT}, s{sW}, 3
    s_lshl_b32 s{sT}, s{sT}, 2
    s_add_u32 s{sU1}, s{sU1}, s{sT}
    s_add_u32 s{sU1}, s{sU1}, {RED}
    v_add_u32 v{vRed}, s{sU1}, v{vRed}
    v_and_b32 v{vRd}, 0xf0, v{vL16}
    v_bfe_u32 v{vRow}, v0, 2, 6                    ; lane' = (t'>>1)>>1
    v_lshlrev_b32 v{vRow}, 4, v{vRow}
    s_mov_b32 s{sU2}, 0x05040100
    s_mov_b32 s{sU3}, 0x07060302
    v_add_u32 v{vRow}, {REC_G + REC_H2}, v{vRow}
    v_mov_b32 v18, 0xffffff00
    s_mul_i32 s{sU1}, s{sX}, 12
    s_add_u32 s{sU1}, s{sU1}, s{sRi}
    s_mul_i32 s{sU1}, s{sU1}, {PY_STRIDE}
    s_mul_i32 s{sT}, s{sW}, 640
    s_add_u32 s{sU1}, s{sU1}, s{sT}
    ''')
    base_add(sBb, WS, sU1, PY_G - 20 * PY_STRIDE)
    a('s_waitcnt lgkmcnt(0)')
    if KD == 1:
        bar('B7c')
    for j in range(5):
        r0 = vEW + 20 + 4 * j
        for c in range(4):
            a(f'v_perm_b32 v{vEW + 4 * j + c}, v{r0 + 2 + c // 2}, v{r0 + c // 2}, s{sU3 if c & 1 else sU2}')
    for k in range(4):
        a(f'v_mov_b32 v{36 + k}, 0')

    def fw_unpack():
        a(f's_cmp_ge_u32 s{sW}, 4')
        a('s_cbranch_scc1 L_no_fw')
        for u in range(16):
            if u == 8:
                a('s_waitcnt lgkmcnt(0)')
            a(f'ds_read_b64 {vr(vFW + 32 + 2 * u, 2)}, v{vE0 + 1} offset:{1280 * u}')
        a('s_waitcnt lgkmcnt(0)')
        for k in range(32):
            unpack(vFW + 2 * k, vFW + 2 * k + 1, vFW + 32 + k)
        a.label('L_no_fw')
    if not FWL:
        fw_unpack()
    a.label('L_no_ew')
    a(f's_cmp_eq_u32 s{sCand}, 0')
    a('s_cbranch_scc1 L_nobase')
    a(f'''
    v_mov_b32 v40, v{vO}
    v_mov_b32 v41, v{vO + 1}
    v_mov_b32 v42, v{vO + 2}
    v_mov_b32 v43, s{sTag}
    v_mov_b32 v44, v{vO + 3}
    v_mov_b32 v45, v{vO + 4}
    v_mov_b32 v47, s{sTag}
    ''')

    def base_out():
        a(f'global_store_dwordx4 v{vL16}, v[40:43], {sr(sRec)} offset:{REC_BASE} sc1')
        a(f'global_store_dwordx4 v{vL16}, v[44:47], {sr(sRec)} offset:{REC_BASE + 1024} sc1')
    if BL:
        a(f's_cmp_lt_u32 s{sRi}, 20')
        a('s_cbranch_scc0 L_nobase')
    a('s_waitcnt vmcnt(0)')
    base_out()
    a.label('L_nobase')
    a(f'''
    s_cmp_lt_u32 s{sRi}, 20
    s_cbranch_scc1 L_fin
    v_mov_b32 v{Rb + 2}, {KEYL + 4}
    {'s_barrier' if KD == 2 else ''}
    ''')
    a.label('L_b8')
    fine('e', 'pre-B8')
    a('s_barrier                                   ; B8')
    a(f'''
    ds_read_b32 v{Rb + 3}, v{Rb + 2}
    s_movk_i32 s{sT}, {REC_STRIDE}
    s_waitcnt lgkmcnt(0)
    v_and_b32 v{Rb + 4}, 255, v{Rb + 3}
    v_mad_u32_u24 v{vRow}, v{Rb + 4}, s{sT}, v{vRow}
    ''')
    stamp('B8 done (winner)')
    fine('e', 'B8+')

    def late_out():
        if OE == 0:
            a(f's_cmp_lg_u32 s{sCand}, 0')
            a('s_cbranch_scc1 L_noout2')
            out_row()
            a.label('L_noout2')
        if FWL:
            fw_unpack()
        fine('e', 'behind')
        if OE == 0:
            a(f's_cmp_lg_u32 s{sCand}, 0')
            a('s_cbranch_scc1 L_noout4')
            a('s_waitcnt vmcnt(5)')
            a.label('L_noout3')
            late.append(lambda: (a.label('L_noout4'), a('s_waitcnt vmcnt(0)'), a('s_branch L_noout3')))
        else:
            a('s_waitcnt vmcnt(0)')
    poll([f'global_load_dwordx4 v[20:23], v{vRow}, {sr(WS)} sc1',
          f'global_load_dwordx4 v[24:27], v{vRow}, {sr(WS)} offset:1024 sc1'], [23, 27], [30, 32], empty='word',
         between=late_out, younger=63)
    if BL:
        a(f's_cmp_lg_u32 s{sCand}, 0')
        a('s_cbranch_scc1 L_base2')
        a.label('L_base3')
        late.append(lambda: (a.label('L_base2'), base_out(), a('s_branch L_base3')))
    stamp('row in')
    fine('e', 'row in')
    acc = 36
    for j in range(5):
        for c in (0, 2, 1, 3):
            a(f'v_dot2c_f32_bf16 v{acc + c}, v{vEW + 4 * j + c}, v{20 + j + (j >= 3)}')
    a(f'''
    v_permlane32_swap_b32 v36, v38
    v_permlane32_swap_b32 v37, v39
    v_pk_add_f32 v[36:37], v[36:37], v[38:39]
    v_permlane16_swap_b32 v36, v37
    v_add_f32 v36, v36, v37
    ''')
    for c in ('row_ror:8', 'row_ror:4'):
        dpp('v_add_f32', acc, c)
    a(f'''
    s_mov_b32 exec_lo, 0x000f000f
    s_mov_b32 exec_hi, 0x000f000f
    ds_write_b32 v{vRed}, v{acc}
    s_mov_b64 exec, -1
    s_cmp_ge_u32 s{sW}, 4
    s_waitcnt lgkmcnt(0)
    ''')
    fine('e', 'pre-B9')
    bar('B9')
    fine('e', 'B9')
    a(f'''
    s_cbranch_scc1 L_e_done
    ds_read_b128 v[20:23], v{vRd} offset:{RED}
    ds_read_b128 v[24:27], v{vRd} offset:{RED + 256}
    s_waitcnt lgkmcnt(0)
    v_pk_add_f32 v[20:21], v[20:21], v[22:23]
    v_pk_add_f32 v[24:25], v[24:25], v[26:27]
    v_add_f32 v20, v20, v21
    v_add_f32 v24, v24, v25
    v_mul_f32 v21, 0xbfb8aa3b, v20
    v_exp_f32 v21, v21
    v_mul_f32 v20, v20, v24
    v_add_f32 v21, 1.0, v21
    v_rcp_f32 v21, v21
    v_mul_f32 v20, v20, v21
    ''')
    fine('e', 'gu')
    sG = 8
    for u in range(16):
        a(f'v_readlane_b32 s{sG + u}, v20, {u}')
    for u in range(16):
        for hh in range(2):
            w_ = vr(vFW + 4 * u + 2 * hh, 2)
            g_ = sr(sG + (u & ~1))
            d_ = vr(36 + 2 * hh, 2)
            if u == 0:
                a(f'v_pk_mul_f32 {d_}, {w_}, {g_} op_sel:[0,0] op_sel_hi:[1,0]')
            else:
                a(f'v_pk_fma_f32 {d_}, {w_}, {g_}, {d_} {BC1 if u & 1 else BC0}')
    for k in range(4):
        a(f'v_and_or_b32 v{36 + k}, v{36 + k}, v18, s{sTB + k}')
    a('s_mov_b32 exec_hi, 0xff')
    a(f'global_store_dwordx4 v{vL16}, v[36:39], {sr(sBb)} sc1')
    a('s_mov_b64 exec, -1')
    stamp('PY out')
    fine('e', 'PY out')
    a('s_waitcnt vmcnt(0)')
    a.label('L_e_done')
    bar('B10')
    a.label('L_fin')
    stamp('end')
    fine('e', 'end')
    if FINE:
        a('s_waitcnt lgkmcnt(0)')
    dump_stamps()
    a.label('L_end')
    a('s_endpgm')
    flush_late()


sF1, sF2, sPb, sGw, sWb = 56, 58, 60, 62, 64


def publish():
    a(f'''
    ds_read_b128 v[40:43], v28 offset:{RED}
    ds_read_b128 v[44:47], v28 offset:{RED + 16}
    s_waitcnt lgkmcnt(0)
    v_pk_add_f32 v[40:41], v[40:41], v[42:43]
    v_pk_add_f32 v[44:45], v[44:45], v[46:47]
    v_add_f32 v40, v35, v40
    v_pk_add_f32 v[40:41], v[40:41], v[44:45]
    v_add_f32 v40, v40, v41
    v_and_or_b32 v40, v40, v33, v34
    global_store_dword v{vL4}, v40, {sr(sPb)} sc1
    ''')
    stamp('published', 'H0')


def w_addr():
    a(f'''
    s_mul_i32 s{sU1}, s{sIdx}, 15
    s_min_u32 s{sU1}, s{sU1}, 306
    s_add_u32 s{sT}, s{sU1}, s{sX}
    s_and_b32 s{sT}, s{sT}, 1
    s_sub_u32 s{sU1}, s{sU1}, s{sT}
    s_mul_i32 s{sU0}, s{sX}, 321
    s_add_u32 s{sU1}, s{sU1}, s{sU0}
    s_lshl_b32 s{sU1}, s{sU1}, 1
    v_lshrrev_b32 v90, 1, v{vL}
    v_mul_u32_u24 v90, 5136, v90
    v_lshlrev_b32 v91, 1, v{vL}
    v_xor_b32 v91, v{vL16}, v91
    v_and_b32 v91, 16, v91
    v_add3_u32 v100, v90, v91, s{sU1}
    ''')


def w_gather(arr, lds):
    for n in range(8):
        a(f's_mov_b32 m0, {lds + 1024 * n}')
        a(f'global_load_lds_dwordx4 v100, {sr(arr)}')
        if n < 7:
            a(f'v_add_u32 v100, {32 * 5136}, v100')


def mask_lanes(n):
    if n >= 64:
        return
    if n > 32:
        a(f's_mov_b32 exec_hi, {hex((1 << (n - 32)) - 1)}')
    else:
        a(f's_mov_b64 exec, {hex((1 << n) - 1)}')


def warm_addr_w():
    a(f'''
    s_sub_u32 s{sU0}, s{sRi}, 10
    s_mul_i32 s{sU3}, s{sU0}, 70
    s_movk_i32 s{sU2}, 0x2aab
    s_mul_i32 s{sU1}, s{sX}, 642
    s_movk_i32 s{sT}, 5136
    ''')
    for n in range(2):
        a(f'''
        v_add_u32 v90, s{sU3}, v{vL}
        v_add_u32 v90, {35 * n}, v90
        v_min_u32 v90, 1535, v90
        v_mul_u32_u24 v91, s{sU2}, v90
        v_lshrrev_b32 v91, 16, v91
        v_mul_u32_u24 v92, 6, v91
        v_sub_u32 v92, v90, v92
        v_lshlrev_b32 v92, 7, v92
        v_min_u32 v92, 638, v92
        v_add_u32 v92, s{sU1}, v92
        v_mad_u32_u24 v92, v91, s{sT}, v92
        v_and_b32 v{120 + n}, -4, v92
        ''')


def ffn_parts(slot):
    return [(n, k) for n in range(3) if S_W[n] == slot for k in range(2 if slot == 7 else 1)]


def warm_addr_f(h, slot):
    f, per, lanes = {0: (10, 44, 44), 7: (NJ, 96, 48), 8: (0, 48, 48)}[slot]
    if not ffn_parts(slot):
        return
    a(f'''
    s_sub_u32 s{sU0}, s{sRi}, {f}
    s_mul_i32 s{sU3}, s{sU0}, {per}
    s_mul_i32 s{sU1}, s{sX}, 384
    s_movk_i32 s{sU2}, 0x5556
    s_movk_i32 s{sT}, {3072 - 384}
    s_mul_i32 s{sU0}, s{sX}, 245760
    ''')
    for n, k in ffn_parts(slot):
        d = 130 + 2 * n + k
        a(f'''
        v_add_u32 v90, s{sU3}, v{vL}
        v_add_u32 v90, {lanes * k}, v90
        v_min_u32 v90, 959, v90
        v_add_u32 v90, {960 * (n if n < 2 else h)}, v90
        ''')
        if n < 2:
            a(f'''
            v_mul_u32_u24 v91, s{sU2}, v90
            v_lshrrev_b32 v91, 16, v91
            v_lshl_add_u32 v90, v90, 7, s{sU1}
            v_mad_u32_u24 v{d}, v91, s{sT}, v90
            ''')
        else:
            a(f'v_lshl_add_u32 v{d}, v90, 7, s{sU0}')


def warm_issue(h, slot, sel=None):
    if slot == 0:
        mask_lanes(35)
        for n in range(2):
            a(f'global_load_dword v125, v{120 + n}, {sr(W_R if h else W_I)}')
    ps = ffn_parts(slot) if sel is None else sel
    if ps:
        mask_lanes(44 if slot == 0 else 48)
    for n, k in ps:
        a(f'global_load_dword v125, v{130 + 2 * n + k}, {sr(W_D if n == 2 else (W_G if h else W_U))}')
    a('s_mov_b64 exec, -1')


def e_addr(mat):
    a(f'''
    s_max_u32 s{sU1}, s{sRi}, 20
    s_mul_i32 s{sU0}, s{sX}, 12
    s_add_u32 s{sU0}, s{sU0}, s{sU1}
    s_sub_u32 s{sU0}, s{sU0}, 20
    s_mul_i32 s{sU1}, s{sU0}, 20480
    s_lshl_b32 s{sU0}, s{sU0}, 5
    v_lshrrev_b32 v128, 1, v{vL}
    v_mul_u32_u24 v128, 3072, v128
    v_and_b32 v90, 16, v{vL16}
    v_add_u32 v128, v128, v90
    ''')
    base_add(sF1, mat, sU0)
    base_add(sGw, W_D, sU1, 10240 if mat == W_U else 0)


def if_e(f):
    L = newlabel('ne')
    a(f's_cmp_lt_u32 s{sRi}, 20')
    a(f's_cbranch_scc1 {L}')
    f()
    a.label(L)


def e_gather(half, n0, n1):
    for n in range(n0, n1):
        a(f's_mov_b32 m0, {EW + (n % 4 + 4 * half) * 5120 + (n // 4) * 1024}')
        a(f'global_load_lds_dwordx4 v128, {sr(sF1)}')
        if n < 19:
            a(f'v_add_u32 v128, {32 * 3072}, v128')


def wd_load(half):
    for n in range(10):
        if n % 4 == 0:
            a(f's_mov_b32 m0, {FW + half * 10240 + n * 1024}')
            a(f'v_add_u32 v90, {1024 * n}, v{vL16}')
        a(f'global_load_lds_dwordx4 v90, {sr(sGw)} offset:{1024 * (n % 4)} {INPOL if S_W[2] == 9 else str()}')


def touch_small():
    if 'k' in TCH:
        a(f's_mul_i32 s{sU0}, s{sMe}, {REC_STRIDE}')
        base_add(sBa, WS, sU0, REC_G)
        a(f'''
        s_mov_b64 exec, 0xff
        global_store_dwordx4 v{vL16}, v[20:23], {sr(sBa)} sc1
        s_mov_b64 exec, -1
        ''')
    if 'p' in TCH:
        def f():
            a(f'''
            s_mul_i32 s{sU1}, s{sX}, 12
            s_add_u32 s{sU1}, s{sU1}, s{sRi}
            s_mul_i32 s{sU1}, s{sU1}, {PY_STRIDE}
            ''')
            base_add(sBa, WS, sU1, PY_G - 20 * PY_STRIDE)
            a(f'''
            global_store_dwordx4 v{vL16}, v[20:23], {sr(sBa)} sc1
            global_store_dwordx4 v{vL16}, v[20:23], {sr(sBa)} offset:1024 sc1
            s_mov_b32 exec_hi, 0
            global_store_dwordx4 v{vL16}, v[20:23], {sr(sBa)} offset:2048 sc1
            s_mov_b64 exec, -1
            ''')
        if_e(f)


def finalizer():
    a(f'''
    s_cmp_ge_u32 s{sRi}, 30
    s_cbranch_scc1 L_hx0
    ds_read_b32 v21, v62
    s_mul_i32 s{sU2}, s{sX}, 10
    s_add_u32 s{sU2}, s{sU2}, s{sRi}
    s_sub_u32 s{sU2}, s{sU2}, 20                   ; f
    v_mov_b32 v26, 0
    v_mov_b32 v27, 0
    s_waitcnt lgkmcnt(0)
    v_readfirstlane_b32 s{sU0}, v21
    s_and_b32 s{sU1}, s{sU0}, 255
    s_mul_i32 s{sU1}, s{sU1}, {REC_STRIDE}
    ''')
    base_add(sBa, WS, sU1, REC_G + REC_BASE)
    done = [f'global_load_dwordx4 v[32:35], v26, {sr(sBa)} sc1']
    a(f'''
    v_and_b32 v20, 1, v{vL}
    v_lshrrev_b32 v21, 4, v{vL}
    v_lshl_add_u32 v20, v20, 2, v21
    s_lshl_b32 s{sT}, s{sU2}, 3
    v_add_u32 v20, s{sT}, v20
    s_lshr_b32 s{sCand}, s{sU2}, 4                 ; j
    s_cmp_ge_u32 s{sCand}, 3
    s_cselect_b32 s{sT}, 3, 0
    s_sub_u32 s{sCand}, s{sCand}, s{sT}            ; dword inside the quad
    s_mul_i32 s{sT}, s{sT}, 342
    s_and_b32 s{sT}, s{sT}, 1024
    v_bfe_u32 v26, v20, 1, 6
    v_lshl_add_u32 v26, v26, 4, s{sT}
    {done[0] if not BL else ''}
    v_lshlrev_b32 v20, 1, v20                      ; 2d
    v_add_u32 v21, {MODB_L + 3840}, v20
    v_mov_b32 v22, 0
    ds_read_u16_d16_hi v22, v21                    ; gb[d]
    s_and_b32 s{sU1}, s{sU0}, 0x7ff
    s_mul_i32 s{sU1}, s{sU1}, 1280
    ''')
    base_add(sXrow, OUTP, sU1)
    a(f'''
    s_and_b32 s{sU1}, s{sU0}, 0xfffff800
    s_or_b32 s{sU1}, s{sU1}, 0x400
    s_xor_b32 s{sU3}, s{sU1}, 0x80000000
    s_not_b32 s{sT}, s{sU1}
    s_cmp_lt_i32 s{sU1}, 0
    s_cselect_b32 s{sU1}, s{sU3}, s{sT}
    v_mov_b32 v28, s{sU1}
    ''')
    a(f'''
    v_mul_f32 v28, 0xbfb8aa3b, v28
    v_exp_f32 v28, v28
    v_add_f32 v28, 1.0, v28
    v_rcp_f32 v28, v28
    ''')
    a(f'''
    v_lshrrev_b32 v29, 1, v{vL}
    v_mul_u32_u24 v29, {PY_STRIDE}, v29
    v_and_b32 v30, 16, v{vL16}
    v_add_u32 v29, v29, v30
    v_add_u32 v30, {32 * PY_STRIDE}, v29
    v_add_u32 v31, {64 * PY_STRIDE}, v29
    s_lshl_b32 s{sU2}, s{sU2}, 5
    ''')
    base_add(sBb, WS, sU2, PY_G)
    a('s_waitcnt lgkmcnt(0)')
    a('v_mul_f32 v22, v22, v28')
    bar('B9')

    def base_in(younger):
        poll(done, [35], [], empty='word', issued=True, younger=younger)
        a(f'''
        s_cmp_eq_u32 s{sCand}, 1
        s_cselect_b64 vcc, -1, 0
        v_cndmask_b32 v27, v32, v33, vcc
        s_cmp_eq_u32 s{sCand}, 2
        s_cselect_b64 vcc, -1, 0
        v_cndmask_b32 v27, v27, v34, vcc
        v_and_b32 v32, 16, v{vL}
        v_lshrrev_b32 v27, v32, v27
        v_lshlrev_b32 v27, 16, v27
        ''')
    if not BL:
        base_in(0)
    bar('B10')
    if PYD:
        a(done[0])
        a('s_waitcnt vmcnt(0)')
    stamp('PY poll', 'H0')
    if BL:
        a(done[0])
    poll([f'global_load_dwordx4 {vr(36 + 4 * n, 4)}, v{29 + n}, {sr(sBb)} sc1' for n in range(3)],
         list(range(36, 48)), [48, 49], empty='tag', between=(lambda: base_in(3)) if BL else None)
    a(f'''
    v_pk_add_f32 v[36:37], v[36:37], v[40:41]
    v_pk_add_f32 v[38:39], v[38:39], v[42:43]
    v_pk_add_f32 v[36:37], v[36:37], v[44:45]
    v_pk_add_f32 v[38:39], v[38:39], v[46:47]
    v_permlane32_swap_b32 v36, v38
    v_permlane32_swap_b32 v37, v39
    v_pk_add_f32 v[36:37], v[36:37], v[38:39]
    v_permlane16_swap_b32 v36, v37
    v_add_f32 v36, v36, v37
    ''')
    for c in ('row_ror:8', 'row_ror:4', 'row_ror:2'):
        dpp('v_add_f32', 36, c)
    a(f'''
    v_fma_f32 v36, v36, v22, v27
    v_cvt_pk_bf16_f32 v36, v36, v36
    s_mov_b32 exec_lo, 0x00030003
    s_mov_b32 exec_hi, 0x00030003
    global_store_short v20, v36, {sr(sXrow)} {FINPOL}
    s_mov_b64 exec, -1
    ''')


def helper_tail(h, P, red_load, red_work, modf_load, modf_work):
    bar('BT')
    bar('BP')
    if PL and not GLATE and h == 0:
        a(f's_sub_u32 s{sT}, s{sRi}, 10')
        a(f's_cmp_lt_u32 s{sT}, 20')
        a('s_cbranch_scc0 L_pl')
        publish()
        a.label('L_pl')
    if GLATE:
        a(f's_cmp_lt_u32 s{sRi}, 10')
        a(f's_cbranch_scc1 L_gl{h}')
        bar('B1')
        if h == 0:
            a(f's_cmp_lt_u32 s{sRi}, 30')
            a(f's_cbranch_scc0 L_gl{h}')
            publish()
        a.label(f'L_gl{h}')
    a(f's_cmp_ge_u32 s{sIdx}, {NJ}')
    a(f's_cbranch_scc1 L_idle{h}')
    bar('B2')
    red_load()
    w_gather(W_R if h else W_I, WST + (0 if h else 8192))
    bar('B3')
    a('s_waitcnt vmcnt(0)')
    stamp('W in', P)
    if RE:
        red_work()
    bar('B3b')
    if AL1:
        bar('B3c')
    if h == 0:
        touch_small()
    if not RE:
        red_work()
    bar('B4')
    a('s_waitcnt vmcnt(0)')
    modf_load()
    if EG3:
        if_e(lambda: e_gather(1 - h, 0, EG3))
    bar('B5')
    if h == 0:
        a(f's_cmp_lt_u32 s{sRi}, 20')
        a(f's_waitcnt vmcnt({EG3})')
        a('s_cbranch_scc0 L_h0_m')
        a('s_waitcnt vmcnt(0)')
        a.label('L_h0_m')
    modf_work()
    bar('B5b')
    if AL2:
        bar('B5c')
    if S_W[2] == 8:
        warm_addr_f(h, 8)
    if W8 == 0:
        bar('B6')
    if S_W[2] == 8:
        a(f's_cmp_lt_u32 s{sRi}, 20')
        a(f's_cbranch_scc0 L_w8{h}')
        warm_issue(h, 8)
        a.label(f'L_w8{h}')
    if W8 == 1:
        bar('B6')
    if_e(lambda: (e_gather(1 - h, EG3, 20), wd_load(1 - h) if S_W[2] != 8 else None))
    if h == 0:
        a(f'''
        s_cmp_lg_u32 s2, 8
        s_cbranch_scc1 L_h0_ne
        v_mov_b32 v26, {EPOCH_G}
        s_mov_b64 exec, 1
        global_store_dword v26, v27, {sr(WS)} sc1
        s_mov_b64 exec, -1
        ''')
        a.label('L_h0_ne')
    a.label(f'L_hend{h}')
    a(f'''
    v_mul_u32_u24 v60, {REC_STRIDE}, v{vL}
    v_add_u32 v60, {REC_G + 128 * h * REC_STRIDE}, v60
    v_add_u32 v61, {64 * REC_STRIDE}, v60
    v_mov_b32 v62, {KEYL + 4}
    v_lshlrev_b32 v63, 7, v{vL}
    v_add_u32 v63, {REC_G + REC_H2}, v63
    s_movk_i32 s{sU0}, {REC_STRIDE}
    s_cmp_lt_u32 s{sRi}, 20
    ''')
    bar('B7')
    a('s_waitcnt vmcnt(0)')
    a(f's_cbranch_scc1 L_hx{h}')
    if S_W[2] == 8:
        assert FWL and IWD
        wd_load(1 - h)
    kl = [f'global_load_dwordx2 v[64:65], v60, {sr(WS)} sc1', f'global_load_dwordx2 v[66:67], v61, {sr(WS)} sc1']
    if KP == 1:
        bar('B7b')
    if KD:
        bar('B7c')
    stamp('key poll', P)
    poll(kl, [65, 67], [68, 69], empty='word', between=(lambda: bar('B7b')) if KP == 0 else None)
    a('v_max_u32 v64, v64, v66')
    for c in ('row_ror:8', 'row_ror:4', 'row_ror:2', 'row_ror:1'):
        dpp('v_max_u32', 64, c)
    a(f'''
    s_mov_b32 exec_lo, 0x00010001
    s_mov_b32 exec_hi, 0x00010001
    ds_max_u32 v62, v64
    s_mov_b64 exec, -1
    s_waitcnt lgkmcnt(0)
    ''')
    bar('B8')
    if h == 0:
        finalizer()
    a.label(f'L_hx{h}')
    stamp('end', P)
    dump_stamps(P)
    a('s_endpgm')
    a.label(f'L_idle{h}')
    warm_addr_f(h, 7)
    ps = ffn_parts(7)
    can = [f'global_load_dword v113, v110, {sr(WS)} sc1']
    if h == 1:
        a(f'''
        v_add_u32 v110, s{sIdx}, v{vL}
        v_and_b32 v110, 7, v110
        v_mul_u32_u24 v110, {NJ}, v110
        v_lshrrev_b32 v111, 3, v{vL}
        v_mad_u32_u24 v110, v111, 5, v110
        v_mul_u32_u24 v110, {T2S}, v110
        s_lshl_b32 s{sU0}, s{sMe}, 6
        s_add_u32 s{sU0}, s{sU0}, {T2_G + CANJ * T2S + 60}
        v_add_u32 v110, s{sU0}, v110
        ''')
        assert CANJ + 5 * max(NCAN // 8 - 1, 0) < NJ
    bar('B2')
    red_load()
    if h == 1:
        mask_lanes(NCAN)
        a(can[0])
        a('s_mov_b64 exec, -1')
    warm_issue(h, 7, ps[:EARLY])
    bar('B3')
    if TB2 and h == 1:
        a(f's_waitcnt vmcnt({len(ps[:EARLY]) + 1})')
    if RE and h == 0:
        a(f's_waitcnt vmcnt({len(ps[:EARLY])})')
        red_work()
        red_work = lambda: None
    bar('B3b')
    ieg = IEG
    if ISEQ == 0:
        warm_issue(h, 7, ps[EARLY:])
        if h == 0:
            a(f's_waitcnt vmcnt({len(ps)})')
            red_work()
            touch_small()
        nd = sum(1 for n, k in ps[EARLY:] if n == 2)
        a(f's_waitcnt vmcnt({nd + (NT if h == 0 else 0)})')
        stamp('warm in', P)
        e_gather(1 - h, 0, MF)
        modf_load()
        e_gather(1 - h, MF, IEG)
        if IWD == 0:
            wd_load(1 - h)
        if h == 0:
            a(f's_waitcnt vmcnt({IEG - MF + 10 * (IWD == 0)})')
        modf_work()
        bar('B5b')
    else:
        assert EARLY == 2 and S_W[0] == 7
        if h == 0:
            a(f's_waitcnt vmcnt({EARLY})')
            red_work()
            touch_small()
        a(f's_waitcnt vmcnt({NT if h == 0 else 0})')
        stamp('warm in', P)
        e_gather(1 - h, 0, 10)
        if ISEQ == 2:
            a('s_waitcnt vmcnt(0)')
            warm_issue(h, 7, ps[EARLY:])
        if h == 0:
            if ISEQ == 1:
                a('s_waitcnt vmcnt(0)')
            modf_load()
            a('s_waitcnt vmcnt(0)')
        modf_work()
        bar('B5b')
        if ISEQ == 1:
            warm_issue(h, 7, ps[EARLY:])
        ieg = max(IEG, 10)
        if ieg > 10:
            a('s_waitcnt vmcnt(0)')
            e_gather(1 - h, 10, ieg)
    a('s_waitcnt vmcnt(0)')
    stamp('ffn in', P)
    if h == 1:
        poll(can, [113], [], mask=NCAN, empty='word')
        stamp('can', P)
    bar('B5c')
    bar('B6')
    e_gather(1 - h, ieg, 20)
    if IWD and S_W[2] != 8:
        wd_load(1 - h)
    a(f's_branch L_hend{h}')
    flush_late()


def helper0():
    a.label('L_h0')
    a(f's_mov_b32 s{sHI}, 0xffff0000')
    a(f'''
    v_mov_b32 v20, 0
    v_mov_b32 v21, 0
    v_mov_b32 v22, 0
    v_mov_b32 v23, 0
    v_mov_b32 v28, {KEYL}
    ds_write_b128 v28, v[20:23]
    ''')
    blk_id(sCand)
    warm_addr_w()
    warm_addr_f(0, 0)
    a(f'''
    s_lshl_b32 s{sU2}, s{sCand}, 8
    v_lshlrev_b32 v28, 5, v{vL}
    s_cmp_lt_u32 s{sRi}, 10
    s_waitcnt lgkmcnt(0)
    ''')
    epoch_load()
    if B0 in (1, 2):
        bar('B0')
    a('s_cbranch_scc1 L_h0_s0')
    if B0 == 3:
        bar('B0')
    warm_issue(0, 0)
    a.label('L_h0_s0')
    stamp('kernarg', 'H0')
    base_add(sPb, WS, sU2)
    if 'm' in TCH:
        a(f's_cmp_lt_u32 s{sRi}, 10')
        a('s_cbranch_scc0 L_h0_s2')
        a(f'global_store_dword v{vL4}, v20, {sr(sPb)} sc1')
        a('s_waitcnt vmcnt(0)')
        a.label('L_h0_s2')
    e_addr(W_U)
    w_addr()
    a('s_waitcnt lgkmcnt(0)')
    epoch_tag()
    tag_bytes()
    a(f'''
    v_mov_b32 v27, s{sTag}
    v_lshlrev_b32 v34, 3, v{vL}
    v_add_u32 v29, {MODB_L}, v34
    v_and_b32 v34, 24, v34
    v_bfe_u32 v34, v27, v34, 8
    v_mov_b32 v33, 0xffffff00
    s_sub_u32 s{sU0}, s{sCand}, 40
    s_cmp_lt_u32 s{sU0}, 40
    s_cselect_b32 s{sU1}, 1.0, 0
    s_and_b32 s{sU0}, s{sCand}, 3
    s_cselect_b32 s{sU1}, 0, s{sU1}
    v_mov_b32 v35, s{sU1}
    v_add_u32 v30, {MODF_G}, v{vL16}
    v_add_u32 v31, {MODF_G + 4096}, v{vL16}
    v_add_u32 v32, {MODF_G + 8192}, v{vL16}
    s_cmp_lt_u32 s{sRi}, {10 if (GLATE or PL) else 30}
    ''')
    if GLATE:
        a('s_cbranch_scc0 L_h0_np')
    bar('B1')
    a('s_cbranch_scc0 L_h0_np')
    publish()
    a(f's_cmp_lt_u32 s{sRi}, 10')
    a('s_cbranch_scc0 L_h0_np')
    if AW:
        a('s_waitcnt vmcnt(0)')
    a.label('L_h0_np')
    red = [f'global_load_dwordx4 v[40:43], v{vL16}, {sr(sPb)} sc1']
    modf = [f'global_load_dwordx4 {vr(40 + 4 * n, 4)}, v{30 + n // 4}, {sr(WS)} offset:{1024 * (n % 4)} sc1' for n in range(10)]

    def in_w1(k):
        L = newlabel('nr')
        a(f'''
        s_sub_u32 s{sT}, s{sRi}, 10
        s_cmp_lt_u32 s{sT}, 20
        s_cbranch_scc0 {L}
        s_and_b32 s{sT}, s{sCand}, 3
        s_cbranch_scc1 {L}
        ''')
        if k == 0:
            a(red[0])
            a.label(L)
            return
        poll(red, [40, 41, 42, 43], [44], empty='tag', issued=True, younger=63)
        a(f'''
        v_mov_b32 v44, v40
        v_mov_b32 v45, v41
        v_mov_b32 v46, v42
        v_mov_b32 v47, v43
        s_lshr_b32 s{sU0}, s{sCand}, 2
        s_sub_u32 s{sT}, s{sU0}, 40
        s_cmp_lt_u32 s{sT}, 10
        s_cselect_b32 s{sU1}, 1.0, 0
        s_lshl_b32 s{sU0}, s{sU0}, 8
        s_add_u32 s{sU0}, s{sU0}, {MODF_G - 20 * 256}
        ''')
        for sw in ('32', '16'):
            for r in range(4):
                a(f'v_permlane{sw}_swap_b32 v{40 + r}, v{44 + r}')
            a('v_pk_add_f32 v[40:41], v[40:41], v[44:45]')
            a('v_pk_add_f32 v[42:43], v[42:43], v[46:47]')
            if sw == '32':
                for r in range(4):
                    a(f'v_mov_b32 v{44 + r}, v{40 + r}')
        a('v_cvt_pk_bf16_f32 v44, v40, v41')
        a('v_cvt_pk_bf16_f32 v45, v42, v43')
        unpack(40, 41, 44)
        unpack(42, 43, 45)
        for r in range(4):
            a(f'v_add_f32 v{40 + r}, s{sU1}, v{40 + r}')
        a(f'''
        v_cvt_pk_bf16_f32 v44, v40, v41
        v_cvt_pk_bf16_f32 v45, v42, v43
        v_mov_b32 v47, s{sTag}
        v_add_u32 v48, s{sU0}, v{vL16}
        s_mov_b64 exec, 0xffff
        global_store_dwordx4 v48, v[44:47], {sr(WS)} sc1
        s_mov_b64 exec, -1
        ''')
        stamp('reduced', 'H0')
        a.label(L)

    def in_w2(k):
        if k == 0:
            for ld in modf:
                a(ld)
            return
        poll(modf, [43 + 4 * n for n in range(10)], list(range(80, 90)), empty='words', issued=True, younger=63)
        for n in range(10):
            a(f'ds_write_b64 v29, {vr(40 + 4 * n, 2)} offset:{512 * n}')
        a('s_waitcnt lgkmcnt(0)')
        stamp('modb in', 'H0')
    helper_tail(0, 'H0', lambda: in_w1(0), lambda: in_w1(2), lambda: in_w2(0), lambda: in_w2(1))


def helper1():
    a.label('L_h1')
    a(f'''
    s_getpc_b64 {sr(sBa)}
    L_pc:
    s_add_u32 s{sBb}, s{sBa}, L_tables-L_pc
    s_addc_u32 s{sBb + 1}, s{sBa + 1}, 0
    ''')

    def tabs(q0, q1):
        for q in range(q0, q1):
            if q % 4 == 0 or q == q0:
                a(f's_mov_b32 m0, {TAB + (q & ~3) * 1024}')
                a(f'v_add_u32 v20, {(q & ~3) * 1024}, v{vL16}')
            a(f'global_load_lds_dwordx4 v20, {sr(sBb)} offset:{1024 * (q % 4)}')

    def tab2():
        tabs(NT1, NTAB)
        a(f'''
        s_mov_b32 m0, {WR_L}
        global_load_lds_dwordx4 v{vL16}, {sr(B_WR)}
        s_mov_b64 exec, 0xffff
        global_load_lds_dwordx4 v{vL16}, {sr(B_WR)} offset:1024
        s_mov_b64 exec, -1
        ''')
        return NTAB - 14 + 2

    a(f's_cmp_lt_u32 s{sRi}, 10')
    a('s_cbranch_scc1 L_h1_a')
    warm_addr_w()
    warm_addr_f(1, 0)
    a('s_waitcnt lgkmcnt(0)')
    epoch_load()
    if B0:
        bar('B0')
    tabs(0, NT1)
    if not TB2:
        tab2()
    warm_issue(1, 0)
    e_addr(W_G)
    w_addr()
    a('s_waitcnt lgkmcnt(0)')
    epoch_tag()
    if not GLATE:
        bar('B1')
    a(f's_waitcnt vmcnt({min(BGWAIT, 2 + len(ffn_parts(0)))})')
    a('s_branch L_h1_u')
    a.label('L_h1_a')
    if B0 in (1, 2):
        bar('B0')
    w_addr()
    a('s_waitcnt lgkmcnt(0)')
    e_addr(W_G)
    bar('B1')
    tabs(0, NT1)
    tab2()
    a('s_waitcnt vmcnt(0)')
    a.label('L_h1_u')
    stamp('tab in', 'H1')
    nop = lambda: None
    def tb2():
        L = newlabel('tb')
        a(f's_cmp_lt_u32 s{sRi}, 10')
        a(f's_cbranch_scc1 {L}')
        tab2()
        a.label(L)
    helper_tail(1, 'H1', tb2 if TB2 else nop, nop, nop, nop)


prologue()
main_path()
helper0()
helper1()
body = a.finish()

hdr = open(f'cdna_kernels/{NAME}.s.ref').read().split('; Override launch')[0]
T = tables()
tab = []
flat = T.reshape(-1)
for k in range(0, flat.size, 8):
    tab.append('.long ' + ','.join('0x%08x' % v for v in flat[k:k + 8]))

launch = f'; @launch grid=(256,1,1) block=(640,1,1) lds={LDS_BYTES}'
pre_code = pre_kd = ''
if PRE:
    launch = f'; @launch kernel=pre_kernel grid=({PRE},1,1) block=(64,1,1) lds=0\n; @launch kernel={NAME}_kernel grid=(256,1,1) block=(640,1,1) lds={LDS_BYTES}'
    pre_code = '.globl pre_kernel\n.p2align 8\n.type pre_kernel,@function\npre_kernel:\n    s_endpgm\n'
    pre_kd = '''.p2align 6
.amdhsa_kernel pre_kernel
  .amdhsa_next_free_vgpr 8
  .amdhsa_next_free_sgpr 16
  .amdhsa_accum_offset 8
  .amdhsa_group_segment_fixed_size 0
  .amdhsa_kernarg_size 104
  .amdhsa_user_sgpr_count 2
  .amdhsa_user_sgpr_kernarg_segment_ptr 1
  .amdhsa_system_sgpr_workgroup_id_x 1
.end_amdhsa_kernel
'''
src = hdr + f'''{launch}
.amdgcn_target "amdgcn-amd-amdhsa--gfx950"
.text
{pre_code}.globl {NAME}_kernel
.p2align 8
.type {NAME}_kernel,@function
{NAME}_kernel:
{body}
.p2align 8
.type L_tables,@object
L_tables:
''' + '\n'.join(tab) + f'''
.size L_tables, {NTAB * 1024}
.fill (8192 - ((. - {NAME}_kernel) & 8191)) & 8191, 1, 0
L_tables_end:
.section .rodata,"a"
.p2align 6
.amdhsa_kernel {NAME}_kernel
  .amdhsa_next_free_vgpr 168
  .amdhsa_next_free_sgpr 102
  .amdhsa_accum_offset 168
  .amdhsa_group_segment_fixed_size 0
  .amdhsa_kernarg_size 104
  .amdhsa_user_sgpr_count 2
  .amdhsa_user_sgpr_kernarg_segment_ptr 1
  .amdhsa_system_sgpr_workgroup_id_x 1
.end_amdhsa_kernel
{pre_kd}'''
open(OUT, 'w').write(src)
print('wrote', OUT, 'lds', LDS_BYTES, 'lines', len(a.lines), 'nops', a.nnops)
```

```python
import sys, struct
import numpy as np
from asmdsl import Asm

NAME = 'adaLN_cond__spectral_gfnet__moe_arch_mod__prompt'
DIAG = '--diag' in sys.argv or '--dbgdiag' in sys.argv
DBGDIAG = '--dbgdiag' in sys.argv
OUT = [a for a in sys.argv[1:] if not a.startswith('--')]
OUT = OUT[0] if OUT else f'cdna_kernels/{NAME}.s'
SPIN = 60000


def opt(name, default):
    for x in reversed(sys.argv):
        if x.startswith(f'--{name}='):
            return x.split('=', 1)[1]
    return default


PROBE = opt('probe', None)
PROBEWG = int(opt('probewg', 8))
FINE = opt('fine', None)
if PROBE or FINE:
    DIAG = True
PRE = None
INPOL = 'nt'
S_W = [int(x) for x in opt('sw', '777')]
EG3 = int(opt('eg3', 10))
PACE1 = int(opt('pace1', 0))
PACE2 = int(opt('pace2', 0))
PK = opt('pk', '110')
P3FIRST = int(opt('p3first', 1))
WFIRST = int(opt('wfirst', 1))
DR1 = int(opt('dr1', 0))
DR2 = int(opt('dr2', 0))
BGWAIT = int(opt('bgwait', 9))
EARLY = int(opt('early', 2))
MATS = int(opt('mats', 2))
IEG = int(opt('ieg', 16))
IWD = int(opt('iwd', 1))
MF = int(opt('mf', 10))
MR = int(opt('mr', 0))
BLOAD = int(opt('bload', 2))
P2ORD = int(opt('p2ord', 1))
GLATE = int(opt('glate', 0))
B0 = int(opt('b0', 3))
FWL = int(opt('fwl', 0))
KP = int(opt('kp', 1))
PF = int(opt('pf', 0))
XL = int(opt('xl', 3))
WC = int(opt('wc', 0))
KD = int(opt('kd', 0))
ISEQ = int(opt('iseq', 0))
RE = int(opt('re', 1))
FINPOL = opt('finpol', '')
PYD = int(opt('pyd', 0))
TCH = opt('tch', 'mkp')
NT = ('k' in TCH) + 3 * ('p' in TCH)
PKS = int(opt('pks', 1))
P3O = int(opt('p3o', 0))
PRIO = opt('prio', '000')
AL1 = int(opt('al1', 0))
AL2 = int(opt('al2', 0))
OE = int(opt('oe', 1))
BL = int(opt('bl', 0))
PL = int(opt('pl', 1))
AW = int(opt('aw', 1))
W8 = int(opt('w8', 0))
TB2 = int(opt('tb2', 0))
MW = int(opt('mw', 0))
XMAP = int(opt('xmap', '0x35762410'), 16)
EX = int(opt('ex', 4))
AT = int(opt('at', 1))
AX = int(opt('ax', 1))
WPOS = int(opt('wpos', 0))
SC_ = int(opt('sc', 1))
XP = int(opt('xp', 0))
BG = int(opt('bg', 0))
MT = int(opt('mt', 1))
S1 = int(opt('s1', 3))
PB = int(opt('pb', 1))
NCAN = int(opt('ncan', 1))
CANJ = int(opt('canj', 12))
NJ = 22
T1S = 8 * NJ * 64 + int(opt('t1pad', 0))
T2S = 16384 + int(opt('t2pad', 256))

MODA_G = 0
MODF_G = 61440
EPOCH_G = 73728
PY_G = 0x20000
PY_STRIDE = 2688
REC_G = 0x80000
REC_STRIDE = 4224
REC_H2 = 128
REC_BASE = 128 + 2048
T1_G = 0x400000
T2_G = 0x800000
DIAG_G = 0xC00000

NTAB = 26
TAB = 0
RED = TAB + NTAB * 1024
KEYL = RED + 2048
XB2 = KEYL + 64
SA = 736
XB1 = XB2 + 20480
MODA_L = XB1 + 16 * SA
MODB_L = MODA_L + 5120
WR_L = MODB_L + 5120
WST = WR_L + 2048
EW = WST + 16384
FW = EW + 40960
STL = FW + 20480
LDS_BYTES = STL + 256
assert LDS_BYTES <= 163840, LDS_BYTES

T_F20C, T_F20S, T_TW1, T_F32A, T_ADR, T_TW3, T_F20I, T_F32B, T_F16, T_TW2 = 0, 1, 2, 6, 10, 11, 15, 18, 22, 24
NT1 = 11


def f2u(x):
    return struct.unpack('<I', struct.pack('<f', float(x)))[0]


def bf(x):
    u = f2u(x)
    return ((u + 0x7FFF + ((u >> 16) & 1)) >> 16) & 0xFFFF


def pk(lo, hi):
    return bf(lo) | (bf(hi) << 16)


ALPHA = {16: 1.1328, 20: 1.4294, 32: 1.62445}


def cs(num, den):
    a = 2 * np.pi * (num % den) / den
    c, s = np.cos(a), np.sin(a)
    if abs(c) < 1e-12: c = 0.0
    if abs(s) < 1e-12: s = 0.0
    al = ALPHA.get(den, 1.0)
    return c * al, s * al


def kaof(x):
    ka = 3 * (x >> 2) + (x & 3)
    return ka if (x & 3) < 3 and ka <= 10 else None


def tables():
    T = np.zeros((NTAB, 64, 4), np.uint32)
    for l in range(64):
        i, g = l & 15, l >> 4
        c8, s8 = [0.0] * 8, [0.0] * 8
        for j in range(5):
            if kaof(i) is not None:
                c, s = cs((4 * j + g) * kaof(i), 20)
                c8[j], s8[j] = c, -s
        for d in range(4):
            T[T_F20C, l, d] = pk(c8[2 * d], c8[2 * d + 1])
            T[T_F20S, l, d] = pk(s8[2 * d], s8[2 * d + 1])
        for t in range(2):
            for r in range(4):
                c, s = cs((8 * g + 2 * r + t) * (kaof(i) or 0), 640)
                T[T_TW1 + 2 * t, l, r] = f2u(c)
                T[T_TW1 + 2 * t + 1, l, r] = f2u(s)
                c, s = cs((2 * i + t) * (kaof(4 * g + r) or 0), 640)
                T[T_TW3 + 2 * t, l, r] = f2u(c)
                T[T_TW3 + 2 * t + 1, l, r] = f2u(s)
        kbof = lambda e: e if e < 16 else 47 - e
        for tile in range(2):
            for ks in range(2):
                for r in range(4):
                    c, s = cs(kbof(2 * i + tile) * (8 * g + 2 * r + ks), 32)
                    T[T_F32A + tile * 2 + ks, l, r] = pk(c, s)
                    c, s = cs((2 * i + tile) * kbof(8 * g + 2 * r + ks), 32)
                    T[T_F32B + tile * 2 + ks, l, r] = pk(c, s)
        ka_ = kaof(i)
        k0 = 0 if ka_ is None else (160 * g + ka_ if g < 2 else 160 * g - 300 - ka_)
        T[T_ADR, l, 0] = 8 * k0
        T[T_ADR, l, 1] = 0x8000 if i < 8 else 0x80000000
        T[T_ADR, l, 2] = 0 if g < 2 else 0x8000
        T[T_ADR, l, 3] = 0x8000 if g < 2 else 0
        for r in range(4):
            c, s = cs(i * (4 * g + r), 16)
            T[T_F16, l, r] = pk(c, s)
            T[T_F16 + 1, l, r] = pk(-s, c)
            c, s = cs(i * (4 * g + r), 256)
            T[T_TW2, l, r] = f2u(c)
            T[T_TW2 + 1, l, r] = f2u(s)
            ka = kaof(4 * g + r)
            if ka is not None:
                a1 = 4 * (i & 3) + (i >> 2)
                c, s = cs(a1 * ka, 20)
                T[T_F20I, l, r] = pk(c, -s)
                c, s = cs((16 + (i >> 2)) * ka, 20)
                if (i & 3) == 0:
                    T[T_F20I + 1, l, r] = pk(c, -s)
                if (i & 3) == 1:
                    T[T_F20I + 2, l, r] = pk(c, -s)
    return T


def vr(a, n=1):
    return f'v{a}' if n == 1 else f'v[{a}:{a + n - 1}]'


def sr(a, n=2):
    return f's{a}' if n == 1 else f's[{a}:{a + n - 1}]'


sW, sX, sIdx, sMe, sT = 3, 4, 5, 6, 7
A_X, W_R, W_I, B_WR, W_G, W_U, W_D = 8, 10, 12, 16, 18, 20, 22
C_, W_MOD, OUTP, DBG, WS = 24, 26, 28, 30, 32
sBa, sBb, sBc = 34, 36, 38
sCnt = 40
sM1B = 41
sU0, sU1, sU2, sU3 = 42, 43, 46, 47
sM7 = 44
sRow = 48
sKey = 49
sV1, sV2 = 50, 51
sHI = 52
sCand = 53
sBlk = 54
sRec = 56
sTag = 55
sRi = sIdx
sGU = 56
sXrow = 72
sTS = 74

vL, vL16, vL4, vS, vPoll = 1, 2, 3, 4, 5
vM8F, vM8I = 6, 8
vXS = 10
Ra, Rb, RD, Rc = 20, 28, 36, 52
vF32 = 60
vTW = 92
vF20 = 108
vVec = 120
vE0 = 160
vXR = 150


a = Asm()
stamps = {}
NST = 24


def stamp(name, path='M', wait=True):
    if not DIAG or FINE:
        return
    if opt('only', None) and not (name == 'start' or any(name.startswith(x.replace('_', ' ')) for x in opt('only', '').split(','))):
        return
    if PROBE and (path != 'M' or not (name == 'start' or name.startswith(PROBE))):
        return
    lst = stamps.setdefault(path, [])
    if name not in lst:
        lst.append(name)
    k = lst.index(name)
    assert k < NST
    a(f's_memrealtime s[100:101]')
    a('s_waitcnt lgkmcnt(0)')
    a(f's_mov_b32 s{sTS + k}, s100')


fines = []


def fine(group, name):
    if FINE != group:
        return
    if name not in fines:
        fines.append(name)
    k = fines.index(name)
    assert k < 12
    a(f's_memtime {sr(sTS + 2 * k)}')


def dump_stamps(path='M'):
    if not DIAG:
        return
    if PROBE:
        if path != 'M':
            return
        a(f'''
        s_cmp_lg_u32 s2, {PROBEWG}
        s_cbranch_scc1 L_end
        s_cmp_lg_u32 s{sW}, 0
        s_cbranch_scc1 L_end
        ''')
        if PROBE == 'fix':
            a(f's_movk_i32 s{sU0}, 6000')
        elif PROBE == 'rel':
            RX = int(opt('rx', 1))
            a(f'''
            v_mov_b32 v20, {DIAG_G}
            global_load_dword v21, v20, {sr(WS)} sc1
            global_load_dword v22, v20, {sr(WS)} offset:{128 * RX} sc1
            s_waitcnt vmcnt(0)
            v_sub_u32 v21, v22, v21
            v_add_u32 v21, 100, v21
            v_readfirstlane_b32 s{sU0}, v21
            s_lshl_b32 s{sU0}, s{sU0}, 5
            s_add_u32 s{sU0}, s{sU0}, 6000
            s_min_u32 s{sU0}, s{sU0}, 100000
            ''')
        elif PROBE == 'xcc':
            a(f's_getreg_b32 s{sU0}, hwreg(HW_REG_XCC_ID)')
            a(f's_and_b32 s{sU0}, s{sU0}, 15')
            a(f's_mul_i32 s{sU0}, s{sU0}, 1000')
            a(f's_add_u32 s{sU0}, s{sU0}, 6000')
        else:
            a(f's_sub_u32 s{sU0}, s{sTS + 1}, s{sTS}')
            a(f's_lshl_b32 s{sU0}, s{sU0}, 4')
            a(f's_add_u32 s{sU0}, s{sU0}, 6000')
            a(f's_min_u32 s{sU0}, s{sU0}, 100000')
        a(f'''
        L_probe:
        s_memrealtime s[100:101]
        s_waitcnt lgkmcnt(0)
        s_sub_u32 s{sU1}, s100, s{sTS}
        s_cmp_lt_u32 s{sU1}, s{sU0}
        s_cbranch_scc1 L_probe
        ''')
        return
    if DBGDIAG:
        if path != 'M':
            return
        a('v_mov_b32 v20, 0')
        a('s_mov_b64 exec, 1')
        a(f's_not_b32 s{sU0}, s{sTS}')
        a(f'v_mov_b32 v22, s{sU0}')
        a(f'global_atomic_umax v20, v22, {sr(DBG)} offset:4 sc1')
        ks = [0] + list(range(2, len(stamps['M'])))
        for n, k in enumerate(ks[:14]):
            a(f'v_mov_b32 v{23 + n}, s{sTS + k}')
            a(f'global_atomic_umax v20, v{23 + n}, {sr(DBG)} offset:{8 + 4 * n} sc1')
        print('dbg slots:', [(2 + n, stamps['M'][k]) for n, k in enumerate(ks[:14])])
        return
    a(f'''
    s_lshl_b32 s{sU0}, s2, 11
    s_lshl_b32 s{sU1}, s{sW}, 7
    s_add_u32 s{sU0}, s{sU0}, s{sU1}
    s_memtime s[100:101]
    ''')
    base_add(sBa, WS, sU0, DIAG_G)
    a('v_mov_b32 v20, 0')
    a('s_mov_b64 exec, 1')
    for k in range(0, NST, 2):
        a(f'v_mov_b32 v22, s{sTS + k}')
        a(f'v_mov_b32 v23, s{sTS + k + 1}')
        a(f'global_store_dwordx2 v20, v[22:23], {sr(sBa)} offset:{4 * k}')
        a('s_nop 1')
    a('s_waitcnt lgkmcnt(0)')
    a('s_sub_u32 s100, s100, s98')
    a('v_mov_b32 v22, s100')
    a(f'global_store_dword v20, v22, {sr(sBa)} offset:112')
    a('s_getreg_b32 s42, hwreg(HW_REG_XCC_ID)')
    a('s_getreg_b32 s43, hwreg(HW_REG_HW_ID)')
    a('v_mov_b32 v22, s42')
    a('v_mov_b32 v23, s43')
    a(f'global_store_dwordx2 v20, v[22:23], {sr(sBa)} offset:120')


def base_add(dst, src, off_s=None, imm=0):
    if off_s is not None:
        if imm:
            a(f's_add_u32 s{sT}, s{off_s}, {imm}')
            off_s = sT
        a(f's_add_u32 s{dst}, s{src}, s{off_s}')
    else:
        a(f's_add_u32 s{dst}, s{src}, {imm}')
    a(f's_addc_u32 s{dst + 1}, s{src + 1}, 0')


lblc = [0]
late = []


def flush_late():
    for f in late:
        f()
    late.clear()


def newlabel(p):
    lblc[0] += 1
    return f'L_{p}_{lblc[0]}'


def poll(loads, regs, tmp, mask=None, empty='eq -1', between=None, younger=0, issued=False):
    L, D, Cc = newlabel('poll'), newlabel('polld'), newlabel('pollc')
    if mask is not None:
        mask_lanes(mask)
    if not issued:
        for ld in loads:
            a(ld)
    a(f's_mov_b32 s{sCnt}, {SPIN}')
    if between is not None:
        between()
    if younger < 63:
        a(f's_waitcnt vmcnt({younger})')
    a.label(Cc)

    def retry():
        a.label(L)
        a(f's_sub_u32 s{sCnt}, s{sCnt}, 1')
        a(f's_cbranch_scc1 {D}')
        for ld in loads:
            a(ld)
        a('s_waitcnt vmcnt(0)')
        a(f's_branch {Cc}')
    late.append(retry)
    if empty == 'tag':
        for n, r in enumerate(regs):
            a(f'v_xor_b32 v{r}, s{sTB + (n & 3)}, v{r}')
        rem = list(regs)
        for c in tmp:
            a(f'v_or3_b32 v{c}, v{rem[0]}, v{rem[1]}, v{rem[2]}')
            rem = rem[3:]
        n = 0
        while len(rem) >= 2:
            c = tmp[n % len(tmp)]
            a(f'v_or3_b32 v{c}, v{c}, v{rem[0]}, v{rem[1]}')
            rem = rem[2:]
            n += 1
        t = tmp[0]
        rem = rem + list(tmp[1:])
        while rem:
            if len(rem) >= 2:
                a(f'v_or3_b32 v{t}, v{t}, v{rem[0]}, v{rem[1]}')
                rem = rem[2:]
            else:
                a(f'v_or_b32 v{t}, v{t}, v{rem[0]}')
                rem = rem[1:]
        a(f'v_and_b32 v{t}, 0xff, v{t}')
        empty = 'ne 0'
    elif empty == 'word':
        if len(regs) == 1:
            t = regs[0]
            empty = f'ne s{sTag}'
        else:
            assert len(regs) == 2
            t = tmp[0]
            a(f'v_xor_b32 v{t}, v{regs[0]}, v{regs[1]}')
            a(f'v_xor_b32 v{tmp[1]}, s{sTag}, v{regs[0]}')
            a(f'v_or_b32 v{t}, v{t}, v{tmp[1]}')
            empty = 'ne 0'
    elif empty == 'words':
        for n, r in enumerate(regs):
            a(f'v_xor_b32 v{tmp[n]}, s{sTag}, v{r}')
        t = tmp[0]
        rem = list(tmp[1:len(regs)])
        while rem:
            if len(rem) >= 2:
                a(f'v_or3_b32 v{t}, v{t}, v{rem[0]}, v{rem[1]}')
                rem = rem[2:]
            else:
                a(f'v_or_b32 v{t}, v{t}, v{rem[0]}')
                rem = rem[1:]
        empty = 'ne 0'
    elif len(regs) == 1:
        t = regs[0]
    else:
        rem = list(regs)
        outs = []
        k = 0
        while len(rem) >= 3 and k < len(tmp):
            a(f'v_max3_u32 v{tmp[k]}, v{rem[0]}, v{rem[1]}, v{rem[2]}')
            outs.append(tmp[k])
            rem = rem[3:]
            k += 1
        rem = outs[1:] + rem
        t = outs[0] if outs else None
        if t is None:
            t = tmp[0]
            a(f'v_max_u32 v{t}, v{rem[0]}, v{rem[1]}')
            rem = rem[2:]
        while rem:
            if len(rem) >= 2:
                a(f'v_max3_u32 v{t}, v{t}, v{rem[0]}, v{rem[1]}')
                rem = rem[2:]
            else:
                a(f'v_max_u32 v{t}, v{t}, v{rem[0]}')
                rem = rem[1:]
    a(f'v_cmpx_{empty.split()[0]}_u32 vcc, {empty.split()[1]}, v{t}')
    a(f's_cbranch_execnz {L}')
    a.label(D)
    a('s_mov_b64 exec, -1')


def epoch_load():
    a(f's_load_dword s{sTag}, {sr(WS)}, {EPOCH_G}')


def epoch_tag(d=None):
    d = d or sTag
    a(f'''
    s_and_b32 s{d}, s{sTag}, 0x7f7f7f7f
    s_add_u32 s{d}, s{d}, 0x01010101
    s_or_b32 s{d}, s{d}, 0x80808080
    ''')


sTB = 68


def tag_bytes():
    for k in range(4):
        a(f's_bfe_u32 s{sTB + k}, s{sTag}, {hex(0x80000 | (8 * k))}')


def dpp(op, r, ctrl, rm='0xf'):
    a(f'{op}_dpp v{r}, v{r}, v{r} {ctrl} row_mask:{rm} bank_mask:0xf')


def wave_sum(regs, dst_s, op='v_add_f32'):
    for c in ('row_ror:8', 'row_ror:4', 'row_ror:2', 'row_ror:1'):
        for r in regs:
            dpp(op, r, c)
    for r in regs:
        dpp(op, r, 'row_bcast:15', '0xa')
    for r in regs:
        dpp(op, r, 'row_bcast:31', '0xc')
    for r, s in zip(regs, dst_s):
        a(f'v_readlane_b32 s{s}, v{r}, 63')


def rbf(dst, src):
    a(f'v_cvt_pk_bf16_f32 v{dst}, {src}, {src}')
    a(f'v_and_b32 v{dst}, s{sHI}, v{dst}')


def unpack(dlo, dhi, src):
    a(f'v_lshlrev_b32 v{dlo}, 16, v{src}')
    a(f'v_and_b32 v{dhi}, s{sHI}, v{src}')


def mfma32(d, x, y, c=None):
    a(f'v_mfma_f32_16x16x32_bf16 {vr(d, 4)}, {vr(x, 4)}, {vr(y, 4)}, {vr(c, 4) if c is not None else 0}')


def mfma16(d, x, y):
    a(f'v_mfma_f32_16x16x16_bf16 {vr(d, 4)}, {vr(x, 2)}, {vr(y, 2)}, 0')


def cmul(tr, ti, re, im, c, s, sign, pk=True, n=4, head=0):
    if not pk:
        for r in range(n):
            a(f'v_mul_f32 v{tr + r}, v{re + r}, v{c + r}')
        for r in range(n):
            a(f'v_mul_f32 v{ti + r}, v{im + r}, v{c + r}')
        for r in range(n):
            if sign > 0:
                a(f'v_fma_f32 v{tr + r}, -v{im + r}, v{s + r}, v{tr + r}')
                a(f'v_fmac_f32 v{ti + r}, v{re + r}, v{s + r}')
            else:
                a(f'v_fmac_f32 v{tr + r}, v{im + r}, v{s + r}')
                a(f'v_fma_f32 v{ti + r}, -v{re + r}, v{s + r}, v{ti + r}')
        return
    nr = 'neg_lo:[1,0,0] neg_hi:[1,0,0]'
    for h in (0, 2):
        if head:
            a(f'v_mul_f32 v{tr + h}, v{re + h}, v{c + h}')
            a(f'v_mul_f32 v{tr + h + 1}, v{re + h + 1}, v{c + h + 1}')
        else:
            a(f'v_pk_mul_f32 {vr(tr + h, 2)}, {vr(re + h, 2)}, {vr(c + h, 2)}')
    for h in (0, 2):
        a(f'v_pk_mul_f32 {vr(ti + h, 2)}, {vr(im + h, 2)}, {vr(c + h, 2)}')
    for h in (0, 2):
        a(f'v_pk_fma_f32 {vr(tr + h, 2)}, {vr(im + h, 2)}, {vr(s + h, 2)}, {vr(tr + h, 2)} {nr if sign > 0 else ""}')
    for h in (0, 2):
        a(f'v_pk_fma_f32 {vr(ti + h, 2)}, {vr(re + h, 2)}, {vr(s + h, 2)}, {vr(ti + h, 2)} {nr if sign < 0 else ""}')


def pack4(d, lo, hi, step=1, n=4):
    for r in range(n):
        a(f'v_cvt_pk_bf16_f32 v{d + r * step}, v{lo + r}, v{hi + r}')


def tab_read(dst, q):
    a(f'ds_read_b128 {vr(dst, 4)}, v{vL16} offset:{TAB + q * 1024}')


def tm(j, t):
    return 4 * t + j if j < 4 else 8 + t


def read_tmajor(dst, vaddr, off):
    o = off // 256
    assert off % 256 == 0 and o + 6 < 256
    for t in range(2):
        a(f'ds_read2st64_b32 {vr(dst + 4 * t, 2)}, v{vaddr + t} offset0:{o} offset1:{o + 2}')
        a(f'ds_read2st64_b32 {vr(dst + 4 * t + 2, 2)}, v{vaddr + t} offset0:{o + 4} offset1:{o + 6}')
    a(f'ds_read_b64 {vr(dst + 8, 2)}, v{vaddr} offset:{off + 2048}')


def silu(dst, src, tmp):
    for d, s, t in zip(dst, src, tmp):
        a(f'v_mul_f32 v{t}, 0xbfb8aa3b, v{s}')
    for t in tmp:
        a(f'v_exp_f32 v{t}, v{t}')
    for t in tmp:
        a(f'v_add_f32 v{t}, 1.0, v{t}')
    for t in tmp:
        a(f'v_rcp_f32 v{t}, v{t}')
    for d, s, t in zip(dst, src, tmp):
        a(f'v_mul_f32 v{d}, v{s}, v{t}')


def swap_reduce8(acc):
    for k in range(4):
        a(f'v_permlane32_swap_b32 v{acc + k}, v{acc + k + 4}')
    a(f'v_pk_add_f32 {vr(acc, 2)}, {vr(acc, 2)}, {vr(acc + 4, 2)}')
    a(f'v_pk_add_f32 {vr(acc + 2, 2)}, {vr(acc + 2, 2)}, {vr(acc + 6, 2)}')
    for k in range(2):
        a(f'v_permlane16_swap_b32 v{acc + k}, v{acc + k + 2}')
    a(f'v_pk_add_f32 {vr(acc, 2)}, {vr(acc, 2)}, {vr(acc + 2, 2)}')


BC0 = 'op_sel:[0,0,0] op_sel_hi:[1,0,1]'
BC1 = 'op_sel:[0,1,0] op_sel_hi:[1,1,1]'


def prologue():
    a(f'''
    s_cmp_ge_u32 s2, 256
    s_cbranch_scc1 L_end
    ''')
    if DIAG:
        for k in range(NST):
            a(f's_mov_b32 s{sTS + k}, 0')
        a('s_memtime s[98:99]')
        for p in ('M', 'H0', 'H1'):
            stamps[p] = ['start']
        stamp('start')
    a(f'''
    s_load_dwordx16 s[8:23], s[0:1], 0
    s_load_dwordx8 s[24:31], s[0:1], 64
    s_load_dwordx2 s[32:33], s[0:1], 96
    v_lshrrev_b32 v20, 6, v0
    s_and_b32 s{sX}, s2, 7
    s_lshr_b32 s{sIdx}, s2, 3
    v_readfirstlane_b32 s{sW}, v20
    v_and_b32 v{vL}, 63, v0
    s_lshl_b32 s{sMe}, s{sX}, 5
    s_add_u32 s{sMe}, s{sMe}, s{sIdx}
    v_lshlrev_b32 v{vL16}, 4, v{vL}
    v_lshlrev_b32 v{vL4}, 2, v{vL}
    s_cmp_eq_u32 s{sW}, 9
    s_cbranch_scc1 L_h1
    s_cmp_eq_u32 s{sW}, 8
    s_cbranch_scc1 L_h0
    s_cmp_eq_u32 s{sRi}, 30
    s_cbranch_scc0 L_nopf
    s_cmp_ge_u32 s{sW}, (L_tables_end-{NAME}_kernel)/8192
    s_cbranch_scc1 L_nopf
    s_getpc_b64 {sr(sBa)}
    L_pc0:
    s_sub_u32 s{sBa}, s{sBa}, L_pc0-{NAME}_kernel
    s_subb_u32 s{sBa + 1}, s{sBa + 1}, 0
    v_lshlrev_b32 v21, 7, v0
    global_load_dword v157, v21, {sr(sBa)}
    L_nopf:
    ''')


def xloads():
    for j in range(5):
        a(f'global_load_dword v{vXR + j}, v156, {sr(A_X)} offset:{256 * j} {INPOL}')


def blk_id():
    if EX:
        a(f'''
        s_lshl_b32 s{sT}, s{sX}, 2
        s_lshr_b32 s{sT}, {hex(XMAP)}, s{sT}
        s_and_b32 s{sT}, s{sT}, 7
        s_cmp_lt_u32 s{sIdx}, {80 // EX}
        s_cselect_b32 s{sBlk}, {80 // EX}, {30 - 80 // EX}
        s_cselect_b32 s{sU0}, 0, {80 - 80 // EX}
        s_cmp_lt_u32 s{sT}, {EX}
        s_cselect_b32 s{sBlk}, s{sBlk}, 30
        s_cselect_b32 s{sU0}, s{sU0}, 0
        s_mul_i32 s{sBlk}, s{sBlk}, s{sT}
        ''')
    else:
        a(f'''
        s_cmp_lt_u32 s{sIdx}, 10
        s_cselect_b32 s{sBlk}, 10, 20
        s_cselect_b32 s{sU0}, 0, 70
        s_mul_i32 s{sBlk}, s{sBlk}, s{sX}
        ''')
    a(f'''
    s_add_u32 s{sBlk}, s{sBlk}, s{sU0}
    s_add_u32 s{sBlk}, s{sBlk}, s{sIdx}
    s_cmp_lt_u32 s{sIdx}, 30
    s_cselect_b32 s{sBlk}, s{sBlk}, 0xf1
    ''')


def is_a():
    a(f's_cmp_lt_u32 s{sBlk}, 80')


def is_b():
    a(f's_sub_u32 s{sT}, s{sBlk}, 80')
    a(f's_cmp_lt_u32 s{sT}, 160')


def pub_setup(tag):
    a(f'''
    v_lshlrev_b32 v28, 5, v{vL}
    v_lshlrev_b32 v34, 3, v{vL}
    v_and_b32 v34, 24, v34
    v_bfe_u32 v34, s{tag}, v34, 8
    v_mov_b32 v33, 0xffffff00
    s_sub_u32 s{sU0}, s{sBlk}, 40
    s_cmp_lt_u32 s{sU0}, 40
    s_cselect_b32 s{sU1}, 1.0, 0
    s_and_b32 s{sU0}, s{sBlk}, 3
    s_cselect_b32 s{sU1}, 0, s{sU1}
    v_mov_b32 v35, s{sU1}
    ''')


GV = (130, 142, 48, 56, 158, 159)


def gemv_addr():
    vw, vc, acc, tmp, vo, voc = GV
    blk_id()
    a(f'''
    v_lshrrev_b32 v{voc}, 3, v{vL}
    v_mad_u32_u24 v{voc}, v20, 20, v{voc}
    v_and_b32 v21, 3, s{sBlk}
    v_mul_u32_u24 v21, 160, v21
    v_add_u32 v{voc}, v{voc}, v21
    v_lshrrev_b32 v21, 2, s{sBlk}
    v_and_b32 v{vo}, 0x70, v{vL16}
    v_lshl_add_u32 v{vo}, v21, 7, v{vo}
    v_mul_u32_u24 v21, 7680, v{voc}
    v_add_u32 v{vo}, v{vo}, v21
    v_lshlrev_b32 v{voc}, 1, v{voc}
    v_lshl_add_u32 v156, v20, 8, s{sMe}
    v_mul_u32_u24 v156, 1280, v156
    v_add_u32 v156, v156, v{vL4}
    ''')
    for k in range(4):
        a(f'v_mov_b32 v{vw + 8 + k}, 0')
    a(f'v_mov_b32 v{vc + 2}, 0')


def gemv_issue(scalar=False):
    vw, vc, acc, tmp, vo, voc = GV
    def cl_():
        for j in range(3):
            if j == 2:
                a('s_mov_b32 exec_hi, 0')
            a(f'global_load_ushort v{vc + j}, v{voc}, {sr(C_)} offset:{16 * j}')
        a('s_mov_b64 exec, -1')

    def wl_():
        for j in range(3):
            if j == 2:
                a('s_mov_b32 exec_hi, 0')
            a(f'global_load_dwordx4 {vr(vw + 4 * j, 4)}, v{vo}, {sr(W_MOD)} {INPOL}')
            if j < 2:
                a(f'v_add_u32 v{vo}, {8 * 7680}, v{vo}')
        a('s_mov_b64 exec, -1')
    if scalar:
        wl_()
        a(f'''
        s_and_b32 s{sU0}, s{sBlk}, 3
        s_lshl_b32 s{sU0}, s{sU0}, 3
        s_add_u32 s{sU0}, s{sU0}, s{sW}
        s_mul_i32 s{sU0}, s{sU0}, 40
        s_load_dwordx8 s[56:63], {sr(C_)}, s{sU0}
        s_add_u32 s{sU0}, s{sU0}, 32
        s_load_dwordx2 s[64:65], {sr(C_)}, s{sU0}
        ''')
        return
    cl_()
    wl_()


def gemv_compute(role, after, at_c=None, scalar=False):
    nj = 3
    vw, vc, acc, tmp, vo, voc = GV
    if role == 'B':
        acc = 150
    if scalar:
        a(f'v_lshlrev_b32 v{tmp}, 1, v{vL}')
        a(f'v_and_b32 v{tmp}, 16, v{tmp}')
        a('s_waitcnt lgkmcnt(0)')
        for g in range(4):
            if g == 0:
                a('s_mov_b64 exec, 0xffff')
            else:
                a('s_lshl_b64 exec, exec, 16')
            for j in range(3 if g < 2 else 2):
                a(f'v_lshrrev_b32 v{vc + j}, v{tmp}, s{56 + 4 * j + g}')
        a('s_mov_b64 exec, -1')
    else:
        a(f's_waitcnt vmcnt({nj + (0 if at_c else after)})')
    stamp('c in')
    if at_c:
        at_c()
    cs_ = [vc + j for j in range(nj)]
    for c in cs_:
        a(f'v_lshlrev_b32 v{c}, 16, v{c}')
    silu(cs_, cs_, [tmp + j for j in range(nj)])
    sc = [(145, 146), (147, 148), (149, 59)]
    for c, s in zip(cs_, sc):
        a(f'v_cvt_pk_bf16_f32 v{s[0]}, v{c}, 0')
    for s in sc:
        a(f'v_lshlrev_b32 v{s[1]}, 16, v{s[0]}')
    a(f'''
    v_and_b32 v{vo}, 7, v{vL}
    v_lshlrev_b32 v{vo}, 8, v{vo}
    v_and_b32 v{voc}, 48, v{vL}
    v_lshl_add_u32 v{vo}, v{voc}, 2, v{vo}
    s_lshl_b32 s{sT}, s{sW}, 2
    s_add_u32 s{sT}, s{sT}, {RED}
    v_add_u32 v{vo}, s{sT}, v{vo}
    ''')
    for k in range(8):
        a(f'v_mov_b32 v{acc + k}, 0')
    for j in range(nj):
        a(f's_waitcnt vmcnt({nj - 1 - j + after})')
        for k in (0, 4, 1, 5, 2, 6, 3, 7):
            a(f'v_dot2c_f32_bf16 v{acc + k}, v{vw + 4 * j + k // 2}, v{sc[j][k & 1]}')
    stamp('w in')
    swap_reduce8(acc)
    for c in ('row_ror:8',):
        dpp('v_add_f32', acc, c)
        dpp('v_add_f32', acc + 1, c)
    a(f'''
    s_mov_b32 exec_lo, 0x00ff00ff
    s_mov_b32 exec_hi, 0x00ff00ff
    ds_write2_b32 v{vo}, v{acc}, v{acc + 1} offset0:0 offset1:8
    s_mov_b64 exec, -1
    s_waitcnt lgkmcnt(0)
    ''')


def m8(dst, inverse):
    t0, t1, t2, t3 = 20, 21, 22, 23
    a(f'v_lshrrev_b32 v{t0}, 4, v{vL}           ; g')
    if not inverse:
        a(f'''
        v_bfe_u32 v{t1}, v{vL}, 2, 2
        v_bfe_u32 v{t2}, v{vL}, 1, 1
        v_lshl_add_u32 v{t1}, v{t2}, 2, v{t1}
        v_lshlrev_b32 v{t0}, 9, v{t0}
        v_add_u32 v{t0}, s{sMe}, v{t0}
        v_mul_u32_u24 v{t2}, v{t0}, v{t1}
        v_lshl_add_u32 v{t3}, v{t1}, 8, v{t2}
        ''')
    else:
        a(f'''
        v_bfe_u32 v{t1}, v{vL}, 1, 3
        v_lshlrev_b32 v{t1}, 8, v{t1}
        v_add_u32 v{t1}, s{sMe}, v{t1}
        v_mul_u32_u24 v{t2}, v{t0}, v{t1}
        v_xor_b32 v{t0}, 4, v{t0}
        v_mul_u32_u24 v{t3}, v{t0}, v{t1}
        v_sub_u32 v{t2}, 0, v{t2}
        v_sub_u32 v{t3}, 0, v{t3}
        ''')
    a(f'''
    v_and_b32 v{t0}, 1, v{vL}
    v_lshl_add_u32 v{t2}, v{t0}, 9, v{t2}
    v_lshl_add_u32 v{t3}, v{t0}, 9, v{t3}
    v_and_b32 v{t2}, 0x7ff, v{t2}
    v_and_b32 v{t3}, 0x7ff, v{t3}
    v_cvt_f32_u32 v{t2}, v{t2}
    v_cvt_f32_u32 v{t3}, v{t3}
    v_mul_f32 v{t2}, 0x3a000000, v{t2}
    v_mul_f32 v{t3}, 0x3a000000, v{t3}
    v_cos_f32 v{t0}, v{t2}
    v_sin_f32 v{t2}, v{t2}
    v_cos_f32 v{t1}, v{t3}
    v_sin_f32 v{t3}, v{t3}
    v_cvt_pk_bf16_f32 v{dst}, v{t0}, v{t2}
    v_cvt_pk_bf16_f32 v{dst + 1}, v{t1}, v{t3}
    ''')


INV640 = hex(f2u(1.0 / 640))
EPS = hex(f2u(1e-5))


def rstd_chain(var, out):
    rbf(out, f'v{var}')
    a(f'v_add_f32 v{out}, {EPS}, v{out}')
    rbf(out, f'v{out}')
    a(f'v_sqrt_f32 v{out}, v{out}')
    rbf(out, f'v{out}')
    a(f'v_rcp_f32 v{out}, v{out}')


def sum10(dst2, x):
    a(f'v_pk_add_f32 {vr(dst2, 2)}, {vr(x, 2)}, {vr(x + 2, 2)}')
    for h in (4, 6, 8):
        a(f'v_pk_add_f32 {vr(dst2, 2)}, {vr(dst2, 2)}, {vr(x + h, 2)}')
    a(f'v_add_f32 v{dst2}, v{dst2}, v{dst2 + 1}')


def dot10(dst2, x, y):
    a(f'v_pk_mul_f32 {vr(dst2, 2)}, {vr(x, 2)}, {vr(y, 2)}')
    for h in (2, 4, 6, 8):
        a(f'v_pk_fma_f32 {vr(dst2, 2)}, {vr(x + h, 2)}, {vr(y + h, 2)}, {vr(dst2, 2)}')
    a(f'v_add_f32 v{dst2}, v{dst2}, v{dst2 + 1}')


def prio(k, on):
    if PRIO[k] == '0':
        return
    if not on:
        a('s_setprio 0')
        return
    L = newlabel('pr')
    a(f's_cmp_lt_u32 s{sW}, 4')
    a(f's_cbranch_scc1 {L}')
    a('s_setprio 1')
    a.label(L)


def bar(n):
    a(f's_barrier                                   ; {n}')


def tpoll(loads, lanes_s=None, between=None):
    L, D, Cc = newlabel('poll'), newlabel('polld'), newlabel('pollc')
    if lanes_s:
        a(f's_mov_b64 exec, {lanes_s}')
    for ld in loads:
        a(ld)
    if lanes_s:
        a('s_mov_b64 exec, -1')
    a(f's_mov_b32 s{sCnt}, {SPIN}')
    if between is not None:
        between()
    a('s_waitcnt vmcnt(0)')
    a.label(Cc)
    a(f'''
    v_cmp_ne_u32 vcc, s{sTag}, v{Ra + 3}
    v_cmp_ne_u32 {sr(sBc)}, s{sTag}, v{Ra + 7}
    s_or_b64 vcc, vcc, {sr(sBc)}
    s_and_b64 vcc, vcc, {sr(sM8)}
    s_cbranch_scc1 {L}
    ''')
    a.label(D)

    def retry():
        a.label(L)
        a(f'''
        s_sub_u32 s{sCnt}, s{sCnt}, 1
        s_cbranch_scc1 {D}
        s_lshr_b64 {sr(sBc)}, vcc, 1
        s_or_b64 vcc, vcc, {sr(sBc)}
        s_lshr_b64 {sr(sBc)}, vcc, 2
        s_or_b64 exec, vcc, {sr(sBc)}
        ''')
        for ld in loads:
            a(ld)
        a('s_mov_b64 exec, -1')
        a('s_waitcnt vmcnt(0)')
        a(f's_branch {Cc}')
    late.append(retry)


sM8, sLn, sM3 = 62, 64, 66
vSg0, vSg1, vPair, vPairX = vE0 + 1, vE0 + 2, vE0 + 5, vM8F + 1


def f32_expand(q0, m0, m1):
    for tile in range(2):
        for k in range(8):
            b = vF32 + 16 * tile + k
            a(f'v_alignbit_b32 v{b + 8}, v{b}, v{b}, 16')
            a(f'v_xor_b32 v{b + 8}, v{m1}, v{b + 8}')
            if m0 is not None:
                a(f'v_xor_b32 v{b}, v{m0}, v{b}')


def f32_read(q0):
    for tile in range(2):
        for ks in range(2):
            tab_read(vF32 + 16 * tile + 4 * ks, q0 + 2 * tile + ks)


def setup_addr():
    a(f'''
    v_bfe_u32 v20, v{vL}, 2, 2                    ; cs
    v_and_b32 v21, 48, v{vL16}                    ; part*16
    v_lshrrev_b32 v22, 4, v{vL}                   ; g
    v_lshl_add_u32 v23, v22, 5, v20               ; 32g + cs
    v_mul_u32_u24 v{vPoll}, {T1S}, v23
    v_add_u32 v{vPoll}, v{vPoll}, v21
    v_mul_u32_u24 v23, 80, v23
    s_mul_i32 s{sT}, s{sW}, 320
    s_add_u32 s{sT}, s{sT}, {XB2}
    v_add3_u32 v{vE0 + 4}, v23, v21, s{sT}        ; staging address
    v_mul_u32_u24 v{vS}, {NJ * 64}, v22
    v_and_b32 v23, 0xf0, v{vL16}
    v_add_u32 v{vS}, v{vS}, v23
    v_lshlrev_b32 v{vE0}, 3, v{vL}                ; 8*lane
    v_mul_u32_u24 v22, {4 * SA}, v22
    v_mul_u32_u24 v20, 120, v20
    v_lshl_add_u32 v20, v21, 1, v20
    s_min_u32 s{sT}, s{sW}, 5
    s_mul_i32 s{sT}, s{sT}, 480
    s_add_u32 s{sT}, s{sT}, {XB1}
    v_add3_u32 v{vPair}, v20, v22, s{sT}
    ''')


def setup_masks():
    a(f'''
    s_mov_b32 s{sM7}, 0x77777777
    s_mov_b32 s{sM7 + 1}, 0x77777777
    s_mov_b32 s{sM8}, 0x88888888
    s_mov_b32 s{sM8 + 1}, 0x88888888
    s_mov_b32 s{sM3}, 0x37773777
    s_mov_b32 s{sM3 + 1}, 0x37773777
    s_cmp_eq_u32 s{sW}, 5
    s_cselect_b32 s{sLn}, 0x00ff00ff, -1
    s_mov_b32 s{sLn + 1}, s{sLn}
    ''')


def main_path():
    vZ, vSA, vCA = vVec, vVec + 10, vVec + 20
    gemv_addr()
    is_a()
    a('s_waitcnt lgkmcnt(0)')
    stamp('kernarg')
    a('s_cbranch_scc1 L_a')
    xloads()
    a('s_branch L_a0')
    a.label('L_a')
    gemv_issue(SC_)
    if AX == 0:
        xloads()
    a.label('L_a0')
    epoch_load()
    if S1 >= 1:
        m8(vM8F, False)
    if S1 >= 2:
        m8(vM8I, True)
    if S1 >= 3:
        setup_addr()
    is_a()
    a('s_cbranch_scc0 L_setup')
    a(f's_cmp_lg_u32 s{sW}, 0')
    a('s_cbranch_scc1 L_a1')
    if MT:
        a(f'v_lshl_add_u32 v36, s{sBlk}, 8, v{vL4}')
        a('v_mov_b32 v37, 0')
        a(f'global_store_dword v36, v37, {sr(WS)} sc1')
    a('s_waitcnt lgkmcnt(0)')
    epoch_tag(sV1)
    pub_setup(sV1)
    a.label('L_a1')
    gemv_compute('A', 5, at_c=xloads if AX else None, scalar=SC_)
    a(f's_cmp_lg_u32 s{sW}, 0')
    bar('B1')
    a(f's_cbranch_scc1 {"L_a2" if PB else "L_setup"}')
    publish('M')
    if PB:
        a.label('L_a2')
        bar('B1b')
    a.label('L_setup')
    a(f'''
    s_mov_b32 s{sHI}, 0xffff0000
    s_lshl_b32 s{sRow}, s{sW}, 8
    s_add_u32 s{sKey}, s{sRow}, s{sMe}
    s_mul_i32 s{sRow}, s{sKey}, 1280
    ''')
    if S1 < 1:
        m8(vM8F, False)
    if S1 < 2:
        m8(vM8I, True)
    if S1 < 3:
        setup_addr()
    setup_masks()
    is_a()
    a('s_cbranch_scc1 L_xw')
    is_b()
    a('s_cbranch_scc0 L_nb')
    gemv_issue()
    a.label('L_nb')
    bar('B0')
    a('s_waitcnt vmcnt(6)')
    a('s_cbranch_scc1 L_ln1')
    a('s_waitcnt vmcnt(0)')
    a.label('L_xw')
    a(f's_cmp_eq_u32 s{sW}, 0')
    a('s_waitcnt vmcnt(1)')
    a('s_cbranch_scc1 L_ln1')
    a('s_waitcnt vmcnt(0)')
    a.label('L_ln1')
    stamp('x in')
    for j in range(5):
        unpack(vXS + tm(j, 0), vXS + tm(j, 1), vXR + j)
    sum10(24, vXS)
    wave_sum([24], [sU0])
    a(f'v_mov_b32 v24, {INV640}')
    a(f'v_mul_f32 v26, s{sU0}, v24                ; mean')
    rbf(28, 'v26')
    a(f'v_readfirstlane_b32 s{sM1B}, v28')
    for h in range(0, 10, 2):
        a(f'v_pk_add_f32 {vr(vXS + h, 2)}, {vr(vXS + h, 2)}, v[28:29] op_sel:[0,0] op_sel_hi:[1,0] neg_lo:[0,1] neg_hi:[0,1]')
    dot10(30, vXS, vXS)
    wave_sum([30], [sU0])
    a(f'''
    v_sub_f32 v26, v26, v28
    v_mul_f32 v26, v26, v26
    v_fma_f32 v26, s{sU0}, v24, -v26
    ''')
    rstd_chain(26, 27)
    for j in range(5):
        for t in range(2):
            a(f'v_mul_f32 v{vZ + 2 * j + t}, v27, v{vXS + tm(j, t)}')
    a(f'''
    v_mov_b32 v23, 0
    v_mov_b32 v27, 0
    s_waitcnt lgkmcnt(0)
    ''')
    epoch_tag()
    tag_bytes()
    a(f'''
    s_mul_i32 s{sU0}, s{sMe}, {T1S}
    s_lshl_b32 s{sU1}, s{sW}, 8
    s_add_u32 s{sU0}, s{sU0}, s{sU1}
    ''')
    base_add(sBa, WS, sU0, T1_G)
    base_add(sBb, WS, sU0, T1_G + 4 * NJ * 64)
    a(f'''
    v_subrev_u32 v28, 64, v0                      ; u
    v_lshrrev_b32 v29, 4, v28
    v_lshlrev_b32 v29, 10, v29
    v_and_b32 v30, 0xf0, v{vL16}
    v_add_u32 v29, v29, v30
    v_cmp_le_u32 vcc, 160, v28
    v_mov_b32 v31, {8 - 160 * 32}
    v_cndmask_b32 v31, 0, v31, vcc
    s_mov_b32 s{sU2}, {MODA_L}
    v_lshlrev_b32 v28, 5, v28
    v_add3_u32 v28, v28, v31, s{sU2}
    v_add_u32 v{vE0 + 3}, s{sU2}, v{vL16}
    s_lshr_b32 s{sU1}, s{sW}, 1
    s_mul_i32 s{sU1}, s{sU1}, {4 * SA}
    s_and_b32 s{sT}, s{sW}, 1
    s_lshl_b32 s{sT}, s{sT}, 2
    s_add_u32 s{sU1}, s{sU1}, s{sT}
    s_add_u32 s{sU1}, s{sU1}, {XB1}
    ''')
    bar('BT')
    stamp('BT')
    tab_read(vF20, T_F20C)
    tab_read(vF20 + 4, T_F20S)
    for q in range(4):
        tab_read(vTW + 4 * q, T_TW1 + q)
    f32_read(T_F32A)
    tab_read(32, T_ADR)

    def expand():
        a(f'''
        s_waitcnt lgkmcnt(0)
        v_add_u32 v{vSg0}, s{sU1}, v32
        v_add_u32 v{vSg1}, 160, v{vSg0}
        ''')
        f32_expand(T_F32A, None, 33)
    if XP == 0:
        expand()
    is_b()
    a('s_cbranch_scc0 L_ng')
    gemv_compute('B', 0)
    a.label('L_ng')
    if BG:
        bar('BG')
    stamp('poll start')
    a(f's_sub_u32 s{sT}, s{sW}, 1')
    a(f's_cmp_lt_u32 s{sT}, 5')
    a('s_cbranch_scc1 L_mpoll')
    bar('BP')
    if XP:
        expand()
    a('s_branch L_b2')
    a.label('L_mpoll')
    poll([f'global_load_dwordx4 {vr(36 + 4 * p, 4)}, v29, {sr(WS)} offset:{256 * p} sc1' for p in range(4)],
         list(range(36, 52)), [52, 53, 54], empty='tag', between=lambda: (bar('BP'), expand() if XP else None))
    a(f'''
    v_pk_add_f32 v[36:37], v[36:37], v[40:41]
    v_pk_add_f32 v[38:39], v[38:39], v[42:43]
    v_pk_add_f32 v[44:45], v[44:45], v[48:49]
    v_pk_add_f32 v[46:47], v[46:47], v[50:51]
    v_pk_add_f32 v[36:37], v[36:37], v[44:45]
    v_pk_add_f32 v[38:39], v[38:39], v[46:47]
    ''')
    if MR:
        a('v_cvt_pk_bf16_f32 v40, v36, v37')
        a('v_cvt_pk_bf16_f32 v41, v38, v39')
        unpack(36, 37, 40)
        unpack(38, 39, 41)
    a(f'ds_write2_b64 v28, v[36:37], v[38:39] offset0:0 offset1:2')
    a.label('L_b2')
    stamp('poll end')
    fine('p1', 'pre-B2')
    a('s_waitcnt lgkmcnt(0)')
    a('s_barrier                                   ; B2')
    stamp('B2 done (mod ready)')
    fine('p1', 'B2')
    assert MODA_L % 16 == 0
    for j in range(5):
        a(f'ds_read_b128 {vr(vSA + 4 * j, 4)}, v{vE0 + 3} offset:{1024 * j}')
    for j in range(5):
        a(f's_waitcnt lgkmcnt({4 - j})')
        for t in range(2):
            a(f'v_fmac_f32 v{vSA + 4 * j + t}, v{vZ + 2 * j + t}, v{vSA + 4 * j + 2 + t}')
        if j in (1, 3):
            for t in range(2):
                a(f'v_cvt_pk_bf16_f32 v{Ra + 4 * t + j // 2}, v{vSA + 4 * j - 4 + t}, v{vSA + 4 * j + t}')
    for t in range(2):
        a(f'v_cvt_pk_bf16_f32 v{Ra + 4 * t + 2}, v{vSA + 16 + t}, 0')
    fine('p1', 'h packed')
    for t in range(2):
        mfma32(RD + 8 * t, Ra + 4 * t, vF20)
        mfma32(RD + 8 * t + 4, Ra + 4 * t, vF20 + 4)
    fine('p1', 'mfma1 issued')
    for t, tmp in ((0, Rb), (1, Rc)):
        cmul(tmp, tmp + 4, RD + 8 * t, RD + 8 * t + 4, vTW + 8 * t, vTW + 8 * t + 4, -1, pk=PK[0] == '1' or (PK[0] == '2' and t == 1))
        pack4(Ra + 4 * t, tmp, tmp + 4)
    fine('p1', 'twiddled')
    for u in range(2):
        for ks in range(2):
            for e in range(2):
                d = RD + 8 * u + 4 * e
                mfma32(d, vF32 + 16 * u + 8 * e + 4 * ks, Ra + 4 * ks, d if ks else None)
    fine('p1', 'mfma2 issued')
    a(f's_mov_b64 exec, {sr(sM3)}')
    for u in range(2):
        pack4(Rb + 4 * u, RD + 8 * u, RD + 8 * u + 4)
        for r in (0, 2):
            a(f'ds_write2_b32 v{vSg1 if u else vSg0}, v{Rb + 4 * u + r}, v{Rb + 4 * u + r + 1} offset0:{80 * r} offset1:{80 * r + 80}')
    a('s_mov_b64 exec, -1')
    a(f'v_mov_b32 v{Rc + 3}, s{sTag}')
    a(f'v_mov_b32 v{Rc + 7}, s{sTag}')
    a(f's_cmp_ge_u32 s{sW}, 6')
    fine('p1', 'lds written')
    a('s_waitcnt lgkmcnt(0)')
    fine('p1', 'pre-B3')
    fine('x1', 'pre-B3')
    bar('B3')
    fine('p1', 'B3')
    fine('x1', 'B3')
    a('s_cbranch_scc1 L_t1done')
    for n in (3, 0, 1, 2):
        a(f'ds_read_b64 {vr(Ra + 2 * n, 2)}, v{vPair} offset:{8 * n}')
    for k, n in enumerate((3, 0, 1, 2)):
        a(f's_waitcnt lgkmcnt({3 - k})')
        mfma16(RD + 4 * n, vM8F, Ra + 2 * n)
    fine('p1', 'r8 issued')
    a(f's_mov_b64 exec, {sr(sM7)}')
    for j in range(2):
        a(f'v_cvt_pk_bf16_f32 v{Rc + 4 * j + 3}, v{RD + 12 + 2 * j}, v{RD + 12 + 2 * j + 1}')
    a(f's_mov_b64 exec, {sr(sLn)}')
    for j in range(2):
        for n in range(3):
            a(f'v_cvt_pk_bf16_f32 v{Rc + 4 * j + n}, v{RD + 4 * n + 2 * j}, v{RD + 4 * n + 2 * j + 1}')
        a(f'global_store_dwordx4 v{vS}, {vr(Rc + 4 * j, 4)}, {sr(sBb if j else sBa)} sc1')
    a('s_mov_b64 exec, -1')
    a.label('L_t1done')
    stamp('T1 stored')
    if PROBE == 'rel':
        a(f'''
        s_lshl_b32 s{sT}, s{sW}, 8
        s_or_b32 s{sT}, s{sT}, s2
        s_cmp_lt_u32 s{sT}, 8
        s_cbranch_scc0 L_norel
        s_lshl_b32 s{sT}, s2, 7
        s_add_u32 s{sT}, s{sT}, {DIAG_G}
        v_mov_b32 v36, s{sT}
        v_mov_b32 v37, s{sTS}
        global_store_dword v36, v37, {sr(WS)} sc1
        L_norel:
        ''')
    fine('p1', 'stored')
    fine('x1', 'stored')

    def p3_mats():
        for q in range(3):
            tab_read(vF20 + 4 * q, T_F20I + q)
        f32_read(T_F32B)
        tab_read(40, T_ADR)
        a('s_waitcnt lgkmcnt(0)')
        f32_expand(T_F32B, 42, 43)
    a(f's_cmp_ge_u32 s{sIdx}, {NJ}')
    a('s_cbranch_scc1 L_idle')
    late.append(lambda: (a.label('L_idle'), bar('B3b'), p3_mats() if MATS else None, a('s_branch L_p3prep')))
    if MATS == 1:
        p3_mats()
    vWr = vVec
    for k in range(16):
        a(f'v_mov_b32 v{vWr + k}, 0')
    SC = 2.0 / (2048 * 640) / (ALPHA[16] ** 4 * ALPHA[20] ** 2 * ALPHA[32] ** 2)
    a(f'''
    v_and_b32 v36, 15, v{vL}
    v_and_b32 v37, 48, v{vL}
    v_lshl_add_u32 v36, v37, 2, v36               ; 64g + i
    v_mul_u32_u24 v{vE0 + 3}, 80, v36
    s_lshl_b32 s{sU1}, s{sW}, 3
    s_add_u32 s{sU1}, s{sU1}, {XB2}
    v_add_u32 v{vE0 + 3}, s{sU1}, v{vE0 + 3}
    v_lshlrev_b32 v36, 5, v36
    v_add_u32 v36, {WST}, v36
    v_and_b32 v39, 4, v{vL}
    v_lshlrev_b32 v39, 2, v39
    v_lshlrev_b32 v{vS}, 7, v37
    v_and_b32 v37, 0xf0, v{vL16}
    v_add_u32 v{vS}, v{vS}, v37
    s_mul_i32 s{sU0}, s{sX}, {NJ}
    s_add_u32 s{sU0}, s{sU0}, s{sIdx}
    s_lshl_b32 s{sU1}, s{sU0}, 6
    s_mul_i32 s{sT}, s{sW}, {4 * T1S}
    s_add_u32 s{sU1}, s{sU1}, s{sT}
    s_mul_i32 s{sU0}, s{sU0}, {T2S}
    s_lshl_b32 s{sT}, s{sW}, 8
    s_add_u32 s{sU0}, s{sU0}, s{sT}
    ''')
    base_add(sBa, WS, sU1, T1_G)
    base_add(sBb, WS, sU1, T1_G + 128 * T1S)
    base_add(58, WS, sU0, T2_G)
    base_add(60, WS, sU0, T2_G + 8192)

    def w_setup(parts=(0, 1)):
      if 0 in parts:
        for q in range(2):
            tab_read(vTW + 4 * q, T_F16 + q)
            tab_read(vTW + 8 + 4 * q, T_TW2 + q)
        a(f'''
        s_mul_i32 s{sU0}, s{sIdx}, 15
        s_min_u32 s{sU1}, s{sU0}, 306
        s_add_u32 s{sU2}, s{sU1}, s{sX}
        s_and_b32 s{sU2}, s{sU2}, 1
        s_sub_u32 s{sU1}, s{sU1}, s{sU2}
        s_lshl_b32 s{sT}, s{sW}, 1
        s_add_u32 s{sU0}, s{sU0}, s{sT}
        ''')
      if True:
        for s in parts:
            gam = sU3
            a(f'''
            s_add_u32 s{sU2}, s{sU0}, {s}
            s_sub_u32 s{sT}, s{sU2}, s{sU1}
            s_min_u32 s{sT}, s{sT}, 15
            s_lshl_b32 s{sT}, s{sT}, 1
            v_xor_b32 v37, s{sT}, v39
            v_add_u32 v37, v37, v36
            ''')
            for arr in range(2):
                for r in range(4):
                    a(f'ds_read_u16_d16_hi v{vWr + 8 * s + 4 * arr + r}, v37 offset:{arr * 8192 + r * 512}')
            a(f'''
            s_mul_i32 s{sT}, s{sU2}, 0x199a
            s_lshr_b32 s{sT}, s{sT}, 16
            s_mul_i32 s{sT}, s{sT}, 10
            s_mov_b32 s{gam}, {hex(f2u(SC))}
            s_cmp_eq_u32 s{sT}, s{sU2}
            s_cselect_b32 s{gam}, {hex(f2u(SC / 2))}, s{gam}
            s_waitcnt lgkmcnt(0)
            ''')
            for r in range(8):
                a(f'v_mul_f32 v{vWr + 8 * s + r}, s{gam}, v{vWr + 8 * s + r}')

    tl = [f'global_load_dwordx4 {vr(Ra, 4)}, v{vPoll}, {sr(sBa)} sc1', f'global_load_dwordx4 {vr(Ra + 4, 4)}, v{vPoll}, {sr(sBb)} sc1']
    fine('x1', 'pre-B3b')
    bar('B3b')
    fine('x1', 'B3b')
    if WFIRST:
        w_setup((0, 1) if WFIRST == 1 else (0,))
    fine('x1', 'wsetup')
    if DR1:
        a('s_waitcnt vmcnt(0)')
    if AL1:
        bar('B3c')
    fine('x1', 'drained')
    if PACE1:
        a(f's_sleep {PACE1}')
    stamp('B3b done')
    tpoll(tl, between=lambda: (None if WFIRST == 1 else w_setup((1,) if WFIRST else (0, 1)), p3_mats() if MATS == 2 else None, fine('x1', 'behind')))
    fine('p2', 'T1 in')
    fine('x1', 'T1 in')
    a(f'ds_write_b128 v{vE0 + 4}, {vr(Ra, 4)}')
    a(f'ds_write_b128 v{vE0 + 4}, {vr(Ra + 4, 4)} offset:10240')
    a(f's_cmp_eq_u32 s{sW}, 7')
    a('s_waitcnt lgkmcnt(0)')
    bar('B4')
    stamp('B4 done (T1 in)')
    fine('p2', 'B4')
    fine('x1', 'B4')
    a('s_cbranch_scc1 L_p2_one')
    Fre, Fim, Tc, Ts = vTW, vTW + 4, vTW + 8, vTW + 12
    tmps = (Rb, Rc)

    def p2(ns):
        p2pk = PK[1] == '1'
        if ns == 2:
            for j in range(4):
                a(f'ds_read_b64 {vr(Rb + 2 * j, 2)}, v{vE0 + 3} offset:{1280 * j}')
            for h in range(2):
                a(f's_waitcnt lgkmcnt({2 - 2 * h})')
                for s in range(2):
                    a(f'v_pk_mov_b32 {vr(Ra + 4 * s + 2 * h, 2)}, {vr(Rb + 4 * h, 2)}, {vr(Rb + 4 * h + 2, 2)} op_sel:[{s},{s}]')
        else:
            a(f'ds_read2st64_b32 {vr(Ra, 2)}, v{vE0 + 3} offset0:0 offset1:5')
            a(f'ds_read2st64_b32 {vr(Ra + 2, 2)}, v{vE0 + 3} offset0:10 offset1:15')
            a('s_waitcnt lgkmcnt(0)')
        fine('p2', 'read')
        for s in range(ns):
            mfma32(RD + 8 * s, Ra + 4 * s, Fre)
            mfma32(RD + 8 * s + 4, Ra + 4 * s, Fim)
        fine('p2', 's1')
        def stage(cq, sign, swap, mm):
            lo = lambda s: tmps[s] + (4 if swap else 0)
            hi = lambda s: tmps[s] + (0 if swap else 4)
            if ns == 1 or not P2ORD:
                for s in range(ns):
                    cmul(tmps[s], tmps[s] + 4, RD + 8 * s, RD + 8 * s + 4, *cq(s), sign, pk=p2pk)
                    pack4(Ra + 4 * s, lo(s), hi(s))
                    mm(s, 0)
                    mm(s, 1)
                return
            cmul(tmps[0], tmps[0] + 4, RD, RD + 4, *cq(0), sign, pk=p2pk, head=P2ORD - 1)
            cmul(tmps[1], tmps[1] + 4, RD + 8, RD + 12, *cq(1), sign, pk=p2pk)
            pack4(Ra, lo(0), hi(0))
            cv = lambda r: a(f'v_cvt_pk_bf16_f32 v{Ra + 4 + r}, v{lo(1) + r}, v{hi(1) + r}')
            cv(0)
            cv(1)
            mm(0, 0)
            cv(2)
            cv(3)
            mm(0, 1)
            mm(1, 0)
            mm(1, 1)
        stage(lambda s: (Tc, Ts), -1, False, lambda s, k: mfma32(RD + 8 * s + 4 * k, Fim if k else Fre, Ra + 4 * s))
        fine('p2', 's2')
        stage(lambda s: (vWr + 8 * s, vWr + 8 * s + 4), +1, True, lambda s, k: mfma32(RD + 8 * s + 4 * k, Ra + 4 * s, Fre if k else Fim))
        fine('p2', 's3')
        stage(lambda s: (Tc, Ts), +1, True, lambda s, k: mfma32(RD + 8 * s + 4 * k, Fre if k else Fim, Ra + 4 * s))
        fine('p2', 's4')
        for s in range(ns):
            pack4(Rb + s, RD + 8 * s, RD + 8 * s + 4, step=ns)
        if ns == 2:
            for r in range(4):
                a(f'ds_write_b64 v{vE0 + 3}, {vr(Rb + 2 * r, 2)} offset:{1280 * r}')
        else:
            a(f'ds_write2st64_b32 v{vE0 + 3}, v{Rb}, v{Rb + 1} offset0:0 offset1:5')
            a(f'ds_write2st64_b32 v{vE0 + 3}, v{Rb + 2}, v{Rb + 3} offset0:10 offset1:15')
        a('s_waitcnt lgkmcnt(0)')
    p2(2)
    a.label('L_b5')
    fine('p2', 'pre-B5')
    fine('x2', 'pre-B5')
    bar('B5')
    fine('p2', 'B5')
    fine('x2', 'B5')
    a(f'ds_read_b128 {vr(Rb, 4)}, v{vE0 + 4}')
    a(f'ds_read_b128 {vr(Rb + 4, 4)}, v{vE0 + 4} offset:10240')
    a('s_waitcnt lgkmcnt(1)')
    a(f'global_store_dwordx4 v{vS}, {vr(Rb, 4)}, {sr(58)} sc1')
    a('s_waitcnt lgkmcnt(0)')
    a(f'global_store_dwordx4 v{vS}, {vr(Rb + 4, 4)}, {sr(60)} sc1')
    stamp('T2 stored')
    fine('p2', 'stored')
    fine('x2', 'stored')
    late.append(lambda: (a.label('L_p2_one'), p2(1), a('s_branch L_b5')))
    a.label('L_p3prep')
    vGA, vVV, vGC, vGS = vVec, vVec + 10, vVec + 20, vVec + 30
    vMB = vE0 + 6
    for q in range(4):
        tab_read(vTW + 4 * q, T_TW3 + q)
    a(f'''
    v_add_u32 v{vMB}, {MODB_L}, v{vL4}
    v_bfe_u32 v36, v{vL}, 2, 2
    v_lshrrev_b32 v37, 4, v{vL}
    v_mad_u32_u24 v36, v37, {NJ}, v36
    v_and_b32 v38, 48, v{vL16}
    v_mul_u32_u24 v36, {T2S}, v36
    v_add_u32 v{vPoll}, v36, v38
    v_mul_u32_u24 v37, {4 * SA}, v37
    v_add_u32 v37, {XB1 + 8 * 361}, v37
    v_cndmask_b32 v{vPairX}, v{vPair}, v37, {sr(sM8)}
    s_and_b64 {sr(sM8)}, {sr(sM8)}, {sr(sLn)}
    s_lshl_b32 s{sU1}, s{sMe}, 6
    s_min_u32 s{sT}, s{sW}, 5
    s_mul_i32 s{sT}, s{sT}, {4 * T2S}
    s_add_u32 s{sU1}, s{sU1}, s{sT}
    ''')
    base_add(sBa, WS, sU1, T2_G)
    base_add(sBb, WS, sU1, T2_G + 4 * NJ * T2S)
    base_add(sXrow, OUTP, sRow)
    a(f's_mul_i32 s{sU0}, s{sMe}, {REC_STRIDE}')
    base_add(sRec, WS, sU0, REC_G)
    a(f'''
    v_mov_b32 v{vE0 + 7}, {hex(f2u(-1.0 / 640))}
    v_mov_b32 v{vM8F}, {hex(f2u(-1e-5))}
    v_mov_b32 v{vE0 + 3}, {KEYL}
    v_mov_b32 v{vE0 + 4}, 1
    ''')

    def p3_setup(part=3):
      raw, GB = Rb, Rb
      if part & 1:
        raw = Rb
        for k in range(0, 24, 2):
            a(f'ds_read2st64_b32 {vr(raw + k, 2)}, v{vMB} offset0:{k} offset1:{k + 1}')
        a(f'ds_read_b32 v{raw + 24}, v{vMB} offset:{24 * 256}')
        a('s_waitcnt lgkmcnt(0)')
        for vec, dst in ((0, vGA), (1, vGS), (2, vGC), (4, vVV)):
            for j in range(5):
                unpack(dst + tm(j, 0), dst + tm(j, 1), raw + 5 * vec + j)
        GB = Rb
        for j in range(5):
            unpack(GB + tm(j, 0), GB + tm(j, 1), raw + 15 + j)
      if part & 2:
        t0, t1, t2 = Rc + 2, Rc + 4, Rc + 6
        dot10(t0, vVV, vGS)
        for h in range(0, 10, 2):
            a(f'v_pk_mul_f32 {vr(vVV + h, 2)}, {vr(vVV + h, 2)}, {vr(vGC + h, 2)}')
        sum10(t1, vVV)
        a(f'v_mov_b32 v{t2}, s{sM1B}')
        for h in range(0, 10, 2):
            a(f'v_pk_mul_f32 {vr(vGC + h, 2)}, {vr(vGC + h, 2)}, {vr(GB + h, 2)}')
            a(f'v_pk_fma_f32 {vr(vGS + h, 2)}, {vr(vGS + h, 2)}, {vr(GB + h, 2)}, {vr(t2, 2)} op_sel:[0,0,0] op_sel_hi:[1,1,0]')
        wave_sum([t1, t0], [sV1, sV2])

    if MATS == 0:
        p3_mats()
    a('s_waitcnt lgkmcnt(0)')
    bar('B5b')
    stamp('B5b done')
    fine('p2', 'B5b')
    fine('x2', 'B5b')
    if P3FIRST == 2:
        p3_setup(1)
    if P3FIRST == 1:
        p3_setup()
    else:
        a(f's_cmp_ge_u32 s{sIdx}, {NJ}')
        a(f's_cselect_b32 s{sCand}, 8, s{sW}')
        a(f's_cmp_lt_u32 s{sCand}, 6')
        a('s_cbranch_scc1 L_p3later')
        p3_setup(2 if P3FIRST else 3)
        a.label('L_p3later')
    fine('x2', 'p3setup')
    if DR2:
        a('s_waitcnt vmcnt(0)')
    fine('x2', 'drained')
    if PACE2:
        a(f's_sleep {PACE2}')
    if not AL2:
        a(f's_cmp_ge_u32 s{sIdx}, {NJ}')
        a('s_cbranch_scc0 L_nob5c')
    bar('B5c')
    a.label('L_nob5c')
    a(f's_cmp_ge_u32 s{sW}, 6')
    a('s_cbranch_scc1 L_b6')
    stamp('T2 poll')
    fine('p2', 'T2 poll')

    def p3_behind():
        a(f's_cmp_lt_u32 s{sCand}, 6')
        a('s_cbranch_scc0 L_p3done')
        p3_setup(2 if P3FIRST else 3)
        a.label('L_p3done')
    tpoll(tl, lanes_s=sr(sLn), between=None if P3FIRST == 1 else p3_behind)
    stamp('T2 in')
    fine('p3', 'T2 in')
    fine('x2', 'T2 in')
    a(f'''
    v_swap_b32 v{Ra + 1}, v{Ra + 4}
    v_swap_b32 v{Ra + 3}, v{Ra + 6}
    ''')
    for n, r in ((0, Ra), (1, Ra + 4), (2, Ra + 2), (3, Ra + 6)):
        mfma16(RD + 4 * n, vM8I, r)
    for n in range(4):
        for jj in range(2):
            a(f'v_cvt_pk_bf16_f32 v{Rb + 2 * n + jj}, v{RD + 4 * n + 2 * jj + 1}, v{RD + 4 * n + 2 * jj}')
        a(f'ds_write_b64 v{vPairX if n == 3 else vPair}, {vr(Rb + 2 * n, 2)} offset:{8 * n}')
    a('s_waitcnt lgkmcnt(0)')
    a.label('L_b6')
    prio(2, True)
    fine('p3', 'pre-B6')
    bar('B6')
    fine('p3', 'B6')
    fine('x2', 'B6')
    for u in range(2):
        for r in (0, 2):
            a(f'ds_read2_b32 {vr(Rb + 4 * u + r, 2)}, v{vSg1 if u else vSg0} offset0:{80 * r} offset1:{80 * r + 80}')
    Y = RD
    if not P3O:
        for ks in range(2):
            a(f's_waitcnt lgkmcnt({2 - 2 * ks})')
            for t in range(2):
                for e in range(2):
                    d = RD + 8 * t + 4 * e
                    mfma32(d, Rb + 4 * ks, vF32 + 16 * t + 8 * (1 - e) + 4 * ks, d if ks else None)
        fine('p3', 'mfma1 issued')
        if PRIO[2] == '1':
            prio(2, False)
        for t, tmp in ((0, Ra), (1, Rc)):
            cmul(tmp, tmp + 4, RD + 8 * t, RD + 8 * t + 4, vTW + 8 * t, vTW + 8 * t + 4, +1, pk=PK[2] == '1' or (PK[2] == '2' and t == 1), n=3)
            pack4(Rb + 4 * t, tmp, tmp + 4, n=3)
            a(f'v_mov_b32 v{Rb + 4 * t + 3}, 0')
        Y = RD
        mfma32(Y, vF20, Rb)
        mfma32(Y + 8, vF20 + 4, Rb)
        mfma32(Y + 4, vF20, Rb + 4)
        mfma32(Y + 8, vF20 + 8, Rb + 4, Y + 8)
    else:
        def m1(t, ks, e):
            d = RD + 8 * t + 4 * e
            mfma32(d, Rb + 4 * ks, vF32 + 16 * t + 8 * (1 - e) + 4 * ks, d if ks else None)
        a('s_waitcnt lgkmcnt(2)')
        m1(0, 0, 0)
        m1(0, 0, 1)
        a('s_waitcnt lgkmcnt(0)')
        m1(0, 1, 0)
        m1(0, 1, 1)
        for ks in range(2):
            for e in range(2):
                m1(1, ks, e)
        fine('p3', 'mfma1 issued')
        B0_, B1_ = vF32, vF32 + 4
        cmul(Ra, Ra + 4, RD, RD + 4, vTW, vTW + 4, +1, pk=False, n=3)
        a(f'v_mov_b32 v{B0_ + 3}, 0')
        a(f'v_mov_b32 v{B1_ + 3}, 0')
        pack4(B0_, Ra, Ra + 4, n=3)
        Yx = Rb
        mfma32(Y, vF20, B0_)
        mfma32(Yx, vF20 + 4, B0_)
        cmul(Rc, Rc + 4, RD + 8, RD + 12, vTW + 8, vTW + 12, +1, pk=False, n=3)
        pack4(B1_, Rc, Rc + 4, n=3)
        mfma32(Y + 4, vF20, B1_)
        mfma32(Y + 8, vF20 + 8, B1_, Yx)
    fine('p3', 'mfma2 issued')
    if PRIO[2] == '2':
        prio(2, False)
    X1 = vXS
    s1, s2, s3, s4 = Ra, Ra + 1, Ra + 2, Ra + 3
    if not PKS:
        for k in range(10):
            a(f'v_fmac_f32 v{X1 + k}, v{Y + k}, v{vGA + k}')
            if k == 1:
                a(f'v_mul_f32 v{s2}, v{X1}, v{X1}')
                a(f'v_mul_f32 v{s3}, v{X1}, v{vVV}')
            if k >= 2:
                a(f'v_add_f32 v{s1}, v{X1 + k - 1}, v{X1 if k == 2 else s1}')
                a(f'v_fmac_f32 v{s2}, v{X1 + k - 1}, v{X1 + k - 1}')
                a(f'v_fmac_f32 v{s3}, v{X1 + k - 1}, v{vVV + k - 1}')
        a(f'v_fmac_f32 v{s3}, v{X1 + 9}, v{vVV + 9}')
        a(f'v_add_f32 v{s1}, v{X1 + 9}, v{s1}')
        a(f'v_fmac_f32 v{s2}, v{X1 + 9}, v{X1 + 9}')
    else:
        p1_, p2_, p3_ = Rc, Rc + 2, Rc + 4
        for h in range(0, 10, 2):
            a(f'v_pk_fma_f32 {vr(X1 + h, 2)}, {vr(Y + h, 2)}, {vr(vGA + h, 2)}, {vr(X1 + h, 2)}')
        a(f'v_pk_mul_f32 {vr(p3_, 2)}, {vr(X1, 2)}, {vr(vVV, 2)}')
        a(f'v_pk_add_f32 {vr(p1_, 2)}, {vr(X1, 2)}, {vr(X1 + 2, 2)}')
        a(f'v_pk_mul_f32 {vr(p2_, 2)}, {vr(X1, 2)}, {vr(X1, 2)}')
        for h in (2, 4, 6, 8):
            a(f'v_pk_fma_f32 {vr(p3_, 2)}, {vr(X1 + h, 2)}, {vr(vVV + h, 2)}, {vr(p3_, 2)}')
            if h > 2:
                a(f'v_pk_add_f32 {vr(p1_, 2)}, {vr(p1_, 2)}, {vr(X1 + h, 2)}')
            a(f'v_pk_fma_f32 {vr(p2_, 2)}, {vr(X1 + h, 2)}, {vr(X1 + h, 2)}, {vr(p2_, 2)}')
        a(f'v_add_f32 v{s3}, v{p3_}, v{p3_ + 1}')
        a(f'v_add_f32 v{s1}, v{p1_}, v{p1_ + 1}')
        a(f'v_add_f32 v{s2}, v{p2_}, v{p2_ + 1}')
    fine('p3', 'partials')
    a(f'''
    v_permlane32_swap_b32 v{s3}, v{s4}
    v_permlane32_swap_b32 v{s1}, v{s2}
    v_add_f32 v{s3}, v{s3}, v{s4}
    v_add_f32 v{s1}, v{s1}, v{s2}
    v_permlane16_swap_b32 v{s1}, v{s3}
    v_add_f32 v{s1}, v{s1}, v{s3}
    ''')
    for c in ('row_ror:8', 'row_ror:4', 'row_ror:2', 'row_ror:1'):
        dpp('v_add_f32', s1, c)
    a(f'''
    v_readlane_b32 s{sU0}, v{s1}, 0
    v_readlane_b32 s{sU2}, v{s1}, 32
    v_readlane_b32 s{sU3}, v{s1}, 16
    ''')
    fine('p3', 'reduced')
    k0 = Rc
    cE = vM8F
    cI, cK, cT, cO = vE0 + 7, vE0 + 3, Ra + 7, vE0 + 4
    m = Ra + 1
    a(f'''
    v_mul_f32 v{m + 2}, s{sU0}, v{cI}
    v_fma_f32 v{k0}, v{m + 2}, v{m + 2}, v{cE}
    v_mov_b32 v{m + 3}, s{sU3}
    v_fmac_f32 v{k0}, s{sU2}, v{cI}
    v_fmac_f32 v{m + 3}, s{sV1}, v{m + 2}
    v_sub_f32 v{m + 1}, v{cE}, v{k0}              ; var
    v_rsq_f32_e64 v{k0}, -v{k0}
    v_mov_b32 v{cT}, s{sTag}
    s_mov_b64 exec, 1
    v_fma_f32 v{m + 3}, v{m + 3}, v{k0}, s{sV2}   ; r
    v_ashrrev_i32 v{m + 4}, 31, v{m + 3}
    v_or_b32 v{m + 4}, 0x80000000, v{m + 4}
    v_xor_b32 v{m + 3}, v{m + 3}, v{m + 4}
    v_and_b32 v{m + 3}, 0xfffff800, v{m + 3}
    v_or_b32 v{m + 3}, s{sKey}, v{m + 3}
    ds_max_u32 v{cK}, v{m + 3}
    ds_add_rtn_u32 v{m + 4}, v{cK}, v{cO} offset:8
    ds_read_b32 v{Ra + 6}, v{cK}
    v_readfirstlane_b32 s{sKey}, v{m + 3}
    s_waitcnt lgkmcnt(0)
    v_cmpx_eq_u32 vcc, 7, v{m + 4}
    s_cbranch_execz L_notlast
    global_store_dwordx2 v{vL4}, {vr(Ra + 6, 2)}, {sr(sRec)} sc1
    L_notlast:
    s_mov_b64 exec, -1
    ''')
    fine('p3', 'key')
    bar('B7')
    fine('p3', 'B7')
    fine('e', 'key poll')
    a(f'''
    ds_read_b32 v{Ra + 6}, v{cK}
    v_sub_f32 v{m + 2}, s{sM1B}, v{m + 2}
    ''')
    rbf(m + 2, f'v{m + 2}')
    rstd_chain(m + 1, k0)
    a(f'''
    v_sub_f32 v{m + 2}, s{sM1B}, v{m + 2}
    v_mul_f32 v{k0 + 1}, v{m + 2}, v{k0}
    ''')
    ZN = vGA
    for h in range(0, 10, 2):
        a(f'v_pk_fma_f32 {vr(ZN + h, 2)}, {vr(X1 + h, 2)}, {vr(k0, 2)}, {vr(k0, 2)} op_sel:[0,0,1] op_sel_hi:[1,0,1]')
    vO = vXS

    def out_math():
        for h in range(0, 10, 2):
            a(f'v_pk_add_f32 {vr(Y + h, 2)}, {vr(X1 + h, 2)}, {vr(vGS + h, 2)}')
        for h in range(0, 10, 2):
            a(f'v_pk_fma_f32 {vr(Y + h, 2)}, {vr(ZN + h, 2)}, {vr(vGC + h, 2)}, {vr(Y + h, 2)}')
        if opt('inject', None):
            if opt('injall', None):
                for k in range(10):
                    a(f'v_mul_f32 v{Y + k}, {hex(f2u(1 + float(opt("inject", 0))))}, v{Y + k}')
            else:
                a(f's_cmp_eq_u32 s{sRow}, 0')
                a('s_cselect_b64 exec, 1, 0')
                a(f'v_add_f32 v{Y}, {hex(f2u(float(opt("inject", 0))))}, v{Y}')
                a('s_mov_b64 exec, -1')
        for j in range(5):
            a(f'v_cvt_pk_bf16_f32 v{vO + j}, v{Y + tm(j, 0)}, v{Y + tm(j, 1)}')
    a(f'''
    s_waitcnt lgkmcnt(0)
    v_readfirstlane_b32 s{sU0}, v{Ra + 6}
    s_cmp_eq_u32 s{sU0}, s{sKey}
    s_cselect_b32 s{sCand}, 1, 0
    s_cbranch_scc1 L_cand
    ''')
    out_math()
    a('s_branch L_keys')
    a.label('L_cand')
    raw, SB, CB, H, Bq = 60, 70, 80, 92, 108
    for k in range(0, 10, 2):
        a(f'ds_read2st64_b32 {vr(raw + k, 2)}, v{vMB} offset0:{5 + k} offset1:{6 + k}')
    for qd in range(2):
        a(f'v_mov_b32 v{H + 4 * qd + 3}, s{sTag}')
    a('s_waitcnt lgkmcnt(0)')
    for j in range(5):
        unpack(SB + tm(j, 0), SB + tm(j, 1), raw + j)
        unpack(CB + tm(j, 0), CB + tm(j, 1), raw + 5 + j)
    for h in range(0, 10, 2):
        a(f'v_pk_fma_f32 {vr(SB + h, 2)}, {vr(ZN + h, 2)}, {vr(CB + h, 2)}, {vr(SB + h, 2)}')
    for j in range(5):
        a(f'v_cvt_pk_bf16_f32 v{H + j + (j >= 3)}, v{SB + tm(j, 0)}, v{SB + tm(j, 1)}')
    for qd in range(2):
        a(f'global_store_dwordx4 v{vL16}, {vr(H + 4 * qd, 4)}, {sr(sRec)} offset:{REC_H2 + 1024 * qd} sc1')
    out_math()

    def out_row():
        for j in range(5):
            a(f'global_store_dword v{vL4}, v{vO + j}, {sr(sXrow)} offset:{256 * j} sc1')
    if OE != 1:
        out_row()
    a.label('L_keys')
    if OE == 1:
        out_row()
    stamp('key out')
    fine('p3', 'key out')
    bar('B7b (candidate stores are out, the helpers have ended)')
    if OE == 0:
        a(f'''
        s_cmp_ge_u32 s{sRi}, 20
        s_cselect_b32 s{sT}, 1, s{sCand}
        s_cmp_lg_u32 s{sT}, 0
        s_cbranch_scc1 L_noout
        ''')
        out_row()
        a('s_branch L_fin')
        a.label('L_noout')
    if OE == 2:
        a(f's_cmp_lg_u32 s{sCand}, 0')
        a('s_cbranch_scc1 L_noout')
        out_row()
        a.label('L_noout')
    vEW, vFW = 48, 88
    vRed, vRd, vRow = 15, 16, 17
    a(f'''
    s_cmp_lt_u32 s{sRi}, 20
    s_cbranch_scc1 L_no_ew
    s_mul_i32 s{sT}, s{sW}, 5120
    s_add_u32 s{sT}, s{sT}, {EW}
    v_and_b32 v{Rb}, 0x3c0, v{vL16}
    v_and_b32 v{Rb + 1}, 24, v{vE0}
    v_add3_u32 v{Rb}, v{Rb}, v{Rb + 1}, s{sT}
    s_mul_i32 s{sT}, s{sW}, 320
    s_add_u32 s{sT}, s{sT}, {FW}
    v_min_u32 v{vE0 + 1}, {39 * 8}, v{vE0}
    v_add_u32 v{vE0 + 1}, s{sT}, v{vE0 + 1}
    ''')
    for j in range(5):
        if j in (2, 4):
            a(f'v_add_u32 v{Rb}, 2048, v{Rb}')
        a(f'ds_read2_b64 {vr(vEW + 20 + 4 * j, 4)}, v{Rb} offset0:{128 * (j & 1)} offset1:{128 * (j & 1) + 4}')
    a(f'''
    v_and_b32 v{vRed}, 3, v{vL}
    v_lshlrev_b32 v{vRed}, 6, v{vRed}
    v_and_b32 v{vRd}, 48, v{vL}
    v_add_u32 v{vRed}, v{vRd}, v{vRed}
    s_lshr_b32 s{sU1}, s{sW}, 2
    s_lshl_b32 s{sU1}, s{sU1}, 8
    s_and_b32 s{sT}, s{sW}, 3
    s_lshl_b32 s{sT}, s{sT}, 2
    s_add_u32 s{sU1}, s{sU1}, s{sT}
    s_add_u32 s{sU1}, s{sU1}, {RED}
    v_add_u32 v{vRed}, s{sU1}, v{vRed}
    v_and_b32 v{vRd}, 0xf0, v{vL16}
    v_bfe_u32 v{vRow}, v0, 2, 6                    ; lane' = (t'>>1)>>1
    v_lshlrev_b32 v{vRow}, 4, v{vRow}
    s_mov_b32 s{sU2}, 0x05040100
    s_mov_b32 s{sU3}, 0x07060302
    v_add_u32 v{vRow}, {REC_G + REC_H2}, v{vRow}
    v_mov_b32 v18, 0xffffff00
    s_mul_i32 s{sU1}, s{sX}, 12
    s_add_u32 s{sU1}, s{sU1}, s{sRi}
    s_mul_i32 s{sU1}, s{sU1}, {PY_STRIDE}
    s_mul_i32 s{sT}, s{sW}, 640
    s_add_u32 s{sU1}, s{sU1}, s{sT}
    ''')
    base_add(sBb, WS, sU1, PY_G - 20 * PY_STRIDE)
    a('s_waitcnt lgkmcnt(0)')
    if KD == 1:
        bar('B7c')
    for j in range(5):
        r0 = vEW + 20 + 4 * j
        for c in range(4):
            a(f'v_perm_b32 v{vEW + 4 * j + c}, v{r0 + 2 + c // 2}, v{r0 + c // 2}, s{sU3 if c & 1 else sU2}')
    for k in range(4):
        a(f'v_mov_b32 v{36 + k}, 0')

    def fw_unpack():
        a(f's_cmp_ge_u32 s{sW}, 4')
        a('s_cbranch_scc1 L_no_fw')
        for u in range(16):
            if u == 8:
                a('s_waitcnt lgkmcnt(0)')
            a(f'ds_read_b64 {vr(vFW + 32 + 2 * u, 2)}, v{vE0 + 1} offset:{1280 * u}')
        a('s_waitcnt lgkmcnt(0)')
        for k in range(32):
            unpack(vFW + 2 * k, vFW + 2 * k + 1, vFW + 32 + k)
        a.label('L_no_fw')
    if not FWL:
        fw_unpack()
    a.label('L_no_ew')
    a(f's_cmp_eq_u32 s{sCand}, 0')
    a('s_cbranch_scc1 L_nobase')
    a(f'''
    v_mov_b32 v40, v{vO}
    v_mov_b32 v41, v{vO + 1}
    v_mov_b32 v42, v{vO + 2}
    v_mov_b32 v43, s{sTag}
    v_mov_b32 v44, v{vO + 3}
    v_mov_b32 v45, v{vO + 4}
    v_mov_b32 v47, s{sTag}
    ''')

    def base_out():
        a(f'global_store_dwordx4 v{vL16}, v[40:43], {sr(sRec)} offset:{REC_BASE} sc1')
        a(f'global_store_dwordx4 v{vL16}, v[44:47], {sr(sRec)} offset:{REC_BASE + 1024} sc1')
    if BL:
        a(f's_cmp_lt_u32 s{sRi}, 20')
        a('s_cbranch_scc0 L_nobase')
    a('s_waitcnt vmcnt(0)')
    base_out()
    a.label('L_nobase')
    a(f'''
    s_cmp_lt_u32 s{sRi}, 20
    s_cbranch_scc1 L_fin
    v_mov_b32 v{Rb + 2}, {KEYL + 4}
    {'s_barrier' if KD == 2 else ''}
    ''')
    a.label('L_b8')
    fine('e', 'pre-B8')
    a('s_barrier                                   ; B8')
    a(f'''
    ds_read_b32 v{Rb + 3}, v{Rb + 2}
    s_movk_i32 s{sT}, {REC_STRIDE}
    s_waitcnt lgkmcnt(0)
    v_and_b32 v{Rb + 4}, 255, v{Rb + 3}
    v_mad_u32_u24 v{vRow}, v{Rb + 4}, s{sT}, v{vRow}
    ''')
    stamp('B8 done (winner)')
    fine('e', 'B8+')

    def late_out():
        if OE == 0:
            a(f's_cmp_lg_u32 s{sCand}, 0')
            a('s_cbranch_scc1 L_noout2')
            out_row()
            a.label('L_noout2')
        if FWL:
            fw_unpack()
        fine('e', 'behind')
        if OE == 0:
            a(f's_cmp_lg_u32 s{sCand}, 0')
            a('s_cbranch_scc1 L_noout4')
            a('s_waitcnt vmcnt(5)')
            a.label('L_noout3')
            late.append(lambda: (a.label('L_noout4'), a('s_waitcnt vmcnt(0)'), a('s_branch L_noout3')))
        else:
            a('s_waitcnt vmcnt(0)')
    poll([f'global_load_dwordx4 v[20:23], v{vRow}, {sr(WS)} sc1',
          f'global_load_dwordx4 v[24:27], v{vRow}, {sr(WS)} offset:1024 sc1'], [23, 27], [30, 32], empty='word',
         between=late_out, younger=63)
    if BL:
        a(f's_cmp_lg_u32 s{sCand}, 0')
        a('s_cbranch_scc1 L_base2')
        a.label('L_base3')
        late.append(lambda: (a.label('L_base2'), base_out(), a('s_branch L_base3')))
    stamp('row in')
    fine('e', 'row in')
    acc = 36
    for j in range(5):
        for c in (0, 2, 1, 3):
            a(f'v_dot2c_f32_bf16 v{acc + c}, v{vEW + 4 * j + c}, v{20 + j + (j >= 3)}')
    a(f'''
    v_permlane32_swap_b32 v36, v38
    v_permlane32_swap_b32 v37, v39
    v_pk_add_f32 v[36:37], v[36:37], v[38:39]
    v_permlane16_swap_b32 v36, v37
    v_add_f32 v36, v36, v37
    ''')
    for c in ('row_ror:8', 'row_ror:4'):
        dpp('v_add_f32', acc, c)
    a(f'''
    s_mov_b32 exec_lo, 0x000f000f
    s_mov_b32 exec_hi, 0x000f000f
    ds_write_b32 v{vRed}, v{acc}
    s_mov_b64 exec, -1
    s_cmp_ge_u32 s{sW}, 4
    s_waitcnt lgkmcnt(0)
    ''')
    fine('e', 'pre-B9')
    bar('B9')
    fine('e', 'B9')
    a(f'''
    s_cbranch_scc1 L_e_done
    ds_read_b128 v[20:23], v{vRd} offset:{RED}
    ds_read_b128 v[24:27], v{vRd} offset:{RED + 256}
    s_waitcnt lgkmcnt(0)
    v_pk_add_f32 v[20:21], v[20:21], v[22:23]
    v_pk_add_f32 v[24:25], v[24:25], v[26:27]
    v_add_f32 v20, v20, v21
    v_add_f32 v24, v24, v25
    v_mul_f32 v21, 0xbfb8aa3b, v20
    v_exp_f32 v21, v21
    v_mul_f32 v20, v20, v24
    v_add_f32 v21, 1.0, v21
    v_rcp_f32 v21, v21
    v_mul_f32 v20, v20, v21
    ''')
    fine('e', 'gu')
    sG = 8
    for u in range(16):
        a(f'v_readlane_b32 s{sG + u}, v20, {u}')
    for u in range(16):
        for hh in range(2):
            w_ = vr(vFW + 4 * u + 2 * hh, 2)
            g_ = sr(sG + (u & ~1))
            d_ = vr(36 + 2 * hh, 2)
            if u == 0:
                a(f'v_pk_mul_f32 {d_}, {w_}, {g_} op_sel:[0,0] op_sel_hi:[1,0]')
            else:
                a(f'v_pk_fma_f32 {d_}, {w_}, {g_}, {d_} {BC1 if u & 1 else BC0}')
    for k in range(4):
        a(f'v_and_or_b32 v{36 + k}, v{36 + k}, v18, s{sTB + k}')
    a('s_mov_b32 exec_hi, 0xff')
    a(f'global_store_dwordx4 v{vL16}, v[36:39], {sr(sBb)} sc1')
    a('s_mov_b64 exec, -1')
    stamp('PY out')
    fine('e', 'PY out')
    a('s_waitcnt vmcnt(0)')
    a.label('L_e_done')
    bar('B10')
    a.label('L_fin')
    stamp('end')
    fine('e', 'end')
    if FINE:
        a('s_waitcnt lgkmcnt(0)')
    dump_stamps()
    a.label('L_end')
    a('s_endpgm')
    flush_late()


sF1, sF2, sPb, sGw, sWb = 56, 58, 60, 62, 64


def publish(P='H0'):
    a(f'''
    ds_read_b128 v[40:43], v28 offset:{RED}
    ds_read_b128 v[44:47], v28 offset:{RED + 16}
    v_lshl_add_u32 v36, s{sBlk}, 8, v{vL4}
    s_waitcnt lgkmcnt(0)
    v_pk_add_f32 v[40:41], v[40:41], v[42:43]
    v_pk_add_f32 v[44:45], v[44:45], v[46:47]
    v_add_f32 v40, v35, v40
    v_pk_add_f32 v[40:41], v[40:41], v[44:45]
    v_add_f32 v40, v40, v41
    v_and_or_b32 v40, v40, v33, v34
    global_store_dword v36, v40, {sr(WS)} sc1
    ''')
    stamp('published', P)


def w_addr():
    a(f'''
    s_mul_i32 s{sU1}, s{sIdx}, 15
    s_min_u32 s{sU1}, s{sU1}, 306
    s_add_u32 s{sT}, s{sU1}, s{sX}
    s_and_b32 s{sT}, s{sT}, 1
    s_sub_u32 s{sU1}, s{sU1}, s{sT}
    s_mul_i32 s{sU0}, s{sX}, 321
    s_add_u32 s{sU1}, s{sU1}, s{sU0}
    s_lshl_b32 s{sU1}, s{sU1}, 1
    v_lshrrev_b32 v90, 1, v{vL}
    v_mul_u32_u24 v90, 5136, v90
    v_lshlrev_b32 v91, 1, v{vL}
    v_xor_b32 v91, v{vL16}, v91
    v_and_b32 v91, 16, v91
    v_add3_u32 v100, v90, v91, s{sU1}
    ''')


def w_gather(arr, lds):
    for n in range(8):
        a(f's_mov_b32 m0, {lds + 1024 * n}')
        a(f'global_load_lds_dwordx4 v100, {sr(arr)}')
        if n < 7:
            a(f'v_add_u32 v100, {32 * 5136}, v100')


def mask_lanes(n):
    if n >= 64:
        return
    if n > 32:
        a(f's_mov_b32 exec_hi, {hex((1 << (n - 32)) - 1)}')
    else:
        a(f's_mov_b64 exec, {hex((1 << n) - 1)}')


def warm_addr_w():
    a(f'''
    s_mul_i32 s{sU3}, s{sRi}, 48
    s_movk_i32 s{sU2}, 0x2aab
    s_mul_i32 s{sU1}, s{sX}, 642
    s_movk_i32 s{sT}, 5136
    ''')
    for n in range(1):
        a(f'''
        v_add_u32 v90, s{sU3}, v{vL}
        v_min_u32 v90, 1535, v90
        v_mul_u32_u24 v91, s{sU2}, v90
        v_lshrrev_b32 v91, 16, v91
        v_mul_u32_u24 v92, 6, v91
        v_sub_u32 v92, v90, v92
        v_lshlrev_b32 v92, 7, v92
        v_min_u32 v92, 638, v92
        v_add_u32 v92, s{sU1}, v92
        v_mad_u32_u24 v92, v91, s{sT}, v92
        v_and_b32 v{120 + n}, -4, v92
        ''')


def ffn_parts(slot):
    return [(n, k) for n in range(3) if S_W[n] == slot for k in range(2 if slot == 7 else 1)]


def warm_addr_f(h, slot):
    f, per, lanes = {0: (0, 30, 30), 7: (NJ, 96, 48), 8: (0, 48, 48)}[slot]
    if not ffn_parts(slot):
        return
    a(f'''
    s_sub_u32 s{sU0}, s{sRi}, {f}
    s_mul_i32 s{sU3}, s{sU0}, {per}
    s_mul_i32 s{sU1}, s{sX}, 384
    s_movk_i32 s{sU2}, 0x5556
    s_movk_i32 s{sT}, {3072 - 384}
    s_mul_i32 s{sU0}, s{sX}, 245760
    ''')
    for n, k in ffn_parts(slot):
        d = 130 + 2 * n + k
        a(f'''
        v_add_u32 v90, s{sU3}, v{vL}
        v_add_u32 v90, {lanes * k}, v90
        v_min_u32 v90, 959, v90
        v_add_u32 v90, {960 * (n if n < 2 else h)}, v90
        ''')
        if n < 2:
            a(f'''
            v_mul_u32_u24 v91, s{sU2}, v90
            v_lshrrev_b32 v91, 16, v91
            v_lshl_add_u32 v90, v90, 7, s{sU1}
            v_mad_u32_u24 v{d}, v91, s{sT}, v90
            ''')
        else:
            a(f'v_lshl_add_u32 v{d}, v90, 7, s{sU0}')


def warm_issue(h, slot, sel=None):
    if slot == 0:
        mask_lanes(48)
        for n in range(1):
            a(f'global_load_dword v125, v{120 + n}, {sr(W_R if h else W_I)}')
    ps = ffn_parts(slot) if sel is None else sel
    if ps:
        mask_lanes(30 if slot == 0 else 48)
    for n, k in ps:
        a(f'global_load_dword v125, v{130 + 2 * n + k}, {sr(W_D if n == 2 else (W_G if h else W_U))}')
    a('s_mov_b64 exec, -1')


def e_addr(mat):
    a(f'''
    s_max_u32 s{sU1}, s{sRi}, 20
    s_mul_i32 s{sU0}, s{sX}, 12
    s_add_u32 s{sU0}, s{sU0}, s{sU1}
    s_sub_u32 s{sU0}, s{sU0}, 20
    s_mul_i32 s{sU1}, s{sU0}, 20480
    s_lshl_b32 s{sU0}, s{sU0}, 5
    v_lshrrev_b32 v128, 1, v{vL}
    v_mul_u32_u24 v128, 3072, v128
    v_and_b32 v90, 16, v{vL16}
    v_add_u32 v128, v128, v90
    ''')
    base_add(sF1, mat, sU0)
    base_add(sGw, W_D, sU1, 10240 if mat == W_U else 0)


def if_e(f):
    L = newlabel('ne')
    a(f's_cmp_lt_u32 s{sRi}, 20')
    a(f's_cbranch_scc1 {L}')
    f()
    a.label(L)


def e_gather(half, n0, n1):
    for n in range(n0, n1):
        a(f's_mov_b32 m0, {EW + (n % 4 + 4 * half) * 5120 + (n // 4) * 1024}')
        a(f'global_load_lds_dwordx4 v128, {sr(sF1)}')
        if n < 19:
            a(f'v_add_u32 v128, {32 * 3072}, v128')


def wd_load(half):
    for n in range(10):
        if n % 4 == 0:
            a(f's_mov_b32 m0, {FW + half * 10240 + n * 1024}')
            a(f'v_add_u32 v90, {1024 * n}, v{vL16}')
        a(f'global_load_lds_dwordx4 v90, {sr(sGw)} offset:{1024 * (n % 4)} {INPOL if S_W[2] == 9 else str()}')


def touch_small():
    if 'k' in TCH:
        a(f's_mul_i32 s{sU0}, s{sMe}, {REC_STRIDE}')
        base_add(sBa, WS, sU0, REC_G)
        a(f'''
        s_mov_b64 exec, 0xff
        global_store_dwordx4 v{vL16}, v[20:23], {sr(sBa)} sc1
        s_mov_b64 exec, -1
        ''')
    if 'p' in TCH:
        def f():
            a(f'''
            s_mul_i32 s{sU1}, s{sX}, 12
            s_add_u32 s{sU1}, s{sU1}, s{sRi}
            s_mul_i32 s{sU1}, s{sU1}, {PY_STRIDE}
            ''')
            base_add(sBa, WS, sU1, PY_G - 20 * PY_STRIDE)
            a(f'''
            global_store_dwordx4 v{vL16}, v[20:23], {sr(sBa)} sc1
            global_store_dwordx4 v{vL16}, v[20:23], {sr(sBa)} offset:1024 sc1
            s_mov_b32 exec_hi, 0
            global_store_dwordx4 v{vL16}, v[20:23], {sr(sBa)} offset:2048 sc1
            s_mov_b64 exec, -1
            ''')
        if_e(f)


def finalizer():
    a(f'''
    s_cmp_ge_u32 s{sRi}, 30
    s_cbranch_scc1 L_hx0
    ds_read_b32 v21, v62
    s_mul_i32 s{sU2}, s{sX}, 10
    s_add_u32 s{sU2}, s{sU2}, s{sRi}
    s_sub_u32 s{sU2}, s{sU2}, 20                   ; f
    v_mov_b32 v26, 0
    v_mov_b32 v27, 0
    s_waitcnt lgkmcnt(0)
    v_readfirstlane_b32 s{sU0}, v21
    s_and_b32 s{sU1}, s{sU0}, 255
    s_mul_i32 s{sU1}, s{sU1}, {REC_STRIDE}
    ''')
    base_add(sBa, WS, sU1, REC_G + REC_BASE)
    done = [f'global_load_dwordx4 v[32:35], v26, {sr(sBa)} sc1']
    a(f'''
    v_and_b32 v20, 1, v{vL}
    v_lshrrev_b32 v21, 4, v{vL}
    v_lshl_add_u32 v20, v20, 2, v21
    s_lshl_b32 s{sT}, s{sU2}, 3
    v_add_u32 v20, s{sT}, v20
    s_lshr_b32 s{sCand}, s{sU2}, 4                 ; j
    s_cmp_ge_u32 s{sCand}, 3
    s_cselect_b32 s{sT}, 3, 0
    s_sub_u32 s{sCand}, s{sCand}, s{sT}            ; dword inside the quad
    s_mul_i32 s{sT}, s{sT}, 342
    s_and_b32 s{sT}, s{sT}, 1024
    v_bfe_u32 v26, v20, 1, 6
    v_lshl_add_u32 v26, v26, 4, s{sT}
    {done[0] if not BL else ''}
    v_lshlrev_b32 v20, 1, v20                      ; 2d
    v_add_u32 v21, {MODB_L + 3840}, v20
    v_mov_b32 v22, 0
    ds_read_u16_d16_hi v22, v21                    ; gb[d]
    s_and_b32 s{sU1}, s{sU0}, 0x7ff
    s_mul_i32 s{sU1}, s{sU1}, 1280
    ''')
    base_add(sXrow, OUTP, sU1)
    a(f'''
    s_and_b32 s{sU1}, s{sU0}, 0xfffff800
    s_or_b32 s{sU1}, s{sU1}, 0x400
    s_xor_b32 s{sU3}, s{sU1}, 0x80000000
    s_not_b32 s{sT}, s{sU1}
    s_cmp_lt_i32 s{sU1}, 0
    s_cselect_b32 s{sU1}, s{sU3}, s{sT}
    v_mov_b32 v28, s{sU1}
    ''')
    a(f'''
    v_mul_f32 v28, 0xbfb8aa3b, v28
    v_exp_f32 v28, v28
    v_add_f32 v28, 1.0, v28
    v_rcp_f32 v28, v28
    ''')
    a(f'''
    v_lshrrev_b32 v29, 1, v{vL}
    v_mul_u32_u24 v29, {PY_STRIDE}, v29
    v_and_b32 v30, 16, v{vL16}
    v_add_u32 v29, v29, v30
    v_add_u32 v30, {32 * PY_STRIDE}, v29
    v_add_u32 v31, {64 * PY_STRIDE}, v29
    s_lshl_b32 s{sU2}, s{sU2}, 5
    ''')
    base_add(sBb, WS, sU2, PY_G)
    a('s_waitcnt lgkmcnt(0)')
    a('v_mul_f32 v22, v22, v28')
    bar('B9')

    def base_in(younger):
        poll(done, [35], [], empty='word', issued=True, younger=younger)
        a(f'''
        s_cmp_eq_u32 s{sCand}, 1
        s_cselect_b64 vcc, -1, 0
        v_cndmask_b32 v27, v32, v33, vcc
        s_cmp_eq_u32 s{sCand}, 2
        s_cselect_b64 vcc, -1, 0
        v_cndmask_b32 v27, v27, v34, vcc
        v_and_b32 v32, 16, v{vL}
        v_lshrrev_b32 v27, v32, v27
        v_lshlrev_b32 v27, 16, v27
        ''')
    if not BL:
        base_in(0)
    bar('B10')
    if PYD:
        a(done[0])
        a('s_waitcnt vmcnt(0)')
    stamp('PY poll', 'H0')
    if BL:
        a(done[0])
    poll([f'global_load_dwordx4 {vr(36 + 4 * n, 4)}, v{29 + n}, {sr(sBb)} sc1' for n in range(3)],
         list(range(36, 48)), [48, 49], empty='tag', between=(lambda: base_in(3)) if BL else None)
    a(f'''
    v_pk_add_f32 v[36:37], v[36:37], v[40:41]
    v_pk_add_f32 v[38:39], v[38:39], v[42:43]
    v_pk_add_f32 v[36:37], v[36:37], v[44:45]
    v_pk_add_f32 v[38:39], v[38:39], v[46:47]
    v_permlane32_swap_b32 v36, v38
    v_permlane32_swap_b32 v37, v39
    v_pk_add_f32 v[36:37], v[36:37], v[38:39]
    v_permlane16_swap_b32 v36, v37
    v_add_f32 v36, v36, v37
    ''')
    for c in ('row_ror:8', 'row_ror:4', 'row_ror:2'):
        dpp('v_add_f32', 36, c)
    a(f'''
    v_fma_f32 v36, v36, v22, v27
    v_cvt_pk_bf16_f32 v36, v36, v36
    s_mov_b32 exec_lo, 0x00030003
    s_mov_b32 exec_hi, 0x00030003
    global_store_short v20, v36, {sr(sXrow)} {FINPOL}
    s_mov_b64 exec, -1
    ''')


def helper_tail(h, P, red_load, red_work, modf_load, modf_work):
    bar('BT')
    if BG:
        if h == 1:
            a(f's_waitcnt vmcnt({BG - 1})')
        bar('BG')
    bar('BP')
    if WPOS == 1:
        warm_issue(h, 0)
    if h == 0:
        is_b()
        a('s_cbranch_scc0 L_pl')
        publish()
        a.label('L_pl')
    a(f's_cmp_ge_u32 s{sIdx}, {NJ}')
    a(f's_cbranch_scc1 L_idle{h}')
    bar('B2')
    red_load()
    w_gather(W_R if h else W_I, WST + (0 if h else 8192))
    bar('B3')
    a('s_waitcnt vmcnt(0)')
    stamp('W in', P)
    if RE:
        red_work()
    bar('B3b')
    if AL1:
        bar('B3c')
    if h == 0:
        touch_small()
    if not RE:
        red_work()
    bar('B4')
    a('s_waitcnt vmcnt(0)')
    modf_load()
    if EG3:
        if_e(lambda: e_gather(1 - h, 0, EG3))
    bar('B5')
    if h == 0:
        a(f's_cmp_lt_u32 s{sRi}, 20')
        a(f's_waitcnt vmcnt({EG3})')
        a('s_cbranch_scc0 L_h0_m')
        a('s_waitcnt vmcnt(0)')
        a.label('L_h0_m')
    modf_work()
    bar('B5b')
    if AL2:
        bar('B5c')
    if S_W[2] == 8:
        warm_addr_f(h, 8)
    if W8 == 0:
        bar('B6')
    if S_W[2] == 8:
        a(f's_cmp_lt_u32 s{sRi}, 20')
        a(f's_cbranch_scc0 L_w8{h}')
        warm_issue(h, 8)
        a.label(f'L_w8{h}')
    if W8 == 1:
        bar('B6')
    if_e(lambda: (e_gather(1 - h, EG3, 20), wd_load(1 - h) if S_W[2] != 8 else None))
    if h == 0:
        a(f'''
        s_cmp_lg_u32 s2, 8
        s_cbranch_scc1 L_h0_ne
        v_mov_b32 v26, {EPOCH_G}
        s_mov_b64 exec, 1
        global_store_dword v26, v27, {sr(WS)} sc1
        s_mov_b64 exec, -1
        ''')
        a.label('L_h0_ne')
    a.label(f'L_hend{h}')
    a(f'''
    v_mul_u32_u24 v60, {REC_STRIDE}, v{vL}
    v_add_u32 v60, {REC_G + 128 * h * REC_STRIDE}, v60
    v_add_u32 v61, {64 * REC_STRIDE}, v60
    v_mov_b32 v62, {KEYL + 4}
    v_lshlrev_b32 v63, 7, v{vL}
    v_add_u32 v63, {REC_G + REC_H2}, v63
    s_movk_i32 s{sU0}, {REC_STRIDE}
    s_cmp_lt_u32 s{sRi}, 20
    ''')
    bar('B7')
    a('s_waitcnt vmcnt(0)')
    a(f's_cbranch_scc1 L_hx{h}')
    if S_W[2] == 8:
        assert FWL and IWD
        wd_load(1 - h)
    kl = [f'global_load_dwordx2 v[64:65], v60, {sr(WS)} sc1', f'global_load_dwordx2 v[66:67], v61, {sr(WS)} sc1']
    if KP == 1:
        bar('B7b')
    if KD:
        bar('B7c')
    stamp('key poll', P)
    poll(kl, [65, 67], [68, 69], empty='word', between=(lambda: bar('B7b')) if KP == 0 else None)
    a('v_max_u32 v64, v64, v66')
    for c in ('row_ror:8', 'row_ror:4', 'row_ror:2', 'row_ror:1'):
        dpp('v_max_u32', 64, c)
    a(f'''
    s_mov_b32 exec_lo, 0x00010001
    s_mov_b32 exec_hi, 0x00010001
    ds_max_u32 v62, v64
    s_mov_b64 exec, -1
    s_waitcnt lgkmcnt(0)
    ''')
    bar('B8')
    if h == 0:
        finalizer()
    a.label(f'L_hx{h}')
    stamp('end', P)
    dump_stamps(P)
    a('s_endpgm')
    a.label(f'L_idle{h}')
    warm_addr_f(h, 7)
    ps = ffn_parts(7)
    can = [f'global_load_dword v113, v110, {sr(WS)} sc1']
    if h == 1:
        a(f'''
        v_add_u32 v110, s{sIdx}, v{vL}
        v_and_b32 v110, 7, v110
        v_mul_u32_u24 v110, {NJ}, v110
        v_lshrrev_b32 v111, 3, v{vL}
        v_mad_u32_u24 v110, v111, 5, v110
        v_mul_u32_u24 v110, {T2S}, v110
        s_lshl_b32 s{sU0}, s{sMe}, 6
        s_add_u32 s{sU0}, s{sU0}, {T2_G + CANJ * T2S + 60}
        v_add_u32 v110, s{sU0}, v110
        ''')
        assert CANJ + 5 * max(NCAN // 8 - 1, 0) < NJ
    bar('B2')
    red_load()
    if h == 1:
        a('s_waitcnt vmcnt(0)')
        mask_lanes(NCAN)
        a(can[0])
        a('s_mov_b64 exec, -1')
    warm_issue(h, 7, ps[:EARLY])
    bar('B3')
    if RE and h == 0:
        a(f's_waitcnt vmcnt({len(ps[:EARLY])})')
        red_work()
        red_work = lambda: None
    bar('B3b')
    ieg = IEG
    if ISEQ == 0:
        warm_issue(h, 7, ps[EARLY:])
        if h == 0:
            a(f's_waitcnt vmcnt({len(ps)})')
            red_work()
            touch_small()
        nd = sum(1 for n, k in ps[EARLY:] if n == 2)
        a(f's_waitcnt vmcnt({nd + (NT if h == 0 else 0)})')
        stamp('warm in', P)
        e_gather(1 - h, 0, MF)
        modf_load()
        e_gather(1 - h, MF, IEG)
        if IWD == 0:
            wd_load(1 - h)
        if h == 0:
            a(f's_waitcnt vmcnt({IEG - MF + 10 * (IWD == 0)})')
        modf_work()
        bar('B5b')
    else:
        assert EARLY == 2 and S_W[0] == 7
        if h == 0:
            a(f's_waitcnt vmcnt({EARLY})')
            red_work()
            touch_small()
        a(f's_waitcnt vmcnt({NT if h == 0 else 0})')
        stamp('warm in', P)
        e_gather(1 - h, 0, 10)
        if ISEQ == 2:
            a('s_waitcnt vmcnt(0)')
            warm_issue(h, 7, ps[EARLY:])
        if h == 0:
            if ISEQ == 1:
                a('s_waitcnt vmcnt(0)')
            modf_load()
            a('s_waitcnt vmcnt(0)')
        modf_work()
        bar('B5b')
        if ISEQ == 1:
            warm_issue(h, 7, ps[EARLY:])
        ieg = max(IEG, 10)
        if ieg > 10:
            a('s_waitcnt vmcnt(0)')
            e_gather(1 - h, 10, ieg)
    a('s_waitcnt vmcnt(0)')
    stamp('ffn in', P)
    if h == 1:
        poll(can, [113], [], mask=NCAN, empty='word')
        stamp('can', P)
    bar('B5c')
    bar('B6')
    e_gather(1 - h, ieg, 20)
    if IWD and S_W[2] != 8:
        wd_load(1 - h)
    a(f's_branch L_hend{h}')
    flush_late()


def helper0():
    a.label('L_h0')
    a(f's_mov_b32 s{sHI}, 0xffff0000')
    a(f'''
    v_mov_b32 v20, 0
    v_mov_b32 v21, 0
    v_mov_b32 v22, 0
    v_mov_b32 v23, 0
    v_mov_b32 v28, {KEYL}
    ds_write_b128 v28, v[20:23]
    ''')
    blk_id()
    warm_addr_w()
    warm_addr_f(0, 0)
    a('s_waitcnt lgkmcnt(0)')
    epoch_load()
    bar('B0 / B1')
    if PB:
        is_a()
        a('s_cbranch_scc0 L_h0_v')
        bar('B1b')
        a.label('L_h0_v')
    if WPOS == 0:
        warm_issue(0, 0)
    stamp('kernarg', 'H0')
    e_addr(W_U)
    w_addr()
    a('s_waitcnt lgkmcnt(0)')
    epoch_tag()
    tag_bytes()
    pub_setup(sTag)
    a(f's_lshl_b32 s{sU2}, s{sBlk}, 8')
    base_add(sPb, WS, sU2)
    a(f'''
    v_mov_b32 v27, s{sTag}
    v_lshlrev_b32 v29, 3, v{vL}
    v_add_u32 v29, {MODB_L}, v29
    v_add_u32 v30, {MODF_G}, v{vL16}
    v_add_u32 v31, {MODF_G + 4096}, v{vL16}
    v_add_u32 v32, {MODF_G + 8192}, v{vL16}
    ''')
    red = [f'global_load_dwordx4 v[40:43], v{vL16}, {sr(sPb)} sc1']
    modf = [f'global_load_dwordx4 {vr(40 + 4 * n, 4)}, v{30 + n // 4}, {sr(WS)} offset:{1024 * (n % 4)} sc1' for n in range(10)]

    def in_w1(k):
        L = newlabel('nr')
        a(f'''
        s_cmp_lt_u32 s{sBlk}, 80
        s_cbranch_scc1 {L}
        s_and_b32 s{sT}, s{sBlk}, 3
        s_cbranch_scc1 {L}
        ''')
        if k == 0:
            a(red[0])
            a.label(L)
            return
        poll(red, [40, 41, 42, 43], [44], empty='tag', issued=True, younger=63)
        a(f'''
        v_mov_b32 v44, v40
        v_mov_b32 v45, v41
        v_mov_b32 v46, v42
        v_mov_b32 v47, v43
        s_lshr_b32 s{sU0}, s{sBlk}, 2
        s_sub_u32 s{sT}, s{sU0}, 40
        s_cmp_lt_u32 s{sT}, 10
        s_cselect_b32 s{sU1}, 1.0, 0
        s_lshl_b32 s{sU0}, s{sU0}, 8
        s_add_u32 s{sU0}, s{sU0}, {MODF_G - 20 * 256}
        ''')
        for sw in ('32', '16'):
            for r in range(4):
                a(f'v_permlane{sw}_swap_b32 v{40 + r}, v{44 + r}')
            a('v_pk_add_f32 v[40:41], v[40:41], v[44:45]')
            a('v_pk_add_f32 v[42:43], v[42:43], v[46:47]')
            if sw == '32':
                for r in range(4):
                    a(f'v_mov_b32 v{44 + r}, v{40 + r}')
        a('v_cvt_pk_bf16_f32 v44, v40, v41')
        a('v_cvt_pk_bf16_f32 v45, v42, v43')
        unpack(40, 41, 44)
        unpack(42, 43, 45)
        for r in range(4):
            a(f'v_add_f32 v{40 + r}, s{sU1}, v{40 + r}')
        a(f'''
        v_cvt_pk_bf16_f32 v44, v40, v41
        v_cvt_pk_bf16_f32 v45, v42, v43
        v_mov_b32 v47, s{sTag}
        v_add_u32 v48, s{sU0}, v{vL16}
        s_mov_b64 exec, 0xffff
        global_store_dwordx4 v48, v[44:47], {sr(WS)} sc1
        s_mov_b64 exec, -1
        ''')
        stamp('reduced', 'H0')
        a.label(L)

    def in_w2(k):
        if k == 0:
            for ld in modf:
                a(ld)
            return
        poll(modf, [43 + 4 * n for n in range(10)], list(range(80, 90)), empty='words', issued=True, younger=63)
        for n in range(10):
            a(f'ds_write_b64 v29, {vr(40 + 4 * n, 2)} offset:{512 * n}')
        a('s_waitcnt lgkmcnt(0)')
        stamp('modb in', 'H0')
    helper_tail(0, 'H0', lambda: in_w1(0), lambda: in_w1(2), lambda: in_w2(0), lambda: in_w2(1))


def helper1():
    a.label('L_h1')
    a(f'''
    s_getpc_b64 {sr(sBa)}
    L_pc:
    s_add_u32 s{sBb}, s{sBa}, L_tables-L_pc
    s_addc_u32 s{sBb + 1}, s{sBa + 1}, 0
    ''')

    def tabs(q0, q1):
        for q in range(q0, q1):
            if q % 4 == 0 or q == q0:
                a(f's_mov_b32 m0, {TAB + (q & ~3) * 1024}')
                a(f'v_add_u32 v20, {(q & ~3) * 1024}, v{vL16}')
            a(f'global_load_lds_dwordx4 v20, {sr(sBb)} offset:{1024 * (q % 4)}')

    def tab2():
        tabs(NT1, NTAB)
        a(f'''
        s_mov_b32 m0, {WR_L}
        global_load_lds_dwordx4 v{vL16}, {sr(B_WR)}
        s_mov_b64 exec, 0xffff
        global_load_lds_dwordx4 v{vL16}, {sr(B_WR)} offset:1024
        s_mov_b64 exec, -1
        ''')
        return NTAB - 14 + 2

    if AT == 2:
        tabs(0, NT1)
    warm_addr_w()
    warm_addr_f(1, 0)
    a('s_waitcnt lgkmcnt(0)')
    epoch_load()
    if AT == 0:
        blk_id()
        is_a()
        a('s_cbranch_scc0 L_h1_t')
        bar('B1')
        if PB:
            bar('B1b')
        a.label('L_h1_t')
    if AT < 2:
        tabs(0, NT1)
    if AT == 0:
        is_a()
        a('s_cbranch_scc1 L_h1_v')
    bar('B0 / B1')
    if AT and PB:
        blk_id()
        is_a()
        a('s_cbranch_scc0 L_h1_v')
        bar('B1b')
    a.label('L_h1_v')
    tab2()
    if WPOS == 0:
        warm_issue(1, 0)
    e_addr(W_G)
    w_addr()
    a('s_waitcnt lgkmcnt(0)')
    epoch_tag()
    a(f's_waitcnt vmcnt({NTAB - NT1 + 2 + (1 + len(ffn_parts(0))) * (WPOS == 0)})')
    stamp('tab in', 'H1')
    nop = lambda: None
    helper_tail(1, 'H1', nop, nop, nop, nop)


prologue()
main_path()
helper0()
helper1()
body = a.finish()

hdr = open(f'cdna_kernels/{NAME}.s.ref').read().split('; Override launch')[0]
T = tables()
tab = []
flat = T.reshape(-1)
for k in range(0, flat.size, 8):
    tab.append('.long ' + ','.join('0x%08x' % v for v in flat[k:k + 8]))

launch = f'; @launch grid=(256,1,1) block=(640,1,1) lds={LDS_BYTES}'
pre_code = pre_kd = ''
if PRE:
    launch = f'; @launch kernel=pre_kernel grid=({PRE},1,1) block=(64,1,1) lds=0\n; @launch kernel={NAME}_kernel grid=(256,1,1) block=(640,1,1) lds={LDS_BYTES}'
    pre_code = '.globl pre_kernel\n.p2align 8\n.type pre_kernel,@function\npre_kernel:\n    s_endpgm\n'
    pre_kd = '''.p2align 6
.amdhsa_kernel pre_kernel
  .amdhsa_next_free_vgpr 8
  .amdhsa_next_free_sgpr 16
  .amdhsa_accum_offset 8
  .amdhsa_group_segment_fixed_size 0
  .amdhsa_kernarg_size 104
  .amdhsa_user_sgpr_count 2
  .amdhsa_user_sgpr_kernarg_segment_ptr 1
  .amdhsa_system_sgpr_workgroup_id_x 1
.end_amdhsa_kernel
'''
src = hdr + f'''{launch}
.amdgcn_target "amdgcn-amd-amdhsa--gfx950"
.text
{pre_code}.globl {NAME}_kernel
.p2align 8
.type {NAME}_kernel,@function
{NAME}_kernel:
{body}
.p2align 8
.type L_tables,@object
L_tables:
''' + '\n'.join(tab) + f'''
.size L_tables, {NTAB * 1024}
.fill (8192 - ((. - {NAME}_kernel) & 8191)) & 8191, 1, 0
L_tables_end:
.section .rodata,"a"
.p2align 6
.amdhsa_kernel {NAME}_kernel
  .amdhsa_next_free_vgpr 168
  .amdhsa_next_free_sgpr 102
  .amdhsa_accum_offset 168
  .amdhsa_group_segment_fixed_size 0
  .amdhsa_kernarg_size 104
  .amdhsa_user_sgpr_count 2
  .amdhsa_user_sgpr_kernarg_segment_ptr 1
  .amdhsa_system_sgpr_workgroup_id_x 1
.end_amdhsa_kernel
{pre_kd}'''
open(OUT, 'w').write(src)
print('wrote', OUT, 'lds', LDS_BYTES, 'lines', len(a.lines), 'nops', a.nnops)
```

```python
import sys, struct
import numpy as np
from asmdsl import Asm

NAME = 'adaLN_cond__spectral_gfnet__moe_arch_mod__prompt'
DIAG = '--diag' in sys.argv or '--dbgdiag' in sys.argv
DBGDIAG = '--dbgdiag' in sys.argv
OUT = [a for a in sys.argv[1:] if not a.startswith('--')]
OUT = OUT[0] if OUT else f'cdna_kernels/{NAME}.s'
SPIN = 60000


def opt(name, default):
    for x in reversed(sys.argv):
        if x.startswith(f'--{name}='):
            return x.split('=', 1)[1]
    return default


PROBE = opt('probe', None)
if PROBE:
    PROBE = PROBE.replace('_', ' ')
PROBEWG = int(opt('probewg', 8))
FINE = opt('fine', None)
if PROBE or FINE:
    DIAG = True
PRE = None
INPOL = 'nt'
S_W = [int(x) for x in opt('sw', '777')]
EG3 = int(opt('eg3', 10))
PACE1 = int(opt('pace1', 0))
PACE2 = int(opt('pace2', 0))
PK = opt('pk', '110')
P3FIRST = int(opt('p3first', 1))
WFIRST = int(opt('wfirst', 1))
DR1 = int(opt('dr1', 0))
DR2 = int(opt('dr2', 0))
BGWAIT = int(opt('bgwait', 9))
EARLY = int(opt('early', 2))
MATS = int(opt('mats', 2))
IEG = int(opt('ieg', 16))
IWD = int(opt('iwd', 1))
MF = int(opt('mf', 10))
MR = int(opt('mr', 0))
BLOAD = int(opt('bload', 2))
P2ORD = int(opt('p2ord', 1))
GLATE = int(opt('glate', 0))
B0 = int(opt('b0', 3))
FWL = int(opt('fwl', 0))
KP = int(opt('kp', 1))
PF = int(opt('pf', 0))
XL = int(opt('xl', 3))
WC = int(opt('wc', 0))
KD = int(opt('kd', 0))
ISEQ = int(opt('iseq', 0))
RE = int(opt('re', 1))
FINPOL = opt('finpol', '')
PYD = int(opt('pyd', 0))
TCH = opt('tch', 'mkp')
NT = ('k' in TCH) + 3 * ('p' in TCH)
PKS = int(opt('pks', 1))
P3O = int(opt('p3o', 0))
PRIO = opt('prio', '000')
AL1 = int(opt('al1', 0))
AL2 = int(opt('al2', 0))
OE = int(opt('oe', 1))
BL = int(opt('bl', 0))
PL = int(opt('pl', 1))
AW = int(opt('aw', 1))
W8 = int(opt('w8', 0))
TB2 = int(opt('tb2', 0))
MW = int(opt('mw', 0))
XMAP = int(opt('xmap', '0x35762410'), 16)
EX = int(opt('ex', 7))
AT = int(opt('at', 1))
AX = int(opt('ax', 1))
WPOS = int(opt('wpos', 0))
SC_ = int(opt('sc', 1))
XP = int(opt('xp', 0))
BG = int(opt('bg', 0))
MT = int(opt('mt', 1))
S1 = int(opt('s1', 3))
PB = int(opt('pb', 1))
NCAN = int(opt('ncan', 1))
CANJ = int(opt('canj', 12))
NJ = 22
T1S = 8 * NJ * 64 + int(opt('t1pad', 0))
T2S = 16384 + int(opt('t2pad', 256))

MODA_G = 0
MODF_G = 61440
EPOCH_G = 73728
PY_G = 0x20000
PY_STRIDE = 2688
REC_G = 0x80000
REC_STRIDE = 4224
REC_H2 = 128
REC_BASE = 128 + 2048
T1_G = 0x400000
T2_G = 0x800000
DIAG_G = 0xC00000

NTAB = 26
TAB = 0
RED = TAB + NTAB * 1024
KEYL = RED + 2048
XB2 = KEYL + 64
SA = 736
XB1 = XB2 + 20480
MODA_L = XB1 + 16 * SA
MODB_L = MODA_L + 5120
WR_L = MODB_L + 5120
WST = WR_L + 2048
EW = WST + 16384
FW = EW + 40960
STL = FW + 20480
LDS_BYTES = STL + 256
assert LDS_BYTES <= 163840, LDS_BYTES

T_F20C, T_F20S, T_TW1, T_F32A, T_ADR, T_TW3, T_F20I, T_F32B, T_F16, T_TW2 = 0, 1, 2, 6, 10, 11, 15, 18, 22, 24
NT1 = 11


def f2u(x):
    return struct.unpack('<I', struct.pack('<f', float(x)))[0]


def bf(x):
    u = f2u(x)
    return ((u + 0x7FFF + ((u >> 16) & 1)) >> 16) & 0xFFFF


def pk(lo, hi):
    return bf(lo) | (bf(hi) << 16)


ALPHA = {16: 1.1328, 20: 1.4294, 32: 1.62445}


def cs(num, den):
    a = 2 * np.pi * (num % den) / den
    c, s = np.cos(a), np.sin(a)
    if abs(c) < 1e-12: c = 0.0
    if abs(s) < 1e-12: s = 0.0
    al = ALPHA.get(den, 1.0)
    return c * al, s * al


def kaof(x):
    ka = 3 * (x >> 2) + (x & 3)
    return ka if (x & 3) < 3 and ka <= 10 else None


def tables():
    T = np.zeros((NTAB, 64, 4), np.uint32)
    for l in range(64):
        i, g = l & 15, l >> 4
        c8, s8 = [0.0] * 8, [0.0] * 8
        for j in range(5):
            if kaof(i) is not None:
                c, s = cs((4 * j + g) * kaof(i), 20)
                c8[j], s8[j] = c, -s
        for d in range(4):
            T[T_F20C, l, d] = pk(c8[2 * d], c8[2 * d + 1])
            T[T_F20S, l, d] = pk(s8[2 * d], s8[2 * d + 1])
        for t in range(2):
            for r in range(4):
                c, s = cs((8 * g + 2 * r + t) * (kaof(i) or 0), 640)
                T[T_TW1 + 2 * t, l, r] = f2u(c)
                T[T_TW1 + 2 * t + 1, l, r] = f2u(s)
                c, s = cs((2 * i + t) * (kaof(4 * g + r) or 0), 640)
                T[T_TW3 + 2 * t, l, r] = f2u(c)
                T[T_TW3 + 2 * t + 1, l, r] = f2u(s)
        kbof = lambda e: e if e < 16 else 47 - e
        for tile in range(2):
            for ks in range(2):
                for r in range(4):
                    c, s = cs(kbof(2 * i + tile) * (8 * g + 2 * r + ks), 32)
                    T[T_F32A + tile * 2 + ks, l, r] = pk(c, s)
                    c, s = cs((2 * i + tile) * kbof(8 * g + 2 * r + ks), 32)
                    T[T_F32B + tile * 2 + ks, l, r] = pk(c, s)
        ka_ = kaof(i)
        k0 = 0 if ka_ is None else (160 * g + ka_ if g < 2 else 160 * g - 300 - ka_)
        T[T_ADR, l, 0] = 8 * k0
        T[T_ADR, l, 1] = 0x8000 if i < 8 else 0x80000000
        T[T_ADR, l, 2] = 0 if g < 2 else 0x8000
        T[T_ADR, l, 3] = 0x8000 if g < 2 else 0
        for r in range(4):
            c, s = cs(i * (4 * g + r), 16)
            T[T_F16, l, r] = pk(c, s)
            T[T_F16 + 1, l, r] = pk(-s, c)
            c, s = cs(i * (4 * g + r), 256)
            T[T_TW2, l, r] = f2u(c)
            T[T_TW2 + 1, l, r] = f2u(s)
            ka = kaof(4 * g + r)
            if ka is not None:
                a1 = 4 * (i & 3) + (i >> 2)
                c, s = cs(a1 * ka, 20)
                T[T_F20I, l, r] = pk(c, -s)
                c, s = cs((16 + (i >> 2)) * ka, 20)
                if (i & 3) == 0:
                    T[T_F20I + 1, l, r] = pk(c, -s)
                if (i & 3) == 1:
                    T[T_F20I + 2, l, r] = pk(c, -s)
    return T


def vr(a, n=1):
    return f'v{a}' if n == 1 else f'v[{a}:{a + n - 1}]'


def sr(a, n=2):
    return f's{a}' if n == 1 else f's[{a}:{a + n - 1}]'


sW, sX, sIdx, sMe, sT = 3, 4, 5, 6, 7
A_X, W_R, W_I, B_WR, W_G, W_U, W_D = 8, 10, 12, 16, 18, 20, 22
C_, W_MOD, OUTP, DBG, WS = 24, 26, 28, 30, 32
sBa, sBb, sBc = 34, 36, 38
sCnt = 40
sM1B = 41
sU0, sU1, sU2, sU3 = 42, 43, 46, 47
sM7 = 44
sRow = 48
sKey = 49
sV1, sV2 = 50, 51
sHI = 52
sCand = 53
sBlk = 54
sRec = 56
sTag = 55
sRi = sIdx
sGU = 56
sXrow = 72
sTS = 74

vL, vL16, vL4, vS, vPoll = 1, 2, 3, 4, 5
vM8F, vM8I = 6, 8
vXS = 10
Ra, Rb, RD, Rc = 20, 28, 36, 52
vF32 = 60
vTW = 92
vF20 = 108
vVec = 120
vE0 = 160
vXR = 150


a = Asm()
stamps = {}
NST = 24


def stamp(name, path='M', wait=True):
    if not DIAG or FINE:
        return
    if opt('only', None) and not (name == 'start' or any(name.startswith(x.replace('_', ' ')) for x in opt('only', '').split(','))):
        return
    if PROBE and (path != 'M' or not (name == 'start' or name.startswith(PROBE))):
        return
    lst = stamps.setdefault(path, [])
    if name not in lst:
        lst.append(name)
    k = lst.index(name)
    assert k < NST
    a(f's_memrealtime s[100:101]')
    a('s_waitcnt lgkmcnt(0)')
    a(f's_mov_b32 s{sTS + k}, s100')


fines = []


def fine(group, name):
    if FINE != group:
        return
    if name not in fines:
        fines.append(name)
    k = fines.index(name)
    assert k < 12
    a(f's_memtime {sr(sTS + 2 * k)}')


def dump_stamps(path='M'):
    if not DIAG:
        return
    if PROBE:
        if path != 'M':
            return
        a(f'''
        s_cmp_lg_u32 s2, {PROBEWG}
        s_cbranch_scc1 L_end
        s_cmp_lg_u32 s{sW}, 0
        s_cbranch_scc1 L_end
        ''')
        if PROBE == 'fix':
            a(f's_movk_i32 s{sU0}, 6000')
        elif PROBE == 'rel':
            RX = int(opt('rx', 1))
            a(f'''
            v_mov_b32 v20, {DIAG_G}
            global_load_dword v21, v20, {sr(WS)} sc1
            global_load_dword v22, v20, {sr(WS)} offset:{128 * RX} sc1
            s_waitcnt vmcnt(0)
            v_sub_u32 v21, v22, v21
            v_add_u32 v21, 100, v21
            v_readfirstlane_b32 s{sU0}, v21
            s_lshl_b32 s{sU0}, s{sU0}, 5
            s_add_u32 s{sU0}, s{sU0}, 6000
            s_min_u32 s{sU0}, s{sU0}, 100000
            ''')
        elif PROBE == 'xcc':
            a(f's_getreg_b32 s{sU0}, hwreg(HW_REG_XCC_ID)')
            a(f's_and_b32 s{sU0}, s{sU0}, 15')
            a(f's_mul_i32 s{sU0}, s{sU0}, 1000')
            a(f's_add_u32 s{sU0}, s{sU0}, 6000')
        else:
            a(f's_sub_u32 s{sU0}, s{sTS + 1}, s{sTS}')
            a(f's_lshl_b32 s{sU0}, s{sU0}, 4')
            a(f's_add_u32 s{sU0}, s{sU0}, 6000')
            a(f's_min_u32 s{sU0}, s{sU0}, 100000')
        a(f'''
        L_probe:
        s_memrealtime s[100:101]
        s_waitcnt lgkmcnt(0)
        s_sub_u32 s{sU1}, s100, s{sTS}
        s_cmp_lt_u32 s{sU1}, s{sU0}
        s_cbranch_scc1 L_probe
        ''')
        return
    if DBGDIAG:
        if path != 'M':
            return
        a('v_mov_b32 v20, 0')
        a('s_mov_b64 exec, 1')
        a(f's_not_b32 s{sU0}, s{sTS}')
        a(f'v_mov_b32 v22, s{sU0}')
        a(f'global_atomic_umax v20, v22, {sr(DBG)} offset:4 sc1')
        ks = [0] + list(range(2, len(stamps['M'])))
        for n, k in enumerate(ks[:14]):
            a(f'v_mov_b32 v{23 + n}, s{sTS + k}')
            a(f'global_atomic_umax v20, v{23 + n}, {sr(DBG)} offset:{8 + 4 * n} sc1')
        print('dbg slots:', [(2 + n, stamps['M'][k]) for n, k in enumerate(ks[:14])])
        return
    a(f'''
    s_lshl_b32 s{sU0}, s2, 11
    s_lshl_b32 s{sU1}, s{sW}, 7
    s_add_u32 s{sU0}, s{sU0}, s{sU1}
    s_memtime s[100:101]
    ''')
    base_add(sBa, WS, sU0, DIAG_G)
    a('v_mov_b32 v20, 0')
    a('s_mov_b64 exec, 1')
    for k in range(0, NST, 2):
        a(f'v_mov_b32 v22, s{sTS + k}')
        a(f'v_mov_b32 v23, s{sTS + k + 1}')
        a(f'global_store_dwordx2 v20, v[22:23], {sr(sBa)} offset:{4 * k}')
        a('s_nop 1')
    a('s_waitcnt lgkmcnt(0)')
    a('s_sub_u32 s100, s100, s98')
    a('v_mov_b32 v22, s100')
    a(f'global_store_dword v20, v22, {sr(sBa)} offset:112')
    a('s_getreg_b32 s42, hwreg(HW_REG_XCC_ID)')
    a('s_getreg_b32 s43, hwreg(HW_REG_HW_ID)')
    a('v_mov_b32 v22, s42')
    a('v_mov_b32 v23, s43')
    a(f'global_store_dwordx2 v20, v[22:23], {sr(sBa)} offset:120')


def base_add(dst, src, off_s=None, imm=0):
    if off_s is not None:
        if imm:
            a(f's_add_u32 s{sT}, s{off_s}, {imm}')
            off_s = sT
        a(f's_add_u32 s{dst}, s{src}, s{off_s}')
    else:
        a(f's_add_u32 s{dst}, s{src}, {imm}')
    a(f's_addc_u32 s{dst + 1}, s{src + 1}, 0')


lblc = [0]
late = []


def flush_late():
    for f in late:
        f()
    late.clear()


def newlabel(p):
    lblc[0] += 1
    return f'L_{p}_{lblc[0]}'


def poll(loads, regs, tmp, mask=None, empty='eq -1', between=None, younger=0, issued=False):
    L, D, Cc = newlabel('poll'), newlabel('polld'), newlabel('pollc')
    if mask is not None:
        mask_lanes(mask)
    if not issued:
        for ld in loads:
            a(ld)
    a(f's_mov_b32 s{sCnt}, {SPIN}')
    if between is not None:
        between()
    if younger < 63:
        a(f's_waitcnt vmcnt({younger})')
    a.label(Cc)

    def retry():
        a.label(L)
        a(f's_sub_u32 s{sCnt}, s{sCnt}, 1')
        a(f's_cbranch_scc1 {D}')
        for ld in loads:
            a(ld)
        a('s_waitcnt vmcnt(0)')
        a(f's_branch {Cc}')
    late.append(retry)
    if empty == 'tag':
        for n, r in enumerate(regs):
            a(f'v_xor_b32 v{r}, s{sTB + (n & 3)}, v{r}')
        rem = list(regs)
        for c in tmp:
            a(f'v_or3_b32 v{c}, v{rem[0]}, v{rem[1]}, v{rem[2]}')
            rem = rem[3:]
        n = 0
        while len(rem) >= 2:
            c = tmp[n % len(tmp)]
            a(f'v_or3_b32 v{c}, v{c}, v{rem[0]}, v{rem[1]}')
            rem = rem[2:]
            n += 1
        t = tmp[0]
        rem = rem + list(tmp[1:])
        while rem:
            if len(rem) >= 2:
                a(f'v_or3_b32 v{t}, v{t}, v{rem[0]}, v{rem[1]}')
                rem = rem[2:]
            else:
                a(f'v_or_b32 v{t}, v{t}, v{rem[0]}')
                rem = rem[1:]
        a(f'v_and_b32 v{t}, 0xff, v{t}')
        empty = 'ne 0'
    elif empty == 'word':
        if len(regs) == 1:
            t = regs[0]
            empty = f'ne s{sTag}'
        else:
            assert len(regs) == 2
            t = tmp[0]
            a(f'v_xor_b32 v{t}, v{regs[0]}, v{regs[1]}')
            a(f'v_xor_b32 v{tmp[1]}, s{sTag}, v{regs[0]}')
            a(f'v_or_b32 v{t}, v{t}, v{tmp[1]}')
            empty = 'ne 0'
    elif empty == 'words':
        for n, r in enumerate(regs):
            a(f'v_xor_b32 v{tmp[n]}, s{sTag}, v{r}')
        t = tmp[0]
        rem = list(tmp[1:len(regs)])
        while rem:
            if len(rem) >= 2:
                a(f'v_or3_b32 v{t}, v{t}, v{rem[0]}, v{rem[1]}')
                rem = rem[2:]
            else:
                a(f'v_or_b32 v{t}, v{t}, v{rem[0]}')
                rem = rem[1:]
        empty = 'ne 0'
    elif len(regs) == 1:
        t = regs[0]
    else:
        rem = list(regs)
        outs = []
        k = 0
        while len(rem) >= 3 and k < len(tmp):
            a(f'v_max3_u32 v{tmp[k]}, v{rem[0]}, v{rem[1]}, v{rem[2]}')
            outs.append(tmp[k])
            rem = rem[3:]
            k += 1
        rem = outs[1:] + rem
        t = outs[0] if outs else None
        if t is None:
            t = tmp[0]
            a(f'v_max_u32 v{t}, v{rem[0]}, v{rem[1]}')
            rem = rem[2:]
        while rem:
            if len(rem) >= 2:
                a(f'v_max3_u32 v{t}, v{t}, v{rem[0]}, v{rem[1]}')
                rem = rem[2:]
            else:
                a(f'v_max_u32 v{t}, v{t}, v{rem[0]}')
                rem = rem[1:]
    a(f'v_cmpx_{empty.split()[0]}_u32 vcc, {empty.split()[1]}, v{t}')
    a(f's_cbranch_execnz {L}')
    a.label(D)
    a('s_mov_b64 exec, -1')


def epoch_load():
    a(f's_load_dword s{sTag}, {sr(WS)}, {EPOCH_G}')


def epoch_tag(d=None):
    d = d or sTag
    a(f'''
    s_and_b32 s{d}, s{sTag}, 0x7f7f7f7f
    s_add_u32 s{d}, s{d}, 0x01010101
    s_or_b32 s{d}, s{d}, 0x80808080
    ''')


sTB = 68


def tag_bytes():
    for k in range(4):
        a(f's_bfe_u32 s{sTB + k}, s{sTag}, {hex(0x80000 | (8 * k))}')


def dpp(op, r, ctrl, rm='0xf'):
    a(f'{op}_dpp v{r}, v{r}, v{r} {ctrl} row_mask:{rm} bank_mask:0xf')


def wave_sum(regs, dst_s, op='v_add_f32'):
    for c in ('row_ror:8', 'row_ror:4', 'row_ror:2', 'row_ror:1'):
        for r in regs:
            dpp(op, r, c)
    for r in regs:
        dpp(op, r, 'row_bcast:15', '0xa')
    for r in regs:
        dpp(op, r, 'row_bcast:31', '0xc')
    for r, s in zip(regs, dst_s):
        a(f'v_readlane_b32 s{s}, v{r}, 63')


def rbf(dst, src):
    a(f'v_cvt_pk_bf16_f32 v{dst}, {src}, {src}')
    a(f'v_and_b32 v{dst}, s{sHI}, v{dst}')


def unpack(dlo, dhi, src):
    a(f'v_lshlrev_b32 v{dlo}, 16, v{src}')
    a(f'v_and_b32 v{dhi}, s{sHI}, v{src}')


def mfma32(d, x, y, c=None):
    a(f'v_mfma_f32_16x16x32_bf16 {vr(d, 4)}, {vr(x, 4)}, {vr(y, 4)}, {vr(c, 4) if c is not None else 0}')


def mfma16(d, x, y):
    a(f'v_mfma_f32_16x16x16_bf16 {vr(d, 4)}, {vr(x, 2)}, {vr(y, 2)}, 0')


def cmul(tr, ti, re, im, c, s, sign, pk=True, n=4, head=0):
    if not pk:
        for r in range(n):
            a(f'v_mul_f32 v{tr + r}, v{re + r}, v{c + r}')
        for r in range(n):
            a(f'v_mul_f32 v{ti + r}, v{im + r}, v{c + r}')
        for r in range(n):
            if sign > 0:
                a(f'v_fma_f32 v{tr + r}, -v{im + r}, v{s + r}, v{tr + r}')
                a(f'v_fmac_f32 v{ti + r}, v{re + r}, v{s + r}')
            else:
                a(f'v_fmac_f32 v{tr + r}, v{im + r}, v{s + r}')
                a(f'v_fma_f32 v{ti + r}, -v{re + r}, v{s + r}, v{ti + r}')
        return
    nr = 'neg_lo:[1,0,0] neg_hi:[1,0,0]'
    for h in (0, 2):
        if head:
            a(f'v_mul_f32 v{tr + h}, v{re + h}, v{c + h}')
            a(f'v_mul_f32 v{tr + h + 1}, v{re + h + 1}, v{c + h + 1}')
        else:
            a(f'v_pk_mul_f32 {vr(tr + h, 2)}, {vr(re + h, 2)}, {vr(c + h, 2)}')
    for h in (0, 2):
        a(f'v_pk_mul_f32 {vr(ti + h, 2)}, {vr(im + h, 2)}, {vr(c + h, 2)}')
    for h in (0, 2):
        a(f'v_pk_fma_f32 {vr(tr + h, 2)}, {vr(im + h, 2)}, {vr(s + h, 2)}, {vr(tr + h, 2)} {nr if sign > 0 else ""}')
    for h in (0, 2):
        a(f'v_pk_fma_f32 {vr(ti + h, 2)}, {vr(re + h, 2)}, {vr(s + h, 2)}, {vr(ti + h, 2)} {nr if sign < 0 else ""}')


def pack4(d, lo, hi, step=1, n=4):
    for r in range(n):
        a(f'v_cvt_pk_bf16_f32 v{d + r * step}, v{lo + r}, v{hi + r}')


def tab_read(dst, q):
    a(f'ds_read_b128 {vr(dst, 4)}, v{vL16} offset:{TAB + q * 1024}')


def tm(j, t):
    return 4 * t + j if j < 4 else 8 + t


def read_tmajor(dst, vaddr, off):
    o = off // 256
    assert off % 256 == 0 and o + 6 < 256
    for t in range(2):
        a(f'ds_read2st64_b32 {vr(dst + 4 * t, 2)}, v{vaddr + t} offset0:{o} offset1:{o + 2}')
        a(f'ds_read2st64_b32 {vr(dst + 4 * t + 2, 2)}, v{vaddr + t} offset0:{o + 4} offset1:{o + 6}')
    a(f'ds_read_b64 {vr(dst + 8, 2)}, v{vaddr} offset:{off + 2048}')


def silu(dst, src, tmp):
    for d, s, t in zip(dst, src, tmp):
        a(f'v_mul_f32 v{t}, 0xbfb8aa3b, v{s}')
    for t in tmp:
        a(f'v_exp_f32 v{t}, v{t}')
    for t in tmp:
        a(f'v_add_f32 v{t}, 1.0, v{t}')
    for t in tmp:
        a(f'v_rcp_f32 v{t}, v{t}')
    for d, s, t in zip(dst, src, tmp):
        a(f'v_mul_f32 v{d}, v{s}, v{t}')


def swap_reduce8(acc):
    for k in range(4):
        a(f'v_permlane32_swap_b32 v{acc + k}, v{acc + k + 4}')
    a(f'v_pk_add_f32 {vr(acc, 2)}, {vr(acc, 2)}, {vr(acc + 4, 2)}')
    a(f'v_pk_add_f32 {vr(acc + 2, 2)}, {vr(acc + 2, 2)}, {vr(acc + 6, 2)}')
    for k in range(2):
        a(f'v_permlane16_swap_b32 v{acc + k}, v{acc + k + 2}')
    a(f'v_pk_add_f32 {vr(acc, 2)}, {vr(acc, 2)}, {vr(acc + 2, 2)}')


BC0 = 'op_sel:[0,0,0] op_sel_hi:[1,0,1]'
BC1 = 'op_sel:[0,1,0] op_sel_hi:[1,1,1]'


def prologue():
    a(f'''
    s_cmp_ge_u32 s2, 256
    s_cbranch_scc1 L_end
    ''')
    if DIAG:
        for k in range(NST):
            a(f's_mov_b32 s{sTS + k}, 0')
        a('s_memtime s[98:99]')
        for p in ('M', 'H0', 'H1'):
            stamps[p] = ['start']
        stamp('start')
    a(f'''
    s_load_dwordx16 s[8:23], s[0:1], 0
    s_load_dwordx8 s[24:31], s[0:1], 64
    s_load_dwordx2 s[32:33], s[0:1], 96
    v_lshrrev_b32 v20, 6, v0
    s_and_b32 s{sX}, s2, 7
    s_lshr_b32 s{sIdx}, s2, 3
    v_readfirstlane_b32 s{sW}, v20
    v_and_b32 v{vL}, 63, v0
    s_lshl_b32 s{sMe}, s{sX}, 5
    s_add_u32 s{sMe}, s{sMe}, s{sIdx}
    v_lshlrev_b32 v{vL16}, 4, v{vL}
    v_lshlrev_b32 v{vL4}, 2, v{vL}
    s_cmp_eq_u32 s{sW}, 9
    s_cbranch_scc1 L_h1
    s_cmp_eq_u32 s{sW}, 8
    s_cbranch_scc1 L_h0
    s_cmp_eq_u32 s{sRi}, 30
    s_cbranch_scc0 L_nopf
    s_cmp_ge_u32 s{sW}, (L_tables_end-{NAME}_kernel)/8192
    s_cbranch_scc1 L_nopf
    s_getpc_b64 {sr(sBa)}
    L_pc0:
    s_sub_u32 s{sBa}, s{sBa}, L_pc0-{NAME}_kernel
    s_subb_u32 s{sBa + 1}, s{sBa + 1}, 0
    v_lshlrev_b32 v21, 7, v0
    global_load_dword v157, v21, {sr(sBa)}
    L_nopf:
    ''')


def xloads():
    for j in range(5):
        a(f'global_load_dword v{vXR + j}, v156, {sr(A_X)} offset:{256 * j} {INPOL}')


def blk_id():
    if EX == 7:
        a(f'''
        s_mul_i32 s{sBlk}, s{sIdx}, 7
        s_add_u32 s{sBlk}, s{sBlk}, s{sX}
        s_add_u32 s{sT}, s{sIdx}, 225
        s_cmp_eq_u32 s{sX}, 0
        s_cselect_b32 s{sBlk}, s{sT}, s{sBlk}
        s_sub_u32 s{sBlk}, s{sBlk}, 1
        ''')
        return
    if EX:
        a(f'''
        s_lshl_b32 s{sT}, s{sX}, 2
        s_lshr_b32 s{sT}, {hex(XMAP)}, s{sT}
        s_and_b32 s{sT}, s{sT}, 7
        s_cmp_lt_u32 s{sIdx}, {80 // EX}
        s_cselect_b32 s{sBlk}, {80 // EX}, {30 - 80 // EX}
        s_cselect_b32 s{sU0}, 0, {80 - 80 // EX}
        s_cmp_lt_u32 s{sT}, {EX}
        s_cselect_b32 s{sBlk}, s{sBlk}, 30
        s_cselect_b32 s{sU0}, s{sU0}, 0
        s_mul_i32 s{sBlk}, s{sBlk}, s{sT}
        ''')
    else:
        a(f'''
        s_cmp_lt_u32 s{sIdx}, 10
        s_cselect_b32 s{sBlk}, 10, 20
        s_cselect_b32 s{sU0}, 0, 70
        s_mul_i32 s{sBlk}, s{sBlk}, s{sX}
        ''')
    a(f'''
    s_add_u32 s{sBlk}, s{sBlk}, s{sU0}
    s_add_u32 s{sBlk}, s{sBlk}, s{sIdx}
    s_cmp_lt_u32 s{sIdx}, 30
    s_cselect_b32 s{sBlk}, s{sBlk}, 0xf1
    ''')


def is_a():
    a(f's_cmp_lt_u32 s{sBlk}, 80')


def is_b():
    a(f's_sub_u32 s{sT}, s{sBlk}, 80')
    a(f's_cmp_lt_u32 s{sT}, 160')


def pub_setup(tag):
    a(f'''
    v_lshlrev_b32 v28, 5, v{vL}
    v_lshlrev_b32 v34, 3, v{vL}
    v_and_b32 v34, 24, v34
    v_bfe_u32 v34, s{tag}, v34, 8
    v_mov_b32 v33, 0xffffff00
    s_sub_u32 s{sU0}, s{sBlk}, 40
    s_cmp_lt_u32 s{sU0}, 40
    s_cselect_b32 s{sU1}, 1.0, 0
    s_and_b32 s{sU0}, s{sBlk}, 3
    s_cselect_b32 s{sU1}, 0, s{sU1}
    v_mov_b32 v35, s{sU1}
    ''')


GV = (130, 142, 48, 56, 158, 159)


def gemv_addr():
    vw, vc, acc, tmp, vo, voc = GV
    blk_id()
    a(f'''
    v_lshrrev_b32 v{voc}, 3, v{vL}
    v_mad_u32_u24 v{voc}, v20, 20, v{voc}
    v_and_b32 v21, 3, s{sBlk}
    v_mul_u32_u24 v21, 160, v21
    v_add_u32 v{voc}, v{voc}, v21
    v_lshrrev_b32 v21, 2, s{sBlk}
    v_and_b32 v{vo}, 0x70, v{vL16}
    v_lshl_add_u32 v{vo}, v21, 7, v{vo}
    v_mul_u32_u24 v21, 7680, v{voc}
    v_add_u32 v{vo}, v{vo}, v21
    v_lshlrev_b32 v{voc}, 1, v{voc}
    v_lshl_add_u32 v156, v20, 8, s{sMe}
    v_mul_u32_u24 v156, 1280, v156
    v_add_u32 v156, v156, v{vL4}
    ''')
    for k in range(4):
        a(f'v_mov_b32 v{vw + 8 + k}, 0')
    a(f'v_mov_b32 v{vc + 2}, 0')


def gemv_issue(scalar=False):
    vw, vc, acc, tmp, vo, voc = GV
    def cl_():
        for j in range(3):
            if j == 2:
                a('s_mov_b32 exec_hi, 0')
            a(f'global_load_ushort v{vc + j}, v{voc}, {sr(C_)} offset:{16 * j}')
        a('s_mov_b64 exec, -1')

    def wl_():
        for j in range(3):
            if j == 2:
                a('s_mov_b32 exec_hi, 0')
            a(f'global_load_dwordx4 {vr(vw + 4 * j, 4)}, v{vo}, {sr(W_MOD)} {INPOL}')
            if j < 2:
                a(f'v_add_u32 v{vo}, {8 * 7680}, v{vo}')
        a('s_mov_b64 exec, -1')
    if scalar:
        wl_()
        a(f'''
        s_and_b32 s{sU0}, s{sBlk}, 3
        s_lshl_b32 s{sU0}, s{sU0}, 3
        s_add_u32 s{sU0}, s{sU0}, s{sW}
        s_mul_i32 s{sU0}, s{sU0}, 40
        s_load_dwordx8 s[56:63], {sr(C_)}, s{sU0}
        s_add_u32 s{sU0}, s{sU0}, 32
        s_load_dwordx2 s[64:65], {sr(C_)}, s{sU0}
        ''')
        return
    cl_()
    wl_()


def gemv_compute(role, after, at_c=None, scalar=False):
    nj = 3
    vw, vc, acc, tmp, vo, voc = GV
    if role == 'B':
        acc = 150
    if scalar:
        a(f'v_lshlrev_b32 v{tmp}, 1, v{vL}')
        a(f'v_and_b32 v{tmp}, 16, v{tmp}')
        a('s_waitcnt lgkmcnt(0)')
        for g in range(4):
            if g == 0:
                a('s_mov_b64 exec, 0xffff')
            else:
                a('s_lshl_b64 exec, exec, 16')
            for j in range(3 if g < 2 else 2):
                a(f'v_lshrrev_b32 v{vc + j}, v{tmp}, s{56 + 4 * j + g}')
        a('s_mov_b64 exec, -1')
    else:
        a(f's_waitcnt vmcnt({nj + (0 if at_c else after)})')
    stamp('c in')
    if at_c:
        at_c()
    cs_ = [vc + j for j in range(nj)]
    for c in cs_:
        a(f'v_lshlrev_b32 v{c}, 16, v{c}')
    silu(cs_, cs_, [tmp + j for j in range(nj)])
    sc = [(145, 146), (147, 148), (149, 59)]
    for c, s in zip(cs_, sc):
        a(f'v_cvt_pk_bf16_f32 v{s[0]}, v{c}, 0')
    for s in sc:
        a(f'v_lshlrev_b32 v{s[1]}, 16, v{s[0]}')
    a(f'''
    v_and_b32 v{vo}, 7, v{vL}
    v_lshlrev_b32 v{vo}, 8, v{vo}
    v_and_b32 v{voc}, 48, v{vL}
    v_lshl_add_u32 v{vo}, v{voc}, 2, v{vo}
    s_lshl_b32 s{sT}, s{sW}, 2
    s_add_u32 s{sT}, s{sT}, {RED}
    v_add_u32 v{vo}, s{sT}, v{vo}
    ''')
    for k in range(8):
        a(f'v_mov_b32 v{acc + k}, 0')
    for j in range(nj):
        a(f's_waitcnt vmcnt({nj - 1 - j + after})')
        for k in (0, 4, 1, 5, 2, 6, 3, 7):
            a(f'v_dot2c_f32_bf16 v{acc + k}, v{vw + 4 * j + k // 2}, v{sc[j][k & 1]}')
    stamp('w in')
    swap_reduce8(acc)
    for c in ('row_ror:8',):
        dpp('v_add_f32', acc, c)
        dpp('v_add_f32', acc + 1, c)
    a(f'''
    s_mov_b32 exec_lo, 0x00ff00ff
    s_mov_b32 exec_hi, 0x00ff00ff
    ds_write2_b32 v{vo}, v{acc}, v{acc + 1} offset0:0 offset1:8
    s_mov_b64 exec, -1
    s_waitcnt lgkmcnt(0)
    ''')


def m8(dst, inverse):
    t0, t1, t2, t3 = 20, 21, 22, 23
    a(f'v_lshrrev_b32 v{t0}, 4, v{vL}           ; g')
    if not inverse:
        a(f'''
        v_bfe_u32 v{t1}, v{vL}, 2, 2
        v_bfe_u32 v{t2}, v{vL}, 1, 1
        v_lshl_add_u32 v{t1}, v{t2}, 2, v{t1}
        v_lshlrev_b32 v{t0}, 9, v{t0}
        v_add_u32 v{t0}, s{sMe}, v{t0}
        v_mul_u32_u24 v{t2}, v{t0}, v{t1}
        v_lshl_add_u32 v{t3}, v{t1}, 8, v{t2}
        ''')
    else:
        a(f'''
        v_bfe_u32 v{t1}, v{vL}, 1, 3
        v_lshlrev_b32 v{t1}, 8, v{t1}
        v_add_u32 v{t1}, s{sMe}, v{t1}
        v_mul_u32_u24 v{t2}, v{t0}, v{t1}
        v_xor_b32 v{t0}, 4, v{t0}
        v_mul_u32_u24 v{t3}, v{t0}, v{t1}
        v_sub_u32 v{t2}, 0, v{t2}
        v_sub_u32 v{t3}, 0, v{t3}
        ''')
    a(f'''
    v_and_b32 v{t0}, 1, v{vL}
    v_lshl_add_u32 v{t2}, v{t0}, 9, v{t2}
    v_lshl_add_u32 v{t3}, v{t0}, 9, v{t3}
    v_and_b32 v{t2}, 0x7ff, v{t2}
    v_and_b32 v{t3}, 0x7ff, v{t3}
    v_cvt_f32_u32 v{t2}, v{t2}
    v_cvt_f32_u32 v{t3}, v{t3}
    v_mul_f32 v{t2}, 0x3a000000, v{t2}
    v_mul_f32 v{t3}, 0x3a000000, v{t3}
    v_cos_f32 v{t0}, v{t2}
    v_sin_f32 v{t2}, v{t2}
    v_cos_f32 v{t1}, v{t3}
    v_sin_f32 v{t3}, v{t3}
    v_cvt_pk_bf16_f32 v{dst}, v{t0}, v{t2}
    v_cvt_pk_bf16_f32 v{dst + 1}, v{t1}, v{t3}
    ''')


INV640 = hex(f2u(1.0 / 640))
EPS = hex(f2u(1e-5))


def rstd_chain(var, out):
    rbf(out, f'v{var}')
    a(f'v_add_f32 v{out}, {EPS}, v{out}')
    rbf(out, f'v{out}')
    a(f'v_sqrt_f32 v{out}, v{out}')
    rbf(out, f'v{out}')
    a(f'v_rcp_f32 v{out}, v{out}')


def sum10(dst2, x):
    a(f'v_pk_add_f32 {vr(dst2, 2)}, {vr(x, 2)}, {vr(x + 2, 2)}')
    for h in (4, 6, 8):
        a(f'v_pk_add_f32 {vr(dst2, 2)}, {vr(dst2, 2)}, {vr(x + h, 2)}')
    a(f'v_add_f32 v{dst2}, v{dst2}, v{dst2 + 1}')


def dot10(dst2, x, y):
    a(f'v_pk_mul_f32 {vr(dst2, 2)}, {vr(x, 2)}, {vr(y, 2)}')
    for h in (2, 4, 6, 8):
        a(f'v_pk_fma_f32 {vr(dst2, 2)}, {vr(x + h, 2)}, {vr(y + h, 2)}, {vr(dst2, 2)}')
    a(f'v_add_f32 v{dst2}, v{dst2}, v{dst2 + 1}')


def prio(k, on):
    if PRIO[k] == '0':
        return
    if not on:
        a('s_setprio 0')
        return
    L = newlabel('pr')
    a(f's_cmp_lt_u32 s{sW}, 4')
    a(f's_cbranch_scc1 {L}')
    a('s_setprio 1')
    a.label(L)


def bar(n):
    a(f's_barrier                                   ; {n}')


def tpoll(loads, lanes_s=None, between=None):
    L, D, Cc = newlabel('poll'), newlabel('polld'), newlabel('pollc')
    if lanes_s:
        a(f's_mov_b64 exec, {lanes_s}')
    for ld in loads:
        a(ld)
    if lanes_s:
        a('s_mov_b64 exec, -1')
    a(f's_mov_b32 s{sCnt}, {SPIN}')
    if between is not None:
        between()
    a('s_waitcnt vmcnt(0)')
    a.label(Cc)
    a(f'''
    v_cmp_ne_u32 vcc, s{sTag}, v{Ra + 3}
    v_cmp_ne_u32 {sr(sBc)}, s{sTag}, v{Ra + 7}
    s_or_b64 vcc, vcc, {sr(sBc)}
    s_and_b64 vcc, vcc, {sr(sM8)}
    s_cbranch_scc1 {L}
    ''')
    a.label(D)

    def retry():
        a.label(L)
        a(f'''
        s_sub_u32 s{sCnt}, s{sCnt}, 1
        s_cbranch_scc1 {D}
        s_lshr_b64 {sr(sBc)}, vcc, 1
        s_or_b64 vcc, vcc, {sr(sBc)}
        s_lshr_b64 {sr(sBc)}, vcc, 2
        s_or_b64 exec, vcc, {sr(sBc)}
        ''')
        for ld in loads:
            a(ld)
        a('s_mov_b64 exec, -1')
        a('s_waitcnt vmcnt(0)')
        a(f's_branch {Cc}')
    late.append(retry)


sM8, sLn, sM3 = 62, 64, 66
vSg0, vSg1, vPair, vPairX = vE0 + 1, vE0 + 2, vE0 + 5, vM8F + 1


def f32_expand(q0, m0, m1):
    for tile in range(2):
        for k in range(8):
            b = vF32 + 16 * tile + k
            a(f'v_alignbit_b32 v{b + 8}, v{b}, v{b}, 16')
            a(f'v_xor_b32 v{b + 8}, v{m1}, v{b + 8}')
            if m0 is not None:
                a(f'v_xor_b32 v{b}, v{m0}, v{b}')


def f32_read(q0):
    for tile in range(2):
        for ks in range(2):
            tab_read(vF32 + 16 * tile + 4 * ks, q0 + 2 * tile + ks)


def setup_addr():
    a(f'''
    v_bfe_u32 v20, v{vL}, 2, 2                    ; cs
    v_and_b32 v21, 48, v{vL16}                    ; part*16
    v_lshrrev_b32 v22, 4, v{vL}                   ; g
    v_lshl_add_u32 v23, v22, 5, v20               ; 32g + cs
    v_mul_u32_u24 v{vPoll}, {T1S}, v23
    v_add_u32 v{vPoll}, v{vPoll}, v21
    v_mul_u32_u24 v23, 80, v23
    s_mul_i32 s{sT}, s{sW}, 320
    s_add_u32 s{sT}, s{sT}, {XB2}
    v_add3_u32 v{vE0 + 4}, v23, v21, s{sT}        ; staging address
    v_mul_u32_u24 v{vS}, {NJ * 64}, v22
    v_and_b32 v23, 0xf0, v{vL16}
    v_add_u32 v{vS}, v{vS}, v23
    v_lshlrev_b32 v{vE0}, 3, v{vL}                ; 8*lane
    v_mul_u32_u24 v22, {4 * SA}, v22
    v_mul_u32_u24 v20, 120, v20
    v_lshl_add_u32 v20, v21, 1, v20
    s_min_u32 s{sT}, s{sW}, 5
    s_mul_i32 s{sT}, s{sT}, 480
    s_add_u32 s{sT}, s{sT}, {XB1}
    v_add3_u32 v{vPair}, v20, v22, s{sT}
    ''')


def setup_masks():
    a(f'''
    s_mov_b32 s{sM7}, 0x77777777
    s_mov_b32 s{sM7 + 1}, 0x77777777
    s_mov_b32 s{sM8}, 0x88888888
    s_mov_b32 s{sM8 + 1}, 0x88888888
    s_mov_b32 s{sM3}, 0x37773777
    s_mov_b32 s{sM3 + 1}, 0x37773777
    s_cmp_eq_u32 s{sW}, 5
    s_cselect_b32 s{sLn}, 0x00ff00ff, -1
    s_mov_b32 s{sLn + 1}, s{sLn}
    ''')


def main_path():
    vZ, vSA, vCA = vVec, vVec + 10, vVec + 20
    gemv_addr()
    is_a()
    a('s_waitcnt lgkmcnt(0)')
    stamp('kernarg')
    a('s_cbranch_scc1 L_a')
    xloads()
    a('s_branch L_a0')
    a.label('L_a')
    gemv_issue(SC_)
    if AX == 0:
        xloads()
    a.label('L_a0')
    epoch_load()
    if S1 >= 1:
        m8(vM8F, False)
    if S1 >= 2:
        m8(vM8I, True)
    if S1 >= 3:
        setup_addr()
    is_a()
    a('s_cbranch_scc0 L_setup')
    a(f's_cmp_lg_u32 s{sW}, 0')
    a('s_cbranch_scc1 L_a1')
    if MT:
        a(f'v_lshl_add_u32 v36, s{sBlk}, 8, v{vL4}')
        a('v_mov_b32 v37, 0')
        a(f'global_store_dword v36, v37, {sr(WS)} sc1')
    a('s_waitcnt lgkmcnt(0)')
    epoch_tag(sV1)
    pub_setup(sV1)
    a.label('L_a1')
    gemv_compute('A', 5, at_c=xloads if AX else None, scalar=SC_)
    a(f's_cmp_lg_u32 s{sW}, 0')
    bar('B1')
    a(f's_cbranch_scc1 {"L_a2" if PB else "L_setup"}')
    publish('M')
    if PB:
        a.label('L_a2')
        bar('B1b')
    a.label('L_setup')
    a(f'''
    s_mov_b32 s{sHI}, 0xffff0000
    s_lshl_b32 s{sRow}, s{sW}, 8
    s_add_u32 s{sKey}, s{sRow}, s{sMe}
    s_mul_i32 s{sRow}, s{sKey}, 1280
    ''')
    if S1 < 1:
        m8(vM8F, False)
    if S1 < 2:
        m8(vM8I, True)
    if S1 < 3:
        setup_addr()
    setup_masks()
    is_a()
    a('s_cbranch_scc1 L_xw')
    is_b()
    a('s_cbranch_scc0 L_nb')
    gemv_issue()
    a.label('L_nb')
    bar('B0')
    a('s_waitcnt vmcnt(6)')
    a('s_cbranch_scc1 L_ln1')
    a('s_waitcnt vmcnt(0)')
    a.label('L_xw')
    a(f's_cmp_eq_u32 s{sW}, 0')
    a('s_waitcnt vmcnt(1)')
    a('s_cbranch_scc1 L_ln1')
    a('s_waitcnt vmcnt(0)')
    a.label('L_ln1')
    stamp('x in')
    for j in range(5):
        unpack(vXS + tm(j, 0), vXS + tm(j, 1), vXR + j)
    sum10(24, vXS)
    wave_sum([24], [sU0])
    a(f'v_mov_b32 v24, {INV640}')
    a(f'v_mul_f32 v26, s{sU0}, v24                ; mean')
    rbf(28, 'v26')
    a(f'v_readfirstlane_b32 s{sM1B}, v28')
    for h in range(0, 10, 2):
        a(f'v_pk_add_f32 {vr(vXS + h, 2)}, {vr(vXS + h, 2)}, v[28:29] op_sel:[0,0] op_sel_hi:[1,0] neg_lo:[0,1] neg_hi:[0,1]')
    dot10(30, vXS, vXS)
    wave_sum([30], [sU0])
    a(f'''
    v_sub_f32 v26, v26, v28
    v_mul_f32 v26, v26, v26
    v_fma_f32 v26, s{sU0}, v24, -v26
    ''')
    rstd_chain(26, 27)
    for j in range(5):
        for t in range(2):
            a(f'v_mul_f32 v{vZ + 2 * j + t}, v27, v{vXS + tm(j, t)}')
    a(f'''
    v_mov_b32 v23, 0
    v_mov_b32 v27, 0
    s_waitcnt lgkmcnt(0)
    ''')
    epoch_tag()
    tag_bytes()
    a(f'''
    s_mul_i32 s{sU0}, s{sMe}, {T1S}
    s_lshl_b32 s{sU1}, s{sW}, 8
    s_add_u32 s{sU0}, s{sU0}, s{sU1}
    ''')
    base_add(sBa, WS, sU0, T1_G)
    base_add(sBb, WS, sU0, T1_G + 4 * NJ * 64)
    a(f'''
    v_subrev_u32 v28, 64, v0                      ; u
    v_lshrrev_b32 v29, 4, v28
    v_lshlrev_b32 v29, 10, v29
    v_and_b32 v30, 0xf0, v{vL16}
    v_add_u32 v29, v29, v30
    v_cmp_le_u32 vcc, 160, v28
    v_mov_b32 v31, {8 - 160 * 32}
    v_cndmask_b32 v31, 0, v31, vcc
    s_mov_b32 s{sU2}, {MODA_L}
    v_lshlrev_b32 v28, 5, v28
    v_add3_u32 v28, v28, v31, s{sU2}
    v_add_u32 v{vE0 + 3}, s{sU2}, v{vL16}
    s_lshr_b32 s{sU1}, s{sW}, 1
    s_mul_i32 s{sU1}, s{sU1}, {4 * SA}
    s_and_b32 s{sT}, s{sW}, 1
    s_lshl_b32 s{sT}, s{sT}, 2
    s_add_u32 s{sU1}, s{sU1}, s{sT}
    s_add_u32 s{sU1}, s{sU1}, {XB1}
    ''')
    bar('BT')
    stamp('BT')
    tab_read(vF20, T_F20C)
    tab_read(vF20 + 4, T_F20S)
    for q in range(4):
        tab_read(vTW + 4 * q, T_TW1 + q)
    f32_read(T_F32A)
    tab_read(32, T_ADR)

    def expand():
        a(f'''
        s_waitcnt lgkmcnt(0)
        v_add_u32 v{vSg0}, s{sU1}, v32
        v_add_u32 v{vSg1}, 160, v{vSg0}
        ''')
        f32_expand(T_F32A, None, 33)
    if XP == 0:
        expand()
    is_b()
    a('s_cbranch_scc0 L_ng')
    gemv_compute('B', 0)
    a.label('L_ng')
    if BG:
        bar('BG')
    stamp('poll start')
    a(f's_sub_u32 s{sT}, s{sW}, 1')
    a(f's_cmp_lt_u32 s{sT}, 5')
    a('s_cbranch_scc1 L_mpoll')
    bar('BP')
    if XP:
        expand()
    a('s_branch L_b2')
    a.label('L_mpoll')
    poll([f'global_load_dwordx4 {vr(36 + 4 * p, 4)}, v29, {sr(WS)} offset:{256 * p} sc1' for p in range(4)],
         list(range(36, 52)), [52, 53, 54], empty='tag', between=lambda: (bar('BP'), expand() if XP else None))
    a(f'''
    v_pk_add_f32 v[36:37], v[36:37], v[40:41]
    v_pk_add_f32 v[38:39], v[38:39], v[42:43]
    v_pk_add_f32 v[44:45], v[44:45], v[48:49]
    v_pk_add_f32 v[46:47], v[46:47], v[50:51]
    v_pk_add_f32 v[36:37], v[36:37], v[44:45]
    v_pk_add_f32 v[38:39], v[38:39], v[46:47]
    ''')
    if MR:
        a('v_cvt_pk_bf16_f32 v40, v36, v37')
        a('v_cvt_pk_bf16_f32 v41, v38, v39')
        unpack(36, 37, 40)
        unpack(38, 39, 41)
    a(f'ds_write2_b64 v28, v[36:37], v[38:39] offset0:0 offset1:2')
    a.label('L_b2')
    stamp('poll end')
    fine('p1', 'pre-B2')
    a('s_waitcnt lgkmcnt(0)')
    a('s_barrier                                   ; B2')
    stamp('B2 done (mod ready)')
    fine('p1', 'B2')
    assert MODA_L % 16 == 0
    for j in range(5):
        a(f'ds_read_b128 {vr(vSA + 4 * j, 4)}, v{vE0 + 3} offset:{1024 * j}')
    for j in range(5):
        a(f's_waitcnt lgkmcnt({4 - j})')
        for t in range(2):
            a(f'v_fmac_f32 v{vSA + 4 * j + t}, v{vZ + 2 * j + t}, v{vSA + 4 * j + 2 + t}')
        if j in (1, 3):
            for t in range(2):
                a(f'v_cvt_pk_bf16_f32 v{Ra + 4 * t + j // 2}, v{vSA + 4 * j - 4 + t}, v{vSA + 4 * j + t}')
    for t in range(2):
        a(f'v_cvt_pk_bf16_f32 v{Ra + 4 * t + 2}, v{vSA + 16 + t}, 0')
    fine('p1', 'h packed')
    for t in range(2):
        mfma32(RD + 8 * t, Ra + 4 * t, vF20)
        mfma32(RD + 8 * t + 4, Ra + 4 * t, vF20 + 4)
    fine('p1', 'mfma1 issued')
    for t, tmp in ((0, Rb), (1, Rc)):
        cmul(tmp, tmp + 4, RD + 8 * t, RD + 8 * t + 4, vTW + 8 * t, vTW + 8 * t + 4, -1, pk=PK[0] == '1' or (PK[0] == '2' and t == 1))
        pack4(Ra + 4 * t, tmp, tmp + 4)
    fine('p1', 'twiddled')
    for u in range(2):
        for ks in range(2):
            for e in range(2):
                d = RD + 8 * u + 4 * e
                mfma32(d, vF32 + 16 * u + 8 * e + 4 * ks, Ra + 4 * ks, d if ks else None)
    fine('p1', 'mfma2 issued')
    a(f's_mov_b64 exec, {sr(sM3)}')
    for u in range(2):
        pack4(Rb + 4 * u, RD + 8 * u, RD + 8 * u + 4)
        for r in (0, 2):
            a(f'ds_write2_b32 v{vSg1 if u else vSg0}, v{Rb + 4 * u + r}, v{Rb + 4 * u + r + 1} offset0:{80 * r} offset1:{80 * r + 80}')
    a('s_mov_b64 exec, -1')
    a(f'v_mov_b32 v{Rc + 3}, s{sTag}')
    a(f'v_mov_b32 v{Rc + 7}, s{sTag}')
    a(f's_cmp_ge_u32 s{sW}, 6')
    fine('p1', 'lds written')
    a('s_waitcnt lgkmcnt(0)')
    fine('p1', 'pre-B3')
    fine('x1', 'pre-B3')
    bar('B3')
    fine('p1', 'B3')
    fine('x1', 'B3')
    a('s_cbranch_scc1 L_t1done')
    for n in (3, 0, 1, 2):
        a(f'ds_read_b64 {vr(Ra + 2 * n, 2)}, v{vPair} offset:{8 * n}')
    for k, n in enumerate((3, 0, 1, 2)):
        a(f's_waitcnt lgkmcnt({3 - k})')
        mfma16(RD + 4 * n, vM8F, Ra + 2 * n)
    fine('p1', 'r8 issued')
    a(f's_mov_b64 exec, {sr(sM7)}')
    for j in range(2):
        a(f'v_cvt_pk_bf16_f32 v{Rc + 4 * j + 3}, v{RD + 12 + 2 * j}, v{RD + 12 + 2 * j + 1}')
    a(f's_mov_b64 exec, {sr(sLn)}')
    for j in range(2):
        for n in range(3):
            a(f'v_cvt_pk_bf16_f32 v{Rc + 4 * j + n}, v{RD + 4 * n + 2 * j}, v{RD + 4 * n + 2 * j + 1}')
        a(f'global_store_dwordx4 v{vS}, {vr(Rc + 4 * j, 4)}, {sr(sBb if j else sBa)} sc1')
    a('s_mov_b64 exec, -1')
    a.label('L_t1done')
    stamp('T1 stored')
    if PROBE == 'rel':
        a(f'''
        s_lshl_b32 s{sT}, s{sW}, 8
        s_or_b32 s{sT}, s{sT}, s2
        s_cmp_lt_u32 s{sT}, 8
        s_cbranch_scc0 L_norel
        s_lshl_b32 s{sT}, s2, 7
        s_add_u32 s{sT}, s{sT}, {DIAG_G}
        v_mov_b32 v36, s{sT}
        v_mov_b32 v37, s{sTS}
        global_store_dword v36, v37, {sr(WS)} sc1
        L_norel:
        ''')
    fine('p1', 'stored')
    fine('x1', 'stored')

    def p3_mats():
        for q in range(3):
            tab_read(vF20 + 4 * q, T_F20I + q)
        f32_read(T_F32B)
        tab_read(40, T_ADR)
        a('s_waitcnt lgkmcnt(0)')
        f32_expand(T_F32B, 42, 43)
    a(f's_cmp_ge_u32 s{sIdx}, {NJ}')
    a('s_cbranch_scc1 L_idle')
    late.append(lambda: (a.label('L_idle'), bar('B3b'), p3_mats() if MATS else None, a('s_branch L_p3prep')))
    if MATS == 1:
        p3_mats()
    vWr = vVec
    for k in range(16):
        a(f'v_mov_b32 v{vWr + k}, 0')
    SC = 2.0 / (2048 * 640) / (ALPHA[16] ** 4 * ALPHA[20] ** 2 * ALPHA[32] ** 2)
    a(f'''
    v_and_b32 v36, 15, v{vL}
    v_and_b32 v37, 48, v{vL}
    v_lshl_add_u32 v36, v37, 2, v36               ; 64g + i
    v_mul_u32_u24 v{vE0 + 3}, 80, v36
    s_lshl_b32 s{sU1}, s{sW}, 3
    s_add_u32 s{sU1}, s{sU1}, {XB2}
    v_add_u32 v{vE0 + 3}, s{sU1}, v{vE0 + 3}
    v_lshlrev_b32 v36, 5, v36
    v_add_u32 v36, {WST}, v36
    v_and_b32 v39, 4, v{vL}
    v_lshlrev_b32 v39, 2, v39
    v_lshlrev_b32 v{vS}, 7, v37
    v_and_b32 v37, 0xf0, v{vL16}
    v_add_u32 v{vS}, v{vS}, v37
    s_mul_i32 s{sU0}, s{sX}, {NJ}
    s_add_u32 s{sU0}, s{sU0}, s{sIdx}
    s_lshl_b32 s{sU1}, s{sU0}, 6
    s_mul_i32 s{sT}, s{sW}, {4 * T1S}
    s_add_u32 s{sU1}, s{sU1}, s{sT}
    s_mul_i32 s{sU0}, s{sU0}, {T2S}
    s_lshl_b32 s{sT}, s{sW}, 8
    s_add_u32 s{sU0}, s{sU0}, s{sT}
    ''')
    base_add(sBa, WS, sU1, T1_G)
    base_add(sBb, WS, sU1, T1_G + 128 * T1S)
    base_add(58, WS, sU0, T2_G)
    base_add(60, WS, sU0, T2_G + 8192)

    def w_setup(parts=(0, 1)):
      if 0 in parts:
        for q in range(2):
            tab_read(vTW + 4 * q, T_F16 + q)
            tab_read(vTW + 8 + 4 * q, T_TW2 + q)
        a(f'''
        s_mul_i32 s{sU0}, s{sIdx}, 15
        s_min_u32 s{sU1}, s{sU0}, 306
        s_add_u32 s{sU2}, s{sU1}, s{sX}
        s_and_b32 s{sU2}, s{sU2}, 1
        s_sub_u32 s{sU1}, s{sU1}, s{sU2}
        s_lshl_b32 s{sT}, s{sW}, 1
        s_add_u32 s{sU0}, s{sU0}, s{sT}
        ''')
      if True:
        for s in parts:
            gam = sU3
            a(f'''
            s_add_u32 s{sU2}, s{sU0}, {s}
            s_sub_u32 s{sT}, s{sU2}, s{sU1}
            s_min_u32 s{sT}, s{sT}, 15
            s_lshl_b32 s{sT}, s{sT}, 1
            v_xor_b32 v37, s{sT}, v39
            v_add_u32 v37, v37, v36
            ''')
            for arr in range(2):
                for r in range(4):
                    a(f'ds_read_u16_d16_hi v{vWr + 8 * s + 4 * arr + r}, v37 offset:{arr * 8192 + r * 512}')
            a(f'''
            s_mul_i32 s{sT}, s{sU2}, 0x199a
            s_lshr_b32 s{sT}, s{sT}, 16
            s_mul_i32 s{sT}, s{sT}, 10
            s_mov_b32 s{gam}, {hex(f2u(SC))}
            s_cmp_eq_u32 s{sT}, s{sU2}
            s_cselect_b32 s{gam}, {hex(f2u(SC / 2))}, s{gam}
            s_waitcnt lgkmcnt(0)
            ''')
            for r in range(8):
                a(f'v_mul_f32 v{vWr + 8 * s + r}, s{gam}, v{vWr + 8 * s + r}')

    tl = [f'global_load_dwordx4 {vr(Ra, 4)}, v{vPoll}, {sr(sBa)} sc1', f'global_load_dwordx4 {vr(Ra + 4, 4)}, v{vPoll}, {sr(sBb)} sc1']
    fine('x1', 'pre-B3b')
    bar('B3b')
    fine('x1', 'B3b')
    if WFIRST:
        w_setup((0, 1) if WFIRST == 1 else (0,))
    fine('x1', 'wsetup')
    if DR1:
        a('s_waitcnt vmcnt(0)')
    if AL1:
        bar('B3c')
    fine('x1', 'drained')
    if PACE1:
        a(f's_sleep {PACE1}')
    stamp('B3b done')
    tpoll(tl, between=lambda: (None if WFIRST == 1 else w_setup((1,) if WFIRST else (0, 1)), p3_mats() if MATS == 2 else None, fine('x1', 'behind')))
    fine('p2', 'T1 in')
    fine('x1', 'T1 in')
    a(f'ds_write_b128 v{vE0 + 4}, {vr(Ra, 4)}')
    a(f'ds_write_b128 v{vE0 + 4}, {vr(Ra + 4, 4)} offset:10240')
    a(f's_cmp_eq_u32 s{sW}, 7')
    a('s_waitcnt lgkmcnt(0)')
    bar('B4')
    stamp('B4 done (T1 in)')
    fine('p2', 'B4')
    fine('x1', 'B4')
    a('s_cbranch_scc1 L_p2_one')
    Fre, Fim, Tc, Ts = vTW, vTW + 4, vTW + 8, vTW + 12
    tmps = (Rb, Rc)

    def p2(ns):
        p2pk = PK[1] == '1'
        if ns == 2:
            for j in range(4):
                a(f'ds_read_b64 {vr(Rb + 2 * j, 2)}, v{vE0 + 3} offset:{1280 * j}')
            for h in range(2):
                a(f's_waitcnt lgkmcnt({2 - 2 * h})')
                for s in range(2):
                    a(f'v_pk_mov_b32 {vr(Ra + 4 * s + 2 * h, 2)}, {vr(Rb + 4 * h, 2)}, {vr(Rb + 4 * h + 2, 2)} op_sel:[{s},{s}]')
        else:
            a(f'ds_read2st64_b32 {vr(Ra, 2)}, v{vE0 + 3} offset0:0 offset1:5')
            a(f'ds_read2st64_b32 {vr(Ra + 2, 2)}, v{vE0 + 3} offset0:10 offset1:15')
            a('s_waitcnt lgkmcnt(0)')
        fine('p2', 'read')
        for s in range(ns):
            mfma32(RD + 8 * s, Ra + 4 * s, Fre)
            mfma32(RD + 8 * s + 4, Ra + 4 * s, Fim)
        fine('p2', 's1')
        def stage(cq, sign, swap, mm):
            lo = lambda s: tmps[s] + (4 if swap else 0)
            hi = lambda s: tmps[s] + (0 if swap else 4)
            if ns == 1 or not P2ORD:
                for s in range(ns):
                    cmul(tmps[s], tmps[s] + 4, RD + 8 * s, RD + 8 * s + 4, *cq(s), sign, pk=p2pk)
                    pack4(Ra + 4 * s, lo(s), hi(s))
                    mm(s, 0)
                    mm(s, 1)
                return
            cmul(tmps[0], tmps[0] + 4, RD, RD + 4, *cq(0), sign, pk=p2pk, head=P2ORD - 1)
            cmul(tmps[1], tmps[1] + 4, RD + 8, RD + 12, *cq(1), sign, pk=p2pk)
            pack4(Ra, lo(0), hi(0))
            cv = lambda r: a(f'v_cvt_pk_bf16_f32 v{Ra + 4 + r}, v{lo(1) + r}, v{hi(1) + r}')
            cv(0)
            cv(1)
            mm(0, 0)
            cv(2)
            cv(3)
            mm(0, 1)
            mm(1, 0)
            mm(1, 1)
        stage(lambda s: (Tc, Ts), -1, False, lambda s, k: mfma32(RD + 8 * s + 4 * k, Fim if k else Fre, Ra + 4 * s))
        fine('p2', 's2')
        stage(lambda s: (vWr + 8 * s, vWr + 8 * s + 4), +1, True, lambda s, k: mfma32(RD + 8 * s + 4 * k, Ra + 4 * s, Fre if k else Fim))
        fine('p2', 's3')
        stage(lambda s: (Tc, Ts), +1, True, lambda s, k: mfma32(RD + 8 * s + 4 * k, Fre if k else Fim, Ra + 4 * s))
        fine('p2', 's4')
        for s in range(ns):
            pack4(Rb + s, RD + 8 * s, RD + 8 * s + 4, step=ns)
        if ns == 2:
            for r in range(4):
                a(f'ds_write_b64 v{vE0 + 3}, {vr(Rb + 2 * r, 2)} offset:{1280 * r}')
        else:
            a(f'ds_write2st64_b32 v{vE0 + 3}, v{Rb}, v{Rb + 1} offset0:0 offset1:5')
            a(f'ds_write2st64_b32 v{vE0 + 3}, v{Rb + 2}, v{Rb + 3} offset0:10 offset1:15')
        a('s_waitcnt lgkmcnt(0)')
    p2(2)
    a.label('L_b5')
    fine('p2', 'pre-B5')
    fine('x2', 'pre-B5')
    bar('B5')
    fine('p2', 'B5')
    fine('x2', 'B5')
    a(f'ds_read_b128 {vr(Rb, 4)}, v{vE0 + 4}')
    a(f'ds_read_b128 {vr(Rb + 4, 4)}, v{vE0 + 4} offset:10240')
    a('s_waitcnt lgkmcnt(1)')
    a(f'global_store_dwordx4 v{vS}, {vr(Rb, 4)}, {sr(58)} sc1')
    a('s_waitcnt lgkmcnt(0)')
    a(f'global_store_dwordx4 v{vS}, {vr(Rb + 4, 4)}, {sr(60)} sc1')
    stamp('T2 stored')
    fine('p2', 'stored')
    fine('x2', 'stored')
    late.append(lambda: (a.label('L_p2_one'), p2(1), a('s_branch L_b5')))
    a.label('L_p3prep')
    vGA, vVV, vGC, vGS = vVec, vVec + 10, vVec + 20, vVec + 30
    vMB = vE0 + 6
    for q in range(4):
        tab_read(vTW + 4 * q, T_TW3 + q)
    a(f'''
    v_add_u32 v{vMB}, {MODB_L}, v{vL4}
    v_bfe_u32 v36, v{vL}, 2, 2
    v_lshrrev_b32 v37, 4, v{vL}
    v_mad_u32_u24 v36, v37, {NJ}, v36
    v_and_b32 v38, 48, v{vL16}
    v_mul_u32_u24 v36, {T2S}, v36
    v_add_u32 v{vPoll}, v36, v38
    v_mul_u32_u24 v37, {4 * SA}, v37
    v_add_u32 v37, {XB1 + 8 * 361}, v37
    v_cndmask_b32 v{vPairX}, v{vPair}, v37, {sr(sM8)}
    s_and_b64 {sr(sM8)}, {sr(sM8)}, {sr(sLn)}
    s_lshl_b32 s{sU1}, s{sMe}, 6
    s_min_u32 s{sT}, s{sW}, 5
    s_mul_i32 s{sT}, s{sT}, {4 * T2S}
    s_add_u32 s{sU1}, s{sU1}, s{sT}
    ''')
    base_add(sBa, WS, sU1, T2_G)
    base_add(sBb, WS, sU1, T2_G + 4 * NJ * T2S)
    base_add(sXrow, OUTP, sRow)
    a(f's_mul_i32 s{sU0}, s{sMe}, {REC_STRIDE}')
    base_add(sRec, WS, sU0, REC_G)
    a(f'''
    v_mov_b32 v{vE0 + 7}, {hex(f2u(-1.0 / 640))}
    v_mov_b32 v{vM8F}, {hex(f2u(-1e-5))}
    v_mov_b32 v{vE0 + 3}, {KEYL}
    v_mov_b32 v{vE0 + 4}, 1
    ''')

    def p3_setup(part=3):
      raw, GB = Rb, Rb
      if part & 1:
        raw = Rb
        for k in range(0, 24, 2):
            a(f'ds_read2st64_b32 {vr(raw + k, 2)}, v{vMB} offset0:{k} offset1:{k + 1}')
        a(f'ds_read_b32 v{raw + 24}, v{vMB} offset:{24 * 256}')
        a('s_waitcnt lgkmcnt(0)')
        for vec, dst in ((0, vGA), (1, vGS), (2, vGC), (4, vVV)):
            for j in range(5):
                unpack(dst + tm(j, 0), dst + tm(j, 1), raw + 5 * vec + j)
        GB = Rb
        for j in range(5):
            unpack(GB + tm(j, 0), GB + tm(j, 1), raw + 15 + j)
      if part & 2:
        t0, t1, t2 = Rc + 2, Rc + 4, Rc + 6
        dot10(t0, vVV, vGS)
        for h in range(0, 10, 2):
            a(f'v_pk_mul_f32 {vr(vVV + h, 2)}, {vr(vVV + h, 2)}, {vr(vGC + h, 2)}')
        sum10(t1, vVV)
        a(f'v_mov_b32 v{t2}, s{sM1B}')
        for h in range(0, 10, 2):
            a(f'v_pk_mul_f32 {vr(vGC + h, 2)}, {vr(vGC + h, 2)}, {vr(GB + h, 2)}')
            a(f'v_pk_fma_f32 {vr(vGS + h, 2)}, {vr(vGS + h, 2)}, {vr(GB + h, 2)}, {vr(t2, 2)} op_sel:[0,0,0] op_sel_hi:[1,1,0]')
        wave_sum([t1, t0], [sV1, sV2])

    if MATS == 0:
        p3_mats()
    a('s_waitcnt lgkmcnt(0)')
    bar('B5b')
    stamp('B5b done')
    fine('p2', 'B5b')
    fine('x2', 'B5b')
    if P3FIRST == 2:
        p3_setup(1)
    if P3FIRST == 1:
        p3_setup()
    else:
        a(f's_cmp_ge_u32 s{sIdx}, {NJ}')
        a(f's_cselect_b32 s{sCand}, 8, s{sW}')
        a(f's_cmp_lt_u32 s{sCand}, 6')
        a('s_cbranch_scc1 L_p3later')
        p3_setup(2 if P3FIRST else 3)
        a.label('L_p3later')
    fine('x2', 'p3setup')
    if DR2:
        a('s_waitcnt vmcnt(0)')
    fine('x2', 'drained')
    if PACE2:
        a(f's_sleep {PACE2}')
    if not AL2:
        a(f's_cmp_ge_u32 s{sIdx}, {NJ}')
        a('s_cbranch_scc0 L_nob5c')
    bar('B5c')
    a.label('L_nob5c')
    a(f's_cmp_ge_u32 s{sW}, 6')
    a('s_cbranch_scc1 L_b6')
    stamp('T2 poll')
    fine('p2', 'T2 poll')

    def p3_behind():
        a(f's_cmp_lt_u32 s{sCand}, 6')
        a('s_cbranch_scc0 L_p3done')
        p3_setup(2 if P3FIRST else 3)
        a.label('L_p3done')
    tpoll(tl, lanes_s=sr(sLn), between=None if P3FIRST == 1 else p3_behind)
    stamp('T2 in')
    fine('p3', 'T2 in')
    fine('x2', 'T2 in')
    a(f'''
    v_swap_b32 v{Ra + 1}, v{Ra + 4}
    v_swap_b32 v{Ra + 3}, v{Ra + 6}
    ''')
    for n, r in ((0, Ra), (1, Ra + 4), (2, Ra + 2), (3, Ra + 6)):
        mfma16(RD + 4 * n, vM8I, r)
    for n in range(4):
        for jj in range(2):
            a(f'v_cvt_pk_bf16_f32 v{Rb + 2 * n + jj}, v{RD + 4 * n + 2 * jj + 1}, v{RD + 4 * n + 2 * jj}')
        a(f'ds_write_b64 v{vPairX if n == 3 else vPair}, {vr(Rb + 2 * n, 2)} offset:{8 * n}')
    a('s_waitcnt lgkmcnt(0)')
    a.label('L_b6')
    prio(2, True)
    fine('p3', 'pre-B6')
    bar('B6')
    fine('p3', 'B6')
    fine('x2', 'B6')
    for u in range(2):
        for r in (0, 2):
            a(f'ds_read2_b32 {vr(Rb + 4 * u + r, 2)}, v{vSg1 if u else vSg0} offset0:{80 * r} offset1:{80 * r + 80}')
    Y = RD
    if not P3O:
        for ks in range(2):
            a(f's_waitcnt lgkmcnt({2 - 2 * ks})')
            for t in range(2):
                for e in range(2):
                    d = RD + 8 * t + 4 * e
                    mfma32(d, Rb + 4 * ks, vF32 + 16 * t + 8 * (1 - e) + 4 * ks, d if ks else None)
        fine('p3', 'mfma1 issued')
        if PRIO[2] == '1':
            prio(2, False)
        for t, tmp in ((0, Ra), (1, Rc)):
            cmul(tmp, tmp + 4, RD + 8 * t, RD + 8 * t + 4, vTW + 8 * t, vTW + 8 * t + 4, +1, pk=PK[2] == '1' or (PK[2] == '2' and t == 1), n=3)
            pack4(Rb + 4 * t, tmp, tmp + 4, n=3)
            a(f'v_mov_b32 v{Rb + 4 * t + 3}, 0')
        Y = RD
        mfma32(Y, vF20, Rb)
        mfma32(Y + 8, vF20 + 4, Rb)
        mfma32(Y + 4, vF20, Rb + 4)
        mfma32(Y + 8, vF20 + 8, Rb + 4, Y + 8)
    else:
        def m1(t, ks, e):
            d = RD + 8 * t + 4 * e
            mfma32(d, Rb + 4 * ks, vF32 + 16 * t + 8 * (1 - e) + 4 * ks, d if ks else None)
        a('s_waitcnt lgkmcnt(2)')
        m1(0, 0, 0)
        m1(0, 0, 1)
        a('s_waitcnt lgkmcnt(0)')
        m1(0, 1, 0)
        m1(0, 1, 1)
        for ks in range(2):
            for e in range(2):
                m1(1, ks, e)
        fine('p3', 'mfma1 issued')
        B0_, B1_ = vF32, vF32 + 4
        cmul(Ra, Ra + 4, RD, RD + 4, vTW, vTW + 4, +1, pk=False, n=3)
        a(f'v_mov_b32 v{B0_ + 3}, 0')
        a(f'v_mov_b32 v{B1_ + 3}, 0')
        pack4(B0_, Ra, Ra + 4, n=3)
        Yx = Rb
        mfma32(Y, vF20, B0_)
        mfma32(Yx, vF20 + 4, B0_)
        cmul(Rc, Rc + 4, RD + 8, RD + 12, vTW + 8, vTW + 12, +1, pk=False, n=3)
        pack4(B1_, Rc, Rc + 4, n=3)
        mfma32(Y + 4, vF20, B1_)
        mfma32(Y + 8, vF20 + 8, B1_, Yx)
    fine('p3', 'mfma2 issued')
    if PRIO[2] == '2':
        prio(2, False)
    X1 = vXS
    s1, s2, s3, s4 = Ra, Ra + 1, Ra + 2, Ra + 3
    if not PKS:
        for k in range(10):
            a(f'v_fmac_f32 v{X1 + k}, v{Y + k}, v{vGA + k}')
            if k == 1:
                a(f'v_mul_f32 v{s2}, v{X1}, v{X1}')
                a(f'v_mul_f32 v{s3}, v{X1}, v{vVV}')
            if k >= 2:
                a(f'v_add_f32 v{s1}, v{X1 + k - 1}, v{X1 if k == 2 else s1}')
                a(f'v_fmac_f32 v{s2}, v{X1 + k - 1}, v{X1 + k - 1}')
                a(f'v_fmac_f32 v{s3}, v{X1 + k - 1}, v{vVV + k - 1}')
        a(f'v_fmac_f32 v{s3}, v{X1 + 9}, v{vVV + 9}')
        a(f'v_add_f32 v{s1}, v{X1 + 9}, v{s1}')
        a(f'v_fmac_f32 v{s2}, v{X1 + 9}, v{X1 + 9}')
    else:
        p1_, p2_, p3_ = Rc, Rc + 2, Rc + 4
        for h in range(0, 10, 2):
            a(f'v_pk_fma_f32 {vr(X1 + h, 2)}, {vr(Y + h, 2)}, {vr(vGA + h, 2)}, {vr(X1 + h, 2)}')
        a(f'v_pk_mul_f32 {vr(p3_, 2)}, {vr(X1, 2)}, {vr(vVV, 2)}')
        a(f'v_pk_add_f32 {vr(p1_, 2)}, {vr(X1, 2)}, {vr(X1 + 2, 2)}')
        a(f'v_pk_mul_f32 {vr(p2_, 2)}, {vr(X1, 2)}, {vr(X1, 2)}')
        for h in (2, 4, 6, 8):
            a(f'v_pk_fma_f32 {vr(p3_, 2)}, {vr(X1 + h, 2)}, {vr(vVV + h, 2)}, {vr(p3_, 2)}')
            if h > 2:
                a(f'v_pk_add_f32 {vr(p1_, 2)}, {vr(p1_, 2)}, {vr(X1 + h, 2)}')
            a(f'v_pk_fma_f32 {vr(p2_, 2)}, {vr(X1 + h, 2)}, {vr(X1 + h, 2)}, {vr(p2_, 2)}')
        a(f'v_add_f32 v{s3}, v{p3_}, v{p3_ + 1}')
        a(f'v_add_f32 v{s1}, v{p1_}, v{p1_ + 1}')
        a(f'v_add_f32 v{s2}, v{p2_}, v{p2_ + 1}')
    fine('p3', 'partials')
    a(f'''
    v_permlane32_swap_b32 v{s3}, v{s4}
    v_permlane32_swap_b32 v{s1}, v{s2}
    v_add_f32 v{s3}, v{s3}, v{s4}
    v_add_f32 v{s1}, v{s1}, v{s2}
    v_permlane16_swap_b32 v{s1}, v{s3}
    v_add_f32 v{s1}, v{s1}, v{s3}
    ''')
    for c in ('row_ror:8', 'row_ror:4', 'row_ror:2', 'row_ror:1'):
        dpp('v_add_f32', s1, c)
    a(f'''
    v_readlane_b32 s{sU0}, v{s1}, 0
    v_readlane_b32 s{sU2}, v{s1}, 32
    v_readlane_b32 s{sU3}, v{s1}, 16
    ''')
    fine('p3', 'reduced')
    k0 = Rc
    cE = vM8F
    cI, cK, cT, cO = vE0 + 7, vE0 + 3, Ra + 7, vE0 + 4
    m = Ra + 1
    a(f'''
    v_mul_f32 v{m + 2}, s{sU0}, v{cI}
    v_fma_f32 v{k0}, v{m + 2}, v{m + 2}, v{cE}
    v_mov_b32 v{m + 3}, s{sU3}
    v_fmac_f32 v{k0}, s{sU2}, v{cI}
    v_fmac_f32 v{m + 3}, s{sV1}, v{m + 2}
    v_sub_f32 v{m + 1}, v{cE}, v{k0}              ; var
    v_rsq_f32_e64 v{k0}, -v{k0}
    v_mov_b32 v{cT}, s{sTag}
    s_mov_b64 exec, 1
    v_fma_f32 v{m + 3}, v{m + 3}, v{k0}, s{sV2}   ; r
    v_ashrrev_i32 v{m + 4}, 31, v{m + 3}
    v_or_b32 v{m + 4}, 0x80000000, v{m + 4}
    v_xor_b32 v{m + 3}, v{m + 3}, v{m + 4}
    v_and_b32 v{m + 3}, 0xfffff800, v{m + 3}
    v_or_b32 v{m + 3}, s{sKey}, v{m + 3}
    ds_max_u32 v{cK}, v{m + 3}
    ds_add_rtn_u32 v{m + 4}, v{cK}, v{cO} offset:8
    ds_read_b32 v{Ra + 6}, v{cK}
    v_readfirstlane_b32 s{sKey}, v{m + 3}
    s_waitcnt lgkmcnt(0)
    v_cmpx_eq_u32 vcc, 7, v{m + 4}
    s_cbranch_execz L_notlast
    global_store_dwordx2 v{vL4}, {vr(Ra + 6, 2)}, {sr(sRec)} sc1
    L_notlast:
    s_mov_b64 exec, -1
    ''')
    fine('p3', 'key')
    bar('B7')
    fine('p3', 'B7')
    fine('e', 'key poll')
    a(f'''
    ds_read_b32 v{Ra + 6}, v{cK}
    v_sub_f32 v{m + 2}, s{sM1B}, v{m + 2}
    ''')
    rbf(m + 2, f'v{m + 2}')
    rstd_chain(m + 1, k0)
    a(f'''
    v_sub_f32 v{m + 2}, s{sM1B}, v{m + 2}
    v_mul_f32 v{k0 + 1}, v{m + 2}, v{k0}
    ''')
    ZN = vGA
    for h in range(0, 10, 2):
        a(f'v_pk_fma_f32 {vr(ZN + h, 2)}, {vr(X1 + h, 2)}, {vr(k0, 2)}, {vr(k0, 2)} op_sel:[0,0,1] op_sel_hi:[1,0,1]')
    vO = vXS

    def out_math():
        for h in range(0, 10, 2):
            a(f'v_pk_add_f32 {vr(Y + h, 2)}, {vr(X1 + h, 2)}, {vr(vGS + h, 2)}')
        for h in range(0, 10, 2):
            a(f'v_pk_fma_f32 {vr(Y + h, 2)}, {vr(ZN + h, 2)}, {vr(vGC + h, 2)}, {vr(Y + h, 2)}')
        if opt('inject', None):
            if opt('injall', None):
                for k in range(10):
                    a(f'v_mul_f32 v{Y + k}, {hex(f2u(1 + float(opt("inject", 0))))}, v{Y + k}')
            else:
                a(f's_cmp_eq_u32 s{sRow}, 0')
                a('s_cselect_b64 exec, 1, 0')
                a(f'v_add_f32 v{Y}, {hex(f2u(float(opt("inject", 0))))}, v{Y}')
                a('s_mov_b64 exec, -1')
        for j in range(5):
            a(f'v_cvt_pk_bf16_f32 v{vO + j}, v{Y + tm(j, 0)}, v{Y + tm(j, 1)}')
    a(f'''
    s_waitcnt lgkmcnt(0)
    v_readfirstlane_b32 s{sU0}, v{Ra + 6}
    s_cmp_eq_u32 s{sU0}, s{sKey}
    s_cselect_b32 s{sCand}, 1, 0
    s_cbranch_scc1 L_cand
    ''')
    out_math()
    a('s_branch L_keys')
    a.label('L_cand')
    raw, SB, CB, H, Bq = 60, 70, 80, 92, 108
    for k in range(0, 10, 2):
        a(f'ds_read2st64_b32 {vr(raw + k, 2)}, v{vMB} offset0:{5 + k} offset1:{6 + k}')
    for qd in range(2):
        a(f'v_mov_b32 v{H + 4 * qd + 3}, s{sTag}')
    a('s_waitcnt lgkmcnt(0)')
    for j in range(5):
        unpack(SB + tm(j, 0), SB + tm(j, 1), raw + j)
        unpack(CB + tm(j, 0), CB + tm(j, 1), raw + 5 + j)
    for h in range(0, 10, 2):
        a(f'v_pk_fma_f32 {vr(SB + h, 2)}, {vr(ZN + h, 2)}, {vr(CB + h, 2)}, {vr(SB + h, 2)}')
    for j in range(5):
        a(f'v_cvt_pk_bf16_f32 v{H + j + (j >= 3)}, v{SB + tm(j, 0)}, v{SB + tm(j, 1)}')
    for qd in range(2):
        a(f'global_store_dwordx4 v{vL16}, {vr(H + 4 * qd, 4)}, {sr(sRec)} offset:{REC_H2 + 1024 * qd} sc1')
    out_math()

    def out_row():
        for j in range(5):
            a(f'global_store_dword v{vL4}, v{vO + j}, {sr(sXrow)} offset:{256 * j} sc1')
    if OE != 1:
        out_row()
    a.label('L_keys')
    if OE == 1:
        out_row()
    stamp('key out')
    fine('p3', 'key out')
    bar('B7b (candidate stores are out, the helpers have ended)')
    if OE == 0:
        a(f'''
        s_cmp_ge_u32 s{sRi}, 20
        s_cselect_b32 s{sT}, 1, s{sCand}
        s_cmp_lg_u32 s{sT}, 0
        s_cbranch_scc1 L_noout
        ''')
        out_row()
        a('s_branch L_fin')
        a.label('L_noout')
    if OE == 2:
        a(f's_cmp_lg_u32 s{sCand}, 0')
        a('s_cbranch_scc1 L_noout')
        out_row()
        a.label('L_noout')
    vEW, vFW = 48, 88
    vRed, vRd, vRow = 15, 16, 17
    a(f'''
    s_cmp_lt_u32 s{sRi}, 20
    s_cbranch_scc1 L_no_ew
    s_mul_i32 s{sT}, s{sW}, 5120
    s_add_u32 s{sT}, s{sT}, {EW}
    v_and_b32 v{Rb}, 0x3c0, v{vL16}
    v_and_b32 v{Rb + 1}, 24, v{vE0}
    v_add3_u32 v{Rb}, v{Rb}, v{Rb + 1}, s{sT}
    s_mul_i32 s{sT}, s{sW}, 320
    s_add_u32 s{sT}, s{sT}, {FW}
    v_min_u32 v{vE0 + 1}, {39 * 8}, v{vE0}
    v_add_u32 v{vE0 + 1}, s{sT}, v{vE0 + 1}
    ''')
    for j in range(5):
        if j in (2, 4):
            a(f'v_add_u32 v{Rb}, 2048, v{Rb}')
        a(f'ds_read2_b64 {vr(vEW + 20 + 4 * j, 4)}, v{Rb} offset0:{128 * (j & 1)} offset1:{128 * (j & 1) + 4}')
    a(f'''
    v_and_b32 v{vRed}, 3, v{vL}
    v_lshlrev_b32 v{vRed}, 6, v{vRed}
    v_and_b32 v{vRd}, 48, v{vL}
    v_add_u32 v{vRed}, v{vRd}, v{vRed}
    s_lshr_b32 s{sU1}, s{sW}, 2
    s_lshl_b32 s{sU1}, s{sU1}, 8
    s_and_b32 s{sT}, s{sW}, 3
    s_lshl_b32 s{sT}, s{sT}, 2
    s_add_u32 s{sU1}, s{sU1}, s{sT}
    s_add_u32 s{sU1}, s{sU1}, {RED}
    v_add_u32 v{vRed}, s{sU1}, v{vRed}
    v_and_b32 v{vRd}, 0xf0, v{vL16}
    v_bfe_u32 v{vRow}, v0, 2, 6                    ; lane' = (t'>>1)>>1
    v_lshlrev_b32 v{vRow}, 4, v{vRow}
    s_mov_b32 s{sU2}, 0x05040100
    s_mov_b32 s{sU3}, 0x07060302
    v_add_u32 v{vRow}, {REC_G + REC_H2}, v{vRow}
    v_mov_b32 v18, 0xffffff00
    s_mul_i32 s{sU1}, s{sX}, 12
    s_add_u32 s{sU1}, s{sU1}, s{sRi}
    s_mul_i32 s{sU1}, s{sU1}, {PY_STRIDE}
    s_mul_i32 s{sT}, s{sW}, 640
    s_add_u32 s{sU1}, s{sU1}, s{sT}
    ''')
    base_add(sBb, WS, sU1, PY_G - 20 * PY_STRIDE)
    a('s_waitcnt lgkmcnt(0)')
    if KD == 1:
        bar('B7c')
    for j in range(5):
        r0 = vEW + 20 + 4 * j
        for c in range(4):
            a(f'v_perm_b32 v{vEW + 4 * j + c}, v{r0 + 2 + c // 2}, v{r0 + c // 2}, s{sU3 if c & 1 else sU2}')
    for k in range(4):
        a(f'v_mov_b32 v{36 + k}, 0')

    def fw_unpack():
        a(f's_cmp_ge_u32 s{sW}, 4')
        a('s_cbranch_scc1 L_no_fw')
        for u in range(16):
            if u == 8:
                a('s_waitcnt lgkmcnt(0)')
            a(f'ds_read_b64 {vr(vFW + 32 + 2 * u, 2)}, v{vE0 + 1} offset:{1280 * u}')
        a('s_waitcnt lgkmcnt(0)')
        for k in range(32):
            unpack(vFW + 2 * k, vFW + 2 * k + 1, vFW + 32 + k)
        a.label('L_no_fw')
    if not FWL:
        fw_unpack()
    a.label('L_no_ew')
    a(f's_cmp_eq_u32 s{sCand}, 0')
    a('s_cbranch_scc1 L_nobase')
    a(f'''
    v_mov_b32 v40, v{vO}
    v_mov_b32 v41, v{vO + 1}
    v_mov_b32 v42, v{vO + 2}
    v_mov_b32 v43, s{sTag}
    v_mov_b32 v44, v{vO + 3}
    v_mov_b32 v45, v{vO + 4}
    v_mov_b32 v47, s{sTag}
    ''')

    def base_out():
        a(f'global_store_dwordx4 v{vL16}, v[40:43], {sr(sRec)} offset:{REC_BASE} sc1')
        a(f'global_store_dwordx4 v{vL16}, v[44:47], {sr(sRec)} offset:{REC_BASE + 1024} sc1')
    if BL:
        a(f's_cmp_lt_u32 s{sRi}, 20')
        a('s_cbranch_scc0 L_nobase')
    a('s_waitcnt vmcnt(0)')
    base_out()
    a.label('L_nobase')
    a(f'''
    s_cmp_lt_u32 s{sRi}, 20
    s_cbranch_scc1 L_fin
    v_mov_b32 v{Rb + 2}, {KEYL + 4}
    {'s_barrier' if KD == 2 else ''}
    ''')
    a.label('L_b8')
    fine('e', 'pre-B8')
    a('s_barrier                                   ; B8')
    a(f'''
    ds_read_b32 v{Rb + 3}, v{Rb + 2}
    s_movk_i32 s{sT}, {REC_STRIDE}
    s_waitcnt lgkmcnt(0)
    v_and_b32 v{Rb + 4}, 255, v{Rb + 3}
    v_mad_u32_u24 v{vRow}, v{Rb + 4}, s{sT}, v{vRow}
    ''')
    stamp('B8 done (winner)')
    fine('e', 'B8+')

    def late_out():
        if OE == 0:
            a(f's_cmp_lg_u32 s{sCand}, 0')
            a('s_cbranch_scc1 L_noout2')
            out_row()
            a.label('L_noout2')
        if FWL:
            fw_unpack()
        fine('e', 'behind')
        if OE == 0:
            a(f's_cmp_lg_u32 s{sCand}, 0')
            a('s_cbranch_scc1 L_noout4')
            a('s_waitcnt vmcnt(5)')
            a.label('L_noout3')
            late.append(lambda: (a.label('L_noout4'), a('s_waitcnt vmcnt(0)'), a('s_branch L_noout3')))
        else:
            a('s_waitcnt vmcnt(0)')
    poll([f'global_load_dwordx4 v[20:23], v{vRow}, {sr(WS)} sc1',
          f'global_load_dwordx4 v[24:27], v{vRow}, {sr(WS)} offset:1024 sc1'], [23, 27], [30, 32], empty='word',
         between=late_out, younger=63)
    if BL:
        a(f's_cmp_lg_u32 s{sCand}, 0')
        a('s_cbranch_scc1 L_base2')
        a.label('L_base3')
        late.append(lambda: (a.label('L_base2'), base_out(), a('s_branch L_base3')))
    stamp('row in')
    fine('e', 'row in')
    acc = 36
    for j in range(5):
        for c in (0, 2, 1, 3):
            a(f'v_dot2c_f32_bf16 v{acc + c}, v{vEW + 4 * j + c}, v{20 + j + (j >= 3)}')
    a(f'''
    v_permlane32_swap_b32 v36, v38
    v_permlane32_swap_b32 v37, v39
    v_pk_add_f32 v[36:37], v[36:37], v[38:39]
    v_permlane16_swap_b32 v36, v37
    v_add_f32 v36, v36, v37
    ''')
    for c in ('row_ror:8', 'row_ror:4'):
        dpp('v_add_f32', acc, c)
    a(f'''
    s_mov_b32 exec_lo, 0x000f000f
    s_mov_b32 exec_hi, 0x000f000f
    ds_write_b32 v{vRed}, v{acc}
    s_mov_b64 exec, -1
    s_cmp_ge_u32 s{sW}, 4
    s_waitcnt lgkmcnt(0)
    ''')
    fine('e', 'pre-B9')
    bar('B9')
    fine('e', 'B9')
    a(f'''
    s_cbranch_scc1 L_e_done
    ds_read_b128 v[20:23], v{vRd} offset:{RED}
    ds_read_b128 v[24:27], v{vRd} offset:{RED + 256}
    s_waitcnt lgkmcnt(0)
    v_pk_add_f32 v[20:21], v[20:21], v[22:23]
    v_pk_add_f32 v[24:25], v[24:25], v[26:27]
    v_add_f32 v20, v20, v21
    v_add_f32 v24, v24, v25
    v_mul_f32 v21, 0xbfb8aa3b, v20
    v_exp_f32 v21, v21
    v_mul_f32 v20, v20, v24
    v_add_f32 v21, 1.0, v21
    v_rcp_f32 v21, v21
    v_mul_f32 v20, v20, v21
    ''')
    fine('e', 'gu')
    sG = 8
    for u in range(16):
        a(f'v_readlane_b32 s{sG + u}, v20, {u}')
    for u in range(16):
        for hh in range(2):
            w_ = vr(vFW + 4 * u + 2 * hh, 2)
            g_ = sr(sG + (u & ~1))
            d_ = vr(36 + 2 * hh, 2)
            if u == 0:
                a(f'v_pk_mul_f32 {d_}, {w_}, {g_} op_sel:[0,0] op_sel_hi:[1,0]')
            else:
                a(f'v_pk_fma_f32 {d_}, {w_}, {g_}, {d_} {BC1 if u & 1 else BC0}')
    for k in range(4):
        a(f'v_and_or_b32 v{36 + k}, v{36 + k}, v18, s{sTB + k}')
    a('s_mov_b32 exec_hi, 0xff')
    a(f'global_store_dwordx4 v{vL16}, v[36:39], {sr(sBb)} sc1')
    a('s_mov_b64 exec, -1')
    stamp('PY out')
    fine('e', 'PY out')
    a('s_waitcnt vmcnt(0)')
    a.label('L_e_done')
    bar('B10')
    a.label('L_fin')
    stamp('end')
    fine('e', 'end')
    if FINE:
        a('s_waitcnt lgkmcnt(0)')
    dump_stamps()
    a.label('L_end')
    a('s_endpgm')
    flush_late()


sF1, sF2, sPb, sGw, sWb = 56, 58, 60, 62, 64


def publish(P='H0'):
    a(f'''
    ds_read_b128 v[40:43], v28 offset:{RED}
    ds_read_b128 v[44:47], v28 offset:{RED + 16}
    v_lshl_add_u32 v36, s{sBlk}, 8, v{vL4}
    s_waitcnt lgkmcnt(0)
    v_pk_add_f32 v[40:41], v[40:41], v[42:43]
    v_pk_add_f32 v[44:45], v[44:45], v[46:47]
    v_add_f32 v40, v35, v40
    v_pk_add_f32 v[40:41], v[40:41], v[44:45]
    v_add_f32 v40, v40, v41
    v_and_or_b32 v40, v40, v33, v34
    global_store_dword v36, v40, {sr(WS)} sc1
    ''')
    stamp('published', P)


def w_addr():
    a(f'''
    s_mul_i32 s{sU1}, s{sIdx}, 15
    s_min_u32 s{sU1}, s{sU1}, 306
    s_add_u32 s{sT}, s{sU1}, s{sX}
    s_and_b32 s{sT}, s{sT}, 1
    s_sub_u32 s{sU1}, s{sU1}, s{sT}
    s_mul_i32 s{sU0}, s{sX}, 321
    s_add_u32 s{sU1}, s{sU1}, s{sU0}
    s_lshl_b32 s{sU1}, s{sU1}, 1
    v_lshrrev_b32 v90, 1, v{vL}
    v_mul_u32_u24 v90, 5136, v90
    v_lshlrev_b32 v91, 1, v{vL}
    v_xor_b32 v91, v{vL16}, v91
    v_and_b32 v91, 16, v91
    v_add3_u32 v100, v90, v91, s{sU1}
    ''')


def w_gather(arr, lds):
    for n in range(8):
        a(f's_mov_b32 m0, {lds + 1024 * n}')
        a(f'global_load_lds_dwordx4 v100, {sr(arr)}')
        if n < 7:
            a(f'v_add_u32 v100, {32 * 5136}, v100')


def mask_lanes(n):
    if n >= 64:
        return
    if n > 32:
        a(f's_mov_b32 exec_hi, {hex((1 << (n - 32)) - 1)}')
    else:
        a(f's_mov_b64 exec, {hex((1 << n) - 1)}')


def warm_addr_w():
    a(f'''
    s_mul_i32 s{sU3}, s{sRi}, 48
    s_movk_i32 s{sU2}, 0x2aab
    s_mul_i32 s{sU1}, s{sX}, 642
    s_movk_i32 s{sT}, 5136
    ''')
    for n in range(1):
        a(f'''
        v_add_u32 v90, s{sU3}, v{vL}
        v_min_u32 v90, 1535, v90
        v_mul_u32_u24 v91, s{sU2}, v90
        v_lshrrev_b32 v91, 16, v91
        v_mul_u32_u24 v92, 6, v91
        v_sub_u32 v92, v90, v92
        v_lshlrev_b32 v92, 7, v92
        v_min_u32 v92, 638, v92
        v_add_u32 v92, s{sU1}, v92
        v_mad_u32_u24 v92, v91, s{sT}, v92
        v_and_b32 v{120 + n}, -4, v92
        ''')


def ffn_parts(slot):
    return [(n, k) for n in range(3) if S_W[n] == slot for k in range(2 if slot == 7 else 1)]


def warm_addr_f(h, slot):
    f, per, lanes = {0: (0, 30, 30), 7: (NJ, 96, 48), 8: (0, 48, 48)}[slot]
    if not ffn_parts(slot):
        return
    a(f'''
    s_sub_u32 s{sU0}, s{sRi}, {f}
    s_mul_i32 s{sU3}, s{sU0}, {per}
    s_mul_i32 s{sU1}, s{sX}, 384
    s_movk_i32 s{sU2}, 0x5556
    s_movk_i32 s{sT}, {3072 - 384}
    s_mul_i32 s{sU0}, s{sX}, 245760
    ''')
    for n, k in ffn_parts(slot):
        d = 130 + 2 * n + k
        a(f'''
        v_add_u32 v90, s{sU3}, v{vL}
        v_add_u32 v90, {lanes * k}, v90
        v_min_u32 v90, 959, v90
        v_add_u32 v90, {960 * (n if n < 2 else h)}, v90
        ''')
        if n < 2:
            a(f'''
            v_mul_u32_u24 v91, s{sU2}, v90
            v_lshrrev_b32 v91, 16, v91
            v_lshl_add_u32 v90, v90, 7, s{sU1}
            v_mad_u32_u24 v{d}, v91, s{sT}, v90
            ''')
        else:
            a(f'v_lshl_add_u32 v{d}, v90, 7, s{sU0}')


def warm_issue(h, slot, sel=None):
    if slot == 0:
        mask_lanes(48)
        for n in range(1):
            a(f'global_load_dword v125, v{120 + n}, {sr(W_R if h else W_I)}')
    ps = ffn_parts(slot) if sel is None else sel
    if ps:
        mask_lanes(30 if slot == 0 else 48)
    for n, k in ps:
        a(f'global_load_dword v125, v{130 + 2 * n + k}, {sr(W_D if n == 2 else (W_G if h else W_U))}')
    a('s_mov_b64 exec, -1')


def e_addr(mat):
    a(f'''
    s_max_u32 s{sU1}, s{sRi}, 20
    s_mul_i32 s{sU0}, s{sX}, 12
    s_add_u32 s{sU0}, s{sU0}, s{sU1}
    s_sub_u32 s{sU0}, s{sU0}, 20
    s_mul_i32 s{sU1}, s{sU0}, 20480
    s_lshl_b32 s{sU0}, s{sU0}, 5
    v_lshrrev_b32 v128, 1, v{vL}
    v_mul_u32_u24 v128, 3072, v128
    v_and_b32 v90, 16, v{vL16}
    v_add_u32 v128, v128, v90
    ''')
    base_add(sF1, mat, sU0)
    base_add(sGw, W_D, sU1, 10240 if mat == W_U else 0)


def if_e(f):
    L = newlabel('ne')
    a(f's_cmp_lt_u32 s{sRi}, 20')
    a(f's_cbranch_scc1 {L}')
    f()
    a.label(L)


def e_gather(half, n0, n1):
    for n in range(n0, n1):
        a(f's_mov_b32 m0, {EW + (n % 4 + 4 * half) * 5120 + (n // 4) * 1024}')
        a(f'global_load_lds_dwordx4 v128, {sr(sF1)}')
        if n < 19:
            a(f'v_add_u32 v128, {32 * 3072}, v128')


def wd_load(half):
    for n in range(10):
        if n % 4 == 0:
            a(f's_mov_b32 m0, {FW + half * 10240 + n * 1024}')
            a(f'v_add_u32 v90, {1024 * n}, v{vL16}')
        a(f'global_load_lds_dwordx4 v90, {sr(sGw)} offset:{1024 * (n % 4)} {INPOL if S_W[2] == 9 else str()}')


def touch_small():
    if 'k' in TCH:
        a(f's_mul_i32 s{sU0}, s{sMe}, {REC_STRIDE}')
        base_add(sBa, WS, sU0, REC_G)
        a(f'''
        s_mov_b64 exec, 0xff
        global_store_dwordx4 v{vL16}, v[20:23], {sr(sBa)} sc1
        s_mov_b64 exec, -1
        ''')
    if 'p' in TCH:
        def f():
            a(f'''
            s_mul_i32 s{sU1}, s{sX}, 12
            s_add_u32 s{sU1}, s{sU1}, s{sRi}
            s_mul_i32 s{sU1}, s{sU1}, {PY_STRIDE}
            ''')
            base_add(sBa, WS, sU1, PY_G - 20 * PY_STRIDE)
            a(f'''
            global_store_dwordx4 v{vL16}, v[20:23], {sr(sBa)} sc1
            global_store_dwordx4 v{vL16}, v[20:23], {sr(sBa)} offset:1024 sc1
            s_mov_b32 exec_hi, 0
            global_store_dwordx4 v{vL16}, v[20:23], {sr(sBa)} offset:2048 sc1
            s_mov_b64 exec, -1
            ''')
        if_e(f)


def finalizer():
    a(f'''
    s_cmp_ge_u32 s{sRi}, 30
    s_cbranch_scc1 L_hx0
    ds_read_b32 v21, v62
    s_mul_i32 s{sU2}, s{sX}, 10
    s_add_u32 s{sU2}, s{sU2}, s{sRi}
    s_sub_u32 s{sU2}, s{sU2}, 20                   ; f
    v_mov_b32 v26, 0
    v_mov_b32 v27, 0
    s_waitcnt lgkmcnt(0)
    v_readfirstlane_b32 s{sU0}, v21
    s_and_b32 s{sU1}, s{sU0}, 255
    s_mul_i32 s{sU1}, s{sU1}, {REC_STRIDE}
    ''')
    base_add(sBa, WS, sU1, REC_G + REC_BASE)
    done = [f'global_load_dwordx4 v[32:35], v26, {sr(sBa)} sc1']
    a(f'''
    v_and_b32 v20, 1, v{vL}
    v_lshrrev_b32 v21, 4, v{vL}
    v_lshl_add_u32 v20, v20, 2, v21
    s_lshl_b32 s{sT}, s{sU2}, 3
    v_add_u32 v20, s{sT}, v20
    s_lshr_b32 s{sCand}, s{sU2}, 4                 ; j
    s_cmp_ge_u32 s{sCand}, 3
    s_cselect_b32 s{sT}, 3, 0
    s_sub_u32 s{sCand}, s{sCand}, s{sT}            ; dword inside the quad
    s_mul_i32 s{sT}, s{sT}, 342
    s_and_b32 s{sT}, s{sT}, 1024
    v_bfe_u32 v26, v20, 1, 6
    v_lshl_add_u32 v26, v26, 4, s{sT}
    {done[0] if not BL else ''}
    v_lshlrev_b32 v20, 1, v20                      ; 2d
    v_add_u32 v21, {MODB_L + 3840}, v20
    v_mov_b32 v22, 0
    ds_read_u16_d16_hi v22, v21                    ; gb[d]
    s_and_b32 s{sU1}, s{sU0}, 0x7ff
    s_mul_i32 s{sU1}, s{sU1}, 1280
    ''')
    base_add(sXrow, OUTP, sU1)
    a(f'''
    s_and_b32 s{sU1}, s{sU0}, 0xfffff800
    s_or_b32 s{sU1}, s{sU1}, 0x400
    s_xor_b32 s{sU3}, s{sU1}, 0x80000000
    s_not_b32 s{sT}, s{sU1}
    s_cmp_lt_i32 s{sU1}, 0
    s_cselect_b32 s{sU1}, s{sU3}, s{sT}
    v_mov_b32 v28, s{sU1}
    ''')
    a(f'''
    v_mul_f32 v28, 0xbfb8aa3b, v28
    v_exp_f32 v28, v28
    v_add_f32 v28, 1.0, v28
    v_rcp_f32 v28, v28
    ''')
    a(f'''
    v_lshrrev_b32 v29, 1, v{vL}
    v_mul_u32_u24 v29, {PY_STRIDE}, v29
    v_and_b32 v30, 16, v{vL16}
    v_add_u32 v29, v29, v30
    v_add_u32 v30, {32 * PY_STRIDE}, v29
    v_add_u32 v31, {64 * PY_STRIDE}, v29
    s_lshl_b32 s{sU2}, s{sU2}, 5
    ''')
    base_add(sBb, WS, sU2, PY_G)
    a('s_waitcnt lgkmcnt(0)')
    a('v_mul_f32 v22, v22, v28')
    bar('B9')

    def base_in(younger):
        poll(done, [35], [], empty='word', issued=True, younger=younger)
        a(f'''
        s_cmp_eq_u32 s{sCand}, 1
        s_cselect_b64 vcc, -1, 0
        v_cndmask_b32 v27, v32, v33, vcc
        s_cmp_eq_u32 s{sCand}, 2
        s_cselect_b64 vcc, -1, 0
        v_cndmask_b32 v27, v27, v34, vcc
        v_and_b32 v32, 16, v{vL}
        v_lshrrev_b32 v27, v32, v27
        v_lshlrev_b32 v27, 16, v27
        ''')
    if not BL:
        base_in(0)
    bar('B10')
    if PYD:
        a(done[0])
        a('s_waitcnt vmcnt(0)')
    stamp('PY poll', 'H0')
    if BL:
        a(done[0])
    poll([f'global_load_dwordx4 {vr(36 + 4 * n, 4)}, v{29 + n}, {sr(sBb)} sc1' for n in range(3)],
         list(range(36, 48)), [48, 49], empty='tag', between=(lambda: base_in(3)) if BL else None)
    a(f'''
    v_pk_add_f32 v[36:37], v[36:37], v[40:41]
    v_pk_add_f32 v[38:39], v[38:39], v[42:43]
    v_pk_add_f32 v[36:37], v[36:37], v[44:45]
    v_pk_add_f32 v[38:39], v[38:39], v[46:47]
    v_permlane32_swap_b32 v36, v38
    v_permlane32_swap_b32 v37, v39
    v_pk_add_f32 v[36:37], v[36:37], v[38:39]
    v_permlane16_swap_b32 v36, v37
    v_add_f32 v36, v36, v37
    ''')
    for c in ('row_ror:8', 'row_ror:4', 'row_ror:2'):
        dpp('v_add_f32', 36, c)
    a(f'''
    v_fma_f32 v36, v36, v22, v27
    v_cvt_pk_bf16_f32 v36, v36, v36
    s_mov_b32 exec_lo, 0x00030003
    s_mov_b32 exec_hi, 0x00030003
    global_store_short v20, v36, {sr(sXrow)} {FINPOL}
    s_mov_b64 exec, -1
    ''')


def helper_tail(h, P, red_load, red_work, modf_load, modf_work):
    bar('BT')
    if BG:
        if h == 1:
            a(f's_waitcnt vmcnt({BG - 1})')
        bar('BG')
    bar('BP')
    if WPOS == 1:
        warm_issue(h, 0)
    if h == 0:
        is_b()
        a('s_cbranch_scc0 L_pl')
        publish()
        a.label('L_pl')
    a(f's_cmp_ge_u32 s{sIdx}, {NJ}')
    a(f's_cbranch_scc1 L_idle{h}')
    bar('B2')
    red_load()
    w_gather(W_R if h else W_I, WST + (0 if h else 8192))
    bar('B3')
    a('s_waitcnt vmcnt(0)')
    stamp('W in', P)
    if RE:
        red_work()
    bar('B3b')
    if AL1:
        bar('B3c')
    if h == 0:
        touch_small()
    if not RE:
        red_work()
    bar('B4')
    a('s_waitcnt vmcnt(0)')
    modf_load()
    if EG3:
        if_e(lambda: e_gather(1 - h, 0, EG3))
    bar('B5')
    if h == 0:
        a(f's_cmp_lt_u32 s{sRi}, 20')
        a(f's_waitcnt vmcnt({EG3})')
        a('s_cbranch_scc0 L_h0_m')
        a('s_waitcnt vmcnt(0)')
        a.label('L_h0_m')
    modf_work()
    bar('B5b')
    if AL2:
        bar('B5c')
    if S_W[2] == 8:
        warm_addr_f(h, 8)
    if W8 == 0:
        bar('B6')
    if S_W[2] == 8:
        a(f's_cmp_lt_u32 s{sRi}, 20')
        a(f's_cbranch_scc0 L_w8{h}')
        warm_issue(h, 8)
        a.label(f'L_w8{h}')
    if W8 == 1:
        bar('B6')
    if_e(lambda: (e_gather(1 - h, EG3, 20), wd_load(1 - h) if S_W[2] != 8 else None))
    if h == 0:
        a(f'''
        s_cmp_lg_u32 s2, 8
        s_cbranch_scc1 L_h0_ne
        v_mov_b32 v26, {EPOCH_G}
        s_mov_b64 exec, 1
        global_store_dword v26, v27, {sr(WS)} sc1
        s_mov_b64 exec, -1
        ''')
        a.label('L_h0_ne')
    a.label(f'L_hend{h}')
    a(f'''
    v_mul_u32_u24 v60, {REC_STRIDE}, v{vL}
    v_add_u32 v60, {REC_G + 128 * h * REC_STRIDE}, v60
    v_add_u32 v61, {64 * REC_STRIDE}, v60
    v_mov_b32 v62, {KEYL + 4}
    v_lshlrev_b32 v63, 7, v{vL}
    v_add_u32 v63, {REC_G + REC_H2}, v63
    s_movk_i32 s{sU0}, {REC_STRIDE}
    s_cmp_lt_u32 s{sRi}, 20
    ''')
    bar('B7')
    a('s_waitcnt vmcnt(0)')
    a(f's_cbranch_scc1 L_hx{h}')
    if S_W[2] == 8:
        assert FWL and IWD
        wd_load(1 - h)
    kl = [f'global_load_dwordx2 v[64:65], v60, {sr(WS)} sc1', f'global_load_dwordx2 v[66:67], v61, {sr(WS)} sc1']
    if KP == 1:
        bar('B7b')
    if KD:
        bar('B7c')
    stamp('key poll', P)
    poll(kl, [65, 67], [68, 69], empty='word', between=(lambda: bar('B7b')) if KP == 0 else None)
    a('v_max_u32 v64, v64, v66')
    for c in ('row_ror:8', 'row_ror:4', 'row_ror:2', 'row_ror:1'):
        dpp('v_max_u32', 64, c)
    a(f'''
    s_mov_b32 exec_lo, 0x00010001
    s_mov_b32 exec_hi, 0x00010001
    ds_max_u32 v62, v64
    s_mov_b64 exec, -1
    s_waitcnt lgkmcnt(0)
    ''')
    bar('B8')
    if h == 0:
        finalizer()
    a.label(f'L_hx{h}')
    stamp('end', P)
    dump_stamps(P)
    a('s_endpgm')
    a.label(f'L_idle{h}')
    warm_addr_f(h, 7)
    ps = ffn_parts(7)
    can = [f'global_load_dword v113, v110, {sr(WS)} sc1']
    if h == 1:
        a(f'''
        v_add_u32 v110, s{sIdx}, v{vL}
        v_and_b32 v110, 7, v110
        v_mul_u32_u24 v110, {NJ}, v110
        v_lshrrev_b32 v111, 3, v{vL}
        v_mad_u32_u24 v110, v111, 5, v110
        v_mul_u32_u24 v110, {T2S}, v110
        s_lshl_b32 s{sU0}, s{sMe}, 6
        s_add_u32 s{sU0}, s{sU0}, {T2_G + CANJ * T2S + 60}
        v_add_u32 v110, s{sU0}, v110
        ''')
        assert CANJ + 5 * max(NCAN // 8 - 1, 0) < NJ
    bar('B2')
    red_load()
    if h == 1:
        a('s_waitcnt vmcnt(0)')
        mask_lanes(NCAN)
        a(can[0])
        a('s_mov_b64 exec, -1')
    warm_issue(h, 7, ps[:EARLY])
    bar('B3')
    if RE and h == 0:
        a(f's_waitcnt vmcnt({len(ps[:EARLY])})')
        red_work()
        red_work = lambda: None
    bar('B3b')
    ieg = IEG
    if ISEQ == 0:
        warm_issue(h, 7, ps[EARLY:])
        if h == 0:
            a(f's_waitcnt vmcnt({len(ps)})')
            red_work()
            touch_small()
        nd = sum(1 for n, k in ps[EARLY:] if n == 2)
        a(f's_waitcnt vmcnt({nd + (NT if h == 0 else 0)})')
        stamp('warm in', P)
        e_gather(1 - h, 0, MF)
        modf_load()
        e_gather(1 - h, MF, IEG)
        if IWD == 0:
            wd_load(1 - h)
        if h == 0:
            a(f's_waitcnt vmcnt({IEG - MF + 10 * (IWD == 0)})')
        modf_work()
        bar('B5b')
    else:
        assert EARLY == 2 and S_W[0] == 7
        if h == 0:
            a(f's_waitcnt vmcnt({EARLY})')
            red_work()
            touch_small()
        a(f's_waitcnt vmcnt({NT if h == 0 else 0})')
        stamp('warm in', P)
        e_gather(1 - h, 0, 10)
        if ISEQ == 2:
            a('s_waitcnt vmcnt(0)')
            warm_issue(h, 7, ps[EARLY:])
        if h == 0:
            if ISEQ == 1:
                a('s_waitcnt vmcnt(0)')
            modf_load()
            a('s_waitcnt vmcnt(0)')
        modf_work()
        bar('B5b')
        if ISEQ == 1:
            warm_issue(h, 7, ps[EARLY:])
        ieg = max(IEG, 10)
        if ieg > 10:
            a('s_waitcnt vmcnt(0)')
            e_gather(1 - h, 10, ieg)
    a('s_waitcnt vmcnt(0)')
    stamp('ffn in', P)
    if h == 1:
        poll(can, [113], [], mask=NCAN, empty='word')
        stamp('can', P)
    bar('B5c')
    bar('B6')
    e_gather(1 - h, ieg, 20)
    if IWD and S_W[2] != 8:
        wd_load(1 - h)
    a(f's_branch L_hend{h}')
    flush_late()


def helper0():
    a.label('L_h0')
    a(f's_mov_b32 s{sHI}, 0xffff0000')
    a(f'''
    v_mov_b32 v20, 0
    v_mov_b32 v21, 0
    v_mov_b32 v22, 0
    v_mov_b32 v23, 0
    v_mov_b32 v28, {KEYL}
    ds_write_b128 v28, v[20:23]
    ''')
    blk_id()
    warm_addr_w()
    warm_addr_f(0, 0)
    a('s_waitcnt lgkmcnt(0)')
    epoch_load()
    bar('B0 / B1')
    if PB:
        is_a()
        a('s_cbranch_scc0 L_h0_v')
        bar('B1b')
        a.label('L_h0_v')
    if WPOS == 0:
        warm_issue(0, 0)
    stamp('kernarg', 'H0')
    e_addr(W_U)
    w_addr()
    a('s_waitcnt lgkmcnt(0)')
    epoch_tag()
    tag_bytes()
    pub_setup(sTag)
    a(f's_lshl_b32 s{sU2}, s{sBlk}, 8')
    base_add(sPb, WS, sU2)
    a(f'''
    v_mov_b32 v27, s{sTag}
    v_lshlrev_b32 v29, 3, v{vL}
    v_add_u32 v29, {MODB_L}, v29
    v_add_u32 v30, {MODF_G}, v{vL16}
    v_add_u32 v31, {MODF_G + 4096}, v{vL16}
    v_add_u32 v32, {MODF_G + 8192}, v{vL16}
    ''')
    red = [f'global_load_dwordx4 v[40:43], v{vL16}, {sr(sPb)} sc1']
    modf = [f'global_load_dwordx4 {vr(40 + 4 * n, 4)}, v{30 + n // 4}, {sr(WS)} offset:{1024 * (n % 4)} sc1' for n in range(10)]

    def in_w1(k):
        L = newlabel('nr')
        a(f'''
        s_sub_u32 s{sT}, s{sBlk}, 80
        s_cmp_lt_u32 s{sT}, 160
        s_cbranch_scc0 {L}
        s_and_b32 s{sT}, s{sBlk}, 3
        s_cbranch_scc1 {L}
        ''')
        if k == 0:
            a(red[0])
            a.label(L)
            return
        poll(red, [40, 41, 42, 43], [44], empty='tag', issued=True, younger=63)
        a(f'''
        v_mov_b32 v44, v40
        v_mov_b32 v45, v41
        v_mov_b32 v46, v42
        v_mov_b32 v47, v43
        s_lshr_b32 s{sU0}, s{sBlk}, 2
        s_sub_u32 s{sT}, s{sU0}, 40
        s_cmp_lt_u32 s{sT}, 10
        s_cselect_b32 s{sU1}, 1.0, 0
        s_lshl_b32 s{sU0}, s{sU0}, 8
        s_add_u32 s{sU0}, s{sU0}, {MODF_G - 20 * 256}
        ''')
        for sw in ('32', '16'):
            for r in range(4):
                a(f'v_permlane{sw}_swap_b32 v{40 + r}, v{44 + r}')
            a('v_pk_add_f32 v[40:41], v[40:41], v[44:45]')
            a('v_pk_add_f32 v[42:43], v[42:43], v[46:47]')
            if sw == '32':
                for r in range(4):
                    a(f'v_mov_b32 v{44 + r}, v{40 + r}')
        a('v_cvt_pk_bf16_f32 v44, v40, v41')
        a('v_cvt_pk_bf16_f32 v45, v42, v43')
        unpack(40, 41, 44)
        unpack(42, 43, 45)
        for r in range(4):
            a(f'v_add_f32 v{40 + r}, s{sU1}, v{40 + r}')
        a(f'''
        v_cvt_pk_bf16_f32 v44, v40, v41
        v_cvt_pk_bf16_f32 v45, v42, v43
        v_mov_b32 v47, s{sTag}
        v_add_u32 v48, s{sU0}, v{vL16}
        s_mov_b64 exec, 0xffff
        global_store_dwordx4 v48, v[44:47], {sr(WS)} sc1
        s_mov_b64 exec, -1
        ''')
        stamp('reduced', 'H0')
        a.label(L)

    def in_w2(k):
        if k == 0:
            for ld in modf:
                a(ld)
            return
        poll(modf, [43 + 4 * n for n in range(10)], list(range(80, 90)), empty='words', issued=True, younger=63)
        for n in range(10):
            a(f'ds_write_b64 v29, {vr(40 + 4 * n, 2)} offset:{512 * n}')
        a('s_waitcnt lgkmcnt(0)')
        stamp('modb in', 'H0')
    helper_tail(0, 'H0', lambda: in_w1(0), lambda: in_w1(2), lambda: in_w2(0), lambda: in_w2(1))


def helper1():
    a.label('L_h1')
    a(f'''
    s_getpc_b64 {sr(sBa)}
    L_pc:
    s_add_u32 s{sBb}, s{sBa}, L_tables-L_pc
    s_addc_u32 s{sBb + 1}, s{sBa + 1}, 0
    ''')

    def tabs(q0, q1):
        for q in range(q0, q1):
            if q % 4 == 0 or q == q0:
                a(f's_mov_b32 m0, {TAB + (q & ~3) * 1024}')
                a(f'v_add_u32 v20, {(q & ~3) * 1024}, v{vL16}')
            a(f'global_load_lds_dwordx4 v20, {sr(sBb)} offset:{1024 * (q % 4)}')

    def tab2():
        tabs(NT1, NTAB)
        a(f'''
        s_mov_b32 m0, {WR_L}
        global_load_lds_dwordx4 v{vL16}, {sr(B_WR)}
        s_mov_b64 exec, 0xffff
        global_load_lds_dwordx4 v{vL16}, {sr(B_WR)} offset:1024
        s_mov_b64 exec, -1
        ''')
        return NTAB - 14 + 2

    if AT == 2:
        tabs(0, NT1)
    warm_addr_w()
    warm_addr_f(1, 0)
    a('s_waitcnt lgkmcnt(0)')
    epoch_load()
    if AT == 0:
        blk_id()
        is_a()
        a('s_cbranch_scc0 L_h1_t')
        bar('B1')
        if PB:
            bar('B1b')
        a.label('L_h1_t')
    if AT < 2:
        tabs(0, NT1)
    if AT == 0:
        is_a()
        a('s_cbranch_scc1 L_h1_v')
    bar('B0 / B1')
    if AT and PB:
        blk_id()
        is_a()
        a('s_cbranch_scc0 L_h1_v')
        bar('B1b')
    a.label('L_h1_v')
    tab2()
    if WPOS == 0:
        warm_issue(1, 0)
    e_addr(W_G)
    w_addr()
    a('s_waitcnt lgkmcnt(0)')
    epoch_tag()
    a(f's_waitcnt vmcnt({NTAB - NT1 + 2 + (1 + len(ffn_parts(0))) * (WPOS == 0)})')
    stamp('tab in', 'H1')
    nop = lambda: None
    helper_tail(1, 'H1', nop, nop, nop, nop)


prologue()
main_path()
helper0()
helper1()
body = a.finish()

hdr = open(f'cdna_kernels/{NAME}.s.ref').read().split('; Override launch')[0]
T = tables()
tab = []
flat = T.reshape(-1)
for k in range(0, flat.size, 8):
    tab.append('.long ' + ','.join('0x%08x' % v for v in flat[k:k + 8]))

launch = f'; @launch grid=(256,1,1) block=(640,1,1) lds={LDS_BYTES}'
pre_code = pre_kd = ''
if PRE:
    launch = f'; @launch kernel=pre_kernel grid=({PRE},1,1) block=(64,1,1) lds=0\n; @launch kernel={NAME}_kernel grid=(256,1,1) block=(640,1,1) lds={LDS_BYTES}'
    pre_code = '.globl pre_kernel\n.p2align 8\n.type pre_kernel,@function\npre_kernel:\n    s_endpgm\n'
    pre_kd = '''.p2align 6
.amdhsa_kernel pre_kernel
  .amdhsa_next_free_vgpr 8
  .amdhsa_next_free_sgpr 16
  .amdhsa_accum_offset 8
  .amdhsa_group_segment_fixed_size 0
  .amdhsa_kernarg_size 104
  .amdhsa_user_sgpr_count 2
  .amdhsa_user_sgpr_kernarg_segment_ptr 1
  .amdhsa_system_sgpr_workgroup_id_x 1
.end_amdhsa_kernel
'''
src = hdr + f'''{launch}
.amdgcn_target "amdgcn-amd-amdhsa--gfx950"
.text
{pre_code}.globl {NAME}_kernel
.p2align 8
.type {NAME}_kernel,@function
{NAME}_kernel:
{body}
.p2align 8
.type L_tables,@object
L_tables:
''' + '\n'.join(tab) + f'''
.size L_tables, {NTAB * 1024}
.fill (8192 - ((. - {NAME}_kernel) & 8191)) & 8191, 1, 0
L_tables_end:
.section .rodata,"a"
.p2align 6
.amdhsa_kernel {NAME}_kernel
  .amdhsa_next_free_vgpr 168
  .amdhsa_next_free_sgpr 102
  .amdhsa_accum_offset 168
  .amdhsa_group_segment_fixed_size 0
  .amdhsa_kernarg_size 104
  .amdhsa_user_sgpr_count 2
  .amdhsa_user_sgpr_kernarg_segment_ptr 1
  .amdhsa_system_sgpr_workgroup_id_x 1
.end_amdhsa_kernel
{pre_kd}'''
open(OUT, 'w').write(src)
print('wrote', OUT, 'lds', LDS_BYTES, 'lines', len(a.lines), 'nops', a.nnops)
```

```python
import sys, struct
import numpy as np
from asmdsl import Asm

NAME = 'adaLN_cond__spectral_gfnet__moe_arch_mod__prompt'
DIAG = '--diag' in sys.argv or '--dbgdiag' in sys.argv
DBGDIAG = '--dbgdiag' in sys.argv
OUT = [a for a in sys.argv[1:] if not a.startswith('--')]
OUT = OUT[0] if OUT else f'cdna_kernels/{NAME}.s'
SPIN = 60000


def opt(name, default):
    for x in reversed(sys.argv):
        if x.startswith(f'--{name}='):
            return x.split('=', 1)[1]
    return default


PROBE = opt('probe', None)
if PROBE:
    PROBE = PROBE.replace('_', ' ')
PROBEWG = int(opt('probewg', 8))
FINE = opt('fine', None)
if PROBE or FINE:
    DIAG = True
PRE = None
INPOL = 'nt'
S_W = [int(x) for x in opt('sw', '777')]
EG3 = int(opt('eg3', 10))
PACE1 = int(opt('pace1', 0))
PACE2 = int(opt('pace2', 0))
PK = opt('pk', '110')
P3FIRST = int(opt('p3first', 1))
WFIRST = int(opt('wfirst', 1))
DR1 = int(opt('dr1', 0))
DR2 = int(opt('dr2', 0))
BGWAIT = int(opt('bgwait', 9))
EARLY = int(opt('early', 2))
MATS = int(opt('mats', 2))
IEG = int(opt('ieg', 16))
IWD = int(opt('iwd', 1))
MF = int(opt('mf', 10))
MR = int(opt('mr', 0))
BLOAD = int(opt('bload', 2))
P2ORD = int(opt('p2ord', 1))
GLATE = int(opt('glate', 0))
B0 = int(opt('b0', 3))
FWL = int(opt('fwl', 0))
KP = int(opt('kp', 1))
PF = int(opt('pf', 0))
XL = int(opt('xl', 3))
WC = int(opt('wc', 0))
KD = int(opt('kd', 0))
ISEQ = int(opt('iseq', 0))
RE = int(opt('re', 1))
FINPOL = opt('finpol', '')
PYD = int(opt('pyd', 0))
TCH = opt('tch', 'mkp')
NT = ('k' in TCH) + 3 * ('p' in TCH)
PKS = int(opt('pks', 1))
P3O = int(opt('p3o', 0))
PRIO = opt('prio', '000')
AL1 = int(opt('al1', 0))
AL2 = int(opt('al2', 0))
OE = int(opt('oe', 1))
BL = int(opt('bl', 0))
PL = int(opt('pl', 1))
AW = int(opt('aw', 1))
W8 = int(opt('w8', 0))
TB2 = int(opt('tb2', 0))
MW = int(opt('mw', 0))
XMAP = int(opt('xmap', '0x35762410'), 16)
EX = int(opt('ex', 0))
AT = int(opt('at', 1))
AX = int(opt('ax', 1))
WPOS = int(opt('wpos', 0))
SC_ = int(opt('sc', 1))
XP = int(opt('xp', 0))
BG = int(opt('bg', 0))
MT = int(opt('mt', 1))
S1 = int(opt('s1', 3))
PB = int(opt('pb', 1))
GB = int(opt('gb', 0))
W20 = int(opt('w20', 0))
HB = int(opt('hb', 0))
NCAN = int(opt('ncan', 1))
CANJ = int(opt('canj', 12))
NJ = 22
T1S = 8 * NJ * 64 + int(opt('t1pad', 0))
T2S = 16384 + int(opt('t2pad', 256))

MODA_G = 0
MODF_G = 61440
EPOCH_G = 73728
PY_G = 0x20000
PY_STRIDE = 2688
REC_G = 0x80000
REC_STRIDE = 4224
REC_H2 = 128
REC_BASE = 128 + 2048
T1_G = 0x400000
T2_G = 0x800000
DIAG_G = 0xC00000

NTAB = 26
TAB = 0
RED = TAB + NTAB * 1024
KEYL = RED + 2048
XB2 = KEYL + 64
SA = 736
XB1 = XB2 + 20480
MODA_L = XB1 + 16 * SA
MODB_L = MODA_L + 5120
WR_L = MODB_L + 5120
WST = WR_L + 2048
EW = WST + 16384
FW = EW + 40960
STL = FW + 20480
LDS_BYTES = STL + 256
assert LDS_BYTES <= 163840, LDS_BYTES

T_F20C, T_F20S, T_TW1, T_F32A, T_ADR, T_TW3, T_F20I, T_F32B, T_F16, T_TW2 = 0, 1, 2, 6, 10, 11, 15, 18, 22, 24
NT1 = 11


def f2u(x):
    return struct.unpack('<I', struct.pack('<f', float(x)))[0]


def bf(x):
    u = f2u(x)
    return ((u + 0x7FFF + ((u >> 16) & 1)) >> 16) & 0xFFFF


def pk(lo, hi):
    return bf(lo) | (bf(hi) << 16)


ALPHA = {16: 1.1328, 20: 1.4294, 32: 1.62445}


def cs(num, den):
    a = 2 * np.pi * (num % den) / den
    c, s = np.cos(a), np.sin(a)
    if abs(c) < 1e-12: c = 0.0
    if abs(s) < 1e-12: s = 0.0
    al = ALPHA.get(den, 1.0)
    return c * al, s * al


def kaof(x):
    ka = 3 * (x >> 2) + (x & 3)
    return ka if (x & 3) < 3 and ka <= 10 else None


def tables():
    T = np.zeros((NTAB, 64, 4), np.uint32)
    for l in range(64):
        i, g = l & 15, l >> 4
        c8, s8 = [0.0] * 8, [0.0] * 8
        for j in range(5):
            if kaof(i) is not None:
                c, s = cs((4 * j + g) * kaof(i), 20)
                c8[j], s8[j] = c, -s
        for d in range(4):
            T[T_F20C, l, d] = pk(c8[2 * d], c8[2 * d + 1])
            T[T_F20S, l, d] = pk(s8[2 * d], s8[2 * d + 1])
        for t in range(2):
            for r in range(4):
                c, s = cs((8 * g + 2 * r + t) * (kaof(i) or 0), 640)
                T[T_TW1 + 2 * t, l, r] = f2u(c)
                T[T_TW1 + 2 * t + 1, l, r] = f2u(s)
                c, s = cs((2 * i + t) * (kaof(4 * g + r) or 0), 640)
                T[T_TW3 + 2 * t, l, r] = f2u(c)
                T[T_TW3 + 2 * t + 1, l, r] = f2u(s)
        kbof = lambda e: e if e < 16 else 47 - e
        for tile in range(2):
            for ks in range(2):
                for r in range(4):
                    c, s = cs(kbof(2 * i + tile) * (8 * g + 2 * r + ks), 32)
                    T[T_F32A + tile * 2 + ks, l, r] = pk(c, s)
                    c, s = cs((2 * i + tile) * kbof(8 * g + 2 * r + ks), 32)
                    T[T_F32B + tile * 2 + ks, l, r] = pk(c, s)
        ka_ = kaof(i)
        k0 = 0 if ka_ is None else (160 * g + ka_ if g < 2 else 160 * g - 300 - ka_)
        T[T_ADR, l, 0] = 8 * k0
        T[T_ADR, l, 1] = 0x8000 if i < 8 else 0x80000000
        T[T_ADR, l, 2] = 0 if g < 2 else 0x8000
        T[T_ADR, l, 3] = 0x8000 if g < 2 else 0
        for r in range(4):
            c, s = cs(i * (4 * g + r), 16)
            T[T_F16, l, r] = pk(c, s)
            T[T_F16 + 1, l, r] = pk(-s, c)
            c, s = cs(i * (4 * g + r), 256)
            T[T_TW2, l, r] = f2u(c)
            T[T_TW2 + 1, l, r] = f2u(s)
            ka = kaof(4 * g + r)
            if ka is not None:
                a1 = 4 * (i & 3) + (i >> 2)
                c, s = cs(a1 * ka, 20)
                T[T_F20I, l, r] = pk(c, -s)
                c, s = cs((16 + (i >> 2)) * ka, 20)
                if (i & 3) == 0:
                    T[T_F20I + 1, l, r] = pk(c, -s)
                if (i & 3) == 1:
                    T[T_F20I + 2, l, r] = pk(c, -s)
    return T


def vr(a, n=1):
    return f'v{a}' if n == 1 else f'v[{a}:{a + n - 1}]'


def sr(a, n=2):
    return f's{a}' if n == 1 else f's[{a}:{a + n - 1}]'


sW, sX, sIdx, sMe, sT = 3, 4, 5, 6, 7
A_X, W_R, W_I, B_WR, W_G, W_U, W_D = 8, 10, 12, 16, 18, 20, 22
C_, W_MOD, OUTP, DBG, WS = 24, 26, 28, 30, 32
sBa, sBb, sBc = 34, 36, 38
sCnt = 40
sM1B = 41
sU0, sU1, sU2, sU3 = 42, 43, 46, 47
sM7 = 44
sRow = 48
sKey = 49
sV1, sV2 = 50, 51
sHI = 52
sCand = 53
sBlk = 54
sRec = 56
sTag = 55
sRi = sIdx
sGU = 56
sXrow = 72
sTS = 74

vL, vL16, vL4, vS, vPoll = 1, 2, 3, 4, 5
vM8F, vM8I = 6, 8
vXS = 10
Ra, Rb, RD, Rc = 20, 28, 36, 52
vF32 = 60
vTW = 92
vF20 = 108
vVec = 120
vE0 = 160
vXR = 150


a = Asm()
stamps = {}
NST = 24


def stamp(name, path='M', wait=True):
    if not DIAG or FINE:
        return
    if opt('only', None) and not (name == 'start' or any(name.startswith(x.replace('_', ' ')) for x in opt('only', '').split(','))):
        return
    if PROBE and (path != 'M' or not (name == 'start' or name.startswith(PROBE))):
        return
    lst = stamps.setdefault(path, [])
    if name not in lst:
        lst.append(name)
    k = lst.index(name)
    assert k < NST
    a(f's_memrealtime s[100:101]')
    a('s_waitcnt lgkmcnt(0)')
    a(f's_mov_b32 s{sTS + k}, s100')


fines = []


def fine(group, name):
    if FINE != group:
        return
    if name not in fines:
        fines.append(name)
    k = fines.index(name)
    assert k < 12
    a(f's_memtime {sr(sTS + 2 * k)}')


def dump_stamps(path='M'):
    if not DIAG:
        return
    if PROBE:
        if path != 'M':
            return
        a(f'''
        s_cmp_lg_u32 s2, {PROBEWG}
        s_cbranch_scc1 L_end
        s_cmp_lg_u32 s{sW}, 0
        s_cbranch_scc1 L_end
        ''')
        if PROBE == 'fix':
            a(f's_movk_i32 s{sU0}, 6000')
        elif PROBE == 'rel':
            RX = int(opt('rx', 1))
            a(f'''
            v_mov_b32 v20, {DIAG_G}
            global_load_dword v21, v20, {sr(WS)} sc1
            global_load_dword v22, v20, {sr(WS)} offset:{128 * RX} sc1
            s_waitcnt vmcnt(0)
            v_sub_u32 v21, v22, v21
            v_add_u32 v21, 100, v21
            v_readfirstlane_b32 s{sU0}, v21
            s_lshl_b32 s{sU0}, s{sU0}, 5
            s_add_u32 s{sU0}, s{sU0}, 6000
            s_min_u32 s{sU0}, s{sU0}, 100000
            ''')
        elif PROBE == 'xcc':
            a(f's_getreg_b32 s{sU0}, hwreg(HW_REG_XCC_ID)')
            a(f's_and_b32 s{sU0}, s{sU0}, 15')
            a(f's_mul_i32 s{sU0}, s{sU0}, 1000')
            a(f's_add_u32 s{sU0}, s{sU0}, 6000')
        else:
            a(f's_sub_u32 s{sU0}, s{sTS + 1}, s{sTS}')
            a(f's_lshl_b32 s{sU0}, s{sU0}, 4')
            a(f's_add_u32 s{sU0}, s{sU0}, 6000')
            a(f's_min_u32 s{sU0}, s{sU0}, 100000')
        a(f'''
        L_probe:
        s_memrealtime s[100:101]
        s_waitcnt lgkmcnt(0)
        s_sub_u32 s{sU1}, s100, s{sTS}
        s_cmp_lt_u32 s{sU1}, s{sU0}
        s_cbranch_scc1 L_probe
        ''')
        return
    if DBGDIAG:
        if path != 'M':
            return
        a('v_mov_b32 v20, 0')
        a('s_mov_b64 exec, 1')
        a(f's_not_b32 s{sU0}, s{sTS}')
        a(f'v_mov_b32 v22, s{sU0}')
        a(f'global_atomic_umax v20, v22, {sr(DBG)} offset:4 sc1')
        ks = [0] + list(range(2, len(stamps['M'])))
        for n, k in enumerate(ks[:14]):
            a(f'v_mov_b32 v{23 + n}, s{sTS + k}')
            a(f'global_atomic_umax v20, v{23 + n}, {sr(DBG)} offset:{8 + 4 * n} sc1')
        print('dbg slots:', [(2 + n, stamps['M'][k]) for n, k in enumerate(ks[:14])])
        return
    a(f'''
    s_lshl_b32 s{sU0}, s2, 11
    s_lshl_b32 s{sU1}, s{sW}, 7
    s_add_u32 s{sU0}, s{sU0}, s{sU1}
    s_memtime s[100:101]
    ''')
    base_add(sBa, WS, sU0, DIAG_G)
    a('v_mov_b32 v20, 0')
    a('s_mov_b64 exec, 1')
    for k in range(0, NST, 2):
        a(f'v_mov_b32 v22, s{sTS + k}')
        a(f'v_mov_b32 v23, s{sTS + k + 1}')
        a(f'global_store_dwordx2 v20, v[22:23], {sr(sBa)} offset:{4 * k}')
        a('s_nop 1')
    a('s_waitcnt lgkmcnt(0)')
    a('s_sub_u32 s100, s100, s98')
    a('v_mov_b32 v22, s100')
    a(f'global_store_dword v20, v22, {sr(sBa)} offset:112')
    a('s_getreg_b32 s42, hwreg(HW_REG_XCC_ID)')
    a('s_getreg_b32 s43, hwreg(HW_REG_HW_ID)')
    a('v_mov_b32 v22, s42')
    a('v_mov_b32 v23, s43')
    a(f'global_store_dwordx2 v20, v[22:23], {sr(sBa)} offset:120')


def base_add(dst, src, off_s=None, imm=0):
    if off_s is not None:
        if imm:
            a(f's_add_u32 s{sT}, s{off_s}, {imm}')
            off_s = sT
        a(f's_add_u32 s{dst}, s{src}, s{off_s}')
    else:
        a(f's_add_u32 s{dst}, s{src}, {imm}')
    a(f's_addc_u32 s{dst + 1}, s{src + 1}, 0')


lblc = [0]
late = []


def flush_late():
    for f in late:
        f()
    late.clear()


def newlabel(p):
    lblc[0] += 1
    return f'L_{p}_{lblc[0]}'


def poll(loads, regs, tmp, mask=None, empty='eq -1', between=None, younger=0, issued=False):
    L, D, Cc = newlabel('poll'), newlabel('polld'), newlabel('pollc')
    if mask is not None:
        mask_lanes(mask)
    if not issued:
        for ld in loads:
            a(ld)
    a(f's_mov_b32 s{sCnt}, {SPIN}')
    if between is not None:
        between()
    if younger < 63:
        a(f's_waitcnt vmcnt({younger})')
    a.label(Cc)

    def retry():
        a.label(L)
        a(f's_sub_u32 s{sCnt}, s{sCnt}, 1')
        a(f's_cbranch_scc1 {D}')
        for ld in loads:
            a(ld)
        a('s_waitcnt vmcnt(0)')
        a(f's_branch {Cc}')
    late.append(retry)
    if empty == 'tag':
        for n, r in enumerate(regs):
            a(f'v_xor_b32 v{r}, s{sTB + (n & 3)}, v{r}')
        rem = list(regs)
        for c in tmp:
            a(f'v_or3_b32 v{c}, v{rem[0]}, v{rem[1]}, v{rem[2]}')
            rem = rem[3:]
        n = 0
        while len(rem) >= 2:
            c = tmp[n % len(tmp)]
            a(f'v_or3_b32 v{c}, v{c}, v{rem[0]}, v{rem[1]}')
            rem = rem[2:]
            n += 1
        t = tmp[0]
        rem = rem + list(tmp[1:])
        while rem:
            if len(rem) >= 2:
                a(f'v_or3_b32 v{t}, v{t}, v{rem[0]}, v{rem[1]}')
                rem = rem[2:]
            else:
                a(f'v_or_b32 v{t}, v{t}, v{rem[0]}')
                rem = rem[1:]
        a(f'v_and_b32 v{t}, 0xff, v{t}')
        empty = 'ne 0'
    elif empty == 'word':
        if len(regs) == 1:
            t = regs[0]
            empty = f'ne s{sTag}'
        else:
            assert len(regs) == 2
            t = tmp[0]
            a(f'v_xor_b32 v{t}, v{regs[0]}, v{regs[1]}')
            a(f'v_xor_b32 v{tmp[1]}, s{sTag}, v{regs[0]}')
            a(f'v_or_b32 v{t}, v{t}, v{tmp[1]}')
            empty = 'ne 0'
    elif empty == 'words':
        for n, r in enumerate(regs):
            a(f'v_xor_b32 v{tmp[n]}, s{sTag}, v{r}')
        t = tmp[0]
        rem = list(tmp[1:len(regs)])
        while rem:
            if len(rem) >= 2:
                a(f'v_or3_b32 v{t}, v{t}, v{rem[0]}, v{rem[1]}')
                rem = rem[2:]
            else:
                a(f'v_or_b32 v{t}, v{t}, v{rem[0]}')
                rem = rem[1:]
        empty = 'ne 0'
    elif len(regs) == 1:
        t = regs[0]
    else:
        rem = list(regs)
        outs = []
        k = 0
        while len(rem) >= 3 and k < len(tmp):
            a(f'v_max3_u32 v{tmp[k]}, v{rem[0]}, v{rem[1]}, v{rem[2]}')
            outs.append(tmp[k])
            rem = rem[3:]
            k += 1
        rem = outs[1:] + rem
        t = outs[0] if outs else None
        if t is None:
            t = tmp[0]
            a(f'v_max_u32 v{t}, v{rem[0]}, v{rem[1]}')
            rem = rem[2:]
        while rem:
            if len(rem) >= 2:
                a(f'v_max3_u32 v{t}, v{t}, v{rem[0]}, v{rem[1]}')
                rem = rem[2:]
            else:
                a(f'v_max_u32 v{t}, v{t}, v{rem[0]}')
                rem = rem[1:]
    a(f'v_cmpx_{empty.split()[0]}_u32 vcc, {empty.split()[1]}, v{t}')
    a(f's_cbranch_execnz {L}')
    a.label(D)
    a('s_mov_b64 exec, -1')


def epoch_load():
    a(f's_load_dword s{sTag}, {sr(WS)}, {EPOCH_G}')


def epoch_tag(d=None):
    d = d or sTag
    a(f'''
    s_and_b32 s{d}, s{sTag}, 0x7f7f7f7f
    s_add_u32 s{d}, s{d}, 0x01010101
    s_or_b32 s{d}, s{d}, 0x80808080
    ''')


sTB = 68


def tag_bytes():
    for k in range(4):
        a(f's_bfe_u32 s{sTB + k}, s{sTag}, {hex(0x80000 | (8 * k))}')


def dpp(op, r, ctrl, rm='0xf'):
    a(f'{op}_dpp v{r}, v{r}, v{r} {ctrl} row_mask:{rm} bank_mask:0xf')


def wave_sum(regs, dst_s, op='v_add_f32'):
    for c in ('row_ror:8', 'row_ror:4', 'row_ror:2', 'row_ror:1'):
        for r in regs:
            dpp(op, r, c)
    for r in regs:
        dpp(op, r, 'row_bcast:15', '0xa')
    for r in regs:
        dpp(op, r, 'row_bcast:31', '0xc')
    for r, s in zip(regs, dst_s):
        a(f'v_readlane_b32 s{s}, v{r}, 63')


def rbf(dst, src):
    a(f'v_cvt_pk_bf16_f32 v{dst}, {src}, {src}')
    a(f'v_and_b32 v{dst}, s{sHI}, v{dst}')


def unpack(dlo, dhi, src):
    a(f'v_lshlrev_b32 v{dlo}, 16, v{src}')
    a(f'v_and_b32 v{dhi}, s{sHI}, v{src}')


def mfma32(d, x, y, c=None):
    a(f'v_mfma_f32_16x16x32_bf16 {vr(d, 4)}, {vr(x, 4)}, {vr(y, 4)}, {vr(c, 4) if c is not None else 0}')


def mfma16(d, x, y):
    a(f'v_mfma_f32_16x16x16_bf16 {vr(d, 4)}, {vr(x, 2)}, {vr(y, 2)}, 0')


def cmul(tr, ti, re, im, c, s, sign, pk=True, n=4, head=0):
    if not pk:
        for r in range(n):
            a(f'v_mul_f32 v{tr + r}, v{re + r}, v{c + r}')
        for r in range(n):
            a(f'v_mul_f32 v{ti + r}, v{im + r}, v{c + r}')
        for r in range(n):
            if sign > 0:
                a(f'v_fma_f32 v{tr + r}, -v{im + r}, v{s + r}, v{tr + r}')
                a(f'v_fmac_f32 v{ti + r}, v{re + r}, v{s + r}')
            else:
                a(f'v_fmac_f32 v{tr + r}, v{im + r}, v{s + r}')
                a(f'v_fma_f32 v{ti + r}, -v{re + r}, v{s + r}, v{ti + r}')
        return
    nr = 'neg_lo:[1,0,0] neg_hi:[1,0,0]'
    for h in (0, 2):
        if head:
            a(f'v_mul_f32 v{tr + h}, v{re + h}, v{c + h}')
            a(f'v_mul_f32 v{tr + h + 1}, v{re + h + 1}, v{c + h + 1}')
        else:
            a(f'v_pk_mul_f32 {vr(tr + h, 2)}, {vr(re + h, 2)}, {vr(c + h, 2)}')
    for h in (0, 2):
        a(f'v_pk_mul_f32 {vr(ti + h, 2)}, {vr(im + h, 2)}, {vr(c + h, 2)}')
    for h in (0, 2):
        a(f'v_pk_fma_f32 {vr(tr + h, 2)}, {vr(im + h, 2)}, {vr(s + h, 2)}, {vr(tr + h, 2)} {nr if sign > 0 else ""}')
    for h in (0, 2):
        a(f'v_pk_fma_f32 {vr(ti + h, 2)}, {vr(re + h, 2)}, {vr(s + h, 2)}, {vr(ti + h, 2)} {nr if sign < 0 else ""}')


def pack4(d, lo, hi, step=1, n=4):
    for r in range(n):
        a(f'v_cvt_pk_bf16_f32 v{d + r * step}, v{lo + r}, v{hi + r}')


def tab_read(dst, q):
    a(f'ds_read_b128 {vr(dst, 4)}, v{vL16} offset:{TAB + q * 1024}')


def tm(j, t):
    return 4 * t + j if j < 4 else 8 + t


def read_tmajor(dst, vaddr, off):
    o = off // 256
    assert off % 256 == 0 and o + 6 < 256
    for t in range(2):
        a(f'ds_read2st64_b32 {vr(dst + 4 * t, 2)}, v{vaddr + t} offset0:{o} offset1:{o + 2}')
        a(f'ds_read2st64_b32 {vr(dst + 4 * t + 2, 2)}, v{vaddr + t} offset0:{o + 4} offset1:{o + 6}')
    a(f'ds_read_b64 {vr(dst + 8, 2)}, v{vaddr} offset:{off + 2048}')


def silu(dst, src, tmp):
    for d, s, t in zip(dst, src, tmp):
        a(f'v_mul_f32 v{t}, 0xbfb8aa3b, v{s}')
    for t in tmp:
        a(f'v_exp_f32 v{t}, v{t}')
    for t in tmp:
        a(f'v_add_f32 v{t}, 1.0, v{t}')
    for t in tmp:
        a(f'v_rcp_f32 v{t}, v{t}')
    for d, s, t in zip(dst, src, tmp):
        a(f'v_mul_f32 v{d}, v{s}, v{t}')


def swap_reduce8(acc):
    for k in range(4):
        a(f'v_permlane32_swap_b32 v{acc + k}, v{acc + k + 4}')
    a(f'v_pk_add_f32 {vr(acc, 2)}, {vr(acc, 2)}, {vr(acc + 4, 2)}')
    a(f'v_pk_add_f32 {vr(acc + 2, 2)}, {vr(acc + 2, 2)}, {vr(acc + 6, 2)}')
    for k in range(2):
        a(f'v_permlane16_swap_b32 v{acc + k}, v{acc + k + 2}')
    a(f'v_pk_add_f32 {vr(acc, 2)}, {vr(acc, 2)}, {vr(acc + 2, 2)}')


BC0 = 'op_sel:[0,0,0] op_sel_hi:[1,0,1]'
BC1 = 'op_sel:[0,1,0] op_sel_hi:[1,1,1]'


def prologue():
    a(f'''
    s_cmp_ge_u32 s2, 256
    s_cbranch_scc1 L_end
    ''')
    if DIAG:
        for k in range(NST):
            a(f's_mov_b32 s{sTS + k}, 0')
        a('s_memtime s[98:99]')
        for p in ('M', 'H0', 'H1'):
            stamps[p] = ['start']
        stamp('start')
    a(f'''
    s_load_dwordx16 s[8:23], s[0:1], 0
    s_load_dwordx8 s[24:31], s[0:1], 64
    s_load_dwordx2 s[32:33], s[0:1], 96
    v_lshrrev_b32 v20, 6, v0
    s_and_b32 s{sX}, s2, 7
    s_lshr_b32 s{sIdx}, s2, 3
    v_readfirstlane_b32 s{sW}, v20
    v_and_b32 v{vL}, 63, v0
    s_lshl_b32 s{sMe}, s{sX}, 5
    s_add_u32 s{sMe}, s{sMe}, s{sIdx}
    v_lshlrev_b32 v{vL16}, 4, v{vL}
    v_lshlrev_b32 v{vL4}, 2, v{vL}
    s_cmp_eq_u32 s{sW}, 9
    s_cbranch_scc1 L_h1
    s_cmp_eq_u32 s{sW}, 8
    s_cbranch_scc1 L_h0
    s_cmp_eq_u32 s{sRi}, 30
    s_cbranch_scc0 L_nopf
    s_cmp_ge_u32 s{sW}, (L_tables_end-{NAME}_kernel)/8192
    s_cbranch_scc1 L_nopf
    s_getpc_b64 {sr(sBa)}
    L_pc0:
    s_sub_u32 s{sBa}, s{sBa}, L_pc0-{NAME}_kernel
    s_subb_u32 s{sBa + 1}, s{sBa + 1}, 0
    v_lshlrev_b32 v21, 7, v0
    global_load_dword v157, v21, {sr(sBa)}
    L_nopf:
    ''')


def xloads():
    for j in range(5):
        a(f'global_load_dword v{vXR + j}, v156, {sr(A_X)} offset:{256 * j} {INPOL}')


def blk_id():
    if EX == 7:
        a(f'''
        s_mul_i32 s{sBlk}, s{sIdx}, 7
        s_add_u32 s{sBlk}, s{sBlk}, s{sX}
        s_add_u32 s{sT}, s{sIdx}, 225
        s_cmp_eq_u32 s{sX}, 0
        s_cselect_b32 s{sBlk}, s{sT}, s{sBlk}
        s_sub_u32 s{sBlk}, s{sBlk}, 1
        ''')
        return
    if EX:
        a(f'''
        s_lshl_b32 s{sT}, s{sX}, 2
        s_lshr_b32 s{sT}, {hex(XMAP)}, s{sT}
        s_and_b32 s{sT}, s{sT}, 7
        s_cmp_lt_u32 s{sIdx}, {80 // EX}
        s_cselect_b32 s{sBlk}, {80 // EX}, {30 - 80 // EX}
        s_cselect_b32 s{sU0}, 0, {80 - 80 // EX}
        s_cmp_lt_u32 s{sT}, {EX}
        s_cselect_b32 s{sBlk}, s{sBlk}, 30
        s_cselect_b32 s{sU0}, s{sU0}, 0
        s_mul_i32 s{sBlk}, s{sBlk}, s{sT}
        ''')
    else:
        a(f'''
        s_cmp_lt_u32 s{sIdx}, 10
        s_cselect_b32 s{sBlk}, 10, 20
        s_cselect_b32 s{sU0}, 0, 70
        s_mul_i32 s{sBlk}, s{sBlk}, s{sX}
        ''')
    a(f'''
    s_add_u32 s{sBlk}, s{sBlk}, s{sU0}
    s_add_u32 s{sBlk}, s{sBlk}, s{sIdx}
    s_cmp_lt_u32 s{sIdx}, 30
    s_cselect_b32 s{sBlk}, s{sBlk}, 0xf1
    ''')


def is_a():
    a(f's_cmp_lt_u32 s{sBlk}, 80')


def is_b():
    a(f's_sub_u32 s{sT}, s{sBlk}, 80')
    a(f's_cmp_lt_u32 s{sT}, 160')


def pub_setup(tag):
    a(f'''
    v_lshlrev_b32 v28, 5, v{vL}
    v_lshlrev_b32 v34, 3, v{vL}
    v_and_b32 v34, 24, v34
    v_bfe_u32 v34, s{tag}, v34, 8
    v_mov_b32 v33, 0xffffff00
    s_sub_u32 s{sU0}, s{sBlk}, 40
    s_cmp_lt_u32 s{sU0}, 40
    s_cselect_b32 s{sU1}, 1.0, 0
    s_and_b32 s{sU0}, s{sBlk}, 3
    s_cselect_b32 s{sU1}, 0, s{sU1}
    v_mov_b32 v35, s{sU1}
    ''')


GV = (130, 142, 48, 56, 158, 159)


def gemv_addr():
    vw, vc, acc, tmp, vo, voc = GV
    blk_id()
    a(f'''
    v_lshrrev_b32 v{voc}, 3, v{vL}
    v_mad_u32_u24 v{voc}, v20, 20, v{voc}
    v_and_b32 v21, 3, s{sBlk}
    v_mul_u32_u24 v21, 160, v21
    v_add_u32 v{voc}, v{voc}, v21
    v_lshrrev_b32 v21, 2, s{sBlk}
    v_and_b32 v{vo}, 0x70, v{vL16}
    v_lshl_add_u32 v{vo}, v21, 7, v{vo}
    v_mul_u32_u24 v21, 7680, v{voc}
    v_add_u32 v{vo}, v{vo}, v21
    v_lshlrev_b32 v{voc}, 1, v{voc}
    v_lshl_add_u32 v156, v20, 8, s{sMe}
    v_mul_u32_u24 v156, 1280, v156
    v_add_u32 v156, v156, v{vL4}
    ''')
    for k in range(4):
        a(f'v_mov_b32 v{vw + 8 + k}, 0')
    a(f'v_mov_b32 v{vc + 2}, 0')


def gemv_issue(scalar=False):
    vw, vc, acc, tmp, vo, voc = GV
    def cl_():
        for j in range(3):
            if j == 2:
                a('s_mov_b32 exec_hi, 0')
            a(f'global_load_ushort v{vc + j}, v{voc}, {sr(C_)} offset:{16 * j}')
        a('s_mov_b64 exec, -1')

    def wl_():
        for j in range(3):
            if j == 2:
                a('s_mov_b32 exec_hi, 0')
            a(f'global_load_dwordx4 {vr(vw + 4 * j, 4)}, v{vo}, {sr(W_MOD)} {INPOL}')
            if j < 2:
                a(f'v_add_u32 v{vo}, {8 * 7680}, v{vo}')
        a('s_mov_b64 exec, -1')
    if scalar:
        wl_()
        a(f'''
        s_and_b32 s{sU0}, s{sBlk}, 3
        s_lshl_b32 s{sU0}, s{sU0}, 3
        s_add_u32 s{sU0}, s{sU0}, s{sW}
        s_mul_i32 s{sU0}, s{sU0}, 40
        s_load_dwordx8 s[56:63], {sr(C_)}, s{sU0}
        s_add_u32 s{sU0}, s{sU0}, 32
        s_load_dwordx2 s[64:65], {sr(C_)}, s{sU0}
        ''')
        return
    cl_()
    wl_()


def gemv_compute(role, after, at_c=None, scalar=False):
    nj = 3
    vw, vc, acc, tmp, vo, voc = GV
    if role == 'B':
        acc = 150
    if scalar:
        a(f'v_lshlrev_b32 v{tmp}, 1, v{vL}')
        a(f'v_and_b32 v{tmp}, 16, v{tmp}')
        a('s_waitcnt lgkmcnt(0)')
        for g in range(4):
            if g == 0:
                a('s_mov_b64 exec, 0xffff')
            else:
                a('s_lshl_b64 exec, exec, 16')
            for j in range(3 if g < 2 else 2):
                a(f'v_lshrrev_b32 v{vc + j}, v{tmp}, s{56 + 4 * j + g}')
        a('s_mov_b64 exec, -1')
    else:
        a(f's_waitcnt vmcnt({nj + (0 if at_c else after)})')
    stamp('c in')
    if at_c:
        at_c()
    cs_ = [vc + j for j in range(nj)]
    for c in cs_:
        a(f'v_lshlrev_b32 v{c}, 16, v{c}')
    silu(cs_, cs_, [tmp + j for j in range(nj)])
    sc = [(145, 146), (147, 148), (149, 59)]
    for c, s in zip(cs_, sc):
        a(f'v_cvt_pk_bf16_f32 v{s[0]}, v{c}, 0')
    for s in sc:
        a(f'v_lshlrev_b32 v{s[1]}, 16, v{s[0]}')
    a(f'''
    v_and_b32 v{vo}, 7, v{vL}
    v_lshlrev_b32 v{vo}, 8, v{vo}
    v_and_b32 v{voc}, 48, v{vL}
    v_lshl_add_u32 v{vo}, v{voc}, 2, v{vo}
    s_lshl_b32 s{sT}, s{sW}, 2
    s_add_u32 s{sT}, s{sT}, {RED}
    v_add_u32 v{vo}, s{sT}, v{vo}
    ''')
    for k in range(8):
        a(f'v_mov_b32 v{acc + k}, 0')
    for j in range(nj):
        a(f's_waitcnt vmcnt({nj - 1 - j + after})')
        for k in (0, 4, 1, 5, 2, 6, 3, 7):
            a(f'v_dot2c_f32_bf16 v{acc + k}, v{vw + 4 * j + k // 2}, v{sc[j][k & 1]}')
    stamp('w in')
    swap_reduce8(acc)
    for c in ('row_ror:8',):
        dpp('v_add_f32', acc, c)
        dpp('v_add_f32', acc + 1, c)
    a(f'''
    s_mov_b32 exec_lo, 0x00ff00ff
    s_mov_b32 exec_hi, 0x00ff00ff
    ds_write2_b32 v{vo}, v{acc}, v{acc + 1} offset0:0 offset1:8
    s_mov_b64 exec, -1
    s_waitcnt lgkmcnt(0)
    ''')


def m8(dst, inverse):
    t0, t1, t2, t3 = 20, 21, 22, 23
    a(f'v_lshrrev_b32 v{t0}, 4, v{vL}           ; g')
    if not inverse:
        a(f'''
        v_bfe_u32 v{t1}, v{vL}, 2, 2
        v_bfe_u32 v{t2}, v{vL}, 1, 1
        v_lshl_add_u32 v{t1}, v{t2}, 2, v{t1}
        v_lshlrev_b32 v{t0}, 9, v{t0}
        v_add_u32 v{t0}, s{sMe}, v{t0}
        v_mul_u32_u24 v{t2}, v{t0}, v{t1}
        v_lshl_add_u32 v{t3}, v{t1}, 8, v{t2}
        ''')
    else:
        a(f'''
        v_bfe_u32 v{t1}, v{vL}, 1, 3
        v_lshlrev_b32 v{t1}, 8, v{t1}
        v_add_u32 v{t1}, s{sMe}, v{t1}
        v_mul_u32_u24 v{t2}, v{t0}, v{t1}
        v_xor_b32 v{t0}, 4, v{t0}
        v_mul_u32_u24 v{t3}, v{t0}, v{t1}
        v_sub_u32 v{t2}, 0, v{t2}
        v_sub_u32 v{t3}, 0, v{t3}
        ''')
    a(f'''
    v_and_b32 v{t0}, 1, v{vL}
    v_lshl_add_u32 v{t2}, v{t0}, 9, v{t2}
    v_lshl_add_u32 v{t3}, v{t0}, 9, v{t3}
    v_and_b32 v{t2}, 0x7ff, v{t2}
    v_and_b32 v{t3}, 0x7ff, v{t3}
    v_cvt_f32_u32 v{t2}, v{t2}
    v_cvt_f32_u32 v{t3}, v{t3}
    v_mul_f32 v{t2}, 0x3a000000, v{t2}
    v_mul_f32 v{t3}, 0x3a000000, v{t3}
    v_cos_f32 v{t0}, v{t2}
    v_sin_f32 v{t2}, v{t2}
    v_cos_f32 v{t1}, v{t3}
    v_sin_f32 v{t3}, v{t3}
    v_cvt_pk_bf16_f32 v{dst}, v{t0}, v{t2}
    v_cvt_pk_bf16_f32 v{dst + 1}, v{t1}, v{t3}
    ''')


INV640 = hex(f2u(1.0 / 640))
EPS = hex(f2u(1e-5))


def rstd_chain(var, out):
    rbf(out, f'v{var}')
    a(f'v_add_f32 v{out}, {EPS}, v{out}')
    rbf(out, f'v{out}')
    a(f'v_sqrt_f32 v{out}, v{out}')
    rbf(out, f'v{out}')
    a(f'v_rcp_f32 v{out}, v{out}')


def sum10(dst2, x):
    a(f'v_pk_add_f32 {vr(dst2, 2)}, {vr(x, 2)}, {vr(x + 2, 2)}')
    for h in (4, 6, 8):
        a(f'v_pk_add_f32 {vr(dst2, 2)}, {vr(dst2, 2)}, {vr(x + h, 2)}')
    a(f'v_add_f32 v{dst2}, v{dst2}, v{dst2 + 1}')


def dot10(dst2, x, y):
    a(f'v_pk_mul_f32 {vr(dst2, 2)}, {vr(x, 2)}, {vr(y, 2)}')
    for h in (2, 4, 6, 8):
        a(f'v_pk_fma_f32 {vr(dst2, 2)}, {vr(x + h, 2)}, {vr(y + h, 2)}, {vr(dst2, 2)}')
    a(f'v_add_f32 v{dst2}, v{dst2}, v{dst2 + 1}')


def prio(k, on):
    if PRIO[k] == '0':
        return
    if not on:
        a('s_setprio 0')
        return
    L = newlabel('pr')
    a(f's_cmp_lt_u32 s{sW}, 4')
    a(f's_cbranch_scc1 {L}')
    a('s_setprio 1')
    a.label(L)


def bar(n):
    a(f's_barrier                                   ; {n}')


def tpoll(loads, lanes_s=None, between=None):
    L, D, Cc = newlabel('poll'), newlabel('polld'), newlabel('pollc')
    if lanes_s:
        a(f's_mov_b64 exec, {lanes_s}')
    for ld in loads:
        a(ld)
    if lanes_s:
        a('s_mov_b64 exec, -1')
    a(f's_mov_b32 s{sCnt}, {SPIN}')
    if between is not None:
        between()
    a('s_waitcnt vmcnt(0)')
    a.label(Cc)
    a(f'''
    v_cmp_ne_u32 vcc, s{sTag}, v{Ra + 3}
    v_cmp_ne_u32 {sr(sBc)}, s{sTag}, v{Ra + 7}
    s_or_b64 vcc, vcc, {sr(sBc)}
    s_and_b64 vcc, vcc, {sr(sM8)}
    s_cbranch_scc1 {L}
    ''')
    a.label(D)

    def retry():
        a.label(L)
        a(f'''
        s_sub_u32 s{sCnt}, s{sCnt}, 1
        s_cbranch_scc1 {D}
        s_lshr_b64 {sr(sBc)}, vcc, 1
        s_or_b64 vcc, vcc, {sr(sBc)}
        s_lshr_b64 {sr(sBc)}, vcc, 2
        s_or_b64 exec, vcc, {sr(sBc)}
        ''')
        for ld in loads:
            a(ld)
        a('s_mov_b64 exec, -1')
        a('s_waitcnt vmcnt(0)')
        a(f's_branch {Cc}')
    late.append(retry)


sM8, sLn, sM3 = 62, 64, 66
vSg0, vSg1, vPair, vPairX = vE0 + 1, vE0 + 2, vE0 + 5, vM8F + 1


def f32_expand(q0, m0, m1):
    for tile in range(2):
        for k in range(8):
            b = vF32 + 16 * tile + k
            a(f'v_alignbit_b32 v{b + 8}, v{b}, v{b}, 16')
            a(f'v_xor_b32 v{b + 8}, v{m1}, v{b + 8}')
            if m0 is not None:
                a(f'v_xor_b32 v{b}, v{m0}, v{b}')


def f32_read(q0):
    for tile in range(2):
        for ks in range(2):
            tab_read(vF32 + 16 * tile + 4 * ks, q0 + 2 * tile + ks)


def setup_addr():
    a(f'''
    v_bfe_u32 v20, v{vL}, 2, 2                    ; cs
    v_and_b32 v21, 48, v{vL16}                    ; part*16
    v_lshrrev_b32 v22, 4, v{vL}                   ; g
    v_lshl_add_u32 v23, v22, 5, v20               ; 32g + cs
    v_mul_u32_u24 v{vPoll}, {T1S}, v23
    v_add_u32 v{vPoll}, v{vPoll}, v21
    v_mul_u32_u24 v23, 80, v23
    s_mul_i32 s{sT}, s{sW}, 320
    s_add_u32 s{sT}, s{sT}, {XB2}
    v_add3_u32 v{vE0 + 4}, v23, v21, s{sT}        ; staging address
    v_mul_u32_u24 v{vS}, {NJ * 64}, v22
    v_and_b32 v23, 0xf0, v{vL16}
    v_add_u32 v{vS}, v{vS}, v23
    v_lshlrev_b32 v{vE0}, 3, v{vL}                ; 8*lane
    v_mul_u32_u24 v22, {4 * SA}, v22
    v_mul_u32_u24 v20, 120, v20
    v_lshl_add_u32 v20, v21, 1, v20
    s_min_u32 s{sT}, s{sW}, 5
    s_mul_i32 s{sT}, s{sT}, 480
    s_add_u32 s{sT}, s{sT}, {XB1}
    v_add3_u32 v{vPair}, v20, v22, s{sT}
    ''')


def setup_masks():
    a(f'''
    s_mov_b32 s{sM7}, 0x77777777
    s_mov_b32 s{sM7 + 1}, 0x77777777
    s_mov_b32 s{sM8}, 0x88888888
    s_mov_b32 s{sM8 + 1}, 0x88888888
    s_mov_b32 s{sM3}, 0x37773777
    s_mov_b32 s{sM3 + 1}, 0x37773777
    s_cmp_eq_u32 s{sW}, 5
    s_cselect_b32 s{sLn}, 0x00ff00ff, -1
    s_mov_b32 s{sLn + 1}, s{sLn}
    ''')


def main_path():
    vZ, vSA, vCA = vVec, vVec + 10, vVec + 20
    gemv_addr()
    is_a()
    a('s_waitcnt lgkmcnt(0)')
    stamp('kernarg')
    a('s_cbranch_scc1 L_a')
    xloads()
    a('s_branch L_a0')
    a.label('L_a')
    gemv_issue(SC_)
    if MT and AX == 2:
        a(f's_cmp_lg_u32 s{sW}, 0')
        a('s_cbranch_scc1 L_a0')
        a(f'v_lshl_add_u32 v36, s{sBlk}, 8, v{vL4}')
        a('v_mov_b32 v37, 0')
        a(f'global_store_dword v36, v37, {sr(WS)} sc1')
    if AX == 0:
        xloads()
    a.label('L_a0')
    epoch_load()
    if S1 >= 1:
        m8(vM8F, False)
    if AX == 2:
        is_a()
        a('s_cbranch_scc0 L_a00')
        xloads()
        a.label('L_a00')
    if S1 >= 2:
        m8(vM8I, True)
    if S1 >= 3:
        setup_addr()
    is_a()
    a('s_cbranch_scc0 L_setup')
    a(f's_cmp_lg_u32 s{sW}, 0')
    a('s_cbranch_scc1 L_a1')
    if MT and AX != 2:
        a(f'v_lshl_add_u32 v36, s{sBlk}, 8, v{vL4}')
        a('v_mov_b32 v37, 0')
        a(f'global_store_dword v36, v37, {sr(WS)} sc1')
    a('s_waitcnt lgkmcnt(0)')
    epoch_tag(sV1)
    pub_setup(sV1)
    a.label('L_a1')
    gemv_compute('A', 5, at_c=xloads if AX == 1 else None, scalar=SC_)
    a(f's_cmp_lg_u32 s{sW}, 0')
    bar('B1')
    a(f's_cbranch_scc1 {"L_a2" if PB else "L_setup"}')
    publish('M')
    if PB:
        a.label('L_a2')
        bar('B1b')
    a.label('L_setup')
    a(f'''
    s_mov_b32 s{sHI}, 0xffff0000
    s_lshl_b32 s{sRow}, s{sW}, 8
    s_add_u32 s{sKey}, s{sRow}, s{sMe}
    s_mul_i32 s{sRow}, s{sKey}, 1280
    ''')
    if S1 < 1:
        m8(vM8F, False)
    if S1 < 2:
        m8(vM8I, True)
    if S1 < 3:
        setup_addr()
    setup_masks()
    is_a()
    a('s_cbranch_scc1 L_xw')
    is_b()
    a('s_cbranch_scc0 L_nb')
    gemv_issue()
    a.label('L_nb')
    bar('B0')
    a('s_waitcnt vmcnt(6)')
    a('s_cbranch_scc1 L_ln1')
    a('s_waitcnt vmcnt(0)')
    a.label('L_xw')
    a(f's_cmp_eq_u32 s{sW}, 0')
    a('s_waitcnt vmcnt(1)')
    a('s_cbranch_scc1 L_ln1')
    a('s_waitcnt vmcnt(0)')
    a.label('L_ln1')
    stamp('x in')
    for j in range(5):
        unpack(vXS + tm(j, 0), vXS + tm(j, 1), vXR + j)
    sum10(24, vXS)
    wave_sum([24], [sU0])
    a(f'v_mov_b32 v24, {INV640}')
    a(f'v_mul_f32 v26, s{sU0}, v24                ; mean')
    rbf(28, 'v26')
    a(f'v_readfirstlane_b32 s{sM1B}, v28')
    for h in range(0, 10, 2):
        a(f'v_pk_add_f32 {vr(vXS + h, 2)}, {vr(vXS + h, 2)}, v[28:29] op_sel:[0,0] op_sel_hi:[1,0] neg_lo:[0,1] neg_hi:[0,1]')
    dot10(30, vXS, vXS)
    wave_sum([30], [sU0])
    a(f'''
    v_sub_f32 v26, v26, v28
    v_mul_f32 v26, v26, v26
    v_fma_f32 v26, s{sU0}, v24, -v26
    ''')
    rstd_chain(26, 27)
    for j in range(5):
        for t in range(2):
            a(f'v_mul_f32 v{vZ + 2 * j + t}, v27, v{vXS + tm(j, t)}')
    a(f'''
    v_mov_b32 v23, 0
    v_mov_b32 v27, 0
    s_waitcnt lgkmcnt(0)
    ''')
    epoch_tag()
    tag_bytes()
    a(f'''
    s_mul_i32 s{sU0}, s{sMe}, {T1S}
    s_lshl_b32 s{sU1}, s{sW}, 8
    s_add_u32 s{sU0}, s{sU0}, s{sU1}
    ''')
    base_add(sBa, WS, sU0, T1_G)
    base_add(sBb, WS, sU0, T1_G + 4 * NJ * 64)
    a(f'''
    v_subrev_u32 v28, 64, v0                      ; u
    v_lshrrev_b32 v29, 4, v28
    v_lshlrev_b32 v29, 10, v29
    v_and_b32 v30, 0xf0, v{vL16}
    v_add_u32 v29, v29, v30
    v_cmp_le_u32 vcc, 160, v28
    v_mov_b32 v31, {8 - 160 * 32}
    v_cndmask_b32 v31, 0, v31, vcc
    s_mov_b32 s{sU2}, {MODA_L}
    v_lshlrev_b32 v28, 5, v28
    v_add3_u32 v28, v28, v31, s{sU2}
    v_add_u32 v{vE0 + 3}, s{sU2}, v{vL16}
    s_lshr_b32 s{sU1}, s{sW}, 1
    s_mul_i32 s{sU1}, s{sU1}, {4 * SA}
    s_and_b32 s{sT}, s{sW}, 1
    s_lshl_b32 s{sT}, s{sT}, 2
    s_add_u32 s{sU1}, s{sU1}, s{sT}
    s_add_u32 s{sU1}, s{sU1}, {XB1}
    ''')
    bar('BT')
    stamp('BT')
    tab_read(vF20, T_F20C)
    tab_read(vF20 + 4, T_F20S)
    for q in range(4):
        tab_read(vTW + 4 * q, T_TW1 + q)
    f32_read(T_F32A)
    tab_read(32, T_ADR)

    def expand():
        a(f'''
        s_waitcnt lgkmcnt(0)
        v_add_u32 v{vSg0}, s{sU1}, v32
        v_add_u32 v{vSg1}, 160, v{vSg0}
        ''')
        f32_expand(T_F32A, None, 33)
    def expand_if(a_side):
        L = newlabel('xp')
        is_a()
        a(f's_cbranch_scc{0 if a_side else 1} {L}')
        expand()
        a.label(L)
    if XP == 0:
        expand()
    if XP == 2:
        expand_if(False)

    def bgemv(after):
        L = newlabel('ng')
        is_b()
        a(f's_cbranch_scc0 {L}')
        gemv_compute('B', after)
        a.label(L)

    def behind(after):
        if not GB:
            bar('BP')
        if XP == 1:
            expand()
        if XP == 2:
            expand_if(True)
        if GB:
            bgemv(after)
            bar('BP')
    if not GB:
        bgemv(0)
    if BG:
        bar('BG')
    stamp('poll start')
    a(f's_sub_u32 s{sT}, s{sW}, 1')
    a(f's_cmp_lt_u32 s{sT}, 5')
    a('s_cbranch_scc1 L_mpoll')
    behind(0)
    a('s_branch L_b2')
    a.label('L_mpoll')
    poll([f'global_load_dwordx4 {vr(36 + 4 * p, 4)}, v29, {sr(WS)} offset:{256 * p} sc1' for p in range(4)],
         list(range(36, 52)), [52, 53, 54], empty='tag', between=lambda: behind(4))
    a(f'''
    v_pk_add_f32 v[36:37], v[36:37], v[40:41]
    v_pk_add_f32 v[38:39], v[38:39], v[42:43]
    v_pk_add_f32 v[44:45], v[44:45], v[48:49]
    v_pk_add_f32 v[46:47], v[46:47], v[50:51]
    v_pk_add_f32 v[36:37], v[36:37], v[44:45]
    v_pk_add_f32 v[38:39], v[38:39], v[46:47]
    ''')
    if MR:
        a('v_cvt_pk_bf16_f32 v40, v36, v37')
        a('v_cvt_pk_bf16_f32 v41, v38, v39')
        unpack(36, 37, 40)
        unpack(38, 39, 41)
    a(f'ds_write2_b64 v28, v[36:37], v[38:39] offset0:0 offset1:2')
    a.label('L_b2')
    stamp('poll end')
    fine('p1', 'pre-B2')
    a('s_waitcnt lgkmcnt(0)')
    a('s_barrier                                   ; B2')
    stamp('B2 done (mod ready)')
    fine('p1', 'B2')
    assert MODA_L % 16 == 0
    for j in range(5):
        a(f'ds_read_b128 {vr(vSA + 4 * j, 4)}, v{vE0 + 3} offset:{1024 * j}')
    for j in range(5):
        a(f's_waitcnt lgkmcnt({4 - j})')
        for t in range(2):
            a(f'v_fmac_f32 v{vSA + 4 * j + t}, v{vZ + 2 * j + t}, v{vSA + 4 * j + 2 + t}')
        if j in (1, 3):
            for t in range(2):
                a(f'v_cvt_pk_bf16_f32 v{Ra + 4 * t + j // 2}, v{vSA + 4 * j - 4 + t}, v{vSA + 4 * j + t}')
    for t in range(2):
        a(f'v_cvt_pk_bf16_f32 v{Ra + 4 * t + 2}, v{vSA + 16 + t}, 0')
    fine('p1', 'h packed')
    for t in range(2):
        mfma32(RD + 8 * t, Ra + 4 * t, vF20)
        mfma32(RD + 8 * t + 4, Ra + 4 * t, vF20 + 4)
    fine('p1', 'mfma1 issued')
    for t, tmp in ((0, Rb), (1, Rc)):
        cmul(tmp, tmp + 4, RD + 8 * t, RD + 8 * t + 4, vTW + 8 * t, vTW + 8 * t + 4, -1, pk=PK[0] == '1' or (PK[0] == '2' and t == 1))
        pack4(Ra + 4 * t, tmp, tmp + 4)
    fine('p1', 'twiddled')
    for u in range(2):
        for ks in range(2):
            for e in range(2):
                d = RD + 8 * u + 4 * e
                mfma32(d, vF32 + 16 * u + 8 * e + 4 * ks, Ra + 4 * ks, d if ks else None)
    fine('p1', 'mfma2 issued')
    a(f's_mov_b64 exec, {sr(sM3)}')
    for u in range(2):
        pack4(Rb + 4 * u, RD + 8 * u, RD + 8 * u + 4)
        for r in (0, 2):
            a(f'ds_write2_b32 v{vSg1 if u else vSg0}, v{Rb + 4 * u + r}, v{Rb + 4 * u + r + 1} offset0:{80 * r} offset1:{80 * r + 80}')
    a('s_mov_b64 exec, -1')
    a(f'v_mov_b32 v{Rc + 3}, s{sTag}')
    a(f'v_mov_b32 v{Rc + 7}, s{sTag}')
    a(f's_cmp_ge_u32 s{sW}, 6')
    fine('p1', 'lds written')
    a('s_waitcnt lgkmcnt(0)')
    fine('p1', 'pre-B3')
    fine('x1', 'pre-B3')
    bar('B3')
    fine('p1', 'B3')
    fine('x1', 'B3')
    a('s_cbranch_scc1 L_t1done')
    for n in (3, 0, 1, 2):
        a(f'ds_read_b64 {vr(Ra + 2 * n, 2)}, v{vPair} offset:{8 * n}')
    for k, n in enumerate((3, 0, 1, 2)):
        a(f's_waitcnt lgkmcnt({3 - k})')
        mfma16(RD + 4 * n, vM8F, Ra + 2 * n)
    fine('p1', 'r8 issued')
    a(f's_mov_b64 exec, {sr(sM7)}')
    for j in range(2):
        a(f'v_cvt_pk_bf16_f32 v{Rc + 4 * j + 3}, v{RD + 12 + 2 * j}, v{RD + 12 + 2 * j + 1}')
    a(f's_mov_b64 exec, {sr(sLn)}')
    for j in range(2):
        for n in range(3):
            a(f'v_cvt_pk_bf16_f32 v{Rc + 4 * j + n}, v{RD + 4 * n + 2 * j}, v{RD + 4 * n + 2 * j + 1}')
        a(f'global_store_dwordx4 v{vS}, {vr(Rc + 4 * j, 4)}, {sr(sBb if j else sBa)} sc1')
    a('s_mov_b64 exec, -1')
    a.label('L_t1done')
    stamp('T1 stored')
    if PROBE == 'rel':
        a(f'''
        s_lshl_b32 s{sT}, s{sW}, 8
        s_or_b32 s{sT}, s{sT}, s2
        s_cmp_lt_u32 s{sT}, 8
        s_cbranch_scc0 L_norel
        s_lshl_b32 s{sT}, s2, 7
        s_add_u32 s{sT}, s{sT}, {DIAG_G}
        v_mov_b32 v36, s{sT}
        v_mov_b32 v37, s{sTS}
        global_store_dword v36, v37, {sr(WS)} sc1
        L_norel:
        ''')
    fine('p1', 'stored')
    fine('x1', 'stored')

    def p3_mats():
        for q in range(3):
            tab_read(vF20 + 4 * q, T_F20I + q)
        f32_read(T_F32B)
        tab_read(40, T_ADR)
        a('s_waitcnt lgkmcnt(0)')
        f32_expand(T_F32B, 42, 43)
    a(f's_cmp_ge_u32 s{sIdx}, {NJ}')
    a('s_cbranch_scc1 L_idle')
    late.append(lambda: (a.label('L_idle'), bar('B3b'), p3_mats() if MATS else None, a('s_branch L_p3prep')))
    if MATS == 1:
        p3_mats()
    vWr = vVec
    for k in range(16):
        a(f'v_mov_b32 v{vWr + k}, 0')
    SC = 2.0 / (2048 * 640) / (ALPHA[16] ** 4 * ALPHA[20] ** 2 * ALPHA[32] ** 2)
    a(f'''
    v_and_b32 v36, 15, v{vL}
    v_and_b32 v37, 48, v{vL}
    v_lshl_add_u32 v36, v37, 2, v36               ; 64g + i
    v_mul_u32_u24 v{vE0 + 3}, 80, v36
    s_lshl_b32 s{sU1}, s{sW}, 3
    s_add_u32 s{sU1}, s{sU1}, {XB2}
    v_add_u32 v{vE0 + 3}, s{sU1}, v{vE0 + 3}
    v_lshlrev_b32 v36, 5, v36
    v_add_u32 v36, {WST}, v36
    v_and_b32 v39, 4, v{vL}
    v_lshlrev_b32 v39, 2, v39
    v_lshlrev_b32 v{vS}, 7, v37
    v_and_b32 v37, 0xf0, v{vL16}
    v_add_u32 v{vS}, v{vS}, v37
    s_mul_i32 s{sU0}, s{sX}, {NJ}
    s_add_u32 s{sU0}, s{sU0}, s{sIdx}
    s_lshl_b32 s{sU1}, s{sU0}, 6
    s_mul_i32 s{sT}, s{sW}, {4 * T1S}
    s_add_u32 s{sU1}, s{sU1}, s{sT}
    s_mul_i32 s{sU0}, s{sU0}, {T2S}
    s_lshl_b32 s{sT}, s{sW}, 8
    s_add_u32 s{sU0}, s{sU0}, s{sT}
    ''')
    base_add(sBa, WS, sU1, T1_G)
    base_add(sBb, WS, sU1, T1_G + 128 * T1S)
    base_add(58, WS, sU0, T2_G)
    base_add(60, WS, sU0, T2_G + 8192)

    def w_setup(parts=(0, 1)):
      if 0 in parts:
        for q in range(2):
            tab_read(vTW + 4 * q, T_F16 + q)
            tab_read(vTW + 8 + 4 * q, T_TW2 + q)
        a(f'''
        s_mul_i32 s{sU0}, s{sIdx}, 15
        s_min_u32 s{sU1}, s{sU0}, 306
        s_add_u32 s{sU2}, s{sU1}, s{sX}
        s_and_b32 s{sU2}, s{sU2}, 1
        s_sub_u32 s{sU1}, s{sU1}, s{sU2}
        s_lshl_b32 s{sT}, s{sW}, 1
        s_add_u32 s{sU0}, s{sU0}, s{sT}
        ''')
      if True:
        for s in parts:
            gam = sU3
            a(f'''
            s_add_u32 s{sU2}, s{sU0}, {s}
            s_sub_u32 s{sT}, s{sU2}, s{sU1}
            s_min_u32 s{sT}, s{sT}, 15
            s_lshl_b32 s{sT}, s{sT}, 1
            v_xor_b32 v37, s{sT}, v39
            v_add_u32 v37, v37, v36
            ''')
            for arr in range(2):
                for r in range(4):
                    a(f'ds_read_u16_d16_hi v{vWr + 8 * s + 4 * arr + r}, v37 offset:{arr * 8192 + r * 512}')
            a(f'''
            s_mul_i32 s{sT}, s{sU2}, 0x199a
            s_lshr_b32 s{sT}, s{sT}, 16
            s_mul_i32 s{sT}, s{sT}, 10
            s_mov_b32 s{gam}, {hex(f2u(SC))}
            s_cmp_eq_u32 s{sT}, s{sU2}
            s_cselect_b32 s{gam}, {hex(f2u(SC / 2))}, s{gam}
            s_waitcnt lgkmcnt(0)
            ''')
            for r in range(8):
                a(f'v_mul_f32 v{vWr + 8 * s + r}, s{gam}, v{vWr + 8 * s + r}')

    tl = [f'global_load_dwordx4 {vr(Ra, 4)}, v{vPoll}, {sr(sBa)} sc1', f'global_load_dwordx4 {vr(Ra + 4, 4)}, v{vPoll}, {sr(sBb)} sc1']
    fine('x1', 'pre-B3b')
    bar('B3b')
    fine('x1', 'B3b')
    if WFIRST:
        w_setup((0, 1) if WFIRST == 1 else (0,))
    fine('x1', 'wsetup')
    if DR1:
        a('s_waitcnt vmcnt(0)')
    if AL1:
        bar('B3c')
    fine('x1', 'drained')
    if PACE1:
        a(f's_sleep {PACE1}')
    stamp('B3b done')
    tpoll(tl, between=lambda: (None if WFIRST == 1 else w_setup((1,) if WFIRST else (0, 1)), p3_mats() if MATS == 2 else None, fine('x1', 'behind')))
    fine('p2', 'T1 in')
    fine('x1', 'T1 in')
    a(f'ds_write_b128 v{vE0 + 4}, {vr(Ra, 4)}')
    a(f'ds_write_b128 v{vE0 + 4}, {vr(Ra + 4, 4)} offset:10240')
    a(f's_cmp_eq_u32 s{sW}, 7')
    a('s_waitcnt lgkmcnt(0)')
    bar('B4')
    stamp('B4 done (T1 in)')
    fine('p2', 'B4')
    fine('x1', 'B4')
    a('s_cbranch_scc1 L_p2_one')
    Fre, Fim, Tc, Ts = vTW, vTW + 4, vTW + 8, vTW + 12
    tmps = (Rb, Rc)

    def p2(ns):
        p2pk = PK[1] == '1'
        if ns == 2:
            for j in range(4):
                a(f'ds_read_b64 {vr(Rb + 2 * j, 2)}, v{vE0 + 3} offset:{1280 * j}')
            for h in range(2):
                a(f's_waitcnt lgkmcnt({2 - 2 * h})')
                for s in range(2):
                    a(f'v_pk_mov_b32 {vr(Ra + 4 * s + 2 * h, 2)}, {vr(Rb + 4 * h, 2)}, {vr(Rb + 4 * h + 2, 2)} op_sel:[{s},{s}]')
        else:
            a(f'ds_read2st64_b32 {vr(Ra, 2)}, v{vE0 + 3} offset0:0 offset1:5')
            a(f'ds_read2st64_b32 {vr(Ra + 2, 2)}, v{vE0 + 3} offset0:10 offset1:15')
            a('s_waitcnt lgkmcnt(0)')
        fine('p2', 'read')
        for s in range(ns):
            mfma32(RD + 8 * s, Ra + 4 * s, Fre)
            mfma32(RD + 8 * s + 4, Ra + 4 * s, Fim)
        fine('p2', 's1')
        def stage(cq, sign, swap, mm):
            lo = lambda s: tmps[s] + (4 if swap else 0)
            hi = lambda s: tmps[s] + (0 if swap else 4)
            if ns == 1 or not P2ORD:
                for s in range(ns):
                    cmul(tmps[s], tmps[s] + 4, RD + 8 * s, RD + 8 * s + 4, *cq(s), sign, pk=p2pk)
                    pack4(Ra + 4 * s, lo(s), hi(s))
                    mm(s, 0)
                    mm(s, 1)
                return
            cmul(tmps[0], tmps[0] + 4, RD, RD + 4, *cq(0), sign, pk=p2pk, head=P2ORD - 1)
            cmul(tmps[1], tmps[1] + 4, RD + 8, RD + 12, *cq(1), sign, pk=p2pk)
            pack4(Ra, lo(0), hi(0))
            cv = lambda r: a(f'v_cvt_pk_bf16_f32 v{Ra + 4 + r}, v{lo(1) + r}, v{hi(1) + r}')
            cv(0)
            cv(1)
            mm(0, 0)
            cv(2)
            cv(3)
            mm(0, 1)
            mm(1, 0)
            mm(1, 1)
        stage(lambda s: (Tc, Ts), -1, False, lambda s, k: mfma32(RD + 8 * s + 4 * k, Fim if k else Fre, Ra + 4 * s))
        fine('p2', 's2')
        stage(lambda s: (vWr + 8 * s, vWr + 8 * s + 4), +1, True, lambda s, k: mfma32(RD + 8 * s + 4 * k, Ra + 4 * s, Fre if k else Fim))
        fine('p2', 's3')
        stage(lambda s: (Tc, Ts), +1, True, lambda s, k: mfma32(RD + 8 * s + 4 * k, Fre if k else Fim, Ra + 4 * s))
        fine('p2', 's4')
        for s in range(ns):
            pack4(Rb + s, RD + 8 * s, RD + 8 * s + 4, step=ns)
        if ns == 2:
            for r in range(4):
                a(f'ds_write_b64 v{vE0 + 3}, {vr(Rb + 2 * r, 2)} offset:{1280 * r}')
        else:
            a(f'ds_write2st64_b32 v{vE0 + 3}, v{Rb}, v{Rb + 1} offset0:0 offset1:5')
            a(f'ds_write2st64_b32 v{vE0 + 3}, v{Rb + 2}, v{Rb + 3} offset0:10 offset1:15')
        a('s_waitcnt lgkmcnt(0)')
    p2(2)
    a.label('L_b5')
    fine('p2', 'pre-B5')
    fine('x2', 'pre-B5')
    bar('B5')
    fine('p2', 'B5')
    fine('x2', 'B5')
    a(f'ds_read_b128 {vr(Rb, 4)}, v{vE0 + 4}')
    a(f'ds_read_b128 {vr(Rb + 4, 4)}, v{vE0 + 4} offset:10240')
    a('s_waitcnt lgkmcnt(1)')
    a(f'global_store_dwordx4 v{vS}, {vr(Rb, 4)}, {sr(58)} sc1')
    a('s_waitcnt lgkmcnt(0)')
    a(f'global_store_dwordx4 v{vS}, {vr(Rb + 4, 4)}, {sr(60)} sc1')
    stamp('T2 stored')
    fine('p2', 'stored')
    fine('x2', 'stored')
    late.append(lambda: (a.label('L_p2_one'), p2(1), a('s_branch L_b5')))
    a.label('L_p3prep')
    vGA, vVV, vGC, vGS = vVec, vVec + 10, vVec + 20, vVec + 30
    vMB = vE0 + 6
    for q in range(4):
        tab_read(vTW + 4 * q, T_TW3 + q)
    a(f'''
    v_add_u32 v{vMB}, {MODB_L}, v{vL4}
    v_bfe_u32 v36, v{vL}, 2, 2
    v_lshrrev_b32 v37, 4, v{vL}
    v_mad_u32_u24 v36, v37, {NJ}, v36
    v_and_b32 v38, 48, v{vL16}
    v_mul_u32_u24 v36, {T2S}, v36
    v_add_u32 v{vPoll}, v36, v38
    v_mul_u32_u24 v37, {4 * SA}, v37
    v_add_u32 v37, {XB1 + 8 * 361}, v37
    v_cndmask_b32 v{vPairX}, v{vPair}, v37, {sr(sM8)}
    s_and_b64 {sr(sM8)}, {sr(sM8)}, {sr(sLn)}
    s_lshl_b32 s{sU1}, s{sMe}, 6
    s_min_u32 s{sT}, s{sW}, 5
    s_mul_i32 s{sT}, s{sT}, {4 * T2S}
    s_add_u32 s{sU1}, s{sU1}, s{sT}
    ''')
    base_add(sBa, WS, sU1, T2_G)
    base_add(sBb, WS, sU1, T2_G + 4 * NJ * T2S)
    base_add(sXrow, OUTP, sRow)
    a(f's_mul_i32 s{sU0}, s{sMe}, {REC_STRIDE}')
    base_add(sRec, WS, sU0, REC_G)
    a(f'''
    v_mov_b32 v{vE0 + 7}, {hex(f2u(-1.0 / 640))}
    v_mov_b32 v{vM8F}, {hex(f2u(-1e-5))}
    v_mov_b32 v{vE0 + 3}, {KEYL}
    v_mov_b32 v{vE0 + 4}, 1
    ''')

    def p3_setup(part=3):
      raw, GB = Rb, Rb
      if part & 1:
        raw = Rb
        for k in range(0, 24, 2):
            a(f'ds_read2st64_b32 {vr(raw + k, 2)}, v{vMB} offset0:{k} offset1:{k + 1}')
        a(f'ds_read_b32 v{raw + 24}, v{vMB} offset:{24 * 256}')
        a('s_waitcnt lgkmcnt(0)')
        for vec, dst in ((0, vGA), (1, vGS), (2, vGC), (4, vVV)):
            for j in range(5):
                unpack(dst + tm(j, 0), dst + tm(j, 1), raw + 5 * vec + j)
        GB = Rb
        for j in range(5):
            unpack(GB + tm(j, 0), GB + tm(j, 1), raw + 15 + j)
      if part & 2:
        t0, t1, t2 = Rc + 2, Rc + 4, Rc + 6
        dot10(t0, vVV, vGS)
        for h in range(0, 10, 2):
            a(f'v_pk_mul_f32 {vr(vVV + h, 2)}, {vr(vVV + h, 2)}, {vr(vGC + h, 2)}')
        sum10(t1, vVV)
        a(f'v_mov_b32 v{t2}, s{sM1B}')
        for h in range(0, 10, 2):
            a(f'v_pk_mul_f32 {vr(vGC + h, 2)}, {vr(vGC + h, 2)}, {vr(GB + h, 2)}')
            a(f'v_pk_fma_f32 {vr(vGS + h, 2)}, {vr(vGS + h, 2)}, {vr(GB + h, 2)}, {vr(t2, 2)} op_sel:[0,0,0] op_sel_hi:[1,1,0]')
        wave_sum([t1, t0], [sV1, sV2])

    if MATS == 0:
        p3_mats()
    a('s_waitcnt lgkmcnt(0)')
    bar('B5b')
    stamp('B5b done')
    fine('p2', 'B5b')
    fine('x2', 'B5b')
    if P3FIRST == 2:
        p3_setup(1)
    if P3FIRST == 1:
        p3_setup()
    else:
        a(f's_cmp_ge_u32 s{sIdx}, {NJ}')
        a(f's_cselect_b32 s{sCand}, 8, s{sW}')
        a(f's_cmp_lt_u32 s{sCand}, 6')
        a('s_cbranch_scc1 L_p3later')
        p3_setup(2 if P3FIRST else 3)
        a.label('L_p3later')
    fine('x2', 'p3setup')
    if DR2:
        a('s_waitcnt vmcnt(0)')
    fine('x2', 'drained')
    if PACE2:
        a(f's_sleep {PACE2}')
    if not AL2:
        a(f's_cmp_ge_u32 s{sIdx}, {NJ}')
        a('s_cbranch_scc0 L_nob5c')
    bar('B5c')
    a.label('L_nob5c')
    a(f's_cmp_ge_u32 s{sW}, 6')
    a('s_cbranch_scc1 L_b6')
    stamp('T2 poll')
    fine('p2', 'T2 poll')

    def p3_behind():
        a(f's_cmp_lt_u32 s{sCand}, 6')
        a('s_cbranch_scc0 L_p3done')
        p3_setup(2 if P3FIRST else 3)
        a.label('L_p3done')
    tpoll(tl, lanes_s=sr(sLn), between=None if P3FIRST == 1 else p3_behind)
    stamp('T2 in')
    fine('p3', 'T2 in')
    fine('x2', 'T2 in')
    a(f'''
    v_swap_b32 v{Ra + 1}, v{Ra + 4}
    v_swap_b32 v{Ra + 3}, v{Ra + 6}
    ''')
    for n, r in ((0, Ra), (1, Ra + 4), (2, Ra + 2), (3, Ra + 6)):
        mfma16(RD + 4 * n, vM8I, r)
    for n in range(4):
        for jj in range(2):
            a(f'v_cvt_pk_bf16_f32 v{Rb + 2 * n + jj}, v{RD + 4 * n + 2 * jj + 1}, v{RD + 4 * n + 2 * jj}')
        a(f'ds_write_b64 v{vPairX if n == 3 else vPair}, {vr(Rb + 2 * n, 2)} offset:{8 * n}')
    a('s_waitcnt lgkmcnt(0)')
    a.label('L_b6')
    prio(2, True)
    fine('p3', 'pre-B6')
    bar('B6')
    fine('p3', 'B6')
    fine('x2', 'B6')
    for u in range(2):
        for r in (0, 2):
            a(f'ds_read2_b32 {vr(Rb + 4 * u + r, 2)}, v{vSg1 if u else vSg0} offset0:{80 * r} offset1:{80 * r + 80}')
    Y = RD
    if not P3O:
        for ks in range(2):
            a(f's_waitcnt lgkmcnt({2 - 2 * ks})')
            for t in range(2):
                for e in range(2):
                    d = RD + 8 * t + 4 * e
                    mfma32(d, Rb + 4 * ks, vF32 + 16 * t + 8 * (1 - e) + 4 * ks, d if ks else None)
        fine('p3', 'mfma1 issued')
        if PRIO[2] == '1':
            prio(2, False)
        for t, tmp in ((0, Ra), (1, Rc)):
            cmul(tmp, tmp + 4, RD + 8 * t, RD + 8 * t + 4, vTW + 8 * t, vTW + 8 * t + 4, +1, pk=PK[2] == '1' or (PK[2] == '2' and t == 1), n=3)
            pack4(Rb + 4 * t, tmp, tmp + 4, n=3)
            a(f'v_mov_b32 v{Rb + 4 * t + 3}, 0')
        Y = RD
        mfma32(Y, vF20, Rb)
        mfma32(Y + 8, vF20 + 4, Rb)
        mfma32(Y + 4, vF20, Rb + 4)
        mfma32(Y + 8, vF20 + 8, Rb + 4, Y + 8)
    else:
        def m1(t, ks, e):
            d = RD + 8 * t + 4 * e
            mfma32(d, Rb + 4 * ks, vF32 + 16 * t + 8 * (1 - e) + 4 * ks, d if ks else None)
        a('s_waitcnt lgkmcnt(2)')
        m1(0, 0, 0)
        m1(0, 0, 1)
        a('s_waitcnt lgkmcnt(0)')
        m1(0, 1, 0)
        m1(0, 1, 1)
        for ks in range(2):
            for e in range(2):
                m1(1, ks, e)
        fine('p3', 'mfma1 issued')
        B0_, B1_ = vF32, vF32 + 4
        cmul(Ra, Ra + 4, RD, RD + 4, vTW, vTW + 4, +1, pk=False, n=3)
        a(f'v_mov_b32 v{B0_ + 3}, 0')
        a(f'v_mov_b32 v{B1_ + 3}, 0')
        pack4(B0_, Ra, Ra + 4, n=3)
        Yx = Rb
        mfma32(Y, vF20, B0_)
        mfma32(Yx, vF20 + 4, B0_)
        cmul(Rc, Rc + 4, RD + 8, RD + 12, vTW + 8, vTW + 12, +1, pk=False, n=3)
        pack4(B1_, Rc, Rc + 4, n=3)
        mfma32(Y + 4, vF20, B1_)
        mfma32(Y + 8, vF20 + 8, B1_, Yx)
    fine('p3', 'mfma2 issued')
    if PRIO[2] == '2':
        prio(2, False)
    X1 = vXS
    s1, s2, s3, s4 = Ra, Ra + 1, Ra + 2, Ra + 3
    if not PKS:
        for k in range(10):
            a(f'v_fmac_f32 v{X1 + k}, v{Y + k}, v{vGA + k}')
            if k == 1:
                a(f'v_mul_f32 v{s2}, v{X1}, v{X1}')
                a(f'v_mul_f32 v{s3}, v{X1}, v{vVV}')
            if k >= 2:
                a(f'v_add_f32 v{s1}, v{X1 + k - 1}, v{X1 if k == 2 else s1}')
                a(f'v_fmac_f32 v{s2}, v{X1 + k - 1}, v{X1 + k - 1}')
                a(f'v_fmac_f32 v{s3}, v{X1 + k - 1}, v{vVV + k - 1}')
        a(f'v_fmac_f32 v{s3}, v{X1 + 9}, v{vVV + 9}')
        a(f'v_add_f32 v{s1}, v{X1 + 9}, v{s1}')
        a(f'v_fmac_f32 v{s2}, v{X1 + 9}, v{X1 + 9}')
    else:
        p1_, p2_, p3_ = Rc, Rc + 2, Rc + 4
        for h in range(0, 10, 2):
            a(f'v_pk_fma_f32 {vr(X1 + h, 2)}, {vr(Y + h, 2)}, {vr(vGA + h, 2)}, {vr(X1 + h, 2)}')
        a(f'v_pk_mul_f32 {vr(p3_, 2)}, {vr(X1, 2)}, {vr(vVV, 2)}')
        a(f'v_pk_add_f32 {vr(p1_, 2)}, {vr(X1, 2)}, {vr(X1 + 2, 2)}')
        a(f'v_pk_mul_f32 {vr(p2_, 2)}, {vr(X1, 2)}, {vr(X1, 2)}')
        for h in (2, 4, 6, 8):
            a(f'v_pk_fma_f32 {vr(p3_, 2)}, {vr(X1 + h, 2)}, {vr(vVV + h, 2)}, {vr(p3_, 2)}')
            if h > 2:
                a(f'v_pk_add_f32 {vr(p1_, 2)}, {vr(p1_, 2)}, {vr(X1 + h, 2)}')
            a(f'v_pk_fma_f32 {vr(p2_, 2)}, {vr(X1 + h, 2)}, {vr(X1 + h, 2)}, {vr(p2_, 2)}')
        a(f'v_add_f32 v{s3}, v{p3_}, v{p3_ + 1}')
        a(f'v_add_f32 v{s1}, v{p1_}, v{p1_ + 1}')
        a(f'v_add_f32 v{s2}, v{p2_}, v{p2_ + 1}')
    fine('p3', 'partials')
    a(f'''
    v_permlane32_swap_b32 v{s3}, v{s4}
    v_permlane32_swap_b32 v{s1}, v{s2}
    v_add_f32 v{s3}, v{s3}, v{s4}
    v_add_f32 v{s1}, v{s1}, v{s2}
    v_permlane16_swap_b32 v{s1}, v{s3}
    v_add_f32 v{s1}, v{s1}, v{s3}
    ''')
    for c in ('row_ror:8', 'row_ror:4', 'row_ror:2', 'row_ror:1'):
        dpp('v_add_f32', s1, c)
    a(f'''
    v_readlane_b32 s{sU0}, v{s1}, 0
    v_readlane_b32 s{sU2}, v{s1}, 32
    v_readlane_b32 s{sU3}, v{s1}, 16
    ''')
    fine('p3', 'reduced')
    k0 = Rc
    cE = vM8F
    cI, cK, cT, cO = vE0 + 7, vE0 + 3, Ra + 7, vE0 + 4
    m = Ra + 1
    a(f'''
    v_mul_f32 v{m + 2}, s{sU0}, v{cI}
    v_fma_f32 v{k0}, v{m + 2}, v{m + 2}, v{cE}
    v_mov_b32 v{m + 3}, s{sU3}
    v_fmac_f32 v{k0}, s{sU2}, v{cI}
    v_fmac_f32 v{m + 3}, s{sV1}, v{m + 2}
    v_sub_f32 v{m + 1}, v{cE}, v{k0}              ; var
    v_rsq_f32_e64 v{k0}, -v{k0}
    v_mov_b32 v{cT}, s{sTag}
    s_mov_b64 exec, 1
    v_fma_f32 v{m + 3}, v{m + 3}, v{k0}, s{sV2}   ; r
    v_ashrrev_i32 v{m + 4}, 31, v{m + 3}
    v_or_b32 v{m + 4}, 0x80000000, v{m + 4}
    v_xor_b32 v{m + 3}, v{m + 3}, v{m + 4}
    v_and_b32 v{m + 3}, 0xfffff800, v{m + 3}
    v_or_b32 v{m + 3}, s{sKey}, v{m + 3}
    ds_max_u32 v{cK}, v{m + 3}
    ds_add_rtn_u32 v{m + 4}, v{cK}, v{cO} offset:8
    ds_read_b32 v{Ra + 6}, v{cK}
    v_readfirstlane_b32 s{sKey}, v{m + 3}
    s_waitcnt lgkmcnt(0)
    v_cmpx_eq_u32 vcc, 7, v{m + 4}
    s_cbranch_execz L_notlast
    global_store_dwordx2 v{vL4}, {vr(Ra + 6, 2)}, {sr(sRec)} sc1
    L_notlast:
    s_mov_b64 exec, -1
    ''')
    fine('p3', 'key')
    bar('B7')
    fine('p3', 'B7')
    fine('e', 'key poll')
    a(f'''
    ds_read_b32 v{Ra + 6}, v{cK}
    v_sub_f32 v{m + 2}, s{sM1B}, v{m + 2}
    ''')
    rbf(m + 2, f'v{m + 2}')
    rstd_chain(m + 1, k0)
    a(f'''
    v_sub_f32 v{m + 2}, s{sM1B}, v{m + 2}
    v_mul_f32 v{k0 + 1}, v{m + 2}, v{k0}
    ''')
    ZN = vGA
    for h in range(0, 10, 2):
        a(f'v_pk_fma_f32 {vr(ZN + h, 2)}, {vr(X1 + h, 2)}, {vr(k0, 2)}, {vr(k0, 2)} op_sel:[0,0,1] op_sel_hi:[1,0,1]')
    vO = vXS

    def out_math():
        for h in range(0, 10, 2):
            a(f'v_pk_add_f32 {vr(Y + h, 2)}, {vr(X1 + h, 2)}, {vr(vGS + h, 2)}')
        for h in range(0, 10, 2):
            a(f'v_pk_fma_f32 {vr(Y + h, 2)}, {vr(ZN + h, 2)}, {vr(vGC + h, 2)}, {vr(Y + h, 2)}')
        if opt('inject', None):
            if opt('injall', None):
                for k in range(10):
                    a(f'v_mul_f32 v{Y + k}, {hex(f2u(1 + float(opt("inject", 0))))}, v{Y + k}')
            else:
                a(f's_cmp_eq_u32 s{sRow}, 0')
                a('s_cselect_b64 exec, 1, 0')
                a(f'v_add_f32 v{Y}, {hex(f2u(float(opt("inject", 0))))}, v{Y}')
                a('s_mov_b64 exec, -1')
        for j in range(5):
            a(f'v_cvt_pk_bf16_f32 v{vO + j}, v{Y + tm(j, 0)}, v{Y + tm(j, 1)}')
    a(f'''
    s_waitcnt lgkmcnt(0)
    v_readfirstlane_b32 s{sU0}, v{Ra + 6}
    s_cmp_eq_u32 s{sU0}, s{sKey}
    s_cselect_b32 s{sCand}, 1, 0
    s_cbranch_scc1 L_cand
    ''')
    out_math()
    a('s_branch L_keys')
    a.label('L_cand')
    raw, SB, CB, H, Bq = 60, 70, 80, 92, 108
    for k in range(0, 10, 2):
        a(f'ds_read2st64_b32 {vr(raw + k, 2)}, v{vMB} offset0:{5 + k} offset1:{6 + k}')
    for qd in range(2):
        a(f'v_mov_b32 v{H + 4 * qd + 3}, s{sTag}')
    a('s_waitcnt lgkmcnt(0)')
    for j in range(5):
        unpack(SB + tm(j, 0), SB + tm(j, 1), raw + j)
        unpack(CB + tm(j, 0), CB + tm(j, 1), raw + 5 + j)
    for h in range(0, 10, 2):
        a(f'v_pk_fma_f32 {vr(SB + h, 2)}, {vr(ZN + h, 2)}, {vr(CB + h, 2)}, {vr(SB + h, 2)}')
    for j in range(5):
        a(f'v_cvt_pk_bf16_f32 v{H + j + (j >= 3)}, v{SB + tm(j, 0)}, v{SB + tm(j, 1)}')
    for qd in range(2):
        a(f'global_store_dwordx4 v{vL16}, {vr(H + 4 * qd, 4)}, {sr(sRec)} offset:{REC_H2 + 1024 * qd} sc1')
    out_math()

    def out_row():
        for j in range(5):
            a(f'global_store_dword v{vL4}, v{vO + j}, {sr(sXrow)} offset:{256 * j} sc1')
    if OE != 1:
        out_row()
    a.label('L_keys')
    if OE == 1:
        out_row()
    stamp('key out')
    fine('p3', 'key out')
    bar('B7b (candidate stores are out, the helpers have ended)')
    if OE == 0:
        a(f'''
        s_cmp_ge_u32 s{sRi}, 20
        s_cselect_b32 s{sT}, 1, s{sCand}
        s_cmp_lg_u32 s{sT}, 0
        s_cbranch_scc1 L_noout
        ''')
        out_row()
        a('s_branch L_fin')
        a.label('L_noout')
    if OE == 2:
        a(f's_cmp_lg_u32 s{sCand}, 0')
        a('s_cbranch_scc1 L_noout')
        out_row()
        a.label('L_noout')
    vEW, vFW = 48, 88
    vRed, vRd, vRow = 15, 16, 17
    a(f'''
    s_cmp_lt_u32 s{sRi}, 20
    s_cbranch_scc1 L_no_ew
    s_mul_i32 s{sT}, s{sW}, 5120
    s_add_u32 s{sT}, s{sT}, {EW}
    v_and_b32 v{Rb}, 0x3c0, v{vL16}
    v_and_b32 v{Rb + 1}, 24, v{vE0}
    v_add3_u32 v{Rb}, v{Rb}, v{Rb + 1}, s{sT}
    s_mul_i32 s{sT}, s{sW}, 320
    s_add_u32 s{sT}, s{sT}, {FW}
    v_min_u32 v{vE0 + 1}, {39 * 8}, v{vE0}
    v_add_u32 v{vE0 + 1}, s{sT}, v{vE0 + 1}
    ''')
    for j in range(5):
        if j in (2, 4):
            a(f'v_add_u32 v{Rb}, 2048, v{Rb}')
        a(f'ds_read2_b64 {vr(vEW + 20 + 4 * j, 4)}, v{Rb} offset0:{128 * (j & 1)} offset1:{128 * (j & 1) + 4}')
    a(f'''
    v_and_b32 v{vRed}, 3, v{vL}
    v_lshlrev_b32 v{vRed}, 6, v{vRed}
    v_and_b32 v{vRd}, 48, v{vL}
    v_add_u32 v{vRed}, v{vRd}, v{vRed}
    s_lshr_b32 s{sU1}, s{sW}, 2
    s_lshl_b32 s{sU1}, s{sU1}, 8
    s_and_b32 s{sT}, s{sW}, 3
    s_lshl_b32 s{sT}, s{sT}, 2
    s_add_u32 s{sU1}, s{sU1}, s{sT}
    s_add_u32 s{sU1}, s{sU1}, {RED}
    v_add_u32 v{vRed}, s{sU1}, v{vRed}
    v_and_b32 v{vRd}, 0xf0, v{vL16}
    v_bfe_u32 v{vRow}, v0, 2, 6                    ; lane' = (t'>>1)>>1
    v_lshlrev_b32 v{vRow}, 4, v{vRow}
    s_mov_b32 s{sU2}, 0x05040100
    s_mov_b32 s{sU3}, 0x07060302
    v_add_u32 v{vRow}, {REC_G + REC_H2}, v{vRow}
    v_mov_b32 v18, 0xffffff00
    s_mul_i32 s{sU1}, s{sX}, 12
    s_add_u32 s{sU1}, s{sU1}, s{sRi}
    s_mul_i32 s{sU1}, s{sU1}, {PY_STRIDE}
    s_mul_i32 s{sT}, s{sW}, 640
    s_add_u32 s{sU1}, s{sU1}, s{sT}
    ''')
    base_add(sBb, WS, sU1, PY_G - 20 * PY_STRIDE)
    a('s_waitcnt lgkmcnt(0)')
    if KD == 1:
        bar('B7c')
    for j in range(5):
        r0 = vEW + 20 + 4 * j
        for c in range(4):
            a(f'v_perm_b32 v{vEW + 4 * j + c}, v{r0 + 2 + c // 2}, v{r0 + c // 2}, s{sU3 if c & 1 else sU2}')
    for k in range(4):
        a(f'v_mov_b32 v{36 + k}, 0')

    def fw_unpack():
        a(f's_cmp_ge_u32 s{sW}, 4')
        a('s_cbranch_scc1 L_no_fw')
        for u in range(16):
            if u == 8:
                a('s_waitcnt lgkmcnt(0)')
            a(f'ds_read_b64 {vr(vFW + 32 + 2 * u, 2)}, v{vE0 + 1} offset:{1280 * u}')
        a('s_waitcnt lgkmcnt(0)')
        for k in range(32):
            unpack(vFW + 2 * k, vFW + 2 * k + 1, vFW + 32 + k)
        a.label('L_no_fw')
    if not FWL:
        fw_unpack()
    a.label('L_no_ew')
    a(f's_cmp_eq_u32 s{sCand}, 0')
    a('s_cbranch_scc1 L_nobase')
    a(f'''
    v_mov_b32 v40, v{vO}
    v_mov_b32 v41, v{vO + 1}
    v_mov_b32 v42, v{vO + 2}
    v_mov_b32 v43, s{sTag}
    v_mov_b32 v44, v{vO + 3}
    v_mov_b32 v45, v{vO + 4}
    v_mov_b32 v47, s{sTag}
    ''')

    def base_out():
        a(f'global_store_dwordx4 v{vL16}, v[40:43], {sr(sRec)} offset:{REC_BASE} sc1')
        a(f'global_store_dwordx4 v{vL16}, v[44:47], {sr(sRec)} offset:{REC_BASE + 1024} sc1')
    if BL:
        a(f's_cmp_lt_u32 s{sRi}, 20')
        a('s_cbranch_scc0 L_nobase')
    a('s_waitcnt vmcnt(0)')
    base_out()
    a.label('L_nobase')
    a(f'''
    s_cmp_lt_u32 s{sRi}, 20
    s_cbranch_scc1 L_fin
    v_mov_b32 v{Rb + 2}, {KEYL + 4}
    {'s_barrier' if KD == 2 else ''}
    ''')
    a.label('L_b8')
    fine('e', 'pre-B8')
    a('s_barrier                                   ; B8')
    a(f'''
    ds_read_b32 v{Rb + 3}, v{Rb + 2}
    s_movk_i32 s{sT}, {REC_STRIDE}
    s_waitcnt lgkmcnt(0)
    v_and_b32 v{Rb + 4}, 255, v{Rb + 3}
    v_mad_u32_u24 v{vRow}, v{Rb + 4}, s{sT}, v{vRow}
    ''')
    stamp('B8 done (winner)')
    fine('e', 'B8+')

    def late_out():
        if OE == 0:
            a(f's_cmp_lg_u32 s{sCand}, 0')
            a('s_cbranch_scc1 L_noout2')
            out_row()
            a.label('L_noout2')
        if FWL:
            fw_unpack()
        fine('e', 'behind')
        if OE == 0:
            a(f's_cmp_lg_u32 s{sCand}, 0')
            a('s_cbranch_scc1 L_noout4')
            a('s_waitcnt vmcnt(5)')
            a.label('L_noout3')
            late.append(lambda: (a.label('L_noout4'), a('s_waitcnt vmcnt(0)'), a('s_branch L_noout3')))
        else:
            a('s_waitcnt vmcnt(0)')
    poll([f'global_load_dwordx4 v[20:23], v{vRow}, {sr(WS)} sc1',
          f'global_load_dwordx4 v[24:27], v{vRow}, {sr(WS)} offset:1024 sc1'], [23, 27], [30, 32], empty='word',
         between=late_out, younger=63)
    if BL:
        a(f's_cmp_lg_u32 s{sCand}, 0')
        a('s_cbranch_scc1 L_base2')
        a.label('L_base3')
        late.append(lambda: (a.label('L_base2'), base_out(), a('s_branch L_base3')))
    stamp('row in')
    fine('e', 'row in')
    acc = 36
    for j in range(5):
        for c in (0, 2, 1, 3):
            a(f'v_dot2c_f32_bf16 v{acc + c}, v{vEW + 4 * j + c}, v{20 + j + (j >= 3)}')
    a(f'''
    v_permlane32_swap_b32 v36, v38
    v_permlane32_swap_b32 v37, v39
    v_pk_add_f32 v[36:37], v[36:37], v[38:39]
    v_permlane16_swap_b32 v36, v37
    v_add_f32 v36, v36, v37
    ''')
    for c in ('row_ror:8', 'row_ror:4'):
        dpp('v_add_f32', acc, c)
    a(f'''
    s_mov_b32 exec_lo, 0x000f000f
    s_mov_b32 exec_hi, 0x000f000f
    ds_write_b32 v{vRed}, v{acc}
    s_mov_b64 exec, -1
    s_cmp_ge_u32 s{sW}, 4
    s_waitcnt lgkmcnt(0)
    ''')
    fine('e', 'pre-B9')
    bar('B9')
    fine('e', 'B9')
    a(f'''
    s_cbranch_scc1 L_e_done
    ds_read_b128 v[20:23], v{vRd} offset:{RED}
    ds_read_b128 v[24:27], v{vRd} offset:{RED + 256}
    s_waitcnt lgkmcnt(0)
    v_pk_add_f32 v[20:21], v[20:21], v[22:23]
    v_pk_add_f32 v[24:25], v[24:25], v[26:27]
    v_add_f32 v20, v20, v21
    v_add_f32 v24, v24, v25
    v_mul_f32 v21, 0xbfb8aa3b, v20
    v_exp_f32 v21, v21
    v_mul_f32 v20, v20, v24
    v_add_f32 v21, 1.0, v21
    v_rcp_f32 v21, v21
    v_mul_f32 v20, v20, v21
    ''')
    fine('e', 'gu')
    sG = 8
    for u in range(16):
        a(f'v_readlane_b32 s{sG + u}, v20, {u}')
    for u in range(16):
        for hh in range(2):
            w_ = vr(vFW + 4 * u + 2 * hh, 2)
            g_ = sr(sG + (u & ~1))
            d_ = vr(36 + 2 * hh, 2)
            if u == 0:
                a(f'v_pk_mul_f32 {d_}, {w_}, {g_} op_sel:[0,0] op_sel_hi:[1,0]')
            else:
                a(f'v_pk_fma_f32 {d_}, {w_}, {g_}, {d_} {BC1 if u & 1 else BC0}')
    for k in range(4):
        a(f'v_and_or_b32 v{36 + k}, v{36 + k}, v18, s{sTB + k}')
    a('s_mov_b32 exec_hi, 0xff')
    a(f'global_store_dwordx4 v{vL16}, v[36:39], {sr(sBb)} sc1')
    a('s_mov_b64 exec, -1')
    stamp('PY out')
    fine('e', 'PY out')
    a('s_waitcnt vmcnt(0)')
    a.label('L_e_done')
    bar('B10')
    a.label('L_fin')
    stamp('end')
    fine('e', 'end')
    if FINE:
        a('s_waitcnt lgkmcnt(0)')
    dump_stamps()
    a.label('L_end')
    a('s_endpgm')
    flush_late()


sF1, sF2, sPb, sGw, sWb = 56, 58, 60, 62, 64


def publish(P='H0'):
    a(f'''
    ds_read_b128 v[40:43], v28 offset:{RED}
    ds_read_b128 v[44:47], v28 offset:{RED + 16}
    v_lshl_add_u32 v36, s{sBlk}, 8, v{vL4}
    s_waitcnt lgkmcnt(0)
    v_pk_add_f32 v[40:41], v[40:41], v[42:43]
    v_pk_add_f32 v[44:45], v[44:45], v[46:47]
    v_add_f32 v40, v35, v40
    v_pk_add_f32 v[40:41], v[40:41], v[44:45]
    v_add_f32 v40, v40, v41
    v_and_or_b32 v40, v40, v33, v34
    global_store_dword v36, v40, {sr(WS)} sc1
    ''')
    stamp('published', P)


def w_addr():
    a(f'''
    s_mul_i32 s{sU1}, s{sIdx}, 15
    s_min_u32 s{sU1}, s{sU1}, 306
    s_add_u32 s{sT}, s{sU1}, s{sX}
    s_and_b32 s{sT}, s{sT}, 1
    s_sub_u32 s{sU1}, s{sU1}, s{sT}
    s_mul_i32 s{sU0}, s{sX}, 321
    s_add_u32 s{sU1}, s{sU1}, s{sU0}
    s_lshl_b32 s{sU1}, s{sU1}, 1
    v_lshrrev_b32 v90, 1, v{vL}
    v_mul_u32_u24 v90, 5136, v90
    v_lshlrev_b32 v91, 1, v{vL}
    v_xor_b32 v91, v{vL16}, v91
    v_and_b32 v91, 16, v91
    v_add3_u32 v100, v90, v91, s{sU1}
    ''')


def w_gather(arr, lds):
    for n in range(8):
        a(f's_mov_b32 m0, {lds + 1024 * n}')
        a(f'global_load_lds_dwordx4 v100, {sr(arr)}')
        if n < 7:
            a(f'v_add_u32 v100, {32 * 5136}, v100')


def mask_lanes(n):
    if n >= 64:
        return
    if n > 32:
        a(f's_mov_b32 exec_hi, {hex((1 << (n - 32)) - 1)}')
    else:
        a(f's_mov_b64 exec, {hex((1 << n) - 1)}')


def warm_addr_w():
    a(f'''
    s_sub_u32 s{sU3}, s{sRi}, {12 if W20 else 0}
    s_mul_i32 s{sU3}, s{sU3}, {78 if W20 else 48}
    s_movk_i32 s{sU2}, 0x2aab
    s_mul_i32 s{sU1}, s{sX}, 642
    s_movk_i32 s{sT}, 5136
    ''')
    for n in range(2 if W20 else 1):
        a(f'''
        v_add_u32 v90, s{sU3}, v{vL}
        v_add_u32 v90, {39 * n}, v90
        v_min_u32 v90, 1535, v90
        v_mul_u32_u24 v91, s{sU2}, v90
        v_lshrrev_b32 v91, 16, v91
        v_mul_u32_u24 v92, 6, v91
        v_sub_u32 v92, v90, v92
        v_lshlrev_b32 v92, 7, v92
        v_min_u32 v92, 638, v92
        v_add_u32 v92, s{sU1}, v92
        v_mad_u32_u24 v92, v91, s{sT}, v92
        v_and_b32 v{120 + n}, -4, v92
        ''')


def ffn_parts(slot):
    return [(n, k) for n in range(3) if S_W[n] == slot for k in range(2 if slot == 7 else 1)]


def warm_addr_f(h, slot):
    f, per, lanes = {0: (0, 30, 30), 7: (NJ, 96, 48), 8: (0, 48, 48)}[slot]
    if not ffn_parts(slot):
        return
    a(f'''
    s_sub_u32 s{sU0}, s{sRi}, {f}
    s_mul_i32 s{sU3}, s{sU0}, {per}
    s_mul_i32 s{sU1}, s{sX}, 384
    s_movk_i32 s{sU2}, 0x5556
    s_movk_i32 s{sT}, {3072 - 384}
    s_mul_i32 s{sU0}, s{sX}, 245760
    ''')
    for n, k in ffn_parts(slot):
        d = 130 + 2 * n + k
        a(f'''
        v_add_u32 v90, s{sU3}, v{vL}
        v_add_u32 v90, {lanes * k}, v90
        v_min_u32 v90, 959, v90
        v_add_u32 v90, {960 * (n if n < 2 else h)}, v90
        ''')
        if n < 2:
            a(f'''
            v_mul_u32_u24 v91, s{sU2}, v90
            v_lshrrev_b32 v91, 16, v91
            v_lshl_add_u32 v90, v90, 7, s{sU1}
            v_mad_u32_u24 v{d}, v91, s{sT}, v90
            ''')
        else:
            a(f'v_lshl_add_u32 v{d}, v90, 7, s{sU0}')


def warm_issue(h, slot, sel=None):
    if slot == 0:
        L = newlabel('w20')
        if W20:
            assert not ffn_parts(0)
            a(f's_cmp_lt_u32 s{sRi}, 12')
            a(f's_cbranch_scc1 {L}')
        mask_lanes(39 if W20 else 48)
        for n in range(2 if W20 else 1):
            a(f'global_load_dword v125, v{120 + n}, {sr(W_R if h else W_I)}')
        a.label(L)
    ps = ffn_parts(slot) if sel is None else sel
    if ps:
        mask_lanes(30 if slot == 0 else 48)
    for n, k in ps:
        a(f'global_load_dword v125, v{130 + 2 * n + k}, {sr(W_D if n == 2 else (W_G if h else W_U))}')
    a('s_mov_b64 exec, -1')


def e_addr(mat):
    a(f'''
    s_max_u32 s{sU1}, s{sRi}, 20
    s_mul_i32 s{sU0}, s{sX}, 12
    s_add_u32 s{sU0}, s{sU0}, s{sU1}
    s_sub_u32 s{sU0}, s{sU0}, 20
    s_mul_i32 s{sU1}, s{sU0}, 20480
    s_lshl_b32 s{sU0}, s{sU0}, 5
    v_lshrrev_b32 v128, 1, v{vL}
    v_mul_u32_u24 v128, 3072, v128
    v_and_b32 v90, 16, v{vL16}
    v_add_u32 v128, v128, v90
    ''')
    base_add(sF1, mat, sU0)
    base_add(sGw, W_D, sU1, 10240 if mat == W_U else 0)


def if_e(f):
    L = newlabel('ne')
    a(f's_cmp_lt_u32 s{sRi}, 20')
    a(f's_cbranch_scc1 {L}')
    f()
    a.label(L)


def e_gather(half, n0, n1):
    for n in range(n0, n1):
        a(f's_mov_b32 m0, {EW + (n % 4 + 4 * half) * 5120 + (n // 4) * 1024}')
        a(f'global_load_lds_dwordx4 v128, {sr(sF1)}')
        if n < 19:
            a(f'v_add_u32 v128, {32 * 3072}, v128')


def wd_load(half):
    for n in range(10):
        if n % 4 == 0:
            a(f's_mov_b32 m0, {FW + half * 10240 + n * 1024}')
            a(f'v_add_u32 v90, {1024 * n}, v{vL16}')
        a(f'global_load_lds_dwordx4 v90, {sr(sGw)} offset:{1024 * (n % 4)} {INPOL if S_W[2] == 9 else str()}')


def touch_small():
    if 'k' in TCH:
        a(f's_mul_i32 s{sU0}, s{sMe}, {REC_STRIDE}')
        base_add(sBa, WS, sU0, REC_G)
        a(f'''
        s_mov_b64 exec, 0xff
        global_store_dwordx4 v{vL16}, v[20:23], {sr(sBa)} sc1
        s_mov_b64 exec, -1
        ''')
    if 'p' in TCH:
        def f():
            a(f'''
            s_mul_i32 s{sU1}, s{sX}, 12
            s_add_u32 s{sU1}, s{sU1}, s{sRi}
            s_mul_i32 s{sU1}, s{sU1}, {PY_STRIDE}
            ''')
            base_add(sBa, WS, sU1, PY_G - 20 * PY_STRIDE)
            a(f'''
            global_store_dwordx4 v{vL16}, v[20:23], {sr(sBa)} sc1
            global_store_dwordx4 v{vL16}, v[20:23], {sr(sBa)} offset:1024 sc1
            s_mov_b32 exec_hi, 0
            global_store_dwordx4 v{vL16}, v[20:23], {sr(sBa)} offset:2048 sc1
            s_mov_b64 exec, -1
            ''')
        if_e(f)


def finalizer():
    a(f'''
    s_cmp_ge_u32 s{sRi}, 30
    s_cbranch_scc1 L_hx0
    ds_read_b32 v21, v62
    s_mul_i32 s{sU2}, s{sX}, 10
    s_add_u32 s{sU2}, s{sU2}, s{sRi}
    s_sub_u32 s{sU2}, s{sU2}, 20                   ; f
    v_mov_b32 v26, 0
    v_mov_b32 v27, 0
    s_waitcnt lgkmcnt(0)
    v_readfirstlane_b32 s{sU0}, v21
    s_and_b32 s{sU1}, s{sU0}, 255
    s_mul_i32 s{sU1}, s{sU1}, {REC_STRIDE}
    ''')
    base_add(sBa, WS, sU1, REC_G + REC_BASE)
    done = [f'global_load_dwordx4 v[32:35], v26, {sr(sBa)} sc1']
    a(f'''
    v_and_b32 v20, 1, v{vL}
    v_lshrrev_b32 v21, 4, v{vL}
    v_lshl_add_u32 v20, v20, 2, v21
    s_lshl_b32 s{sT}, s{sU2}, 3
    v_add_u32 v20, s{sT}, v20
    s_lshr_b32 s{sCand}, s{sU2}, 4                 ; j
    s_cmp_ge_u32 s{sCand}, 3
    s_cselect_b32 s{sT}, 3, 0
    s_sub_u32 s{sCand}, s{sCand}, s{sT}            ; dword inside the quad
    s_mul_i32 s{sT}, s{sT}, 342
    s_and_b32 s{sT}, s{sT}, 1024
    v_bfe_u32 v26, v20, 1, 6
    v_lshl_add_u32 v26, v26, 4, s{sT}
    {done[0] if not BL else ''}
    v_lshlrev_b32 v20, 1, v20                      ; 2d
    v_add_u32 v21, {MODB_L + 3840}, v20
    v_mov_b32 v22, 0
    ds_read_u16_d16_hi v22, v21                    ; gb[d]
    s_and_b32 s{sU1}, s{sU0}, 0x7ff
    s_mul_i32 s{sU1}, s{sU1}, 1280
    ''')
    base_add(sXrow, OUTP, sU1)
    a(f'''
    s_and_b32 s{sU1}, s{sU0}, 0xfffff800
    s_or_b32 s{sU1}, s{sU1}, 0x400
    s_xor_b32 s{sU3}, s{sU1}, 0x80000000
    s_not_b32 s{sT}, s{sU1}
    s_cmp_lt_i32 s{sU1}, 0
    s_cselect_b32 s{sU1}, s{sU3}, s{sT}
    v_mov_b32 v28, s{sU1}
    ''')
    a(f'''
    v_mul_f32 v28, 0xbfb8aa3b, v28
    v_exp_f32 v28, v28
    v_add_f32 v28, 1.0, v28
    v_rcp_f32 v28, v28
    ''')
    a(f'''
    v_lshrrev_b32 v29, 1, v{vL}
    v_mul_u32_u24 v29, {PY_STRIDE}, v29
    v_and_b32 v30, 16, v{vL16}
    v_add_u32 v29, v29, v30
    v_add_u32 v30, {32 * PY_STRIDE}, v29
    v_add_u32 v31, {64 * PY_STRIDE}, v29
    s_lshl_b32 s{sU2}, s{sU2}, 5
    ''')
    base_add(sBb, WS, sU2, PY_G)
    a('s_waitcnt lgkmcnt(0)')
    a('v_mul_f32 v22, v22, v28')
    bar('B9')

    def base_in(younger):
        poll(done, [35], [], empty='word', issued=True, younger=younger)
        a(f'''
        s_cmp_eq_u32 s{sCand}, 1
        s_cselect_b64 vcc, -1, 0
        v_cndmask_b32 v27, v32, v33, vcc
        s_cmp_eq_u32 s{sCand}, 2
        s_cselect_b64 vcc, -1, 0
        v_cndmask_b32 v27, v27, v34, vcc
        v_and_b32 v32, 16, v{vL}
        v_lshrrev_b32 v27, v32, v27
        v_lshlrev_b32 v27, 16, v27
        ''')
    if not BL:
        base_in(0)
    bar('B10')
    if PYD:
        a(done[0])
        a('s_waitcnt vmcnt(0)')
    stamp('PY poll', 'H0')
    if BL:
        a(done[0])
    poll([f'global_load_dwordx4 {vr(36 + 4 * n, 4)}, v{29 + n}, {sr(sBb)} sc1' for n in range(3)],
         list(range(36, 48)), [48, 49], empty='tag', between=(lambda: base_in(3)) if BL else None)
    a(f'''
    v_pk_add_f32 v[36:37], v[36:37], v[40:41]
    v_pk_add_f32 v[38:39], v[38:39], v[42:43]
    v_pk_add_f32 v[36:37], v[36:37], v[44:45]
    v_pk_add_f32 v[38:39], v[38:39], v[46:47]
    v_permlane32_swap_b32 v36, v38
    v_permlane32_swap_b32 v37, v39
    v_pk_add_f32 v[36:37], v[36:37], v[38:39]
    v_permlane16_swap_b32 v36, v37
    v_add_f32 v36, v36, v37
    ''')
    for c in ('row_ror:8', 'row_ror:4', 'row_ror:2'):
        dpp('v_add_f32', 36, c)
    a(f'''
    v_fma_f32 v36, v36, v22, v27
    v_cvt_pk_bf16_f32 v36, v36, v36
    s_mov_b32 exec_lo, 0x00030003
    s_mov_b32 exec_hi, 0x00030003
    global_store_short v20, v36, {sr(sXrow)} {FINPOL}
    s_mov_b64 exec, -1
    ''')


def helper_tail(h, P, red_load, red_work, modf_load, modf_work):
    bar('BT')
    if BG:
        if h == 1:
            a(f's_waitcnt vmcnt({BG - 1})')
        bar('BG')
    bar('BP')
    if WPOS == 1:
        warm_issue(h, 0)
    if h == 0:
        is_b()
        a('s_cbranch_scc0 L_pl')
        publish()
        a.label('L_pl')
    a(f's_cmp_ge_u32 s{sIdx}, {NJ}')
    a(f's_cbranch_scc1 L_idle{h}')
    bar('B2')
    red_load()
    w_gather(W_R if h else W_I, WST + (0 if h else 8192))
    bar('B3')
    a('s_waitcnt vmcnt(0)')
    stamp('W in', P)
    if RE:
        red_work()
    bar('B3b')
    if AL1:
        bar('B3c')
    if h == 0:
        touch_small()
    if not RE:
        red_work()
    bar('B4')
    a('s_waitcnt vmcnt(0)')
    modf_load()
    if EG3:
        if_e(lambda: e_gather(1 - h, 0, EG3))
    bar('B5')
    if h == 0:
        a(f's_cmp_lt_u32 s{sRi}, 20')
        a(f's_waitcnt vmcnt({EG3})')
        a('s_cbranch_scc0 L_h0_m')
        a('s_waitcnt vmcnt(0)')
        a.label('L_h0_m')
    modf_work()
    bar('B5b')
    if AL2:
        bar('B5c')
    if S_W[2] == 8:
        warm_addr_f(h, 8)
    if W8 == 0:
        bar('B6')
    if S_W[2] == 8:
        a(f's_cmp_lt_u32 s{sRi}, 20')
        a(f's_cbranch_scc0 L_w8{h}')
        warm_issue(h, 8)
        a.label(f'L_w8{h}')
    if W8 == 1:
        bar('B6')
    if_e(lambda: (e_gather(1 - h, EG3, 20), wd_load(1 - h) if S_W[2] != 8 else None))
    if h == 0:
        a(f'''
        s_cmp_lg_u32 s2, 8
        s_cbranch_scc1 L_h0_ne
        v_mov_b32 v26, {EPOCH_G}
        s_mov_b64 exec, 1
        global_store_dword v26, v27, {sr(WS)} sc1
        s_mov_b64 exec, -1
        ''')
        a.label('L_h0_ne')
    a.label(f'L_hend{h}')
    a(f'''
    v_mul_u32_u24 v60, {REC_STRIDE}, v{vL}
    v_add_u32 v60, {REC_G + 128 * h * REC_STRIDE}, v60
    v_add_u32 v61, {64 * REC_STRIDE}, v60
    v_mov_b32 v62, {KEYL + 4}
    v_lshlrev_b32 v63, 7, v{vL}
    v_add_u32 v63, {REC_G + REC_H2}, v63
    s_movk_i32 s{sU0}, {REC_STRIDE}
    s_cmp_lt_u32 s{sRi}, 20
    ''')
    bar('B7')
    a('s_waitcnt vmcnt(0)')
    a(f's_cbranch_scc1 L_hx{h}')
    if S_W[2] == 8:
        assert FWL and IWD
        wd_load(1 - h)
    kl = [f'global_load_dwordx2 v[64:65], v60, {sr(WS)} sc1', f'global_load_dwordx2 v[66:67], v61, {sr(WS)} sc1']
    if KP == 1:
        bar('B7b')
    if KD:
        bar('B7c')
    stamp('key poll', P)
    poll(kl, [65, 67], [68, 69], empty='word', between=(lambda: bar('B7b')) if KP == 0 else None)
    a('v_max_u32 v64, v64, v66')
    for c in ('row_ror:8', 'row_ror:4', 'row_ror:2', 'row_ror:1'):
        dpp('v_max_u32', 64, c)
    a(f'''
    s_mov_b32 exec_lo, 0x00010001
    s_mov_b32 exec_hi, 0x00010001
    ds_max_u32 v62, v64
    s_mov_b64 exec, -1
    s_waitcnt lgkmcnt(0)
    ''')
    bar('B8')
    if h == 0:
        finalizer()
    a.label(f'L_hx{h}')
    stamp('end', P)
    dump_stamps(P)
    a('s_endpgm')
    a.label(f'L_idle{h}')
    warm_addr_f(h, 7)
    ps = ffn_parts(7)
    can = [f'global_load_dword v113, v110, {sr(WS)} sc1']
    if h == 1:
        a(f'''
        v_add_u32 v110, s{sIdx}, v{vL}
        v_and_b32 v110, 7, v110
        v_mul_u32_u24 v110, {NJ}, v110
        v_lshrrev_b32 v111, 3, v{vL}
        v_mad_u32_u24 v110, v111, 5, v110
        v_mul_u32_u24 v110, {T2S}, v110
        s_lshl_b32 s{sU0}, s{sMe}, 6
        s_add_u32 s{sU0}, s{sU0}, {T2_G + CANJ * T2S + 60}
        v_add_u32 v110, s{sU0}, v110
        ''')
        assert CANJ + 5 * max(NCAN // 8 - 1, 0) < NJ
    bar('B2')
    red_load()
    if h == 1:
        a('s_waitcnt vmcnt(0)')
        mask_lanes(NCAN)
        a(can[0])
        a('s_mov_b64 exec, -1')
    warm_issue(h, 7, ps[:EARLY])
    bar('B3')
    if RE and h == 0:
        a(f's_waitcnt vmcnt({len(ps[:EARLY])})')
        red_work()
        red_work = lambda: None
    bar('B3b')
    ieg = IEG
    if ISEQ == 0:
        warm_issue(h, 7, ps[EARLY:])
        if h == 0:
            a(f's_waitcnt vmcnt({len(ps)})')
            red_work()
            touch_small()
        nd = sum(1 for n, k in ps[EARLY:] if n == 2)
        a(f's_waitcnt vmcnt({nd + (NT if h == 0 else 0)})')
        stamp('warm in', P)
        e_gather(1 - h, 0, MF)
        modf_load()
        e_gather(1 - h, MF, IEG)
        if IWD == 0:
            wd_load(1 - h)
        if h == 0:
            a(f's_waitcnt vmcnt({IEG - MF + 10 * (IWD == 0)})')
        modf_work()
        bar('B5b')
    else:
        assert EARLY == 2 and S_W[0] == 7
        if h == 0:
            a(f's_waitcnt vmcnt({EARLY})')
            red_work()
            touch_small()
        a(f's_waitcnt vmcnt({NT if h == 0 else 0})')
        stamp('warm in', P)
        e_gather(1 - h, 0, 10)
        if ISEQ == 2:
            a('s_waitcnt vmcnt(0)')
            warm_issue(h, 7, ps[EARLY:])
        if h == 0:
            if ISEQ == 1:
                a('s_waitcnt vmcnt(0)')
            modf_load()
            a('s_waitcnt vmcnt(0)')
        modf_work()
        bar('B5b')
        if ISEQ == 1:
            warm_issue(h, 7, ps[EARLY:])
        ieg = max(IEG, 10)
        if ieg > 10:
            a('s_waitcnt vmcnt(0)')
            e_gather(1 - h, 10, ieg)
    a('s_waitcnt vmcnt(0)')
    stamp('ffn in', P)
    if h == 1:
        poll(can, [113], [], mask=NCAN, empty='word')
        stamp('can', P)
    bar('B5c')
    bar('B6')
    e_gather(1 - h, ieg, 20)
    if IWD and S_W[2] != 8:
        wd_load(1 - h)
    a(f's_branch L_hend{h}')
    flush_late()


def helper0():
    a.label('L_h0')
    a(f's_mov_b32 s{sHI}, 0xffff0000')
    a(f'''
    v_mov_b32 v20, 0
    v_mov_b32 v21, 0
    v_mov_b32 v22, 0
    v_mov_b32 v23, 0
    v_mov_b32 v28, {KEYL}
    ds_write_b128 v28, v[20:23]
    ''')
    blk_id()
    warm_addr_w()
    warm_addr_f(0, 0)
    a('s_waitcnt lgkmcnt(0)')
    epoch_load()
    bar('B0 / B1')
    if PB:
        is_a()
        a('s_cbranch_scc0 L_h0_v')
        bar('B1b')
        a.label('L_h0_v')
    if WPOS == 0:
        warm_issue(0, 0)
    stamp('kernarg', 'H0')
    e_addr(W_U)
    w_addr()
    a('s_waitcnt lgkmcnt(0)')
    epoch_tag()
    tag_bytes()
    pub_setup(sTag)
    a(f's_lshl_b32 s{sU2}, s{sBlk}, 8')
    base_add(sPb, WS, sU2)
    a(f'''
    v_mov_b32 v27, s{sTag}
    v_lshlrev_b32 v29, 3, v{vL}
    v_add_u32 v29, {MODB_L}, v29
    v_add_u32 v30, {MODF_G}, v{vL16}
    v_add_u32 v31, {MODF_G + 4096}, v{vL16}
    v_add_u32 v32, {MODF_G + 8192}, v{vL16}
    ''')
    red = [f'global_load_dwordx4 v[40:43], v{vL16}, {sr(sPb)} sc1']
    modf = [f'global_load_dwordx4 {vr(40 + 4 * n, 4)}, v{30 + n // 4}, {sr(WS)} offset:{1024 * (n % 4)} sc1' for n in range(10)]

    def in_w1(k):
        L = newlabel('nr')
        a(f'''
        s_sub_u32 s{sT}, s{sBlk}, 80
        s_cmp_lt_u32 s{sT}, 160
        s_cbranch_scc0 {L}
        s_and_b32 s{sT}, s{sBlk}, 3
        s_cbranch_scc1 {L}
        ''')
        if k == 0:
            a(red[0])
            a.label(L)
            return
        poll(red, [40, 41, 42, 43], [44], empty='tag', issued=True, younger=63)
        a(f'''
        v_mov_b32 v44, v40
        v_mov_b32 v45, v41
        v_mov_b32 v46, v42
        v_mov_b32 v47, v43
        s_lshr_b32 s{sU0}, s{sBlk}, 2
        s_sub_u32 s{sT}, s{sU0}, 40
        s_cmp_lt_u32 s{sT}, 10
        s_cselect_b32 s{sU1}, 1.0, 0
        s_lshl_b32 s{sU0}, s{sU0}, 8
        s_add_u32 s{sU0}, s{sU0}, {MODF_G - 20 * 256}
        ''')
        for sw in ('32', '16'):
            for r in range(4):
                a(f'v_permlane{sw}_swap_b32 v{40 + r}, v{44 + r}')
            a('v_pk_add_f32 v[40:41], v[40:41], v[44:45]')
            a('v_pk_add_f32 v[42:43], v[42:43], v[46:47]')
            if sw == '32':
                for r in range(4):
                    a(f'v_mov_b32 v{44 + r}, v{40 + r}')
        a('v_cvt_pk_bf16_f32 v44, v40, v41')
        a('v_cvt_pk_bf16_f32 v45, v42, v43')
        unpack(40, 41, 44)
        unpack(42, 43, 45)
        for r in range(4):
            a(f'v_add_f32 v{40 + r}, s{sU1}, v{40 + r}')
        a(f'''
        v_cvt_pk_bf16_f32 v44, v40, v41
        v_cvt_pk_bf16_f32 v45, v42, v43
        v_mov_b32 v47, s{sTag}
        v_add_u32 v48, s{sU0}, v{vL16}
        s_mov_b64 exec, 0xffff
        global_store_dwordx4 v48, v[44:47], {sr(WS)} sc1
        s_mov_b64 exec, -1
        ''')
        stamp('reduced', 'H0')
        a.label(L)

    def in_w2(k):
        if k == 0:
            for ld in modf:
                a(ld)
            return
        poll(modf, [43 + 4 * n for n in range(10)], list(range(80, 90)), empty='words', issued=True, younger=63)
        for n in range(10):
            a(f'ds_write_b64 v29, {vr(40 + 4 * n, 2)} offset:{512 * n}')
        a('s_waitcnt lgkmcnt(0)')
        stamp('modb in', 'H0')
    helper_tail(0, 'H0', lambda: in_w1(0), lambda: in_w1(2), lambda: in_w2(0), lambda: in_w2(1))


def helper1():
    a.label('L_h1')
    a(f'''
    s_getpc_b64 {sr(sBa)}
    L_pc:
    s_add_u32 s{sBb}, s{sBa}, L_tables-L_pc
    s_addc_u32 s{sBb + 1}, s{sBa + 1}, 0
    ''')

    def tabs(q0, q1):
        for q in range(q0, q1):
            if q % 4 == 0 or q == q0:
                a(f's_mov_b32 m0, {TAB + (q & ~3) * 1024}')
                a(f'v_add_u32 v20, {(q & ~3) * 1024}, v{vL16}')
            a(f'global_load_lds_dwordx4 v20, {sr(sBb)} offset:{1024 * (q % 4)}')

    def tab2():
        tabs(NT1, NTAB)
        a(f'''
        s_mov_b32 m0, {WR_L}
        global_load_lds_dwordx4 v{vL16}, {sr(B_WR)}
        s_mov_b64 exec, 0xffff
        global_load_lds_dwordx4 v{vL16}, {sr(B_WR)} offset:1024
        s_mov_b64 exec, -1
        ''')
        return NTAB - 14 + 2

    if AT == 2:
        tabs(0, NT1)
    warm_addr_w()
    warm_addr_f(1, 0)
    a('s_waitcnt lgkmcnt(0)')
    epoch_load()
    if AT == 0:
        blk_id()
        is_a()
        a('s_cbranch_scc0 L_h1_t')
        bar('B1')
        if PB:
            bar('B1b')
        a.label('L_h1_t')
    if AT < 2:
        tabs(0, NT1)
    if HB:
        e_addr(W_G)
        w_addr()
    if AT == 0:
        is_a()
        a('s_cbranch_scc1 L_h1_v')
    bar('B0 / B1')
    if AT and PB:
        blk_id()
        is_a()
        a('s_cbranch_scc0 L_h1_v')
        bar('B1b')
    a.label('L_h1_v')
    tab2()
    if WPOS == 0:
        warm_issue(1, 0)
    if not HB:
        e_addr(W_G)
        w_addr()
    a('s_waitcnt lgkmcnt(0)')
    epoch_tag()
    a(f's_waitcnt vmcnt({NTAB - NT1 + 2 + (1 + len(ffn_parts(0))) * (WPOS == 0 and not W20)})')
    stamp('tab in', 'H1')
    nop = lambda: None
    helper_tail(1, 'H1', nop, nop, nop, nop)


prologue()
main_path()
helper0()
helper1()
body = a.finish()

hdr = open(f'cdna_kernels/{NAME}.s.ref').read().split('; Override launch')[0]
T = tables()
tab = []
flat = T.reshape(-1)
for k in range(0, flat.size, 8):
    tab.append('.long ' + ','.join('0x%08x' % v for v in flat[k:k + 8]))

launch = f'; @launch grid=(256,1,1) block=(640,1,1) lds={LDS_BYTES}'
pre_code = pre_kd = ''
if PRE:
    launch = f'; @launch kernel=pre_kernel grid=({PRE},1,1) block=(64,1,1) lds=0\n; @launch kernel={NAME}_kernel grid=(256,1,1) block=(640,1,1) lds={LDS_BYTES}'
    pre_code = '.globl pre_kernel\n.p2align 8\n.type pre_kernel,@function\npre_kernel:\n    s_endpgm\n'
    pre_kd = '''.p2align 6
.amdhsa_kernel pre_kernel
  .amdhsa_next_free_vgpr 8
  .amdhsa_next_free_sgpr 16
  .amdhsa_accum_offset 8
  .amdhsa_group_segment_fixed_size 0
  .amdhsa_kernarg_size 104
  .amdhsa_user_sgpr_count 2
  .amdhsa_user_sgpr_kernarg_segment_ptr 1
  .amdhsa_system_sgpr_workgroup_id_x 1
.end_amdhsa_kernel
'''
src = hdr + f'''{launch}
.amdgcn_target "amdgcn-amd-amdhsa--gfx950"
.text
{pre_code}.globl {NAME}_kernel
.p2align 8
.type {NAME}_kernel,@function
{NAME}_kernel:
{body}
.p2align 8
.type L_tables,@object
L_tables:
''' + '\n'.join(tab) + f'''
.size L_tables, {NTAB * 1024}
.fill (8192 - ((. - {NAME}_kernel) & 8191)) & 8191, 1, 0
L_tables_end:
.section .rodata,"a"
.p2align 6
.amdhsa_kernel {NAME}_kernel
  .amdhsa_next_free_vgpr 168
  .amdhsa_next_free_sgpr 102
  .amdhsa_accum_offset 168
  .amdhsa_group_segment_fixed_size 0
  .amdhsa_kernarg_size 104
  .amdhsa_user_sgpr_count 2
  .amdhsa_user_sgpr_kernarg_segment_ptr 1
  .amdhsa_system_sgpr_workgroup_id_x 1
.end_amdhsa_kernel
{pre_kd}'''
open(OUT, 'w').write(src)
print('wrote', OUT, 'lds', LDS_BYTES, 'lines', len(a.lines), 'nops', a.nnops)
```

```python
import sys, struct
import numpy as np
from asmdsl import Asm

NAME = 'adaLN_cond__spectral_gfnet__moe_arch_mod__prompt'
DIAG = '--diag' in sys.argv or '--dbgdiag' in sys.argv
DBGDIAG = '--dbgdiag' in sys.argv
OUT = [a for a in sys.argv[1:] if not a.startswith('--')]
OUT = OUT[0] if OUT else f'cdna_kernels/{NAME}.s'
SPIN = 60000


def opt(name, default):
    for x in reversed(sys.argv):
        if x.startswith(f'--{name}='):
            return x.split('=', 1)[1]
    return default


PROBE = opt('probe', None)
if PROBE:
    PROBE = PROBE.replace('_', ' ')
PROBEWG = int(opt('probewg', 8))
FINE = opt('fine', None)
if PROBE or FINE:
    DIAG = True
PRE = None
INPOL = 'nt'
S_W = [int(x) for x in opt('sw', '777')]
EG3 = int(opt('eg3', 10))
PACE1 = int(opt('pace1', 0))
PACE2 = int(opt('pace2', 0))
PK = opt('pk', '110')
P3FIRST = int(opt('p3first', 1))
WFIRST = int(opt('wfirst', 1))
DR1 = int(opt('dr1', 0))
DR2 = int(opt('dr2', 0))
BGWAIT = int(opt('bgwait', 9))
EARLY = int(opt('early', 2))
MATS = int(opt('mats', 2))
IEG = int(opt('ieg', 16))
IWD = int(opt('iwd', 1))
MF = int(opt('mf', 10))
MR = int(opt('mr', 0))
BLOAD = int(opt('bload', 2))
P2ORD = int(opt('p2ord', 1))
GLATE = int(opt('glate', 0))
B0 = int(opt('b0', 3))
FWL = int(opt('fwl', 0))
KP = int(opt('kp', 1))
PF = int(opt('pf', 0))
XL = int(opt('xl', 3))
WC = int(opt('wc', 0))
KD = int(opt('kd', 0))
ISEQ = int(opt('iseq', 0))
RE = int(opt('re', 1))
FINPOL = opt('finpol', '')
PYD = int(opt('pyd', 0))
TCH = opt('tch', 'mkp')
NT = ('k' in TCH) + 3 * ('p' in TCH)
PKS = int(opt('pks', 1))
P3O = int(opt('p3o', 0))
PRIO = opt('prio', '000')
AL1 = int(opt('al1', 0))
AL2 = int(opt('al2', 0))
OE = int(opt('oe', 1))
BL = int(opt('bl', 0))
PL = int(opt('pl', 1))
AW = int(opt('aw', 1))
W8 = int(opt('w8', 0))
TB2 = int(opt('tb2', 0))
MW = int(opt('mw', 0))
XMAP = int(opt('xmap', '0x35762410'), 16)
EX = int(opt('ex', 0))
AT = int(opt('at', 1))
AX = int(opt('ax', 1))
WPOS = int(opt('wpos', 0))
SC_ = int(opt('sc', 1))
XP = int(opt('xp', 0))
BG = int(opt('bg', 0))
MT = int(opt('mt', 1))
S1 = int(opt('s1', 3))
PB = int(opt('pb', 1))
GB = int(opt('gb', 0))
W20 = int(opt('w20', 0))
HB = int(opt('hb', 0))
KCAN = int(opt('kcan', 5))
K1 = int(opt('k1', 0))
K2 = int(opt('k2', 0))
NCAN = int(opt('ncan', 8))
CANJ = int(opt('canj', 12))
NJ = 22
T1S = 8 * NJ * 64 + int(opt('t1pad', 0))
T2S = 16384 + int(opt('t2pad', 256))

MODA_G = 0
MODF_G = 61440
EPOCH_G = 73728
PY_G = 0x20000
PY_STRIDE = 2688
REC_G = 0x80000
REC_STRIDE = 4224
REC_H2 = 128
REC_BASE = 128 + 2048
T1_G = 0x400000
T2_G = 0x800000
DIAG_G = 0xC00000

NTAB = 26
TAB = 0
RED = TAB + NTAB * 1024
KEYL = RED + 2048
XB2 = KEYL + 64
SA = 736
XB1 = XB2 + 20480
MODA_L = XB1 + 16 * SA
MODB_L = MODA_L + 5120
WR_L = MODB_L + 5120
WST = WR_L + 2048
EW = WST + 16384
FW = EW + 40960
STL = FW + 20480
LDS_BYTES = STL + 256
assert LDS_BYTES <= 163840, LDS_BYTES

T_F20C, T_F20S, T_TW1, T_F32A, T_ADR, T_TW3, T_F20I, T_F32B, T_F16, T_TW2 = 0, 1, 2, 6, 10, 11, 15, 18, 22, 24
NT1 = 11


def f2u(x):
    return struct.unpack('<I', struct.pack('<f', float(x)))[0]


def bf(x):
    u = f2u(x)
    return ((u + 0x7FFF + ((u >> 16) & 1)) >> 16) & 0xFFFF


def pk(lo, hi):
    return bf(lo) | (bf(hi) << 16)


ALPHA = {16: 1.1328, 20: 1.4294, 32: 1.62445}


def cs(num, den):
    a = 2 * np.pi * (num % den) / den
    c, s = np.cos(a), np.sin(a)
    if abs(c) < 1e-12: c = 0.0
    if abs(s) < 1e-12: s = 0.0
    al = ALPHA.get(den, 1.0)
    return c * al, s * al


def kaof(x):
    ka = 3 * (x >> 2) + (x & 3)
    return ka if (x & 3) < 3 and ka <= 10 else None


def tables():
    T = np.zeros((NTAB, 64, 4), np.uint32)
    for l in range(64):
        i, g = l & 15, l >> 4
        c8, s8 = [0.0] * 8, [0.0] * 8
        for j in range(5):
            if kaof(i) is not None:
                c, s = cs((4 * j + g) * kaof(i), 20)
                c8[j], s8[j] = c, -s
        for d in range(4):
            T[T_F20C, l, d] = pk(c8[2 * d], c8[2 * d + 1])
            T[T_F20S, l, d] = pk(s8[2 * d], s8[2 * d + 1])
        for t in range(2):
            for r in range(4):
                c, s = cs((8 * g + 2 * r + t) * (kaof(i) or 0), 640)
                T[T_TW1 + 2 * t, l, r] = f2u(c)
                T[T_TW1 + 2 * t + 1, l, r] = f2u(s)
                c, s = cs((2 * i + t) * (kaof(4 * g + r) or 0), 640)
                T[T_TW3 + 2 * t, l, r] = f2u(c)
                T[T_TW3 + 2 * t + 1, l, r] = f2u(s)
        kbof = lambda e: e if e < 16 else 47 - e
        for tile in range(2):
            for ks in range(2):
                for r in range(4):
                    c, s = cs(kbof(2 * i + tile) * (8 * g + 2 * r + ks), 32)
                    T[T_F32A + tile * 2 + ks, l, r] = pk(c, s)
                    c, s = cs((2 * i + tile) * kbof(8 * g + 2 * r + ks), 32)
                    T[T_F32B + tile * 2 + ks, l, r] = pk(c, s)
        ka_ = kaof(i)
        k0 = 0 if ka_ is None else (160 * g + ka_ if g < 2 else 160 * g - 300 - ka_)
        T[T_ADR, l, 0] = 8 * k0
        T[T_ADR, l, 1] = 0x8000 if i < 8 else 0x80000000
        T[T_ADR, l, 2] = 0 if g < 2 else 0x8000
        T[T_ADR, l, 3] = 0x8000 if g < 2 else 0
        for r in range(4):
            c, s = cs(i * (4 * g + r), 16)
            T[T_F16, l, r] = pk(c, s)
            T[T_F16 + 1, l, r] = pk(-s, c)
            c, s = cs(i * (4 * g + r), 256)
            T[T_TW2, l, r] = f2u(c)
            T[T_TW2 + 1, l, r] = f2u(s)
            ka = kaof(4 * g + r)
            if ka is not None:
                a1 = 4 * (i & 3) + (i >> 2)
                c, s = cs(a1 * ka, 20)
                T[T_F20I, l, r] = pk(c, -s)
                c, s = cs((16 + (i >> 2)) * ka, 20)
                if (i & 3) == 0:
                    T[T_F20I + 1, l, r] = pk(c, -s)
                if (i & 3) == 1:
                    T[T_F20I + 2, l, r] = pk(c, -s)
    return T


def vr(a, n=1):
    return f'v{a}' if n == 1 else f'v[{a}:{a + n - 1}]'


def sr(a, n=2):
    return f's{a}' if n == 1 else f's[{a}:{a + n - 1}]'


sW, sX, sIdx, sMe, sT = 3, 4, 5, 6, 7
A_X, W_R, W_I, B_WR, W_G, W_U, W_D = 8, 10, 12, 16, 18, 20, 22
C_, W_MOD, OUTP, DBG, WS = 24, 26, 28, 30, 32
sBa, sBb, sBc = 34, 36, 38
sCnt = 40
sM1B = 41
sU0, sU1, sU2, sU3 = 42, 43, 46, 47
sM7 = 44
sRow = 48
sKey = 49
sV1, sV2 = 50, 51
sHI = 52
sCand = 53
sBlk = 54
sRec = 56
sTag = 55
sRi = sIdx
sGU = 56
sXrow = 72
sTS = 74

vL, vL16, vL4, vS, vPoll = 1, 2, 3, 4, 5
vM8F, vM8I = 6, 8
vXS = 10
Ra, Rb, RD, Rc = 20, 28, 36, 52
vF32 = 60
vTW = 92
vF20 = 108
vVec = 120
vE0 = 160
vXR = 150


a = Asm()
stamps = {}
NST = 24


def stamp(name, path='M', wait=True):
    if not DIAG or FINE:
        return
    if opt('only', None) and not (name == 'start' or any(name.startswith(x.replace('_', ' ')) for x in opt('only', '').split(','))):
        return
    if PROBE and (path != 'M' or not (name == 'start' or name.startswith(PROBE))):
        return
    lst = stamps.setdefault(path, [])
    if name not in lst:
        lst.append(name)
    k = lst.index(name)
    assert k < NST
    a(f's_memrealtime s[100:101]')
    a('s_waitcnt lgkmcnt(0)')
    a(f's_mov_b32 s{sTS + k}, s100')


fines = []


def fine(group, name):
    if FINE != group:
        return
    if name not in fines:
        fines.append(name)
    k = fines.index(name)
    assert k < 12
    a(f's_memtime {sr(sTS + 2 * k)}')


def dump_stamps(path='M'):
    if not DIAG:
        return
    if PROBE:
        if path != 'M':
            return
        a(f'''
        s_cmp_lg_u32 s2, {PROBEWG}
        s_cbranch_scc1 L_end
        s_cmp_lg_u32 s{sW}, 0
        s_cbranch_scc1 L_end
        ''')
        if PROBE == 'fix':
            a(f's_movk_i32 s{sU0}, 6000')
        elif PROBE == 'rel':
            RX = int(opt('rx', 1))
            a(f'''
            v_mov_b32 v20, {DIAG_G}
            global_load_dword v21, v20, {sr(WS)} sc1
            global_load_dword v22, v20, {sr(WS)} offset:{128 * RX} sc1
            s_waitcnt vmcnt(0)
            v_sub_u32 v21, v22, v21
            v_add_u32 v21, 100, v21
            v_readfirstlane_b32 s{sU0}, v21
            s_lshl_b32 s{sU0}, s{sU0}, 5
            s_add_u32 s{sU0}, s{sU0}, 6000
            s_min_u32 s{sU0}, s{sU0}, 100000
            ''')
        elif PROBE == 'xcc':
            a(f's_getreg_b32 s{sU0}, hwreg(HW_REG_XCC_ID)')
            a(f's_and_b32 s{sU0}, s{sU0}, 15')
            a(f's_mul_i32 s{sU0}, s{sU0}, 1000')
            a(f's_add_u32 s{sU0}, s{sU0}, 6000')
        else:
            a(f's_sub_u32 s{sU0}, s{sTS + 1}, s{sTS}')
            a(f's_lshl_b32 s{sU0}, s{sU0}, 4')
            a(f's_add_u32 s{sU0}, s{sU0}, 6000')
            a(f's_min_u32 s{sU0}, s{sU0}, 100000')
        a(f'''
        L_probe:
        s_memrealtime s[100:101]
        s_waitcnt lgkmcnt(0)
        s_sub_u32 s{sU1}, s100, s{sTS}
        s_cmp_lt_u32 s{sU1}, s{sU0}
        s_cbranch_scc1 L_probe
        ''')
        return
    if DBGDIAG:
        if path != 'M':
            return
        a('v_mov_b32 v20, 0')
        a('s_mov_b64 exec, 1')
        a(f's_not_b32 s{sU0}, s{sTS}')
        a(f'v_mov_b32 v22, s{sU0}')
        a(f'global_atomic_umax v20, v22, {sr(DBG)} offset:4 sc1')
        ks = [0] + list(range(2, len(stamps['M'])))
        for n, k in enumerate(ks[:14]):
            a(f'v_mov_b32 v{23 + n}, s{sTS + k}')
            a(f'global_atomic_umax v20, v{23 + n}, {sr(DBG)} offset:{8 + 4 * n} sc1')
        print('dbg slots:', [(2 + n, stamps['M'][k]) for n, k in enumerate(ks[:14])])
        return
    a(f'''
    s_lshl_b32 s{sU0}, s2, 11
    s_lshl_b32 s{sU1}, s{sW}, 7
    s_add_u32 s{sU0}, s{sU0}, s{sU1}
    s_memtime s[100:101]
    ''')
    base_add(sBa, WS, sU0, DIAG_G)
    a('v_mov_b32 v20, 0')
    a('s_mov_b64 exec, 1')
    for k in range(0, NST, 2):
        a(f'v_mov_b32 v22, s{sTS + k}')
        a(f'v_mov_b32 v23, s{sTS + k + 1}')
        a(f'global_store_dwordx2 v20, v[22:23], {sr(sBa)} offset:{4 * k}')
        a('s_nop 1')
    a('s_waitcnt lgkmcnt(0)')
    a('s_sub_u32 s100, s100, s98')
    a('v_mov_b32 v22, s100')
    a(f'global_store_dword v20, v22, {sr(sBa)} offset:112')
    a('s_getreg_b32 s42, hwreg(HW_REG_XCC_ID)')
    a('s_getreg_b32 s43, hwreg(HW_REG_HW_ID)')
    a('v_mov_b32 v22, s42')
    a('v_mov_b32 v23, s43')
    a(f'global_store_dwordx2 v20, v[22:23], {sr(sBa)} offset:120')


def base_add(dst, src, off_s=None, imm=0):
    if off_s is not None:
        if imm:
            a(f's_add_u32 s{sT}, s{off_s}, {imm}')
            off_s = sT
        a(f's_add_u32 s{dst}, s{src}, s{off_s}')
    else:
        a(f's_add_u32 s{dst}, s{src}, {imm}')
    a(f's_addc_u32 s{dst + 1}, s{src + 1}, 0')


lblc = [0]
late = []


def flush_late():
    for f in late:
        f()
    late.clear()


def newlabel(p):
    lblc[0] += 1
    return f'L_{p}_{lblc[0]}'


def poll(loads, regs, tmp, mask=None, empty='eq -1', between=None, younger=0, issued=False):
    L, D, Cc = newlabel('poll'), newlabel('polld'), newlabel('pollc')
    if mask is not None:
        mask_lanes(mask)
    if not issued:
        for ld in loads:
            a(ld)
    a(f's_mov_b32 s{sCnt}, {SPIN}')
    if between is not None:
        between()
    if younger < 63:
        a(f's_waitcnt vmcnt({younger})')
    a.label(Cc)

    def retry():
        a.label(L)
        a(f's_sub_u32 s{sCnt}, s{sCnt}, 1')
        a(f's_cbranch_scc1 {D}')
        for ld in loads:
            a(ld)
        a('s_waitcnt vmcnt(0)')
        a(f's_branch {Cc}')
    late.append(retry)
    if empty == 'tag':
        for n, r in enumerate(regs):
            a(f'v_xor_b32 v{r}, s{sTB + (n & 3)}, v{r}')
        rem = list(regs)
        for c in tmp:
            a(f'v_or3_b32 v{c}, v{rem[0]}, v{rem[1]}, v{rem[2]}')
            rem = rem[3:]
        n = 0
        while len(rem) >= 2:
            c = tmp[n % len(tmp)]
            a(f'v_or3_b32 v{c}, v{c}, v{rem[0]}, v{rem[1]}')
            rem = rem[2:]
            n += 1
        t = tmp[0]
        rem = rem + list(tmp[1:])
        while rem:
            if len(rem) >= 2:
                a(f'v_or3_b32 v{t}, v{t}, v{rem[0]}, v{rem[1]}')
                rem = rem[2:]
            else:
                a(f'v_or_b32 v{t}, v{t}, v{rem[0]}')
                rem = rem[1:]
        a(f'v_and_b32 v{t}, 0xff, v{t}')
        empty = 'ne 0'
    elif empty == 'word':
        if len(regs) == 1:
            t = regs[0]
            empty = f'ne s{sTag}'
        else:
            assert len(regs) == 2
            t = tmp[0]
            a(f'v_xor_b32 v{t}, v{regs[0]}, v{regs[1]}')
            a(f'v_xor_b32 v{tmp[1]}, s{sTag}, v{regs[0]}')
            a(f'v_or_b32 v{t}, v{t}, v{tmp[1]}')
            empty = 'ne 0'
    elif empty == 'words':
        for n, r in enumerate(regs):
            a(f'v_xor_b32 v{tmp[n]}, s{sTag}, v{r}')
        t = tmp[0]
        rem = list(tmp[1:len(regs)])
        while rem:
            if len(rem) >= 2:
                a(f'v_or3_b32 v{t}, v{t}, v{rem[0]}, v{rem[1]}')
                rem = rem[2:]
            else:
                a(f'v_or_b32 v{t}, v{t}, v{rem[0]}')
                rem = rem[1:]
        empty = 'ne 0'
    elif len(regs) == 1:
        t = regs[0]
    else:
        rem = list(regs)
        outs = []
        k = 0
        while len(rem) >= 3 and k < len(tmp):
            a(f'v_max3_u32 v{tmp[k]}, v{rem[0]}, v{rem[1]}, v{rem[2]}')
            outs.append(tmp[k])
            rem = rem[3:]
            k += 1
        rem = outs[1:] + rem
        t = outs[0] if outs else None
        if t is None:
            t = tmp[0]
            a(f'v_max_u32 v{t}, v{rem[0]}, v{rem[1]}')
            rem = rem[2:]
        while rem:
            if len(rem) >= 2:
                a(f'v_max3_u32 v{t}, v{t}, v{rem[0]}, v{rem[1]}')
                rem = rem[2:]
            else:
                a(f'v_max_u32 v{t}, v{t}, v{rem[0]}')
                rem = rem[1:]
    a(f'v_cmpx_{empty.split()[0]}_u32 vcc, {empty.split()[1]}, v{t}')
    a(f's_cbranch_execnz {L}')
    a.label(D)
    a('s_mov_b64 exec, -1')


def epoch_load():
    a(f's_load_dword s{sTag}, {sr(WS)}, {EPOCH_G}')


def epoch_tag(d=None):
    d = d or sTag
    a(f'''
    s_and_b32 s{d}, s{sTag}, 0x7f7f7f7f
    s_add_u32 s{d}, s{d}, 0x01010101
    s_or_b32 s{d}, s{d}, 0x80808080
    ''')


sTB = 68


def tag_bytes():
    for k in range(4):
        a(f's_bfe_u32 s{sTB + k}, s{sTag}, {hex(0x80000 | (8 * k))}')


def dpp(op, r, ctrl, rm='0xf'):
    a(f'{op}_dpp v{r}, v{r}, v{r} {ctrl} row_mask:{rm} bank_mask:0xf')


def wave_sum(regs, dst_s, op='v_add_f32'):
    for c in ('row_ror:8', 'row_ror:4', 'row_ror:2', 'row_ror:1'):
        for r in regs:
            dpp(op, r, c)
    for r in regs:
        dpp(op, r, 'row_bcast:15', '0xa')
    for r in regs:
        dpp(op, r, 'row_bcast:31', '0xc')
    for r, s in zip(regs, dst_s):
        a(f'v_readlane_b32 s{s}, v{r}, 63')


def rbf(dst, src):
    a(f'v_cvt_pk_bf16_f32 v{dst}, {src}, {src}')
    a(f'v_and_b32 v{dst}, s{sHI}, v{dst}')


def unpack(dlo, dhi, src):
    a(f'v_lshlrev_b32 v{dlo}, 16, v{src}')
    a(f'v_and_b32 v{dhi}, s{sHI}, v{src}')


def mfma32(d, x, y, c=None):
    a(f'v_mfma_f32_16x16x32_bf16 {vr(d, 4)}, {vr(x, 4)}, {vr(y, 4)}, {vr(c, 4) if c is not None else 0}')


def mfma16(d, x, y):
    a(f'v_mfma_f32_16x16x16_bf16 {vr(d, 4)}, {vr(x, 2)}, {vr(y, 2)}, 0')


def cmul(tr, ti, re, im, c, s, sign, pk=True, n=4, head=0):
    if not pk:
        for r in range(n):
            a(f'v_mul_f32 v{tr + r}, v{re + r}, v{c + r}')
        for r in range(n):
            a(f'v_mul_f32 v{ti + r}, v{im + r}, v{c + r}')
        for r in range(n):
            if sign > 0:
                a(f'v_fma_f32 v{tr + r}, -v{im + r}, v{s + r}, v{tr + r}')
                a(f'v_fmac_f32 v{ti + r}, v{re + r}, v{s + r}')
            else:
                a(f'v_fmac_f32 v{tr + r}, v{im + r}, v{s + r}')
                a(f'v_fma_f32 v{ti + r}, -v{re + r}, v{s + r}, v{ti + r}')
        return
    nr = 'neg_lo:[1,0,0] neg_hi:[1,0,0]'
    for h in (0, 2):
        if head:
            a(f'v_mul_f32 v{tr + h}, v{re + h}, v{c + h}')
            a(f'v_mul_f32 v{tr + h + 1}, v{re + h + 1}, v{c + h + 1}')
        else:
            a(f'v_pk_mul_f32 {vr(tr + h, 2)}, {vr(re + h, 2)}, {vr(c + h, 2)}')
    for h in (0, 2):
        a(f'v_pk_mul_f32 {vr(ti + h, 2)}, {vr(im + h, 2)}, {vr(c + h, 2)}')
    for h in (0, 2):
        a(f'v_pk_fma_f32 {vr(tr + h, 2)}, {vr(im + h, 2)}, {vr(s + h, 2)}, {vr(tr + h, 2)} {nr if sign > 0 else ""}')
    for h in (0, 2):
        a(f'v_pk_fma_f32 {vr(ti + h, 2)}, {vr(re + h, 2)}, {vr(s + h, 2)}, {vr(ti + h, 2)} {nr if sign < 0 else ""}')


def pack4(d, lo, hi, step=1, n=4):
    for r in range(n):
        a(f'v_cvt_pk_bf16_f32 v{d + r * step}, v{lo + r}, v{hi + r}')


def tab_read(dst, q):
    a(f'ds_read_b128 {vr(dst, 4)}, v{vL16} offset:{TAB + q * 1024}')


def tm(j, t):
    return 4 * t + j if j < 4 else 8 + t


def read_tmajor(dst, vaddr, off):
    o = off // 256
    assert off % 256 == 0 and o + 6 < 256
    for t in range(2):
        a(f'ds_read2st64_b32 {vr(dst + 4 * t, 2)}, v{vaddr + t} offset0:{o} offset1:{o + 2}')
        a(f'ds_read2st64_b32 {vr(dst + 4 * t + 2, 2)}, v{vaddr + t} offset0:{o + 4} offset1:{o + 6}')
    a(f'ds_read_b64 {vr(dst + 8, 2)}, v{vaddr} offset:{off + 2048}')


def silu(dst, src, tmp):
    for d, s, t in zip(dst, src, tmp):
        a(f'v_mul_f32 v{t}, 0xbfb8aa3b, v{s}')
    for t in tmp:
        a(f'v_exp_f32 v{t}, v{t}')
    for t in tmp:
        a(f'v_add_f32 v{t}, 1.0, v{t}')
    for t in tmp:
        a(f'v_rcp_f32 v{t}, v{t}')
    for d, s, t in zip(dst, src, tmp):
        a(f'v_mul_f32 v{d}, v{s}, v{t}')


def swap_reduce8(acc):
    for k in range(4):
        a(f'v_permlane32_swap_b32 v{acc + k}, v{acc + k + 4}')
    a(f'v_pk_add_f32 {vr(acc, 2)}, {vr(acc, 2)}, {vr(acc + 4, 2)}')
    a(f'v_pk_add_f32 {vr(acc + 2, 2)}, {vr(acc + 2, 2)}, {vr(acc + 6, 2)}')
    for k in range(2):
        a(f'v_permlane16_swap_b32 v{acc + k}, v{acc + k + 2}')
    a(f'v_pk_add_f32 {vr(acc, 2)}, {vr(acc, 2)}, {vr(acc + 2, 2)}')


BC0 = 'op_sel:[0,0,0] op_sel_hi:[1,0,1]'
BC1 = 'op_sel:[0,1,0] op_sel_hi:[1,1,1]'


def prologue():
    a(f'''
    s_cmp_ge_u32 s2, 256
    s_cbranch_scc1 L_end
    ''')
    if DIAG:
        for k in range(NST):
            a(f's_mov_b32 s{sTS + k}, 0')
        a('s_memtime s[98:99]')
        for p in ('M', 'H0', 'H1'):
            stamps[p] = ['start']
        stamp('start')
    a(f'''
    s_load_dwordx16 s[8:23], s[0:1], 0
    s_load_dwordx8 s[24:31], s[0:1], 64
    s_load_dwordx2 s[32:33], s[0:1], 96
    v_lshrrev_b32 v20, 6, v0
    s_and_b32 s{sX}, s2, 7
    s_lshr_b32 s{sIdx}, s2, 3
    v_readfirstlane_b32 s{sW}, v20
    v_and_b32 v{vL}, 63, v0
    s_lshl_b32 s{sMe}, s{sX}, 5
    s_add_u32 s{sMe}, s{sMe}, s{sIdx}
    v_lshlrev_b32 v{vL16}, 4, v{vL}
    v_lshlrev_b32 v{vL4}, 2, v{vL}
    s_cmp_eq_u32 s{sW}, 9
    s_cbranch_scc1 L_h1
    s_cmp_eq_u32 s{sW}, 8
    s_cbranch_scc1 L_h0
    s_cmp_eq_u32 s{sRi}, 30
    s_cbranch_scc0 L_nopf
    s_cmp_ge_u32 s{sW}, (L_tables_end-{NAME}_kernel)/8192
    s_cbranch_scc1 L_nopf
    s_getpc_b64 {sr(sBa)}
    L_pc0:
    s_sub_u32 s{sBa}, s{sBa}, L_pc0-{NAME}_kernel
    s_subb_u32 s{sBa + 1}, s{sBa + 1}, 0
    v_lshlrev_b32 v21, 7, v0
    global_load_dword v157, v21, {sr(sBa)}
    L_nopf:
    ''')


def xloads():
    for j in range(5):
        a(f'global_load_dword v{vXR + j}, v156, {sr(A_X)} offset:{256 * j} {INPOL}')


def blk_id():
    if EX == 7:
        a(f'''
        s_mul_i32 s{sBlk}, s{sIdx}, 7
        s_add_u32 s{sBlk}, s{sBlk}, s{sX}
        s_add_u32 s{sT}, s{sIdx}, 225
        s_cmp_eq_u32 s{sX}, 0
        s_cselect_b32 s{sBlk}, s{sT}, s{sBlk}
        s_sub_u32 s{sBlk}, s{sBlk}, 1
        ''')
        return
    if EX:
        a(f'''
        s_lshl_b32 s{sT}, s{sX}, 2
        s_lshr_b32 s{sT}, {hex(XMAP)}, s{sT}
        s_and_b32 s{sT}, s{sT}, 7
        s_cmp_lt_u32 s{sIdx}, {80 // EX}
        s_cselect_b32 s{sBlk}, {80 // EX}, {30 - 80 // EX}
        s_cselect_b32 s{sU0}, 0, {80 - 80 // EX}
        s_cmp_lt_u32 s{sT}, {EX}
        s_cselect_b32 s{sBlk}, s{sBlk}, 30
        s_cselect_b32 s{sU0}, s{sU0}, 0
        s_mul_i32 s{sBlk}, s{sBlk}, s{sT}
        ''')
    else:
        a(f'''
        s_cmp_lt_u32 s{sIdx}, 10
        s_cselect_b32 s{sBlk}, 10, 20
        s_cselect_b32 s{sU0}, 0, 70
        s_mul_i32 s{sBlk}, s{sBlk}, s{sX}
        ''')
    a(f'''
    s_add_u32 s{sBlk}, s{sBlk}, s{sU0}
    s_add_u32 s{sBlk}, s{sBlk}, s{sIdx}
    s_cmp_lt_u32 s{sIdx}, 30
    s_cselect_b32 s{sBlk}, s{sBlk}, 0xf1
    ''')


def is_a():
    a(f's_cmp_lt_u32 s{sBlk}, 80')


def is_b():
    a(f's_sub_u32 s{sT}, s{sBlk}, 80')
    a(f's_cmp_lt_u32 s{sT}, 160')


def pub_setup(tag):
    a(f'''
    v_lshlrev_b32 v28, 5, v{vL}
    v_lshlrev_b32 v34, 3, v{vL}
    v_and_b32 v34, 24, v34
    v_bfe_u32 v34, s{tag}, v34, 8
    v_mov_b32 v33, 0xffffff00
    s_sub_u32 s{sU0}, s{sBlk}, 40
    s_cmp_lt_u32 s{sU0}, 40
    s_cselect_b32 s{sU1}, 1.0, 0
    s_and_b32 s{sU0}, s{sBlk}, 3
    s_cselect_b32 s{sU1}, 0, s{sU1}
    v_mov_b32 v35, s{sU1}
    ''')


GV = (130, 142, 48, 56, 158, 159)


def gemv_addr():
    vw, vc, acc, tmp, vo, voc = GV
    blk_id()
    a(f'''
    v_lshrrev_b32 v{voc}, 3, v{vL}
    v_mad_u32_u24 v{voc}, v20, 20, v{voc}
    v_and_b32 v21, 3, s{sBlk}
    v_mul_u32_u24 v21, 160, v21
    v_add_u32 v{voc}, v{voc}, v21
    v_lshrrev_b32 v21, 2, s{sBlk}
    v_and_b32 v{vo}, 0x70, v{vL16}
    v_lshl_add_u32 v{vo}, v21, 7, v{vo}
    v_mul_u32_u24 v21, 7680, v{voc}
    v_add_u32 v{vo}, v{vo}, v21
    v_lshlrev_b32 v{voc}, 1, v{voc}
    v_lshl_add_u32 v156, v20, 8, s{sMe}
    v_mul_u32_u24 v156, 1280, v156
    v_add_u32 v156, v156, v{vL4}
    ''')
    for k in range(4):
        a(f'v_mov_b32 v{vw + 8 + k}, 0')
    a(f'v_mov_b32 v{vc + 2}, 0')


def gemv_issue(scalar=False):
    vw, vc, acc, tmp, vo, voc = GV
    def cl_():
        for j in range(3):
            if j == 2:
                a('s_mov_b32 exec_hi, 0')
            a(f'global_load_ushort v{vc + j}, v{voc}, {sr(C_)} offset:{16 * j}')
        a('s_mov_b64 exec, -1')

    def wl_():
        for j in range(3):
            if j == 2:
                a('s_mov_b32 exec_hi, 0')
            a(f'global_load_dwordx4 {vr(vw + 4 * j, 4)}, v{vo}, {sr(W_MOD)} {INPOL}')
            if j < 2:
                a(f'v_add_u32 v{vo}, {8 * 7680}, v{vo}')
        a('s_mov_b64 exec, -1')
    if scalar:
        wl_()
        a(f'''
        s_and_b32 s{sU0}, s{sBlk}, 3
        s_lshl_b32 s{sU0}, s{sU0}, 3
        s_add_u32 s{sU0}, s{sU0}, s{sW}
        s_mul_i32 s{sU0}, s{sU0}, 40
        s_load_dwordx8 s[56:63], {sr(C_)}, s{sU0}
        s_add_u32 s{sU0}, s{sU0}, 32
        s_load_dwordx2 s[64:65], {sr(C_)}, s{sU0}
        ''')
        return
    cl_()
    wl_()


def gemv_compute(role, after, at_c=None, scalar=False):
    nj = 3
    vw, vc, acc, tmp, vo, voc = GV
    if role == 'B':
        acc = 150
    if scalar:
        a(f'v_lshlrev_b32 v{tmp}, 1, v{vL}')
        a(f'v_and_b32 v{tmp}, 16, v{tmp}')
        a('s_waitcnt lgkmcnt(0)')
        for g in range(4):
            if g == 0:
                a('s_mov_b64 exec, 0xffff')
            else:
                a('s_lshl_b64 exec, exec, 16')
            for j in range(3 if g < 2 else 2):
                a(f'v_lshrrev_b32 v{vc + j}, v{tmp}, s{56 + 4 * j + g}')
        a('s_mov_b64 exec, -1')
    else:
        a(f's_waitcnt vmcnt({nj + (0 if at_c else after)})')
    stamp('c in')
    if at_c:
        at_c()
    cs_ = [vc + j for j in range(nj)]
    for c in cs_:
        a(f'v_lshlrev_b32 v{c}, 16, v{c}')
    silu(cs_, cs_, [tmp + j for j in range(nj)])
    sc = [(145, 146), (147, 148), (149, 59)]
    for c, s in zip(cs_, sc):
        a(f'v_cvt_pk_bf16_f32 v{s[0]}, v{c}, 0')
    for s in sc:
        a(f'v_lshlrev_b32 v{s[1]}, 16, v{s[0]}')
    a(f'''
    v_and_b32 v{vo}, 7, v{vL}
    v_lshlrev_b32 v{vo}, 8, v{vo}
    v_and_b32 v{voc}, 48, v{vL}
    v_lshl_add_u32 v{vo}, v{voc}, 2, v{vo}
    s_lshl_b32 s{sT}, s{sW}, 2
    s_add_u32 s{sT}, s{sT}, {RED}
    v_add_u32 v{vo}, s{sT}, v{vo}
    ''')
    for k in range(8):
        a(f'v_mov_b32 v{acc + k}, 0')
    for j in range(nj):
        a(f's_waitcnt vmcnt({nj - 1 - j + after})')
        for k in (0, 4, 1, 5, 2, 6, 3, 7):
            a(f'v_dot2c_f32_bf16 v{acc + k}, v{vw + 4 * j + k // 2}, v{sc[j][k & 1]}')
    stamp('w in')
    swap_reduce8(acc)
    for c in ('row_ror:8',):
        dpp('v_add_f32', acc, c)
        dpp('v_add_f32', acc + 1, c)
    a(f'''
    s_mov_b32 exec_lo, 0x00ff00ff
    s_mov_b32 exec_hi, 0x00ff00ff
    ds_write2_b32 v{vo}, v{acc}, v{acc + 1} offset0:0 offset1:8
    s_mov_b64 exec, -1
    s_waitcnt lgkmcnt(0)
    ''')


def m8(dst, inverse):
    t0, t1, t2, t3 = 20, 21, 22, 23
    a(f'v_lshrrev_b32 v{t0}, 4, v{vL}           ; g')
    if not inverse:
        a(f'''
        v_bfe_u32 v{t1}, v{vL}, 2, 2
        v_bfe_u32 v{t2}, v{vL}, 1, 1
        v_lshl_add_u32 v{t1}, v{t2}, 2, v{t1}
        v_lshlrev_b32 v{t0}, 9, v{t0}
        v_add_u32 v{t0}, s{sMe}, v{t0}
        v_mul_u32_u24 v{t2}, v{t0}, v{t1}
        v_lshl_add_u32 v{t3}, v{t1}, 8, v{t2}
        ''')
    else:
        a(f'''
        v_bfe_u32 v{t1}, v{vL}, 1, 3
        v_lshlrev_b32 v{t1}, 8, v{t1}
        v_add_u32 v{t1}, s{sMe}, v{t1}
        v_mul_u32_u24 v{t2}, v{t0}, v{t1}
        v_xor_b32 v{t0}, 4, v{t0}
        v_mul_u32_u24 v{t3}, v{t0}, v{t1}
        v_sub_u32 v{t2}, 0, v{t2}
        v_sub_u32 v{t3}, 0, v{t3}
        ''')
    a(f'''
    v_and_b32 v{t0}, 1, v{vL}
    v_lshl_add_u32 v{t2}, v{t0}, 9, v{t2}
    v_lshl_add_u32 v{t3}, v{t0}, 9, v{t3}
    v_and_b32 v{t2}, 0x7ff, v{t2}
    v_and_b32 v{t3}, 0x7ff, v{t3}
    v_cvt_f32_u32 v{t2}, v{t2}
    v_cvt_f32_u32 v{t3}, v{t3}
    v_mul_f32 v{t2}, 0x3a000000, v{t2}
    v_mul_f32 v{t3}, 0x3a000000, v{t3}
    v_cos_f32 v{t0}, v{t2}
    v_sin_f32 v{t2}, v{t2}
    v_cos_f32 v{t1}, v{t3}
    v_sin_f32 v{t3}, v{t3}
    v_cvt_pk_bf16_f32 v{dst}, v{t0}, v{t2}
    v_cvt_pk_bf16_f32 v{dst + 1}, v{t1}, v{t3}
    ''')


INV640 = hex(f2u(1.0 / 640))
EPS = hex(f2u(1e-5))


def rstd_chain(var, out):
    rbf(out, f'v{var}')
    a(f'v_add_f32 v{out}, {EPS}, v{out}')
    rbf(out, f'v{out}')
    a(f'v_sqrt_f32 v{out}, v{out}')
    rbf(out, f'v{out}')
    a(f'v_rcp_f32 v{out}, v{out}')


def sum10(dst2, x):
    a(f'v_pk_add_f32 {vr(dst2, 2)}, {vr(x, 2)}, {vr(x + 2, 2)}')
    for h in (4, 6, 8):
        a(f'v_pk_add_f32 {vr(dst2, 2)}, {vr(dst2, 2)}, {vr(x + h, 2)}')
    a(f'v_add_f32 v{dst2}, v{dst2}, v{dst2 + 1}')


def dot10(dst2, x, y):
    a(f'v_pk_mul_f32 {vr(dst2, 2)}, {vr(x, 2)}, {vr(y, 2)}')
    for h in (2, 4, 6, 8):
        a(f'v_pk_fma_f32 {vr(dst2, 2)}, {vr(x + h, 2)}, {vr(y + h, 2)}, {vr(dst2, 2)}')
    a(f'v_add_f32 v{dst2}, v{dst2}, v{dst2 + 1}')


def prio(k, on):
    if PRIO[k] == '0':
        return
    if not on:
        a('s_setprio 0')
        return
    L = newlabel('pr')
    a(f's_cmp_lt_u32 s{sW}, 4')
    a(f's_cbranch_scc1 {L}')
    a('s_setprio 1')
    a.label(L)


def bar(n):
    a(f's_barrier                                   ; {n}')


def tpoll(loads, lanes_s=None, between=None):
    L, D, Cc = newlabel('poll'), newlabel('polld'), newlabel('pollc')
    if lanes_s:
        a(f's_mov_b64 exec, {lanes_s}')
    for ld in loads:
        a(ld)
    if lanes_s:
        a('s_mov_b64 exec, -1')
    a(f's_mov_b32 s{sCnt}, {SPIN}')
    if between is not None:
        between()
    a('s_waitcnt vmcnt(0)')
    a.label(Cc)
    a(f'''
    v_cmp_ne_u32 vcc, s{sTag}, v{Ra + 3}
    v_cmp_ne_u32 {sr(sBc)}, s{sTag}, v{Ra + 7}
    s_or_b64 vcc, vcc, {sr(sBc)}
    s_and_b64 vcc, vcc, {sr(sM8)}
    s_cbranch_scc1 {L}
    ''')
    a.label(D)

    def retry():
        a.label(L)
        a(f'''
        s_sub_u32 s{sCnt}, s{sCnt}, 1
        s_cbranch_scc1 {D}
        s_lshr_b64 {sr(sBc)}, vcc, 1
        s_or_b64 vcc, vcc, {sr(sBc)}
        s_lshr_b64 {sr(sBc)}, vcc, 2
        s_or_b64 exec, vcc, {sr(sBc)}
        ''')
        for ld in loads:
            a(ld)
        a('s_mov_b64 exec, -1')
        a('s_waitcnt vmcnt(0)')
        a(f's_branch {Cc}')
    late.append(retry)


sM8, sLn, sM3 = 62, 64, 66
vSg0, vSg1, vPair, vPairX = vE0 + 1, vE0 + 2, vE0 + 5, vM8F + 1


def f32_expand(q0, m0, m1):
    for tile in range(2):
        for k in range(8):
            b = vF32 + 16 * tile + k
            a(f'v_alignbit_b32 v{b + 8}, v{b}, v{b}, 16')
            a(f'v_xor_b32 v{b + 8}, v{m1}, v{b + 8}')
            if m0 is not None:
                a(f'v_xor_b32 v{b}, v{m0}, v{b}')


def f32_read(q0):
    for tile in range(2):
        for ks in range(2):
            tab_read(vF32 + 16 * tile + 4 * ks, q0 + 2 * tile + ks)


def setup_addr():
    a(f'''
    v_bfe_u32 v20, v{vL}, 2, 2                    ; cs
    v_and_b32 v21, 48, v{vL16}                    ; part*16
    v_lshrrev_b32 v22, 4, v{vL}                   ; g
    v_lshl_add_u32 v23, v22, 5, v20               ; 32g + cs
    v_mul_u32_u24 v{vPoll}, {T1S}, v23
    v_add_u32 v{vPoll}, v{vPoll}, v21
    v_mul_u32_u24 v23, 80, v23
    s_mul_i32 s{sT}, s{sW}, 320
    s_add_u32 s{sT}, s{sT}, {XB2}
    v_add3_u32 v{vE0 + 4}, v23, v21, s{sT}        ; staging address
    v_mul_u32_u24 v{vS}, {NJ * 64}, v22
    v_and_b32 v23, 0xf0, v{vL16}
    v_add_u32 v{vS}, v{vS}, v23
    v_lshlrev_b32 v{vE0}, 3, v{vL}                ; 8*lane
    v_mul_u32_u24 v22, {4 * SA}, v22
    v_mul_u32_u24 v20, 120, v20
    v_lshl_add_u32 v20, v21, 1, v20
    s_min_u32 s{sT}, s{sW}, 5
    s_mul_i32 s{sT}, s{sT}, 480
    s_add_u32 s{sT}, s{sT}, {XB1}
    v_add3_u32 v{vPair}, v20, v22, s{sT}
    ''')


def setup_masks():
    a(f'''
    s_mov_b32 s{sM7}, 0x77777777
    s_mov_b32 s{sM7 + 1}, 0x77777777
    s_mov_b32 s{sM8}, 0x88888888
    s_mov_b32 s{sM8 + 1}, 0x88888888
    s_mov_b32 s{sM3}, 0x37773777
    s_mov_b32 s{sM3 + 1}, 0x37773777
    s_cmp_eq_u32 s{sW}, 5
    s_cselect_b32 s{sLn}, 0x00ff00ff, -1
    s_mov_b32 s{sLn + 1}, s{sLn}
    ''')


def main_path():
    vZ, vSA, vCA = vVec, vVec + 10, vVec + 20
    gemv_addr()
    is_a()
    a('s_waitcnt lgkmcnt(0)')
    stamp('kernarg')
    a('s_cbranch_scc1 L_a')
    xloads()
    a('s_branch L_a0')
    a.label('L_a')
    gemv_issue(SC_)
    if MT and AX == 2:
        a(f's_cmp_lg_u32 s{sW}, 0')
        a('s_cbranch_scc1 L_a0')
        a(f'v_lshl_add_u32 v36, s{sBlk}, 8, v{vL4}')
        a('v_mov_b32 v37, 0')
        a(f'global_store_dword v36, v37, {sr(WS)} sc1')
    if AX == 0:
        xloads()
    a.label('L_a0')
    epoch_load()
    if S1 >= 1:
        m8(vM8F, False)
    if AX == 2:
        is_a()
        a('s_cbranch_scc0 L_a00')
        xloads()
        a.label('L_a00')
    if S1 >= 2:
        m8(vM8I, True)
    if S1 >= 3:
        setup_addr()
    is_a()
    a('s_cbranch_scc0 L_setup')
    a(f's_cmp_lg_u32 s{sW}, 0')
    a('s_cbranch_scc1 L_a1')
    if MT and AX != 2:
        a(f'v_lshl_add_u32 v36, s{sBlk}, 8, v{vL4}')
        a('v_mov_b32 v37, 0')
        a(f'global_store_dword v36, v37, {sr(WS)} sc1')
    a('s_waitcnt lgkmcnt(0)')
    epoch_tag(sV1)
    pub_setup(sV1)
    a.label('L_a1')
    gemv_compute('A', 5, at_c=xloads if AX == 1 else None, scalar=SC_)
    a(f's_cmp_lg_u32 s{sW}, 0')
    bar('B1')
    a(f's_cbranch_scc1 {"L_a2" if PB else "L_setup"}')
    publish('M')
    if PB:
        a.label('L_a2')
        bar('B1b')
    a.label('L_setup')
    a(f'''
    s_mov_b32 s{sHI}, 0xffff0000
    s_lshl_b32 s{sRow}, s{sW}, 8
    s_add_u32 s{sKey}, s{sRow}, s{sMe}
    s_mul_i32 s{sRow}, s{sKey}, 1280
    ''')
    if S1 < 1:
        m8(vM8F, False)
    if S1 < 2:
        m8(vM8I, True)
    if S1 < 3:
        setup_addr()
    setup_masks()
    is_a()
    a('s_cbranch_scc1 L_xw')
    is_b()
    a('s_cbranch_scc0 L_nb')
    gemv_issue()
    a.label('L_nb')
    bar('B0')
    a('s_waitcnt vmcnt(6)')
    a('s_cbranch_scc1 L_ln1')
    a('s_waitcnt vmcnt(0)')
    a.label('L_xw')
    a(f's_cmp_eq_u32 s{sW}, 0')
    a('s_waitcnt vmcnt(1)')
    a('s_cbranch_scc1 L_ln1')
    a('s_waitcnt vmcnt(0)')
    a.label('L_ln1')
    stamp('x in')
    for j in range(5):
        unpack(vXS + tm(j, 0), vXS + tm(j, 1), vXR + j)
    sum10(24, vXS)
    wave_sum([24], [sU0])
    a(f'v_mov_b32 v24, {INV640}')
    a(f'v_mul_f32 v26, s{sU0}, v24                ; mean')
    rbf(28, 'v26')
    a(f'v_readfirstlane_b32 s{sM1B}, v28')
    for h in range(0, 10, 2):
        a(f'v_pk_add_f32 {vr(vXS + h, 2)}, {vr(vXS + h, 2)}, v[28:29] op_sel:[0,0] op_sel_hi:[1,0] neg_lo:[0,1] neg_hi:[0,1]')
    dot10(30, vXS, vXS)
    wave_sum([30], [sU0])
    a(f'''
    v_sub_f32 v26, v26, v28
    v_mul_f32 v26, v26, v26
    v_fma_f32 v26, s{sU0}, v24, -v26
    ''')
    rstd_chain(26, 27)
    for j in range(5):
        for t in range(2):
            a(f'v_mul_f32 v{vZ + 2 * j + t}, v27, v{vXS + tm(j, t)}')
    a(f'''
    v_mov_b32 v23, 0
    v_mov_b32 v27, 0
    s_waitcnt lgkmcnt(0)
    ''')
    epoch_tag()
    tag_bytes()
    a(f'''
    s_mul_i32 s{sU0}, s{sMe}, {T1S}
    s_lshl_b32 s{sU1}, s{sW}, 8
    s_add_u32 s{sU0}, s{sU0}, s{sU1}
    ''')
    base_add(sBa, WS, sU0, T1_G)
    base_add(sBb, WS, sU0, T1_G + 4 * NJ * 64)
    a(f'''
    v_subrev_u32 v28, 64, v0                      ; u
    v_lshrrev_b32 v29, 4, v28
    v_lshlrev_b32 v29, 10, v29
    v_and_b32 v30, 0xf0, v{vL16}
    v_add_u32 v29, v29, v30
    v_cmp_le_u32 vcc, 160, v28
    v_mov_b32 v31, {8 - 160 * 32}
    v_cndmask_b32 v31, 0, v31, vcc
    s_mov_b32 s{sU2}, {MODA_L}
    v_lshlrev_b32 v28, 5, v28
    v_add3_u32 v28, v28, v31, s{sU2}
    v_add_u32 v{vE0 + 3}, s{sU2}, v{vL16}
    s_lshr_b32 s{sU1}, s{sW}, 1
    s_mul_i32 s{sU1}, s{sU1}, {4 * SA}
    s_and_b32 s{sT}, s{sW}, 1
    s_lshl_b32 s{sT}, s{sT}, 2
    s_add_u32 s{sU1}, s{sU1}, s{sT}
    s_add_u32 s{sU1}, s{sU1}, {XB1}
    ''')
    bar('BT')
    stamp('BT')
    tab_read(vF20, T_F20C)
    tab_read(vF20 + 4, T_F20S)
    for q in range(4):
        tab_read(vTW + 4 * q, T_TW1 + q)
    f32_read(T_F32A)
    tab_read(32, T_ADR)

    def expand():
        a(f'''
        s_waitcnt lgkmcnt(0)
        v_add_u32 v{vSg0}, s{sU1}, v32
        v_add_u32 v{vSg1}, 160, v{vSg0}
        ''')
        f32_expand(T_F32A, None, 33)
    def expand_if(a_side):
        L = newlabel('xp')
        is_a()
        a(f's_cbranch_scc{0 if a_side else 1} {L}')
        expand()
        a.label(L)
    if XP == 0:
        expand()
    if XP == 2:
        expand_if(False)

    def bgemv(after):
        L = newlabel('ng')
        is_b()
        a(f's_cbranch_scc0 {L}')
        gemv_compute('B', after)
        a.label(L)

    def behind(after):
        if not GB:
            bar('BP')
        if XP == 1:
            expand()
        if XP == 2:
            expand_if(True)
        if GB:
            bgemv(after)
            bar('BP')
    if not GB:
        bgemv(0)
    if BG:
        bar('BG')
    stamp('poll start')
    a(f's_sub_u32 s{sT}, s{sW}, 1')
    a(f's_cmp_lt_u32 s{sT}, 5')
    a('s_cbranch_scc1 L_mpoll')
    behind(0)
    a('s_branch L_b2')
    a.label('L_mpoll')
    poll([f'global_load_dwordx4 {vr(36 + 4 * p, 4)}, v29, {sr(WS)} offset:{256 * p} sc1' for p in range(4)],
         list(range(36, 52)), [52, 53, 54], empty='tag', between=lambda: behind(4))
    a(f'''
    v_pk_add_f32 v[36:37], v[36:37], v[40:41]
    v_pk_add_f32 v[38:39], v[38:39], v[42:43]
    v_pk_add_f32 v[44:45], v[44:45], v[48:49]
    v_pk_add_f32 v[46:47], v[46:47], v[50:51]
    v_pk_add_f32 v[36:37], v[36:37], v[44:45]
    v_pk_add_f32 v[38:39], v[38:39], v[46:47]
    ''')
    if MR:
        a('v_cvt_pk_bf16_f32 v40, v36, v37')
        a('v_cvt_pk_bf16_f32 v41, v38, v39')
        unpack(36, 37, 40)
        unpack(38, 39, 41)
    a(f'ds_write2_b64 v28, v[36:37], v[38:39] offset0:0 offset1:2')
    a.label('L_b2')
    stamp('poll end')
    fine('p1', 'pre-B2')
    a('s_waitcnt lgkmcnt(0)')
    a('s_barrier                                   ; B2')
    stamp('B2 done (mod ready)')
    fine('p1', 'B2')
    assert MODA_L % 16 == 0
    for j in range(5):
        a(f'ds_read_b128 {vr(vSA + 4 * j, 4)}, v{vE0 + 3} offset:{1024 * j}')
    for j in range(5):
        a(f's_waitcnt lgkmcnt({4 - j})')
        for t in range(2):
            a(f'v_fmac_f32 v{vSA + 4 * j + t}, v{vZ + 2 * j + t}, v{vSA + 4 * j + 2 + t}')
        if j in (1, 3):
            for t in range(2):
                a(f'v_cvt_pk_bf16_f32 v{Ra + 4 * t + j // 2}, v{vSA + 4 * j - 4 + t}, v{vSA + 4 * j + t}')
    for t in range(2):
        a(f'v_cvt_pk_bf16_f32 v{Ra + 4 * t + 2}, v{vSA + 16 + t}, 0')
    fine('p1', 'h packed')
    for t in range(2):
        mfma32(RD + 8 * t, Ra + 4 * t, vF20)
        mfma32(RD + 8 * t + 4, Ra + 4 * t, vF20 + 4)
    fine('p1', 'mfma1 issued')
    for t, tmp in ((0, Rb), (1, Rc)):
        cmul(tmp, tmp + 4, RD + 8 * t, RD + 8 * t + 4, vTW + 8 * t, vTW + 8 * t + 4, -1, pk=PK[0] == '1' or (PK[0] == '2' and t == 1))
        pack4(Ra + 4 * t, tmp, tmp + 4)
    fine('p1', 'twiddled')
    for u in range(2):
        for ks in range(2):
            for e in range(2):
                d = RD + 8 * u + 4 * e
                mfma32(d, vF32 + 16 * u + 8 * e + 4 * ks, Ra + 4 * ks, d if ks else None)
    fine('p1', 'mfma2 issued')
    a(f's_mov_b64 exec, {sr(sM3)}')
    for u in range(2):
        pack4(Rb + 4 * u, RD + 8 * u, RD + 8 * u + 4)
        for r in (0, 2):
            a(f'ds_write2_b32 v{vSg1 if u else vSg0}, v{Rb + 4 * u + r}, v{Rb + 4 * u + r + 1} offset0:{80 * r} offset1:{80 * r + 80}')
    a('s_mov_b64 exec, -1')
    a(f'v_mov_b32 v{Rc + 3}, s{sTag}')
    a(f'v_mov_b32 v{Rc + 7}, s{sTag}')
    a(f's_cmp_ge_u32 s{sW}, 6')
    fine('p1', 'lds written')
    a('s_waitcnt lgkmcnt(0)')
    fine('p1', 'pre-B3')
    fine('x1', 'pre-B3')
    bar('B3')
    fine('p1', 'B3')
    fine('x1', 'B3')
    a('s_cbranch_scc1 L_t1done')
    for n in (3, 0, 1, 2):
        a(f'ds_read_b64 {vr(Ra + 2 * n, 2)}, v{vPair} offset:{8 * n}')
    for k, n in enumerate((3, 0, 1, 2)):
        a(f's_waitcnt lgkmcnt({3 - k})')
        mfma16(RD + 4 * n, vM8F, Ra + 2 * n)
    fine('p1', 'r8 issued')
    a(f's_mov_b64 exec, {sr(sM7)}')
    for j in range(2):
        a(f'v_cvt_pk_bf16_f32 v{Rc + 4 * j + 3}, v{RD + 12 + 2 * j}, v{RD + 12 + 2 * j + 1}')
    a(f's_mov_b64 exec, {sr(sLn)}')
    for j in range(2):
        for n in range(3):
            a(f'v_cvt_pk_bf16_f32 v{Rc + 4 * j + n}, v{RD + 4 * n + 2 * j}, v{RD + 4 * n + 2 * j + 1}')
        a(f'global_store_dwordx4 v{vS}, {vr(Rc + 4 * j, 4)}, {sr(sBb if j else sBa)} sc1')
    a('s_mov_b64 exec, -1')
    a.label('L_t1done')
    stamp('T1 stored')
    if PROBE == 'rel':
        a(f'''
        s_lshl_b32 s{sT}, s{sW}, 8
        s_or_b32 s{sT}, s{sT}, s2
        s_cmp_lt_u32 s{sT}, 8
        s_cbranch_scc0 L_norel
        s_lshl_b32 s{sT}, s2, 7
        s_add_u32 s{sT}, s{sT}, {DIAG_G}
        v_mov_b32 v36, s{sT}
        v_mov_b32 v37, s{sTS}
        global_store_dword v36, v37, {sr(WS)} sc1
        L_norel:
        ''')
    fine('p1', 'stored')
    fine('x1', 'stored')

    def p3_mats():
        for q in range(3):
            tab_read(vF20 + 4 * q, T_F20I + q)
        f32_read(T_F32B)
        tab_read(40, T_ADR)
        a('s_waitcnt lgkmcnt(0)')
        f32_expand(T_F32B, 42, 43)
    a(f's_cmp_ge_u32 s{sIdx}, {NJ}')
    a('s_cbranch_scc1 L_idle')
    late.append(lambda: (a.label('L_idle'), bar('B3b'), p3_mats() if MATS else None, a('s_branch L_p3prep')))
    if MATS == 1:
        p3_mats()
    vWr = vVec
    for k in range(16):
        a(f'v_mov_b32 v{vWr + k}, 0')
    SC = 2.0 / (2048 * 640) / (ALPHA[16] ** 4 * ALPHA[20] ** 2 * ALPHA[32] ** 2)
    a(f'''
    v_and_b32 v36, 15, v{vL}
    v_and_b32 v37, 48, v{vL}
    v_lshl_add_u32 v36, v37, 2, v36               ; 64g + i
    v_mul_u32_u24 v{vE0 + 3}, 80, v36
    s_lshl_b32 s{sU1}, s{sW}, 3
    s_add_u32 s{sU1}, s{sU1}, {XB2}
    v_add_u32 v{vE0 + 3}, s{sU1}, v{vE0 + 3}
    v_lshlrev_b32 v36, 5, v36
    v_add_u32 v36, {WST}, v36
    v_and_b32 v39, 4, v{vL}
    v_lshlrev_b32 v39, 2, v39
    v_lshlrev_b32 v{vS}, 7, v37
    v_and_b32 v37, 0xf0, v{vL16}
    v_add_u32 v{vS}, v{vS}, v37
    s_mul_i32 s{sU0}, s{sX}, {NJ}
    s_add_u32 s{sU0}, s{sU0}, s{sIdx}
    s_lshl_b32 s{sU1}, s{sU0}, 6
    s_mul_i32 s{sT}, s{sW}, {4 * T1S}
    s_add_u32 s{sU1}, s{sU1}, s{sT}
    s_mul_i32 s{sU0}, s{sU0}, {T2S}
    s_lshl_b32 s{sT}, s{sW}, 8
    s_add_u32 s{sU0}, s{sU0}, s{sT}
    ''')
    base_add(sBa, WS, sU1, T1_G)
    base_add(sBb, WS, sU1, T1_G + 128 * T1S)
    base_add(58, WS, sU0, T2_G)
    base_add(60, WS, sU0, T2_G + 8192)

    def w_setup(parts=(0, 1)):
      if 0 in parts:
        for q in range(2):
            tab_read(vTW + 4 * q, T_F16 + q)
            tab_read(vTW + 8 + 4 * q, T_TW2 + q)
        a(f'''
        s_mul_i32 s{sU0}, s{sIdx}, 15
        s_min_u32 s{sU1}, s{sU0}, 306
        s_add_u32 s{sU2}, s{sU1}, s{sX}
        s_and_b32 s{sU2}, s{sU2}, 1
        s_sub_u32 s{sU1}, s{sU1}, s{sU2}
        s_lshl_b32 s{sT}, s{sW}, 1
        s_add_u32 s{sU0}, s{sU0}, s{sT}
        ''')
      if True:
        for s in parts:
            gam = sU3
            a(f'''
            s_add_u32 s{sU2}, s{sU0}, {s}
            s_sub_u32 s{sT}, s{sU2}, s{sU1}
            s_min_u32 s{sT}, s{sT}, 15
            s_lshl_b32 s{sT}, s{sT}, 1
            v_xor_b32 v37, s{sT}, v39
            v_add_u32 v37, v37, v36
            ''')
            for arr in range(2):
                for r in range(4):
                    a(f'ds_read_u16_d16_hi v{vWr + 8 * s + 4 * arr + r}, v37 offset:{arr * 8192 + r * 512}')
            a(f'''
            s_mul_i32 s{sT}, s{sU2}, 0x199a
            s_lshr_b32 s{sT}, s{sT}, 16
            s_mul_i32 s{sT}, s{sT}, 10
            s_mov_b32 s{gam}, {hex(f2u(SC))}
            s_cmp_eq_u32 s{sT}, s{sU2}
            s_cselect_b32 s{gam}, {hex(f2u(SC / 2))}, s{gam}
            s_waitcnt lgkmcnt(0)
            ''')
            for r in range(8):
                a(f'v_mul_f32 v{vWr + 8 * s + r}, s{gam}, v{vWr + 8 * s + r}')

    tl = [f'global_load_dwordx4 {vr(Ra, 4)}, v{vPoll}, {sr(sBa)} sc1', f'global_load_dwordx4 {vr(Ra + 4, 4)}, v{vPoll}, {sr(sBb)} sc1']
    fine('x1', 'pre-B3b')
    bar('B3b')
    fine('x1', 'B3b')
    if WFIRST:
        w_setup((0, 1) if WFIRST == 1 else (0,))
    fine('x1', 'wsetup')
    if DR1:
        a('s_waitcnt vmcnt(0)')
    if AL1:
        bar('B3c')
    fine('x1', 'drained')
    if PACE1:
        a(f's_sleep {PACE1}')
    stamp('B3b done')
    tpoll(tl, between=lambda: (None if WFIRST == 1 else w_setup((1,) if WFIRST else (0, 1)), p3_mats() if MATS == 2 else None, fine('x1', 'behind')))
    fine('p2', 'T1 in')
    fine('x1', 'T1 in')
    a(f'ds_write_b128 v{vE0 + 4}, {vr(Ra, 4)}')
    a(f'ds_write_b128 v{vE0 + 4}, {vr(Ra + 4, 4)} offset:10240')
    a(f's_cmp_eq_u32 s{sW}, 7')
    a('s_waitcnt lgkmcnt(0)')
    bar('B4')
    stamp('B4 done (T1 in)')
    fine('p2', 'B4')
    fine('x1', 'B4')
    a('s_cbranch_scc1 L_p2_one')
    Fre, Fim, Tc, Ts = vTW, vTW + 4, vTW + 8, vTW + 12
    tmps = (Rb, Rc)

    def p2(ns):
        p2pk = PK[1] == '1'
        if ns == 2:
            for j in range(4):
                a(f'ds_read_b64 {vr(Rb + 2 * j, 2)}, v{vE0 + 3} offset:{1280 * j}')
            for h in range(2):
                a(f's_waitcnt lgkmcnt({2 - 2 * h})')
                for s in range(2):
                    a(f'v_pk_mov_b32 {vr(Ra + 4 * s + 2 * h, 2)}, {vr(Rb + 4 * h, 2)}, {vr(Rb + 4 * h + 2, 2)} op_sel:[{s},{s}]')
        else:
            a(f'ds_read2st64_b32 {vr(Ra, 2)}, v{vE0 + 3} offset0:0 offset1:5')
            a(f'ds_read2st64_b32 {vr(Ra + 2, 2)}, v{vE0 + 3} offset0:10 offset1:15')
            a('s_waitcnt lgkmcnt(0)')
        fine('p2', 'read')
        for s in range(ns):
            mfma32(RD + 8 * s, Ra + 4 * s, Fre)
            mfma32(RD + 8 * s + 4, Ra + 4 * s, Fim)
        fine('p2', 's1')
        def stage(cq, sign, swap, mm):
            lo = lambda s: tmps[s] + (4 if swap else 0)
            hi = lambda s: tmps[s] + (0 if swap else 4)
            if ns == 1 or not P2ORD:
                for s in range(ns):
                    cmul(tmps[s], tmps[s] + 4, RD + 8 * s, RD + 8 * s + 4, *cq(s), sign, pk=p2pk)
                    pack4(Ra + 4 * s, lo(s), hi(s))
                    mm(s, 0)
                    mm(s, 1)
                return
            cmul(tmps[0], tmps[0] + 4, RD, RD + 4, *cq(0), sign, pk=p2pk, head=P2ORD - 1)
            cmul(tmps[1], tmps[1] + 4, RD + 8, RD + 12, *cq(1), sign, pk=p2pk)
            pack4(Ra, lo(0), hi(0))
            cv = lambda r: a(f'v_cvt_pk_bf16_f32 v{Ra + 4 + r}, v{lo(1) + r}, v{hi(1) + r}')
            cv(0)
            cv(1)
            mm(0, 0)
            cv(2)
            cv(3)
            mm(0, 1)
            mm(1, 0)
            mm(1, 1)
        stage(lambda s: (Tc, Ts), -1, False, lambda s, k: mfma32(RD + 8 * s + 4 * k, Fim if k else Fre, Ra + 4 * s))
        fine('p2', 's2')
        stage(lambda s: (vWr + 8 * s, vWr + 8 * s + 4), +1, True, lambda s, k: mfma32(RD + 8 * s + 4 * k, Ra + 4 * s, Fre if k else Fim))
        fine('p2', 's3')
        stage(lambda s: (Tc, Ts), +1, True, lambda s, k: mfma32(RD + 8 * s + 4 * k, Fre if k else Fim, Ra + 4 * s))
        fine('p2', 's4')
        for s in range(ns):
            pack4(Rb + s, RD + 8 * s, RD + 8 * s + 4, step=ns)
        if ns == 2:
            for r in range(4):
                a(f'ds_write_b64 v{vE0 + 3}, {vr(Rb + 2 * r, 2)} offset:{1280 * r}')
        else:
            a(f'ds_write2st64_b32 v{vE0 + 3}, v{Rb}, v{Rb + 1} offset0:0 offset1:5')
            a(f'ds_write2st64_b32 v{vE0 + 3}, v{Rb + 2}, v{Rb + 3} offset0:10 offset1:15')
        a('s_waitcnt lgkmcnt(0)')
    p2(2)
    a.label('L_b5')
    fine('p2', 'pre-B5')
    fine('x2', 'pre-B5')
    bar('B5')
    fine('p2', 'B5')
    fine('x2', 'B5')
    a(f'ds_read_b128 {vr(Rb, 4)}, v{vE0 + 4}')
    a(f'ds_read_b128 {vr(Rb + 4, 4)}, v{vE0 + 4} offset:10240')
    a('s_waitcnt lgkmcnt(1)')
    a(f'global_store_dwordx4 v{vS}, {vr(Rb, 4)}, {sr(58)} sc1')
    a('s_waitcnt lgkmcnt(0)')
    a(f'global_store_dwordx4 v{vS}, {vr(Rb + 4, 4)}, {sr(60)} sc1')
    stamp('T2 stored')
    fine('p2', 'stored')
    fine('x2', 'stored')
    late.append(lambda: (a.label('L_p2_one'), p2(1), a('s_branch L_b5')))
    a.label('L_p3prep')
    vGA, vVV, vGC, vGS = vVec, vVec + 10, vVec + 20, vVec + 30
    vMB = vE0 + 6
    for q in range(4):
        tab_read(vTW + 4 * q, T_TW3 + q)
    a(f'''
    v_add_u32 v{vMB}, {MODB_L}, v{vL4}
    v_bfe_u32 v36, v{vL}, 2, 2
    v_lshrrev_b32 v37, 4, v{vL}
    v_mad_u32_u24 v36, v37, {NJ}, v36
    v_and_b32 v38, 48, v{vL16}
    v_mul_u32_u24 v36, {T2S}, v36
    v_add_u32 v{vPoll}, v36, v38
    v_mul_u32_u24 v37, {4 * SA}, v37
    v_add_u32 v37, {XB1 + 8 * 361}, v37
    v_cndmask_b32 v{vPairX}, v{vPair}, v37, {sr(sM8)}
    s_and_b64 {sr(sM8)}, {sr(sM8)}, {sr(sLn)}
    s_lshl_b32 s{sU1}, s{sMe}, 6
    s_min_u32 s{sT}, s{sW}, 5
    s_mul_i32 s{sT}, s{sT}, {4 * T2S}
    s_add_u32 s{sU1}, s{sU1}, s{sT}
    ''')
    base_add(sBa, WS, sU1, T2_G)
    base_add(sBb, WS, sU1, T2_G + 4 * NJ * T2S)
    base_add(sXrow, OUTP, sRow)
    a(f's_mul_i32 s{sU0}, s{sMe}, {REC_STRIDE}')
    base_add(sRec, WS, sU0, REC_G)
    a(f'''
    v_mov_b32 v{vE0 + 7}, {hex(f2u(-1.0 / 640))}
    v_mov_b32 v{vM8F}, {hex(f2u(-1e-5))}
    v_mov_b32 v{vE0 + 3}, {KEYL}
    v_mov_b32 v{vE0 + 4}, 1
    ''')

    def p3_setup(part=3):
      raw, GB = Rb, Rb
      if part & 1:
        raw = Rb
        for k in range(0, 24, 2):
            a(f'ds_read2st64_b32 {vr(raw + k, 2)}, v{vMB} offset0:{k} offset1:{k + 1}')
        a(f'ds_read_b32 v{raw + 24}, v{vMB} offset:{24 * 256}')
        a('s_waitcnt lgkmcnt(0)')
        for vec, dst in ((0, vGA), (1, vGS), (2, vGC), (4, vVV)):
            for j in range(5):
                unpack(dst + tm(j, 0), dst + tm(j, 1), raw + 5 * vec + j)
        GB = Rb
        for j in range(5):
            unpack(GB + tm(j, 0), GB + tm(j, 1), raw + 15 + j)
      if part & 2:
        t0, t1, t2 = Rc + 2, Rc + 4, Rc + 6
        dot10(t0, vVV, vGS)
        for h in range(0, 10, 2):
            a(f'v_pk_mul_f32 {vr(vVV + h, 2)}, {vr(vVV + h, 2)}, {vr(vGC + h, 2)}')
        sum10(t1, vVV)
        a(f'v_mov_b32 v{t2}, s{sM1B}')
        for h in range(0, 10, 2):
            a(f'v_pk_mul_f32 {vr(vGC + h, 2)}, {vr(vGC + h, 2)}, {vr(GB + h, 2)}')
            a(f'v_pk_fma_f32 {vr(vGS + h, 2)}, {vr(vGS + h, 2)}, {vr(GB + h, 2)}, {vr(t2, 2)} op_sel:[0,0,0] op_sel_hi:[1,1,0]')
        wave_sum([t1, t0], [sV1, sV2])

    if MATS == 0:
        p3_mats()
    a('s_waitcnt lgkmcnt(0)')
    bar('B5b')
    stamp('B5b done')
    fine('p2', 'B5b')
    fine('x2', 'B5b')
    if P3FIRST == 2:
        p3_setup(1)
    if P3FIRST == 1:
        p3_setup()
    else:
        a(f's_cmp_ge_u32 s{sIdx}, {NJ}')
        a(f's_cselect_b32 s{sCand}, 8, s{sW}')
        a(f's_cmp_lt_u32 s{sCand}, 6')
        a('s_cbranch_scc1 L_p3later')
        p3_setup(2 if P3FIRST else 3)
        a.label('L_p3later')
    fine('x2', 'p3setup')
    if DR2:
        a('s_waitcnt vmcnt(0)')
    fine('x2', 'drained')
    if PACE2:
        a(f's_sleep {PACE2}')
    if not AL2:
        a(f's_cmp_ge_u32 s{sIdx}, {NJ}')
        a('s_cbranch_scc0 L_nob5c')
    bar('B5c')
    a.label('L_nob5c')
    a(f's_cmp_ge_u32 s{sW}, 6')
    a('s_cbranch_scc1 L_b6')
    stamp('T2 poll')
    fine('p2', 'T2 poll')

    def p3_behind():
        a(f's_cmp_lt_u32 s{sCand}, 6')
        a('s_cbranch_scc0 L_p3done')
        p3_setup(2 if P3FIRST else 3)
        a.label('L_p3done')
    tpoll(tl, lanes_s=sr(sLn), between=None if P3FIRST == 1 else p3_behind)
    stamp('T2 in')
    fine('p3', 'T2 in')
    fine('x2', 'T2 in')
    a(f'''
    v_swap_b32 v{Ra + 1}, v{Ra + 4}
    v_swap_b32 v{Ra + 3}, v{Ra + 6}
    ''')
    for n, r in ((0, Ra), (1, Ra + 4), (2, Ra + 2), (3, Ra + 6)):
        mfma16(RD + 4 * n, vM8I, r)
    for n in range(4):
        for jj in range(2):
            a(f'v_cvt_pk_bf16_f32 v{Rb + 2 * n + jj}, v{RD + 4 * n + 2 * jj + 1}, v{RD + 4 * n + 2 * jj}')
        a(f'ds_write_b64 v{vPairX if n == 3 else vPair}, {vr(Rb + 2 * n, 2)} offset:{8 * n}')
    a('s_waitcnt lgkmcnt(0)')
    a.label('L_b6')
    prio(2, True)
    fine('p3', 'pre-B6')
    bar('B6')
    fine('p3', 'B6')
    fine('x2', 'B6')
    for u in range(2):
        for r in (0, 2):
            a(f'ds_read2_b32 {vr(Rb + 4 * u + r, 2)}, v{vSg1 if u else vSg0} offset0:{80 * r} offset1:{80 * r + 80}')
    Y = RD
    if not P3O:
        for ks in range(2):
            a(f's_waitcnt lgkmcnt({2 - 2 * ks})')
            for t in range(2):
                for e in range(2):
                    d = RD + 8 * t + 4 * e
                    mfma32(d, Rb + 4 * ks, vF32 + 16 * t + 8 * (1 - e) + 4 * ks, d if ks else None)
        fine('p3', 'mfma1 issued')
        if PRIO[2] == '1':
            prio(2, False)
        for t, tmp in ((0, Ra), (1, Rc)):
            cmul(tmp, tmp + 4, RD + 8 * t, RD + 8 * t + 4, vTW + 8 * t, vTW + 8 * t + 4, +1, pk=PK[2] == '1' or (PK[2] == '2' and t == 1), n=3)
            pack4(Rb + 4 * t, tmp, tmp + 4, n=3)
            a(f'v_mov_b32 v{Rb + 4 * t + 3}, 0')
        Y = RD
        mfma32(Y, vF20, Rb)
        mfma32(Y + 8, vF20 + 4, Rb)
        mfma32(Y + 4, vF20, Rb + 4)
        mfma32(Y + 8, vF20 + 8, Rb + 4, Y + 8)
    else:
        def m1(t, ks, e):
            d = RD + 8 * t + 4 * e
            mfma32(d, Rb + 4 * ks, vF32 + 16 * t + 8 * (1 - e) + 4 * ks, d if ks else None)
        a('s_waitcnt lgkmcnt(2)')
        m1(0, 0, 0)
        m1(0, 0, 1)
        a('s_waitcnt lgkmcnt(0)')
        m1(0, 1, 0)
        m1(0, 1, 1)
        for ks in range(2):
            for e in range(2):
                m1(1, ks, e)
        fine('p3', 'mfma1 issued')
        B0_, B1_ = vF32, vF32 + 4
        cmul(Ra, Ra + 4, RD, RD + 4, vTW, vTW + 4, +1, pk=False, n=3)
        a(f'v_mov_b32 v{B0_ + 3}, 0')
        a(f'v_mov_b32 v{B1_ + 3}, 0')
        pack4(B0_, Ra, Ra + 4, n=3)
        Yx = Rb
        mfma32(Y, vF20, B0_)
        mfma32(Yx, vF20 + 4, B0_)
        cmul(Rc, Rc + 4, RD + 8, RD + 12, vTW + 8, vTW + 12, +1, pk=False, n=3)
        pack4(B1_, Rc, Rc + 4, n=3)
        mfma32(Y + 4, vF20, B1_)
        mfma32(Y + 8, vF20 + 8, B1_, Yx)
    fine('p3', 'mfma2 issued')
    if PRIO[2] == '2':
        prio(2, False)
    X1 = vXS
    s1, s2, s3, s4 = Ra, Ra + 1, Ra + 2, Ra + 3
    if not PKS:
        for k in range(10):
            a(f'v_fmac_f32 v{X1 + k}, v{Y + k}, v{vGA + k}')
            if k == 1:
                a(f'v_mul_f32 v{s2}, v{X1}, v{X1}')
                a(f'v_mul_f32 v{s3}, v{X1}, v{vVV}')
            if k >= 2:
                a(f'v_add_f32 v{s1}, v{X1 + k - 1}, v{X1 if k == 2 else s1}')
                a(f'v_fmac_f32 v{s2}, v{X1 + k - 1}, v{X1 + k - 1}')
                a(f'v_fmac_f32 v{s3}, v{X1 + k - 1}, v{vVV + k - 1}')
        a(f'v_fmac_f32 v{s3}, v{X1 + 9}, v{vVV + 9}')
        a(f'v_add_f32 v{s1}, v{X1 + 9}, v{s1}')
        a(f'v_fmac_f32 v{s2}, v{X1 + 9}, v{X1 + 9}')
    else:
        p1_, p2_, p3_ = Rc, Rc + 2, Rc + 4
        for h in range(0, 10, 2):
            a(f'v_pk_fma_f32 {vr(X1 + h, 2)}, {vr(Y + h, 2)}, {vr(vGA + h, 2)}, {vr(X1 + h, 2)}')
        a(f'v_pk_mul_f32 {vr(p3_, 2)}, {vr(X1, 2)}, {vr(vVV, 2)}')
        a(f'v_pk_add_f32 {vr(p1_, 2)}, {vr(X1, 2)}, {vr(X1 + 2, 2)}')
        a(f'v_pk_mul_f32 {vr(p2_, 2)}, {vr(X1, 2)}, {vr(X1, 2)}')
        for h in (2, 4, 6, 8):
            a(f'v_pk_fma_f32 {vr(p3_, 2)}, {vr(X1 + h, 2)}, {vr(vVV + h, 2)}, {vr(p3_, 2)}')
            if h > 2:
                a(f'v_pk_add_f32 {vr(p1_, 2)}, {vr(p1_, 2)}, {vr(X1 + h, 2)}')
            a(f'v_pk_fma_f32 {vr(p2_, 2)}, {vr(X1 + h, 2)}, {vr(X1 + h, 2)}, {vr(p2_, 2)}')
        a(f'v_add_f32 v{s3}, v{p3_}, v{p3_ + 1}')
        a(f'v_add_f32 v{s1}, v{p1_}, v{p1_ + 1}')
        a(f'v_add_f32 v{s2}, v{p2_}, v{p2_ + 1}')
    fine('p3', 'partials')
    a(f'''
    v_permlane32_swap_b32 v{s3}, v{s4}
    v_permlane32_swap_b32 v{s1}, v{s2}
    v_add_f32 v{s3}, v{s3}, v{s4}
    v_add_f32 v{s1}, v{s1}, v{s2}
    v_permlane16_swap_b32 v{s1}, v{s3}
    v_add_f32 v{s1}, v{s1}, v{s3}
    ''')
    for c in ('row_ror:8', 'row_ror:4', 'row_ror:2', 'row_ror:1'):
        dpp('v_add_f32', s1, c)
    a(f'''
    v_readlane_b32 s{sU0}, v{s1}, 0
    v_readlane_b32 s{sU2}, v{s1}, 32
    v_readlane_b32 s{sU3}, v{s1}, 16
    ''')
    fine('p3', 'reduced')
    k0 = Rc
    cE = vM8F
    cI, cK, cT, cO = vE0 + 7, vE0 + 3, Ra + 7, vE0 + 4
    m = Ra + 1
    a(f'''
    v_mul_f32 v{m + 2}, s{sU0}, v{cI}
    v_fma_f32 v{k0}, v{m + 2}, v{m + 2}, v{cE}
    v_mov_b32 v{m + 3}, s{sU3}
    v_fmac_f32 v{k0}, s{sU2}, v{cI}
    v_fmac_f32 v{m + 3}, s{sV1}, v{m + 2}
    v_sub_f32 v{m + 1}, v{cE}, v{k0}              ; var
    v_rsq_f32_e64 v{k0}, -v{k0}
    v_mov_b32 v{cT}, s{sTag}
    s_mov_b64 exec, 1
    v_fma_f32 v{m + 3}, v{m + 3}, v{k0}, s{sV2}   ; r
    v_ashrrev_i32 v{m + 4}, 31, v{m + 3}
    v_or_b32 v{m + 4}, 0x80000000, v{m + 4}
    v_xor_b32 v{m + 3}, v{m + 3}, v{m + 4}
    v_and_b32 v{m + 3}, 0xfffff800, v{m + 3}
    v_or_b32 v{m + 3}, s{sKey}, v{m + 3}
    ds_max_u32 v{cK}, v{m + 3}
    ds_add_rtn_u32 v{m + 4}, v{cK}, v{cO} offset:8
    ds_read_b32 v{Ra + 6}, v{cK}
    v_readfirstlane_b32 s{sKey}, v{m + 3}
    s_waitcnt lgkmcnt(0)
    v_cmpx_eq_u32 vcc, 7, v{m + 4}
    s_cbranch_execz L_notlast
    global_store_dwordx2 v{vL4}, {vr(Ra + 6, 2)}, {sr(sRec)} sc1
    L_notlast:
    s_mov_b64 exec, -1
    ''')
    fine('p3', 'key')
    bar('B7')
    fine('p3', 'B7')
    fine('e', 'key poll')
    a(f'''
    ds_read_b32 v{Ra + 6}, v{cK}
    v_sub_f32 v{m + 2}, s{sM1B}, v{m + 2}
    ''')
    rbf(m + 2, f'v{m + 2}')
    rstd_chain(m + 1, k0)
    a(f'''
    v_sub_f32 v{m + 2}, s{sM1B}, v{m + 2}
    v_mul_f32 v{k0 + 1}, v{m + 2}, v{k0}
    ''')
    ZN = vGA
    for h in range(0, 10, 2):
        a(f'v_pk_fma_f32 {vr(ZN + h, 2)}, {vr(X1 + h, 2)}, {vr(k0, 2)}, {vr(k0, 2)} op_sel:[0,0,1] op_sel_hi:[1,0,1]')
    vO = vXS

    def out_math():
        for h in range(0, 10, 2):
            a(f'v_pk_add_f32 {vr(Y + h, 2)}, {vr(X1 + h, 2)}, {vr(vGS + h, 2)}')
        for h in range(0, 10, 2):
            a(f'v_pk_fma_f32 {vr(Y + h, 2)}, {vr(ZN + h, 2)}, {vr(vGC + h, 2)}, {vr(Y + h, 2)}')
        if opt('inject', None):
            if opt('injall', None):
                for k in range(10):
                    a(f'v_mul_f32 v{Y + k}, {hex(f2u(1 + float(opt("inject", 0))))}, v{Y + k}')
            else:
                a(f's_cmp_eq_u32 s{sRow}, 0')
                a('s_cselect_b64 exec, 1, 0')
                a(f'v_add_f32 v{Y}, {hex(f2u(float(opt("inject", 0))))}, v{Y}')
                a('s_mov_b64 exec, -1')
        for j in range(5):
            a(f'v_cvt_pk_bf16_f32 v{vO + j}, v{Y + tm(j, 0)}, v{Y + tm(j, 1)}')
    a(f'''
    s_waitcnt lgkmcnt(0)
    v_readfirstlane_b32 s{sU0}, v{Ra + 6}
    s_cmp_eq_u32 s{sU0}, s{sKey}
    s_cselect_b32 s{sCand}, 1, 0
    s_cbranch_scc1 L_cand
    ''')
    out_math()
    a('s_branch L_keys')
    a.label('L_cand')
    raw, SB, CB, H, Bq = 60, 70, 80, 92, 108
    for k in range(0, 10, 2):
        a(f'ds_read2st64_b32 {vr(raw + k, 2)}, v{vMB} offset0:{5 + k} offset1:{6 + k}')
    for qd in range(2):
        a(f'v_mov_b32 v{H + 4 * qd + 3}, s{sTag}')
    a('s_waitcnt lgkmcnt(0)')
    for j in range(5):
        unpack(SB + tm(j, 0), SB + tm(j, 1), raw + j)
        unpack(CB + tm(j, 0), CB + tm(j, 1), raw + 5 + j)
    for h in range(0, 10, 2):
        a(f'v_pk_fma_f32 {vr(SB + h, 2)}, {vr(ZN + h, 2)}, {vr(CB + h, 2)}, {vr(SB + h, 2)}')
    for j in range(5):
        a(f'v_cvt_pk_bf16_f32 v{H + j + (j >= 3)}, v{SB + tm(j, 0)}, v{SB + tm(j, 1)}')
    for qd in range(2):
        a(f'global_store_dwordx4 v{vL16}, {vr(H + 4 * qd, 4)}, {sr(sRec)} offset:{REC_H2 + 1024 * qd} sc1')
    out_math()

    def out_row():
        for j in range(5):
            a(f'global_store_dword v{vL4}, v{vO + j}, {sr(sXrow)} offset:{256 * j} sc1')
    if OE != 1:
        out_row()
    a.label('L_keys')
    if OE == 1:
        out_row()
    if OE == 3:
        a(f'''
        s_cmp_ge_u32 s{sRi}, 20
        s_cselect_b32 s{sT}, 1, s{sCand}
        s_cmp_lg_u32 s{sT}, 0
        s_cbranch_scc1 L_noout
        ''')
        out_row()
        a.label('L_noout')
    stamp('key out')
    fine('p3', 'key out')
    bar('B7b (candidate stores are out, the helpers have ended)')
    if OE == 0:
        a(f'''
        s_cmp_ge_u32 s{sRi}, 20
        s_cselect_b32 s{sT}, 1, s{sCand}
        s_cmp_lg_u32 s{sT}, 0
        s_cbranch_scc1 L_noout
        ''')
        out_row()
        a('s_branch L_fin')
        a.label('L_noout')
    if OE == 2:
        a(f's_cmp_lg_u32 s{sCand}, 0')
        a('s_cbranch_scc1 L_noout')
        out_row()
        a.label('L_noout')
    vEW, vFW = 48, 88
    vRed, vRd, vRow = 15, 16, 17
    a(f'''
    s_cmp_lt_u32 s{sRi}, 20
    s_cbranch_scc1 L_no_ew
    s_mul_i32 s{sT}, s{sW}, 5120
    s_add_u32 s{sT}, s{sT}, {EW}
    v_and_b32 v{Rb}, 0x3c0, v{vL16}
    v_and_b32 v{Rb + 1}, 24, v{vE0}
    v_add3_u32 v{Rb}, v{Rb}, v{Rb + 1}, s{sT}
    s_mul_i32 s{sT}, s{sW}, 320
    s_add_u32 s{sT}, s{sT}, {FW}
    v_min_u32 v{vE0 + 1}, {39 * 8}, v{vE0}
    v_add_u32 v{vE0 + 1}, s{sT}, v{vE0 + 1}
    ''')
    for j in range(5):
        if j in (2, 4):
            a(f'v_add_u32 v{Rb}, 2048, v{Rb}')
        a(f'ds_read2_b64 {vr(vEW + 20 + 4 * j, 4)}, v{Rb} offset0:{128 * (j & 1)} offset1:{128 * (j & 1) + 4}')
    a(f'''
    v_and_b32 v{vRed}, 3, v{vL}
    v_lshlrev_b32 v{vRed}, 6, v{vRed}
    v_and_b32 v{vRd}, 48, v{vL}
    v_add_u32 v{vRed}, v{vRd}, v{vRed}
    s_lshr_b32 s{sU1}, s{sW}, 2
    s_lshl_b32 s{sU1}, s{sU1}, 8
    s_and_b32 s{sT}, s{sW}, 3
    s_lshl_b32 s{sT}, s{sT}, 2
    s_add_u32 s{sU1}, s{sU1}, s{sT}
    s_add_u32 s{sU1}, s{sU1}, {RED}
    v_add_u32 v{vRed}, s{sU1}, v{vRed}
    v_and_b32 v{vRd}, 0xf0, v{vL16}
    v_bfe_u32 v{vRow}, v0, 2, 6                    ; lane' = (t'>>1)>>1
    v_lshlrev_b32 v{vRow}, 4, v{vRow}
    s_mov_b32 s{sU2}, 0x05040100
    s_mov_b32 s{sU3}, 0x07060302
    v_add_u32 v{vRow}, {REC_G + REC_H2}, v{vRow}
    v_mov_b32 v18, 0xffffff00
    s_mul_i32 s{sU1}, s{sX}, 12
    s_add_u32 s{sU1}, s{sU1}, s{sRi}
    s_mul_i32 s{sU1}, s{sU1}, {PY_STRIDE}
    s_mul_i32 s{sT}, s{sW}, 640
    s_add_u32 s{sU1}, s{sU1}, s{sT}
    ''')
    base_add(sBb, WS, sU1, PY_G - 20 * PY_STRIDE)
    a('s_waitcnt lgkmcnt(0)')
    if KD == 1:
        bar('B7c')
    if OE == 3:
        bar('B7d')
        a(f's_cmp_lg_u32 s{sCand}, 0')
        a('s_cbranch_scc1 L_noout5')
        out_row()
        a.label('L_noout5')
    for j in range(5):
        r0 = vEW + 20 + 4 * j
        for c in range(4):
            a(f'v_perm_b32 v{vEW + 4 * j + c}, v{r0 + 2 + c // 2}, v{r0 + c // 2}, s{sU3 if c & 1 else sU2}')
    for k in range(4):
        a(f'v_mov_b32 v{36 + k}, 0')

    def fw_unpack():
        a(f's_cmp_ge_u32 s{sW}, 4')
        a('s_cbranch_scc1 L_no_fw')
        for u in range(16):
            if u == 8:
                a('s_waitcnt lgkmcnt(0)')
            a(f'ds_read_b64 {vr(vFW + 32 + 2 * u, 2)}, v{vE0 + 1} offset:{1280 * u}')
        a('s_waitcnt lgkmcnt(0)')
        for k in range(32):
            unpack(vFW + 2 * k, vFW + 2 * k + 1, vFW + 32 + k)
        a.label('L_no_fw')
    if not FWL:
        fw_unpack()
    a.label('L_no_ew')
    a(f's_cmp_eq_u32 s{sCand}, 0')
    a('s_cbranch_scc1 L_nobase')
    a(f'''
    v_mov_b32 v40, v{vO}
    v_mov_b32 v41, v{vO + 1}
    v_mov_b32 v42, v{vO + 2}
    v_mov_b32 v43, s{sTag}
    v_mov_b32 v44, v{vO + 3}
    v_mov_b32 v45, v{vO + 4}
    v_mov_b32 v47, s{sTag}
    ''')

    def base_out():
        a(f'global_store_dwordx4 v{vL16}, v[40:43], {sr(sRec)} offset:{REC_BASE} sc1')
        a(f'global_store_dwordx4 v{vL16}, v[44:47], {sr(sRec)} offset:{REC_BASE + 1024} sc1')
    if BL:
        a(f's_cmp_lt_u32 s{sRi}, 20')
        a('s_cbranch_scc0 L_nobase')
    a('s_waitcnt vmcnt(0)')
    base_out()
    a.label('L_nobase')
    a(f'''
    s_cmp_lt_u32 s{sRi}, 20
    s_cbranch_scc1 L_fin
    v_mov_b32 v{Rb + 2}, {KEYL + 4}
    {'s_barrier' if KD == 2 else ''}
    ''')
    a.label('L_b8')
    fine('e', 'pre-B8')
    a('s_barrier                                   ; B8')
    a(f'''
    ds_read_b32 v{Rb + 3}, v{Rb + 2}
    s_movk_i32 s{sT}, {REC_STRIDE}
    s_waitcnt lgkmcnt(0)
    v_and_b32 v{Rb + 4}, 255, v{Rb + 3}
    v_mad_u32_u24 v{vRow}, v{Rb + 4}, s{sT}, v{vRow}
    ''')
    stamp('B8 done (winner)')
    fine('e', 'B8+')

    def late_out():
        if OE == 0:
            a(f's_cmp_lg_u32 s{sCand}, 0')
            a('s_cbranch_scc1 L_noout2')
            out_row()
            a.label('L_noout2')
        if FWL:
            fw_unpack()
        fine('e', 'behind')
        if OE == 0:
            a(f's_cmp_lg_u32 s{sCand}, 0')
            a('s_cbranch_scc1 L_noout4')
            a('s_waitcnt vmcnt(5)')
            a.label('L_noout3')
            late.append(lambda: (a.label('L_noout4'), a('s_waitcnt vmcnt(0)'), a('s_branch L_noout3')))
        else:
            a('s_waitcnt vmcnt(0)')
    poll([f'global_load_dwordx4 v[20:23], v{vRow}, {sr(WS)} sc1',
          f'global_load_dwordx4 v[24:27], v{vRow}, {sr(WS)} offset:1024 sc1'], [23, 27], [30, 32], empty='word',
         between=late_out, younger=63)
    if BL:
        a(f's_cmp_lg_u32 s{sCand}, 0')
        a('s_cbranch_scc1 L_base2')
        a.label('L_base3')
        late.append(lambda: (a.label('L_base2'), base_out(), a('s_branch L_base3')))
    stamp('row in')
    fine('e', 'row in')
    acc = 36
    for j in range(5):
        for c in (0, 2, 1, 3):
            a(f'v_dot2c_f32_bf16 v{acc + c}, v{vEW + 4 * j + c}, v{20 + j + (j >= 3)}')
    a(f'''
    v_permlane32_swap_b32 v36, v38
    v_permlane32_swap_b32 v37, v39
    v_pk_add_f32 v[36:37], v[36:37], v[38:39]
    v_permlane16_swap_b32 v36, v37
    v_add_f32 v36, v36, v37
    ''')
    for c in ('row_ror:8', 'row_ror:4'):
        dpp('v_add_f32', acc, c)
    a(f'''
    s_mov_b32 exec_lo, 0x000f000f
    s_mov_b32 exec_hi, 0x000f000f
    ds_write_b32 v{vRed}, v{acc}
    s_mov_b64 exec, -1
    s_cmp_ge_u32 s{sW}, 4
    s_waitcnt lgkmcnt(0)
    ''')
    fine('e', 'pre-B9')
    bar('B9')
    fine('e', 'B9')
    a(f'''
    s_cbranch_scc1 L_e_done
    ds_read_b128 v[20:23], v{vRd} offset:{RED}
    ds_read_b128 v[24:27], v{vRd} offset:{RED + 256}
    s_waitcnt lgkmcnt(0)
    v_pk_add_f32 v[20:21], v[20:21], v[22:23]
    v_pk_add_f32 v[24:25], v[24:25], v[26:27]
    v_add_f32 v20, v20, v21
    v_add_f32 v24, v24, v25
    v_mul_f32 v21, 0xbfb8aa3b, v20
    v_exp_f32 v21, v21
    v_mul_f32 v20, v20, v24
    v_add_f32 v21, 1.0, v21
    v_rcp_f32 v21, v21
    v_mul_f32 v20, v20, v21
    ''')
    fine('e', 'gu')
    sG = 8
    for u in range(16):
        a(f'v_readlane_b32 s{sG + u}, v20, {u}')
    for u in range(16):
        for hh in range(2):
            w_ = vr(vFW + 4 * u + 2 * hh, 2)
            g_ = sr(sG + (u & ~1))
            d_ = vr(36 + 2 * hh, 2)
            if u == 0:
                a(f'v_pk_mul_f32 {d_}, {w_}, {g_} op_sel:[0,0] op_sel_hi:[1,0]')
            else:
                a(f'v_pk_fma_f32 {d_}, {w_}, {g_}, {d_} {BC1 if u & 1 else BC0}')
    for k in range(4):
        a(f'v_and_or_b32 v{36 + k}, v{36 + k}, v18, s{sTB + k}')
    a('s_mov_b32 exec_hi, 0xff')
    a(f'global_store_dwordx4 v{vL16}, v[36:39], {sr(sBb)} sc1')
    a('s_mov_b64 exec, -1')
    stamp('PY out')
    fine('e', 'PY out')
    a('s_waitcnt vmcnt(0)')
    a.label('L_e_done')
    bar('B10')
    a.label('L_fin')
    stamp('end')
    fine('e', 'end')
    if FINE:
        a('s_waitcnt lgkmcnt(0)')
    dump_stamps()
    a.label('L_end')
    a('s_endpgm')
    flush_late()


sF1, sF2, sPb, sGw, sWb = 56, 58, 60, 62, 64


def publish(P='H0'):
    a(f'''
    ds_read_b128 v[40:43], v28 offset:{RED}
    ds_read_b128 v[44:47], v28 offset:{RED + 16}
    v_lshl_add_u32 v36, s{sBlk}, 8, v{vL4}
    s_waitcnt lgkmcnt(0)
    v_pk_add_f32 v[40:41], v[40:41], v[42:43]
    v_pk_add_f32 v[44:45], v[44:45], v[46:47]
    v_add_f32 v40, v35, v40
    v_pk_add_f32 v[40:41], v[40:41], v[44:45]
    v_add_f32 v40, v40, v41
    v_and_or_b32 v40, v40, v33, v34
    global_store_dword v36, v40, {sr(WS)} sc1
    ''')
    stamp('published', P)


def w_addr():
    a(f'''
    s_mul_i32 s{sU1}, s{sIdx}, 15
    s_min_u32 s{sU1}, s{sU1}, 306
    s_add_u32 s{sT}, s{sU1}, s{sX}
    s_and_b32 s{sT}, s{sT}, 1
    s_sub_u32 s{sU1}, s{sU1}, s{sT}
    s_mul_i32 s{sU0}, s{sX}, 321
    s_add_u32 s{sU1}, s{sU1}, s{sU0}
    s_lshl_b32 s{sU1}, s{sU1}, 1
    v_lshrrev_b32 v90, 1, v{vL}
    v_mul_u32_u24 v90, 5136, v90
    v_lshlrev_b32 v91, 1, v{vL}
    v_xor_b32 v91, v{vL16}, v91
    v_and_b32 v91, 16, v91
    v_add3_u32 v100, v90, v91, s{sU1}
    ''')


def w_gather(arr, lds):
    for n in range(8):
        a(f's_mov_b32 m0, {lds + 1024 * n}')
        a(f'global_load_lds_dwordx4 v100, {sr(arr)}')
        if n < 7:
            a(f'v_add_u32 v100, {32 * 5136}, v100')


def mask_lanes(n):
    if n >= 64:
        return
    if n > 32:
        a(f's_mov_b32 exec_hi, {hex((1 << (n - 32)) - 1)}')
    else:
        a(f's_mov_b64 exec, {hex((1 << n) - 1)}')


def warm_addr_w():
    a(f'''
    s_sub_u32 s{sU3}, s{sRi}, {12 if W20 else 0}
    s_mul_i32 s{sU3}, s{sU3}, {78 if W20 else 48}
    s_movk_i32 s{sU2}, 0x2aab
    s_mul_i32 s{sU1}, s{sX}, 642
    s_movk_i32 s{sT}, 5136
    ''')
    for n in range(2 if W20 else 1):
        a(f'''
        v_add_u32 v90, s{sU3}, v{vL}
        v_add_u32 v90, {39 * n}, v90
        v_min_u32 v90, 1535, v90
        v_mul_u32_u24 v91, s{sU2}, v90
        v_lshrrev_b32 v91, 16, v91
        v_mul_u32_u24 v92, 6, v91
        v_sub_u32 v92, v90, v92
        v_lshlrev_b32 v92, 7, v92
        v_min_u32 v92, 638, v92
        v_add_u32 v92, s{sU1}, v92
        v_mad_u32_u24 v92, v91, s{sT}, v92
        v_and_b32 v{120 + n}, -4, v92
        ''')


def ffn_parts(slot):
    return [(n, k) for n in range(3) if S_W[n] == slot for k in range(2 if slot == 7 else 1)]


def warm_addr_f(h, slot):
    f, per, lanes = {0: (0, 30, 30), 7: (NJ, 96, 48), 8: (0, 48, 48)}[slot]
    if not ffn_parts(slot):
        return
    a(f'''
    s_sub_u32 s{sU0}, s{sRi}, {f}
    s_mul_i32 s{sU3}, s{sU0}, {per}
    s_mul_i32 s{sU1}, s{sX}, 384
    s_movk_i32 s{sU2}, 0x5556
    s_movk_i32 s{sT}, {3072 - 384}
    s_mul_i32 s{sU0}, s{sX}, 245760
    ''')
    for n, k in ffn_parts(slot):
        d = 130 + 2 * n + k
        a(f'''
        v_add_u32 v90, s{sU3}, v{vL}
        v_add_u32 v90, {lanes * k}, v90
        v_min_u32 v90, 959, v90
        v_add_u32 v90, {960 * (n if n < 2 else h)}, v90
        ''')
        if n < 2:
            a(f'''
            v_mul_u32_u24 v91, s{sU2}, v90
            v_lshrrev_b32 v91, 16, v91
            v_lshl_add_u32 v90, v90, 7, s{sU1}
            v_mad_u32_u24 v{d}, v91, s{sT}, v90
            ''')
        else:
            a(f'v_lshl_add_u32 v{d}, v90, 7, s{sU0}')


def warm_issue(h, slot, sel=None):
    if slot == 0:
        L = newlabel('w20')
        if W20:
            assert not ffn_parts(0)
            a(f's_cmp_lt_u32 s{sRi}, 12')
            a(f's_cbranch_scc1 {L}')
        mask_lanes(39 if W20 else 48)
        for n in range(2 if W20 else 1):
            a(f'global_load_dword v125, v{120 + n}, {sr(W_R if h else W_I)}')
        a.label(L)
    ps = ffn_parts(slot) if sel is None else sel
    if ps:
        mask_lanes(30 if slot == 0 else 48)
    for n, k in ps:
        a(f'global_load_dword v125, v{130 + 2 * n + k}, {sr(W_D if n == 2 else (W_G if h else W_U))}')
    a('s_mov_b64 exec, -1')


def e_addr(mat):
    a(f'''
    s_max_u32 s{sU1}, s{sRi}, 20
    s_mul_i32 s{sU0}, s{sX}, 12
    s_add_u32 s{sU0}, s{sU0}, s{sU1}
    s_sub_u32 s{sU0}, s{sU0}, 20
    s_mul_i32 s{sU1}, s{sU0}, 20480
    s_lshl_b32 s{sU0}, s{sU0}, 5
    v_lshrrev_b32 v128, 1, v{vL}
    v_mul_u32_u24 v128, 3072, v128
    v_and_b32 v90, 16, v{vL16}
    v_add_u32 v128, v128, v90
    ''')
    base_add(sF1, mat, sU0)
    base_add(sGw, W_D, sU1, 10240 if mat == W_U else 0)


def if_e(f):
    L = newlabel('ne')
    a(f's_cmp_lt_u32 s{sRi}, 20')
    a(f's_cbranch_scc1 {L}')
    f()
    a.label(L)


def e_gather(half, n0, n1):
    for n in range(n0, n1):
        a(f's_mov_b32 m0, {EW + (n % 4 + 4 * half) * 5120 + (n // 4) * 1024}')
        a(f'global_load_lds_dwordx4 v128, {sr(sF1)}')
        if n < 19:
            a(f'v_add_u32 v128, {32 * 3072}, v128')


def wd_load(half):
    for n in range(10):
        if n % 4 == 0:
            a(f's_mov_b32 m0, {FW + half * 10240 + n * 1024}')
            a(f'v_add_u32 v90, {1024 * n}, v{vL16}')
        a(f'global_load_lds_dwordx4 v90, {sr(sGw)} offset:{1024 * (n % 4)} {INPOL if S_W[2] == 9 else str()}')


def touch_small():
    if 'k' in TCH:
        a(f's_mul_i32 s{sU0}, s{sMe}, {REC_STRIDE}')
        base_add(sBa, WS, sU0, REC_G)
        a(f'''
        s_mov_b64 exec, 0xff
        global_store_dwordx4 v{vL16}, v[20:23], {sr(sBa)} sc1
        s_mov_b64 exec, -1
        ''')
    if 'p' in TCH:
        def f():
            a(f'''
            s_mul_i32 s{sU1}, s{sX}, 12
            s_add_u32 s{sU1}, s{sU1}, s{sRi}
            s_mul_i32 s{sU1}, s{sU1}, {PY_STRIDE}
            ''')
            base_add(sBa, WS, sU1, PY_G - 20 * PY_STRIDE)
            a(f'''
            global_store_dwordx4 v{vL16}, v[20:23], {sr(sBa)} sc1
            global_store_dwordx4 v{vL16}, v[20:23], {sr(sBa)} offset:1024 sc1
            s_mov_b32 exec_hi, 0
            global_store_dwordx4 v{vL16}, v[20:23], {sr(sBa)} offset:2048 sc1
            s_mov_b64 exec, -1
            ''')
        if_e(f)


def finalizer():
    a(f'''
    s_cmp_ge_u32 s{sRi}, 30
    s_cbranch_scc1 L_hx0
    ds_read_b32 v21, v62
    s_mul_i32 s{sU2}, s{sX}, 10
    s_add_u32 s{sU2}, s{sU2}, s{sRi}
    s_sub_u32 s{sU2}, s{sU2}, 20                   ; f
    v_mov_b32 v26, 0
    v_mov_b32 v27, 0
    s_waitcnt lgkmcnt(0)
    v_readfirstlane_b32 s{sU0}, v21
    s_and_b32 s{sU1}, s{sU0}, 255
    s_mul_i32 s{sU1}, s{sU1}, {REC_STRIDE}
    ''')
    base_add(sBa, WS, sU1, REC_G + REC_BASE)
    done = [f'global_load_dwordx4 v[32:35], v26, {sr(sBa)} sc1']
    a(f'''
    v_and_b32 v20, 1, v{vL}
    v_lshrrev_b32 v21, 4, v{vL}
    v_lshl_add_u32 v20, v20, 2, v21
    s_lshl_b32 s{sT}, s{sU2}, 3
    v_add_u32 v20, s{sT}, v20
    s_lshr_b32 s{sCand}, s{sU2}, 4                 ; j
    s_cmp_ge_u32 s{sCand}, 3
    s_cselect_b32 s{sT}, 3, 0
    s_sub_u32 s{sCand}, s{sCand}, s{sT}            ; dword inside the quad
    s_mul_i32 s{sT}, s{sT}, 342
    s_and_b32 s{sT}, s{sT}, 1024
    v_bfe_u32 v26, v20, 1, 6
    v_lshl_add_u32 v26, v26, 4, s{sT}
    {done[0] if not BL else ''}
    v_lshlrev_b32 v20, 1, v20                      ; 2d
    v_add_u32 v21, {MODB_L + 3840}, v20
    v_mov_b32 v22, 0
    ds_read_u16_d16_hi v22, v21                    ; gb[d]
    s_and_b32 s{sU1}, s{sU0}, 0x7ff
    s_mul_i32 s{sU1}, s{sU1}, 1280
    ''')
    base_add(sXrow, OUTP, sU1)
    a(f'''
    s_and_b32 s{sU1}, s{sU0}, 0xfffff800
    s_or_b32 s{sU1}, s{sU1}, 0x400
    s_xor_b32 s{sU3}, s{sU1}, 0x80000000
    s_not_b32 s{sT}, s{sU1}
    s_cmp_lt_i32 s{sU1}, 0
    s_cselect_b32 s{sU1}, s{sU3}, s{sT}
    v_mov_b32 v28, s{sU1}
    ''')
    a(f'''
    v_mul_f32 v28, 0xbfb8aa3b, v28
    v_exp_f32 v28, v28
    v_add_f32 v28, 1.0, v28
    v_rcp_f32 v28, v28
    ''')
    a(f'''
    v_lshrrev_b32 v29, 1, v{vL}
    v_mul_u32_u24 v29, {PY_STRIDE}, v29
    v_and_b32 v30, 16, v{vL16}
    v_add_u32 v29, v29, v30
    v_add_u32 v30, {32 * PY_STRIDE}, v29
    v_add_u32 v31, {64 * PY_STRIDE}, v29
    s_lshl_b32 s{sU2}, s{sU2}, 5
    ''')
    base_add(sBb, WS, sU2, PY_G)
    a('s_waitcnt lgkmcnt(0)')
    a('v_mul_f32 v22, v22, v28')
    bar('B9')

    def base_in(younger):
        poll(done, [35], [], empty='word', issued=True, younger=younger)
        a(f'''
        s_cmp_eq_u32 s{sCand}, 1
        s_cselect_b64 vcc, -1, 0
        v_cndmask_b32 v27, v32, v33, vcc
        s_cmp_eq_u32 s{sCand}, 2
        s_cselect_b64 vcc, -1, 0
        v_cndmask_b32 v27, v27, v34, vcc
        v_and_b32 v32, 16, v{vL}
        v_lshrrev_b32 v27, v32, v27
        v_lshlrev_b32 v27, 16, v27
        ''')
    if not BL:
        base_in(0)
    bar('B10')
    if PYD:
        a(done[0])
        a('s_waitcnt vmcnt(0)')
    stamp('PY poll', 'H0')
    if BL:
        a(done[0])
    poll([f'global_load_dwordx4 {vr(36 + 4 * n, 4)}, v{29 + n}, {sr(sBb)} sc1' for n in range(3)],
         list(range(36, 48)), [48, 49], empty='tag', between=(lambda: base_in(3)) if BL else None)
    a(f'''
    v_pk_add_f32 v[36:37], v[36:37], v[40:41]
    v_pk_add_f32 v[38:39], v[38:39], v[42:43]
    v_pk_add_f32 v[36:37], v[36:37], v[44:45]
    v_pk_add_f32 v[38:39], v[38:39], v[46:47]
    v_permlane32_swap_b32 v36, v38
    v_permlane32_swap_b32 v37, v39
    v_pk_add_f32 v[36:37], v[36:37], v[38:39]
    v_permlane16_swap_b32 v36, v37
    v_add_f32 v36, v36, v37
    ''')
    for c in ('row_ror:8', 'row_ror:4', 'row_ror:2'):
        dpp('v_add_f32', 36, c)
    a(f'''
    v_fma_f32 v36, v36, v22, v27
    v_cvt_pk_bf16_f32 v36, v36, v36
    s_mov_b32 exec_lo, 0x00030003
    s_mov_b32 exec_hi, 0x00030003
    global_store_short v20, v36, {sr(sXrow)} {FINPOL}
    s_mov_b64 exec, -1
    ''')


def can_addr():
    a(f'''
    v_add_u32 v110, s{sIdx}, v{vL}
    v_and_b32 v110, 7, v110
    v_lshlrev_b32 v114, 5, v110
    v_mul_u32_u24 v110, {NJ}, v110
    v_mul_u32_u24 v110, {T2S}, v110
    s_lshl_b32 s{sU0}, s{sMe}, 6
    s_add_u32 s{sU0}, s{sU0}, {T2_G + CANJ * T2S + 60}
    v_add_u32 v110, s{sU0}, v110
    v_and_b32 v111, 7, v{vL}
    v_lshl_add_u32 v114, v111, 2, v114
    v_mul_u32_u24 v114, {T1S}, v114
    s_min_u32 s{sT}, s{sIdx}, {NJ - 1}
    s_mul_i32 s{sU0}, s{sX}, {NJ}
    s_add_u32 s{sU0}, s{sU0}, s{sT}
    s_lshl_b32 s{sU0}, s{sU0}, 6
    s_add_u32 s{sU0}, s{sU0}, {T1_G + T1S + 60}
    v_add_u32 v114, s{sU0}, v114
    ''')


def can_touch(v):
    mask_lanes(8)
    a(f'global_load_dword v113, v{v}, {sr(WS)} sc1')
    a('s_mov_b64 exec, -1')


def can_wait(v, k):
    L, D = newlabel('can'), newlabel('cand')
    mask_lanes(8)
    a(f'''
    s_mov_b32 s{sCnt}, {SPIN}
    {L}:
    global_load_dword v113, v{v}, {sr(WS)} sc1
    s_waitcnt vmcnt(0)
    v_cmp_eq_u32 vcc, s{sTag}, v113
    s_bcnt1_i32_b64 s{sT}, vcc
    s_cmp_ge_u32 s{sT}, {k}
    s_cbranch_scc1 {D}
    s_sub_u32 s{sCnt}, s{sCnt}, 1
    s_cbranch_scc0 {L}
    {D}:
    s_mov_b64 exec, -1
    ''')


def helper_tail(h, P, red_load, red_work, modf_load, modf_work):
    bar('BT')
    if BG:
        if h == 1:
            a(f's_waitcnt vmcnt({BG - 1})')
        bar('BG')
    bar('BP')
    if WPOS == 1:
        warm_issue(h, 0)
    if h == 0:
        is_b()
        a('s_cbranch_scc0 L_pl')
        publish()
        a.label('L_pl')
    a(f's_cmp_ge_u32 s{sIdx}, {NJ}')
    a(f's_cbranch_scc1 L_idle{h}')
    bar('B2')
    red_load()
    w_gather(W_R if h else W_I, WST + (0 if h else 8192))
    bar('B3')
    a('s_waitcnt vmcnt(0)')
    stamp('W in', P)
    if RE:
        red_work()
    bar('B3b')
    if AL1:
        if K1 and h == 1:
            can_wait(114, K1)
        bar('B3c')
    if K2 and h == 1:
        can_touch(110)
    if h == 0:
        touch_small()
    if not RE:
        red_work()
    bar('B4')
    a('s_waitcnt vmcnt(0)')
    modf_load()
    if EG3:
        if_e(lambda: e_gather(1 - h, 0, EG3))
    bar('B5')
    if h == 0:
        a(f's_cmp_lt_u32 s{sRi}, 20')
        a(f's_waitcnt vmcnt({EG3})')
        a('s_cbranch_scc0 L_h0_m')
        a('s_waitcnt vmcnt(0)')
        a.label('L_h0_m')
    modf_work()
    bar('B5b')
    if AL2:
        if K2 and h == 1:
            can_wait(110, K2)
        bar('B5c')
    if S_W[2] == 8:
        warm_addr_f(h, 8)
    if W8 == 0:
        bar('B6')
    if S_W[2] == 8:
        a(f's_cmp_lt_u32 s{sRi}, 20')
        a(f's_cbranch_scc0 L_w8{h}')
        warm_issue(h, 8)
        a.label(f'L_w8{h}')
    if W8 == 1:
        bar('B6')
    if_e(lambda: (e_gather(1 - h, EG3, 20), wd_load(1 - h) if S_W[2] != 8 else None))
    if h == 0:
        a(f'''
        s_cmp_lg_u32 s2, 8
        s_cbranch_scc1 L_h0_ne
        v_mov_b32 v26, {EPOCH_G}
        s_mov_b64 exec, 1
        global_store_dword v26, v27, {sr(WS)} sc1
        s_mov_b64 exec, -1
        ''')
        a.label('L_h0_ne')
    a.label(f'L_hend{h}')
    a(f'''
    v_mul_u32_u24 v60, {REC_STRIDE}, v{vL}
    v_add_u32 v60, {REC_G + 128 * h * REC_STRIDE}, v60
    v_add_u32 v61, {64 * REC_STRIDE}, v60
    v_mov_b32 v62, {KEYL + 4}
    v_lshlrev_b32 v63, 7, v{vL}
    v_add_u32 v63, {REC_G + REC_H2}, v63
    s_movk_i32 s{sU0}, {REC_STRIDE}
    s_cmp_lt_u32 s{sRi}, 20
    ''')
    bar('B7')
    a('s_waitcnt vmcnt(0)')
    a(f's_cbranch_scc1 L_hx{h}')
    if S_W[2] == 8:
        assert FWL and IWD
        wd_load(1 - h)
    kl = [f'global_load_dwordx2 v[64:65], v60, {sr(WS)} sc1', f'global_load_dwordx2 v[66:67], v61, {sr(WS)} sc1']
    if KP == 1:
        bar('B7b')
    if KD:
        bar('B7c')
    stamp('key poll', P)
    poll(kl, [65, 67], [68, 69], empty='word', between=(lambda: bar('B7b')) if KP == 0 else ((lambda: bar('B7d')) if OE == 3 else None))
    a('v_max_u32 v64, v64, v66')
    for c in ('row_ror:8', 'row_ror:4', 'row_ror:2', 'row_ror:1'):
        dpp('v_max_u32', 64, c)
    a(f'''
    s_mov_b32 exec_lo, 0x00010001
    s_mov_b32 exec_hi, 0x00010001
    ds_max_u32 v62, v64
    s_mov_b64 exec, -1
    s_waitcnt lgkmcnt(0)
    ''')
    bar('B8')
    if h == 0:
        finalizer()
    a.label(f'L_hx{h}')
    stamp('end', P)
    dump_stamps(P)
    a('s_endpgm')
    a.label(f'L_idle{h}')
    warm_addr_f(h, 7)
    ps = ffn_parts(7)
    bar('B2')
    red_load()
    if h == 1:
        a('s_waitcnt vmcnt(0)')
        can_touch(110)
    warm_issue(h, 7, ps[:EARLY])
    bar('B3')
    if RE and h == 0:
        a(f's_waitcnt vmcnt({len(ps[:EARLY])})')
        red_work()
        red_work = lambda: None
    bar('B3b')
    ieg = IEG
    if ISEQ == 0:
        warm_issue(h, 7, ps[EARLY:])
        if h == 0:
            a(f's_waitcnt vmcnt({len(ps)})')
            red_work()
            touch_small()
        nd = sum(1 for n, k in ps[EARLY:] if n == 2)
        a(f's_waitcnt vmcnt({nd + (NT if h == 0 else 0)})')
        stamp('warm in', P)
        e_gather(1 - h, 0, MF)
        modf_load()
        e_gather(1 - h, MF, IEG)
        if IWD == 0:
            wd_load(1 - h)
        if h == 0:
            a(f's_waitcnt vmcnt({IEG - MF + 10 * (IWD == 0)})')
        modf_work()
        bar('B5b')
    else:
        assert EARLY == 2 and S_W[0] == 7
        if h == 0:
            a(f's_waitcnt vmcnt({EARLY})')
            red_work()
            touch_small()
        a(f's_waitcnt vmcnt({NT if h == 0 else 0})')
        stamp('warm in', P)
        e_gather(1 - h, 0, 10)
        if ISEQ == 2:
            a('s_waitcnt vmcnt(0)')
            warm_issue(h, 7, ps[EARLY:])
        if h == 0:
            if ISEQ == 1:
                a('s_waitcnt vmcnt(0)')
            modf_load()
            a('s_waitcnt vmcnt(0)')
        modf_work()
        bar('B5b')
        if ISEQ == 1:
            warm_issue(h, 7, ps[EARLY:])
        ieg = max(IEG, 10)
        if ieg > 10:
            a('s_waitcnt vmcnt(0)')
            e_gather(1 - h, 10, ieg)
    a('s_waitcnt vmcnt(0)')
    stamp('ffn in', P)
    if h == 1:
        can_wait(110, KCAN)
        stamp('can', P)
    bar('B5c')
    bar('B6')
    e_gather(1 - h, ieg, 20)
    if IWD and S_W[2] != 8:
        wd_load(1 - h)
    a(f's_branch L_hend{h}')
    flush_late()


def helper0():
    a.label('L_h0')
    a(f's_mov_b32 s{sHI}, 0xffff0000')
    a(f'''
    v_mov_b32 v20, 0
    v_mov_b32 v21, 0
    v_mov_b32 v22, 0
    v_mov_b32 v23, 0
    v_mov_b32 v28, {KEYL}
    ds_write_b128 v28, v[20:23]
    ''')
    blk_id()
    warm_addr_w()
    warm_addr_f(0, 0)
    a('s_waitcnt lgkmcnt(0)')
    epoch_load()
    bar('B0 / B1')
    if PB:
        is_a()
        a('s_cbranch_scc0 L_h0_v')
        bar('B1b')
        a.label('L_h0_v')
    if WPOS == 0:
        warm_issue(0, 0)
    stamp('kernarg', 'H0')
    e_addr(W_U)
    w_addr()
    a('s_waitcnt lgkmcnt(0)')
    epoch_tag()
    tag_bytes()
    pub_setup(sTag)
    a(f's_lshl_b32 s{sU2}, s{sBlk}, 8')
    base_add(sPb, WS, sU2)
    a(f'''
    v_mov_b32 v27, s{sTag}
    v_lshlrev_b32 v29, 3, v{vL}
    v_add_u32 v29, {MODB_L}, v29
    v_add_u32 v30, {MODF_G}, v{vL16}
    v_add_u32 v31, {MODF_G + 4096}, v{vL16}
    v_add_u32 v32, {MODF_G + 8192}, v{vL16}
    ''')
    red = [f'global_load_dwordx4 v[40:43], v{vL16}, {sr(sPb)} sc1']
    modf = [f'global_load_dwordx4 {vr(40 + 4 * n, 4)}, v{30 + n // 4}, {sr(WS)} offset:{1024 * (n % 4)} sc1' for n in range(10)]

    def in_w1(k):
        L = newlabel('nr')
        a(f'''
        s_sub_u32 s{sT}, s{sBlk}, 80
        s_cmp_lt_u32 s{sT}, 160
        s_cbranch_scc0 {L}
        s_and_b32 s{sT}, s{sBlk}, 3
        s_cbranch_scc1 {L}
        ''')
        if k == 0:
            a(red[0])
            a.label(L)
            return
        poll(red, [40, 41, 42, 43], [44], empty='tag', issued=True, younger=63)
        a(f'''
        v_mov_b32 v44, v40
        v_mov_b32 v45, v41
        v_mov_b32 v46, v42
        v_mov_b32 v47, v43
        s_lshr_b32 s{sU0}, s{sBlk}, 2
        s_sub_u32 s{sT}, s{sU0}, 40
        s_cmp_lt_u32 s{sT}, 10
        s_cselect_b32 s{sU1}, 1.0, 0
        s_lshl_b32 s{sU0}, s{sU0}, 8
        s_add_u32 s{sU0}, s{sU0}, {MODF_G - 20 * 256}
        ''')
        for sw in ('32', '16'):
            for r in range(4):
                a(f'v_permlane{sw}_swap_b32 v{40 + r}, v{44 + r}')
            a('v_pk_add_f32 v[40:41], v[40:41], v[44:45]')
            a('v_pk_add_f32 v[42:43], v[42:43], v[46:47]')
            if sw == '32':
                for r in range(4):
                    a(f'v_mov_b32 v{44 + r}, v{40 + r}')
        a('v_cvt_pk_bf16_f32 v44, v40, v41')
        a('v_cvt_pk_bf16_f32 v45, v42, v43')
        unpack(40, 41, 44)
        unpack(42, 43, 45)
        for r in range(4):
            a(f'v_add_f32 v{40 + r}, s{sU1}, v{40 + r}')
        a(f'''
        v_cvt_pk_bf16_f32 v44, v40, v41
        v_cvt_pk_bf16_f32 v45, v42, v43
        v_mov_b32 v47, s{sTag}
        v_add_u32 v48, s{sU0}, v{vL16}
        s_mov_b64 exec, 0xffff
        global_store_dwordx4 v48, v[44:47], {sr(WS)} sc1
        s_mov_b64 exec, -1
        ''')
        stamp('reduced', 'H0')
        a.label(L)

    def in_w2(k):
        if k == 0:
            for ld in modf:
                a(ld)
            return
        poll(modf, [43 + 4 * n for n in range(10)], list(range(80, 90)), empty='words', issued=True, younger=63)
        for n in range(10):
            a(f'ds_write_b64 v29, {vr(40 + 4 * n, 2)} offset:{512 * n}')
        a('s_waitcnt lgkmcnt(0)')
        stamp('modb in', 'H0')
    helper_tail(0, 'H0', lambda: in_w1(0), lambda: in_w1(2), lambda: in_w2(0), lambda: in_w2(1))


def helper1():
    a.label('L_h1')
    a(f'''
    s_getpc_b64 {sr(sBa)}
    L_pc:
    s_add_u32 s{sBb}, s{sBa}, L_tables-L_pc
    s_addc_u32 s{sBb + 1}, s{sBa + 1}, 0
    ''')

    def tabs(q0, q1):
        for q in range(q0, q1):
            if q % 4 == 0 or q == q0:
                a(f's_mov_b32 m0, {TAB + (q & ~3) * 1024}')
                a(f'v_add_u32 v20, {(q & ~3) * 1024}, v{vL16}')
            a(f'global_load_lds_dwordx4 v20, {sr(sBb)} offset:{1024 * (q % 4)}')

    def tab2():
        tabs(NT1, NTAB)
        a(f'''
        s_mov_b32 m0, {WR_L}
        global_load_lds_dwordx4 v{vL16}, {sr(B_WR)}
        s_mov_b64 exec, 0xffff
        global_load_lds_dwordx4 v{vL16}, {sr(B_WR)} offset:1024
        s_mov_b64 exec, -1
        ''')
        return NTAB - 14 + 2

    if AT == 2:
        tabs(0, NT1)
    warm_addr_w()
    warm_addr_f(1, 0)
    a('s_waitcnt lgkmcnt(0)')
    epoch_load()
    if AT == 0:
        blk_id()
        is_a()
        a('s_cbranch_scc0 L_h1_t')
        bar('B1')
        if PB:
            bar('B1b')
        a.label('L_h1_t')
    if AT < 2:
        tabs(0, NT1)
    if HB:
        e_addr(W_G)
        w_addr()
    if AT == 0:
        is_a()
        a('s_cbranch_scc1 L_h1_v')
    bar('B0 / B1')
    if AT and PB:
        blk_id()
        is_a()
        a('s_cbranch_scc0 L_h1_v')
        bar('B1b')
    a.label('L_h1_v')
    tab2()
    can_addr()
    if K1:
        can_touch(114)
    if WPOS == 0:
        warm_issue(1, 0)
    if not HB:
        e_addr(W_G)
        w_addr()
    a('s_waitcnt lgkmcnt(0)')
    epoch_tag()
    a(f's_waitcnt vmcnt({NTAB - NT1 + 2 + (K1 > 0) + (1 + len(ffn_parts(0))) * (WPOS == 0 and not W20)})')
    stamp('tab in', 'H1')
    nop = lambda: None
    helper_tail(1, 'H1', nop, nop, nop, nop)


prologue()
main_path()
helper0()
helper1()
body = a.finish()

hdr = open(f'cdna_kernels/{NAME}.s.ref').read().split('; Override launch')[0]
T = tables()
tab = []
flat = T.reshape(-1)
for k in range(0, flat.size, 8):
    tab.append('.long ' + ','.join('0x%08x' % v for v in flat[k:k + 8]))

launch = f'; @launch grid=(256,1,1) block=(640,1,1) lds={LDS_BYTES}'
pre_code = pre_kd = ''
if PRE:
    launch = f'; @launch kernel=pre_kernel grid=({PRE},1,1) block=(64,1,1) lds=0\n; @launch kernel={NAME}_kernel grid=(256,1,1) block=(640,1,1) lds={LDS_BYTES}'
    pre_code = '.globl pre_kernel\n.p2align 8\n.type pre_kernel,@function\npre_kernel:\n    s_endpgm\n'
    pre_kd = '''.p2align 6
.amdhsa_kernel pre_kernel
  .amdhsa_next_free_vgpr 8
  .amdhsa_next_free_sgpr 16
  .amdhsa_accum_offset 8
  .amdhsa_group_segment_fixed_size 0
  .amdhsa_kernarg_size 104
  .amdhsa_user_sgpr_count 2
  .amdhsa_user_sgpr_kernarg_segment_ptr 1
  .amdhsa_system_sgpr_workgroup_id_x 1
.end_amdhsa_kernel
'''
src = hdr + f'''{launch}
.amdgcn_target "amdgcn-amd-amdhsa--gfx950"
.text
{pre_code}.globl {NAME}_kernel
.p2align 8
.type {NAME}_kernel,@function
{NAME}_kernel:
{body}
.p2align 8
.type L_tables,@object
L_tables:
''' + '\n'.join(tab) + f'''
.size L_tables, {NTAB * 1024}
.fill (8192 - ((. - {NAME}_kernel) & 8191)) & 8191, 1, 0
L_tables_end:
.section .rodata,"a"
.p2align 6
.amdhsa_kernel {NAME}_kernel
  .amdhsa_next_free_vgpr 168
  .amdhsa_next_free_sgpr 102
  .amdhsa_accum_offset 168
  .amdhsa_group_segment_fixed_size 0
  .amdhsa_kernarg_size 104
  .amdhsa_user_sgpr_count 2
  .amdhsa_user_sgpr_kernarg_segment_ptr 1
  .amdhsa_system_sgpr_workgroup_id_x 1
.end_amdhsa_kernel
{pre_kd}'''
open(OUT, 'w').write(src)
print('wrote', OUT, 'lds', LDS_BYTES, 'lines', len(a.lines), 'nops', a.nnops)
```

```python
import sys, struct
import numpy as np
from asmdsl import Asm

NAME = 'adaLN_cond__spectral_gfnet__moe_arch_mod__prompt'
DIAG = '--diag' in sys.argv or '--dbgdiag' in sys.argv
DBGDIAG = '--dbgdiag' in sys.argv
OUT = [a for a in sys.argv[1:] if not a.startswith('--')]
OUT = OUT[0] if OUT else f'cdna_kernels/{NAME}.s'
SPIN = 60000


def opt(name, default):
    for x in reversed(sys.argv):
        if x.startswith(f'--{name}='):
            return x.split('=', 1)[1]
    return default


PROBE = opt('probe', None)
if PROBE:
    PROBE = PROBE.replace('_', ' ')
PROBEWG = int(opt('probewg', 8))
FINE = opt('fine', None)
if PROBE or FINE:
    DIAG = True
PRE = None
INPOL = 'nt'
S_W = [int(x) for x in opt('sw', '777')]
EG3 = int(opt('eg3', 10))
PACE1 = int(opt('pace1', 0))
PACE2 = int(opt('pace2', 0))
PK = opt('pk', '110')
P3FIRST = int(opt('p3first', 1))
WFIRST = int(opt('wfirst', 1))
DR1 = int(opt('dr1', 0))
DR2 = int(opt('dr2', 0))
BGWAIT = int(opt('bgwait', 9))
EARLY = int(opt('early', 2))
MATS = int(opt('mats', 2))
IEG = int(opt('ieg', 16))
IWD = int(opt('iwd', 1))
MF = int(opt('mf', 10))
MR = int(opt('mr', 0))
BLOAD = int(opt('bload', 2))
P2ORD = int(opt('p2ord', 2))
GLATE = int(opt('glate', 0))
B0 = int(opt('b0', 3))
FWL = int(opt('fwl', 0))
KP = int(opt('kp', 1))
PF = int(opt('pf', 0))
XL = int(opt('xl', 3))
WC = int(opt('wc', 0))
KD = int(opt('kd', 0))
ISEQ = int(opt('iseq', 0))
RE = int(opt('re', 1))
FINPOL = opt('finpol', '')
PYD = int(opt('pyd', 0))
TCH = opt('tch', 'mkp')
NT = ('k' in TCH) + 3 * ('p' in TCH)
PKS = int(opt('pks', 1))
P3O = int(opt('p3o', 0))
PRIO = opt('prio', '000')
AL1 = int(opt('al1', 0))
AL2 = int(opt('al2', 0))
OE = int(opt('oe', 1))
BL = int(opt('bl', 0))
PL = int(opt('pl', 1))
AW = int(opt('aw', 1))
W8 = int(opt('w8', 0))
TB2 = int(opt('tb2', 0))
MW = int(opt('mw', 0))
XMAP = int(opt('xmap', '0x35762410'), 16)
EX = int(opt('ex', 0))
AT = int(opt('at', 1))
AX = int(opt('ax', 1))
WPOS = int(opt('wpos', 0))
SC_ = int(opt('sc', 1))
XP = int(opt('xp', 0))
BG = int(opt('bg', 0))
MT = int(opt('mt', 1))
S1 = int(opt('s1', 3))
PB = int(opt('pb', 1))
GB = int(opt('gb', 0))
W20 = int(opt('w20', 0))
HB = int(opt('hb', 0))
KCAN = int(opt('kcan', 5))
K1 = int(opt('k1', 0))
K2 = int(opt('k2', 0))
AWE = int(opt('awe', 0))
RI = int(opt('ri', 0))
TF = opt('tf', '')
XX = opt('xx', '')
NCAN = int(opt('ncan', 8))
CANJ = int(opt('canj', 12))
NJ = 22
T1S = 8 * NJ * 64 + int(opt('t1pad', 128))
T2S = 16384 + int(opt('t2pad', 256))

MODA_G = 0
MODF_G = 61440
EPOCH_G = 73728
PY_G = 0x20000
PY_STRIDE = 2688
REC_G = 0x80000
REC_STRIDE = 4224
REC_H2 = 128
REC_BASE = 128 + 2048
T1_G = 0x400000
T2_G = 0x800000
DIAG_G = 0xC00000

NTAB = 26
TAB = 0
RED = TAB + NTAB * 1024
KEYL = RED + 2048
XB2 = KEYL + 64
SA = 736
XB1 = XB2 + 20480
MODA_L = XB1 + 16 * SA
MODB_L = MODA_L + 5120
WR_L = MODB_L + 5120
WST = WR_L + 2048
EW = WST + 16384
FW = EW + 40960
STL = FW + 20480
LDS_BYTES = STL + 256
assert LDS_BYTES <= 163840, LDS_BYTES

T_F20C, T_F20S, T_TW1, T_F32A, T_ADR, T_TW3, T_F20I, T_F32B, T_F16, T_TW2 = 0, 1, 2, 6, 10, 11, 15, 18, 22, 24
NT1 = 11


def f2u(x):
    return struct.unpack('<I', struct.pack('<f', float(x)))[0]


def bf(x):
    u = f2u(x)
    return ((u + 0x7FFF + ((u >> 16) & 1)) >> 16) & 0xFFFF


def pk(lo, hi):
    return bf(lo) | (bf(hi) << 16)


ALPHA = {16: 1.1328, 20: 1.4294, 32: 1.62445}


def cs(num, den):
    a = 2 * np.pi * (num % den) / den
    c, s = np.cos(a), np.sin(a)
    if abs(c) < 1e-12: c = 0.0
    if abs(s) < 1e-12: s = 0.0
    al = ALPHA.get(den, 1.0)
    return c * al, s * al


def kaof(x):
    ka = 3 * (x >> 2) + (x & 3)
    return ka if (x & 3) < 3 and ka <= 10 else None


def tables():
    T = np.zeros((NTAB, 64, 4), np.uint32)
    for l in range(64):
        i, g = l & 15, l >> 4
        c8, s8 = [0.0] * 8, [0.0] * 8
        for j in range(5):
            if kaof(i) is not None:
                c, s = cs((4 * j + g) * kaof(i), 20)
                c8[j], s8[j] = c, -s
        for d in range(4):
            T[T_F20C, l, d] = pk(c8[2 * d], c8[2 * d + 1])
            T[T_F20S, l, d] = pk(s8[2 * d], s8[2 * d + 1])
        for t in range(2):
            for r in range(4):
                c, s = cs((8 * g + 2 * r + t) * (kaof(i) or 0), 640)
                T[T_TW1 + 2 * t, l, r] = f2u(c)
                T[T_TW1 + 2 * t + 1, l, r] = f2u(s)
                c, s = cs((2 * i + t) * (kaof(4 * g + r) or 0), 640)
                T[T_TW3 + 2 * t, l, r] = f2u(c)
                T[T_TW3 + 2 * t + 1, l, r] = f2u(s)
        kbof = lambda e: e if e < 16 else 47 - e
        for tile in range(2):
            for ks in range(2):
                for r in range(4):
                    c, s = cs(kbof(2 * i + tile) * (8 * g + 2 * r + ks), 32)
                    T[T_F32A + tile * 2 + ks, l, r] = pk(c, s)
                    c, s = cs((2 * i + tile) * kbof(8 * g + 2 * r + ks), 32)
                    T[T_F32B + tile * 2 + ks, l, r] = pk(c, s)
        ka_ = kaof(i)
        k0 = 0 if ka_ is None else (160 * g + ka_ if g < 2 else 160 * g - 300 - ka_)
        T[T_ADR, l, 0] = 8 * k0
        T[T_ADR, l, 1] = 0x8000 if i < 8 else 0x80000000
        T[T_ADR, l, 2] = 0 if g < 2 else 0x8000
        T[T_ADR, l, 3] = 0x8000 if g < 2 else 0
        for r in range(4):
            c, s = cs(i * (4 * g + r), 16)
            T[T_F16, l, r] = pk(c, s)
            T[T_F16 + 1, l, r] = pk(-s, c)
            c, s = cs(i * (4 * g + r), 256)
            T[T_TW2, l, r] = f2u(c)
            T[T_TW2 + 1, l, r] = f2u(s)
            ka = kaof(4 * g + r)
            if ka is not None:
                a1 = 4 * (i & 3) + (i >> 2)
                c, s = cs(a1 * ka, 20)
                T[T_F20I, l, r] = pk(c, -s)
                c, s = cs((16 + (i >> 2)) * ka, 20)
                if (i & 3) == 0:
                    T[T_F20I + 1, l, r] = pk(c, -s)
                if (i & 3) == 1:
                    T[T_F20I + 2, l, r] = pk(c, -s)
    return T


def vr(a, n=1):
    return f'v{a}' if n == 1 else f'v[{a}:{a + n - 1}]'


def sr(a, n=2):
    return f's{a}' if n == 1 else f's[{a}:{a + n - 1}]'


sW, sX, sIdx, sMe, sT = 3, 4, 5, 6, 7
A_X, W_R, W_I, B_WR, W_G, W_U, W_D = 8, 10, 12, 16, 18, 20, 22
C_, W_MOD, OUTP, DBG, WS = 24, 26, 28, 30, 32
sBa, sBb, sBc = 34, 36, 38
sCnt = 40
sM1B = 41
sU0, sU1, sU2, sU3 = 42, 43, 46, 47
sM7 = 44
sRow = 48
sKey = 49
sV1, sV2 = 50, 51
sHI = 52
sCand = 53
sBlk = 54
sRec = 56
sTag = 55
sRi = sIdx
sGU = 56
sXrow = 72
sTS = 74

vL, vL16, vL4, vS, vPoll = 1, 2, 3, 4, 5
vM8F, vM8I = 6, 8
vXS = 10
Ra, Rb, RD, Rc = 20, 28, 36, 52
vF32 = 60
vTW = 92
vF20 = 108
vVec = 120
vE0 = 160
vXR = 150


a = Asm()
stamps = {}
NST = 24


def stamp(name, path='M', wait=True):
    if not DIAG or FINE:
        return
    if opt('only', None) and not (name == 'start' or any(name.startswith(x.replace('_', ' ')) for x in opt('only', '').split(','))):
        return
    if PROBE and (path != 'M' or not (name == 'start' or name.startswith(PROBE))):
        return
    lst = stamps.setdefault(path, [])
    if name not in lst:
        lst.append(name)
    k = lst.index(name)
    assert k < NST
    a(f's_memrealtime s[100:101]')
    a('s_waitcnt lgkmcnt(0)')
    a(f's_mov_b32 s{sTS + k}, s100')


fines = []


def fine(group, name):
    if FINE != group:
        return
    if name not in fines:
        fines.append(name)
    k = fines.index(name)
    assert k < 12
    a(f's_memtime {sr(sTS + 2 * k)}')


def dump_stamps(path='M'):
    if not DIAG:
        return
    if PROBE:
        if path != 'M':
            return
        a(f'''
        s_cmp_lg_u32 s2, {PROBEWG}
        s_cbranch_scc1 L_end
        s_cmp_lg_u32 s{sW}, 0
        s_cbranch_scc1 L_end
        ''')
        if PROBE == 'fix':
            a(f's_movk_i32 s{sU0}, 6000')
        elif PROBE == 'rel':
            RX = int(opt('rx', 1))
            a(f'''
            v_mov_b32 v20, {DIAG_G}
            global_load_dword v21, v20, {sr(WS)} sc1
            global_load_dword v22, v20, {sr(WS)} offset:{128 * RX} sc1
            s_waitcnt vmcnt(0)
            v_sub_u32 v21, v22, v21
            v_add_u32 v21, 100, v21
            v_readfirstlane_b32 s{sU0}, v21
            s_lshl_b32 s{sU0}, s{sU0}, 5
            s_add_u32 s{sU0}, s{sU0}, 6000
            s_min_u32 s{sU0}, s{sU0}, 100000
            ''')
        elif PROBE == 'xcc':
            a(f's_getreg_b32 s{sU0}, hwreg(HW_REG_XCC_ID)')
            a(f's_and_b32 s{sU0}, s{sU0}, 15')
            a(f's_mul_i32 s{sU0}, s{sU0}, 1000')
            a(f's_add_u32 s{sU0}, s{sU0}, 6000')
        else:
            a(f's_sub_u32 s{sU0}, s{sTS + 1}, s{sTS}')
            a(f's_lshl_b32 s{sU0}, s{sU0}, 4')
            a(f's_add_u32 s{sU0}, s{sU0}, 6000')
            a(f's_min_u32 s{sU0}, s{sU0}, 100000')
        a(f'''
        L_probe:
        s_memrealtime s[100:101]
        s_waitcnt lgkmcnt(0)
        s_sub_u32 s{sU1}, s100, s{sTS}
        s_cmp_lt_u32 s{sU1}, s{sU0}
        s_cbranch_scc1 L_probe
        ''')
        return
    if DBGDIAG:
        if path != 'M':
            return
        a('v_mov_b32 v20, 0')
        a('s_mov_b64 exec, 1')
        a(f's_not_b32 s{sU0}, s{sTS}')
        a(f'v_mov_b32 v22, s{sU0}')
        a(f'global_atomic_umax v20, v22, {sr(DBG)} offset:4 sc1')
        ks = [0] + list(range(2, len(stamps['M'])))
        for n, k in enumerate(ks[:14]):
            a(f'v_mov_b32 v{23 + n}, s{sTS + k}')
            a(f'global_atomic_umax v20, v{23 + n}, {sr(DBG)} offset:{8 + 4 * n} sc1')
        print('dbg slots:', [(2 + n, stamps['M'][k]) for n, k in enumerate(ks[:14])])
        return
    a(f'''
    s_lshl_b32 s{sU0}, s2, 11
    s_lshl_b32 s{sU1}, s{sW}, 7
    s_add_u32 s{sU0}, s{sU0}, s{sU1}
    s_memtime s[100:101]
    ''')
    base_add(sBa, WS, sU0, DIAG_G)
    a('v_mov_b32 v20, 0')
    a('s_mov_b64 exec, 1')
    for k in range(0, NST, 2):
        a(f'v_mov_b32 v22, s{sTS + k}')
        a(f'v_mov_b32 v23, s{sTS + k + 1}')
        a(f'global_store_dwordx2 v20, v[22:23], {sr(sBa)} offset:{4 * k}')
        a('s_nop 1')
    a('s_waitcnt lgkmcnt(0)')
    a('s_sub_u32 s100, s100, s98')
    a('v_mov_b32 v22, s100')
    a(f'global_store_dword v20, v22, {sr(sBa)} offset:112')
    a('s_getreg_b32 s42, hwreg(HW_REG_XCC_ID)')
    a('s_getreg_b32 s43, hwreg(HW_REG_HW_ID)')
    a('v_mov_b32 v22, s42')
    a('v_mov_b32 v23, s43')
    a(f'global_store_dwordx2 v20, v[22:23], {sr(sBa)} offset:120')


def base_add(dst, src, off_s=None, imm=0):
    if off_s is not None:
        if imm:
            a(f's_add_u32 s{sT}, s{off_s}, {imm}')
            off_s = sT
        a(f's_add_u32 s{dst}, s{src}, s{off_s}')
    else:
        a(f's_add_u32 s{dst}, s{src}, {imm}')
    a(f's_addc_u32 s{dst + 1}, s{src + 1}, 0')


lblc = [0]
late = []


def flush_late():
    for f in late:
        f()
    late.clear()


def newlabel(p):
    lblc[0] += 1
    return f'L_{p}_{lblc[0]}'


def poll(loads, regs, tmp, mask=None, empty='eq -1', between=None, younger=0, issued=False):
    L, D, Cc = newlabel('poll'), newlabel('polld'), newlabel('pollc')
    if mask is not None:
        mask_lanes(mask)
    if not issued:
        for ld in loads:
            a(ld)
    a(f's_mov_b32 s{sCnt}, {SPIN}')
    if between is not None:
        between()
    if younger < 63:
        a(f's_waitcnt vmcnt({younger})')
    a.label(Cc)

    def retry():
        a.label(L)
        a(f's_sub_u32 s{sCnt}, s{sCnt}, 1')
        a(f's_cbranch_scc1 {D}')
        for ld in loads:
            a(ld)
        a('s_waitcnt vmcnt(0)')
        a(f's_branch {Cc}')
    late.append(retry)
    if empty == 'tag':
        for n, r in enumerate(regs):
            a(f'v_xor_b32 v{r}, s{sTB + (n & 3)}, v{r}')
        rem = list(regs)
        for c in tmp:
            a(f'v_or3_b32 v{c}, v{rem[0]}, v{rem[1]}, v{rem[2]}')
            rem = rem[3:]
        n = 0
        while len(rem) >= 2:
            c = tmp[n % len(tmp)]
            a(f'v_or3_b32 v{c}, v{c}, v{rem[0]}, v{rem[1]}')
            rem = rem[2:]
            n += 1
        t = tmp[0]
        rem = rem + list(tmp[1:])
        while rem:
            if len(rem) >= 2:
                a(f'v_or3_b32 v{t}, v{t}, v{rem[0]}, v{rem[1]}')
                rem = rem[2:]
            else:
                a(f'v_or_b32 v{t}, v{t}, v{rem[0]}')
                rem = rem[1:]
        a(f'v_and_b32 v{t}, 0xff, v{t}')
        empty = 'ne 0'
    elif empty == 'word':
        if len(regs) == 1:
            t = regs[0]
            empty = f'ne s{sTag}'
        else:
            assert len(regs) == 2
            t = tmp[0]
            a(f'v_xor_b32 v{t}, v{regs[0]}, v{regs[1]}')
            a(f'v_xor_b32 v{tmp[1]}, s{sTag}, v{regs[0]}')
            a(f'v_or_b32 v{t}, v{t}, v{tmp[1]}')
            empty = 'ne 0'
    elif empty == 'words':
        for n, r in enumerate(regs):
            a(f'v_xor_b32 v{tmp[n]}, s{sTag}, v{r}')
        t = tmp[0]
        rem = list(tmp[1:len(regs)])
        while rem:
            if len(rem) >= 2:
                a(f'v_or3_b32 v{t}, v{t}, v{rem[0]}, v{rem[1]}')
                rem = rem[2:]
            else:
                a(f'v_or_b32 v{t}, v{t}, v{rem[0]}')
                rem = rem[1:]
        empty = 'ne 0'
    elif len(regs) == 1:
        t = regs[0]
    else:
        rem = list(regs)
        outs = []
        k = 0
        while len(rem) >= 3 and k < len(tmp):
            a(f'v_max3_u32 v{tmp[k]}, v{rem[0]}, v{rem[1]}, v{rem[2]}')
            outs.append(tmp[k])
            rem = rem[3:]
            k += 1
        rem = outs[1:] + rem
        t = outs[0] if outs else None
        if t is None:
            t = tmp[0]
            a(f'v_max_u32 v{t}, v{rem[0]}, v{rem[1]}')
            rem = rem[2:]
        while rem:
            if len(rem) >= 2:
                a(f'v_max3_u32 v{t}, v{t}, v{rem[0]}, v{rem[1]}')
                rem = rem[2:]
            else:
                a(f'v_max_u32 v{t}, v{t}, v{rem[0]}')
                rem = rem[1:]
    a(f'v_cmpx_{empty.split()[0]}_u32 vcc, {empty.split()[1]}, v{t}')
    a(f's_cbranch_execnz {L}')
    a.label(D)
    a('s_mov_b64 exec, -1')


def epoch_load():
    a(f's_load_dword s{sTag}, {sr(WS)}, {EPOCH_G}')


def epoch_tag(d=None):
    d = d or sTag
    a(f'''
    s_and_b32 s{d}, s{sTag}, 0x7f7f7f7f
    s_add_u32 s{d}, s{d}, 0x01010101
    s_or_b32 s{d}, s{d}, 0x80808080
    ''')


sTB = 68


def tag_bytes():
    for k in range(4):
        a(f's_bfe_u32 s{sTB + k}, s{sTag}, {hex(0x80000 | (8 * k))}')


def dpp(op, r, ctrl, rm='0xf'):
    a(f'{op}_dpp v{r}, v{r}, v{r} {ctrl} row_mask:{rm} bank_mask:0xf')


def wave_sum(regs, dst_s, op='v_add_f32'):
    for c in ('row_ror:8', 'row_ror:4', 'row_ror:2', 'row_ror:1'):
        for r in regs:
            dpp(op, r, c)
    for r in regs:
        dpp(op, r, 'row_bcast:15', '0xa')
    for r in regs:
        dpp(op, r, 'row_bcast:31', '0xc')
    for r, s in zip(regs, dst_s):
        a(f'v_readlane_b32 s{s}, v{r}, 63')


def rbf(dst, src):
    a(f'v_cvt_pk_bf16_f32 v{dst}, {src}, {src}')
    a(f'v_and_b32 v{dst}, s{sHI}, v{dst}')


def unpack(dlo, dhi, src):
    a(f'v_lshlrev_b32 v{dlo}, 16, v{src}')
    a(f'v_and_b32 v{dhi}, s{sHI}, v{src}')


def mfma32(d, x, y, c=None):
    a(f'v_mfma_f32_16x16x32_bf16 {vr(d, 4)}, {vr(x, 4)}, {vr(y, 4)}, {vr(c, 4) if c is not None else 0}')


def mfma16(d, x, y):
    a(f'v_mfma_f32_16x16x16_bf16 {vr(d, 4)}, {vr(x, 2)}, {vr(y, 2)}, 0')


def cmul(tr, ti, re, im, c, s, sign, pk=True, n=4, head=0):
    if not pk:
        for r in range(n):
            a(f'v_mul_f32 v{tr + r}, v{re + r}, v{c + r}')
        for r in range(n):
            a(f'v_mul_f32 v{ti + r}, v{im + r}, v{c + r}')
        for r in range(n):
            if sign > 0:
                a(f'v_fma_f32 v{tr + r}, -v{im + r}, v{s + r}, v{tr + r}')
                a(f'v_fmac_f32 v{ti + r}, v{re + r}, v{s + r}')
            else:
                a(f'v_fmac_f32 v{tr + r}, v{im + r}, v{s + r}')
                a(f'v_fma_f32 v{ti + r}, -v{re + r}, v{s + r}, v{ti + r}')
        return
    nr = 'neg_lo:[1,0,0] neg_hi:[1,0,0]'
    for h in (0, 2):
        if head:
            a(f'v_mul_f32 v{tr + h}, v{re + h}, v{c + h}')
            a(f'v_mul_f32 v{tr + h + 1}, v{re + h + 1}, v{c + h + 1}')
        else:
            a(f'v_pk_mul_f32 {vr(tr + h, 2)}, {vr(re + h, 2)}, {vr(c + h, 2)}')
    for h in (0, 2):
        a(f'v_pk_mul_f32 {vr(ti + h, 2)}, {vr(im + h, 2)}, {vr(c + h, 2)}')
    for h in (0, 2):
        a(f'v_pk_fma_f32 {vr(tr + h, 2)}, {vr(im + h, 2)}, {vr(s + h, 2)}, {vr(tr + h, 2)} {nr if sign > 0 else ""}')
    for h in (0, 2):
        a(f'v_pk_fma_f32 {vr(ti + h, 2)}, {vr(re + h, 2)}, {vr(s + h, 2)}, {vr(ti + h, 2)} {nr if sign < 0 else ""}')


def pack4(d, lo, hi, step=1, n=4):
    for r in range(n):
        a(f'v_cvt_pk_bf16_f32 v{d + r * step}, v{lo + r}, v{hi + r}')


def tab_read(dst, q):
    a(f'ds_read_b128 {vr(dst, 4)}, v{vL16} offset:{TAB + q * 1024}')


def tm(j, t):
    return 4 * t + j if j < 4 else 8 + t


def read_tmajor(dst, vaddr, off):
    o = off // 256
    assert off % 256 == 0 and o + 6 < 256
    for t in range(2):
        a(f'ds_read2st64_b32 {vr(dst + 4 * t, 2)}, v{vaddr + t} offset0:{o} offset1:{o + 2}')
        a(f'ds_read2st64_b32 {vr(dst + 4 * t + 2, 2)}, v{vaddr + t} offset0:{o + 4} offset1:{o + 6}')
    a(f'ds_read_b64 {vr(dst + 8, 2)}, v{vaddr} offset:{off + 2048}')


def silu(dst, src, tmp):
    for d, s, t in zip(dst, src, tmp):
        a(f'v_mul_f32 v{t}, 0xbfb8aa3b, v{s}')
    for t in tmp:
        a(f'v_exp_f32 v{t}, v{t}')
    for t in tmp:
        a(f'v_add_f32 v{t}, 1.0, v{t}')
    for t in tmp:
        a(f'v_rcp_f32 v{t}, v{t}')
    for d, s, t in zip(dst, src, tmp):
        a(f'v_mul_f32 v{d}, v{s}, v{t}')


def swap_reduce8(acc):
    for k in range(4):
        a(f'v_permlane32_swap_b32 v{acc + k}, v{acc + k + 4}')
    a(f'v_pk_add_f32 {vr(acc, 2)}, {vr(acc, 2)}, {vr(acc + 4, 2)}')
    a(f'v_pk_add_f32 {vr(acc + 2, 2)}, {vr(acc + 2, 2)}, {vr(acc + 6, 2)}')
    for k in range(2):
        a(f'v_permlane16_swap_b32 v{acc + k}, v{acc + k + 2}')
    a(f'v_pk_add_f32 {vr(acc, 2)}, {vr(acc, 2)}, {vr(acc + 2, 2)}')


BC0 = 'op_sel:[0,0,0] op_sel_hi:[1,0,1]'
BC1 = 'op_sel:[0,1,0] op_sel_hi:[1,1,1]'


def prologue():
    a(f'''
    s_cmp_ge_u32 s2, 256
    s_cbranch_scc1 L_end
    ''')
    if DIAG:
        for k in range(NST):
            a(f's_mov_b32 s{sTS + k}, 0')
        a('s_memtime s[98:99]')
        for p in ('M', 'H0', 'H1'):
            stamps[p] = ['start']
        stamp('start')
    a(f'''
    s_load_dwordx16 s[8:23], s[0:1], 0
    s_load_dwordx8 s[24:31], s[0:1], 64
    s_load_dwordx2 s[32:33], s[0:1], 96
    v_lshrrev_b32 v20, 6, v0
    s_and_b32 s{sX}, s2, 7
    s_lshr_b32 s{sIdx}, s2, 3
    v_readfirstlane_b32 s{sW}, v20
    v_and_b32 v{vL}, 63, v0
    s_lshl_b32 s{sMe}, s{sX}, 5
    s_add_u32 s{sMe}, s{sMe}, s{sIdx}
    v_lshlrev_b32 v{vL16}, 4, v{vL}
    v_lshlrev_b32 v{vL4}, 2, v{vL}
    s_cmp_eq_u32 s{sW}, 9
    s_cbranch_scc1 L_h1
    s_cmp_eq_u32 s{sW}, 8
    s_cbranch_scc1 L_h0
    s_cmp_eq_u32 s{sRi}, 30
    s_cbranch_scc0 L_nopf
    s_cmp_ge_u32 s{sW}, (L_tables_end-{NAME}_kernel)/8192
    s_cbranch_scc1 L_nopf
    s_getpc_b64 {sr(sBa)}
    L_pc0:
    s_sub_u32 s{sBa}, s{sBa}, L_pc0-{NAME}_kernel
    s_subb_u32 s{sBa + 1}, s{sBa + 1}, 0
    v_lshlrev_b32 v21, 7, v0
    global_load_dword v157, v21, {sr(sBa)}
    L_nopf:
    ''')


def xloads():
    for j in range(5):
        a(f'global_load_dword v{vXR + j}, v156, {sr(A_X)} offset:{256 * j} {INPOL}')


def blk_id():
    if EX == 7:
        a(f'''
        s_mul_i32 s{sBlk}, s{sIdx}, 7
        s_add_u32 s{sBlk}, s{sBlk}, s{sX}
        s_add_u32 s{sT}, s{sIdx}, 225
        s_cmp_eq_u32 s{sX}, 0
        s_cselect_b32 s{sBlk}, s{sT}, s{sBlk}
        s_sub_u32 s{sBlk}, s{sBlk}, 1
        ''')
        return
    if EX:
        a(f'''
        s_lshl_b32 s{sT}, s{sX}, 2
        s_lshr_b32 s{sT}, {hex(XMAP)}, s{sT}
        s_and_b32 s{sT}, s{sT}, 7
        s_cmp_lt_u32 s{sIdx}, {80 // EX}
        s_cselect_b32 s{sBlk}, {80 // EX}, {30 - 80 // EX}
        s_cselect_b32 s{sU0}, 0, {80 - 80 // EX}
        s_cmp_lt_u32 s{sT}, {EX}
        s_cselect_b32 s{sBlk}, s{sBlk}, 30
        s_cselect_b32 s{sU0}, s{sU0}, 0
        s_mul_i32 s{sBlk}, s{sBlk}, s{sT}
        ''')
    else:
        a(f'''
        s_cmp_lt_u32 s{sIdx}, 10
        s_cselect_b32 s{sBlk}, 10, 20
        s_cselect_b32 s{sU0}, 0, 70
        s_mul_i32 s{sBlk}, s{sBlk}, s{sX}
        ''')
    a(f'''
    s_add_u32 s{sBlk}, s{sBlk}, s{sU0}
    s_add_u32 s{sBlk}, s{sBlk}, s{sIdx}
    s_cmp_lt_u32 s{sIdx}, 30
    s_cselect_b32 s{sBlk}, s{sBlk}, 0xf1
    ''')


def is_a():
    a(f's_cmp_lt_u32 s{sBlk}, 80')


def is_b():
    a(f's_sub_u32 s{sT}, s{sBlk}, 80')
    a(f's_cmp_lt_u32 s{sT}, 160')


def pub_setup(tag):
    a(f'''
    v_lshlrev_b32 v28, 5, v{vL}
    v_lshlrev_b32 v34, 3, v{vL}
    v_and_b32 v34, 24, v34
    v_bfe_u32 v34, s{tag}, v34, 8
    v_mov_b32 v33, 0xffffff00
    s_sub_u32 s{sU0}, s{sBlk}, 40
    s_cmp_lt_u32 s{sU0}, 40
    s_cselect_b32 s{sU1}, 1.0, 0
    s_and_b32 s{sU0}, s{sBlk}, 3
    s_cselect_b32 s{sU1}, 0, s{sU1}
    v_mov_b32 v35, s{sU1}
    ''')


GV = (130, 142, 48, 56, 158, 159)


def gemv_addr():
    vw, vc, acc, tmp, vo, voc = GV
    blk_id()
    a(f'''
    v_lshrrev_b32 v{voc}, 3, v{vL}
    v_mad_u32_u24 v{voc}, v20, 20, v{voc}
    v_and_b32 v21, 3, s{sBlk}
    v_mul_u32_u24 v21, 160, v21
    v_add_u32 v{voc}, v{voc}, v21
    v_lshrrev_b32 v21, 2, s{sBlk}
    v_and_b32 v{vo}, 0x70, v{vL16}
    v_lshl_add_u32 v{vo}, v21, 7, v{vo}
    v_mul_u32_u24 v21, 7680, v{voc}
    v_add_u32 v{vo}, v{vo}, v21
    v_lshlrev_b32 v{voc}, 1, v{voc}
    v_lshl_add_u32 v156, v20, 8, s{sMe}
    v_mul_u32_u24 v156, 1280, v156
    v_add_u32 v156, v156, v{vL4}
    ''')
    for k in range(4):
        a(f'v_mov_b32 v{vw + 8 + k}, 0')
    a(f'v_mov_b32 v{vc + 2}, 0')


def gemv_issue(scalar=False):
    vw, vc, acc, tmp, vo, voc = GV
    def cl_():
        for j in range(3):
            if j == 2:
                a('s_mov_b32 exec_hi, 0')
            a(f'global_load_ushort v{vc + j}, v{voc}, {sr(C_)} offset:{16 * j}')
        a('s_mov_b64 exec, -1')

    def wl_():
        for j in range(3):
            if j == 2:
                a('s_mov_b32 exec_hi, 0')
            a(f'global_load_dwordx4 {vr(vw + 4 * j, 4)}, v{vo}, {sr(W_MOD)} {INPOL}')
            if j < 2:
                a(f'v_add_u32 v{vo}, {8 * 7680}, v{vo}')
        a('s_mov_b64 exec, -1')
    if scalar:
        wl_()
        a(f'''
        s_and_b32 s{sU0}, s{sBlk}, 3
        s_lshl_b32 s{sU0}, s{sU0}, 3
        s_add_u32 s{sU0}, s{sU0}, s{sW}
        s_mul_i32 s{sU0}, s{sU0}, 40
        s_load_dwordx8 s[56:63], {sr(C_)}, s{sU0}
        s_add_u32 s{sU0}, s{sU0}, 32
        s_load_dwordx2 s[64:65], {sr(C_)}, s{sU0}
        ''')
        return
    cl_()
    wl_()


def gemv_compute(role, after, at_c=None, scalar=False):
    nj = 3
    vw, vc, acc, tmp, vo, voc = GV
    if role == 'B':
        acc = 150
    if scalar:
        a(f'v_lshlrev_b32 v{tmp}, 1, v{vL}')
        a(f'v_and_b32 v{tmp}, 16, v{tmp}')
        a('s_waitcnt lgkmcnt(0)')
        for g in range(4):
            if g == 0:
                a('s_mov_b64 exec, 0xffff')
            else:
                a('s_lshl_b64 exec, exec, 16')
            for j in range(3 if g < 2 else 2):
                a(f'v_lshrrev_b32 v{vc + j}, v{tmp}, s{56 + 4 * j + g}')
        a('s_mov_b64 exec, -1')
    else:
        a(f's_waitcnt vmcnt({nj + (0 if at_c else after)})')
    stamp('c in')
    if at_c:
        at_c()
    cs_ = [vc + j for j in range(nj)]
    for c in cs_:
        a(f'v_lshlrev_b32 v{c}, 16, v{c}')
    silu(cs_, cs_, [tmp + j for j in range(nj)])
    sc = [(145, 146), (147, 148), (149, 59)]
    for c, s in zip(cs_, sc):
        a(f'v_cvt_pk_bf16_f32 v{s[0]}, v{c}, 0')
    for s in sc:
        a(f'v_lshlrev_b32 v{s[1]}, 16, v{s[0]}')
    a(f'''
    v_and_b32 v{vo}, 7, v{vL}
    v_lshlrev_b32 v{vo}, 8, v{vo}
    v_and_b32 v{voc}, 48, v{vL}
    v_lshl_add_u32 v{vo}, v{voc}, 2, v{vo}
    s_lshl_b32 s{sT}, s{sW}, 2
    s_add_u32 s{sT}, s{sT}, {RED}
    v_add_u32 v{vo}, s{sT}, v{vo}
    ''')
    for k in range(8):
        a(f'v_mov_b32 v{acc + k}, 0')
    for j in range(nj):
        a(f's_waitcnt vmcnt({nj - 1 - j + after})')
        for k in (0, 4, 1, 5, 2, 6, 3, 7):
            a(f'v_dot2c_f32_bf16 v{acc + k}, v{vw + 4 * j + k // 2}, v{sc[j][k & 1]}')
    stamp('w in')
    swap_reduce8(acc)
    for c in ('row_ror:8',):
        dpp('v_add_f32', acc, c)
        dpp('v_add_f32', acc + 1, c)
    a(f'''
    s_mov_b32 exec_lo, 0x00ff00ff
    s_mov_b32 exec_hi, 0x00ff00ff
    ds_write2_b32 v{vo}, v{acc}, v{acc + 1} offset0:0 offset1:8
    s_mov_b64 exec, -1
    s_waitcnt lgkmcnt(0)
    ''')


def m8(dst, inverse):
    t0, t1, t2, t3 = 20, 21, 22, 23
    a(f'v_lshrrev_b32 v{t0}, 4, v{vL}           ; g')
    if not inverse:
        a(f'''
        v_bfe_u32 v{t1}, v{vL}, 2, 2
        v_bfe_u32 v{t2}, v{vL}, 1, 1
        v_lshl_add_u32 v{t1}, v{t2}, 2, v{t1}
        v_lshlrev_b32 v{t0}, 9, v{t0}
        v_add_u32 v{t0}, s{sMe}, v{t0}
        v_mul_u32_u24 v{t2}, v{t0}, v{t1}
        v_lshl_add_u32 v{t3}, v{t1}, 8, v{t2}
        ''')
    else:
        a(f'''
        v_bfe_u32 v{t1}, v{vL}, 1, 3
        v_lshlrev_b32 v{t1}, 8, v{t1}
        v_add_u32 v{t1}, s{sMe}, v{t1}
        v_mul_u32_u24 v{t2}, v{t0}, v{t1}
        v_xor_b32 v{t0}, 4, v{t0}
        v_mul_u32_u24 v{t3}, v{t0}, v{t1}
        v_sub_u32 v{t2}, 0, v{t2}
        v_sub_u32 v{t3}, 0, v{t3}
        ''')
    a(f'''
    v_and_b32 v{t0}, 1, v{vL}
    v_lshl_add_u32 v{t2}, v{t0}, 9, v{t2}
    v_lshl_add_u32 v{t3}, v{t0}, 9, v{t3}
    v_and_b32 v{t2}, 0x7ff, v{t2}
    v_and_b32 v{t3}, 0x7ff, v{t3}
    v_cvt_f32_u32 v{t2}, v{t2}
    v_cvt_f32_u32 v{t3}, v{t3}
    v_mul_f32 v{t2}, 0x3a000000, v{t2}
    v_mul_f32 v{t3}, 0x3a000000, v{t3}
    v_cos_f32 v{t0}, v{t2}
    v_sin_f32 v{t2}, v{t2}
    v_cos_f32 v{t1}, v{t3}
    v_sin_f32 v{t3}, v{t3}
    v_cvt_pk_bf16_f32 v{dst}, v{t0}, v{t2}
    v_cvt_pk_bf16_f32 v{dst + 1}, v{t1}, v{t3}
    ''')


INV640 = hex(f2u(1.0 / 640))
EPS = hex(f2u(1e-5))


def rstd_chain(var, out):
    rbf(out, f'v{var}')
    a(f'v_add_f32 v{out}, {EPS}, v{out}')
    rbf(out, f'v{out}')
    a(f'v_sqrt_f32 v{out}, v{out}')
    rbf(out, f'v{out}')
    a(f'v_rcp_f32 v{out}, v{out}')


def sum10(dst2, x):
    a(f'v_pk_add_f32 {vr(dst2, 2)}, {vr(x, 2)}, {vr(x + 2, 2)}')
    for h in (4, 6, 8):
        a(f'v_pk_add_f32 {vr(dst2, 2)}, {vr(dst2, 2)}, {vr(x + h, 2)}')
    a(f'v_add_f32 v{dst2}, v{dst2}, v{dst2 + 1}')


def dot10(dst2, x, y):
    a(f'v_pk_mul_f32 {vr(dst2, 2)}, {vr(x, 2)}, {vr(y, 2)}')
    for h in (2, 4, 6, 8):
        a(f'v_pk_fma_f32 {vr(dst2, 2)}, {vr(x + h, 2)}, {vr(y + h, 2)}, {vr(dst2, 2)}')
    a(f'v_add_f32 v{dst2}, v{dst2}, v{dst2 + 1}')


def prio(k, on):
    if PRIO[k] == '0':
        return
    if not on:
        a('s_setprio 0')
        return
    L = newlabel('pr')
    a(f's_cmp_lt_u32 s{sW}, 4')
    a(f's_cbranch_scc1 {L}')
    a('s_setprio 1')
    a.label(L)


def bar(n):
    a(f's_barrier                                   ; {n}')


def tpoll(loads, lanes_s=None, between=None):
    L, D, Cc = newlabel('poll'), newlabel('polld'), newlabel('pollc')
    if lanes_s:
        a(f's_mov_b64 exec, {lanes_s}')
    for ld in loads:
        a(ld)
    if lanes_s:
        a('s_mov_b64 exec, -1')
    a(f's_mov_b32 s{sCnt}, {SPIN}')
    if between is not None:
        between()
    a('s_waitcnt vmcnt(0)')
    a.label(Cc)
    a(f'''
    v_cmp_ne_u32 vcc, s{sTag}, v{Ra + 3}
    v_cmp_ne_u32 {sr(sBc)}, s{sTag}, v{Ra + 7}
    s_or_b64 vcc, vcc, {sr(sBc)}
    s_and_b64 vcc, vcc, {sr(sM8)}
    s_cbranch_scc1 {L}
    ''')
    a.label(D)

    def retry():
        a.label(L)
        a(f'''
        s_sub_u32 s{sCnt}, s{sCnt}, 1
        s_cbranch_scc1 {D}
        s_lshr_b64 {sr(sBc)}, vcc, 1
        s_or_b64 vcc, vcc, {sr(sBc)}
        s_lshr_b64 {sr(sBc)}, vcc, 2
        s_or_b64 exec, vcc, {sr(sBc)}
        ''')
        for ld in loads:
            a(ld)
        a('s_mov_b64 exec, -1')
        a('s_waitcnt vmcnt(0)')
        a(f's_branch {Cc}')
    late.append(retry)


sM8, sLn, sM3 = 62, 64, 66
vSg0, vSg1, vPair, vPairX = vE0 + 1, vE0 + 2, vE0 + 5, vM8F + 1


def f32_expand(q0, m0, m1):
    for tile in range(2):
        for k in range(8):
            b = vF32 + 16 * tile + k
            a(f'v_alignbit_b32 v{b + 8}, v{b}, v{b}, 16')
            a(f'v_xor_b32 v{b + 8}, v{m1}, v{b + 8}')
            if m0 is not None:
                a(f'v_xor_b32 v{b}, v{m0}, v{b}')


def f32_read(q0):
    for tile in range(2):
        for ks in range(2):
            tab_read(vF32 + 16 * tile + 4 * ks, q0 + 2 * tile + ks)


def setup_addr():
    a(f'''
    v_bfe_u32 v20, v{vL}, 2, 2                    ; cs
    v_and_b32 v21, 48, v{vL16}                    ; part*16
    v_lshrrev_b32 v22, 4, v{vL}                   ; g
    v_lshl_add_u32 v23, v22, 5, v20               ; 32g + cs
    v_mul_u32_u24 v{vPoll}, {T1S}, v23
    v_add_u32 v{vPoll}, v{vPoll}, v21
    v_mul_u32_u24 v23, 80, v23
    s_mul_i32 s{sT}, s{sW}, 320
    s_add_u32 s{sT}, s{sT}, {XB2}
    v_add3_u32 v{vE0 + 4}, v23, v21, s{sT}        ; staging address
    v_mul_u32_u24 v{vS}, {NJ * 64}, v22
    v_and_b32 v23, 0xf0, v{vL16}
    v_add_u32 v{vS}, v{vS}, v23
    v_lshlrev_b32 v{vE0}, 3, v{vL}                ; 8*lane
    v_mul_u32_u24 v22, {4 * SA}, v22
    v_mul_u32_u24 v20, 120, v20
    v_lshl_add_u32 v20, v21, 1, v20
    s_min_u32 s{sT}, s{sW}, 5
    s_mul_i32 s{sT}, s{sT}, 480
    s_add_u32 s{sT}, s{sT}, {XB1}
    v_add3_u32 v{vPair}, v20, v22, s{sT}
    ''')


def setup_masks():
    a(f'''
    s_mov_b32 s{sM7}, 0x77777777
    s_mov_b32 s{sM7 + 1}, 0x77777777
    s_mov_b32 s{sM8}, 0x88888888
    s_mov_b32 s{sM8 + 1}, 0x88888888
    s_mov_b32 s{sM3}, 0x37773777
    s_mov_b32 s{sM3 + 1}, 0x37773777
    s_cmp_eq_u32 s{sW}, 5
    s_cselect_b32 s{sLn}, 0x00ff00ff, -1
    s_mov_b32 s{sLn + 1}, s{sLn}
    ''')


def main_path():
    vZ, vSA, vCA = vVec, vVec + 10, vVec + 20
    gemv_addr()
    is_a()
    a('s_waitcnt lgkmcnt(0)')
    stamp('kernarg')
    a('s_cbranch_scc1 L_a')
    xloads()
    a('s_branch L_a0')
    a.label('L_a')
    gemv_issue(SC_)
    if MT and AX == 2:
        a(f's_cmp_lg_u32 s{sW}, 0')
        a('s_cbranch_scc1 L_a0')
        a(f'v_lshl_add_u32 v36, s{sBlk}, 8, v{vL4}')
        a('v_mov_b32 v37, 0')
        a(f'global_store_dword v36, v37, {sr(WS)} sc1')
    if AX == 0:
        xloads()
    a.label('L_a0')
    epoch_load()
    if S1 >= 1:
        m8(vM8F, False)
    if AX == 2:
        is_a()
        a('s_cbranch_scc0 L_a00')
        xloads()
        a.label('L_a00')
    if S1 >= 2:
        m8(vM8I, True)
    if S1 >= 3:
        setup_addr()
    is_a()
    a('s_cbranch_scc0 L_setup')
    a(f's_cmp_lg_u32 s{sW}, 0')
    a('s_cbranch_scc1 L_a1')
    if MT and AX != 2:
        a(f'v_lshl_add_u32 v36, s{sBlk}, 8, v{vL4}')
        a('v_mov_b32 v37, 0')
        a(f'global_store_dword v36, v37, {sr(WS)} sc1')
    a('s_waitcnt lgkmcnt(0)')
    epoch_tag(sV1)
    pub_setup(sV1)
    a.label('L_a1')
    gemv_compute('A', 5, at_c=xloads if AX == 1 else None, scalar=SC_)
    a(f's_cmp_lg_u32 s{sW}, 0')
    bar('B1')
    a(f's_cbranch_scc1 {"L_a2" if PB else "L_setup"}')
    publish('M')
    if PB:
        a.label('L_a2')
        bar('B1b')
    a.label('L_setup')
    a(f'''
    s_mov_b32 s{sHI}, 0xffff0000
    s_lshl_b32 s{sRow}, s{sW}, 8
    s_add_u32 s{sKey}, s{sRow}, s{sMe}
    s_mul_i32 s{sRow}, s{sKey}, 1280
    ''')
    if S1 < 1:
        m8(vM8F, False)
    if S1 < 2:
        m8(vM8I, True)
    if S1 < 3:
        setup_addr()
    setup_masks()
    is_a()
    a('s_cbranch_scc1 L_xw')
    is_b()
    a('s_cbranch_scc0 L_nb')
    gemv_issue()
    a.label('L_nb')
    bar('B0')
    a('s_waitcnt vmcnt(6)')
    a('s_cbranch_scc1 L_ln1')
    a('s_waitcnt vmcnt(0)')
    a.label('L_xw')
    a(f's_cmp_eq_u32 s{sW}, 0')
    a('s_waitcnt vmcnt(1)')
    a('s_cbranch_scc1 L_ln1')
    a('s_waitcnt vmcnt(0)')
    a.label('L_ln1')
    stamp('x in')
    for j in range(5):
        unpack(vXS + tm(j, 0), vXS + tm(j, 1), vXR + j)
    sum10(24, vXS)
    wave_sum([24], [sU0])
    a(f'v_mov_b32 v24, {INV640}')
    a(f'v_mul_f32 v26, s{sU0}, v24                ; mean')
    rbf(28, 'v26')
    a(f'v_readfirstlane_b32 s{sM1B}, v28')
    for h in range(0, 10, 2):
        a(f'v_pk_add_f32 {vr(vXS + h, 2)}, {vr(vXS + h, 2)}, v[28:29] op_sel:[0,0] op_sel_hi:[1,0] neg_lo:[0,1] neg_hi:[0,1]')
    dot10(30, vXS, vXS)
    wave_sum([30], [sU0])
    a(f'''
    v_sub_f32 v26, v26, v28
    v_mul_f32 v26, v26, v26
    v_fma_f32 v26, s{sU0}, v24, -v26
    ''')
    rstd_chain(26, 27)
    for j in range(5):
        for t in range(2):
            a(f'v_mul_f32 v{vZ + 2 * j + t}, v27, v{vXS + tm(j, t)}')
    a(f'''
    v_mov_b32 v23, 0
    v_mov_b32 v27, 0
    s_waitcnt lgkmcnt(0)
    ''')
    epoch_tag()
    tag_bytes()
    a(f'''
    s_mul_i32 s{sU0}, s{sMe}, {T1S}
    s_lshl_b32 s{sU1}, s{sW}, 8
    s_add_u32 s{sU0}, s{sU0}, s{sU1}
    ''')
    base_add(sBa, WS, sU0, T1_G)
    base_add(sBb, WS, sU0, T1_G + 4 * NJ * 64)
    a(f'''
    v_subrev_u32 v28, 64, v0                      ; u
    v_lshrrev_b32 v29, 4, v28
    v_lshlrev_b32 v29, 10, v29
    v_and_b32 v30, 0xf0, v{vL16}
    v_add_u32 v29, v29, v30
    v_cmp_le_u32 vcc, 160, v28
    v_mov_b32 v31, {8 - 160 * 32}
    v_cndmask_b32 v31, 0, v31, vcc
    s_mov_b32 s{sU2}, {MODA_L}
    v_lshlrev_b32 v28, 5, v28
    v_add3_u32 v28, v28, v31, s{sU2}
    v_add_u32 v{vE0 + 3}, s{sU2}, v{vL16}
    s_lshr_b32 s{sU1}, s{sW}, 1
    s_mul_i32 s{sU1}, s{sU1}, {4 * SA}
    s_and_b32 s{sT}, s{sW}, 1
    s_lshl_b32 s{sT}, s{sT}, 2
    s_add_u32 s{sU1}, s{sU1}, s{sT}
    s_add_u32 s{sU1}, s{sU1}, {XB1}
    ''')
    bar('BT')
    stamp('BT')
    tab_read(vF20, T_F20C)
    tab_read(vF20 + 4, T_F20S)
    for q in range(4):
        tab_read(vTW + 4 * q, T_TW1 + q)
    f32_read(T_F32A)
    tab_read(32, T_ADR)

    def expand():
        a(f'''
        s_waitcnt lgkmcnt(0)
        v_add_u32 v{vSg0}, s{sU1}, v32
        v_add_u32 v{vSg1}, 160, v{vSg0}
        ''')
        f32_expand(T_F32A, None, 33)
    def expand_if(a_side):
        L = newlabel('xp')
        is_a()
        a(f's_cbranch_scc{0 if a_side else 1} {L}')
        expand()
        a.label(L)
    if XP == 0:
        expand()
    if XP == 2:
        expand_if(False)

    def bgemv(after):
        L = newlabel('ng')
        is_b()
        a(f's_cbranch_scc0 {L}')
        gemv_compute('B', after)
        a.label(L)

    def behind(after):
        if not GB:
            bar('BP')
        if XP == 1:
            expand()
        if XP == 2:
            expand_if(True)
        if GB:
            bgemv(after)
            bar('BP')
    if not GB:
        bgemv(0)
    if BG:
        bar('BG')
    stamp('poll start')
    a(f's_sub_u32 s{sT}, s{sW}, 1')
    a(f's_cmp_lt_u32 s{sT}, 5')
    a('s_cbranch_scc1 L_mpoll')
    behind(0)
    a('s_branch L_b2')
    a.label('L_mpoll')
    poll([f'global_load_dwordx4 {vr(36 + 4 * p, 4)}, v29, {sr(WS)} offset:{256 * p} sc1' for p in range(4)],
         list(range(36, 52)), [52, 53, 54], empty='tag', between=lambda: behind(4))
    a(f'''
    v_pk_add_f32 v[36:37], v[36:37], v[40:41]
    v_pk_add_f32 v[38:39], v[38:39], v[42:43]
    v_pk_add_f32 v[44:45], v[44:45], v[48:49]
    v_pk_add_f32 v[46:47], v[46:47], v[50:51]
    v_pk_add_f32 v[36:37], v[36:37], v[44:45]
    v_pk_add_f32 v[38:39], v[38:39], v[46:47]
    ''')
    if MR:
        a('v_cvt_pk_bf16_f32 v40, v36, v37')
        a('v_cvt_pk_bf16_f32 v41, v38, v39')
        unpack(36, 37, 40)
        unpack(38, 39, 41)
    a(f'ds_write2_b64 v28, v[36:37], v[38:39] offset0:0 offset1:2')
    a.label('L_b2')
    stamp('poll end')
    fine('p1', 'pre-B2')
    a('s_waitcnt lgkmcnt(0)')
    a('s_barrier                                   ; B2')
    stamp('B2 done (mod ready)')
    fine('p1', 'B2')
    assert MODA_L % 16 == 0
    for j in range(5):
        a(f'ds_read_b128 {vr(vSA + 4 * j, 4)}, v{vE0 + 3} offset:{1024 * j}')
    for j in range(5):
        a(f's_waitcnt lgkmcnt({4 - j})')
        for t in range(2):
            a(f'v_fmac_f32 v{vSA + 4 * j + t}, v{vZ + 2 * j + t}, v{vSA + 4 * j + 2 + t}')
        if j in (1, 3):
            for t in range(2):
                a(f'v_cvt_pk_bf16_f32 v{Ra + 4 * t + j // 2}, v{vSA + 4 * j - 4 + t}, v{vSA + 4 * j + t}')
    for t in range(2):
        a(f'v_cvt_pk_bf16_f32 v{Ra + 4 * t + 2}, v{vSA + 16 + t}, 0')
    fine('p1', 'h packed')
    for t in range(2):
        mfma32(RD + 8 * t, Ra + 4 * t, vF20)
        mfma32(RD + 8 * t + 4, Ra + 4 * t, vF20 + 4)
    fine('p1', 'mfma1 issued')
    for t, tmp in ((0, Rb), (1, Rc)):
        cmul(tmp, tmp + 4, RD + 8 * t, RD + 8 * t + 4, vTW + 8 * t, vTW + 8 * t + 4, -1, pk=PK[0] == '1' or (PK[0] == '2' and t == 1))
        pack4(Ra + 4 * t, tmp, tmp + 4)
    fine('p1', 'twiddled')
    for u in range(2):
        for ks in range(2):
            for e in range(2):
                d = RD + 8 * u + 4 * e
                mfma32(d, vF32 + 16 * u + 8 * e + 4 * ks, Ra + 4 * ks, d if ks else None)
    fine('p1', 'mfma2 issued')
    a(f's_mov_b64 exec, {sr(sM3)}')
    for u in range(2):
        pack4(Rb + 4 * u, RD + 8 * u, RD + 8 * u + 4)
        for r in (0, 2):
            a(f'ds_write2_b32 v{vSg1 if u else vSg0}, v{Rb + 4 * u + r}, v{Rb + 4 * u + r + 1} offset0:{80 * r} offset1:{80 * r + 80}')
    a('s_mov_b64 exec, -1')
    a(f'v_mov_b32 v{Rc + 3}, s{sTag}')
    a(f'v_mov_b32 v{Rc + 7}, s{sTag}')
    a(f's_cmp_ge_u32 s{sW}, 6')
    fine('p1', 'lds written')
    a('s_waitcnt lgkmcnt(0)')
    fine('p1', 'pre-B3')
    fine('x1', 'pre-B3')
    bar('B3')
    fine('p1', 'B3')
    fine('x1', 'B3')
    a('s_cbranch_scc1 L_t1done')
    for n in (3, 0, 1, 2):
        a(f'ds_read_b64 {vr(Ra + 2 * n, 2)}, v{vPair} offset:{8 * n}')
    for k, n in enumerate((3, 0, 1, 2)):
        a(f's_waitcnt lgkmcnt({3 - k})')
        mfma16(RD + 4 * n, vM8F, Ra + 2 * n)
    fine('p1', 'r8 issued')
    a(f's_mov_b64 exec, {sr(sM7)}')
    for j in range(2):
        a(f'v_cvt_pk_bf16_f32 v{Rc + 4 * j + 3}, v{RD + 12 + 2 * j}, v{RD + 12 + 2 * j + 1}')
    a(f's_mov_b64 exec, {sr(sLn)}')
    for j in range(2):
        for n in range(3):
            a(f'v_cvt_pk_bf16_f32 v{Rc + 4 * j + n}, v{RD + 4 * n + 2 * j}, v{RD + 4 * n + 2 * j + 1}')
        a(f'global_store_dwordx4 v{vS}, {vr(Rc + 4 * j, 4)}, {sr(sBb if j else sBa)} sc1')
    a('s_mov_b64 exec, -1')
    a.label('L_t1done')
    stamp('T1 stored')
    if PROBE == 'rel':
        a(f'''
        s_lshl_b32 s{sT}, s{sW}, 8
        s_or_b32 s{sT}, s{sT}, s2
        s_cmp_lt_u32 s{sT}, 8
        s_cbranch_scc0 L_norel
        s_lshl_b32 s{sT}, s2, 7
        s_add_u32 s{sT}, s{sT}, {DIAG_G}
        v_mov_b32 v36, s{sT}
        v_mov_b32 v37, s{sTS}
        global_store_dword v36, v37, {sr(WS)} sc1
        L_norel:
        ''')
    fine('p1', 'stored')
    fine('x1', 'stored')

    def p3_mats():
        for q in range(3):
            tab_read(vF20 + 4 * q, T_F20I + q)
        f32_read(T_F32B)
        tab_read(40, T_ADR)
        a('s_waitcnt lgkmcnt(0)')
        f32_expand(T_F32B, 42, 43)
    a(f's_cmp_ge_u32 s{sIdx}, {NJ}')
    a('s_cbranch_scc1 L_idle')
    late.append(lambda: (a.label('L_idle'), bar('B3b'), p3_mats() if MATS else None, a('s_branch L_p3prep')))
    if MATS == 1:
        p3_mats()
    vWr = vVec
    for k in range(16):
        a(f'v_mov_b32 v{vWr + k}, 0')
    SC = 2.0 / (2048 * 640) / (ALPHA[16] ** 4 * ALPHA[20] ** 2 * ALPHA[32] ** 2)
    a(f'''
    v_and_b32 v36, 15, v{vL}
    v_and_b32 v37, 48, v{vL}
    v_lshl_add_u32 v36, v37, 2, v36               ; 64g + i
    v_mul_u32_u24 v{vE0 + 3}, 80, v36
    s_lshl_b32 s{sU1}, s{sW}, 3
    s_add_u32 s{sU1}, s{sU1}, {XB2}
    v_add_u32 v{vE0 + 3}, s{sU1}, v{vE0 + 3}
    v_lshlrev_b32 v36, 5, v36
    v_add_u32 v36, {WST}, v36
    v_and_b32 v39, 4, v{vL}
    v_lshlrev_b32 v39, 2, v39
    v_lshlrev_b32 v{vS}, 7, v37
    v_and_b32 v37, 0xf0, v{vL16}
    v_add_u32 v{vS}, v{vS}, v37
    s_mul_i32 s{sU0}, s{sX}, {NJ}
    s_add_u32 s{sU0}, s{sU0}, s{sIdx}
    s_lshl_b32 s{sU1}, s{sU0}, 6
    s_mul_i32 s{sT}, s{sW}, {4 * T1S}
    s_add_u32 s{sU1}, s{sU1}, s{sT}
    s_mul_i32 s{sU0}, s{sU0}, {T2S}
    s_lshl_b32 s{sT}, s{sW}, 8
    s_add_u32 s{sU0}, s{sU0}, s{sT}
    ''')
    base_add(sBa, WS, sU1, T1_G)
    base_add(sBb, WS, sU1, T1_G + 128 * T1S)
    base_add(58, WS, sU0, T2_G)
    base_add(60, WS, sU0, T2_G + 8192)

    def w_setup(parts=(0, 1)):
      if 0 in parts:
        for q in range(2):
            tab_read(vTW + 4 * q, T_F16 + q)
            tab_read(vTW + 8 + 4 * q, T_TW2 + q)
        a(f'''
        s_mul_i32 s{sU0}, s{sIdx}, 15
        s_min_u32 s{sU1}, s{sU0}, 306
        s_add_u32 s{sU2}, s{sU1}, s{sX}
        s_and_b32 s{sU2}, s{sU2}, 1
        s_sub_u32 s{sU1}, s{sU1}, s{sU2}
        s_lshl_b32 s{sT}, s{sW}, 1
        s_add_u32 s{sU0}, s{sU0}, s{sT}
        ''')
      if True:
        for s in parts:
            gam = sU3
            a(f'''
            s_add_u32 s{sU2}, s{sU0}, {s}
            s_sub_u32 s{sT}, s{sU2}, s{sU1}
            s_min_u32 s{sT}, s{sT}, 15
            s_lshl_b32 s{sT}, s{sT}, 1
            v_xor_b32 v37, s{sT}, v39
            v_add_u32 v37, v37, v36
            ''')
            for arr in range(2):
                for r in range(4):
                    a(f'ds_read_u16_d16_hi v{vWr + 8 * s + 4 * arr + r}, v37 offset:{arr * 8192 + r * 512}')
            a(f'''
            s_mul_i32 s{sT}, s{sU2}, 0x199a
            s_lshr_b32 s{sT}, s{sT}, 16
            s_mul_i32 s{sT}, s{sT}, 10
            s_mov_b32 s{gam}, {hex(f2u(SC))}
            s_cmp_eq_u32 s{sT}, s{sU2}
            s_cselect_b32 s{gam}, {hex(f2u(SC / 2))}, s{gam}
            s_waitcnt lgkmcnt(0)
            ''')
            for r in range(8):
                a(f'v_mul_f32 v{vWr + 8 * s + r}, s{gam}, v{vWr + 8 * s + r}')

    tl = [f'global_load_dwordx4 {vr(Ra, 4)}, v{vPoll}, {sr(sBa)} sc1', f'global_load_dwordx4 {vr(Ra + 4, 4)}, v{vPoll}, {sr(sBb)} sc1']
    fine('x1', 'pre-B3b')
    bar('B3b')
    fine('x1', 'B3b')
    if WFIRST:
        w_setup((0, 1) if WFIRST == 1 else (0,))
    fine('x1', 'wsetup')
    if DR1:
        a('s_waitcnt vmcnt(0)')
    if AL1:
        bar('B3c')
    fine('x1', 'drained')
    if PACE1:
        a(f's_sleep {PACE1}')
    stamp('B3b done')
    tpoll(tl, between=lambda: (None if WFIRST == 1 else w_setup((1,) if WFIRST else (0, 1)), p3_mats() if MATS == 2 else None, fine('x1', 'behind')))
    fine('p2', 'T1 in')
    fine('x1', 'T1 in')
    a(f'ds_write_b128 v{vE0 + 4}, {vr(Ra, 4)}')
    a(f'ds_write_b128 v{vE0 + 4}, {vr(Ra + 4, 4)} offset:10240')
    a(f's_cmp_eq_u32 s{sW}, 7')
    a('s_waitcnt lgkmcnt(0)')
    bar('B4')
    stamp('B4 done (T1 in)')
    fine('p2', 'B4')
    fine('x1', 'B4')
    a('s_cbranch_scc1 L_p2_one')
    Fre, Fim, Tc, Ts = vTW, vTW + 4, vTW + 8, vTW + 12
    tmps = (Rb, Rc)

    def p2(ns):
        p2pk = PK[1] == '1'
        if ns == 2:
            for j in range(4):
                a(f'ds_read_b64 {vr(Rb + 2 * j, 2)}, v{vE0 + 3} offset:{1280 * j}')
            for h in range(2):
                a(f's_waitcnt lgkmcnt({2 - 2 * h})')
                for s in range(2):
                    a(f'v_pk_mov_b32 {vr(Ra + 4 * s + 2 * h, 2)}, {vr(Rb + 4 * h, 2)}, {vr(Rb + 4 * h + 2, 2)} op_sel:[{s},{s}]')
        else:
            a(f'ds_read2st64_b32 {vr(Ra, 2)}, v{vE0 + 3} offset0:0 offset1:5')
            a(f'ds_read2st64_b32 {vr(Ra + 2, 2)}, v{vE0 + 3} offset0:10 offset1:15')
            a('s_waitcnt lgkmcnt(0)')
        fine('p2', 'read')
        for s in range(ns):
            mfma32(RD + 8 * s, Ra + 4 * s, Fre)
            mfma32(RD + 8 * s + 4, Ra + 4 * s, Fim)
        fine('p2', 's1')
        def stage(cq, sign, swap, mm):
            lo = lambda s: tmps[s] + (4 if swap else 0)
            hi = lambda s: tmps[s] + (0 if swap else 4)
            if ns == 1 or not P2ORD:
                for s in range(ns):
                    cmul(tmps[s], tmps[s] + 4, RD + 8 * s, RD + 8 * s + 4, *cq(s), sign, pk=p2pk)
                    pack4(Ra + 4 * s, lo(s), hi(s))
                    mm(s, 0)
                    mm(s, 1)
                return
            cmul(tmps[0], tmps[0] + 4, RD, RD + 4, *cq(0), sign, pk=p2pk, head=P2ORD - 1)
            cmul(tmps[1], tmps[1] + 4, RD + 8, RD + 12, *cq(1), sign, pk=p2pk)
            pack4(Ra, lo(0), hi(0))
            cv = lambda r: a(f'v_cvt_pk_bf16_f32 v{Ra + 4 + r}, v{lo(1) + r}, v{hi(1) + r}')
            cv(0)
            cv(1)
            mm(0, 0)
            cv(2)
            cv(3)
            mm(0, 1)
            mm(1, 0)
            mm(1, 1)
        stage(lambda s: (Tc, Ts), -1, False, lambda s, k: mfma32(RD + 8 * s + 4 * k, Fim if k else Fre, Ra + 4 * s))
        fine('p2', 's2')
        stage(lambda s: (vWr + 8 * s, vWr + 8 * s + 4), +1, True, lambda s, k: mfma32(RD + 8 * s + 4 * k, Ra + 4 * s, Fre if k else Fim))
        fine('p2', 's3')
        stage(lambda s: (Tc, Ts), +1, True, lambda s, k: mfma32(RD + 8 * s + 4 * k, Fre if k else Fim, Ra + 4 * s))
        fine('p2', 's4')
        for s in range(ns):
            pack4(Rb + s, RD + 8 * s, RD + 8 * s + 4, step=ns)
        if ns == 2:
            for r in range(4):
                a(f'ds_write_b64 v{vE0 + 3}, {vr(Rb + 2 * r, 2)} offset:{1280 * r}')
        else:
            a(f'ds_write2st64_b32 v{vE0 + 3}, v{Rb}, v{Rb + 1} offset0:0 offset1:5')
            a(f'ds_write2st64_b32 v{vE0 + 3}, v{Rb + 2}, v{Rb + 3} offset0:10 offset1:15')
        a('s_waitcnt lgkmcnt(0)')
    p2(2)
    a.label('L_b5')
    fine('p2', 'pre-B5')
    fine('x2', 'pre-B5')
    bar('B5')
    fine('p2', 'B5')
    fine('x2', 'B5')
    a(f'ds_read_b128 {vr(Rb, 4)}, v{vE0 + 4}')
    a(f'ds_read_b128 {vr(Rb + 4, 4)}, v{vE0 + 4} offset:10240')
    a('s_waitcnt lgkmcnt(1)')
    a(f'global_store_dwordx4 v{vS}, {vr(Rb, 4)}, {sr(58)} sc1')
    a('s_waitcnt lgkmcnt(0)')
    a(f'global_store_dwordx4 v{vS}, {vr(Rb + 4, 4)}, {sr(60)} sc1')
    stamp('T2 stored')
    fine('p2', 'stored')
    fine('x2', 'stored')
    late.append(lambda: (a.label('L_p2_one'), p2(1), a('s_branch L_b5')))
    a.label('L_p3prep')
    vGA, vVV, vGC, vGS = vVec, vVec + 10, vVec + 20, vVec + 30
    vMB = vE0 + 6
    for q in range(4):
        tab_read(vTW + 4 * q, T_TW3 + q)
    a(f'''
    v_add_u32 v{vMB}, {MODB_L}, v{vL4}
    v_bfe_u32 v36, v{vL}, 2, 2
    v_lshrrev_b32 v37, 4, v{vL}
    v_mad_u32_u24 v36, v37, {NJ}, v36
    v_and_b32 v38, 48, v{vL16}
    v_mul_u32_u24 v36, {T2S}, v36
    v_add_u32 v{vPoll}, v36, v38
    v_mul_u32_u24 v37, {4 * SA}, v37
    v_add_u32 v37, {XB1 + 8 * 361}, v37
    v_cndmask_b32 v{vPairX}, v{vPair}, v37, {sr(sM8)}
    s_and_b64 {sr(sM8)}, {sr(sM8)}, {sr(sLn)}
    s_lshl_b32 s{sU1}, s{sMe}, 6
    s_min_u32 s{sT}, s{sW}, 5
    s_mul_i32 s{sT}, s{sT}, {4 * T2S}
    s_add_u32 s{sU1}, s{sU1}, s{sT}
    ''')
    base_add(sBa, WS, sU1, T2_G)
    base_add(sBb, WS, sU1, T2_G + 4 * NJ * T2S)
    base_add(sXrow, OUTP, sRow)
    a(f's_mul_i32 s{sU0}, s{sMe}, {REC_STRIDE}')
    base_add(sRec, WS, sU0, REC_G)
    a(f'''
    v_mov_b32 v{vE0 + 7}, {hex(f2u(-1.0 / 640))}
    v_mov_b32 v{vM8F}, {hex(f2u(-1e-5))}
    v_mov_b32 v{vE0 + 3}, {KEYL}
    v_mov_b32 v{vE0 + 4}, 1
    ''')

    def p3_setup(part=3):
      raw, GB = Rb, Rb
      if part & 1:
        raw = Rb
        for k in range(0, 24, 2):
            a(f'ds_read2st64_b32 {vr(raw + k, 2)}, v{vMB} offset0:{k} offset1:{k + 1}')
        a(f'ds_read_b32 v{raw + 24}, v{vMB} offset:{24 * 256}')
        a('s_waitcnt lgkmcnt(0)')
        for vec, dst in ((0, vGA), (1, vGS), (2, vGC), (4, vVV)):
            for j in range(5):
                unpack(dst + tm(j, 0), dst + tm(j, 1), raw + 5 * vec + j)
        GB = Rb
        for j in range(5):
            unpack(GB + tm(j, 0), GB + tm(j, 1), raw + 15 + j)
      if part & 2:
        t0, t1, t2 = Rc + 2, Rc + 4, Rc + 6
        dot10(t0, vVV, vGS)
        for h in range(0, 10, 2):
            a(f'v_pk_mul_f32 {vr(vVV + h, 2)}, {vr(vVV + h, 2)}, {vr(vGC + h, 2)}')
        sum10(t1, vVV)
        a(f'v_mov_b32 v{t2}, s{sM1B}')
        for h in range(0, 10, 2):
            a(f'v_pk_mul_f32 {vr(vGC + h, 2)}, {vr(vGC + h, 2)}, {vr(GB + h, 2)}')
            a(f'v_pk_fma_f32 {vr(vGS + h, 2)}, {vr(vGS + h, 2)}, {vr(GB + h, 2)}, {vr(t2, 2)} op_sel:[0,0,0] op_sel_hi:[1,1,0]')
        wave_sum([t1, t0], [sV1, sV2])

    if MATS == 0:
        p3_mats()
    a('s_waitcnt lgkmcnt(0)')
    bar('B5b')
    stamp('B5b done')
    fine('p2', 'B5b')
    fine('x2', 'B5b')
    if P3FIRST == 2:
        p3_setup(1)
    if P3FIRST == 1:
        p3_setup()
    else:
        a(f's_cmp_ge_u32 s{sIdx}, {NJ}')
        a(f's_cselect_b32 s{sCand}, 8, s{sW}')
        a(f's_cmp_lt_u32 s{sCand}, 6')
        a('s_cbranch_scc1 L_p3later')
        p3_setup(2 if P3FIRST else 3)
        a.label('L_p3later')
    fine('x2', 'p3setup')
    if DR2:
        a('s_waitcnt vmcnt(0)')
    fine('x2', 'drained')
    if PACE2:
        a(f's_sleep {PACE2}')
    if not AL2:
        a(f's_cmp_ge_u32 s{sIdx}, {NJ}')
        a('s_cbranch_scc0 L_nob5c')
    bar('B5c')
    a.label('L_nob5c')
    a(f's_cmp_ge_u32 s{sW}, 6')
    a('s_cbranch_scc1 L_b6')
    stamp('T2 poll')
    fine('p2', 'T2 poll')

    def p3_behind():
        a(f's_cmp_lt_u32 s{sCand}, 6')
        a('s_cbranch_scc0 L_p3done')
        p3_setup(2 if P3FIRST else 3)
        a.label('L_p3done')
    tpoll(tl, lanes_s=sr(sLn), between=None if P3FIRST == 1 else p3_behind)
    stamp('T2 in')
    fine('p3', 'T2 in')
    fine('x2', 'T2 in')
    a(f'''
    v_swap_b32 v{Ra + 1}, v{Ra + 4}
    v_swap_b32 v{Ra + 3}, v{Ra + 6}
    ''')
    for n, r in ((0, Ra), (1, Ra + 4), (2, Ra + 2), (3, Ra + 6)):
        mfma16(RD + 4 * n, vM8I, r)
    for n in range(4):
        for jj in range(2):
            a(f'v_cvt_pk_bf16_f32 v{Rb + 2 * n + jj}, v{RD + 4 * n + 2 * jj + 1}, v{RD + 4 * n + 2 * jj}')
        a(f'ds_write_b64 v{vPairX if n == 3 else vPair}, {vr(Rb + 2 * n, 2)} offset:{8 * n}')
    a('s_waitcnt lgkmcnt(0)')
    a.label('L_b6')
    prio(2, True)
    fine('p3', 'pre-B6')
    bar('B6')
    fine('p3', 'B6')
    fine('x2', 'B6')
    for u in range(2):
        for r in (0, 2):
            a(f'ds_read2_b32 {vr(Rb + 4 * u + r, 2)}, v{vSg1 if u else vSg0} offset0:{80 * r} offset1:{80 * r + 80}')
    Y = RD
    if not P3O:
        for ks in range(2):
            a(f's_waitcnt lgkmcnt({2 - 2 * ks})')
            for t in range(2):
                for e in range(2):
                    d = RD + 8 * t + 4 * e
                    mfma32(d, Rb + 4 * ks, vF32 + 16 * t + 8 * (1 - e) + 4 * ks, d if ks else None)
        fine('p3', 'mfma1 issued')
        if PRIO[2] == '1':
            prio(2, False)
        for t, tmp in ((0, Ra), (1, Rc)):
            cmul(tmp, tmp + 4, RD + 8 * t, RD + 8 * t + 4, vTW + 8 * t, vTW + 8 * t + 4, +1, pk=PK[2] == '1' or (PK[2] == '2' and t == 1), n=3)
            pack4(Rb + 4 * t, tmp, tmp + 4, n=3)
            a(f'v_mov_b32 v{Rb + 4 * t + 3}, 0')
        Y = RD
        mfma32(Y, vF20, Rb)
        mfma32(Y + 8, vF20 + 4, Rb)
        mfma32(Y + 4, vF20, Rb + 4)
        mfma32(Y + 8, vF20 + 8, Rb + 4, Y + 8)
    else:
        def m1(t, ks, e):
            d = RD + 8 * t + 4 * e
            mfma32(d, Rb + 4 * ks, vF32 + 16 * t + 8 * (1 - e) + 4 * ks, d if ks else None)
        a('s_waitcnt lgkmcnt(2)')
        m1(0, 0, 0)
        m1(0, 0, 1)
        a('s_waitcnt lgkmcnt(0)')
        m1(0, 1, 0)
        m1(0, 1, 1)
        for ks in range(2):
            for e in range(2):
                m1(1, ks, e)
        fine('p3', 'mfma1 issued')
        B0_, B1_ = vF32, vF32 + 4
        cmul(Ra, Ra + 4, RD, RD + 4, vTW, vTW + 4, +1, pk=False, n=3)
        a(f'v_mov_b32 v{B0_ + 3}, 0')
        a(f'v_mov_b32 v{B1_ + 3}, 0')
        pack4(B0_, Ra, Ra + 4, n=3)
        Yx = Rb
        mfma32(Y, vF20, B0_)
        mfma32(Yx, vF20 + 4, B0_)
        cmul(Rc, Rc + 4, RD + 8, RD + 12, vTW + 8, vTW + 12, +1, pk=False, n=3)
        pack4(B1_, Rc, Rc + 4, n=3)
        mfma32(Y + 4, vF20, B1_)
        mfma32(Y + 8, vF20 + 8, B1_, Yx)
    fine('p3', 'mfma2 issued')
    if PRIO[2] == '2':
        prio(2, False)
    X1 = vXS
    s1, s2, s3, s4 = Ra, Ra + 1, Ra + 2, Ra + 3
    if not PKS:
        for k in range(10):
            a(f'v_fmac_f32 v{X1 + k}, v{Y + k}, v{vGA + k}')
            if k == 1:
                a(f'v_mul_f32 v{s2}, v{X1}, v{X1}')
                a(f'v_mul_f32 v{s3}, v{X1}, v{vVV}')
            if k >= 2:
                a(f'v_add_f32 v{s1}, v{X1 + k - 1}, v{X1 if k == 2 else s1}')
                a(f'v_fmac_f32 v{s2}, v{X1 + k - 1}, v{X1 + k - 1}')
                a(f'v_fmac_f32 v{s3}, v{X1 + k - 1}, v{vVV + k - 1}')
        a(f'v_fmac_f32 v{s3}, v{X1 + 9}, v{vVV + 9}')
        a(f'v_add_f32 v{s1}, v{X1 + 9}, v{s1}')
        a(f'v_fmac_f32 v{s2}, v{X1 + 9}, v{X1 + 9}')
    else:
        p1_, p2_, p3_ = Rc, Rc + 2, Rc + 4
        for h in range(0, 10, 2):
            a(f'v_pk_fma_f32 {vr(X1 + h, 2)}, {vr(Y + h, 2)}, {vr(vGA + h, 2)}, {vr(X1 + h, 2)}')
        a(f'v_pk_mul_f32 {vr(p3_, 2)}, {vr(X1, 2)}, {vr(vVV, 2)}')
        a(f'v_pk_add_f32 {vr(p1_, 2)}, {vr(X1, 2)}, {vr(X1 + 2, 2)}')
        a(f'v_pk_mul_f32 {vr(p2_, 2)}, {vr(X1, 2)}, {vr(X1, 2)}')
        for h in (2, 4, 6, 8):
            a(f'v_pk_fma_f32 {vr(p3_, 2)}, {vr(X1 + h, 2)}, {vr(vVV + h, 2)}, {vr(p3_, 2)}')
            if h > 2:
                a(f'v_pk_add_f32 {vr(p1_, 2)}, {vr(p1_, 2)}, {vr(X1 + h, 2)}')
            a(f'v_pk_fma_f32 {vr(p2_, 2)}, {vr(X1 + h, 2)}, {vr(X1 + h, 2)}, {vr(p2_, 2)}')
        a(f'v_add_f32 v{s3}, v{p3_}, v{p3_ + 1}')
        a(f'v_add_f32 v{s1}, v{p1_}, v{p1_ + 1}')
        a(f'v_add_f32 v{s2}, v{p2_}, v{p2_ + 1}')
    fine('p3', 'partials')
    a(f'''
    v_permlane32_swap_b32 v{s3}, v{s4}
    v_permlane32_swap_b32 v{s1}, v{s2}
    v_add_f32 v{s3}, v{s3}, v{s4}
    v_add_f32 v{s1}, v{s1}, v{s2}
    v_permlane16_swap_b32 v{s1}, v{s3}
    v_add_f32 v{s1}, v{s1}, v{s3}
    ''')
    for c in ('row_ror:8', 'row_ror:4', 'row_ror:2', 'row_ror:1'):
        dpp('v_add_f32', s1, c)
    a(f'''
    v_readlane_b32 s{sU0}, v{s1}, 0
    v_readlane_b32 s{sU2}, v{s1}, 32
    v_readlane_b32 s{sU3}, v{s1}, 16
    ''')
    fine('p3', 'reduced')
    k0 = Rc
    cE = vM8F
    cI, cK, cT, cO = vE0 + 7, vE0 + 3, Ra + 7, vE0 + 4
    m = Ra + 1
    a(f'''
    v_mul_f32 v{m + 2}, s{sU0}, v{cI}
    v_fma_f32 v{k0}, v{m + 2}, v{m + 2}, v{cE}
    v_mov_b32 v{m + 3}, s{sU3}
    v_fmac_f32 v{k0}, s{sU2}, v{cI}
    v_fmac_f32 v{m + 3}, s{sV1}, v{m + 2}
    v_sub_f32 v{m + 1}, v{cE}, v{k0}              ; var
    v_rsq_f32_e64 v{k0}, -v{k0}
    v_mov_b32 v{cT}, s{sTag}
    s_mov_b64 exec, 1
    v_fma_f32 v{m + 3}, v{m + 3}, v{k0}, s{sV2}   ; r
    v_ashrrev_i32 v{m + 4}, 31, v{m + 3}
    v_or_b32 v{m + 4}, 0x80000000, v{m + 4}
    v_xor_b32 v{m + 3}, v{m + 3}, v{m + 4}
    v_and_b32 v{m + 3}, 0xfffff800, v{m + 3}
    v_or_b32 v{m + 3}, s{sKey}, v{m + 3}
    ds_max_u32 v{cK}, v{m + 3}
    ds_add_rtn_u32 v{m + 4}, v{cK}, v{cO} offset:8
    ds_read_b32 v{Ra + 6}, v{cK}
    v_readfirstlane_b32 s{sKey}, v{m + 3}
    s_waitcnt lgkmcnt(0)
    v_cmpx_eq_u32 vcc, 7, v{m + 4}
    s_cbranch_execz L_notlast
    global_store_dwordx2 v{vL4}, {vr(Ra + 6, 2)}, {sr(sRec)} sc1
    L_notlast:
    s_mov_b64 exec, -1
    ''')
    fine('p3', 'key')
    bar('B7')
    fine('p3', 'B7')
    fine('e', 'key poll')
    a(f'''
    ds_read_b32 v{Ra + 6}, v{cK}
    v_sub_f32 v{m + 2}, s{sM1B}, v{m + 2}
    ''')
    rbf(m + 2, f'v{m + 2}')
    rstd_chain(m + 1, k0)
    a(f'''
    v_sub_f32 v{m + 2}, s{sM1B}, v{m + 2}
    v_mul_f32 v{k0 + 1}, v{m + 2}, v{k0}
    ''')
    ZN = vGA
    for h in range(0, 10, 2):
        a(f'v_pk_fma_f32 {vr(ZN + h, 2)}, {vr(X1 + h, 2)}, {vr(k0, 2)}, {vr(k0, 2)} op_sel:[0,0,1] op_sel_hi:[1,0,1]')
    vO = vXS

    def out_math():
        for h in range(0, 10, 2):
            a(f'v_pk_add_f32 {vr(Y + h, 2)}, {vr(X1 + h, 2)}, {vr(vGS + h, 2)}')
        for h in range(0, 10, 2):
            a(f'v_pk_fma_f32 {vr(Y + h, 2)}, {vr(ZN + h, 2)}, {vr(vGC + h, 2)}, {vr(Y + h, 2)}')
        if opt('inject', None):
            if opt('injall', None):
                for k in range(10):
                    a(f'v_mul_f32 v{Y + k}, {hex(f2u(1 + float(opt("inject", 0))))}, v{Y + k}')
            else:
                a(f's_cmp_eq_u32 s{sRow}, 0')
                a('s_cselect_b64 exec, 1, 0')
                a(f'v_add_f32 v{Y}, {hex(f2u(float(opt("inject", 0))))}, v{Y}')
                a('s_mov_b64 exec, -1')
        for j in range(5):
            a(f'v_cvt_pk_bf16_f32 v{vO + j}, v{Y + tm(j, 0)}, v{Y + tm(j, 1)}')
    a(f'''
    s_waitcnt lgkmcnt(0)
    v_readfirstlane_b32 s{sU0}, v{Ra + 6}
    s_cmp_eq_u32 s{sU0}, s{sKey}
    s_cselect_b32 s{sCand}, 1, 0
    s_cbranch_scc1 L_cand
    ''')
    out_math()
    a('s_branch L_keys')
    a.label('L_cand')
    raw, SB, CB, H, Bq = 60, 70, 80, 92, 108
    for k in range(0, 10, 2):
        a(f'ds_read2st64_b32 {vr(raw + k, 2)}, v{vMB} offset0:{5 + k} offset1:{6 + k}')
    for qd in range(2):
        a(f'v_mov_b32 v{H + 4 * qd + 3}, s{sTag}')
    a('s_waitcnt lgkmcnt(0)')
    for j in range(5):
        unpack(SB + tm(j, 0), SB + tm(j, 1), raw + j)
        unpack(CB + tm(j, 0), CB + tm(j, 1), raw + 5 + j)
    for h in range(0, 10, 2):
        a(f'v_pk_fma_f32 {vr(SB + h, 2)}, {vr(ZN + h, 2)}, {vr(CB + h, 2)}, {vr(SB + h, 2)}')
    for j in range(5):
        a(f'v_cvt_pk_bf16_f32 v{H + j + (j >= 3)}, v{SB + tm(j, 0)}, v{SB + tm(j, 1)}')
    for qd in range(2):
        a(f'global_store_dwordx4 v{vL16}, {vr(H + 4 * qd, 4)}, {sr(sRec)} offset:{REC_H2 + 1024 * qd} sc1')
    out_math()

    def out_row():
        if 'o' in XX:
            return
        for j in range(5):
            a(f'global_store_dword v{vL4}, v{vO + j}, {sr(sXrow)} offset:{256 * j} sc1')
    if OE != 1:
        out_row()
    a.label('L_keys')
    if OE == 1:
        out_row()
    if OE == 3:
        a(f'''
        s_cmp_ge_u32 s{sRi}, 20
        s_cselect_b32 s{sT}, 1, s{sCand}
        s_cmp_lg_u32 s{sT}, 0
        s_cbranch_scc1 L_noout
        ''')
        out_row()
        a.label('L_noout')
    stamp('key out')
    fine('p3', 'key out')
    bar('B7b (candidate stores are out, the helpers have ended)')
    if OE == 0:
        a(f'''
        s_cmp_ge_u32 s{sRi}, 20
        s_cselect_b32 s{sT}, 1, s{sCand}
        s_cmp_lg_u32 s{sT}, 0
        s_cbranch_scc1 L_noout
        ''')
        out_row()
        a('s_branch L_fin')
        a.label('L_noout')
    if OE == 2:
        a(f's_cmp_lg_u32 s{sCand}, 0')
        a('s_cbranch_scc1 L_noout')
        out_row()
        a.label('L_noout')
    vEW, vFW = 48, 88
    vRed, vRd, vRow = 15, 16, 17
    a(f'''
    s_cmp_lt_u32 s{sRi}, 20
    s_cbranch_scc1 L_no_ew
    s_mul_i32 s{sT}, s{sW}, 5120
    s_add_u32 s{sT}, s{sT}, {EW}
    v_and_b32 v{Rb}, 0x3c0, v{vL16}
    v_and_b32 v{Rb + 1}, 24, v{vE0}
    v_add3_u32 v{Rb}, v{Rb}, v{Rb + 1}, s{sT}
    s_mul_i32 s{sT}, s{sW}, 320
    s_add_u32 s{sT}, s{sT}, {FW}
    v_min_u32 v{vE0 + 1}, {39 * 8}, v{vE0}
    v_add_u32 v{vE0 + 1}, s{sT}, v{vE0 + 1}
    ''')
    for j in range(5):
        if j in (2, 4):
            a(f'v_add_u32 v{Rb}, 2048, v{Rb}')
        a(f'ds_read2_b64 {vr(vEW + 20 + 4 * j, 4)}, v{Rb} offset0:{128 * (j & 1)} offset1:{128 * (j & 1) + 4}')
    a(f'''
    v_and_b32 v{vRed}, 3, v{vL}
    v_lshlrev_b32 v{vRed}, 6, v{vRed}
    v_and_b32 v{vRd}, 48, v{vL}
    v_add_u32 v{vRed}, v{vRd}, v{vRed}
    s_lshr_b32 s{sU1}, s{sW}, 2
    s_lshl_b32 s{sU1}, s{sU1}, 8
    s_and_b32 s{sT}, s{sW}, 3
    s_lshl_b32 s{sT}, s{sT}, 2
    s_add_u32 s{sU1}, s{sU1}, s{sT}
    s_add_u32 s{sU1}, s{sU1}, {RED}
    v_add_u32 v{vRed}, s{sU1}, v{vRed}
    v_and_b32 v{vRd}, 0xf0, v{vL16}
    v_bfe_u32 v{vRow}, v0, 2, 6                    ; lane' = (t'>>1)>>1
    v_lshlrev_b32 v{vRow}, 4, v{vRow}
    s_mov_b32 s{sU2}, 0x05040100
    s_mov_b32 s{sU3}, 0x07060302
    v_add_u32 v{vRow}, {REC_G + REC_H2}, v{vRow}
    v_mov_b32 v18, 0xffffff00
    s_mul_i32 s{sU1}, s{sX}, 12
    s_add_u32 s{sU1}, s{sU1}, s{sRi}
    s_mul_i32 s{sU1}, s{sU1}, {PY_STRIDE}
    s_mul_i32 s{sT}, s{sW}, 640
    s_add_u32 s{sU1}, s{sU1}, s{sT}
    ''')
    base_add(sBb, WS, sU1, PY_G - 20 * PY_STRIDE)
    a('s_waitcnt lgkmcnt(0)')
    if KD == 1:
        bar('B7c')
    if OE == 3:
        bar('B7d')
        a(f's_cmp_lg_u32 s{sCand}, 0')
        a('s_cbranch_scc1 L_noout5')
        out_row()
        a.label('L_noout5')
    for j in range(5):
        r0 = vEW + 20 + 4 * j
        for c in range(4):
            a(f'v_perm_b32 v{vEW + 4 * j + c}, v{r0 + 2 + c // 2}, v{r0 + c // 2}, s{sU3 if c & 1 else sU2}')
    for k in range(4):
        a(f'v_mov_b32 v{36 + k}, 0')

    def fw_unpack():
        a(f's_cmp_ge_u32 s{sW}, 4')
        a('s_cbranch_scc1 L_no_fw')
        for u in range(16):
            if u == 8:
                a('s_waitcnt lgkmcnt(0)')
            a(f'ds_read_b64 {vr(vFW + 32 + 2 * u, 2)}, v{vE0 + 1} offset:{1280 * u}')
        a('s_waitcnt lgkmcnt(0)')
        for k in range(32):
            unpack(vFW + 2 * k, vFW + 2 * k + 1, vFW + 32 + k)
        a.label('L_no_fw')
    if not FWL:
        fw_unpack()
    a.label('L_no_ew')
    a(f's_cmp_eq_u32 s{sCand}, 0')
    a('s_cbranch_scc1 L_nobase')
    a(f'''
    v_mov_b32 v40, v{vO}
    v_mov_b32 v41, v{vO + 1}
    v_mov_b32 v42, v{vO + 2}
    v_mov_b32 v43, s{sTag}
    v_mov_b32 v44, v{vO + 3}
    v_mov_b32 v45, v{vO + 4}
    v_mov_b32 v47, s{sTag}
    ''')

    def base_out():
        a(f'global_store_dwordx4 v{vL16}, v[40:43], {sr(sRec)} offset:{REC_BASE} sc1')
        a(f'global_store_dwordx4 v{vL16}, v[44:47], {sr(sRec)} offset:{REC_BASE + 1024} sc1')
    if BL:
        a(f's_cmp_lt_u32 s{sRi}, 20')
        a('s_cbranch_scc0 L_nobase')
    a('s_waitcnt vmcnt(0)')
    base_out()
    a.label('L_nobase')
    a(f'''
    s_cmp_lt_u32 s{sRi}, 20
    s_cbranch_scc1 L_fin
    v_mov_b32 v{Rb + 2}, {KEYL + 4}
    {'s_barrier' if KD == 2 else ''}
    ''')
    a.label('L_b8')
    fine('e', 'pre-B8')
    a('s_barrier                                   ; B8')
    a(f'''
    ds_read_b32 v{Rb + 3}, v{Rb + 2}
    s_movk_i32 s{sT}, {REC_STRIDE}
    s_waitcnt lgkmcnt(0)
    v_and_b32 v{Rb + 4}, 255, v{Rb + 3}
    v_mad_u32_u24 v{vRow}, v{Rb + 4}, s{sT}, v{vRow}
    ''')
    stamp('B8 done (winner)')
    fine('e', 'B8+')

    def late_out():
        if OE == 0:
            a(f's_cmp_lg_u32 s{sCand}, 0')
            a('s_cbranch_scc1 L_noout2')
            out_row()
            a.label('L_noout2')
        if FWL:
            fw_unpack()
        fine('e', 'behind')
        if OE == 0:
            a(f's_cmp_lg_u32 s{sCand}, 0')
            a('s_cbranch_scc1 L_noout4')
            a('s_waitcnt vmcnt(5)')
            a.label('L_noout3')
            late.append(lambda: (a.label('L_noout4'), a('s_waitcnt vmcnt(0)'), a('s_branch L_noout3')))
        else:
            a('s_waitcnt vmcnt(0)')
    poll([f'global_load_dwordx4 v[20:23], v{vRow}, {sr(WS)} sc1',
          f'global_load_dwordx4 v[24:27], v{vRow}, {sr(WS)} offset:1024 sc1'], [23, 27], [30, 32], empty='word',
         between=late_out, younger=63)
    if BL:
        a(f's_cmp_lg_u32 s{sCand}, 0')
        a('s_cbranch_scc1 L_base2')
        a.label('L_base3')
        late.append(lambda: (a.label('L_base2'), base_out(), a('s_branch L_base3')))
    stamp('row in')
    fine('e', 'row in')
    acc = 36
    for j in range(5):
        for c in (0, 2, 1, 3):
            a(f'v_dot2c_f32_bf16 v{acc + c}, v{vEW + 4 * j + c}, v{20 + j + (j >= 3)}')
    a(f'''
    v_permlane32_swap_b32 v36, v38
    v_permlane32_swap_b32 v37, v39
    v_pk_add_f32 v[36:37], v[36:37], v[38:39]
    v_permlane16_swap_b32 v36, v37
    v_add_f32 v36, v36, v37
    ''')
    for c in ('row_ror:8', 'row_ror:4'):
        dpp('v_add_f32', acc, c)
    a(f'''
    s_mov_b32 exec_lo, 0x000f000f
    s_mov_b32 exec_hi, 0x000f000f
    ds_write_b32 v{vRed}, v{acc}
    s_mov_b64 exec, -1
    s_cmp_ge_u32 s{sW}, 4
    s_waitcnt lgkmcnt(0)
    ''')
    fine('e', 'pre-B9')
    bar('B9')
    fine('e', 'B9')
    a(f'''
    s_cbranch_scc1 L_e_done
    ds_read_b128 v[20:23], v{vRd} offset:{RED}
    ds_read_b128 v[24:27], v{vRd} offset:{RED + 256}
    s_waitcnt lgkmcnt(0)
    v_pk_add_f32 v[20:21], v[20:21], v[22:23]
    v_pk_add_f32 v[24:25], v[24:25], v[26:27]
    v_add_f32 v20, v20, v21
    v_add_f32 v24, v24, v25
    v_mul_f32 v21, 0xbfb8aa3b, v20
    v_exp_f32 v21, v21
    v_mul_f32 v20, v20, v24
    v_add_f32 v21, 1.0, v21
    v_rcp_f32 v21, v21
    v_mul_f32 v20, v20, v21
    ''')
    fine('e', 'gu')
    sG = 8
    for u in range(16):
        a(f'v_readlane_b32 s{sG + u}, v20, {u}')
    for u in range(16):
        for hh in range(2):
            w_ = vr(vFW + 4 * u + 2 * hh, 2)
            g_ = sr(sG + (u & ~1))
            d_ = vr(36 + 2 * hh, 2)
            if u == 0:
                a(f'v_pk_mul_f32 {d_}, {w_}, {g_} op_sel:[0,0] op_sel_hi:[1,0]')
            else:
                a(f'v_pk_fma_f32 {d_}, {w_}, {g_}, {d_} {BC1 if u & 1 else BC0}')
    for k in range(4):
        a(f'v_and_or_b32 v{36 + k}, v{36 + k}, v18, s{sTB + k}')
    a('s_mov_b32 exec_hi, 0xff')
    a(f'global_store_dwordx4 v{vL16}, v[36:39], {sr(sBb)} sc1')
    a('s_mov_b64 exec, -1')
    stamp('PY out')
    fine('e', 'PY out')
    a('s_waitcnt vmcnt(0)')
    a.label('L_e_done')
    bar('B10')
    a.label('L_fin')
    stamp('end')
    fine('e', 'end')
    if FINE:
        a('s_waitcnt lgkmcnt(0)')
    dump_stamps()
    a.label('L_end')
    a('s_endpgm')
    flush_late()


sF1, sF2, sPb, sGw, sWb = 56, 58, 60, 62, 64


def publish(P='H0'):
    a(f'''
    ds_read_b128 v[40:43], v28 offset:{RED}
    ds_read_b128 v[44:47], v28 offset:{RED + 16}
    v_lshl_add_u32 v36, s{sBlk}, 8, v{vL4}
    s_waitcnt lgkmcnt(0)
    v_pk_add_f32 v[40:41], v[40:41], v[42:43]
    v_pk_add_f32 v[44:45], v[44:45], v[46:47]
    v_add_f32 v40, v35, v40
    v_pk_add_f32 v[40:41], v[40:41], v[44:45]
    v_add_f32 v40, v40, v41
    v_and_or_b32 v40, v40, v33, v34
    global_store_dword v36, v40, {sr(WS)} sc1
    ''')
    stamp('published', P)


def w_addr():
    a(f'''
    s_mul_i32 s{sU1}, s{sIdx}, 15
    s_min_u32 s{sU1}, s{sU1}, 306
    s_add_u32 s{sT}, s{sU1}, s{sX}
    s_and_b32 s{sT}, s{sT}, 1
    s_sub_u32 s{sU1}, s{sU1}, s{sT}
    s_mul_i32 s{sU0}, s{sX}, 321
    s_add_u32 s{sU1}, s{sU1}, s{sU0}
    s_lshl_b32 s{sU1}, s{sU1}, 1
    v_lshrrev_b32 v90, 1, v{vL}
    v_mul_u32_u24 v90, 5136, v90
    v_lshlrev_b32 v91, 1, v{vL}
    v_xor_b32 v91, v{vL16}, v91
    v_and_b32 v91, 16, v91
    v_add3_u32 v100, v90, v91, s{sU1}
    ''')


def w_gather(arr, lds):
    for n in range(8):
        a(f's_mov_b32 m0, {lds + 1024 * n}')
        a(f'global_load_lds_dwordx4 v100, {sr(arr)}')
        if n < 7:
            a(f'v_add_u32 v100, {32 * 5136}, v100')


def mask_lanes(n):
    if n >= 64:
        return
    if n > 32:
        a(f's_mov_b32 exec_hi, {hex((1 << (n - 32)) - 1)}')
    else:
        a(f's_mov_b64 exec, {hex((1 << n) - 1)}')


def warm_addr_w():
    a(f'''
    s_sub_u32 s{sU3}, s{sRi}, {12 if W20 else 0}
    s_mul_i32 s{sU3}, s{sU3}, {78 if W20 else 48}
    s_movk_i32 s{sU2}, 0x2aab
    s_mul_i32 s{sU1}, s{sX}, 642
    s_movk_i32 s{sT}, 5136
    ''')
    for n in range(2 if W20 else 1):
        a(f'''
        v_add_u32 v90, s{sU3}, v{vL}
        v_add_u32 v90, {39 * n}, v90
        v_min_u32 v90, 1535, v90
        v_mul_u32_u24 v91, s{sU2}, v90
        v_lshrrev_b32 v91, 16, v91
        v_mul_u32_u24 v92, 6, v91
        v_sub_u32 v92, v90, v92
        v_lshlrev_b32 v92, 7, v92
        v_min_u32 v92, 638, v92
        v_add_u32 v92, s{sU1}, v92
        v_mad_u32_u24 v92, v91, s{sT}, v92
        v_and_b32 v{120 + n}, -4, v92
        ''')


def ffn_parts(slot):
    return [(n, k) for n in range(3) if S_W[n] == slot for k in range(2 if slot == 7 else 1)]


def warm_addr_f(h, slot):
    f, per, lanes = {0: (0, 30, 30), 7: (NJ, 96, 48), 8: (0, 48, 48)}[slot]
    if not ffn_parts(slot):
        return
    a(f'''
    s_sub_u32 s{sU0}, s{sRi}, {f}
    s_mul_i32 s{sU3}, s{sU0}, {per}
    s_mul_i32 s{sU1}, s{sX}, 384
    s_movk_i32 s{sU2}, 0x5556
    s_movk_i32 s{sT}, {3072 - 384}
    s_mul_i32 s{sU0}, s{sX}, 245760
    ''')
    for n, k in ffn_parts(slot):
        d = 130 + 2 * n + k
        a(f'''
        v_add_u32 v90, s{sU3}, v{vL}
        v_add_u32 v90, {lanes * k}, v90
        v_min_u32 v90, 959, v90
        v_add_u32 v90, {960 * (n if n < 2 else h)}, v90
        ''')
        if n < 2:
            a(f'''
            v_mul_u32_u24 v91, s{sU2}, v90
            v_lshrrev_b32 v91, 16, v91
            v_lshl_add_u32 v90, v90, 7, s{sU1}
            v_mad_u32_u24 v{d}, v91, s{sT}, v90
            ''')
        else:
            a(f'v_lshl_add_u32 v{d}, v90, 7, s{sU0}')


def warm_issue(h, slot, sel=None):
    if slot == 0:
        L = newlabel('w20')
        if W20:
            assert not ffn_parts(0)
            a(f's_cmp_lt_u32 s{sRi}, 12')
            a(f's_cbranch_scc1 {L}')
        mask_lanes(39 if W20 else 48)
        for n in range(2 if W20 else 1):
            a(f'global_load_dword v125, v{120 + n}, {sr(W_R if h else W_I)}')
        a.label(L)
    ps = ffn_parts(slot) if sel is None else sel
    if ps:
        mask_lanes(30 if slot == 0 else 48)
        if 'w' in XX:
            a('s_mov_b64 exec, 1')
    for n, k in ps:
        a(f'global_load_dword v125, v{130 + 2 * n + k}, {sr(W_D if n == 2 else (W_G if h else W_U))}')
    a('s_mov_b64 exec, -1')


def e_addr(mat):
    a(f'''
    s_max_u32 s{sU1}, s{sRi}, 20
    s_mul_i32 s{sU0}, s{sX}, 12
    s_add_u32 s{sU0}, s{sU0}, s{sU1}
    s_sub_u32 s{sU0}, s{sU0}, 20
    s_mul_i32 s{sU1}, s{sU0}, 20480
    s_lshl_b32 s{sU0}, s{sU0}, 5
    v_lshrrev_b32 v128, 1, v{vL}
    v_mul_u32_u24 v128, 3072, v128
    v_and_b32 v90, 16, v{vL16}
    v_add_u32 v128, v128, v90
    ''')
    base_add(sF1, mat, sU0)
    base_add(sGw, W_D, sU1, 10240 if mat == W_U else 0)


def if_e(f):
    L = newlabel('ne')
    a(f's_cmp_lt_u32 s{sRi}, 20')
    a(f's_cbranch_scc1 {L}')
    f()
    a.label(L)


def e_gather(half, n0, n1):
    if 'g' in XX:
        a('s_mov_b64 exec, 1')
    for n in range(n0, n1):
        a(f's_mov_b32 m0, {EW + (n % 4 + 4 * half) * 5120 + (n // 4) * 1024}')
        a(f'global_load_lds_dwordx4 v128, {sr(sF1)}')
        if n < 19:
            a(f'v_add_u32 v128, {32 * 3072 if "g" not in XX else 0}, v128')
    a('s_mov_b64 exec, -1' if 'g' in XX else '')


def wd_load(half):
    if 'g' in XX:
        return
    for n in range(10):
        if n % 4 == 0:
            a(f's_mov_b32 m0, {FW + half * 10240 + n * 1024}')
            a(f'v_add_u32 v90, {1024 * n}, v{vL16}')
        a(f'global_load_lds_dwordx4 v90, {sr(sGw)} offset:{1024 * (n % 4)} {INPOL if S_W[2] == 9 else str()}')


def touch_small():
    if 'k' in TCH:
        a(f's_mul_i32 s{sU0}, s{sMe}, {REC_STRIDE}')
        base_add(sBa, WS, sU0, REC_G)
        a(f'''
        s_mov_b64 exec, 0xff
        global_store_dwordx4 v{vL16}, v[20:23], {sr(sBa)} sc1
        s_mov_b64 exec, -1
        ''')
    if 'p' in TCH:
        def f():
            a(f'''
            s_mul_i32 s{sU1}, s{sX}, 12
            s_add_u32 s{sU1}, s{sU1}, s{sRi}
            s_mul_i32 s{sU1}, s{sU1}, {PY_STRIDE}
            ''')
            base_add(sBa, WS, sU1, PY_G - 20 * PY_STRIDE)
            a(f'''
            global_store_dwordx4 v{vL16}, v[20:23], {sr(sBa)} sc1
            global_store_dwordx4 v{vL16}, v[20:23], {sr(sBa)} offset:1024 sc1
            s_mov_b32 exec_hi, 0
            global_store_dwordx4 v{vL16}, v[20:23], {sr(sBa)} offset:2048 sc1
            s_mov_b64 exec, -1
            ''')
        if_e(f)


def finalizer():
    a(f'''
    s_cmp_ge_u32 s{sRi}, 30
    s_cbranch_scc1 L_hx0
    ds_read_b32 v21, v62
    s_mul_i32 s{sU2}, s{sX}, 10
    s_add_u32 s{sU2}, s{sU2}, s{sRi}
    s_sub_u32 s{sU2}, s{sU2}, 20                   ; f
    v_mov_b32 v26, 0
    v_mov_b32 v27, 0
    s_waitcnt lgkmcnt(0)
    v_readfirstlane_b32 s{sU0}, v21
    s_and_b32 s{sU1}, s{sU0}, 255
    s_mul_i32 s{sU1}, s{sU1}, {REC_STRIDE}
    ''')
    base_add(sBa, WS, sU1, REC_G + REC_BASE)
    done = [f'global_load_dwordx4 v[32:35], v26, {sr(sBa)} sc1']
    a(f'''
    v_and_b32 v20, 1, v{vL}
    v_lshrrev_b32 v21, 4, v{vL}
    v_lshl_add_u32 v20, v20, 2, v21
    s_lshl_b32 s{sT}, s{sU2}, 3
    v_add_u32 v20, s{sT}, v20
    s_lshr_b32 s{sCand}, s{sU2}, 4                 ; j
    s_cmp_ge_u32 s{sCand}, 3
    s_cselect_b32 s{sT}, 3, 0
    s_sub_u32 s{sCand}, s{sCand}, s{sT}            ; dword inside the quad
    s_mul_i32 s{sT}, s{sT}, 342
    s_and_b32 s{sT}, s{sT}, 1024
    v_bfe_u32 v26, v20, 1, 6
    v_lshl_add_u32 v26, v26, 4, s{sT}
    {done[0] if not BL else ''}
    v_lshlrev_b32 v20, 1, v20                      ; 2d
    v_add_u32 v21, {MODB_L + 3840}, v20
    v_mov_b32 v22, 0
    ds_read_u16_d16_hi v22, v21                    ; gb[d]
    s_and_b32 s{sU1}, s{sU0}, 0x7ff
    s_mul_i32 s{sU1}, s{sU1}, 1280
    ''')
    base_add(sXrow, OUTP, sU1)
    a(f'''
    s_and_b32 s{sU1}, s{sU0}, 0xfffff800
    s_or_b32 s{sU1}, s{sU1}, 0x400
    s_xor_b32 s{sU3}, s{sU1}, 0x80000000
    s_not_b32 s{sT}, s{sU1}
    s_cmp_lt_i32 s{sU1}, 0
    s_cselect_b32 s{sU1}, s{sU3}, s{sT}
    v_mov_b32 v28, s{sU1}
    ''')
    a(f'''
    v_mul_f32 v28, 0xbfb8aa3b, v28
    v_exp_f32 v28, v28
    v_add_f32 v28, 1.0, v28
    v_rcp_f32 v28, v28
    ''')
    a(f'''
    v_lshrrev_b32 v29, 1, v{vL}
    v_mul_u32_u24 v29, {PY_STRIDE}, v29
    v_and_b32 v30, 16, v{vL16}
    v_add_u32 v29, v29, v30
    v_add_u32 v30, {32 * PY_STRIDE}, v29
    v_add_u32 v31, {64 * PY_STRIDE}, v29
    s_lshl_b32 s{sU2}, s{sU2}, 5
    ''')
    base_add(sBb, WS, sU2, PY_G)
    a('s_waitcnt lgkmcnt(0)')
    a('v_mul_f32 v22, v22, v28')
    bar('B9')

    def base_in(younger):
        poll(done, [35], [], empty='word', issued=True, younger=younger)
        a(f'''
        s_cmp_eq_u32 s{sCand}, 1
        s_cselect_b64 vcc, -1, 0
        v_cndmask_b32 v27, v32, v33, vcc
        s_cmp_eq_u32 s{sCand}, 2
        s_cselect_b64 vcc, -1, 0
        v_cndmask_b32 v27, v27, v34, vcc
        v_and_b32 v32, 16, v{vL}
        v_lshrrev_b32 v27, v32, v27
        v_lshlrev_b32 v27, 16, v27
        ''')
    if not BL:
        base_in(0)
    bar('B10')
    if PYD:
        a(done[0])
        a('s_waitcnt vmcnt(0)')
    stamp('PY poll', 'H0')
    if BL:
        a(done[0])
    poll([f'global_load_dwordx4 {vr(36 + 4 * n, 4)}, v{29 + n}, {sr(sBb)} sc1' for n in range(3)],
         list(range(36, 48)), [48, 49], empty='tag', between=(lambda: base_in(3)) if BL else None)
    a(f'''
    v_pk_add_f32 v[36:37], v[36:37], v[40:41]
    v_pk_add_f32 v[38:39], v[38:39], v[42:43]
    v_pk_add_f32 v[36:37], v[36:37], v[44:45]
    v_pk_add_f32 v[38:39], v[38:39], v[46:47]
    v_permlane32_swap_b32 v36, v38
    v_permlane32_swap_b32 v37, v39
    v_pk_add_f32 v[36:37], v[36:37], v[38:39]
    v_permlane16_swap_b32 v36, v37
    v_add_f32 v36, v36, v37
    ''')
    for c in ('row_ror:8', 'row_ror:4', 'row_ror:2'):
        dpp('v_add_f32', 36, c)
    a(f'''
    v_fma_f32 v36, v36, v22, v27
    v_cvt_pk_bf16_f32 v36, v36, v36
    s_mov_b32 exec_lo, 0x00030003
    s_mov_b32 exec_hi, 0x00030003
    global_store_short v20, v36, {sr(sXrow)} {FINPOL}
    s_mov_b64 exec, -1
    ''')


def can_addr():
    a(f'''
    v_add_u32 v110, s{sIdx}, v{vL}
    v_and_b32 v110, 7, v110
    v_lshlrev_b32 v114, 5, v110
    v_mul_u32_u24 v110, {NJ}, v110
    v_mul_u32_u24 v110, {T2S}, v110
    s_lshl_b32 s{sU0}, s{sMe}, 6
    s_add_u32 s{sU0}, s{sU0}, {T2_G + CANJ * T2S + 60}
    v_add_u32 v110, s{sU0}, v110
    v_and_b32 v111, 7, v{vL}
    v_lshl_add_u32 v114, v111, 2, v114
    v_mul_u32_u24 v114, {T1S}, v114
    s_min_u32 s{sT}, s{sIdx}, {NJ - 1}
    s_mul_i32 s{sU0}, s{sX}, {NJ}
    s_add_u32 s{sU0}, s{sU0}, s{sT}
    s_lshl_b32 s{sU0}, s{sU0}, 6
    s_add_u32 s{sU0}, s{sU0}, {T1_G + T1S + 60}
    v_add_u32 v114, s{sU0}, v114
    ''')


def can_touch(v):
    mask_lanes(8)
    a(f'global_load_dword v113, v{v}, {sr(WS)} sc1')
    a('s_mov_b64 exec, -1')


def can_wait(v, k):
    L, D = newlabel('can'), newlabel('cand')
    mask_lanes(8)
    a(f'''
    s_mov_b32 s{sCnt}, {SPIN}
    {L}:
    global_load_dword v113, v{v}, {sr(WS)} sc1
    s_waitcnt vmcnt(0)
    v_cmp_eq_u32 vcc, s{sTag}, v113
    s_bcnt1_i32_b64 s{sT}, vcc
    s_cmp_ge_u32 s{sT}, {k}
    s_cbranch_scc1 {D}
    s_sub_u32 s{sCnt}, s{sCnt}, 1
    s_cbranch_scc0 {L}
    {D}:
    s_mov_b64 exec, -1
    ''')


def warm0(h, early):
    if not AWE:
        if not early:
            warm_issue(h, 0)
        return
    L = newlabel('w0')
    is_a()
    a(f's_cbranch_scc{0 if early else 1} {L}')
    warm_issue(h, 0)
    a.label(L)


def helper_tail(h, P, red_load, red_work, modf_load, modf_work):
    bar('BT')
    if BG:
        if h == 1:
            a(f's_waitcnt vmcnt({BG - 1})')
        bar('BG')
    bar('BP')
    if WPOS == 1:
        warm_issue(h, 0)
    if h == 0:
        is_b()
        a('s_cbranch_scc0 L_pl')
        publish()
        a.label('L_pl')
    a(f's_cmp_ge_u32 s{sIdx}, {NJ}')
    a(f's_cbranch_scc1 L_idle{h}')
    bar('B2')
    if not RI:
        red_load()
    w_gather(W_R if h else W_I, WST + (0 if h else 8192))
    bar('B3')
    a('s_waitcnt vmcnt(0)')
    stamp('W in', P)
    if RE and not RI:
        red_work()
    bar('B3b')
    if AL1:
        if K1 and h == 1:
            can_wait(114, K1)
        bar('B3c')
    if K2 and h == 1:
        can_touch(110)
    if h == 0:
        touch_small()
    if not RE and not RI:
        red_work()
    bar('B4')
    a('s_waitcnt vmcnt(0)')
    modf_load()
    if EG3:
        if_e(lambda: e_gather(1 - h, 0, EG3))
    bar('B5')
    if h == 0:
        a(f's_cmp_lt_u32 s{sRi}, 20')
        a(f's_waitcnt vmcnt({EG3})')
        a('s_cbranch_scc0 L_h0_m')
        a('s_waitcnt vmcnt(0)')
        a.label('L_h0_m')
    modf_work()
    bar('B5b')
    if AL2:
        if K2 and h == 1:
            can_wait(110, K2)
        bar('B5c')
    if S_W[2] == 8:
        warm_addr_f(h, 8)
    if W8 == 0:
        bar('B6')
    if S_W[2] == 8:
        a(f's_cmp_lt_u32 s{sRi}, 20')
        a(f's_cbranch_scc0 L_w8{h}')
        warm_issue(h, 8)
        a.label(f'L_w8{h}')
    if W8 == 1:
        bar('B6')
    if_e(lambda: (e_gather(1 - h, EG3, 20), wd_load(1 - h) if S_W[2] != 8 else None))
    if h == 0:
        a(f'''
        s_cmp_lg_u32 s2, 8
        s_cbranch_scc1 L_h0_ne
        v_mov_b32 v26, {EPOCH_G}
        s_mov_b64 exec, 1
        global_store_dword v26, v27, {sr(WS)} sc1
        s_mov_b64 exec, -1
        ''')
        a.label('L_h0_ne')
    a.label(f'L_hend{h}')
    a(f'''
    v_mul_u32_u24 v60, {REC_STRIDE}, v{vL}
    v_add_u32 v60, {REC_G + 128 * h * REC_STRIDE}, v60
    v_add_u32 v61, {64 * REC_STRIDE}, v60
    v_mov_b32 v62, {KEYL + 4}
    v_and_b32 v63, 15, v{vL}
    v_lshlrev_b32 v63, 7, v63
    v_add_u32 v63, {REC_G + REC_H2}, v63
    s_movk_i32 s{sU0}, {REC_STRIDE}
    s_cmp_lt_u32 s{sRi}, 20
    ''')
    bar('B7')
    a('s_waitcnt vmcnt(0)')
    a(f's_cbranch_scc1 L_hx{h}')
    if S_W[2] == 8:
        assert FWL and IWD
        wd_load(1 - h)
    kl = [f'global_load_dwordx2 v[64:65], v60, {sr(WS)} sc1', f'global_load_dwordx2 v[66:67], v61, {sr(WS)} sc1']
    if KP == 1:
        bar('B7b')
    if KD:
        bar('B7c')
    stamp('key poll', P)
    poll(kl, [65, 67], [68, 69], empty='word', between=(lambda: bar('B7b')) if KP == 0 else ((lambda: bar('B7d')) if OE == 3 else None))
    a('v_max_u32 v64, v64, v66')
    for c in ('row_ror:8', 'row_ror:4', 'row_ror:2', 'row_ror:1'):
        dpp('v_max_u32', 64, c)
    a(f'''
    s_mov_b32 exec_lo, 0x00010001
    s_mov_b32 exec_hi, 0x00010001
    ds_max_u32 v62, v64
    s_mov_b64 exec, -1
    ''')
    if PF == 1:
        a(f'''
        v_and_b32 v65, 255, v64
        v_mad_u32_u24 v63, v65, s{sU0}, v63
        global_load_dword v65, v63, {sr(WS)} sc1
        ''')
    if PF == 2:
        dpp('v_max_u32', 64, 'row_bcast:15', '0xa')
        dpp('v_max_u32', 64, 'row_bcast:31', '0xc')
        a(f'''
        s_mov_b32 exec_lo, 0
        s_mov_b32 exec_hi, 0xffff0000
        v_and_b32 v65, 255, v64
        v_mad_u32_u24 v63, v65, s{sU0}, v63
        global_load_dword v65, v63, {sr(WS)} sc1
        s_mov_b64 exec, -1
        ''')
    a('s_waitcnt lgkmcnt(0)')
    bar('B8')
    if h == 0:
        finalizer()
    a.label(f'L_hx{h}')
    stamp('end', P)
    dump_stamps(P)
    a('s_endpgm')
    a.label(f'L_idle{h}')
    warm_addr_f(h, 7)
    ps = ffn_parts(7)
    bar('B2')
    if RI < 2:
        red_load()
    if h == 1:
        a('s_waitcnt vmcnt(0)')
        can_touch(110)
    warm_issue(h, 7, ps[:EARLY])
    bar('B3')
    if RI == 2:
        red_load()
    if RE and h == 0:
        a(f's_waitcnt vmcnt({len(ps[:EARLY]) if RI < 2 else 0})')
        red_work()
        red_work = lambda: None
    bar('B3b')
    ieg = IEG
    if ISEQ == 0:
        warm_issue(h, 7, ps[EARLY:])
        if h == 0:
            a(f's_waitcnt vmcnt({len(ps)})')
            red_work()
            touch_small()
        nd = sum(1 for n, k in ps[EARLY:] if n == 2)
        a(f's_waitcnt vmcnt({nd + (NT if h == 0 else 0)})')
        stamp('warm in', P)
        e_gather(1 - h, 0, MF)
        modf_load()
        e_gather(1 - h, MF, IEG)
        if IWD == 0:
            wd_load(1 - h)
        if h == 0:
            a(f's_waitcnt vmcnt({IEG - MF + 10 * (IWD == 0)})')
        modf_work()
        bar('B5b')
    else:
        assert EARLY == 2 and S_W[0] == 7
        if h == 0:
            a(f's_waitcnt vmcnt({EARLY})')
            red_work()
            touch_small()
        a(f's_waitcnt vmcnt({NT if h == 0 else 0})')
        stamp('warm in', P)
        e_gather(1 - h, 0, 10)
        if ISEQ == 2:
            a('s_waitcnt vmcnt(0)')
            warm_issue(h, 7, ps[EARLY:])
        if h == 0:
            if ISEQ == 1:
                a('s_waitcnt vmcnt(0)')
            modf_load()
            a('s_waitcnt vmcnt(0)')
        modf_work()
        bar('B5b')
        if ISEQ == 1:
            warm_issue(h, 7, ps[EARLY:])
        ieg = max(IEG, 10)
        if ieg > 10:
            a('s_waitcnt vmcnt(0)')
            e_gather(1 - h, 10, ieg)
    a('s_waitcnt vmcnt(0)')
    stamp('ffn in', P)
    if h == 1:
        can_wait(110, KCAN)
        stamp('can', P)
    bar('B5c')
    bar('B6')
    e_gather(1 - h, ieg, 20)
    if IWD and S_W[2] != 8:
        wd_load(1 - h)
    a(f's_branch L_hend{h}')
    flush_late()


def helper0():
    a.label('L_h0')
    a(f's_mov_b32 s{sHI}, 0xffff0000')
    a(f'''
    v_mov_b32 v20, 0
    v_mov_b32 v21, 0
    v_mov_b32 v22, 0
    v_mov_b32 v23, 0
    v_mov_b32 v28, {KEYL}
    ds_write_b128 v28, v[20:23]
    ''')
    blk_id()
    warm_addr_w()
    warm_addr_f(0, 0)
    a('s_waitcnt lgkmcnt(0)')
    epoch_load()
    warm0(0, True)
    bar('B0 / B1')
    if PB:
        is_a()
        a('s_cbranch_scc0 L_h0_v')
        bar('B1b')
        a.label('L_h0_v')
    if WPOS == 0:
        warm0(0, False)
    stamp('kernarg', 'H0')
    e_addr(W_U)
    w_addr()
    a('s_waitcnt lgkmcnt(0)')
    epoch_tag()
    tag_bytes()
    pub_setup(sTag)
    if RI:
        a(f'''
        s_mul_i32 s{sCand}, s{sX}, 5
        s_add_u32 s{sCand}, s{sCand}, s{sIdx}
        s_sub_u32 s{sCand}, s{sCand}, 2
        s_and_b32 s{sCand}, s{sCand}, 63
        ''')
    else:
        a(f's_lshr_b32 s{sCand}, s{sBlk}, 2')
    a(f's_lshl_b32 s{sU2}, s{sCand}, 10')
    base_add(sPb, WS, sU2)
    a(f'''
    v_mov_b32 v27, s{sTag}
    v_lshlrev_b32 v29, 3, v{vL}
    v_add_u32 v29, {MODB_L}, v29
    v_add_u32 v30, {MODF_G}, v{vL16}
    v_add_u32 v31, {MODF_G + 4096}, v{vL16}
    v_add_u32 v32, {MODF_G + 8192}, v{vL16}
    ''')
    if TF:
        is_b()
        a('s_cbranch_scc0 L_tf')
        if 'b' in TF:
            a(f'v_lshl_add_u32 v36, s{sBlk}, 8, v{vL4}')
            a(f'global_store_dword v36, v20, {sr(WS)} sc1')
        if 'f' in TF:
            assert not RI
            a(f'''
            s_and_b32 s{sT}, s{sBlk}, 3
            s_cbranch_scc1 L_tf
            s_lshl_b32 s{sU0}, s{sCand}, 8
            s_add_u32 s{sU0}, s{sU0}, {MODF_G - 20 * 256}
            v_add_u32 v48, s{sU0}, v{vL16}
            s_mov_b64 exec, 0xffff
            global_store_dwordx4 v48, v[20:23], {sr(WS)} sc1
            s_mov_b64 exec, -1
            ''')
        a.label('L_tf')
    red = [f'global_load_dwordx4 v[40:43], v{vL16}, {sr(sPb)} sc1']
    modf = [f'global_load_dwordx4 {vr(40 + 4 * n, 4)}, v{30 + n // 4}, {sr(WS)} offset:{1024 * (n % 4)} sc1' for n in range(10)]

    def in_w1(k):
        L = newlabel('nr')
        if RI:
            a(f's_cmp_lt_u32 s{sIdx}, {NJ + 5}')
            a(f's_cbranch_scc0 {L}')
        else:
            a(f'''
            s_sub_u32 s{sT}, s{sBlk}, 80
            s_cmp_lt_u32 s{sT}, 160
            s_cbranch_scc0 {L}
            s_and_b32 s{sT}, s{sBlk}, 3
            s_cbranch_scc1 {L}
            ''')
        if k == 0:
            a(red[0])
            a.label(L)
            return
        poll(red, [40, 41, 42, 43], [44], empty='tag', issued=True, younger=63)
        a(f'''
        v_mov_b32 v44, v40
        v_mov_b32 v45, v41
        v_mov_b32 v46, v42
        v_mov_b32 v47, v43
        s_mov_b32 s{sU0}, s{sCand}
        s_sub_u32 s{sT}, s{sU0}, 40
        s_cmp_lt_u32 s{sT}, 10
        s_cselect_b32 s{sU1}, 1.0, 0
        s_lshl_b32 s{sU0}, s{sU0}, 8
        s_add_u32 s{sU0}, s{sU0}, {MODF_G - 20 * 256}
        ''')
        for sw in ('32', '16'):
            for r in range(4):
                a(f'v_permlane{sw}_swap_b32 v{40 + r}, v{44 + r}')
            a('v_pk_add_f32 v[40:41], v[40:41], v[44:45]')
            a('v_pk_add_f32 v[42:43], v[42:43], v[46:47]')
            if sw == '32':
                for r in range(4):
                    a(f'v_mov_b32 v{44 + r}, v{40 + r}')
        a('v_cvt_pk_bf16_f32 v44, v40, v41')
        a('v_cvt_pk_bf16_f32 v45, v42, v43')
        unpack(40, 41, 44)
        unpack(42, 43, 45)
        for r in range(4):
            a(f'v_add_f32 v{40 + r}, s{sU1}, v{40 + r}')
        a(f'''
        v_cvt_pk_bf16_f32 v44, v40, v41
        v_cvt_pk_bf16_f32 v45, v42, v43
        v_mov_b32 v47, s{sTag}
        v_add_u32 v48, s{sU0}, v{vL16}
        s_mov_b64 exec, 0xffff
        global_store_dwordx4 v48, v[44:47], {sr(WS)} sc1
        s_mov_b64 exec, -1
        ''')
        stamp('reduced', 'H0')
        a.label(L)

    def in_w2(k):
        if k == 0:
            for ld in modf:
                a(ld)
            return
        poll(modf, [43 + 4 * n for n in range(10)], list(range(80, 90)), empty='words', issued=True, younger=63)
        for n in range(10):
            a(f'ds_write_b64 v29, {vr(40 + 4 * n, 2)} offset:{512 * n}')
        a('s_waitcnt lgkmcnt(0)')
        stamp('modb in', 'H0')
    helper_tail(0, 'H0', lambda: in_w1(0), lambda: in_w1(2), lambda: in_w2(0), lambda: in_w2(1))


def helper1():
    a.label('L_h1')
    a(f'''
    s_getpc_b64 {sr(sBa)}
    L_pc:
    s_add_u32 s{sBb}, s{sBa}, L_tables-L_pc
    s_addc_u32 s{sBb + 1}, s{sBa + 1}, 0
    ''')

    def tabs(q0, q1):
        for q in range(q0, q1):
            if q % 4 == 0 or q == q0:
                a(f's_mov_b32 m0, {TAB + (q & ~3) * 1024}')
                a(f'v_add_u32 v20, {(q & ~3) * 1024}, v{vL16}')
            a(f'global_load_lds_dwordx4 v20, {sr(sBb)} offset:{1024 * (q % 4)}')

    def tab2():
        tabs(NT1, NTAB)
        a(f'''
        s_mov_b32 m0, {WR_L}
        global_load_lds_dwordx4 v{vL16}, {sr(B_WR)}
        s_mov_b64 exec, 0xffff
        global_load_lds_dwordx4 v{vL16}, {sr(B_WR)} offset:1024
        s_mov_b64 exec, -1
        ''')
        return NTAB - 14 + 2

    if AT == 2:
        tabs(0, NT1)
    warm_addr_w()
    warm_addr_f(1, 0)
    a('s_waitcnt lgkmcnt(0)')
    epoch_load()
    if AT == 0:
        blk_id()
        is_a()
        a('s_cbranch_scc0 L_h1_t')
        bar('B1')
        if PB:
            bar('B1b')
        a.label('L_h1_t')
    if AT < 2:
        tabs(0, NT1)
    if HB:
        e_addr(W_G)
        w_addr()
    if AT == 0:
        is_a()
        a('s_cbranch_scc1 L_h1_v')
    if AT:
        blk_id()
    warm0(1, True)
    bar('B0 / B1')
    if AT and PB:
        is_a()
        a('s_cbranch_scc0 L_h1_v')
        bar('B1b')
    a.label('L_h1_v')
    tab2()
    can_addr()
    if K1:
        can_touch(114)
    if WPOS == 0:
        warm0(1, False)
    if not HB:
        e_addr(W_G)
        w_addr()
    a('s_waitcnt lgkmcnt(0)')
    epoch_tag()
    a(f's_waitcnt vmcnt({NTAB - NT1 + 2 + (K1 > 0) + (1 + len(ffn_parts(0))) * (WPOS == 0 and not W20)})')
    stamp('tab in', 'H1')
    nop = lambda: None
    helper_tail(1, 'H1', nop, nop, nop, nop)


prologue()
main_path()
helper0()
helper1()
body = a.finish()

hdr = open(f'cdna_kernels/{NAME}.s.ref').read().split('; Override launch')[0]
T = tables()
tab = []
flat = T.reshape(-1)
for k in range(0, flat.size, 8):
    tab.append('.long ' + ','.join('0x%08x' % v for v in flat[k:k + 8]))

launch = f'; @launch grid=(256,1,1) block=(640,1,1) lds={LDS_BYTES}'
pre_code = pre_kd = ''
if PRE:
    launch = f'; @launch kernel=pre_kernel grid=({PRE},1,1) block=(64,1,1) lds=0\n; @launch kernel={NAME}_kernel grid=(256,1,1) block=(640,1,1) lds={LDS_BYTES}'
    pre_code = '.globl pre_kernel\n.p2align 8\n.type pre_kernel,@function\npre_kernel:\n    s_endpgm\n'
    pre_kd = '''.p2align 6
.amdhsa_kernel pre_kernel
  .amdhsa_next_free_vgpr 8
  .amdhsa_next_free_sgpr 16
  .amdhsa_accum_offset 8
  .amdhsa_group_segment_fixed_size 0
  .amdhsa_kernarg_size 104
  .amdhsa_user_sgpr_count 2
  .amdhsa_user_sgpr_kernarg_segment_ptr 1
  .amdhsa_system_sgpr_workgroup_id_x 1
.end_amdhsa_kernel
'''
src = hdr + f'''{launch}
.amdgcn_target "amdgcn-amd-amdhsa--gfx950"
.text
; ---------------------------------------------------------------------------------------------------------------
; One persistent launch: 256 workgroups (one per CU), 8 row/column waves + 2 helper waves each.
;   mod   : silu(c) @ w_mod in 240 blocks (64 columns x 160 rows); partial sums are handed over through d_ws
;   P1    : workgroup c owns rows 256a+c: LayerNorm, modulation, real DFT-640 (20 x 32, bf16 MFMA), radix-8 over a
;   P2    : 176 workgroups own 15 columns of one residue q: DFT-256 (16 x 16), filter, inverse DFT-256
;   P3    : inverse radix-8, inverse DFT-640, residual, LayerNorm, router score, output rows
;   FFN   : arg-max over per-workgroup keys, 96 workgroups x 16 hidden units, 80 waves update the selected row
; Hand-offs between workgroups: write-through (sc1) stores carrying a per-launch tag, sc1 loads re-issued until the
; tag is seen (bounded). The tag is derived from one d_ws word that is advanced later in the same launch; every
; tagged slot is rewritten by every launch. Workgroup numbering only arranges for L2 locality.
; Generated by a script; hazard wait states (s_nop) are inserted per the ISA tables.
; ---------------------------------------------------------------------------------------------------------------
{pre_code}.globl {NAME}_kernel
.p2align 8
.type {NAME}_kernel,@function
{NAME}_kernel:
{body}
.p2align 8
.type L_tables,@object
L_tables:
''' + '\n'.join(tab) + f'''
.size L_tables, {NTAB * 1024}
.fill (8192 - ((. - {NAME}_kernel) & 8191)) & 8191, 1, 0
L_tables_end:
.section .rodata,"a"
.p2align 6
.amdhsa_kernel {NAME}_kernel
  .amdhsa_next_free_vgpr 168
  .amdhsa_next_free_sgpr 102
  .amdhsa_accum_offset 168
  .amdhsa_group_segment_fixed_size 0
  .amdhsa_kernarg_size 104
  .amdhsa_user_sgpr_count 2
  .amdhsa_user_sgpr_kernarg_segment_ptr 1
  .amdhsa_system_sgpr_workgroup_id_x 1
.end_amdhsa_kernel
{pre_kd}'''
open(OUT, 'w').write(src)
print('wrote', OUT, 'lds', LDS_BYTES, 'lines', len(a.lines), 'nops', a.nnops)
```

```python
import sys, struct
import numpy as np
from asmdsl import Asm

NAME = 'adaLN_cond__spectral_gfnet__moe_arch_mod__prompt'
DIAG = '--diag' in sys.argv or '--dbgdiag' in sys.argv
DBGDIAG = '--dbgdiag' in sys.argv
OUT = [a for a in sys.argv[1:] if not a.startswith('--')]
OUT = OUT[0] if OUT else f'cdna_kernels/{NAME}.s'
SPIN = 60000


def opt(name, default):
    for x in reversed(sys.argv):
        if x.startswith(f'--{name}='):
            return x.split('=', 1)[1]
    return default


PROBE = opt('probe', None)
if PROBE:
    PROBE = PROBE.replace('_', ' ')
PROBEWG = int(opt('probewg', 8))
FINE = opt('fine', None)
if PROBE or FINE:
    DIAG = True
PRE = None
INPOL = 'nt'
S_W = [int(x) for x in opt('sw', '777')]
EG3 = int(opt('eg3', 10))
PACE1 = int(opt('pace1', 0))
PACE2 = int(opt('pace2', 0))
PK = opt('pk', '110')
P3FIRST = int(opt('p3first', 1))
WFIRST = int(opt('wfirst', 1))
DR1 = int(opt('dr1', 0))
DR2 = int(opt('dr2', 0))
BGWAIT = int(opt('bgwait', 9))
EARLY = int(opt('early', 2))
MATS = int(opt('mats', 2))
IEG = int(opt('ieg', 16))
IWD = int(opt('iwd', 1))
MF = int(opt('mf', 10))
MR = int(opt('mr', 0))
BLOAD = int(opt('bload', 2))
P2ORD = int(opt('p2ord', 2))
GLATE = int(opt('glate', 0))
B0 = int(opt('b0', 3))
FWL = int(opt('fwl', 0))
KP = int(opt('kp', 1))
PF = int(opt('pf', 0))
XL = int(opt('xl', 3))
WC = int(opt('wc', 0))
KD = int(opt('kd', 0))
ISEQ = int(opt('iseq', 0))
RE = int(opt('re', 1))
FINPOL = opt('finpol', '')
PYD = int(opt('pyd', 0))
TCH = opt('tch', 'mkp')
NT = ('k' in TCH) + 3 * ('p' in TCH)
PKS = int(opt('pks', 1))
P3O = int(opt('p3o', 0))
PRIO = opt('prio', '000')
AL1 = int(opt('al1', 0))
AL2 = int(opt('al2', 0))
OE = int(opt('oe', 1))
BL = int(opt('bl', 0))
PL = int(opt('pl', 1))
AW = int(opt('aw', 1))
W8 = int(opt('w8', 0))
TB2 = int(opt('tb2', 0))
MW = int(opt('mw', 0))
XMAP = int(opt('xmap', '0x35762410'), 16)
EX = int(opt('ex', 0))
AT = int(opt('at', 1))
AX = int(opt('ax', 2))
WPOS = int(opt('wpos', 0))
SC_ = int(opt('sc', 1))
XP = int(opt('xp', 0))
BG = int(opt('bg', 0))
MT = int(opt('mt', 1))
S1 = int(opt('s1', 3))
PB = int(opt('pb', 1))
GB = int(opt('gb', 0))
W20 = int(opt('w20', 0))
HB = int(opt('hb', 0))
KCAN = int(opt('kcan', 5))
K1 = int(opt('k1', 0))
K2 = int(opt('k2', 0))
AWE = int(opt('awe', 0))
RI = int(opt('ri', 0))
TF = opt('tf', '')
XX = opt('xx', '')
NS = int(opt('ns', 1))
SAL = int(opt('sal', 0))
CF = int(opt('cf', 0))
GN = int(opt('gn', 0))
GMAP = int(opt('gmap', '0x36542107'), 16)
sLin = 14
NCAN = int(opt('ncan', 8))
CANJ = int(opt('canj', 12))
NJ = 22
T1S = 8 * NJ * 64 + int(opt('t1pad', 128))
T2S = 16384 + int(opt('t2pad', 256))

MODA_G = 0
MODF_G = 61440
EPOCH_G = 73728
PY_G = 0x20000
PY_STRIDE = 2688
REC_G = 0x80000
REC_STRIDE = 4224
REC_H2 = 128
REC_BASE = 128 + 2048
T1_G = 0x400000
T2_G = 0x800000
DIAG_G = 0xC00000

NTAB = 26
TAB = 0
RED = TAB + NTAB * 1024
KEYL = RED + 2048
XB2 = KEYL + 64
SA = 736
XB1 = XB2 + 20480
MODA_L = XB1 + 16 * SA
MODB_L = MODA_L + 5120
WR_L = MODB_L + 5120
WST = WR_L + 2048
EW = WST + 16384
FW = EW + 40960
SAF = FW + 20480
STL = SAF + 2688
LDS_BYTES = STL + 256
assert LDS_BYTES <= 163840, LDS_BYTES

T_F20C, T_F20S, T_TW1, T_F32A, T_ADR, T_TW3, T_F20I, T_F32B, T_F16, T_TW2 = 0, 1, 2, 6, 10, 11, 15, 18, 22, 24
NT1 = 11


def f2u(x):
    return struct.unpack('<I', struct.pack('<f', float(x)))[0]


def bf(x):
    u = f2u(x)
    return ((u + 0x7FFF + ((u >> 16) & 1)) >> 16) & 0xFFFF


def pk(lo, hi):
    return bf(lo) | (bf(hi) << 16)


ALPHA = {16: 1.1328, 20: 1.4294, 32: 1.62445}


def cs(num, den):
    a = 2 * np.pi * (num % den) / den
    c, s = np.cos(a), np.sin(a)
    if abs(c) < 1e-12: c = 0.0
    if abs(s) < 1e-12: s = 0.0
    al = ALPHA.get(den, 1.0)
    return c * al, s * al


def kaof(x):
    ka = 3 * (x >> 2) + (x & 3)
    return ka if (x & 3) < 3 and ka <= 10 else None


def tables():
    T = np.zeros((NTAB, 64, 4), np.uint32)
    for l in range(64):
        i, g = l & 15, l >> 4
        c8, s8 = [0.0] * 8, [0.0] * 8
        for j in range(5):
            if kaof(i) is not None:
                c, s = cs((4 * j + g) * kaof(i), 20)
                c8[j], s8[j] = c, -s
        for d in range(4):
            T[T_F20C, l, d] = pk(c8[2 * d], c8[2 * d + 1])
            T[T_F20S, l, d] = pk(s8[2 * d], s8[2 * d + 1])
        for t in range(2):
            for r in range(4):
                c, s = cs((8 * g + 2 * r + t) * (kaof(i) or 0), 640)
                T[T_TW1 + 2 * t, l, r] = f2u(c)
                T[T_TW1 + 2 * t + 1, l, r] = f2u(s)
                c, s = cs((2 * i + t) * (kaof(4 * g + r) or 0), 640)
                T[T_TW3 + 2 * t, l, r] = f2u(c)
                T[T_TW3 + 2 * t + 1, l, r] = f2u(s)
        kbof = lambda e: e if e < 16 else 47 - e
        for tile in range(2):
            for ks in range(2):
                for r in range(4):
                    c, s = cs(kbof(2 * i + tile) * (8 * g + 2 * r + ks), 32)
                    T[T_F32A + tile * 2 + ks, l, r] = pk(c, s)
                    c, s = cs((2 * i + tile) * kbof(8 * g + 2 * r + ks), 32)
                    T[T_F32B + tile * 2 + ks, l, r] = pk(c, s)
        ka_ = kaof(i)
        k0 = 0 if ka_ is None else (160 * g + ka_ if g < 2 else 160 * g - 300 - ka_)
        T[T_ADR, l, 0] = 8 * k0
        T[T_ADR, l, 1] = 0x8000 if i < 8 else 0x80000000
        T[T_ADR, l, 2] = 0 if g < 2 else 0x8000
        T[T_ADR, l, 3] = 0x8000 if g < 2 else 0
        for r in range(4):
            c, s = cs(i * (4 * g + r), 16)
            T[T_F16, l, r] = pk(c, s)
            T[T_F16 + 1, l, r] = pk(-s, c)
            c, s = cs(i * (4 * g + r), 256)
            T[T_TW2, l, r] = f2u(c)
            T[T_TW2 + 1, l, r] = f2u(s)
            ka = kaof(4 * g + r)
            if ka is not None:
                a1 = 4 * (i & 3) + (i >> 2)
                c, s = cs(a1 * ka, 20)
                T[T_F20I, l, r] = pk(c, -s)
                c, s = cs((16 + (i >> 2)) * ka, 20)
                if (i & 3) == 0:
                    T[T_F20I + 1, l, r] = pk(c, -s)
                if (i & 3) == 1:
                    T[T_F20I + 2, l, r] = pk(c, -s)
    return T


def vr(a, n=1):
    return f'v{a}' if n == 1 else f'v[{a}:{a + n - 1}]'


def sr(a, n=2):
    return f's{a}' if n == 1 else f's[{a}:{a + n - 1}]'


sW, sX, sIdx, sMe, sT = 3, 4, 5, 6, 7
A_X, W_R, W_I, B_WR, W_G, W_U, W_D = 8, 10, 12, 16, 18, 20, 22
C_, W_MOD, OUTP, DBG, WS = 24, 26, 28, 30, 32
sBa, sBb, sBc = 34, 36, 38
sCnt = 40
sM1B = 41
sU0, sU1, sU2, sU3 = 42, 43, 46, 47
sM7 = 44
sRow = 48
sKey = 49
sV1, sV2 = 50, 51
sHI = 52
sCand = 53
sBlk = 54
sRec = 56
sTag = 55
sRi = sIdx
sGU = 56
sXrow = 72
sTS = 74

vL, vL16, vL4, vS, vPoll = 1, 2, 3, 4, 5
vM8F, vM8I = 6, 8
vXS = 10
Ra, Rb, RD, Rc = 20, 28, 36, 52
vF32 = 60
vTW = 92
vF20 = 108
vVec = 120
vE0 = 160
vXR = 150


a = Asm()
stamps = {}
NST = 24


def stamp(name, path='M', wait=True):
    if not DIAG or FINE:
        return
    if opt('only', None) and not (name == 'start' or any(name.startswith(x.replace('_', ' ')) for x in opt('only', '').split(','))):
        return
    if PROBE and (path != 'M' or not (name == 'start' or name.startswith(PROBE))):
        return
    lst = stamps.setdefault(path, [])
    if name not in lst:
        lst.append(name)
    k = lst.index(name)
    assert k < NST
    a(f's_memrealtime s[100:101]')
    a('s_waitcnt lgkmcnt(0)')
    a(f's_mov_b32 s{sTS + k}, s100')


fines = []


def fine(group, name):
    if FINE != group:
        return
    if name not in fines:
        fines.append(name)
    k = fines.index(name)
    assert k < 12
    a(f's_memtime {sr(sTS + 2 * k)}')


def dump_stamps(path='M'):
    if not DIAG:
        return
    if PROBE:
        if path != 'M':
            return
        a(f'''
        s_cmp_lg_u32 s2, {PROBEWG}
        s_cbranch_scc1 L_end
        s_cmp_lg_u32 s{sW}, 0
        s_cbranch_scc1 L_end
        ''')
        if PROBE == 'fix':
            a(f's_movk_i32 s{sU0}, 6000')
        elif PROBE == 'rel':
            RX = int(opt('rx', 1))
            a(f'''
            v_mov_b32 v20, {DIAG_G}
            global_load_dword v21, v20, {sr(WS)} sc1
            global_load_dword v22, v20, {sr(WS)} offset:{128 * RX} sc1
            s_waitcnt vmcnt(0)
            v_sub_u32 v21, v22, v21
            v_add_u32 v21, 100, v21
            v_readfirstlane_b32 s{sU0}, v21
            s_lshl_b32 s{sU0}, s{sU0}, 5
            s_add_u32 s{sU0}, s{sU0}, 6000
            s_min_u32 s{sU0}, s{sU0}, 100000
            ''')
        elif PROBE == 'xcc':
            a(f's_getreg_b32 s{sU0}, hwreg(HW_REG_XCC_ID)')
            a(f's_and_b32 s{sU0}, s{sU0}, 15')
            a(f's_mul_i32 s{sU0}, s{sU0}, 1000')
            a(f's_add_u32 s{sU0}, s{sU0}, 6000')
        else:
            a(f's_sub_u32 s{sU0}, s{sTS + 1}, s{sTS}')
            a(f's_lshl_b32 s{sU0}, s{sU0}, 4')
            a(f's_add_u32 s{sU0}, s{sU0}, 6000')
            a(f's_min_u32 s{sU0}, s{sU0}, 100000')
        a(f'''
        L_probe:
        s_memrealtime s[100:101]
        s_waitcnt lgkmcnt(0)
        s_sub_u32 s{sU1}, s100, s{sTS}
        s_cmp_lt_u32 s{sU1}, s{sU0}
        s_cbranch_scc1 L_probe
        ''')
        return
    if DBGDIAG:
        if path != 'M':
            return
        a('v_mov_b32 v20, 0')
        a('s_mov_b64 exec, 1')
        a(f's_not_b32 s{sU0}, s{sTS}')
        a(f'v_mov_b32 v22, s{sU0}')
        a(f'global_atomic_umax v20, v22, {sr(DBG)} offset:4 sc1')
        ks = [0] + list(range(2, len(stamps['M'])))
        for n, k in enumerate(ks[:14]):
            a(f'v_mov_b32 v{23 + n}, s{sTS + k}')
            a(f'global_atomic_umax v20, v{23 + n}, {sr(DBG)} offset:{8 + 4 * n} sc1')
        print('dbg slots:', [(2 + n, stamps['M'][k]) for n, k in enumerate(ks[:14])])
        return
    a(f'''
    s_lshl_b32 s{sU0}, s2, 11
    s_lshl_b32 s{sU1}, s{sW}, 7
    s_add_u32 s{sU0}, s{sU0}, s{sU1}
    s_memtime s[100:101]
    ''')
    base_add(sBa, WS, sU0, DIAG_G)
    a('v_mov_b32 v20, 0')
    a('s_mov_b64 exec, 1')
    for k in range(0, NST, 2):
        a(f'v_mov_b32 v22, s{sTS + k}')
        a(f'v_mov_b32 v23, s{sTS + k + 1}')
        a(f'global_store_dwordx2 v20, v[22:23], {sr(sBa)} offset:{4 * k}')
        a('s_nop 1')
    a('s_waitcnt lgkmcnt(0)')
    a('s_sub_u32 s100, s100, s98')
    a('v_mov_b32 v22, s100')
    a(f'global_store_dword v20, v22, {sr(sBa)} offset:112')
    a('s_getreg_b32 s42, hwreg(HW_REG_XCC_ID)')
    a('s_getreg_b32 s43, hwreg(HW_REG_HW_ID)')
    a('v_mov_b32 v22, s42')
    a('v_mov_b32 v23, s43')
    a(f'global_store_dwordx2 v20, v[22:23], {sr(sBa)} offset:120')


def base_add(dst, src, off_s=None, imm=0):
    if off_s is not None:
        if imm:
            a(f's_add_u32 s{sT}, s{off_s}, {imm}')
            off_s = sT
        a(f's_add_u32 s{dst}, s{src}, s{off_s}')
    else:
        a(f's_add_u32 s{dst}, s{src}, {imm}')
    a(f's_addc_u32 s{dst + 1}, s{src + 1}, 0')


lblc = [0]
late = []
late2 = []


def flush_late():
    for f in late:
        f()
    late.clear()
    for f in late2:
        f()
    late2.clear()


def newlabel(p):
    lblc[0] += 1
    return f'L_{p}_{lblc[0]}'


def poll(loads, regs, tmp, mask=None, empty='eq -1', between=None, younger=0, issued=False):
    L, D, Cc = newlabel('poll'), newlabel('polld'), newlabel('pollc')
    if mask is not None:
        mask_lanes(mask)
    if not issued:
        for ld in loads:
            a(ld)
    a(f's_mov_b32 s{sCnt}, {SPIN}')
    if between is not None:
        between()
    if younger < 63:
        a(f's_waitcnt vmcnt({younger})')
    a.label(Cc)

    def retry():
        a.label(L)
        a(f's_sub_u32 s{sCnt}, s{sCnt}, 1')
        a(f's_cbranch_scc1 {D}')
        for ld in loads:
            a(ld)
        a('s_waitcnt vmcnt(0)')
        a(f's_branch {Cc}')
    late.append(retry)
    if empty == 'tag':
        for n, r in enumerate(regs):
            a(f'v_xor_b32 v{r}, s{sTB + (n & 3)}, v{r}')
        rem = list(regs)
        for c in tmp:
            a(f'v_or3_b32 v{c}, v{rem[0]}, v{rem[1]}, v{rem[2]}')
            rem = rem[3:]
        n = 0
        while len(rem) >= 2:
            c = tmp[n % len(tmp)]
            a(f'v_or3_b32 v{c}, v{c}, v{rem[0]}, v{rem[1]}')
            rem = rem[2:]
            n += 1
        t = tmp[0]
        rem = rem + list(tmp[1:])
        while rem:
            if len(rem) >= 2:
                a(f'v_or3_b32 v{t}, v{t}, v{rem[0]}, v{rem[1]}')
                rem = rem[2:]
            else:
                a(f'v_or_b32 v{t}, v{t}, v{rem[0]}')
                rem = rem[1:]
        a(f'v_and_b32 v{t}, 0xff, v{t}')
        empty = 'ne 0'
    elif empty == 'word':
        if len(regs) == 1:
            t = regs[0]
            empty = f'ne s{sTag}'
        else:
            assert len(regs) == 2
            t = tmp[0]
            a(f'v_xor_b32 v{t}, v{regs[0]}, v{regs[1]}')
            a(f'v_xor_b32 v{tmp[1]}, s{sTag}, v{regs[0]}')
            a(f'v_or_b32 v{t}, v{t}, v{tmp[1]}')
            empty = 'ne 0'
    elif empty == 'words':
        for n, r in enumerate(regs):
            a(f'v_xor_b32 v{tmp[n]}, s{sTag}, v{r}')
        t = tmp[0]
        rem = list(tmp[1:len(regs)])
        while rem:
            if len(rem) >= 2:
                a(f'v_or3_b32 v{t}, v{t}, v{rem[0]}, v{rem[1]}')
                rem = rem[2:]
            else:
                a(f'v_or_b32 v{t}, v{t}, v{rem[0]}')
                rem = rem[1:]
        empty = 'ne 0'
    elif len(regs) == 1:
        t = regs[0]
    else:
        rem = list(regs)
        outs = []
        k = 0
        while len(rem) >= 3 and k < len(tmp):
            a(f'v_max3_u32 v{tmp[k]}, v{rem[0]}, v{rem[1]}, v{rem[2]}')
            outs.append(tmp[k])
            rem = rem[3:]
            k += 1
        rem = outs[1:] + rem
        t = outs[0] if outs else None
        if t is None:
            t = tmp[0]
            a(f'v_max_u32 v{t}, v{rem[0]}, v{rem[1]}')
            rem = rem[2:]
        while rem:
            if len(rem) >= 2:
                a(f'v_max3_u32 v{t}, v{t}, v{rem[0]}, v{rem[1]}')
                rem = rem[2:]
            else:
                a(f'v_max_u32 v{t}, v{t}, v{rem[0]}')
                rem = rem[1:]
    a(f'v_cmpx_{empty.split()[0]}_u32 vcc, {empty.split()[1]}, v{t}')
    a(f's_cbranch_execnz {L}')
    a.label(D)
    a('s_mov_b64 exec, -1')


def epoch_load():
    a(f's_load_dword s{sTag}, {sr(WS)}, {EPOCH_G}')


def epoch_tag(d=None):
    d = d or sTag
    a(f'''
    s_and_b32 s{d}, s{sTag}, 0x7f7f7f7f
    s_add_u32 s{d}, s{d}, 0x01010101
    s_or_b32 s{d}, s{d}, 0x80808080
    ''')


sTB = 68


def tag_bytes():
    for k in range(4):
        a(f's_bfe_u32 s{sTB + k}, s{sTag}, {hex(0x80000 | (8 * k))}')


def dpp(op, r, ctrl, rm='0xf'):
    a(f'{op}_dpp v{r}, v{r}, v{r} {ctrl} row_mask:{rm} bank_mask:0xf')


def wave_sum(regs, dst_s, op='v_add_f32'):
    for c in ('row_ror:8', 'row_ror:4', 'row_ror:2', 'row_ror:1'):
        for r in regs:
            dpp(op, r, c)
    for r in regs:
        dpp(op, r, 'row_bcast:15', '0xa')
    for r in regs:
        dpp(op, r, 'row_bcast:31', '0xc')
    for r, s in zip(regs, dst_s):
        a(f'v_readlane_b32 s{s}, v{r}, 63')


def rbf(dst, src):
    a(f'v_cvt_pk_bf16_f32 v{dst}, {src}, {src}')
    a(f'v_and_b32 v{dst}, s{sHI}, v{dst}')


def unpack(dlo, dhi, src):
    a(f'v_lshlrev_b32 v{dlo}, 16, v{src}')
    a(f'v_and_b32 v{dhi}, s{sHI}, v{src}')


def mfma32(d, x, y, c=None):
    a(f'v_mfma_f32_16x16x32_bf16 {vr(d, 4)}, {vr(x, 4)}, {vr(y, 4)}, {vr(c, 4) if c is not None else 0}')


def mfma16(d, x, y):
    a(f'v_mfma_f32_16x16x16_bf16 {vr(d, 4)}, {vr(x, 2)}, {vr(y, 2)}, 0')


def cmul(tr, ti, re, im, c, s, sign, pk=True, n=4, head=0):
    if not pk:
        for r in range(n):
            a(f'v_mul_f32 v{tr + r}, v{re + r}, v{c + r}')
        for r in range(n):
            a(f'v_mul_f32 v{ti + r}, v{im + r}, v{c + r}')
        for r in range(n):
            if sign > 0:
                a(f'v_fma_f32 v{tr + r}, -v{im + r}, v{s + r}, v{tr + r}')
                a(f'v_fmac_f32 v{ti + r}, v{re + r}, v{s + r}')
            else:
                a(f'v_fmac_f32 v{tr + r}, v{im + r}, v{s + r}')
                a(f'v_fma_f32 v{ti + r}, -v{re + r}, v{s + r}, v{ti + r}')
        return
    nr = 'neg_lo:[1,0,0] neg_hi:[1,0,0]'
    for h in (0, 2):
        if head:
            a(f'v_mul_f32 v{tr + h}, v{re + h}, v{c + h}')
            a(f'v_mul_f32 v{tr + h + 1}, v{re + h + 1}, v{c + h + 1}')
        else:
            a(f'v_pk_mul_f32 {vr(tr + h, 2)}, {vr(re + h, 2)}, {vr(c + h, 2)}')
    for h in (0, 2):
        a(f'v_pk_mul_f32 {vr(ti + h, 2)}, {vr(im + h, 2)}, {vr(c + h, 2)}')
    for h in (0, 2):
        a(f'v_pk_fma_f32 {vr(tr + h, 2)}, {vr(im + h, 2)}, {vr(s + h, 2)}, {vr(tr + h, 2)} {nr if sign > 0 else ""}')
    for h in (0, 2):
        a(f'v_pk_fma_f32 {vr(ti + h, 2)}, {vr(re + h, 2)}, {vr(s + h, 2)}, {vr(ti + h, 2)} {nr if sign < 0 else ""}')


def pack4(d, lo, hi, step=1, n=4):
    for r in range(n):
        a(f'v_cvt_pk_bf16_f32 v{d + r * step}, v{lo + r}, v{hi + r}')


def tab_read(dst, q):
    a(f'ds_read_b128 {vr(dst, 4)}, v{vL16} offset:{TAB + q * 1024}')


def tm(j, t):
    return 4 * t + j if j < 4 else 8 + t


def read_tmajor(dst, vaddr, off):
    o = off // 256
    assert off % 256 == 0 and o + 6 < 256
    for t in range(2):
        a(f'ds_read2st64_b32 {vr(dst + 4 * t, 2)}, v{vaddr + t} offset0:{o} offset1:{o + 2}')
        a(f'ds_read2st64_b32 {vr(dst + 4 * t + 2, 2)}, v{vaddr + t} offset0:{o + 4} offset1:{o + 6}')
    a(f'ds_read_b64 {vr(dst + 8, 2)}, v{vaddr} offset:{off + 2048}')


def silu(dst, src, tmp):
    for d, s, t in zip(dst, src, tmp):
        a(f'v_mul_f32 v{t}, 0xbfb8aa3b, v{s}')
    for t in tmp:
        a(f'v_exp_f32 v{t}, v{t}')
    for t in tmp:
        a(f'v_add_f32 v{t}, 1.0, v{t}')
    for t in tmp:
        a(f'v_rcp_f32 v{t}, v{t}')
    for d, s, t in zip(dst, src, tmp):
        a(f'v_mul_f32 v{d}, v{s}, v{t}')


def swap_reduce8(acc):
    for k in range(4):
        a(f'v_permlane32_swap_b32 v{acc + k}, v{acc + k + 4}')
    a(f'v_pk_add_f32 {vr(acc, 2)}, {vr(acc, 2)}, {vr(acc + 4, 2)}')
    a(f'v_pk_add_f32 {vr(acc + 2, 2)}, {vr(acc + 2, 2)}, {vr(acc + 6, 2)}')
    for k in range(2):
        a(f'v_permlane16_swap_b32 v{acc + k}, v{acc + k + 2}')
    a(f'v_pk_add_f32 {vr(acc, 2)}, {vr(acc, 2)}, {vr(acc + 2, 2)}')


BC0 = 'op_sel:[0,0,0] op_sel_hi:[1,0,1]'
BC1 = 'op_sel:[0,1,0] op_sel_hi:[1,1,1]'


def prologue():
    a(f'''
    s_cmp_ge_u32 s2, 256
    s_cbranch_scc1 L_end
    ''')
    if DIAG:
        for k in range(NST):
            a(f's_mov_b32 s{sTS + k}, 0')
        a('s_memtime s[98:99]')
        for p in ('M', 'H0', 'H1'):
            stamps[p] = ['start']
        stamp('start')
    a(f'''
    s_load_dwordx16 s[8:23], s[0:1], 0
    s_load_dwordx8 s[24:31], s[0:1], 64
    s_load_dwordx2 s[32:33], s[0:1], 96
    v_lshrrev_b32 v20, 6, v0
    s_and_b32 s{sX}, s2, 7
    s_lshr_b32 s{sIdx}, s2, 3
    v_readfirstlane_b32 s{sW}, v20
    v_and_b32 v{vL}, 63, v0
    s_lshl_b32 s{sMe}, s{sX}, 5
    s_add_u32 s{sMe}, s{sMe}, s{sIdx}
    v_lshlrev_b32 v{vL16}, 4, v{vL}
    v_lshlrev_b32 v{vL4}, 2, v{vL}
    s_cmp_eq_u32 s{sW}, 9
    s_cbranch_scc1 L_h1
    s_cmp_eq_u32 s{sW}, 8
    s_cbranch_scc1 L_h0
    s_cmp_eq_u32 s{sRi}, 30
    s_cbranch_scc0 L_nopf
    s_cmp_ge_u32 s{sW}, (L_tables_end-{NAME}_kernel)/8192
    s_cbranch_scc1 L_nopf
    s_getpc_b64 {sr(sBa)}
    L_pc0:
    s_sub_u32 s{sBa}, s{sBa}, L_pc0-{NAME}_kernel
    s_subb_u32 s{sBa + 1}, s{sBa + 1}, 0
    v_lshlrev_b32 v21, 7, v0
    global_load_dword v157, v21, {sr(sBa)}
    L_nopf:
    ''')


def xloads():
    for j in range(5):
        a(f'global_load_dword v{vXR + j}, v156, {sr(A_X)} offset:{256 * j} {INPOL}')


def blk_id():
    if NS and GN:
        a(f'''
        s_lshl_b32 s{sT}, s{sX}, 2
        s_lshr_b32 s{sT}, {hex(GMAP)}, s{sT}
        s_and_b32 s{sT}, s{sT}, 7
        s_cmp_lt_u32 s{sT}, {GN}
        s_cselect_b32 s{sBlk}, {GN}, {8 - GN}
        s_cselect_b32 s{sU0}, 0, {31 * GN}
        s_mul_i32 s{sBlk}, s{sBlk}, s{sIdx}
        s_add_u32 s{sBlk}, s{sBlk}, s{sT}
        s_add_u32 s{sBlk}, s{sBlk}, s{sU0}
        s_cmp_lt_u32 s{sBlk}, 80
        s_cselect_b32 s{sU0}, -40, 0
        s_cmp_lt_u32 s{sBlk}, 40
        s_cselect_b32 s{sU0}, 40, s{sU0}
        s_add_u32 s{sBlk}, s{sBlk}, s{sU0}
        ''')
        return
    if NS:
        a(f'''
        s_mul_i32 s{sBlk}, s{sX}, 25
        s_add_u32 s{sBlk}, s{sBlk}, s{sIdx}
        s_cmp_lt_u32 s{sBlk}, 45
        s_cselect_b32 s{sU0}, -5, 35
        s_add_u32 s{sBlk}, s{sBlk}, s{sU0}
        s_mul_i32 s{sU0}, s{sX}, 5
        s_add_u32 s{sU0}, s{sU0}, s{sIdx}
        s_add_u32 s{sU0}, s{sU0}, 40
        s_cmp_lt_u32 s{sIdx}, 5
        s_cselect_b32 s{sBlk}, s{sU0}, s{sBlk}
        s_cmp_lt_u32 s{sIdx}, 30
        s_cselect_b32 s{sBlk}, s{sBlk}, 0xf1
        ''')
        return
    if EX == 7:
        a(f'''
        s_mul_i32 s{sBlk}, s{sIdx}, 7
        s_add_u32 s{sBlk}, s{sBlk}, s{sX}
        s_add_u32 s{sT}, s{sIdx}, 225
        s_cmp_eq_u32 s{sX}, 0
        s_cselect_b32 s{sBlk}, s{sT}, s{sBlk}
        s_sub_u32 s{sBlk}, s{sBlk}, 1
        ''')
        return
    if EX:
        a(f'''
        s_lshl_b32 s{sT}, s{sX}, 2
        s_lshr_b32 s{sT}, {hex(XMAP)}, s{sT}
        s_and_b32 s{sT}, s{sT}, 7
        s_cmp_lt_u32 s{sIdx}, {80 // EX}
        s_cselect_b32 s{sBlk}, {80 // EX}, {30 - 80 // EX}
        s_cselect_b32 s{sU0}, 0, {80 - 80 // EX}
        s_cmp_lt_u32 s{sT}, {EX}
        s_cselect_b32 s{sBlk}, s{sBlk}, 30
        s_cselect_b32 s{sU0}, s{sU0}, 0
        s_mul_i32 s{sBlk}, s{sBlk}, s{sT}
        ''')
    else:
        a(f'''
        s_cmp_lt_u32 s{sIdx}, 10
        s_cselect_b32 s{sBlk}, 10, 20
        s_cselect_b32 s{sU0}, 0, 70
        s_mul_i32 s{sBlk}, s{sBlk}, s{sX}
        ''')
    a(f'''
    s_add_u32 s{sBlk}, s{sBlk}, s{sU0}
    s_add_u32 s{sBlk}, s{sBlk}, s{sIdx}
    s_cmp_lt_u32 s{sIdx}, 30
    s_cselect_b32 s{sBlk}, s{sBlk}, 0xf1
    ''')


def is_a():
    if NS and GN:
        a(f's_sub_u32 s{sT}, s{sBlk}, 40')
        a(f's_cmp_lt_u32 s{sT}, 40')
        return
    a(f's_cmp_lt_u32 s{sIdx}, 5' if NS else f's_cmp_lt_u32 s{sBlk}, 80')


def is_b():
    if NS and GN:
        a(f's_sub_u32 s{sT}, s{sBlk}, 40')
        a(f's_cmp_lt_u32 s{sT}, 40')
        a(f's_cselect_b32 s{sT}, 0xff, s{sBlk}')
        a(f's_cmp_lt_u32 s{sT}, 240')
        return
    if NS:
        a(f's_sub_u32 s{sT}, s{sIdx}, 5')
        a(f's_cmp_lt_u32 s{sT}, 25')
        return
    a(f's_sub_u32 s{sT}, s{sBlk}, 80')
    a(f's_cmp_lt_u32 s{sT}, 160')


def pub_setup(tag):
    a(f'''
    v_lshlrev_b32 v28, 5, v{vL}
    v_lshlrev_b32 v34, 3, v{vL}
    v_and_b32 v34, 24, v34
    v_bfe_u32 v34, s{tag}, v34, 8
    v_mov_b32 v33, 0xffffff00
    s_sub_u32 s{sU0}, s{sBlk}, 40
    s_cmp_lt_u32 s{sU0}, 40
    s_cselect_b32 s{sU1}, 1.0, 0
    s_and_b32 s{sU0}, s{sBlk}, 3
    s_cselect_b32 s{sU1}, 0, s{sU1}
    v_mov_b32 v35, s{sU1}
    ''')


GV = (130, 142, 48, 56, 158, 159)


def gemv_addr():
    vw, vc, acc, tmp, vo, voc = GV
    blk_id()
    a(f'''
    v_lshrrev_b32 v{voc}, 3, v{vL}
    v_mad_u32_u24 v{voc}, v20, 20, v{voc}
    v_and_b32 v21, 3, s{sBlk}
    v_mul_u32_u24 v21, 160, v21
    v_add_u32 v{voc}, v{voc}, v21
    v_lshrrev_b32 v21, 2, s{sBlk}
    v_and_b32 v{vo}, 0x70, v{vL16}
    v_lshl_add_u32 v{vo}, v21, 7, v{vo}
    v_mul_u32_u24 v21, 7680, v{voc}
    v_add_u32 v{vo}, v{vo}, v21
    v_lshlrev_b32 v{voc}, 1, v{voc}
    v_lshl_add_u32 v156, v20, 8, s{sMe}
    v_mul_u32_u24 v156, 1280, v156
    v_add_u32 v156, v156, v{vL4}
    ''')
    for k in range(4):
        a(f'v_mov_b32 v{vw + 8 + k}, 0')
    a(f'v_mov_b32 v{vc + 2}, 0')


def gemv_issue(scalar=False):
    vw, vc, acc, tmp, vo, voc = GV
    def cl_():
        for j in range(3):
            if j == 2:
                a('s_mov_b32 exec_hi, 0')
            a(f'global_load_ushort v{vc + j}, v{voc}, {sr(C_)} offset:{16 * j}')
        a('s_mov_b64 exec, -1')

    def wl_():
        for j in range(3):
            if j == 2:
                a('s_mov_b32 exec_hi, 0')
            a(f'global_load_dwordx4 {vr(vw + 4 * j, 4)}, v{vo}, {sr(W_MOD)} {INPOL}')
            if j < 2:
                a(f'v_add_u32 v{vo}, {8 * 7680}, v{vo}')
        a('s_mov_b64 exec, -1')
    if scalar:
        if not CF:
            wl_()
        a(f'''
        s_and_b32 s{sU0}, s{sBlk}, 3
        s_lshl_b32 s{sU0}, s{sU0}, 3
        s_add_u32 s{sU0}, s{sU0}, s{sW}
        s_mul_i32 s{sU0}, s{sU0}, 40
        s_load_dwordx8 s[56:63], {sr(C_)}, s{sU0}
        s_add_u32 s{sU0}, s{sU0}, 32
        s_load_dwordx2 s[64:65], {sr(C_)}, s{sU0}
        ''')
        if CF:
            wl_()
        return
    cl_()
    wl_()


def gemv_compute(role, after, at_c=None, scalar=False):
    nj = 3
    vw, vc, acc, tmp, vo, voc = GV
    if role == 'B':
        acc = 150
    if scalar:
        a(f'v_lshlrev_b32 v{tmp}, 1, v{vL}')
        a(f'v_and_b32 v{tmp}, 16, v{tmp}')
        a('s_waitcnt lgkmcnt(0)')
        for g in range(4):
            if g == 0:
                a('s_mov_b64 exec, 0xffff')
            else:
                a('s_lshl_b64 exec, exec, 16')
            for j in range(3 if g < 2 else 2):
                a(f'v_lshrrev_b32 v{vc + j}, v{tmp}, s{56 + 4 * j + g}')
        a('s_mov_b64 exec, -1')
    else:
        a(f's_waitcnt vmcnt({nj + (0 if at_c else after)})')
    stamp('c in')
    if at_c:
        at_c()
    cs_ = [vc + j for j in range(nj)]
    for c in cs_:
        a(f'v_lshlrev_b32 v{c}, 16, v{c}')
    silu(cs_, cs_, [tmp + j for j in range(nj)])
    sc = [(145, 146), (147, 148), (149, 59)]
    for c, s in zip(cs_, sc):
        a(f'v_cvt_pk_bf16_f32 v{s[0]}, v{c}, 0')
    for s in sc:
        a(f'v_lshlrev_b32 v{s[1]}, 16, v{s[0]}')
    a(f'''
    v_and_b32 v{vo}, 7, v{vL}
    v_lshlrev_b32 v{vo}, 8, v{vo}
    v_and_b32 v{voc}, 48, v{vL}
    v_lshl_add_u32 v{vo}, v{voc}, 2, v{vo}
    s_lshl_b32 s{sT}, s{sW}, 2
    s_add_u32 s{sT}, s{sT}, {RED}
    v_add_u32 v{vo}, s{sT}, v{vo}
    ''')
    for k in range(8):
        a(f'v_mov_b32 v{acc + k}, 0')
    for j in range(nj):
        a(f's_waitcnt vmcnt({nj - 1 - j + after})')
        for k in (0, 4, 1, 5, 2, 6, 3, 7):
            a(f'v_dot2c_f32_bf16 v{acc + k}, v{vw + 4 * j + k // 2}, v{sc[j][k & 1]}')
    stamp('w in')
    swap_reduce8(acc)
    for c in ('row_ror:8',):
        dpp('v_add_f32', acc, c)
        dpp('v_add_f32', acc + 1, c)
    a(f'''
    s_mov_b32 exec_lo, 0x00ff00ff
    s_mov_b32 exec_hi, 0x00ff00ff
    ds_write2_b32 v{vo}, v{acc}, v{acc + 1} offset0:0 offset1:8
    s_mov_b64 exec, -1
    s_waitcnt lgkmcnt(0)
    ''')


def m8(dst, inverse):
    t0, t1, t2, t3 = 20, 21, 22, 23
    a(f'v_lshrrev_b32 v{t0}, 4, v{vL}           ; g')
    if not inverse:
        a(f'''
        v_bfe_u32 v{t1}, v{vL}, 2, 2
        v_bfe_u32 v{t2}, v{vL}, 1, 1
        v_lshl_add_u32 v{t1}, v{t2}, 2, v{t1}
        v_lshlrev_b32 v{t0}, 9, v{t0}
        v_add_u32 v{t0}, s{sMe}, v{t0}
        v_mul_u32_u24 v{t2}, v{t0}, v{t1}
        v_lshl_add_u32 v{t3}, v{t1}, 8, v{t2}
        ''')
    else:
        a(f'''
        v_bfe_u32 v{t1}, v{vL}, 1, 3
        v_lshlrev_b32 v{t1}, 8, v{t1}
        v_add_u32 v{t1}, s{sMe}, v{t1}
        v_mul_u32_u24 v{t2}, v{t0}, v{t1}
        v_xor_b32 v{t0}, 4, v{t0}
        v_mul_u32_u24 v{t3}, v{t0}, v{t1}
        v_sub_u32 v{t2}, 0, v{t2}
        v_sub_u32 v{t3}, 0, v{t3}
        ''')
    a(f'''
    v_and_b32 v{t0}, 1, v{vL}
    v_lshl_add_u32 v{t2}, v{t0}, 9, v{t2}
    v_lshl_add_u32 v{t3}, v{t0}, 9, v{t3}
    v_and_b32 v{t2}, 0x7ff, v{t2}
    v_and_b32 v{t3}, 0x7ff, v{t3}
    v_cvt_f32_u32 v{t2}, v{t2}
    v_cvt_f32_u32 v{t3}, v{t3}
    v_mul_f32 v{t2}, 0x3a000000, v{t2}
    v_mul_f32 v{t3}, 0x3a000000, v{t3}
    v_cos_f32 v{t0}, v{t2}
    v_sin_f32 v{t2}, v{t2}
    v_cos_f32 v{t1}, v{t3}
    v_sin_f32 v{t3}, v{t3}
    v_cvt_pk_bf16_f32 v{dst}, v{t0}, v{t2}
    v_cvt_pk_bf16_f32 v{dst + 1}, v{t1}, v{t3}
    ''')


INV640 = hex(f2u(1.0 / 640))
EPS = hex(f2u(1e-5))


def rstd_chain(var, out):
    rbf(out, f'v{var}')
    a(f'v_add_f32 v{out}, {EPS}, v{out}')
    rbf(out, f'v{out}')
    a(f'v_sqrt_f32 v{out}, v{out}')
    rbf(out, f'v{out}')
    a(f'v_rcp_f32 v{out}, v{out}')


def sum10(dst2, x):
    a(f'v_pk_add_f32 {vr(dst2, 2)}, {vr(x, 2)}, {vr(x + 2, 2)}')
    for h in (4, 6, 8):
        a(f'v_pk_add_f32 {vr(dst2, 2)}, {vr(dst2, 2)}, {vr(x + h, 2)}')
    a(f'v_add_f32 v{dst2}, v{dst2}, v{dst2 + 1}')


def dot10(dst2, x, y):
    a(f'v_pk_mul_f32 {vr(dst2, 2)}, {vr(x, 2)}, {vr(y, 2)}')
    for h in (2, 4, 6, 8):
        a(f'v_pk_fma_f32 {vr(dst2, 2)}, {vr(x + h, 2)}, {vr(y + h, 2)}, {vr(dst2, 2)}')
    a(f'v_add_f32 v{dst2}, v{dst2}, v{dst2 + 1}')


def prio(k, on):
    if PRIO[k] == '0':
        return
    if not on:
        a('s_setprio 0')
        return
    L = newlabel('pr')
    a(f's_cmp_lt_u32 s{sW}, 4')
    a(f's_cbranch_scc1 {L}')
    a('s_setprio 1')
    a.label(L)


def bar(n):
    a(f's_barrier                                   ; {n}')


def tpoll(loads, lanes_s=None, between=None):
    L, D, Cc = newlabel('poll'), newlabel('polld'), newlabel('pollc')
    if lanes_s:
        a(f's_mov_b64 exec, {lanes_s}')
    for ld in loads:
        a(ld)
    if lanes_s:
        a('s_mov_b64 exec, -1')
    a(f's_mov_b32 s{sCnt}, {SPIN}')
    if between is not None:
        between()
    a('s_waitcnt vmcnt(0)')
    a.label(Cc)
    a(f'''
    v_cmp_ne_u32 vcc, s{sTag}, v{Ra + 3}
    v_cmp_ne_u32 {sr(sBc)}, s{sTag}, v{Ra + 7}
    s_or_b64 vcc, vcc, {sr(sBc)}
    s_and_b64 vcc, vcc, {sr(sM8)}
    s_cbranch_scc1 {L}
    ''')
    a.label(D)

    def retry():
        a.label(L)
        a(f'''
        s_sub_u32 s{sCnt}, s{sCnt}, 1
        s_cbranch_scc1 {D}
        s_lshr_b64 {sr(sBc)}, vcc, 1
        s_or_b64 vcc, vcc, {sr(sBc)}
        s_lshr_b64 {sr(sBc)}, vcc, 2
        s_or_b64 exec, vcc, {sr(sBc)}
        ''')
        for ld in loads:
            a(ld)
        a('s_mov_b64 exec, -1')
        a('s_waitcnt vmcnt(0)')
        a(f's_branch {Cc}')
    late.append(retry)


sM8, sLn, sM3 = 62, 64, 66
vSg0, vSg1, vPair, vPairX = vE0 + 1, vE0 + 2, vE0 + 5, vM8F + 1


def f32_expand(q0, m0, m1):
    for tile in range(2):
        for k in range(8):
            b = vF32 + 16 * tile + k
            a(f'v_alignbit_b32 v{b + 8}, v{b}, v{b}, 16')
            a(f'v_xor_b32 v{b + 8}, v{m1}, v{b + 8}')
            if m0 is not None:
                a(f'v_xor_b32 v{b}, v{m0}, v{b}')


def f32_read(q0):
    for tile in range(2):
        for ks in range(2):
            tab_read(vF32 + 16 * tile + 4 * ks, q0 + 2 * tile + ks)


def setup_addr():
    a(f'''
    v_bfe_u32 v20, v{vL}, 2, 2                    ; cs
    v_and_b32 v21, 48, v{vL16}                    ; part*16
    v_lshrrev_b32 v22, 4, v{vL}                   ; g
    v_lshl_add_u32 v23, v22, 5, v20               ; 32g + cs
    v_mul_u32_u24 v{vPoll}, {T1S}, v23
    v_add_u32 v{vPoll}, v{vPoll}, v21
    v_mul_u32_u24 v23, 80, v23
    s_mul_i32 s{sT}, s{sW}, 320
    s_add_u32 s{sT}, s{sT}, {XB2}
    v_add3_u32 v{vE0 + 4}, v23, v21, s{sT}        ; staging address
    v_mul_u32_u24 v{vS}, {NJ * 64}, v22
    v_and_b32 v23, 0xf0, v{vL16}
    v_add_u32 v{vS}, v{vS}, v23
    v_lshlrev_b32 v{vE0}, 3, v{vL}                ; 8*lane
    v_mul_u32_u24 v22, {4 * SA}, v22
    v_mul_u32_u24 v20, 120, v20
    v_lshl_add_u32 v20, v21, 1, v20
    s_min_u32 s{sT}, s{sW}, 5
    s_mul_i32 s{sT}, s{sT}, 480
    s_add_u32 s{sT}, s{sT}, {XB1}
    v_add3_u32 v{vPair}, v20, v22, s{sT}
    ''')


def setup_masks():
    a(f'''
    s_mov_b32 s{sM7}, 0x77777777
    s_mov_b32 s{sM7 + 1}, 0x77777777
    s_mov_b32 s{sM8}, 0x88888888
    s_mov_b32 s{sM8 + 1}, 0x88888888
    s_mov_b32 s{sM3}, 0x37773777
    s_mov_b32 s{sM3 + 1}, 0x37773777
    s_cmp_eq_u32 s{sW}, 5
    s_cselect_b32 s{sLn}, 0x00ff00ff, -1
    s_mov_b32 s{sLn + 1}, s{sLn}
    ''')


def row_fwd():
    for t in range(2):
        mfma32(RD + 8 * t, Ra + 4 * t, vF20)
        mfma32(RD + 8 * t + 4, Ra + 4 * t, vF20 + 4)
    fine('p1', 'mfma1 issued')
    for t, tmp in ((0, Rb), (1, Rc)):
        cmul(tmp, tmp + 4, RD + 8 * t, RD + 8 * t + 4, vTW + 8 * t, vTW + 8 * t + 4, -1, pk=PK[0] == '1' or (PK[0] == '2' and t == 1))
        pack4(Ra + 4 * t, tmp, tmp + 4)
    fine('p1', 'twiddled')
    for u in range(2):
        for ks in range(2):
            for e in range(2):
                d = RD + 8 * u + 4 * e
                mfma32(d, vF32 + 16 * u + 8 * e + 4 * ks, Ra + 4 * ks, d if ks else None)
    fine('p1', 'mfma2 issued')


def main_path():
    vZ, vSA, vCA = vVec, vVec + 10, vVec + 20
    gemv_addr()
    is_a()
    a('s_waitcnt lgkmcnt(0)')
    stamp('kernarg')
    a('s_cbranch_scc1 L_a')
    xloads()
    a('s_branch L_a0')
    a.label('L_a')
    gemv_issue(SC_)
    if MT and AX == 2:
        a(f's_cmp_lg_u32 s{sW}, 0')
        a('s_cbranch_scc1 L_a0')
        a(f'v_lshl_add_u32 v36, s{sBlk}, 8, v{vL4}')
        a('v_mov_b32 v37, 0')
        a(f'global_store_dword v36, v37, {sr(WS)} sc1')
    if AX == 0:
        xloads()
    a.label('L_a0')
    epoch_load()
    if S1 >= 1:
        m8(vM8F, False)
    if AX == 2:
        is_a()
        a('s_cbranch_scc0 L_a00')
        xloads()
        a.label('L_a00')
    if S1 >= 2:
        m8(vM8I, True)
    if S1 >= 3:
        setup_addr()
    is_a()
    a('s_cbranch_scc0 L_setup')
    a(f's_cmp_lg_u32 s{sW}, 0')
    a('s_cbranch_scc1 L_a1')
    if MT and AX != 2:
        a(f'v_lshl_add_u32 v36, s{sBlk}, 8, v{vL4}')
        a('v_mov_b32 v37, 0')
        a(f'global_store_dword v36, v37, {sr(WS)} sc1')
    a('s_waitcnt lgkmcnt(0)')
    epoch_tag(sV1)
    pub_setup(sV1)
    a.label('L_a1')
    gemv_compute('A', 5, at_c=xloads if AX == 1 else None, scalar=SC_)
    a(f's_cmp_lg_u32 s{sW}, 0')
    bar('B1')
    a(f's_cbranch_scc1 {"L_a2" if PB else "L_setup"}')
    publish('M')
    if PB:
        a.label('L_a2')
        bar('B1b')
    a.label('L_setup')
    a(f'''
    s_mov_b32 s{sHI}, 0xffff0000
    s_lshl_b32 s{sRow}, s{sW}, 8
    s_add_u32 s{sKey}, s{sRow}, s{sMe}
    s_mul_i32 s{sRow}, s{sKey}, 1280
    ''')
    if S1 < 1:
        m8(vM8F, False)
    if S1 < 2:
        m8(vM8I, True)
    if S1 < 3:
        setup_addr()
    setup_masks()
    is_a()
    a('s_cbranch_scc1 L_xw')
    is_b()
    a('s_cbranch_scc0 L_nb')
    gemv_issue()
    a.label('L_nb')
    bar('B0')
    a('s_waitcnt vmcnt(6)')
    a('s_cbranch_scc1 L_ln1')
    a('s_waitcnt vmcnt(0)')
    a.label('L_xw')
    a(f's_cmp_eq_u32 s{sW}, 0')
    a('s_waitcnt vmcnt(1)')
    a('s_cbranch_scc1 L_ln1')
    a('s_waitcnt vmcnt(0)')
    a.label('L_ln1')
    stamp('x in')
    for j in range(5):
        unpack(vXS + tm(j, 0), vXS + tm(j, 1), vXR + j)
    sum10(24, vXS)
    wave_sum([24], [sU0])
    a(f'v_mov_b32 v24, {INV640}')
    a(f'v_mul_f32 v26, s{sU0}, v24                ; mean')
    rbf(28, 'v26')
    a(f'v_readfirstlane_b32 s{sM1B}, v28')
    for h in range(0, 10, 2):
        a(f'v_pk_add_f32 {vr(vXS + h, 2)}, {vr(vXS + h, 2)}, v[28:29] op_sel:[0,0] op_sel_hi:[1,0] neg_lo:[0,1] neg_hi:[0,1]')
    dot10(30, vXS, vXS)
    wave_sum([30], [sU0])
    a(f'''
    v_sub_f32 v26, v26, v28
    v_mul_f32 v26, v26, v26
    v_fma_f32 v26, s{sU0}, v24, -v26
    ''')
    rstd_chain(26, 27)
    for j in range(5):
        for t in range(2):
            a(f'v_mul_f32 v{vZ + 2 * j + t}, v27, v{vXS + tm(j, t)}')
    a(f'''
    v_mov_b32 v23, 0
    v_mov_b32 v27, 0
    s_waitcnt lgkmcnt(0)
    ''')
    epoch_tag()
    tag_bytes()
    a(f'''
    s_mul_i32 s{sU0}, s{sMe}, {T1S}
    s_lshl_b32 s{sU1}, s{sW}, 8
    s_add_u32 s{sU0}, s{sU0}, s{sU1}
    ''')
    base_add(sBa, WS, sU0, T1_G)
    base_add(sBb, WS, sU0, T1_G + 4 * NJ * 64)
    a(f'''
    v_subrev_u32 v28, 64, v0                      ; u
    v_lshrrev_b32 v29, 4, v28
    v_lshlrev_b32 v29, 10, v29
    v_and_b32 v30, 0xf0, v{vL16}
    v_add_u32 v29, v29, v30
    s_mov_b32 s{sU2}, {MODA_L}
    ''')
    if NS:
        a(f'''
        v_add_u32 v29, 10240, v29
        v_bfe_u32 v31, v28, 5, 1
        v_lshlrev_b32 v31, 3, v31
        v_and_b32 v30, 31, v28
        v_lshl_add_u32 v31, v30, 5, v31
        v_lshrrev_b32 v28, 6, v28
        v_lshlrev_b32 v28, 10, v28
        v_add3_u32 v28, v28, v31, s{sU2}
        s_cmp_eq_u32 s{sW}, 3
        s_cselect_b32 s{sBc + 1}, 0, -1
        s_mov_b32 s{sBc}, -1
        ''')
    else:
        a(f'''
        v_cmp_le_u32 vcc, 160, v28
        v_mov_b32 v31, {8 - 160 * 32}
        v_cndmask_b32 v31, 0, v31, vcc
        v_lshlrev_b32 v28, 5, v28
        v_add3_u32 v28, v28, v31, s{sU2}
        ''')
    a(f'''
    v_add_u32 v{vE0 + 3}, s{sU2}, v{vL16}
    s_lshr_b32 s{sU1}, s{sW}, 1
    s_mul_i32 s{sU1}, s{sU1}, {4 * SA}
    s_and_b32 s{sT}, s{sW}, 1
    s_lshl_b32 s{sT}, s{sT}, 2
    s_add_u32 s{sU1}, s{sU1}, s{sT}
    s_add_u32 s{sU1}, s{sU1}, {XB1}
    ''')
    bar('BT')
    stamp('BT')
    tab_read(vF20, T_F20C)
    tab_read(vF20 + 4, T_F20S)
    for q in range(4):
        tab_read(vTW + 4 * q, T_TW1 + q)
    f32_read(T_F32A)
    tab_read(32, T_ADR)

    def expand():
        a(f'''
        s_waitcnt lgkmcnt(0)
        v_add_u32 v{vSg0}, s{sU1}, v32
        v_add_u32 v{vSg1}, 160, v{vSg0}
        ''')
        f32_expand(T_F32A, None, 33)
    def expand_if(a_side):
        L = newlabel('xp')
        is_a()
        a(f's_cbranch_scc{0 if a_side else 1} {L}')
        expand()
        a.label(L)
    if XP == 0:
        expand()
    if XP == 2:
        expand_if(False)

    def bgemv(after):
        L = newlabel('ng')
        is_b()
        a(f's_cbranch_scc0 {L}')
        gemv_compute('B', after)
        a.label(L)

    def behind(after):
        if not GB:
            bar('BP')
        if XP == 1:
            expand()
        if XP == 2:
            expand_if(True)
        if GB:
            bgemv(after)
            bar('BP')
    if not GB:
        bgemv(0)
    if BG:
        bar('BG')
    stamp('poll start')
    a(f's_sub_u32 s{sT}, s{sW}, 1')
    a(f's_cmp_lt_u32 s{sT}, {3 if NS else 5}')
    a('s_cbranch_scc1 L_mpoll')
    behind(0)
    a('s_branch L_b2')
    a.label('L_mpoll')
    if NS:
        assert not XP and not GB
        a(f's_mov_b64 exec, {sr(sBc)}')
    poll([f'global_load_dwordx4 {vr(36 + 4 * p, 4)}, v29, {sr(WS)} offset:{256 * p} sc1' for p in range(4)],
         list(range(36, 52)), [52, 53, 54], empty='tag', between=lambda: behind(4))
    a(f'''
    v_pk_add_f32 v[36:37], v[36:37], v[40:41]
    v_pk_add_f32 v[38:39], v[38:39], v[42:43]
    v_pk_add_f32 v[44:45], v[44:45], v[48:49]
    v_pk_add_f32 v[46:47], v[46:47], v[50:51]
    v_pk_add_f32 v[36:37], v[36:37], v[44:45]
    v_pk_add_f32 v[38:39], v[38:39], v[46:47]
    ''')
    if MR:
        a('v_cvt_pk_bf16_f32 v40, v36, v37')
        a('v_cvt_pk_bf16_f32 v41, v38, v39')
        unpack(36, 37, 40)
        unpack(38, 39, 41)
    if NS:
        a(f's_mov_b64 exec, {sr(sBc)}')
    a(f'ds_write2_b64 v28, v[36:37], v[38:39] offset0:0 offset1:2')
    if NS:
        a('s_mov_b64 exec, -1')
    a.label('L_b2')
    stamp('poll end')
    fine('p1', 'pre-B2')
    a('s_waitcnt lgkmcnt(0)')
    a('s_barrier                                   ; B2')
    stamp('B2 done (mod ready)')
    fine('p1', 'B2')
    assert MODA_L % 16 == 0
    if not NS:
        for j in range(5):
            a(f'ds_read_b128 {vr(vSA + 4 * j, 4)}, v{vE0 + 3} offset:{1024 * j}')
        for j in range(5):
            a(f's_waitcnt lgkmcnt({4 - j})')
            for t in range(2):
                a(f'v_fmac_f32 v{vSA + 4 * j + t}, v{vZ + 2 * j + t}, v{vSA + 4 * j + 2 + t}')
            if j in (1, 3):
                for t in range(2):
                    a(f'v_cvt_pk_bf16_f32 v{Ra + 4 * t + j // 2}, v{vSA + 4 * j - 4 + t}, v{vSA + 4 * j + t}')
        for t in range(2):
            a(f'v_cvt_pk_bf16_f32 v{Ra + 4 * t + 2}, v{vSA + 16 + t}, 0')
    else:
        a(f'ds_read_b128 {vr(vSA, 4)}, v{vE0 + 3}')
        a(f'ds_read_b128 {vr(vSA + 4, 4)}, v{vE0 + 3} offset:1024')
        a(f'ds_read_b64 {vr(vSA + 8, 2)}, v{vE0 + 3} offset:2048')
        for jj in range(3):
            a(f's_waitcnt lgkmcnt({2 - jj})')
            for h in range(2 if jj < 2 else 1):
                k = 4 * jj + 2 * h
                a(f'v_pk_mul_f32 {vr(vSA + k, 2)}, {vr(vSA + k, 2)}, {vr(vZ + k, 2)}')
            for t in range(2):
                a(f'v_cvt_pk_bf16_f32 v{Ra + 4 * t + jj}, v{vSA + 4 * jj + t}, {"v%d" % (vSA + 4 * jj + 2 + t) if jj < 2 else 0}')
    fine('p1', 'h packed')
    row_fwd()
    a(f's_mov_b64 exec, {sr(sM3)}')
    for u in range(2):
        pack4(Rb + 4 * u, RD + 8 * u, RD + 8 * u + 4)
        for r in (0, 2):
            a(f'ds_write2_b32 v{vSg1 if u else vSg0}, v{Rb + 4 * u + r}, v{Rb + 4 * u + r + 1} offset0:{80 * r} offset1:{80 * r + 80}')
    a('s_mov_b64 exec, -1')
    a(f'v_mov_b32 v{Rc + 3}, s{sTag}')
    a(f'v_mov_b32 v{Rc + 7}, s{sTag}')
    a(f's_cmp_ge_u32 s{sW}, 6')
    fine('p1', 'lds written')
    a('s_waitcnt lgkmcnt(0)')
    fine('p1', 'pre-B3')
    fine('x1', 'pre-B3')
    bar('B3')
    fine('p1', 'B3')
    fine('x1', 'B3')
    a('s_cbranch_scc1 L_t1done')
    for n in (3, 0, 1, 2):
        a(f'ds_read_b64 {vr(Ra + 2 * n, 2)}, v{vPair} offset:{8 * n}')
    for k, n in enumerate((3, 0, 1, 2)):
        a(f's_waitcnt lgkmcnt({3 - k})')
        mfma16(RD + 4 * n, vM8F, Ra + 2 * n)
    fine('p1', 'r8 issued')
    a(f's_mov_b64 exec, {sr(sM7)}')
    for j in range(2):
        a(f'v_cvt_pk_bf16_f32 v{Rc + 4 * j + 3}, v{RD + 12 + 2 * j}, v{RD + 12 + 2 * j + 1}')
    a(f's_mov_b64 exec, {sr(sLn)}')
    for j in range(2):
        for n in range(3):
            a(f'v_cvt_pk_bf16_f32 v{Rc + 4 * j + n}, v{RD + 4 * n + 2 * j}, v{RD + 4 * n + 2 * j + 1}')
        a(f'global_store_dwordx4 v{vS}, {vr(Rc + 4 * j, 4)}, {sr(sBb if j else sBa)} sc1')
    a('s_mov_b64 exec, -1')
    a.label('L_t1done')
    stamp('T1 stored')
    if PROBE == 'rel':
        a(f'''
        s_lshl_b32 s{sT}, s{sW}, 8
        s_or_b32 s{sT}, s{sT}, s2
        s_cmp_lt_u32 s{sT}, 8
        s_cbranch_scc0 L_norel
        s_lshl_b32 s{sT}, s2, 7
        s_add_u32 s{sT}, s{sT}, {DIAG_G}
        v_mov_b32 v36, s{sT}
        v_mov_b32 v37, s{sTS}
        global_store_dword v36, v37, {sr(WS)} sc1
        L_norel:
        ''')
    fine('p1', 'stored')
    fine('x1', 'stored')

    def p3_mats():
        for q in range(3):
            tab_read(vF20 + 4 * q, T_F20I + q)
        f32_read(T_F32B)
        tab_read(40, T_ADR)
        a('s_waitcnt lgkmcnt(0)')
        f32_expand(T_F32B, 42, 43)
    a(f's_cmp_ge_u32 s{sIdx}, {NJ}')
    a('s_cbranch_scc1 L_idle')
    late.append(lambda: (a.label('L_idle'), bar('B3b'), p3_mats() if MATS else None, a('s_branch L_p3prep')))
    if MATS == 1:
        p3_mats()
    vWr = vVec
    for k in range(16):
        a(f'v_mov_b32 v{vWr + k}, 0')
    SC = 2.0 / (2048 * 640) / (ALPHA[16] ** 4 * ALPHA[20] ** 2 * ALPHA[32] ** 2)
    a(f'''
    v_and_b32 v36, 15, v{vL}
    v_and_b32 v37, 48, v{vL}
    v_lshl_add_u32 v36, v37, 2, v36               ; 64g + i
    v_mul_u32_u24 v{vE0 + 3}, 80, v36
    s_lshl_b32 s{sU1}, s{sW}, 3
    s_add_u32 s{sU1}, s{sU1}, {XB2}
    v_add_u32 v{vE0 + 3}, s{sU1}, v{vE0 + 3}
    v_lshlrev_b32 v36, 5, v36
    v_add_u32 v36, {WST}, v36
    v_and_b32 v39, 4, v{vL}
    v_lshlrev_b32 v39, 2, v39
    v_lshlrev_b32 v{vS}, 7, v37
    v_and_b32 v37, 0xf0, v{vL16}
    v_add_u32 v{vS}, v{vS}, v37
    s_mul_i32 s{sU0}, s{sX}, {NJ}
    s_add_u32 s{sU0}, s{sU0}, s{sIdx}
    s_lshl_b32 s{sU1}, s{sU0}, 6
    s_mul_i32 s{sT}, s{sW}, {4 * T1S}
    s_add_u32 s{sU1}, s{sU1}, s{sT}
    s_mul_i32 s{sU0}, s{sU0}, {T2S}
    s_lshl_b32 s{sT}, s{sW}, 8
    s_add_u32 s{sU0}, s{sU0}, s{sT}
    ''')
    if NS:
        a(f'''
        s_mul_i32 s{sU2}, s{sIdx}, 120
        s_lshl_b32 s{sT}, s{sW}, 4
        s_add_u32 s{sU2}, s{sU2}, s{sT}
        s_add_u32 s{sU2}, s{sU2}, {SAF}
        v_mov_b32 v140, s{sU2}
        ''')
    base_add(sBa, WS, sU1, T1_G)
    base_add(sBb, WS, sU1, T1_G + 128 * T1S)
    base_add(58, WS, sU0, T2_G)
    base_add(60, WS, sU0, T2_G + 8192)

    def w_setup(parts=(0, 1)):
      if 0 in parts:
        for q in range(2):
            tab_read(vTW + 4 * q, T_F16 + q)
            tab_read(vTW + 8 + 4 * q, T_TW2 + q)
        a(f'''
        s_mul_i32 s{sU0}, s{sIdx}, 15
        s_min_u32 s{sU1}, s{sU0}, 306
        s_add_u32 s{sU2}, s{sU1}, s{sX}
        s_and_b32 s{sU2}, s{sU2}, 1
        s_sub_u32 s{sU1}, s{sU1}, s{sU2}
        s_lshl_b32 s{sT}, s{sW}, 1
        s_add_u32 s{sU0}, s{sU0}, s{sT}
        ''')
      if True:
        for s in parts:
            gam = sU3
            a(f'''
            s_add_u32 s{sU2}, s{sU0}, {s}
            s_sub_u32 s{sT}, s{sU2}, s{sU1}
            s_min_u32 s{sT}, s{sT}, 15
            s_lshl_b32 s{sT}, s{sT}, 1
            v_xor_b32 v37, s{sT}, v39
            v_add_u32 v37, v37, v36
            ''')
            for arr in range(2):
                for r in range(4):
                    a(f'ds_read_u16_d16_hi v{vWr + 8 * s + 4 * arr + r}, v37 offset:{arr * 8192 + r * 512}')
            a(f'''
            s_mul_i32 s{sT}, s{sU2}, 0x199a
            s_lshr_b32 s{sT}, s{sT}, 16
            s_mul_i32 s{sT}, s{sT}, 10
            s_mov_b32 s{gam}, {hex(f2u(SC))}
            s_cmp_eq_u32 s{sT}, s{sU2}
            s_cselect_b32 s{gam}, {hex(f2u(SC / 2))}, s{gam}
            s_waitcnt lgkmcnt(0)
            ''')
            for r in range(8):
                a(f'v_mul_f32 v{vWr + 8 * s + r}, s{gam}, v{vWr + 8 * s + r}')

    tl = [f'global_load_dwordx4 {vr(Ra, 4)}, v{vPoll}, {sr(sBa)} sc1', f'global_load_dwordx4 {vr(Ra + 4, 4)}, v{vPoll}, {sr(sBb)} sc1']
    fine('x1', 'pre-B3b')
    bar('B3b')
    fine('x1', 'B3b')
    if WFIRST:
        w_setup((0, 1) if WFIRST == 1 else (0,))
    fine('x1', 'wsetup')
    if DR1:
        a('s_waitcnt vmcnt(0)')
    if AL1:
        bar('B3c')
    fine('x1', 'drained')
    if PACE1:
        a(f's_sleep {PACE1}')
    stamp('B3b done')
    tpoll(tl, between=lambda: (None if WFIRST == 1 else w_setup((1,) if WFIRST else (0, 1)), p3_mats() if MATS == 2 else None, fine('x1', 'behind')))
    fine('p2', 'T1 in')
    fine('x1', 'T1 in')
    a(f'ds_write_b128 v{vE0 + 4}, {vr(Ra, 4)}')
    a(f'ds_write_b128 v{vE0 + 4}, {vr(Ra + 4, 4)} offset:10240')
    a(f's_cmp_eq_u32 s{sW}, 7')
    a('s_waitcnt lgkmcnt(0)')
    bar('B4')
    stamp('B4 done (T1 in)')
    fine('p2', 'B4')
    fine('x1', 'B4')
    a('s_cbranch_scc1 L_p2_one')
    Fre, Fim, Tc, Ts = vTW, vTW + 4, vTW + 8, vTW + 12
    tmps = (Rb, Rc)

    def p2(ns):
        p2pk = PK[1] == '1'
        if ns == 2:
            for j in range(4):
                a(f'ds_read_b64 {vr(Rb + 2 * j, 2)}, v{vE0 + 3} offset:{1280 * j}')
            for h in range(2):
                a(f's_waitcnt lgkmcnt({2 - 2 * h})')
                for s in range(2):
                    a(f'v_pk_mov_b32 {vr(Ra + 4 * s + 2 * h, 2)}, {vr(Rb + 4 * h, 2)}, {vr(Rb + 4 * h + 2, 2)} op_sel:[{s},{s}]')
        else:
            a(f'ds_read2st64_b32 {vr(Ra, 2)}, v{vE0 + 3} offset0:0 offset1:5')
            a(f'ds_read2st64_b32 {vr(Ra + 2, 2)}, v{vE0 + 3} offset0:10 offset1:15')
            a('s_waitcnt lgkmcnt(0)')
        fine('p2', 'read')
        for s in range(ns):
            mfma32(RD + 8 * s, Ra + 4 * s, Fre)
            mfma32(RD + 8 * s + 4, Ra + 4 * s, Fim)
        fine('p2', 's1')
        if NS:
            a('ds_read2_b64 v[136:139], v140 offset0:0 offset1:1')
        def stage(cq, sign, swap, mm):
            lo = lambda s: tmps[s] + (4 if swap else 0)
            hi = lambda s: tmps[s] + (0 if swap else 4)
            if ns == 1 or not P2ORD:
                for s in range(ns):
                    cmul(tmps[s], tmps[s] + 4, RD + 8 * s, RD + 8 * s + 4, *cq(s), sign, pk=p2pk)
                    pack4(Ra + 4 * s, lo(s), hi(s))
                    mm(s, 0)
                    mm(s, 1)
                return
            cmul(tmps[0], tmps[0] + 4, RD, RD + 4, *cq(0), sign, pk=p2pk, head=P2ORD - 1)
            cmul(tmps[1], tmps[1] + 4, RD + 8, RD + 12, *cq(1), sign, pk=p2pk)
            pack4(Ra, lo(0), hi(0))
            cv = lambda r: a(f'v_cvt_pk_bf16_f32 v{Ra + 4 + r}, v{lo(1) + r}, v{hi(1) + r}')
            cv(0)
            cv(1)
            mm(0, 0)
            cv(2)
            cv(3)
            mm(0, 1)
            mm(1, 0)
            mm(1, 1)
        stage(lambda s: (Tc, Ts), -1, False, lambda s, k: mfma32(RD + 8 * s + 4 * k, Fim if k else Fre, Ra + 4 * s))
        fine('p2', 's2')
        if NS:
            Lx, Ly = newlabel('sa'), newlabel('sa')
            a(f's_cmp_eq_u32 s{sX}, 0')
            a(f's_cbranch_scc1 {Lx}')
            a.label(Ly)

            def add_sa(ns=ns, Lx=Lx, Ly=Ly):
                a.label(Lx)
                a('s_mov_b64 exec, 1')
                a('s_waitcnt lgkmcnt(0)')
                for s_ in range(ns):
                    for e in range(2):
                        a(f'v_fmac_f32 v{RD + 8 * s_ + 4 * e}, {hex(f2u(2048 * ALPHA[16] ** 2))}, v{136 + 2 * s_ + e}')
                a('s_mov_b64 exec, -1')
                a(f's_branch {Ly}')
            late2.append(add_sa)
        stage(lambda s: (vWr + 8 * s, vWr + 8 * s + 4), +1, True, lambda s, k: mfma32(RD + 8 * s + 4 * k, Ra + 4 * s, Fre if k else Fim))
        fine('p2', 's3')
        stage(lambda s: (Tc, Ts), +1, True, lambda s, k: mfma32(RD + 8 * s + 4 * k, Fre if k else Fim, Ra + 4 * s))
        fine('p2', 's4')
        for s in range(ns):
            pack4(Rb + s, RD + 8 * s, RD + 8 * s + 4, step=ns)
        if ns == 2:
            for r in range(4):
                a(f'ds_write_b64 v{vE0 + 3}, {vr(Rb + 2 * r, 2)} offset:{1280 * r}')
        else:
            a(f'ds_write2st64_b32 v{vE0 + 3}, v{Rb}, v{Rb + 1} offset0:0 offset1:5')
            a(f'ds_write2st64_b32 v{vE0 + 3}, v{Rb + 2}, v{Rb + 3} offset0:10 offset1:15')
        a('s_waitcnt lgkmcnt(0)')
    p2(2)
    a.label('L_b5')
    fine('p2', 'pre-B5')
    fine('x2', 'pre-B5')
    bar('B5')
    fine('p2', 'B5')
    fine('x2', 'B5')
    a(f'ds_read_b128 {vr(Rb, 4)}, v{vE0 + 4}')
    a(f'ds_read_b128 {vr(Rb + 4, 4)}, v{vE0 + 4} offset:10240')
    a('s_waitcnt lgkmcnt(1)')
    a(f'global_store_dwordx4 v{vS}, {vr(Rb, 4)}, {sr(58)} sc1')
    a('s_waitcnt lgkmcnt(0)')
    a(f'global_store_dwordx4 v{vS}, {vr(Rb + 4, 4)}, {sr(60)} sc1')
    stamp('T2 stored')
    fine('p2', 'stored')
    fine('x2', 'stored')
    late.append(lambda: (a.label('L_p2_one'), p2(1), a('s_branch L_b5')))
    a.label('L_p3prep')
    vGA, vVV, vGC, vGS = vVec, vVec + 10, vVec + 20, vVec + 30
    vMB = vE0 + 6
    for q in range(4):
        tab_read(vTW + 4 * q, T_TW3 + q)
    a(f'''
    v_add_u32 v{vMB}, {MODB_L}, v{vL4}
    v_bfe_u32 v36, v{vL}, 2, 2
    v_lshrrev_b32 v37, 4, v{vL}
    v_mad_u32_u24 v36, v37, {NJ}, v36
    v_and_b32 v38, 48, v{vL16}
    v_mul_u32_u24 v36, {T2S}, v36
    v_add_u32 v{vPoll}, v36, v38
    v_mul_u32_u24 v37, {4 * SA}, v37
    v_add_u32 v37, {XB1 + 8 * 361}, v37
    v_cndmask_b32 v{vPairX}, v{vPair}, v37, {sr(sM8)}
    s_and_b64 {sr(sM8)}, {sr(sM8)}, {sr(sLn)}
    s_lshl_b32 s{sU1}, s{sMe}, 6
    s_min_u32 s{sT}, s{sW}, 5
    s_mul_i32 s{sT}, s{sT}, {4 * T2S}
    s_add_u32 s{sU1}, s{sU1}, s{sT}
    ''')
    base_add(sBa, WS, sU1, T2_G)
    base_add(sBb, WS, sU1, T2_G + 4 * NJ * T2S)
    base_add(sXrow, OUTP, sRow)
    a(f's_mul_i32 s{sU0}, s{sMe}, {REC_STRIDE}')
    base_add(sRec, WS, sU0, REC_G)
    a(f'''
    v_mov_b32 v{vE0 + 7}, {hex(f2u(-1.0 / 640))}
    v_mov_b32 v{vM8F}, {hex(f2u(-1e-5))}
    v_mov_b32 v{vE0 + 3}, {KEYL}
    v_mov_b32 v{vE0 + 4}, 1
    ''')

    def p3_setup(part=3):
      raw, GB = Rb, Rb
      if part & 1:
        raw = Rb
        for k in range(0, 24, 2):
            a(f'ds_read2st64_b32 {vr(raw + k, 2)}, v{vMB} offset0:{k} offset1:{k + 1}')
        a(f'ds_read_b32 v{raw + 24}, v{vMB} offset:{24 * 256}')
        a('s_waitcnt lgkmcnt(0)')
        for vec, dst in ((0, vGA), (1, vGS), (2, vGC), (4, vVV)):
            for j in range(5):
                unpack(dst + tm(j, 0), dst + tm(j, 1), raw + 5 * vec + j)
        GB = Rb
        for j in range(5):
            unpack(GB + tm(j, 0), GB + tm(j, 1), raw + 15 + j)
      if part & 2:
        t0, t1, t2 = Rc + 2, Rc + 4, Rc + 6
        dot10(t0, vVV, vGS)
        for h in range(0, 10, 2):
            a(f'v_pk_mul_f32 {vr(vVV + h, 2)}, {vr(vVV + h, 2)}, {vr(vGC + h, 2)}')
        sum10(t1, vVV)
        a(f'v_mov_b32 v{t2}, s{sM1B}')
        for h in range(0, 10, 2):
            a(f'v_pk_mul_f32 {vr(vGC + h, 2)}, {vr(vGC + h, 2)}, {vr(GB + h, 2)}')
            a(f'v_pk_fma_f32 {vr(vGS + h, 2)}, {vr(vGS + h, 2)}, {vr(GB + h, 2)}, {vr(t2, 2)} op_sel:[0,0,0] op_sel_hi:[1,1,0]')
        wave_sum([t1, t0], [sV1, sV2])

    if MATS == 0:
        p3_mats()
    a('s_waitcnt lgkmcnt(0)')
    bar('B5b')
    stamp('B5b done')
    fine('p2', 'B5b')
    fine('x2', 'B5b')
    if P3FIRST == 2:
        p3_setup(1)
    if P3FIRST == 1:
        p3_setup()
    else:
        a(f's_cmp_ge_u32 s{sIdx}, {NJ}')
        a(f's_cselect_b32 s{sCand}, 8, s{sW}')
        a(f's_cmp_lt_u32 s{sCand}, 6')
        a('s_cbranch_scc1 L_p3later')
        p3_setup(2 if P3FIRST else 3)
        a.label('L_p3later')
    fine('x2', 'p3setup')
    if DR2:
        a('s_waitcnt vmcnt(0)')
    fine('x2', 'drained')
    if PACE2:
        a(f's_sleep {PACE2}')
    if not AL2:
        a(f's_cmp_ge_u32 s{sIdx}, {NJ}')
        a('s_cbranch_scc0 L_nob5c')
    bar('B5c')
    a.label('L_nob5c')
    a(f's_cmp_ge_u32 s{sW}, 6')
    a('s_cbranch_scc1 L_b6')
    stamp('T2 poll')
    fine('p2', 'T2 poll')

    def p3_behind():
        a(f's_cmp_lt_u32 s{sCand}, 6')
        a('s_cbranch_scc0 L_p3done')
        p3_setup(2 if P3FIRST else 3)
        a.label('L_p3done')
    tpoll(tl, lanes_s=sr(sLn), between=None if P3FIRST == 1 else p3_behind)
    stamp('T2 in')
    fine('p3', 'T2 in')
    fine('x2', 'T2 in')
    a(f'''
    v_swap_b32 v{Ra + 1}, v{Ra + 4}
    v_swap_b32 v{Ra + 3}, v{Ra + 6}
    ''')
    for n, r in ((0, Ra), (1, Ra + 4), (2, Ra + 2), (3, Ra + 6)):
        mfma16(RD + 4 * n, vM8I, r)
    for n in range(4):
        for jj in range(2):
            a(f'v_cvt_pk_bf16_f32 v{Rb + 2 * n + jj}, v{RD + 4 * n + 2 * jj + 1}, v{RD + 4 * n + 2 * jj}')
        a(f'ds_write_b64 v{vPairX if n == 3 else vPair}, {vr(Rb + 2 * n, 2)} offset:{8 * n}')
    a('s_waitcnt lgkmcnt(0)')
    a.label('L_b6')
    prio(2, True)
    fine('p3', 'pre-B6')
    bar('B6')
    fine('p3', 'B6')
    fine('x2', 'B6')
    for u in range(2):
        for r in (0, 2):
            a(f'ds_read2_b32 {vr(Rb + 4 * u + r, 2)}, v{vSg1 if u else vSg0} offset0:{80 * r} offset1:{80 * r + 80}')
    Y = RD
    if not P3O:
        for ks in range(2):
            a(f's_waitcnt lgkmcnt({2 - 2 * ks})')
            for t in range(2):
                for e in range(2):
                    d = RD + 8 * t + 4 * e
                    mfma32(d, Rb + 4 * ks, vF32 + 16 * t + 8 * (1 - e) + 4 * ks, d if ks else None)
        fine('p3', 'mfma1 issued')
        if PRIO[2] == '1':
            prio(2, False)
        for t, tmp in ((0, Ra), (1, Rc)):
            cmul(tmp, tmp + 4, RD + 8 * t, RD + 8 * t + 4, vTW + 8 * t, vTW + 8 * t + 4, +1, pk=PK[2] == '1' or (PK[2] == '2' and t == 1), n=3)
            pack4(Rb + 4 * t, tmp, tmp + 4, n=3)
            a(f'v_mov_b32 v{Rb + 4 * t + 3}, 0')
        Y = RD
        mfma32(Y, vF20, Rb)
        mfma32(Y + 8, vF20 + 4, Rb)
        mfma32(Y + 4, vF20, Rb + 4)
        mfma32(Y + 8, vF20 + 8, Rb + 4, Y + 8)
    else:
        def m1(t, ks, e):
            d = RD + 8 * t + 4 * e
            mfma32(d, Rb + 4 * ks, vF32 + 16 * t + 8 * (1 - e) + 4 * ks, d if ks else None)
        a('s_waitcnt lgkmcnt(2)')
        m1(0, 0, 0)
        m1(0, 0, 1)
        a('s_waitcnt lgkmcnt(0)')
        m1(0, 1, 0)
        m1(0, 1, 1)
        for ks in range(2):
            for e in range(2):
                m1(1, ks, e)
        fine('p3', 'mfma1 issued')
        B0_, B1_ = vF32, vF32 + 4
        cmul(Ra, Ra + 4, RD, RD + 4, vTW, vTW + 4, +1, pk=False, n=3)
        a(f'v_mov_b32 v{B0_ + 3}, 0')
        a(f'v_mov_b32 v{B1_ + 3}, 0')
        pack4(B0_, Ra, Ra + 4, n=3)
        Yx = Rb
        mfma32(Y, vF20, B0_)
        mfma32(Yx, vF20 + 4, B0_)
        cmul(Rc, Rc + 4, RD + 8, RD + 12, vTW + 8, vTW + 12, +1, pk=False, n=3)
        pack4(B1_, Rc, Rc + 4, n=3)
        mfma32(Y + 4, vF20, B1_)
        mfma32(Y + 8, vF20 + 8, B1_, Yx)
    fine('p3', 'mfma2 issued')
    if PRIO[2] == '2':
        prio(2, False)
    X1 = vXS
    s1, s2, s3, s4 = Ra, Ra + 1, Ra + 2, Ra + 3
    if not PKS:
        for k in range(10):
            a(f'v_fmac_f32 v{X1 + k}, v{Y + k}, v{vGA + k}')
            if k == 1:
                a(f'v_mul_f32 v{s2}, v{X1}, v{X1}')
                a(f'v_mul_f32 v{s3}, v{X1}, v{vVV}')
            if k >= 2:
                a(f'v_add_f32 v{s1}, v{X1 + k - 1}, v{X1 if k == 2 else s1}')
                a(f'v_fmac_f32 v{s2}, v{X1 + k - 1}, v{X1 + k - 1}')
                a(f'v_fmac_f32 v{s3}, v{X1 + k - 1}, v{vVV + k - 1}')
        a(f'v_fmac_f32 v{s3}, v{X1 + 9}, v{vVV + 9}')
        a(f'v_add_f32 v{s1}, v{X1 + 9}, v{s1}')
        a(f'v_fmac_f32 v{s2}, v{X1 + 9}, v{X1 + 9}')
    else:
        p1_, p2_, p3_ = Rc, Rc + 2, Rc + 4
        for h in range(0, 10, 2):
            a(f'v_pk_fma_f32 {vr(X1 + h, 2)}, {vr(Y + h, 2)}, {vr(vGA + h, 2)}, {vr(X1 + h, 2)}')
        a(f'v_pk_mul_f32 {vr(p3_, 2)}, {vr(X1, 2)}, {vr(vVV, 2)}')
        a(f'v_pk_add_f32 {vr(p1_, 2)}, {vr(X1, 2)}, {vr(X1 + 2, 2)}')
        a(f'v_pk_mul_f32 {vr(p2_, 2)}, {vr(X1, 2)}, {vr(X1, 2)}')
        for h in (2, 4, 6, 8):
            a(f'v_pk_fma_f32 {vr(p3_, 2)}, {vr(X1 + h, 2)}, {vr(vVV + h, 2)}, {vr(p3_, 2)}')
            if h > 2:
                a(f'v_pk_add_f32 {vr(p1_, 2)}, {vr(p1_, 2)}, {vr(X1 + h, 2)}')
            a(f'v_pk_fma_f32 {vr(p2_, 2)}, {vr(X1 + h, 2)}, {vr(X1 + h, 2)}, {vr(p2_, 2)}')
        a(f'v_add_f32 v{s3}, v{p3_}, v{p3_ + 1}')
        a(f'v_add_f32 v{s1}, v{p1_}, v{p1_ + 1}')
        a(f'v_add_f32 v{s2}, v{p2_}, v{p2_ + 1}')
    fine('p3', 'partials')
    a(f'''
    v_permlane32_swap_b32 v{s3}, v{s4}
    v_permlane32_swap_b32 v{s1}, v{s2}
    v_add_f32 v{s3}, v{s3}, v{s4}
    v_add_f32 v{s1}, v{s1}, v{s2}
    v_permlane16_swap_b32 v{s1}, v{s3}
    v_add_f32 v{s1}, v{s1}, v{s3}
    ''')
    for c in ('row_ror:8', 'row_ror:4', 'row_ror:2', 'row_ror:1'):
        dpp('v_add_f32', s1, c)
    a(f'''
    v_readlane_b32 s{sU0}, v{s1}, 0
    v_readlane_b32 s{sU2}, v{s1}, 32
    v_readlane_b32 s{sU3}, v{s1}, 16
    ''')
    fine('p3', 'reduced')
    k0 = Rc
    cE = vM8F
    cI, cK, cT, cO = vE0 + 7, vE0 + 3, Ra + 7, vE0 + 4
    m = Ra + 1
    a(f'''
    v_mul_f32 v{m + 2}, s{sU0}, v{cI}
    v_fma_f32 v{k0}, v{m + 2}, v{m + 2}, v{cE}
    v_mov_b32 v{m + 3}, s{sU3}
    v_fmac_f32 v{k0}, s{sU2}, v{cI}
    v_fmac_f32 v{m + 3}, s{sV1}, v{m + 2}
    v_sub_f32 v{m + 1}, v{cE}, v{k0}              ; var
    v_rsq_f32_e64 v{k0}, -v{k0}
    v_mov_b32 v{cT}, s{sTag}
    s_mov_b64 exec, 1
    v_fma_f32 v{m + 3}, v{m + 3}, v{k0}, s{sV2}   ; r
    v_ashrrev_i32 v{m + 4}, 31, v{m + 3}
    v_or_b32 v{m + 4}, 0x80000000, v{m + 4}
    v_xor_b32 v{m + 3}, v{m + 3}, v{m + 4}
    v_and_b32 v{m + 3}, 0xfffff800, v{m + 3}
    v_or_b32 v{m + 3}, s{sKey}, v{m + 3}
    ds_max_u32 v{cK}, v{m + 3}
    ds_add_rtn_u32 v{m + 4}, v{cK}, v{cO} offset:8
    ds_read_b32 v{Ra + 6}, v{cK}
    v_readfirstlane_b32 s{sKey}, v{m + 3}
    s_waitcnt lgkmcnt(0)
    v_cmpx_eq_u32 vcc, 7, v{m + 4}
    s_cbranch_execz L_notlast
    global_store_dwordx2 v{vL4}, {vr(Ra + 6, 2)}, {sr(sRec)} sc1
    L_notlast:
    s_mov_b64 exec, -1
    ''')
    fine('p3', 'key')
    bar('B7')
    fine('p3', 'B7')
    fine('e', 'key poll')
    a(f'''
    ds_read_b32 v{Ra + 6}, v{cK}
    v_sub_f32 v{m + 2}, s{sM1B}, v{m + 2}
    ''')
    rbf(m + 2, f'v{m + 2}')
    rstd_chain(m + 1, k0)
    a(f'''
    v_sub_f32 v{m + 2}, s{sM1B}, v{m + 2}
    v_mul_f32 v{k0 + 1}, v{m + 2}, v{k0}
    ''')
    ZN = vGA
    for h in range(0, 10, 2):
        a(f'v_pk_fma_f32 {vr(ZN + h, 2)}, {vr(X1 + h, 2)}, {vr(k0, 2)}, {vr(k0, 2)} op_sel:[0,0,1] op_sel_hi:[1,0,1]')
    vO = vXS

    def out_math():
        for h in range(0, 10, 2):
            a(f'v_pk_add_f32 {vr(Y + h, 2)}, {vr(X1 + h, 2)}, {vr(vGS + h, 2)}')
        for h in range(0, 10, 2):
            a(f'v_pk_fma_f32 {vr(Y + h, 2)}, {vr(ZN + h, 2)}, {vr(vGC + h, 2)}, {vr(Y + h, 2)}')
        if opt('inject', None):
            if opt('injall', None):
                for k in range(10):
                    a(f'v_mul_f32 v{Y + k}, {hex(f2u(1 + float(opt("inject", 0))))}, v{Y + k}')
            else:
                a(f's_cmp_eq_u32 s{sRow}, 0')
                a('s_cselect_b64 exec, 1, 0')
                a(f'v_add_f32 v{Y}, {hex(f2u(float(opt("inject", 0))))}, v{Y}')
                a('s_mov_b64 exec, -1')
        for j in range(5):
            a(f'v_cvt_pk_bf16_f32 v{vO + j}, v{Y + tm(j, 0)}, v{Y + tm(j, 1)}')
    a(f'''
    s_waitcnt lgkmcnt(0)
    v_readfirstlane_b32 s{sU0}, v{Ra + 6}
    s_cmp_eq_u32 s{sU0}, s{sKey}
    s_cselect_b32 s{sCand}, 1, 0
    s_cbranch_scc1 L_cand
    ''')
    out_math()
    a('s_branch L_keys')
    a.label('L_cand')
    raw, SB, CB, H, Bq = 60, 70, 80, 92, 108
    for k in range(0, 10, 2):
        a(f'ds_read2st64_b32 {vr(raw + k, 2)}, v{vMB} offset0:{5 + k} offset1:{6 + k}')
    for qd in range(2):
        a(f'v_mov_b32 v{H + 4 * qd + 3}, s{sTag}')
    a('s_waitcnt lgkmcnt(0)')
    for j in range(5):
        unpack(SB + tm(j, 0), SB + tm(j, 1), raw + j)
        unpack(CB + tm(j, 0), CB + tm(j, 1), raw + 5 + j)
    for h in range(0, 10, 2):
        a(f'v_pk_fma_f32 {vr(SB + h, 2)}, {vr(ZN + h, 2)}, {vr(CB + h, 2)}, {vr(SB + h, 2)}')
    for j in range(5):
        a(f'v_cvt_pk_bf16_f32 v{H + j + (j >= 3)}, v{SB + tm(j, 0)}, v{SB + tm(j, 1)}')
    for qd in range(2):
        a(f'global_store_dwordx4 v{vL16}, {vr(H + 4 * qd, 4)}, {sr(sRec)} offset:{REC_H2 + 1024 * qd} sc1')
    out_math()

    def out_row():
        if 'o' in XX:
            return
        for j in range(5):
            a(f'global_store_dword v{vL4}, v{vO + j}, {sr(sXrow)} offset:{256 * j} sc1')
    if OE != 1:
        out_row()
    a.label('L_keys')
    if OE == 1:
        out_row()
    if OE == 3:
        a(f'''
        s_cmp_ge_u32 s{sRi}, 20
        s_cselect_b32 s{sT}, 1, s{sCand}
        s_cmp_lg_u32 s{sT}, 0
        s_cbranch_scc1 L_noout
        ''')
        out_row()
        a.label('L_noout')
    stamp('key out')
    fine('p3', 'key out')
    bar('B7b (candidate stores are out, the helpers have ended)')
    if OE == 0:
        a(f'''
        s_cmp_ge_u32 s{sRi}, 20
        s_cselect_b32 s{sT}, 1, s{sCand}
        s_cmp_lg_u32 s{sT}, 0
        s_cbranch_scc1 L_noout
        ''')
        out_row()
        a('s_branch L_fin')
        a.label('L_noout')
    if OE == 2:
        a(f's_cmp_lg_u32 s{sCand}, 0')
        a('s_cbranch_scc1 L_noout')
        out_row()
        a.label('L_noout')
    vEW, vFW = 48, 88
    vRed, vRd, vRow = 15, 16, 17
    a(f'''
    s_cmp_lt_u32 s{sRi}, 20
    s_cbranch_scc1 L_no_ew
    s_mul_i32 s{sT}, s{sW}, 5120
    s_add_u32 s{sT}, s{sT}, {EW}
    v_and_b32 v{Rb}, 0x3c0, v{vL16}
    v_and_b32 v{Rb + 1}, 24, v{vE0}
    v_add3_u32 v{Rb}, v{Rb}, v{Rb + 1}, s{sT}
    s_mul_i32 s{sT}, s{sW}, 320
    s_add_u32 s{sT}, s{sT}, {FW}
    v_min_u32 v{vE0 + 1}, {39 * 8}, v{vE0}
    v_add_u32 v{vE0 + 1}, s{sT}, v{vE0 + 1}
    ''')
    for j in range(5):
        if j in (2, 4):
            a(f'v_add_u32 v{Rb}, 2048, v{Rb}')
        a(f'ds_read2_b64 {vr(vEW + 20 + 4 * j, 4)}, v{Rb} offset0:{128 * (j & 1)} offset1:{128 * (j & 1) + 4}')
    a(f'''
    v_and_b32 v{vRed}, 3, v{vL}
    v_lshlrev_b32 v{vRed}, 6, v{vRed}
    v_and_b32 v{vRd}, 48, v{vL}
    v_add_u32 v{vRed}, v{vRd}, v{vRed}
    s_lshr_b32 s{sU1}, s{sW}, 2
    s_lshl_b32 s{sU1}, s{sU1}, 8
    s_and_b32 s{sT}, s{sW}, 3
    s_lshl_b32 s{sT}, s{sT}, 2
    s_add_u32 s{sU1}, s{sU1}, s{sT}
    s_add_u32 s{sU1}, s{sU1}, {RED}
    v_add_u32 v{vRed}, s{sU1}, v{vRed}
    v_and_b32 v{vRd}, 0xf0, v{vL16}
    v_bfe_u32 v{vRow}, v0, 2, 6                    ; lane' = (t'>>1)>>1
    v_lshlrev_b32 v{vRow}, 4, v{vRow}
    s_mov_b32 s{sU2}, 0x05040100
    s_mov_b32 s{sU3}, 0x07060302
    v_add_u32 v{vRow}, {REC_G + REC_H2}, v{vRow}
    v_mov_b32 v18, 0xffffff00
    s_mul_i32 s{sU1}, s{sX}, 12
    s_add_u32 s{sU1}, s{sU1}, s{sRi}
    s_mul_i32 s{sU1}, s{sU1}, {PY_STRIDE}
    s_mul_i32 s{sT}, s{sW}, 640
    s_add_u32 s{sU1}, s{sU1}, s{sT}
    ''')
    base_add(sBb, WS, sU1, PY_G - 20 * PY_STRIDE)
    a('s_waitcnt lgkmcnt(0)')
    if KD == 1:
        bar('B7c')
    if OE == 3:
        bar('B7d')
        a(f's_cmp_lg_u32 s{sCand}, 0')
        a('s_cbranch_scc1 L_noout5')
        out_row()
        a.label('L_noout5')
    for j in range(5):
        r0 = vEW + 20 + 4 * j
        for c in range(4):
            a(f'v_perm_b32 v{vEW + 4 * j + c}, v{r0 + 2 + c // 2}, v{r0 + c // 2}, s{sU3 if c & 1 else sU2}')
    for k in range(4):
        a(f'v_mov_b32 v{36 + k}, 0')

    def fw_unpack():
        a(f's_cmp_ge_u32 s{sW}, 4')
        a('s_cbranch_scc1 L_no_fw')
        for u in range(16):
            if u == 8:
                a('s_waitcnt lgkmcnt(0)')
            a(f'ds_read_b64 {vr(vFW + 32 + 2 * u, 2)}, v{vE0 + 1} offset:{1280 * u}')
        a('s_waitcnt lgkmcnt(0)')
        for k in range(32):
            unpack(vFW + 2 * k, vFW + 2 * k + 1, vFW + 32 + k)
        a.label('L_no_fw')
    if not FWL:
        fw_unpack()
    a.label('L_no_ew')
    a(f's_cmp_eq_u32 s{sCand}, 0')
    a('s_cbranch_scc1 L_nobase')
    a(f'''
    v_mov_b32 v40, v{vO}
    v_mov_b32 v41, v{vO + 1}
    v_mov_b32 v42, v{vO + 2}
    v_mov_b32 v43, s{sTag}
    v_mov_b32 v44, v{vO + 3}
    v_mov_b32 v45, v{vO + 4}
    v_mov_b32 v47, s{sTag}
    ''')

    def base_out():
        a(f'global_store_dwordx4 v{vL16}, v[40:43], {sr(sRec)} offset:{REC_BASE} sc1')
        a(f'global_store_dwordx4 v{vL16}, v[44:47], {sr(sRec)} offset:{REC_BASE + 1024} sc1')
    if BL:
        a(f's_cmp_lt_u32 s{sRi}, 20')
        a('s_cbranch_scc0 L_nobase')
    a('s_waitcnt vmcnt(0)')
    base_out()
    a.label('L_nobase')
    a(f'''
    s_cmp_lt_u32 s{sRi}, 20
    s_cbranch_scc1 L_fin
    v_mov_b32 v{Rb + 2}, {KEYL + 4}
    {'s_barrier' if KD == 2 else ''}
    ''')
    a.label('L_b8')
    fine('e', 'pre-B8')
    a('s_barrier                                   ; B8')
    a(f'''
    ds_read_b32 v{Rb + 3}, v{Rb + 2}
    s_movk_i32 s{sT}, {REC_STRIDE}
    s_waitcnt lgkmcnt(0)
    v_and_b32 v{Rb + 4}, 255, v{Rb + 3}
    v_mad_u32_u24 v{vRow}, v{Rb + 4}, s{sT}, v{vRow}
    ''')
    stamp('B8 done (winner)')
    fine('e', 'B8+')

    def late_out():
        if OE == 0:
            a(f's_cmp_lg_u32 s{sCand}, 0')
            a('s_cbranch_scc1 L_noout2')
            out_row()
            a.label('L_noout2')
        if FWL:
            fw_unpack()
        fine('e', 'behind')
        if OE == 0:
            a(f's_cmp_lg_u32 s{sCand}, 0')
            a('s_cbranch_scc1 L_noout4')
            a('s_waitcnt vmcnt(5)')
            a.label('L_noout3')
            late.append(lambda: (a.label('L_noout4'), a('s_waitcnt vmcnt(0)'), a('s_branch L_noout3')))
        else:
            a('s_waitcnt vmcnt(0)')
    poll([f'global_load_dwordx4 v[20:23], v{vRow}, {sr(WS)} sc1',
          f'global_load_dwordx4 v[24:27], v{vRow}, {sr(WS)} offset:1024 sc1'], [23, 27], [30, 32], empty='word',
         between=late_out, younger=63)
    if BL:
        a(f's_cmp_lg_u32 s{sCand}, 0')
        a('s_cbranch_scc1 L_base2')
        a.label('L_base3')
        late.append(lambda: (a.label('L_base2'), base_out(), a('s_branch L_base3')))
    stamp('row in')
    fine('e', 'row in')
    acc = 36
    for j in range(5):
        for c in (0, 2, 1, 3):
            a(f'v_dot2c_f32_bf16 v{acc + c}, v{vEW + 4 * j + c}, v{20 + j + (j >= 3)}')
    a(f'''
    v_permlane32_swap_b32 v36, v38
    v_permlane32_swap_b32 v37, v39
    v_pk_add_f32 v[36:37], v[36:37], v[38:39]
    v_permlane16_swap_b32 v36, v37
    v_add_f32 v36, v36, v37
    ''')
    for c in ('row_ror:8', 'row_ror:4'):
        dpp('v_add_f32', acc, c)
    a(f'''
    s_mov_b32 exec_lo, 0x000f000f
    s_mov_b32 exec_hi, 0x000f000f
    ds_write_b32 v{vRed}, v{acc}
    s_mov_b64 exec, -1
    s_cmp_ge_u32 s{sW}, 4
    s_waitcnt lgkmcnt(0)
    ''')
    fine('e', 'pre-B9')
    bar('B9')
    fine('e', 'B9')
    a(f'''
    s_cbranch_scc1 L_e_done
    ds_read_b128 v[20:23], v{vRd} offset:{RED}
    ds_read_b128 v[24:27], v{vRd} offset:{RED + 256}
    s_waitcnt lgkmcnt(0)
    v_pk_add_f32 v[20:21], v[20:21], v[22:23]
    v_pk_add_f32 v[24:25], v[24:25], v[26:27]
    v_add_f32 v20, v20, v21
    v_add_f32 v24, v24, v25
    v_mul_f32 v21, 0xbfb8aa3b, v20
    v_exp_f32 v21, v21
    v_mul_f32 v20, v20, v24
    v_add_f32 v21, 1.0, v21
    v_rcp_f32 v21, v21
    v_mul_f32 v20, v20, v21
    ''')
    fine('e', 'gu')
    sG = 8
    for u in range(16):
        a(f'v_readlane_b32 s{sG + u}, v20, {u}')
    for u in range(16):
        for hh in range(2):
            w_ = vr(vFW + 4 * u + 2 * hh, 2)
            g_ = sr(sG + (u & ~1))
            d_ = vr(36 + 2 * hh, 2)
            if u == 0:
                a(f'v_pk_mul_f32 {d_}, {w_}, {g_} op_sel:[0,0] op_sel_hi:[1,0]')
            else:
                a(f'v_pk_fma_f32 {d_}, {w_}, {g_}, {d_} {BC1 if u & 1 else BC0}')
    for k in range(4):
        a(f'v_and_or_b32 v{36 + k}, v{36 + k}, v18, s{sTB + k}')
    a('s_mov_b32 exec_hi, 0xff')
    a(f'global_store_dwordx4 v{vL16}, v[36:39], {sr(sBb)} sc1')
    a('s_mov_b64 exec, -1')
    stamp('PY out')
    fine('e', 'PY out')
    a('s_waitcnt vmcnt(0)')
    a.label('L_e_done')
    bar('B10')
    a.label('L_fin')
    stamp('end')
    fine('e', 'end')
    if FINE:
        a('s_waitcnt lgkmcnt(0)')
    dump_stamps()
    a.label('L_end')
    a('s_endpgm')
    flush_late()


sF1, sF2, sPb, sGw, sWb = 56, 58, 60, 62, 64


def publish(P='H0'):
    a(f'''
    ds_read_b128 v[40:43], v28 offset:{RED}
    ds_read_b128 v[44:47], v28 offset:{RED + 16}
    v_lshl_add_u32 v36, s{sBlk}, 8, v{vL4}
    s_waitcnt lgkmcnt(0)
    v_pk_add_f32 v[40:41], v[40:41], v[42:43]
    v_pk_add_f32 v[44:45], v[44:45], v[46:47]
    v_add_f32 v40, v35, v40
    v_pk_add_f32 v[40:41], v[40:41], v[44:45]
    v_add_f32 v40, v40, v41
    v_and_or_b32 v40, v40, v33, v34
    global_store_dword v36, v40, {sr(WS)} sc1
    ''')
    stamp('published', P)


def w_addr():
    a(f'''
    s_mul_i32 s{sU1}, s{sIdx}, 15
    s_min_u32 s{sU1}, s{sU1}, 306
    s_add_u32 s{sT}, s{sU1}, s{sX}
    s_and_b32 s{sT}, s{sT}, 1
    s_sub_u32 s{sU1}, s{sU1}, s{sT}
    s_mul_i32 s{sU0}, s{sX}, 321
    s_add_u32 s{sU1}, s{sU1}, s{sU0}
    s_lshl_b32 s{sU1}, s{sU1}, 1
    v_lshrrev_b32 v90, 1, v{vL}
    v_mul_u32_u24 v90, 5136, v90
    v_lshlrev_b32 v91, 1, v{vL}
    v_xor_b32 v91, v{vL16}, v91
    v_and_b32 v91, 16, v91
    v_add3_u32 v11, v90, v91, s{sU1}
    ''')


def w_gather(arr, lds):
    for n in range(8):
        a(f's_mov_b32 m0, {lds + 1024 * n}')
        a(f'global_load_lds_dwordx4 v11, {sr(arr)}')
        if n < 7:
            a(f'v_add_u32 v11, {32 * 5136}, v11')


def mask_lanes(n):
    if n >= 64:
        return
    if n > 32:
        a(f's_mov_b32 exec_hi, {hex((1 << (n - 32)) - 1)}')
    else:
        a(f's_mov_b64 exec, {hex((1 << n) - 1)}')


def warm_addr_w():
    a(f'''
    s_sub_u32 s{sU3}, s{sRi}, {12 if W20 else 0}
    s_mul_i32 s{sU3}, s{sU3}, {78 if W20 else 48}
    s_movk_i32 s{sU2}, 0x2aab
    s_mul_i32 s{sU1}, s{sX}, 642
    s_movk_i32 s{sT}, 5136
    ''')
    for n in range(2 if W20 else 1):
        a(f'''
        v_add_u32 v90, s{sU3}, v{vL}
        v_add_u32 v90, {39 * n}, v90
        v_min_u32 v90, 1535, v90
        v_mul_u32_u24 v91, s{sU2}, v90
        v_lshrrev_b32 v91, 16, v91
        v_mul_u32_u24 v92, 6, v91
        v_sub_u32 v92, v90, v92
        v_lshlrev_b32 v92, 7, v92
        v_min_u32 v92, 638, v92
        v_add_u32 v92, s{sU1}, v92
        v_mad_u32_u24 v92, v91, s{sT}, v92
        v_and_b32 v{120 + n}, -4, v92
        ''')


def ffn_parts(slot):
    return [(n, k) for n in range(3) if S_W[n] == slot for k in range(2 if slot == 7 else 1)]


def warm_addr_f(h, slot):
    f, per, lanes = {0: (0, 30, 30), 7: (NJ, 96, 48), 8: (0, 48, 48)}[slot]
    if not ffn_parts(slot):
        return
    a(f'''
    s_sub_u32 s{sU0}, s{sRi}, {f}
    s_mul_i32 s{sU3}, s{sU0}, {per}
    s_mul_i32 s{sU1}, s{sX}, 384
    s_movk_i32 s{sU2}, 0x5556
    s_movk_i32 s{sT}, {3072 - 384}
    s_mul_i32 s{sU0}, s{sX}, 245760
    ''')
    for n, k in ffn_parts(slot):
        d = 130 + 2 * n + k
        a(f'''
        v_add_u32 v90, s{sU3}, v{vL}
        v_add_u32 v90, {lanes * k}, v90
        v_min_u32 v90, 959, v90
        v_add_u32 v90, {960 * (n if n < 2 else h)}, v90
        ''')
        if n < 2:
            a(f'''
            v_mul_u32_u24 v91, s{sU2}, v90
            v_lshrrev_b32 v91, 16, v91
            v_lshl_add_u32 v90, v90, 7, s{sU1}
            v_mad_u32_u24 v{d}, v91, s{sT}, v90
            ''')
        else:
            a(f'v_lshl_add_u32 v{d}, v90, 7, s{sU0}')


def warm_issue(h, slot, sel=None):
    if slot == 0:
        L = newlabel('w20')
        if W20:
            assert not ffn_parts(0)
            a(f's_cmp_lt_u32 s{sRi}, 12')
            a(f's_cbranch_scc1 {L}')
        mask_lanes(39 if W20 else 48)
        for n in range(2 if W20 else 1):
            a(f'global_load_dword v125, v{120 + n}, {sr(W_R if h else W_I)}')
        a.label(L)
    ps = ffn_parts(slot) if sel is None else sel
    if ps:
        mask_lanes(30 if slot == 0 else 48)
        if 'w' in XX:
            a('s_mov_b64 exec, 1')
    for n, k in ps:
        a(f'global_load_dword v125, v{130 + 2 * n + k}, {sr(W_D if n == 2 else (W_G if h else W_U))}')
    a('s_mov_b64 exec, -1')


def e_addr(mat):
    a(f'''
    s_max_u32 s{sU1}, s{sRi}, 20
    s_mul_i32 s{sU0}, s{sX}, 12
    s_add_u32 s{sU0}, s{sU0}, s{sU1}
    s_sub_u32 s{sU0}, s{sU0}, 20
    s_mul_i32 s{sU1}, s{sU0}, 20480
    s_lshl_b32 s{sU0}, s{sU0}, 5
    v_lshrrev_b32 v128, 1, v{vL}
    v_mul_u32_u24 v128, 3072, v128
    v_and_b32 v90, 16, v{vL16}
    v_add_u32 v128, v128, v90
    ''')
    base_add(sF1, mat, sU0)
    base_add(sGw, W_D, sU1, 10240 if mat == W_U else 0)


def if_e(f):
    L = newlabel('ne')
    a(f's_cmp_lt_u32 s{sRi}, 20')
    a(f's_cbranch_scc1 {L}')
    f()
    a.label(L)


def e_gather(half, n0, n1):
    if 'g' in XX:
        a('s_mov_b64 exec, 1')
    for n in range(n0, n1):
        a(f's_mov_b32 m0, {EW + (n % 4 + 4 * half) * 5120 + (n // 4) * 1024}')
        a(f'global_load_lds_dwordx4 v128, {sr(sF1)}')
        if n < 19:
            a(f'v_add_u32 v128, {32 * 3072 if "g" not in XX else 0}, v128')
    a('s_mov_b64 exec, -1' if 'g' in XX else '')


def wd_load(half):
    if 'g' in XX:
        return
    for n in range(10):
        if n % 4 == 0:
            a(f's_mov_b32 m0, {FW + half * 10240 + n * 1024}')
            a(f'v_add_u32 v90, {1024 * n}, v{vL16}')
        a(f'global_load_lds_dwordx4 v90, {sr(sGw)} offset:{1024 * (n % 4)} {INPOL if S_W[2] == 9 else str()}')


def touch_small():
    if 'k' in TCH:
        a(f's_mul_i32 s{sU0}, s{sMe}, {REC_STRIDE}')
        base_add(sBa, WS, sU0, REC_G)
        a(f'''
        s_mov_b64 exec, 0xff
        global_store_dwordx4 v{vL16}, v[20:23], {sr(sBa)} sc1
        s_mov_b64 exec, -1
        ''')
    if 'p' in TCH:
        def f():
            a(f'''
            s_mul_i32 s{sU1}, s{sX}, 12
            s_add_u32 s{sU1}, s{sU1}, s{sRi}
            s_mul_i32 s{sU1}, s{sU1}, {PY_STRIDE}
            ''')
            base_add(sBa, WS, sU1, PY_G - 20 * PY_STRIDE)
            a(f'''
            global_store_dwordx4 v{vL16}, v[20:23], {sr(sBa)} sc1
            global_store_dwordx4 v{vL16}, v[20:23], {sr(sBa)} offset:1024 sc1
            s_mov_b32 exec_hi, 0
            global_store_dwordx4 v{vL16}, v[20:23], {sr(sBa)} offset:2048 sc1
            s_mov_b64 exec, -1
            ''')
        if_e(f)


def finalizer():
    a(f'''
    s_cmp_ge_u32 s{sRi}, 30
    s_cbranch_scc1 L_hx0
    ds_read_b32 v21, v62
    s_mul_i32 s{sU2}, s{sX}, 10
    s_add_u32 s{sU2}, s{sU2}, s{sRi}
    s_sub_u32 s{sU2}, s{sU2}, 20                   ; f
    v_mov_b32 v26, 0
    v_mov_b32 v27, 0
    s_waitcnt lgkmcnt(0)
    v_readfirstlane_b32 s{sU0}, v21
    s_and_b32 s{sU1}, s{sU0}, 255
    s_mul_i32 s{sU1}, s{sU1}, {REC_STRIDE}
    ''')
    base_add(sBa, WS, sU1, REC_G + REC_BASE)
    done = [f'global_load_dwordx4 v[32:35], v26, {sr(sBa)} sc1']
    a(f'''
    v_and_b32 v20, 1, v{vL}
    v_lshrrev_b32 v21, 4, v{vL}
    v_lshl_add_u32 v20, v20, 2, v21
    s_lshl_b32 s{sT}, s{sU2}, 3
    v_add_u32 v20, s{sT}, v20
    s_lshr_b32 s{sCand}, s{sU2}, 4                 ; j
    s_cmp_ge_u32 s{sCand}, 3
    s_cselect_b32 s{sT}, 3, 0
    s_sub_u32 s{sCand}, s{sCand}, s{sT}            ; dword inside the quad
    s_mul_i32 s{sT}, s{sT}, 342
    s_and_b32 s{sT}, s{sT}, 1024
    v_bfe_u32 v26, v20, 1, 6
    v_lshl_add_u32 v26, v26, 4, s{sT}
    {done[0] if not BL else ''}
    v_lshlrev_b32 v20, 1, v20                      ; 2d
    v_add_u32 v21, {MODB_L + 3840}, v20
    v_mov_b32 v22, 0
    ds_read_u16_d16_hi v22, v21                    ; gb[d]
    s_and_b32 s{sU1}, s{sU0}, 0x7ff
    s_mul_i32 s{sU1}, s{sU1}, 1280
    ''')
    base_add(sXrow, OUTP, sU1)
    a(f'''
    s_and_b32 s{sU1}, s{sU0}, 0xfffff800
    s_or_b32 s{sU1}, s{sU1}, 0x400
    s_xor_b32 s{sU3}, s{sU1}, 0x80000000
    s_not_b32 s{sT}, s{sU1}
    s_cmp_lt_i32 s{sU1}, 0
    s_cselect_b32 s{sU1}, s{sU3}, s{sT}
    v_mov_b32 v28, s{sU1}
    ''')
    a(f'''
    v_mul_f32 v28, 0xbfb8aa3b, v28
    v_exp_f32 v28, v28
    v_add_f32 v28, 1.0, v28
    v_rcp_f32 v28, v28
    ''')
    a(f'''
    v_lshrrev_b32 v29, 1, v{vL}
    v_mul_u32_u24 v29, {PY_STRIDE}, v29
    v_and_b32 v30, 16, v{vL16}
    v_add_u32 v29, v29, v30
    v_add_u32 v30, {32 * PY_STRIDE}, v29
    v_add_u32 v31, {64 * PY_STRIDE}, v29
    s_lshl_b32 s{sU2}, s{sU2}, 5
    ''')
    base_add(sBb, WS, sU2, PY_G)
    a('s_waitcnt lgkmcnt(0)')
    a('v_mul_f32 v22, v22, v28')
    bar('B9')

    def base_in(younger):
        poll(done, [35], [], empty='word', issued=True, younger=younger)
        a(f'''
        s_cmp_eq_u32 s{sCand}, 1
        s_cselect_b64 vcc, -1, 0
        v_cndmask_b32 v27, v32, v33, vcc
        s_cmp_eq_u32 s{sCand}, 2
        s_cselect_b64 vcc, -1, 0
        v_cndmask_b32 v27, v27, v34, vcc
        v_and_b32 v32, 16, v{vL}
        v_lshrrev_b32 v27, v32, v27
        v_lshlrev_b32 v27, 16, v27
        ''')
    if not BL:
        base_in(0)
    bar('B10')
    if PYD:
        a(done[0])
        a('s_waitcnt vmcnt(0)')
    stamp('PY poll', 'H0')
    if BL:
        a(done[0])
    poll([f'global_load_dwordx4 {vr(36 + 4 * n, 4)}, v{29 + n}, {sr(sBb)} sc1' for n in range(3)],
         list(range(36, 48)), [48, 49], empty='tag', between=(lambda: base_in(3)) if BL else None)
    a(f'''
    v_pk_add_f32 v[36:37], v[36:37], v[40:41]
    v_pk_add_f32 v[38:39], v[38:39], v[42:43]
    v_pk_add_f32 v[36:37], v[36:37], v[44:45]
    v_pk_add_f32 v[38:39], v[38:39], v[46:47]
    v_permlane32_swap_b32 v36, v38
    v_permlane32_swap_b32 v37, v39
    v_pk_add_f32 v[36:37], v[36:37], v[38:39]
    v_permlane16_swap_b32 v36, v37
    v_add_f32 v36, v36, v37
    ''')
    for c in ('row_ror:8', 'row_ror:4', 'row_ror:2'):
        dpp('v_add_f32', 36, c)
    a(f'''
    v_fma_f32 v36, v36, v22, v27
    v_cvt_pk_bf16_f32 v36, v36, v36
    s_mov_b32 exec_lo, 0x00030003
    s_mov_b32 exec_hi, 0x00030003
    global_store_short v20, v36, {sr(sXrow)} {FINPOL}
    s_mov_b64 exec, -1
    ''')


def can_addr():
    a(f'''
    v_add_u32 v110, s{sIdx}, v{vL}
    v_and_b32 v110, 7, v110
    v_lshlrev_b32 v114, 5, v110
    v_mul_u32_u24 v110, {NJ}, v110
    v_mul_u32_u24 v110, {T2S}, v110
    s_lshl_b32 s{sU0}, s{sMe}, 6
    s_add_u32 s{sU0}, s{sU0}, {T2_G + CANJ * T2S + 60}
    v_add_u32 v110, s{sU0}, v110
    v_and_b32 v111, 7, v{vL}
    v_lshl_add_u32 v114, v111, 2, v114
    v_mul_u32_u24 v114, {T1S}, v114
    s_min_u32 s{sT}, s{sIdx}, {NJ - 1}
    s_mul_i32 s{sU0}, s{sX}, {NJ}
    s_add_u32 s{sU0}, s{sU0}, s{sT}
    s_lshl_b32 s{sU0}, s{sU0}, 6
    s_add_u32 s{sU0}, s{sU0}, {T1_G + T1S + 60}
    v_add_u32 v114, s{sU0}, v114
    ''')


def can_touch(v):
    mask_lanes(8)
    a(f'global_load_dword v113, v{v}, {sr(WS)} sc1')
    a('s_mov_b64 exec, -1')


def can_wait(v, k):
    L, D = newlabel('can'), newlabel('cand')
    mask_lanes(8)
    a(f'''
    s_mov_b32 s{sCnt}, {SPIN}
    {L}:
    global_load_dword v113, v{v}, {sr(WS)} sc1
    s_waitcnt vmcnt(0)
    v_cmp_eq_u32 vcc, s{sTag}, v113
    s_bcnt1_i32_b64 s{sT}, vcc
    s_cmp_ge_u32 s{sT}, {k}
    s_cbranch_scc1 {D}
    s_sub_u32 s{sCnt}, s{sCnt}, 1
    s_cbranch_scc0 {L}
    {D}:
    s_mov_b64 exec, -1
    ''')


def warm0(h, early):
    if not AWE:
        if not early:
            warm_issue(h, 0)
        return
    L = newlabel('w0')
    is_a()
    a(f's_cbranch_scc{0 if early else 1} {L}')
    warm_issue(h, 0)
    a.label(L)


SA_P0 = 12
SA_LD = [f'global_load_dwordx2 {vr(SA_P0 + 10 * p + 2 * j, 2)}, v{4 + j // 2}, {sr(WS)} offset:{2048 * (j % 2) + 256 * p} sc1'
         for p in range(4) for j in range(5)]


def sa_spectrum(step):
    Ls, Lr, Lc = newlabel('sas'), newlabel('sar'), newlabel('sac')
    P0, ld = SA_P0, SA_LD
    if step == 0:
        a(f'''
        v_lshrrev_b32 v4, 5, v{vL}
        v_lshlrev_b32 v4, 10, v4
        v_and_b32 v5, 31, v{vL}
        v_lshl_add_u32 v4, v5, 3, v4
        v_add_u32 v5, 4096, v4
        v_add_u32 v6, 8192, v4
        ''')
    a(f's_cmp_lg_u32 s{sX}, 0')
    a(f's_cbranch_scc1 {Ls}')
    if step == 0:
        tab_read(vF20, T_F20C)
        tab_read(vF20 + 4, T_F20S)
        for q in range(4):
            tab_read(vTW + 4 * q, T_TW1 + q)
        f32_read(T_F32A)
        tab_read(116, T_ADR)
        a(f'''
        v_and_b32 v8, 16, v{vL16}
        v_lshrrev_b32 v8, v8, s{sTag}
        v_bfe_u32 v9, v8, 8, 8
        v_and_b32 v8, 0xff, v8
        s_waitcnt lgkmcnt(0)
        ''')
        f32_expand(T_F32A, None, 117)
        a(f'v_add_u32 v116, {SAF}, v116')
        a('v_add_u32 v117, 160, v116')
        a.label(Ls)
        return
    if step == 1:
        for x in ld:
            a(x)
        a.label(Ls)
        return
    a(f's_mov_b32 s{sCnt}, {SPIN}')
    a.label(Lc)
    a('s_waitcnt vmcnt(0)')
    for k in range(40):
        a(f'v_xor_b32 v{P0 + k}, v{8 + (k & 1)}, v{P0 + k}')
    a(f'v_or_b32 v10, v{P0}, v{P0 + 1}')
    for k in range(2, 40, 2):
        a(f'v_or3_b32 v10, v10, v{P0 + k}, v{P0 + k + 1}')
    a(f'''
    v_and_b32 v10, 0xff, v10
    v_cmp_ne_u32 vcc, 0, v10
    s_cbranch_vccnz {Lr}
    {Lr}_d:
    ''')

    def retry():
        a.label(Lr)
        a(f's_sub_u32 s{sCnt}, s{sCnt}, 1')
        a(f's_cbranch_scc1 {Lr}_d')
        for x in ld:
            a(x)
        a(f's_branch {Lc}')
    late.append(retry)
    Z = 140
    for k in range(0, 10, 2):
        a(f'v_pk_add_f32 {vr(Z + k, 2)}, {vr(P0 + k, 2)}, {vr(P0 + 10 + k, 2)}')
        a(f'v_pk_add_f32 {vr(P0 + 20 + k, 2)}, {vr(P0 + 20 + k, 2)}, {vr(P0 + 30 + k, 2)}')
    for k in range(0, 10, 2):
        a(f'v_pk_add_f32 {vr(Z + k, 2)}, {vr(Z + k, 2)}, {vr(P0 + 20 + k, 2)}')
    for t in range(2):
        a(f'v_cvt_pk_bf16_f32 v{Ra + 4 * t}, v{Z + t}, v{Z + 2 + t}')
        a(f'v_cvt_pk_bf16_f32 v{Ra + 4 * t + 1}, v{Z + 4 + t}, v{Z + 6 + t}')
        a(f'v_cvt_pk_bf16_f32 v{Ra + 4 * t + 2}, v{Z + 8 + t}, 0')
        a(f'v_mov_b32 v{Ra + 4 * t + 3}, 0')
    row_fwd()
    a('s_mov_b32 exec_lo, 0x37773777')
    a('s_mov_b32 exec_hi, 0x37773777')
    for u in range(2):
        for r in range(4):
            a(f'ds_write2_b32 v{116 + u}, v{RD + 8 * u + r}, v{RD + 8 * u + 4 + r} offset0:{80 * r} offset1:{80 * r + 1}')
    a('s_mov_b64 exec, -1')
    a('s_waitcnt lgkmcnt(0)')
    stamp('sa done', 'H1')
    a.label(Ls)


def helper_tail(h, P, red_load, red_work, modf_load, modf_work):
    bar('BT')
    if BG:
        if h == 1:
            a(f's_waitcnt vmcnt({BG - 1})')
        bar('BG')
    bar('BP')
    if WPOS == 1:
        warm_issue(h, 0)
    if h == 0:
        is_b()
        a('s_cbranch_scc0 L_pl')
        publish()
        a.label('L_pl')
    a(f's_cmp_ge_u32 s{sIdx}, {NJ}')
    a(f's_cbranch_scc1 L_idle{h}')
    if NS and h == 1:
        assert not (K1 or K2)
        sa_spectrum(0)
    bar('B2')
    if not RI:
        red_load()
    w_gather(W_R if h else W_I, WST + (0 if h else 8192))
    bar('B3')
    a('s_waitcnt vmcnt(0)')
    stamp('W in', P)
    if NS and h == 1 and SAL == 1:
        sa_spectrum(1)
    if RE and not RI:
        red_work()
    bar('B3b')
    if AL1:
        if K1 and h == 1:
            can_wait(114, K1)
        bar('B3c')
    if K2 and h == 1:
        can_touch(110)
    if NS and h == 1:
        if SAL == 0:
            sa_spectrum(1)
        sa_spectrum(2)
    if h == 0:
        touch_small()
    if not RE and not RI:
        red_work()
    bar('B4')
    a('s_waitcnt vmcnt(0)')
    modf_load()
    if EG3:
        if_e(lambda: e_gather(1 - h, 0, EG3))
    bar('B5')
    if h == 0:
        a(f's_cmp_lt_u32 s{sRi}, 20')
        a(f's_waitcnt vmcnt({EG3})')
        a('s_cbranch_scc0 L_h0_m')
        a('s_waitcnt vmcnt(0)')
        a.label('L_h0_m')
    modf_work()
    bar('B5b')
    if AL2:
        if K2 and h == 1:
            can_wait(110, K2)
        bar('B5c')
    if S_W[2] == 8:
        warm_addr_f(h, 8)
    if W8 == 0:
        bar('B6')
    if S_W[2] == 8:
        a(f's_cmp_lt_u32 s{sRi}, 20')
        a(f's_cbranch_scc0 L_w8{h}')
        warm_issue(h, 8)
        a.label(f'L_w8{h}')
    if W8 == 1:
        bar('B6')
    if_e(lambda: (e_gather(1 - h, EG3, 20), wd_load(1 - h) if S_W[2] != 8 else None))
    if h == 0:
        a(f'''
        s_cmp_lg_u32 s2, 8
        s_cbranch_scc1 L_h0_ne
        v_mov_b32 v26, {EPOCH_G}
        s_mov_b64 exec, 1
        global_store_dword v26, v27, {sr(WS)} sc1
        s_mov_b64 exec, -1
        ''')
        a.label('L_h0_ne')
    a.label(f'L_hend{h}')
    a(f'''
    v_mul_u32_u24 v60, {REC_STRIDE}, v{vL}
    v_add_u32 v60, {REC_G + 128 * h * REC_STRIDE}, v60
    v_add_u32 v61, {64 * REC_STRIDE}, v60
    v_mov_b32 v62, {KEYL + 4}
    v_and_b32 v63, 15, v{vL}
    v_lshlrev_b32 v63, 7, v63
    v_add_u32 v63, {REC_G + REC_H2}, v63
    s_movk_i32 s{sU0}, {REC_STRIDE}
    s_cmp_lt_u32 s{sRi}, 20
    ''')
    bar('B7')
    a('s_waitcnt vmcnt(0)')
    a(f's_cbranch_scc1 L_hx{h}')
    if S_W[2] == 8:
        assert FWL and IWD
        wd_load(1 - h)
    kl = [f'global_load_dwordx2 v[64:65], v60, {sr(WS)} sc1', f'global_load_dwordx2 v[66:67], v61, {sr(WS)} sc1']
    if KP == 1:
        bar('B7b')
    if KD:
        bar('B7c')
    stamp('key poll', P)
    poll(kl, [65, 67], [68, 69], empty='word', between=(lambda: bar('B7b')) if KP == 0 else ((lambda: bar('B7d')) if OE == 3 else None))
    a('v_max_u32 v64, v64, v66')
    for c in ('row_ror:8', 'row_ror:4', 'row_ror:2', 'row_ror:1'):
        dpp('v_max_u32', 64, c)
    a(f'''
    s_mov_b32 exec_lo, 0x00010001
    s_mov_b32 exec_hi, 0x00010001
    ds_max_u32 v62, v64
    s_mov_b64 exec, -1
    ''')
    if PF == 1:
        a(f'''
        v_and_b32 v65, 255, v64
        v_mad_u32_u24 v63, v65, s{sU0}, v63
        global_load_dword v65, v63, {sr(WS)} sc1
        ''')
    if PF == 2:
        dpp('v_max_u32', 64, 'row_bcast:15', '0xa')
        dpp('v_max_u32', 64, 'row_bcast:31', '0xc')
        a(f'''
        s_mov_b32 exec_lo, 0
        s_mov_b32 exec_hi, 0xffff0000
        v_and_b32 v65, 255, v64
        v_mad_u32_u24 v63, v65, s{sU0}, v63
        global_load_dword v65, v63, {sr(WS)} sc1
        s_mov_b64 exec, -1
        ''')
    a('s_waitcnt lgkmcnt(0)')
    bar('B8')
    if h == 0:
        finalizer()
    a.label(f'L_hx{h}')
    stamp('end', P)
    dump_stamps(P)
    a('s_endpgm')
    a.label(f'L_idle{h}')
    warm_addr_f(h, 7)
    ps = ffn_parts(7)
    bar('B2')
    if RI < 2:
        red_load()
    if h == 1:
        a('s_waitcnt vmcnt(0)')
        can_touch(110)
    warm_issue(h, 7, ps[:EARLY])
    bar('B3')
    if RI == 2:
        red_load()
    if RE and h == 0:
        a(f's_waitcnt vmcnt({len(ps[:EARLY]) if RI < 2 else 0})')
        red_work()
        red_work = lambda: None
    bar('B3b')
    ieg = IEG
    if ISEQ == 0:
        warm_issue(h, 7, ps[EARLY:])
        if h == 0:
            a(f's_waitcnt vmcnt({len(ps)})')
            red_work()
            touch_small()
        nd = sum(1 for n, k in ps[EARLY:] if n == 2)
        a(f's_waitcnt vmcnt({nd + (NT if h == 0 else 0)})')
        stamp('warm in', P)
        e_gather(1 - h, 0, MF)
        modf_load()
        e_gather(1 - h, MF, IEG)
        if IWD == 0:
            wd_load(1 - h)
        if h == 0:
            a(f's_waitcnt vmcnt({IEG - MF + 10 * (IWD == 0)})')
        modf_work()
        bar('B5b')
    else:
        assert EARLY == 2 and S_W[0] == 7
        if h == 0:
            a(f's_waitcnt vmcnt({EARLY})')
            red_work()
            touch_small()
        a(f's_waitcnt vmcnt({NT if h == 0 else 0})')
        stamp('warm in', P)
        e_gather(1 - h, 0, 10)
        if ISEQ == 2:
            a('s_waitcnt vmcnt(0)')
            warm_issue(h, 7, ps[EARLY:])
        if h == 0:
            if ISEQ == 1:
                a('s_waitcnt vmcnt(0)')
            modf_load()
            a('s_waitcnt vmcnt(0)')
        modf_work()
        bar('B5b')
        if ISEQ == 1:
            warm_issue(h, 7, ps[EARLY:])
        ieg = max(IEG, 10)
        if ieg > 10:
            a('s_waitcnt vmcnt(0)')
            e_gather(1 - h, 10, ieg)
    a('s_waitcnt vmcnt(0)')
    stamp('ffn in', P)
    if h == 1:
        can_wait(110, KCAN)
        stamp('can', P)
    bar('B5c')
    bar('B6')
    e_gather(1 - h, ieg, 20)
    if IWD and S_W[2] != 8:
        wd_load(1 - h)
    a(f's_branch L_hend{h}')
    flush_late()


def helper0():
    a.label('L_h0')
    a(f's_mov_b32 s{sHI}, 0xffff0000')
    a(f'''
    v_mov_b32 v20, 0
    v_mov_b32 v21, 0
    v_mov_b32 v22, 0
    v_mov_b32 v23, 0
    v_mov_b32 v28, {KEYL}
    ds_write_b128 v28, v[20:23]
    ''')
    blk_id()
    warm_addr_w()
    warm_addr_f(0, 0)
    a('s_waitcnt lgkmcnt(0)')
    epoch_load()
    warm0(0, True)
    bar('B0 / B1')
    if PB:
        is_a()
        a('s_cbranch_scc0 L_h0_v')
        bar('B1b')
        a.label('L_h0_v')
    if WPOS == 0:
        warm0(0, False)
    stamp('kernarg', 'H0')
    e_addr(W_U)
    w_addr()
    a('s_waitcnt lgkmcnt(0)')
    epoch_tag()
    tag_bytes()
    pub_setup(sTag)
    if RI:
        a(f'''
        s_mul_i32 s{sCand}, s{sX}, 5
        s_add_u32 s{sCand}, s{sCand}, s{sIdx}
        s_sub_u32 s{sCand}, s{sCand}, 2
        s_and_b32 s{sCand}, s{sCand}, 63
        ''')
    else:
        a(f's_lshr_b32 s{sCand}, s{sBlk}, 2')
    a(f's_lshl_b32 s{sU2}, s{sCand}, 10')
    base_add(sPb, WS, sU2)
    a(f'''
    v_mov_b32 v27, s{sTag}
    v_lshlrev_b32 v29, 3, v{vL}
    v_add_u32 v29, {MODB_L}, v29
    v_add_u32 v30, {MODF_G}, v{vL16}
    v_add_u32 v31, {MODF_G + 4096}, v{vL16}
    v_add_u32 v32, {MODF_G + 8192}, v{vL16}
    ''')
    if TF:
        is_b()
        a('s_cbranch_scc0 L_tf')
        if 'b' in TF:
            a(f'v_lshl_add_u32 v36, s{sBlk}, 8, v{vL4}')
            a(f'global_store_dword v36, v20, {sr(WS)} sc1')
        if 'f' in TF:
            assert not RI
            a(f'''
            s_and_b32 s{sT}, s{sBlk}, 3
            s_cbranch_scc1 L_tf
            s_lshl_b32 s{sU0}, s{sCand}, 8
            s_add_u32 s{sU0}, s{sU0}, {MODF_G - 20 * 256}
            v_add_u32 v48, s{sU0}, v{vL16}
            s_mov_b64 exec, 0xffff
            global_store_dwordx4 v48, v[20:23], {sr(WS)} sc1
            s_mov_b64 exec, -1
            ''')
        a.label('L_tf')
    red = [f'global_load_dwordx4 v[40:43], v{vL16}, {sr(sPb)} sc1']
    modf = [f'global_load_dwordx4 {vr(40 + 4 * n, 4)}, v{30 + n // 4}, {sr(WS)} offset:{1024 * (n % 4)} sc1' for n in range(10)]

    def in_w1(k):
        L = newlabel('nr')
        if RI:
            a(f's_cmp_lt_u32 s{sIdx}, {NJ + 5}')
            a(f's_cbranch_scc0 {L}')
        else:
            a(f'''
            s_sub_u32 s{sT}, s{sBlk}, 80
            s_cmp_lt_u32 s{sT}, 160
            s_cbranch_scc0 {L}
            s_and_b32 s{sT}, s{sBlk}, 3
            s_cbranch_scc1 {L}
            ''')
        if k == 0:
            a(red[0])
            a.label(L)
            return
        poll(red, [40, 41, 42, 43], [44], empty='tag', issued=True, younger=63)
        a(f'''
        v_mov_b32 v44, v40
        v_mov_b32 v45, v41
        v_mov_b32 v46, v42
        v_mov_b32 v47, v43
        s_mov_b32 s{sU0}, s{sCand}
        s_sub_u32 s{sT}, s{sU0}, 40
        s_cmp_lt_u32 s{sT}, 10
        s_cselect_b32 s{sU1}, 1.0, 0
        s_lshl_b32 s{sU0}, s{sU0}, 8
        s_add_u32 s{sU0}, s{sU0}, {MODF_G - 20 * 256}
        ''')
        for sw in ('32', '16'):
            for r in range(4):
                a(f'v_permlane{sw}_swap_b32 v{40 + r}, v{44 + r}')
            a('v_pk_add_f32 v[40:41], v[40:41], v[44:45]')
            a('v_pk_add_f32 v[42:43], v[42:43], v[46:47]')
            if sw == '32':
                for r in range(4):
                    a(f'v_mov_b32 v{44 + r}, v{40 + r}')
        a('v_cvt_pk_bf16_f32 v44, v40, v41')
        a('v_cvt_pk_bf16_f32 v45, v42, v43')
        unpack(40, 41, 44)
        unpack(42, 43, 45)
        for r in range(4):
            a(f'v_add_f32 v{40 + r}, s{sU1}, v{40 + r}')
        a(f'''
        v_cvt_pk_bf16_f32 v44, v40, v41
        v_cvt_pk_bf16_f32 v45, v42, v43
        v_mov_b32 v47, s{sTag}
        v_add_u32 v48, s{sU0}, v{vL16}
        s_mov_b64 exec, 0xffff
        global_store_dwordx4 v48, v[44:47], {sr(WS)} sc1
        s_mov_b64 exec, -1
        ''')
        stamp('reduced', 'H0')
        a.label(L)

    def in_w2(k):
        if k == 0:
            for ld in modf:
                a(ld)
            return
        poll(modf, [43 + 4 * n for n in range(10)], list(range(80, 90)), empty='words', issued=True, younger=63)
        for n in range(10):
            a(f'ds_write_b64 v29, {vr(40 + 4 * n, 2)} offset:{512 * n}')
        a('s_waitcnt lgkmcnt(0)')
        stamp('modb in', 'H0')
    helper_tail(0, 'H0', lambda: in_w1(0), lambda: in_w1(2), lambda: in_w2(0), lambda: in_w2(1))


def helper1():
    a.label('L_h1')
    a(f'''
    s_getpc_b64 {sr(sBa)}
    L_pc:
    s_add_u32 s{sBb}, s{sBa}, L_tables-L_pc
    s_addc_u32 s{sBb + 1}, s{sBa + 1}, 0
    ''')

    def tabs(q0, q1):
        for q in range(q0, q1):
            if q % 4 == 0 or q == q0:
                a(f's_mov_b32 m0, {TAB + (q & ~3) * 1024}')
                a(f'v_add_u32 v20, {(q & ~3) * 1024}, v{vL16}')
            a(f'global_load_lds_dwordx4 v20, {sr(sBb)} offset:{1024 * (q % 4)}')

    def tab2():
        tabs(NT1, NTAB)
        a(f'''
        s_mov_b32 m0, {WR_L}
        global_load_lds_dwordx4 v{vL16}, {sr(B_WR)}
        s_mov_b64 exec, 0xffff
        global_load_lds_dwordx4 v{vL16}, {sr(B_WR)} offset:1024
        s_mov_b64 exec, -1
        ''')
        return NTAB - 14 + 2

    if AT == 2:
        tabs(0, NT1)
    warm_addr_w()
    warm_addr_f(1, 0)
    a('s_waitcnt lgkmcnt(0)')
    epoch_load()
    if AT == 0:
        blk_id()
        is_a()
        a('s_cbranch_scc0 L_h1_t')
        bar('B1')
        if PB:
            bar('B1b')
        a.label('L_h1_t')
    if AT < 2:
        tabs(0, NT1)
    if HB:
        e_addr(W_G)
        w_addr()
    if AT == 0:
        is_a()
        a('s_cbranch_scc1 L_h1_v')
    if AT:
        blk_id()
    warm0(1, True)
    bar('B0 / B1')
    if AT and PB:
        is_a()
        a('s_cbranch_scc0 L_h1_v')
        bar('B1b')
    a.label('L_h1_v')
    tab2()
    can_addr()
    if K1:
        can_touch(114)
    if WPOS == 0:
        warm0(1, False)
    if not HB:
        e_addr(W_G)
        w_addr()
    a('s_waitcnt lgkmcnt(0)')
    epoch_tag()
    a(f's_waitcnt vmcnt({NTAB - NT1 + 2 + (K1 > 0) + (1 + len(ffn_parts(0))) * (WPOS == 0 and not W20)})')
    stamp('tab in', 'H1')
    nop = lambda: None
    helper_tail(1, 'H1', nop, nop, nop, nop)


prologue()
main_path()
helper0()
helper1()
body = a.finish()

hdr = open(f'cdna_kernels/{NAME}.s.ref').read().split('; Override launch')[0]
T = tables()
tab = []
flat = T.reshape(-1)
for k in range(0, flat.size, 8):
    tab.append('.long ' + ','.join('0x%08x' % v for v in flat[k:k + 8]))

launch = f'; @launch grid=(256,1,1) block=(640,1,1) lds={LDS_BYTES}'
pre_code = pre_kd = ''
if PRE:
    launch = f'; @launch kernel=pre_kernel grid=({PRE},1,1) block=(64,1,1) lds=0\n; @launch kernel={NAME}_kernel grid=(256,1,1) block=(640,1,1) lds={LDS_BYTES}'
    pre_code = '.globl pre_kernel\n.p2align 8\n.type pre_kernel,@function\npre_kernel:\n    s_endpgm\n'
    pre_kd = '''.p2align 6
.amdhsa_kernel pre_kernel
  .amdhsa_next_free_vgpr 8
  .amdhsa_next_free_sgpr 16
  .amdhsa_accum_offset 8
  .amdhsa_group_segment_fixed_size 0
  .amdhsa_kernarg_size 104
  .amdhsa_user_sgpr_count 2
  .amdhsa_user_sgpr_kernarg_segment_ptr 1
  .amdhsa_system_sgpr_workgroup_id_x 1
.end_amdhsa_kernel
'''
src = hdr + f'''{launch}
.amdgcn_target "amdgcn-amd-amdhsa--gfx950"
.text
; ---------------------------------------------------------------------------------------------------------------
; One persistent launch: 256 workgroups (one per CU), 8 row/column waves + 2 helper waves each.
;   mod   : silu(c) @ w_mod in 240 blocks (64 columns x 160 rows); partial sums are handed over through d_ws
;   P1    : workgroup c owns rows 256a+c: LayerNorm, modulation, real DFT-640 (20 x 32, bf16 MFMA), radix-8 over a
;   P2    : 176 workgroups own 15 columns of one residue q: DFT-256 (16 x 16), filter, inverse DFT-256
;   P3    : inverse radix-8, inverse DFT-640, residual, LayerNorm, router score, output rows
;   FFN   : arg-max over per-workgroup keys, 96 workgroups x 16 hidden units, 80 waves update the selected row
; Hand-offs between workgroups: write-through (sc1) stores carrying a per-launch tag, sc1 loads re-issued until the
; tag is seen (bounded). The tag is derived from one d_ws word that is advanced later in the same launch; every
; tagged slot is rewritten by every launch. Workgroup numbering only arranges for L2 locality.
; Generated by a script; hazard wait states (s_nop) are inserted per the ISA tables.
; ---------------------------------------------------------------------------------------------------------------
{pre_code}.globl {NAME}_kernel
.p2align 8
.type {NAME}_kernel,@function
{NAME}_kernel:
{body}
.p2align 8
.type L_tables,@object
L_tables:
''' + '\n'.join(tab) + f'''
.size L_tables, {NTAB * 1024}
.fill (8192 - ((. - {NAME}_kernel) & 8191)) & 8191, 1, 0
L_tables_end:
.section .rodata,"a"
.p2align 6
.amdhsa_kernel {NAME}_kernel
  .amdhsa_next_free_vgpr 168
  .amdhsa_next_free_sgpr 102
  .amdhsa_accum_offset 168
  .amdhsa_group_segment_fixed_size 0
  .amdhsa_kernarg_size 104
  .amdhsa_user_sgpr_count 2
  .amdhsa_user_sgpr_kernarg_segment_ptr 1
  .amdhsa_system_sgpr_workgroup_id_x 1
.end_amdhsa_kernel
{pre_kd}'''
open(OUT, 'w').write(src)
print('wrote', OUT, 'lds', LDS_BYTES, 'lines', len(a.lines), 'nops', a.nnops)
```

```python
import sys, struct
import numpy as np
from asmdsl import Asm

NAME = 'adaLN_cond__spectral_gfnet__moe_arch_mod__prompt'
DIAG = '--diag' in sys.argv or '--dbgdiag' in sys.argv
DBGDIAG = '--dbgdiag' in sys.argv
OUT = [a for a in sys.argv[1:] if not a.startswith('--')]
OUT = OUT[0] if OUT else f'cdna_kernels/{NAME}.s'
SPIN = 1000000


def opt(name, default):
    for x in reversed(sys.argv):
        if x.startswith(f'--{name}='):
            return x.split('=', 1)[1]
    return default


PROBE = opt('probe', None)
if PROBE:
    PROBE = PROBE.replace('_', ' ')
PROBEWG = int(opt('probewg', 8))
FINE = opt('fine', None)
if PROBE or FINE:
    DIAG = True
PRE = None
INPOL = 'nt'
S_W = [int(x) for x in opt('sw', '777')]
EG3 = int(opt('eg3', 10))
PACE1 = int(opt('pace1', 0))
PACE2 = int(opt('pace2', 0))
PK = opt('pk', '110')
P3FIRST = int(opt('p3first', 1))
WFIRST = int(opt('wfirst', 1))
DR1 = int(opt('dr1', 0))
DR2 = int(opt('dr2', 0))
BGWAIT = int(opt('bgwait', 9))
EARLY = int(opt('early', 2))
MATS = int(opt('mats', 2))
IEG = int(opt('ieg', 16))
IWD = int(opt('iwd', 1))
MF = int(opt('mf', 10))
MR = int(opt('mr', 0))
BLOAD = int(opt('bload', 2))
P2ORD = int(opt('p2ord', 2))
GLATE = int(opt('glate', 0))
B0 = int(opt('b0', 3))
FWL = int(opt('fwl', 0))
KP = int(opt('kp', 1))
PF = int(opt('pf', 0))
XL = int(opt('xl', 3))
WC = int(opt('wc', 0))
KD = int(opt('kd', 0))
ISEQ = int(opt('iseq', 0))
RE = int(opt('re', 1))
FINPOL = opt('finpol', '')
PYD = int(opt('pyd', 0))
TCH = opt('tch', 'mkp')
NT = ('k' in TCH) + 3 * ('p' in TCH)
PKS = int(opt('pks', 1))
P3O = int(opt('p3o', 0))
PRIO = opt('prio', '000')
AL1 = int(opt('al1', 0))
AL2 = int(opt('al2', 0))
OE = int(opt('oe', 1))
BL = int(opt('bl', 0))
PL = int(opt('pl', 1))
AW = int(opt('aw', 1))
W8 = int(opt('w8', 0))
TB2 = int(opt('tb2', 0))
MW = int(opt('mw', 0))
XMAP = int(opt('xmap', '0x35762410'), 16)
EX = int(opt('ex', 0))
AT = int(opt('at', 1))
AX = int(opt('ax', 2))
WPOS = int(opt('wpos', 0))
SC_ = int(opt('sc', 1))
XP = int(opt('xp', 0))
BG = int(opt('bg', 0))
MT = int(opt('mt', 1))
S1 = int(opt('s1', 3))
PB = int(opt('pb', 1))
GB = int(opt('gb', 0))
W20 = int(opt('w20', 0))
HB = int(opt('hb', 0))
KCAN = int(opt('kcan', 5))
K1 = int(opt('k1', 0))
K2 = int(opt('k2', 0))
AWE = int(opt('awe', 0))
RI = int(opt('ri', 0))
TF = opt('tf', '')
XX = opt('xx', '')
NS = int(opt('ns', 1))
SAL = int(opt('sal', 0))
CF = int(opt('cf', 0))
GN = int(opt('gn', 0))
GMAP = int(opt('gmap', '0x36542107'), 16)
sLin = 14
NCAN = int(opt('ncan', 8))
CANJ = int(opt('canj', 12))
NJ = 22
T1S = 8 * NJ * 64 + int(opt('t1pad', 128))
T2S = 16384 + int(opt('t2pad', 256))

MODA_G = 0
MODF_G = 61440
EPOCH_G = 73728
PY_G = 0x20000
PY_STRIDE = 2688
REC_G = 0x80000
REC_STRIDE = 4224
REC_H2 = 128
REC_BASE = 128 + 2048
T1_G = 0x400000
T2_G = 0x800000
DIAG_G = 0xC00000

NTAB = 26
TAB = 0
RED = TAB + NTAB * 1024
KEYL = RED + 2048
XB2 = KEYL + 64
SA = 736
XB1 = XB2 + 20480
MODA_L = XB1 + 16 * SA
MODB_L = MODA_L + 5120
WR_L = MODB_L + 5120
WST = WR_L + 2048
EW = WST + 16384
FW = EW + 40960
SAF = FW + 20480
STL = SAF + 2688
LDS_BYTES = STL + 256
assert LDS_BYTES <= 163840, LDS_BYTES

T_F20C, T_F20S, T_TW1, T_F32A, T_ADR, T_TW3, T_F20I, T_F32B, T_F16, T_TW2 = 0, 1, 2, 6, 10, 11, 15, 18, 22, 24
NT1 = 11


def f2u(x):
    return struct.unpack('<I', struct.pack('<f', float(x)))[0]


def bf(x):
    u = f2u(x)
    return ((u + 0x7FFF + ((u >> 16) & 1)) >> 16) & 0xFFFF


def pk(lo, hi):
    return bf(lo) | (bf(hi) << 16)


ALPHA = {16: 1.1328, 20: 1.4294, 32: 1.62445}


def cs(num, den):
    a = 2 * np.pi * (num % den) / den
    c, s = np.cos(a), np.sin(a)
    if abs(c) < 1e-12: c = 0.0
    if abs(s) < 1e-12: s = 0.0
    al = ALPHA.get(den, 1.0)
    return c * al, s * al


def kaof(x):
    ka = 3 * (x >> 2) + (x & 3)
    return ka if (x & 3) < 3 and ka <= 10 else None


def tables():
    T = np.zeros((NTAB, 64, 4), np.uint32)
    for l in range(64):
        i, g = l & 15, l >> 4
        c8, s8 = [0.0] * 8, [0.0] * 8
        for j in range(5):
            if kaof(i) is not None:
                c, s = cs((4 * j + g) * kaof(i), 20)
                c8[j], s8[j] = c, -s
        for d in range(4):
            T[T_F20C, l, d] = pk(c8[2 * d], c8[2 * d + 1])
            T[T_F20S, l, d] = pk(s8[2 * d], s8[2 * d + 1])
        for t in range(2):
            for r in range(4):
                c, s = cs((8 * g + 2 * r + t) * (kaof(i) or 0), 640)
                T[T_TW1 + 2 * t, l, r] = f2u(c)
                T[T_TW1 + 2 * t + 1, l, r] = f2u(s)
                c, s = cs((2 * i + t) * (kaof(4 * g + r) or 0), 640)
                T[T_TW3 + 2 * t, l, r] = f2u(c)
                T[T_TW3 + 2 * t + 1, l, r] = f2u(s)
        kbof = lambda e: e if e < 16 else 47 - e
        for tile in range(2):
            for ks in range(2):
                for r in range(4):
                    c, s = cs(kbof(2 * i + tile) * (8 * g + 2 * r + ks), 32)
                    T[T_F32A + tile * 2 + ks, l, r] = pk(c, s)
                    c, s = cs((2 * i + tile) * kbof(8 * g + 2 * r + ks), 32)
                    T[T_F32B + tile * 2 + ks, l, r] = pk(c, s)
        ka_ = kaof(i)
        k0 = 0 if ka_ is None else (160 * g + ka_ if g < 2 else 160 * g - 300 - ka_)
        T[T_ADR, l, 0] = 8 * k0
        T[T_ADR, l, 1] = 0x8000 if i < 8 else 0x80000000
        T[T_ADR, l, 2] = 0 if g < 2 else 0x8000
        T[T_ADR, l, 3] = 0x8000 if g < 2 else 0
        for r in range(4):
            c, s = cs(i * (4 * g + r), 16)
            T[T_F16, l, r] = pk(c, s)
            T[T_F16 + 1, l, r] = pk(-s, c)
            c, s = cs(i * (4 * g + r), 256)
            T[T_TW2, l, r] = f2u(c)
            T[T_TW2 + 1, l, r] = f2u(s)
            ka = kaof(4 * g + r)
            if ka is not None:
                a1 = 4 * (i & 3) + (i >> 2)
                c, s = cs(a1 * ka, 20)
                T[T_F20I, l, r] = pk(c, -s)
                c, s = cs((16 + (i >> 2)) * ka, 20)
                if (i & 3) == 0:
                    T[T_F20I + 1, l, r] = pk(c, -s)
                if (i & 3) == 1:
                    T[T_F20I + 2, l, r] = pk(c, -s)
    return T


def vr(a, n=1):
    return f'v{a}' if n == 1 else f'v[{a}:{a + n - 1}]'


def sr(a, n=2):
    return f's{a}' if n == 1 else f's[{a}:{a + n - 1}]'


sW, sX, sIdx, sMe, sT = 3, 4, 5, 6, 7
A_X, W_R, W_I, B_WR, W_G, W_U, W_D = 8, 10, 12, 16, 18, 20, 22
C_, W_MOD, OUTP, DBG, WS = 24, 26, 28, 30, 32
sBa, sBb, sBc = 34, 36, 38
sCnt = 40
sM1B = 41
sU0, sU1, sU2, sU3 = 42, 43, 46, 47
sM7 = 44
sRow = 48
sKey = 49
sV1, sV2 = 50, 51
sHI = 52
sCand = 53
sBlk = 54
sRec = 56
sTag = 55
sRi = sIdx
sGU = 56
sXrow = 72
sTS = 74

vL, vL16, vL4, vS, vPoll = 1, 2, 3, 4, 5
vM8F, vM8I = 6, 8
vXS = 10
Ra, Rb, RD, Rc = 20, 28, 36, 52
vF32 = 60
vTW = 92
vF20 = 108
vVec = 120
vE0 = 160
vXR = 150


a = Asm()
stamps = {}
NST = 24


def stamp(name, path='M', wait=True):
    if not DIAG or FINE:
        return
    if opt('only', None) and not (name == 'start' or any(name.startswith(x.replace('_', ' ')) for x in opt('only', '').split(','))):
        return
    if PROBE and (path != 'M' or not (name == 'start' or name.startswith(PROBE))):
        return
    lst = stamps.setdefault(path, [])
    if name not in lst:
        lst.append(name)
    k = lst.index(name)
    assert k < NST
    a(f's_memrealtime s[100:101]')
    a('s_waitcnt lgkmcnt(0)')
    a(f's_mov_b32 s{sTS + k}, s100')


fines = []


def fine(group, name):
    if FINE != group:
        return
    if name not in fines:
        fines.append(name)
    k = fines.index(name)
    assert k < 12
    a(f's_memtime {sr(sTS + 2 * k)}')


def dump_stamps(path='M'):
    if not DIAG:
        return
    if PROBE:
        if path != 'M':
            return
        a(f'''
        s_cmp_lg_u32 s2, {PROBEWG}
        s_cbranch_scc1 L_end
        s_cmp_lg_u32 s{sW}, 0
        s_cbranch_scc1 L_end
        ''')
        if PROBE == 'fix':
            a(f's_movk_i32 s{sU0}, 6000')
        elif PROBE == 'rel':
            RX = int(opt('rx', 1))
            a(f'''
            v_mov_b32 v20, {DIAG_G}
            global_load_dword v21, v20, {sr(WS)} sc1
            global_load_dword v22, v20, {sr(WS)} offset:{128 * RX} sc1
            s_waitcnt vmcnt(0)
            v_sub_u32 v21, v22, v21
            v_add_u32 v21, 100, v21
            v_readfirstlane_b32 s{sU0}, v21
            s_lshl_b32 s{sU0}, s{sU0}, 5
            s_add_u32 s{sU0}, s{sU0}, 6000
            s_min_u32 s{sU0}, s{sU0}, 100000
            ''')
        elif PROBE == 'xcc':
            a(f's_getreg_b32 s{sU0}, hwreg(HW_REG_XCC_ID)')
            a(f's_and_b32 s{sU0}, s{sU0}, 15')
            a(f's_mul_i32 s{sU0}, s{sU0}, 1000')
            a(f's_add_u32 s{sU0}, s{sU0}, 6000')
        else:
            a(f's_sub_u32 s{sU0}, s{sTS + 1}, s{sTS}')
            a(f's_lshl_b32 s{sU0}, s{sU0}, 4')
            a(f's_add_u32 s{sU0}, s{sU0}, 6000')
            a(f's_min_u32 s{sU0}, s{sU0}, 100000')
        a(f'''
        L_probe:
        s_memrealtime s[100:101]
        s_waitcnt lgkmcnt(0)
        s_sub_u32 s{sU1}, s100, s{sTS}
        s_cmp_lt_u32 s{sU1}, s{sU0}
        s_cbranch_scc1 L_probe
        ''')
        return
    if DBGDIAG:
        if path != 'M':
            return
        a('v_mov_b32 v20, 0')
        a('s_mov_b64 exec, 1')
        a(f's_not_b32 s{sU0}, s{sTS}')
        a(f'v_mov_b32 v22, s{sU0}')
        a(f'global_atomic_umax v20, v22, {sr(DBG)} offset:4 sc1')
        ks = [0] + list(range(2, len(stamps['M'])))
        for n, k in enumerate(ks[:14]):
            a(f'v_mov_b32 v{23 + n}, s{sTS + k}')
            a(f'global_atomic_umax v20, v{23 + n}, {sr(DBG)} offset:{8 + 4 * n} sc1')
        print('dbg slots:', [(2 + n, stamps['M'][k]) for n, k in enumerate(ks[:14])])
        return
    a(f'''
    s_lshl_b32 s{sU0}, s2, 11
    s_lshl_b32 s{sU1}, s{sW}, 7
    s_add_u32 s{sU0}, s{sU0}, s{sU1}
    s_memtime s[100:101]
    ''')
    base_add(sBa, WS, sU0, DIAG_G)
    a('v_mov_b32 v20, 0')
    a('s_mov_b64 exec, 1')
    for k in range(0, NST, 2):
        a(f'v_mov_b32 v22, s{sTS + k}')
        a(f'v_mov_b32 v23, s{sTS + k + 1}')
        a(f'global_store_dwordx2 v20, v[22:23], {sr(sBa)} offset:{4 * k}')
        a('s_nop 1')
    a('s_waitcnt lgkmcnt(0)')
    a('s_sub_u32 s100, s100, s98')
    a('v_mov_b32 v22, s100')
    a(f'global_store_dword v20, v22, {sr(sBa)} offset:112')
    a('s_getreg_b32 s42, hwreg(HW_REG_XCC_ID)')
    a('s_getreg_b32 s43, hwreg(HW_REG_HW_ID)')
    a('v_mov_b32 v22, s42')
    a('v_mov_b32 v23, s43')
    a(f'global_store_dwordx2 v20, v[22:23], {sr(sBa)} offset:120')


def base_add(dst, src, off_s=None, imm=0):
    if off_s is not None:
        if imm:
            a(f's_add_u32 s{sT}, s{off_s}, {imm}')
            off_s = sT
        a(f's_add_u32 s{dst}, s{src}, s{off_s}')
    else:
        a(f's_add_u32 s{dst}, s{src}, {imm}')
    a(f's_addc_u32 s{dst + 1}, s{src + 1}, 0')


lblc = [0]
late = []
late2 = []


def flush_late():
    for f in late:
        f()
    late.clear()
    for f in late2:
        f()
    late2.clear()


def newlabel(p):
    lblc[0] += 1
    return f'L_{p}_{lblc[0]}'


def poll(loads, regs, tmp, mask=None, empty='eq -1', between=None, younger=0, issued=False):
    L, D, Cc = newlabel('poll'), newlabel('polld'), newlabel('pollc')
    if mask is not None:
        mask_lanes(mask)
    if not issued:
        for ld in loads:
            a(ld)
    a(f's_mov_b32 s{sCnt}, {SPIN}')
    if between is not None:
        between()
    if younger < 63:
        a(f's_waitcnt vmcnt({younger})')
    a.label(Cc)

    def retry():
        a.label(L)
        a(f's_sub_u32 s{sCnt}, s{sCnt}, 1')
        a(f's_cbranch_scc1 {D}')
        for ld in loads:
            a(ld)
        a('s_waitcnt vmcnt(0)')
        a(f's_branch {Cc}')
    late.append(retry)
    if empty == 'tag':
        for n, r in enumerate(regs):
            a(f'v_xor_b32 v{r}, s{sTB + (n & 3)}, v{r}')
        rem = list(regs)
        for c in tmp:
            a(f'v_or3_b32 v{c}, v{rem[0]}, v{rem[1]}, v{rem[2]}')
            rem = rem[3:]
        n = 0
        while len(rem) >= 2:
            c = tmp[n % len(tmp)]
            a(f'v_or3_b32 v{c}, v{c}, v{rem[0]}, v{rem[1]}')
            rem = rem[2:]
            n += 1
        t = tmp[0]
        rem = rem + list(tmp[1:])
        while rem:
            if len(rem) >= 2:
                a(f'v_or3_b32 v{t}, v{t}, v{rem[0]}, v{rem[1]}')
                rem = rem[2:]
            else:
                a(f'v_or_b32 v{t}, v{t}, v{rem[0]}')
                rem = rem[1:]
        a(f'v_and_b32 v{t}, 0xff, v{t}')
        empty = 'ne 0'
    elif empty == 'word':
        if len(regs) == 1:
            t = regs[0]
            empty = f'ne s{sTag}'
        else:
            assert len(regs) == 2
            t = tmp[0]
            a(f'v_xor_b32 v{t}, v{regs[0]}, v{regs[1]}')
            a(f'v_xor_b32 v{tmp[1]}, s{sTag}, v{regs[0]}')
            a(f'v_or_b32 v{t}, v{t}, v{tmp[1]}')
            empty = 'ne 0'
    elif empty == 'words':
        for n, r in enumerate(regs):
            a(f'v_xor_b32 v{tmp[n]}, s{sTag}, v{r}')
        t = tmp[0]
        rem = list(tmp[1:len(regs)])
        while rem:
            if len(rem) >= 2:
                a(f'v_or3_b32 v{t}, v{t}, v{rem[0]}, v{rem[1]}')
                rem = rem[2:]
            else:
                a(f'v_or_b32 v{t}, v{t}, v{rem[0]}')
                rem = rem[1:]
        empty = 'ne 0'
    elif len(regs) == 1:
        t = regs[0]
    else:
        rem = list(regs)
        outs = []
        k = 0
        while len(rem) >= 3 and k < len(tmp):
            a(f'v_max3_u32 v{tmp[k]}, v{rem[0]}, v{rem[1]}, v{rem[2]}')
            outs.append(tmp[k])
            rem = rem[3:]
            k += 1
        rem = outs[1:] + rem
        t = outs[0] if outs else None
        if t is None:
            t = tmp[0]
            a(f'v_max_u32 v{t}, v{rem[0]}, v{rem[1]}')
            rem = rem[2:]
        while rem:
            if len(rem) >= 2:
                a(f'v_max3_u32 v{t}, v{t}, v{rem[0]}, v{rem[1]}')
                rem = rem[2:]
            else:
                a(f'v_max_u32 v{t}, v{t}, v{rem[0]}')
                rem = rem[1:]
    a(f'v_cmpx_{empty.split()[0]}_u32 vcc, {empty.split()[1]}, v{t}')
    a(f's_cbranch_execnz {L}')
    a.label(D)
    a('s_mov_b64 exec, -1')


def epoch_load():
    a(f's_load_dword s{sTag}, {sr(WS)}, {EPOCH_G}')


def epoch_tag(d=None):
    d = d or sTag
    a(f'''
    s_and_b32 s{d}, s{sTag}, 0x7f7f7f7f
    s_add_u32 s{d}, s{d}, 0x01010101
    s_or_b32 s{d}, s{d}, 0x80808080
    ''')


sTB = 68


def tag_bytes():
    for k in range(4):
        a(f's_bfe_u32 s{sTB + k}, s{sTag}, {hex(0x80000 | (8 * k))}')


def dpp(op, r, ctrl, rm='0xf'):
    a(f'{op}_dpp v{r}, v{r}, v{r} {ctrl} row_mask:{rm} bank_mask:0xf')


def wave_sum(regs, dst_s, op='v_add_f32'):
    for c in ('row_ror:8', 'row_ror:4', 'row_ror:2', 'row_ror:1'):
        for r in regs:
            dpp(op, r, c)
    for r in regs:
        dpp(op, r, 'row_bcast:15', '0xa')
    for r in regs:
        dpp(op, r, 'row_bcast:31', '0xc')
    for r, s in zip(regs, dst_s):
        a(f'v_readlane_b32 s{s}, v{r}, 63')


def rbf(dst, src):
    a(f'v_cvt_pk_bf16_f32 v{dst}, {src}, {src}')
    a(f'v_and_b32 v{dst}, s{sHI}, v{dst}')


def unpack(dlo, dhi, src):
    a(f'v_lshlrev_b32 v{dlo}, 16, v{src}')
    a(f'v_and_b32 v{dhi}, s{sHI}, v{src}')


def mfma32(d, x, y, c=None):
    a(f'v_mfma_f32_16x16x32_bf16 {vr(d, 4)}, {vr(x, 4)}, {vr(y, 4)}, {vr(c, 4) if c is not None else 0}')


def mfma16(d, x, y):
    a(f'v_mfma_f32_16x16x16_bf16 {vr(d, 4)}, {vr(x, 2)}, {vr(y, 2)}, 0')


def cmul(tr, ti, re, im, c, s, sign, pk=True, n=4, head=0):
    if not pk:
        for r in range(n):
            a(f'v_mul_f32 v{tr + r}, v{re + r}, v{c + r}')
        for r in range(n):
            a(f'v_mul_f32 v{ti + r}, v{im + r}, v{c + r}')
        for r in range(n):
            if sign > 0:
                a(f'v_fma_f32 v{tr + r}, -v{im + r}, v{s + r}, v{tr + r}')
                a(f'v_fmac_f32 v{ti + r}, v{re + r}, v{s + r}')
            else:
                a(f'v_fmac_f32 v{tr + r}, v{im + r}, v{s + r}')
                a(f'v_fma_f32 v{ti + r}, -v{re + r}, v{s + r}, v{ti + r}')
        return
    nr = 'neg_lo:[1,0,0] neg_hi:[1,0,0]'
    for h in (0, 2):
        if head:
            a(f'v_mul_f32 v{tr + h}, v{re + h}, v{c + h}')
            a(f'v_mul_f32 v{tr + h + 1}, v{re + h + 1}, v{c + h + 1}')
        else:
            a(f'v_pk_mul_f32 {vr(tr + h, 2)}, {vr(re + h, 2)}, {vr(c + h, 2)}')
    for h in (0, 2):
        a(f'v_pk_mul_f32 {vr(ti + h, 2)}, {vr(im + h, 2)}, {vr(c + h, 2)}')
    for h in (0, 2):
        a(f'v_pk_fma_f32 {vr(tr + h, 2)}, {vr(im + h, 2)}, {vr(s + h, 2)}, {vr(tr + h, 2)} {nr if sign > 0 else ""}')
    for h in (0, 2):
        a(f'v_pk_fma_f32 {vr(ti + h, 2)}, {vr(re + h, 2)}, {vr(s + h, 2)}, {vr(ti + h, 2)} {nr if sign < 0 else ""}')


def pack4(d, lo, hi, step=1, n=4):
    for r in range(n):
        a(f'v_cvt_pk_bf16_f32 v{d + r * step}, v{lo + r}, v{hi + r}')


def tab_read(dst, q):
    a(f'ds_read_b128 {vr(dst, 4)}, v{vL16} offset:{TAB + q * 1024}')


def tm(j, t):
    return 4 * t + j if j < 4 else 8 + t


def read_tmajor(dst, vaddr, off):
    o = off // 256
    assert off % 256 == 0 and o + 6 < 256
    for t in range(2):
        a(f'ds_read2st64_b32 {vr(dst + 4 * t, 2)}, v{vaddr + t} offset0:{o} offset1:{o + 2}')
        a(f'ds_read2st64_b32 {vr(dst + 4 * t + 2, 2)}, v{vaddr + t} offset0:{o + 4} offset1:{o + 6}')
    a(f'ds_read_b64 {vr(dst + 8, 2)}, v{vaddr} offset:{off + 2048}')


def silu(dst, src, tmp):
    for d, s, t in zip(dst, src, tmp):
        a(f'v_mul_f32 v{t}, 0xbfb8aa3b, v{s}')
    for t in tmp:
        a(f'v_exp_f32 v{t}, v{t}')
    for t in tmp:
        a(f'v_add_f32 v{t}, 1.0, v{t}')
    for t in tmp:
        a(f'v_rcp_f32 v{t}, v{t}')
    for d, s, t in zip(dst, src, tmp):
        a(f'v_mul_f32 v{d}, v{s}, v{t}')


def swap_reduce8(acc):
    for k in range(4):
        a(f'v_permlane32_swap_b32 v{acc + k}, v{acc + k + 4}')
    a(f'v_pk_add_f32 {vr(acc, 2)}, {vr(acc, 2)}, {vr(acc + 4, 2)}')
    a(f'v_pk_add_f32 {vr(acc + 2, 2)}, {vr(acc + 2, 2)}, {vr(acc + 6, 2)}')
    for k in range(2):
        a(f'v_permlane16_swap_b32 v{acc + k}, v{acc + k + 2}')
    a(f'v_pk_add_f32 {vr(acc, 2)}, {vr(acc, 2)}, {vr(acc + 2, 2)}')


BC0 = 'op_sel:[0,0,0] op_sel_hi:[1,0,1]'
BC1 = 'op_sel:[0,1,0] op_sel_hi:[1,1,1]'


def prologue():
    a(f'''
    s_cmp_ge_u32 s2, 256
    s_cbranch_scc1 L_end
    ''')
    if DIAG:
        for k in range(NST):
            a(f's_mov_b32 s{sTS + k}, 0')
        a('s_memtime s[98:99]')
        for p in ('M', 'H0', 'H1'):
            stamps[p] = ['start']
        stamp('start')
    a(f'''
    s_load_dwordx16 s[8:23], s[0:1], 0
    s_load_dwordx8 s[24:31], s[0:1], 64
    s_load_dwordx2 s[32:33], s[0:1], 96
    v_lshrrev_b32 v20, 6, v0
    s_and_b32 s{sX}, s2, 7
    s_lshr_b32 s{sIdx}, s2, 3
    v_readfirstlane_b32 s{sW}, v20
    v_and_b32 v{vL}, 63, v0
    s_lshl_b32 s{sMe}, s{sX}, 5
    s_add_u32 s{sMe}, s{sMe}, s{sIdx}
    v_lshlrev_b32 v{vL16}, 4, v{vL}
    v_lshlrev_b32 v{vL4}, 2, v{vL}
    s_cmp_eq_u32 s{sW}, 9
    s_cbranch_scc1 L_h1
    s_cmp_eq_u32 s{sW}, 8
    s_cbranch_scc1 L_h0
    s_cmp_eq_u32 s{sRi}, 30
    s_cbranch_scc0 L_nopf
    s_cmp_ge_u32 s{sW}, (L_tables_end-{NAME}_kernel)/8192
    s_cbranch_scc1 L_nopf
    s_getpc_b64 {sr(sBa)}
    L_pc0:
    s_sub_u32 s{sBa}, s{sBa}, L_pc0-{NAME}_kernel
    s_subb_u32 s{sBa + 1}, s{sBa + 1}, 0
    v_lshlrev_b32 v21, 7, v0
    global_load_dword v157, v21, {sr(sBa)}
    L_nopf:
    ''')


def xloads():
    for j in range(5):
        a(f'global_load_dword v{vXR + j}, v156, {sr(A_X)} offset:{256 * j} {INPOL}')


def blk_id():
    if NS and GN:
        a(f'''
        s_lshl_b32 s{sT}, s{sX}, 2
        s_lshr_b32 s{sT}, {hex(GMAP)}, s{sT}
        s_and_b32 s{sT}, s{sT}, 7
        s_cmp_lt_u32 s{sT}, {GN}
        s_cselect_b32 s{sBlk}, {GN}, {8 - GN}
        s_cselect_b32 s{sU0}, 0, {31 * GN}
        s_mul_i32 s{sBlk}, s{sBlk}, s{sIdx}
        s_add_u32 s{sBlk}, s{sBlk}, s{sT}
        s_add_u32 s{sBlk}, s{sBlk}, s{sU0}
        s_cmp_lt_u32 s{sBlk}, 80
        s_cselect_b32 s{sU0}, -40, 0
        s_cmp_lt_u32 s{sBlk}, 40
        s_cselect_b32 s{sU0}, 40, s{sU0}
        s_add_u32 s{sBlk}, s{sBlk}, s{sU0}
        ''')
        return
    if NS:
        a(f'''
        s_mul_i32 s{sBlk}, s{sX}, 25
        s_add_u32 s{sBlk}, s{sBlk}, s{sIdx}
        s_cmp_lt_u32 s{sBlk}, 45
        s_cselect_b32 s{sU0}, -5, 35
        s_add_u32 s{sBlk}, s{sBlk}, s{sU0}
        s_mul_i32 s{sU0}, s{sX}, 5
        s_add_u32 s{sU0}, s{sU0}, s{sIdx}
        s_add_u32 s{sU0}, s{sU0}, 40
        s_cmp_lt_u32 s{sIdx}, 5
        s_cselect_b32 s{sBlk}, s{sU0}, s{sBlk}
        s_cmp_lt_u32 s{sIdx}, 30
        s_cselect_b32 s{sBlk}, s{sBlk}, 0xf1
        ''')
        return
    if EX == 7:
        a(f'''
        s_mul_i32 s{sBlk}, s{sIdx}, 7
        s_add_u32 s{sBlk}, s{sBlk}, s{sX}
        s_add_u32 s{sT}, s{sIdx}, 225
        s_cmp_eq_u32 s{sX}, 0
        s_cselect_b32 s{sBlk}, s{sT}, s{sBlk}
        s_sub_u32 s{sBlk}, s{sBlk}, 1
        ''')
        return
    if EX:
        a(f'''
        s_lshl_b32 s{sT}, s{sX}, 2
        s_lshr_b32 s{sT}, {hex(XMAP)}, s{sT}
        s_and_b32 s{sT}, s{sT}, 7
        s_cmp_lt_u32 s{sIdx}, {80 // EX}
        s_cselect_b32 s{sBlk}, {80 // EX}, {30 - 80 // EX}
        s_cselect_b32 s{sU0}, 0, {80 - 80 // EX}
        s_cmp_lt_u32 s{sT}, {EX}
        s_cselect_b32 s{sBlk}, s{sBlk}, 30
        s_cselect_b32 s{sU0}, s{sU0}, 0
        s_mul_i32 s{sBlk}, s{sBlk}, s{sT}
        ''')
    else:
        a(f'''
        s_cmp_lt_u32 s{sIdx}, 10
        s_cselect_b32 s{sBlk}, 10, 20
        s_cselect_b32 s{sU0}, 0, 70
        s_mul_i32 s{sBlk}, s{sBlk}, s{sX}
        ''')
    a(f'''
    s_add_u32 s{sBlk}, s{sBlk}, s{sU0}
    s_add_u32 s{sBlk}, s{sBlk}, s{sIdx}
    s_cmp_lt_u32 s{sIdx}, 30
    s_cselect_b32 s{sBlk}, s{sBlk}, 0xf1
    ''')


def is_a():
    if NS and GN:
        a(f's_sub_u32 s{sT}, s{sBlk}, 40')
        a(f's_cmp_lt_u32 s{sT}, 40')
        return
    a(f's_cmp_lt_u32 s{sIdx}, 5' if NS else f's_cmp_lt_u32 s{sBlk}, 80')


def is_b():
    if NS and GN:
        a(f's_sub_u32 s{sT}, s{sBlk}, 40')
        a(f's_cmp_lt_u32 s{sT}, 40')
        a(f's_cselect_b32 s{sT}, 0xff, s{sBlk}')
        a(f's_cmp_lt_u32 s{sT}, 240')
        return
    if NS:
        a(f's_sub_u32 s{sT}, s{sIdx}, 5')
        a(f's_cmp_lt_u32 s{sT}, 25')
        return
    a(f's_sub_u32 s{sT}, s{sBlk}, 80')
    a(f's_cmp_lt_u32 s{sT}, 160')


def pub_setup(tag):
    a(f'''
    v_lshlrev_b32 v28, 5, v{vL}
    v_lshlrev_b32 v34, 3, v{vL}
    v_and_b32 v34, 24, v34
    v_bfe_u32 v34, s{tag}, v34, 8
    v_mov_b32 v33, 0xffffff00
    s_sub_u32 s{sU0}, s{sBlk}, 40
    s_cmp_lt_u32 s{sU0}, 40
    s_cselect_b32 s{sU1}, 1.0, 0
    s_and_b32 s{sU0}, s{sBlk}, 3
    s_cselect_b32 s{sU1}, 0, s{sU1}
    v_mov_b32 v35, s{sU1}
    ''')


GV = (130, 142, 48, 56, 158, 159)


def gemv_addr():
    vw, vc, acc, tmp, vo, voc = GV
    blk_id()
    a(f'''
    v_lshrrev_b32 v{voc}, 3, v{vL}
    v_mad_u32_u24 v{voc}, v20, 20, v{voc}
    v_and_b32 v21, 3, s{sBlk}
    v_mul_u32_u24 v21, 160, v21
    v_add_u32 v{voc}, v{voc}, v21
    v_lshrrev_b32 v21, 2, s{sBlk}
    v_and_b32 v{vo}, 0x70, v{vL16}
    v_lshl_add_u32 v{vo}, v21, 7, v{vo}
    v_mul_u32_u24 v21, 7680, v{voc}
    v_add_u32 v{vo}, v{vo}, v21
    v_lshlrev_b32 v{voc}, 1, v{voc}
    v_lshl_add_u32 v156, v20, 8, s{sMe}
    v_mul_u32_u24 v156, 1280, v156
    v_add_u32 v156, v156, v{vL4}
    ''')
    for k in range(4):
        a(f'v_mov_b32 v{vw + 8 + k}, 0')
    a(f'v_mov_b32 v{vc + 2}, 0')


def gemv_issue(scalar=False):
    vw, vc, acc, tmp, vo, voc = GV
    def cl_():
        for j in range(3):
            if j == 2:
                a('s_mov_b32 exec_hi, 0')
            a(f'global_load_ushort v{vc + j}, v{voc}, {sr(C_)} offset:{16 * j}')
        a('s_mov_b64 exec, -1')

    def wl_():
        for j in range(3):
            if j == 2:
                a('s_mov_b32 exec_hi, 0')
            a(f'global_load_dwordx4 {vr(vw + 4 * j, 4)}, v{vo}, {sr(W_MOD)} {INPOL}')
            if j < 2:
                a(f'v_add_u32 v{vo}, {8 * 7680}, v{vo}')
        a('s_mov_b64 exec, -1')
    if scalar:
        if not CF:
            wl_()
        a(f'''
        s_and_b32 s{sU0}, s{sBlk}, 3
        s_lshl_b32 s{sU0}, s{sU0}, 3
        s_add_u32 s{sU0}, s{sU0}, s{sW}
        s_mul_i32 s{sU0}, s{sU0}, 40
        s_load_dwordx8 s[56:63], {sr(C_)}, s{sU0}
        s_add_u32 s{sU0}, s{sU0}, 32
        s_load_dwordx2 s[64:65], {sr(C_)}, s{sU0}
        ''')
        if CF:
            wl_()
        return
    cl_()
    wl_()


def gemv_compute(role, after, at_c=None, scalar=False):
    nj = 3
    vw, vc, acc, tmp, vo, voc = GV
    if role == 'B':
        acc = 150
    if scalar:
        a(f'v_lshlrev_b32 v{tmp}, 1, v{vL}')
        a(f'v_and_b32 v{tmp}, 16, v{tmp}')
        a('s_waitcnt lgkmcnt(0)')
        for g in range(4):
            if g == 0:
                a('s_mov_b64 exec, 0xffff')
            else:
                a('s_lshl_b64 exec, exec, 16')
            for j in range(3 if g < 2 else 2):
                a(f'v_lshrrev_b32 v{vc + j}, v{tmp}, s{56 + 4 * j + g}')
        a('s_mov_b64 exec, -1')
    else:
        a(f's_waitcnt vmcnt({nj + (0 if at_c else after)})')
    stamp('c in')
    if at_c:
        at_c()
    cs_ = [vc + j for j in range(nj)]
    for c in cs_:
        a(f'v_lshlrev_b32 v{c}, 16, v{c}')
    silu(cs_, cs_, [tmp + j for j in range(nj)])
    sc = [(145, 146), (147, 148), (149, 59)]
    for c, s in zip(cs_, sc):
        a(f'v_cvt_pk_bf16_f32 v{s[0]}, v{c}, 0')
    for s in sc:
        a(f'v_lshlrev_b32 v{s[1]}, 16, v{s[0]}')
    a(f'''
    v_and_b32 v{vo}, 7, v{vL}
    v_lshlrev_b32 v{vo}, 8, v{vo}
    v_and_b32 v{voc}, 48, v{vL}
    v_lshl_add_u32 v{vo}, v{voc}, 2, v{vo}
    s_lshl_b32 s{sT}, s{sW}, 2
    s_add_u32 s{sT}, s{sT}, {RED}
    v_add_u32 v{vo}, s{sT}, v{vo}
    ''')
    for k in range(8):
        a(f'v_mov_b32 v{acc + k}, 0')
    for j in range(nj):
        a(f's_waitcnt vmcnt({nj - 1 - j + after})')
        for k in (0, 4, 1, 5, 2, 6, 3, 7):
            a(f'v_dot2c_f32_bf16 v{acc + k}, v{vw + 4 * j + k // 2}, v{sc[j][k & 1]}')
    stamp('w in')
    swap_reduce8(acc)
    for c in ('row_ror:8',):
        dpp('v_add_f32', acc, c)
        dpp('v_add_f32', acc + 1, c)
    a(f'''
    s_mov_b32 exec_lo, 0x00ff00ff
    s_mov_b32 exec_hi, 0x00ff00ff
    ds_write2_b32 v{vo}, v{acc}, v{acc + 1} offset0:0 offset1:8
    s_mov_b64 exec, -1
    s_waitcnt lgkmcnt(0)
    ''')


def m8(dst, inverse):
    t0, t1, t2, t3 = 20, 21, 22, 23
    a(f'v_lshrrev_b32 v{t0}, 4, v{vL}           ; g')
    if not inverse:
        a(f'''
        v_bfe_u32 v{t1}, v{vL}, 2, 2
        v_bfe_u32 v{t2}, v{vL}, 1, 1
        v_lshl_add_u32 v{t1}, v{t2}, 2, v{t1}
        v_lshlrev_b32 v{t0}, 9, v{t0}
        v_add_u32 v{t0}, s{sMe}, v{t0}
        v_mul_u32_u24 v{t2}, v{t0}, v{t1}
        v_lshl_add_u32 v{t3}, v{t1}, 8, v{t2}
        ''')
    else:
        a(f'''
        v_bfe_u32 v{t1}, v{vL}, 1, 3
        v_lshlrev_b32 v{t1}, 8, v{t1}
        v_add_u32 v{t1}, s{sMe}, v{t1}
        v_mul_u32_u24 v{t2}, v{t0}, v{t1}
        v_xor_b32 v{t0}, 4, v{t0}
        v_mul_u32_u24 v{t3}, v{t0}, v{t1}
        v_sub_u32 v{t2}, 0, v{t2}
        v_sub_u32 v{t3}, 0, v{t3}
        ''')
    a(f'''
    v_and_b32 v{t0}, 1, v{vL}
    v_lshl_add_u32 v{t2}, v{t0}, 9, v{t2}
    v_lshl_add_u32 v{t3}, v{t0}, 9, v{t3}
    v_and_b32 v{t2}, 0x7ff, v{t2}
    v_and_b32 v{t3}, 0x7ff, v{t3}
    v_cvt_f32_u32 v{t2}, v{t2}
    v_cvt_f32_u32 v{t3}, v{t3}
    v_mul_f32 v{t2}, 0x3a000000, v{t2}
    v_mul_f32 v{t3}, 0x3a000000, v{t3}
    v_cos_f32 v{t0}, v{t2}
    v_sin_f32 v{t2}, v{t2}
    v_cos_f32 v{t1}, v{t3}
    v_sin_f32 v{t3}, v{t3}
    v_cvt_pk_bf16_f32 v{dst}, v{t0}, v{t2}
    v_cvt_pk_bf16_f32 v{dst + 1}, v{t1}, v{t3}
    ''')


INV640 = hex(f2u(1.0 / 640))
EPS = hex(f2u(1e-5))


def rstd_chain(var, out):
    rbf(out, f'v{var}')
    a(f'v_add_f32 v{out}, {EPS}, v{out}')
    rbf(out, f'v{out}')
    a(f'v_sqrt_f32 v{out}, v{out}')
    rbf(out, f'v{out}')
    a(f'v_rcp_f32 v{out}, v{out}')


def sum10(dst2, x):
    a(f'v_pk_add_f32 {vr(dst2, 2)}, {vr(x, 2)}, {vr(x + 2, 2)}')
    for h in (4, 6, 8):
        a(f'v_pk_add_f32 {vr(dst2, 2)}, {vr(dst2, 2)}, {vr(x + h, 2)}')
    a(f'v_add_f32 v{dst2}, v{dst2}, v{dst2 + 1}')


def dot10(dst2, x, y):
    a(f'v_pk_mul_f32 {vr(dst2, 2)}, {vr(x, 2)}, {vr(y, 2)}')
    for h in (2, 4, 6, 8):
        a(f'v_pk_fma_f32 {vr(dst2, 2)}, {vr(x + h, 2)}, {vr(y + h, 2)}, {vr(dst2, 2)}')
    a(f'v_add_f32 v{dst2}, v{dst2}, v{dst2 + 1}')


def prio(k, on):
    if PRIO[k] == '0':
        return
    if not on:
        a('s_setprio 0')
        return
    L = newlabel('pr')
    a(f's_cmp_lt_u32 s{sW}, 4')
    a(f's_cbranch_scc1 {L}')
    a('s_setprio 1')
    a.label(L)


def bar(n):
    a(f's_barrier                                   ; {n}')


def tpoll(loads, lanes_s=None, between=None):
    L, D, Cc = newlabel('poll'), newlabel('polld'), newlabel('pollc')
    if lanes_s:
        a(f's_mov_b64 exec, {lanes_s}')
    for ld in loads:
        a(ld)
    if lanes_s:
        a('s_mov_b64 exec, -1')
    a(f's_mov_b32 s{sCnt}, {SPIN}')
    if between is not None:
        between()
    a('s_waitcnt vmcnt(0)')
    a.label(Cc)
    a(f'''
    v_cmp_ne_u32 vcc, s{sTag}, v{Ra + 3}
    v_cmp_ne_u32 {sr(sBc)}, s{sTag}, v{Ra + 7}
    s_or_b64 vcc, vcc, {sr(sBc)}
    s_and_b64 vcc, vcc, {sr(sM8)}
    s_cbranch_scc1 {L}
    ''')
    a.label(D)

    def retry():
        a.label(L)
        a(f'''
        s_sub_u32 s{sCnt}, s{sCnt}, 1
        s_cbranch_scc1 {D}
        s_lshr_b64 {sr(sBc)}, vcc, 1
        s_or_b64 vcc, vcc, {sr(sBc)}
        s_lshr_b64 {sr(sBc)}, vcc, 2
        s_or_b64 exec, vcc, {sr(sBc)}
        ''')
        for ld in loads:
            a(ld)
        a('s_mov_b64 exec, -1')
        a('s_waitcnt vmcnt(0)')
        a(f's_branch {Cc}')
    late.append(retry)


sM8, sLn, sM3 = 62, 64, 66
vSg0, vSg1, vPair, vPairX = vE0 + 1, vE0 + 2, vE0 + 5, vM8F + 1


def f32_expand(q0, m0, m1):
    for tile in range(2):
        for k in range(8):
            b = vF32 + 16 * tile + k
            a(f'v_alignbit_b32 v{b + 8}, v{b}, v{b}, 16')
            a(f'v_xor_b32 v{b + 8}, v{m1}, v{b + 8}')
            if m0 is not None:
                a(f'v_xor_b32 v{b}, v{m0}, v{b}')


def f32_read(q0):
    for tile in range(2):
        for ks in range(2):
            tab_read(vF32 + 16 * tile + 4 * ks, q0 + 2 * tile + ks)


def setup_addr():
    a(f'''
    v_bfe_u32 v20, v{vL}, 2, 2                    ; cs
    v_and_b32 v21, 48, v{vL16}                    ; part*16
    v_lshrrev_b32 v22, 4, v{vL}                   ; g
    v_lshl_add_u32 v23, v22, 5, v20               ; 32g + cs
    v_mul_u32_u24 v{vPoll}, {T1S}, v23
    v_add_u32 v{vPoll}, v{vPoll}, v21
    v_mul_u32_u24 v23, 80, v23
    s_mul_i32 s{sT}, s{sW}, 320
    s_add_u32 s{sT}, s{sT}, {XB2}
    v_add3_u32 v{vE0 + 4}, v23, v21, s{sT}        ; staging address
    v_mul_u32_u24 v{vS}, {NJ * 64}, v22
    v_and_b32 v23, 0xf0, v{vL16}
    v_add_u32 v{vS}, v{vS}, v23
    v_lshlrev_b32 v{vE0}, 3, v{vL}                ; 8*lane
    v_mul_u32_u24 v22, {4 * SA}, v22
    v_mul_u32_u24 v20, 120, v20
    v_lshl_add_u32 v20, v21, 1, v20
    s_min_u32 s{sT}, s{sW}, 5
    s_mul_i32 s{sT}, s{sT}, 480
    s_add_u32 s{sT}, s{sT}, {XB1}
    v_add3_u32 v{vPair}, v20, v22, s{sT}
    ''')


def setup_masks():
    a(f'''
    s_mov_b32 s{sM7}, 0x77777777
    s_mov_b32 s{sM7 + 1}, 0x77777777
    s_mov_b32 s{sM8}, 0x88888888
    s_mov_b32 s{sM8 + 1}, 0x88888888
    s_mov_b32 s{sM3}, 0x37773777
    s_mov_b32 s{sM3 + 1}, 0x37773777
    s_cmp_eq_u32 s{sW}, 5
    s_cselect_b32 s{sLn}, 0x00ff00ff, -1
    s_mov_b32 s{sLn + 1}, s{sLn}
    ''')


def row_fwd():
    for t in range(2):
        mfma32(RD + 8 * t, Ra + 4 * t, vF20)
        mfma32(RD + 8 * t + 4, Ra + 4 * t, vF20 + 4)
    fine('p1', 'mfma1 issued')
    for t, tmp in ((0, Rb), (1, Rc)):
        cmul(tmp, tmp + 4, RD + 8 * t, RD + 8 * t + 4, vTW + 8 * t, vTW + 8 * t + 4, -1, pk=PK[0] == '1' or (PK[0] == '2' and t == 1))
        pack4(Ra + 4 * t, tmp, tmp + 4)
    fine('p1', 'twiddled')
    for u in range(2):
        for ks in range(2):
            for e in range(2):
                d = RD + 8 * u + 4 * e
                mfma32(d, vF32 + 16 * u + 8 * e + 4 * ks, Ra + 4 * ks, d if ks else None)
    fine('p1', 'mfma2 issued')


def main_path():
    vZ, vSA, vCA = vVec, vVec + 10, vVec + 20
    gemv_addr()
    is_a()
    a('s_waitcnt lgkmcnt(0)')
    stamp('kernarg')
    a('s_cbranch_scc1 L_a')
    xloads()
    a('s_branch L_a0')
    a.label('L_a')
    gemv_issue(SC_)
    if MT and AX == 2:
        a(f's_cmp_lg_u32 s{sW}, 0')
        a('s_cbranch_scc1 L_a0')
        a(f'v_lshl_add_u32 v36, s{sBlk}, 8, v{vL4}')
        a('v_mov_b32 v37, 0')
        a(f'global_store_dword v36, v37, {sr(WS)} sc1')
    if AX == 0:
        xloads()
    a.label('L_a0')
    epoch_load()
    if S1 >= 1:
        m8(vM8F, False)
    if AX == 2:
        is_a()
        a('s_cbranch_scc0 L_a00')
        xloads()
        a.label('L_a00')
    if S1 >= 2:
        m8(vM8I, True)
    if S1 >= 3:
        setup_addr()
    is_a()
    a('s_cbranch_scc0 L_setup')
    a(f's_cmp_lg_u32 s{sW}, 0')
    a('s_cbranch_scc1 L_a1')
    if MT and AX != 2:
        a(f'v_lshl_add_u32 v36, s{sBlk}, 8, v{vL4}')
        a('v_mov_b32 v37, 0')
        a(f'global_store_dword v36, v37, {sr(WS)} sc1')
    a('s_waitcnt lgkmcnt(0)')
    epoch_tag(sV1)
    pub_setup(sV1)
    a.label('L_a1')
    gemv_compute('A', 5, at_c=xloads if AX == 1 else None, scalar=SC_)
    a(f's_cmp_lg_u32 s{sW}, 0')
    bar('B1')
    a(f's_cbranch_scc1 {"L_a2" if PB else "L_setup"}')
    publish('M')
    if PB:
        a.label('L_a2')
        bar('B1b')
    a.label('L_setup')
    a(f'''
    s_mov_b32 s{sHI}, 0xffff0000
    s_lshl_b32 s{sRow}, s{sW}, 8
    s_add_u32 s{sKey}, s{sRow}, s{sMe}
    s_mul_i32 s{sRow}, s{sKey}, 1280
    ''')
    if S1 < 1:
        m8(vM8F, False)
    if S1 < 2:
        m8(vM8I, True)
    if S1 < 3:
        setup_addr()
    setup_masks()
    is_a()
    a('s_cbranch_scc1 L_xw')
    is_b()
    a('s_cbranch_scc0 L_nb')
    gemv_issue()
    a.label('L_nb')
    bar('B0')
    a('s_waitcnt vmcnt(6)')
    a('s_cbranch_scc1 L_ln1')
    a('s_waitcnt vmcnt(0)')
    a.label('L_xw')
    a(f's_cmp_eq_u32 s{sW}, 0')
    a('s_waitcnt vmcnt(1)')
    a('s_cbranch_scc1 L_ln1')
    a('s_waitcnt vmcnt(0)')
    a.label('L_ln1')
    stamp('x in')
    for j in range(5):
        unpack(vXS + tm(j, 0), vXS + tm(j, 1), vXR + j)
    sum10(24, vXS)
    wave_sum([24], [sU0])
    a(f'v_mov_b32 v24, {INV640}')
    a(f'v_mul_f32 v26, s{sU0}, v24                ; mean')
    rbf(28, 'v26')
    a(f'v_readfirstlane_b32 s{sM1B}, v28')
    for h in range(0, 10, 2):
        a(f'v_pk_add_f32 {vr(vXS + h, 2)}, {vr(vXS + h, 2)}, v[28:29] op_sel:[0,0] op_sel_hi:[1,0] neg_lo:[0,1] neg_hi:[0,1]')
    dot10(30, vXS, vXS)
    wave_sum([30], [sU0])
    a(f'''
    v_sub_f32 v26, v26, v28
    v_mul_f32 v26, v26, v26
    v_fma_f32 v26, s{sU0}, v24, -v26
    ''')
    rstd_chain(26, 27)
    for j in range(5):
        for t in range(2):
            a(f'v_mul_f32 v{vZ + 2 * j + t}, v27, v{vXS + tm(j, t)}')
    a(f'''
    v_mov_b32 v23, 0
    v_mov_b32 v27, 0
    s_waitcnt lgkmcnt(0)
    ''')
    epoch_tag()
    tag_bytes()
    a(f'''
    s_mul_i32 s{sU0}, s{sMe}, {T1S}
    s_lshl_b32 s{sU1}, s{sW}, 8
    s_add_u32 s{sU0}, s{sU0}, s{sU1}
    ''')
    base_add(sBa, WS, sU0, T1_G)
    base_add(sBb, WS, sU0, T1_G + 4 * NJ * 64)
    a(f'''
    v_subrev_u32 v28, 64, v0                      ; u
    v_lshrrev_b32 v29, 4, v28
    v_lshlrev_b32 v29, 10, v29
    v_and_b32 v30, 0xf0, v{vL16}
    v_add_u32 v29, v29, v30
    s_mov_b32 s{sU2}, {MODA_L}
    ''')
    if NS:
        a(f'''
        v_add_u32 v29, 10240, v29
        v_bfe_u32 v31, v28, 5, 1
        v_lshlrev_b32 v31, 3, v31
        v_and_b32 v30, 31, v28
        v_lshl_add_u32 v31, v30, 5, v31
        v_lshrrev_b32 v28, 6, v28
        v_lshlrev_b32 v28, 10, v28
        v_add3_u32 v28, v28, v31, s{sU2}
        s_cmp_eq_u32 s{sW}, 3
        s_cselect_b32 s{sBc + 1}, 0, -1
        s_mov_b32 s{sBc}, -1
        ''')
    else:
        a(f'''
        v_cmp_le_u32 vcc, 160, v28
        v_mov_b32 v31, {8 - 160 * 32}
        v_cndmask_b32 v31, 0, v31, vcc
        v_lshlrev_b32 v28, 5, v28
        v_add3_u32 v28, v28, v31, s{sU2}
        ''')
    a(f'''
    v_add_u32 v{vE0 + 3}, s{sU2}, v{vL16}
    s_lshr_b32 s{sU1}, s{sW}, 1
    s_mul_i32 s{sU1}, s{sU1}, {4 * SA}
    s_and_b32 s{sT}, s{sW}, 1
    s_lshl_b32 s{sT}, s{sT}, 2
    s_add_u32 s{sU1}, s{sU1}, s{sT}
    s_add_u32 s{sU1}, s{sU1}, {XB1}
    ''')
    bar('BT')
    stamp('BT')
    tab_read(vF20, T_F20C)
    tab_read(vF20 + 4, T_F20S)
    for q in range(4):
        tab_read(vTW + 4 * q, T_TW1 + q)
    f32_read(T_F32A)
    tab_read(32, T_ADR)

    def expand():
        a(f'''
        s_waitcnt lgkmcnt(0)
        v_add_u32 v{vSg0}, s{sU1}, v32
        v_add_u32 v{vSg1}, 160, v{vSg0}
        ''')
        f32_expand(T_F32A, None, 33)
    def expand_if(a_side):
        L = newlabel('xp')
        is_a()
        a(f's_cbranch_scc{0 if a_side else 1} {L}')
        expand()
        a.label(L)
    if XP == 0:
        expand()
    if XP == 2:
        expand_if(False)

    def bgemv(after):
        L = newlabel('ng')
        is_b()
        a(f's_cbranch_scc0 {L}')
        gemv_compute('B', after)
        a.label(L)

    def behind(after):
        if not GB:
            bar('BP')
        if XP == 1:
            expand()
        if XP == 2:
            expand_if(True)
        if GB:
            bgemv(after)
            bar('BP')
    if not GB:
        bgemv(0)
    if BG:
        bar('BG')
    stamp('poll start')
    a(f's_sub_u32 s{sT}, s{sW}, 1')
    a(f's_cmp_lt_u32 s{sT}, {3 if NS else 5}')
    a('s_cbranch_scc1 L_mpoll')
    behind(0)
    a('s_branch L_b2')
    a.label('L_mpoll')
    if NS:
        a(f's_mov_b64 exec, {sr(sBc)}')
    poll([f'global_load_dwordx4 {vr(36 + 4 * p, 4)}, v29, {sr(WS)} offset:{256 * p} sc1' for p in range(4)],
         list(range(36, 52)), [52, 53, 54], empty='tag', between=lambda: (a('s_mov_b64 exec, -1' if (NS and (XP or GB)) else ''), behind(4),
                                                                       a(f's_mov_b64 exec, {sr(sBc)}' if (NS and (XP or GB)) else '')))
    a(f'''
    v_pk_add_f32 v[36:37], v[36:37], v[40:41]
    v_pk_add_f32 v[38:39], v[38:39], v[42:43]
    v_pk_add_f32 v[44:45], v[44:45], v[48:49]
    v_pk_add_f32 v[46:47], v[46:47], v[50:51]
    v_pk_add_f32 v[36:37], v[36:37], v[44:45]
    v_pk_add_f32 v[38:39], v[38:39], v[46:47]
    ''')
    if MR:
        a('v_cvt_pk_bf16_f32 v40, v36, v37')
        a('v_cvt_pk_bf16_f32 v41, v38, v39')
        unpack(36, 37, 40)
        unpack(38, 39, 41)
    if NS:
        a(f's_mov_b64 exec, {sr(sBc)}')
    a(f'ds_write2_b64 v28, v[36:37], v[38:39] offset0:0 offset1:2')
    if NS:
        a('s_mov_b64 exec, -1')
    a.label('L_b2')
    stamp('poll end')
    fine('p1', 'pre-B2')
    a('s_waitcnt lgkmcnt(0)')
    a('s_barrier                                   ; B2')
    stamp('B2 done (mod ready)')
    fine('p1', 'B2')
    assert MODA_L % 16 == 0
    if not NS:
        for j in range(5):
            a(f'ds_read_b128 {vr(vSA + 4 * j, 4)}, v{vE0 + 3} offset:{1024 * j}')
        for j in range(5):
            a(f's_waitcnt lgkmcnt({4 - j})')
            for t in range(2):
                a(f'v_fmac_f32 v{vSA + 4 * j + t}, v{vZ + 2 * j + t}, v{vSA + 4 * j + 2 + t}')
            if j in (1, 3):
                for t in range(2):
                    a(f'v_cvt_pk_bf16_f32 v{Ra + 4 * t + j // 2}, v{vSA + 4 * j - 4 + t}, v{vSA + 4 * j + t}')
        for t in range(2):
            a(f'v_cvt_pk_bf16_f32 v{Ra + 4 * t + 2}, v{vSA + 16 + t}, 0')
    else:
        a(f'ds_read_b128 {vr(vSA, 4)}, v{vE0 + 3}')
        a(f'ds_read_b128 {vr(vSA + 4, 4)}, v{vE0 + 3} offset:1024')
        a(f'ds_read_b64 {vr(vSA + 8, 2)}, v{vE0 + 3} offset:2048')
        for jj in range(3):
            a(f's_waitcnt lgkmcnt({2 - jj})')
            for h in range(2 if jj < 2 else 1):
                k = 4 * jj + 2 * h
                a(f'v_pk_mul_f32 {vr(vSA + k, 2)}, {vr(vSA + k, 2)}, {vr(vZ + k, 2)}')
            for t in range(2):
                a(f'v_cvt_pk_bf16_f32 v{Ra + 4 * t + jj}, v{vSA + 4 * jj + t}, {"v%d" % (vSA + 4 * jj + 2 + t) if jj < 2 else 0}')
    fine('p1', 'h packed')
    row_fwd()
    a(f's_mov_b64 exec, {sr(sM3)}')
    for u in range(2):
        pack4(Rb + 4 * u, RD + 8 * u, RD + 8 * u + 4)
        for r in (0, 2):
            a(f'ds_write2_b32 v{vSg1 if u else vSg0}, v{Rb + 4 * u + r}, v{Rb + 4 * u + r + 1} offset0:{80 * r} offset1:{80 * r + 80}')
    a('s_mov_b64 exec, -1')
    a(f'v_mov_b32 v{Rc + 3}, s{sTag}')
    a(f'v_mov_b32 v{Rc + 7}, s{sTag}')
    a(f's_cmp_ge_u32 s{sW}, 6')
    fine('p1', 'lds written')
    a('s_waitcnt lgkmcnt(0)')
    fine('p1', 'pre-B3')
    fine('x1', 'pre-B3')
    bar('B3')
    fine('p1', 'B3')
    fine('x1', 'B3')
    a('s_cbranch_scc1 L_t1done')
    for n in (3, 0, 1, 2):
        a(f'ds_read_b64 {vr(Ra + 2 * n, 2)}, v{vPair} offset:{8 * n}')
    for k, n in enumerate((3, 0, 1, 2)):
        a(f's_waitcnt lgkmcnt({3 - k})')
        mfma16(RD + 4 * n, vM8F, Ra + 2 * n)
    fine('p1', 'r8 issued')
    a(f's_mov_b64 exec, {sr(sM7)}')
    for j in range(2):
        a(f'v_cvt_pk_bf16_f32 v{Rc + 4 * j + 3}, v{RD + 12 + 2 * j}, v{RD + 12 + 2 * j + 1}')
    a(f's_mov_b64 exec, {sr(sLn)}')
    for j in range(2):
        for n in range(3):
            a(f'v_cvt_pk_bf16_f32 v{Rc + 4 * j + n}, v{RD + 4 * n + 2 * j}, v{RD + 4 * n + 2 * j + 1}')
        a(f'global_store_dwordx4 v{vS}, {vr(Rc + 4 * j, 4)}, {sr(sBb if j else sBa)} sc1')
    a('s_mov_b64 exec, -1')
    a.label('L_t1done')
    stamp('T1 stored')
    if PROBE == 'rel':
        a(f'''
        s_lshl_b32 s{sT}, s{sW}, 8
        s_or_b32 s{sT}, s{sT}, s2
        s_cmp_lt_u32 s{sT}, 8
        s_cbranch_scc0 L_norel
        s_lshl_b32 s{sT}, s2, 7
        s_add_u32 s{sT}, s{sT}, {DIAG_G}
        v_mov_b32 v36, s{sT}
        v_mov_b32 v37, s{sTS}
        global_store_dword v36, v37, {sr(WS)} sc1
        L_norel:
        ''')
    fine('p1', 'stored')
    fine('x1', 'stored')

    def p3_mats():
        for q in range(3):
            tab_read(vF20 + 4 * q, T_F20I + q)
        f32_read(T_F32B)
        tab_read(40, T_ADR)
        a('s_waitcnt lgkmcnt(0)')
        f32_expand(T_F32B, 42, 43)
    a(f's_cmp_ge_u32 s{sIdx}, {NJ}')
    a('s_cbranch_scc1 L_idle')
    late.append(lambda: (a.label('L_idle'), bar('B3b'), p3_mats() if MATS else None, a('s_branch L_p3prep')))
    if MATS == 1:
        p3_mats()
    vWr = vVec
    for k in range(16):
        a(f'v_mov_b32 v{vWr + k}, 0')
    SC = 2.0 / (2048 * 640) / (ALPHA[16] ** 4 * ALPHA[20] ** 2 * ALPHA[32] ** 2)
    a(f'''
    v_and_b32 v36, 15, v{vL}
    v_and_b32 v37, 48, v{vL}
    v_lshl_add_u32 v36, v37, 2, v36               ; 64g + i
    v_mul_u32_u24 v{vE0 + 3}, 80, v36
    s_lshl_b32 s{sU1}, s{sW}, 3
    s_add_u32 s{sU1}, s{sU1}, {XB2}
    v_add_u32 v{vE0 + 3}, s{sU1}, v{vE0 + 3}
    v_lshlrev_b32 v36, 5, v36
    v_add_u32 v36, {WST}, v36
    v_and_b32 v39, 4, v{vL}
    v_lshlrev_b32 v39, 2, v39
    v_lshlrev_b32 v{vS}, 7, v37
    v_and_b32 v37, 0xf0, v{vL16}
    v_add_u32 v{vS}, v{vS}, v37
    s_mul_i32 s{sU0}, s{sX}, {NJ}
    s_add_u32 s{sU0}, s{sU0}, s{sIdx}
    s_lshl_b32 s{sU1}, s{sU0}, 6
    s_mul_i32 s{sT}, s{sW}, {4 * T1S}
    s_add_u32 s{sU1}, s{sU1}, s{sT}
    s_mul_i32 s{sU0}, s{sU0}, {T2S}
    s_lshl_b32 s{sT}, s{sW}, 8
    s_add_u32 s{sU0}, s{sU0}, s{sT}
    ''')
    if NS:
        a(f'''
        s_mul_i32 s{sU2}, s{sIdx}, 120
        s_lshl_b32 s{sT}, s{sW}, 4
        s_add_u32 s{sU2}, s{sU2}, s{sT}
        s_add_u32 s{sU2}, s{sU2}, {SAF}
        v_mov_b32 v140, s{sU2}
        ''')
    base_add(sBa, WS, sU1, T1_G)
    base_add(sBb, WS, sU1, T1_G + 128 * T1S)
    base_add(58, WS, sU0, T2_G)
    base_add(60, WS, sU0, T2_G + 8192)

    def w_setup(parts=(0, 1)):
      if 0 in parts:
        for q in range(2):
            tab_read(vTW + 4 * q, T_F16 + q)
            tab_read(vTW + 8 + 4 * q, T_TW2 + q)
        a(f'''
        s_mul_i32 s{sU0}, s{sIdx}, 15
        s_min_u32 s{sU1}, s{sU0}, 306
        s_add_u32 s{sU2}, s{sU1}, s{sX}
        s_and_b32 s{sU2}, s{sU2}, 1
        s_sub_u32 s{sU1}, s{sU1}, s{sU2}
        s_lshl_b32 s{sT}, s{sW}, 1
        s_add_u32 s{sU0}, s{sU0}, s{sT}
        ''')
      if True:
        for s in parts:
            gam = sU3
            a(f'''
            s_add_u32 s{sU2}, s{sU0}, {s}
            s_sub_u32 s{sT}, s{sU2}, s{sU1}
            s_min_u32 s{sT}, s{sT}, 15
            s_lshl_b32 s{sT}, s{sT}, 1
            v_xor_b32 v37, s{sT}, v39
            v_add_u32 v37, v37, v36
            ''')
            for arr in range(2):
                for r in range(4):
                    a(f'ds_read_u16_d16_hi v{vWr + 8 * s + 4 * arr + r}, v37 offset:{arr * 8192 + r * 512}')
            a(f'''
            s_mul_i32 s{sT}, s{sU2}, 0x199a
            s_lshr_b32 s{sT}, s{sT}, 16
            s_mul_i32 s{sT}, s{sT}, 10
            s_mov_b32 s{gam}, {hex(f2u(SC))}
            s_cmp_eq_u32 s{sT}, s{sU2}
            s_cselect_b32 s{gam}, {hex(f2u(SC / 2))}, s{gam}
            s_waitcnt lgkmcnt(0)
            ''')
            for r in range(8):
                a(f'v_mul_f32 v{vWr + 8 * s + r}, s{gam}, v{vWr + 8 * s + r}')

    tl = [f'global_load_dwordx4 {vr(Ra, 4)}, v{vPoll}, {sr(sBa)} sc1', f'global_load_dwordx4 {vr(Ra + 4, 4)}, v{vPoll}, {sr(sBb)} sc1']
    fine('x1', 'pre-B3b')
    bar('B3b')
    fine('x1', 'B3b')
    if WFIRST:
        w_setup((0, 1) if WFIRST == 1 else (0,))
    fine('x1', 'wsetup')
    if DR1:
        a('s_waitcnt vmcnt(0)')
    if AL1:
        bar('B3c')
    fine('x1', 'drained')
    if PACE1:
        a(f's_sleep {PACE1}')
    stamp('B3b done')
    tpoll(tl, between=lambda: (None if WFIRST == 1 else w_setup((1,) if WFIRST else (0, 1)), p3_mats() if MATS == 2 else None, fine('x1', 'behind')))
    fine('p2', 'T1 in')
    fine('x1', 'T1 in')
    a(f'ds_write_b128 v{vE0 + 4}, {vr(Ra, 4)}')
    a(f'ds_write_b128 v{vE0 + 4}, {vr(Ra + 4, 4)} offset:10240')
    a(f's_cmp_eq_u32 s{sW}, 7')
    a('s_waitcnt lgkmcnt(0)')
    bar('B4')
    stamp('B4 done (T1 in)')
    fine('p2', 'B4')
    fine('x1', 'B4')
    a('s_cbranch_scc1 L_p2_one')
    Fre, Fim, Tc, Ts = vTW, vTW + 4, vTW + 8, vTW + 12
    tmps = (Rb, Rc)

    def p2(ns):
        p2pk = PK[1] == '1'
        if ns == 2:
            for j in range(4):
                a(f'ds_read_b64 {vr(Rb + 2 * j, 2)}, v{vE0 + 3} offset:{1280 * j}')
            for h in range(2):
                a(f's_waitcnt lgkmcnt({2 - 2 * h})')
                for s in range(2):
                    a(f'v_pk_mov_b32 {vr(Ra + 4 * s + 2 * h, 2)}, {vr(Rb + 4 * h, 2)}, {vr(Rb + 4 * h + 2, 2)} op_sel:[{s},{s}]')
        else:
            a(f'ds_read2st64_b32 {vr(Ra, 2)}, v{vE0 + 3} offset0:0 offset1:5')
            a(f'ds_read2st64_b32 {vr(Ra + 2, 2)}, v{vE0 + 3} offset0:10 offset1:15')
            a('s_waitcnt lgkmcnt(0)')
        fine('p2', 'read')
        for s in range(ns):
            mfma32(RD + 8 * s, Ra + 4 * s, Fre)
            mfma32(RD + 8 * s + 4, Ra + 4 * s, Fim)
        fine('p2', 's1')
        if NS:
            a('ds_read2_b64 v[136:139], v140 offset0:0 offset1:1')
        def stage(cq, sign, swap, mm):
            lo = lambda s: tmps[s] + (4 if swap else 0)
            hi = lambda s: tmps[s] + (0 if swap else 4)
            if ns == 1 or not P2ORD:
                for s in range(ns):
                    cmul(tmps[s], tmps[s] + 4, RD + 8 * s, RD + 8 * s + 4, *cq(s), sign, pk=p2pk)
                    pack4(Ra + 4 * s, lo(s), hi(s))
                    mm(s, 0)
                    mm(s, 1)
                return
            cmul(tmps[0], tmps[0] + 4, RD, RD + 4, *cq(0), sign, pk=p2pk, head=P2ORD - 1)
            cmul(tmps[1], tmps[1] + 4, RD + 8, RD + 12, *cq(1), sign, pk=p2pk)
            pack4(Ra, lo(0), hi(0))
            cv = lambda r: a(f'v_cvt_pk_bf16_f32 v{Ra + 4 + r}, v{lo(1) + r}, v{hi(1) + r}')
            cv(0)
            cv(1)
            mm(0, 0)
            cv(2)
            cv(3)
            mm(0, 1)
            mm(1, 0)
            mm(1, 1)
        stage(lambda s: (Tc, Ts), -1, False, lambda s, k: mfma32(RD + 8 * s + 4 * k, Fim if k else Fre, Ra + 4 * s))
        fine('p2', 's2')
        if NS:
            Lx, Ly = newlabel('sa'), newlabel('sa')
            a(f's_cmp_eq_u32 s{sX}, 0')
            a(f's_cbranch_scc1 {Lx}')
            a.label(Ly)

            def add_sa(ns=ns, Lx=Lx, Ly=Ly):
                a.label(Lx)
                a('s_mov_b64 exec, 1')
                a('s_waitcnt lgkmcnt(0)')
                for s_ in range(ns):
                    for e in range(2):
                        a(f'v_fmac_f32 v{RD + 8 * s_ + 4 * e}, {hex(f2u(2048 * ALPHA[16] ** 2))}, v{136 + 2 * s_ + e}')
                a('s_mov_b64 exec, -1')
                a(f's_branch {Ly}')
            late2.append(add_sa)
        stage(lambda s: (vWr + 8 * s, vWr + 8 * s + 4), +1, True, lambda s, k: mfma32(RD + 8 * s + 4 * k, Ra + 4 * s, Fre if k else Fim))
        fine('p2', 's3')
        stage(lambda s: (Tc, Ts), +1, True, lambda s, k: mfma32(RD + 8 * s + 4 * k, Fre if k else Fim, Ra + 4 * s))
        fine('p2', 's4')
        for s in range(ns):
            pack4(Rb + s, RD + 8 * s, RD + 8 * s + 4, step=ns)
        if ns == 2:
            for r in range(4):
                a(f'ds_write_b64 v{vE0 + 3}, {vr(Rb + 2 * r, 2)} offset:{1280 * r}')
        else:
            a(f'ds_write2st64_b32 v{vE0 + 3}, v{Rb}, v{Rb + 1} offset0:0 offset1:5')
            a(f'ds_write2st64_b32 v{vE0 + 3}, v{Rb + 2}, v{Rb + 3} offset0:10 offset1:15')
        a('s_waitcnt lgkmcnt(0)')
    p2(2)
    a.label('L_b5')
    fine('p2', 'pre-B5')
    fine('x2', 'pre-B5')
    bar('B5')
    fine('p2', 'B5')
    fine('x2', 'B5')
    a(f'ds_read_b128 {vr(Rb, 4)}, v{vE0 + 4}')
    a(f'ds_read_b128 {vr(Rb + 4, 4)}, v{vE0 + 4} offset:10240')
    a('s_waitcnt lgkmcnt(1)')
    a(f'global_store_dwordx4 v{vS}, {vr(Rb, 4)}, {sr(58)} sc1')
    a('s_waitcnt lgkmcnt(0)')
    a(f'global_store_dwordx4 v{vS}, {vr(Rb + 4, 4)}, {sr(60)} sc1')
    stamp('T2 stored')
    fine('p2', 'stored')
    fine('x2', 'stored')
    late.append(lambda: (a.label('L_p2_one'), p2(1), a('s_branch L_b5')))
    a.label('L_p3prep')
    vGA, vVV, vGC, vGS = vVec, vVec + 10, vVec + 20, vVec + 30
    vMB = vE0 + 6
    for q in range(4):
        tab_read(vTW + 4 * q, T_TW3 + q)
    a(f'''
    v_add_u32 v{vMB}, {MODB_L}, v{vL4}
    v_bfe_u32 v36, v{vL}, 2, 2
    v_lshrrev_b32 v37, 4, v{vL}
    v_mad_u32_u24 v36, v37, {NJ}, v36
    v_and_b32 v38, 48, v{vL16}
    v_mul_u32_u24 v36, {T2S}, v36
    v_add_u32 v{vPoll}, v36, v38
    v_mul_u32_u24 v37, {4 * SA}, v37
    v_add_u32 v37, {XB1 + 8 * 361}, v37
    v_cndmask_b32 v{vPairX}, v{vPair}, v37, {sr(sM8)}
    s_and_b64 {sr(sM8)}, {sr(sM8)}, {sr(sLn)}
    s_lshl_b32 s{sU1}, s{sMe}, 6
    s_min_u32 s{sT}, s{sW}, 5
    s_mul_i32 s{sT}, s{sT}, {4 * T2S}
    s_add_u32 s{sU1}, s{sU1}, s{sT}
    ''')
    base_add(sBa, WS, sU1, T2_G)
    base_add(sBb, WS, sU1, T2_G + 4 * NJ * T2S)
    base_add(sXrow, OUTP, sRow)
    a(f's_mul_i32 s{sU0}, s{sMe}, {REC_STRIDE}')
    base_add(sRec, WS, sU0, REC_G)
    a(f'''
    v_mov_b32 v{vE0 + 7}, {hex(f2u(-1.0 / 640))}
    v_mov_b32 v{vM8F}, {hex(f2u(-1e-5))}
    v_mov_b32 v{vE0 + 3}, {KEYL}
    v_mov_b32 v{vE0 + 4}, 1
    ''')

    def p3_setup(part=3):
      raw, GB = Rb, Rb
      if part & 1:
        raw = Rb
        for k in range(0, 24, 2):
            a(f'ds_read2st64_b32 {vr(raw + k, 2)}, v{vMB} offset0:{k} offset1:{k + 1}')
        a(f'ds_read_b32 v{raw + 24}, v{vMB} offset:{24 * 256}')
        a('s_waitcnt lgkmcnt(0)')
        for vec, dst in ((0, vGA), (1, vGS), (2, vGC), (4, vVV)):
            for j in range(5):
                unpack(dst + tm(j, 0), dst + tm(j, 1), raw + 5 * vec + j)
        GB = Rb
        for j in range(5):
            unpack(GB + tm(j, 0), GB + tm(j, 1), raw + 15 + j)
      if part & 2:
        t0, t1, t2 = Rc + 2, Rc + 4, Rc + 6
        dot10(t0, vVV, vGS)
        for h in range(0, 10, 2):
            a(f'v_pk_mul_f32 {vr(vVV + h, 2)}, {vr(vVV + h, 2)}, {vr(vGC + h, 2)}')
        sum10(t1, vVV)
        a(f'v_mov_b32 v{t2}, s{sM1B}')
        for h in range(0, 10, 2):
            a(f'v_pk_mul_f32 {vr(vGC + h, 2)}, {vr(vGC + h, 2)}, {vr(GB + h, 2)}')
            a(f'v_pk_fma_f32 {vr(vGS + h, 2)}, {vr(vGS + h, 2)}, {vr(GB + h, 2)}, {vr(t2, 2)} op_sel:[0,0,0] op_sel_hi:[1,1,0]')
        wave_sum([t1, t0], [sV1, sV2])

    if MATS == 0:
        p3_mats()
    a('s_waitcnt lgkmcnt(0)')
    bar('B5b')
    stamp('B5b done')
    fine('p2', 'B5b')
    fine('x2', 'B5b')
    if P3FIRST == 2:
        p3_setup(1)
    if P3FIRST == 1:
        p3_setup()
    else:
        a(f's_cmp_ge_u32 s{sIdx}, {NJ}')
        a(f's_cselect_b32 s{sCand}, 8, s{sW}')
        a(f's_cmp_lt_u32 s{sCand}, 6')
        a('s_cbranch_scc1 L_p3later')
        p3_setup(2 if P3FIRST else 3)
        a.label('L_p3later')
    fine('x2', 'p3setup')
    if DR2:
        a('s_waitcnt vmcnt(0)')
    fine('x2', 'drained')
    if PACE2:
        a(f's_sleep {PACE2}')
    if not AL2:
        a(f's_cmp_ge_u32 s{sIdx}, {NJ}')
        a('s_cbranch_scc0 L_nob5c')
    bar('B5c')
    a.label('L_nob5c')
    a(f's_cmp_ge_u32 s{sW}, 6')
    a('s_cbranch_scc1 L_b6')
    stamp('T2 poll')
    fine('p2', 'T2 poll')

    def p3_behind():
        a(f's_cmp_lt_u32 s{sCand}, 6')
        a('s_cbranch_scc0 L_p3done')
        p3_setup(2 if P3FIRST else 3)
        a.label('L_p3done')
    tpoll(tl, lanes_s=sr(sLn), between=None if P3FIRST == 1 else p3_behind)
    stamp('T2 in')
    fine('p3', 'T2 in')
    fine('x2', 'T2 in')
    a(f'''
    v_swap_b32 v{Ra + 1}, v{Ra + 4}
    v_swap_b32 v{Ra + 3}, v{Ra + 6}
    ''')
    for n, r in ((0, Ra), (1, Ra + 4), (2, Ra + 2), (3, Ra + 6)):
        mfma16(RD + 4 * n, vM8I, r)
    for n in range(4):
        for jj in range(2):
            a(f'v_cvt_pk_bf16_f32 v{Rb + 2 * n + jj}, v{RD + 4 * n + 2 * jj + 1}, v{RD + 4 * n + 2 * jj}')
        a(f'ds_write_b64 v{vPairX if n == 3 else vPair}, {vr(Rb + 2 * n, 2)} offset:{8 * n}')
    a('s_waitcnt lgkmcnt(0)')
    a.label('L_b6')
    prio(2, True)
    fine('p3', 'pre-B6')
    bar('B6')
    fine('p3', 'B6')
    fine('x2', 'B6')
    for u in range(2):
        for r in (0, 2):
            a(f'ds_read2_b32 {vr(Rb + 4 * u + r, 2)}, v{vSg1 if u else vSg0} offset0:{80 * r} offset1:{80 * r + 80}')
    Y = RD
    if not P3O:
        for ks in range(2):
            a(f's_waitcnt lgkmcnt({2 - 2 * ks})')
            for t in range(2):
                for e in range(2):
                    d = RD + 8 * t + 4 * e
                    mfma32(d, Rb + 4 * ks, vF32 + 16 * t + 8 * (1 - e) + 4 * ks, d if ks else None)
        fine('p3', 'mfma1 issued')
        if PRIO[2] == '1':
            prio(2, False)
        for t, tmp in ((0, Ra), (1, Rc)):
            cmul(tmp, tmp + 4, RD + 8 * t, RD + 8 * t + 4, vTW + 8 * t, vTW + 8 * t + 4, +1, pk=PK[2] == '1' or (PK[2] == '2' and t == 1), n=3)
            pack4(Rb + 4 * t, tmp, tmp + 4, n=3)
            a(f'v_mov_b32 v{Rb + 4 * t + 3}, 0')
        Y = RD
        mfma32(Y, vF20, Rb)
        mfma32(Y + 8, vF20 + 4, Rb)
        mfma32(Y + 4, vF20, Rb + 4)
        mfma32(Y + 8, vF20 + 8, Rb + 4, Y + 8)
    else:
        def m1(t, ks, e):
            d = RD + 8 * t + 4 * e
            mfma32(d, Rb + 4 * ks, vF32 + 16 * t + 8 * (1 - e) + 4 * ks, d if ks else None)
        a('s_waitcnt lgkmcnt(2)')
        m1(0, 0, 0)
        m1(0, 0, 1)
        a('s_waitcnt lgkmcnt(0)')
        m1(0, 1, 0)
        m1(0, 1, 1)
        for ks in range(2):
            for e in range(2):
                m1(1, ks, e)
        fine('p3', 'mfma1 issued')
        B0_, B1_ = vF32, vF32 + 4
        cmul(Ra, Ra + 4, RD, RD + 4, vTW, vTW + 4, +1, pk=False, n=3)
        a(f'v_mov_b32 v{B0_ + 3}, 0')
        a(f'v_mov_b32 v{B1_ + 3}, 0')
        pack4(B0_, Ra, Ra + 4, n=3)
        Yx = Rb
        mfma32(Y, vF20, B0_)
        mfma32(Yx, vF20 + 4, B0_)
        cmul(Rc, Rc + 4, RD + 8, RD + 12, vTW + 8, vTW + 12, +1, pk=False, n=3)
        pack4(B1_, Rc, Rc + 4, n=3)
        mfma32(Y + 4, vF20, B1_)
        mfma32(Y + 8, vF20 + 8, B1_, Yx)
    fine('p3', 'mfma2 issued')
    if PRIO[2] == '2':
        prio(2, False)
    X1 = vXS
    s1, s2, s3, s4 = Ra, Ra + 1, Ra + 2, Ra + 3
    if not PKS:
        for k in range(10):
            a(f'v_fmac_f32 v{X1 + k}, v{Y + k}, v{vGA + k}')
            if k == 1:
                a(f'v_mul_f32 v{s2}, v{X1}, v{X1}')
                a(f'v_mul_f32 v{s3}, v{X1}, v{vVV}')
            if k >= 2:
                a(f'v_add_f32 v{s1}, v{X1 + k - 1}, v{X1 if k == 2 else s1}')
                a(f'v_fmac_f32 v{s2}, v{X1 + k - 1}, v{X1 + k - 1}')
                a(f'v_fmac_f32 v{s3}, v{X1 + k - 1}, v{vVV + k - 1}')
        a(f'v_fmac_f32 v{s3}, v{X1 + 9}, v{vVV + 9}')
        a(f'v_add_f32 v{s1}, v{X1 + 9}, v{s1}')
        a(f'v_fmac_f32 v{s2}, v{X1 + 9}, v{X1 + 9}')
    else:
        p1_, p2_, p3_ = Rc, Rc + 2, Rc + 4
        for h in range(0, 10, 2):
            a(f'v_pk_fma_f32 {vr(X1 + h, 2)}, {vr(Y + h, 2)}, {vr(vGA + h, 2)}, {vr(X1 + h, 2)}')
        a(f'v_pk_mul_f32 {vr(p3_, 2)}, {vr(X1, 2)}, {vr(vVV, 2)}')
        a(f'v_pk_add_f32 {vr(p1_, 2)}, {vr(X1, 2)}, {vr(X1 + 2, 2)}')
        a(f'v_pk_mul_f32 {vr(p2_, 2)}, {vr(X1, 2)}, {vr(X1, 2)}')
        for h in (2, 4, 6, 8):
            a(f'v_pk_fma_f32 {vr(p3_, 2)}, {vr(X1 + h, 2)}, {vr(vVV + h, 2)}, {vr(p3_, 2)}')
            if h > 2:
                a(f'v_pk_add_f32 {vr(p1_, 2)}, {vr(p1_, 2)}, {vr(X1 + h, 2)}')
            a(f'v_pk_fma_f32 {vr(p2_, 2)}, {vr(X1 + h, 2)}, {vr(X1 + h, 2)}, {vr(p2_, 2)}')
        a(f'v_add_f32 v{s3}, v{p3_}, v{p3_ + 1}')
        a(f'v_add_f32 v{s1}, v{p1_}, v{p1_ + 1}')
        a(f'v_add_f32 v{s2}, v{p2_}, v{p2_ + 1}')
    fine('p3', 'partials')
    a(f'''
    v_permlane32_swap_b32 v{s3}, v{s4}
    v_permlane32_swap_b32 v{s1}, v{s2}
    v_add_f32 v{s3}, v{s3}, v{s4}
    v_add_f32 v{s1}, v{s1}, v{s2}
    v_permlane16_swap_b32 v{s1}, v{s3}
    v_add_f32 v{s1}, v{s1}, v{s3}
    ''')
    for c in ('row_ror:8', 'row_ror:4', 'row_ror:2', 'row_ror:1'):
        dpp('v_add_f32', s1, c)
    a(f'''
    v_readlane_b32 s{sU0}, v{s1}, 0
    v_readlane_b32 s{sU2}, v{s1}, 32
    v_readlane_b32 s{sU3}, v{s1}, 16
    ''')
    fine('p3', 'reduced')
    k0 = Rc
    cE = vM8F
    cI, cK, cT, cO = vE0 + 7, vE0 + 3, Ra + 7, vE0 + 4
    m = Ra + 1
    a(f'''
    v_mul_f32 v{m + 2}, s{sU0}, v{cI}
    v_fma_f32 v{k0}, v{m + 2}, v{m + 2}, v{cE}
    v_mov_b32 v{m + 3}, s{sU3}
    v_fmac_f32 v{k0}, s{sU2}, v{cI}
    v_fmac_f32 v{m + 3}, s{sV1}, v{m + 2}
    v_sub_f32 v{m + 1}, v{cE}, v{k0}              ; var
    v_rsq_f32_e64 v{k0}, -v{k0}
    v_mov_b32 v{cT}, s{sTag}
    s_mov_b64 exec, 1
    v_fma_f32 v{m + 3}, v{m + 3}, v{k0}, s{sV2}   ; r
    v_ashrrev_i32 v{m + 4}, 31, v{m + 3}
    v_or_b32 v{m + 4}, 0x80000000, v{m + 4}
    v_xor_b32 v{m + 3}, v{m + 3}, v{m + 4}
    v_and_b32 v{m + 3}, 0xfffff800, v{m + 3}
    v_or_b32 v{m + 3}, s{sKey}, v{m + 3}
    ds_max_u32 v{cK}, v{m + 3}
    ds_add_rtn_u32 v{m + 4}, v{cK}, v{cO} offset:8
    ds_read_b32 v{Ra + 6}, v{cK}
    v_readfirstlane_b32 s{sKey}, v{m + 3}
    s_waitcnt lgkmcnt(0)
    v_cmpx_eq_u32 vcc, 7, v{m + 4}
    s_cbranch_execz L_notlast
    global_store_dwordx2 v{vL4}, {vr(Ra + 6, 2)}, {sr(sRec)} sc1
    L_notlast:
    s_mov_b64 exec, -1
    ''')
    fine('p3', 'key')
    bar('B7')
    fine('p3', 'B7')
    fine('e', 'key poll')
    a(f'''
    ds_read_b32 v{Ra + 6}, v{cK}
    v_sub_f32 v{m + 2}, s{sM1B}, v{m + 2}
    ''')
    rbf(m + 2, f'v{m + 2}')
    rstd_chain(m + 1, k0)
    a(f'''
    v_sub_f32 v{m + 2}, s{sM1B}, v{m + 2}
    v_mul_f32 v{k0 + 1}, v{m + 2}, v{k0}
    ''')
    ZN = vGA
    for h in range(0, 10, 2):
        a(f'v_pk_fma_f32 {vr(ZN + h, 2)}, {vr(X1 + h, 2)}, {vr(k0, 2)}, {vr(k0, 2)} op_sel:[0,0,1] op_sel_hi:[1,0,1]')
    vO = vXS

    def out_math():
        for h in range(0, 10, 2):
            a(f'v_pk_add_f32 {vr(Y + h, 2)}, {vr(X1 + h, 2)}, {vr(vGS + h, 2)}')
        for h in range(0, 10, 2):
            a(f'v_pk_fma_f32 {vr(Y + h, 2)}, {vr(ZN + h, 2)}, {vr(vGC + h, 2)}, {vr(Y + h, 2)}')
        if opt('inject', None):
            if opt('injall', None):
                for k in range(10):
                    a(f'v_mul_f32 v{Y + k}, {hex(f2u(1 + float(opt("inject", 0))))}, v{Y + k}')
            else:
                a(f's_cmp_eq_u32 s{sRow}, 0')
                a('s_cselect_b64 exec, 1, 0')
                a(f'v_add_f32 v{Y}, {hex(f2u(float(opt("inject", 0))))}, v{Y}')
                a('s_mov_b64 exec, -1')
        for j in range(5):
            a(f'v_cvt_pk_bf16_f32 v{vO + j}, v{Y + tm(j, 0)}, v{Y + tm(j, 1)}')
    a(f'''
    s_waitcnt lgkmcnt(0)
    v_readfirstlane_b32 s{sU0}, v{Ra + 6}
    s_cmp_eq_u32 s{sU0}, s{sKey}
    s_cselect_b32 s{sCand}, 1, 0
    s_cbranch_scc1 L_cand
    ''')
    out_math()
    a('s_branch L_keys')
    a.label('L_cand')
    raw, SB, CB, H, Bq = 60, 70, 80, 92, 108
    for k in range(0, 10, 2):
        a(f'ds_read2st64_b32 {vr(raw + k, 2)}, v{vMB} offset0:{5 + k} offset1:{6 + k}')
    for qd in range(2):
        a(f'v_mov_b32 v{H + 4 * qd + 3}, s{sTag}')
    a('s_waitcnt lgkmcnt(0)')
    for j in range(5):
        unpack(SB + tm(j, 0), SB + tm(j, 1), raw + j)
        unpack(CB + tm(j, 0), CB + tm(j, 1), raw + 5 + j)
    for h in range(0, 10, 2):
        a(f'v_pk_fma_f32 {vr(SB + h, 2)}, {vr(ZN + h, 2)}, {vr(CB + h, 2)}, {vr(SB + h, 2)}')
    for j in range(5):
        a(f'v_cvt_pk_bf16_f32 v{H + j + (j >= 3)}, v{SB + tm(j, 0)}, v{SB + tm(j, 1)}')
    for qd in range(2):
        a(f'global_store_dwordx4 v{vL16}, {vr(H + 4 * qd, 4)}, {sr(sRec)} offset:{REC_H2 + 1024 * qd} sc1')
    out_math()

    def out_row():
        if 'o' in XX:
            return
        for j in range(5):
            a(f'global_store_dword v{vL4}, v{vO + j}, {sr(sXrow)} offset:{256 * j} sc1')
    if OE != 1:
        out_row()
    a.label('L_keys')
    if OE == 1:
        out_row()
    if OE == 3:
        a(f'''
        s_cmp_ge_u32 s{sRi}, 20
        s_cselect_b32 s{sT}, 1, s{sCand}
        s_cmp_lg_u32 s{sT}, 0
        s_cbranch_scc1 L_noout
        ''')
        out_row()
        a.label('L_noout')
    stamp('key out')
    fine('p3', 'key out')
    bar('B7b (candidate stores are out, the helpers have ended)')
    if OE == 0:
        a(f'''
        s_cmp_ge_u32 s{sRi}, 20
        s_cselect_b32 s{sT}, 1, s{sCand}
        s_cmp_lg_u32 s{sT}, 0
        s_cbranch_scc1 L_noout
        ''')
        out_row()
        a('s_branch L_fin')
        a.label('L_noout')
    if OE == 2:
        a(f's_cmp_lg_u32 s{sCand}, 0')
        a('s_cbranch_scc1 L_noout')
        out_row()
        a.label('L_noout')
    vEW, vFW = 48, 88
    vRed, vRd, vRow = 15, 16, 17
    a(f'''
    s_cmp_lt_u32 s{sRi}, 20
    s_cbranch_scc1 L_no_ew
    s_mul_i32 s{sT}, s{sW}, 5120
    s_add_u32 s{sT}, s{sT}, {EW}
    v_and_b32 v{Rb}, 0x3c0, v{vL16}
    v_and_b32 v{Rb + 1}, 24, v{vE0}
    v_add3_u32 v{Rb}, v{Rb}, v{Rb + 1}, s{sT}
    s_mul_i32 s{sT}, s{sW}, 320
    s_add_u32 s{sT}, s{sT}, {FW}
    v_min_u32 v{vE0 + 1}, {39 * 8}, v{vE0}
    v_add_u32 v{vE0 + 1}, s{sT}, v{vE0 + 1}
    ''')
    for j in range(5):
        if j in (2, 4):
            a(f'v_add_u32 v{Rb}, 2048, v{Rb}')
        a(f'ds_read2_b64 {vr(vEW + 20 + 4 * j, 4)}, v{Rb} offset0:{128 * (j & 1)} offset1:{128 * (j & 1) + 4}')
    a(f'''
    v_and_b32 v{vRed}, 3, v{vL}
    v_lshlrev_b32 v{vRed}, 6, v{vRed}
    v_and_b32 v{vRd}, 48, v{vL}
    v_add_u32 v{vRed}, v{vRd}, v{vRed}
    s_lshr_b32 s{sU1}, s{sW}, 2
    s_lshl_b32 s{sU1}, s{sU1}, 8
    s_and_b32 s{sT}, s{sW}, 3
    s_lshl_b32 s{sT}, s{sT}, 2
    s_add_u32 s{sU1}, s{sU1}, s{sT}
    s_add_u32 s{sU1}, s{sU1}, {RED}
    v_add_u32 v{vRed}, s{sU1}, v{vRed}
    v_and_b32 v{vRd}, 0xf0, v{vL16}
    v_bfe_u32 v{vRow}, v0, 2, 6                    ; lane' = (t'>>1)>>1
    v_lshlrev_b32 v{vRow}, 4, v{vRow}
    s_mov_b32 s{sU2}, 0x05040100
    s_mov_b32 s{sU3}, 0x07060302
    v_add_u32 v{vRow}, {REC_G + REC_H2}, v{vRow}
    v_mov_b32 v18, 0xffffff00
    s_mul_i32 s{sU1}, s{sX}, 12
    s_add_u32 s{sU1}, s{sU1}, s{sRi}
    s_mul_i32 s{sU1}, s{sU1}, {PY_STRIDE}
    s_mul_i32 s{sT}, s{sW}, 640
    s_add_u32 s{sU1}, s{sU1}, s{sT}
    ''')
    base_add(sBb, WS, sU1, PY_G - 20 * PY_STRIDE)
    a('s_waitcnt lgkmcnt(0)')
    if KD == 1:
        bar('B7c')
    if OE == 3:
        bar('B7d')
        a(f's_cmp_lg_u32 s{sCand}, 0')
        a('s_cbranch_scc1 L_noout5')
        out_row()
        a.label('L_noout5')
    for j in range(5):
        r0 = vEW + 20 + 4 * j
        for c in range(4):
            a(f'v_perm_b32 v{vEW + 4 * j + c}, v{r0 + 2 + c // 2}, v{r0 + c // 2}, s{sU3 if c & 1 else sU2}')
    for k in range(4):
        a(f'v_mov_b32 v{36 + k}, 0')

    def fw_unpack():
        a(f's_cmp_ge_u32 s{sW}, 4')
        a('s_cbranch_scc1 L_no_fw')
        for u in range(16):
            if u == 8:
                a('s_waitcnt lgkmcnt(0)')
            a(f'ds_read_b64 {vr(vFW + 32 + 2 * u, 2)}, v{vE0 + 1} offset:{1280 * u}')
        a('s_waitcnt lgkmcnt(0)')
        for k in range(32):
            unpack(vFW + 2 * k, vFW + 2 * k + 1, vFW + 32 + k)
        a.label('L_no_fw')
    if not FWL:
        fw_unpack()
    a.label('L_no_ew')
    a(f's_cmp_eq_u32 s{sCand}, 0')
    a('s_cbranch_scc1 L_nobase')
    a(f'''
    v_mov_b32 v40, v{vO}
    v_mov_b32 v41, v{vO + 1}
    v_mov_b32 v42, v{vO + 2}
    v_mov_b32 v43, s{sTag}
    v_mov_b32 v44, v{vO + 3}
    v_mov_b32 v45, v{vO + 4}
    v_mov_b32 v47, s{sTag}
    ''')

    def base_out():
        a(f'global_store_dwordx4 v{vL16}, v[40:43], {sr(sRec)} offset:{REC_BASE} sc1')
        a(f'global_store_dwordx4 v{vL16}, v[44:47], {sr(sRec)} offset:{REC_BASE + 1024} sc1')
    if BL:
        a(f's_cmp_lt_u32 s{sRi}, 20')
        a('s_cbranch_scc0 L_nobase')
    a('s_waitcnt vmcnt(0)')
    base_out()
    a.label('L_nobase')
    a(f'''
    s_cmp_lt_u32 s{sRi}, 20
    s_cbranch_scc1 L_fin
    v_mov_b32 v{Rb + 2}, {KEYL + 4}
    {'s_barrier' if KD == 2 else ''}
    ''')
    a.label('L_b8')
    fine('e', 'pre-B8')
    a('s_barrier                                   ; B8')
    a(f'''
    ds_read_b32 v{Rb + 3}, v{Rb + 2}
    s_movk_i32 s{sT}, {REC_STRIDE}
    s_waitcnt lgkmcnt(0)
    v_and_b32 v{Rb + 4}, 255, v{Rb + 3}
    v_mad_u32_u24 v{vRow}, v{Rb + 4}, s{sT}, v{vRow}
    ''')
    stamp('B8 done (winner)')
    fine('e', 'B8+')

    def late_out():
        if OE == 0:
            a(f's_cmp_lg_u32 s{sCand}, 0')
            a('s_cbranch_scc1 L_noout2')
            out_row()
            a.label('L_noout2')
        if FWL:
            fw_unpack()
        fine('e', 'behind')
        if OE == 0:
            a(f's_cmp_lg_u32 s{sCand}, 0')
            a('s_cbranch_scc1 L_noout4')
            a('s_waitcnt vmcnt(5)')
            a.label('L_noout3')
            late.append(lambda: (a.label('L_noout4'), a('s_waitcnt vmcnt(0)'), a('s_branch L_noout3')))
        else:
            a('s_waitcnt vmcnt(0)')
    poll([f'global_load_dwordx4 v[20:23], v{vRow}, {sr(WS)} sc1',
          f'global_load_dwordx4 v[24:27], v{vRow}, {sr(WS)} offset:1024 sc1'], [23, 27], [30, 32], empty='word',
         between=late_out, younger=63)
    if BL:
        a(f's_cmp_lg_u32 s{sCand}, 0')
        a('s_cbranch_scc1 L_base2')
        a.label('L_base3')
        late.append(lambda: (a.label('L_base2'), base_out(), a('s_branch L_base3')))
    stamp('row in')
    fine('e', 'row in')
    acc = 36
    for j in range(5):
        for c in (0, 2, 1, 3):
            a(f'v_dot2c_f32_bf16 v{acc + c}, v{vEW + 4 * j + c}, v{20 + j + (j >= 3)}')
    a(f'''
    v_permlane32_swap_b32 v36, v38
    v_permlane32_swap_b32 v37, v39
    v_pk_add_f32 v[36:37], v[36:37], v[38:39]
    v_permlane16_swap_b32 v36, v37
    v_add_f32 v36, v36, v37
    ''')
    for c in ('row_ror:8', 'row_ror:4'):
        dpp('v_add_f32', acc, c)
    a(f'''
    s_mov_b32 exec_lo, 0x000f000f
    s_mov_b32 exec_hi, 0x000f000f
    ds_write_b32 v{vRed}, v{acc}
    s_mov_b64 exec, -1
    s_cmp_ge_u32 s{sW}, 4
    s_waitcnt lgkmcnt(0)
    ''')
    fine('e', 'pre-B9')
    bar('B9')
    fine('e', 'B9')
    a(f'''
    s_cbranch_scc1 L_e_done
    ds_read_b128 v[20:23], v{vRd} offset:{RED}
    ds_read_b128 v[24:27], v{vRd} offset:{RED + 256}
    s_waitcnt lgkmcnt(0)
    v_pk_add_f32 v[20:21], v[20:21], v[22:23]
    v_pk_add_f32 v[24:25], v[24:25], v[26:27]
    v_add_f32 v20, v20, v21
    v_add_f32 v24, v24, v25
    v_mul_f32 v21, 0xbfb8aa3b, v20
    v_exp_f32 v21, v21
    v_mul_f32 v20, v20, v24
    v_add_f32 v21, 1.0, v21
    v_rcp_f32 v21, v21
    v_mul_f32 v20, v20, v21
    ''')
    fine('e', 'gu')
    sG = 8
    for u in range(16):
        a(f'v_readlane_b32 s{sG + u}, v20, {u}')
    for u in range(16):
        for hh in range(2):
            w_ = vr(vFW + 4 * u + 2 * hh, 2)
            g_ = sr(sG + (u & ~1))
            d_ = vr(36 + 2 * hh, 2)
            if u == 0:
                a(f'v_pk_mul_f32 {d_}, {w_}, {g_} op_sel:[0,0] op_sel_hi:[1,0]')
            else:
                a(f'v_pk_fma_f32 {d_}, {w_}, {g_}, {d_} {BC1 if u & 1 else BC0}')
    for k in range(4):
        a(f'v_and_or_b32 v{36 + k}, v{36 + k}, v18, s{sTB + k}')
    a('s_mov_b32 exec_hi, 0xff')
    a(f'global_store_dwordx4 v{vL16}, v[36:39], {sr(sBb)} sc1')
    a('s_mov_b64 exec, -1')
    stamp('PY out')
    fine('e', 'PY out')
    a('s_waitcnt vmcnt(0)')
    a.label('L_e_done')
    bar('B10')
    a.label('L_fin')
    stamp('end')
    fine('e', 'end')
    if FINE:
        a('s_waitcnt lgkmcnt(0)')
    dump_stamps()
    a.label('L_end')
    a('s_endpgm')
    flush_late()


sF1, sF2, sPb, sGw, sWb = 56, 58, 60, 62, 64


def publish(P='H0'):
    a(f'''
    ds_read_b128 v[40:43], v28 offset:{RED}
    ds_read_b128 v[44:47], v28 offset:{RED + 16}
    v_lshl_add_u32 v36, s{sBlk}, 8, v{vL4}
    s_waitcnt lgkmcnt(0)
    v_pk_add_f32 v[40:41], v[40:41], v[42:43]
    v_pk_add_f32 v[44:45], v[44:45], v[46:47]
    v_add_f32 v40, v35, v40
    v_pk_add_f32 v[40:41], v[40:41], v[44:45]
    v_add_f32 v40, v40, v41
    v_and_or_b32 v40, v40, v33, v34
    global_store_dword v36, v40, {sr(WS)} sc1
    ''')
    stamp('published', P)


def w_addr():
    a(f'''
    s_mul_i32 s{sU1}, s{sIdx}, 15
    s_min_u32 s{sU1}, s{sU1}, 306
    s_add_u32 s{sT}, s{sU1}, s{sX}
    s_and_b32 s{sT}, s{sT}, 1
    s_sub_u32 s{sU1}, s{sU1}, s{sT}
    s_mul_i32 s{sU0}, s{sX}, 321
    s_add_u32 s{sU1}, s{sU1}, s{sU0}
    s_lshl_b32 s{sU1}, s{sU1}, 1
    v_lshrrev_b32 v90, 1, v{vL}
    v_mul_u32_u24 v90, 5136, v90
    v_lshlrev_b32 v91, 1, v{vL}
    v_xor_b32 v91, v{vL16}, v91
    v_and_b32 v91, 16, v91
    v_add3_u32 v11, v90, v91, s{sU1}
    ''')


def w_gather(arr, lds):
    for n in range(8):
        a(f's_mov_b32 m0, {lds + 1024 * n}')
        a(f'global_load_lds_dwordx4 v11, {sr(arr)}')
        if n < 7:
            a(f'v_add_u32 v11, {32 * 5136}, v11')


def mask_lanes(n):
    if n >= 64:
        return
    if n > 32:
        a(f's_mov_b32 exec_hi, {hex((1 << (n - 32)) - 1)}')
    else:
        a(f's_mov_b64 exec, {hex((1 << n) - 1)}')


def warm_addr_w():
    a(f'''
    s_sub_u32 s{sU3}, s{sRi}, {12 if W20 else 0}
    s_mul_i32 s{sU3}, s{sU3}, {78 if W20 else 48}
    s_movk_i32 s{sU2}, 0x2aab
    s_mul_i32 s{sU1}, s{sX}, 642
    s_movk_i32 s{sT}, 5136
    ''')
    for n in range(2 if W20 else 1):
        a(f'''
        v_add_u32 v90, s{sU3}, v{vL}
        v_add_u32 v90, {39 * n}, v90
        v_min_u32 v90, 1535, v90
        v_mul_u32_u24 v91, s{sU2}, v90
        v_lshrrev_b32 v91, 16, v91
        v_mul_u32_u24 v92, 6, v91
        v_sub_u32 v92, v90, v92
        v_lshlrev_b32 v92, 7, v92
        v_min_u32 v92, 638, v92
        v_add_u32 v92, s{sU1}, v92
        v_mad_u32_u24 v92, v91, s{sT}, v92
        v_and_b32 v{120 + n}, -4, v92
        ''')


def ffn_parts(slot):
    return [(n, k) for n in range(3) if S_W[n] == slot for k in range(2 if slot == 7 else 1)]


def warm_addr_f(h, slot):
    f, per, lanes = {0: (0, 30, 30), 7: (NJ, 96, 48), 8: (0, 48, 48)}[slot]
    if not ffn_parts(slot):
        return
    a(f'''
    s_sub_u32 s{sU0}, s{sRi}, {f}
    s_mul_i32 s{sU3}, s{sU0}, {per}
    s_mul_i32 s{sU1}, s{sX}, 384
    s_movk_i32 s{sU2}, 0x5556
    s_movk_i32 s{sT}, {3072 - 384}
    s_mul_i32 s{sU0}, s{sX}, 245760
    ''')
    for n, k in ffn_parts(slot):
        d = 130 + 2 * n + k
        a(f'''
        v_add_u32 v90, s{sU3}, v{vL}
        v_add_u32 v90, {lanes * k}, v90
        v_min_u32 v90, 959, v90
        v_add_u32 v90, {960 * (n if n < 2 else h)}, v90
        ''')
        if n < 2:
            a(f'''
            v_mul_u32_u24 v91, s{sU2}, v90
            v_lshrrev_b32 v91, 16, v91
            v_lshl_add_u32 v90, v90, 7, s{sU1}
            v_mad_u32_u24 v{d}, v91, s{sT}, v90
            ''')
        else:
            a(f'v_lshl_add_u32 v{d}, v90, 7, s{sU0}')


def warm_issue(h, slot, sel=None):
    if slot == 0:
        L = newlabel('w20')
        if W20:
            assert not ffn_parts(0)
            a(f's_cmp_lt_u32 s{sRi}, 12')
            a(f's_cbranch_scc1 {L}')
        mask_lanes(39 if W20 else 48)
        for n in range(2 if W20 else 1):
            a(f'global_load_dword v125, v{120 + n}, {sr(W_R if h else W_I)}')
        a.label(L)
    ps = ffn_parts(slot) if sel is None else sel
    if ps:
        mask_lanes(30 if slot == 0 else 48)
        if 'w' in XX:
            a('s_mov_b64 exec, 1')
    for n, k in ps:
        a(f'global_load_dword v125, v{130 + 2 * n + k}, {sr(W_D if n == 2 else (W_G if h else W_U))}')
    a('s_mov_b64 exec, -1')


def e_addr(mat):
    a(f'''
    s_max_u32 s{sU1}, s{sRi}, 20
    s_mul_i32 s{sU0}, s{sX}, 12
    s_add_u32 s{sU0}, s{sU0}, s{sU1}
    s_sub_u32 s{sU0}, s{sU0}, 20
    s_mul_i32 s{sU1}, s{sU0}, 20480
    s_lshl_b32 s{sU0}, s{sU0}, 5
    v_lshrrev_b32 v128, 1, v{vL}
    v_mul_u32_u24 v128, 3072, v128
    v_and_b32 v90, 16, v{vL16}
    v_add_u32 v128, v128, v90
    ''')
    base_add(sF1, mat, sU0)
    base_add(sGw, W_D, sU1, 10240 if mat == W_U else 0)


def if_e(f):
    L = newlabel('ne')
    a(f's_cmp_lt_u32 s{sRi}, 20')
    a(f's_cbranch_scc1 {L}')
    f()
    a.label(L)


def e_gather(half, n0, n1):
    if 'g' in XX:
        a('s_mov_b64 exec, 1')
    for n in range(n0, n1):
        a(f's_mov_b32 m0, {EW + (n % 4 + 4 * half) * 5120 + (n // 4) * 1024}')
        a(f'global_load_lds_dwordx4 v128, {sr(sF1)}')
        if n < 19:
            a(f'v_add_u32 v128, {32 * 3072 if "g" not in XX else 0}, v128')
    a('s_mov_b64 exec, -1' if 'g' in XX else '')


def wd_load(half):
    if 'g' in XX:
        return
    for n in range(10):
        if n % 4 == 0:
            a(f's_mov_b32 m0, {FW + half * 10240 + n * 1024}')
            a(f'v_add_u32 v90, {1024 * n}, v{vL16}')
        a(f'global_load_lds_dwordx4 v90, {sr(sGw)} offset:{1024 * (n % 4)} {INPOL if S_W[2] == 9 else str()}')


def touch_small():
    if 'k' in TCH:
        a(f's_mul_i32 s{sU0}, s{sMe}, {REC_STRIDE}')
        base_add(sBa, WS, sU0, REC_G)
        a(f'''
        s_mov_b64 exec, 0xff
        global_store_dwordx4 v{vL16}, v[20:23], {sr(sBa)} sc1
        s_mov_b64 exec, -1
        ''')
    if 'p' in TCH:
        def f():
            a(f'''
            s_mul_i32 s{sU1}, s{sX}, 12
            s_add_u32 s{sU1}, s{sU1}, s{sRi}
            s_mul_i32 s{sU1}, s{sU1}, {PY_STRIDE}
            ''')
            base_add(sBa, WS, sU1, PY_G - 20 * PY_STRIDE)
            a(f'''
            global_store_dwordx4 v{vL16}, v[20:23], {sr(sBa)} sc1
            global_store_dwordx4 v{vL16}, v[20:23], {sr(sBa)} offset:1024 sc1
            s_mov_b32 exec_hi, 0
            global_store_dwordx4 v{vL16}, v[20:23], {sr(sBa)} offset:2048 sc1
            s_mov_b64 exec, -1
            ''')
        if_e(f)


def finalizer():
    a(f'''
    s_cmp_ge_u32 s{sRi}, 30
    s_cbranch_scc1 L_hx0
    ds_read_b32 v21, v62
    s_mul_i32 s{sU2}, s{sX}, 10
    s_add_u32 s{sU2}, s{sU2}, s{sRi}
    s_sub_u32 s{sU2}, s{sU2}, 20                   ; f
    v_mov_b32 v26, 0
    v_mov_b32 v27, 0
    s_waitcnt lgkmcnt(0)
    v_readfirstlane_b32 s{sU0}, v21
    s_and_b32 s{sU1}, s{sU0}, 255
    s_mul_i32 s{sU1}, s{sU1}, {REC_STRIDE}
    ''')
    base_add(sBa, WS, sU1, REC_G + REC_BASE)
    done = [f'global_load_dwordx4 v[32:35], v26, {sr(sBa)} sc1']
    a(f'''
    v_and_b32 v20, 1, v{vL}
    v_lshrrev_b32 v21, 4, v{vL}
    v_lshl_add_u32 v20, v20, 2, v21
    s_lshl_b32 s{sT}, s{sU2}, 3
    v_add_u32 v20, s{sT}, v20
    s_lshr_b32 s{sCand}, s{sU2}, 4                 ; j
    s_cmp_ge_u32 s{sCand}, 3
    s_cselect_b32 s{sT}, 3, 0
    s_sub_u32 s{sCand}, s{sCand}, s{sT}            ; dword inside the quad
    s_mul_i32 s{sT}, s{sT}, 342
    s_and_b32 s{sT}, s{sT}, 1024
    v_bfe_u32 v26, v20, 1, 6
    v_lshl_add_u32 v26, v26, 4, s{sT}
    {done[0] if not BL else ''}
    v_lshlrev_b32 v20, 1, v20                      ; 2d
    v_add_u32 v21, {MODB_L + 3840}, v20
    v_mov_b32 v22, 0
    ds_read_u16_d16_hi v22, v21                    ; gb[d]
    s_and_b32 s{sU1}, s{sU0}, 0x7ff
    s_mul_i32 s{sU1}, s{sU1}, 1280
    ''')
    base_add(sXrow, OUTP, sU1)
    a(f'''
    s_and_b32 s{sU1}, s{sU0}, 0xfffff800
    s_or_b32 s{sU1}, s{sU1}, 0x400
    s_xor_b32 s{sU3}, s{sU1}, 0x80000000
    s_not_b32 s{sT}, s{sU1}
    s_cmp_lt_i32 s{sU1}, 0
    s_cselect_b32 s{sU1}, s{sU3}, s{sT}
    v_mov_b32 v28, s{sU1}
    ''')
    a(f'''
    v_mul_f32 v28, 0xbfb8aa3b, v28
    v_exp_f32 v28, v28
    v_add_f32 v28, 1.0, v28
    v_rcp_f32 v28, v28
    ''')
    a(f'''
    v_lshrrev_b32 v29, 1, v{vL}
    v_mul_u32_u24 v29, {PY_STRIDE}, v29
    v_and_b32 v30, 16, v{vL16}
    v_add_u32 v29, v29, v30
    v_add_u32 v30, {32 * PY_STRIDE}, v29
    v_add_u32 v31, {64 * PY_STRIDE}, v29
    s_lshl_b32 s{sU2}, s{sU2}, 5
    ''')
    base_add(sBb, WS, sU2, PY_G)
    a('s_waitcnt lgkmcnt(0)')
    a('v_mul_f32 v22, v22, v28')
    bar('B9')

    def base_in(younger):
        poll(done, [35], [], empty='word', issued=True, younger=younger)
        a(f'''
        s_cmp_eq_u32 s{sCand}, 1
        s_cselect_b64 vcc, -1, 0
        v_cndmask_b32 v27, v32, v33, vcc
        s_cmp_eq_u32 s{sCand}, 2
        s_cselect_b64 vcc, -1, 0
        v_cndmask_b32 v27, v27, v34, vcc
        v_and_b32 v32, 16, v{vL}
        v_lshrrev_b32 v27, v32, v27
        v_lshlrev_b32 v27, 16, v27
        ''')
    if not BL:
        base_in(0)
    bar('B10')
    if PYD:
        a(done[0])
        a('s_waitcnt vmcnt(0)')
    stamp('PY poll', 'H0')
    if BL:
        a(done[0])
    poll([f'global_load_dwordx4 {vr(36 + 4 * n, 4)}, v{29 + n}, {sr(sBb)} sc1' for n in range(3)],
         list(range(36, 48)), [48, 49], empty='tag', between=(lambda: base_in(3)) if BL else None)
    a(f'''
    v_pk_add_f32 v[36:37], v[36:37], v[40:41]
    v_pk_add_f32 v[38:39], v[38:39], v[42:43]
    v_pk_add_f32 v[36:37], v[36:37], v[44:45]
    v_pk_add_f32 v[38:39], v[38:39], v[46:47]
    v_permlane32_swap_b32 v36, v38
    v_permlane32_swap_b32 v37, v39
    v_pk_add_f32 v[36:37], v[36:37], v[38:39]
    v_permlane16_swap_b32 v36, v37
    v_add_f32 v36, v36, v37
    ''')
    for c in ('row_ror:8', 'row_ror:4', 'row_ror:2'):
        dpp('v_add_f32', 36, c)
    a(f'''
    v_fma_f32 v36, v36, v22, v27
    v_cvt_pk_bf16_f32 v36, v36, v36
    s_mov_b32 exec_lo, 0x00030003
    s_mov_b32 exec_hi, 0x00030003
    global_store_short v20, v36, {sr(sXrow)} {FINPOL}
    s_mov_b64 exec, -1
    ''')


def can_addr():
    a(f'''
    v_add_u32 v110, s{sIdx}, v{vL}
    v_and_b32 v110, 7, v110
    v_lshlrev_b32 v114, 5, v110
    v_mul_u32_u24 v110, {NJ}, v110
    v_mul_u32_u24 v110, {T2S}, v110
    s_lshl_b32 s{sU0}, s{sMe}, 6
    s_add_u32 s{sU0}, s{sU0}, {T2_G + CANJ * T2S + 60}
    v_add_u32 v110, s{sU0}, v110
    v_and_b32 v111, 7, v{vL}
    v_lshl_add_u32 v114, v111, 2, v114
    v_mul_u32_u24 v114, {T1S}, v114
    s_min_u32 s{sT}, s{sIdx}, {NJ - 1}
    s_mul_i32 s{sU0}, s{sX}, {NJ}
    s_add_u32 s{sU0}, s{sU0}, s{sT}
    s_lshl_b32 s{sU0}, s{sU0}, 6
    s_add_u32 s{sU0}, s{sU0}, {T1_G + T1S + 60}
    v_add_u32 v114, s{sU0}, v114
    ''')


def can_touch(v):
    mask_lanes(8)
    a(f'global_load_dword v113, v{v}, {sr(WS)} sc1')
    a('s_mov_b64 exec, -1')


def can_wait(v, k):
    L, D = newlabel('can'), newlabel('cand')
    mask_lanes(8)
    a(f'''
    s_mov_b32 s{sCnt}, {SPIN}
    {L}:
    global_load_dword v113, v{v}, {sr(WS)} sc1
    s_waitcnt vmcnt(0)
    v_cmp_eq_u32 vcc, s{sTag}, v113
    s_bcnt1_i32_b64 s{sT}, vcc
    s_cmp_ge_u32 s{sT}, {k}
    s_cbranch_scc1 {D}
    s_sub_u32 s{sCnt}, s{sCnt}, 1
    s_cbranch_scc0 {L}
    {D}:
    s_mov_b64 exec, -1
    ''')


def warm0(h, early):
    if not AWE:
        if not early:
            warm_issue(h, 0)
        return
    L = newlabel('w0')
    is_a()
    a(f's_cbranch_scc{0 if early else 1} {L}')
    warm_issue(h, 0)
    a.label(L)


SA_P0 = 12
SA_LD = [f'global_load_dwordx2 {vr(SA_P0 + 10 * p + 2 * j, 2)}, v{4 + j // 2}, {sr(WS)} offset:{2048 * (j % 2) + 256 * p} sc1'
         for p in range(4) for j in range(5)]


def sa_spectrum(step):
    Ls, Lr, Lc = newlabel('sas'), newlabel('sar'), newlabel('sac')
    P0, ld = SA_P0, SA_LD
    if step == 0:
        a(f'''
        v_lshrrev_b32 v4, 5, v{vL}
        v_lshlrev_b32 v4, 10, v4
        v_and_b32 v5, 31, v{vL}
        v_lshl_add_u32 v4, v5, 3, v4
        v_add_u32 v5, 4096, v4
        v_add_u32 v6, 8192, v4
        ''')
    a(f's_cmp_lg_u32 s{sX}, 0')
    a(f's_cbranch_scc1 {Ls}')
    if step == 0:
        tab_read(vF20, T_F20C)
        tab_read(vF20 + 4, T_F20S)
        for q in range(4):
            tab_read(vTW + 4 * q, T_TW1 + q)
        f32_read(T_F32A)
        tab_read(116, T_ADR)
        a(f'''
        v_and_b32 v8, 16, v{vL16}
        v_lshrrev_b32 v8, v8, s{sTag}
        v_bfe_u32 v9, v8, 8, 8
        v_and_b32 v8, 0xff, v8
        s_waitcnt lgkmcnt(0)
        ''')
        f32_expand(T_F32A, None, 117)
        a(f'v_add_u32 v116, {SAF}, v116')
        a('v_add_u32 v117, 160, v116')
        a.label(Ls)
        return
    if step == 1:
        for x in ld:
            a(x)
        a.label(Ls)
        return
    a(f's_mov_b32 s{sCnt}, {SPIN}')
    a.label(Lc)
    a('s_waitcnt vmcnt(0)')
    for k in range(40):
        a(f'v_xor_b32 v{P0 + k}, v{8 + (k & 1)}, v{P0 + k}')
    a(f'v_or_b32 v10, v{P0}, v{P0 + 1}')
    for k in range(2, 40, 2):
        a(f'v_or3_b32 v10, v10, v{P0 + k}, v{P0 + k + 1}')
    a(f'''
    v_and_b32 v10, 0xff, v10
    v_cmp_ne_u32 vcc, 0, v10
    s_and_b64 vcc, exec, vcc
    s_cbranch_scc1 {Lr}
    {Lr}_d:
    ''')

    def retry():
        a.label(Lr)
        a(f's_sub_u32 s{sCnt}, s{sCnt}, 1')
        a(f's_cbranch_scc1 {Lr}_d')
        for x in ld:
            a(x)
        a(f's_branch {Lc}')
    late.append(retry)
    Z = 140
    for k in range(0, 10, 2):
        a(f'v_pk_add_f32 {vr(Z + k, 2)}, {vr(P0 + k, 2)}, {vr(P0 + 10 + k, 2)}')
        a(f'v_pk_add_f32 {vr(P0 + 20 + k, 2)}, {vr(P0 + 20 + k, 2)}, {vr(P0 + 30 + k, 2)}')
    for k in range(0, 10, 2):
        a(f'v_pk_add_f32 {vr(Z + k, 2)}, {vr(Z + k, 2)}, {vr(P0 + 20 + k, 2)}')
    for t in range(2):
        a(f'v_cvt_pk_bf16_f32 v{Ra + 4 * t}, v{Z + t}, v{Z + 2 + t}')
        a(f'v_cvt_pk_bf16_f32 v{Ra + 4 * t + 1}, v{Z + 4 + t}, v{Z + 6 + t}')
        a(f'v_cvt_pk_bf16_f32 v{Ra + 4 * t + 2}, v{Z + 8 + t}, 0')
        a(f'v_mov_b32 v{Ra + 4 * t + 3}, 0')
    row_fwd()
    a('s_mov_b32 exec_lo, 0x37773777')
    a('s_mov_b32 exec_hi, 0x37773777')
    for u in range(2):
        for r in range(4):
            a(f'ds_write2_b32 v{116 + u}, v{RD + 8 * u + r}, v{RD + 8 * u + 4 + r} offset0:{80 * r} offset1:{80 * r + 1}')
    a('s_mov_b64 exec, -1')
    a('s_waitcnt lgkmcnt(0)')
    stamp('sa done', 'H1')
    a.label(Ls)


def helper_tail(h, P, red_load, red_work, modf_load, modf_work):
    bar('BT')
    if BG:
        if h == 1:
            a(f's_waitcnt vmcnt({BG - 1})')
        bar('BG')
    bar('BP')
    if WPOS == 1:
        warm_issue(h, 0)
    if h == 0:
        is_b()
        a('s_cbranch_scc0 L_pl')
        publish()
        a.label('L_pl')
    a(f's_cmp_ge_u32 s{sIdx}, {NJ}')
    a(f's_cbranch_scc1 L_idle{h}')
    if NS and h == 1:
        assert not (K1 or K2)
        sa_spectrum(0)
    bar('B2')
    if not RI:
        red_load()
    w_gather(W_R if h else W_I, WST + (0 if h else 8192))
    bar('B3')
    a('s_waitcnt vmcnt(0)')
    stamp('W in', P)
    if NS and h == 1 and SAL == 1:
        sa_spectrum(1)
    if RE and not RI:
        red_work()
    bar('B3b')
    if AL1:
        if K1 and h == 1:
            can_wait(114, K1)
        bar('B3c')
    if K2 and h == 1:
        can_touch(110)
    if NS and h == 1:
        if SAL == 0:
            sa_spectrum(1)
        sa_spectrum(2)
    if h == 0:
        touch_small()
    if not RE and not RI:
        red_work()
    bar('B4')
    a('s_waitcnt vmcnt(0)')
    modf_load()
    if EG3:
        if_e(lambda: e_gather(1 - h, 0, EG3))
    bar('B5')
    if h == 0:
        a(f's_cmp_lt_u32 s{sRi}, 20')
        a(f's_waitcnt vmcnt({EG3})')
        a('s_cbranch_scc0 L_h0_m')
        a('s_waitcnt vmcnt(0)')
        a.label('L_h0_m')
    modf_work()
    bar('B5b')
    if AL2:
        if K2 and h == 1:
            can_wait(110, K2)
        bar('B5c')
    if S_W[2] == 8:
        warm_addr_f(h, 8)
    if W8 == 0:
        bar('B6')
    if S_W[2] == 8:
        a(f's_cmp_lt_u32 s{sRi}, 20')
        a(f's_cbranch_scc0 L_w8{h}')
        warm_issue(h, 8)
        a.label(f'L_w8{h}')
    if W8 == 1:
        bar('B6')
    if_e(lambda: (e_gather(1 - h, EG3, 20), wd_load(1 - h) if S_W[2] != 8 else None))
    if h == 0:
        a(f'''
        s_cmp_lg_u32 s2, 8
        s_cbranch_scc1 L_h0_ne
        v_mov_b32 v26, {EPOCH_G}
        s_mov_b64 exec, 1
        global_store_dword v26, v27, {sr(WS)} sc1
        s_mov_b64 exec, -1
        ''')
        a.label('L_h0_ne')
    a.label(f'L_hend{h}')
    a(f'''
    v_mul_u32_u24 v60, {REC_STRIDE}, v{vL}
    v_add_u32 v60, {REC_G + 128 * h * REC_STRIDE}, v60
    v_add_u32 v61, {64 * REC_STRIDE}, v60
    v_mov_b32 v62, {KEYL + 4}
    v_and_b32 v63, 15, v{vL}
    v_lshlrev_b32 v63, 7, v63
    v_add_u32 v63, {REC_G + REC_H2}, v63
    s_movk_i32 s{sU0}, {REC_STRIDE}
    s_cmp_lt_u32 s{sRi}, 20
    ''')
    bar('B7')
    a('s_waitcnt vmcnt(0)')
    a(f's_cbranch_scc1 L_hx{h}')
    if S_W[2] == 8:
        assert FWL and IWD
        wd_load(1 - h)
    kl = [f'global_load_dwordx2 v[64:65], v60, {sr(WS)} sc1', f'global_load_dwordx2 v[66:67], v61, {sr(WS)} sc1']
    if KP == 1:
        bar('B7b')
    if KD:
        bar('B7c')
    stamp('key poll', P)
    poll(kl, [65, 67], [68, 69], empty='word', between=(lambda: bar('B7b')) if KP == 0 else ((lambda: bar('B7d')) if OE == 3 else None))
    a('v_max_u32 v64, v64, v66')
    for c in ('row_ror:8', 'row_ror:4', 'row_ror:2', 'row_ror:1'):
        dpp('v_max_u32', 64, c)
    a(f'''
    s_mov_b32 exec_lo, 0x00010001
    s_mov_b32 exec_hi, 0x00010001
    ds_max_u32 v62, v64
    s_mov_b64 exec, -1
    ''')
    if PF == 1:
        a(f'''
        v_and_b32 v65, 255, v64
        v_mad_u32_u24 v63, v65, s{sU0}, v63
        global_load_dword v65, v63, {sr(WS)} sc1
        ''')
    if PF == 2:
        dpp('v_max_u32', 64, 'row_bcast:15', '0xa')
        dpp('v_max_u32', 64, 'row_bcast:31', '0xc')
        a(f'''
        s_mov_b32 exec_lo, 0
        s_mov_b32 exec_hi, 0xffff0000
        v_and_b32 v65, 255, v64
        v_mad_u32_u24 v63, v65, s{sU0}, v63
        global_load_dword v65, v63, {sr(WS)} sc1
        s_mov_b64 exec, -1
        ''')
    a('s_waitcnt lgkmcnt(0)')
    bar('B8')
    if h == 0:
        finalizer()
    a.label(f'L_hx{h}')
    stamp('end', P)
    dump_stamps(P)
    a('s_endpgm')
    a.label(f'L_idle{h}')
    warm_addr_f(h, 7)
    ps = ffn_parts(7)
    bar('B2')
    if RI < 2:
        red_load()
    if h == 1:
        a('s_waitcnt vmcnt(0)')
        can_touch(110)
    warm_issue(h, 7, ps[:EARLY])
    bar('B3')
    if RI == 2:
        red_load()
    if RE and h == 0:
        a(f's_waitcnt vmcnt({len(ps[:EARLY]) if RI < 2 else 0})')
        red_work()
        red_work = lambda: None
    bar('B3b')
    ieg = IEG
    if ISEQ == 0:
        warm_issue(h, 7, ps[EARLY:])
        if h == 0:
            a(f's_waitcnt vmcnt({len(ps)})')
            red_work()
            touch_small()
        nd = sum(1 for n, k in ps[EARLY:] if n == 2)
        a(f's_waitcnt vmcnt({nd + (NT if h == 0 else 0)})')
        stamp('warm in', P)
        e_gather(1 - h, 0, MF)
        modf_load()
        e_gather(1 - h, MF, IEG)
        if IWD == 0:
            wd_load(1 - h)
        if h == 0:
            a(f's_waitcnt vmcnt({IEG - MF + 10 * (IWD == 0)})')
        modf_work()
        bar('B5b')
    else:
        assert EARLY == 2 and S_W[0] == 7
        if h == 0:
            a(f's_waitcnt vmcnt({EARLY})')
            red_work()
            touch_small()
        a(f's_waitcnt vmcnt({NT if h == 0 else 0})')
        stamp('warm in', P)
        e_gather(1 - h, 0, 10)
        if ISEQ == 2:
            a('s_waitcnt vmcnt(0)')
            warm_issue(h, 7, ps[EARLY:])
        if h == 0:
            if ISEQ == 1:
                a('s_waitcnt vmcnt(0)')
            modf_load()
            a('s_waitcnt vmcnt(0)')
        modf_work()
        bar('B5b')
        if ISEQ == 1:
            warm_issue(h, 7, ps[EARLY:])
        ieg = max(IEG, 10)
        if ieg > 10:
            a('s_waitcnt vmcnt(0)')
            e_gather(1 - h, 10, ieg)
    a('s_waitcnt vmcnt(0)')
    stamp('ffn in', P)
    if h == 1:
        can_wait(110, KCAN)
        stamp('can', P)
    bar('B5c')
    bar('B6')
    e_gather(1 - h, ieg, 20)
    if IWD and S_W[2] != 8:
        wd_load(1 - h)
    a(f's_branch L_hend{h}')
    flush_late()


def helper0():
    a.label('L_h0')
    a(f's_mov_b32 s{sHI}, 0xffff0000')
    a(f'''
    v_mov_b32 v20, 0
    v_mov_b32 v21, 0
    v_mov_b32 v22, 0
    v_mov_b32 v23, 0
    v_mov_b32 v28, {KEYL}
    ds_write_b128 v28, v[20:23]
    ''')
    blk_id()
    warm_addr_w()
    warm_addr_f(0, 0)
    a('s_waitcnt lgkmcnt(0)')
    epoch_load()
    warm0(0, True)
    bar('B0 / B1')
    if PB:
        is_a()
        a('s_cbranch_scc0 L_h0_v')
        bar('B1b')
        a.label('L_h0_v')
    if WPOS == 0:
        warm0(0, False)
    stamp('kernarg', 'H0')
    e_addr(W_U)
    w_addr()
    a('s_waitcnt lgkmcnt(0)')
    epoch_tag()
    tag_bytes()
    pub_setup(sTag)
    if RI:
        a(f'''
        s_mul_i32 s{sCand}, s{sX}, 5
        s_add_u32 s{sCand}, s{sCand}, s{sIdx}
        s_sub_u32 s{sCand}, s{sCand}, 2
        s_and_b32 s{sCand}, s{sCand}, 63
        ''')
    else:
        a(f's_lshr_b32 s{sCand}, s{sBlk}, 2')
    a(f's_lshl_b32 s{sU2}, s{sCand}, 10')
    base_add(sPb, WS, sU2)
    a(f'''
    v_mov_b32 v27, s{sTag}
    v_lshlrev_b32 v29, 3, v{vL}
    v_add_u32 v29, {MODB_L}, v29
    v_add_u32 v30, {MODF_G}, v{vL16}
    v_add_u32 v31, {MODF_G + 4096}, v{vL16}
    v_add_u32 v32, {MODF_G + 8192}, v{vL16}
    ''')
    if TF:
        is_b()
        a('s_cbranch_scc0 L_tf')
        if 'b' in TF:
            a(f'v_lshl_add_u32 v36, s{sBlk}, 8, v{vL4}')
            a(f'global_store_dword v36, v20, {sr(WS)} sc1')
        if 'f' in TF:
            assert not RI
            a(f'''
            s_and_b32 s{sT}, s{sBlk}, 3
            s_cbranch_scc1 L_tf
            s_lshl_b32 s{sU0}, s{sCand}, 8
            s_add_u32 s{sU0}, s{sU0}, {MODF_G - 20 * 256}
            v_add_u32 v48, s{sU0}, v{vL16}
            s_mov_b64 exec, 0xffff
            global_store_dwordx4 v48, v[20:23], {sr(WS)} sc1
            s_mov_b64 exec, -1
            ''')
        a.label('L_tf')
    red = [f'global_load_dwordx4 v[40:43], v{vL16}, {sr(sPb)} sc1']
    modf = [f'global_load_dwordx4 {vr(40 + 4 * n, 4)}, v{30 + n // 4}, {sr(WS)} offset:{1024 * (n % 4)} sc1' for n in range(10)]

    def in_w1(k):
        L = newlabel('nr')
        if RI:
            a(f's_cmp_lt_u32 s{sIdx}, {NJ + 5}')
            a(f's_cbranch_scc0 {L}')
        else:
            a(f'''
            s_sub_u32 s{sT}, s{sBlk}, 80
            s_cmp_lt_u32 s{sT}, 160
            s_cbranch_scc0 {L}
            s_and_b32 s{sT}, s{sBlk}, 3
            s_cbranch_scc1 {L}
            ''')
        if k == 0:
            a(red[0])
            a.label(L)
            return
        poll(red, [40, 41, 42, 43], [44], empty='tag', issued=True, younger=63)
        a(f'''
        v_mov_b32 v44, v40
        v_mov_b32 v45, v41
        v_mov_b32 v46, v42
        v_mov_b32 v47, v43
        s_mov_b32 s{sU0}, s{sCand}
        s_sub_u32 s{sT}, s{sU0}, 40
        s_cmp_lt_u32 s{sT}, 10
        s_cselect_b32 s{sU1}, 1.0, 0
        s_lshl_b32 s{sU0}, s{sU0}, 8
        s_add_u32 s{sU0}, s{sU0}, {MODF_G - 20 * 256}
        ''')
        for sw in ('32', '16'):
            for r in range(4):
                a(f'v_permlane{sw}_swap_b32 v{40 + r}, v{44 + r}')
            a('v_pk_add_f32 v[40:41], v[40:41], v[44:45]')
            a('v_pk_add_f32 v[42:43], v[42:43], v[46:47]')
            if sw == '32':
                for r in range(4):
                    a(f'v_mov_b32 v{44 + r}, v{40 + r}')
        a('v_cvt_pk_bf16_f32 v44, v40, v41')
        a('v_cvt_pk_bf16_f32 v45, v42, v43')
        unpack(40, 41, 44)
        unpack(42, 43, 45)
        for r in range(4):
            a(f'v_add_f32 v{40 + r}, s{sU1}, v{40 + r}')
        a(f'''
        v_cvt_pk_bf16_f32 v44, v40, v41
        v_cvt_pk_bf16_f32 v45, v42, v43
        v_mov_b32 v47, s{sTag}
        v_add_u32 v48, s{sU0}, v{vL16}
        s_mov_b64 exec, 0xffff
        global_store_dwordx4 v48, v[44:47], {sr(WS)} sc1
        s_mov_b64 exec, -1
        ''')
        stamp('reduced', 'H0')
        a.label(L)

    def in_w2(k):
        if k == 0:
            for ld in modf:
                a(ld)
            return
        poll(modf, [43 + 4 * n for n in range(10)], list(range(80, 90)), empty='words', issued=True, younger=63)
        for n in range(10):
            a(f'ds_write_b64 v29, {vr(40 + 4 * n, 2)} offset:{512 * n}')
        a('s_waitcnt lgkmcnt(0)')
        stamp('modb in', 'H0')
    helper_tail(0, 'H0', lambda: in_w1(0), lambda: in_w1(2), lambda: in_w2(0), lambda: in_w2(1))


def helper1():
    a.label('L_h1')
    a(f'''
    s_getpc_b64 {sr(sBa)}
    L_pc:
    s_add_u32 s{sBb}, s{sBa}, L_tables-L_pc
    s_addc_u32 s{sBb + 1}, s{sBa + 1}, 0
    ''')

    def tabs(q0, q1):
        for q in range(q0, q1):
            if q % 4 == 0 or q == q0:
                a(f's_mov_b32 m0, {TAB + (q & ~3) * 1024}')
                a(f'v_add_u32 v20, {(q & ~3) * 1024}, v{vL16}')
            a(f'global_load_lds_dwordx4 v20, {sr(sBb)} offset:{1024 * (q % 4)}')

    def tab2():
        tabs(NT1, NTAB)
        a(f'''
        s_mov_b32 m0, {WR_L}
        global_load_lds_dwordx4 v{vL16}, {sr(B_WR)}
        s_mov_b64 exec, 0xffff
        global_load_lds_dwordx4 v{vL16}, {sr(B_WR)} offset:1024
        s_mov_b64 exec, -1
        ''')
        return NTAB - 14 + 2

    if AT == 2:
        tabs(0, NT1)
    warm_addr_w()
    warm_addr_f(1, 0)
    a('s_waitcnt lgkmcnt(0)')
    epoch_load()
    if AT == 0:
        blk_id()
        is_a()
        a('s_cbranch_scc0 L_h1_t')
        bar('B1')
        if PB:
            bar('B1b')
        a.label('L_h1_t')
    if AT < 2:
        tabs(0, NT1)
    if HB:
        e_addr(W_G)
        w_addr()
    if AT == 0:
        is_a()
        a('s_cbranch_scc1 L_h1_v')
    if AT:
        blk_id()
    warm0(1, True)
    bar('B0 / B1')
    if AT and PB:
        is_a()
        a('s_cbranch_scc0 L_h1_v')
        bar('B1b')
    a.label('L_h1_v')
    tab2()
    can_addr()
    if K1:
        can_touch(114)
    if WPOS == 0:
        warm0(1, False)
    if not HB:
        e_addr(W_G)
        w_addr()
    a('s_waitcnt lgkmcnt(0)')
    epoch_tag()
    a(f's_waitcnt vmcnt({NTAB - NT1 + 2 + (K1 > 0) + (1 + len(ffn_parts(0))) * (WPOS == 0 and not W20)})')
    stamp('tab in', 'H1')
    nop = lambda: None
    helper_tail(1, 'H1', nop, nop, nop, nop)


prologue()
main_path()
helper0()
helper1()
body = a.finish()

hdr = open(f'cdna_kernels/{NAME}.s.ref').read().split('; Override launch')[0]
T = tables()
tab = []
flat = T.reshape(-1)
for k in range(0, flat.size, 8):
    tab.append('.long ' + ','.join('0x%08x' % v for v in flat[k:k + 8]))

launch = f'; @launch grid=(256,1,1) block=(640,1,1) lds={LDS_BYTES}'
pre_code = pre_kd = ''
if PRE:
    launch = f'; @launch kernel=pre_kernel grid=({PRE},1,1) block=(64,1,1) lds=0\n; @launch kernel={NAME}_kernel grid=(256,1,1) block=(640,1,1) lds={LDS_BYTES}'
    pre_code = '.globl pre_kernel\n.p2align 8\n.type pre_kernel,@function\npre_kernel:\n    s_endpgm\n'
    pre_kd = '''.p2align 6
.amdhsa_kernel pre_kernel
  .amdhsa_next_free_vgpr 8
  .amdhsa_next_free_sgpr 16
  .amdhsa_accum_offset 8
  .amdhsa_group_segment_fixed_size 0
  .amdhsa_kernarg_size 104
  .amdhsa_user_sgpr_count 2
  .amdhsa_user_sgpr_kernarg_segment_ptr 1
  .amdhsa_system_sgpr_workgroup_id_x 1
.end_amdhsa_kernel
'''
src = hdr + f'''{launch}
.amdgcn_target "amdgcn-amd-amdhsa--gfx950"
.text
; ---------------------------------------------------------------------------------------------------------------
; One persistent launch: 256 workgroups (one per CU), 8 row/column waves + 2 helper waves each.
;   mod   : silu(c) @ w_mod in 240 blocks (64 columns x 160 rows); partial sums are handed over through d_ws
;   P1    : workgroup c owns rows 256a+c: LayerNorm, scale, real DFT-640 (20 x 32, bf16 MFMA), radix-8 over a
;           (the shift is the same for every row: its spectrum is added to row-frequency 0 in P2)
;   P2    : 176 workgroups own 15 columns of one residue q: DFT-256 (16 x 16), filter, inverse DFT-256
;   P3    : inverse radix-8, inverse DFT-640, residual, LayerNorm, router score, output rows
;   FFN   : arg-max over per-workgroup keys, 96 workgroups x 16 hidden units, 80 waves update the selected row
; Hand-offs between workgroups: write-through (sc1) stores carrying a per-launch tag, sc1 loads re-issued until the
; tag is seen (bounded). The tag is derived from one d_ws word that is advanced later in the same launch; every
; tagged slot is rewritten by every launch. Workgroup numbering only arranges for L2 locality.
; Generated by a script; hazard wait states (s_nop) are inserted per the ISA tables.
; ---------------------------------------------------------------------------------------------------------------
{pre_code}.globl {NAME}_kernel
.p2align 8
.type {NAME}_kernel,@function
{NAME}_kernel:
{body}
.p2align 8
.type L_tables,@object
L_tables:
''' + '\n'.join(tab) + f'''
.size L_tables, {NTAB * 1024}
.fill (8192 - ((. - {NAME}_kernel) & 8191)) & 8191, 1, 0
L_tables_end:
.section .rodata,"a"
.p2align 6
.amdhsa_kernel {NAME}_kernel
  .amdhsa_next_free_vgpr 168
  .amdhsa_next_free_sgpr 102
  .amdhsa_accum_offset 168
  .amdhsa_group_segment_fixed_size 0
  .amdhsa_kernarg_size 104
  .amdhsa_user_sgpr_count 2
  .amdhsa_user_sgpr_kernarg_segment_ptr 1
  .amdhsa_system_sgpr_workgroup_id_x 1
.end_amdhsa_kernel
{pre_kd}'''
open(OUT, 'w').write(src)
print('wrote', OUT, 'lds', LDS_BYTES, 'lines', len(a.lines), 'nops', a.nnops)
```

```python
import re

TRANS = ('v_exp_f32', 'v_log_f32', 'v_rcp_f32', 'v_rsq_f32', 'v_sqrt_f32', 'v_sin_f32', 'v_cos_f32')


def regs_of(tok):
    tok = tok.strip()
    tok = re.sub(r'^-', '', tok)
    m = re.match(r'^abs\((.*)\)$', tok)
    if m:
        tok = m.group(1)
    tok = tok.strip('|')
    m = re.match(r'^([vs])(\d+)$', tok)
    if m:
        return {(m.group(1), int(m.group(2)))}
    m = re.match(r'^([vs])\[(\d+):(\d+)\]$', tok)
    if m:
        return {(m.group(1), i) for i in range(int(m.group(2)), int(m.group(3)) + 1)}
    if tok in ('vcc', 'vcc_lo', 'vcc_hi'):
        return {('vcc', 0)}
    if tok in ('exec', 'exec_lo', 'exec_hi'):
        return {('exec', 0)}
    if tok == 'm0':
        return {('m0', 0)}
    return set()


def split_ops(s):
    out, depth, cur = [], 0, ''
    for ch in s:
        if ch in '[(':
            depth += 1
        if ch in '])':
            depth -= 1
        if ch == ',' and depth == 0:
            out.append(cur)
            cur = ''
        else:
            cur += ch
    if cur.strip():
        out.append(cur)
    return [o.strip() for o in out]


class Ins:
    def __init__(self, text):
        self.text = text
        t = text.split(';')[0].strip()
        self.label = t.endswith(':')
        self.directive = t.startswith('.') and not self.label
        self.op = ''
        self.defs, self.uses = set(), set()
        self.kind = 'other'
        self.srcC = set()
        self.srcAB = set()
        self.data = set()
        if self.label or self.directive or not t:
            self.kind = 'none'
            return
        parts = t.split(None, 1)
        op = self.op = parts[0]
        rest = parts[1] if len(parts) > 1 else ''
        ops = split_ops(rest)
        mods = ''
        if ops:
            last = ops[-1].split(None, 1)
            ops[-1] = last[0]
            mods = last[1] if len(last) > 1 else ''
        self.mods = mods
        R = [regs_of(o) for o in ops]
        allr = set().union(*R) if R else set()
        self.dpp = ('_dpp' in op) or ('row_' in mods) or ('quad_perm' in mods)
        if op.startswith('v_mfma'):
            self.kind = 'mfma'
            self.passes = 8 if '32x32' in op else 4
            self.defs = R[0]
            self.srcAB = R[1] | R[2]
            self.srcC = R[3]
            self.uses = self.srcAB | self.srcC
        elif op.startswith('v_'):
            self.kind = 'valu'
            base = op.replace('_e32', '').replace('_e64', '').replace('_dpp', '').replace('_sdwa', '')
            self.base = base
            self.trans = base in TRANS
            if base.startswith('v_cmpx'):
                self.defs = R[0] | {('exec', 0)}
                self.uses = set().union(*R[1:])
            elif base.startswith('v_permlane') and 'swap' in base or base == 'v_swap_b32':
                self.defs = allr
                self.uses = allr
            elif base in ('v_add_co_u32', 'v_sub_co_u32', 'v_addc_co_u32', 'v_subb_co_u32'):
                self.defs = R[0] | R[1]
                self.uses = set().union(*R[2:])
            else:
                self.defs = R[0]
                self.uses = set().union(*R[1:]) if len(R) > 1 else set()
                if base in ('v_fmac_f32', 'v_dot2c_f32_bf16', 'v_writelane_b32') or self.dpp:
                    self.uses |= R[0]
                if base == 'v_cndmask_b32' and len(ops) == 3:
                    self.uses |= {('vcc', 0)}
        elif op.startswith('ds_'):
            self.kind = 'ds'
            if op.startswith('ds_read') or '_rtn' in op or 'permute' in op or 'swizzle' in op:
                self.defs = R[0]
                self.uses = set().union(*R[1:])
                if 'd16' in op:
                    self.uses |= R[0]
            else:
                self.uses = allr
        elif op.startswith('global_') or op.startswith('buffer_'):
            self.kind = 'vmem'
            self.lds_dma = '_lds_' in op or re.search(r'\blds\b', mods) is not None
            if 'load' in op and not self.lds_dma:
                self.defs = R[0]
                self.uses = set().union(*R[1:])
                if 'd16' in op:
                    self.uses |= R[0]
            elif 'atomic' in op and 'sc0' in mods:
                self.defs = R[0]
                self.uses = set().union(*R[1:])
            else:
                self.uses = allr
                if 'store' in op and ('x3' in op or 'x4' in op):
                    self.data = R[1] if op.startswith('global_') else R[0]
        elif op.startswith('s_'):
            self.kind = 'salu'
            if op == 's_nop':
                self.kind = 'nop'
                self.n = int(ops[0], 0) + 1
            elif op.startswith(('s_cmp', 's_cbranch', 's_branch', 's_waitcnt', 's_barrier', 's_endpgm', 's_sleep',
                                's_setprio', 's_bitcmp')):
                self.uses = allr
            else:
                self.defs = R[0] if R else set()
                self.uses = set().union(*R[1:]) if len(R) > 1 else set()
                if 'saveexec' in op:
                    self.defs = self.defs | {('exec', 0)}

    def states(self):
        if self.kind == 'none':
            return 0
        if self.kind == 'nop':
            return self.n
        return 1


def vset(s):
    return {r for r in s if r[0] == 'v'}


def sset(s):
    return {r for r in s if r[0] in ('s', 'vcc')}


def required(p, c):
    need = 0
    EX = ('exec', 0)
    if p.kind == 'valu':
        pv, ps = vset(p.defs), sset(p.defs)
        if c.kind == 'mfma' and pv & c.uses:
            need = max(need, 2)
        if c.kind == 'valu':
            if c.dpp and pv & c.uses:
                need = max(need, 2)
            if c.base.startswith('v_permlane') and pv & c.uses:
                need = max(need, 2)
            if c.base in ('v_readlane_b32', 'v_readfirstlane_b32') and pv & c.uses:
                need = max(need, 1)
            if p.trans and pv & c.uses:
                need = max(need, 1)
            if ps & c.uses:
                need = max(need, 4 if c.base in ('v_readlane_b32', 'v_writelane_b32') else 2)
            if EX in p.defs:
                if c.dpp:
                    need = max(need, 5)
                if c.base in ('v_readlane_b32', 'v_readfirstlane_b32', 'v_writelane_b32') or c.base.startswith('v_permlane'):
                    need = max(need, 4)
                if EX in c.uses:
                    need = max(need, 2)
            if ('op_sel' in p.mods and not p.base.startswith('v_pk_')) or 'dst_sel' in p.mods:
                if pv & (c.uses | c.defs):
                    need = max(need, 1)
        if p.base.startswith('v_dot') and c.kind != 'salu' and pv & (c.uses | c.defs):
            if not (c.kind == 'valu' and c.base == p.base and p.defs == c.defs):
                need = max(need, 3)
        if p.trans and c.kind in ('vmem', 'ds') and pv & c.uses:
            need = max(need, 1)
        if c.kind == 'vmem' and ps & c.uses:
            need = max(need, 5)
        if c.kind == 'mfma' and EX in p.defs:
            need = max(need, 4)
        if c.kind == 'salu' and ps & c.uses:
            need = max(need, 1)
    if p.kind == 'mfma':
        lat = 8 if p.passes == 4 else 12
        if c.kind == 'mfma':
            if p.defs & c.srcAB:
                need = max(need, lat)
            if p.defs & c.srcC:
                if not (p.defs == c.srcC and p.passes == c.passes and p.op == c.op):
                    need = max(need, lat - 2)
            elif p.defs & c.defs:
                need = max(need, lat)
        elif c.kind in ('valu', 'vmem', 'ds'):
            if p.defs & (c.uses | c.defs):
                need = max(need, lat)
            if c.kind == 'valu' and vset(p.srcC) & c.defs:
                need = max(need, 3 if p.passes == 4 else 7)
    if p.kind == 'vmem' and p.data:
        if c.kind in ('valu', 'mfma') and p.data & c.defs:
            need = max(need, 2)
        elif p.data & c.defs:
            need = max(need, 1)
    if p.kind == 'salu' and ('m0', 0) in p.defs:
        if c.kind == 'vmem' and c.lds_dma:
            need = max(need, 1)
    return need


class Asm:
    def __init__(self):
        self.lines = []

    def __call__(self, text):
        for ln in text.split('\n'):
            ln = ln.strip()
            if ln:
                self.lines.append(ln)

    def label(self, name):
        self.lines.append(name + ':')

    def finish(self):
        ins = [Ins(t) for t in self.lines]
        out = []
        nnops = 0
        pend = {}
        hist = [[]]

        def need_for(h, c):
            dist = 0
            worst = 0
            for p in reversed(h):
                if dist >= 20:
                    break
                r = required(p, c)
                if r > dist:
                    worst = max(worst, r - dist)
                dist += p.states()
            return worst

        for c in ins:
            if c.label:
                name = c.text.split(':')[0].strip()
                hist = hist + pend.pop(name, [])
                out.append(c)
                continue
            if c.kind == 'none':
                out.append(c)
                continue
            w = max((need_for(h, c) for h in hist), default=0)
            while w > 0:
                k = min(w, 16)
                nop = Ins('s_nop %d' % (k - 1))
                out.append(nop)
                for h in hist:
                    h.append(nop)
                nnops += 1
                w -= k
            out.append(c)
            for h in hist:
                h.append(c)
            hist = [h[-24:] for h in hist]
            uniq = []
            for h in hist:
                if not any(len(h) == len(u) and all(a is b for a, b in zip(h, u)) for u in uniq):
                    uniq.append(h)
            hist = uniq
            if c.op.startswith(('s_cbranch', 's_branch')):
                tgt = c.text.split(';')[0].split()[1]
                pend.setdefault(tgt, []).extend([list(h) for h in hist])
                if c.op == 's_branch':
                    hist = [[]]
            if c.op == 's_endpgm':
                hist = [[]]
        self.nnops = nnops
        res = []
        for c in out:
            res.append(c.text if (c.label or c.directive) else '    ' + c.text)
        return '\n'.join(res) + '\n'


WIDEN = ('v_mov_b32', 'v_add_f32', 'v_sub_f32', 'v_mul_f32', 'v_fmac_f32', 'v_add_u32', 'v_sub_u32', 'v_subrev_u32', 'v_and_b32',
         'v_or_b32', 'v_xor_b32', 'v_lshlrev_b32', 'v_lshrrev_b32', 'v_ashrrev_i32', 'v_mul_u32_u24', 'v_max_u32', 'v_min_u32',
         'v_exp_f32', 'v_rcp_f32', 'v_rsq_f32', 'v_sqrt_f32', 'v_sin_f32', 'v_cos_f32', 'v_cvt_f32_u32', 'v_cmp_ne_u32',
         'v_cmp_eq_u32', 'v_cmpx_ne_u32', 'v_cmpx_eq_u32')


def align_runs(lines, sizes, minrun=3, padrun=6):
    out, osz = [], []
    off = 0
    n = len(lines)
    stats = [0, 0, 0, 0]
    i = 0
    while i < n:
        if sizes[i] == 8:
            j, run = i, 0
            while j < n and sizes[j] in (8, 0):
                run += sizes[j] == 8
                j += 1
            if run >= minrun and off % 8 == 4:
                k, done, crossed = len(out) - 1, False, 0
                cand_nop = cand_wait = None
                while k >= 0 and crossed < minrun:
                    if osz[k] == 8:
                        crossed += 1
                    elif osz[k] == 4:
                        crossed = 0
                        t = out[k].split(';')[0].split()
                        if t[0] in WIDEN:
                            out[k] = out[k].replace(t[0], t[0] + '_e64', 1)
                            osz[k] = 8
                            done = True
                            stats[0] += 1
                            break
                        if t[0] == 's_nop' and int(t[1]) >= 1 and cand_nop is None:
                            cand_nop = k
                            break
                        if t[0] in ('s_waitcnt', 's_barrier') :
                            cand_wait = k
                        if t[0] in ('s_branch', 's_endpgm'):
                            out.insert(k + 1, '    s_nop 0')
                            osz.insert(k + 1, 4)
                            done = True
                            stats[1] += 1
                            break
                    if len(out) - k > 12:
                        break
                    k -= 1
                if not done and cand_nop is not None:
                    v = int(out[cand_nop].split()[1])
                    out[cand_nop] = '    s_nop %d' % (v - 1)
                    out.insert(cand_nop, '    s_nop 0')
                    osz.insert(cand_nop, 4)
                    done = True
                    stats[1] += 1
                if not done and cand_wait is not None:
                    out.insert(cand_wait, '    s_nop 0')
                    osz.insert(cand_wait, 4)
                    done = True
                    stats[2] += 1
                if not done and run >= padrun:
                    out.append('    s_nop 0')
                    osz.append(4)
                    done = True
                    stats[3] += 1
                if done:
                    off += 4
            for q in range(i, j):
                out.append(lines[q])
                osz.append(sizes[q])
                off += sizes[q]
            i = j
        else:
            out.append(lines[i])
            osz.append(sizes[i])
            off += sizes[i]
            i += 1
    return out, stats
```

```python
import sys, struct
import numpy as np
from asmdsl import Asm, align_runs
import subprocess, re, os

NAME = 'adaLN_cond__spectral_gfnet__moe_arch_mod__prompt'
DIAG = '--diag' in sys.argv or '--dbgdiag' in sys.argv
DBGDIAG = '--dbgdiag' in sys.argv
OUT = [a for a in sys.argv[1:] if not a.startswith('--')]
OUT = OUT[0] if OUT else f'cdna_kernels/{NAME}.s'
SPIN = 1000000


def opt(name, default):
    for x in reversed(sys.argv):
        if x.startswith(f'--{name}='):
            return x.split('=', 1)[1]
    return default


PROBE = opt('probe', None)
if PROBE:
    PROBE = PROBE.replace('_', ' ')
PROBEWG = int(opt('probewg', 8))
FINE = opt('fine', None)
if PROBE or FINE:
    DIAG = True
PRE = None
INPOL = 'nt'
S_W = [int(x) for x in opt('sw', '777')]
EG3 = int(opt('eg3', 10))
PACE1 = int(opt('pace1', 0))
PACE2 = int(opt('pace2', 0))
PK = opt('pk', '110')
P3FIRST = int(opt('p3first', 1))
WFIRST = int(opt('wfirst', 1))
DR1 = int(opt('dr1', 0))
DR2 = int(opt('dr2', 0))
BGWAIT = int(opt('bgwait', 9))
EARLY = int(opt('early', 2))
MATS = int(opt('mats', 2))
IEG = int(opt('ieg', 16))
IWD = int(opt('iwd', 1))
MF = int(opt('mf', 10))
MR = int(opt('mr', 0))
BLOAD = int(opt('bload', 2))
P2ORD = int(opt('p2ord', 2))
GLATE = int(opt('glate', 0))
B0 = int(opt('b0', 3))
FWL = int(opt('fwl', 0))
KP = int(opt('kp', 1))
PF = int(opt('pf', 0))
XL = int(opt('xl', 3))
WC = int(opt('wc', 0))
KD = int(opt('kd', 1))
ISEQ = int(opt('iseq', 0))
RE = int(opt('re', 1))
FINPOL = opt('finpol', '')
PYD = int(opt('pyd', 0))
TCH = opt('tch', 'mkp')
NT = ('k' in TCH) + 3 * ('p' in TCH)
PKS = int(opt('pks', 1))
P3O = int(opt('p3o', 0))
PRIO = opt('prio', '000')
AL1 = int(opt('al1', 0))
AL2 = int(opt('al2', 1))
OE = int(opt('oe', 1))
BL = int(opt('bl', 0))
PL = int(opt('pl', 1))
AW = int(opt('aw', 1))
W8 = int(opt('w8', 0))
TB2 = int(opt('tb2', 0))
MW = int(opt('mw', 0))
XMAP = int(opt('xmap', '0x35762410'), 16)
EX = int(opt('ex', 0))
AT = int(opt('at', 1))
AX = int(opt('ax', 2))
WPOS = int(opt('wpos', 0))
SC_ = int(opt('sc', 1))
XP = int(opt('xp', 0))
BG = int(opt('bg', 0))
MT = int(opt('mt', 1))
S1 = int(opt('s1', 3))
PB = int(opt('pb', 1))
GB = int(opt('gb', 0))
W20 = int(opt('w20', 0))
HB = int(opt('hb', 0))
KCAN = int(opt('kcan', 5))
K1 = int(opt('k1', 0))
K2 = int(opt('k2', 0))
AWE = int(opt('awe', 0))
RI = int(opt('ri', 0))
TF = opt('tf', '')
XX = opt('xx', '')
NS = int(opt('ns', 1))
SAL = int(opt('sal', 0))
CF = int(opt('cf', 0))
GN = int(opt('gn', 0))
GMAP = int(opt('gmap', '0x36542107'), 16)
sLin = 14
FP = int(opt('fp', 1))
KR = int(opt('kr', 0))
KB = int(opt('kb', 0))
QR = int(opt('qr', 0))
NCAN = int(opt('ncan', 8))
CANJ = int(opt('canj', 12))
NJ = 22
T1S = 8 * NJ * 64 + int(opt('t1pad', 128))
T2S = 16384 + int(opt('t2pad', 256))

MODA_G = 0
MODF_G = 61440
EPOCH_G = 73728
PY_G = 0x20000
PY_STRIDE = 2688
REC_G = 0x80000
REC_STRIDE = 4224
REC_H2 = 128
REC_BASE = 128 + 2048
T1_G = 0x400000
T2_G = 0x800000
DIAG_G = 0xC00000

NTAB = 26
TAB = 0
RED = TAB + NTAB * 1024
KEYL = RED + 2048
XB2 = KEYL + 64
SA = 736
XB1 = XB2 + 20480
MODA_L = XB1 + 16 * SA
MODB_L = MODA_L + 5120
WR_L = MODB_L + 5120
WST = WR_L + 2048
EW = WST + 16384
FW = EW + 40960
SAF = FW + 20480
STL = SAF + 2688
LDS_BYTES = STL + 256
assert LDS_BYTES <= 163840, LDS_BYTES

T_F20C, T_F20S, T_TW1, T_F32A, T_ADR, T_TW3, T_F20I, T_F32B, T_F16, T_TW2 = 0, 1, 2, 6, 10, 11, 15, 18, 22, 24
NT1 = 11


def f2u(x):
    return struct.unpack('<I', struct.pack('<f', float(x)))[0]


def bf(x):
    u = f2u(x)
    return ((u + 0x7FFF + ((u >> 16) & 1)) >> 16) & 0xFFFF


def pk(lo, hi):
    return bf(lo) | (bf(hi) << 16)


ALPHA = {16: 1.1328, 20: 1.4294, 32: 1.62445}


def cs(num, den):
    a = 2 * np.pi * (num % den) / den
    c, s = np.cos(a), np.sin(a)
    if abs(c) < 1e-12: c = 0.0
    if abs(s) < 1e-12: s = 0.0
    al = ALPHA.get(den, 1.0)
    return c * al, s * al


def kaof(x):
    ka = 3 * (x >> 2) + (x & 3)
    return ka if (x & 3) < 3 and ka <= 10 else None


def tables():
    T = np.zeros((NTAB, 64, 4), np.uint32)
    for l in range(64):
        i, g = l & 15, l >> 4
        c8, s8 = [0.0] * 8, [0.0] * 8
        for j in range(5):
            if kaof(i) is not None:
                c, s = cs((4 * j + g) * kaof(i), 20)
                c8[j], s8[j] = c, -s
        for d in range(4):
            T[T_F20C, l, d] = pk(c8[2 * d], c8[2 * d + 1])
            T[T_F20S, l, d] = pk(s8[2 * d], s8[2 * d + 1])
        for t in range(2):
            for r in range(4):
                c, s = cs((8 * g + 2 * r + t) * (kaof(i) or 0), 640)
                T[T_TW1 + 2 * t, l, r] = f2u(c)
                T[T_TW1 + 2 * t + 1, l, r] = f2u(s)
                c, s = cs((2 * i + t) * (kaof(4 * g + r) or 0), 640)
                T[T_TW3 + 2 * t, l, r] = f2u(c)
                T[T_TW3 + 2 * t + 1, l, r] = f2u(s)
        kbof = lambda e: e if e < 16 else 47 - e
        for tile in range(2):
            for ks in range(2):
                for r in range(4):
                    c, s = cs(kbof(2 * i + tile) * (8 * g + 2 * r + ks), 32)
                    T[T_F32A + tile * 2 + ks, l, r] = pk(c, s)
                    c, s = cs((2 * i + tile) * kbof(8 * g + 2 * r + ks), 32)
                    T[T_F32B + tile * 2 + ks, l, r] = pk(c, s)
        ka_ = kaof(i)
        k0 = 0 if ka_ is None else (160 * g + ka_ if g < 2 else 160 * g - 300 - ka_)
        T[T_ADR, l, 0] = 8 * k0
        T[T_ADR, l, 1] = 0x8000 if i < 8 else 0x80000000
        T[T_ADR, l, 2] = 0 if g < 2 else 0x8000
        T[T_ADR, l, 3] = 0x8000 if g < 2 else 0
        for r in range(4):
            c, s = cs(i * (4 * g + r), 16)
            T[T_F16, l, r] = pk(c, s)
            T[T_F16 + 1, l, r] = pk(-s, c)
            c, s = cs(i * (4 * g + r), 256)
            T[T_TW2, l, r] = f2u(c)
            T[T_TW2 + 1, l, r] = f2u(s)
            ka = kaof(4 * g + r)
            if ka is not None:
                a1 = 4 * (i & 3) + (i >> 2)
                c, s = cs(a1 * ka, 20)
                T[T_F20I, l, r] = pk(c, -s)
                c, s = cs((16 + (i >> 2)) * ka, 20)
                if (i & 3) == 0:
                    T[T_F20I + 1, l, r] = pk(c, -s)
                if (i & 3) == 1:
                    T[T_F20I + 2, l, r] = pk(c, -s)
    return T


def vr(a, n=1):
    return f'v{a}' if n == 1 else f'v[{a}:{a + n - 1}]'


def sr(a, n=2):
    return f's{a}' if n == 1 else f's[{a}:{a + n - 1}]'


sW, sX, sIdx, sMe, sT = 3, 4, 5, 6, 7
A_X, W_R, W_I, B_WR, W_G, W_U, W_D = 8, 10, 12, 16, 18, 20, 22
C_, W_MOD, OUTP, DBG, WS = 24, 26, 28, 30, 32
sBa, sBb, sBc = 34, 36, 38
sCnt = 40
sM1B = 41
sU0, sU1, sU2, sU3 = 42, 43, 46, 47
sM7 = 44
sRow = 48
sKey = 49
sV1, sV2 = 50, 51
sHI = 52
sCand = 53
sBlk = 54
sRec = 56
sTag = 55
sRi = sIdx
sGU = 56
sXrow = 72
sTS = 74

vL, vL16, vL4, vS, vPoll = 1, 2, 3, 4, 5
vM8F, vM8I = 6, 8
vXS = 10
Ra, Rb, RD, Rc = 20, 28, 36, 52
vF32 = 60
vTW = 92
vF20 = 108
vVec = 120
vE0 = 160
vXR = 150


a = Asm()
stamps = {}
NST = 24


def stamp(name, path='M', wait=True):
    if not DIAG or FINE:
        return
    if opt('only', None) and not (name == 'start' or any(name.startswith(x.replace('_', ' ')) for x in opt('only', '').split(','))):
        return
    if PROBE and (path != 'M' or not (name == 'start' or name.startswith(PROBE))):
        return
    lst = stamps.setdefault(path, [])
    if name not in lst:
        lst.append(name)
    k = lst.index(name)
    assert k < NST
    a(f's_memrealtime s[100:101]')
    a('s_waitcnt lgkmcnt(0)')
    a(f's_mov_b32 s{sTS + k}, s100')


fines = []


def fine(group, name):
    if FINE != group:
        return
    if name not in fines:
        fines.append(name)
    k = fines.index(name)
    assert k < 12
    a(f's_memtime {sr(sTS + 2 * k)}')


def dump_stamps(path='M'):
    if not DIAG:
        return
    if PROBE:
        if path != 'M':
            return
        a(f'''
        s_cmp_lg_u32 s2, {PROBEWG}
        s_cbranch_scc1 L_end
        s_cmp_lg_u32 s{sW}, 0
        s_cbranch_scc1 L_end
        ''')
        if PROBE == 'fix':
            a(f's_movk_i32 s{sU0}, 6000')
        elif PROBE == 'rel':
            RX = int(opt('rx', 1))
            a(f'''
            v_mov_b32 v20, {DIAG_G}
            global_load_dword v21, v20, {sr(WS)} sc1
            global_load_dword v22, v20, {sr(WS)} offset:{128 * RX} sc1
            s_waitcnt vmcnt(0)
            v_sub_u32 v21, v22, v21
            v_add_u32 v21, 100, v21
            v_readfirstlane_b32 s{sU0}, v21
            s_lshl_b32 s{sU0}, s{sU0}, 5
            s_add_u32 s{sU0}, s{sU0}, 6000
            s_min_u32 s{sU0}, s{sU0}, 100000
            ''')
        elif PROBE == 'xcc':
            a(f's_getreg_b32 s{sU0}, hwreg(HW_REG_XCC_ID)')
            a(f's_and_b32 s{sU0}, s{sU0}, 15')
            a(f's_mul_i32 s{sU0}, s{sU0}, 1000')
            a(f's_add_u32 s{sU0}, s{sU0}, 6000')
        else:
            a(f's_sub_u32 s{sU0}, s{sTS + 1}, s{sTS}')
            a(f's_lshl_b32 s{sU0}, s{sU0}, 4')
            a(f's_add_u32 s{sU0}, s{sU0}, 6000')
            a(f's_min_u32 s{sU0}, s{sU0}, 100000')
        a(f'''
        L_probe:
        s_memrealtime s[100:101]
        s_waitcnt lgkmcnt(0)
        s_sub_u32 s{sU1}, s100, s{sTS}
        s_cmp_lt_u32 s{sU1}, s{sU0}
        s_cbranch_scc1 L_probe
        ''')
        return
    if DBGDIAG:
        if path != 'M':
            return
        a('v_mov_b32 v20, 0')
        a('s_mov_b64 exec, 1')
        a(f's_not_b32 s{sU0}, s{sTS}')
        a(f'v_mov_b32 v22, s{sU0}')
        a(f'global_atomic_umax v20, v22, {sr(DBG)} offset:4 sc1')
        ks = [0] + list(range(2, len(stamps['M'])))
        for n, k in enumerate(ks[:14]):
            a(f'v_mov_b32 v{23 + n}, s{sTS + k}')
            a(f'global_atomic_umax v20, v{23 + n}, {sr(DBG)} offset:{8 + 4 * n} sc1')
        print('dbg slots:', [(2 + n, stamps['M'][k]) for n, k in enumerate(ks[:14])])
        return
    a(f'''
    s_lshl_b32 s{sU0}, s2, 11
    s_lshl_b32 s{sU1}, s{sW}, 7
    s_add_u32 s{sU0}, s{sU0}, s{sU1}
    s_memtime s[100:101]
    ''')
    base_add(sBa, WS, sU0, DIAG_G)
    a('v_mov_b32 v20, 0')
    a('s_mov_b64 exec, 1')
    for k in range(0, NST, 2):
        a(f'v_mov_b32 v22, s{sTS + k}')
        a(f'v_mov_b32 v23, s{sTS + k + 1}')
        a(f'global_store_dwordx2 v20, v[22:23], {sr(sBa)} offset:{4 * k}')
        a('s_nop 1')
    a('s_waitcnt lgkmcnt(0)')
    a('s_sub_u32 s100, s100, s98')
    a('v_mov_b32 v22, s100')
    a(f'global_store_dword v20, v22, {sr(sBa)} offset:112')
    a('s_getreg_b32 s42, hwreg(HW_REG_XCC_ID)')
    a('s_getreg_b32 s43, hwreg(HW_REG_HW_ID)')
    a('v_mov_b32 v22, s42')
    a('v_mov_b32 v23, s43')
    a(f'global_store_dwordx2 v20, v[22:23], {sr(sBa)} offset:120')


def base_add(dst, src, off_s=None, imm=0):
    if off_s is not None:
        if imm:
            a(f's_add_u32 s{sT}, s{off_s}, {imm}')
            off_s = sT
        a(f's_add_u32 s{dst}, s{src}, s{off_s}')
    else:
        a(f's_add_u32 s{dst}, s{src}, {imm}')
    a(f's_addc_u32 s{dst + 1}, s{src + 1}, 0')


lblc = [0]
late = []
late2 = []


def flush_late():
    for f in late:
        f()
    late.clear()
    for f in late2:
        f()
    late2.clear()


def newlabel(p):
    lblc[0] += 1
    return f'L_{p}_{lblc[0]}'


def poll(loads, regs, tmp, mask=None, empty='eq -1', between=None, younger=0, issued=False):
    L, D, Cc = newlabel('poll'), newlabel('polld'), newlabel('pollc')
    if mask is not None:
        mask_lanes(mask)
    if not issued:
        for ld in loads:
            a(ld)
    a(f's_mov_b32 s{sCnt}, {SPIN}')
    if between is not None:
        between()
    if younger < 63:
        a(f's_waitcnt vmcnt({younger})')
    a.label(Cc)

    def retry():
        a.label(L)
        a(f's_sub_u32 s{sCnt}, s{sCnt}, 1')
        a(f's_cbranch_scc1 {D}')
        for ld in loads:
            a(ld)
        a('s_waitcnt vmcnt(0)')
        a(f's_branch {Cc}')
    late.append(retry)
    if empty == 'tag':
        for n, r in enumerate(regs):
            a(f'v_xor_b32 v{r}, s{sTB + (n & 3)}, v{r}')
        rem = list(regs)
        for c in tmp:
            a(f'v_or3_b32 v{c}, v{rem[0]}, v{rem[1]}, v{rem[2]}')
            rem = rem[3:]
        n = 0
        while len(rem) >= 2:
            c = tmp[n % len(tmp)]
            a(f'v_or3_b32 v{c}, v{c}, v{rem[0]}, v{rem[1]}')
            rem = rem[2:]
            n += 1
        t = tmp[0]
        rem = rem + list(tmp[1:])
        while rem:
            if len(rem) >= 2:
                a(f'v_or3_b32 v{t}, v{t}, v{rem[0]}, v{rem[1]}')
                rem = rem[2:]
            else:
                a(f'v_or_b32 v{t}, v{t}, v{rem[0]}')
                rem = rem[1:]
        a(f'v_and_b32 v{t}, 0xff, v{t}')
        empty = 'ne 0'
    elif empty == 'word':
        if len(regs) == 1:
            t = regs[0]
            empty = f'ne s{sTag}'
        else:
            assert len(regs) == 2
            t = tmp[0]
            a(f'v_xor_b32 v{t}, v{regs[0]}, v{regs[1]}')
            a(f'v_xor_b32 v{tmp[1]}, s{sTag}, v{regs[0]}')
            a(f'v_or_b32 v{t}, v{t}, v{tmp[1]}')
            empty = 'ne 0'
    elif empty == 'words':
        for n, r in enumerate(regs):
            a(f'v_xor_b32 v{tmp[n]}, s{sTag}, v{r}')
        t = tmp[0]
        rem = list(tmp[1:len(regs)])
        while rem:
            if len(rem) >= 2:
                a(f'v_or3_b32 v{t}, v{t}, v{rem[0]}, v{rem[1]}')
                rem = rem[2:]
            else:
                a(f'v_or_b32 v{t}, v{t}, v{rem[0]}')
                rem = rem[1:]
        empty = 'ne 0'
    elif len(regs) == 1:
        t = regs[0]
    else:
        rem = list(regs)
        outs = []
        k = 0
        while len(rem) >= 3 and k < len(tmp):
            a(f'v_max3_u32 v{tmp[k]}, v{rem[0]}, v{rem[1]}, v{rem[2]}')
            outs.append(tmp[k])
            rem = rem[3:]
            k += 1
        rem = outs[1:] + rem
        t = outs[0] if outs else None
        if t is None:
            t = tmp[0]
            a(f'v_max_u32 v{t}, v{rem[0]}, v{rem[1]}')
            rem = rem[2:]
        while rem:
            if len(rem) >= 2:
                a(f'v_max3_u32 v{t}, v{t}, v{rem[0]}, v{rem[1]}')
                rem = rem[2:]
            else:
                a(f'v_max_u32 v{t}, v{t}, v{rem[0]}')
                rem = rem[1:]
    a(f'v_cmpx_{empty.split()[0]}_u32 vcc, {empty.split()[1]}, v{t}')
    a(f's_cbranch_execnz {L}')
    a.label(D)
    a('s_mov_b64 exec, -1')


def epoch_load():
    a(f's_load_dword s{sTag}, {sr(WS)}, {EPOCH_G}')


def epoch_tag(d=None):
    d = d or sTag
    a(f'''
    s_and_b32 s{d}, s{sTag}, 0x7f7f7f7f
    s_add_u32 s{d}, s{d}, 0x01010101
    s_or_b32 s{d}, s{d}, 0x80808080
    ''')


sTB = 68


def tag_bytes():
    for k in range(4):
        a(f's_bfe_u32 s{sTB + k}, s{sTag}, {hex(0x80000 | (8 * k))}')


def dpp(op, r, ctrl, rm='0xf'):
    a(f'{op}_dpp v{r}, v{r}, v{r} {ctrl} row_mask:{rm} bank_mask:0xf')


def wave_sum(regs, dst_s, op='v_add_f32'):
    for c in ('row_ror:8', 'row_ror:4', 'row_ror:2', 'row_ror:1'):
        for r in regs:
            dpp(op, r, c)
    for r in regs:
        dpp(op, r, 'row_bcast:15', '0xa')
    for r in regs:
        dpp(op, r, 'row_bcast:31', '0xc')
    for r, s in zip(regs, dst_s):
        a(f'v_readlane_b32 s{s}, v{r}, 63')


def rbf(dst, src):
    a(f'v_cvt_pk_bf16_f32 v{dst}, {src}, {src}')
    a(f'v_and_b32 v{dst}, s{sHI}, v{dst}')


def unpack(dlo, dhi, src):
    a(f'v_lshlrev_b32 v{dlo}, 16, v{src}')
    a(f'v_and_b32 v{dhi}, s{sHI}, v{src}')


def mfma32(d, x, y, c=None):
    a(f'v_mfma_f32_16x16x32_bf16 {vr(d, 4)}, {vr(x, 4)}, {vr(y, 4)}, {vr(c, 4) if c is not None else 0}')


def mfma16(d, x, y):
    a(f'v_mfma_f32_16x16x16_bf16 {vr(d, 4)}, {vr(x, 2)}, {vr(y, 2)}, 0')


def cmul(tr, ti, re, im, c, s, sign, pk=True, n=4, head=0):
    if not pk:
        for r in range(n):
            a(f'v_mul_f32 v{tr + r}, v{re + r}, v{c + r}')
        for r in range(n):
            a(f'v_mul_f32 v{ti + r}, v{im + r}, v{c + r}')
        for r in range(n):
            if sign > 0:
                a(f'v_fma_f32 v{tr + r}, -v{im + r}, v{s + r}, v{tr + r}')
                a(f'v_fmac_f32 v{ti + r}, v{re + r}, v{s + r}')
            else:
                a(f'v_fmac_f32 v{tr + r}, v{im + r}, v{s + r}')
                a(f'v_fma_f32 v{ti + r}, -v{re + r}, v{s + r}, v{ti + r}')
        return
    nr = 'neg_lo:[1,0,0] neg_hi:[1,0,0]'
    for h in (0, 2):
        if head:
            a(f'v_mul_f32 v{tr + h}, v{re + h}, v{c + h}')
            a(f'v_mul_f32 v{tr + h + 1}, v{re + h + 1}, v{c + h + 1}')
        else:
            a(f'v_pk_mul_f32 {vr(tr + h, 2)}, {vr(re + h, 2)}, {vr(c + h, 2)}')
    for h in (0, 2):
        a(f'v_pk_mul_f32 {vr(ti + h, 2)}, {vr(im + h, 2)}, {vr(c + h, 2)}')
    for h in (0, 2):
        a(f'v_pk_fma_f32 {vr(tr + h, 2)}, {vr(im + h, 2)}, {vr(s + h, 2)}, {vr(tr + h, 2)} {nr if sign > 0 else ""}')
    for h in (0, 2):
        a(f'v_pk_fma_f32 {vr(ti + h, 2)}, {vr(re + h, 2)}, {vr(s + h, 2)}, {vr(ti + h, 2)} {nr if sign < 0 else ""}')


def pack4(d, lo, hi, step=1, n=4):
    for r in range(n):
        a(f'v_cvt_pk_bf16_f32 v{d + r * step}, v{lo + r}, v{hi + r}')


def tab_read(dst, q):
    a(f'ds_read_b128 {vr(dst, 4)}, v{vL16} offset:{TAB + q * 1024}')


def tm(j, t):
    return 4 * t + j if j < 4 else 8 + t


def read_tmajor(dst, vaddr, off):
    o = off // 256
    assert off % 256 == 0 and o + 6 < 256
    for t in range(2):
        a(f'ds_read2st64_b32 {vr(dst + 4 * t, 2)}, v{vaddr + t} offset0:{o} offset1:{o + 2}')
        a(f'ds_read2st64_b32 {vr(dst + 4 * t + 2, 2)}, v{vaddr + t} offset0:{o + 4} offset1:{o + 6}')
    a(f'ds_read_b64 {vr(dst + 8, 2)}, v{vaddr} offset:{off + 2048}')


def silu(dst, src, tmp):
    for d, s, t in zip(dst, src, tmp):
        a(f'v_mul_f32 v{t}, 0xbfb8aa3b, v{s}')
    for t in tmp:
        a(f'v_exp_f32 v{t}, v{t}')
    for t in tmp:
        a(f'v_add_f32 v{t}, 1.0, v{t}')
    for t in tmp:
        a(f'v_rcp_f32 v{t}, v{t}')
    for d, s, t in zip(dst, src, tmp):
        a(f'v_mul_f32 v{d}, v{s}, v{t}')


def swap_reduce8(acc):
    for k in range(4):
        a(f'v_permlane32_swap_b32 v{acc + k}, v{acc + k + 4}')
    a(f'v_pk_add_f32 {vr(acc, 2)}, {vr(acc, 2)}, {vr(acc + 4, 2)}')
    a(f'v_pk_add_f32 {vr(acc + 2, 2)}, {vr(acc + 2, 2)}, {vr(acc + 6, 2)}')
    for k in range(2):
        a(f'v_permlane16_swap_b32 v{acc + k}, v{acc + k + 2}')
    a(f'v_pk_add_f32 {vr(acc, 2)}, {vr(acc, 2)}, {vr(acc + 2, 2)}')


BC0 = 'op_sel:[0,0,0] op_sel_hi:[1,0,1]'
BC1 = 'op_sel:[0,1,0] op_sel_hi:[1,1,1]'


def prologue():
    a(f'''
    s_cmp_ge_u32 s2, 256
    s_cbranch_scc1 L_end
    ''')
    if DIAG:
        for k in range(NST):
            a(f's_mov_b32 s{sTS + k}, 0')
        a('s_memtime s[98:99]')
        for p in ('M', 'H0', 'H1'):
            stamps[p] = ['start']
        stamp('start')
    a(f'''
    s_load_dwordx16 s[8:23], s[0:1], 0
    s_load_dwordx8 s[24:31], s[0:1], 64
    s_load_dwordx2 s[32:33], s[0:1], 96
    v_lshrrev_b32 v20, 6, v0
    {f's_xor_b32 s{sX}, s2, {QR}' if QR else ''}
    s_and_b32 s{sX}, {f's{sX}' if QR else 's2'}, 7
    s_lshr_b32 s{sIdx}, s2, 3
    v_readfirstlane_b32 s{sW}, v20
    v_and_b32 v{vL}, 63, v0
    s_lshl_b32 s{sMe}, s{sX}, 5
    s_add_u32 s{sMe}, s{sMe}, s{sIdx}
    v_lshlrev_b32 v{vL16}, 4, v{vL}
    v_lshlrev_b32 v{vL4}, 2, v{vL}
    s_cmp_eq_u32 s{sW}, 9
    s_cbranch_scc1 L_h1
    s_cmp_eq_u32 s{sW}, 8
    s_cbranch_scc1 L_h0
    s_cmp_eq_u32 s{sRi}, 30
    s_cbranch_scc0 L_nopf
    s_cmp_ge_u32 s{sW}, (L_tables_end-{NAME}_kernel)/8192
    s_cbranch_scc1 L_nopf
    s_getpc_b64 {sr(sBa)}
    L_pc0:
    s_sub_u32 s{sBa}, s{sBa}, L_pc0-{NAME}_kernel
    s_subb_u32 s{sBa + 1}, s{sBa + 1}, 0
    v_lshlrev_b32 v21, 7, v0
    global_load_dword v157, v21, {sr(sBa)}
    L_nopf:
    ''')


def xloads():
    for j in range(5):
        a(f'global_load_dword v{vXR + j}, v156, {sr(A_X)} offset:{256 * j} {INPOL}')


def blk_id():
    if NS and GN:
        a(f'''
        s_lshl_b32 s{sT}, s{sX}, 2
        s_lshr_b32 s{sT}, {hex(GMAP)}, s{sT}
        s_and_b32 s{sT}, s{sT}, 7
        s_cmp_lt_u32 s{sT}, {GN}
        s_cselect_b32 s{sBlk}, {GN}, {8 - GN}
        s_cselect_b32 s{sU0}, 0, {31 * GN}
        s_mul_i32 s{sBlk}, s{sBlk}, s{sIdx}
        s_add_u32 s{sBlk}, s{sBlk}, s{sT}
        s_add_u32 s{sBlk}, s{sBlk}, s{sU0}
        s_cmp_lt_u32 s{sBlk}, 80
        s_cselect_b32 s{sU0}, -40, 0
        s_cmp_lt_u32 s{sBlk}, 40
        s_cselect_b32 s{sU0}, 40, s{sU0}
        s_add_u32 s{sBlk}, s{sBlk}, s{sU0}
        ''')
        return
    if NS:
        a(f'''
        s_mul_i32 s{sBlk}, s{sX}, 25
        s_add_u32 s{sBlk}, s{sBlk}, s{sIdx}
        s_cmp_lt_u32 s{sBlk}, 45
        s_cselect_b32 s{sU0}, -5, 35
        s_add_u32 s{sBlk}, s{sBlk}, s{sU0}
        s_mul_i32 s{sU0}, s{sX}, 5
        s_add_u32 s{sU0}, s{sU0}, s{sIdx}
        s_add_u32 s{sU0}, s{sU0}, 40
        s_cmp_lt_u32 s{sIdx}, 5
        s_cselect_b32 s{sBlk}, s{sU0}, s{sBlk}
        s_cmp_lt_u32 s{sIdx}, 30
        s_cselect_b32 s{sBlk}, s{sBlk}, 0xf1
        ''')
        return
    if EX == 7:
        a(f'''
        s_mul_i32 s{sBlk}, s{sIdx}, 7
        s_add_u32 s{sBlk}, s{sBlk}, s{sX}
        s_add_u32 s{sT}, s{sIdx}, 225
        s_cmp_eq_u32 s{sX}, 0
        s_cselect_b32 s{sBlk}, s{sT}, s{sBlk}
        s_sub_u32 s{sBlk}, s{sBlk}, 1
        ''')
        return
    if EX:
        a(f'''
        s_lshl_b32 s{sT}, s{sX}, 2
        s_lshr_b32 s{sT}, {hex(XMAP)}, s{sT}
        s_and_b32 s{sT}, s{sT}, 7
        s_cmp_lt_u32 s{sIdx}, {80 // EX}
        s_cselect_b32 s{sBlk}, {80 // EX}, {30 - 80 // EX}
        s_cselect_b32 s{sU0}, 0, {80 - 80 // EX}
        s_cmp_lt_u32 s{sT}, {EX}
        s_cselect_b32 s{sBlk}, s{sBlk}, 30
        s_cselect_b32 s{sU0}, s{sU0}, 0
        s_mul_i32 s{sBlk}, s{sBlk}, s{sT}
        ''')
    else:
        a(f'''
        s_cmp_lt_u32 s{sIdx}, 10
        s_cselect_b32 s{sBlk}, 10, 20
        s_cselect_b32 s{sU0}, 0, 70
        s_mul_i32 s{sBlk}, s{sBlk}, s{sX}
        ''')
    a(f'''
    s_add_u32 s{sBlk}, s{sBlk}, s{sU0}
    s_add_u32 s{sBlk}, s{sBlk}, s{sIdx}
    s_cmp_lt_u32 s{sIdx}, 30
    s_cselect_b32 s{sBlk}, s{sBlk}, 0xf1
    ''')


def is_a():
    if NS and GN:
        a(f's_sub_u32 s{sT}, s{sBlk}, 40')
        a(f's_cmp_lt_u32 s{sT}, 40')
        return
    a(f's_cmp_lt_u32 s{sIdx}, 5' if NS else f's_cmp_lt_u32 s{sBlk}, 80')


def is_b():
    if NS and GN:
        a(f's_sub_u32 s{sT}, s{sBlk}, 40')
        a(f's_cmp_lt_u32 s{sT}, 40')
        a(f's_cselect_b32 s{sT}, 0xff, s{sBlk}')
        a(f's_cmp_lt_u32 s{sT}, 240')
        return
    if NS:
        a(f's_sub_u32 s{sT}, s{sIdx}, 5')
        a(f's_cmp_lt_u32 s{sT}, 25')
        return
    a(f's_sub_u32 s{sT}, s{sBlk}, 80')
    a(f's_cmp_lt_u32 s{sT}, 160')


def pub_setup(tag):
    a(f'''
    v_lshlrev_b32 v28, 5, v{vL}
    v_lshlrev_b32 v34, 3, v{vL}
    v_and_b32 v34, 24, v34
    v_bfe_u32 v34, s{tag}, v34, 8
    v_mov_b32 v33, 0xffffff00
    s_sub_u32 s{sU0}, s{sBlk}, 40
    s_cmp_lt_u32 s{sU0}, 40
    s_cselect_b32 s{sU1}, 1.0, 0
    s_and_b32 s{sU0}, s{sBlk}, 3
    s_cselect_b32 s{sU1}, 0, s{sU1}
    v_mov_b32 v35, s{sU1}
    ''')


GV = (130, 142, 48, 56, 158, 159)


def gemv_addr():
    vw, vc, acc, tmp, vo, voc = GV
    blk_id()
    a(f'''
    v_lshrrev_b32 v{voc}, 3, v{vL}
    v_mad_u32_u24 v{voc}, v20, 20, v{voc}
    v_and_b32 v21, 3, s{sBlk}
    v_mul_u32_u24 v21, 160, v21
    v_add_u32 v{voc}, v{voc}, v21
    v_lshrrev_b32 v21, 2, s{sBlk}
    v_and_b32 v{vo}, 0x70, v{vL16}
    v_lshl_add_u32 v{vo}, v21, 7, v{vo}
    v_mul_u32_u24 v21, 7680, v{voc}
    v_add_u32 v{vo}, v{vo}, v21
    v_lshlrev_b32 v{voc}, 1, v{voc}
    v_lshl_add_u32 v156, v20, 8, s{sMe}
    v_mul_u32_u24 v156, 1280, v156
    v_add_u32 v156, v156, v{vL4}
    ''')
    for k in range(4):
        a(f'v_mov_b32 v{vw + 8 + k}, 0')
    a(f'v_mov_b32 v{vc + 2}, 0')


def gemv_issue(scalar=False):
    vw, vc, acc, tmp, vo, voc = GV
    def cl_():
        for j in range(3):
            if j == 2:
                a('s_mov_b32 exec_hi, 0')
            a(f'global_load_ushort v{vc + j}, v{voc}, {sr(C_)} offset:{16 * j}')
        a('s_mov_b64 exec, -1')

    def wl_():
        for j in range(3):
            if j == 2:
                a('s_mov_b32 exec_hi, 0')
            a(f'global_load_dwordx4 {vr(vw + 4 * j, 4)}, v{vo}, {sr(W_MOD)} {INPOL}')
            if j < 2:
                a(f'v_add_u32 v{vo}, {8 * 7680}, v{vo}')
        a('s_mov_b64 exec, -1')
    if scalar:
        if not CF:
            wl_()
        a(f'''
        s_and_b32 s{sU0}, s{sBlk}, 3
        s_lshl_b32 s{sU0}, s{sU0}, 3
        s_add_u32 s{sU0}, s{sU0}, s{sW}
        s_mul_i32 s{sU0}, s{sU0}, 40
        s_load_dwordx8 s[56:63], {sr(C_)}, s{sU0}
        s_add_u32 s{sU0}, s{sU0}, 32
        s_load_dwordx2 s[64:65], {sr(C_)}, s{sU0}
        ''')
        if CF:
            wl_()
        return
    cl_()
    wl_()


def gemv_compute(role, after, at_c=None, scalar=False):
    nj = 3
    vw, vc, acc, tmp, vo, voc = GV
    if role == 'B':
        acc = 150
    if scalar:
        a(f'v_lshlrev_b32 v{tmp}, 1, v{vL}')
        a(f'v_and_b32 v{tmp}, 16, v{tmp}')
        a('s_waitcnt lgkmcnt(0)')
        for g in range(4):
            if g == 0:
                a('s_mov_b64 exec, 0xffff')
            else:
                a('s_lshl_b64 exec, exec, 16')
            for j in range(3 if g < 2 else 2):
                a(f'v_lshrrev_b32 v{vc + j}, v{tmp}, s{56 + 4 * j + g}')
        a('s_mov_b64 exec, -1')
    else:
        a(f's_waitcnt vmcnt({nj + (0 if at_c else after)})')
    stamp('c in')
    if at_c:
        at_c()
    cs_ = [vc + j for j in range(nj)]
    for c in cs_:
        a(f'v_lshlrev_b32 v{c}, 16, v{c}')
    silu(cs_, cs_, [tmp + j for j in range(nj)])
    sc = [(145, 146), (147, 148), (149, 59)]
    for c, s in zip(cs_, sc):
        a(f'v_cvt_pk_bf16_f32 v{s[0]}, v{c}, 0')
    for s in sc:
        a(f'v_lshlrev_b32 v{s[1]}, 16, v{s[0]}')
    a(f'''
    v_and_b32 v{vo}, 7, v{vL}
    v_lshlrev_b32 v{vo}, 8, v{vo}
    v_and_b32 v{voc}, 48, v{vL}
    v_lshl_add_u32 v{vo}, v{voc}, 2, v{vo}
    s_lshl_b32 s{sT}, s{sW}, 2
    s_add_u32 s{sT}, s{sT}, {RED}
    v_add_u32 v{vo}, s{sT}, v{vo}
    ''')
    for k in range(8):
        a(f'v_mov_b32 v{acc + k}, 0')
    for j in range(nj):
        a(f's_waitcnt vmcnt({nj - 1 - j + after})')
        for k in (0, 4, 1, 5, 2, 6, 3, 7):
            a(f'v_dot2c_f32_bf16 v{acc + k}, v{vw + 4 * j + k // 2}, v{sc[j][k & 1]}')
    stamp('w in')
    swap_reduce8(acc)
    for c in ('row_ror:8',):
        dpp('v_add_f32', acc, c)
        dpp('v_add_f32', acc + 1, c)
    a(f'''
    s_mov_b32 exec_lo, 0x00ff00ff
    s_mov_b32 exec_hi, 0x00ff00ff
    ds_write2_b32 v{vo}, v{acc}, v{acc + 1} offset0:0 offset1:8
    s_mov_b64 exec, -1
    s_waitcnt lgkmcnt(0)
    ''')


def m8(dst, inverse):
    t0, t1, t2, t3 = 20, 21, 22, 23
    a(f'v_lshrrev_b32 v{t0}, 4, v{vL}           ; g')
    if not inverse:
        a(f'''
        v_bfe_u32 v{t1}, v{vL}, 2, 2
        v_bfe_u32 v{t2}, v{vL}, 1, 1
        v_lshl_add_u32 v{t1}, v{t2}, 2, v{t1}
        v_lshlrev_b32 v{t0}, 9, v{t0}
        v_add_u32 v{t0}, s{sMe}, v{t0}
        v_mul_u32_u24 v{t2}, v{t0}, v{t1}
        v_lshl_add_u32 v{t3}, v{t1}, 8, v{t2}
        ''')
    else:
        a(f'''
        v_bfe_u32 v{t1}, v{vL}, 1, 3
        v_lshlrev_b32 v{t1}, 8, v{t1}
        v_add_u32 v{t1}, s{sMe}, v{t1}
        v_mul_u32_u24 v{t2}, v{t0}, v{t1}
        v_xor_b32 v{t0}, 4, v{t0}
        v_mul_u32_u24 v{t3}, v{t0}, v{t1}
        v_sub_u32 v{t2}, 0, v{t2}
        v_sub_u32 v{t3}, 0, v{t3}
        ''')
    a(f'''
    v_and_b32 v{t0}, 1, v{vL}
    v_lshl_add_u32 v{t2}, v{t0}, 9, v{t2}
    v_lshl_add_u32 v{t3}, v{t0}, 9, v{t3}
    v_and_b32 v{t2}, 0x7ff, v{t2}
    v_and_b32 v{t3}, 0x7ff, v{t3}
    v_cvt_f32_u32 v{t2}, v{t2}
    v_cvt_f32_u32 v{t3}, v{t3}
    v_mul_f32 v{t2}, 0x3a000000, v{t2}
    v_mul_f32 v{t3}, 0x3a000000, v{t3}
    v_cos_f32 v{t0}, v{t2}
    v_sin_f32 v{t2}, v{t2}
    v_cos_f32 v{t1}, v{t3}
    v_sin_f32 v{t3}, v{t3}
    v_cvt_pk_bf16_f32 v{dst}, v{t0}, v{t2}
    v_cvt_pk_bf16_f32 v{dst + 1}, v{t1}, v{t3}
    ''')


INV640 = hex(f2u(1.0 / 640))
EPS = hex(f2u(1e-5))


def rstd_chain(var, out):
    rbf(out, f'v{var}')
    a(f'v_add_f32 v{out}, {EPS}, v{out}')
    rbf(out, f'v{out}')
    a(f'v_sqrt_f32 v{out}, v{out}')
    rbf(out, f'v{out}')
    a(f'v_rcp_f32 v{out}, v{out}')


def sum10(dst2, x):
    a(f'v_pk_add_f32 {vr(dst2, 2)}, {vr(x, 2)}, {vr(x + 2, 2)}')
    for h in (4, 6, 8):
        a(f'v_pk_add_f32 {vr(dst2, 2)}, {vr(dst2, 2)}, {vr(x + h, 2)}')
    a(f'v_add_f32 v{dst2}, v{dst2}, v{dst2 + 1}')


def dot10(dst2, x, y):
    a(f'v_pk_mul_f32 {vr(dst2, 2)}, {vr(x, 2)}, {vr(y, 2)}')
    for h in (2, 4, 6, 8):
        a(f'v_pk_fma_f32 {vr(dst2, 2)}, {vr(x + h, 2)}, {vr(y + h, 2)}, {vr(dst2, 2)}')
    a(f'v_add_f32 v{dst2}, v{dst2}, v{dst2 + 1}')


def prio(k, on):
    if PRIO[k] == '0':
        return
    if not on:
        a('s_setprio 0')
        return
    L = newlabel('pr')
    a(f's_cmp_lt_u32 s{sW}, 4')
    a(f's_cbranch_scc1 {L}')
    a('s_setprio 1')
    a.label(L)


def bar(n):
    a(f's_barrier                                   ; {n}')


def tpoll(loads, lanes_s=None, between=None):
    L, D, Cc = newlabel('poll'), newlabel('polld'), newlabel('pollc')
    if lanes_s:
        a(f's_mov_b64 exec, {lanes_s}')
    for ld in loads:
        a(ld)
    if lanes_s:
        a('s_mov_b64 exec, -1')
    a(f's_mov_b32 s{sCnt}, {SPIN}')
    if between is not None:
        between()
    a('s_waitcnt vmcnt(0)')
    a.label(Cc)
    a(f'''
    v_cmp_ne_u32 vcc, s{sTag}, v{Ra + 3}
    v_cmp_ne_u32 {sr(sBc)}, s{sTag}, v{Ra + 7}
    s_or_b64 vcc, vcc, {sr(sBc)}
    s_and_b64 vcc, vcc, {sr(sM8)}
    s_cbranch_scc1 {L}
    ''')
    a.label(D)

    def retry():
        a.label(L)
        a(f'''
        s_sub_u32 s{sCnt}, s{sCnt}, 1
        s_cbranch_scc1 {D}
        s_lshr_b64 {sr(sBc)}, vcc, 1
        s_or_b64 vcc, vcc, {sr(sBc)}
        s_lshr_b64 {sr(sBc)}, vcc, 2
        s_or_b64 exec, vcc, {sr(sBc)}
        ''')
        for ld in loads:
            a(ld)
        a('s_mov_b64 exec, -1')
        a('s_waitcnt vmcnt(0)')
        a(f's_branch {Cc}')
    late.append(retry)


sM8, sLn, sM3 = 62, 64, 66
vSg0, vSg1, vPair, vPairX = vE0 + 1, vE0 + 2, vE0 + 5, vM8F + 1


def f32_expand(q0, m0, m1):
    for tile in range(2):
        for k in range(8):
            b = vF32 + 16 * tile + k
            a(f'v_alignbit_b32 v{b + 8}, v{b}, v{b}, 16')
            a(f'v_xor_b32 v{b + 8}, v{m1}, v{b + 8}')
            if m0 is not None:
                a(f'v_xor_b32 v{b}, v{m0}, v{b}')


def f32_read(q0):
    for tile in range(2):
        for ks in range(2):
            tab_read(vF32 + 16 * tile + 4 * ks, q0 + 2 * tile + ks)


def setup_addr():
    a(f'''
    v_bfe_u32 v20, v{vL}, 2, 2                    ; cs
    v_and_b32 v21, 48, v{vL16}                    ; part*16
    v_lshrrev_b32 v22, 4, v{vL}                   ; g
    v_lshl_add_u32 v23, v22, 5, v20               ; 32g + cs
    v_mul_u32_u24 v{vPoll}, {T1S}, v23
    v_add_u32 v{vPoll}, v{vPoll}, v21
    v_mul_u32_u24 v23, 80, v23
    s_mul_i32 s{sT}, s{sW}, 320
    s_add_u32 s{sT}, s{sT}, {XB2}
    v_add3_u32 v{vE0 + 4}, v23, v21, s{sT}        ; staging address
    v_mul_u32_u24 v{vS}, {NJ * 64}, v22
    v_and_b32 v23, 0xf0, v{vL16}
    v_add_u32 v{vS}, v{vS}, v23
    v_lshlrev_b32 v{vE0}, 3, v{vL}                ; 8*lane
    v_mul_u32_u24 v22, {4 * SA}, v22
    v_mul_u32_u24 v20, 120, v20
    v_lshl_add_u32 v20, v21, 1, v20
    s_min_u32 s{sT}, s{sW}, 5
    s_mul_i32 s{sT}, s{sT}, 480
    s_add_u32 s{sT}, s{sT}, {XB1}
    v_add3_u32 v{vPair}, v20, v22, s{sT}
    ''')


def setup_masks():
    a(f'''
    s_mov_b32 s{sM7}, 0x77777777
    s_mov_b32 s{sM7 + 1}, 0x77777777
    s_mov_b32 s{sM8}, 0x88888888
    s_mov_b32 s{sM8 + 1}, 0x88888888
    s_mov_b32 s{sM3}, 0x37773777
    s_mov_b32 s{sM3 + 1}, 0x37773777
    s_cmp_eq_u32 s{sW}, 5
    s_cselect_b32 s{sLn}, 0x00ff00ff, -1
    s_mov_b32 s{sLn + 1}, s{sLn}
    ''')


def row_fwd():
    for t in range(2):
        mfma32(RD + 8 * t, Ra + 4 * t, vF20)
        mfma32(RD + 8 * t + 4, Ra + 4 * t, vF20 + 4)
    fine('p1', 'mfma1 issued')
    for t, tmp in ((0, Rb), (1, Rc)):
        cmul(tmp, tmp + 4, RD + 8 * t, RD + 8 * t + 4, vTW + 8 * t, vTW + 8 * t + 4, -1, pk=PK[0] == '1' or (PK[0] == '2' and t == 1))
        pack4(Ra + 4 * t, tmp, tmp + 4)
    fine('p1', 'twiddled')
    for u in range(2):
        for ks in range(2):
            for e in range(2):
                d = RD + 8 * u + 4 * e
                mfma32(d, vF32 + 16 * u + 8 * e + 4 * ks, Ra + 4 * ks, d if ks else None)
    fine('p1', 'mfma2 issued')


def main_path():
    vZ, vSA, vCA = vVec, vVec + 10, vVec + 20
    gemv_addr()
    is_a()
    a('s_waitcnt lgkmcnt(0)')
    stamp('kernarg')
    a('s_cbranch_scc1 L_a')
    xloads()
    a('s_branch L_a0')
    a.label('L_a')
    gemv_issue(SC_)
    if MT and AX == 2:
        a(f's_cmp_lg_u32 s{sW}, 0')
        a('s_cbranch_scc1 L_a0')
        a(f'v_lshl_add_u32 v36, s{sBlk}, 8, v{vL4}')
        a('v_mov_b32 v37, 0')
        a(f'global_store_dword v36, v37, {sr(WS)} sc1')
    if AX == 0:
        xloads()
    a.label('L_a0')
    epoch_load()
    if S1 >= 1:
        m8(vM8F, False)
    if AX == 2:
        is_a()
        a('s_cbranch_scc0 L_a00')
        xloads()
        a.label('L_a00')
    if S1 >= 2:
        m8(vM8I, True)
    if S1 >= 3:
        setup_addr()
    is_a()
    a('s_cbranch_scc0 L_setup')
    a(f's_cmp_lg_u32 s{sW}, 0')
    a('s_cbranch_scc1 L_a1')
    if MT and AX != 2:
        a(f'v_lshl_add_u32 v36, s{sBlk}, 8, v{vL4}')
        a('v_mov_b32 v37, 0')
        a(f'global_store_dword v36, v37, {sr(WS)} sc1')
    a('s_waitcnt lgkmcnt(0)')
    epoch_tag(sV1)
    pub_setup(sV1)
    a.label('L_a1')
    gemv_compute('A', 5, at_c=xloads if AX == 1 else None, scalar=SC_)
    a(f's_cmp_lg_u32 s{sW}, 0')
    bar('B1')
    a(f's_cbranch_scc1 {"L_a2" if PB else "L_setup"}')
    publish('M')
    if PB:
        a.label('L_a2')
        bar('B1b')
    a.label('L_setup')
    a(f'''
    s_mov_b32 s{sHI}, 0xffff0000
    s_lshl_b32 s{sRow}, s{sW}, 8
    s_add_u32 s{sKey}, s{sRow}, s{sMe}
    s_mul_i32 s{sRow}, s{sKey}, 1280
    ''')
    if S1 < 1:
        m8(vM8F, False)
    if S1 < 2:
        m8(vM8I, True)
    if S1 < 3:
        setup_addr()
    setup_masks()
    is_a()
    a('s_cbranch_scc1 L_xw')
    is_b()
    a('s_cbranch_scc0 L_nb')
    gemv_issue()
    a.label('L_nb')
    bar('B0')
    a('s_waitcnt vmcnt(6)')
    a('s_cbranch_scc1 L_ln1')
    a('s_waitcnt vmcnt(0)')
    a.label('L_xw')
    a(f's_cmp_eq_u32 s{sW}, 0')
    a('s_waitcnt vmcnt(1)')
    a('s_cbranch_scc1 L_ln1')
    a('s_waitcnt vmcnt(0)')
    a.label('L_ln1')
    stamp('x in')
    for j in range(5):
        unpack(vXS + tm(j, 0), vXS + tm(j, 1), vXR + j)
    sum10(24, vXS)
    wave_sum([24], [sU0])
    a(f'v_mov_b32 v24, {INV640}')
    a(f'v_mul_f32 v26, s{sU0}, v24                ; mean')
    rbf(28, 'v26')
    a(f'v_readfirstlane_b32 s{sM1B}, v28')
    for h in range(0, 10, 2):
        a(f'v_pk_add_f32 {vr(vXS + h, 2)}, {vr(vXS + h, 2)}, v[28:29] op_sel:[0,0] op_sel_hi:[1,0] neg_lo:[0,1] neg_hi:[0,1]')
    dot10(30, vXS, vXS)
    wave_sum([30], [sU0])
    a(f'''
    v_sub_f32 v26, v26, v28
    v_mul_f32 v26, v26, v26
    v_fma_f32 v26, s{sU0}, v24, -v26
    ''')
    rstd_chain(26, 27)
    for j in range(5):
        for t in range(2):
            a(f'v_mul_f32 v{vZ + 2 * j + t}, v27, v{vXS + tm(j, t)}')
    a(f'''
    v_mov_b32 v23, 0
    v_mov_b32 v27, 0
    s_waitcnt lgkmcnt(0)
    ''')
    epoch_tag()
    tag_bytes()
    a(f'''
    s_mul_i32 s{sU0}, s{sMe}, {T1S}
    s_lshl_b32 s{sU1}, s{sW}, 8
    s_add_u32 s{sU0}, s{sU0}, s{sU1}
    ''')
    base_add(sBa, WS, sU0, T1_G)
    base_add(sBb, WS, sU0, T1_G + 4 * NJ * 64)
    a(f'''
    v_subrev_u32 v28, 64, v0                      ; u
    v_lshrrev_b32 v29, 4, v28
    v_lshlrev_b32 v29, 10, v29
    v_and_b32 v30, 0xf0, v{vL16}
    v_add_u32 v29, v29, v30
    s_mov_b32 s{sU2}, {MODA_L}
    ''')
    if NS:
        a(f'''
        v_add_u32 v29, 10240, v29
        v_bfe_u32 v31, v28, 5, 1
        v_lshlrev_b32 v31, 3, v31
        v_and_b32 v30, 31, v28
        v_lshl_add_u32 v31, v30, 5, v31
        v_lshrrev_b32 v28, 6, v28
        v_lshlrev_b32 v28, 10, v28
        v_add3_u32 v28, v28, v31, s{sU2}
        s_cmp_eq_u32 s{sW}, 3
        s_cselect_b32 s{sBc + 1}, 0, -1
        s_mov_b32 s{sBc}, -1
        ''')
    else:
        a(f'''
        v_cmp_le_u32 vcc, 160, v28
        v_mov_b32 v31, {8 - 160 * 32}
        v_cndmask_b32 v31, 0, v31, vcc
        v_lshlrev_b32 v28, 5, v28
        v_add3_u32 v28, v28, v31, s{sU2}
        ''')
    a(f'''
    v_add_u32 v{vE0 + 3}, s{sU2}, v{vL16}
    s_lshr_b32 s{sU1}, s{sW}, 1
    s_mul_i32 s{sU1}, s{sU1}, {4 * SA}
    s_and_b32 s{sT}, s{sW}, 1
    s_lshl_b32 s{sT}, s{sT}, 2
    s_add_u32 s{sU1}, s{sU1}, s{sT}
    s_add_u32 s{sU1}, s{sU1}, {XB1}
    ''')
    bar('BT')
    stamp('BT')
    tab_read(vF20, T_F20C)
    tab_read(vF20 + 4, T_F20S)
    for q in range(4):
        tab_read(vTW + 4 * q, T_TW1 + q)
    f32_read(T_F32A)
    tab_read(32, T_ADR)

    def expand():
        a(f'''
        s_waitcnt lgkmcnt(0)
        v_add_u32 v{vSg0}, s{sU1}, v32
        v_add_u32 v{vSg1}, 160, v{vSg0}
        ''')
        f32_expand(T_F32A, None, 33)
    def expand_if(a_side):
        L = newlabel('xp')
        is_a()
        a(f's_cbranch_scc{0 if a_side else 1} {L}')
        expand()
        a.label(L)
    if XP == 0:
        expand()
    if XP == 2:
        expand_if(False)

    def bgemv(after):
        L = newlabel('ng')
        is_b()
        a(f's_cbranch_scc0 {L}')
        gemv_compute('B', after)
        a.label(L)

    def behind(after):
        if not GB:
            bar('BP')
        if XP == 1:
            expand()
        if XP == 2:
            expand_if(True)
        if GB:
            bgemv(after)
            bar('BP')
    if not GB:
        bgemv(0)
    if BG:
        bar('BG')
    stamp('poll start')
    a(f's_sub_u32 s{sT}, s{sW}, 1')
    a(f's_cmp_lt_u32 s{sT}, {3 if NS else 5}')
    a('s_cbranch_scc1 L_mpoll')
    behind(0)
    a('s_branch L_b2')
    a.label('L_mpoll')
    if NS:
        a(f's_mov_b64 exec, {sr(sBc)}')
    poll([f'global_load_dwordx4 {vr(36 + 4 * p, 4)}, v29, {sr(WS)} offset:{256 * p} sc1' for p in range(4)],
         list(range(36, 52)), [52, 53, 54], empty='tag', between=lambda: (a('s_mov_b64 exec, -1' if (NS and (XP or GB)) else ''), behind(4),
                                                                       a(f's_mov_b64 exec, {sr(sBc)}' if (NS and (XP or GB)) else '')))
    a(f'''
    v_pk_add_f32 v[36:37], v[36:37], v[40:41]
    v_pk_add_f32 v[38:39], v[38:39], v[42:43]
    v_pk_add_f32 v[44:45], v[44:45], v[48:49]
    v_pk_add_f32 v[46:47], v[46:47], v[50:51]
    v_pk_add_f32 v[36:37], v[36:37], v[44:45]
    v_pk_add_f32 v[38:39], v[38:39], v[46:47]
    ''')
    if MR:
        a('v_cvt_pk_bf16_f32 v40, v36, v37')
        a('v_cvt_pk_bf16_f32 v41, v38, v39')
        unpack(36, 37, 40)
        unpack(38, 39, 41)
    if NS:
        a(f's_mov_b64 exec, {sr(sBc)}')
    a(f'ds_write2_b64 v28, v[36:37], v[38:39] offset0:0 offset1:2')
    if NS:
        a('s_mov_b64 exec, -1')
    a.label('L_b2')
    stamp('poll end')
    fine('p1', 'pre-B2')
    a('s_waitcnt lgkmcnt(0)')
    a('s_barrier                                   ; B2')
    stamp('B2 done (mod ready)')
    fine('p1', 'B2')
    assert MODA_L % 16 == 0
    if not NS:
        for j in range(5):
            a(f'ds_read_b128 {vr(vSA + 4 * j, 4)}, v{vE0 + 3} offset:{1024 * j}')
        for j in range(5):
            a(f's_waitcnt lgkmcnt({4 - j})')
            for t in range(2):
                a(f'v_fmac_f32 v{vSA + 4 * j + t}, v{vZ + 2 * j + t}, v{vSA + 4 * j + 2 + t}')
            if j in (1, 3):
                for t in range(2):
                    a(f'v_cvt_pk_bf16_f32 v{Ra + 4 * t + j // 2}, v{vSA + 4 * j - 4 + t}, v{vSA + 4 * j + t}')
        for t in range(2):
            a(f'v_cvt_pk_bf16_f32 v{Ra + 4 * t + 2}, v{vSA + 16 + t}, 0')
    else:
        a(f'ds_read_b128 {vr(vSA, 4)}, v{vE0 + 3}')
        a(f'ds_read_b128 {vr(vSA + 4, 4)}, v{vE0 + 3} offset:1024')
        a(f'ds_read_b64 {vr(vSA + 8, 2)}, v{vE0 + 3} offset:2048')
        for jj in range(3):
            a(f's_waitcnt lgkmcnt({2 - jj})')
            for h in range(2 if jj < 2 else 1):
                k = 4 * jj + 2 * h
                a(f'v_pk_mul_f32 {vr(vSA + k, 2)}, {vr(vSA + k, 2)}, {vr(vZ + k, 2)}')
            for t in range(2):
                a(f'v_cvt_pk_bf16_f32 v{Ra + 4 * t + jj}, v{vSA + 4 * jj + t}, {"v%d" % (vSA + 4 * jj + 2 + t) if jj < 2 else 0}')
    fine('p1', 'h packed')
    row_fwd()
    a(f's_mov_b64 exec, {sr(sM3)}')
    for u in range(2):
        pack4(Rb + 4 * u, RD + 8 * u, RD + 8 * u + 4)
        for r in (0, 2):
            a(f'ds_write2_b32 v{vSg1 if u else vSg0}, v{Rb + 4 * u + r}, v{Rb + 4 * u + r + 1} offset0:{80 * r} offset1:{80 * r + 80}')
    a('s_mov_b64 exec, -1')
    a(f'v_mov_b32 v{Rc + 3}, s{sTag}')
    a(f'v_mov_b32 v{Rc + 7}, s{sTag}')
    a(f's_cmp_ge_u32 s{sW}, 6')
    fine('p1', 'lds written')
    a('s_waitcnt lgkmcnt(0)')
    fine('p1', 'pre-B3')
    fine('x1', 'pre-B3')
    bar('B3')
    fine('p1', 'B3')
    fine('x1', 'B3')
    a('s_cbranch_scc1 L_t1done')
    for n in (3, 0, 1, 2):
        a(f'ds_read_b64 {vr(Ra + 2 * n, 2)}, v{vPair} offset:{8 * n}')
    for k, n in enumerate((3, 0, 1, 2)):
        a(f's_waitcnt lgkmcnt({3 - k})')
        mfma16(RD + 4 * n, vM8F, Ra + 2 * n)
    fine('p1', 'r8 issued')
    a(f's_mov_b64 exec, {sr(sM7)}')
    for j in range(2):
        a(f'v_cvt_pk_bf16_f32 v{Rc + 4 * j + 3}, v{RD + 12 + 2 * j}, v{RD + 12 + 2 * j + 1}')
    a(f's_mov_b64 exec, {sr(sLn)}')
    for j in range(2):
        for n in range(3):
            a(f'v_cvt_pk_bf16_f32 v{Rc + 4 * j + n}, v{RD + 4 * n + 2 * j}, v{RD + 4 * n + 2 * j + 1}')
        a(f'global_store_dwordx4 v{vS}, {vr(Rc + 4 * j, 4)}, {sr(sBb if j else sBa)} sc1')
    a('s_mov_b64 exec, -1')
    a.label('L_t1done')
    stamp('T1 stored')
    if PROBE == 'rel':
        a(f'''
        s_lshl_b32 s{sT}, s{sW}, 8
        s_or_b32 s{sT}, s{sT}, s2
        s_cmp_lt_u32 s{sT}, 8
        s_cbranch_scc0 L_norel
        s_lshl_b32 s{sT}, s2, 7
        s_add_u32 s{sT}, s{sT}, {DIAG_G}
        v_mov_b32 v36, s{sT}
        v_mov_b32 v37, s{sTS}
        global_store_dword v36, v37, {sr(WS)} sc1
        L_norel:
        ''')
    fine('p1', 'stored')
    fine('x1', 'stored')

    def p3_mats():
        for q in range(3):
            tab_read(vF20 + 4 * q, T_F20I + q)
        f32_read(T_F32B)
        tab_read(40, T_ADR)
        a('s_waitcnt lgkmcnt(0)')
        f32_expand(T_F32B, 42, 43)
    a(f's_cmp_ge_u32 s{sIdx}, {NJ}')
    a('s_cbranch_scc1 L_idle')
    late.append(lambda: (a.label('L_idle'), bar('B3b'), p3_mats() if MATS else None, a('s_branch L_p3prep')))
    if MATS == 1:
        p3_mats()
    vWr = vVec
    for k in range(16):
        a(f'v_mov_b32 v{vWr + k}, 0')
    SC = 2.0 / (2048 * 640) / (ALPHA[16] ** 4 * ALPHA[20] ** 2 * ALPHA[32] ** 2)
    a(f'''
    v_and_b32 v36, 15, v{vL}
    v_and_b32 v37, 48, v{vL}
    v_lshl_add_u32 v36, v37, 2, v36               ; 64g + i
    v_mul_u32_u24 v{vE0 + 3}, 80, v36
    s_lshl_b32 s{sU1}, s{sW}, 3
    s_add_u32 s{sU1}, s{sU1}, {XB2}
    v_add_u32 v{vE0 + 3}, s{sU1}, v{vE0 + 3}
    v_lshlrev_b32 v36, 5, v36
    v_add_u32 v36, {WST}, v36
    v_and_b32 v39, 4, v{vL}
    v_lshlrev_b32 v39, 2, v39
    v_lshlrev_b32 v{vS}, 7, v37
    v_and_b32 v37, 0xf0, v{vL16}
    v_add_u32 v{vS}, v{vS}, v37
    s_mul_i32 s{sU0}, s{sX}, {NJ}
    s_add_u32 s{sU0}, s{sU0}, s{sIdx}
    s_lshl_b32 s{sU1}, s{sU0}, 6
    s_mul_i32 s{sT}, s{sW}, {4 * T1S}
    s_add_u32 s{sU1}, s{sU1}, s{sT}
    s_mul_i32 s{sU0}, s{sU0}, {T2S}
    s_lshl_b32 s{sT}, s{sW}, 8
    s_add_u32 s{sU0}, s{sU0}, s{sT}
    ''')
    if NS:
        a(f'''
        s_mul_i32 s{sU2}, s{sIdx}, 120
        s_lshl_b32 s{sT}, s{sW}, 4
        s_add_u32 s{sU2}, s{sU2}, s{sT}
        s_add_u32 s{sU2}, s{sU2}, {SAF}
        v_mov_b32 v140, s{sU2}
        ''')
    base_add(sBa, WS, sU1, T1_G)
    base_add(sBb, WS, sU1, T1_G + 128 * T1S)
    base_add(58, WS, sU0, T2_G)
    base_add(60, WS, sU0, T2_G + 8192)

    def w_setup(parts=(0, 1)):
      if 0 in parts:
        for q in range(2):
            tab_read(vTW + 4 * q, T_F16 + q)
            tab_read(vTW + 8 + 4 * q, T_TW2 + q)
        a(f'''
        s_mul_i32 s{sU0}, s{sIdx}, 15
        s_min_u32 s{sU1}, s{sU0}, 306
        s_add_u32 s{sU2}, s{sU1}, s{sX}
        s_and_b32 s{sU2}, s{sU2}, 1
        s_sub_u32 s{sU1}, s{sU1}, s{sU2}
        s_lshl_b32 s{sT}, s{sW}, 1
        s_add_u32 s{sU0}, s{sU0}, s{sT}
        ''')
      if True:
        for s in parts:
            gam = sU3
            a(f'''
            s_add_u32 s{sU2}, s{sU0}, {s}
            s_sub_u32 s{sT}, s{sU2}, s{sU1}
            s_min_u32 s{sT}, s{sT}, 15
            s_lshl_b32 s{sT}, s{sT}, 1
            v_xor_b32 v37, s{sT}, v39
            v_add_u32 v37, v37, v36
            ''')
            for arr in range(2):
                for r in range(4):
                    a(f'ds_read_u16_d16_hi v{vWr + 8 * s + 4 * arr + r}, v37 offset:{arr * 8192 + r * 512}')
            a(f'''
            s_mul_i32 s{sT}, s{sU2}, 0x199a
            s_lshr_b32 s{sT}, s{sT}, 16
            s_mul_i32 s{sT}, s{sT}, 10
            s_mov_b32 s{gam}, {hex(f2u(SC))}
            s_cmp_eq_u32 s{sT}, s{sU2}
            s_cselect_b32 s{gam}, {hex(f2u(SC / 2))}, s{gam}
            s_waitcnt lgkmcnt(0)
            ''')
            for r in range(8):
                a(f'v_mul_f32 v{vWr + 8 * s + r}, s{gam}, v{vWr + 8 * s + r}')

    tl = [f'global_load_dwordx4 {vr(Ra, 4)}, v{vPoll}, {sr(sBa)} sc1', f'global_load_dwordx4 {vr(Ra + 4, 4)}, v{vPoll}, {sr(sBb)} sc1']
    fine('x1', 'pre-B3b')
    bar('B3b')
    fine('x1', 'B3b')
    if WFIRST:
        w_setup((0, 1) if WFIRST == 1 else (0,))
    fine('x1', 'wsetup')
    if DR1:
        a('s_waitcnt vmcnt(0)')
    if AL1:
        bar('B3c')
    fine('x1', 'drained')
    if PACE1:
        a(f's_sleep {PACE1}')
    stamp('B3b done')
    tpoll(tl, between=lambda: (None if WFIRST == 1 else w_setup((1,) if WFIRST else (0, 1)), p3_mats() if MATS == 2 else None, fine('x1', 'behind')))
    fine('p2', 'T1 in')
    fine('x1', 'T1 in')
    a(f'ds_write_b128 v{vE0 + 4}, {vr(Ra, 4)}')
    a(f'ds_write_b128 v{vE0 + 4}, {vr(Ra + 4, 4)} offset:10240')
    a(f's_cmp_eq_u32 s{sW}, 7')
    a('s_waitcnt lgkmcnt(0)')
    bar('B4')
    stamp('B4 done (T1 in)')
    fine('p2', 'B4')
    fine('x1', 'B4')
    a('s_cbranch_scc1 L_p2_one')
    Fre, Fim, Tc, Ts = vTW, vTW + 4, vTW + 8, vTW + 12
    tmps = (Rb, Rc)

    def p2(ns):
        p2pk = PK[1] == '1'
        if ns == 2:
            for j in range(4):
                a(f'ds_read_b64 {vr(Rb + 2 * j, 2)}, v{vE0 + 3} offset:{1280 * j}')
            for h in range(2):
                a(f's_waitcnt lgkmcnt({2 - 2 * h})')
                for s in range(2):
                    a(f'v_pk_mov_b32 {vr(Ra + 4 * s + 2 * h, 2)}, {vr(Rb + 4 * h, 2)}, {vr(Rb + 4 * h + 2, 2)} op_sel:[{s},{s}]')
        else:
            a(f'ds_read2st64_b32 {vr(Ra, 2)}, v{vE0 + 3} offset0:0 offset1:5')
            a(f'ds_read2st64_b32 {vr(Ra + 2, 2)}, v{vE0 + 3} offset0:10 offset1:15')
            a('s_waitcnt lgkmcnt(0)')
        fine('p2', 'read')
        for s in range(ns):
            mfma32(RD + 8 * s, Ra + 4 * s, Fre)
            mfma32(RD + 8 * s + 4, Ra + 4 * s, Fim)
        fine('p2', 's1')
        if NS:
            a('ds_read2_b64 v[136:139], v140 offset0:0 offset1:1')
        def stage(cq, sign, swap, mm):
            lo = lambda s: tmps[s] + (4 if swap else 0)
            hi = lambda s: tmps[s] + (0 if swap else 4)
            if ns == 1 or not P2ORD:
                for s in range(ns):
                    cmul(tmps[s], tmps[s] + 4, RD + 8 * s, RD + 8 * s + 4, *cq(s), sign, pk=p2pk)
                    pack4(Ra + 4 * s, lo(s), hi(s))
                    mm(s, 0)
                    mm(s, 1)
                return
            cmul(tmps[0], tmps[0] + 4, RD, RD + 4, *cq(0), sign, pk=p2pk, head=P2ORD - 1)
            cmul(tmps[1], tmps[1] + 4, RD + 8, RD + 12, *cq(1), sign, pk=p2pk)
            pack4(Ra, lo(0), hi(0))
            cv = lambda r: a(f'v_cvt_pk_bf16_f32 v{Ra + 4 + r}, v{lo(1) + r}, v{hi(1) + r}')
            cv(0)
            cv(1)
            mm(0, 0)
            cv(2)
            cv(3)
            mm(0, 1)
            mm(1, 0)
            mm(1, 1)
        stage(lambda s: (Tc, Ts), -1, False, lambda s, k: mfma32(RD + 8 * s + 4 * k, Fim if k else Fre, Ra + 4 * s))
        fine('p2', 's2')
        if NS:
            Lx, Ly = newlabel('sa'), newlabel('sa')
            a(f's_cmp_eq_u32 s{sX}, 0')
            a(f's_cbranch_scc1 {Lx}')
            a.label(Ly)

            def add_sa(ns=ns, Lx=Lx, Ly=Ly):
                a.label(Lx)
                a('s_mov_b64 exec, 1')
                a('s_waitcnt lgkmcnt(0)')
                for s_ in range(ns):
                    for e in range(2):
                        a(f'v_fmac_f32 v{RD + 8 * s_ + 4 * e}, {hex(f2u(2048 * ALPHA[16] ** 2))}, v{136 + 2 * s_ + e}')
                a('s_mov_b64 exec, -1')
                a(f's_branch {Ly}')
            late2.append(add_sa)
        stage(lambda s: (vWr + 8 * s, vWr + 8 * s + 4), +1, True, lambda s, k: mfma32(RD + 8 * s + 4 * k, Ra + 4 * s, Fre if k else Fim))
        fine('p2', 's3')
        stage(lambda s: (Tc, Ts), +1, True, lambda s, k: mfma32(RD + 8 * s + 4 * k, Fre if k else Fim, Ra + 4 * s))
        fine('p2', 's4')
        for s in range(ns):
            pack4(Rb + s, RD + 8 * s, RD + 8 * s + 4, step=ns)
        if ns == 2:
            for r in range(4):
                a(f'ds_write_b64 v{vE0 + 3}, {vr(Rb + 2 * r, 2)} offset:{1280 * r}')
        else:
            a(f'ds_write2st64_b32 v{vE0 + 3}, v{Rb}, v{Rb + 1} offset0:0 offset1:5')
            a(f'ds_write2st64_b32 v{vE0 + 3}, v{Rb + 2}, v{Rb + 3} offset0:10 offset1:15')
        a('s_waitcnt lgkmcnt(0)')
    p2(2)
    a.label('L_b5')
    fine('p2', 'pre-B5')
    fine('x2', 'pre-B5')
    bar('B5')
    fine('p2', 'B5')
    fine('x2', 'B5')
    a(f'ds_read_b128 {vr(Rb, 4)}, v{vE0 + 4}')
    a(f'ds_read_b128 {vr(Rb + 4, 4)}, v{vE0 + 4} offset:10240')
    a('s_waitcnt lgkmcnt(1)')
    a(f'global_store_dwordx4 v{vS}, {vr(Rb, 4)}, {sr(58)} sc1')
    a('s_waitcnt lgkmcnt(0)')
    a(f'global_store_dwordx4 v{vS}, {vr(Rb + 4, 4)}, {sr(60)} sc1')
    stamp('T2 stored')
    fine('p2', 'stored')
    fine('x2', 'stored')
    late.append(lambda: (a.label('L_p2_one'), p2(1), a('s_branch L_b5')))
    a.label('L_p3prep')
    vGA, vVV, vGC, vGS = vVec, vVec + 10, vVec + 20, vVec + 30
    vMB = vE0 + 6
    for q in range(4):
        tab_read(vTW + 4 * q, T_TW3 + q)
    a(f'''
    v_add_u32 v{vMB}, {MODB_L}, v{vL4}
    v_bfe_u32 v36, v{vL}, 2, 2
    v_lshrrev_b32 v37, 4, v{vL}
    v_mad_u32_u24 v36, v37, {NJ}, v36
    v_and_b32 v38, 48, v{vL16}
    v_mul_u32_u24 v36, {T2S}, v36
    v_add_u32 v{vPoll}, v36, v38
    v_mul_u32_u24 v37, {4 * SA}, v37
    v_add_u32 v37, {XB1 + 8 * 361}, v37
    v_cndmask_b32 v{vPairX}, v{vPair}, v37, {sr(sM8)}
    s_and_b64 {sr(sM8)}, {sr(sM8)}, {sr(sLn)}
    s_lshl_b32 s{sU1}, s{sMe}, 6
    s_min_u32 s{sT}, s{sW}, 5
    s_mul_i32 s{sT}, s{sT}, {4 * T2S}
    s_add_u32 s{sU1}, s{sU1}, s{sT}
    ''')
    base_add(sBa, WS, sU1, T2_G)
    base_add(sBb, WS, sU1, T2_G + 4 * NJ * T2S)
    base_add(sXrow, OUTP, sRow)
    a(f's_mul_i32 s{sU0}, s{sMe}, {REC_STRIDE}')
    base_add(sRec, WS, sU0, REC_G)
    a(f'''
    v_mov_b32 v{vE0 + 7}, {hex(f2u(-1.0 / 640))}
    v_mov_b32 v{vM8F}, {hex(f2u(-1e-5))}
    v_mov_b32 v{vE0 + 3}, {KEYL}
    v_mov_b32 v{vE0 + 4}, 1
    ''')

    def p3_setup(part=3):
      raw, GB = Rb, Rb
      if part & 1:
        raw = Rb
        for k in range(0, 24, 2):
            a(f'ds_read2st64_b32 {vr(raw + k, 2)}, v{vMB} offset0:{k} offset1:{k + 1}')
        a(f'ds_read_b32 v{raw + 24}, v{vMB} offset:{24 * 256}')
        a('s_waitcnt lgkmcnt(0)')
        for vec, dst in ((0, vGA), (1, vGS), (2, vGC), (4, vVV)):
            for j in range(5):
                unpack(dst + tm(j, 0), dst + tm(j, 1), raw + 5 * vec + j)
        GB = Rb
        for j in range(5):
            unpack(GB + tm(j, 0), GB + tm(j, 1), raw + 15 + j)
      if part & 2:
        t0, t1, t2 = Rc + 2, Rc + 4, Rc + 6
        dot10(t0, vVV, vGS)
        for h in range(0, 10, 2):
            a(f'v_pk_mul_f32 {vr(vVV + h, 2)}, {vr(vVV + h, 2)}, {vr(vGC + h, 2)}')
        sum10(t1, vVV)
        a(f'v_mov_b32 v{t2}, s{sM1B}')
        for h in range(0, 10, 2):
            a(f'v_pk_mul_f32 {vr(vGC + h, 2)}, {vr(vGC + h, 2)}, {vr(GB + h, 2)}')
            a(f'v_pk_fma_f32 {vr(vGS + h, 2)}, {vr(vGS + h, 2)}, {vr(GB + h, 2)}, {vr(t2, 2)} op_sel:[0,0,0] op_sel_hi:[1,1,0]')
        wave_sum([t1, t0], [sV1, sV2])

    if MATS == 0:
        p3_mats()
    a('s_waitcnt lgkmcnt(0)')
    bar('B5b')
    stamp('B5b done')
    fine('p2', 'B5b')
    fine('x2', 'B5b')
    if P3FIRST == 2:
        p3_setup(1)
    if P3FIRST == 1:
        p3_setup()
    else:
        a(f's_cmp_ge_u32 s{sIdx}, {NJ}')
        a(f's_cselect_b32 s{sCand}, 8, s{sW}')
        a(f's_cmp_lt_u32 s{sCand}, 6')
        a('s_cbranch_scc1 L_p3later')
        p3_setup(2 if P3FIRST else 3)
        a.label('L_p3later')
    fine('x2', 'p3setup')
    if DR2:
        a('s_waitcnt vmcnt(0)')
    fine('x2', 'drained')
    if PACE2:
        a(f's_sleep {PACE2}')
    if not AL2:
        a(f's_cmp_ge_u32 s{sIdx}, {NJ}')
        a('s_cbranch_scc0 L_nob5c')
    bar('B5c')
    a.label('L_nob5c')
    a(f's_cmp_ge_u32 s{sW}, 6')
    a('s_cbranch_scc1 L_b6')
    stamp('T2 poll')
    fine('p2', 'T2 poll')

    def p3_behind():
        a(f's_cmp_lt_u32 s{sCand}, 6')
        a('s_cbranch_scc0 L_p3done')
        p3_setup(2 if P3FIRST else 3)
        a.label('L_p3done')
    tpoll(tl, lanes_s=sr(sLn), between=None if P3FIRST == 1 else p3_behind)
    stamp('T2 in')
    fine('p3', 'T2 in')
    fine('x2', 'T2 in')
    a(f'''
    v_swap_b32 v{Ra + 1}, v{Ra + 4}
    v_swap_b32 v{Ra + 3}, v{Ra + 6}
    ''')
    for n, r in ((0, Ra), (1, Ra + 4), (2, Ra + 2), (3, Ra + 6)):
        mfma16(RD + 4 * n, vM8I, r)
    for n in range(4):
        for jj in range(2):
            a(f'v_cvt_pk_bf16_f32 v{Rb + 2 * n + jj}, v{RD + 4 * n + 2 * jj + 1}, v{RD + 4 * n + 2 * jj}')
        a(f'ds_write_b64 v{vPairX if n == 3 else vPair}, {vr(Rb + 2 * n, 2)} offset:{8 * n}')
    a('s_waitcnt lgkmcnt(0)')
    a.label('L_b6')
    prio(2, True)
    fine('p3', 'pre-B6')
    bar('B6')
    fine('p3', 'B6')
    fine('x2', 'B6')
    for u in range(2):
        for r in (0, 2):
            a(f'ds_read2_b32 {vr(Rb + 4 * u + r, 2)}, v{vSg1 if u else vSg0} offset0:{80 * r} offset1:{80 * r + 80}')
    Y = RD
    if not P3O:
        for ks in range(2):
            a(f's_waitcnt lgkmcnt({2 - 2 * ks})')
            for t in range(2):
                for e in range(2):
                    d = RD + 8 * t + 4 * e
                    mfma32(d, Rb + 4 * ks, vF32 + 16 * t + 8 * (1 - e) + 4 * ks, d if ks else None)
        fine('p3', 'mfma1 issued')
        if PRIO[2] == '1':
            prio(2, False)
        for t, tmp in ((0, Ra), (1, Rc)):
            cmul(tmp, tmp + 4, RD + 8 * t, RD + 8 * t + 4, vTW + 8 * t, vTW + 8 * t + 4, +1, pk=PK[2] == '1' or (PK[2] == '2' and t == 1), n=3)
            pack4(Rb + 4 * t, tmp, tmp + 4, n=3)
            a(f'v_mov_b32 v{Rb + 4 * t + 3}, 0')
        Y = RD
        mfma32(Y, vF20, Rb)
        mfma32(Y + 8, vF20 + 4, Rb)
        mfma32(Y + 4, vF20, Rb + 4)
        mfma32(Y + 8, vF20 + 8, Rb + 4, Y + 8)
    else:
        def m1(t, ks, e):
            d = RD + 8 * t + 4 * e
            mfma32(d, Rb + 4 * ks, vF32 + 16 * t + 8 * (1 - e) + 4 * ks, d if ks else None)
        a('s_waitcnt lgkmcnt(2)')
        m1(0, 0, 0)
        m1(0, 0, 1)
        a('s_waitcnt lgkmcnt(0)')
        m1(0, 1, 0)
        m1(0, 1, 1)
        for ks in range(2):
            for e in range(2):
                m1(1, ks, e)
        fine('p3', 'mfma1 issued')
        B0_, B1_ = vF32, vF32 + 4
        cmul(Ra, Ra + 4, RD, RD + 4, vTW, vTW + 4, +1, pk=False, n=3)
        a(f'v_mov_b32 v{B0_ + 3}, 0')
        a(f'v_mov_b32 v{B1_ + 3}, 0')
        pack4(B0_, Ra, Ra + 4, n=3)
        Yx = Rb
        mfma32(Y, vF20, B0_)
        mfma32(Yx, vF20 + 4, B0_)
        cmul(Rc, Rc + 4, RD + 8, RD + 12, vTW + 8, vTW + 12, +1, pk=False, n=3)
        pack4(B1_, Rc, Rc + 4, n=3)
        mfma32(Y + 4, vF20, B1_)
        mfma32(Y + 8, vF20 + 8, B1_, Yx)
    fine('p3', 'mfma2 issued')
    if PRIO[2] == '2':
        prio(2, False)
    X1 = vXS
    s1, s2, s3, s4 = Ra, Ra + 1, Ra + 2, Ra + 3
    if not PKS:
        for k in range(10):
            a(f'v_fmac_f32 v{X1 + k}, v{Y + k}, v{vGA + k}')
            if k == 1:
                a(f'v_mul_f32 v{s2}, v{X1}, v{X1}')
                a(f'v_mul_f32 v{s3}, v{X1}, v{vVV}')
            if k >= 2:
                a(f'v_add_f32 v{s1}, v{X1 + k - 1}, v{X1 if k == 2 else s1}')
                a(f'v_fmac_f32 v{s2}, v{X1 + k - 1}, v{X1 + k - 1}')
                a(f'v_fmac_f32 v{s3}, v{X1 + k - 1}, v{vVV + k - 1}')
        a(f'v_fmac_f32 v{s3}, v{X1 + 9}, v{vVV + 9}')
        a(f'v_add_f32 v{s1}, v{X1 + 9}, v{s1}')
        a(f'v_fmac_f32 v{s2}, v{X1 + 9}, v{X1 + 9}')
    else:
        p1_, p2_, p3_ = Rc, Rc + 2, Rc + 4
        for h in range(0, 10, 2):
            a(f'v_pk_fma_f32 {vr(X1 + h, 2)}, {vr(Y + h, 2)}, {vr(vGA + h, 2)}, {vr(X1 + h, 2)}')
        a(f'v_pk_mul_f32 {vr(p3_, 2)}, {vr(X1, 2)}, {vr(vVV, 2)}')
        a(f'v_pk_add_f32 {vr(p1_, 2)}, {vr(X1, 2)}, {vr(X1 + 2, 2)}')
        a(f'v_pk_mul_f32 {vr(p2_, 2)}, {vr(X1, 2)}, {vr(X1, 2)}')
        for h in (2, 4, 6, 8):
            a(f'v_pk_fma_f32 {vr(p3_, 2)}, {vr(X1 + h, 2)}, {vr(vVV + h, 2)}, {vr(p3_, 2)}')
            if h > 2:
                a(f'v_pk_add_f32 {vr(p1_, 2)}, {vr(p1_, 2)}, {vr(X1 + h, 2)}')
            a(f'v_pk_fma_f32 {vr(p2_, 2)}, {vr(X1 + h, 2)}, {vr(X1 + h, 2)}, {vr(p2_, 2)}')
        a(f'v_add_f32 v{s3}, v{p3_}, v{p3_ + 1}')
        a(f'v_add_f32 v{s1}, v{p1_}, v{p1_ + 1}')
        a(f'v_add_f32 v{s2}, v{p2_}, v{p2_ + 1}')
    fine('p3', 'partials')
    a(f'''
    v_permlane32_swap_b32 v{s3}, v{s4}
    v_permlane32_swap_b32 v{s1}, v{s2}
    v_add_f32 v{s3}, v{s3}, v{s4}
    v_add_f32 v{s1}, v{s1}, v{s2}
    v_permlane16_swap_b32 v{s1}, v{s3}
    v_add_f32 v{s1}, v{s1}, v{s3}
    ''')
    for c in ('row_ror:8', 'row_ror:4', 'row_ror:2', 'row_ror:1'):
        dpp('v_add_f32', s1, c)
    a(f'''
    v_readlane_b32 s{sU0}, v{s1}, 0
    v_readlane_b32 s{sU2}, v{s1}, 32
    v_readlane_b32 s{sU3}, v{s1}, 16
    ''')
    fine('p3', 'reduced')
    k0 = Rc
    cE = vM8F
    cI, cK, cT, cO = vE0 + 7, vE0 + 3, Ra + 7, vE0 + 4
    m = Ra + 1
    a(f'''
    v_mul_f32 v{m + 2}, s{sU0}, v{cI}
    v_fma_f32 v{k0}, v{m + 2}, v{m + 2}, v{cE}
    v_mov_b32 v{m + 3}, s{sU3}
    v_fmac_f32 v{k0}, s{sU2}, v{cI}
    v_fmac_f32 v{m + 3}, s{sV1}, v{m + 2}
    v_sub_f32 v{m + 1}, v{cE}, v{k0}              ; var
    v_rsq_f32_e64 v{k0}, -v{k0}
    v_mov_b32 v{cT}, s{sTag}
    s_mov_b64 exec, 1
    v_fma_f32 v{m + 3}, v{m + 3}, v{k0}, s{sV2}   ; r
    v_ashrrev_i32 v{m + 4}, 31, v{m + 3}
    v_or_b32 v{m + 4}, 0x80000000, v{m + 4}
    v_xor_b32 v{m + 3}, v{m + 3}, v{m + 4}
    v_and_b32 v{m + 3}, 0xfffff800, v{m + 3}
    v_or_b32 v{m + 3}, s{sKey}, v{m + 3}
    ds_max_u32 v{cK}, v{m + 3}
    ds_add_rtn_u32 v{m + 4}, v{cK}, v{cO} offset:8
    ds_read_b32 v{Ra + 6}, v{cK}
    v_readfirstlane_b32 s{sKey}, v{m + 3}
    s_waitcnt lgkmcnt(0)
    v_cmpx_eq_u32 vcc, 7, v{m + 4}
    s_cbranch_execz L_notlast
    global_store_dwordx2 v{vL4}, {vr(Ra + 6, 2)}, {sr(sRec)} sc1
    L_notlast:
    s_mov_b64 exec, -1
    ''')
    fine('p3', 'key')
    bar('B7')
    fine('p3', 'B7')
    fine('e', 'key poll')
    a(f'''
    ds_read_b32 v{Ra + 6}, v{cK}
    v_sub_f32 v{m + 2}, s{sM1B}, v{m + 2}
    ''')
    rbf(m + 2, f'v{m + 2}')
    rstd_chain(m + 1, k0)
    a(f'''
    v_sub_f32 v{m + 2}, s{sM1B}, v{m + 2}
    v_mul_f32 v{k0 + 1}, v{m + 2}, v{k0}
    ''')
    ZN = vGA
    for h in range(0, 10, 2):
        a(f'v_pk_fma_f32 {vr(ZN + h, 2)}, {vr(X1 + h, 2)}, {vr(k0, 2)}, {vr(k0, 2)} op_sel:[0,0,1] op_sel_hi:[1,0,1]')
    vO = vXS

    def out_math():
        for h in range(0, 10, 2):
            a(f'v_pk_add_f32 {vr(Y + h, 2)}, {vr(X1 + h, 2)}, {vr(vGS + h, 2)}')
        for h in range(0, 10, 2):
            a(f'v_pk_fma_f32 {vr(Y + h, 2)}, {vr(ZN + h, 2)}, {vr(vGC + h, 2)}, {vr(Y + h, 2)}')
        if opt('inject', None):
            if opt('injall', None):
                for k in range(10):
                    a(f'v_mul_f32 v{Y + k}, {hex(f2u(1 + float(opt("inject", 0))))}, v{Y + k}')
            else:
                a(f's_cmp_eq_u32 s{sRow}, 0')
                a('s_cselect_b64 exec, 1, 0')
                a(f'v_add_f32 v{Y}, {hex(f2u(float(opt("inject", 0))))}, v{Y}')
                a('s_mov_b64 exec, -1')
        for j in range(5):
            a(f'v_cvt_pk_bf16_f32 v{vO + j}, v{Y + tm(j, 0)}, v{Y + tm(j, 1)}')
    if KB == 2:
        out_math()
        out_math = lambda: None
    if KB:
        bar('B7b')
    a(f'''
    s_waitcnt lgkmcnt(0)
    v_readfirstlane_b32 s{sU0}, v{Ra + 6}
    s_cmp_eq_u32 s{sU0}, s{sKey}
    s_cselect_b32 s{sCand}, 1, 0
    s_cbranch_scc1 L_cand
    ''')
    out_math()
    a('s_branch L_keys')
    a.label('L_cand')
    raw, SB, CB, H, Bq = 60, 70, 80, 92, 108
    for k in range(0, 10, 2):
        a(f'ds_read2st64_b32 {vr(raw + k, 2)}, v{vMB} offset0:{5 + k} offset1:{6 + k}')
    for qd in range(2):
        a(f'v_mov_b32 v{H + 4 * qd + 3}, s{sTag}')
    a('s_waitcnt lgkmcnt(0)')
    for j in range(5):
        unpack(SB + tm(j, 0), SB + tm(j, 1), raw + j)
        unpack(CB + tm(j, 0), CB + tm(j, 1), raw + 5 + j)
    for h in range(0, 10, 2):
        a(f'v_pk_fma_f32 {vr(SB + h, 2)}, {vr(ZN + h, 2)}, {vr(CB + h, 2)}, {vr(SB + h, 2)}')
    for j in range(5):
        a(f'v_cvt_pk_bf16_f32 v{H + j + (j >= 3)}, v{SB + tm(j, 0)}, v{SB + tm(j, 1)}')
    for qd in range(2):
        a(f'global_store_dwordx4 v{vL16}, {vr(H + 4 * qd, 4)}, {sr(sRec)} offset:{REC_H2 + 1024 * qd} sc1')
    out_math()

    def out_row():
        if 'o' in XX:
            return
        for j in range(5):
            a(f'global_store_dword v{vL4}, v{vO + j}, {sr(sXrow)} offset:{256 * j} sc1')
    if OE != 1:
        out_row()
    a.label('L_keys')
    if OE == 1:
        out_row()
    if OE in (3, 4):
        a(f'''
        s_cmp_ge_u32 s{sRi}, 20
        s_cselect_b32 s{sT}, 1, s{sCand}
        s_cmp_lg_u32 s{sT}, 0
        s_cbranch_scc1 L_noout
        ''')
        out_row()
        a.label('L_noout')
    stamp('key out')
    fine('p3', 'key out')
    if not KB:
        bar('B7b')
    if OE == 0:
        a(f'''
        s_cmp_ge_u32 s{sRi}, 20
        s_cselect_b32 s{sT}, 1, s{sCand}
        s_cmp_lg_u32 s{sT}, 0
        s_cbranch_scc1 L_noout
        ''')
        out_row()
        a('s_branch L_fin')
        a.label('L_noout')
    if OE == 2:
        a(f's_cmp_lg_u32 s{sCand}, 0')
        a('s_cbranch_scc1 L_noout')
        out_row()
        a.label('L_noout')
    vEW, vFW = 48, 88
    vRed, vRd, vRow = 15, 16, 17
    a(f'''
    s_cmp_lt_u32 s{sRi}, 20
    s_cbranch_scc1 L_no_ew
    s_mul_i32 s{sT}, s{sW}, 5120
    s_add_u32 s{sT}, s{sT}, {EW}
    v_and_b32 v{Rb}, 0x3c0, v{vL16}
    v_and_b32 v{Rb + 1}, 24, v{vE0}
    v_add3_u32 v{Rb}, v{Rb}, v{Rb + 1}, s{sT}
    s_mul_i32 s{sT}, s{sW}, 320
    s_add_u32 s{sT}, s{sT}, {FW}
    v_min_u32 v{vE0 + 1}, {39 * 8}, v{vE0}
    v_add_u32 v{vE0 + 1}, s{sT}, v{vE0 + 1}
    ''')
    for j in range(5):
        if j in (2, 4):
            a(f'v_add_u32 v{Rb}, 2048, v{Rb}')
        a(f'ds_read2_b64 {vr(vEW + 20 + 4 * j, 4)}, v{Rb} offset0:{128 * (j & 1)} offset1:{128 * (j & 1) + 4}')
    a(f'''
    v_and_b32 v{vRed}, 3, v{vL}
    v_lshlrev_b32 v{vRed}, 6, v{vRed}
    v_and_b32 v{vRd}, 48, v{vL}
    v_add_u32 v{vRed}, v{vRd}, v{vRed}
    s_lshr_b32 s{sU1}, s{sW}, 2
    s_lshl_b32 s{sU1}, s{sU1}, 8
    s_and_b32 s{sT}, s{sW}, 3
    s_lshl_b32 s{sT}, s{sT}, 2
    s_add_u32 s{sU1}, s{sU1}, s{sT}
    s_add_u32 s{sU1}, s{sU1}, {RED}
    v_add_u32 v{vRed}, s{sU1}, v{vRed}
    v_and_b32 v{vRd}, 0xf0, v{vL16}
    v_bfe_u32 v{vRow}, v0, 2, 6                    ; lane' = (t'>>1)>>1
    v_lshlrev_b32 v{vRow}, 4, v{vRow}
    s_mov_b32 s{sU2}, 0x05040100
    s_mov_b32 s{sU3}, 0x07060302
    v_add_u32 v{vRow}, {REC_G + REC_H2}, v{vRow}
    v_mov_b32 v18, 0xffffff00
    s_mul_i32 s{sU1}, s{sX}, 12
    s_add_u32 s{sU1}, s{sU1}, s{sRi}
    s_mul_i32 s{sU1}, s{sU1}, {PY_STRIDE}
    s_mul_i32 s{sT}, s{sW}, 640
    s_add_u32 s{sU1}, s{sU1}, s{sT}
    ''')
    base_add(sBb, WS, sU1, PY_G - 20 * PY_STRIDE)
    a('s_waitcnt lgkmcnt(0)')
    if KD == 1:
        bar('B7c')
    if OE == 3:
        bar('B7d')
        a(f's_cmp_lg_u32 s{sCand}, 0')
        a('s_cbranch_scc1 L_noout5')
        out_row()
        a.label('L_noout5')
    for j in range(5):
        r0 = vEW + 20 + 4 * j
        for c in range(4):
            a(f'v_perm_b32 v{vEW + 4 * j + c}, v{r0 + 2 + c // 2}, v{r0 + c // 2}, s{sU3 if c & 1 else sU2}')
    for k in range(4):
        a(f'v_mov_b32 v{36 + k}, 0')

    def fw_unpack():
        a(f's_cmp_ge_u32 s{sW}, 4')
        a('s_cbranch_scc1 L_no_fw')
        for u in range(16):
            if u == 8:
                a('s_waitcnt lgkmcnt(0)')
            a(f'ds_read_b64 {vr(vFW + 32 + 2 * u, 2)}, v{vE0 + 1} offset:{1280 * u}')
        a('s_waitcnt lgkmcnt(0)')
        for k in range(32):
            unpack(vFW + 2 * k, vFW + 2 * k + 1, vFW + 32 + k)
        a.label('L_no_fw')
    if not FWL:
        fw_unpack()
    a.label('L_no_ew')
    a(f's_cmp_eq_u32 s{sCand}, 0')
    a('s_cbranch_scc1 L_nobase')
    a(f'''
    v_mov_b32 v40, v{vO}
    v_mov_b32 v41, v{vO + 1}
    v_mov_b32 v42, v{vO + 2}
    v_mov_b32 v43, s{sTag}
    v_mov_b32 v44, v{vO + 3}
    v_mov_b32 v45, v{vO + 4}
    v_mov_b32 v47, s{sTag}
    ''')

    def base_out():
        a(f'global_store_dwordx4 v{vL16}, v[40:43], {sr(sRec)} offset:{REC_BASE} sc1')
        a(f'global_store_dwordx4 v{vL16}, v[44:47], {sr(sRec)} offset:{REC_BASE + 1024} sc1')
    if BL:
        a(f's_cmp_lt_u32 s{sRi}, 20')
        a('s_cbranch_scc0 L_nobase')
    a('s_waitcnt vmcnt(0)')
    base_out()
    a.label('L_nobase')
    a(f'''
    s_cmp_lt_u32 s{sRi}, 20
    s_cbranch_scc1 L_fin
    v_mov_b32 v{Rb + 2}, {KEYL + 4}
    {'s_barrier' if KD == 2 else ''}
    ''')
    a.label('L_b8')
    fine('e', 'pre-B8')
    a('s_barrier                                   ; B8')
    a(f'''
    ds_read_b32 v{Rb + 3}, v{Rb + 2}
    s_movk_i32 s{sT}, {REC_STRIDE}
    s_waitcnt lgkmcnt(0)
    v_and_b32 v{Rb + 4}, 255, v{Rb + 3}
    v_mad_u32_u24 v{vRow}, v{Rb + 4}, s{sT}, v{vRow}
    ''')
    stamp('B8 done (winner)')
    fine('e', 'B8+')

    def late_out():
        if OE == 0:
            a(f's_cmp_lg_u32 s{sCand}, 0')
            a('s_cbranch_scc1 L_noout2')
            out_row()
            a.label('L_noout2')
        if FWL:
            fw_unpack()
        fine('e', 'behind')
        if OE == 0:
            a(f's_cmp_lg_u32 s{sCand}, 0')
            a('s_cbranch_scc1 L_noout4')
            a('s_waitcnt vmcnt(5)')
            a.label('L_noout3')
            late.append(lambda: (a.label('L_noout4'), a('s_waitcnt vmcnt(0)'), a('s_branch L_noout3')))
        else:
            a('s_waitcnt vmcnt(0)')
    poll([f'global_load_dwordx4 v[20:23], v{vRow}, {sr(WS)} sc1',
          f'global_load_dwordx4 v[24:27], v{vRow}, {sr(WS)} offset:1024 sc1'], [23, 27], [30, 32], empty='word',
         between=late_out, younger=63)
    if BL:
        a(f's_cmp_lg_u32 s{sCand}, 0')
        a('s_cbranch_scc1 L_base2')
        a.label('L_base3')
        late.append(lambda: (a.label('L_base2'), base_out(), a('s_branch L_base3')))
    stamp('row in')
    fine('e', 'row in')
    acc = 36
    for j in range(5):
        for c in (0, 2, 1, 3):
            a(f'v_dot2c_f32_bf16 v{acc + c}, v{vEW + 4 * j + c}, v{20 + j + (j >= 3)}')
    a(f'''
    v_permlane32_swap_b32 v36, v38
    v_permlane32_swap_b32 v37, v39
    v_pk_add_f32 v[36:37], v[36:37], v[38:39]
    v_permlane16_swap_b32 v36, v37
    v_add_f32 v36, v36, v37
    ''')
    for c in ('row_ror:8', 'row_ror:4'):
        dpp('v_add_f32', acc, c)
    a(f'''
    s_mov_b32 exec_lo, 0x000f000f
    s_mov_b32 exec_hi, 0x000f000f
    ds_write_b32 v{vRed}, v{acc}
    s_mov_b64 exec, -1
    s_cmp_ge_u32 s{sW}, 4
    s_waitcnt lgkmcnt(0)
    ''')
    fine('e', 'pre-B9')
    bar('B9')
    fine('e', 'B9')
    a(f'''
    s_cbranch_scc1 L_e_done
    ds_read_b128 v[20:23], v{vRd} offset:{RED}
    ds_read_b128 v[24:27], v{vRd} offset:{RED + 256}
    s_waitcnt lgkmcnt(0)
    v_pk_add_f32 v[20:21], v[20:21], v[22:23]
    v_pk_add_f32 v[24:25], v[24:25], v[26:27]
    v_add_f32 v20, v20, v21
    v_add_f32 v24, v24, v25
    v_mul_f32 v21, 0xbfb8aa3b, v20
    v_exp_f32 v21, v21
    v_mul_f32 v20, v20, v24
    v_add_f32 v21, 1.0, v21
    v_rcp_f32 v21, v21
    v_mul_f32 v20, v20, v21
    ''')
    fine('e', 'gu')
    sG = 8
    for u in range(16):
        a(f'v_readlane_b32 s{sG + u}, v20, {u}')
    for u in range(16):
        for hh in range(2):
            w_ = vr(vFW + 4 * u + 2 * hh, 2)
            g_ = sr(sG + (u & ~1))
            d_ = vr(36 + 2 * hh, 2)
            if u == 0:
                a(f'v_pk_mul_f32 {d_}, {w_}, {g_} op_sel:[0,0] op_sel_hi:[1,0]')
            else:
                a(f'v_pk_fma_f32 {d_}, {w_}, {g_}, {d_} {BC1 if u & 1 else BC0}')
    for k in range(4):
        a(f'v_and_or_b32 v{36 + k}, v{36 + k}, v18, s{sTB + k}')
    a('s_mov_b32 exec_hi, 0xff')
    a(f'global_store_dwordx4 v{vL16}, v[36:39], {sr(sBb)} sc1')
    a('s_mov_b64 exec, -1')
    stamp('PY out')
    fine('e', 'PY out')
    if OE == 4:
        a.label('L_e_done')
        a(f's_cmp_lg_u32 s{sCand}, 0')
        a('s_cbranch_scc1 L_e_done2')
        out_row()
        a('s_waitcnt vmcnt(5)')
        a('s_branch L_e_done3')
        a.label('L_e_done2')
        a('s_waitcnt vmcnt(0)')
        a.label('L_e_done3')
    else:
        a('s_waitcnt vmcnt(0)')
        a.label('L_e_done')
    bar('B10')
    a.label('L_fin')
    stamp('end')
    fine('e', 'end')
    if FINE:
        a('s_waitcnt lgkmcnt(0)')
    dump_stamps()
    a.label('L_end')
    a('s_endpgm')
    flush_late()


sF1, sF2, sPb, sGw, sWb = 56, 58, 60, 62, 64


def publish(P='H0'):
    a(f'''
    ds_read_b128 v[40:43], v28 offset:{RED}
    ds_read_b128 v[44:47], v28 offset:{RED + 16}
    v_lshl_add_u32 v36, s{sBlk}, 8, v{vL4}
    s_waitcnt lgkmcnt(0)
    v_pk_add_f32 v[40:41], v[40:41], v[42:43]
    v_pk_add_f32 v[44:45], v[44:45], v[46:47]
    v_add_f32 v40, v35, v40
    v_pk_add_f32 v[40:41], v[40:41], v[44:45]
    v_add_f32 v40, v40, v41
    v_and_or_b32 v40, v40, v33, v34
    global_store_dword v36, v40, {sr(WS)} sc1
    ''')
    stamp('published', P)


def w_addr():
    a(f'''
    s_mul_i32 s{sU1}, s{sIdx}, 15
    s_min_u32 s{sU1}, s{sU1}, 306
    s_add_u32 s{sT}, s{sU1}, s{sX}
    s_and_b32 s{sT}, s{sT}, 1
    s_sub_u32 s{sU1}, s{sU1}, s{sT}
    s_mul_i32 s{sU0}, s{sX}, 321
    s_add_u32 s{sU1}, s{sU1}, s{sU0}
    s_lshl_b32 s{sU1}, s{sU1}, 1
    v_lshrrev_b32 v90, 1, v{vL}
    v_mul_u32_u24 v90, 5136, v90
    v_lshlrev_b32 v91, 1, v{vL}
    v_xor_b32 v91, v{vL16}, v91
    v_and_b32 v91, 16, v91
    v_add3_u32 v11, v90, v91, s{sU1}
    ''')


def w_gather(arr, lds):
    for n in range(8):
        a(f's_mov_b32 m0, {lds + 1024 * n}')
        a(f'global_load_lds_dwordx4 v11, {sr(arr)}')
        if n < 7:
            a(f'v_add_u32 v11, {32 * 5136}, v11')


def mask_lanes(n):
    if n >= 64:
        return
    if n > 32:
        a(f's_mov_b32 exec_hi, {hex((1 << (n - 32)) - 1)}')
    else:
        a(f's_mov_b64 exec, {hex((1 << n) - 1)}')


def warm_addr_w():
    a(f'''
    s_sub_u32 s{sU3}, s{sRi}, {12 if W20 else 0}
    s_mul_i32 s{sU3}, s{sU3}, {78 if W20 else 48}
    s_movk_i32 s{sU2}, 0x2aab
    s_mul_i32 s{sU1}, s{sX}, 642
    s_movk_i32 s{sT}, 5136
    ''')
    for n in range(2 if W20 else 1):
        a(f'''
        v_add_u32 v90, s{sU3}, v{vL}
        v_add_u32 v90, {39 * n}, v90
        v_min_u32 v90, 1535, v90
        v_mul_u32_u24 v91, s{sU2}, v90
        v_lshrrev_b32 v91, 16, v91
        v_mul_u32_u24 v92, 6, v91
        v_sub_u32 v92, v90, v92
        v_lshlrev_b32 v92, 7, v92
        v_min_u32 v92, 638, v92
        v_add_u32 v92, s{sU1}, v92
        v_mad_u32_u24 v92, v91, s{sT}, v92
        v_and_b32 v{120 + n}, -4, v92
        ''')


def ffn_parts(slot):
    return [(n, k) for n in range(3) if S_W[n] == slot for k in range(2 if slot == 7 else 1)]


def warm_addr_f(h, slot):
    f, per, lanes = {0: (0, 30, 30), 7: (NJ, 96, 48), 8: (0, 48, 48)}[slot]
    if not ffn_parts(slot):
        return
    a(f'''
    s_sub_u32 s{sU0}, s{sRi}, {f}
    s_mul_i32 s{sU3}, s{sU0}, {per}
    s_mul_i32 s{sU1}, s{sX}, 384
    s_movk_i32 s{sU2}, 0x5556
    s_movk_i32 s{sT}, {3072 - 384}
    s_mul_i32 s{sU0}, s{sX}, 245760
    ''')
    for n, k in ffn_parts(slot):
        d = 130 + 2 * n + k
        a(f'''
        v_add_u32 v90, s{sU3}, v{vL}
        v_add_u32 v90, {lanes * k}, v90
        v_min_u32 v90, 959, v90
        v_add_u32 v90, {960 * (n if n < 2 else h)}, v90
        ''')
        if n < 2:
            a(f'''
            v_mul_u32_u24 v91, s{sU2}, v90
            v_lshrrev_b32 v91, 16, v91
            v_lshl_add_u32 v90, v90, 7, s{sU1}
            v_mad_u32_u24 v{d}, v91, s{sT}, v90
            ''')
        else:
            a(f'v_lshl_add_u32 v{d}, v90, 7, s{sU0}')


def warm_issue(h, slot, sel=None):
    if slot == 0:
        L = newlabel('w20')
        if W20:
            assert not ffn_parts(0)
            a(f's_cmp_lt_u32 s{sRi}, 12')
            a(f's_cbranch_scc1 {L}')
        mask_lanes(39 if W20 else 48)
        for n in range(2 if W20 else 1):
            a(f'global_load_dword v125, v{120 + n}, {sr(W_R if h else W_I)}')
        a.label(L)
    ps = ffn_parts(slot) if sel is None else sel
    if ps:
        mask_lanes(30 if slot == 0 else 48)
        if 'w' in XX:
            a('s_mov_b64 exec, 1')
    for n, k in ps:
        a(f'global_load_dword v125, v{130 + 2 * n + k}, {sr(W_D if n == 2 else (W_G if h else W_U))}')
    a('s_mov_b64 exec, -1')


def e_addr(mat):
    a(f'''
    s_max_u32 s{sU1}, s{sRi}, 20
    s_mul_i32 s{sU0}, s{sX}, 12
    s_add_u32 s{sU0}, s{sU0}, s{sU1}
    s_sub_u32 s{sU0}, s{sU0}, 20
    s_mul_i32 s{sU1}, s{sU0}, 20480
    s_lshl_b32 s{sU0}, s{sU0}, 5
    v_lshrrev_b32 v128, 1, v{vL}
    v_mul_u32_u24 v128, 3072, v128
    v_and_b32 v90, 16, v{vL16}
    v_add_u32 v128, v128, v90
    ''')
    base_add(sF1, mat, sU0)
    base_add(sGw, W_D, sU1, 10240 if mat == W_U else 0)


def if_e(f):
    L = newlabel('ne')
    a(f's_cmp_lt_u32 s{sRi}, 20')
    a(f's_cbranch_scc1 {L}')
    f()
    a.label(L)


def e_gather(half, n0, n1):
    if 'g' in XX:
        a('s_mov_b64 exec, 1')
    for n in range(n0, n1):
        a(f's_mov_b32 m0, {EW + (n % 4 + 4 * half) * 5120 + (n // 4) * 1024}')
        a(f'global_load_lds_dwordx4 v128, {sr(sF1)}')
        if n < 19:
            a(f'v_add_u32 v128, {32 * 3072 if "g" not in XX else 0}, v128')
    a('s_mov_b64 exec, -1' if 'g' in XX else '')


def wd_load(half):
    if 'g' in XX:
        return
    for n in range(10):
        if n % 4 == 0:
            a(f's_mov_b32 m0, {FW + half * 10240 + n * 1024}')
            a(f'v_add_u32 v90, {1024 * n}, v{vL16}')
        a(f'global_load_lds_dwordx4 v90, {sr(sGw)} offset:{1024 * (n % 4)} {INPOL if S_W[2] == 9 else str()}')


def touch_small():
    if 'k' in TCH:
        a(f's_mul_i32 s{sU0}, s{sMe}, {REC_STRIDE}')
        base_add(sBa, WS, sU0, REC_G)
        a(f'''
        s_mov_b64 exec, 0xff
        global_store_dwordx4 v{vL16}, v[20:23], {sr(sBa)} sc1
        s_mov_b64 exec, -1
        ''')
    if 'p' in TCH:
        def f():
            a(f'''
            s_mul_i32 s{sU1}, s{sX}, 12
            s_add_u32 s{sU1}, s{sU1}, s{sRi}
            s_mul_i32 s{sU1}, s{sU1}, {PY_STRIDE}
            ''')
            base_add(sBa, WS, sU1, PY_G - 20 * PY_STRIDE)
            a(f'''
            global_store_dwordx4 v{vL16}, v[20:23], {sr(sBa)} sc1
            global_store_dwordx4 v{vL16}, v[20:23], {sr(sBa)} offset:1024 sc1
            s_mov_b32 exec_hi, 0
            global_store_dwordx4 v{vL16}, v[20:23], {sr(sBa)} offset:2048 sc1
            s_mov_b64 exec, -1
            ''')
        if_e(f)


def finalizer():
    a(f'''
    s_cmp_ge_u32 s{sRi}, 30
    s_cbranch_scc1 L_hx0
    ds_read_b32 v21, v62
    s_mul_i32 s{sU2}, s{sX}, 10
    s_add_u32 s{sU2}, s{sU2}, s{sRi}
    s_sub_u32 s{sU2}, s{sU2}, 20                   ; f
    v_mov_b32 v26, 0
    v_mov_b32 v27, 0
    s_waitcnt lgkmcnt(0)
    v_readfirstlane_b32 s{sU0}, v21
    s_and_b32 s{sU1}, s{sU0}, 255
    s_mul_i32 s{sU1}, s{sU1}, {REC_STRIDE}
    ''')
    base_add(sBa, WS, sU1, REC_G + REC_BASE)
    done = [f'global_load_dwordx4 v[32:35], v26, {sr(sBa)} sc1']
    a(f'''
    v_and_b32 v20, 1, v{vL}
    v_lshrrev_b32 v21, 4, v{vL}
    v_lshl_add_u32 v20, v20, 2, v21
    s_lshl_b32 s{sT}, s{sU2}, 3
    v_add_u32 v20, s{sT}, v20
    s_lshr_b32 s{sCand}, s{sU2}, 4                 ; j
    s_cmp_ge_u32 s{sCand}, 3
    s_cselect_b32 s{sT}, 3, 0
    s_sub_u32 s{sCand}, s{sCand}, s{sT}            ; dword inside the quad
    s_mul_i32 s{sT}, s{sT}, 342
    s_and_b32 s{sT}, s{sT}, 1024
    v_bfe_u32 v26, v20, 1, 6
    v_lshl_add_u32 v26, v26, 4, s{sT}
    {done[0] if not BL else ''}
    {'s_barrier' if FP == 1 else ''}
    {'s_barrier' if FP == 1 else ''}
    v_lshlrev_b32 v20, 1, v20                      ; 2d
    v_add_u32 v21, {MODB_L + 3840}, v20
    v_mov_b32 v22, 0
    ds_read_u16_d16_hi v22, v21                    ; gb[d]
    s_and_b32 s{sU1}, s{sU0}, 0x7ff
    s_mul_i32 s{sU1}, s{sU1}, 1280
    ''')
    base_add(sXrow, OUTP, sU1)
    if FP == 2:
        bar('B9')
        bar('B10')
    a(f'''
    s_and_b32 s{sU1}, s{sU0}, 0xfffff800
    s_or_b32 s{sU1}, s{sU1}, 0x400
    s_xor_b32 s{sU3}, s{sU1}, 0x80000000
    s_not_b32 s{sT}, s{sU1}
    s_cmp_lt_i32 s{sU1}, 0
    s_cselect_b32 s{sU1}, s{sU3}, s{sT}
    v_mov_b32 v28, s{sU1}
    ''')
    a(f'''
    v_mul_f32 v28, 0xbfb8aa3b, v28
    v_exp_f32 v28, v28
    v_add_f32 v28, 1.0, v28
    v_rcp_f32 v28, v28
    ''')
    a(f'''
    v_lshrrev_b32 v29, 1, v{vL}
    v_mul_u32_u24 v29, {PY_STRIDE}, v29
    v_and_b32 v30, 16, v{vL16}
    v_add_u32 v29, v29, v30
    v_add_u32 v30, {32 * PY_STRIDE}, v29
    v_add_u32 v31, {64 * PY_STRIDE}, v29
    s_lshl_b32 s{sU2}, s{sU2}, 5
    ''')
    base_add(sBb, WS, sU2, PY_G)
    a('s_waitcnt lgkmcnt(0)')
    a('v_mul_f32 v22, v22, v28')
    if not FP:
        bar('B9')

    def base_in(younger):
        poll(done, [35], [], empty='word', issued=True, younger=younger)
        a(f'''
        s_cmp_eq_u32 s{sCand}, 1
        s_cselect_b64 vcc, -1, 0
        v_cndmask_b32 v27, v32, v33, vcc
        s_cmp_eq_u32 s{sCand}, 2
        s_cselect_b64 vcc, -1, 0
        v_cndmask_b32 v27, v27, v34, vcc
        v_and_b32 v32, 16, v{vL}
        v_lshrrev_b32 v27, v32, v27
        v_lshlrev_b32 v27, 16, v27
        ''')
    if not BL:
        base_in(0)
    if not FP:
        bar('B10')
    for _ in range(PYD):
        a(done[0])
        a('s_waitcnt vmcnt(0)')
    stamp('PY poll', 'H0')
    if BL:
        a(done[0])
    poll([f'global_load_dwordx4 {vr(36 + 4 * n, 4)}, v{29 + n}, {sr(sBb)} sc1' for n in range(3)],
         list(range(36, 48)), [48, 49], empty='tag', between=(lambda: base_in(3)) if BL else None)
    a(f'''
    v_pk_add_f32 v[36:37], v[36:37], v[40:41]
    v_pk_add_f32 v[38:39], v[38:39], v[42:43]
    v_pk_add_f32 v[36:37], v[36:37], v[44:45]
    v_pk_add_f32 v[38:39], v[38:39], v[46:47]
    v_permlane32_swap_b32 v36, v38
    v_permlane32_swap_b32 v37, v39
    v_pk_add_f32 v[36:37], v[36:37], v[38:39]
    v_permlane16_swap_b32 v36, v37
    v_add_f32 v36, v36, v37
    ''')
    for c in ('row_ror:8', 'row_ror:4', 'row_ror:2'):
        dpp('v_add_f32', 36, c)
    a(f'''
    v_fma_f32 v36, v36, v22, v27
    v_cvt_pk_bf16_f32 v36, v36, v36
    s_mov_b32 exec_lo, 0x00030003
    s_mov_b32 exec_hi, 0x00030003
    global_store_short v20, v36, {sr(sXrow)} {FINPOL}
    s_mov_b64 exec, -1
    ''')


def can_addr():
    a(f'''
    v_add_u32 v110, s{sIdx}, v{vL}
    v_and_b32 v110, 7, v110
    v_lshlrev_b32 v114, 5, v110
    v_mul_u32_u24 v110, {NJ}, v110
    v_mul_u32_u24 v110, {T2S}, v110
    s_lshl_b32 s{sU0}, s{sMe}, 6
    s_add_u32 s{sU0}, s{sU0}, {T2_G + CANJ * T2S + 60}
    v_add_u32 v110, s{sU0}, v110
    v_and_b32 v111, 7, v{vL}
    v_lshl_add_u32 v114, v111, 2, v114
    v_mul_u32_u24 v114, {T1S}, v114
    s_min_u32 s{sT}, s{sIdx}, {NJ - 1}
    s_mul_i32 s{sU0}, s{sX}, {NJ}
    s_add_u32 s{sU0}, s{sU0}, s{sT}
    s_lshl_b32 s{sU0}, s{sU0}, 6
    s_add_u32 s{sU0}, s{sU0}, {T1_G + T1S + 60}
    v_add_u32 v114, s{sU0}, v114
    ''')


def can_touch(v):
    mask_lanes(8)
    a(f'global_load_dword v113, v{v}, {sr(WS)} sc1')
    a('s_mov_b64 exec, -1')


def can_wait(v, k):
    L, D = newlabel('can'), newlabel('cand')
    mask_lanes(8)
    a(f'''
    s_mov_b32 s{sCnt}, {SPIN}
    {L}:
    global_load_dword v113, v{v}, {sr(WS)} sc1
    s_waitcnt vmcnt(0)
    v_cmp_eq_u32 vcc, s{sTag}, v113
    s_bcnt1_i32_b64 s{sT}, vcc
    s_cmp_ge_u32 s{sT}, {k}
    s_cbranch_scc1 {D}
    s_sub_u32 s{sCnt}, s{sCnt}, 1
    s_cbranch_scc0 {L}
    {D}:
    s_mov_b64 exec, -1
    ''')


def warm0(h, early):
    if not AWE:
        if not early:
            warm_issue(h, 0)
        return
    L = newlabel('w0')
    is_a()
    a(f's_cbranch_scc{0 if early else 1} {L}')
    warm_issue(h, 0)
    a.label(L)


SA_P0 = 12
SA_LD = [f'global_load_dwordx2 {vr(SA_P0 + 10 * p + 2 * j, 2)}, v{4 + j // 2}, {sr(WS)} offset:{2048 * (j % 2) + 256 * p} sc1'
         for p in range(4) for j in range(5)]


def sa_spectrum(step):
    Ls, Lr, Lc = newlabel('sas'), newlabel('sar'), newlabel('sac')
    P0, ld = SA_P0, SA_LD
    if step == 0:
        a(f'''
        v_lshrrev_b32 v4, 5, v{vL}
        v_lshlrev_b32 v4, 10, v4
        v_and_b32 v5, 31, v{vL}
        v_lshl_add_u32 v4, v5, 3, v4
        v_add_u32 v5, 4096, v4
        v_add_u32 v6, 8192, v4
        ''')
    a(f's_cmp_lg_u32 s{sX}, 0')
    a(f's_cbranch_scc1 {Ls}')
    if step == 0:
        tab_read(vF20, T_F20C)
        tab_read(vF20 + 4, T_F20S)
        for q in range(4):
            tab_read(vTW + 4 * q, T_TW1 + q)
        f32_read(T_F32A)
        tab_read(116, T_ADR)
        a(f'''
        v_and_b32 v8, 16, v{vL16}
        v_lshrrev_b32 v8, v8, s{sTag}
        v_bfe_u32 v9, v8, 8, 8
        v_and_b32 v8, 0xff, v8
        s_waitcnt lgkmcnt(0)
        ''')
        f32_expand(T_F32A, None, 117)
        a(f'v_add_u32 v116, {SAF}, v116')
        a('v_add_u32 v117, 160, v116')
        a.label(Ls)
        return
    if step == 1:
        for x in ld:
            a(x)
        a.label(Ls)
        return
    a(f's_mov_b32 s{sCnt}, {SPIN}')
    a.label(Lc)
    a('s_waitcnt vmcnt(0)')
    for k in range(40):
        a(f'v_xor_b32 v{P0 + k}, v{8 + (k & 1)}, v{P0 + k}')
    a(f'v_or_b32 v10, v{P0}, v{P0 + 1}')
    for k in range(2, 40, 2):
        a(f'v_or3_b32 v10, v10, v{P0 + k}, v{P0 + k + 1}')
    a(f'''
    v_and_b32 v10, 0xff, v10
    v_cmp_ne_u32 vcc, 0, v10
    s_and_b64 vcc, exec, vcc
    s_cbranch_scc1 {Lr}
    {Lr}_d:
    ''')

    def retry():
        a.label(Lr)
        a(f's_sub_u32 s{sCnt}, s{sCnt}, 1')
        a(f's_cbranch_scc1 {Lr}_d')
        for x in ld:
            a(x)
        a(f's_branch {Lc}')
    late.append(retry)
    Z = 140
    for k in range(0, 10, 2):
        a(f'v_pk_add_f32 {vr(Z + k, 2)}, {vr(P0 + k, 2)}, {vr(P0 + 10 + k, 2)}')
        a(f'v_pk_add_f32 {vr(P0 + 20 + k, 2)}, {vr(P0 + 20 + k, 2)}, {vr(P0 + 30 + k, 2)}')
    for k in range(0, 10, 2):
        a(f'v_pk_add_f32 {vr(Z + k, 2)}, {vr(Z + k, 2)}, {vr(P0 + 20 + k, 2)}')
    for t in range(2):
        a(f'v_cvt_pk_bf16_f32 v{Ra + 4 * t}, v{Z + t}, v{Z + 2 + t}')
        a(f'v_cvt_pk_bf16_f32 v{Ra + 4 * t + 1}, v{Z + 4 + t}, v{Z + 6 + t}')
        a(f'v_cvt_pk_bf16_f32 v{Ra + 4 * t + 2}, v{Z + 8 + t}, 0')
        a(f'v_mov_b32 v{Ra + 4 * t + 3}, 0')
    row_fwd()
    a('s_mov_b32 exec_lo, 0x37773777')
    a('s_mov_b32 exec_hi, 0x37773777')
    for u in range(2):
        for r in range(4):
            a(f'ds_write2_b32 v{116 + u}, v{RD + 8 * u + r}, v{RD + 8 * u + 4 + r} offset0:{80 * r} offset1:{80 * r + 1}')
    a('s_mov_b64 exec, -1')
    a('s_waitcnt lgkmcnt(0)')
    stamp('sa done', 'H1')
    a.label(Ls)


def helper_tail(h, P, red_load, red_work, modf_load, modf_work):
    bar('BT')
    if BG:
        if h == 1:
            a(f's_waitcnt vmcnt({BG - 1})')
        bar('BG')
    bar('BP')
    if WPOS == 1:
        warm_issue(h, 0)
    if h == 0:
        is_b()
        a('s_cbranch_scc0 L_pl')
        publish()
        a.label('L_pl')
    a(f's_cmp_ge_u32 s{sIdx}, {NJ}')
    a(f's_cbranch_scc1 L_idle{h}')
    if NS and h == 1:
        assert not (K1 or K2)
        sa_spectrum(0)
    bar('B2')
    if not RI:
        red_load()
    w_gather(W_R if h else W_I, WST + (0 if h else 8192))
    bar('B3')
    a('s_waitcnt vmcnt(0)')
    stamp('W in', P)
    if NS and h == 1 and SAL == 1:
        sa_spectrum(1)
    if RE and not RI:
        red_work()
    bar('B3b')
    if AL1:
        if K1 and h == 1:
            can_wait(114, K1)
        bar('B3c')
    if K2 and h == 1:
        can_touch(110)
    if NS and h == 1:
        if SAL == 0:
            sa_spectrum(1)
        sa_spectrum(2)
    if h == 0:
        touch_small()
    if not RE and not RI:
        red_work()
    bar('B4')
    a('s_waitcnt vmcnt(0)')
    modf_load()
    if EG3:
        if_e(lambda: e_gather(1 - h, 0, EG3))
    bar('B5')
    if h == 0:
        a(f's_cmp_lt_u32 s{sRi}, 20')
        a(f's_waitcnt vmcnt({EG3})')
        a('s_cbranch_scc0 L_h0_m')
        a('s_waitcnt vmcnt(0)')
        a.label('L_h0_m')
    modf_work()
    bar('B5b')
    if AL2:
        if K2 and h == 1:
            can_wait(110, K2)
        bar('B5c')
    if S_W[2] == 8:
        warm_addr_f(h, 8)
    if W8 == 0:
        bar('B6')
    if S_W[2] == 8:
        a(f's_cmp_lt_u32 s{sRi}, 20')
        a(f's_cbranch_scc0 L_w8{h}')
        warm_issue(h, 8)
        a.label(f'L_w8{h}')
    if W8 == 1:
        bar('B6')
    if_e(lambda: (e_gather(1 - h, EG3, 20), wd_load(1 - h) if S_W[2] != 8 else None))
    if h == 0:
        a(f'''
        s_cmp_lg_u32 s2, 8
        s_cbranch_scc1 L_h0_ne
        v_mov_b32 v26, {EPOCH_G}
        s_mov_b64 exec, 1
        global_store_dword v26, v27, {sr(WS)} sc1
        s_mov_b64 exec, -1
        ''')
        a.label('L_h0_ne')
    a.label(f'L_hend{h}')
    a(f'''
    v_mul_u32_u24 v60, {REC_STRIDE}, v{vL}
    v_add_u32 v60, {REC_G + 128 * h * REC_STRIDE}, v60
    v_add_u32 v61, {64 * REC_STRIDE}, v60
    v_mov_b32 v62, {KEYL + 4}
    v_and_b32 v63, 15, v{vL}
    v_lshlrev_b32 v63, 7, v63
    v_add_u32 v63, {REC_G + REC_H2}, v63
    s_movk_i32 s{sU0}, {REC_STRIDE}
    s_cmp_lt_u32 s{sRi}, 20
    ''')
    bar('B7')
    a('s_waitcnt vmcnt(0)')
    a(f's_cbranch_scc1 L_hx{h}')
    if S_W[2] == 8:
        assert FWL and IWD
        wd_load(1 - h)
    kl = [f'global_load_dwordx2 v[64:65], v60, {sr(WS)} sc1', f'global_load_dwordx2 v[66:67], v61, {sr(WS)} sc1']
    if KP == 1:
        bar('B7b')
    if KD:
        bar('B7c')
    stamp('key poll', P)
    poll(kl, [65, 67], [68, 69], empty='word', between=(lambda: bar('B7b')) if KP == 0 else ((lambda: bar('B7d')) if OE == 3 else None))
    a('v_max_u32 v64, v64, v66')
    for c in ('row_ror:8', 'row_ror:4', 'row_ror:2', 'row_ror:1'):
        dpp('v_max_u32', 64, c)
    a(f'''
    s_mov_b32 exec_lo, 0x00010001
    s_mov_b32 exec_hi, 0x00010001
    ds_max_u32 v62, v64
    s_mov_b64 exec, -1
    ''')
    if PF == 1:
        a(f'''
        v_and_b32 v65, 255, v64
        v_mad_u32_u24 v63, v65, s{sU0}, v63
        global_load_dword v65, v63, {sr(WS)} sc1
        ''')
    if PF == 2:
        dpp('v_max_u32', 64, 'row_bcast:15', '0xa')
        dpp('v_max_u32', 64, 'row_bcast:31', '0xc')
        a(f'''
        s_mov_b32 exec_lo, 0
        s_mov_b32 exec_hi, 0xffff0000
        v_and_b32 v65, 255, v64
        v_mad_u32_u24 v63, v65, s{sU0}, v63
        global_load_dword v65, v63, {sr(WS)} sc1
        s_mov_b64 exec, -1
        ''')
    a('s_waitcnt lgkmcnt(0)')
    bar('B8')
    if h == 0:
        finalizer()
    a.label(f'L_hx{h}')
    stamp('end', P)
    dump_stamps(P)
    a('s_endpgm')
    a.label(f'L_idle{h}')
    warm_addr_f(h, 7)
    ps = ffn_parts(7)
    bar('B2')
    if RI < 2:
        red_load()
    if h == 1:
        a('s_waitcnt vmcnt(0)')
        can_touch(110)
    warm_issue(h, 7, ps[:EARLY])
    bar('B3')
    if RI == 2:
        red_load()
    if RE and h == 0:
        a(f's_waitcnt vmcnt({len(ps[:EARLY]) if RI < 2 else 0})')
        red_work()
        red_work = lambda: None
    bar('B3b')
    ieg = IEG
    if ISEQ == 0:
        warm_issue(h, 7, ps[EARLY:])
        if h == 0:
            a(f's_waitcnt vmcnt({len(ps)})')
            red_work()
            touch_small()
        nd = sum(1 for n, k in ps[EARLY:] if n == 2)
        a(f's_waitcnt vmcnt({nd + (NT if h == 0 else 0)})')
        stamp('warm in', P)
        e_gather(1 - h, 0, MF)
        modf_load()
        e_gather(1 - h, MF, IEG)
        if IWD == 0:
            wd_load(1 - h)
        if h == 0:
            a(f's_waitcnt vmcnt({IEG - MF + 10 * (IWD == 0)})')
        modf_work()
        bar('B5b')
    else:
        assert EARLY == 2 and S_W[0] == 7
        if h == 0:
            a(f's_waitcnt vmcnt({EARLY})')
            red_work()
            touch_small()
        a(f's_waitcnt vmcnt({NT if h == 0 else 0})')
        stamp('warm in', P)
        e_gather(1 - h, 0, 10)
        if ISEQ == 2:
            a('s_waitcnt vmcnt(0)')
            warm_issue(h, 7, ps[EARLY:])
        if h == 0:
            if ISEQ == 1:
                a('s_waitcnt vmcnt(0)')
            modf_load()
            a('s_waitcnt vmcnt(0)')
        modf_work()
        bar('B5b')
        if ISEQ == 1:
            warm_issue(h, 7, ps[EARLY:])
        ieg = max(IEG, 10)
        if ieg > 10:
            a('s_waitcnt vmcnt(0)')
            e_gather(1 - h, 10, ieg)
    if KR:
        L = newlabel('kr')
        a(f'''
        s_cmp_lg_u32 s{sIdx}, 31
        s_cbranch_scc1 {L}
        v_mul_u32_u24 v60, {REC_STRIDE}, v{vL}
        v_add_u32 v60, {REC_G + 128 * h * REC_STRIDE}, v60
        v_add_u32 v61, {64 * REC_STRIDE}, v60
        global_load_dword v64, v60, {sr(WS)} sc1
        global_load_dword v64, v61, {sr(WS)} sc1
        {L}:
        ''')
    a('s_waitcnt vmcnt(0)')
    stamp('ffn in', P)
    if h == 1:
        can_wait(110, KCAN)
        stamp('can', P)
    bar('B5c')
    bar('B6')
    e_gather(1 - h, ieg, 20)
    if IWD and S_W[2] != 8:
        wd_load(1 - h)
    a(f's_branch L_hend{h}')
    flush_late()


def helper0():
    a.label('L_h0')
    a(f's_mov_b32 s{sHI}, 0xffff0000')
    a(f'''
    v_mov_b32 v20, 0
    v_mov_b32 v21, 0
    v_mov_b32 v22, 0
    v_mov_b32 v23, 0
    v_mov_b32 v28, {KEYL}
    ds_write_b128 v28, v[20:23]
    ''')
    blk_id()
    warm_addr_w()
    warm_addr_f(0, 0)
    a('s_waitcnt lgkmcnt(0)')
    epoch_load()
    warm0(0, True)
    bar('B0 / B1')
    if PB:
        is_a()
        a('s_cbranch_scc0 L_h0_v')
        bar('B1b')
        a.label('L_h0_v')
    if WPOS == 0:
        warm0(0, False)
    stamp('kernarg', 'H0')
    e_addr(W_U)
    w_addr()
    a('s_waitcnt lgkmcnt(0)')
    epoch_tag()
    tag_bytes()
    pub_setup(sTag)
    if RI:
        a(f'''
        s_mul_i32 s{sCand}, s{sX}, 5
        s_add_u32 s{sCand}, s{sCand}, s{sIdx}
        s_sub_u32 s{sCand}, s{sCand}, 2
        s_and_b32 s{sCand}, s{sCand}, 63
        ''')
    else:
        a(f's_lshr_b32 s{sCand}, s{sBlk}, 2')
    a(f's_lshl_b32 s{sU2}, s{sCand}, 10')
    base_add(sPb, WS, sU2)
    a(f'''
    v_mov_b32 v27, s{sTag}
    v_lshlrev_b32 v29, 3, v{vL}
    v_add_u32 v29, {MODB_L}, v29
    v_add_u32 v30, {MODF_G}, v{vL16}
    v_add_u32 v31, {MODF_G + 4096}, v{vL16}
    v_add_u32 v32, {MODF_G + 8192}, v{vL16}
    ''')
    if TF:
        is_b()
        a('s_cbranch_scc0 L_tf')
        if 'b' in TF:
            a(f'v_lshl_add_u32 v36, s{sBlk}, 8, v{vL4}')
            a(f'global_store_dword v36, v20, {sr(WS)} sc1')
        if 'f' in TF:
            assert not RI
            a(f'''
            s_and_b32 s{sT}, s{sBlk}, 3
            s_cbranch_scc1 L_tf
            s_lshl_b32 s{sU0}, s{sCand}, 8
            s_add_u32 s{sU0}, s{sU0}, {MODF_G - 20 * 256}
            v_add_u32 v48, s{sU0}, v{vL16}
            s_mov_b64 exec, 0xffff
            global_store_dwordx4 v48, v[20:23], {sr(WS)} sc1
            s_mov_b64 exec, -1
            ''')
        a.label('L_tf')
    red = [f'global_load_dwordx4 v[40:43], v{vL16}, {sr(sPb)} sc1']
    modf = [f'global_load_dwordx4 {vr(40 + 4 * n, 4)}, v{30 + n // 4}, {sr(WS)} offset:{1024 * (n % 4)} sc1' for n in range(10)]

    def in_w1(k):
        L = newlabel('nr')
        if RI:
            a(f's_cmp_lt_u32 s{sIdx}, {NJ + 5}')
            a(f's_cbranch_scc0 {L}')
        else:
            a(f'''
            s_sub_u32 s{sT}, s{sBlk}, 80
            s_cmp_lt_u32 s{sT}, 160
            s_cbranch_scc0 {L}
            s_and_b32 s{sT}, s{sBlk}, 3
            s_cbranch_scc1 {L}
            ''')
        if k == 0:
            a(red[0])
            a.label(L)
            return
        poll(red, [40, 41, 42, 43], [44], empty='tag', issued=True, younger=63)
        a(f'''
        v_mov_b32 v44, v40
        v_mov_b32 v45, v41
        v_mov_b32 v46, v42
        v_mov_b32 v47, v43
        s_mov_b32 s{sU0}, s{sCand}
        s_sub_u32 s{sT}, s{sU0}, 40
        s_cmp_lt_u32 s{sT}, 10
        s_cselect_b32 s{sU1}, 1.0, 0
        s_lshl_b32 s{sU0}, s{sU0}, 8
        s_add_u32 s{sU0}, s{sU0}, {MODF_G - 20 * 256}
        ''')
        for sw in ('32', '16'):
            for r in range(4):
                a(f'v_permlane{sw}_swap_b32 v{40 + r}, v{44 + r}')
            a('v_pk_add_f32 v[40:41], v[40:41], v[44:45]')
            a('v_pk_add_f32 v[42:43], v[42:43], v[46:47]')
            if sw == '32':
                for r in range(4):
                    a(f'v_mov_b32 v{44 + r}, v{40 + r}')
        a('v_cvt_pk_bf16_f32 v44, v40, v41')
        a('v_cvt_pk_bf16_f32 v45, v42, v43')
        unpack(40, 41, 44)
        unpack(42, 43, 45)
        for r in range(4):
            a(f'v_add_f32 v{40 + r}, s{sU1}, v{40 + r}')
        a(f'''
        v_cvt_pk_bf16_f32 v44, v40, v41
        v_cvt_pk_bf16_f32 v45, v42, v43
        v_mov_b32 v47, s{sTag}
        v_add_u32 v48, s{sU0}, v{vL16}
        s_mov_b64 exec, 0xffff
        global_store_dwordx4 v48, v[44:47], {sr(WS)} sc1
        s_mov_b64 exec, -1
        ''')
        stamp('reduced', 'H0')
        a.label(L)

    def in_w2(k):
        if k == 0:
            for ld in modf:
                a(ld)
            return
        poll(modf, [43 + 4 * n for n in range(10)], list(range(80, 90)), empty='words', issued=True, younger=63)
        for n in range(10):
            a(f'ds_write_b64 v29, {vr(40 + 4 * n, 2)} offset:{512 * n}')
        a('s_waitcnt lgkmcnt(0)')
        stamp('modb in', 'H0')
    helper_tail(0, 'H0', lambda: in_w1(0), lambda: in_w1(2), lambda: in_w2(0), lambda: in_w2(1))


def helper1():
    a.label('L_h1')
    a(f'''
    s_getpc_b64 {sr(sBa)}
    L_pc:
    s_add_u32 s{sBb}, s{sBa}, L_tables-L_pc
    s_addc_u32 s{sBb + 1}, s{sBa + 1}, 0
    ''')

    def tabs(q0, q1):
        for q in range(q0, q1):
            if q % 4 == 0 or q == q0:
                a(f's_mov_b32 m0, {TAB + (q & ~3) * 1024}')
                a(f'v_add_u32 v20, {(q & ~3) * 1024}, v{vL16}')
            a(f'global_load_lds_dwordx4 v20, {sr(sBb)} offset:{1024 * (q % 4)}')

    def tab2():
        tabs(NT1, NTAB)
        a(f'''
        s_mov_b32 m0, {WR_L}
        global_load_lds_dwordx4 v{vL16}, {sr(B_WR)}
        s_mov_b64 exec, 0xffff
        global_load_lds_dwordx4 v{vL16}, {sr(B_WR)} offset:1024
        s_mov_b64 exec, -1
        ''')
        return NTAB - 14 + 2

    if AT == 2:
        tabs(0, NT1)
    warm_addr_w()
    warm_addr_f(1, 0)
    a('s_waitcnt lgkmcnt(0)')
    epoch_load()
    if AT == 0:
        blk_id()
        is_a()
        a('s_cbranch_scc0 L_h1_t')
        bar('B1')
        if PB:
            bar('B1b')
        a.label('L_h1_t')
    if AT < 2:
        tabs(0, NT1)
    if HB:
        e_addr(W_G)
        w_addr()
    if AT == 0:
        is_a()
        a('s_cbranch_scc1 L_h1_v')
    if AT:
        blk_id()
    warm0(1, True)
    bar('B0 / B1')
    if AT and PB:
        is_a()
        a('s_cbranch_scc0 L_h1_v')
        bar('B1b')
    a.label('L_h1_v')
    tab2()
    can_addr()
    if K1:
        can_touch(114)
    if WPOS == 0:
        warm0(1, False)
    if not HB:
        e_addr(W_G)
        w_addr()
    a('s_waitcnt lgkmcnt(0)')
    epoch_tag()
    a(f's_waitcnt vmcnt({NTAB - NT1 + 2 + (K1 > 0) + (1 + len(ffn_parts(0))) * (WPOS == 0 and not W20)})')
    stamp('tab in', 'H1')
    nop = lambda: None
    helper_tail(1, 'H1', nop, nop, nop, nop)


prologue()
main_path()
helper0()
helper1()
body = a.finish()


def sizes_of(text):
    tmp = f'_sz{os.getpid()}'
    open(tmp + '.s', 'w').write(f'.amdgcn_target "amdgcn-amd-amdhsa--gfx950"\n.text\n{NAME}_kernel:\n{text}\n.p2align 8\nL_tables:\n.fill 40960,1,0\nL_tables_end:\n')
    r = subprocess.run(['clang', '-x', 'assembler', '-target', 'amdgcn-amd-amdhsa', '-mcpu=gfx950', '-c', tmp + '.s', '-o', tmp + '.o'],
                       capture_output=True, text=True)
    assert r.returncode == 0, r.stderr
    d = subprocess.run(['llvm-objdump', '-d', '--mcpu=gfx950', tmp + '.o'], capture_output=True, text=True).stdout
    sz = [4 * len(m.group(1).split()) for m in re.finditer(r'// [0-9A-F]+: ([0-9A-F ]+)', d)]
    lines = [l for l in text.split('\n') if l.strip()]
    res, k = [], 0
    for l in lines:
        if l.split(';')[0].strip().endswith(':'):
            res.append(0)
        else:
            res.append(sz[k])
            k += 1
    os.remove(tmp + '.s'); os.remove(tmp + '.o')
    return lines, res


ALIGN = int(opt('align', 0))
if ALIGN:
    lines_, sz_ = sizes_of(body)
    lines_, st_ = align_runs(lines_, sz_, minrun=ALIGN, padrun=int(opt('padrun', 6)))
    body = '\n'.join(lines_) + '\n'
    l2, s2 = sizes_of(body)
    off = bad = 0
    for x in s2:
        if x == 8 and off % 32 == 28:
            bad += 1
        off += x
    off = bad0 = 0
    for x in sz_:
        if x == 8 and off % 32 == 28:
            bad0 += 1
        off += x
    print('align: widened/nop-split/before-wait/padded', st_, 'straddles', bad0, '->', bad)

hdr = open(f'cdna_kernels/{NAME}.s.ref').read().split('; Override launch')[0]
T = tables()
tab = []
flat = T.reshape(-1)
for k in range(0, flat.size, 8):
    tab.append('.long ' + ','.join('0x%08x' % v for v in flat[k:k + 8]))

launch = f'; @launch grid=(256,1,1) block=(640,1,1) lds={LDS_BYTES}'
pre_code = pre_kd = ''
if PRE:
    launch = f'; @launch kernel=pre_kernel grid=({PRE},1,1) block=(64,1,1) lds=0\n; @launch kernel={NAME}_kernel grid=(256,1,1) block=(640,1,1) lds={LDS_BYTES}'
    pre_code = '.globl pre_kernel\n.p2align 8\n.type pre_kernel,@function\npre_kernel:\n    s_endpgm\n'
    pre_kd = '''.p2align 6
.amdhsa_kernel pre_kernel
  .amdhsa_next_free_vgpr 8
  .amdhsa_next_free_sgpr 16
  .amdhsa_accum_offset 8
  .amdhsa_group_segment_fixed_size 0
  .amdhsa_kernarg_size 104
  .amdhsa_user_sgpr_count 2
  .amdhsa_user_sgpr_kernarg_segment_ptr 1
  .amdhsa_system_sgpr_workgroup_id_x 1
.end_amdhsa_kernel
'''
src = hdr + f'''{launch}
.amdgcn_target "amdgcn-amd-amdhsa--gfx950"
.text
; ---------------------------------------------------------------------------------------------------------------
; One persistent launch: 256 workgroups (one per CU), 8 row/column waves + 2 helper waves each.
;   mod   : silu(c) @ w_mod in 240 blocks (64 columns x 160 rows); partial sums are handed over through d_ws
;   P1    : workgroup c owns rows 256a+c: LayerNorm, scale, real DFT-640 (20 x 32, bf16 MFMA), radix-8 over a
;           (the shift is the same for every row: its spectrum is added to row-frequency 0 in P2)
;   P2    : 176 workgroups own 15 columns of one residue q: DFT-256 (16 x 16), filter, inverse DFT-256
;   P3    : inverse radix-8, inverse DFT-640, residual, LayerNorm, router score, output rows
;   FFN   : arg-max over per-workgroup keys, 96 workgroups x 16 hidden units, 80 waves update the selected row
; Hand-offs between workgroups: write-through (sc1) stores carrying a per-launch tag, sc1 loads re-issued until the
; tag is seen (bounded). The tag is derived from one d_ws word that is advanced later in the same launch; every
; tagged slot is rewritten by every launch. Workgroup numbering only arranges for L2 locality.
; Generated by a script; hazard wait states (s_nop) are inserted per the ISA tables.
; ---------------------------------------------------------------------------------------------------------------
{pre_code}.globl {NAME}_kernel
.p2align 8
.type {NAME}_kernel,@function
{NAME}_kernel:
{body}
.p2align 8
.type L_tables,@object
L_tables:
''' + '\n'.join(tab) + f'''
.size L_tables, {NTAB * 1024}
.fill (8192 - ((. - {NAME}_kernel) & 8191)) & 8191, 1, 0
L_tables_end:
.section .rodata,"a"
.p2align 6
.amdhsa_kernel {NAME}_kernel
  .amdhsa_next_free_vgpr 168
  .amdhsa_next_free_sgpr 102
  .amdhsa_accum_offset 168
  .amdhsa_group_segment_fixed_size 0
  .amdhsa_kernarg_size 104
  .amdhsa_user_sgpr_count 2
  .amdhsa_user_sgpr_kernarg_segment_ptr 1
  .amdhsa_system_sgpr_workgroup_id_x 1
.end_amdhsa_kernel
{pre_kd}'''
open(OUT, 'w').write(src)
print('wrote', OUT, 'lds', LDS_BYTES, 'lines', len(a.lines), 'nops', a.nnops)
```
